```python
import torch

def _softmax(x, axis=-1):
    return torch.softmax(x, dim=axis)
def _gelu(x):
    return torch.nn.functional.gelu(x, approximate="tanh")
def _silu(x):
    return torch.nn.functional.silu(x)
def _sigmoid(x):
    return torch.sigmoid(x)
def _layernorm(x, axis=-1, eps=1e-5):
    m = x.mean(dim=axis, keepdim=True)
    v = x.var(dim=axis, keepdim=True, unbiased=False)
    return (x - m) / torch.sqrt(v + eps)
def _scatter_add(tgt, idx, src, axis=0):
    return tgt.clone().index_add_(axis, idx, src)
def _segment_sum(src, seg, n):
    out = torch.zeros((n,) + src.shape[1:], dtype=src.dtype)
    return out.index_add_(0, seg, src)
def _pad(x, pw):
    flat = tuple(v for pair in reversed(pw) for v in pair)
    return torch.nn.functional.pad(x, flat)

kernel_name = 'gated_mix__ssm_conv_s5__dense_activation_squared_relu__prompt'

def setup_inputs():

    _w = (lambda a: (lambda t: t.to(torch.bfloat16) if t.is_floating_point() else t)(torch.as_tensor(a)))
    def _A_setup():
        B, S, D = 1, 2048, 1024
        P = D
        Lambda_re = -0.5 * (lambda _x: torch.exp(torch.as_tensor(_x)))((lambda *s: torch.randn(*s, dtype=torch.bfloat16) * 0.4)(P))
        Lambda_im = (lambda *s: torch.randn(*s, dtype=torch.bfloat16) * 0.8)(P) * 1.0
        B_re = (lambda *s: torch.randn(*s, dtype=torch.bfloat16) * 0.8)(P, D) * (D ** -0.5)
        B_im = (lambda *s: torch.randn(*s, dtype=torch.bfloat16) * 0.8)(P, D) * (D ** -0.5)
        C_re = (lambda *s: torch.randn(*s, dtype=torch.bfloat16) * 0.8)(D, P) * (P ** -0.5)
        C_im = (lambda *s: torch.randn(*s, dtype=torch.bfloat16) * 0.8)(D, P) * (P ** -0.5)
        log_dt = (lambda *s: torch.randn(*s, dtype=torch.bfloat16) * 0.4)(P) * 0.3 - 2.0
        Dskip = (lambda *s: torch.randn(*s, dtype=torch.bfloat16) * 0.1)(D)
        return {
            "x": _w((lambda *s: torch.randn(*s, dtype=torch.bfloat16) * 0.05)(B, S, D)),
            "Lambda_re": _w(Lambda_re),
            "Lambda_im": _w(Lambda_im),
            "B_re": _w(B_re),
            "B_im": _w(B_im),
            "C_re": _w(C_re),
            "C_im": _w(C_im),
            "log_dt": _w(log_dt),
            "Dskip": _w(Dskip),
        }
    _A_in = _A_setup()

    def _B_setup():
        B, S, D, F = 1, 2048, 1024, 3584
        return {
            "x": _w((lambda *s: torch.randn(*s, dtype=torch.bfloat16) * 0.05)(B, S, D)),
            "w1": _w((lambda *s: torch.randn(*s, dtype=torch.bfloat16) * 0.05)(D, F)),
            "b1": _w((lambda *s: torch.randn(*s, dtype=torch.bfloat16) * 0.05)(F)),
            "w2": _w((lambda *s: torch.randn(*s, dtype=torch.bfloat16) * 0.05)(F, D)),
            "b2": _w((lambda *s: torch.randn(*s, dtype=torch.bfloat16) * 0.05)(D)),
        }
    _B_in = _B_setup()

    return {
        "A_x": _A_in["x"],
        "A_Lambda_re": _A_in["Lambda_re"],
        "A_Lambda_im": _A_in["Lambda_im"],
        "A_B_re": _A_in["B_re"],
        "A_B_im": _A_in["B_im"],
        "A_C_re": _A_in["C_re"],
        "A_C_im": _A_in["C_im"],
        "A_log_dt": _A_in["log_dt"],
        "A_Dskip": _A_in["Dskip"],
        "B_x": _B_in["x"],
        "B_w1": _B_in["w1"],
        "B_b1": _B_in["b1"],
        "B_w2": _B_in["w2"],
        "B_b2": _B_in["b2"],
        "gate_w": _w((lambda *s: torch.randn(*s, dtype=torch.bfloat16) * 0.05)(1024) * 16.0),
    }

def reference(A_x, A_Lambda_re, A_Lambda_im, A_B_re, A_B_im, A_C_re, A_C_im, A_log_dt, A_Dskip, B_x, B_w1, B_b1, B_w2, B_b2, gate_w):
    def _A_ref(x, Lambda_re, Lambda_im, B_re, B_im, C_re, C_im, log_dt, Dskip):
        Bsz, L, H = x.shape
        Lam = Lambda_re + 1j * Lambda_im
        Bmat = B_re + 1j * B_im
        Cmat = C_re + 1j * C_im
        dt = torch.exp(log_dt)
        Lam_bar = torch.exp(dt * Lam)
        B_bar = ((Lam_bar - 1.0) / Lam)[:, None] * Bmat
        Bu = torch.einsum("bld,pd->blp", x + 0j, B_bar)
        h = torch.zeros_like(Bu[:, 0, :])
        hs = []
        for t in range(L):
            h = Lam_bar[None, :] * h + Bu[:, t, :]
            hs.append(h)
        hseq = torch.stack(hs, 1)
        y = 2.0 * torch.einsum("blp,dp->bld", hseq, Cmat).real + x * Dskip[None, None, :]
        return y

    def _B_ref(x, w1, b1, w2, b2):
        h = torch.einsum("bsd,df->bsf", x, w1) + b1
        zero = torch.zeros_like(h)
        r = torch.where(h > zero, h, zero)
        h = r * r
        out = torch.einsum("bsf,fd->bsd", h, w2) + b2
        return out

    x = A_x
    g = _sigmoid((x * gate_w).sum(-1, keepdims=True))
    a = _A_ref(x, A_Lambda_re, A_Lambda_im, A_B_re, A_B_im, A_C_re, A_C_im, A_log_dt, A_Dskip)
    b = _B_ref(x, B_w1, B_b1, B_w2, B_b2)
    return g * a + (1 - g) * b
```

```python
class Asm:
    def __init__(self):
        self.lines = []
    def __call__(self, s):
        for ln in s.strip("\n").split("\n"):
            self.lines.append("    " + ln.strip())
    def label(self, l):
        self.lines.append(l + ":")
    def raw(self, s):
        self.lines.append(s)
    def c(self, s):
        self.lines.append("    ; " + s)
    def text(self):
        return "\n".join(self.lines) + "\n"

def vr(base, n=1):
    return f"v{base}" if n == 1 else f"v[{base}:{base+n-1}]"
def sr(base, n=1):
    return f"s{base}" if n == 1 else f"s[{base}:{base+n-1}]"

def kernel_header(a, name):
    a.raw(f".globl {name}")
    a.raw(".p2align 8")
    a.raw(f".type {name},@function")
    a.raw(f"{name}:")

def kernel_desc(name, vgpr, sgpr=96, accum=None, kernarg=144):
    if accum is None:
        accum = (vgpr + 3) // 4 * 4
    return f""".p2align 6
.amdhsa_kernel {name}
  .amdhsa_next_free_vgpr {vgpr}
  .amdhsa_next_free_sgpr {sgpr}
  .amdhsa_accum_offset {accum}
  .amdhsa_group_segment_fixed_size 0
  .amdhsa_kernarg_size {kernarg}
  .amdhsa_user_sgpr_count 2
  .amdhsa_user_sgpr_kernarg_segment_ptr 1
  .amdhsa_system_sgpr_workgroup_id_x 1
.end_amdhsa_kernel
"""

def interleave(main, fill, start=0, every=1):
    out = []
    fi = 0
    for i, m in enumerate(main):
        out.append(m)
        if i >= start and (i - start) % every == 0 and fi < len(fill):
            out.extend(fill[fi]); fi += 1
    while fi < len(fill):
        out.extend(fill[fi]); fi += 1
    return out
```

```python
import sys, math, json
from asmlib import *

L, D, P_, F = 2048, 1024, 1024, 3584
KC = 2048 + F
RS_A2 = KC * 2
KA = dict(x=0, lre=8, lim=16, bre=24, bim=32, cre=40, cim=48, ldt=56, dsk=64, bx=72, w1=80, b1=88, w2=96, b2=104, gw=112, out=120, dbg=128, ws=136)
WS_A2 = 0
WS_G = 24 << 20
WS_AGG = WS_G + (1 << 16)
WS_FL = WS_AGG + (1 << 17)
WS_ST = WS_FL + (1 << 16)
WS_XB = 32 << 20
WS_SIZE = 268435456
LOG2E = 0x3fb8aa3b
INV2PI = 0x3e22f983

class Regs:
    def __init__(self, start, limit):
        self.n = start; self.limit = limit; self.hi = start
    def get(self, k=1, align=1):
        self.n = (self.n + align - 1) // align * align
        r = self.n; self.n += k
        self.hi = max(self.hi, self.n)
        assert self.n <= self.limit, f"out of registers {self.n} > {self.limit}"
        return r

def srd(a, s, ptr_lo, size, add=0):
    if add:
        a(f"s_add_u32 s{s}, s{ptr_lo}, {add}")
        a(f"s_addc_u32 s{s+1}, s{ptr_lo+1}, 0")
    else:
        if s != ptr_lo:
            a(f"s_mov_b32 s{s}, s{ptr_lo}")
            a(f"s_mov_b32 s{s+1}, s{ptr_lo+1}")
    a(f"s_mov_b32 s{s+2}, {size}")
    a(f"s_mov_b32 s{s+3}, 0x20000")

class OpKC:
    def __init__(self, a, V, T, lds_off, nfr, NW=8):
        self.a, self.T, self.lds_off, self.nfr = a, T, lds_off, nfr
        self.n = T // 8 // NW
        assert self.n * 8 * NW == T
        self.vd = V.get(self.n)
        self.b0 = V.get(); self.b1 = V.get(); self.c0 = V.get(); self.c1 = V.get()
        self.bytes = T * 128
        self.srds = [None] * self.n
    def setup_dma(self, sWave, vLane, tmp, rowmap, srds, stmp):
        a = self.a; t0, t1, t2 = tmp, tmp + 1, tmp + 2
        self.srds = srds
        for j in range(self.n):
            rho_s, = [stmp]
            self.rho_base(j, sWave, stmp)
            a(f"v_lshrrev_b32 v{t0}, 3, v{vLane}")
            a(f"v_add_u32 v{t0}, s{stmp}, v{t0}")
            a(f"v_lshrrev_b32 v{t1}, 1, v{t0}")
            a(f"v_and_b32 v{t1}, 7, v{t1}")
            a(f"v_and_b32 v{t2}, 7, v{vLane}")
            a(f"v_xor_b32 v{t1}, v{t1}, v{t2}")
            a(f"v_lshlrev_b32 v{t1}, 4, v{t1}")
            rowmap(j, t0, t2)
            a(f"v_add_u32 v{self.vd+j}, v{t2}, v{t1}")
            if j % 4:
                a(f"v_subrev_u32 v{self.vd+j}, {(j%4)*1024}, v{self.vd+j}")
    def rho_base(self, j, sWave, stmp):
        self.a(f"s_mul_i32 s{stmp}, s{sWave}, {self.n*8}")
        if j: self.a(f"s_add_u32 s{stmp}, s{stmp}, {j*8}")
    def setup_lds(self, sWave, sLds):
        self.sLds = sLds
        self.a(f"s_mul_i32 s{sLds}, s{sWave}, {self.n*1024}")
        if self.lds_off: self.a(f"s_add_u32 s{sLds}, s{sLds}, {self.lds_off}")
    def dma(self, sBuf, sK, stmp, sWave=None):
        g = []
        for j in range(self.n):
            grp = []
            if j % 4 == 0:
                grp.append(f"s_add_u32 s{stmp}, s{sBuf}, s{self.sLds}")
                if j: grp.append(f"s_add_u32 s{stmp}, s{stmp}, {j*1024}")
                grp.append(f"s_mov_b32 m0, s{stmp}")
                grp.append("s_nop 0")
            off = f" offset:{(j%4)*1024}" if j % 4 else ""
            s = self.srds[j]
            grp.append(f"buffer_load_dwordx4 v{self.vd+j}, s[{s}:{s+3}], s{sK} offen{off} lds")
            g.append(grp)
        return g
    def count(self): return self.n
    def setup_read(self, sFrag0, vLane, tmp, stmp):
        a = self.a; t0, t1, t2 = tmp, tmp + 1, tmp + 2
        a(f"v_and_b32 v{t0}, 15, v{vLane}")
        a(f"v_lshrrev_b32 v{t1}, 4, v{vLane}")
        a(f"v_lshrrev_b32 v{t2}, 1, v{t0}")
        a(f"v_xor_b32 v{t1}, v{t1}, v{t2}")
        a(f"v_lshlrev_b32 v{t1}, 4, v{t1}")
        a(f"v_lshlrev_b32 v{t0}, 7, v{t0}")
        a(f"v_add_u32 v{t0}, v{t0}, v{t1}")
        a(f"s_lshl_b32 s{stmp}, s{sFrag0}, 11")
        if self.lds_off: a(f"s_add_u32 s{stmp}, s{stmp}, {self.lds_off}")
        a(f"v_add_u32 v{self.b0}, s{stmp}, v{t0}")
        a(f"v_xor_b32 v{self.b1}, 64, v{self.b0}")
    def init_cur(self):
        return [f"v_mov_b32 v{self.c0}, v{self.b0}", f"v_mov_b32 v{self.c1}, v{self.b1}"]
    def reads(self, ks, dst):
        c = self.c1 if ks else self.c0
        return [[f"ds_read_b128 {vr(dst+4*i,4)}, v{c} offset:{i*2048}"] for i in range(self.nfr)]
    def upd_A(self, sBuf): return [f"v_add_u32 v{self.c0}, s{sBuf}, v{self.b0}"]
    def upd_B(self, sBuf): return [f"v_add_u32 v{self.c1}, s{sBuf}, v{self.b1}"]

class OpNC:
    def __init__(self, a, V, T, lds_off, nfr, RS, NW=8):
        self.a, self.T, self.lds_off, self.nfr, self.RS = a, T, lds_off, nfr, RS
        self.RP = T * 2
        self.CH = self.RP // 16
        self.total = self.CH
        self.n = -(-self.total // NW)
        self.even = (self.total % NW == 0)
        self.nbig = self.total - (self.n - 1) * NW if not self.even else NW
        self.vd = V.get(self.n)
        np_ = self.RP // 32
        if np_ % 8 == 0: self.gb = 3
        elif np_ % 4 == 0: self.gb = 2
        else: self.gb = 1
        self.nres = min(1 << self.gb, nfr)
        self.base = V.get(self.nres); self.cur = V.get(self.nres)
        self.bytes = 64 * self.RP
    def g_py(self, k):
        if self.gb == 3: return (k & 3) | (((k >> 3) & 1) << 2)
        if self.gb == 2:
            return ((k >> 1) & 1) | (((k >> 3) & 1) << 1)
        return (k >> 3) & 1
    def g_asm(self, vk, vo, t):
        a = self.a
        if self.gb == 3:
            a(f"v_and_b32 v{vo}, 3, v{vk}")
            a(f"v_bfe_u32 v{t}, v{vk}, 3, 1")
            a(f"v_lshl_or_b32 v{vo}, v{t}, 2, v{vo}")
        elif self.gb == 2:
            a(f"v_bfe_u32 v{vo}, v{vk}, 1, 1")
            a(f"v_bfe_u32 v{t}, v{vk}, 3, 1")
            a(f"v_lshl_or_b32 v{vo}, v{t}, 1, v{vo}")
        else:
            a(f"v_bfe_u32 v{vo}, v{vk}, 3, 1")
    def idx0(self, sWave, sOut, stmp):
        a = self.a
        if self.even:
            a(f"s_mul_i32 s{sOut}, s{sWave}, {self.n}")
        else:
            a(f"s_mul_i32 s{sOut}, s{sWave}, {self.n-1}")
            a(f"s_min_u32 s{stmp}, s{sWave}, {self.nbig}")
            a(f"s_add_u32 s{sOut}, s{sOut}, s{stmp}")
    def setup_dma(self, sWave, vLane, tmp, sCol0Bytes, srd_, stmp):
        a = self.a; t0, t1, t2, t3 = tmp, tmp + 1, tmp + 2, tmp + 3
        self.srd = srd_
        self.idx0(sWave, stmp, stmp + 1)
        magic = (1 << 20) // self.CH + 1
        for j in range(self.n):
            a(f"s_add_u32 s{stmp+1}, s{stmp}, {j}")
            a(f"s_lshl_b32 s{stmp+1}, s{stmp+1}, 6")
            a(f"v_add_u32 v{t0}, s{stmp+1}, v{vLane}")
            a(f"s_mov_b32 s{stmp+1}, {magic}")
            a(f"v_mul_lo_u32 v{t1}, v{t0}, s{stmp+1}")
            a(f"v_lshrrev_b32 v{t1}, 20, v{t1}")
            a(f"v_mul_u32_u24 v{t2}, {self.CH}, v{t1}")
            a(f"v_sub_u32 v{t0}, v{t0}, v{t2}")
            self.g_asm(t1, t2, t3)
            a(f"v_lshlrev_b32 v{t2}, 1, v{t2}")
            a(f"v_xor_b32 v{t0}, v{t0}, v{t2}")
            a(f"v_lshlrev_b32 v{t0}, 4, v{t0}")
            a(f"s_mov_b32 s{stmp+1}, {self.RS}")
            a(f"v_mul_lo_u32 v{t1}, v{t1}, s{stmp+1}")
            a(f"v_add3_u32 v{self.vd+j}, v{t0}, v{t1}, s{sCol0Bytes}")
            if j % 4:
                a(f"v_subrev_u32 v{self.vd+j}, {(j%4)*1024}, v{self.vd+j}")
        for L_ in range(self.total * 64):
            k = L_ // self.CH
            assert (L_ * magic) >> 20 == k and L_ * magic < (1 << 32)
    def setup_lds(self, sWave, sLds, stmp):
        self.sLds = sLds
        self.idx0(sWave, sLds, stmp)
        self.a(f"s_lshl_b32 s{sLds}, s{sLds}, 10")
        if self.lds_off: self.a(f"s_add_u32 s{sLds}, s{sLds}, {self.lds_off}")
    def dma(self, sBuf, sK, stmp, sWave=None):
        g = []
        for j in range(self.n):
            grp = []
            guard = (not self.even) and j == self.n - 1
            lbl = None
            if guard:
                OpNC.lc = getattr(OpNC, "lc", 0) + 1
                lbl = f"L_ncskip{OpNC.lc}"
                grp.append(f"s_cmp_lt_u32 s{sWave}, {self.nbig}")
                grp.append(f"s_cbranch_scc0 {lbl}")
            if j % 4 == 0:
                grp.append(f"s_add_u32 s{stmp}, s{sBuf}, s{self.sLds}")
                if j: grp.append(f"s_add_u32 s{stmp}, s{stmp}, {j*1024}")
                grp.append(f"s_mov_b32 m0, s{stmp}")
                grp.append("s_nop 0")
            off = f" offset:{(j%4)*1024}" if j % 4 else ""
            grp.append(f"buffer_load_dwordx4 v{self.vd+j}, s[{self.srd}:{self.srd+3}], s{sK} offen{off} lds")
            if guard: grp.append(f"{lbl}:")
            g.append(grp)
        return g
    def count(self):
        assert self.even
        return self.n
    def setup_read(self, sFrag0, vLane, tmp, stmp):
        a = self.a; t0, t1, t2, t3, t4 = tmp, tmp + 1, tmp + 2, tmp + 3, tmp + 4
        a(f"v_lshrrev_b32 v{t0}, 4, v{vLane}")
        a(f"v_lshlrev_b32 v{t0}, 3, v{t0}")
        a(f"v_bfe_u32 v{t1}, v{vLane}, 2, 2")
        a(f"v_add_u32 v{t0}, v{t0}, v{t1}")
        self.g_asm(t0, t1, t2)
        a(f"v_mul_u32_u24 v{t0}, {self.RP}, v{t0}")
        a(f"v_and_b32 v{t2}, 3, v{vLane}")
        a(f"v_lshlrev_b32 v{t2}, 3, v{t2}")
        a(f"v_add_u32 v{t0}, v{t0}, v{t2}")
        if self.lds_off: a(f"v_add_u32 v{t0}, {self.lds_off}, v{t0}")
        for r in range(self.nres):
            a(f"s_add_u32 s{stmp}, s{sFrag0}, {r}")
            a(f"v_xor_b32 v{t2}, s{stmp}, v{t1}")
            a(f"v_subrev_u32 v{t2}, {r}, v{t2}")
            a(f"v_lshlrev_b32 v{t2}, 5, v{t2}")
            a(f"v_add_u32 v{self.base+r}, v{t0}, v{t2}")
    def init_cur(self):
        return [f"v_mov_b32 v{self.cur+r}, v{self.base+r}" for r in range(self.nres)]
    def reads(self, ks, dst):
        g = []
        for i in range(self.nfr):
            r = i % (1 << self.gb)
            for h in range(2):
                off = 32 * i + (4 * h + 32 * ks) * self.RP
                g.append([f"ds_read_b64_tr_b16 {vr(dst+4*i+2*h,2)}, v{self.cur+r} offset:{off}"])
        return g
    def upd_A(self, sBuf): return [f"v_add_u32 v{self.cur+r}, s{sBuf}, v{self.base+r}" for r in range(self.nres)]
    def upd_B(self, sBuf): return []

class Seg:
    def __init__(self, P, Q, acc, nst, sKP, sKQ, kadv, name):
        self.P, self.Q, self.acc, self.nst, self.sKP, self.sKQ, self.kadv, self.name = P, Q, acc, nst, sKP, sKQ, kadv, name
    def count(self): return self.P.count() + self.Q.count()

class Gemm:
    lc = 0
    def __init__(self, a, V, NB, SB, mp, mq, sBufD, sBufR, sCnt, sTmp, sWave):
        self.a, self.NB, self.SB, self.mp, self.mq = a, NB, SB, mp, mq
        self.sBufD, self.sBufR, self.sCnt, self.sTmp, self.sWave = sBufD, sBufR, sCnt, sTmp, sWave
        self.F = []
        for s in range(2):
            p = V.get(4 * mp, 2); q = V.get(4 * mq, 2)
            self.F.append((p, q))
    def dma_groups(self, seg):
        d = seg.P.dma(self.sBufD, seg.sKP, self.sTmp, self.sWave) + seg.Q.dma(self.sBufD, seg.sKQ, self.sTmp, self.sWave)
        return d
    def reads(self, seg, ks, fs):
        p, q = self.F[fs]
        rp, rq = seg.P.reads(ks, p), seg.Q.reads(ks, q)
        out = []
        i = j = 0
        while i < len(rp) or j < len(rq):
            if j >= len(rq) or (i < len(rp) and i * len(rq) <= j * len(rp)):
                out.append(rp[i]); i += 1
            else:
                out.append(rq[j]); j += 1
        return out
    def mfmas(self, seg, fs):
        p, q = self.F[fs]
        m = []
        for i in range(self.mp):
            for j in range(self.mq):
                c = seg.acc + 4 * (i * self.mq + j)
                m.append(f"v_mfma_f32_16x16x32_bf16 {vr(c,4)}, {vr(p+4*i,4)}, {vr(q+4*j,4)}, {vr(c,4)}")
        return m
    def emit(self, lines):
        for x in lines:
            if x.endswith(":"): self.a.label(x[:-1])
            else: self.a(x)
    def spread(self, main, fill):
        n = len(main); k = len(fill)
        if k == 0: return list(main)
        span = max(1, int(n * 0.8))
        out = []; fi = 0
        for i, m in enumerate(main):
            out.append(m)
            while fi < k and (fi * span) // k <= i:
                out.extend(fill[fi]); fi += 1
        while fi < k:
            out.extend(fill[fi]); fi += 1
        return out
    def prologue_dma(self, stages):
        a = self.a
        a(f"s_mov_b32 s{self.sBufD}, 0")
        for s in range(min(self.NB, len(stages))):
            seg = stages[s]
            for g in self.dma_groups(seg): self.emit(g)
            self.emit(seg.kadv)
            a(f"s_add_u32 s{self.sBufD}, s{self.sBufD}, {self.SB}")
        a(f"s_mov_b32 s{self.sBufD}, 0")
        a(f"s_mov_b32 s{self.sBufR}, 0")
    def vm_after(self, stages, first, last_issued):
        return sum(stages[s].count() for s in range(first, last_issued + 1)) if self.NB > 2 else 0
    def body(self, cur, nxt, dma, vmw):
        a = self.a
        pre = [f"s_add_u32 s{self.sBufR}, s{self.sBufR}, {self.SB}", f"s_cmp_eq_u32 s{self.sBufR}, {self.SB*self.NB}",
               f"s_cselect_b32 s{self.sBufR}, 0, s{self.sBufR}"]
        self.emit(pre)
        a("s_waitcnt lgkmcnt(0)")
        fill = self.reads(cur, 1, 1)
        if nxt is not None:
            fill.append(nxt.P.upd_A(self.sBufR) + nxt.Q.upd_A(self.sBufR))
        self.emit(self.spread(self.mfmas(cur, 0), fill))
        if nxt is None:
            a("s_waitcnt lgkmcnt(0)")
            self.emit(self.mfmas(cur, 1))
            return
        a(f"s_waitcnt vmcnt({vmw}) lgkmcnt(0)")
        a("s_barrier")
        fill = self.reads(nxt, 0, 0)
        u = nxt.P.upd_B(self.sBufR) + nxt.Q.upd_B(self.sBufR)
        if dma is not None:
            d = self.dma_groups(dma)
            f2 = []
            i = j = 0
            while i < len(fill) or j < len(d):
                if j >= len(d) or (i < len(fill) and i * len(d) <= j * len(fill)):
                    f2.append(fill[i]); i += 1
                else:
                    f2.append(d[j]); j += 1
            fill = f2
            fill.append(list(dma.kadv))
        if u: fill.append(u)
        self.emit(self.spread(self.mfmas(cur, 1), fill))
        a(f"s_mov_b32 s{self.sBufD}, s{self.sBufR}")
    def run(self, stages, after_first_wait=None):
        a = self.a; NB = self.NB; N = len(stages)
        a(f"s_waitcnt vmcnt({self.vm_after(stages, 1, min(NB, N) - 1)})")
        a("s_barrier")
        s0 = stages[0]
        seen = []
        for sg in stages:
            for op in (sg.P, sg.Q):
                if op not in seen:
                    seen.append(op); self.emit(op.init_cur())
        for g in self.reads(s0, 0, 0): self.emit(g)
        sigs = []
        for i in range(N):
            nxt = stages[i + 1] if i + 1 < N else None
            dma = stages[i + NB] if i + NB < N else None
            last_issued = min(i + NB - 1, N - 1)
            vmw = self.vm_after(stages, i + 2, last_issued)
            sigs.append((stages[i], nxt, dma, vmw))
        i = 0
        while i < N:
            j = i
            while j < N and sigs[j] == sigs[i]: j += 1
            cnt = j - i
            if cnt >= 2:
                Gemm.lc += 1
                lbl = f"L_gl{Gemm.lc}"
                a(f"s_mov_b32 s{self.sCnt}, {cnt}")
                a.label(lbl)
                self.body(*sigs[i])
                a(f"s_sub_u32 s{self.sCnt}, s{self.sCnt}, 1")
                a(f"s_cmp_lg_u32 s{self.sCnt}, 0")
                a(f"s_cbranch_scc1 {lbl}")
            else:
                self.body(*sigs[i])
            i = j

PTR = {k: 40 + v // 4 for k, v in KA.items()}

def load_kernargs(a):
    a("s_load_dwordx16 s[40:55], s[0:1], 0")
    a("s_load_dwordx16 s[56:71], s[0:1], 64")
    a("s_load_dwordx4 s[72:75], s[0:1], 128")

def bf16_round(a, vdst, vsrc):
    a(f"v_cvt_pk_bf16_f32 v{vdst}, v{vsrc}, v{vsrc}")
    a(f"v_lshlrev_b32 v{vdst}, 16, v{vdst}")

def stamp(a, idx, dbgst):
    if dbgst: a(f"s_memtime s[{80+2*idx}:{81+2*idx}]")

def ssm_params(a, vch, out, t, sS, want_kappa=True):
    a(f"v_lshlrev_b32 v{t}, 1, v{vch}")
    for k, name in enumerate(("lre", "lim", "ldt")):
        srd(a, sS, PTR[name], 2048)
        a(f"buffer_load_ushort v{t+1+k}, v{t}, s[{sS}:{sS+3}], 0 offen")
        a("s_nop 0")
    return

def ssm_params_compute(a, out, t, want_kappa=True):
    lre, lim, ldt = t + 1, t + 2, t + 3
    x0, x1, x2, x3 = t + 4, t + 5, t + 6, t + 7
    lr, li, kr, ki = out, out + 1, out + 2, out + 3
    for r in (lre, lim, ldt): a(f"v_lshlrev_b32 v{r}, 16, v{r}")
    a(f"v_mul_f32 v{x0}, {LOG2E:#x}, v{ldt}")
    a(f"v_exp_f32 v{x0}, v{x0}")
    a("s_nop 0")
    bf16_round(a, x0, x0)
    a(f"v_mul_f32 v{x1}, v{x0}, v{lre}")
    a(f"v_mul_f32 v{x2}, v{x0}, v{lim}")
    a(f"v_mul_f32 v{x1}, {LOG2E:#x}, v{x1}")
    a(f"v_exp_f32 v{x1}, v{x1}")
    a(f"v_mul_f32 v{x2}, {INV2PI:#x}, v{x2}")
    a(f"v_rndne_f32 v{x3}, v{x2}")
    a(f"v_sub_f32 v{x2}, v{x2}, v{x3}")
    a(f"v_cos_f32 v{x3}, v{x2}")
    a(f"v_sin_f32 v{x2}, v{x2}")
    a("s_nop 0")
    a(f"v_mul_f32 v{lr}, v{x1}, v{x3}")
    a(f"v_mul_f32 v{li}, v{x1}, v{x2}")
    if want_kappa:
        a(f"v_subrev_f32 v{x0}, 1.0, v{lr}")
        a(f"v_mul_f32 v{x1}, v{x0}, v{lre}")
        a(f"v_fmac_f32 v{x1}, v{li}, v{lim}")
        a(f"v_mul_f32 v{x2}, v{li}, v{lre}")
        a(f"v_fma_f32 v{x2}, -v{x0}, v{lim}, v{x2}")
        a(f"v_mul_f32 v{x3}, v{lre}, v{lre}")
        a(f"v_fmac_f32 v{x3}, v{lim}, v{lim}")
        a(f"v_rcp_f32 v{x3}, v{x3}")
        a("s_nop 0")
        a(f"v_add_f32 v{x3}, v{x3}, v{x3}")
        a(f"v_mul_f32 v{kr}, v{x1}, v{x3}")
        a(f"v_mul_f32 v{ki}, v{x2}, v{x3}")

def csq(a, dr, di, sr_, si, t):
    a(f"v_mul_f32 v{t}, v{sr_}, v{si}")
    a(f"v_mul_f32 v{dr}, v{sr_}, v{sr_}")
    a(f"v_fma_f32 v{dr}, -v{si}, v{si}, v{dr}")
    a(f"v_add_f32 v{di}, v{t}, v{t}")

def cfma(a, hr, hi, lr, li, ur, ui, t0, t1):
    a(f"v_fma_f32 v{t0}, v{lr}, v{hr}, {ur}")
    a(f"v_fma_f32 v{t1}, v{lr}, v{hi}, {ui}")
    a(f"v_fma_f32 v{t0}, -v{li}, v{hi}, v{t0}")
    a(f"v_fma_f32 v{hi}, v{li}, v{hr}, v{t1}")
    a(f"v_mov_b32 v{hr}, v{t0}")

def gate_loads(a, sWg, sWave, vLane, vx, vw, t, sS, srd_x, st=92):
    a(f"s_lshl_b32 s{st}, s{sWg}, 3")
    a(f"s_add_u32 s{st}, s{st}, s{sWave}")
    a(f"s_lshl_b32 s{st}, s{st}, 11")
    a(f"v_lshlrev_b32 v{t}, 5, v{vLane}")
    a(f"buffer_load_dwordx4 {vr(vx,4)}, v{t}, s[{srd_x}:{srd_x+3}], s{st} offen")
    a(f"buffer_load_dwordx4 {vr(vx+4,4)}, v{t}, s[{srd_x}:{srd_x+3}], s{st} offen offset:16")
    srd(a, sS, PTR["gw"], 2048)
    a(f"buffer_load_dwordx4 {vr(vw,4)}, v{t}, s[{sS}:{sS+3}], 0 offen")
    a(f"buffer_load_dwordx4 {vr(vw+4,4)}, v{t}, s[{sS}:{sS+3}], 0 offen offset:16")

def gate_compute(a, sWg, sWave, vLane, vx, vw, t, srd_ws, stmp):
    acc = t; p0, p1, q0, q1 = t + 1, t + 2, t + 3, t + 4
    a(f"v_mov_b32 v{acc}, 0")
    for d in range(8):
        a(f"v_lshlrev_b32 v{p0}, 16, v{vx+d}")
        a(f"v_and_b32 v{p1}, 0xffff0000, v{vx+d}")
        a(f"v_lshlrev_b32 v{q0}, 16, v{vw+d}")
        a(f"v_and_b32 v{q1}, 0xffff0000, v{vw+d}")
        a(f"v_mul_f32 v{p0}, v{p0}, v{q0}")
        a(f"v_mul_f32 v{p1}, v{p1}, v{q1}")
        a(f"v_cvt_pk_bf16_f32 v{p0}, v{p0}, v{p1}")
        a(f"v_and_b32 v{p1}, 0xffff0000, v{p0}")
        a(f"v_lshlrev_b32 v{p0}, 16, v{p0}")
        a(f"v_add_f32 v{acc}, v{acc}, v{p0}")
        a(f"v_add_f32 v{acc}, v{acc}, v{p1}")
    for m in (1, 2, 4, 8, 16):
        a(f"ds_swizzle_b32 v{p0}, v{acc} offset:{(m << 10) | 0x1f:#x}")
        a("s_waitcnt lgkmcnt(0)")
        a(f"v_add_f32 v{acc}, v{acc}, v{p0}")
    a("s_nop 1")
    a(f"v_readlane_b32 s{stmp}, v{acc}, 32")
    a("s_nop 1")
    a(f"v_add_f32 v{acc}, s{stmp}, v{acc}")
    bf16_round(a, acc, acc)
    a(f"v_mul_f32 v{p0}, {LOG2E ^ 0x80000000:#x}, v{acc}")
    a(f"v_exp_f32 v{p0}, v{p0}")
    a("s_nop 0")
    a(f"v_add_f32 v{p0}, 1.0, v{p0}")
    a(f"v_rcp_f32 v{p0}, v{p0}")
    a("s_nop 0")
    bf16_round(a, p0, p0)
    a(f"v_sub_f32 v{p1}, 1.0, v{p0}")
    bf16_round(a, p1, p1)
    assert p0 % 2 == 0 or True
    a(f"s_lshl_b32 s{stmp}, s{sWg}, 3")
    a(f"s_add_u32 s{stmp}, s{stmp}, s{sWave}")
    a(f"s_lshl_b32 s{stmp}, s{stmp}, 3")
    a(f"s_add_u32 s{stmp}, s{stmp}, {WS_G}")
    a(f"v_mov_b32 v{q0}, 0")
    a(f"v_cmp_eq_u32 vcc, 0, v{vLane}")
    a(f"s_and_saveexec_b64 s[{stmp+2}:{stmp+3}], vcc")
    a(f"buffer_store_dword v{p0}, v{q0}, s[{srd_ws}:{srd_ws+3}], s{stmp} offen")
    a(f"buffer_store_dword v{p1}, v{q0}, s[{srd_ws}:{srd_ws+3}], s{stmp} offen offset:4")
    a(f"s_mov_b64 exec, s[{stmp+2}:{stmp+3}]")

def kernel1(a, dbgst=False, rot=True):
    name = "k1_kernel"
    kernel_header(a, name)
    sWave, sM, sN, sRole = 28, 29, 30, 31
    sBufD, sBufR, sCnt, sTmp, sKP, sKQ, sLdsP, sLdsQ = 32, 33, 34, 35, 36, 37, 38, 39
    sT = 76
    SX, SWA, SWB, SWS, SDBG, SS = 4, 8, 12, 16, 20, 24
    a(f"s_cmp_ge_u32 s2, 256")
    a("s_cbranch_scc1 L_k1_end")
    load_kernargs(a)
    stamp(a, 0, dbgst)
    a("v_lshrrev_b32 v1, 6, v0")
    a("v_and_b32 v0, 63, v0")
    a(f"v_readfirstlane_b32 s{sWave}, v1")
    a("s_and_b32 s76, s2, 7")
    a("s_lshr_b32 s77, s2, 3")
    a(f"s_lshr_b32 s{sRole}, s77, 4")
    a("s_bfe_u32 s78, s77, 0x20002")
    a("s_and_b32 s79, s77, 3")
    a("s_lshr_b32 s96, s76, 2")
    a("s_and_b32 s97, s76, 3")
    a(f"s_lshl_b32 s{sM}, s96, 2"); a(f"s_add_u32 s{sM}, s{sM}, s78")
    a(f"s_lshl_b32 s{sN}, s97, 2"); a(f"s_add_u32 s{sN}, s{sN}, s79")
    a(f"s_lshl_b32 s98, s{sRole}, 2"); a("s_add_u32 s98, s98, s79"); a("s_lshl_b32 s98, s98, 1")
    a("s_lshl_b32 s99, s78, 2"); a("s_add_u32 s98, s98, s99"); a("s_add_u32 s98, s98, s97"); a("s_and_b32 s98, s98, 15")
    if not rot: a("s_mov_b32 s98, 0")
    a("s_waitcnt lgkmcnt(0)")
    srd(a, SX, PTR["x"], L * D * 2)
    srd(a, SWS, PTR["ws"], WS_SIZE)
    srd(a, SDBG, PTR["dbg"], 256)
    VT = 2
    a(f"s_cmp_lg_u32 s{sWave}, 0")
    a("s_cbranch_scc1 L_k1_nofl")
    a(f"v_lshlrev_b32 v{VT}, 2, v0")
    a(f"v_mov_b32 v{VT+1}, 0")
    a(f"s_lshl_b32 s76, s2, 8")
    a(f"s_add_u32 s76, s76, {WS_FL}")
    a(f"buffer_store_dword v{VT+1}, v{VT}, s[{SWS}:{SWS+3}], s76 offen")
    a.label("L_k1_nofl")
    a(f"s_cmp_eq_u32 s{sRole}, 1")
    a("s_cbranch_scc1 L_k1_ssm")

    V = Regs(10, 256)
    TP, TQ, WP, WQ = 224, 256, 2, 4
    mp, mq = TP // WP // 16, TQ // WQ // 16
    Pop = OpNC(a, V, TP, 0, mp, F * 2)
    Qop = OpKC(a, V, TQ, Pop.bytes, mq)
    SB = Pop.bytes + Qop.bytes
    G = Gemm(a, V, 2, SB, mp, mq, sBufD, sBufR, sCnt, sTmp, sWave)
    acc = V.get(4 * mp * mq, 2)
    vb = V.get(2 * mp, 2)
    lds_d = 2 * SB
    srd(a, SWA, PTR["w1"], D * F * 2)
    gx, gw_ = G.F[0][0], G.F[1][0]
    gate_loads(a, 2, sWave, 0, gx, gw_, VT, SS, SX)
    a(f"s_lshr_b32 s76, s{sWave}, 2")
    a(f"s_and_b32 s77, s{sWave}, 3")
    a(f"s_mul_i32 s78, s{sN}, {TP}")
    a(f"s_mul_i32 s79, s76, {mp*16}")
    a("s_add_u32 s78, s78, s79")
    a(f"v_lshrrev_b32 v{VT}, 4, v0")
    a(f"v_lshlrev_b32 v{VT}, 3, v{VT}")
    a("s_lshl_b32 s79, s78, 1")
    srd(a, SS, PTR["b1"], F * 2)
    for i in range(mp):
        a(f"buffer_load_dwordx2 {vr(vb+2*i,2)}, v{VT}, s[{SS}:{SS+3}], s79 offen offset:{32*i}")
    a("s_mov_b32 s90, s78")
    a("s_mov_b32 s91, s77")
    a(f"s_mul_i32 s78, s{sN}, {TP*2}")
    Pop.setup_dma(sWave, 0, VT, 78, SWA, 92)
    def rowmap_x(j, vrho, vout):
        a(f"s_lshl_b32 s93, s{sM}, 8")
        a(f"v_add_u32 v{vrho}, s93, v{vrho}")
        a(f"v_lshlrev_b32 v{vout}, 11, v{vrho}")
    Qop.setup_dma(sWave, 0, VT, rowmap_x, [SX] * Qop.n, 92)
    Pop.setup_lds(sWave, sLdsP, 92); Qop.setup_lds(sWave, sLdsQ)
    a(f"s_mul_i32 s{sKP}, s98, {64*F*2}")
    a(f"s_lshl_b32 s{sKQ}, s98, 7")
    kadv = [f"s_add_u32 s{sKP}, s{sKP}, {64*F*2}", f"s_cmp_eq_u32 s{sKP}, {D*F*2}", f"s_cselect_b32 s{sKP}, 0, s{sKP}",
            f"s_add_u32 s{sKQ}, s{sKQ}, 128", f"s_and_b32 s{sKQ}, s{sKQ}, 2047"]
    seg = Seg(Pop, Qop, acc, 16, sKP, sKQ, kadv, "d1")
    stages = [seg] * 16
    G.prologue_dma(stages)
    a(f"s_mul_i32 s78, s76, {mp}"); Pop.setup_read(78, 0, VT, 92)
    a(f"s_mul_i32 s78, s77, {mq}"); Qop.setup_read(78, 0, VT, 92)
    for i in range(4 * mp * mq): a(f"v_mov_b32 v{acc+i}, 0")
    a(f"s_waitcnt vmcnt({2*(Pop.n - 1 + Qop.n)})")
    gate_compute(a, 2, sWave, 0, gx, gw_, VT, SWS, 92)
    stamp(a, 1, dbgst)
    G_first = (Pop.n - 1 + Qop.n) + 2
    run_gemm(G, stages, G_first)
    stamp(a, 2, dbgst)
    a("s_nop 7"); a("s_nop 7")
    t0 = VT
    a(f"v_and_b32 v{t0}, 15, v0")
    a(f"s_lshl_b32 s76, s{sM}, 8"); a("s_lshl_b32 s77, s91, 6"); a("s_add_u32 s76, s76, s77")
    a(f"v_add_u32 v{t0}, s76, v{t0}")
    a(f"s_mov_b32 s77, {RS_A2}")
    a(f"v_mul_lo_u32 v{t0}, v{t0}, s77")
    a(f"v_lshrrev_b32 v{t0+1}, 4, v0")
    a(f"v_lshlrev_b32 v{t0+1}, 3, v{t0+1}")
    a(f"v_add_u32 v{t0}, v{t0}, v{t0+1}")
    a("s_lshl_b32 s78, s90, 1"); a(f"s_add_u32 s78, s78, {WS_A2 + 4096}")
    fb = G.F[0][0]
    for i in range(mp):
        a(f"v_lshlrev_b32 v{fb}, 16, v{vb+2*i}")
        a(f"v_and_b32 v{fb+1}, 0xffff0000, v{vb+2*i}")
        a(f"v_lshlrev_b32 v{fb+2}, 16, v{vb+2*i+1}")
        a(f"v_and_b32 v{fb+3}, 0xffff0000, v{vb+2*i+1}")
        for j in range(mq):
            c = acc + 4 * (i * mq + j)
            o = fb + 4 + 2 * ((i * mq + j) % 4)
            for r in range(0, 4, 2):
                a(f"v_cvt_pk_bf16_f32 v{c+r}, v{c+r}, v{c+r+1}")
                a(f"v_and_b32 v{c+r+1}, 0xffff0000, v{c+r}")
                a(f"v_lshlrev_b32 v{c+r}, 16, v{c+r}")
                a(f"v_add_f32 v{c+r}, v{c+r}, v{fb+r}")
                a(f"v_add_f32 v{c+r+1}, v{c+r+1}, v{fb+r+1}")
                a(f"v_cvt_pk_bf16_f32 v{c+r}, v{c+r}, v{c+r+1}")
                a(f"v_and_b32 v{c+r+1}, 0xffff0000, v{c+r}")
                a(f"v_lshlrev_b32 v{c+r}, 16, v{c+r}")
                a(f"v_max_f32 v{c+r}, 0, v{c+r}")
                a(f"v_max_f32 v{c+r+1}, 0, v{c+r+1}")
                a(f"v_mul_f32 v{c+r}, v{c+r}, v{c+r}")
                a(f"v_mul_f32 v{c+r+1}, v{c+r+1}, v{c+r+1}")
                a(f"v_cvt_pk_bf16_f32 v{o+r//2}, v{c+r}, v{c+r+1}")
            a(f"s_add_u32 s79, s78, {j*16*RS_A2}")
            a(f"buffer_store_dwordx2 {vr(o,2)}, v{t0}, s[{SWS}:{SWS+3}], s79 offen offset:{32*i}")
    stamp(a, 3, dbgst)
    a("s_branch L_k1_fin")
    hi_d = V.hi

    a.label("L_k1_ssm")
    V = Regs(10, 256)
    TP, TQ, WP, WQ = 256, 128, 4, 2
    mp, mq = 4, 4
    Pop = OpKC(a, V, TP, 0, mp)
    Qop = OpKC(a, V, TQ, Pop.bytes, mq)
    SB = Pop.bytes + Qop.bytes
    NB = 3
    G = Gemm(a, V, NB, SB, mp, mq, sBufD, sBufR, sCnt, sTmp, sWave)
    acc = V.get(64, 2)
    prm = V.get(12, 4)
    big = V.get(72, 4)
    AG = NB * SB
    lds_s = AG + 8192
    srd(a, SWA, PTR["bre"], P_ * D * 2)
    srd(a, SWB, PTR["bim"], P_ * D * 2)
    gx, gw_ = G.F[0][0], G.F[1][0]
    gate_loads(a, 2, sWave, 0, gx, gw_, VT, SS, SX)
    a(f"s_lshr_b32 s76, s{sWave}, 1")
    a(f"s_and_b32 s77, s{sWave}, 1")
    a("s_mov_b32 s90, s76"); a("s_mov_b32 s91, s77")
    a(f"s_lshl_b32 s78, s{sN}, 6")
    a("s_lshl_b32 s79, s77, 5"); a("s_add_u32 s79, s79, s78")
    pt = [big, big + 8, big + 16]
    a(f"v_and_b32 v{VT}, 15, v0")
    a(f"v_lshlrev_b32 v{VT}, 1, v{VT}")
    a(f"v_add_u32 v{VT}, s79, v{VT}")
    ssm_params(a, VT, None, pt[0], SS)
    a(f"v_add_u32 v{VT}, 1, v{VT}")
    ssm_params(a, VT, None, pt[1], SS)
    a(f"v_add_u32 v{VT}, s78, v0")
    ssm_params(a, VT, None, pt[2], SS)
    def rowmap_t(j, vrho, vout):
        x = VT + 3
        a(f"v_and_b32 v{vout}, 0xc0, v{vrho}")
        a(f"v_bfe_u32 v{x}, v{vrho}, 2, 2")
        a(f"v_lshl_or_b32 v{vout}, v{x}, 4, v{vout}")
        a(f"v_bfe_u32 v{x}, v{vrho}, 4, 2")
        a(f"v_lshl_or_b32 v{vout}, v{x}, 2, v{vout}")
        a(f"v_and_b32 v{x}, 3, v{vrho}")
        a(f"v_or_b32 v{vout}, v{vout}, v{x}")
        a(f"s_lshl_b32 s93, s{sM}, 8")
        a(f"v_add_u32 v{vout}, s93, v{vout}")
        a(f"v_lshlrev_b32 v{vout}, 11, v{vout}")
    Pop.setup_dma(sWave, 0, VT, rowmap_t, [SX] * Pop.n, 92)
    def rho_base_q(j, sW, st):
        a(f"s_lshl_b32 s{st}, s{sW}, 3")
        if j: a(f"s_add_u32 s{st}, s{st}, 64")
    Qop.rho_base = rho_base_q
    def rowmap_ch(j, vrho, vout):
        x = VT + 3
        a(f"v_and_b32 v{vout}, 32, v{vrho}")
        a(f"v_and_b32 v{x}, 15, v{vrho}")
        a(f"v_lshl_or_b32 v{vout}, v{x}, 1, v{vout}")
        a(f"v_bfe_u32 v{x}, v{vrho}, 4, 1")
        a(f"v_or_b32 v{vout}, v{vout}, v{x}")
        a(f"s_lshl_b32 s93, s{sN}, 6")
        a(f"v_add_u32 v{vout}, s93, v{vout}")
        a(f"v_lshlrev_b32 v{vout}, 11, v{vout}")
    Qop.setup_dma(sWave, 0, VT, rowmap_ch, [SWA, SWB], 92)
    Pop.setup_lds(sWave, sLdsP)
    a(f"s_lshl_b32 s{sLdsQ}, s{sWave}, 10"); a(f"s_add_u32 s{sLdsQ}, s{sLdsQ}, {Qop.lds_off}")
    def q_dma(sBuf, sK, stmp, sW=None):
        return [[f"s_add_u32 s{stmp}, s{sBuf}, s{sLdsQ}", f"s_mov_b32 m0, s{stmp}", "s_nop 0",
                 f"buffer_load_dwordx4 v{Qop.vd}, s[{SWA}:{SWA+3}], s{sK} offen lds"],
                [f"s_add_u32 s{stmp}, s{sBuf}, s{sLdsQ}", f"s_add_u32 s{stmp}, s{stmp}, 8192", f"s_mov_b32 m0, s{stmp}", "s_nop 0",
                 f"buffer_load_dwordx4 v{Qop.vd+1}, s[{SWB}:{SWB+3}], s{sK} offen lds"]]
    Qop.dma = q_dma
    a(f"v_add_u32 v{Qop.vd+1}, 1024, v{Qop.vd+1}")
    a(f"s_lshl_b32 s{sKQ}, s98, 7")
    kadv = [f"s_add_u32 s{sKQ}, s{sKQ}, 128", f"s_and_b32 s{sKQ}, s{sKQ}, 2047"]
    seg = Seg(Pop, Qop, acc, 16, sKQ, sKQ, kadv, "s1")
    stages = [seg] * 16
    G.prologue_dma(stages)
    a(f"s_mul_i32 s78, s90, {mp}"); Pop.setup_read(78, 0, VT, 92)
    a(f"s_lshl_b32 s78, s91, 1"); Qop.setup_read(78, 0, VT, 92)
    def q_reads(ks, dst):
        c = Qop.c1 if ks else Qop.c0
        return [[f"ds_read_b128 {vr(dst+4*j,4)}, v{c} offset:{((j & 1) * 4 + (j >> 1)) * 2048}"] for j in range(4)]
    Qop.reads = q_reads
    for i in range(64): a(f"v_mov_b32 v{acc+i}, 0")
    n_all = seg.count() * NB
    a(f"s_waitcnt vmcnt({n_all})")
    gate_compute(a, 2, sWave, 0, gx, gw_, VT, SWS, 92)
    ssm_params_compute(a, prm, pt[0]); ssm_params_compute(a, prm + 4, pt[1]); ssm_params_compute(a, prm + 8, pt[2], False)
    stamp(a, 1, dbgst)
    run_gemm(G, stages, seg.count() * (NB - 1) + 2)
    stamp(a, 2, dbgst)
    a("s_nop 7"); a("s_nop 7")
    def U(jc, ri, s): return acc + 4 * ((s >> 2) * 4 + 2 * jc + ri) + (s & 3)
    ag = big
    tt = big + 4
    for jc in range(2):
        a(f"v_mov_b32 v{ag+2*jc}, v{U(jc,0,0)}"); a(f"v_mov_b32 v{ag+2*jc+1}, v{U(jc,1,0)}")
    for s in range(1, 16):
        for jc in range(2):
            hr, hi_ = ag + 2 * jc, ag + 2 * jc + 1
            lr, li = prm + 4 * jc, prm + 4 * jc + 1
            t0, t1 = tt + 2 * jc, tt + 2 * jc + 1
            a(f"v_fma_f32 v{t0}, v{lr}, v{hr}, v{U(jc,0,s)}")
            a(f"v_fma_f32 v{t1}, v{lr}, v{hi_}, v{U(jc,1,s)}")
        for jc in range(2):
            hr, hi_ = ag + 2 * jc, ag + 2 * jc + 1
            lr, li = prm + 4 * jc, prm + 4 * jc + 1
            t0, t1 = tt + 2 * jc, tt + 2 * jc + 1
            a(f"v_fma_f32 v{t0}, -v{li}, v{hi_}, v{t0}")
            a(f"v_fma_f32 v{hi_}, v{li}, v{hr}, v{t1}")
            a(f"v_mov_b32 v{hr}, v{t0}")
    vag = big + 8
    a(f"v_lshrrev_b32 v{vag}, 4, v0")
    a(f"s_lshl_b32 s76, s90, 2")
    a(f"v_add_u32 v{vag}, s76, v{vag}")
    a(f"v_lshlrev_b32 v{vag}, 9, v{vag}")
    a(f"v_and_b32 v{tt}, 15, v0")
    a(f"v_lshlrev_b32 v{tt}, 4, v{tt}")
    a(f"s_lshl_b32 s76, s91, 8"); a(f"s_add_u32 s76, s76, {AG}")
    a(f"v_add3_u32 v{vag}, v{vag}, v{tt}, s76")
    a(f"ds_write_b128 v{vag}, {vr(ag,4)}")
    a("s_waitcnt lgkmcnt(0)")
    a("s_barrier")
    a(f"s_cmp_lg_u32 s{sWave}, 0")
    a("s_cbranch_scc1 L_k1_s_wait")
    lr, li = prm + 8, prm + 9
    l16r, l16i, l256r, l256i = big + 10, big + 11, big + 12, big + 13
    er, ei = big + 14, big + 15
    w0, w1_ = big + 4, big + 5
    A = big + 16
    vl = big + 9
    a(f"v_lshlrev_b32 v{vl}, 3, v0")
    a(f"v_add_u32 v{vl}, {AG}, v{vl}")
    for s in range(16):
        a(f"ds_read_b64 {vr(A+2*s,2)}, v{vl} offset:{s*512}")
    csq(a, l16r, l16i, lr, li, w0)
    for _ in range(3): csq(a, l16r, l16i, l16r, l16i, w0)
    csq(a, l256r, l256i, l16r, l16i, w0)
    for _ in range(3): csq(a, l256r, l256i, l256r, l256i, w0)
    a("s_waitcnt lgkmcnt(0)")
    a(f"v_mov_b32 v{er}, 0"); a(f"v_mov_b32 v{ei}, 0")
    x0, x1 = big + 6, big + 7
    for s in range(16):
        a(f"v_fma_f32 v{x0}, v{l16r}, v{er}, v{A+2*s}")
        a(f"v_fma_f32 v{x1}, v{l16r}, v{ei}, v{A+2*s+1}")
        a(f"v_fma_f32 v{x0}, -v{l16i}, v{ei}, v{x0}")
        a(f"v_fma_f32 v{x1}, v{l16i}, v{er}, v{x1}")
        a(f"v_mov_b32 v{A+2*s}, v{er}"); a(f"v_mov_b32 v{A+2*s+1}, v{ei}")
        a(f"v_mov_b32 v{er}, v{x0}"); a(f"v_mov_b32 v{ei}, v{x1}")
    vo = big + 8
    a(f"s_lshl_b32 s76, s{sN}, 6")
    a(f"v_add_u32 v{vo}, s76, v0")
    a(f"v_lshlrev_b32 v{vo}, 3, v{vo}")
    a(f"s_lshl_b32 s77, s{sM}, 13"); a(f"s_add_u32 s77, s77, {WS_AGG}")
    a(f"buffer_store_dwordx2 {vr(er,2)}, v{vo}, s[{SWS}:{SWS+3}], s77 offen sc1")
    a("s_waitcnt vmcnt(0)")
    a(f"s_lshl_b32 s76, 1, s{sM}")
    a(f"v_mov_b32 v{x0}, s76")
    a(f"s_lshl_b32 s78, s{sN}, 4")
    a(f"v_mov_b32 v{x1}, s78")
    a("v_cmp_eq_u32 vcc, 0, v0")
    a("s_and_saveexec_b64 s[92:93], vcc")
    a(f"buffer_atomic_add v{x0}, v{x1}, s[{SDBG}:{SDBG+3}], 0 offen sc1")
    a("s_mov_b64 exec, s[92:93]")
    cr, ci = big + 48, big + 49
    a(f"v_mov_b32 v{cr}, 0"); a(f"v_mov_b32 v{ci}, 0")
    a(f"s_cmp_eq_u32 s{sM}, 0")
    a("s_cbranch_scc1 L_k1_s_nolb")
    a(f"s_lshl_b32 s76, 1, s{sM}"); a("s_sub_u32 s76, s76, 1")
    a("s_mov_b32 s79, 200000")
    a.label("L_k1_s_poll")
    a("s_sub_u32 s79, s79, 1")
    a("s_cmp_eq_u32 s79, 0")
    a("s_cbranch_scc1 L_k1_s_ready")
    a(f"buffer_load_dword v{x0}, v{x1}, s[{SDBG}:{SDBG+3}], 0 offen sc1")
    a("s_waitcnt vmcnt(0)")
    a(f"v_readfirstlane_b32 s77, v{x0}")
    a("s_nop 3")
    a("s_and_b32 s77, s77, s76")
    a("s_cmp_eq_u32 s77, s76")
    a("s_cbranch_scc1 L_k1_s_ready")
    a("s_sleep 2")
    a("s_branch L_k1_s_poll")
    a.label("L_k1_s_ready")
    B = big + 50
    for j in range(7):
        a(f"s_mov_b32 s77, {WS_AGG + j*8192}")
        a(f"buffer_load_dwordx2 {vr(B+2*j,2)}, v{vo}, s[{SWS}:{SWS+3}], s77 offen sc1")
    a("s_waitcnt vmcnt(0)")
    for j in range(7):
        a(f"s_cmp_le_u32 s{sM}, {j}")
        a("s_cbranch_scc1 L_k1_s_nolb")
        a(f"v_fma_f32 v{x0}, v{l256r}, v{cr}, v{B+2*j}")
        a(f"v_fma_f32 v{x1}, v{l256r}, v{ci}, v{B+2*j+1}")
        a(f"v_fma_f32 v{x0}, -v{l256i}, v{ci}, v{x0}")
        a(f"v_fma_f32 v{ci}, v{l256i}, v{cr}, v{x1}")
        a(f"v_mov_b32 v{cr}, v{x0}")
    a.label("L_k1_s_nolb")
    for s in range(16):
        a(f"v_add_f32 v{A+2*s}, v{A+2*s}, v{cr}")
        a(f"v_add_f32 v{A+2*s+1}, v{A+2*s+1}, v{ci}")
        a(f"ds_write_b64 v{vl}, {vr(A+2*s,2)} offset:{s*512}")
        if s < 15:
            a(f"v_mul_f32 v{x0}, v{l16r}, v{cr}")
            a(f"v_mul_f32 v{x1}, v{l16r}, v{ci}")
            a(f"v_fma_f32 v{x0}, -v{l16i}, v{ci}, v{x0}")
            a(f"v_fma_f32 v{ci}, v{l16i}, v{cr}, v{x1}")
            a(f"v_mov_b32 v{cr}, v{x0}")
    a("s_waitcnt lgkmcnt(0)")
    a.label("L_k1_s_wait")
    a("s_barrier")
    a(f"v_lshrrev_b32 v{vag}, 4, v0")
    a(f"s_lshl_b32 s76, s90, 2")
    a(f"v_add_u32 v{vag}, s76, v{vag}")
    a(f"v_lshlrev_b32 v{vag}, 9, v{vag}")
    a(f"v_and_b32 v{tt}, 15, v0")
    a(f"v_lshlrev_b32 v{tt}, 4, v{tt}")
    a(f"s_lshl_b32 s76, s91, 8"); a(f"s_add_u32 s76, s76, {AG}")
    a(f"v_add3_u32 v{vag}, v{vag}, v{tt}, s76")
    a(f"ds_read_b128 {vr(ag,4)}, v{vag}")
    vo = big + 9
    a(f"v_lshrrev_b32 v{vo}, 4, v0")
    a(f"v_lshlrev_b32 v{vo}, 4, v{vo}")
    a(f"s_lshl_b32 s76, s{sM}, 8"); a("s_lshl_b32 s77, s90, 6"); a("s_add_u32 s76, s76, s77")
    a(f"v_add_u32 v{vo}, s76, v{vo}")
    a(f"s_mov_b32 s77, {RS_A2}")
    a(f"v_mul_lo_u32 v{vo}, v{vo}, s77")
    a(f"v_and_b32 v{tt}, 15, v0")
    a(f"v_lshlrev_b32 v{tt}, 2, v{tt}")
    a(f"s_lshl_b32 s76, s{sN}, 7"); a("s_lshl_b32 s77, s91, 6"); a("s_add_u32 s76, s76, s77")
    a(f"v_add3_u32 v{vo}, v{vo}, v{tt}, s76")
    a(f"s_mov_b32 s78, {WS_A2}")
    a("s_waitcnt lgkmcnt(0)")
    ore, oim, od = big + 12, big + 14, big + 16
    for s in range(16):
        for jc in range(2):
            hr, hi_ = ag + 2 * jc, ag + 2 * jc + 1
            lr, li = prm + 4 * jc, prm + 4 * jc + 1
            t0, t1 = tt + 2 * jc, tt + 2 * jc + 1
            a(f"v_fma_f32 v{t0}, v{lr}, v{hr}, v{U(jc,0,s)}")
            a(f"v_fma_f32 v{t1}, v{lr}, v{hi_}, v{U(jc,1,s)}")
        for jc in range(2):
            hr, hi_ = ag + 2 * jc, ag + 2 * jc + 1
            lr, li = prm + 4 * jc, prm + 4 * jc + 1
            t0, t1 = tt + 2 * jc, tt + 2 * jc + 1
            a(f"v_fma_f32 v{t0}, -v{li}, v{hi_}, v{t0}")
            a(f"v_fma_f32 v{hi_}, v{li}, v{hr}, v{t1}")
            a(f"v_mov_b32 v{hr}, v{t0}")
        for jc in range(2):
            hr, hi_ = ag + 2 * jc, ag + 2 * jc + 1
            kr, ki = prm + 4 * jc + 2, prm + 4 * jc + 3
            a(f"v_mul_f32 v{ore+jc}, v{kr}, v{hr}")
            a(f"v_mul_f32 v{oim+jc}, -v{kr}, v{hi_}")
            a(f"v_fma_f32 v{ore+jc}, -v{ki}, v{hi_}, v{ore+jc}")
            a(f"v_fma_f32 v{oim+jc}, -v{ki}, v{hr}, v{oim+jc}")
        d = od + 2 * (s % 4)
        a(f"v_cvt_pk_bf16_f32 v{d}, v{ore}, v{ore+1}")
        a(f"v_cvt_pk_bf16_f32 v{d+1}, v{oim}, v{oim+1}")
        a(f"buffer_store_dword v{d}, v{vo}, s[{SWS}:{SWS+3}], s78 offen")
        a(f"buffer_store_dword v{d+1}, v{vo}, s[{SWS}:{SWS+3}], s78 offen offset:2048")
        a(f"s_add_u32 s78, s78, {RS_A2}")
    stamp(a, 3, dbgst)
    hi_s = V.hi
    a.label("L_k1_fin")
    if dbgst: emit_stamps(a, sWave, SWS, 0)
    a.label("L_k1_end")
    a("s_endpgm")
    return name, max(hi_d, hi_s), max(lds_d, lds_s)

def emit_stamps(a, sWave, SWS, region):
    a("s_memrealtime s[88:89]")
    a("s_waitcnt lgkmcnt(0)")
    a(f"s_cmp_lg_u32 s{sWave}, 0")
    lbl = f"L_nost{region}"
    a(f"s_cbranch_scc1 {lbl}")
    a("s_sub_u32 s82, s82, s80"); a("s_sub_u32 s84, s84, s80"); a("s_sub_u32 s86, s86, s80")
    a("s_waitcnt vmcnt(0)")
    a("v_mov_b32 v12, s82"); a("v_mov_b32 v13, s84"); a("v_mov_b32 v14, s86"); a("v_mov_b32 v15, s88")
    a("s_lshl_b32 s76, s2, 4"); a(f"s_add_u32 s76, s76, {WS_ST + region*8192}")
    a("v_mov_b32 v11, 0")
    a("v_cmp_eq_u32 vcc, 0, v0"); a("s_and_saveexec_b64 s[92:93], vcc")
    a(f"buffer_store_dwordx4 v[12:15], v11, s[{SWS}:{SWS+3}], s76 offen")
    a.label(lbl)

def run_gemm(G, stages, first_vm):
    orig = G.vm_after
    a = G.a
    state = {"first": True}
    def vm(st, first, last):
        if state["first"]:
            state["first"] = False
            return first_vm
        return orig(st, first, last)
    G.vm_after = vm
    G.run(stages)
    G.vm_after = orig

def kernel2(a, TQ=128, NS=2, dbgst=False):
    name = "k2_kernel"
    kernel_header(a, name)
    sWave, sTt, sDt, sSl = 28, 29, 30, 31
    sBufD, sBufR, sCnt, sTmp, sKP, sKQ, sLdsP, sLdsQ = 32, 33, 34, 35, 36, 37, 38, 39
    sKP2, sLdsP2, sTile = 96, 97, 98
    SX, SC, SW2, SWS, SOUT, SS = 4, 8, 12, 16, 20, 24
    TP, WP, WQ = 128, 2, 4
    mp, mq = TP // WP // 16, TQ // WQ // 16
    assert mq == NS
    NB = 4 if TQ == 128 else 3
    a("s_cmp_ge_u32 s2, 256")
    a("s_cbranch_scc1 L_k2_end")
    load_kernargs(a)
    stamp(a, 0, dbgst)
    a("v_lshrrev_b32 v1, 6, v0")
    a("v_and_b32 v0, 63, v0")
    a(f"v_readfirstlane_b32 s{sWave}, v1")
    a("s_and_b32 s76, s2, 7")
    a("s_lshr_b32 s77, s2, 3")
    a(f"s_and_b32 s{sDt}, s77, 7")
    a("s_lshr_b32 s78, s77, 3")
    if NS == 4:
        a(f"s_and_b32 s{sSl}, s76, 3"); a("s_lshr_b32 s79, s76, 2")
    else:
        a(f"s_lshr_b32 s{sSl}, s76, 2"); a("s_and_b32 s79, s76, 3")
    a("s_lshl_b32 s79, s79, 2"); a(f"s_add_u32 s{sTt}, s79, s78")
    a(f"s_lshl_b32 s{sTile}, s{sTt}, 3"); a(f"s_add_u32 s{sTile}, s{sTile}, s{sDt}")
    a("s_waitcnt lgkmcnt(0)")
    srd(a, SX, PTR["x"], L * D * 2)
    srd(a, SWS, PTR["ws"], WS_SIZE)
    srd(a, SOUT, PTR["out"], L * D * 4)
    srd(a, SW2, PTR["w2"], F * D * 2)
    a(f"s_lshr_b32 s76, s{sSl}, {1 if NS == 4 else 0}")
    a("s_cmp_eq_u32 s76, 0")
    a(f"s_cselect_b32 s{SC}, s{PTR['cre']}, s{PTR['cim']}")
    a(f"s_cselect_b32 s{SC+1}, s{PTR['cre']+1}, s{PTR['cim']+1}")
    a(f"s_mov_b32 s{SC+2}, {D*P_*2}"); a(f"s_mov_b32 s{SC+3}, 0x20000")
    VT = 2
    V = Regs(10, 256)
    P1 = OpKC(a, V, TP, 0, mp)
    P2 = OpNC(a, V, TP, 0, mp, D * 2)
    Qop = OpKC(a, V, TQ, TP * 128, mq)
    SB = TP * 128 + Qop.bytes
    G = Gemm(a, V, NB, SB, mp, mq, sBufD, sBufR, sCnt, sTmp, sWave)
    nf = mp * mq
    accS = V.get(4 * nf, 2); accD = V.get(4 * nf, 2)
    vg = V.get(2 * mq, 2)
    vex = V.get(2 * mp + 2 * mp + 2 * mp, 2)
    a(f"s_lshr_b32 s90, s{sWave}, 2")
    a(f"s_and_b32 s91, s{sWave}, 3")
    def rowmap_c(j, vrho, vout):
        a(f"s_lshl_b32 s93, s{sDt}, 7")
        a(f"v_add_u32 v{vrho}, s93, v{vrho}")
        a(f"v_lshlrev_b32 v{vout}, 11, v{vrho}")
    P1.setup_dma(sWave, 0, VT, rowmap_c, [SC] * P1.n, 92)
    a(f"s_lshl_b32 s78, s{sDt}, 8")
    P2.setup_dma(sWave, 0, VT, 78, SW2, 92)
    blk = 16 * mq
    def rowmap_q(j, vrho, vout):
        x = VT + 3
        a(f"v_bfe_u32 v{x}, v{vrho}, 4, {int(math.log2(NS))}")
        a(f"v_add_u32 v{x}, s{sSl}, v{x}")
        a(f"v_and_b32 v{x}, {NS-1}, v{x}")
        a(f"v_and_b32 v{vout}, {(~((NS-1) << 4)) & 0xffff:#x}, v{vrho}")
        a(f"v_lshl_or_b32 v{vout}, v{x}, 4, v{vout}")
        a(f"s_mul_i32 s93, s{sTt}, {TQ}")
        a(f"v_add_u32 v{vout}, s93, v{vout}")
        a(f"s_mov_b32 s93, {RS_A2}")
        a(f"v_mul_lo_u32 v{vout}, v{vout}, s93")
    Qop.setup_dma(sWave, 0, VT, rowmap_q, [SWS] * Qop.n, 92)
    P1.setup_lds(sWave, sLdsP); P2.setup_lds(sWave, sLdsP2, 92); Qop.setup_lds(sWave, sLdsQ)
    n1, n2 = 2048 // NS // 64, F // NS // 64
    if NS == 2:
        a(f"s_mov_b32 s{sKP}, 0")
    else:
        a(f"s_and_b32 s{sKP}, s{sSl}, 1"); a(f"s_lshl_b32 s{sKP}, s{sKP}, 10")
    a(f"s_mul_i32 s{sKQ}, s{sSl}, {2048 // NS * 2}")
    a(f"s_add_u32 s{sKQ}, s{sKQ}, {WS_A2}")
    a(f"s_mul_i32 s{sKP2}, s{sSl}, {F // NS * D * 2}")
    sKQ2 = 99
    a(f"s_mul_i32 s{sKQ2}, s{sSl}, {F // NS * 2}")
    a(f"s_add_u32 s{sKQ2}, s{sKQ2}, {WS_A2 + 4096}")
    seg1 = Seg(P1, Qop, accS, n1, sKP, sKQ, [f"s_add_u32 s{sKP}, s{sKP}, 128", f"s_add_u32 s{sKQ}, s{sKQ}, 128"], "s")
    seg2 = Seg(P2, Qop, accD, n2, sKP2, sKQ2, [f"s_add_u32 s{sKP2}, s{sKP2}, {64*D*2}", f"s_add_u32 s{sKQ2}, s{sKQ2}, 128"], "d")
    stages = [seg1] * n1 + [seg2] * n2
    G.prologue_dma(stages)
    a(f"s_mul_i32 s78, s90, {mp}"); P1.setup_read(78, 0, VT, 92); P2.setup_read(78, 0, VT, 92)
    a(f"s_mul_i32 s78, s91, {mq}"); Qop.setup_read(78, 0, VT, 92)
    for i in range(4 * nf):
        a(f"v_mov_b32 v{accS+i}, 0"); a(f"v_mov_b32 v{accD+i}, 0")
    stamp(a, 1, dbgst)
    G.run(stages)
    stamp(a, 2, dbgst)
    t0, t1 = VT, VT + 1
    a(f"s_mul_i32 s76, s{sTt}, {TQ}"); a(f"s_mul_i32 s77, s91, {blk}"); a("s_add_u32 s76, s76, s77")
    a(f"v_and_b32 v{t0}, 15, v0")
    a(f"v_add_u32 v{t0}, s76, v{t0}")
    a(f"v_lshlrev_b32 v{t1}, 3, v{t0}")
    for j in range(mq):
        a(f"s_add_u32 s77, s{sSl}, {j}"); a(f"s_and_b32 s77, s77, {NS-1}"); a("s_lshl_b32 s77, s77, 7")
        a(f"s_add_u32 s77, s77, {WS_G}")
        a(f"buffer_load_dwordx2 {vr(vg+2*j,2)}, v{t1}, s[{SWS}:{SWS+3}], s77 offen")
    vt_own = VT + 2
    a(f"s_lshl_b32 s77, s{sSl}, 4")
    a(f"v_add_u32 v{vt_own}, s77, v{t0}")
    vdq = VT + 3
    a(f"v_lshrrev_b32 v{vdq}, 4, v0")
    a(f"v_lshlrev_b32 v{vdq}, 2, v{vdq}")
    a(f"s_lshl_b32 s77, s{sDt}, 7"); a("s_lshl_b32 s78, s90, 6"); a("s_add_u32 s77, s77, s78")
    a(f"v_add_u32 v{vdq}, s77, v{vdq}")
    vxo = VT + 4
    a(f"v_lshlrev_b32 v{vxo}, 11, v{vt_own}")
    a(f"v_lshl_add_u32 v{vxo}, v{vdq}, 1, v{vxo}")
    vd2 = VT + 5
    a(f"v_lshlrev_b32 v{vd2}, 1, v{vdq}")
    vx_, vds, vb2 = vex, vex + 2 * mp, vex + 4 * mp
    for i in range(mp):
        a(f"buffer_load_dwordx2 {vr(vx_+2*i,2)}, v{vxo}, s[{SX}:{SX+3}], 0 offen offset:{32*i}")
    srd(a, SS, PTR["dsk"], 2048)
    for i in range(mp):
        a(f"buffer_load_dwordx2 {vr(vds+2*i,2)}, v{vd2}, s[{SS}:{SS+3}], 0 offen offset:{32*i}")
    a("s_nop 0")
    srd(a, SS, PTR["b2"], 2048)
    for i in range(mp):
        a(f"buffer_load_dwordx2 {vr(vb2+2*i,2)}, v{vd2}, s[{SS}:{SS+3}], 0 offen offset:{32*i}")
    a(f"s_waitcnt vmcnt({3*mp})")
    for i in range(mp):
        for j in range(mq):
            c = 4 * (i * mq + j)
            for r in range(4):
                a(f"v_mul_f32 v{accS+c+r}, v{vg+2*j}, v{accS+c+r}")
                a(f"v_fmac_f32 v{accS+c+r}, v{vg+2*j+1}, v{accD+c+r}")
    vl16 = VT + 6
    a(f"v_lshlrev_b32 v{vl16}, 4, v0")
    a("s_nop 1")
    for j in range(1, mq):
        a(f"s_add_u32 s76, s{sSl}, {j}"); a(f"s_and_b32 s76, s76, {NS-1}")
        a(f"s_mul_i32 s77, s{sTile}, {NS}"); a("s_add_u32 s77, s77, s76")
        a(f"s_mul_i32 s77, s77, {NS}"); a(f"s_add_u32 s77, s77, s{sSl}")
        a("s_lshl_b32 s77, s77, 3"); a(f"s_add_u32 s77, s77, s{sWave}")
        a("s_lshl_b32 s77, s77, 12"); a(f"s_add_u32 s77, s77, {WS_XB}")
        for i in range(mp):
            c = accS + 4 * (i * mq + j)
            a(f"buffer_store_dwordx4 {vr(c,4)}, v{vl16}, s[{SWS}:{SWS+3}], s77 offen offset:{i*1024} sc1")
    a("s_waitcnt vmcnt(0)")
    a("s_barrier")
    a(f"s_cmp_lg_u32 s{sWave}, 0")
    a("s_cbranch_scc1 L_k2_wait")
    a(f"s_mul_i32 s76, s{sTile}, {NS}"); a(f"s_add_u32 s77, s76, s{sSl}")
    a("s_lshl_b32 s77, s77, 8"); a(f"s_add_u32 s77, s77, {WS_FL}")
    vz, vone = VT + 7, VT + 1
    a(f"v_mov_b32 v{vz}, 0"); a(f"v_mov_b32 v{vone}, 1")
    a("v_cmp_eq_u32 vcc, 0, v0"); a("s_and_saveexec_b64 s[92:93], vcc")
    a(f"buffer_store_dword v{vone}, v{vz}, s[{SWS}:{SWS+3}], s77 offen sc1")
    a("s_mov_b64 exec, s[92:93]")
    a(f"v_min_u32 v{vz}, {NS-1}, v0")
    a(f"v_lshlrev_b32 v{vz}, 8, v{vz}")
    a("s_lshl_b32 s77, s76, 8"); a(f"s_add_u32 s77, s77, {WS_FL}")
    a("s_mov_b32 s79, 200000")
    a.label("L_k2_poll")
    a("s_sub_u32 s79, s79, 1"); a("s_cmp_eq_u32 s79, 0"); a("s_cbranch_scc1 L_k2_wait")
    a(f"buffer_load_dword v{vone}, v{vz}, s[{SWS}:{SWS+3}], s77 offen sc1")
    a("s_waitcnt vmcnt(0)")
    a(f"v_cmp_ne_u32 vcc, 0, v{vone}")
    a("s_nop 1")
    a("s_cmp_eq_u64 vcc, exec")
    a("s_cbranch_scc1 L_k2_wait")
    a("s_sleep 1")
    a("s_branch L_k2_poll")
    a.label("L_k2_wait")
    a("s_barrier")
    rb = G.F[0][0]
    avail = 2 * (4 * mp + 4 * mq)
    assert avail >= 4 * mp * (NS - 1), (avail, 4 * mp * (NS - 1))
    assert G.F[1][1] + 4 * mq - G.F[0][0] == avail
    for k in range(1, NS):
        a(f"s_add_u32 s76, s{sSl}, {k}"); a(f"s_and_b32 s76, s76, {NS-1}")
        a(f"s_mul_i32 s77, s{sTile}, {NS}"); a(f"s_add_u32 s77, s77, s{sSl}")
        a(f"s_mul_i32 s77, s77, {NS}"); a("s_add_u32 s77, s77, s76")
        a("s_lshl_b32 s77, s77, 3"); a(f"s_add_u32 s77, s77, s{sWave}")
        a("s_lshl_b32 s77, s77, 12"); a(f"s_add_u32 s77, s77, {WS_XB}")
        for i in range(mp):
            a(f"buffer_load_dwordx4 {vr(rb+(k-1)*4*mp+4*i,4)}, v{vl16}, s[{SWS}:{SWS+3}], s77 offen offset:{i*1024} sc1")
    for i in range(mp):
        e = accD + 4 * i
        x0, x1, y0, y1 = VT, VT + 1, VT + 7, VT + 3
        for h in range(2):
            a(f"v_lshlrev_b32 v{x0}, 16, v{vx_+2*i+h}")
            a(f"v_and_b32 v{x1}, 0xffff0000, v{vx_+2*i+h}")
            a(f"v_lshlrev_b32 v{y0}, 16, v{vds+2*i+h}")
            a(f"v_and_b32 v{e+2*h+1}, 0xffff0000, v{vds+2*i+h}")
            a(f"v_mul_f32 v{x0}, v{x0}, v{y0}")
            a(f"v_mul_f32 v{x1}, v{x1}, v{e+2*h+1}")
            a(f"v_cvt_pk_bf16_f32 v{x0}, v{x0}, v{x1}")
            a(f"v_and_b32 v{x1}, 0xffff0000, v{x0}")
            a(f"v_lshlrev_b32 v{x0}, 16, v{x0}")
            a(f"v_mul_f32 v{e+2*h}, v{vg}, v{x0}")
            a(f"v_mul_f32 v{e+2*h+1}, v{vg}, v{x1}")
            a(f"v_lshlrev_b32 v{x0}, 16, v{vb2+2*i+h}")
            a(f"v_and_b32 v{x1}, 0xffff0000, v{vb2+2*i+h}")
            a(f"v_fmac_f32 v{e+2*h}, v{vg+1}, v{x0}")
            a(f"v_fmac_f32 v{e+2*h+1}, v{vg+1}, v{x1}")
        for r in range(4):
            a(f"v_add_f32 v{e+r}, v{e+r}, v{accS+4*(i*mq)+r}")
    a("s_waitcnt vmcnt(0)")
    vo = VT
    a(f"v_lshlrev_b32 v{vo}, 12, v{vt_own}")
    a(f"v_lshl_add_u32 v{vo}, v{vd2}, 1, v{vo}")
    for i in range(mp):
        e = accD + 4 * i
        for k in range(1, NS):
            for r in range(4):
                a(f"v_add_f32 v{e+r}, v{e+r}, v{rb+(k-1)*4*mp+4*i+r}")
        a(f"buffer_store_dwordx4 {vr(e,4)}, v{vo}, s[{SOUT}:{SOUT+3}], 0 offen offset:{64*i}")
    stamp(a, 3, dbgst)
    if dbgst: emit_stamps(a, sWave, SWS, 1)
    a.label("L_k2_end")
    a("s_endpgm")
    return name, V.hi, NB * SB

HEADER = open("gated_mix__ssm_conv_s5__dense_activation_squared_relu__prompt.s.ref").read().split("; Override launch")[0]

def generate(TQ=128, NS=2, dbgst=False, rot=True, only=None):
    a = Asm()
    n1, v1, l1 = kernel1(a, dbgst, rot)
    n2, v2, l2 = kernel2(a, TQ, NS, dbgst)
    head = HEADER
    if only != 2: head += f"; @launch kernel={n1} grid=(256,1,1) block=(512,1,1) lds={l1}\n"
    if only != 1: head += f"; @launch kernel={n2} grid=(256,1,1) block=(512,1,1) lds={l2}\n"
    head += '.amdgcn_target "amdgcn-amd-amdhsa--gfx950"\n.text\n'
    tail = '.section .rodata,"a"\n' + kernel_desc(n1, v1, 102) + kernel_desc(n2, v2, 102)
    return head + a.text() + tail

if __name__ == "__main__":
    kw = json.loads(sys.argv[2]) if len(sys.argv) > 2 else {}
    open(sys.argv[1], "w").write(generate(**kw))
```

```python
import sys, math, json
from asmlib import *

NAME = "gated_mix__ssm_conv_s5__dense_activation_squared_relu__prompt_kernel"
L, D, P_, F = 2048, 1024, 1024, 3584
KC = 2048 + F
RS_A2 = KC * 2
KA = dict(x=0, lre=8, lim=16, bre=24, bim=32, cre=40, cim=48, ldt=56, dsk=64, bx=72, w1=80, b1=88, w2=96, b2=104, gw=112, out=120, dbg=128, ws=136)
WS_A2 = 0
WS_G = 24 << 20
WS_AGG = WS_G + (1 << 16)
WS_MB = WS_AGG + (1 << 17)
WS_ST = WS_AGG + (1 << 18)
WS_XB = 32 << 20
WS_SIZE = 268435456
LOG2E = 0x3fb8aa3b
INV2PI = 0x3e22f983
PTR = {k: 40 + v // 4 for k, v in KA.items()}
DBG_LB = 0
DBG_CNT = 16
DBG_XF = 32

class Cfg:
    dbgst = False; rot = 1; nodma = False; noread = False; prefetch = True
    nAd = 24
    nBs = 8
    wt = " sc1"
    a2ld = " sc1"
    wto = ""
    spin = 2000000
    sleep = 2
    early = True
    bulk = False
    pflist = [('w1',0),('x',0),('bre',0),('bim',0),('cre',0),('cim',0),('w2',0)]
    pfit = 13
    span = 1.0
    prio = True
    nbq = 3
    stampset = 'main'
C = Cfg()

class Regs:
    def __init__(self, start, limit=256):
        self.n = start; self.limit = limit; self.hi = start
    def get(self, k=1, align=1):
        self.n = (self.n + align - 1) // align * align
        r = self.n; self.n += k
        self.hi = max(self.hi, self.n)
        assert self.n <= self.limit, f"out of registers {self.n} > {self.limit}"
        return r

def srd(a, s, ptr_lo, size):
    if s != ptr_lo:
        a(f"s_mov_b32 s{s}, s{ptr_lo}"); a(f"s_mov_b32 s{s+1}, s{ptr_lo+1}")
    a(f"s_mov_b32 s{s+2}, {size}"); a(f"s_mov_b32 s{s+3}, 0x20000")

_lbl = [0]
def newlabel(p):
    _lbl[0] += 1
    return f"L_{p}{_lbl[0]}"

class OpKC:
    def __init__(self, a, V, T, lds_off, nfr, flags=""):
        self.a, self.T, self.lds_off, self.nfr, self.flags = a, T, lds_off, nfr, flags
        self.n = T // 64
        self.vd = V.get(self.n)
        self.b0 = V.get(); self.c0 = V.get(); self.c1 = V.get()
        self.bytes = T * 128
        self.ldsoffs = [j * 1024 for j in range(self.n)]
    def lane_chunk(self, vdst, t):
        a = self.a
        a(f"v_and_b32 v{vdst}, 7, v0"); a(f"v_lshrrev_b32 v{t}, 4, v0")
        a(f"v_xor_b32 v{vdst}, v{vdst}, v{t}"); a(f"v_lshlrev_b32 v{vdst}, 4, v{vdst}")
    def set_voff(self, j, vlane, sRowBytes, xor64, comp=True):
        a = self.a; d = self.vd + j
        src = vlane
        if xor64 is True:
            a(f"v_xor_b32 v{d}, 64, v{vlane}"); src = d
        elif xor64 is not False:
            a(f"v_xor_b32 v{d}, s{xor64}, v{vlane}"); src = d
        a(f"v_add_u32 v{d}, s{sRowBytes}, v{src}")
    def dma(self, sBuf, sK, stmp, sLds, srds, groups=None):
        g = []
        for grp_i in self.groups:
            for n_, j in enumerate(grp_i):
                grp = []
                if n_ == 0:
                    grp.append(f"s_add_u32 s{stmp}, s{sBuf}, s{sLds}")
                    if self.ldsoffs[j]: grp.append(f"s_add_u32 s{stmp}, s{stmp}, {self.ldsoffs[j]}")
                    grp.append(f"s_mov_b32 m0, s{stmp}")
                    grp.append("s_nop 0")
                off = f" offset:{n_*1024}" if n_ else ""
                s = srds[j]
                grp.append(f"buffer_load_dwordx4 v{self.vd+j}, s[{s}:{s+3}], s{sK} offen{off}{self.flags} lds")
                g.append(grp)
        return g
    def count(self): return (self.n, self.n)
    def setup_read(self, sFrag0, tmp, stmp):
        a = self.a; t0, t1, t2 = tmp, tmp + 1, tmp + 2
        a(f"v_and_b32 v{t0}, 15, v0"); a(f"v_lshrrev_b32 v{t1}, 4, v0"); a(f"v_lshrrev_b32 v{t2}, 1, v{t0}")
        a(f"v_xor_b32 v{t1}, v{t1}, v{t2}"); a(f"v_lshlrev_b32 v{t1}, 4, v{t1}")
        a(f"v_lshl_add_u32 v{t0}, v{t0}, 7, v{t1}")
        a(f"s_lshl_b32 s{stmp}, s{sFrag0}, 11")
        if self.lds_off: a(f"s_add_u32 s{stmp}, s{stmp}, {self.lds_off}")
        a(f"v_add_u32 v{self.b0}, s{stmp}, v{t0}")
    def init_cur(self):
        return [f"v_mov_b32 v{self.c0}, v{self.b0}", f"v_xor_b32 v{self.c1}, 64, v{self.b0}"]
    def frag_off(self, i): return i * 2048
    def reads(self, ks, dst):
        if C.noread: return []
        c = self.c1 if ks else self.c0
        return [[f"ds_read_b128 {vr(dst+4*i,4)}, v{c} offset:{self.frag_off(i)}"] for i in range(self.nfr)]
    def upd_A(self, sBuf): return [f"v_add_u32 v{self.c0}, s{sBuf}, v{self.b0}"]
    def upd_B(self, sBuf): return [f"v_xor_b32 v{self.c1}, 64, v{self.c0}"]

class OpNC:
    def __init__(self, a, V, T, lds_off, nfr, RS, NW=8):
        self.a, self.T, self.lds_off, self.nfr, self.RS = a, T, lds_off, nfr, RS
        self.RP = T * 2; self.CH = self.RP // 16
        self.total = self.CH
        self.n = -(-self.total // NW)
        self.even = (self.total % NW == 0)
        self.nbig = NW if self.even else self.total - (self.n - 1) * NW
        self.vd = V.get(self.n)
        np_ = self.RP // 32
        self.gb = 3 if np_ % 8 == 0 else (2 if np_ % 4 == 0 else 1)
        self.nres = min(1 << self.gb, nfr)
        self.base = V.get(self.nres); self.cur = V.get(self.nres)
        self.bytes = 64 * self.RP
    def g_asm(self, vk, vo, t):
        a = self.a
        if self.gb == 3:
            a(f"v_and_b32 v{vo}, 3, v{vk}"); a(f"v_bfe_u32 v{t}, v{vk}, 3, 1"); a(f"v_lshl_or_b32 v{vo}, v{t}, 2, v{vo}")
        elif self.gb == 2:
            a(f"v_bfe_u32 v{vo}, v{vk}, 1, 1"); a(f"v_bfe_u32 v{t}, v{vk}, 3, 1"); a(f"v_lshl_or_b32 v{vo}, v{t}, 1, v{vo}")
        else:
            a(f"v_bfe_u32 v{vo}, v{vk}, 3, 1")
    def idx0(self, sWave, sOut, stmp):
        a = self.a
        if self.even: a(f"s_mul_i32 s{sOut}, s{sWave}, {self.n}")
        else:
            a(f"s_mul_i32 s{sOut}, s{sWave}, {self.n-1}")
            a(f"s_min_u32 s{stmp}, s{sWave}, {self.nbig}")
            a(f"s_add_u32 s{sOut}, s{sOut}, s{stmp}")
    def setup_dma(self, sWave, tmp, sCol0Bytes, stmp):
        a = self.a; t0, t1, t2, t3 = tmp, tmp + 1, tmp + 2, tmp + 3
        self.idx0(sWave, stmp, stmp + 1)
        magic = (1 << 20) // self.CH + 1
        for L_ in range(self.total * 64 + 64):
            assert (L_ * magic) >> 20 == L_ // self.CH
        for j in range(self.n):
            a(f"s_add_u32 s{stmp+1}, s{stmp}, {j}"); a(f"s_lshl_b32 s{stmp+1}, s{stmp+1}, 6")
            a(f"v_add_u32 v{t0}, s{stmp+1}, v0")
            if self.CH & (self.CH - 1) == 0:
                a(f"v_lshrrev_b32 v{t1}, {int(math.log2(self.CH))}, v{t0}")
                a(f"v_and_b32 v{t0}, {self.CH-1}, v{t0}")
            else:
                a(f"v_mul_u32_u24 v{t1}, {magic}, v{t0}"); a(f"v_lshrrev_b32 v{t1}, 20, v{t1}")
                a(f"v_mul_u32_u24 v{t2}, {self.CH}, v{t1}"); a(f"v_sub_u32 v{t0}, v{t0}, v{t2}")
            self.g_asm(t1, t2, t3)
            a(f"v_lshlrev_b32 v{t2}, 1, v{t2}"); a(f"v_xor_b32 v{t0}, v{t0}, v{t2}")
            a(f"v_mul_u32_u24 v{t1}, {self.RS}, v{t1}")
            a(f"v_lshl_add_u32 v{t0}, v{t0}, 4, v{t1}")
            if j % 4: a(f"s_sub_u32 s{stmp+1}, s{sCol0Bytes}, {(j%4)*1024}"); a(f"v_add_u32 v{self.vd+j}, s{stmp+1}, v{t0}")
            else: a(f"v_add_u32 v{self.vd+j}, s{sCol0Bytes}, v{t0}")
    def setup_lds(self, sWave, sLds, stmp):
        self.idx0(sWave, sLds, stmp)
        self.a(f"s_lshl_b32 s{sLds}, s{sLds}, 10")
        if self.lds_off: self.a(f"s_add_u32 s{sLds}, s{sLds}, {self.lds_off}")
    def dma(self, sBuf, sK, stmp, sLds, srds, sWave=None):
        g = []
        s = srds
        for j in range(self.n):
            grp = []
            guard = (not self.even) and j == self.n - 1
            if guard:
                lbl = newlabel("ncs")
                grp += [f"s_cmp_lt_u32 s{sWave}, {self.nbig}", f"s_cbranch_scc0 {lbl}"]
            if j % 4 == 0:
                grp.append(f"s_add_u32 s{stmp}, s{sBuf}, s{sLds}")
                if j: grp.append(f"s_add_u32 s{stmp}, s{stmp}, {j*1024}")
                grp += [f"s_mov_b32 m0, s{stmp}", "s_nop 0"]
            off = f" offset:{(j%4)*1024}" if j % 4 else ""
            grp.append(f"buffer_load_dwordx4 v{self.vd+j}, s[{s}:{s+3}], s{sK} offen{off} lds")
            if guard: grp.append(f"{lbl}:")
            g.append(grp)
        return g
    def count(self): return (self.n if self.even else self.n - 1, self.n)
    def setup_read(self, sFrag0, tmp, stmp):
        a = self.a; t0, t1, t2 = tmp, tmp + 1, tmp + 2
        a(f"v_lshrrev_b32 v{t0}, 4, v0"); a(f"v_lshlrev_b32 v{t0}, 3, v{t0}")
        a(f"v_bfe_u32 v{t1}, v0, 2, 2"); a(f"v_add_u32 v{t0}, v{t0}, v{t1}")
        self.g_asm(t0, t1, t2)
        a(f"v_mul_u32_u24 v{t0}, {self.RP}, v{t0}")
        a(f"v_and_b32 v{t2}, 3, v0"); a(f"v_lshl_add_u32 v{t0}, v{t2}, 3, v{t0}")
        if self.lds_off: a(f"v_add_u32 v{t0}, {self.lds_off}, v{t0}")
        for r in range(self.nres):
            a(f"s_add_u32 s{stmp}, s{sFrag0}, {r}")
            a(f"v_xor_b32 v{t2}, s{stmp}, v{t1}")
            if r: a(f"v_subrev_u32 v{t2}, {r}, v{t2}")
            a(f"v_lshl_add_u32 v{self.base+r}, v{t2}, 5, v{t0}")
    def init_cur(self):
        return [f"v_mov_b32 v{self.cur+r}, v{self.base+r}" for r in range(self.nres)]
    def reads(self, ks, dst):
        if C.noread: return []
        g = []
        for i in range(self.nfr):
            r = i % (1 << self.gb)
            for h in range(2):
                off = 32 * i + (4 * h + 32 * ks) * self.RP
                g.append([f"ds_read_b64_tr_b16 {vr(dst+4*i+2*h,2)}, v{self.cur+r} offset:{off}"])
        return g
    def upd_A(self, sBuf): return [f"v_add_u32 v{self.cur+r}, s{sBuf}, v{self.base+r}" for r in range(self.nres)]
    def upd_B(self, sBuf): return []

class Seg:
    def __init__(self, P, Q, acc, Pdma, Qdma, kadvP, kadvQ, name):
        self.P, self.Q, self.acc, self.Pdma, self.Qdma, self.kadvP, self.kadvQ, self.name = P, Q, acc, Pdma, Qdma, kadvP, kadvQ, name
        self.xdma = []

class Gemm:
    def __init__(self, a, V, NBP, NBQ, SP, SQ, mp, mq, regs, joint, early=None):
        self.a, self.NBP, self.NBQ, self.SP, self.SQ, self.mp, self.mq, self.joint = a, NBP, NBQ, SP, SQ, mp, mq, joint
        self.sDP, self.sRP, self.sDQ, self.sRQ, self.sCnt, self.sE = regs
        if joint: self.sDQ, self.sRQ = self.sDP, self.sRP
        self.early = early if C.early else None
        self.leadP = NBP - (1 if self.early == 'P' else 0)
        self.leadQ = NBQ - (1 if self.early == 'Q' else 0)
        self.F = []
        for s in range(2):
            p = V.get(4 * mp, 2); q = V.get(4 * mq, 2)
            self.F.append((p, q))
        self.vmq = []
    def emit(self, lines):
        for x in lines:
            if x.endswith(":"): self.a.label(x[:-1])
            else: self.a(x)
    def note(self, tag, n): self.vmq.append((tag, n))
    def vm_allow(self, need):
        last = -1
        for i, (t, n) in enumerate(self.vmq):
            if t in need: last = i
        return min(63, sum(n for t, n in self.vmq[last + 1:]))
    def reads(self, seg, ks, fs):
        p, q = self.F[fs]
        return merge(seg.P.reads(ks, p), seg.Q.reads(ks, q))
    def mfmas(self, seg, fs):
        p, q = self.F[fs]
        return [f"v_mfma_f32_16x16x32_bf16 {vr(c,4)}, {vr(p+4*i,4)}, {vr(q+4*j,4)}, {vr(c,4)}"
                for i in range(self.mp) for j in range(self.mq) for c in [seg.acc + 4 * (i * self.mq + j)]]
    def spread(self, main, fill):
        n = len(main); k = len(fill)
        if k == 0: return list(main)
        span = max(1, min(n, int(n * C.span)))
        out = []; fi = 0
        for i, m in enumerate(main):
            out.append(m)
            while fi < k and (fi * span) // k <= i:
                out.extend(fill[fi]); fi += 1
        while fi < k: out.extend(fill[fi]); fi += 1
        return out
    def ring_adv(self, sD, sR, stride, nb):
        return [f"s_mov_b32 s{sD}, s{sR}", f"s_add_u32 s{sR}, s{sR}, {stride}", f"s_cmp_eq_u32 s{sR}, {stride*nb}", f"s_cselect_b32 s{sR}, 0, s{sR}"]
    def advance(self):
        out = []
        if self.early: out.append(f"s_mov_b32 s{self.sE}, s{self.sDP if (self.joint or self.early == 'P') else self.sDQ}")
        if self.joint: return out + self.ring_adv(self.sDP, self.sRP, self.SP + self.SQ, self.NBP)
        return out + self.ring_adv(self.sDP, self.sRP, self.SP, self.NBP) + self.ring_adv(self.sDQ, self.sRQ, self.SQ, self.NBQ)
    def dma_list(self, which, seg, sBuf):
        if seg is None or C.nodma: return []
        if which == 'P': return seg.Pdma(sBuf) + [list(seg.kadvP)]
        return seg.Qdma(sBuf) + [list(seg.kadvQ)] + seg.xdma
    def body(self, cur, nxt, dP, dQ, vmw, pre_barrier=None, extra=None):
        a = self.a
        self.emit(self.advance())
        a("s_waitcnt lgkmcnt(0)")
        fill = self.reads(cur, 1, 1)
        if nxt is not None: fill.append(nxt.P.upd_A(self.sRP) + nxt.Q.upd_A(self.sRQ))
        if self.early == 'P': fill = merge(fill, self.dma_list('P', dP, self.sE))
        if self.early == 'Q': fill = merge(fill, self.dma_list('Q', dQ, self.sE))
        if nxt is None and extra: fill = fill + extra
        self.emit(self.spread(self.mfmas(cur, 0), fill))
        if nxt is None:
            a("s_waitcnt lgkmcnt(0)")
            self.emit(self.mfmas(cur, 1))
            return
        if pre_barrier: pre_barrier()
        a(f"s_waitcnt vmcnt({vmw}) lgkmcnt(0)")
        a("s_barrier")
        if C.prio: a("s_setprio 1")
        fill = self.reads(nxt, 0, 0)
        d = []
        if self.early != 'P': d += self.dma_list('P', dP, self.sDP)
        if self.early != 'Q': d += self.dma_list('Q', dQ, self.sDQ)
        fill = merge(fill, d)
        u = nxt.P.upd_B(self.sRP) + nxt.Q.upd_B(self.sRQ)
        if u: fill.append(u)
        if extra: fill = fill + extra
        self.emit(self.spread(self.mfmas(cur, 1), fill))
        if C.prio: a("s_setprio 0")
    def prologue(self, stages, which="PQ"):
        a = self.a
        stride = self.SP + self.SQ if self.joint else None
        a(f"s_mov_b32 s{self.sDP}, 0")
        if not self.joint: a(f"s_mov_b32 s{self.sDQ}, 0")
        for s in range(max(self.leadP, self.leadQ)):
            if "P" in which and s < self.leadP:
                for g in stages[s].Pdma(self.sDP): self.emit(g)
                self.emit(stages[s].kadvP); self.note(('P', s), stages[s].P.count()[0])
                if not self.joint: a(f"s_add_u32 s{self.sDP}, s{self.sDP}, {self.SP}")
            if "Q" in which and s < self.leadQ:
                for g in stages[s].Qdma(self.sDQ): self.emit(g)
                self.emit(stages[s].kadvQ); self.note(('Q', s), stages[s].Q.count()[0])
                if not self.joint: a(f"s_add_u32 s{self.sDQ}, s{self.sDQ}, {self.SQ}")
            if self.joint: a(f"s_add_u32 s{self.sDP}, s{self.sDP}, {stride}")
    def run(self, stages, hooks=None, extras=None, post_first=None):
        a = self.a; N = len(stages)
        hooks = hooks or {}; extras = extras or {}
        a(f"s_waitcnt vmcnt({self.vm_allow({('P',0),('Q',0)})})")
        a("s_barrier")
        if post_first: post_first()
        seen = []
        for sg in stages:
            for op in (sg.P, sg.Q):
                if op not in seen: seen.append(op); self.emit(op.init_cur())
        if self.joint:
            a(f"s_mov_b32 s{self.sRP}, 0"); a(f"s_mov_b32 s{self.sDP}, {(self.SP+self.SQ)*(self.NBP-1)}")
        else:
            a(f"s_mov_b32 s{self.sRP}, 0"); a(f"s_mov_b32 s{self.sDP}, {self.SP*(self.NBP-1)}")
            a(f"s_mov_b32 s{self.sRQ}, 0"); a(f"s_mov_b32 s{self.sDQ}, {self.SQ*(self.NBQ-1)}")
        for g in self.reads(stages[0], 0, 0): self.emit(g)
        sigs = []
        for i in range(N):
            nxt = stages[i + 1] if i + 1 < N else None
            dP = stages[i + self.leadP] if i + self.leadP < N else None
            dQ = stages[i + self.leadQ] if i + self.leadQ < N else None
            def noteP():
                if dP is not None: self.note(('P', i + self.leadP), dP.P.count()[0])
            def noteQ():
                if dQ is not None:
                    self.note(('Q', i + self.leadQ), dQ.Q.count()[0])
                    if dQ.xdma: self.note(('PF', i), len(dQ.xdma))
            if self.early == 'P': noteP()
            if self.early == 'Q': noteQ()
            vmw = self.vm_allow({('P', i + 1), ('Q', i + 1)}) if nxt is not None else 0
            if self.early != 'P': noteP()
            if self.early != 'Q': noteQ()
            if i in extras: self.note(('X', i), extras[i][1])
            sigs.append((stages[i], nxt, dP, dQ, vmw, i if (i in hooks or i in extras) else -1))
        i = 0
        while i < N:
            j = i
            while j < N and sigs[j] == sigs[i]: j += 1
            cnt = j - i
            cur, nxt, dP, dQ, vmw, sp = sigs[i]
            hk = hooks.get(sp); ex = extras[sp][0] if sp in extras else None
            if cnt >= 2:
                lbl = newlabel("gl")
                a(f"s_mov_b32 s{self.sCnt}, {cnt}")
                a.label(lbl)
                self.body(cur, nxt, dP, dQ, vmw)
                a(f"s_sub_u32 s{self.sCnt}, s{self.sCnt}, 1"); a(f"s_cmp_lg_u32 s{self.sCnt}, 0"); a(f"s_cbranch_scc1 {lbl}")
            else:
                self.body(cur, nxt, dP, dQ, vmw, hk, ex)
            i = j

def merge(x, y):
    out = []; i = j = 0
    while i < len(x) or j < len(y):
        if j >= len(y) or (i < len(x) and i * len(y) <= j * len(x)): out.append(x[i]); i += 1
        else: out.append(y[j]); j += 1
    return out

def bf16_round(a, vdst, vsrc):
    a(f"v_cvt_pk_bf16_f32 v{vdst}, v{vsrc}, v{vsrc}"); a(f"v_lshlrev_b32 v{vdst}, 16, v{vdst}")

def stamp(a, idx, real=False, st="main"):
    if C.dbgst and (real or st == C.stampset):
        a("s_memrealtime s[88:89]" if real else "s_memtime s[88:89]")
        a("s_waitcnt lgkmcnt(0)")
        a(f"s_mov_b32 s{92+idx}, s88")

sWave, sM, sN, sRole = 28, 29, 30, 31
sBufD, sBufR, sCnt, sTmp, sKP, sKQ, sLdsP, sLdsQ = 32, 33, 34, 35, 36, 37, 38, 39
sWp, sWq, sRot, sLdsP2, sKP2, sTile, sTt, sDt = 80, 81, 82, 83, 84, 85, 86, 87
SX, SA, SB_, SWS, SDBG, SS = 4, 8, 12, 16, 20, 24
T0, T1, T2, T3 = 76, 77, 78, 79
U0, U1, U2, U3 = 88, 89, 90, 91
VT = 2

def ssm_param_loads(a, vch, t):
    a(f"v_lshlrev_b32 v{t}, 1, v{vch}")
    for k, name in enumerate(("lre", "lim", "ldt")):
        srd(a, SS, PTR[name], 2048)
        a(f"buffer_load_ushort v{t+1+k}, v{t}, s[{SS}:{SS+3}], 0 offen")

def ssm_params_compute(a, out, t, want_kappa=True):
    lre, lim, ldt = t + 1, t + 2, t + 3
    x0, x1, x2, x3 = t + 4, t + 5, t + 6, t + 7
    lr, li, kr, ki = out, out + 1, out + 2, out + 3
    for r in (lre, lim, ldt): a(f"v_lshlrev_b32 v{r}, 16, v{r}")
    a(f"v_mul_f32 v{x0}, {LOG2E:#x}, v{ldt}"); a(f"v_exp_f32 v{x0}, v{x0}"); a("s_nop 0")
    bf16_round(a, x0, x0)
    a(f"v_mul_f32 v{x1}, v{x0}, v{lre}"); a(f"v_mul_f32 v{x2}, v{x0}, v{lim}")
    a(f"v_mul_f32 v{x1}, {LOG2E:#x}, v{x1}"); a(f"v_exp_f32 v{x1}, v{x1}")
    a(f"v_mul_f32 v{x2}, {INV2PI:#x}, v{x2}"); a(f"v_rndne_f32 v{x3}, v{x2}"); a(f"v_sub_f32 v{x2}, v{x2}, v{x3}")
    a(f"v_cos_f32 v{x3}, v{x2}"); a(f"v_sin_f32 v{x2}, v{x2}"); a("s_nop 0")
    a(f"v_mul_f32 v{lr}, v{x1}, v{x3}"); a(f"v_mul_f32 v{li}, v{x1}, v{x2}")
    if want_kappa:
        a(f"v_subrev_f32 v{x0}, 1.0, v{lr}")
        a(f"v_mul_f32 v{x1}, v{x0}, v{lre}"); a(f"v_fmac_f32 v{x1}, v{li}, v{lim}")
        a(f"v_mul_f32 v{x2}, v{li}, v{lre}"); a(f"v_fma_f32 v{x2}, -v{x0}, v{lim}, v{x2}")
        a(f"v_mul_f32 v{x3}, v{lre}, v{lre}"); a(f"v_fmac_f32 v{x3}, v{lim}, v{lim}")
        a(f"v_rcp_f32 v{x3}, v{x3}"); a("s_nop 0")
        a(f"v_add_f32 v{x3}, v{x3}, v{x3}")
        a(f"v_mul_f32 v{kr}, v{x1}, v{x3}"); a(f"v_mul_f32 v{ki}, v{x2}, v{x3}")

def csq(a, dr, di, sr_, si, t):
    a(f"v_mul_f32 v{t}, v{sr_}, v{si}"); a(f"v_mul_f32 v{dr}, v{sr_}, v{sr_}")
    a(f"v_fma_f32 v{dr}, -v{si}, v{si}, v{dr}"); a(f"v_add_f32 v{di}, v{t}, v{t}")

def gate_loads(a, half, vx, vw, t):
    a(f"s_lshl_b32 s{U0}, s{sM}, 8"); a(f"s_lshl_b32 s{U1}, s{sN}, 4"); a(f"s_add_u32 s{U0}, s{U0}, s{U1}")
    a(f"s_add_u32 s{U0}, s{U0}, s{sWave}")
    if half: a(f"s_add_u32 s{U0}, s{U0}, 8")
    a(f"s_lshl_b32 s{U1}, s{U0}, 11")
    a(f"v_lshlrev_b32 v{t}, 5, v0")
    a(f"buffer_load_dwordx4 {vr(vx,4)}, v{t}, s[{SX}:{SX+3}], s{U1} offen")
    a(f"buffer_load_dwordx4 {vr(vx+4,4)}, v{t}, s[{SX}:{SX+3}], s{U1} offen offset:16")
    srd(a, SS, PTR["gw"], 2048)
    a(f"buffer_load_dwordx4 {vr(vw,4)}, v{t}, s[{SS}:{SS+3}], 0 offen")
    a(f"buffer_load_dwordx4 {vr(vw+4,4)}, v{t}, s[{SS}:{SS+3}], 0 offen offset:16")

def gate_compute(a, half, vx, vw, t):
    acc = t; p0, p1, q0, q1 = t + 1, t + 2, t + 3, t + 4
    a(f"v_mov_b32 v{acc}, 0")
    for d in range(8):
        a(f"v_lshlrev_b32 v{p0}, 16, v{vx+d}"); a(f"v_and_b32 v{p1}, 0xffff0000, v{vx+d}")
        a(f"v_lshlrev_b32 v{q0}, 16, v{vw+d}"); a(f"v_and_b32 v{q1}, 0xffff0000, v{vw+d}")
        a(f"v_mul_f32 v{p0}, v{p0}, v{q0}"); a(f"v_mul_f32 v{p1}, v{p1}, v{q1}")
        a(f"v_cvt_pk_bf16_f32 v{p0}, v{p0}, v{p1}")
        a(f"v_and_b32 v{p1}, 0xffff0000, v{p0}"); a(f"v_lshlrev_b32 v{p0}, 16, v{p0}")
        a(f"v_add_f32 v{acc}, v{acc}, v{p0}"); a(f"v_add_f32 v{acc}, v{acc}, v{p1}")
    for sh in (1, 2, 4, 8):
        a("s_nop 1")
        a(f"v_add_f32_dpp v{acc}, v{acc}, v{acc} row_shr:{sh} row_mask:0xf bank_mask:0xf bound_ctrl:0")
    a("s_nop 1")
    a(f"v_add_f32_dpp v{acc}, v{acc}, v{acc} row_bcast:15 row_mask:0xa bank_mask:0xf")
    a("s_nop 1")
    a(f"v_add_f32_dpp v{acc}, v{acc}, v{acc} row_bcast:31 row_mask:0xc bank_mask:0xf")
    a("s_nop 1")
    a(f"v_readlane_b32 s{U0}, v{acc}, 63")
    a("s_nop 1")
    a(f"v_mov_b32 v{acc}, s{U0}")
    bf16_round(a, acc, acc)
    a(f"v_mul_f32 v{p0}, {LOG2E ^ 0x80000000:#x}, v{acc}"); a(f"v_exp_f32 v{p0}, v{p0}"); a("s_nop 0")
    a(f"v_add_f32 v{p0}, 1.0, v{p0}"); a(f"v_rcp_f32 v{p0}, v{p0}"); a("s_nop 0")
    bf16_round(a, p0, p0)
    a(f"v_sub_f32 v{p1}, 1.0, v{p0}")
    bf16_round(a, p1, p1)
    a(f"s_lshl_b32 s{U0}, s{sM}, 8"); a(f"s_lshl_b32 s{U1}, s{sN}, 4"); a(f"s_add_u32 s{U0}, s{U0}, s{U1}")
    a(f"s_add_u32 s{U0}, s{U0}, s{sWave}")
    if half: a(f"s_add_u32 s{U0}, s{U0}, 8")
    a(f"s_lshl_b32 s{U0}, s{U0}, 3"); a(f"s_add_u32 s{U0}, s{U0}, {WS_G}")
    a(f"v_cmp_eq_u32 vcc, 0, v0"); a("s_nop 1")
    a(f"v_cndmask_b32 v{p0}, v{p1}, v{p0}, vcc")
    a(f"v_lshlrev_b32 v{q0}, 2, v0")
    a("s_mov_b64 exec, 3")
    a(f"buffer_store_dword v{p0}, v{q0}, s[{SWS}:{SWS+3}], s{U0} offen sc1")
    a("s_mov_b64 exec, -1")

def mb_zero_issue(a, vt):
    sk = newlabel("mz")
    a(f"s_cmp_lg_u32 s{sWave}, 0"); a(f"s_cbranch_scc1 {sk}")
    a(f"v_mov_b32 v{vt}, 0"); a(f"v_lshlrev_b32 v{vt+1}, 2, v0")
    a(f"s_lshl_b32 s{U0}, s2, 8"); a(f"s_add_u32 s{U0}, s{U0}, {WS_MB}")
    a("s_mov_b64 exec, 15")
    a(f"buffer_store_dword v{vt}, v{vt+1}, s[{SWS}:{SWS+3}], s{U0} offen sc1")
    a("s_mov_b64 exec, -1")
    a.label(sk)

def init_signal(a, vt):
    sk = newlabel("mi")
    a(f"s_cmp_lg_u32 s{sWave}, 0"); a(f"s_cbranch_scc1 {sk}")
    a(f"v_mov_b32 v{vt}, 1"); a(f"v_mov_b32 v{vt+1}, 0")
    a("s_mov_b64 exec, 1")
    a(f"buffer_atomic_add v{vt}, v{vt+1}, s[{SDBG}:{SDBG+3}], 0 offen sc1")
    a("s_mov_b64 exec, -1")
    a.label(sk)

def poll(a, srd_, sByteOff, check, vt, wide=1, sleep=None):
    lp, ok = newlabel("poll"), newlabel("pok")
    a(f"v_mov_b32 v{vt+4}, s{sByteOff}")
    a(f"s_mov_b32 s{U2}, {C.spin}")
    a.label(lp)
    a(f"s_sub_u32 s{U2}, s{U2}, 1"); a(f"s_cmp_eq_u32 s{U2}, 0"); a(f"s_cbranch_scc1 {ok}")
    op = {1: "dword", 2: "dwordx2", 4: "dwordx4"}[wide]
    a(f"buffer_load_{op} {vr(vt,wide)}, v{vt+4}, s[{srd_}:{srd_+3}], 0 offen sc1")
    a("s_waitcnt vmcnt(0)")
    a(f"v_readfirstlane_b32 s{U0}, v{vt}")
    if wide >= 2: a(f"v_readfirstlane_b32 s{U1}, v{vt+1}")
    if wide >= 4: a(f"v_readfirstlane_b32 s{U3}, v{vt+2}")
    a("s_nop 3")
    check(ok)
    a(f"s_sleep {C.sleep if sleep is None else sleep}")
    a(f"s_branch {lp}")
    a.label(ok)

VINIT = 1
def init_load(a):
    sk = newlabel("il")
    a(f"s_cmp_lg_u32 s{sWave}, 0"); a(f"s_cbranch_scc1 {sk}")
    a(f"v_mov_b32 v{VINIT}, 0")
    a(f"buffer_load_dword v{VINIT}, v{VINIT}, s[{SDBG}:{SDBG+3}], 0 offen sc1")
    a.label(sk)

def init_check(a, vt):
    ok = newlabel("ic")
    a(f"v_readfirstlane_b32 s{U0}, v{VINIT}"); a("s_nop 3")
    a(f"s_cmp_ge_u32 s{U0}, 256"); a(f"s_cbranch_scc1 {ok}")
    a(f"s_mov_b32 s{T3}, 0")
    def chk(o): a(f"s_cmp_ge_u32 s{U0}, 256"); a(f"s_cbranch_scc1 {o}")
    poll(a, SDBG, T3, chk, vt, sleep=32)
    a.label(ok)

def poll_own(a, check, vt):
    a(f"s_lshl_b32 s{T3}, s2, 8"); a(f"s_add_u32 s{T3}, s{T3}, {WS_MB}")
    poll(a, SWS, T3, check, vt, wide=4)

def signal_cnt(a, dword, vt):
    l, t1, t2 = vt, vt + 1, vt + 2
    a(f"v_bfe_u32 v{t1}, v0, 3, 1"); a(f"s_lshl_b32 s{T0}, s{sM}, 1"); a(f"v_add_u32 v{t1}, s{T0}, v{t1}")
    a(f"v_lshrrev_b32 v{t2}, 2, v{t1}"); a(f"v_lshlrev_b32 v{t2}, 1, v{t2}")
    a(f"v_bfe_u32 v{l}, v0, 2, 1"); a(f"v_or_b32 v{t2}, v{t2}, v{l}")
    a(f"v_and_b32 v{t1}, 3, v{t1}"); a(f"v_lshlrev_b32 v{t1}, 2, v{t1}")
    a(f"v_and_b32 v{l}, 3, v0"); a(f"v_or_b32 v{t1}, v{t1}, v{l}")
    a(f"v_bfe_u32 v{l}, v0, 4, 1"); a(f"v_lshl_or_b32 v{t1}, v{l}, 4, v{t1}")
    a(f"v_lshl_or_b32 v{t1}, v{t1}, 3, v{t2}")
    a(f"v_lshlrev_b32 v{t1}, 8, v{t1}")
    a(f"v_mov_b32 v{l}, 1")
    a(f"s_mov_b32 s{T0}, {WS_MB + 4*dword}")
    a("s_mov_b32 exec_hi, 0")
    a(f"buffer_atomic_add v{l}, v{t1}, s[{SWS}:{SWS+3}], s{T0} offen sc1")
    a("s_mov_b64 exec, -1")

def bulk_prefetch(a, G, vdummy, vaddr):
    a(f"v_lshlrev_b32 v{vaddr}, 4, v0")
    n = 0
    for name, size in C.pflist:
        size = {"x": L*D*2, "w1": D*F*2, "bre": P_*D*2, "bim": P_*D*2, "cre": D*P_*2, "cim": D*P_*2, "w2": F*D*2}[name]
        share = size // 256; pw = share // 8
        a(f"s_mul_i32 s{U0}, s2, {share}"); a(f"s_mul_i32 s{U1}, s{sWave}, {pw}"); a(f"s_add_u32 s{U0}, s{U0}, s{U1}")
        a(f"s_mov_b32 s{SS}, s{PTR[name]}"); a(f"s_mov_b32 s{SS+1}, s{PTR[name]+1}")
        a(f"s_add_u32 s{SS+2}, s{U0}, {pw}"); a(f"s_mov_b32 s{SS+3}, 0x20000")
        for i in range(-(-pw // 1024)):
            a(f"buffer_load_dwordx4 {vr(vdummy,4)}, v{vaddr}, s[{SS}:{SS+3}], s{U0} offen offset:{i*1024}")
            n += 1
    G.note('pf', n)

def phase1_dense(a):
    V = Regs(10)
    TP, TQ = 224, 256
    mp, mq = 7, 4
    Pop = OpNC(a, V, TP, 0, mp, F * 2)
    NBQ = C.nbq
    Qop = OpKC(a, V, TQ, 2 * Pop.bytes, mq); Qop.groups = [[0, 1, 2, 3]]
    G = Gemm(a, V, 2, NBQ, Pop.bytes, Qop.bytes, mp, mq, (sBufD, sBufR, sTile, sTt, sCnt, sRole), False, 'Q')
    LDS1 = 2 * Pop.bytes + NBQ * Qop.bytes
    acc = V.get(4 * mp * mq, 2)
    vb = V.get(2 * mp, 2); vdum = V.get(4, 2)
    a(f"s_lshr_b32 s{sWp}, s{sWave}, 2"); a(f"s_and_b32 s{sWq}, s{sWave}, 3")
    a(f"s_mul_i32 s{T0}, s{sN}, {TP*2}")
    Pop.setup_dma(sWave, VT, T0, U0)
    Qop.lane_chunk(VT, VT + 1)
    a(f"v_lshrrev_b32 v{VT+1}, 3, v0"); a(f"v_lshl_add_u32 v{VT}, v{VT+1}, 11, v{VT}")
    for j in range(4):
        a(f"s_lshl_b32 s{T0}, s{sM}, 8"); a(f"s_lshl_b32 s{T1}, s{sWave}, 5"); a(f"s_add_u32 s{T0}, s{T0}, s{T1}")
        a(f"s_add_u32 s{T0}, s{T0}, {8*j}"); a(f"s_lshl_b32 s{T0}, s{T0}, 11"); a(f"s_sub_u32 s{T0}, s{T0}, {j*1024}")
        Qop.set_voff(j, VT, T0, bool(j & 1))
    Pop.setup_lds(sWave, sLdsP, U0)
    a(f"s_lshl_b32 s{sLdsQ}, s{sWave}, 12"); a(f"s_add_u32 s{sLdsQ}, s{sLdsQ}, {Qop.lds_off}")
    a(f"s_mul_i32 s{sKP}, s{sRot}, {64*F*2}"); a(f"s_lshl_b32 s{sKQ}, s{sRot}, 7")
    a("s_waitcnt lgkmcnt(0)")
    srd(a, SX, PTR["x"], L * D * 2); srd(a, SWS, PTR["ws"], WS_SIZE); srd(a, SDBG, PTR["dbg"], 256)
    srd(a, SA, PTR["w1"], D * F * 2)
    gx, gw_ = G.F[0][0], G.F[1][0]
    mb_zero_issue(a, VT + 4)
    a(f"s_mul_i32 s{T2}, s{sN}, {TP}"); a(f"s_mul_i32 s{T3}, s{sWp}, {mp*16}"); a(f"s_add_u32 s{T2}, s{T2}, s{T3}")
    a(f"s_lshl_b32 s{T3}, s{T2}, 1")
    a(f"v_lshrrev_b32 v{VT+2}, 4, v0"); a(f"v_lshlrev_b32 v{VT+2}, 3, v{VT+2}")
    srd(a, SS, PTR["b1"], F * 2)
    for i in range(mp):
        a(f"buffer_load_dwordx2 {vr(vb+2*i,2)}, v{VT+2}, s[{SS}:{SS+3}], s{T3} offen offset:{32*i}")
    gate_loads(a, 1, gx, gw_, VT + 3)
    G.note('misc', mp + 4)
    kadvP = [f"s_add_u32 s{sKP}, s{sKP}, {64*F*2}", f"s_cmp_eq_u32 s{sKP}, {D*F*2}", f"s_cselect_b32 s{sKP}, 0, s{sKP}"]
    kadvQ = [f"s_add_u32 s{sKQ}, s{sKQ}, 128", f"s_and_b32 s{sKQ}, s{sKQ}, 2047"]
    seg = Seg(Pop, Qop, acc, lambda b: Pop.dma(b, sKP, sTmp, sLdsP, SA, sWave), lambda b: Qop.dma(b, sKQ, sTmp, sLdsQ, [SX] * 4), kadvP, kadvQ, "d1")
    stages = [seg] * 16
    G.prologue(stages)
    if C.bulk: bulk_prefetch(a, G, vdum, VT + 5)
    a(f"s_mul_i32 s{T0}, s{sWp}, {mp}"); Pop.setup_read(T0, VT, U0)
    a(f"s_mul_i32 s{T0}, s{sWq}, {mq}"); Qop.setup_read(T0, VT, U0)
    a(f"s_waitcnt vmcnt({G.vm_allow({'misc'})})")
    init_signal(a, VT + 4)
    for i in range(mp):
        c = acc + 4 * (i * mq)
        a(f"v_lshlrev_b32 v{c}, 16, v{vb+2*i}"); a(f"v_and_b32 v{c+1}, 0xffff0000, v{vb+2*i}")
        a(f"v_lshlrev_b32 v{c+2}, 16, v{vb+2*i+1}"); a(f"v_and_b32 v{c+3}, 0xffff0000, v{vb+2*i+1}")
        for j in range(1, mq):
            for r in range(4): a(f"v_mov_b32 v{c+4*j+r}, v{c+r}")
    gate_compute(a, 1, gx, gw_, VT)
    G.note('gst', 1)
    stamp(a, 1)
    G.run(stages)
    stamp(a, 2)
    PITCH = 464
    stamp(a, 1, st="dense")
    init_load(a)
    vw = VT
    a(f"v_and_b32 v{vw}, 15, v0"); a(f"v_mul_u32_u24 v{vw}, {PITCH}, v{vw}")
    a(f"v_lshrrev_b32 v{VT+1}, 4, v0"); a(f"v_lshl_add_u32 v{vw}, v{VT+1}, 3, v{vw}")
    a(f"s_mul_i32 s{T0}, s{sWq}, {64*PITCH}"); a(f"s_mul_i32 s{T1}, s{sWp}, 224"); a(f"s_add_u32 s{T0}, s{T0}, s{T1}")
    a(f"v_add_u32 v{vw}, s{T0}, v{vw}")
    vr_, vg_ = VT + 1, VT + 2
    a(f"v_cmp_le_u32 vcc, 28, v0"); a("s_nop 1")
    a(f"v_cndmask_b32 v{VT+3}, 0, 1, vcc")
    a(f"v_mul_u32_u24 v{VT+4}, 28, v{VT+3}"); a(f"v_sub_u32 v{VT+4}, v0, v{VT+4}")
    a(f"v_lshlrev_b32 v{VT+4}, 4, v{VT+4}")
    a(f"v_mul_u32_u24 v{vr_}, {PITCH}, v{VT+3}"); a(f"v_add_u32 v{vr_}, v{vr_}, v{VT+4}")
    a(f"s_mul_i32 s{T0}, s{sWq}, {64*PITCH}"); a(f"s_mul_i32 s{T1}, s{sWp}, {32*PITCH}"); a(f"s_add_u32 s{T0}, s{T0}, s{T1}")
    a(f"v_add_u32 v{vr_}, s{T0}, v{vr_}")
    a(f"v_mul_u32_u24 v{vg_}, {RS_A2}, v{VT+3}"); a(f"v_add_u32 v{vg_}, v{vg_}, v{VT+4}")
    a(f"s_lshl_b32 s{T0}, s{sM}, 8"); a(f"s_lshl_b32 s{T1}, s{sWq}, 6"); a(f"s_add_u32 s{T0}, s{T0}, s{T1}")
    a(f"s_lshl_b32 s{T1}, s{sWp}, 5"); a(f"s_add_u32 s{T0}, s{T0}, s{T1}")
    a(f"s_mul_i32 s{T0}, s{T0}, {RS_A2}"); a(f"s_mul_i32 s{T1}, s{sN}, 448"); a(f"s_add_u32 s{T0}, s{T0}, s{T1}")
    a(f"s_add_u32 s{T0}, s{T0}, {WS_A2 + 4096}")
    for j in range(mq):
        for i in range(mp):
            c = acc + 4 * (i * mq + j)
            for r in range(4): a(f"v_mul_f32_e64 v{c+r}, v{c+r}, |v{c+r}|")
            a(f"v_cvt_pk_bf16_f32 v{c}, v{c}, v{c+1}"); a(f"v_cvt_pk_bf16_f32 v{c+1}, v{c+2}, v{c+3}")
            a(f"v_pk_max_i16 v{c}, v{c}, 0"); a(f"v_pk_max_i16 v{c+1}, v{c+1}, 0")
    a("s_barrier")
    stamp(a, 2, st="dense")
    for j in range(mq):
        for i in range(mp):
            c = acc + 4 * (i * mq + j)
            a(f"ds_write_b64 v{vw}, {vr(c,2)} offset:{j*16*PITCH + 32*i}")
    a("s_waitcnt lgkmcnt(0)")
    stamp(a, 3, st="dense")
    a("s_barrier")
    stamp(a, 4, st="dense")
    a("s_mov_b32 exec_hi, 0x00ffffff")
    rb = acc
    for n in range(16):
        a(f"ds_read_b128 {vr(rb+4*n,4)}, v{vr_} offset:{2*n*PITCH}")
    for n in range(16):
        a(f"s_waitcnt lgkmcnt({15-n})")
        a(f"buffer_store_dwordx4 {vr(rb+4*n,4)}, v{vg_}, s[{SWS}:{SWS+3}], s{T0} offen{C.wt}")
        a(f"s_add_u32 s{T0}, s{T0}, {2*RS_A2}")
    a("s_mov_b64 exec, -1")
    stamp(a, 5, st="dense")
    return V.hi, max(LDS1, 4 * 64 * PITCH)

def phase1_ssm(a):
    V = Regs(10)
    mp, mq = 4, 4
    Pop = OpKC(a, V, 256, 0, mp); Pop.groups = [[0, 1, 2, 3]]
    Qop = OpKC(a, V, 128, Pop.bytes, mq); Qop.groups = [[0], [1]]; Qop.ldsoffs = [0, 8192]
    Qop.frag_off = lambda j: ((j & 1) * 4 + (j >> 1)) * 2048
    SB = Pop.bytes + Qop.bytes; NB = 3
    G = Gemm(a, V, NB, NB, Pop.bytes, Qop.bytes, mp, mq, (sBufD, sBufR, None, None, sCnt, sRole), True, 'P')
    acc = V.get(64, 2); prm = V.get(12, 4); big = V.get(72, 4)
    AG = NB * SB
    a(f"s_lshr_b32 s{sWp}, s{sWave}, 1"); a(f"s_and_b32 s{sWq}, s{sWave}, 1")
    Pop.lane_chunk(VT, VT + 1)
    a(f"v_lshrrev_b32 v{VT+1}, 5, v0"); a(f"v_lshlrev_b32 v{VT+1}, 4, v{VT+1}")
    a(f"v_bfe_u32 v{VT+2}, v0, 3, 2"); a(f"v_add_u32 v{VT+1}, v{VT+1}, v{VT+2}")
    a(f"v_lshl_add_u32 v{VT+3}, v{VT+1}, 11, v{VT}")
    for j in range(4):
        a(f"s_lshl_b32 s{T0}, s{sWave}, 1");
        if j >> 1: a(f"s_add_u32 s{T0}, s{T0}, 1")
        a(f"s_and_b32 s{T0}, s{T0}, 3"); a(f"s_lshl_b32 s{T0}, s{T0}, 2")
        a(f"s_lshl_b32 s{T1}, s{sWp}, 6"); a(f"s_add_u32 s{T0}, s{T0}, s{T1}")
        a(f"s_lshl_b32 s{T1}, s{sM}, 8"); a(f"s_add_u32 s{T0}, s{T0}, s{T1}")
        if j & 1: a(f"s_add_u32 s{T0}, s{T0}, 32")
        a(f"s_lshl_b32 s{T0}, s{T0}, 11")
        if j: a(f"s_sub_u32 s{T0}, s{T0}, {j*1024}")
        Pop.set_voff(j, VT + 3, T0, bool(j & 1))
    a(f"v_lshrrev_b32 v{VT+1}, 3, v0"); a(f"v_lshl_add_u32 v{VT+3}, v{VT+1}, 12, v{VT}")
    a(f"s_lshr_b32 s{T0}, s{sWave}, 2"); a(f"s_lshl_b32 s{T0}, s{T0}, 5")
    a(f"s_and_b32 s{T1}, s{sWave}, 1"); a(f"s_lshl_b32 s{T2}, s{T1}, 6"); a(f"s_lshl_b32 s{T1}, s{T1}, 4"); a(f"s_add_u32 s{T0}, s{T0}, s{T1}")
    a(f"s_bfe_u32 s{T1}, s{sWave}, 0x10001"); a(f"s_add_u32 s{T0}, s{T0}, s{T1}")
    a(f"s_lshl_b32 s{T1}, s{sN}, 6"); a(f"s_add_u32 s{T0}, s{T0}, s{T1}"); a(f"s_lshl_b32 s{T0}, s{T0}, 11")
    Qop.set_voff(0, VT + 3, T0, T2)
    a(f"v_mov_b32 v{Qop.vd+1}, v{Qop.vd}")
    a(f"s_lshl_b32 s{sLdsP}, s{sWave}, 12")
    a(f"s_lshl_b32 s{sLdsQ}, s{sWave}, 10"); a(f"s_add_u32 s{sLdsQ}, s{sLdsQ}, {Qop.lds_off}")
    a(f"s_lshl_b32 s{sKQ}, s{sRot}, 7")
    a("s_waitcnt lgkmcnt(0)")
    srd(a, SX, PTR["x"], L * D * 2); srd(a, SWS, PTR["ws"], WS_SIZE); srd(a, SDBG, PTR["dbg"], 256)
    srd(a, SA, PTR["bre"], P_ * D * 2); srd(a, SB_, PTR["bim"], P_ * D * 2)
    gx, gw_ = G.F[0][0], G.F[1][0]
    mb_zero_issue(a, VT + 4)
    pt = [big, big + 8, big + 16]
    a(f"s_lshl_b32 s{T2}, s{sN}, 6"); a(f"s_lshl_b32 s{T3}, s{sWq}, 5"); a(f"s_add_u32 s{T3}, s{T3}, s{T2}")
    a(f"v_and_b32 v{VT}, 15, v0"); a(f"v_lshlrev_b32 v{VT}, 1, v{VT}"); a(f"v_add_u32 v{VT}, s{T3}, v{VT}")
    ssm_param_loads(a, VT, pt[0])
    a(f"v_add_u32 v{VT}, 1, v{VT}"); ssm_param_loads(a, VT, pt[1])
    a(f"v_add_u32 v{VT}, s{T2}, v0"); ssm_param_loads(a, VT, pt[2])
    gate_loads(a, 0, gx, gw_, VT + 3)
    G.note('misc', 13)
    kadv = [f"s_add_u32 s{sKQ}, s{sKQ}, 128", f"s_and_b32 s{sKQ}, s{sKQ}, 2047"]
    kadvP = [f"s_add_u32 s{sKP}, s{sKP}, 128", f"s_and_b32 s{sKP}, s{sKP}, 2047"]
    a(f"s_mov_b32 s{sKP}, s{sKQ}")
    seg = Seg(Pop, Qop, acc, lambda b: Pop.dma(b, sKP, sTmp, sLdsP, [SX] * 4), lambda b: Qop.dma(b, sKQ, sTmp, sLdsQ, [SA, SB_]), kadvP, kadv, "s1")
    if C.prefetch:
        SP1, SP2, sPF1, sPF2 = SS, 72, sLdsP2, sKP2
        a(f"s_lshl_b32 s{T0}, s{sM}, 4"); a(f"s_add_u32 s{T0}, s{T0}, s{sN}")
        a(f"s_mul_i32 s{sPF2}, s{T0}, {56*1024}"); a(f"s_mul_i32 s{T1}, s{sWave}, {7*1024}"); a(f"s_add_u32 s{sPF2}, s{sPF2}, s{T1}")
        a(f"s_mov_b32 s{SP2}, s{PTR['w2']}"); a(f"s_mov_b32 s{SP2+1}, s{PTR['w2']+1}")
        a(f"s_add_u32 s{SP2+2}, s{sPF2}, {7*1024}"); a(f"s_mov_b32 s{SP2+3}, 0x20000")
        a(f"s_lshr_b32 s{T1}, s{T0}, 6"); a(f"s_cmp_eq_u32 s{T1}, 0")
        a(f"s_cselect_b32 s{SP1}, s{PTR['cre']}, s{PTR['cim']}"); a(f"s_cselect_b32 s{SP1+1}, s{PTR['cre']+1}, s{PTR['cim']+1}")
        a(f"s_and_b32 s{sPF1}, s{T0}, 63"); a(f"s_lshl_b32 s{sPF1}, s{sPF1}, 15"); a(f"s_lshl_b32 s{T1}, s{sWave}, 12"); a(f"s_add_u32 s{sPF1}, s{sPF1}, s{T1}")
        a(f"s_add_u32 s{SP1+2}, s{sPF1}, 4096"); a(f"s_mov_b32 s{SP1+3}, 0x20000")
        vpf = V.get(1); vpd = V.get(4, 2)
        a(f"v_lshlrev_b32 v{vpf}, 4, v0")
        pf = []
        for i in range(4): pf.append([f"buffer_load_dwordx4 {vr(vpd,4)}, v{vpf}, s[{SP1}:{SP1+3}], s{sPF1} offen offset:{i*1024}"])
        for i in range(7):
            pf.append([f"buffer_load_dwordx4 {vr(vpd,4)}, v{vpf}, s[{SP2}:{SP2+3}], s{sPF2} offen offset:{(i%4)*1024}"] + ([f"s_add_u32 s{sPF2}, s{sPF2}, 4096"] if i == 3 else []))
        p1extras = {C.pfit: (pf, 11)}
    else:
        p1extras = {}
    stages = [seg] * 16
    G.prologue(stages)
    if C.bulk:
        vdum = V.get(4, 2); bulk_prefetch(a, G, vdum, VT + 5)
    a(f"s_mul_i32 s{T0}, s{sWp}, {mp}"); Pop.setup_read(T0, VT, U0)
    a(f"s_lshl_b32 s{T0}, s{sWq}, 1"); Qop.setup_read(T0, VT, U0)
    for i in range(64): a(f"v_mov_b32 v{acc+i}, 0")
    a(f"s_waitcnt vmcnt({G.vm_allow({'misc'})})")
    init_signal(a, VT + 4)
    gate_compute(a, 0, gx, gw_, VT)
    G.note('gst', 1)
    ssm_params_compute(a, prm, pt[0]); ssm_params_compute(a, prm + 4, pt[1]); ssm_params_compute(a, prm + 8, pt[2], False)
    stamp(a, 1)
    G.run(stages, None, p1extras)
    stamp(a, 2)
    stamp(a, 1, st="ssm")
    init_load(a)
    a("s_nop 7")
    def U(jc, ri, s): return acc + 4 * ((s >> 2) * 4 + 2 * jc + ri) + (s & 3)
    ag = big; tt = big + 4
    def scan_step(s):
        for jc in range(2):
            hr, hi_ = ag + 2 * jc, ag + 2 * jc + 1; lr = prm + 4 * jc; t0, t1 = tt + 2 * jc, tt + 2 * jc + 1
            a(f"v_fma_f32 v{t0}, v{lr}, v{hr}, v{U(jc,0,s)}"); a(f"v_fma_f32 v{t1}, v{lr}, v{hi_}, v{U(jc,1,s)}")
        for jc in range(2):
            hr, hi_ = ag + 2 * jc, ag + 2 * jc + 1; li = prm + 4 * jc + 1; t0, t1 = tt + 2 * jc, tt + 2 * jc + 1
            a(f"v_fma_f32 v{hi_}, v{li}, -v{hi_}, v{t0}")
            a(f"v_fma_f32 v{t1}, v{li}, v{hr}, v{t1}")
        for jc in range(2):
            hr, hi_ = ag + 2 * jc, ag + 2 * jc + 1; t1 = tt + 2 * jc + 1
            a(f"v_mov_b32 v{hr}, v{hi_}"); a(f"v_mov_b32 v{hi_}, v{t1}")
    for jc in range(2):
        a(f"v_mov_b32 v{ag+2*jc}, v{U(jc,0,0)}"); a(f"v_mov_b32 v{ag+2*jc+1}, v{U(jc,1,0)}")
    def scan2(s, src, dst):
        for jc in range(2):
            hr, hi_ = src + 2 * jc, src + 2 * jc + 1; lr = prm + 4 * jc; dr, di = dst + 2 * jc, dst + 2 * jc + 1
            a(f"v_fma_f32 v{dr}, v{lr}, v{hr}, v{U(jc,0,s)}"); a(f"v_fma_f32 v{di}, v{lr}, v{hi_}, v{U(jc,1,s)}")
        for jc in range(2):
            hr, hi_ = src + 2 * jc, src + 2 * jc + 1; li = prm + 4 * jc + 1; dr, di = dst + 2 * jc, dst + 2 * jc + 1
            a(f"v_fma_f32 v{dr}, -v{li}, v{hi_}, v{dr}"); a(f"v_fma_f32 v{di}, v{li}, v{hr}, v{di}")
    st = [ag, tt]
    for s in range(1, 16): scan2(s, st[(s - 1) & 1], st[s & 1])
    fin = st[15 & 1]
    vag = big + 8
    def calc_vag():
        a(f"v_lshrrev_b32 v{vag}, 4, v0"); a(f"s_lshl_b32 s{T0}, s{sWp}, 2"); a(f"v_add_u32 v{vag}, s{T0}, v{vag}")
        a(f"v_lshlrev_b32 v{vag}, 9, v{vag}")
        a(f"v_and_b32 v{big+9}, 15, v0"); a(f"v_lshlrev_b32 v{big+9}, 4, v{big+9}")
        a(f"s_lshl_b32 s{T0}, s{sWq}, 8"); a(f"s_add_u32 s{T0}, s{T0}, {AG}")
        a(f"v_add3_u32 v{vag}, v{vag}, v{big+9}, s{T0}")
    calc_vag()
    a(f"ds_write_b128 v{vag}, {vr(fin,4)}")
    a("s_waitcnt lgkmcnt(0)")
    a("s_barrier")
    stamp(a, 2, st="ssm")
    a(f"s_cmp_lg_u32 s{sWave}, 0")
    a("s_cbranch_scc1 L_s_wait")
    lr, li = prm + 8, prm + 9
    l16r, l16i, l256r, l256i = big + 10, big + 11, big + 12, big + 13
    er, ei = big + 14, big + 15
    w0 = big + 4
    A = big + 16; vl = big + 9
    a(f"v_lshlrev_b32 v{vl}, 3, v0"); a(f"v_add_u32 v{vl}, {AG}, v{vl}")
    for s in range(16): a(f"ds_read_b64 {vr(A+2*s,2)}, v{vl} offset:{s*512}")
    csq(a, l16r, l16i, lr, li, w0)
    for _ in range(3): csq(a, l16r, l16i, l16r, l16i, w0)
    csq(a, l256r, l256i, l16r, l16i, w0)
    for _ in range(3): csq(a, l256r, l256i, l256r, l256i, w0)
    a("s_waitcnt lgkmcnt(0)")
    x0, x1 = big + 6, big + 7
    for s in range(1, 16):
        pr, pi, cr_, ci_ = A + 2 * (s - 1), A + 2 * (s - 1) + 1, A + 2 * s, A + 2 * s + 1
        a(f"v_fma_f32 v{cr_}, v{l16r}, v{pr}, v{cr_}"); a(f"v_fma_f32 v{ci_}, v{l16r}, v{pi}, v{ci_}")
        a(f"v_fma_f32 v{cr_}, -v{l16i}, v{pi}, v{cr_}"); a(f"v_fma_f32 v{ci_}, v{l16i}, v{pr}, v{ci_}")
    er, ei = A + 30, A + 31
    vo = big + 8
    a(f"s_lshl_b32 s{T0}, s{sN}, 6"); a(f"v_add_u32 v{vo}, s{T0}, v0"); a(f"v_lshlrev_b32 v{vo}, 3, v{vo}")
    a(f"s_lshl_b32 s{T1}, s{sM}, 13"); a(f"s_add_u32 s{T1}, s{T1}, {WS_AGG}")
    a(f"buffer_store_dwordx2 {vr(er,2)}, v{vo}, s[{SWS}:{SWS+3}], s{T1} offen sc1")
    a("s_waitcnt vmcnt(0)")
    init_check(a, big + 52)
    a(f"v_and_b32 v{x0}, 3, v0"); a(f"v_lshlrev_b32 v{x0}, 2, v{x0}")
    a(f"s_and_b32 s{T0}, s{sN}, 3"); a(f"s_add_u32 s{T0}, s{T0}, 16"); a(f"v_add_u32 v{x0}, s{T0}, v{x0}"); a(f"v_lshlrev_b32 v{x0}, 3, v{x0}")
    a(f"v_and_b32 v{x1}, 4, v0"); a(f"s_lshr_b32 s{T0}, s{sN}, 2"); a(f"v_add3_u32 v{x0}, v{x0}, v{x1}, s{T0}")
    a(f"v_lshlrev_b32 v{x0}, 8, v{x0}"); a(f"v_mov_b32 v{x1}, 1")
    a(f"s_lshl_b32 s{T0}, 2, s{sM}"); a(f"s_sub_u32 s{T0}, s{T0}, 1"); a(f"s_andn2_b32 s{T0}, 0xff, s{T0}")
    a(f"s_cmp_eq_u32 s{T0}, 0"); a("s_cbranch_scc1 L_s_nosig")
    a(f"s_mov_b32 exec_lo, s{T0}"); a("s_mov_b32 exec_hi, 0"); a(f"s_mov_b32 s{T1}, {WS_MB}")
    a(f"buffer_atomic_add v{x1}, v{x0}, s[{SWS}:{SWS+3}], s{T1} offen sc1")
    a("s_mov_b64 exec, -1")
    a.label("L_s_nosig")
    stamp(a, 3, st="ssm")
    cr, ci = big + 48, big + 49
    a(f"v_mov_b32 v{cr}, 0"); a(f"v_mov_b32 v{ci}, 0")
    a(f"s_cmp_eq_u32 s{sM}, 0"); a("s_cbranch_scc1 L_s_nolb")
    def chk(ok):
        a(f"s_cmp_eq_u32 s{U0}, s{sM}"); a(f"s_cbranch_scc1 {ok}")
    poll_own(a, chk, big + 52)
    B = big + 50
    for j in range(7):
        a(f"s_mov_b32 s{T1}, {WS_AGG + j*8192}")
        a(f"buffer_load_dwordx2 {vr(B+2*j,2)}, v{vo}, s[{SWS}:{SWS+3}], s{T1} offen sc1")
    a("s_waitcnt vmcnt(0)")
    for j in range(7):
        a(f"s_cmp_le_u32 s{sM}, {j}"); a("s_cbranch_scc1 L_s_nolb")
        a(f"v_fma_f32 v{x0}, v{l256r}, v{cr}, v{B+2*j}"); a(f"v_fma_f32 v{x1}, v{l256r}, v{ci}, v{B+2*j+1}")
        a(f"v_fma_f32 v{x0}, -v{l256i}, v{ci}, v{x0}"); a(f"v_fma_f32 v{ci}, v{l256i}, v{cr}, v{x1}")
        a(f"v_mov_b32 v{cr}, v{x0}")
    a.label("L_s_nolb")
    stamp(a, 4, st="ssm")
    a(f"ds_write_b64 v{vl}, {vr(cr,2)}")
    for s in range(1, 16):
        a(f"v_mul_f32 v{x0}, v{l16r}, v{cr}"); a(f"v_mul_f32 v{x1}, v{l16r}, v{ci}")
        a(f"v_fma_f32 v{x0}, -v{l16i}, v{ci}, v{x0}"); a(f"v_fma_f32 v{ci}, v{l16i}, v{cr}, v{x1}")
        a(f"v_mov_b32 v{cr}, v{x0}")
        a(f"v_add_f32 v{A+2*(s-1)}, v{A+2*(s-1)}, v{cr}"); a(f"v_add_f32 v{A+2*(s-1)+1}, v{A+2*(s-1)+1}, v{ci}")
        a(f"ds_write_b64 v{vl}, {vr(A+2*(s-1),2)} offset:{s*512}")
    a("s_waitcnt lgkmcnt(0)")
    a.label("L_s_wait")
    a("s_barrier")
    calc_vag()
    a(f"ds_read_b128 {vr(ag,4)}, v{vag}")
    PITCH = 272
    vw = big + 9
    a(f"v_lshrrev_b32 v{vw}, 4, v0"); a(f"v_lshlrev_b32 v{vw}, 4, v{vw}"); a(f"s_lshl_b32 s{T0}, s{sWp}, 6"); a(f"v_add_u32 v{vw}, s{T0}, v{vw}")
    a(f"v_mul_u32_u24 v{vw}, {PITCH}, v{vw}")
    a(f"v_and_b32 v{big+10}, 15, v0"); a(f"v_lshl_add_u32 v{vw}, v{big+10}, 2, v{vw}")
    a(f"s_lshl_b32 s{T0}, s{sWq}, 6"); a(f"v_add_u32 v{vw}, s{T0}, v{vw}")
    a("s_waitcnt lgkmcnt(0)")
    ore, oim, od = big + 12, big + 14, big + 16
    st = [ag, tt]
    for s in range(16):
        scan2(s, st[s & 1], st[(s + 1) & 1])
        h = st[(s + 1) & 1]
        for jc in range(2):
            hr, hi_ = h + 2 * jc, h + 2 * jc + 1; kr, ki = prm + 4 * jc + 2, prm + 4 * jc + 3
            a(f"v_mul_f32 v{ore+jc}, v{kr}, v{hr}"); a(f"v_mul_f32 v{oim+jc}, -v{kr}, v{hi_}")
        for jc in range(2):
            hr, hi_ = h + 2 * jc, h + 2 * jc + 1; kr, ki = prm + 4 * jc + 2, prm + 4 * jc + 3
            a(f"v_fma_f32 v{ore+jc}, -v{ki}, v{hi_}, v{ore+jc}"); a(f"v_fma_f32 v{oim+jc}, -v{ki}, v{hr}, v{oim+jc}")
        d = od + 2 * (s % 4)
        a(f"v_cvt_pk_bf16_f32 v{d}, v{ore}, v{ore+1}"); a(f"v_cvt_pk_bf16_f32 v{d+1}, v{oim}, v{oim+1}")
        a(f"ds_write_b32 v{vw}, v{d} offset:{s*PITCH}"); a(f"ds_write_b32 v{vw}, v{d+1} offset:{s*PITCH+128}")
    stamp(a, 5, st="ssm")
    vr_, vg_ = big + 10, big + 11
    a(f"v_lshrrev_b32 v{vr_}, 4, v0"); a(f"s_lshl_b32 s{T0}, s{sWave}, 5"); a(f"v_add_u32 v{vr_}, s{T0}, v{vr_}")
    a(f"s_lshl_b32 s{T1}, s{sM}, 8"); a(f"v_add_u32 v{vg_}, s{T1}, v{vr_}"); a(f"v_mul_u32_u24 v{vg_}, {RS_A2}, v{vg_}")
    a(f"v_mul_u32_u24 v{vr_}, {PITCH}, v{vr_}")
    a(f"v_and_b32 v{big+12}, 15, v0"); a(f"v_lshl_add_u32 v{vr_}, v{big+12}, 4, v{vr_}")
    a(f"v_and_b32 v{big+13}, 7, v0"); a(f"v_lshl_add_u32 v{vg_}, v{big+13}, 4, v{vg_}")
    a(f"v_bfe_u32 v{big+13}, v0, 3, 1"); a(f"v_lshl_add_u32 v{vg_}, v{big+13}, 11, v{vg_}")
    a(f"s_lshl_b32 s{T0}, s{sN}, 7"); a(f"s_add_u32 s{T0}, s{T0}, {WS_A2}")
    a("s_waitcnt lgkmcnt(0)")
    a("s_barrier")
    rb = acc
    for n in range(8): a(f"ds_read_b128 {vr(rb+4*n,4)}, v{vr_} offset:{4*n*PITCH}")
    for n in range(8):
        a(f"s_waitcnt lgkmcnt({7-n})")
        a(f"buffer_store_dwordx4 {vr(rb+4*n,4)}, v{vg_}, s[{SWS}:{SWS+3}], s{T0} offen{C.wt}")
        a(f"s_add_u32 s{T0}, s{T0}, {4*RS_A2}")
    stamp(a, 6, st="ssm")
    return V.hi, AG + 8192

def phase2(a, role):
    R = "A" if role == 0 else "B"
    SW2, SE = 24, 72
    TP, TQ, mp, mq, NS, NB = 128, 128, 4, 2, 2, 4
    V = Regs(10)
    P1 = OpKC(a, V, TP, 0, mp); P1.groups = [[0, 1]]
    P2 = OpNC(a, V, TP, 0, mp, D * 2)
    Qop = OpKC(a, V, TQ, TP * 128, mq, flags=C.a2ld); Qop.groups = [[0, 1]]
    SB = TP * 128 + Qop.bytes
    G = Gemm(a, V, NB, NB, TP * 128, Qop.bytes, mp, mq, (sBufD, sBufR, None, None, sCnt, sRole), True, 'P')
    nf = mp * mq
    accD = V.get(4 * nf, 2)
    accS = V.get(4 * nf, 2)
    vg = V.get(2 * mq, 2); vex = V.get(6 * mp, 2); vep = V.get(4)
    a(f"s_and_b32 s{T0}, s2, 7"); a(f"s_lshr_b32 s{T1}, s2, 3")
    a(f"s_lshr_b32 s{sTt}, s{T0}, 1"); a(f"s_lshl_b32 s{sTt}, s{sTt}, 2"); a(f"s_bfe_u32 s{T2}, s{T1}, 0x20002"); a(f"s_add_u32 s{sTt}, s{sTt}, s{T2}")
    a(f"s_and_b32 s{sDt}, s{T0}, 1"); a(f"s_lshl_b32 s{sDt}, s{sDt}, 2"); a(f"s_and_b32 s{T2}, s{T1}, 3"); a(f"s_add_u32 s{sDt}, s{sDt}, s{T2}")
    a(f"s_lshl_b32 s{sTile}, s{sTt}, 3"); a(f"s_add_u32 s{sTile}, s{sTile}, s{sDt}")
    a(f"s_lshr_b32 s{sWp}, s{sWave}, 2"); a(f"s_and_b32 s{sWq}, s{sWave}, 3")
    srd(a, SW2, PTR["w2"], F * D * 2)
    nAd, nBs = C.nAd, C.nBs
    useS = (role == 0) or nBs > 0
    Qop.lane_chunk(VT, VT + 1)
    if useS:
        srd(a, SA, PTR["cre"], D * P_ * 2); srd(a, SB_, PTR["cim"], D * P_ * 2)
        a(f"v_lshrrev_b32 v{VT+1}, 3, v0"); a(f"v_lshl_add_u32 v{VT+3}, v{VT+1}, 11, v{VT}")
        for j in range(2):
            a(f"s_lshl_b32 s{T0}, s{sDt}, 7"); a(f"s_lshl_b32 s{T1}, s{sWave}, 4"); a(f"s_add_u32 s{T0}, s{T0}, s{T1}")
            if j: a(f"s_add_u32 s{T0}, s{T0}, 8")
            a(f"s_lshl_b32 s{T0}, s{T0}, 11")
            if j: a(f"s_sub_u32 s{T0}, s{T0}, 1024")
            P1.set_voff(j, VT + 3, T0, bool(j & 1))
        a(f"s_lshl_b32 s{sLdsP}, s{sWave}, 11")
    a(f"s_lshl_b32 s{T0}, s{sDt}, 8")
    P2.setup_dma(sWave, VT + 4, T0, U0)
    P2.setup_lds(sWave, sLdsP2, U0)
    a(f"v_lshrrev_b32 v{VT+1}, 3, v0"); a(f"v_mul_u32_u24 v{VT+1}, {RS_A2}, v{VT+1}"); a(f"v_add_u32 v{VT+3}, v{VT+1}, v{VT}")
    for j in range(2):
        a(f"s_lshl_b32 s{T0}, s{sWave}, 4")
        if role: a(f"s_xor_b32 s{T0}, s{T0}, 16")
        if j: a(f"s_add_u32 s{T0}, s{T0}, 8")
        a(f"s_lshl_b32 s{T1}, s{sTt}, 7"); a(f"s_add_u32 s{T0}, s{T0}, s{T1}"); a(f"s_mul_i32 s{T0}, s{T0}, {RS_A2}")
        if j: a(f"s_sub_u32 s{T0}, s{T0}, 1024")
        Qop.set_voff(j, VT + 3, T0, bool(j & 1))
    a(f"s_lshl_b32 s{sLdsQ}, s{sWave}, 11"); a(f"s_add_u32 s{sLdsQ}, s{sLdsQ}, {Qop.lds_off}")
    sKQ2 = 3
    if role == 0:
        a(f"s_mov_b32 s{sKP}, 0"); a(f"s_mov_b32 s{sKQ}, {WS_A2}")
        a(f"s_mov_b32 s{sKP2}, {(56-nAd)*64*D*2}"); a(f"s_mov_b32 s{sKQ2}, {WS_A2 + 4096 + (56-nAd)*128}")
    else:
        a(f"s_mov_b32 s{sKP}, {((32-nBs)*128) & 2047}"); a(f"s_mov_b32 s{sKQ}, {WS_A2 + (32-nBs)*128}")
        a(f"s_mov_b32 s{sKP2}, 0"); a(f"s_mov_b32 s{sKQ2}, {WS_A2 + 4096}")
    a(f"s_mul_i32 s{T0}, s{sWp}, {mp}")
    if useS: P1.setup_read(T0, VT, U0)
    P2.setup_read(T0, VT, U0)
    a(f"s_mul_i32 s{T0}, s{sWq}, {mq}"); Qop.setup_read(T0, VT, U0)
    qd = lambda b: Qop.dma(b, sKQ, sTmp, sLdsQ, [SWS] * 2)
    qd2 = lambda b: Qop.dma(b, sKQ2, sTmp, sLdsQ, [SWS] * 2)
    qadv = f"s_add_u32 s{sKQ}, s{sKQ}, 128"; qadv2 = f"s_add_u32 s{sKQ2}, s{sKQ2}, 128"
    segD = Seg(P2, Qop, accD, lambda b: P2.dma(b, sKP2, sTmp, sLdsP2, SW2), qd2, [f"s_add_u32 s{sKP2}, s{sKP2}, {64*D*2}"], [qadv2], "d")
    if useS:
        padv = [f"s_add_u32 s{sKP}, s{sKP}, 128", f"s_and_b32 s{sKP}, s{sKP}, 2047"]
        segR = Seg(P1, Qop, accS, lambda b: P1.dma(b, sKP, sTmp, sLdsP, [SA] * 2), qd, padv, [qadv], "r")
        segI = Seg(P1, Qop, accS, lambda b: P1.dma(b, sKP, sTmp, sLdsP, [SB_] * 2), qd, padv, [qadv], "i")
        allS = [segR] * 16 + [segI] * 16
    if role == 0:
        stages = allS[:32 - nBs] + [segD] * nAd; nS = 32 - nBs
    else:
        stages = (allS[32 - nBs:] if nBs else []) + [segD] * (56 - nAd); nS = nBs
    N = len(stages)
    a("s_barrier")
    G.prologue(stages, "P")
    for i in range(4 * nf):
        a(f"v_mov_b32 v{accD+i}, 0")
        if useS: a(f"v_mov_b32 v{accS+i}, 0")
    post_first = None
    if role == 0:
        a(f"s_waitcnt vmcnt({2*G.leadP})")
        a("s_barrier")
        stamp(a, 3)
        a(f"s_cmp_lg_u32 s{sWave}, 0"); a(f"s_cbranch_scc1 L_p2{R}_dep")
        signal_cnt(a, 1, VT)
        def chk0(ok): a(f"s_cmp_eq_u32 s{U1}, 16"); a(f"s_cbranch_scc1 {ok}")
        poll_own(a, chk0, VT)
    else:
        stamp(a, 3)
        a(f"s_cmp_lg_u32 s{sWave}, 0"); a(f"s_cbranch_scc1 L_p2{R}_dep")
        def chk0(ok):
            a(f"s_cmp_eq_u32 s{U1}, 16"); a(f"s_cbranch_scc1 {ok}")
        assert nBs >= G.NBQ
        poll_own(a, chk0, VT)
        def post_first():
            sk = newlabel("pf")
            a(f"s_cmp_lg_u32 s{sWave}, 0"); a(f"s_cbranch_scc1 {sk}")
            init_check(a, VT)
            signal_cnt(a, 2, VT)
            a.label(sk)
    a.label(f"L_p2{R}_dep")
    a("s_barrier")
    G.prologue(stages, "Q")
    hooks = {}
    def hookD():
        sk = newlabel("hk")
        stamp(a, 2, st="p2")
        a(f"s_cmp_lg_u32 s{sWave}, 0"); a(f"s_cbranch_scc1 {sk}")
        def chk(ok): a(f"s_cmp_eq_u32 s{U3}, 16"); a(f"s_cbranch_scc1 {ok}")
        poll_own(a, chk, VT)
        a.label(sk)
        stamp(a, 3, st="p2")
    hooks[nS - G.leadQ] = hookD
    blk = 16 * mq
    vt_own, vxo, vd2, vl16 = vep, vep + 1, vep + 2, vep + 3
    vx_, vds, vb2 = vex, vex + 2 * mp, vex + 4 * mp
    ex = []
    g0 = [f"s_lshl_b32 s{T0}, s{sTt}, 7", f"s_lshl_b32 s{T1}, s{sWq}, 5", f"s_add_u32 s{T0}, s{T0}, s{T1}",
          f"v_and_b32 v{vt_own}, 15, v0", f"v_add_u32 v{vt_own}, s{T0}, v{vt_own}", f"v_lshlrev_b32 v{vxo}, 3, v{vt_own}"]
    ex.append(g0)
    for j in range(mq):
        ex.append([f"s_mov_b32 s{T0}, {WS_G + (((j + role) & 1) << 7)}",
                   f"buffer_load_dwordx2 {vr(vg+2*j,2)}, v{vxo}, s[{SWS}:{SWS+3}], s{T0} offen sc1"])
    ex.append([f"v_add_u32 v{vt_own}, {16*role}, v{vt_own}" if role else "s_nop 0",
               f"v_lshrrev_b32 v{vd2}, 4, v0", f"v_lshlrev_b32 v{vd2}, 2, v{vd2}",
               f"s_lshl_b32 s{T0}, s{sDt}, 7", f"s_lshl_b32 s{T1}, s{sWp}, 6", f"s_add_u32 s{T0}, s{T0}, s{T1}",
               f"v_add_u32 v{vd2}, s{T0}, v{vd2}", f"v_lshlrev_b32 v{vd2}, 1, v{vd2}",
               f"v_lshl_add_u32 v{vxo}, v{vt_own}, 11, v{vd2}", f"v_lshlrev_b32 v{vl16}, 4, v0"])
    for i in range(mp):
        ex.append([f"buffer_load_dwordx2 {vr(vx_+2*i,2)}, v{vxo}, s[{SX}:{SX+3}], 0 offen offset:{32*i}"])
    ex.append([f"s_mov_b32 s{SE}, s{PTR['dsk']}", f"s_mov_b32 s{SE+1}, s{PTR['dsk']+1}", f"s_mov_b32 s{SE+2}, 2048", f"s_mov_b32 s{SE+3}, 0x20000"])
    for i in range(mp):
        ex.append([f"buffer_load_dwordx2 {vr(vds+2*i,2)}, v{vd2}, s[{SE}:{SE+3}], 0 offen offset:{32*i}"])
    ex.append([f"s_mov_b32 s{SE}, s{PTR['b2']}", f"s_mov_b32 s{SE+1}, s{PTR['b2']+1}"])
    for i in range(mp):
        ex.append([f"buffer_load_dwordx2 {vr(vb2+2*i,2)}, v{vd2}, s[{SE}:{SE+3}], 0 offen offset:{32*i}"])
    extras = {N - NB: (ex, mq + 3 * mp)}
    stamp(a, 4)
    stamp(a, 1, st="p2")
    G.run(stages, hooks, extras, post_first)
    stamp(a, 5)
    stamp(a, 4, st="p2")
    a("s_nop 7")
    a("s_waitcnt vmcnt(0)")
    for i in range(mp):
        for j in range(mq):
            c = 4 * (i * mq + j)
            for r in range(4):
                a(f"v_mul_f32 v{accD+c+r}, v{vg+2*j+1}, v{accD+c+r}")
                if useS: a(f"v_fmac_f32 v{accD+c+r}, v{vg+2*j}, v{accS+c+r}")
    a(f"s_lshl_b32 s{T0}, s{sTile}, 1"); a(f"s_add_u32 s{T0}, s{T0}, {1-role}"); a(f"s_lshl_b32 s{T0}, s{T0}, 3")
    a(f"s_add_u32 s{T0}, s{T0}, s{sWave}"); a(f"s_lshl_b32 s{T0}, s{T0}, 12"); a(f"s_add_u32 s{T0}, s{T0}, {WS_XB}")
    a("s_nop 1")
    for i in range(mp):
        c = accD + 4 * (i * mq + 1)
        a(f"buffer_store_dwordx4 {vr(c,4)}, v{vl16}, s[{SWS}:{SWS+3}], s{T0} offen offset:{i*1024} sc1")
    x0, x1, y0, y1 = VT, VT + 1, VT + 2, VT + 3
    for i in range(mp):
        e = accD + 4 * (i * mq)
        for h in range(2):
            a(f"v_lshlrev_b32 v{x0}, 16, v{vx_+2*i+h}"); a(f"v_and_b32 v{x1}, 0xffff0000, v{vx_+2*i+h}")
            a(f"v_lshlrev_b32 v{y0}, 16, v{vds+2*i+h}"); a(f"v_and_b32 v{y1}, 0xffff0000, v{vds+2*i+h}")
            a(f"v_mul_f32 v{x0}, v{x0}, v{y0}"); a(f"v_mul_f32 v{x1}, v{x1}, v{y1}")
            a(f"v_cvt_pk_bf16_f32 v{x0}, v{x0}, v{x1}")
            a(f"v_and_b32 v{x1}, 0xffff0000, v{x0}"); a(f"v_lshlrev_b32 v{x0}, 16, v{x0}")
            a(f"v_fmac_f32 v{e+2*h}, v{vg}, v{x0}"); a(f"v_fmac_f32 v{e+2*h+1}, v{vg}, v{x1}")
            a(f"v_lshlrev_b32 v{x0}, 16, v{vb2+2*i+h}"); a(f"v_and_b32 v{x1}, 0xffff0000, v{vb2+2*i+h}")
            a(f"v_fmac_f32 v{e+2*h}, v{vg+1}, v{x0}"); a(f"v_fmac_f32 v{e+2*h+1}, v{vg+1}, v{x1}")
    a("s_waitcnt vmcnt(0)")
    a("s_barrier")
    stamp(a, 5, st="p2")
    a(f"s_cmp_lg_u32 s{sWave}, 0"); a(f"s_cbranch_scc1 L_p2{R}_x")
    a(f"s_xor_b32 s{T0}, s2, 128"); a(f"s_lshl_b32 s{T0}, s{T0}, 8"); a(f"s_add_u32 s{T0}, s{T0}, {WS_MB + 12}")
    a(f"v_mov_b32 v{VT}, 1"); a(f"v_mov_b32 v{VT+1}, 0")
    a("s_mov_b64 exec, 1")
    a(f"buffer_store_dword v{VT}, v{VT+1}, s[{SWS}:{SWS+3}], s{T0} offen sc1")
    a("s_mov_b64 exec, -1")
    a(f"s_lshl_b32 s{T3}, s2, 8"); a(f"s_add_u32 s{T3}, s{T3}, {WS_MB + 12}")
    def chkx(ok): a(f"s_cmp_lg_u32 s{U0}, 0"); a(f"s_cbranch_scc1 {ok}")
    poll(a, SWS, T3, chkx, VT)
    a.label(f"L_p2{R}_x")
    a("s_barrier")
    rb = G.F[0][0]
    a(f"s_lshl_b32 s{T0}, s{sTile}, 1"); a(f"s_add_u32 s{T0}, s{T0}, {role}"); a(f"s_lshl_b32 s{T0}, s{T0}, 3")
    a(f"s_add_u32 s{T0}, s{T0}, s{sWave}"); a(f"s_lshl_b32 s{T0}, s{T0}, 12"); a(f"s_add_u32 s{T0}, s{T0}, {WS_XB}")
    for i in range(mp):
        a(f"buffer_load_dwordx4 {vr(rb+4*i,4)}, v{vl16}, s[{SWS}:{SWS+3}], s{T0} offen offset:{i*1024} sc1")
    srd(a, SE, PTR["out"], L * D * 4)
    vo = VT
    a(f"v_lshlrev_b32 v{vo}, 12, v{vt_own}"); a(f"v_lshl_add_u32 v{vo}, v{vd2}, 1, v{vo}")
    for i in range(mp):
        e = accD + 4 * (i * mq)
        a(f"s_waitcnt vmcnt({mp-1})")
        for r in range(4): a(f"v_add_f32 v{e+r}, v{e+r}, v{rb+4*i+r}")
        a(f"buffer_store_dwordx4 {vr(e,4)}, v{vo}, s[{SE}:{SE+3}], 0 offen offset:{64*i}{C.wto}")
    stamp(a, 6)
    stamp(a, 6, st="p2")
    return V.hi, NB * SB

def emit_stamps(a):
    stamp(a, 8, real=True)
    a(f"s_cmp_lg_u32 s{sWave}, 0"); a("s_cbranch_scc1 L_end")
    a("s_waitcnt vmcnt(0)")
    for i in range(1, 7): a(f"s_sub_u32 s{92+i}, s{92+i}, s92")
    for i in range(8): a(f"v_mov_b32 v{12+i}, s{93+i}")
    a(f"s_lshl_b32 s{T0}, s2, 5"); a(f"s_add_u32 s{T0}, s{T0}, {WS_ST}")
    a("v_mov_b32 v11, 0"); a("s_mov_b64 exec, 1")
    a(f"buffer_store_dwordx4 v[12:15], v11, s[{SWS}:{SWS+3}], s{T0} offen")
    a(f"buffer_store_dwordx4 v[16:19], v11, s[{SWS}:{SWS+3}], s{T0} offen offset:16")

HEADER = open("gated_mix__ssm_conv_s5__dense_activation_squared_relu__prompt.s.ref").read().split("; Override launch")[0]

def generate(**kw):
    for k, v in kw.items():
        assert hasattr(C, k), k
        setattr(C, k, v)
    _lbl[0] = 0
    a = Asm()
    kernel_header(a, NAME)
    a("s_cmp_ge_u32 s2, 256"); a("s_cbranch_scc1 L_end")
    a("s_load_dwordx16 s[40:55], s[0:1], 0"); a("s_load_dwordx16 s[56:71], s[0:1], 64"); a("s_load_dwordx4 s[72:75], s[0:1], 128")
    if C.dbgst:
        a("s_memtime s[88:89]"); a("s_memrealtime s[90:91]")
    a("v_lshrrev_b32 v1, 6, v0"); a("v_and_b32 v0, 63, v0"); a(f"v_readfirstlane_b32 s{sWave}, v1")
    a(f"s_and_b32 s{T0}, s2, 7"); a(f"s_lshr_b32 s{T1}, s2, 3")
    a(f"s_lshr_b32 s{sRole}, s{T1}, 4")
    a(f"s_bfe_u32 s{T2}, s{T1}, 0x20002"); a(f"s_and_b32 s{T3}, s{T1}, 3")
    a(f"s_lshr_b32 s{sM}, s{T0}, 2"); a(f"s_lshl_b32 s{sM}, s{sM}, 2"); a(f"s_add_u32 s{sM}, s{sM}, s{T2}")
    a(f"s_and_b32 s{sN}, s{T0}, 3"); a(f"s_lshl_b32 s{sN}, s{sN}, 2"); a(f"s_add_u32 s{sN}, s{sN}, s{T3}")
    mode = C.rot
    if mode is True: mode = 1
    if mode == 1:
        a(f"s_lshl_b32 s{sRot}, s{sRole}, 2"); a(f"s_add_u32 s{sRot}, s{sRot}, s{T3}"); a(f"s_lshl_b32 s{sRot}, s{sRot}, 1")
        a(f"s_lshl_b32 s{T2}, s{T2}, 2"); a(f"s_add_u32 s{sRot}, s{sRot}, s{T2}"); a(f"s_and_b32 s{T0}, s{T0}, 3")
        a(f"s_add_u32 s{sRot}, s{sRot}, s{T0}"); a(f"s_and_b32 s{sRot}, s{sRot}, 15")
    elif mode == 2:
        a(f"s_and_b32 s{sRot}, s{T0}, 3"); a(f"s_lshl_b32 s{sRot}, s{sRot}, 2"); a(f"s_lshr_b32 s{T0}, s{T0}, 2"); a(f"s_lshl_b32 s{T0}, s{T0}, 1")
        a(f"s_add_u32 s{sRot}, s{sRot}, s{T0}"); a(f"s_and_b32 s{sRot}, s{sRot}, 15")
    elif mode == 3:
        a(f"s_and_b32 s{sRot}, s{T0}, 3"); a(f"s_lshl_b32 s{sRot}, s{sRot}, 2"); a(f"s_lshr_b32 s{T0}, s{T0}, 2"); a(f"s_lshl_b32 s{T0}, s{T0}, 3")
        a(f"s_add_u32 s{sRot}, s{sRot}, s{T0}"); a(f"s_xor_b32 s{T2}, s{T2}, s{T3}"); a(f"s_and_b32 s{T2}, s{T2}, 1"); a(f"s_lshl_b32 s{T2}, s{T2}, 3")
        a(f"s_add_u32 s{sRot}, s{sRot}, s{T2}"); a(f"s_and_b32 s{sRot}, s{sRot}, 15")
    elif mode == 4:
        a(f"s_xor_b32 s{T2}, s{T2}, s{T3}"); a(f"s_and_b32 s{T2}, s{T2}, 1"); a(f"s_lshl_b32 s{sRot}, s{T2}, 3")
        a(f"s_and_b32 s{T0}, s{T0}, 3"); a(f"s_lshl_b32 s{T0}, s{T0}, 1"); a(f"s_add_u32 s{sRot}, s{sRot}, s{T0}"); a(f"s_and_b32 s{sRot}, s{sRot}, 15")
    else:
        a(f"s_mov_b32 s{sRot}, 0")
    if C.dbgst:
        a("s_waitcnt lgkmcnt(0)"); a("s_mov_b32 s92, s88"); a("s_mov_b32 s99, s90")
    a(f"s_cmp_eq_u32 s{sRole}, 1"); a("s_cbranch_scc1 L_ssm")
    v1, l1 = phase1_dense(a)
    v2, l2 = phase2(a, 1)
    a("s_branch L_fin")
    a.label("L_ssm")
    v3, l3 = phase1_ssm(a)
    v4, l4 = phase2(a, 0)
    a.label("L_fin")
    if C.dbgst: emit_stamps(a)
    a.label("L_end")
    a("s_endpgm")
    nv = max(v1, v2, v3, v4); lds = max(l1, l2, l3, l4)
    head = HEADER + f"; @launch grid=(256,1,1) block=(512,1,1) lds={lds}\n"
    head += '.amdgcn_target "amdgcn-amd-amdhsa--gfx950"\n.text\n'
    return head + a.text() + '.section .rodata,"a"\n' + kernel_desc(NAME, nv, 102)

if __name__ == "__main__":
    kw = json.loads(sys.argv[2]) if len(sys.argv) > 2 else {}
    open(sys.argv[1], "w").write(generate(**kw))
```

```python
import sys, math, json
from asmlib import *

NAME = "gated_mix__ssm_conv_s5__dense_activation_squared_relu__prompt_kernel"
L, D, P_, F = 2048, 1024, 1024, 3584
KC = 2048 + F
RS_A2 = KC * 2
KA = dict(x=0, lre=8, lim=16, bre=24, bim=32, cre=40, cim=48, ldt=56, dsk=64, bx=72, w1=80, b1=88, w2=96, b2=104, gw=112, out=120, dbg=128, ws=136)
WS_A2 = 0
WS_G = 24 << 20
WS_AGG = WS_G + (1 << 16)
WS_MB = WS_AGG + (1 << 17)
WS_ST = WS_AGG + (1 << 18)
WS_XB = 32 << 20
WS_SIZE = 268435456
LOG2E = 0x3fb8aa3b
INV2PI = 0x3e22f983
PTR = {k: 40 + v // 4 for k, v in KA.items()}
DBG_LB = 0
DBG_CNT = 16
DBG_XF = 32

class Cfg:
    dbgst = False; rot = 4; nodma = False; noread = False; prefetch = True
    nAd = 24
    nBs = 8
    wt = " sc1"
    a2ld = " sc1"
    wto = ""
    spin = 300000
    sleep = 2
    early = True
    pbar = True
    bulk = False
    pflist = [('w1',0),('x',0),('bre',0),('bim',0),('cre',0),('cim',0),('w2',0)]
    pfit = 13
    span = 1.0
    prio = True
    nbq = 3
    stampset = 'main'
    stwave = 0
C = Cfg()

class Regs:
    def __init__(self, start, limit=256):
        self.n = start; self.limit = limit; self.hi = start
    def get(self, k=1, align=1):
        self.n = (self.n + align - 1) // align * align
        r = self.n; self.n += k
        self.hi = max(self.hi, self.n)
        assert self.n <= self.limit, f"out of registers {self.n} > {self.limit}"
        return r

def srd(a, s, ptr_lo, size):
    if s != ptr_lo:
        a(f"s_mov_b32 s{s}, s{ptr_lo}"); a(f"s_mov_b32 s{s+1}, s{ptr_lo+1}")
    a(f"s_mov_b32 s{s+2}, {size}"); a(f"s_mov_b32 s{s+3}, 0x20000")

_lbl = [0]
def newlabel(p):
    _lbl[0] += 1
    return f"L_{p}{_lbl[0]}"

class OpKC:
    def __init__(self, a, V, T, lds_off, nfr, flags=""):
        self.a, self.T, self.lds_off, self.nfr, self.flags = a, T, lds_off, nfr, flags
        self.n = T // 64
        self.vd = V.get(self.n)
        self.b0 = V.get(); self.c0 = V.get(); self.c1 = V.get()
        self.bytes = T * 128
        self.ldsoffs = [j * 1024 for j in range(self.n)]
    def lane_chunk(self, vdst, t):
        a = self.a
        a(f"v_and_b32 v{vdst}, 7, v0"); a(f"v_lshrrev_b32 v{t}, 4, v0")
        a(f"v_xor_b32 v{vdst}, v{vdst}, v{t}"); a(f"v_lshlrev_b32 v{vdst}, 4, v{vdst}")
    def set_voff(self, j, vlane, sRowBytes, xor64, comp=True):
        a = self.a; d = self.vd + j
        src = vlane
        if xor64 is True:
            a(f"v_xor_b32 v{d}, 64, v{vlane}"); src = d
        elif xor64 is not False:
            a(f"v_xor_b32 v{d}, s{xor64}, v{vlane}"); src = d
        a(f"v_add_u32 v{d}, s{sRowBytes}, v{src}")
    def dma(self, sBuf, sK, stmp, sLds, srds, groups=None):
        g = []
        for grp_i in self.groups:
            for n_, j in enumerate(grp_i):
                grp = []
                if n_ == 0:
                    grp.append(f"s_add_u32 s{stmp}, s{sBuf}, s{sLds}")
                    if self.ldsoffs[j]: grp.append(f"s_add_u32 s{stmp}, s{stmp}, {self.ldsoffs[j]}")
                    grp.append(f"s_mov_b32 m0, s{stmp}")
                    grp.append("s_nop 0")
                off = f" offset:{n_*1024}" if n_ else ""
                s = srds[j]
                grp.append(f"buffer_load_dwordx4 v{self.vd+j}, s[{s}:{s+3}], s{sK} offen{off}{self.flags} lds")
                g.append(grp)
        return g
    def count(self): return (self.n, self.n)
    def setup_read(self, sFrag0, tmp, stmp):
        a = self.a; t0, t1, t2 = tmp, tmp + 1, tmp + 2
        a(f"v_and_b32 v{t0}, 15, v0"); a(f"v_lshrrev_b32 v{t1}, 4, v0"); a(f"v_lshrrev_b32 v{t2}, 1, v{t0}")
        a(f"v_xor_b32 v{t1}, v{t1}, v{t2}"); a(f"v_lshlrev_b32 v{t1}, 4, v{t1}")
        a(f"v_lshl_add_u32 v{t0}, v{t0}, 7, v{t1}")
        a(f"s_lshl_b32 s{stmp}, s{sFrag0}, 11")
        if self.lds_off: a(f"s_add_u32 s{stmp}, s{stmp}, {self.lds_off}")
        a(f"v_add_u32 v{self.b0}, s{stmp}, v{t0}")
    def init_cur(self):
        return [f"v_mov_b32 v{self.c0}, v{self.b0}", f"v_xor_b32 v{self.c1}, 64, v{self.b0}"]
    def frag_off(self, i): return i * 2048
    def reads(self, ks, dst):
        if C.noread: return []
        c = self.c1 if ks else self.c0
        return [[f"ds_read_b128 {vr(dst+4*i,4)}, v{c} offset:{self.frag_off(i)}"] for i in range(self.nfr)]
    def upd_A(self, sBuf): return [f"v_add_u32 v{self.c0}, s{sBuf}, v{self.b0}"]
    def upd_B(self, sBuf): return [f"v_xor_b32 v{self.c1}, 64, v{self.c0}"]

class OpNC:
    def __init__(self, a, V, T, lds_off, nfr, RS, NW=8):
        self.a, self.T, self.lds_off, self.nfr, self.RS = a, T, lds_off, nfr, RS
        self.RP = T * 2; self.CH = self.RP // 16
        self.total = self.CH
        self.n = -(-self.total // NW)
        self.even = (self.total % NW == 0)
        self.nbig = NW if self.even else self.total - (self.n - 1) * NW
        self.vd = V.get(self.n)
        np_ = self.RP // 32
        self.gb = 3 if np_ % 8 == 0 else (2 if np_ % 4 == 0 else 1)
        self.nres = min(1 << self.gb, nfr)
        self.base = V.get(self.nres); self.cur = V.get(self.nres)
        self.bytes = 64 * self.RP
    def g_asm(self, vk, vo, t):
        a = self.a
        if self.gb == 3:
            a(f"v_and_b32 v{vo}, 3, v{vk}"); a(f"v_bfe_u32 v{t}, v{vk}, 3, 1"); a(f"v_lshl_or_b32 v{vo}, v{t}, 2, v{vo}")
        elif self.gb == 2:
            a(f"v_bfe_u32 v{vo}, v{vk}, 1, 1"); a(f"v_bfe_u32 v{t}, v{vk}, 3, 1"); a(f"v_lshl_or_b32 v{vo}, v{t}, 1, v{vo}")
        else:
            a(f"v_bfe_u32 v{vo}, v{vk}, 3, 1")
    def idx0(self, sWave, sOut, stmp):
        a = self.a
        if self.even: a(f"s_mul_i32 s{sOut}, s{sWave}, {self.n}")
        else:
            a(f"s_mul_i32 s{sOut}, s{sWave}, {self.n-1}")
            a(f"s_min_u32 s{stmp}, s{sWave}, {self.nbig}")
            a(f"s_add_u32 s{sOut}, s{sOut}, s{stmp}")
    def setup_dma(self, sWave, tmp, sCol0Bytes, stmp):
        a = self.a; t0, t1, t2, t3 = tmp, tmp + 1, tmp + 2, tmp + 3
        self.idx0(sWave, stmp, stmp + 1)
        magic = (1 << 20) // self.CH + 1
        for L_ in range(self.total * 64 + 64):
            assert (L_ * magic) >> 20 == L_ // self.CH
        for j in range(self.n):
            a(f"s_add_u32 s{stmp+1}, s{stmp}, {j}"); a(f"s_lshl_b32 s{stmp+1}, s{stmp+1}, 6")
            a(f"v_add_u32 v{t0}, s{stmp+1}, v0")
            if self.CH & (self.CH - 1) == 0:
                a(f"v_lshrrev_b32 v{t1}, {int(math.log2(self.CH))}, v{t0}")
                a(f"v_and_b32 v{t0}, {self.CH-1}, v{t0}")
            else:
                a(f"v_mul_u32_u24 v{t1}, {magic}, v{t0}"); a(f"v_lshrrev_b32 v{t1}, 20, v{t1}")
                a(f"v_mul_u32_u24 v{t2}, {self.CH}, v{t1}"); a(f"v_sub_u32 v{t0}, v{t0}, v{t2}")
            self.g_asm(t1, t2, t3)
            a(f"v_lshlrev_b32 v{t2}, 1, v{t2}"); a(f"v_xor_b32 v{t0}, v{t0}, v{t2}")
            a(f"v_mul_u32_u24 v{t1}, {self.RS}, v{t1}")
            a(f"v_lshl_add_u32 v{t0}, v{t0}, 4, v{t1}")
            if j % 4: a(f"s_sub_u32 s{stmp+1}, s{sCol0Bytes}, {(j%4)*1024}"); a(f"v_add_u32 v{self.vd+j}, s{stmp+1}, v{t0}")
            else: a(f"v_add_u32 v{self.vd+j}, s{sCol0Bytes}, v{t0}")
    def setup_lds(self, sWave, sLds, stmp):
        self.idx0(sWave, sLds, stmp)
        self.a(f"s_lshl_b32 s{sLds}, s{sLds}, 10")
        if self.lds_off: self.a(f"s_add_u32 s{sLds}, s{sLds}, {self.lds_off}")
    def dma(self, sBuf, sK, stmp, sLds, srds, sWave=None):
        g = []
        s = srds
        for j in range(self.n):
            grp = []
            guard = (not self.even) and j == self.n - 1
            if guard:
                lbl = newlabel("ncs")
                grp += [f"s_cmp_lt_u32 s{sWave}, {self.nbig}", f"s_cbranch_scc0 {lbl}"]
            if j % 4 == 0:
                grp.append(f"s_add_u32 s{stmp}, s{sBuf}, s{sLds}")
                if j: grp.append(f"s_add_u32 s{stmp}, s{stmp}, {j*1024}")
                grp += [f"s_mov_b32 m0, s{stmp}", "s_nop 0"]
            off = f" offset:{(j%4)*1024}" if j % 4 else ""
            grp.append(f"buffer_load_dwordx4 v{self.vd+j}, s[{s}:{s+3}], s{sK} offen{off} lds")
            if guard: grp.append(f"{lbl}:")
            g.append(grp)
        return g
    def count(self): return (self.n if self.even else self.n - 1, self.n)
    def setup_read(self, sFrag0, tmp, stmp):
        a = self.a; t0, t1, t2 = tmp, tmp + 1, tmp + 2
        a(f"v_lshrrev_b32 v{t0}, 4, v0"); a(f"v_lshlrev_b32 v{t0}, 3, v{t0}")
        a(f"v_bfe_u32 v{t1}, v0, 2, 2"); a(f"v_add_u32 v{t0}, v{t0}, v{t1}")
        self.g_asm(t0, t1, t2)
        a(f"v_mul_u32_u24 v{t0}, {self.RP}, v{t0}")
        a(f"v_and_b32 v{t2}, 3, v0"); a(f"v_lshl_add_u32 v{t0}, v{t2}, 3, v{t0}")
        if self.lds_off: a(f"v_add_u32 v{t0}, {self.lds_off}, v{t0}")
        for r in range(self.nres):
            a(f"s_add_u32 s{stmp}, s{sFrag0}, {r}")
            a(f"v_xor_b32 v{t2}, s{stmp}, v{t1}")
            if r: a(f"v_subrev_u32 v{t2}, {r}, v{t2}")
            a(f"v_lshl_add_u32 v{self.base+r}, v{t2}, 5, v{t0}")
    def init_cur(self):
        return [f"v_mov_b32 v{self.cur+r}, v{self.base+r}" for r in range(self.nres)]
    def reads(self, ks, dst):
        if C.noread: return []
        g = []
        for i in range(self.nfr):
            r = i % (1 << self.gb)
            for h in range(2):
                off = 32 * i + (4 * h + 32 * ks) * self.RP
                g.append([f"ds_read_b64_tr_b16 {vr(dst+4*i+2*h,2)}, v{self.cur+r} offset:{off}"])
        return g
    def upd_A(self, sBuf): return [f"v_add_u32 v{self.cur+r}, s{sBuf}, v{self.base+r}" for r in range(self.nres)]
    def upd_B(self, sBuf): return []

class Seg:
    def __init__(self, P, Q, acc, Pdma, Qdma, kadvP, kadvQ, name):
        self.P, self.Q, self.acc, self.Pdma, self.Qdma, self.kadvP, self.kadvQ, self.name = P, Q, acc, Pdma, Qdma, kadvP, kadvQ, name
        self.xdma = []

class Gemm:
    def __init__(self, a, V, NBP, NBQ, SP, SQ, mp, mq, regs, joint, early=None):
        self.a, self.NBP, self.NBQ, self.SP, self.SQ, self.mp, self.mq, self.joint = a, NBP, NBQ, SP, SQ, mp, mq, joint
        self.sDP, self.sRP, self.sDQ, self.sRQ, self.sCnt, self.sE = regs
        if joint: self.sDQ, self.sRQ = self.sDP, self.sRP
        self.early = early if C.early else None
        self.leadP = NBP - (1 if self.early == 'P' else 0)
        self.leadQ = NBQ - (1 if self.early == 'Q' else 0)
        self.F = []
        for s in range(2):
            p = V.get(4 * mp, 2); q = V.get(4 * mq, 2)
            self.F.append((p, q))
        self.vmq = []
    def emit(self, lines):
        for x in lines:
            if x.endswith(":"): self.a.label(x[:-1])
            else: self.a(x)
    def note(self, tag, n): self.vmq.append((tag, n))
    def vm_allow(self, need):
        last = -1
        for i, (t, n) in enumerate(self.vmq):
            if t in need: last = i
        return min(63, sum(n for t, n in self.vmq[last + 1:]))
    def reads(self, seg, ks, fs):
        p, q = self.F[fs]
        return merge(seg.P.reads(ks, p), seg.Q.reads(ks, q))
    def mfmas(self, seg, fs):
        p, q = self.F[fs]
        return [f"v_mfma_f32_16x16x32_bf16 {vr(c,4)}, {vr(p+4*i,4)}, {vr(q+4*j,4)}, {vr(c,4)}"
                for i in range(self.mp) for j in range(self.mq) for c in [seg.acc + 4 * (i * self.mq + j)]]
    def spread(self, main, fill):
        n = len(main); k = len(fill)
        if k == 0: return list(main)
        span = max(1, min(n, int(n * C.span)))
        out = []; fi = 0
        for i, m in enumerate(main):
            out.append(m)
            while fi < k and (fi * span) // k <= i:
                out.extend(fill[fi]); fi += 1
        while fi < k: out.extend(fill[fi]); fi += 1
        return out
    def ring_adv(self, sD, sR, stride, nb):
        return [f"s_mov_b32 s{sD}, s{sR}", f"s_add_u32 s{sR}, s{sR}, {stride}", f"s_cmp_eq_u32 s{sR}, {stride*nb}", f"s_cselect_b32 s{sR}, 0, s{sR}"]
    def advance(self):
        out = []
        if self.early: out.append(f"s_mov_b32 s{self.sE}, s{self.sDP if (self.joint or self.early == 'P') else self.sDQ}")
        if self.joint: return out + self.ring_adv(self.sDP, self.sRP, self.SP + self.SQ, self.NBP)
        return out + self.ring_adv(self.sDP, self.sRP, self.SP, self.NBP) + self.ring_adv(self.sDQ, self.sRQ, self.SQ, self.NBQ)
    def dma_list(self, which, seg, sBuf):
        if seg is None or C.nodma: return []
        if which == 'P': return seg.Pdma(sBuf) + [list(seg.kadvP)]
        return seg.Qdma(sBuf) + [list(seg.kadvQ)] + seg.xdma
    def body(self, cur, nxt, dP, dQ, vmw, pre_barrier=None, extra=None):
        a = self.a
        self.emit(self.advance())
        a("s_waitcnt lgkmcnt(0)")
        fill = self.reads(cur, 1, 1)
        if nxt is not None: fill.append(nxt.P.upd_A(self.sRP) + nxt.Q.upd_A(self.sRQ))
        if self.early == 'P': fill = merge(fill, self.dma_list('P', dP, self.sE))
        if self.early == 'Q': fill = merge(fill, self.dma_list('Q', dQ, self.sE))
        if nxt is None and extra: fill = fill + extra
        self.emit(self.spread(self.mfmas(cur, 0), fill))
        if nxt is None:
            a("s_waitcnt lgkmcnt(0)")
            self.emit(self.mfmas(cur, 1))
            return
        if pre_barrier: pre_barrier()
        a(f"s_waitcnt vmcnt({vmw}) lgkmcnt(0)")
        a("s_barrier")
        if C.prio: a("s_setprio 1")
        fill = self.reads(nxt, 0, 0)
        d = []
        if self.early != 'P': d += self.dma_list('P', dP, self.sDP)
        if self.early != 'Q': d += self.dma_list('Q', dQ, self.sDQ)
        fill = merge(fill, d)
        u = nxt.P.upd_B(self.sRP) + nxt.Q.upd_B(self.sRQ)
        if u: fill.append(u)
        if extra: fill = fill + extra
        self.emit(self.spread(self.mfmas(cur, 1), fill))
        if C.prio: a("s_setprio 0")
    def prologue(self, stages, which="PQ", first=0, last=None):
        a = self.a
        stride = self.SP + self.SQ if self.joint else None
        if first == 0:
            a(f"s_mov_b32 s{self.sDP}, 0")
            if not self.joint: a(f"s_mov_b32 s{self.sDQ}, 0")
        for s in range(first, max(self.leadP, self.leadQ) if last is None else last):
            if "P" in which and s < self.leadP:
                for g in stages[s].Pdma(self.sDP): self.emit(g)
                self.emit(stages[s].kadvP); self.note(('P', s), stages[s].P.count()[0])
                if not self.joint: a(f"s_add_u32 s{self.sDP}, s{self.sDP}, {self.SP}")
            if "Q" in which and s < self.leadQ:
                for g in stages[s].Qdma(self.sDQ): self.emit(g)
                self.emit(stages[s].kadvQ); self.note(('Q', s), stages[s].Q.count()[0])
                if not self.joint: a(f"s_add_u32 s{self.sDQ}, s{self.sDQ}, {self.SQ}")
            if self.joint: a(f"s_add_u32 s{self.sDP}, s{self.sDP}, {stride}")
    def run(self, stages, hooks=None, extras=None, post_first=None):
        a = self.a; N = len(stages)
        hooks = hooks or {}; extras = extras or {}
        a(f"s_waitcnt vmcnt({self.vm_allow({('P',0),('Q',0)})})")
        if getattr(self, "pre_first", None): self.pre_first()
        a("s_barrier")
        if post_first: post_first()
        seen = []
        for sg in stages:
            for op in (sg.P, sg.Q):
                if op not in seen: seen.append(op); self.emit(op.init_cur())
        if self.joint:
            a(f"s_mov_b32 s{self.sRP}, 0"); a(f"s_mov_b32 s{self.sDP}, {(self.SP+self.SQ)*(self.NBP-1)}")
        else:
            a(f"s_mov_b32 s{self.sRP}, 0"); a(f"s_mov_b32 s{self.sDP}, {self.SP*(self.NBP-1)}")
            a(f"s_mov_b32 s{self.sRQ}, 0"); a(f"s_mov_b32 s{self.sDQ}, {self.SQ*(self.NBQ-1)}")
        for g in self.reads(stages[0], 0, 0): self.emit(g)
        sigs = []
        for i in range(N):
            nxt = stages[i + 1] if i + 1 < N else None
            dP = stages[i + self.leadP] if i + self.leadP < N else None
            dQ = stages[i + self.leadQ] if i + self.leadQ < N else None
            def noteP():
                if dP is not None: self.note(('P', i + self.leadP), dP.P.count()[0])
            def noteQ():
                if dQ is not None:
                    self.note(('Q', i + self.leadQ), dQ.Q.count()[0])
                    if dQ.xdma: self.note(('PF', i), len(dQ.xdma))
            if self.early == 'P': noteP()
            if self.early == 'Q': noteQ()
            vmw = self.vm_allow({('P', i + 1), ('Q', i + 1)}) if nxt is not None else 0
            if self.early != 'P': noteP()
            if self.early != 'Q': noteQ()
            if i in extras: self.note(('X', i), extras[i][1])
            sigs.append((stages[i], nxt, dP, dQ, vmw, i if (i in hooks or i in extras) else -1))
        i = 0
        while i < N:
            j = i
            while j < N and sigs[j] == sigs[i]: j += 1
            cnt = j - i
            cur, nxt, dP, dQ, vmw, sp = sigs[i]
            hk = hooks.get(sp); ex = extras[sp][0] if sp in extras else None
            if cnt >= 2:
                lbl = newlabel("gl")
                a(f"s_mov_b32 s{self.sCnt}, {cnt}")
                a.label(lbl)
                self.body(cur, nxt, dP, dQ, vmw)
                a(f"s_sub_u32 s{self.sCnt}, s{self.sCnt}, 1"); a(f"s_cmp_lg_u32 s{self.sCnt}, 0"); a(f"s_cbranch_scc1 {lbl}")
            else:
                self.body(cur, nxt, dP, dQ, vmw, hk, ex)
            i = j

def merge(x, y):
    out = []; i = j = 0
    while i < len(x) or j < len(y):
        if j >= len(y) or (i < len(x) and i * len(y) <= j * len(x)): out.append(x[i]); i += 1
        else: out.append(y[j]); j += 1
    return out

def bf16_round(a, vdst, vsrc):
    a(f"v_cvt_pk_bf16_f32 v{vdst}, v{vsrc}, v{vsrc}"); a(f"v_lshlrev_b32 v{vdst}, 16, v{vdst}")

def stamp(a, idx, real=False, st="main"):
    if C.dbgst and (real or st == C.stampset):
        a("s_memrealtime s[88:89]" if real else "s_memtime s[88:89]")
        a("s_waitcnt lgkmcnt(0)")
        a(f"s_mov_b32 s{92+idx}, s88")

sWave, sM, sN, sRole = 28, 29, 30, 31
sBufD, sBufR, sCnt, sTmp, sKP, sKQ, sLdsP, sLdsQ = 32, 33, 34, 35, 36, 37, 38, 39
sWp, sWq, sRot, sLdsP2, sKP2, sTile, sTt, sDt = 80, 81, 82, 83, 84, 85, 86, 87
SX, SA, SB_, SWS, SDBG, SS = 4, 8, 12, 16, 20, 24
T0, T1, T2, T3 = 76, 77, 78, 79
U0, U1, U2, U3 = 88, 89, 90, 91
VT = 2

def ssm_param_loads(a, vch, t):
    a(f"v_lshlrev_b32 v{t}, 1, v{vch}")
    for k, name in enumerate(("lre", "lim", "ldt")):
        srd(a, SS, PTR[name], 2048)
        a(f"buffer_load_ushort v{t+1+k}, v{t}, s[{SS}:{SS+3}], 0 offen")

def ssm_params_compute(a, out, t, want_kappa=True):
    lre, lim, ldt = t + 1, t + 2, t + 3
    x0, x1, x2, x3 = t + 4, t + 5, t + 6, t + 7
    lr, li, kr, ki = out, out + 1, out + 2, out + 3
    for r in (lre, lim, ldt): a(f"v_lshlrev_b32 v{r}, 16, v{r}")
    a(f"v_mul_f32 v{x0}, {LOG2E:#x}, v{ldt}"); a(f"v_exp_f32 v{x0}, v{x0}"); a("s_nop 0")
    bf16_round(a, x0, x0)
    a(f"v_mul_f32 v{x1}, v{x0}, v{lre}"); a(f"v_mul_f32 v{x2}, v{x0}, v{lim}")
    a(f"v_mul_f32 v{x1}, {LOG2E:#x}, v{x1}"); a(f"v_exp_f32 v{x1}, v{x1}")
    a(f"v_mul_f32 v{x2}, {INV2PI:#x}, v{x2}"); a(f"v_rndne_f32 v{x3}, v{x2}"); a(f"v_sub_f32 v{x2}, v{x2}, v{x3}")
    a(f"v_cos_f32 v{x3}, v{x2}"); a(f"v_sin_f32 v{x2}, v{x2}"); a("s_nop 0")
    a(f"v_mul_f32 v{lr}, v{x1}, v{x3}"); a(f"v_mul_f32 v{li}, v{x1}, v{x2}")
    if want_kappa:
        a(f"v_subrev_f32 v{x0}, 1.0, v{lr}")
        a(f"v_mul_f32 v{x1}, v{x0}, v{lre}"); a(f"v_fmac_f32 v{x1}, v{li}, v{lim}")
        a(f"v_mul_f32 v{x2}, v{li}, v{lre}"); a(f"v_fma_f32 v{x2}, -v{x0}, v{lim}, v{x2}")
        a(f"v_mul_f32 v{x3}, v{lre}, v{lre}"); a(f"v_fmac_f32 v{x3}, v{lim}, v{lim}")
        a(f"v_rcp_f32 v{x3}, v{x3}"); a("s_nop 0")
        a(f"v_add_f32 v{x3}, v{x3}, v{x3}")
        a(f"v_mul_f32 v{kr}, v{x1}, v{x3}"); a(f"v_mul_f32 v{ki}, v{x2}, v{x3}")

def csq(a, dr, di, sr_, si, t):
    a(f"v_mul_f32 v{t}, v{sr_}, v{si}"); a(f"v_mul_f32 v{dr}, v{sr_}, v{sr_}")
    a(f"v_fma_f32 v{dr}, -v{si}, v{si}, v{dr}"); a(f"v_add_f32 v{di}, v{t}, v{t}")

def gate_row_loads(a, sRow, vx, t):
    a(f"s_lshl_b32 s{U1}, s{sRow}, 11")
    a(f"buffer_load_dwordx4 {vr(vx,4)}, v{t}, s[{SX}:{SX+3}], s{U1} offen")
    a(f"buffer_load_dwordx4 {vr(vx+4,4)}, v{t}, s[{SX}:{SX+3}], s{U1} offen offset:16")

def gate_compute(a, sRow, vx, vw, t):
    acc = t; p0, p1, q0, q1 = t + 1, t + 2, t + 3, t + 4
    a(f"v_mov_b32 v{acc}, 0")
    for d in range(8):
        a(f"v_lshlrev_b32 v{p0}, 16, v{vx+d}"); a(f"v_and_b32 v{p1}, 0xffff0000, v{vx+d}")
        a(f"v_lshlrev_b32 v{q0}, 16, v{vw+d}"); a(f"v_and_b32 v{q1}, 0xffff0000, v{vw+d}")
        a(f"v_mul_f32 v{p0}, v{p0}, v{q0}"); a(f"v_mul_f32 v{p1}, v{p1}, v{q1}")
        a(f"v_cvt_pk_bf16_f32 v{p0}, v{p0}, v{p1}")
        a(f"v_and_b32 v{p1}, 0xffff0000, v{p0}"); a(f"v_lshlrev_b32 v{p0}, 16, v{p0}")
        a(f"v_add_f32 v{acc}, v{acc}, v{p0}"); a(f"v_add_f32 v{acc}, v{acc}, v{p1}")
    for sh in (1, 2, 4, 8):
        a("s_nop 1")
        a(f"v_add_f32_dpp v{acc}, v{acc}, v{acc} row_shr:{sh} row_mask:0xf bank_mask:0xf bound_ctrl:0")
    a("s_nop 1")
    a(f"v_add_f32_dpp v{acc}, v{acc}, v{acc} row_bcast:15 row_mask:0xa bank_mask:0xf")
    a("s_nop 1")
    a(f"v_add_f32_dpp v{acc}, v{acc}, v{acc} row_bcast:31 row_mask:0xc bank_mask:0xf")
    a("s_nop 1")
    a(f"v_readlane_b32 s{U0}, v{acc}, 63")
    a("s_nop 1")
    a(f"v_mov_b32 v{acc}, s{U0}")
    bf16_round(a, acc, acc)
    a(f"v_mul_f32 v{p0}, {LOG2E ^ 0x80000000:#x}, v{acc}"); a(f"v_exp_f32 v{p0}, v{p0}"); a("s_nop 0")
    a(f"v_add_f32 v{p0}, 1.0, v{p0}"); a(f"v_rcp_f32 v{p0}, v{p0}"); a("s_nop 0")
    bf16_round(a, p0, p0)
    a(f"v_sub_f32 v{p1}, 1.0, v{p0}")
    bf16_round(a, p1, p1)
    a(f"s_lshl_b32 s{U0}, s{sRow}, 3"); a(f"s_add_u32 s{U0}, s{U0}, {WS_G}")
    a(f"v_cmp_eq_u32 vcc, 0, v0"); a("s_nop 1")
    a(f"v_cndmask_b32 v{p0}, v{p1}, v{p0}, vcc")
    a(f"v_lshlrev_b32 v{q0}, 2, v0")
    a("s_mov_b64 exec, 3")
    a(f"buffer_store_dword v{p0}, v{q0}, s[{SWS}:{SWS+3}], s{U0} offen sc1")
    a("s_mov_b64 exec, -1")

def mb_zero_issue(a, vt):
    sk = newlabel("mz")
    a(f"s_cmp_lg_u32 s{sWave}, 0"); a(f"s_cbranch_scc1 {sk}")
    a(f"v_mov_b32 v{vt}, 0"); a(f"v_lshlrev_b32 v{vt+1}, 2, v0")
    a(f"s_lshl_b32 s{U0}, s2, 8"); a(f"s_add_u32 s{U0}, s{U0}, {WS_MB}")
    a("s_mov_b64 exec, 15")
    a(f"buffer_store_dword v{vt}, v{vt+1}, s[{SWS}:{SWS+3}], s{U0} offen sc1")
    a("s_mov_b64 exec, -1")
    a.label(sk)

def init_signal(a, vt):
    sk = newlabel("mi")
    a(f"s_cmp_lg_u32 s{sWave}, 0"); a(f"s_cbranch_scc1 {sk}")
    a(f"v_mov_b32 v{vt}, 1"); a(f"v_mov_b32 v{vt+1}, 0")
    a("s_mov_b64 exec, 1")
    a(f"buffer_atomic_add v{vt}, v{vt+1}, s[{SDBG}:{SDBG+3}], 0 offen sc1")
    a("s_mov_b64 exec, -1")
    a.label(sk)

def poll(a, srd_, sByteOff, check, vt, wide=1, sleep=None):
    lp, ok = newlabel("poll"), newlabel("pok")
    a(f"v_mov_b32 v{vt+4}, s{sByteOff}")
    a(f"s_mov_b32 s{U2}, {C.spin}")
    a.label(lp)
    a(f"s_sub_u32 s{U2}, s{U2}, 1"); a(f"s_cmp_eq_u32 s{U2}, 0"); a(f"s_cbranch_scc1 {ok}")
    op = {1: "dword", 2: "dwordx2", 4: "dwordx4"}[wide]
    a(f"buffer_load_{op} {vr(vt,wide)}, v{vt+4}, s[{srd_}:{srd_+3}], 0 offen sc1")
    a("s_waitcnt vmcnt(0)")
    a(f"v_readfirstlane_b32 s{U0}, v{vt}")
    if wide >= 2: a(f"v_readfirstlane_b32 s{U1}, v{vt+1}")
    if wide >= 4: a(f"v_readfirstlane_b32 s{U3}, v{vt+2}")
    a("s_nop 3")
    check(ok)
    a(f"s_sleep {C.sleep if sleep is None else sleep}")
    a(f"s_branch {lp}")
    a.label(ok)

VINIT = 1
def init_load(a):
    sk = newlabel("il")
    a(f"s_cmp_lg_u32 s{sWave}, 0"); a(f"s_cbranch_scc1 {sk}")
    a(f"v_mov_b32 v{VINIT}, 0")
    a(f"buffer_load_dword v{VINIT}, v{VINIT}, s[{SDBG}:{SDBG+3}], 0 offen sc1")
    a.label(sk)

def init_check(a, vt):
    ok = newlabel("ic")
    a(f"v_readfirstlane_b32 s{U0}, v{VINIT}"); a("s_nop 3")
    a(f"s_cmp_ge_u32 s{U0}, 256"); a(f"s_cbranch_scc1 {ok}")
    a(f"s_mov_b32 s{T3}, 0")
    def chk(o): a(f"s_cmp_ge_u32 s{U0}, 256"); a(f"s_cbranch_scc1 {o}")
    poll(a, SDBG, T3, chk, vt, sleep=32)
    a.label(ok)

def poll_own(a, check, vt):
    a(f"s_lshl_b32 s{T3}, s2, 8"); a(f"s_add_u32 s{T3}, s{T3}, {WS_MB}")
    poll(a, SWS, T3, check, vt, wide=4)

def signal_cnt(a, dword, vt):
    l, t1, t2 = vt, vt + 1, vt + 2
    a(f"v_bfe_u32 v{t1}, v0, 3, 1"); a(f"s_lshl_b32 s{T0}, s{sM}, 1"); a(f"v_add_u32 v{t1}, s{T0}, v{t1}")
    a(f"v_lshrrev_b32 v{t2}, 2, v{t1}"); a(f"v_lshlrev_b32 v{t2}, 1, v{t2}")
    a(f"v_bfe_u32 v{l}, v0, 2, 1"); a(f"v_or_b32 v{t2}, v{t2}, v{l}")
    a(f"v_and_b32 v{t1}, 3, v{t1}"); a(f"v_lshlrev_b32 v{t1}, 2, v{t1}")
    a(f"v_and_b32 v{l}, 3, v0"); a(f"v_or_b32 v{t1}, v{t1}, v{l}")
    a(f"v_bfe_u32 v{l}, v0, 4, 1"); a(f"v_lshl_or_b32 v{t1}, v{l}, 4, v{t1}")
    a(f"v_lshl_or_b32 v{t1}, v{t1}, 3, v{t2}")
    a(f"v_lshlrev_b32 v{t1}, 8, v{t1}")
    a(f"v_mov_b32 v{l}, 1")
    a(f"s_mov_b32 s{T0}, {WS_MB + 4*dword}")
    a("s_mov_b32 exec_hi, 0")
    a(f"buffer_atomic_add v{l}, v{t1}, s[{SWS}:{SWS+3}], s{T0} offen sc1")
    a("s_mov_b64 exec, -1")

def bulk_prefetch(a, G, vdummy, vaddr):
    a(f"v_lshlrev_b32 v{vaddr}, 4, v0")
    n = 0
    for name, size in C.pflist:
        size = {"x": L*D*2, "w1": D*F*2, "bre": P_*D*2, "bim": P_*D*2, "cre": D*P_*2, "cim": D*P_*2, "w2": F*D*2}[name]
        share = size // 256; pw = share // 8
        a(f"s_mul_i32 s{U0}, s2, {share}"); a(f"s_mul_i32 s{U1}, s{sWave}, {pw}"); a(f"s_add_u32 s{U0}, s{U0}, s{U1}")
        a(f"s_mov_b32 s{SS}, s{PTR[name]}"); a(f"s_mov_b32 s{SS+1}, s{PTR[name]+1}")
        a(f"s_add_u32 s{SS+2}, s{U0}, {pw}"); a(f"s_mov_b32 s{SS+3}, 0x20000")
        for i in range(-(-pw // 1024)):
            a(f"buffer_load_dwordx4 {vr(vdummy,4)}, v{vaddr}, s[{SS}:{SS+3}], s{U0} offen offset:{i*1024}")
            n += 1
    G.note('pf', n)

def phase1_dense(a):
    V = Regs(10)
    TP, TQ = 224, 256
    mp, mq = 7, 4
    Pop = OpNC(a, V, TP, 0, mp, F * 2)
    NBQ = C.nbq
    Qop = OpKC(a, V, TQ, 2 * Pop.bytes, mq); Qop.groups = [[0, 1, 2, 3]]
    G = Gemm(a, V, 2, NBQ, Pop.bytes, Qop.bytes, mp, mq, (sBufD, sBufR, sTile, sTt, sCnt, sRole), False, 'Q')
    LDS1 = 2 * Pop.bytes + NBQ * Qop.bytes
    acc = V.get(4 * mp * mq, 2)
    vb = V.get(2 * mp, 2); vdum = V.get(4, 2)
    a(f"s_lshr_b32 s{sWp}, s{sWave}, 2"); a(f"s_and_b32 s{sWq}, s{sWave}, 3")
    a(f"s_mul_i32 s{T0}, s{sN}, {TP*2}")
    Pop.setup_dma(sWave, VT, T0, U0)
    Qop.lane_chunk(VT, VT + 1)
    a(f"v_lshrrev_b32 v{VT+1}, 3, v0"); a(f"v_lshl_add_u32 v{VT}, v{VT+1}, 11, v{VT}")
    for j in range(4):
        a(f"s_lshl_b32 s{T0}, s{sM}, 8"); a(f"s_lshl_b32 s{T1}, s{sWave}, 5"); a(f"s_add_u32 s{T0}, s{T0}, s{T1}")
        a(f"s_add_u32 s{T0}, s{T0}, {8*j}"); a(f"s_lshl_b32 s{T0}, s{T0}, 11"); a(f"s_sub_u32 s{T0}, s{T0}, {j*1024}")
        Qop.set_voff(j, VT, T0, bool(j & 1))
    Pop.setup_lds(sWave, sLdsP, U0)
    a(f"s_lshl_b32 s{sLdsQ}, s{sWave}, 12"); a(f"s_add_u32 s{sLdsQ}, s{sLdsQ}, {Qop.lds_off}")
    a(f"s_mul_i32 s{sKP}, s{sRot}, {64*F*2}"); a(f"s_lshl_b32 s{sKQ}, s{sRot}, 7")
    a("s_waitcnt lgkmcnt(0)")
    stamp(a, 1, st="pro")
    srd(a, SX, PTR["x"], L * D * 2); srd(a, SWS, PTR["ws"], WS_SIZE); srd(a, SDBG, PTR["dbg"], 256)
    srd(a, SA, PTR["w1"], D * F * 2)
    kadvP = [f"s_add_u32 s{sKP}, s{sKP}, {64*F*2}", f"s_cmp_eq_u32 s{sKP}, {D*F*2}", f"s_cselect_b32 s{sKP}, 0, s{sKP}"]
    kadvQ = [f"s_add_u32 s{sKQ}, s{sKQ}, 128", f"s_and_b32 s{sKQ}, s{sKQ}, 2047"]
    seg = Seg(Pop, Qop, acc, lambda b: Pop.dma(b, sKP, sTmp, sLdsP, SA, sWave), lambda b: Qop.dma(b, sKQ, sTmp, sLdsQ, [SX] * 4), kadvP, kadvQ, "d1")
    stages = [seg] * 16
    G.prologue(stages, "PQ", 0, 1)
    if C.pbar: a("s_barrier")
    stamp(a, 2, st="pro")
    a(f"s_mul_i32 s{T2}, s{sN}, {TP}"); a(f"s_mul_i32 s{T3}, s{sWp}, {mp*16}"); a(f"s_add_u32 s{T2}, s{T2}, s{T3}")
    a(f"s_lshl_b32 s{T3}, s{T2}, 1")
    a(f"v_lshrrev_b32 v{VT+2}, 4, v0"); a(f"v_lshlrev_b32 v{VT+2}, 3, v{VT+2}")
    srd(a, SS, PTR["b1"], F * 2)
    for i in range(mp):
        a(f"buffer_load_dwordx2 {vr(vb+2*i,2)}, v{VT+2}, s[{SS}:{SS+3}], s{T3} offen offset:{32*i}")
    G.note('misc', mp)
    a(f"s_mul_i32 s{T0}, s{sWp}, {mp}"); Pop.setup_read(T0, VT, U0)
    a(f"s_mul_i32 s{T0}, s{sWq}, {mq}"); Qop.setup_read(T0, VT, U0)
    stamp(a, 3, st="pro")
    G.prologue(stages, "PQ", 1)
    mb_zero_issue(a, VT + 4)
    stamp(a, 4, st="pro")
    a(f"s_waitcnt vmcnt({G.vm_allow({'misc'})})")
    for i in range(mp):
        c = acc + 4 * (i * mq)
        a(f"v_lshlrev_b32 v{c}, 16, v{vb+2*i}"); a(f"v_and_b32 v{c+1}, 0xffff0000, v{vb+2*i}")
        a(f"v_lshlrev_b32 v{c+2}, 16, v{vb+2*i+1}"); a(f"v_and_b32 v{c+3}, 0xffff0000, v{vb+2*i+1}")
        for j in range(1, mq):
            for r in range(4): a(f"v_mov_b32 v{c+4*j+r}, v{c+r}")
    stamp(a, 1)
    G.pre_first = lambda: stamp(a, 5, st="pro")
    G.run(stages, {2: (lambda: init_signal(a, VT + 4))}, None, (lambda: stamp(a, 6, st="pro")))
    stamp(a, 2)
    PITCH = 464
    stamp(a, 1, st="dense")
    init_load(a)
    vw = VT
    a(f"v_and_b32 v{vw}, 15, v0"); a(f"v_mul_u32_u24 v{vw}, {PITCH}, v{vw}")
    a(f"v_lshrrev_b32 v{VT+1}, 4, v0"); a(f"v_lshl_add_u32 v{vw}, v{VT+1}, 3, v{vw}")
    a(f"s_mul_i32 s{T0}, s{sWq}, {64*PITCH}"); a(f"s_mul_i32 s{T1}, s{sWp}, 224"); a(f"s_add_u32 s{T0}, s{T0}, s{T1}")
    a(f"v_add_u32 v{vw}, s{T0}, v{vw}")
    vr_, vg_ = VT + 1, VT + 2
    a(f"v_cmp_le_u32 vcc, 28, v0"); a("s_nop 1")
    a(f"v_cndmask_b32 v{VT+3}, 0, 1, vcc")
    a(f"v_mul_u32_u24 v{VT+4}, 28, v{VT+3}"); a(f"v_sub_u32 v{VT+4}, v0, v{VT+4}")
    a(f"v_lshlrev_b32 v{VT+4}, 4, v{VT+4}")
    a(f"v_mul_u32_u24 v{vr_}, {PITCH}, v{VT+3}"); a(f"v_add_u32 v{vr_}, v{vr_}, v{VT+4}")
    a(f"s_mul_i32 s{T0}, s{sWq}, {64*PITCH}"); a(f"s_mul_i32 s{T1}, s{sWp}, {32*PITCH}"); a(f"s_add_u32 s{T0}, s{T0}, s{T1}")
    a(f"v_add_u32 v{vr_}, s{T0}, v{vr_}")
    a(f"v_mul_u32_u24 v{vg_}, {RS_A2}, v{VT+3}"); a(f"v_add_u32 v{vg_}, v{vg_}, v{VT+4}")
    a(f"s_lshl_b32 s{T0}, s{sM}, 8"); a(f"s_lshl_b32 s{T1}, s{sWq}, 6"); a(f"s_add_u32 s{T0}, s{T0}, s{T1}")
    a(f"s_lshl_b32 s{T1}, s{sWp}, 5"); a(f"s_add_u32 s{T0}, s{T0}, s{T1}")
    a(f"s_mul_i32 s{T0}, s{T0}, {RS_A2}"); a(f"s_mul_i32 s{T1}, s{sN}, 448"); a(f"s_add_u32 s{T0}, s{T0}, s{T1}")
    a(f"s_add_u32 s{T0}, s{T0}, {WS_A2 + 4096}")
    for j in range(mq):
        for i in range(mp):
            c = acc + 4 * (i * mq + j)
            for r in range(4): a(f"v_mul_f32_e64 v{c+r}, v{c+r}, |v{c+r}|")
            a(f"v_cvt_pk_bf16_f32 v{c}, v{c}, v{c+1}"); a(f"v_cvt_pk_bf16_f32 v{c+1}, v{c+2}, v{c+3}")
            a(f"v_pk_max_i16 v{c}, v{c}, 0"); a(f"v_pk_max_i16 v{c+1}, v{c+1}, 0")
    a("s_barrier")
    stamp(a, 2, st="dense")
    for j in range(mq):
        for i in range(mp):
            c = acc + 4 * (i * mq + j)
            a(f"ds_write_b64 v{vw}, {vr(c,2)} offset:{j*16*PITCH + 32*i}")
    a("s_waitcnt lgkmcnt(0)")
    stamp(a, 3, st="dense")
    a("s_barrier")
    stamp(a, 4, st="dense")
    a("s_mov_b32 exec_hi, 0x00ffffff")
    rb = acc
    for n in range(16):
        a(f"ds_read_b128 {vr(rb+4*n,4)}, v{vr_} offset:{2*n*PITCH}")
    for n in range(16):
        a(f"s_waitcnt lgkmcnt({15-n})")
        a(f"buffer_store_dwordx4 {vr(rb+4*n,4)}, v{vg_}, s[{SWS}:{SWS+3}], s{T0} offen{C.wt}")
        a(f"s_add_u32 s{T0}, s{T0}, {2*RS_A2}")
    a("s_mov_b64 exec, -1")
    stamp(a, 5, st="dense")
    return V.hi, max(LDS1, 4 * 64 * PITCH)

def phase1_ssm(a):
    V = Regs(10)
    mp, mq = 4, 4
    Pop = OpKC(a, V, 256, 0, mp); Pop.groups = [[0, 1, 2, 3]]
    Qop = OpKC(a, V, 128, Pop.bytes, mq); Qop.groups = [[0], [1]]; Qop.ldsoffs = [0, 8192]
    Qop.frag_off = lambda j: ((j & 1) * 4 + (j >> 1)) * 2048
    SB = Pop.bytes + Qop.bytes; NB = 3
    G = Gemm(a, V, NB, NB, Pop.bytes, Qop.bytes, mp, mq, (sBufD, sBufR, None, None, sCnt, sRole), True, 'P')
    acc = V.get(64, 2); prm = V.get(12, 4); big = V.get(72, 4)
    AG = NB * SB
    a(f"s_lshr_b32 s{sWp}, s{sWave}, 1"); a(f"s_and_b32 s{sWq}, s{sWave}, 1")
    Pop.lane_chunk(VT, VT + 1)
    a(f"v_lshrrev_b32 v{VT+1}, 5, v0"); a(f"v_lshlrev_b32 v{VT+1}, 4, v{VT+1}")
    a(f"v_bfe_u32 v{VT+2}, v0, 3, 2"); a(f"v_add_u32 v{VT+1}, v{VT+1}, v{VT+2}")
    a(f"v_lshl_add_u32 v{VT+3}, v{VT+1}, 11, v{VT}")
    for j in range(4):
        a(f"s_lshl_b32 s{T0}, s{sWave}, 1");
        if j >> 1: a(f"s_add_u32 s{T0}, s{T0}, 1")
        a(f"s_and_b32 s{T0}, s{T0}, 3"); a(f"s_lshl_b32 s{T0}, s{T0}, 2")
        a(f"s_lshl_b32 s{T1}, s{sWp}, 6"); a(f"s_add_u32 s{T0}, s{T0}, s{T1}")
        a(f"s_lshl_b32 s{T1}, s{sM}, 8"); a(f"s_add_u32 s{T0}, s{T0}, s{T1}")
        if j & 1: a(f"s_add_u32 s{T0}, s{T0}, 32")
        a(f"s_lshl_b32 s{T0}, s{T0}, 11")
        if j: a(f"s_sub_u32 s{T0}, s{T0}, {j*1024}")
        Pop.set_voff(j, VT + 3, T0, bool(j & 1))
    a(f"v_lshrrev_b32 v{VT+1}, 3, v0"); a(f"v_lshl_add_u32 v{VT+3}, v{VT+1}, 12, v{VT}")
    a(f"s_lshr_b32 s{T0}, s{sWave}, 2"); a(f"s_lshl_b32 s{T0}, s{T0}, 5")
    a(f"s_and_b32 s{T1}, s{sWave}, 1"); a(f"s_lshl_b32 s{T2}, s{T1}, 6"); a(f"s_lshl_b32 s{T1}, s{T1}, 4"); a(f"s_add_u32 s{T0}, s{T0}, s{T1}")
    a(f"s_bfe_u32 s{T1}, s{sWave}, 0x10001"); a(f"s_add_u32 s{T0}, s{T0}, s{T1}")
    a(f"s_lshl_b32 s{T1}, s{sN}, 6"); a(f"s_add_u32 s{T0}, s{T0}, s{T1}"); a(f"s_lshl_b32 s{T0}, s{T0}, 11")
    Qop.set_voff(0, VT + 3, T0, T2)
    a(f"v_mov_b32 v{Qop.vd+1}, v{Qop.vd}")
    a(f"s_lshl_b32 s{sLdsP}, s{sWave}, 12")
    a(f"s_lshl_b32 s{sLdsQ}, s{sWave}, 10"); a(f"s_add_u32 s{sLdsQ}, s{sLdsQ}, {Qop.lds_off}")
    a(f"s_lshl_b32 s{sKQ}, s{sRot}, 7")
    a("s_waitcnt lgkmcnt(0)")
    srd(a, SX, PTR["x"], L * D * 2); srd(a, SWS, PTR["ws"], WS_SIZE); srd(a, SDBG, PTR["dbg"], 256)
    srd(a, SA, PTR["bre"], P_ * D * 2); srd(a, SB_, PTR["bim"], P_ * D * 2)
    pt = [big, big + 8, big + 16]
    kadv = [f"s_add_u32 s{sKQ}, s{sKQ}, 128", f"s_and_b32 s{sKQ}, s{sKQ}, 2047"]
    kadvP = [f"s_add_u32 s{sKP}, s{sKP}, 128", f"s_and_b32 s{sKP}, s{sKP}, 2047"]
    a(f"s_mov_b32 s{sKP}, s{sKQ}")
    seg = Seg(Pop, Qop, acc, lambda b: Pop.dma(b, sKP, sTmp, sLdsP, [SX] * 4), lambda b: Qop.dma(b, sKQ, sTmp, sLdsQ, [SA, SB_]), kadvP, kadv, "s1")
    if C.prefetch:
        SP1, SP2, sPF1, sPF2 = SS, 72, sLdsP2, sKP2
        a(f"s_lshl_b32 s{T0}, s{sM}, 4"); a(f"s_add_u32 s{T0}, s{T0}, s{sN}")
        a(f"s_mul_i32 s{sPF2}, s{T0}, {56*1024}"); a(f"s_mul_i32 s{T1}, s{sWave}, {7*1024}"); a(f"s_add_u32 s{sPF2}, s{sPF2}, s{T1}")
        a(f"s_mov_b32 s{SP2}, s{PTR['w2']}"); a(f"s_mov_b32 s{SP2+1}, s{PTR['w2']+1}")
        a(f"s_add_u32 s{SP2+2}, s{sPF2}, {7*1024}"); a(f"s_mov_b32 s{SP2+3}, 0x20000")
        a(f"s_lshr_b32 s{T1}, s{T0}, 6"); a(f"s_cmp_eq_u32 s{T1}, 0")
        a(f"s_cselect_b32 s{SP1}, s{PTR['cre']}, s{PTR['cim']}"); a(f"s_cselect_b32 s{SP1+1}, s{PTR['cre']+1}, s{PTR['cim']+1}")
        a(f"s_and_b32 s{sPF1}, s{T0}, 63"); a(f"s_lshl_b32 s{sPF1}, s{sPF1}, 15"); a(f"s_lshl_b32 s{T1}, s{sWave}, 12"); a(f"s_add_u32 s{sPF1}, s{sPF1}, s{T1}")
        a(f"s_add_u32 s{SP1+2}, s{sPF1}, 4096"); a(f"s_mov_b32 s{SP1+3}, 0x20000")
        vpf = V.get(1); vpd = V.get(4, 2)
        a(f"v_lshlrev_b32 v{vpf}, 4, v0")
        pf = []
        for i in range(4): pf.append([f"buffer_load_dwordx4 {vr(vpd,4)}, v{vpf}, s[{SP1}:{SP1+3}], s{sPF1} offen offset:{i*1024}"])
        for i in range(7):
            pf.append([f"buffer_load_dwordx4 {vr(vpd,4)}, v{vpf}, s[{SP2}:{SP2+3}], s{sPF2} offen offset:{(i%4)*1024}"] + ([f"s_add_u32 s{sPF2}, s{sPF2}, 4096"] if i == 3 else []))
        p1extras = {C.pfit: (pf, 11)}
    else:
        p1extras = {}
    stages = [seg] * 16
    G.prologue(stages, "PQ", 0, 1)
    a(f"s_mul_i32 s{T0}, s{sWp}, {mp}"); Pop.setup_read(T0, VT, U0)
    a(f"s_lshl_b32 s{T0}, s{sWq}, 1"); Qop.setup_read(T0, VT, U0)
    for i in range(64): a(f"v_mov_b32 v{acc+i}, 0")
    if C.pbar: a("s_barrier")
    G.prologue(stages, "PQ", 1)
    mb_zero_issue(a, VT + 4)
    SPRM = 60
    def prm_loads():
        out = []
        class Cap:
            def __call__(self, x): out.append([x])
        c = Cap()
        c(f"s_lshl_b32 s{T2}, s{sN}, 6"); c(f"s_lshl_b32 s{T3}, s{sWq}, 5"); c(f"s_add_u32 s{T3}, s{T3}, s{T2}")
        c(f"v_and_b32 v{VT}, 15, v0"); c(f"v_lshlrev_b32 v{VT}, 1, v{VT}"); c(f"v_add_u32 v{VT}, s{T3}, v{VT}")
        c(f"v_lshlrev_b32 v{pt[0]}, 1, v{VT}"); c(f"v_add_u32 v{pt[1]}, 2, v{pt[0]}")
        c(f"v_add_u32 v{pt[2]}, s{T2}, v0"); c(f"v_lshlrev_b32 v{pt[2]}, 1, v{pt[2]}")
        c(f"s_mov_b32 s{SPRM+2}, 2048"); c(f"s_mov_b32 s{SPRM+3}, 0x20000")
        for k, name in enumerate(("lre", "lim", "ldt")):
            out.append([f"s_mov_b32 s{SPRM}, s{PTR[name]}", f"s_mov_b32 s{SPRM+1}, s{PTR[name]+1}"] +
                       [f"buffer_load_ushort v{pt[q]+1+k}, v{pt[q]}, s[{SPRM}:{SPRM+3}], 0 offen" for q in range(3)])
        return out
    def prm_math():
        out = []
        class Cap:
            def __call__(self, x): out.append(x)
        c = Cap()
        ssm_params_compute(c, prm, pt[0]); ssm_params_compute(c, prm + 4, pt[1]); ssm_params_compute(c, prm + 8, pt[2], False)
        return [out[i:i + 4] for i in range(0, len(out), 4)]
    p1extras[3] = (prm_loads(), 9)
    p1extras[7] = (prm_math(), 0)
    stamp(a, 1)
    G.run(stages, {2: (lambda: init_signal(a, VT + 4))}, p1extras)
    stamp(a, 2)
    stamp(a, 1, st="ssm")
    init_load(a)
    a("s_nop 7")
    def U(jc, ri, s): return acc + 4 * ((s >> 2) * 4 + 2 * jc + ri) + (s & 3)
    ag = big; tt = big + 4
    def scan_step(s):
        for jc in range(2):
            hr, hi_ = ag + 2 * jc, ag + 2 * jc + 1; lr = prm + 4 * jc; t0, t1 = tt + 2 * jc, tt + 2 * jc + 1
            a(f"v_fma_f32 v{t0}, v{lr}, v{hr}, v{U(jc,0,s)}"); a(f"v_fma_f32 v{t1}, v{lr}, v{hi_}, v{U(jc,1,s)}")
        for jc in range(2):
            hr, hi_ = ag + 2 * jc, ag + 2 * jc + 1; li = prm + 4 * jc + 1; t0, t1 = tt + 2 * jc, tt + 2 * jc + 1
            a(f"v_fma_f32 v{hi_}, v{li}, -v{hi_}, v{t0}")
            a(f"v_fma_f32 v{t1}, v{li}, v{hr}, v{t1}")
        for jc in range(2):
            hr, hi_ = ag + 2 * jc, ag + 2 * jc + 1; t1 = tt + 2 * jc + 1
            a(f"v_mov_b32 v{hr}, v{hi_}"); a(f"v_mov_b32 v{hi_}, v{t1}")
    for jc in range(2):
        a(f"v_mov_b32 v{ag+2*jc}, v{U(jc,0,0)}"); a(f"v_mov_b32 v{ag+2*jc+1}, v{U(jc,1,0)}")
    def scan2(s, src, dst):
        for jc in range(2):
            hr, hi_ = src + 2 * jc, src + 2 * jc + 1; lr = prm + 4 * jc; dr, di = dst + 2 * jc, dst + 2 * jc + 1
            a(f"v_fma_f32 v{dr}, v{lr}, v{hr}, v{U(jc,0,s)}"); a(f"v_fma_f32 v{di}, v{lr}, v{hi_}, v{U(jc,1,s)}")
        for jc in range(2):
            hr, hi_ = src + 2 * jc, src + 2 * jc + 1; li = prm + 4 * jc + 1; dr, di = dst + 2 * jc, dst + 2 * jc + 1
            a(f"v_fma_f32 v{dr}, -v{li}, v{hi_}, v{dr}"); a(f"v_fma_f32 v{di}, v{li}, v{hr}, v{di}")
    st = [ag, tt]
    for s in range(1, 16): scan2(s, st[(s - 1) & 1], st[s & 1])
    fin = st[15 & 1]
    vag = big + 8
    def calc_vag():
        a(f"v_lshrrev_b32 v{vag}, 4, v0"); a(f"s_lshl_b32 s{T0}, s{sWp}, 2"); a(f"v_add_u32 v{vag}, s{T0}, v{vag}")
        a(f"v_lshlrev_b32 v{vag}, 9, v{vag}")
        a(f"v_and_b32 v{big+9}, 15, v0"); a(f"v_lshlrev_b32 v{big+9}, 4, v{big+9}")
        a(f"s_lshl_b32 s{T0}, s{sWq}, 8"); a(f"s_add_u32 s{T0}, s{T0}, {AG}")
        a(f"v_add3_u32 v{vag}, v{vag}, v{big+9}, s{T0}")
    calc_vag()
    a(f"ds_write_b128 v{vag}, {vr(fin,4)}")
    a("s_waitcnt lgkmcnt(0)")
    a("s_barrier")
    stamp(a, 2, st="ssm")
    a(f"s_cmp_lg_u32 s{sWave}, 0")
    a("s_cbranch_scc1 L_s_gate")
    lr, li = prm + 8, prm + 9
    l16r, l16i, l256r, l256i = big + 10, big + 11, big + 12, big + 13
    er, ei = big + 14, big + 15
    w0 = big + 4
    A = big + 16; vl = big + 9
    a(f"v_lshlrev_b32 v{vl}, 3, v0"); a(f"v_add_u32 v{vl}, {AG}, v{vl}")
    for s in range(16): a(f"ds_read_b64 {vr(A+2*s,2)}, v{vl} offset:{s*512}")
    csq(a, l16r, l16i, lr, li, w0)
    for _ in range(3): csq(a, l16r, l16i, l16r, l16i, w0)
    csq(a, l256r, l256i, l16r, l16i, w0)
    for _ in range(3): csq(a, l256r, l256i, l256r, l256i, w0)
    a("s_waitcnt lgkmcnt(0)")
    x0, x1 = big + 6, big + 7
    for s in range(1, 16):
        pr, pi, cr_, ci_ = A + 2 * (s - 1), A + 2 * (s - 1) + 1, A + 2 * s, A + 2 * s + 1
        a(f"v_fma_f32 v{cr_}, v{l16r}, v{pr}, v{cr_}"); a(f"v_fma_f32 v{ci_}, v{l16r}, v{pi}, v{ci_}")
        a(f"v_fma_f32 v{cr_}, -v{l16i}, v{pi}, v{cr_}"); a(f"v_fma_f32 v{ci_}, v{l16i}, v{pr}, v{ci_}")
    er, ei = A + 30, A + 31
    vo = big + 8
    a(f"s_lshl_b32 s{T0}, s{sN}, 6"); a(f"v_add_u32 v{vo}, s{T0}, v0"); a(f"v_lshlrev_b32 v{vo}, 3, v{vo}")
    a(f"s_lshl_b32 s{T1}, s{sM}, 13"); a(f"s_add_u32 s{T1}, s{T1}, {WS_AGG}")
    a(f"buffer_store_dwordx2 {vr(er,2)}, v{vo}, s[{SWS}:{SWS+3}], s{T1} offen sc1")
    a("s_waitcnt vmcnt(0)")
    init_check(a, big + 52)
    a(f"v_and_b32 v{x0}, 3, v0"); a(f"v_lshlrev_b32 v{x0}, 2, v{x0}")
    a(f"s_and_b32 s{T0}, s{sN}, 3"); a(f"s_add_u32 s{T0}, s{T0}, 16"); a(f"v_add_u32 v{x0}, s{T0}, v{x0}"); a(f"v_lshlrev_b32 v{x0}, 3, v{x0}")
    a(f"v_and_b32 v{x1}, 4, v0"); a(f"s_lshr_b32 s{T0}, s{sN}, 2"); a(f"v_add3_u32 v{x0}, v{x0}, v{x1}, s{T0}")
    a(f"v_lshlrev_b32 v{x0}, 8, v{x0}"); a(f"v_mov_b32 v{x1}, 1")
    a(f"s_lshl_b32 s{T0}, 2, s{sM}"); a(f"s_sub_u32 s{T0}, s{T0}, 1"); a(f"s_andn2_b32 s{T0}, 0xff, s{T0}")
    a(f"s_cmp_eq_u32 s{T0}, 0"); a("s_cbranch_scc1 L_s_nosig")
    a(f"s_mov_b32 exec_lo, s{T0}"); a("s_mov_b32 exec_hi, 0"); a(f"s_mov_b32 s{T1}, {WS_MB}")
    a(f"buffer_atomic_add v{x1}, v{x0}, s[{SWS}:{SWS+3}], s{T1} offen sc1")
    a("s_mov_b64 exec, -1")
    a.label("L_s_nosig")
    stamp(a, 3, st="ssm")
    cr, ci = big + 48, big + 49
    a(f"v_mov_b32 v{cr}, 0"); a(f"v_mov_b32 v{ci}, 0")
    a(f"s_cmp_eq_u32 s{sM}, 0"); a("s_cbranch_scc1 L_s_nolb")
    def chk(ok):
        a(f"s_cmp_eq_u32 s{U0}, s{sM}"); a(f"s_cbranch_scc1 {ok}")
    poll_own(a, chk, big + 52)
    B = big + 50
    for j in range(7):
        a(f"s_mov_b32 s{T1}, {WS_AGG + j*8192}")
        a(f"buffer_load_dwordx2 {vr(B+2*j,2)}, v{vo}, s[{SWS}:{SWS+3}], s{T1} offen sc1")
    a("s_waitcnt vmcnt(0)")
    for j in range(7):
        a(f"s_cmp_le_u32 s{sM}, {j}"); a("s_cbranch_scc1 L_s_nolb")
        a(f"v_fma_f32 v{x0}, v{l256r}, v{cr}, v{B+2*j}"); a(f"v_fma_f32 v{x1}, v{l256r}, v{ci}, v{B+2*j+1}")
        a(f"v_fma_f32 v{x0}, -v{l256i}, v{ci}, v{x0}"); a(f"v_fma_f32 v{ci}, v{l256i}, v{cr}, v{x1}")
        a(f"v_mov_b32 v{cr}, v{x0}")
    a.label("L_s_nolb")
    stamp(a, 4, st="ssm")
    a(f"ds_write_b64 v{vl}, {vr(cr,2)}")
    for s in range(1, 16):
        a(f"v_mul_f32 v{x0}, v{l16r}, v{cr}"); a(f"v_mul_f32 v{x1}, v{l16r}, v{ci}")
        a(f"v_fma_f32 v{x0}, -v{l16i}, v{ci}, v{x0}"); a(f"v_fma_f32 v{ci}, v{l16i}, v{cr}, v{x1}")
        a(f"v_mov_b32 v{cr}, v{x0}")
        a(f"v_add_f32 v{A+2*(s-1)}, v{A+2*(s-1)}, v{cr}"); a(f"v_add_f32 v{A+2*(s-1)+1}, v{A+2*(s-1)+1}, v{ci}")
        a(f"ds_write_b64 v{vl}, {vr(A+2*(s-1),2)} offset:{s*512}")
    a("s_waitcnt lgkmcnt(0)")
    a("s_branch L_s_wait")
    a.label("L_s_gate")
    gxs = [big + 16, big + 24, big + 32]; gws = big + 40; gt = big + 48
    a(f"s_lshl_b32 s{T0}, s{sM}, 8"); a(f"s_lshl_b32 s{T1}, s{sN}, 4"); a(f"s_add_u32 s{T0}, s{T0}, s{T1}")
    a(f"s_add_u32 s{T0}, s{T0}, s{sWave}"); a(f"s_sub_u32 s{T0}, s{T0}, 1")
    a(f"s_add_u32 s{T1}, s{T0}, 7"); a(f"s_add_u32 s{T2}, s{T0}, 14")
    a(f"v_lshlrev_b32 v{gt}, 5, v0")
    srd(a, SS, PTR["gw"], 2048)
    a(f"buffer_load_dwordx4 {vr(gws,4)}, v{gt}, s[{SS}:{SS+3}], 0 offen"); a(f"buffer_load_dwordx4 {vr(gws+4,4)}, v{gt}, s[{SS}:{SS+3}], 0 offen offset:16")
    gate_row_loads(a, T0, gxs[0], gt); gate_row_loads(a, T1, gxs[1], gt)
    a(f"s_cmp_gt_u32 s{sWave}, 2"); a("s_cbranch_scc1 L_s_g2")
    gate_row_loads(a, T2, gxs[2], gt)
    a("s_waitcnt vmcnt(0)")
    gate_compute(a, T2, gxs[2], gws, gt + 1)
    a.label("L_s_g2")
    a("s_waitcnt vmcnt(0)")
    gate_compute(a, T0, gxs[0], gws, gt + 1); gate_compute(a, T1, gxs[1], gws, gt + 1)
    a.label("L_s_wait")
    a("s_barrier")
    calc_vag()
    a(f"ds_read_b128 {vr(ag,4)}, v{vag}")
    PITCH = 272
    vw = big + 9
    a(f"v_lshrrev_b32 v{vw}, 4, v0"); a(f"v_lshlrev_b32 v{vw}, 4, v{vw}"); a(f"s_lshl_b32 s{T0}, s{sWp}, 6"); a(f"v_add_u32 v{vw}, s{T0}, v{vw}")
    a(f"v_mul_u32_u24 v{vw}, {PITCH}, v{vw}")
    a(f"v_and_b32 v{big+10}, 15, v0"); a(f"v_lshl_add_u32 v{vw}, v{big+10}, 2, v{vw}")
    a(f"s_lshl_b32 s{T0}, s{sWq}, 6"); a(f"v_add_u32 v{vw}, s{T0}, v{vw}")
    a("s_waitcnt lgkmcnt(0)")
    ore, oim, od = big + 12, big + 14, big + 16
    st = [ag, tt]
    for s in range(16):
        scan2(s, st[s & 1], st[(s + 1) & 1])
        h = st[(s + 1) & 1]
        for jc in range(2):
            hr, hi_ = h + 2 * jc, h + 2 * jc + 1; kr, ki = prm + 4 * jc + 2, prm + 4 * jc + 3
            a(f"v_mul_f32 v{ore+jc}, v{kr}, v{hr}"); a(f"v_mul_f32 v{oim+jc}, -v{kr}, v{hi_}")
        for jc in range(2):
            hr, hi_ = h + 2 * jc, h + 2 * jc + 1; kr, ki = prm + 4 * jc + 2, prm + 4 * jc + 3
            a(f"v_fma_f32 v{ore+jc}, -v{ki}, v{hi_}, v{ore+jc}"); a(f"v_fma_f32 v{oim+jc}, -v{ki}, v{hr}, v{oim+jc}")
        d = od + 2 * (s % 4)
        a(f"v_cvt_pk_bf16_f32 v{d}, v{ore}, v{ore+1}"); a(f"v_cvt_pk_bf16_f32 v{d+1}, v{oim}, v{oim+1}")
        a(f"ds_write_b32 v{vw}, v{d} offset:{s*PITCH}"); a(f"ds_write_b32 v{vw}, v{d+1} offset:{s*PITCH+128}")
    stamp(a, 5, st="ssm")
    vr_, vg_ = big + 10, big + 11
    a(f"v_lshrrev_b32 v{vr_}, 4, v0"); a(f"s_lshl_b32 s{T0}, s{sWave}, 5"); a(f"v_add_u32 v{vr_}, s{T0}, v{vr_}")
    a(f"s_lshl_b32 s{T1}, s{sM}, 8"); a(f"v_add_u32 v{vg_}, s{T1}, v{vr_}"); a(f"v_mul_u32_u24 v{vg_}, {RS_A2}, v{vg_}")
    a(f"v_mul_u32_u24 v{vr_}, {PITCH}, v{vr_}")
    a(f"v_and_b32 v{big+12}, 15, v0"); a(f"v_lshl_add_u32 v{vr_}, v{big+12}, 4, v{vr_}")
    a(f"v_and_b32 v{big+13}, 7, v0"); a(f"v_lshl_add_u32 v{vg_}, v{big+13}, 4, v{vg_}")
    a(f"v_bfe_u32 v{big+13}, v0, 3, 1"); a(f"v_lshl_add_u32 v{vg_}, v{big+13}, 11, v{vg_}")
    a(f"s_lshl_b32 s{T0}, s{sN}, 7"); a(f"s_add_u32 s{T0}, s{T0}, {WS_A2}")
    a("s_waitcnt lgkmcnt(0)")
    a("s_barrier")
    rb = acc
    for n in range(8): a(f"ds_read_b128 {vr(rb+4*n,4)}, v{vr_} offset:{4*n*PITCH}")
    for n in range(8):
        a(f"s_waitcnt lgkmcnt({7-n})")
        a(f"buffer_store_dwordx4 {vr(rb+4*n,4)}, v{vg_}, s[{SWS}:{SWS+3}], s{T0} offen{C.wt}")
        a(f"s_add_u32 s{T0}, s{T0}, {4*RS_A2}")
    stamp(a, 6, st="ssm")
    return V.hi, AG + 8192

def phase2(a, role):
    R = "A" if role == 0 else "B"
    SW2, SE = 24, 72
    TP, TQ, mp, mq, NS, NB = 128, 128, 4, 2, 2, 4
    V = Regs(10)
    P1 = OpKC(a, V, TP, 0, mp); P1.groups = [[0, 1]]
    P2 = OpNC(a, V, TP, 0, mp, D * 2)
    Qop = OpKC(a, V, TQ, TP * 128, mq, flags=C.a2ld); Qop.groups = [[0, 1]]
    SB = TP * 128 + Qop.bytes
    G = Gemm(a, V, NB, NB, TP * 128, Qop.bytes, mp, mq, (sBufD, sBufR, None, None, sCnt, sRole), True, 'P')
    nf = mp * mq
    accD = V.get(4 * nf, 2)
    accS = V.get(4 * nf, 2)
    vg = V.get(2 * mq, 2); vex = V.get(6 * mp, 2); vep = V.get(4)
    a(f"s_and_b32 s{T0}, s2, 7"); a(f"s_lshr_b32 s{T1}, s2, 3")
    a(f"s_lshr_b32 s{sTt}, s{T0}, 1"); a(f"s_lshl_b32 s{sTt}, s{sTt}, 2"); a(f"s_bfe_u32 s{T2}, s{T1}, 0x20002"); a(f"s_add_u32 s{sTt}, s{sTt}, s{T2}")
    a(f"s_and_b32 s{sDt}, s{T0}, 1"); a(f"s_lshl_b32 s{sDt}, s{sDt}, 2"); a(f"s_and_b32 s{T2}, s{T1}, 3"); a(f"s_add_u32 s{sDt}, s{sDt}, s{T2}")
    a(f"s_lshl_b32 s{sTile}, s{sTt}, 3"); a(f"s_add_u32 s{sTile}, s{sTile}, s{sDt}")
    a(f"s_lshr_b32 s{sWp}, s{sWave}, 2"); a(f"s_and_b32 s{sWq}, s{sWave}, 3")
    srd(a, SW2, PTR["w2"], F * D * 2)
    nAd, nBs = C.nAd, C.nBs
    useS = (role == 0) or nBs > 0
    Qop.lane_chunk(VT, VT + 1)
    if useS:
        srd(a, SA, PTR["cre"], D * P_ * 2); srd(a, SB_, PTR["cim"], D * P_ * 2)
        a(f"v_lshrrev_b32 v{VT+1}, 3, v0"); a(f"v_lshl_add_u32 v{VT+3}, v{VT+1}, 11, v{VT}")
        for j in range(2):
            a(f"s_lshl_b32 s{T0}, s{sDt}, 7"); a(f"s_lshl_b32 s{T1}, s{sWave}, 4"); a(f"s_add_u32 s{T0}, s{T0}, s{T1}")
            if j: a(f"s_add_u32 s{T0}, s{T0}, 8")
            a(f"s_lshl_b32 s{T0}, s{T0}, 11")
            if j: a(f"s_sub_u32 s{T0}, s{T0}, 1024")
            P1.set_voff(j, VT + 3, T0, bool(j & 1))
        a(f"s_lshl_b32 s{sLdsP}, s{sWave}, 11")
    a(f"s_lshl_b32 s{T0}, s{sDt}, 8")
    P2.setup_dma(sWave, VT + 4, T0, U0)
    P2.setup_lds(sWave, sLdsP2, U0)
    a(f"v_lshrrev_b32 v{VT+1}, 3, v0"); a(f"v_mul_u32_u24 v{VT+1}, {RS_A2}, v{VT+1}"); a(f"v_add_u32 v{VT+3}, v{VT+1}, v{VT}")
    for j in range(2):
        a(f"s_lshl_b32 s{T0}, s{sWave}, 4")
        if role: a(f"s_xor_b32 s{T0}, s{T0}, 16")
        if j: a(f"s_add_u32 s{T0}, s{T0}, 8")
        a(f"s_lshl_b32 s{T1}, s{sTt}, 7"); a(f"s_add_u32 s{T0}, s{T0}, s{T1}"); a(f"s_mul_i32 s{T0}, s{T0}, {RS_A2}")
        if j: a(f"s_sub_u32 s{T0}, s{T0}, 1024")
        Qop.set_voff(j, VT + 3, T0, bool(j & 1))
    a(f"s_lshl_b32 s{sLdsQ}, s{sWave}, 11"); a(f"s_add_u32 s{sLdsQ}, s{sLdsQ}, {Qop.lds_off}")
    sKQ2 = 3
    if role == 0:
        a(f"s_mov_b32 s{sKP}, 0"); a(f"s_mov_b32 s{sKQ}, {WS_A2}")
        a(f"s_mov_b32 s{sKP2}, {(56-nAd)*64*D*2}"); a(f"s_mov_b32 s{sKQ2}, {WS_A2 + 4096 + (56-nAd)*128}")
    else:
        a(f"s_mov_b32 s{sKP}, {((32-nBs)*128) & 2047}"); a(f"s_mov_b32 s{sKQ}, {WS_A2 + (32-nBs)*128}")
        a(f"s_mov_b32 s{sKP2}, 0"); a(f"s_mov_b32 s{sKQ2}, {WS_A2 + 4096}")
    a(f"s_mul_i32 s{T0}, s{sWp}, {mp}")
    if useS: P1.setup_read(T0, VT, U0)
    P2.setup_read(T0, VT, U0)
    a(f"s_mul_i32 s{T0}, s{sWq}, {mq}"); Qop.setup_read(T0, VT, U0)
    qd = lambda b: Qop.dma(b, sKQ, sTmp, sLdsQ, [SWS] * 2)
    qd2 = lambda b: Qop.dma(b, sKQ2, sTmp, sLdsQ, [SWS] * 2)
    qadv = f"s_add_u32 s{sKQ}, s{sKQ}, 128"; qadv2 = f"s_add_u32 s{sKQ2}, s{sKQ2}, 128"
    segD = Seg(P2, Qop, accD, lambda b: P2.dma(b, sKP2, sTmp, sLdsP2, SW2), qd2, [f"s_add_u32 s{sKP2}, s{sKP2}, {64*D*2}"], [qadv2], "d")
    if useS:
        padv = [f"s_add_u32 s{sKP}, s{sKP}, 128", f"s_and_b32 s{sKP}, s{sKP}, 2047"]
        segR = Seg(P1, Qop, accS, lambda b: P1.dma(b, sKP, sTmp, sLdsP, [SA] * 2), qd, padv, [qadv], "r")
        segI = Seg(P1, Qop, accS, lambda b: P1.dma(b, sKP, sTmp, sLdsP, [SB_] * 2), qd, padv, [qadv], "i")
        allS = [segR] * 16 + [segI] * 16
    if role == 0:
        stages = allS[:32 - nBs] + [segD] * nAd; nS = 32 - nBs
    else:
        stages = (allS[32 - nBs:] if nBs else []) + [segD] * (56 - nAd); nS = nBs
    N = len(stages)
    a("s_barrier")
    G.prologue(stages, "P")
    for i in range(4 * nf):
        a(f"v_mov_b32 v{accD+i}, 0")
        if useS: a(f"v_mov_b32 v{accS+i}, 0")
    post_first = None
    if role == 0:
        a(f"s_waitcnt vmcnt({2*G.leadP})")
        a("s_barrier")
        stamp(a, 3)
        a(f"s_cmp_lg_u32 s{sWave}, 0"); a(f"s_cbranch_scc1 L_p2{R}_dep")
        signal_cnt(a, 1, VT)
        def chk0(ok): a(f"s_cmp_eq_u32 s{U1}, 16"); a(f"s_cbranch_scc1 {ok}")
        poll_own(a, chk0, VT)
    else:
        stamp(a, 3)
        a(f"s_cmp_lg_u32 s{sWave}, 0"); a(f"s_cbranch_scc1 L_p2{R}_dep")
        def chk0(ok):
            a(f"s_cmp_eq_u32 s{U1}, 16"); a(f"s_cbranch_scc1 {ok}")
        assert nBs >= G.NBQ
        poll_own(a, chk0, VT)
        def post_first():
            sk = newlabel("pf")
            a(f"s_cmp_lg_u32 s{sWave}, 0"); a(f"s_cbranch_scc1 {sk}")
            init_check(a, VT)
            signal_cnt(a, 2, VT)
            a.label(sk)
    a.label(f"L_p2{R}_dep")
    a("s_barrier")
    G.prologue(stages, "Q")
    hooks = {}
    def hookD():
        sk = newlabel("hk")
        stamp(a, 2, st="p2")
        a(f"s_cmp_lg_u32 s{sWave}, 0"); a(f"s_cbranch_scc1 {sk}")
        def chk(ok): a(f"s_cmp_eq_u32 s{U3}, 16"); a(f"s_cbranch_scc1 {ok}")
        poll_own(a, chk, VT)
        a.label(sk)
        stamp(a, 3, st="p2")
    hooks[nS - G.leadQ] = hookD
    blk = 16 * mq
    vt_own, vxo, vd2, vl16 = vep, vep + 1, vep + 2, vep + 3
    vx_, vds, vb2 = vex, vex + 2 * mp, vex + 4 * mp
    ex = []
    g0 = [f"s_lshl_b32 s{T0}, s{sTt}, 7", f"s_lshl_b32 s{T1}, s{sWq}, 5", f"s_add_u32 s{T0}, s{T0}, s{T1}",
          f"v_and_b32 v{vt_own}, 15, v0", f"v_add_u32 v{vt_own}, s{T0}, v{vt_own}", f"v_lshlrev_b32 v{vxo}, 3, v{vt_own}"]
    ex.append(g0)
    for j in range(mq):
        ex.append([f"s_mov_b32 s{T0}, {WS_G + (((j + role) & 1) << 7)}",
                   f"buffer_load_dwordx2 {vr(vg+2*j,2)}, v{vxo}, s[{SWS}:{SWS+3}], s{T0} offen sc1"])
    ex.append([f"v_add_u32 v{vt_own}, {16*role}, v{vt_own}" if role else "s_nop 0",
               f"v_lshrrev_b32 v{vd2}, 4, v0", f"v_lshlrev_b32 v{vd2}, 2, v{vd2}",
               f"s_lshl_b32 s{T0}, s{sDt}, 7", f"s_lshl_b32 s{T1}, s{sWp}, 6", f"s_add_u32 s{T0}, s{T0}, s{T1}",
               f"v_add_u32 v{vd2}, s{T0}, v{vd2}", f"v_lshlrev_b32 v{vd2}, 1, v{vd2}",
               f"v_lshl_add_u32 v{vxo}, v{vt_own}, 11, v{vd2}", f"v_lshlrev_b32 v{vl16}, 4, v0"])
    for i in range(mp):
        ex.append([f"buffer_load_dwordx2 {vr(vx_+2*i,2)}, v{vxo}, s[{SX}:{SX+3}], 0 offen offset:{32*i}"])
    ex.append([f"s_mov_b32 s{SE}, s{PTR['dsk']}", f"s_mov_b32 s{SE+1}, s{PTR['dsk']+1}", f"s_mov_b32 s{SE+2}, 2048", f"s_mov_b32 s{SE+3}, 0x20000"])
    for i in range(mp):
        ex.append([f"buffer_load_dwordx2 {vr(vds+2*i,2)}, v{vd2}, s[{SE}:{SE+3}], 0 offen offset:{32*i}"])
    ex.append([f"s_mov_b32 s{SE}, s{PTR['b2']}", f"s_mov_b32 s{SE+1}, s{PTR['b2']+1}"])
    for i in range(mp):
        ex.append([f"buffer_load_dwordx2 {vr(vb2+2*i,2)}, v{vd2}, s[{SE}:{SE+3}], 0 offen offset:{32*i}"])
    extras = {N - NB: (ex, mq + 3 * mp)}
    stamp(a, 4)
    stamp(a, 1, st="p2")
    G.run(stages, hooks, extras, post_first)
    stamp(a, 5)
    stamp(a, 4, st="p2")
    a("s_nop 7")
    a("s_waitcnt vmcnt(0)")
    for i in range(mp):
        for j in range(mq):
            c = 4 * (i * mq + j)
            for r in range(4):
                a(f"v_mul_f32 v{accD+c+r}, v{vg+2*j+1}, v{accD+c+r}")
                if useS: a(f"v_fmac_f32 v{accD+c+r}, v{vg+2*j}, v{accS+c+r}")
    a(f"s_lshl_b32 s{T0}, s{sTile}, 1"); a(f"s_add_u32 s{T0}, s{T0}, {1-role}"); a(f"s_lshl_b32 s{T0}, s{T0}, 3")
    a(f"s_add_u32 s{T0}, s{T0}, s{sWave}"); a(f"s_lshl_b32 s{T0}, s{T0}, 12"); a(f"s_add_u32 s{T0}, s{T0}, {WS_XB}")
    a("s_nop 1")
    for i in range(mp):
        c = accD + 4 * (i * mq + 1)
        a(f"buffer_store_dwordx4 {vr(c,4)}, v{vl16}, s[{SWS}:{SWS+3}], s{T0} offen offset:{i*1024} sc1")
    x0, x1, y0, y1 = VT, VT + 1, VT + 2, VT + 3
    for i in range(mp):
        e = accD + 4 * (i * mq)
        for h in range(2):
            a(f"v_lshlrev_b32 v{x0}, 16, v{vx_+2*i+h}"); a(f"v_and_b32 v{x1}, 0xffff0000, v{vx_+2*i+h}")
            a(f"v_lshlrev_b32 v{y0}, 16, v{vds+2*i+h}"); a(f"v_and_b32 v{y1}, 0xffff0000, v{vds+2*i+h}")
            a(f"v_mul_f32 v{x0}, v{x0}, v{y0}"); a(f"v_mul_f32 v{x1}, v{x1}, v{y1}")
            a(f"v_cvt_pk_bf16_f32 v{x0}, v{x0}, v{x1}")
            a(f"v_and_b32 v{x1}, 0xffff0000, v{x0}"); a(f"v_lshlrev_b32 v{x0}, 16, v{x0}")
            a(f"v_fmac_f32 v{e+2*h}, v{vg}, v{x0}"); a(f"v_fmac_f32 v{e+2*h+1}, v{vg}, v{x1}")
            a(f"v_lshlrev_b32 v{x0}, 16, v{vb2+2*i+h}"); a(f"v_and_b32 v{x1}, 0xffff0000, v{vb2+2*i+h}")
            a(f"v_fmac_f32 v{e+2*h}, v{vg+1}, v{x0}"); a(f"v_fmac_f32 v{e+2*h+1}, v{vg+1}, v{x1}")
    a("s_waitcnt vmcnt(0)")
    a("s_barrier")
    stamp(a, 5, st="p2")
    a(f"s_cmp_lg_u32 s{sWave}, 0"); a(f"s_cbranch_scc1 L_p2{R}_x")
    a(f"s_xor_b32 s{T0}, s2, 128"); a(f"s_lshl_b32 s{T0}, s{T0}, 8"); a(f"s_add_u32 s{T0}, s{T0}, {WS_MB + 12}")
    a(f"v_mov_b32 v{VT}, 1"); a(f"v_mov_b32 v{VT+1}, 0")
    a("s_mov_b64 exec, 1")
    a(f"buffer_store_dword v{VT}, v{VT+1}, s[{SWS}:{SWS+3}], s{T0} offen sc1")
    a("s_mov_b64 exec, -1")
    a(f"s_lshl_b32 s{T3}, s2, 8"); a(f"s_add_u32 s{T3}, s{T3}, {WS_MB + 12}")
    def chkx(ok): a(f"s_cmp_lg_u32 s{U0}, 0"); a(f"s_cbranch_scc1 {ok}")
    poll(a, SWS, T3, chkx, VT)
    a.label(f"L_p2{R}_x")
    a("s_barrier")
    rb = G.F[0][0]
    a(f"s_lshl_b32 s{T0}, s{sTile}, 1"); a(f"s_add_u32 s{T0}, s{T0}, {role}"); a(f"s_lshl_b32 s{T0}, s{T0}, 3")
    a(f"s_add_u32 s{T0}, s{T0}, s{sWave}"); a(f"s_lshl_b32 s{T0}, s{T0}, 12"); a(f"s_add_u32 s{T0}, s{T0}, {WS_XB}")
    for i in range(mp):
        a(f"buffer_load_dwordx4 {vr(rb+4*i,4)}, v{vl16}, s[{SWS}:{SWS+3}], s{T0} offen offset:{i*1024} sc1")
    srd(a, SE, PTR["out"], L * D * 4)
    vo = VT
    a(f"v_lshlrev_b32 v{vo}, 12, v{vt_own}"); a(f"v_lshl_add_u32 v{vo}, v{vd2}, 1, v{vo}")
    for i in range(mp):
        e = accD + 4 * (i * mq)
        a(f"s_waitcnt vmcnt({mp-1})")
        for r in range(4): a(f"v_add_f32 v{e+r}, v{e+r}, v{rb+4*i+r}")
        a(f"buffer_store_dwordx4 {vr(e,4)}, v{vo}, s[{SE}:{SE+3}], 0 offen offset:{64*i}{C.wto}")
    stamp(a, 6)
    stamp(a, 6, st="p2")
    return V.hi, NB * SB

def emit_stamps(a):
    a("s_memrealtime s[88:89]"); a("s_waitcnt lgkmcnt(0)")
    a(f"s_cmp_lg_u32 s{sWave}, {C.stwave}"); a("s_cbranch_scc1 L_end")
    a("s_waitcnt vmcnt(0)")
    for i in range(1, 7): a(f"s_sub_u32 s{92+i}, s{92+i}, s92")
    a("s_mov_b32 s99, s100")
    a("s_nop 0")
    a(f"s_mov_b32 s100, s88")
    for i in range(8): a(f"v_mov_b32 v{12+i}, s{93+i}")
    a(f"s_lshl_b32 s{T0}, s2, 5"); a(f"s_add_u32 s{T0}, s{T0}, {WS_ST}")
    a("v_mov_b32 v11, 0"); a("s_mov_b64 exec, 1")
    a(f"buffer_store_dwordx4 v[12:15], v11, s[{SWS}:{SWS+3}], s{T0} offen")
    a(f"buffer_store_dwordx4 v[16:19], v11, s[{SWS}:{SWS+3}], s{T0} offen offset:16")

HEADER = open("gated_mix__ssm_conv_s5__dense_activation_squared_relu__prompt.s.ref").read().split("; Override launch")[0]

def generate(**kw):
    for k, v in kw.items():
        assert hasattr(C, k), k
        setattr(C, k, v)
    _lbl[0] = 0
    a = Asm()
    kernel_header(a, NAME)
    a("s_cmp_ge_u32 s2, 256"); a("s_cbranch_scc1 L_end")
    a("s_load_dwordx16 s[40:55], s[0:1], 0"); a("s_load_dwordx16 s[56:71], s[0:1], 64"); a("s_load_dwordx4 s[72:75], s[0:1], 128")
    if C.dbgst:
        a("s_memtime s[92:93]"); a("s_memrealtime s[100:101]")
    a("v_lshrrev_b32 v1, 6, v0"); a("v_and_b32 v0, 63, v0"); a(f"v_readfirstlane_b32 s{sWave}, v1")
    a(f"s_and_b32 s{T0}, s2, 7"); a(f"s_lshr_b32 s{T1}, s2, 3")
    a(f"s_lshr_b32 s{sRole}, s{T1}, 4")
    a(f"s_bfe_u32 s{T2}, s{T1}, 0x20002"); a(f"s_and_b32 s{T3}, s{T1}, 3")
    a(f"s_lshr_b32 s{sM}, s{T0}, 2"); a(f"s_lshl_b32 s{sM}, s{sM}, 2"); a(f"s_add_u32 s{sM}, s{sM}, s{T2}")
    a(f"s_and_b32 s{sN}, s{T0}, 3"); a(f"s_lshl_b32 s{sN}, s{sN}, 2"); a(f"s_add_u32 s{sN}, s{sN}, s{T3}")
    mode = C.rot
    if mode is True: mode = 1
    if mode == 1:
        a(f"s_lshl_b32 s{sRot}, s{sRole}, 2"); a(f"s_add_u32 s{sRot}, s{sRot}, s{T3}"); a(f"s_lshl_b32 s{sRot}, s{sRot}, 1")
        a(f"s_lshl_b32 s{T2}, s{T2}, 2"); a(f"s_add_u32 s{sRot}, s{sRot}, s{T2}"); a(f"s_and_b32 s{T0}, s{T0}, 3")
        a(f"s_add_u32 s{sRot}, s{sRot}, s{T0}"); a(f"s_and_b32 s{sRot}, s{sRot}, 15")
    elif mode == 2:
        a(f"s_and_b32 s{sRot}, s{T0}, 3"); a(f"s_lshl_b32 s{sRot}, s{sRot}, 2"); a(f"s_lshr_b32 s{T0}, s{T0}, 2"); a(f"s_lshl_b32 s{T0}, s{T0}, 1")
        a(f"s_add_u32 s{sRot}, s{sRot}, s{T0}"); a(f"s_and_b32 s{sRot}, s{sRot}, 15")
    elif mode == 3:
        a(f"s_and_b32 s{sRot}, s{T0}, 3"); a(f"s_lshl_b32 s{sRot}, s{sRot}, 2"); a(f"s_lshr_b32 s{T0}, s{T0}, 2"); a(f"s_lshl_b32 s{T0}, s{T0}, 3")
        a(f"s_add_u32 s{sRot}, s{sRot}, s{T0}"); a(f"s_xor_b32 s{T2}, s{T2}, s{T3}"); a(f"s_and_b32 s{T2}, s{T2}, 1"); a(f"s_lshl_b32 s{T2}, s{T2}, 3")
        a(f"s_add_u32 s{sRot}, s{sRot}, s{T2}"); a(f"s_and_b32 s{sRot}, s{sRot}, 15")
    elif mode == 4:
        a(f"s_xor_b32 s{T2}, s{T2}, s{T3}"); a(f"s_and_b32 s{T2}, s{T2}, 1"); a(f"s_lshl_b32 s{sRot}, s{T2}, 3")
        a(f"s_and_b32 s{T0}, s{T0}, 3"); a(f"s_lshl_b32 s{T0}, s{T0}, 1"); a(f"s_add_u32 s{sRot}, s{sRot}, s{T0}"); a(f"s_and_b32 s{sRot}, s{sRot}, 15")
    elif mode == 5:
        a(f"s_and_b32 s{sRot}, s{T0}, 3"); a(f"s_lshl_b32 s{sRot}, s{sRot}, 2")
    elif mode == 6:
        a(f"s_lshl_b32 s{sRot}, s{T2}, 2"); a(f"s_and_b32 s{T0}, s{T0}, 3"); a(f"s_add_u32 s{sRot}, s{sRot}, s{T0}"); a(f"s_and_b32 s{sRot}, s{sRot}, 15")
    elif mode == 7:
        a(f"s_lshl_b32 s{sRot}, s{T3}, 2"); a(f"s_and_b32 s{T0}, s{T0}, 3"); a(f"s_add_u32 s{sRot}, s{sRot}, s{T0}"); a(f"s_and_b32 s{sRot}, s{sRot}, 15")
    else:
        a(f"s_mov_b32 s{sRot}, 0")
    if C.dbgst:
        pass
    a(f"s_cmp_eq_u32 s{sRole}, 1"); a("s_cbranch_scc1 L_ssm")
    v1, l1 = phase1_dense(a)
    v2, l2 = phase2(a, 1)
    a("s_branch L_fin")
    a.label("L_ssm")
    v3, l3 = phase1_ssm(a)
    v4, l4 = phase2(a, 0)
    a.label("L_fin")
    if C.dbgst: emit_stamps(a)
    a.label("L_end")
    a("s_endpgm")
    nv = max(v1, v2, v3, v4); lds = max(l1, l2, l3, l4)
    head = HEADER + f"; @launch grid=(256,1,1) block=(512,1,1) lds={lds}\n"
    head += '.amdgcn_target "amdgcn-amd-amdhsa--gfx950"\n.text\n'
    return head + a.text() + '.section .rodata,"a"\n' + kernel_desc(NAME, nv, 102)

if __name__ == "__main__":
    kw = json.loads(sys.argv[2]) if len(sys.argv) > 2 else {}
    open(sys.argv[1], "w").write(generate(**kw))
```

```python
import sys, math, json
from asmlib import *

NAME = "gated_mix__ssm_conv_s5__dense_activation_squared_relu__prompt_kernel"
L, D, P_, F = 2048, 1024, 1024, 3584
KC = 2048 + F
RS_A2 = KC * 2
KA = dict(x=0, lre=8, lim=16, bre=24, bim=32, cre=40, cim=48, ldt=56, dsk=64, bx=72, w1=80, b1=88, w2=96, b2=104, gw=112, out=120, dbg=128, ws=136)
WS_A2 = 0
WS_G = 24 << 20
WS_AGG = WS_G + (1 << 16)
WS_MB = WS_AGG + (1 << 17)
WS_ST = WS_AGG + (1 << 18)
WS_XB = 32 << 20
WS_SIZE = 268435456
LOG2E = 0x3fb8aa3b
INV2PI = 0x3e22f983
PTR = {k: 40 + v // 4 for k, v in KA.items()}
DBG_LB = 0
DBG_CNT = 16
DBG_XF = 32

class Cfg:
    dbgst = False; rot = 4; nodma = False; noread = False; prefetch = True
    nAd = 24
    nBs = 8
    ns = 2
    delta = 3
    wt = " sc1"
    a2ld = " sc1"
    wto = ""
    spin = 300000
    sleep = 2
    early = True
    codepf = True
    pbar = True
    bulk = False
    pflist = [('w1',0),('x',0),('bre',0),('bim',0),('cre',0),('cim',0),('w2',0)]
    pfit = 13
    span = 1.0
    prio = True
    nbq = 3
    stampset = 'main'
    stwave = 0
C = Cfg()

class Regs:
    def __init__(self, start, limit=256):
        self.n = start; self.limit = limit; self.hi = start
    def get(self, k=1, align=1):
        self.n = (self.n + align - 1) // align * align
        r = self.n; self.n += k
        self.hi = max(self.hi, self.n)
        assert self.n <= self.limit, f"out of registers {self.n} > {self.limit}"
        return r

def srd(a, s, ptr_lo, size):
    if s != ptr_lo:
        a(f"s_mov_b32 s{s}, s{ptr_lo}"); a(f"s_mov_b32 s{s+1}, s{ptr_lo+1}")
    a(f"s_mov_b32 s{s+2}, {size}"); a(f"s_mov_b32 s{s+3}, 0x20000")

_lbl = [0]
def newlabel(p):
    _lbl[0] += 1
    return f"L_{p}{_lbl[0]}"

class OpKC:
    def __init__(self, a, V, T, lds_off, nfr, flags=""):
        self.a, self.T, self.lds_off, self.nfr, self.flags = a, T, lds_off, nfr, flags
        self.n = T // 64
        self.vd = V.get(self.n)
        self.b0 = V.get(); self.c0 = V.get(); self.c1 = V.get()
        self.bytes = T * 128
        self.ldsoffs = [j * 1024 for j in range(self.n)]
    def lane_chunk(self, vdst, t):
        a = self.a
        a(f"v_and_b32 v{vdst}, 7, v0"); a(f"v_lshrrev_b32 v{t}, 4, v0")
        a(f"v_xor_b32 v{vdst}, v{vdst}, v{t}"); a(f"v_lshlrev_b32 v{vdst}, 4, v{vdst}")
    def set_voff(self, j, vlane, sRowBytes, xor64, comp=True):
        a = self.a; d = self.vd + j
        src = vlane
        if xor64 is True:
            a(f"v_xor_b32 v{d}, 64, v{vlane}"); src = d
        elif xor64 is not False:
            a(f"v_xor_b32 v{d}, s{xor64}, v{vlane}"); src = d
        a(f"v_add_u32 v{d}, s{sRowBytes}, v{src}")
    def dma(self, sBuf, sK, stmp, sLds, srds, groups=None):
        g = []
        for grp_i in self.groups:
            for n_, j in enumerate(grp_i):
                grp = []
                if n_ == 0:
                    grp.append(f"s_add_u32 s{stmp}, s{sBuf}, s{sLds}")
                    if self.ldsoffs[j]: grp.append(f"s_add_u32 s{stmp}, s{stmp}, {self.ldsoffs[j]}")
                    grp.append(f"s_mov_b32 m0, s{stmp}")
                    grp.append("s_nop 0")
                off = f" offset:{n_*1024}" if n_ else ""
                s = srds[j]
                grp.append(f"buffer_load_dwordx4 v{self.vd+j}, s[{s}:{s+3}], s{sK} offen{off}{self.flags} lds")
                g.append(grp)
        return g
    def count(self): return (self.n, self.n)
    def setup_read(self, sFrag0, tmp, stmp):
        a = self.a; t0, t1, t2 = tmp, tmp + 1, tmp + 2
        a(f"v_and_b32 v{t0}, 15, v0"); a(f"v_lshrrev_b32 v{t1}, 4, v0"); a(f"v_lshrrev_b32 v{t2}, 1, v{t0}")
        a(f"v_xor_b32 v{t1}, v{t1}, v{t2}"); a(f"v_lshlrev_b32 v{t1}, 4, v{t1}")
        a(f"v_lshl_add_u32 v{t0}, v{t0}, 7, v{t1}")
        a(f"s_lshl_b32 s{stmp}, s{sFrag0}, 11")
        if self.lds_off: a(f"s_add_u32 s{stmp}, s{stmp}, {self.lds_off}")
        a(f"v_add_u32 v{self.b0}, s{stmp}, v{t0}")
    def init_cur(self):
        return [f"v_mov_b32 v{self.c0}, v{self.b0}", f"v_xor_b32 v{self.c1}, 64, v{self.b0}"]
    def frag_off(self, i): return i * 2048
    def reads(self, ks, dst):
        if C.noread: return []
        c = self.c1 if ks else self.c0
        return [[f"ds_read_b128 {vr(dst+4*i,4)}, v{c} offset:{self.frag_off(i)}"] for i in range(self.nfr)]
    def upd_A(self, sBuf): return [f"v_add_u32 v{self.c0}, s{sBuf}, v{self.b0}"]
    def upd_B(self, sBuf): return [f"v_xor_b32 v{self.c1}, 64, v{self.c0}"]

class OpNC:
    def __init__(self, a, V, T, lds_off, nfr, RS, NW=8):
        self.a, self.T, self.lds_off, self.nfr, self.RS = a, T, lds_off, nfr, RS
        self.RP = T * 2; self.CH = self.RP // 16
        self.total = self.CH
        self.n = -(-self.total // NW)
        self.even = (self.total % NW == 0)
        self.nbig = NW if self.even else self.total - (self.n - 1) * NW
        self.vd = V.get(self.n)
        np_ = self.RP // 32
        self.gb = 3 if np_ % 8 == 0 else (2 if np_ % 4 == 0 else 1)
        self.nres = min(1 << self.gb, nfr)
        self.base = V.get(self.nres); self.cur = V.get(self.nres)
        self.bytes = 64 * self.RP
    def g_asm(self, vk, vo, t):
        a = self.a
        if self.gb == 3:
            a(f"v_and_b32 v{vo}, 3, v{vk}"); a(f"v_bfe_u32 v{t}, v{vk}, 3, 1"); a(f"v_lshl_or_b32 v{vo}, v{t}, 2, v{vo}")
        elif self.gb == 2:
            a(f"v_bfe_u32 v{vo}, v{vk}, 1, 1"); a(f"v_bfe_u32 v{t}, v{vk}, 3, 1"); a(f"v_lshl_or_b32 v{vo}, v{t}, 1, v{vo}")
        else:
            a(f"v_bfe_u32 v{vo}, v{vk}, 3, 1")
    def idx0(self, sWave, sOut, stmp):
        a = self.a
        if self.even: a(f"s_mul_i32 s{sOut}, s{sWave}, {self.n}")
        else:
            a(f"s_mul_i32 s{sOut}, s{sWave}, {self.n-1}")
            a(f"s_min_u32 s{stmp}, s{sWave}, {self.nbig}")
            a(f"s_add_u32 s{sOut}, s{sOut}, s{stmp}")
    def setup_dma(self, sWave, tmp, sCol0Bytes, stmp):
        a = self.a; t0, t1, t2, t3 = tmp, tmp + 1, tmp + 2, tmp + 3
        self.idx0(sWave, stmp, stmp + 1)
        magic = (1 << 20) // self.CH + 1
        for L_ in range(self.total * 64 + 64):
            assert (L_ * magic) >> 20 == L_ // self.CH
        for j in range(self.n):
            a(f"s_add_u32 s{stmp+1}, s{stmp}, {j}"); a(f"s_lshl_b32 s{stmp+1}, s{stmp+1}, 6")
            a(f"v_add_u32 v{t0}, s{stmp+1}, v0")
            if self.CH & (self.CH - 1) == 0:
                a(f"v_lshrrev_b32 v{t1}, {int(math.log2(self.CH))}, v{t0}")
                a(f"v_and_b32 v{t0}, {self.CH-1}, v{t0}")
            else:
                a(f"v_mul_u32_u24 v{t1}, {magic}, v{t0}"); a(f"v_lshrrev_b32 v{t1}, 20, v{t1}")
                a(f"v_mul_u32_u24 v{t2}, {self.CH}, v{t1}"); a(f"v_sub_u32 v{t0}, v{t0}, v{t2}")
            self.g_asm(t1, t2, t3)
            a(f"v_lshlrev_b32 v{t2}, 1, v{t2}"); a(f"v_xor_b32 v{t0}, v{t0}, v{t2}")
            a(f"v_mul_u32_u24 v{t1}, {self.RS}, v{t1}")
            a(f"v_lshl_add_u32 v{t0}, v{t0}, 4, v{t1}")
            if j % 4: a(f"s_sub_u32 s{stmp+1}, s{sCol0Bytes}, {(j%4)*1024}"); a(f"v_add_u32 v{self.vd+j}, s{stmp+1}, v{t0}")
            else: a(f"v_add_u32 v{self.vd+j}, s{sCol0Bytes}, v{t0}")
    def setup_lds(self, sWave, sLds, stmp):
        self.idx0(sWave, sLds, stmp)
        self.a(f"s_lshl_b32 s{sLds}, s{sLds}, 10")
        if self.lds_off: self.a(f"s_add_u32 s{sLds}, s{sLds}, {self.lds_off}")
    def dma(self, sBuf, sK, stmp, sLds, srds, sWave=None):
        g = []
        s = srds
        for j in range(self.n):
            grp = []
            guard = (not self.even) and j == self.n - 1
            if guard:
                lbl = newlabel("ncs")
                grp += [f"s_cmp_lt_u32 s{sWave}, {self.nbig}", f"s_cbranch_scc0 {lbl}"]
            if j % 4 == 0:
                grp.append(f"s_add_u32 s{stmp}, s{sBuf}, s{sLds}")
                if j: grp.append(f"s_add_u32 s{stmp}, s{stmp}, {j*1024}")
                grp += [f"s_mov_b32 m0, s{stmp}", "s_nop 0"]
            off = f" offset:{(j%4)*1024}" if j % 4 else ""
            grp.append(f"buffer_load_dwordx4 v{self.vd+j}, s[{s}:{s+3}], s{sK} offen{off} lds")
            if guard: grp.append(f"{lbl}:")
            g.append(grp)
        return g
    def count(self): return (self.n if self.even else self.n - 1, self.n)
    def setup_read(self, sFrag0, tmp, stmp):
        a = self.a; t0, t1, t2 = tmp, tmp + 1, tmp + 2
        a(f"v_lshrrev_b32 v{t0}, 4, v0"); a(f"v_lshlrev_b32 v{t0}, 3, v{t0}")
        a(f"v_bfe_u32 v{t1}, v0, 2, 2"); a(f"v_add_u32 v{t0}, v{t0}, v{t1}")
        self.g_asm(t0, t1, t2)
        a(f"v_mul_u32_u24 v{t0}, {self.RP}, v{t0}")
        a(f"v_and_b32 v{t2}, 3, v0"); a(f"v_lshl_add_u32 v{t0}, v{t2}, 3, v{t0}")
        if self.lds_off: a(f"v_add_u32 v{t0}, {self.lds_off}, v{t0}")
        for r in range(self.nres):
            a(f"s_add_u32 s{stmp}, s{sFrag0}, {r}")
            a(f"v_xor_b32 v{t2}, s{stmp}, v{t1}")
            if r: a(f"v_subrev_u32 v{t2}, {r}, v{t2}")
            a(f"v_lshl_add_u32 v{self.base+r}, v{t2}, 5, v{t0}")
    def init_cur(self):
        return [f"v_mov_b32 v{self.cur+r}, v{self.base+r}" for r in range(self.nres)]
    def reads(self, ks, dst):
        if C.noread: return []
        g = []
        for i in range(self.nfr):
            r = i % (1 << self.gb)
            for h in range(2):
                off = 32 * i + (4 * h + 32 * ks) * self.RP
                g.append([f"ds_read_b64_tr_b16 {vr(dst+4*i+2*h,2)}, v{self.cur+r} offset:{off}"])
        return g
    def upd_A(self, sBuf): return [f"v_add_u32 v{self.cur+r}, s{sBuf}, v{self.base+r}" for r in range(self.nres)]
    def upd_B(self, sBuf): return []

class Seg:
    def __init__(self, P, Q, acc, Pdma, Qdma, kadvP, kadvQ, name):
        self.P, self.Q, self.acc, self.Pdma, self.Qdma, self.kadvP, self.kadvQ, self.name = P, Q, acc, Pdma, Qdma, kadvP, kadvQ, name
        self.xdma = []

class Gemm:
    def __init__(self, a, V, NBP, NBQ, SP, SQ, mp, mq, regs, joint, early=None):
        self.a, self.NBP, self.NBQ, self.SP, self.SQ, self.mp, self.mq, self.joint = a, NBP, NBQ, SP, SQ, mp, mq, joint
        self.sDP, self.sRP, self.sDQ, self.sRQ, self.sCnt, self.sE = regs
        if joint: self.sDQ, self.sRQ = self.sDP, self.sRP
        self.early = early if C.early else None
        self.leadP = NBP - (1 if self.early == 'P' else 0)
        self.leadQ = NBQ - (1 if self.early == 'Q' else 0)
        self.F = []
        for s in range(2):
            p = V.get(4 * mp, 2); q = V.get(4 * mq, 2)
            self.F.append((p, q))
        self.vmq = []
    def emit(self, lines):
        for x in lines:
            if x.endswith(":"): self.a.label(x[:-1])
            else: self.a(x)
    def note(self, tag, n): self.vmq.append((tag, n))
    def vm_allow(self, need):
        last = -1
        for i, (t, n) in enumerate(self.vmq):
            if t in need: last = i
        return min(63, sum(n for t, n in self.vmq[last + 1:]))
    def reads(self, seg, ks, fs):
        p, q = self.F[fs]
        return merge(seg.P.reads(ks, p), seg.Q.reads(ks, q))
    def mfmas(self, seg, fs):
        p, q = self.F[fs]
        return [f"v_mfma_f32_16x16x32_bf16 {vr(c,4)}, {vr(p+4*i,4)}, {vr(q+4*j,4)}, {vr(c,4)}"
                for i in range(self.mp) for j in range(self.mq) for c in [seg.acc + 4 * (i * self.mq + j)]]
    def spread(self, main, fill):
        n = len(main); k = len(fill)
        if k == 0: return list(main)
        span = max(1, min(n, int(n * C.span)))
        out = []; fi = 0
        for i, m in enumerate(main):
            out.append(m)
            while fi < k and (fi * span) // k <= i:
                out.extend(fill[fi]); fi += 1
        while fi < k: out.extend(fill[fi]); fi += 1
        return out
    def ring_adv(self, sD, sR, stride, nb):
        return [f"s_mov_b32 s{sD}, s{sR}", f"s_add_u32 s{sR}, s{sR}, {stride}", f"s_cmp_eq_u32 s{sR}, {stride*nb}", f"s_cselect_b32 s{sR}, 0, s{sR}"]
    def advance(self):
        out = []
        if self.early: out.append(f"s_mov_b32 s{self.sE}, s{self.sDP if (self.joint or self.early == 'P') else self.sDQ}")
        if self.joint: return out + self.ring_adv(self.sDP, self.sRP, self.SP + self.SQ, self.NBP)
        return out + self.ring_adv(self.sDP, self.sRP, self.SP, self.NBP) + self.ring_adv(self.sDQ, self.sRQ, self.SQ, self.NBQ)
    def dma_list(self, which, seg, sBuf):
        if seg is None or C.nodma: return []
        if which == 'P': return seg.Pdma(sBuf) + [list(seg.kadvP)]
        return seg.Qdma(sBuf) + [list(seg.kadvQ)] + seg.xdma
    def body(self, cur, nxt, dP, dQ, vmw, pre_barrier=None, extra=None):
        a = self.a
        self.emit(self.advance())
        a("s_waitcnt lgkmcnt(0)")
        fill = self.reads(cur, 1, 1)
        if nxt is not None: fill.append(nxt.P.upd_A(self.sRP) + nxt.Q.upd_A(self.sRQ))
        if self.early == 'P': fill = merge(fill, self.dma_list('P', dP, self.sE))
        if self.early == 'Q': fill = merge(fill, self.dma_list('Q', dQ, self.sE))
        if nxt is None and extra: fill = fill + extra
        self.emit(self.spread(self.mfmas(cur, 0), fill))
        if nxt is None:
            a("s_waitcnt lgkmcnt(0)")
            self.emit(self.mfmas(cur, 1))
            return
        if pre_barrier: pre_barrier()
        a(f"s_waitcnt vmcnt({vmw}) lgkmcnt(0)")
        a("s_barrier")
        if C.prio: a("s_setprio 1")
        fill = self.reads(nxt, 0, 0)
        d = []
        if self.early != 'P': d += self.dma_list('P', dP, self.sDP)
        if self.early != 'Q': d += self.dma_list('Q', dQ, self.sDQ)
        fill = merge(fill, d)
        u = nxt.P.upd_B(self.sRP) + nxt.Q.upd_B(self.sRQ)
        if u: fill.append(u)
        if extra: fill = fill + extra
        self.emit(self.spread(self.mfmas(cur, 1), fill))
        if C.prio: a("s_setprio 0")
    def prologue(self, stages, which="PQ", first=0, last=None):
        a = self.a
        stride = self.SP + self.SQ if self.joint else None
        if first == 0:
            a(f"s_mov_b32 s{self.sDP}, 0")
            if not self.joint: a(f"s_mov_b32 s{self.sDQ}, 0")
        for s in range(first, max(self.leadP, self.leadQ) if last is None else last):
            if "P" in which and s < self.leadP:
                for g in stages[s].Pdma(self.sDP): self.emit(g)
                self.emit(stages[s].kadvP); self.note(('P', s), stages[s].P.count()[0])
                if not self.joint: a(f"s_add_u32 s{self.sDP}, s{self.sDP}, {self.SP}")
            if "Q" in which and s < self.leadQ:
                for g in stages[s].Qdma(self.sDQ): self.emit(g)
                self.emit(stages[s].kadvQ); self.note(('Q', s), stages[s].Q.count()[0])
                if not self.joint: a(f"s_add_u32 s{self.sDQ}, s{self.sDQ}, {self.SQ}")
            if self.joint: a(f"s_add_u32 s{self.sDP}, s{self.sDP}, {stride}")
    def run(self, stages, hooks=None, extras=None, post_first=None):
        a = self.a; N = len(stages)
        hooks = hooks or {}; extras = extras or {}
        a(f"s_waitcnt vmcnt({self.vm_allow({('P',0),('Q',0)})})")
        if getattr(self, "pre_first", None): self.pre_first()
        a("s_barrier")
        if post_first: post_first()
        seen = []
        for sg in stages:
            for op in (sg.P, sg.Q):
                if op not in seen: seen.append(op); self.emit(op.init_cur())
        if self.joint:
            a(f"s_mov_b32 s{self.sRP}, 0"); a(f"s_mov_b32 s{self.sDP}, {(self.SP+self.SQ)*(self.NBP-1)}")
        else:
            a(f"s_mov_b32 s{self.sRP}, 0"); a(f"s_mov_b32 s{self.sDP}, {self.SP*(self.NBP-1)}")
            a(f"s_mov_b32 s{self.sRQ}, 0"); a(f"s_mov_b32 s{self.sDQ}, {self.SQ*(self.NBQ-1)}")
        for g in self.reads(stages[0], 0, 0): self.emit(g)
        sigs = []
        for i in range(N):
            nxt = stages[i + 1] if i + 1 < N else None
            dP = stages[i + self.leadP] if i + self.leadP < N else None
            dQ = stages[i + self.leadQ] if i + self.leadQ < N else None
            def noteP():
                if dP is not None: self.note(('P', i + self.leadP), dP.P.count()[0])
            def noteQ():
                if dQ is not None:
                    self.note(('Q', i + self.leadQ), dQ.Q.count()[0])
                    if dQ.xdma: self.note(('PF', i), len(dQ.xdma))
            if self.early == 'P': noteP()
            if self.early == 'Q': noteQ()
            vmw = self.vm_allow({('P', i + 1), ('Q', i + 1)}) if nxt is not None else 0
            if self.early != 'P': noteP()
            if self.early != 'Q': noteQ()
            if i in extras: self.note(('X', i), extras[i][1])
            sigs.append((stages[i], nxt, dP, dQ, vmw, i if (i in hooks or i in extras) else -1))
        i = 0
        while i < N:
            j = i
            while j < N and sigs[j] == sigs[i]: j += 1
            cnt = j - i
            cur, nxt, dP, dQ, vmw, sp = sigs[i]
            hk = hooks.get(sp); ex = extras[sp][0] if sp in extras else None
            if cnt >= 2:
                lbl = newlabel("gl")
                a(f"s_mov_b32 s{self.sCnt}, {cnt}")
                a.label(lbl)
                self.body(cur, nxt, dP, dQ, vmw)
                a(f"s_sub_u32 s{self.sCnt}, s{self.sCnt}, 1"); a(f"s_cmp_lg_u32 s{self.sCnt}, 0"); a(f"s_cbranch_scc1 {lbl}")
            else:
                self.body(cur, nxt, dP, dQ, vmw, hk, ex)
            i = j

def merge(x, y):
    out = []; i = j = 0
    while i < len(x) or j < len(y):
        if j >= len(y) or (i < len(x) and i * len(y) <= j * len(x)): out.append(x[i]); i += 1
        else: out.append(y[j]); j += 1
    return out

def bf16_round(a, vdst, vsrc):
    a(f"v_cvt_pk_bf16_f32 v{vdst}, v{vsrc}, v{vsrc}"); a(f"v_lshlrev_b32 v{vdst}, 16, v{vdst}")

def stamp(a, idx, real=False, st="main"):
    if C.dbgst and (real or st == C.stampset):
        a("s_memrealtime s[88:89]" if real else "s_memtime s[88:89]")
        a("s_waitcnt lgkmcnt(0)")
        a(f"s_mov_b32 s{92+idx}, s88")

sWave, sM, sN, sRole = 28, 29, 30, 31
sBufD, sBufR, sCnt, sTmp, sKP, sKQ, sLdsP, sLdsQ = 32, 33, 34, 35, 36, 37, 38, 39
sWp, sWq, sRot, sLdsP2, sKP2, sTile, sTt, sDt = 80, 81, 82, 83, 84, 85, 86, 87
SX, SA, SB_, SWS, SDBG, SS = 4, 8, 12, 16, 20, 24
T0, T1, T2, T3 = 76, 77, 78, 79
U0, U1, U2, U3 = 88, 89, 90, 91
VT = 2

def ssm_param_loads(a, vch, t):
    a(f"v_lshlrev_b32 v{t}, 1, v{vch}")
    for k, name in enumerate(("lre", "lim", "ldt")):
        srd(a, SS, PTR[name], 2048)
        a(f"buffer_load_ushort v{t+1+k}, v{t}, s[{SS}:{SS+3}], 0 offen")

def ssm_params_compute(a, out, t, want_kappa=True):
    lre, lim, ldt = t + 1, t + 2, t + 3
    x0, x1, x2, x3 = t + 4, t + 5, t + 6, t + 7
    lr, li, kr, ki = out, out + 1, out + 2, out + 3
    for r in (lre, lim, ldt): a(f"v_lshlrev_b32 v{r}, 16, v{r}")
    a(f"v_mul_f32 v{x0}, {LOG2E:#x}, v{ldt}"); a(f"v_exp_f32 v{x0}, v{x0}"); a("s_nop 0")
    bf16_round(a, x0, x0)
    a(f"v_mul_f32 v{x1}, v{x0}, v{lre}"); a(f"v_mul_f32 v{x2}, v{x0}, v{lim}")
    a(f"v_mul_f32 v{x1}, {LOG2E:#x}, v{x1}"); a(f"v_exp_f32 v{x1}, v{x1}")
    a(f"v_mul_f32 v{x2}, {INV2PI:#x}, v{x2}"); a(f"v_rndne_f32 v{x3}, v{x2}"); a(f"v_sub_f32 v{x2}, v{x2}, v{x3}")
    a(f"v_cos_f32 v{x3}, v{x2}"); a(f"v_sin_f32 v{x2}, v{x2}"); a("s_nop 0")
    a(f"v_mul_f32 v{lr}, v{x1}, v{x3}"); a(f"v_mul_f32 v{li}, v{x1}, v{x2}")
    if want_kappa:
        a(f"v_subrev_f32 v{x0}, 1.0, v{lr}")
        a(f"v_mul_f32 v{x1}, v{x0}, v{lre}"); a(f"v_fmac_f32 v{x1}, v{li}, v{lim}")
        a(f"v_mul_f32 v{x2}, v{li}, v{lre}"); a(f"v_fma_f32 v{x2}, -v{x0}, v{lim}, v{x2}")
        a(f"v_mul_f32 v{x3}, v{lre}, v{lre}"); a(f"v_fmac_f32 v{x3}, v{lim}, v{lim}")
        a(f"v_rcp_f32 v{x3}, v{x3}"); a("s_nop 0")
        a(f"v_add_f32 v{x3}, v{x3}, v{x3}")
        a(f"v_mul_f32 v{kr}, v{x1}, v{x3}"); a(f"v_mul_f32 v{ki}, v{x2}, v{x3}")

def csq(a, dr, di, sr_, si, t):
    a(f"v_mul_f32 v{t}, v{sr_}, v{si}"); a(f"v_mul_f32 v{dr}, v{sr_}, v{sr_}")
    a(f"v_fma_f32 v{dr}, -v{si}, v{si}, v{dr}"); a(f"v_add_f32 v{di}, v{t}, v{t}")

def gate_row_loads(a, sRow, vx, t):
    a(f"s_lshl_b32 s{U1}, s{sRow}, 11")
    a(f"buffer_load_dwordx4 {vr(vx,4)}, v{t}, s[{SX}:{SX+3}], s{U1} offen")
    a(f"buffer_load_dwordx4 {vr(vx+4,4)}, v{t}, s[{SX}:{SX+3}], s{U1} offen offset:16")

def gate_compute(a, sRow, vx, vw, t):
    acc = t; p0, p1, q0, q1 = t + 1, t + 2, t + 3, t + 4
    a(f"v_mov_b32 v{acc}, 0")
    for d in range(8):
        a(f"v_lshlrev_b32 v{p0}, 16, v{vx+d}"); a(f"v_and_b32 v{p1}, 0xffff0000, v{vx+d}")
        a(f"v_lshlrev_b32 v{q0}, 16, v{vw+d}"); a(f"v_and_b32 v{q1}, 0xffff0000, v{vw+d}")
        a(f"v_mul_f32 v{p0}, v{p0}, v{q0}"); a(f"v_mul_f32 v{p1}, v{p1}, v{q1}")
        a(f"v_cvt_pk_bf16_f32 v{p0}, v{p0}, v{p1}")
        a(f"v_and_b32 v{p1}, 0xffff0000, v{p0}"); a(f"v_lshlrev_b32 v{p0}, 16, v{p0}")
        a(f"v_add_f32 v{acc}, v{acc}, v{p0}"); a(f"v_add_f32 v{acc}, v{acc}, v{p1}")
    for sh in (1, 2, 4, 8):
        a("s_nop 1")
        a(f"v_add_f32_dpp v{acc}, v{acc}, v{acc} row_shr:{sh} row_mask:0xf bank_mask:0xf bound_ctrl:0")
    a("s_nop 1")
    a(f"v_add_f32_dpp v{acc}, v{acc}, v{acc} row_bcast:15 row_mask:0xa bank_mask:0xf")
    a("s_nop 1")
    a(f"v_add_f32_dpp v{acc}, v{acc}, v{acc} row_bcast:31 row_mask:0xc bank_mask:0xf")
    a("s_nop 1")
    a(f"v_readlane_b32 s{U0}, v{acc}, 63")
    a("s_nop 1")
    a(f"v_mov_b32 v{acc}, s{U0}")
    bf16_round(a, acc, acc)
    a(f"v_mul_f32 v{p0}, {LOG2E ^ 0x80000000:#x}, v{acc}"); a(f"v_exp_f32 v{p0}, v{p0}"); a("s_nop 0")
    a(f"v_add_f32 v{p0}, 1.0, v{p0}"); a(f"v_rcp_f32 v{p0}, v{p0}"); a("s_nop 0")
    bf16_round(a, p0, p0)
    a(f"v_sub_f32 v{p1}, 1.0, v{p0}")
    bf16_round(a, p1, p1)
    a(f"s_lshl_b32 s{U0}, s{sRow}, 3"); a(f"s_add_u32 s{U0}, s{U0}, {WS_G}")
    a(f"v_cmp_eq_u32 vcc, 0, v0"); a("s_nop 1")
    a(f"v_cndmask_b32 v{p0}, v{p1}, v{p0}, vcc")
    a(f"v_lshlrev_b32 v{q0}, 2, v0")
    a("s_mov_b64 exec, 3")
    a(f"buffer_store_dword v{p0}, v{q0}, s[{SWS}:{SWS+3}], s{U0} offen sc1")
    a("s_mov_b64 exec, -1")

def mb_zero_issue(a, vt):
    sk = newlabel("mz")
    a(f"s_cmp_lg_u32 s{sWave}, 0"); a(f"s_cbranch_scc1 {sk}")
    a(f"v_mov_b32 v{vt}, 0"); a(f"v_lshlrev_b32 v{vt+1}, 2, v0")
    a(f"s_lshl_b32 s{U0}, s2, 8"); a(f"s_add_u32 s{U0}, s{U0}, {WS_MB}")
    a("s_mov_b64 exec, 15")
    a(f"buffer_store_dword v{vt}, v{vt+1}, s[{SWS}:{SWS+3}], s{U0} offen sc1")
    a("s_mov_b64 exec, -1")
    a.label(sk)

def init_signal(a, vt):
    sk = newlabel("mi")
    a(f"s_cmp_lg_u32 s{sWave}, 0"); a(f"s_cbranch_scc1 {sk}")
    a(f"v_mov_b32 v{vt}, 1"); a(f"v_mov_b32 v{vt+1}, 0")
    a("s_mov_b64 exec, 1")
    a(f"buffer_atomic_add v{vt}, v{vt+1}, s[{SDBG}:{SDBG+3}], 0 offen sc1")
    a("s_mov_b64 exec, -1")
    a.label(sk)

def poll(a, srd_, sByteOff, check, vt, wide=1, sleep=None):
    lp, ok = newlabel("poll"), newlabel("pok")
    a(f"v_mov_b32 v{vt+4}, s{sByteOff}")
    a(f"s_mov_b32 s{U2}, {C.spin}")
    a.label(lp)
    a(f"s_sub_u32 s{U2}, s{U2}, 1"); a(f"s_cmp_eq_u32 s{U2}, 0"); a(f"s_cbranch_scc1 {ok}")
    op = {1: "dword", 2: "dwordx2", 4: "dwordx4"}[wide]
    a(f"buffer_load_{op} {vr(vt,wide)}, v{vt+4}, s[{srd_}:{srd_+3}], 0 offen sc1")
    a("s_waitcnt vmcnt(0)")
    a(f"v_readfirstlane_b32 s{U0}, v{vt}")
    if wide >= 2: a(f"v_readfirstlane_b32 s{U1}, v{vt+1}")
    if wide >= 4: a(f"v_readfirstlane_b32 s{U3}, v{vt+2}")
    a("s_nop 3")
    check(ok)
    a(f"s_sleep {C.sleep if sleep is None else sleep}")
    a(f"s_branch {lp}")
    a.label(ok)

VINIT = 1
def init_load(a):
    sk = newlabel("il")
    a(f"s_cmp_lg_u32 s{sWave}, 0"); a(f"s_cbranch_scc1 {sk}")
    a(f"v_mov_b32 v{VINIT}, 0")
    a(f"buffer_load_dword v{VINIT}, v{VINIT}, s[{SDBG}:{SDBG+3}], 0 offen sc1")
    a.label(sk)

def init_check(a, vt):
    ok = newlabel("ic")
    a(f"v_readfirstlane_b32 s{U0}, v{VINIT}"); a("s_nop 3")
    a(f"s_cmp_ge_u32 s{U0}, 256"); a(f"s_cbranch_scc1 {ok}")
    a(f"s_mov_b32 s{T3}, 0")
    def chk(o): a(f"s_cmp_ge_u32 s{U0}, 256"); a(f"s_cbranch_scc1 {o}")
    poll(a, SDBG, T3, chk, vt, sleep=32)
    a.label(ok)

def poll_own(a, check, vt):
    a(f"s_lshl_b32 s{T3}, s2, 8"); a(f"s_add_u32 s{T3}, s{T3}, {WS_MB}")
    poll(a, SWS, T3, check, vt, wide=4)

def signal_cnt(a, dword, vt):
    NS = C.ns; XS = 8 // NS
    l, t1, t2 = vt, vt + 1, vt + 2
    t3 = vt + 3
    if NS == 2:
        a(f"v_bfe_u32 v{t1}, v0, 3, 1"); a(f"s_lshl_b32 s{T0}, s{sM}, 1"); a(f"v_add_u32 v{t1}, s{T0}, v{t1}")
        a(f"v_bfe_u32 v{t3}, v0, 4, 1")
    else:
        a(f"v_mov_b32 v{t1}, s{sM}")
        a(f"v_bfe_u32 v{t3}, v0, 3, 2")
    a(f"v_lshrrev_b32 v{t2}, 2, v{t1}"); a(f"v_mad_u32_u24 v{t2}, v{t3}, {XS}, v{t2}")
    a(f"v_and_b32 v{t1}, 3, v{t1}"); a(f"v_lshlrev_b32 v{t1}, 2, v{t1}")
    a(f"v_and_b32 v{l}, 3, v0"); a(f"v_or_b32 v{t1}, v{t1}, v{l}")
    a(f"v_bfe_u32 v{l}, v0, 2, 1"); a(f"v_and_b32 v{t3}, 1, v{t3}"); a(f"v_xor_b32 v{l}, v{l}, v{t3}"); a(f"v_xor_b32 v{l}, 1, v{l}")
    a(f"v_lshl_or_b32 v{t1}, v{l}, 4, v{t1}")
    a(f"v_lshl_or_b32 v{t1}, v{t1}, 3, v{t2}")
    a(f"v_lshlrev_b32 v{t1}, 8, v{t1}")
    a(f"v_mov_b32 v{l}, 1")
    a(f"s_mov_b32 s{T0}, {WS_MB + 4*dword}")
    a("s_mov_b32 exec_hi, 0")
    a(f"buffer_atomic_add v{l}, v{t1}, s[{SWS}:{SWS+3}], s{T0} offen sc1")
    a("s_mov_b64 exec, -1")

def bulk_prefetch(a, G, vdummy, vaddr):
    a(f"v_lshlrev_b32 v{vaddr}, 4, v0")
    n = 0
    for name, size in C.pflist:
        size = {"x": L*D*2, "w1": D*F*2, "bre": P_*D*2, "bim": P_*D*2, "cre": D*P_*2, "cim": D*P_*2, "w2": F*D*2}[name]
        share = size // 256; pw = share // 8
        a(f"s_mul_i32 s{U0}, s2, {share}"); a(f"s_mul_i32 s{U1}, s{sWave}, {pw}"); a(f"s_add_u32 s{U0}, s{U0}, s{U1}")
        a(f"s_mov_b32 s{SS}, s{PTR[name]}"); a(f"s_mov_b32 s{SS+1}, s{PTR[name]+1}")
        a(f"s_add_u32 s{SS+2}, s{U0}, {pw}"); a(f"s_mov_b32 s{SS+3}, 0x20000")
        for i in range(-(-pw // 1024)):
            a(f"buffer_load_dwordx4 {vr(vdummy,4)}, v{vaddr}, s[{SS}:{SS+3}], s{U0} offen offset:{i*1024}")
            n += 1
    G.note('pf', n)

def phase1_dense(a):
    V = Regs(10)
    TP, TQ = 224, 256
    mp, mq = 7, 4
    Pop = OpNC(a, V, TP, 0, mp, F * 2)
    NBQ = C.nbq
    Qop = OpKC(a, V, TQ, 2 * Pop.bytes, mq); Qop.groups = [[0, 1, 2, 3]]
    G = Gemm(a, V, 2, NBQ, Pop.bytes, Qop.bytes, mp, mq, (sBufD, sBufR, sTile, sTt, sCnt, sRole), False, 'Q')
    LDS1 = 2 * Pop.bytes + NBQ * Qop.bytes
    acc = V.get(4 * mp * mq, 2)
    vb = V.get(2 * mp, 2); vdum = V.get(4, 2)
    a(f"s_lshr_b32 s{sWp}, s{sWave}, 2"); a(f"s_and_b32 s{sWq}, s{sWave}, 3")
    a(f"s_mul_i32 s{T0}, s{sN}, {TP*2}")
    Pop.setup_dma(sWave, VT, T0, U0)
    Qop.lane_chunk(VT, VT + 1)
    a(f"v_lshrrev_b32 v{VT+1}, 3, v0"); a(f"v_lshl_add_u32 v{VT}, v{VT+1}, 11, v{VT}")
    for j in range(4):
        a(f"s_lshl_b32 s{T0}, s{sM}, 8"); a(f"s_lshl_b32 s{T1}, s{sWave}, 5"); a(f"s_add_u32 s{T0}, s{T0}, s{T1}")
        a(f"s_add_u32 s{T0}, s{T0}, {8*j}"); a(f"s_lshl_b32 s{T0}, s{T0}, 11"); a(f"s_sub_u32 s{T0}, s{T0}, {j*1024}")
        Qop.set_voff(j, VT, T0, bool(j & 1))
    Pop.setup_lds(sWave, sLdsP, U0)
    a(f"s_lshl_b32 s{sLdsQ}, s{sWave}, 12"); a(f"s_add_u32 s{sLdsQ}, s{sLdsQ}, {Qop.lds_off}")
    a(f"s_mul_i32 s{sKP}, s{sRot}, {64*F*2}"); a(f"s_lshl_b32 s{sKQ}, s{sRot}, 7")
    a("s_waitcnt lgkmcnt(0)")
    stamp(a, 1, st="pro")
    srd(a, SX, PTR["x"], L * D * 2); srd(a, SWS, PTR["ws"], WS_SIZE); srd(a, SDBG, PTR["dbg"], 256)
    srd(a, SA, PTR["w1"], D * F * 2)
    kadvP = [f"s_add_u32 s{sKP}, s{sKP}, {64*F*2}", f"s_cmp_eq_u32 s{sKP}, {D*F*2}", f"s_cselect_b32 s{sKP}, 0, s{sKP}"]
    kadvQ = [f"s_add_u32 s{sKQ}, s{sKQ}, 128", f"s_and_b32 s{sKQ}, s{sKQ}, 2047"]
    seg = Seg(Pop, Qop, acc, lambda b: Pop.dma(b, sKP, sTmp, sLdsP, SA, sWave), lambda b: Qop.dma(b, sKQ, sTmp, sLdsQ, [SX] * 4), kadvP, kadvQ, "d1")
    stages = [seg] * 16
    G.prologue(stages, "PQ", 0, 1)
    if C.pbar: a("s_barrier")
    stamp(a, 2, st="pro")
    a(f"s_mul_i32 s{T2}, s{sN}, {TP}"); a(f"s_mul_i32 s{T3}, s{sWp}, {mp*16}"); a(f"s_add_u32 s{T2}, s{T2}, s{T3}")
    a(f"s_lshl_b32 s{T3}, s{T2}, 1")
    a(f"v_lshrrev_b32 v{VT+2}, 4, v0"); a(f"v_lshlrev_b32 v{VT+2}, 3, v{VT+2}")
    srd(a, SS, PTR["b1"], F * 2)
    for i in range(mp):
        a(f"buffer_load_dwordx2 {vr(vb+2*i,2)}, v{VT+2}, s[{SS}:{SS+3}], s{T3} offen offset:{32*i}")
    G.note('misc', mp)
    a(f"s_mul_i32 s{T0}, s{sWp}, {mp}"); Pop.setup_read(T0, VT, U0)
    a(f"s_mul_i32 s{T0}, s{sWq}, {mq}"); Qop.setup_read(T0, VT, U0)
    stamp(a, 3, st="pro")
    G.prologue(stages, "PQ", 1)
    mb_zero_issue(a, VT + 4)
    stamp(a, 4, st="pro")
    a(f"s_waitcnt vmcnt({G.vm_allow({'misc'})})")
    for i in range(mp):
        c = acc + 4 * (i * mq)
        a(f"v_lshlrev_b32 v{c}, 16, v{vb+2*i}"); a(f"v_and_b32 v{c+1}, 0xffff0000, v{vb+2*i}")
        a(f"v_lshlrev_b32 v{c+2}, 16, v{vb+2*i+1}"); a(f"v_and_b32 v{c+3}, 0xffff0000, v{vb+2*i+1}")
        for j in range(1, mq):
            for r in range(4): a(f"v_mov_b32 v{c+4*j+r}, v{c+r}")
    stamp(a, 1)
    G.pre_first = lambda: stamp(a, 5, st="pro")
    G.run(stages, {2: (lambda: init_signal(a, VT + 4))}, None, (lambda: stamp(a, 6, st="pro")))
    stamp(a, 2)
    PITCH = 464
    stamp(a, 1, st="dense")
    init_load(a)
    vw = VT
    a(f"v_and_b32 v{vw}, 15, v0"); a(f"v_mul_u32_u24 v{vw}, {PITCH}, v{vw}")
    a(f"v_lshrrev_b32 v{VT+1}, 4, v0"); a(f"v_lshl_add_u32 v{vw}, v{VT+1}, 3, v{vw}")
    a(f"s_mul_i32 s{T0}, s{sWq}, {64*PITCH}"); a(f"s_mul_i32 s{T1}, s{sWp}, 224"); a(f"s_add_u32 s{T0}, s{T0}, s{T1}")
    a(f"v_add_u32 v{vw}, s{T0}, v{vw}")
    vr_, vg_ = VT + 1, VT + 2
    a(f"v_cmp_le_u32 vcc, 28, v0"); a("s_nop 1")
    a(f"v_cndmask_b32 v{VT+3}, 0, 1, vcc")
    a(f"v_mul_u32_u24 v{VT+4}, 28, v{VT+3}"); a(f"v_sub_u32 v{VT+4}, v0, v{VT+4}")
    a(f"v_lshlrev_b32 v{VT+4}, 4, v{VT+4}")
    a(f"v_mul_u32_u24 v{vr_}, {PITCH}, v{VT+3}"); a(f"v_add_u32 v{vr_}, v{vr_}, v{VT+4}")
    a(f"s_mul_i32 s{T0}, s{sWq}, {64*PITCH}"); a(f"s_mul_i32 s{T1}, s{sWp}, {32*PITCH}"); a(f"s_add_u32 s{T0}, s{T0}, s{T1}")
    a(f"v_add_u32 v{vr_}, s{T0}, v{vr_}")
    a(f"v_mul_u32_u24 v{vg_}, {RS_A2}, v{VT+3}"); a(f"v_add_u32 v{vg_}, v{vg_}, v{VT+4}")
    a(f"s_lshl_b32 s{T0}, s{sM}, 8"); a(f"s_lshl_b32 s{T1}, s{sWq}, 6"); a(f"s_add_u32 s{T0}, s{T0}, s{T1}")
    a(f"s_lshl_b32 s{T1}, s{sWp}, 5"); a(f"s_add_u32 s{T0}, s{T0}, s{T1}")
    a(f"s_mul_i32 s{T0}, s{T0}, {RS_A2}"); a(f"s_mul_i32 s{T1}, s{sN}, 448"); a(f"s_add_u32 s{T0}, s{T0}, s{T1}")
    a(f"s_add_u32 s{T0}, s{T0}, {WS_A2 + 4096}")
    for j in range(mq):
        for i in range(mp):
            c = acc + 4 * (i * mq + j)
            for r in range(4): a(f"v_mul_f32_e64 v{c+r}, v{c+r}, |v{c+r}|")
            a(f"v_cvt_pk_bf16_f32 v{c}, v{c}, v{c+1}"); a(f"v_cvt_pk_bf16_f32 v{c+1}, v{c+2}, v{c+3}")
            a(f"v_pk_max_i16 v{c}, v{c}, 0"); a(f"v_pk_max_i16 v{c+1}, v{c+1}, 0")
    a("s_barrier")
    stamp(a, 2, st="dense")
    for j in range(mq):
        for i in range(mp):
            c = acc + 4 * (i * mq + j)
            a(f"ds_write_b64 v{vw}, {vr(c,2)} offset:{j*16*PITCH + 32*i}")
    a("s_waitcnt lgkmcnt(0)")
    stamp(a, 3, st="dense")
    a("s_barrier")
    stamp(a, 4, st="dense")
    a("s_mov_b32 exec_hi, 0x00ffffff")
    rb = acc
    for n in range(16):
        a(f"ds_read_b128 {vr(rb+4*n,4)}, v{vr_} offset:{2*n*PITCH}")
    for n in range(16):
        a(f"s_waitcnt lgkmcnt({15-n})")
        a(f"buffer_store_dwordx4 {vr(rb+4*n,4)}, v{vg_}, s[{SWS}:{SWS+3}], s{T0} offen{C.wt}")
        a(f"s_add_u32 s{T0}, s{T0}, {2*RS_A2}")
    a("s_mov_b64 exec, -1")
    stamp(a, 5, st="dense")
    return V.hi, max(LDS1, 4 * 64 * PITCH)

def phase1_ssm(a):
    V = Regs(10)
    mp, mq = 4, 4
    Pop = OpKC(a, V, 256, 0, mp); Pop.groups = [[0, 1, 2, 3]]
    Qop = OpKC(a, V, 128, Pop.bytes, mq); Qop.groups = [[0], [1]]; Qop.ldsoffs = [0, 8192]
    Qop.frag_off = lambda j: ((j & 1) * 4 + (j >> 1)) * 2048
    SB = Pop.bytes + Qop.bytes; NB = 3
    G = Gemm(a, V, NB, NB, Pop.bytes, Qop.bytes, mp, mq, (sBufD, sBufR, None, None, sCnt, sRole), True, 'P')
    acc = V.get(64, 2); prm = V.get(12, 4); big = V.get(72, 4)
    AG = NB * SB
    a(f"s_lshr_b32 s{sWp}, s{sWave}, 1"); a(f"s_and_b32 s{sWq}, s{sWave}, 1")
    Pop.lane_chunk(VT, VT + 1)
    a(f"v_lshrrev_b32 v{VT+1}, 5, v0"); a(f"v_lshlrev_b32 v{VT+1}, 4, v{VT+1}")
    a(f"v_bfe_u32 v{VT+2}, v0, 3, 2"); a(f"v_add_u32 v{VT+1}, v{VT+1}, v{VT+2}")
    a(f"v_lshl_add_u32 v{VT+3}, v{VT+1}, 11, v{VT}")
    for j in range(4):
        a(f"s_lshl_b32 s{T0}, s{sWave}, 1");
        if j >> 1: a(f"s_add_u32 s{T0}, s{T0}, 1")
        a(f"s_and_b32 s{T0}, s{T0}, 3"); a(f"s_lshl_b32 s{T0}, s{T0}, 2")
        a(f"s_lshl_b32 s{T1}, s{sWp}, 6"); a(f"s_add_u32 s{T0}, s{T0}, s{T1}")
        a(f"s_lshl_b32 s{T1}, s{sM}, 8"); a(f"s_add_u32 s{T0}, s{T0}, s{T1}")
        if j & 1: a(f"s_add_u32 s{T0}, s{T0}, 32")
        a(f"s_lshl_b32 s{T0}, s{T0}, 11")
        if j: a(f"s_sub_u32 s{T0}, s{T0}, {j*1024}")
        Pop.set_voff(j, VT + 3, T0, bool(j & 1))
    a(f"v_lshrrev_b32 v{VT+1}, 3, v0"); a(f"v_lshl_add_u32 v{VT+3}, v{VT+1}, 12, v{VT}")
    a(f"s_lshr_b32 s{T0}, s{sWave}, 2"); a(f"s_lshl_b32 s{T0}, s{T0}, 5")
    a(f"s_and_b32 s{T1}, s{sWave}, 1"); a(f"s_lshl_b32 s{T2}, s{T1}, 6"); a(f"s_lshl_b32 s{T1}, s{T1}, 4"); a(f"s_add_u32 s{T0}, s{T0}, s{T1}")
    a(f"s_bfe_u32 s{T1}, s{sWave}, 0x10001"); a(f"s_add_u32 s{T0}, s{T0}, s{T1}")
    a(f"s_lshl_b32 s{T1}, s{sN}, 6"); a(f"s_add_u32 s{T0}, s{T0}, s{T1}"); a(f"s_lshl_b32 s{T0}, s{T0}, 11")
    Qop.set_voff(0, VT + 3, T0, T2)
    a(f"v_mov_b32 v{Qop.vd+1}, v{Qop.vd}")
    a(f"s_lshl_b32 s{sLdsP}, s{sWave}, 12")
    a(f"s_lshl_b32 s{sLdsQ}, s{sWave}, 10"); a(f"s_add_u32 s{sLdsQ}, s{sLdsQ}, {Qop.lds_off}")
    a(f"s_lshl_b32 s{sKQ}, s{sRot}, 7")
    a("s_waitcnt lgkmcnt(0)")
    srd(a, SX, PTR["x"], L * D * 2); srd(a, SWS, PTR["ws"], WS_SIZE); srd(a, SDBG, PTR["dbg"], 256)
    srd(a, SA, PTR["bre"], P_ * D * 2); srd(a, SB_, PTR["bim"], P_ * D * 2)
    pt = [big, big + 8, big + 16]
    kadv = [f"s_add_u32 s{sKQ}, s{sKQ}, 128", f"s_and_b32 s{sKQ}, s{sKQ}, 2047"]
    kadvP = [f"s_add_u32 s{sKP}, s{sKP}, 128", f"s_and_b32 s{sKP}, s{sKP}, 2047"]
    a(f"s_mov_b32 s{sKP}, s{sKQ}")
    seg = Seg(Pop, Qop, acc, lambda b: Pop.dma(b, sKP, sTmp, sLdsP, [SX] * 4), lambda b: Qop.dma(b, sKQ, sTmp, sLdsQ, [SA, SB_]), kadvP, kadv, "s1")
    if C.prefetch:
        SP1, SP2, sPF1, sPF2 = SS, 72, sLdsP2, sKP2
        a(f"s_lshl_b32 s{T0}, s{sM}, 4"); a(f"s_add_u32 s{T0}, s{T0}, s{sN}")
        a(f"s_mul_i32 s{sPF2}, s{T0}, {56*1024}"); a(f"s_mul_i32 s{T1}, s{sWave}, {7*1024}"); a(f"s_add_u32 s{sPF2}, s{sPF2}, s{T1}")
        a(f"s_mov_b32 s{SP2}, s{PTR['w2']}"); a(f"s_mov_b32 s{SP2+1}, s{PTR['w2']+1}")
        a(f"s_add_u32 s{SP2+2}, s{sPF2}, {7*1024}"); a(f"s_mov_b32 s{SP2+3}, 0x20000")
        a(f"s_lshr_b32 s{T1}, s{T0}, 6"); a(f"s_cmp_eq_u32 s{T1}, 0")
        a(f"s_cselect_b32 s{SP1}, s{PTR['cre']}, s{PTR['cim']}"); a(f"s_cselect_b32 s{SP1+1}, s{PTR['cre']+1}, s{PTR['cim']+1}")
        a(f"s_and_b32 s{sPF1}, s{T0}, 63"); a(f"s_lshl_b32 s{sPF1}, s{sPF1}, 15"); a(f"s_lshl_b32 s{T1}, s{sWave}, 12"); a(f"s_add_u32 s{sPF1}, s{sPF1}, s{T1}")
        a(f"s_add_u32 s{SP1+2}, s{sPF1}, 4096"); a(f"s_mov_b32 s{SP1+3}, 0x20000")
        vpf = V.get(1); vpd = V.get(4, 2)
        a(f"v_lshlrev_b32 v{vpf}, 4, v0")
        pf = []
        for i in range(4): pf.append([f"buffer_load_dwordx4 {vr(vpd,4)}, v{vpf}, s[{SP1}:{SP1+3}], s{sPF1} offen offset:{i*1024}"])
        for i in range(7):
            pf.append([f"buffer_load_dwordx4 {vr(vpd,4)}, v{vpf}, s[{SP2}:{SP2+3}], s{sPF2} offen offset:{(i%4)*1024}"] + ([f"s_add_u32 s{sPF2}, s{sPF2}, 4096"] if i == 3 else []))
        p1extras = {C.pfit: (pf, 11)}
    else:
        p1extras = {}
    stages = [seg] * 16
    G.prologue(stages, "PQ", 0, 1)
    a(f"s_mul_i32 s{T0}, s{sWp}, {mp}"); Pop.setup_read(T0, VT, U0)
    a(f"s_lshl_b32 s{T0}, s{sWq}, 1"); Qop.setup_read(T0, VT, U0)
    for i in range(64): a(f"v_mov_b32 v{acc+i}, 0")
    if C.pbar: a("s_barrier")
    G.prologue(stages, "PQ", 1)
    mb_zero_issue(a, VT + 4)
    SPRM = 60
    def prm_loads():
        out = []
        class Cap:
            def __call__(self, x): out.append([x])
        c = Cap()
        c(f"s_lshl_b32 s{T2}, s{sN}, 6"); c(f"s_lshl_b32 s{T3}, s{sWq}, 5"); c(f"s_add_u32 s{T3}, s{T3}, s{T2}")
        c(f"v_and_b32 v{VT}, 15, v0"); c(f"v_lshlrev_b32 v{VT}, 1, v{VT}"); c(f"v_add_u32 v{VT}, s{T3}, v{VT}")
        c(f"v_lshlrev_b32 v{pt[0]}, 1, v{VT}"); c(f"v_add_u32 v{pt[1]}, 2, v{pt[0]}")
        c(f"v_add_u32 v{pt[2]}, s{T2}, v0"); c(f"v_lshlrev_b32 v{pt[2]}, 1, v{pt[2]}")
        c(f"s_mov_b32 s{SPRM+2}, 2048"); c(f"s_mov_b32 s{SPRM+3}, 0x20000")
        for k, name in enumerate(("lre", "lim", "ldt")):
            out.append([f"s_mov_b32 s{SPRM}, s{PTR[name]}", f"s_mov_b32 s{SPRM+1}, s{PTR[name]+1}"] +
                       [f"buffer_load_ushort v{pt[q]+1+k}, v{pt[q]}, s[{SPRM}:{SPRM+3}], 0 offen" for q in range(3)])
        return out
    def prm_math():
        out = []
        class Cap:
            def __call__(self, x): out.append(x)
        c = Cap()
        ssm_params_compute(c, prm, pt[0]); ssm_params_compute(c, prm + 4, pt[1]); ssm_params_compute(c, prm + 8, pt[2], False)
        return [out[i:i + 4] for i in range(0, len(out), 4)]
    p1extras[3] = (prm_loads(), 9)
    p1extras[7] = (prm_math(), 0)
    stamp(a, 1)
    G.run(stages, {2: (lambda: init_signal(a, VT + 4))}, p1extras)
    stamp(a, 2)
    stamp(a, 1, st="ssm")
    init_load(a)
    a("s_nop 7")
    def U(jc, ri, s): return acc + 4 * ((s >> 2) * 4 + 2 * jc + ri) + (s & 3)
    ag = big; tt = big + 4
    def scan_step(s):
        for jc in range(2):
            hr, hi_ = ag + 2 * jc, ag + 2 * jc + 1; lr = prm + 4 * jc; t0, t1 = tt + 2 * jc, tt + 2 * jc + 1
            a(f"v_fma_f32 v{t0}, v{lr}, v{hr}, v{U(jc,0,s)}"); a(f"v_fma_f32 v{t1}, v{lr}, v{hi_}, v{U(jc,1,s)}")
        for jc in range(2):
            hr, hi_ = ag + 2 * jc, ag + 2 * jc + 1; li = prm + 4 * jc + 1; t0, t1 = tt + 2 * jc, tt + 2 * jc + 1
            a(f"v_fma_f32 v{hi_}, v{li}, -v{hi_}, v{t0}")
            a(f"v_fma_f32 v{t1}, v{li}, v{hr}, v{t1}")
        for jc in range(2):
            hr, hi_ = ag + 2 * jc, ag + 2 * jc + 1; t1 = tt + 2 * jc + 1
            a(f"v_mov_b32 v{hr}, v{hi_}"); a(f"v_mov_b32 v{hi_}, v{t1}")
    for jc in range(2):
        a(f"v_mov_b32 v{ag+2*jc}, v{U(jc,0,0)}"); a(f"v_mov_b32 v{ag+2*jc+1}, v{U(jc,1,0)}")
    def scan2(s, src, dst):
        for jc in range(2):
            hr, hi_ = src + 2 * jc, src + 2 * jc + 1; lr = prm + 4 * jc; dr, di = dst + 2 * jc, dst + 2 * jc + 1
            a(f"v_fma_f32 v{dr}, v{lr}, v{hr}, v{U(jc,0,s)}"); a(f"v_fma_f32 v{di}, v{lr}, v{hi_}, v{U(jc,1,s)}")
        for jc in range(2):
            hr, hi_ = src + 2 * jc, src + 2 * jc + 1; li = prm + 4 * jc + 1; dr, di = dst + 2 * jc, dst + 2 * jc + 1
            a(f"v_fma_f32 v{dr}, -v{li}, v{hi_}, v{dr}"); a(f"v_fma_f32 v{di}, v{li}, v{hr}, v{di}")
    st = [ag, tt]
    for s in range(1, 16): scan2(s, st[(s - 1) & 1], st[s & 1])
    fin = st[15 & 1]
    vag = big + 8
    def calc_vag():
        a(f"v_lshrrev_b32 v{vag}, 4, v0"); a(f"s_lshl_b32 s{T0}, s{sWp}, 2"); a(f"v_add_u32 v{vag}, s{T0}, v{vag}")
        a(f"v_lshlrev_b32 v{vag}, 9, v{vag}")
        a(f"v_and_b32 v{big+9}, 15, v0"); a(f"v_lshlrev_b32 v{big+9}, 4, v{big+9}")
        a(f"s_lshl_b32 s{T0}, s{sWq}, 8"); a(f"s_add_u32 s{T0}, s{T0}, {AG}")
        a(f"v_add3_u32 v{vag}, v{vag}, v{big+9}, s{T0}")
    calc_vag()
    a(f"ds_write_b128 v{vag}, {vr(fin,4)}")
    a("s_waitcnt lgkmcnt(0)")
    a("s_barrier")
    stamp(a, 2, st="ssm")
    a(f"s_cmp_lg_u32 s{sWave}, 0")
    a("s_cbranch_scc1 L_s_gate")
    lr, li = prm + 8, prm + 9
    l16r, l16i, l256r, l256i = big + 10, big + 11, big + 12, big + 13
    er, ei = big + 14, big + 15
    w0 = big + 4
    A = big + 16; vl = big + 9
    a(f"v_lshlrev_b32 v{vl}, 3, v0"); a(f"v_add_u32 v{vl}, {AG}, v{vl}")
    for s in range(16): a(f"ds_read_b64 {vr(A+2*s,2)}, v{vl} offset:{s*512}")
    csq(a, l16r, l16i, lr, li, w0)
    for _ in range(3): csq(a, l16r, l16i, l16r, l16i, w0)
    csq(a, l256r, l256i, l16r, l16i, w0)
    for _ in range(3): csq(a, l256r, l256i, l256r, l256i, w0)
    a("s_waitcnt lgkmcnt(0)")
    x0, x1 = big + 6, big + 7
    for s in range(1, 16):
        pr, pi, cr_, ci_ = A + 2 * (s - 1), A + 2 * (s - 1) + 1, A + 2 * s, A + 2 * s + 1
        a(f"v_fma_f32 v{cr_}, v{l16r}, v{pr}, v{cr_}"); a(f"v_fma_f32 v{ci_}, v{l16r}, v{pi}, v{ci_}")
        a(f"v_fma_f32 v{cr_}, -v{l16i}, v{pi}, v{cr_}"); a(f"v_fma_f32 v{ci_}, v{l16i}, v{pr}, v{ci_}")
    er, ei = A + 30, A + 31
    vo = big + 8
    a(f"s_lshl_b32 s{T0}, s{sN}, 6"); a(f"v_add_u32 v{vo}, s{T0}, v0"); a(f"v_lshlrev_b32 v{vo}, 3, v{vo}")
    a(f"s_lshl_b32 s{T1}, s{sM}, 13"); a(f"s_add_u32 s{T1}, s{T1}, {WS_AGG}")
    a(f"buffer_store_dwordx2 {vr(er,2)}, v{vo}, s[{SWS}:{SWS+3}], s{T1} offen sc1")
    a("s_waitcnt vmcnt(0)")
    init_check(a, big + 52)
    a(f"v_and_b32 v{x0}, 3, v0"); a(f"v_lshlrev_b32 v{x0}, 2, v{x0}")
    a(f"s_and_b32 s{T0}, s{sN}, 3"); a(f"s_add_u32 s{T0}, s{T0}, 16"); a(f"v_add_u32 v{x0}, s{T0}, v{x0}"); a(f"v_lshlrev_b32 v{x0}, 3, v{x0}")
    a(f"v_and_b32 v{x1}, 4, v0"); a(f"s_lshr_b32 s{T0}, s{sN}, 2"); a(f"v_add3_u32 v{x0}, v{x0}, v{x1}, s{T0}")
    a(f"v_lshlrev_b32 v{x0}, 8, v{x0}"); a(f"v_mov_b32 v{x1}, 1")
    a(f"s_lshl_b32 s{T0}, 2, s{sM}"); a(f"s_sub_u32 s{T0}, s{T0}, 1"); a(f"s_andn2_b32 s{T0}, 0xff, s{T0}")
    a(f"s_cmp_eq_u32 s{T0}, 0"); a("s_cbranch_scc1 L_s_nosig")
    a(f"s_mov_b32 exec_lo, s{T0}"); a("s_mov_b32 exec_hi, 0"); a(f"s_mov_b32 s{T1}, {WS_MB}")
    a(f"buffer_atomic_add v{x1}, v{x0}, s[{SWS}:{SWS+3}], s{T1} offen sc1")
    a("s_mov_b64 exec, -1")
    a.label("L_s_nosig")
    stamp(a, 3, st="ssm")
    cr, ci = big + 48, big + 49
    a(f"v_mov_b32 v{cr}, 0"); a(f"v_mov_b32 v{ci}, 0")
    a(f"s_cmp_eq_u32 s{sM}, 0"); a("s_cbranch_scc1 L_s_nolb")
    def chk(ok):
        a(f"s_cmp_eq_u32 s{U0}, s{sM}"); a(f"s_cbranch_scc1 {ok}")
    poll_own(a, chk, big + 52)
    B = big + 50
    for j in range(7):
        a(f"s_mov_b32 s{T1}, {WS_AGG + j*8192}")
        a(f"buffer_load_dwordx2 {vr(B+2*j,2)}, v{vo}, s[{SWS}:{SWS+3}], s{T1} offen sc1")
    a("s_waitcnt vmcnt(0)")
    for j in range(7):
        a(f"s_cmp_le_u32 s{sM}, {j}"); a("s_cbranch_scc1 L_s_nolb")
        a(f"v_fma_f32 v{x0}, v{l256r}, v{cr}, v{B+2*j}"); a(f"v_fma_f32 v{x1}, v{l256r}, v{ci}, v{B+2*j+1}")
        a(f"v_fma_f32 v{x0}, -v{l256i}, v{ci}, v{x0}"); a(f"v_fma_f32 v{ci}, v{l256i}, v{cr}, v{x1}")
        a(f"v_mov_b32 v{cr}, v{x0}")
    a.label("L_s_nolb")
    stamp(a, 4, st="ssm")
    a(f"ds_write_b64 v{vl}, {vr(cr,2)}")
    for s in range(1, 16):
        a(f"v_mul_f32 v{x0}, v{l16r}, v{cr}"); a(f"v_mul_f32 v{x1}, v{l16r}, v{ci}")
        a(f"v_fma_f32 v{x0}, -v{l16i}, v{ci}, v{x0}"); a(f"v_fma_f32 v{ci}, v{l16i}, v{cr}, v{x1}")
        a(f"v_mov_b32 v{cr}, v{x0}")
        a(f"v_add_f32 v{A+2*(s-1)}, v{A+2*(s-1)}, v{cr}"); a(f"v_add_f32 v{A+2*(s-1)+1}, v{A+2*(s-1)+1}, v{ci}")
        a(f"ds_write_b64 v{vl}, {vr(A+2*(s-1),2)} offset:{s*512}")
    a("s_waitcnt lgkmcnt(0)")
    a("s_branch L_s_wait")
    a.label("L_s_gate")
    gxs = [big + 16, big + 24, big + 32]; gws = big + 40; gt = big + 48
    a(f"s_lshl_b32 s{T0}, s{sM}, 8"); a(f"s_lshl_b32 s{T1}, s{sN}, 4"); a(f"s_add_u32 s{T0}, s{T0}, s{T1}")
    a(f"s_add_u32 s{T0}, s{T0}, s{sWave}"); a(f"s_sub_u32 s{T0}, s{T0}, 1")
    a(f"s_add_u32 s{T1}, s{T0}, 7"); a(f"s_add_u32 s{T2}, s{T0}, 14")
    a(f"v_lshlrev_b32 v{gt}, 5, v0")
    srd(a, SS, PTR["gw"], 2048)
    a(f"buffer_load_dwordx4 {vr(gws,4)}, v{gt}, s[{SS}:{SS+3}], 0 offen"); a(f"buffer_load_dwordx4 {vr(gws+4,4)}, v{gt}, s[{SS}:{SS+3}], 0 offen offset:16")
    gate_row_loads(a, T0, gxs[0], gt); gate_row_loads(a, T1, gxs[1], gt)
    a(f"s_cmp_gt_u32 s{sWave}, 2"); a("s_cbranch_scc1 L_s_g2")
    gate_row_loads(a, T2, gxs[2], gt)
    a("s_waitcnt vmcnt(0)")
    gate_compute(a, T2, gxs[2], gws, gt + 1)
    a.label("L_s_g2")
    a("s_waitcnt vmcnt(0)")
    gate_compute(a, T0, gxs[0], gws, gt + 1); gate_compute(a, T1, gxs[1], gws, gt + 1)
    a.label("L_s_wait")
    a("s_barrier")
    calc_vag()
    a(f"ds_read_b128 {vr(ag,4)}, v{vag}")
    PITCH = 272
    vw = big + 9
    a(f"v_lshrrev_b32 v{vw}, 4, v0"); a(f"v_lshlrev_b32 v{vw}, 4, v{vw}"); a(f"s_lshl_b32 s{T0}, s{sWp}, 6"); a(f"v_add_u32 v{vw}, s{T0}, v{vw}")
    a(f"v_mul_u32_u24 v{vw}, {PITCH}, v{vw}")
    a(f"v_and_b32 v{big+10}, 15, v0"); a(f"v_lshl_add_u32 v{vw}, v{big+10}, 2, v{vw}")
    a(f"s_lshl_b32 s{T0}, s{sWq}, 6"); a(f"v_add_u32 v{vw}, s{T0}, v{vw}")
    a("s_waitcnt lgkmcnt(0)")
    ore, oim, od = big + 12, big + 14, big + 16
    st = [ag, tt]
    for s in range(16):
        scan2(s, st[s & 1], st[(s + 1) & 1])
        h = st[(s + 1) & 1]
        for jc in range(2):
            hr, hi_ = h + 2 * jc, h + 2 * jc + 1; kr, ki = prm + 4 * jc + 2, prm + 4 * jc + 3
            a(f"v_mul_f32 v{ore+jc}, v{kr}, v{hr}"); a(f"v_mul_f32 v{oim+jc}, -v{kr}, v{hi_}")
        for jc in range(2):
            hr, hi_ = h + 2 * jc, h + 2 * jc + 1; kr, ki = prm + 4 * jc + 2, prm + 4 * jc + 3
            a(f"v_fma_f32 v{ore+jc}, -v{ki}, v{hi_}, v{ore+jc}"); a(f"v_fma_f32 v{oim+jc}, -v{ki}, v{hr}, v{oim+jc}")
        d = od + 2 * (s % 4)
        a(f"v_cvt_pk_bf16_f32 v{d}, v{ore}, v{ore+1}"); a(f"v_cvt_pk_bf16_f32 v{d+1}, v{oim}, v{oim+1}")
        a(f"ds_write_b32 v{vw}, v{d} offset:{s*PITCH}"); a(f"ds_write_b32 v{vw}, v{d+1} offset:{s*PITCH+128}")
    stamp(a, 5, st="ssm")
    vr_, vg_ = big + 10, big + 11
    a(f"v_lshrrev_b32 v{vr_}, 4, v0"); a(f"s_lshl_b32 s{T0}, s{sWave}, 5"); a(f"v_add_u32 v{vr_}, s{T0}, v{vr_}")
    a(f"s_lshl_b32 s{T1}, s{sM}, 8"); a(f"v_add_u32 v{vg_}, s{T1}, v{vr_}"); a(f"v_mul_u32_u24 v{vg_}, {RS_A2}, v{vg_}")
    a(f"v_mul_u32_u24 v{vr_}, {PITCH}, v{vr_}")
    a(f"v_and_b32 v{big+12}, 15, v0"); a(f"v_lshl_add_u32 v{vr_}, v{big+12}, 4, v{vr_}")
    a(f"v_and_b32 v{big+13}, 7, v0"); a(f"v_lshl_add_u32 v{vg_}, v{big+13}, 4, v{vg_}")
    a(f"v_bfe_u32 v{big+13}, v0, 3, 1"); a(f"v_lshl_add_u32 v{vg_}, v{big+13}, 11, v{vg_}")
    a(f"s_lshl_b32 s{T0}, s{sN}, 7"); a(f"s_add_u32 s{T0}, s{T0}, {WS_A2}")
    a("s_waitcnt lgkmcnt(0)")
    a("s_barrier")
    rb = acc
    for n in range(8): a(f"ds_read_b128 {vr(rb+4*n,4)}, v{vr_} offset:{4*n*PITCH}")
    for n in range(8):
        a(f"s_waitcnt lgkmcnt({7-n})")
        a(f"buffer_store_dwordx4 {vr(rb+4*n,4)}, v{vg_}, s[{SWS}:{SWS+3}], s{T0} offen{C.wt}")
        a(f"s_add_u32 s{T0}, s{T0}, {4*RS_A2}")
    stamp(a, 6, st="ssm")
    return V.hi, AG + 8192

def phase2(a, role):
    R = "A" if role == 0 else "B"
    SW2, SE = 24, 72
    NS = C.ns
    TQ = 128 if NS == 2 else 256
    TP, mp, mq, NB = 128, 4, NS, (4 if NS == 2 else 3)
    LG = 1 if NS == 2 else 2
    XS = 8 // NS
    sG, sKQ2 = 0, 3
    V = Regs(10)
    P1 = OpKC(a, V, TP, 0, mp); P1.groups = [[0, 1]]
    P2 = OpNC(a, V, TP, 0, mp, D * 2)
    Qop = OpKC(a, V, TQ, TP * 128, mq, flags=C.a2ld); Qop.groups = [list(range(Qop.n))]
    SB = TP * 128 + Qop.bytes
    G = Gemm(a, V, NB, NB, TP * 128, Qop.bytes, mp, mq, (sBufD, sBufR, None, None, sCnt, sRole), True, 'P' if NS == 2 else 'Q')
    nf = mp * mq
    accD = V.get(4 * nf, 2)
    accS = V.get(4 * nf, 2)
    vg = V.get(2 * mq, 2); vep = V.get(4)
    vex = V.get(6 * mp, 2) if NS == 2 else accS
    dense = 1 if role == 1 else 0
    a(f"s_and_b32 s{T0}, s2, 7"); a(f"s_lshr_b32 s{T1}, s2, 3")
    a(f"s_lshr_b32 s{sG}, s{T0}, {3-LG}")
    a(f"s_and_b32 s{T2}, s{T0}, {XS-1}"); a(f"s_lshl_b32 s{sTt}, s{T2}, 2"); a(f"s_bfe_u32 s{T2}, s{T1}, 0x20002"); a(f"s_add_u32 s{sTt}, s{sTt}, s{T2}")
    a(f"s_and_b32 s{T2}, s{sG}, 1")
    if dense: a(f"s_xor_b32 s{T2}, s{T2}, 1")
    a(f"s_lshl_b32 s{sDt}, s{T2}, 2"); a(f"s_and_b32 s{T2}, s{T1}, 3"); a(f"s_add_u32 s{sDt}, s{sDt}, s{T2}")
    a(f"s_lshl_b32 s{sTile}, s{sTt}, 3"); a(f"s_add_u32 s{sTile}, s{sTile}, s{sDt}")
    a(f"s_lshr_b32 s{sWp}, s{sWave}, 2"); a(f"s_and_b32 s{sWq}, s{sWave}, 3")
    srd(a, SW2, PTR["w2"], F * D * 2)
    a(f"s_lshr_b32 s{T0}, s{sG}, {LG-1}"); a(f"s_cmp_eq_u32 s{T0}, 0")
    a(f"s_cselect_b32 s{SA}, s{PTR['cre']}, s{PTR['cim']}"); a(f"s_cselect_b32 s{SA+1}, s{PTR['cre']+1}, s{PTR['cim']+1}")
    a(f"s_mov_b32 s{SA+2}, {D*P_*2}"); a(f"s_mov_b32 s{SA+3}, 0x20000")
    Qop.lane_chunk(VT, VT + 1)
    a(f"v_lshrrev_b32 v{VT+1}, 3, v0"); a(f"v_lshl_add_u32 v{VT+3}, v{VT+1}, 11, v{VT}")
    for j in range(2):
        a(f"s_lshl_b32 s{T0}, s{sDt}, 7"); a(f"s_lshl_b32 s{T1}, s{sWave}, 4"); a(f"s_add_u32 s{T0}, s{T0}, s{T1}")
        if j: a(f"s_add_u32 s{T0}, s{T0}, 8")
        a(f"s_lshl_b32 s{T0}, s{T0}, 11")
        if j: a(f"s_sub_u32 s{T0}, s{T0}, 1024")
        P1.set_voff(j, VT + 3, T0, bool(j & 1))
    a(f"s_lshl_b32 s{sLdsP}, s{sWave}, 11")
    a(f"s_lshl_b32 s{T0}, s{sDt}, 8")
    P2.setup_dma(sWave, VT + 4, T0, U0)
    P2.setup_lds(sWave, sLdsP2, U0)
    a(f"v_lshrrev_b32 v{VT+1}, 3, v0"); a(f"v_mul_u32_u24 v{VT+1}, {RS_A2}, v{VT+1}"); a(f"v_add_u32 v{VT+3}, v{VT+1}, v{VT}")
    for j in range(Qop.n):
        a(f"s_mul_i32 s{T0}, s{sWave}, {TQ//8}")
        if j: a(f"s_add_u32 s{T0}, s{T0}, {8*j}")
        a(f"s_lshr_b32 s{T1}, s{T0}, 4"); a(f"s_add_u32 s{T1}, s{T1}, s{sG}"); a(f"s_and_b32 s{T1}, s{T1}, {NS-1}"); a(f"s_lshl_b32 s{T1}, s{T1}, 4")
        a(f"s_andn2_b32 s{T0}, s{T0}, {(NS-1) << 4}"); a(f"s_or_b32 s{T0}, s{T0}, s{T1}")
        a(f"s_mul_i32 s{T1}, s{sTt}, {TQ}"); a(f"s_add_u32 s{T0}, s{T0}, s{T1}"); a(f"s_mul_i32 s{T0}, s{T0}, {RS_A2}")
        if j: a(f"s_sub_u32 s{T0}, s{T0}, {1024*j}")
        Qop.set_voff(j, VT + 3, T0, bool(j & 1))
    a(f"s_mul_i32 s{sLdsQ}, s{sWave}, {Qop.n*1024}"); a(f"s_add_u32 s{sLdsQ}, s{sLdsQ}, {Qop.lds_off}")
    nS = 32 // NS; base = 56 // NS
    nD = base + (C.delta if role == 0 else -C.delta)
    colsS = 2048 // NS
    a(f"s_mul_i32 s{sKQ}, s{sG}, {colsS*2}"); a(f"s_and_b32 s{sKP}, s{sKQ}, 2047")
    if WS_A2: a(f"s_add_u32 s{sKQ}, s{sKQ}, {WS_A2}")
    a(f"s_lshr_b32 s{T0}, s{sG}, 1"); a(f"s_mul_i32 s{T0}, s{T0}, {2*base}")
    a(f"s_and_b32 s{T1}, s{sG}, 1"); a(f"s_mul_i32 s{T1}, s{T1}, {2*base - nD}"); a(f"s_add_u32 s{T0}, s{T0}, s{T1}")
    a(f"s_mul_i32 s{sKP2}, s{T0}, {64*D*2}"); a(f"s_lshl_b32 s{sKQ2}, s{T0}, 7"); a(f"s_add_u32 s{sKQ2}, s{sKQ2}, {WS_A2 + 4096}")
    a(f"s_mul_i32 s{T0}, s{sWp}, {mp}")
    P1.setup_read(T0, VT, U0); P2.setup_read(T0, VT, U0)
    a(f"s_mul_i32 s{T0}, s{sWq}, {mq}"); Qop.setup_read(T0, VT, U0)
    qd = lambda b: Qop.dma(b, sKQ, sTmp, sLdsQ, [SWS] * Qop.n)
    qd2 = lambda b: Qop.dma(b, sKQ2, sTmp, sLdsQ, [SWS] * Qop.n)
    segD = Seg(P2, Qop, accD, lambda b: P2.dma(b, sKP2, sTmp, sLdsP2, SW2), qd2, [f"s_add_u32 s{sKP2}, s{sKP2}, {64*D*2}"], [f"s_add_u32 s{sKQ2}, s{sKQ2}, 128"], "d")
    segS = Seg(P1, Qop, accS, lambda b: P1.dma(b, sKP, sTmp, sLdsP, [SA] * 2), qd, [f"s_add_u32 s{sKP}, s{sKP}, 128"], [f"s_add_u32 s{sKQ}, s{sKQ}, 128"], "s")
    stages = [segS] * nS + [segD] * nD
    N = len(stages)
    a("s_barrier")
    G.prologue(stages, "P")
    nP0 = 2 * G.leadP
    for i in range(4 * nf):
        a(f"v_mov_b32 v{accD+i}, 0"); a(f"v_mov_b32 v{accS+i}, 0")
    post_first = None
    def chkS(ok): a(f"s_cmp_eq_u32 s{U1}, 16"); a(f"s_cbranch_scc1 {ok}")
    if role == 0:
        a(f"s_waitcnt vmcnt({nP0})")
        a("s_barrier")
        stamp(a, 3)
        a(f"s_cmp_lg_u32 s{sWave}, 0"); a(f"s_cbranch_scc1 L_p2{R}_dep")
        signal_cnt(a, 1, VT)
        poll_own(a, chkS, VT)
    else:
        stamp(a, 3)
        a(f"s_cmp_lg_u32 s{sWave}, 0"); a(f"s_cbranch_scc1 L_p2{R}_dep")
        poll_own(a, chkS, VT)
        def post_first():
            sk = newlabel("pf")
            a(f"s_cmp_lg_u32 s{sWave}, 0"); a(f"s_cbranch_scc1 {sk}")
            init_check(a, VT)
            signal_cnt(a, 2, VT)
            a.label(sk)
    a.label(f"L_p2{R}_dep")
    a("s_barrier")
    G.prologue(stages, "Q")
    hooks = {}
    def hookD():
        sk = newlabel("hk")
        stamp(a, 2, st="p2")
        a(f"s_cmp_lg_u32 s{sWave}, 0"); a(f"s_cbranch_scc1 {sk}")
        def chk(ok): a(f"s_cmp_eq_u32 s{U3}, 16"); a(f"s_cbranch_scc1 {ok}")
        poll_own(a, chk, VT)
        a.label(sk)
        stamp(a, 3, st="p2")
    hooks[nS - G.leadQ - (1 if G.early == 'Q' else 0)] = hookD
    vt_own, vxo, vd2, vl16 = vep, vep + 1, vep + 2, vep + 3
    vx_, vds, vb2 = vex, vex + 2 * mp, vex + 4 * mp
    ex = []
    ex.append([f"s_mul_i32 s{T0}, s{sTt}, {TQ}", f"s_mul_i32 s{T1}, s{sWq}, {16*mq}", f"s_add_u32 s{T0}, s{T0}, s{T1}",
               f"v_and_b32 v{vt_own}, 15, v0", f"v_add_u32 v{vt_own}, s{T0}, v{vt_own}", f"v_lshlrev_b32 v{vxo}, 3, v{vt_own}"])
    for j in range(mq):
        ex.append([f"s_add_u32 s{T0}, s{sG}, {j}", f"s_and_b32 s{T0}, s{T0}, {NS-1}", f"s_lshl_b32 s{T0}, s{T0}, 7", f"s_add_u32 s{T0}, s{T0}, {WS_G}",
                   f"buffer_load_dwordx2 {vr(vg+2*j,2)}, v{vxo}, s[{SWS}:{SWS+3}], s{T0} offen sc1"])
    ex.append([f"s_lshl_b32 s{T0}, s{sG}, 4", f"v_add_u32 v{vt_own}, s{T0}, v{vt_own}",
               f"v_lshrrev_b32 v{vd2}, 4, v0", f"v_lshlrev_b32 v{vd2}, 2, v{vd2}",
               f"s_lshl_b32 s{T0}, s{sDt}, 7", f"s_lshl_b32 s{T1}, s{sWp}, 6", f"s_add_u32 s{T0}, s{T0}, s{T1}",
               f"v_add_u32 v{vd2}, s{T0}, v{vd2}", f"v_lshlrev_b32 v{vd2}, 1, v{vd2}",
               f"v_lshl_add_u32 v{vxo}, v{vt_own}, 11, v{vd2}", f"v_lshlrev_b32 v{vl16}, 4, v0"])
    ex2 = []
    for i in range(mp):
        ex2.append([f"buffer_load_dwordx2 {vr(vx_+2*i,2)}, v{vxo}, s[{SX}:{SX+3}], 0 offen offset:{32*i}"])
    ex2.append([f"s_mov_b32 s{SE}, s{PTR['dsk']}", f"s_mov_b32 s{SE+1}, s{PTR['dsk']+1}", f"s_mov_b32 s{SE+2}, 2048", f"s_mov_b32 s{SE+3}, 0x20000"])
    for i in range(mp):
        ex2.append([f"buffer_load_dwordx2 {vr(vds+2*i,2)}, v{vd2}, s[{SE}:{SE+3}], 0 offen offset:{32*i}"])
    ex2.append([f"s_mov_b32 s{SE}, s{PTR['b2']}", f"s_mov_b32 s{SE+1}, s{PTR['b2']+1}"])
    for i in range(mp):
        ex2.append([f"buffer_load_dwordx2 {vr(vb2+2*i,2)}, v{vd2}, s[{SE}:{SE+3}], 0 offen offset:{32*i}"])
    if NS == 2: extras = {N - NB: (ex + ex2, mq + 3 * mp)}
    else: extras = {N - NB: (ex, mq)}
    stamp(a, 4)
    stamp(a, 1, st="p2")
    G.run(stages, hooks, extras, post_first)
    stamp(a, 5)
    stamp(a, 4, st="p2")
    a("s_nop 7")
    a("s_waitcnt vmcnt(0)")
    def comb(i, j):
        c = 4 * (i * mq + j)
        for r in range(4):
            a(f"v_mul_f32 v{accD+c+r}, v{vg+2*j+1}, v{accD+c+r}"); a(f"v_fmac_f32 v{accD+c+r}, v{vg+2*j}, v{accS+c+r}")
    for j in range(1, mq):
        a(f"s_add_u32 s{T1}, s{sG}, {j}"); a(f"s_and_b32 s{T1}, s{T1}, {NS-1}")
        a(f"s_lshl_b32 s{T0}, s{sTile}, {LG}"); a(f"s_add_u32 s{T0}, s{T0}, s{T1}"); a(f"s_lshl_b32 s{T0}, s{T0}, {LG}"); a(f"s_add_u32 s{T0}, s{T0}, s{sG}")
        a(f"s_lshl_b32 s{T0}, s{T0}, 3"); a(f"s_add_u32 s{T0}, s{T0}, s{sWave}"); a(f"s_lshl_b32 s{T0}, s{T0}, 12"); a(f"s_add_u32 s{T0}, s{T0}, {WS_XB}")
        for i in range(mp): comb(i, j)
        a("s_nop 1")
        for i in range(mp):
            c = accD + 4 * (i * mq + j)
            a(f"buffer_store_dwordx4 {vr(c,4)}, v{vl16}, s[{SWS}:{SWS+3}], s{T0} offen offset:{i*1024} sc1")
    for i in range(mp): comb(i, 0)
    nst = mp * (mq - 1)
    if NS != 2:
        for g_ in ex2: G.emit(g_)
        a("s_waitcnt vmcnt(0)")
    x0, x1, y0, y1 = VT, VT + 1, VT + 2, VT + 3
    for i in range(mp):
        e = accD + 4 * (i * mq)
        for h in range(2):
            a(f"v_lshlrev_b32 v{x0}, 16, v{vx_+2*i+h}"); a(f"v_and_b32 v{x1}, 0xffff0000, v{vx_+2*i+h}")
            a(f"v_lshlrev_b32 v{y0}, 16, v{vds+2*i+h}"); a(f"v_and_b32 v{y1}, 0xffff0000, v{vds+2*i+h}")
            a(f"v_mul_f32 v{x0}, v{x0}, v{y0}"); a(f"v_mul_f32 v{x1}, v{x1}, v{y1}")
            a(f"v_cvt_pk_bf16_f32 v{x0}, v{x0}, v{x1}")
            a(f"v_and_b32 v{x1}, 0xffff0000, v{x0}"); a(f"v_lshlrev_b32 v{x0}, 16, v{x0}")
            a(f"v_fmac_f32 v{e+2*h}, v{vg}, v{x0}"); a(f"v_fmac_f32 v{e+2*h+1}, v{vg}, v{x1}")
            a(f"v_lshlrev_b32 v{x0}, 16, v{vb2+2*i+h}"); a(f"v_and_b32 v{x1}, 0xffff0000, v{vb2+2*i+h}")
            a(f"v_fmac_f32 v{e+2*h}, v{vg+1}, v{x0}"); a(f"v_fmac_f32 v{e+2*h+1}, v{vg+1}, v{x1}")
    a("s_waitcnt vmcnt(0)")
    a("s_barrier")
    stamp(a, 5, st="p2")
    a(f"s_cmp_lg_u32 s{sWave}, 0"); a(f"s_cbranch_scc1 L_p2{R}_x")
    t1, t2, t3 = VT + 1, VT + 2, VT + 3
    a(f"s_and_b32 s{T0}, s2, {XS-1}")
    a(f"v_mul_u32_u24 v{t1}, {XS}, v0"); a(f"v_add_u32 v{t1}, s{T0}, v{t1}")
    a(f"s_lshr_b32 s{T0}, s{sDt}, 2")
    a(f"v_and_b32 v{t2}, 1, v0"); a(f"v_xor_b32 v{t2}, s{T0}, v{t2}"); a(f"v_xor_b32 v{t2}, 1, v{t2}")
    a(f"s_lshr_b32 s{T0}, s2, 3"); a(f"s_and_b32 s{T0}, s{T0}, 15")
    a(f"v_lshlrev_b32 v{t2}, 4, v{t2}"); a(f"v_add_u32 v{t2}, s{T0}, v{t2}"); a(f"v_lshl_or_b32 v{t2}, v{t2}, 3, v{t1}")
    a(f"v_lshlrev_b32 v{t2}, 8, v{t2}"); a(f"v_mov_b32 v{t3}, 1")
    a(f"s_lshl_b32 s{T0}, 1, s{sG}"); a(f"s_andn2_b32 s{T0}, {(1 << NS) - 1}, s{T0}")
    a(f"s_mov_b32 exec_lo, s{T0}"); a("s_mov_b32 exec_hi, 0"); a(f"s_mov_b32 s{T1}, {WS_MB + 12}")
    a(f"buffer_atomic_add v{t3}, v{t2}, s[{SWS}:{SWS+3}], s{T1} offen sc1")
    a("s_mov_b64 exec, -1")
    a(f"s_lshl_b32 s{T3}, s2, 8"); a(f"s_add_u32 s{T3}, s{T3}, {WS_MB + 12}")
    def chkx(ok): a(f"s_cmp_eq_u32 s{U0}, {NS-1}"); a(f"s_cbranch_scc1 {ok}")
    poll(a, SWS, T3, chkx, VT)
    a.label(f"L_p2{R}_x")
    a("s_barrier")
    rb = G.F[0][0]
    assert 2 * (4 * mp + 4 * mq) >= 4 * mp * (NS - 1)
    for k in range(1, NS):
        a(f"s_add_u32 s{T1}, s{sG}, {k}"); a(f"s_and_b32 s{T1}, s{T1}, {NS-1}")
        a(f"s_lshl_b32 s{T0}, s{sTile}, {LG}"); a(f"s_add_u32 s{T0}, s{T0}, s{sG}"); a(f"s_lshl_b32 s{T0}, s{T0}, {LG}"); a(f"s_add_u32 s{T0}, s{T0}, s{T1}")
        a(f"s_lshl_b32 s{T0}, s{T0}, 3"); a(f"s_add_u32 s{T0}, s{T0}, s{sWave}"); a(f"s_lshl_b32 s{T0}, s{T0}, 12"); a(f"s_add_u32 s{T0}, s{T0}, {WS_XB}")
        for i in range(mp):
            a(f"buffer_load_dwordx4 {vr(rb+(k-1)*4*mp+4*i,4)}, v{vl16}, s[{SWS}:{SWS+3}], s{T0} offen offset:{i*1024} sc1")
    srd(a, SE, PTR["out"], L * D * 4)
    vo = VT
    a(f"v_lshlrev_b32 v{vo}, 12, v{vt_own}"); a(f"v_lshl_add_u32 v{vo}, v{vd2}, 1, v{vo}")
    if NS > 2: a(f"s_waitcnt vmcnt({mp})")
    for i in range(mp):
        e = accD + 4 * (i * mq)
        if NS > 2:
            for k in range(1, NS - 1):
                for r in range(4): a(f"v_add_f32 v{e+r}, v{e+r}, v{rb+(k-1)*4*mp+4*i+r}")
    for i in range(mp):
        e = accD + 4 * (i * mq)
        a(f"s_waitcnt vmcnt({mp-1})")
        for r in range(4): a(f"v_add_f32 v{e+r}, v{e+r}, v{rb+(NS-2)*4*mp+4*i+r}")
        a(f"buffer_store_dwordx4 {vr(e,4)}, v{vo}, s[{SE}:{SE+3}], 0 offen offset:{64*i}{C.wto}")
    stamp(a, 6)
    stamp(a, 6, st="p2")
    return V.hi, NB * SB

def emit_stamps(a):
    a("s_memrealtime s[88:89]"); a("s_waitcnt lgkmcnt(0)")
    a(f"s_cmp_lg_u32 s{sWave}, {C.stwave}"); a("s_cbranch_scc1 L_end")
    a("s_waitcnt vmcnt(0)")
    for i in range(1, 7): a(f"s_sub_u32 s{92+i}, s{92+i}, s92")
    a("s_mov_b32 s99, s100")
    a("s_nop 0")
    a(f"s_mov_b32 s100, s88")
    for i in range(8): a(f"v_mov_b32 v{12+i}, s{93+i}")
    a(f"s_lshl_b32 s{T0}, s2, 5"); a(f"s_add_u32 s{T0}, s{T0}, {WS_ST}")
    a("v_mov_b32 v11, 0"); a("s_mov_b64 exec, 1")
    a(f"buffer_store_dwordx4 v[12:15], v11, s[{SWS}:{SWS+3}], s{T0} offen")
    a(f"buffer_store_dwordx4 v[16:19], v11, s[{SWS}:{SWS+3}], s{T0} offen offset:16")

HEADER = open("gated_mix__ssm_conv_s5__dense_activation_squared_relu__prompt.s.ref").read().split("; Override launch")[0]

def generate(**kw):
    for k, v in kw.items():
        assert hasattr(C, k), k
        setattr(C, k, v)
    _lbl[0] = 0
    a = Asm()
    kernel_header(a, NAME)
    a("s_cmp_ge_u32 s2, 256"); a("s_cbranch_scc1 L_end")
    a("s_load_dwordx16 s[40:55], s[0:1], 0"); a("s_load_dwordx16 s[56:71], s[0:1], 64"); a("s_load_dwordx4 s[72:75], s[0:1], 128")
    if C.dbgst:
        a("s_memtime s[92:93]"); a("s_memrealtime s[100:101]")
    if C.codepf:
        a("s_getpc_b64 s[4:5]")
        a.label("L_pc")
        a("v_lshlrev_b32 v2, 7, v0")
        a("v_min_u32 v2, L_codeend-L_pc-4, v2")
        a("global_load_dword v250, v2, s[4:5]")
    a("v_lshrrev_b32 v1, 6, v0"); a("v_and_b32 v0, 63, v0"); a(f"v_readfirstlane_b32 s{sWave}, v1")
    a(f"s_and_b32 s{T0}, s2, 7"); a(f"s_lshr_b32 s{T1}, s2, 3")
    a(f"s_lshr_b32 s{sRole}, s{T1}, 4")
    a(f"s_bfe_u32 s{T2}, s{T1}, 0x20002"); a(f"s_and_b32 s{T3}, s{T1}, 3")
    a(f"s_lshr_b32 s{sM}, s{T0}, 2"); a(f"s_lshl_b32 s{sM}, s{sM}, 2"); a(f"s_add_u32 s{sM}, s{sM}, s{T2}")
    a(f"s_and_b32 s{sN}, s{T0}, 3"); a(f"s_lshl_b32 s{sN}, s{sN}, 2"); a(f"s_add_u32 s{sN}, s{sN}, s{T3}")
    mode = C.rot
    if mode is True: mode = 1
    if mode == 1:
        a(f"s_lshl_b32 s{sRot}, s{sRole}, 2"); a(f"s_add_u32 s{sRot}, s{sRot}, s{T3}"); a(f"s_lshl_b32 s{sRot}, s{sRot}, 1")
        a(f"s_lshl_b32 s{T2}, s{T2}, 2"); a(f"s_add_u32 s{sRot}, s{sRot}, s{T2}"); a(f"s_and_b32 s{T0}, s{T0}, 3")
        a(f"s_add_u32 s{sRot}, s{sRot}, s{T0}"); a(f"s_and_b32 s{sRot}, s{sRot}, 15")
    elif mode == 2:
        a(f"s_and_b32 s{sRot}, s{T0}, 3"); a(f"s_lshl_b32 s{sRot}, s{sRot}, 2"); a(f"s_lshr_b32 s{T0}, s{T0}, 2"); a(f"s_lshl_b32 s{T0}, s{T0}, 1")
        a(f"s_add_u32 s{sRot}, s{sRot}, s{T0}"); a(f"s_and_b32 s{sRot}, s{sRot}, 15")
    elif mode == 3:
        a(f"s_and_b32 s{sRot}, s{T0}, 3"); a(f"s_lshl_b32 s{sRot}, s{sRot}, 2"); a(f"s_lshr_b32 s{T0}, s{T0}, 2"); a(f"s_lshl_b32 s{T0}, s{T0}, 3")
        a(f"s_add_u32 s{sRot}, s{sRot}, s{T0}"); a(f"s_xor_b32 s{T2}, s{T2}, s{T3}"); a(f"s_and_b32 s{T2}, s{T2}, 1"); a(f"s_lshl_b32 s{T2}, s{T2}, 3")
        a(f"s_add_u32 s{sRot}, s{sRot}, s{T2}"); a(f"s_and_b32 s{sRot}, s{sRot}, 15")
    elif mode == 4:
        a(f"s_xor_b32 s{T2}, s{T2}, s{T3}"); a(f"s_and_b32 s{T2}, s{T2}, 1"); a(f"s_lshl_b32 s{sRot}, s{T2}, 3")
        a(f"s_and_b32 s{T0}, s{T0}, 3"); a(f"s_lshl_b32 s{T0}, s{T0}, 1"); a(f"s_add_u32 s{sRot}, s{sRot}, s{T0}"); a(f"s_and_b32 s{sRot}, s{sRot}, 15")
    elif mode == 5:
        a(f"s_and_b32 s{sRot}, s{T0}, 3"); a(f"s_lshl_b32 s{sRot}, s{sRot}, 2")
    elif mode == 6:
        a(f"s_lshl_b32 s{sRot}, s{T2}, 2"); a(f"s_and_b32 s{T0}, s{T0}, 3"); a(f"s_add_u32 s{sRot}, s{sRot}, s{T0}"); a(f"s_and_b32 s{sRot}, s{sRot}, 15")
    elif mode == 7:
        a(f"s_lshl_b32 s{sRot}, s{T3}, 2"); a(f"s_and_b32 s{T0}, s{T0}, 3"); a(f"s_add_u32 s{sRot}, s{sRot}, s{T0}"); a(f"s_and_b32 s{sRot}, s{sRot}, 15")
    else:
        a(f"s_mov_b32 s{sRot}, 0")
    if C.dbgst:
        pass
    a(f"s_cmp_eq_u32 s{sRole}, 1"); a("s_cbranch_scc1 L_ssm")
    v1, l1 = phase1_dense(a)
    v2, l2 = phase2(a, 1)
    a("s_branch L_fin")
    a.label("L_ssm")
    v3, l3 = phase1_ssm(a)
    v4, l4 = phase2(a, 0)
    a.label("L_fin")
    if C.dbgst: emit_stamps(a)
    a.label("L_end")
    a("s_endpgm")
    a.label("L_codeend")
    nv = max(v1, v2, v3, v4); lds = max(l1, l2, l3, l4)
    assert nv <= 250
    if C.codepf: nv = 251
    head = HEADER + f"; @launch grid=(256,1,1) block=(512,1,1) lds={lds}\n"
    head += '.amdgcn_target "amdgcn-amd-amdhsa--gfx950"\n.text\n'
    return head + a.text() + '.section .rodata,"a"\n' + kernel_desc(NAME, nv, 102)

if __name__ == "__main__":
    kw = json.loads(sys.argv[2]) if len(sys.argv) > 2 else {}
    open(sys.argv[1], "w").write(generate(**kw))
```

```python
import sys, math, json
from asmlib import *

NAME = "gated_mix__ssm_conv_s5__dense_activation_squared_relu__prompt_kernel"
L, D, P_, F = 2048, 1024, 1024, 3584
KC = 2048 + F
RS_A2 = KC * 2
KA = dict(x=0, lre=8, lim=16, bre=24, bim=32, cre=40, cim=48, ldt=56, dsk=64, bx=72, w1=80, b1=88, w2=96, b2=104, gw=112, out=120, dbg=128, ws=136)
WS_A2 = 0
WS_G = 24 << 20
WS_AGG = WS_G + (1 << 16)
WS_MB = WS_AGG + (1 << 17)
WS_ST = WS_AGG + (1 << 18)
WS_XB = 32 << 20
WS_SIZE = 268435456
LOG2E = 0x3fb8aa3b
INV2PI = 0x3e22f983
PTR = {k: 40 + v // 4 for k, v in KA.items()}
DBG_LB = 0
DBG_CNT = 16
DBG_XF = 32

class Cfg:
    dbgst = False; rot = 4; nodma = False; noread = False; prefetch = True
    nAd = 24
    nBs = 8
    ns = 2
    delta = 3
    wt = " sc1"
    a2ld = " sc1"
    wto = ""
    spin = 300000
    sleep = 2
    early = True
    tlb = True
    tlbshift = 21
    codepf = True
    pbar = True
    bulk = False
    pflist = [('w1',0),('x',0),('bre',0),('bim',0),('cre',0),('cim',0),('w2',0)]
    pfit = 13
    span = 1.0
    prio = True
    nbq = 3
    stampset = 'main'
    stwave = 0
C = Cfg()

class Regs:
    def __init__(self, start, limit=256):
        self.n = start; self.limit = limit; self.hi = start
    def get(self, k=1, align=1):
        self.n = (self.n + align - 1) // align * align
        r = self.n; self.n += k
        self.hi = max(self.hi, self.n)
        assert self.n <= self.limit, f"out of registers {self.n} > {self.limit}"
        return r

def srd(a, s, ptr_lo, size):
    if s != ptr_lo:
        a(f"s_mov_b32 s{s}, s{ptr_lo}"); a(f"s_mov_b32 s{s+1}, s{ptr_lo+1}")
    a(f"s_mov_b32 s{s+2}, {size}"); a(f"s_mov_b32 s{s+3}, 0x20000")

_lbl = [0]
def newlabel(p):
    _lbl[0] += 1
    return f"L_{p}{_lbl[0]}"

class OpKC:
    def __init__(self, a, V, T, lds_off, nfr, flags=""):
        self.a, self.T, self.lds_off, self.nfr, self.flags = a, T, lds_off, nfr, flags
        self.n = T // 64
        self.vd = V.get(self.n)
        self.b0 = V.get(); self.c0 = V.get(); self.c1 = V.get()
        self.bytes = T * 128
        self.ldsoffs = [j * 1024 for j in range(self.n)]
    def lane_chunk(self, vdst, t):
        a = self.a
        a(f"v_and_b32 v{vdst}, 7, v0"); a(f"v_lshrrev_b32 v{t}, 4, v0")
        a(f"v_xor_b32 v{vdst}, v{vdst}, v{t}"); a(f"v_lshlrev_b32 v{vdst}, 4, v{vdst}")
    def set_voff(self, j, vlane, sRowBytes, xor64, comp=True):
        a = self.a; d = self.vd + j
        src = vlane
        if xor64 is True:
            a(f"v_xor_b32 v{d}, 64, v{vlane}"); src = d
        elif xor64 is not False:
            a(f"v_xor_b32 v{d}, s{xor64}, v{vlane}"); src = d
        a(f"v_add_u32 v{d}, s{sRowBytes}, v{src}")
    def dma(self, sBuf, sK, stmp, sLds, srds, groups=None):
        g = []
        for grp_i in self.groups:
            for n_, j in enumerate(grp_i):
                grp = []
                if n_ == 0:
                    grp.append(f"s_add_u32 s{stmp}, s{sBuf}, s{sLds}")
                    if self.ldsoffs[j]: grp.append(f"s_add_u32 s{stmp}, s{stmp}, {self.ldsoffs[j]}")
                    grp.append(f"s_mov_b32 m0, s{stmp}")
                    grp.append("s_nop 0")
                off = f" offset:{n_*1024}" if n_ else ""
                s = srds[j]
                grp.append(f"buffer_load_dwordx4 v{self.vd+j}, s[{s}:{s+3}], s{sK} offen{off}{self.flags} lds")
                g.append(grp)
        return g
    def count(self): return (self.n, self.n)
    def setup_read(self, sFrag0, tmp, stmp):
        a = self.a; t0, t1, t2 = tmp, tmp + 1, tmp + 2
        a(f"v_and_b32 v{t0}, 15, v0"); a(f"v_lshrrev_b32 v{t1}, 4, v0"); a(f"v_lshrrev_b32 v{t2}, 1, v{t0}")
        a(f"v_xor_b32 v{t1}, v{t1}, v{t2}"); a(f"v_lshlrev_b32 v{t1}, 4, v{t1}")
        a(f"v_lshl_add_u32 v{t0}, v{t0}, 7, v{t1}")
        a(f"s_lshl_b32 s{stmp}, s{sFrag0}, 11")
        if self.lds_off: a(f"s_add_u32 s{stmp}, s{stmp}, {self.lds_off}")
        a(f"v_add_u32 v{self.b0}, s{stmp}, v{t0}")
    def init_cur(self):
        return [f"v_mov_b32 v{self.c0}, v{self.b0}", f"v_xor_b32 v{self.c1}, 64, v{self.b0}"]
    def frag_off(self, i): return i * 2048
    def reads(self, ks, dst):
        if C.noread: return []
        c = self.c1 if ks else self.c0
        return [[f"ds_read_b128 {vr(dst+4*i,4)}, v{c} offset:{self.frag_off(i)}"] for i in range(self.nfr)]
    def upd_A(self, sBuf): return [f"v_add_u32 v{self.c0}, s{sBuf}, v{self.b0}"]
    def upd_B(self, sBuf): return [f"v_xor_b32 v{self.c1}, 64, v{self.c0}"]

class OpNC:
    def __init__(self, a, V, T, lds_off, nfr, RS, NW=8):
        self.a, self.T, self.lds_off, self.nfr, self.RS = a, T, lds_off, nfr, RS
        self.RP = T * 2; self.CH = self.RP // 16
        self.total = self.CH
        self.n = -(-self.total // NW)
        self.even = (self.total % NW == 0)
        self.nbig = NW if self.even else self.total - (self.n - 1) * NW
        self.vd = V.get(self.n)
        np_ = self.RP // 32
        self.gb = 3 if np_ % 8 == 0 else (2 if np_ % 4 == 0 else 1)
        self.nres = min(1 << self.gb, nfr)
        self.base = V.get(self.nres); self.cur = V.get(self.nres)
        self.bytes = 64 * self.RP
    def g_asm(self, vk, vo, t):
        a = self.a
        if self.gb == 3:
            a(f"v_and_b32 v{vo}, 3, v{vk}"); a(f"v_bfe_u32 v{t}, v{vk}, 3, 1"); a(f"v_lshl_or_b32 v{vo}, v{t}, 2, v{vo}")
        elif self.gb == 2:
            a(f"v_bfe_u32 v{vo}, v{vk}, 1, 1"); a(f"v_bfe_u32 v{t}, v{vk}, 3, 1"); a(f"v_lshl_or_b32 v{vo}, v{t}, 1, v{vo}")
        else:
            a(f"v_bfe_u32 v{vo}, v{vk}, 3, 1")
    def idx0(self, sWave, sOut, stmp):
        a = self.a
        if self.even: a(f"s_mul_i32 s{sOut}, s{sWave}, {self.n}")
        else:
            a(f"s_mul_i32 s{sOut}, s{sWave}, {self.n-1}")
            a(f"s_min_u32 s{stmp}, s{sWave}, {self.nbig}")
            a(f"s_add_u32 s{sOut}, s{sOut}, s{stmp}")
    def setup_dma(self, sWave, tmp, sCol0Bytes, stmp):
        a = self.a; t0, t1, t2, t3 = tmp, tmp + 1, tmp + 2, tmp + 3
        self.idx0(sWave, stmp, stmp + 1)
        magic = (1 << 20) // self.CH + 1
        for L_ in range(self.total * 64 + 64):
            assert (L_ * magic) >> 20 == L_ // self.CH
        for j in range(self.n):
            a(f"s_add_u32 s{stmp+1}, s{stmp}, {j}"); a(f"s_lshl_b32 s{stmp+1}, s{stmp+1}, 6")
            a(f"v_add_u32 v{t0}, s{stmp+1}, v0")
            if self.CH & (self.CH - 1) == 0:
                a(f"v_lshrrev_b32 v{t1}, {int(math.log2(self.CH))}, v{t0}")
                a(f"v_and_b32 v{t0}, {self.CH-1}, v{t0}")
            else:
                a(f"v_mul_u32_u24 v{t1}, {magic}, v{t0}"); a(f"v_lshrrev_b32 v{t1}, 20, v{t1}")
                a(f"v_mul_u32_u24 v{t2}, {self.CH}, v{t1}"); a(f"v_sub_u32 v{t0}, v{t0}, v{t2}")
            self.g_asm(t1, t2, t3)
            a(f"v_lshlrev_b32 v{t2}, 1, v{t2}"); a(f"v_xor_b32 v{t0}, v{t0}, v{t2}")
            a(f"v_mul_u32_u24 v{t1}, {self.RS}, v{t1}")
            a(f"v_lshl_add_u32 v{t0}, v{t0}, 4, v{t1}")
            if j % 4: a(f"s_sub_u32 s{stmp+1}, s{sCol0Bytes}, {(j%4)*1024}"); a(f"v_add_u32 v{self.vd+j}, s{stmp+1}, v{t0}")
            else: a(f"v_add_u32 v{self.vd+j}, s{sCol0Bytes}, v{t0}")
    def setup_lds(self, sWave, sLds, stmp):
        self.idx0(sWave, sLds, stmp)
        self.a(f"s_lshl_b32 s{sLds}, s{sLds}, 10")
        if self.lds_off: self.a(f"s_add_u32 s{sLds}, s{sLds}, {self.lds_off}")
    def dma(self, sBuf, sK, stmp, sLds, srds, sWave=None):
        g = []
        s = srds
        for j in range(self.n):
            grp = []
            guard = (not self.even) and j == self.n - 1
            if guard:
                lbl = newlabel("ncs")
                grp += [f"s_cmp_lt_u32 s{sWave}, {self.nbig}", f"s_cbranch_scc0 {lbl}"]
            if j % 4 == 0:
                grp.append(f"s_add_u32 s{stmp}, s{sBuf}, s{sLds}")
                if j: grp.append(f"s_add_u32 s{stmp}, s{stmp}, {j*1024}")
                grp += [f"s_mov_b32 m0, s{stmp}", "s_nop 0"]
            off = f" offset:{(j%4)*1024}" if j % 4 else ""
            grp.append(f"buffer_load_dwordx4 v{self.vd+j}, s[{s}:{s+3}], s{sK} offen{off} lds")
            if guard: grp.append(f"{lbl}:")
            g.append(grp)
        return g
    def count(self): return (self.n if self.even else self.n - 1, self.n)
    def setup_read(self, sFrag0, tmp, stmp):
        a = self.a; t0, t1, t2 = tmp, tmp + 1, tmp + 2
        a(f"v_lshrrev_b32 v{t0}, 4, v0"); a(f"v_lshlrev_b32 v{t0}, 3, v{t0}")
        a(f"v_bfe_u32 v{t1}, v0, 2, 2"); a(f"v_add_u32 v{t0}, v{t0}, v{t1}")
        self.g_asm(t0, t1, t2)
        a(f"v_mul_u32_u24 v{t0}, {self.RP}, v{t0}")
        a(f"v_and_b32 v{t2}, 3, v0"); a(f"v_lshl_add_u32 v{t0}, v{t2}, 3, v{t0}")
        if self.lds_off: a(f"v_add_u32 v{t0}, {self.lds_off}, v{t0}")
        for r in range(self.nres):
            a(f"s_add_u32 s{stmp}, s{sFrag0}, {r}")
            a(f"v_xor_b32 v{t2}, s{stmp}, v{t1}")
            if r: a(f"v_subrev_u32 v{t2}, {r}, v{t2}")
            a(f"v_lshl_add_u32 v{self.base+r}, v{t2}, 5, v{t0}")
    def init_cur(self):
        return [f"v_mov_b32 v{self.cur+r}, v{self.base+r}" for r in range(self.nres)]
    def reads(self, ks, dst):
        if C.noread: return []
        g = []
        for i in range(self.nfr):
            r = i % (1 << self.gb)
            for h in range(2):
                off = 32 * i + (4 * h + 32 * ks) * self.RP
                g.append([f"ds_read_b64_tr_b16 {vr(dst+4*i+2*h,2)}, v{self.cur+r} offset:{off}"])
        return g
    def upd_A(self, sBuf): return [f"v_add_u32 v{self.cur+r}, s{sBuf}, v{self.base+r}" for r in range(self.nres)]
    def upd_B(self, sBuf): return []

class Seg:
    def __init__(self, P, Q, acc, Pdma, Qdma, kadvP, kadvQ, name):
        self.P, self.Q, self.acc, self.Pdma, self.Qdma, self.kadvP, self.kadvQ, self.name = P, Q, acc, Pdma, Qdma, kadvP, kadvQ, name
        self.xdma = []

class Gemm:
    def __init__(self, a, V, NBP, NBQ, SP, SQ, mp, mq, regs, joint, early=None):
        self.a, self.NBP, self.NBQ, self.SP, self.SQ, self.mp, self.mq, self.joint = a, NBP, NBQ, SP, SQ, mp, mq, joint
        self.sDP, self.sRP, self.sDQ, self.sRQ, self.sCnt, self.sE = regs
        if joint: self.sDQ, self.sRQ = self.sDP, self.sRP
        self.early = early if C.early else None
        self.leadP = NBP - (1 if self.early == 'P' else 0)
        self.leadQ = NBQ - (1 if self.early == 'Q' else 0)
        self.F = []
        for s in range(2):
            p = V.get(4 * mp, 2); q = V.get(4 * mq, 2)
            self.F.append((p, q))
        self.vmq = []
    def emit(self, lines):
        for x in lines:
            if x.endswith(":"): self.a.label(x[:-1])
            else: self.a(x)
    def note(self, tag, n): self.vmq.append((tag, n))
    def vm_allow(self, need):
        last = -1
        for i, (t, n) in enumerate(self.vmq):
            if t in need: last = i
        return min(63, sum(n for t, n in self.vmq[last + 1:]))
    def reads(self, seg, ks, fs):
        p, q = self.F[fs]
        return merge(seg.P.reads(ks, p), seg.Q.reads(ks, q))
    def mfmas(self, seg, fs):
        p, q = self.F[fs]
        return [f"v_mfma_f32_16x16x32_bf16 {vr(c,4)}, {vr(p+4*i,4)}, {vr(q+4*j,4)}, {vr(c,4)}"
                for i in range(self.mp) for j in range(self.mq) for c in [seg.acc + 4 * (i * self.mq + j)]]
    def spread(self, main, fill):
        n = len(main); k = len(fill)
        if k == 0: return list(main)
        span = max(1, min(n, int(n * C.span)))
        out = []; fi = 0
        for i, m in enumerate(main):
            out.append(m)
            while fi < k and (fi * span) // k <= i:
                out.extend(fill[fi]); fi += 1
        while fi < k: out.extend(fill[fi]); fi += 1
        return out
    def ring_adv(self, sD, sR, stride, nb):
        return [f"s_mov_b32 s{sD}, s{sR}", f"s_add_u32 s{sR}, s{sR}, {stride}", f"s_cmp_eq_u32 s{sR}, {stride*nb}", f"s_cselect_b32 s{sR}, 0, s{sR}"]
    def advance(self):
        out = []
        if self.early: out.append(f"s_mov_b32 s{self.sE}, s{self.sDP if (self.joint or self.early == 'P') else self.sDQ}")
        if self.joint: return out + self.ring_adv(self.sDP, self.sRP, self.SP + self.SQ, self.NBP)
        return out + self.ring_adv(self.sDP, self.sRP, self.SP, self.NBP) + self.ring_adv(self.sDQ, self.sRQ, self.SQ, self.NBQ)
    def dma_list(self, which, seg, sBuf):
        if seg is None or C.nodma: return []
        if which == 'P': return seg.Pdma(sBuf) + [list(seg.kadvP)]
        return seg.Qdma(sBuf) + [list(seg.kadvQ)] + seg.xdma
    def body(self, cur, nxt, dP, dQ, vmw, pre_barrier=None, extra=None):
        a = self.a
        self.emit(self.advance())
        a("s_waitcnt lgkmcnt(0)")
        fill = self.reads(cur, 1, 1)
        if nxt is not None: fill.append(nxt.P.upd_A(self.sRP) + nxt.Q.upd_A(self.sRQ))
        if self.early == 'P': fill = merge(fill, self.dma_list('P', dP, self.sE))
        if self.early == 'Q': fill = merge(fill, self.dma_list('Q', dQ, self.sE))
        if nxt is None and extra: fill = fill + extra
        self.emit(self.spread(self.mfmas(cur, 0), fill))
        if nxt is None:
            a("s_waitcnt lgkmcnt(0)")
            self.emit(self.mfmas(cur, 1))
            return
        if pre_barrier: pre_barrier()
        a(f"s_waitcnt vmcnt({vmw}) lgkmcnt(0)")
        a("s_barrier")
        if C.prio: a("s_setprio 1")
        fill = self.reads(nxt, 0, 0)
        d = []
        if self.early != 'P': d += self.dma_list('P', dP, self.sDP)
        if self.early != 'Q': d += self.dma_list('Q', dQ, self.sDQ)
        fill = merge(fill, d)
        u = nxt.P.upd_B(self.sRP) + nxt.Q.upd_B(self.sRQ)
        if u: fill.append(u)
        if extra: fill = fill + extra
        self.emit(self.spread(self.mfmas(cur, 1), fill))
        if C.prio: a("s_setprio 0")
    def prologue(self, stages, which="PQ", first=0, last=None):
        a = self.a
        stride = self.SP + self.SQ if self.joint else None
        if first == 0:
            a(f"s_mov_b32 s{self.sDP}, 0")
            if not self.joint: a(f"s_mov_b32 s{self.sDQ}, 0")
        for s in range(first, max(self.leadP, self.leadQ) if last is None else last):
            if "P" in which and s < self.leadP:
                for g in stages[s].Pdma(self.sDP): self.emit(g)
                self.emit(stages[s].kadvP); self.note(('P', s), stages[s].P.count()[0])
                if not self.joint: a(f"s_add_u32 s{self.sDP}, s{self.sDP}, {self.SP}")
            if "Q" in which and s < self.leadQ:
                for g in stages[s].Qdma(self.sDQ): self.emit(g)
                self.emit(stages[s].kadvQ); self.note(('Q', s), stages[s].Q.count()[0])
                if not self.joint: a(f"s_add_u32 s{self.sDQ}, s{self.sDQ}, {self.SQ}")
            if self.joint: a(f"s_add_u32 s{self.sDP}, s{self.sDP}, {stride}")
    def run(self, stages, hooks=None, extras=None, post_first=None):
        a = self.a; N = len(stages)
        hooks = hooks or {}; extras = extras or {}
        a(f"s_waitcnt vmcnt({self.vm_allow({('P',0),('Q',0)})})")
        if getattr(self, "pre_first", None): self.pre_first()
        a("s_barrier")
        if post_first: post_first()
        seen = []
        for sg in stages:
            for op in (sg.P, sg.Q):
                if op not in seen: seen.append(op); self.emit(op.init_cur())
        if self.joint:
            a(f"s_mov_b32 s{self.sRP}, 0"); a(f"s_mov_b32 s{self.sDP}, {(self.SP+self.SQ)*(self.NBP-1)}")
        else:
            a(f"s_mov_b32 s{self.sRP}, 0"); a(f"s_mov_b32 s{self.sDP}, {self.SP*(self.NBP-1)}")
            a(f"s_mov_b32 s{self.sRQ}, 0"); a(f"s_mov_b32 s{self.sDQ}, {self.SQ*(self.NBQ-1)}")
        for g in self.reads(stages[0], 0, 0): self.emit(g)
        sigs = []
        for i in range(N):
            nxt = stages[i + 1] if i + 1 < N else None
            dP = stages[i + self.leadP] if i + self.leadP < N else None
            dQ = stages[i + self.leadQ] if i + self.leadQ < N else None
            def noteP():
                if dP is not None: self.note(('P', i + self.leadP), dP.P.count()[0])
            def noteQ():
                if dQ is not None:
                    self.note(('Q', i + self.leadQ), dQ.Q.count()[0])
                    if dQ.xdma: self.note(('PF', i), len(dQ.xdma))
            if self.early == 'P': noteP()
            if self.early == 'Q': noteQ()
            vmw = self.vm_allow({('P', i + 1), ('Q', i + 1)}) if nxt is not None else 0
            if self.early != 'P': noteP()
            if self.early != 'Q': noteQ()
            if i in extras: self.note(('X', i), extras[i][1])
            sigs.append((stages[i], nxt, dP, dQ, vmw, i if (i in hooks or i in extras) else -1))
        i = 0
        while i < N:
            j = i
            while j < N and sigs[j] == sigs[i]: j += 1
            cnt = j - i
            cur, nxt, dP, dQ, vmw, sp = sigs[i]
            hk = hooks.get(sp); ex = extras[sp][0] if sp in extras else None
            if cnt >= 2:
                lbl = newlabel("gl")
                a(f"s_mov_b32 s{self.sCnt}, {cnt}")
                a.label(lbl)
                self.body(cur, nxt, dP, dQ, vmw)
                a(f"s_sub_u32 s{self.sCnt}, s{self.sCnt}, 1"); a(f"s_cmp_lg_u32 s{self.sCnt}, 0"); a(f"s_cbranch_scc1 {lbl}")
            else:
                self.body(cur, nxt, dP, dQ, vmw, hk, ex)
            i = j

def merge(x, y):
    out = []; i = j = 0
    while i < len(x) or j < len(y):
        if j >= len(y) or (i < len(x) and i * len(y) <= j * len(x)): out.append(x[i]); i += 1
        else: out.append(y[j]); j += 1
    return out

def bf16_round(a, vdst, vsrc):
    a(f"v_cvt_pk_bf16_f32 v{vdst}, v{vsrc}, v{vsrc}"); a(f"v_lshlrev_b32 v{vdst}, 16, v{vdst}")

def stamp(a, idx, real=False, st="main"):
    if C.dbgst and (real or st == C.stampset):
        a("s_memrealtime s[88:89]" if real else "s_memtime s[88:89]")
        a("s_waitcnt lgkmcnt(0)")
        a(f"s_mov_b32 s{92+idx}, s88")

sWave, sM, sN, sRole = 28, 29, 30, 31
sBufD, sBufR, sCnt, sTmp, sKP, sKQ, sLdsP, sLdsQ = 32, 33, 34, 35, 36, 37, 38, 39
sWp, sWq, sRot, sLdsP2, sKP2, sTile, sTt, sDt = 80, 81, 82, 83, 84, 85, 86, 87
SX, SA, SB_, SWS, SDBG, SS = 4, 8, 12, 16, 20, 24
T0, T1, T2, T3 = 76, 77, 78, 79
U0, U1, U2, U3 = 88, 89, 90, 91
VT = 2

def ssm_param_loads(a, vch, t):
    a(f"v_lshlrev_b32 v{t}, 1, v{vch}")
    for k, name in enumerate(("lre", "lim", "ldt")):
        srd(a, SS, PTR[name], 2048)
        a(f"buffer_load_ushort v{t+1+k}, v{t}, s[{SS}:{SS+3}], 0 offen")

def ssm_params_compute(a, out, t, want_kappa=True):
    lre, lim, ldt = t + 1, t + 2, t + 3
    x0, x1, x2, x3 = t + 4, t + 5, t + 6, t + 7
    lr, li, kr, ki = out, out + 1, out + 2, out + 3
    for r in (lre, lim, ldt): a(f"v_lshlrev_b32 v{r}, 16, v{r}")
    a(f"v_mul_f32 v{x0}, {LOG2E:#x}, v{ldt}"); a(f"v_exp_f32 v{x0}, v{x0}"); a("s_nop 0")
    bf16_round(a, x0, x0)
    a(f"v_mul_f32 v{x1}, v{x0}, v{lre}"); a(f"v_mul_f32 v{x2}, v{x0}, v{lim}")
    a(f"v_mul_f32 v{x1}, {LOG2E:#x}, v{x1}"); a(f"v_exp_f32 v{x1}, v{x1}")
    a(f"v_mul_f32 v{x2}, {INV2PI:#x}, v{x2}"); a(f"v_rndne_f32 v{x3}, v{x2}"); a(f"v_sub_f32 v{x2}, v{x2}, v{x3}")
    a(f"v_cos_f32 v{x3}, v{x2}"); a(f"v_sin_f32 v{x2}, v{x2}"); a("s_nop 0")
    a(f"v_mul_f32 v{lr}, v{x1}, v{x3}"); a(f"v_mul_f32 v{li}, v{x1}, v{x2}")
    if want_kappa:
        a(f"v_subrev_f32 v{x0}, 1.0, v{lr}")
        a(f"v_mul_f32 v{x1}, v{x0}, v{lre}"); a(f"v_fmac_f32 v{x1}, v{li}, v{lim}")
        a(f"v_mul_f32 v{x2}, v{li}, v{lre}"); a(f"v_fma_f32 v{x2}, -v{x0}, v{lim}, v{x2}")
        a(f"v_mul_f32 v{x3}, v{lre}, v{lre}"); a(f"v_fmac_f32 v{x3}, v{lim}, v{lim}")
        a(f"v_rcp_f32 v{x3}, v{x3}"); a("s_nop 0")
        a(f"v_add_f32 v{x3}, v{x3}, v{x3}")
        a(f"v_mul_f32 v{kr}, v{x1}, v{x3}"); a(f"v_mul_f32 v{ki}, v{x2}, v{x3}")

def csq(a, dr, di, sr_, si, t):
    a(f"v_mul_f32 v{t}, v{sr_}, v{si}"); a(f"v_mul_f32 v{dr}, v{sr_}, v{sr_}")
    a(f"v_fma_f32 v{dr}, -v{si}, v{si}, v{dr}"); a(f"v_add_f32 v{di}, v{t}, v{t}")

def gate_row_loads(a, sRow, vx, t):
    a(f"s_lshl_b32 s{U1}, s{sRow}, 11")
    a(f"buffer_load_dwordx4 {vr(vx,4)}, v{t}, s[{SX}:{SX+3}], s{U1} offen")
    a(f"buffer_load_dwordx4 {vr(vx+4,4)}, v{t}, s[{SX}:{SX+3}], s{U1} offen offset:16")

def gate_compute(a, sRow, vx, vw, t):
    acc = t; p0, p1, q0, q1 = t + 1, t + 2, t + 3, t + 4
    a(f"v_mov_b32 v{acc}, 0")
    for d in range(8):
        a(f"v_lshlrev_b32 v{p0}, 16, v{vx+d}"); a(f"v_and_b32 v{p1}, 0xffff0000, v{vx+d}")
        a(f"v_lshlrev_b32 v{q0}, 16, v{vw+d}"); a(f"v_and_b32 v{q1}, 0xffff0000, v{vw+d}")
        a(f"v_mul_f32 v{p0}, v{p0}, v{q0}"); a(f"v_mul_f32 v{p1}, v{p1}, v{q1}")
        a(f"v_cvt_pk_bf16_f32 v{p0}, v{p0}, v{p1}")
        a(f"v_and_b32 v{p1}, 0xffff0000, v{p0}"); a(f"v_lshlrev_b32 v{p0}, 16, v{p0}")
        a(f"v_add_f32 v{acc}, v{acc}, v{p0}"); a(f"v_add_f32 v{acc}, v{acc}, v{p1}")
    for sh in (1, 2, 4, 8):
        a("s_nop 1")
        a(f"v_add_f32_dpp v{acc}, v{acc}, v{acc} row_shr:{sh} row_mask:0xf bank_mask:0xf bound_ctrl:0")
    a("s_nop 1")
    a(f"v_add_f32_dpp v{acc}, v{acc}, v{acc} row_bcast:15 row_mask:0xa bank_mask:0xf")
    a("s_nop 1")
    a(f"v_add_f32_dpp v{acc}, v{acc}, v{acc} row_bcast:31 row_mask:0xc bank_mask:0xf")
    a("s_nop 1")
    a(f"v_readlane_b32 s{U0}, v{acc}, 63")
    a("s_nop 1")
    a(f"v_mov_b32 v{acc}, s{U0}")
    bf16_round(a, acc, acc)
    a(f"v_mul_f32 v{p0}, {LOG2E ^ 0x80000000:#x}, v{acc}"); a(f"v_exp_f32 v{p0}, v{p0}"); a("s_nop 0")
    a(f"v_add_f32 v{p0}, 1.0, v{p0}"); a(f"v_rcp_f32 v{p0}, v{p0}"); a("s_nop 0")
    bf16_round(a, p0, p0)
    a(f"v_sub_f32 v{p1}, 1.0, v{p0}")
    bf16_round(a, p1, p1)
    a(f"s_lshl_b32 s{U0}, s{sRow}, 3"); a(f"s_add_u32 s{U0}, s{U0}, {WS_G}")
    a(f"v_cmp_eq_u32 vcc, 0, v0"); a("s_nop 1")
    a(f"v_cndmask_b32 v{p0}, v{p1}, v{p0}, vcc")
    a(f"v_lshlrev_b32 v{q0}, 2, v0")
    a("s_mov_b64 exec, 3")
    a(f"buffer_store_dword v{p0}, v{q0}, s[{SWS}:{SWS+3}], s{U0} offen sc1")
    a("s_mov_b64 exec, -1")

def mb_zero_issue(a, vt):
    sk = newlabel("mz")
    a(f"s_cmp_lg_u32 s{sWave}, 0"); a(f"s_cbranch_scc1 {sk}")
    a(f"v_mov_b32 v{vt}, 0"); a(f"v_lshlrev_b32 v{vt+1}, 2, v0")
    a(f"s_lshl_b32 s{U0}, s2, 8"); a(f"s_add_u32 s{U0}, s{U0}, {WS_MB}")
    a("s_mov_b64 exec, 15")
    a(f"buffer_store_dword v{vt}, v{vt+1}, s[{SWS}:{SWS+3}], s{U0} offen sc1")
    a("s_mov_b64 exec, -1")
    a.label(sk)

def init_signal(a, vt):
    sk = newlabel("mi")
    a(f"s_cmp_lg_u32 s{sWave}, 0"); a(f"s_cbranch_scc1 {sk}")
    a(f"v_mov_b32 v{vt}, 1"); a(f"v_mov_b32 v{vt+1}, 0")
    a("s_mov_b64 exec, 1")
    a(f"buffer_atomic_add v{vt}, v{vt+1}, s[{SDBG}:{SDBG+3}], 0 offen sc1")
    a("s_mov_b64 exec, -1")
    a.label(sk)

def poll(a, srd_, sByteOff, check, vt, wide=1, sleep=None):
    lp, ok = newlabel("poll"), newlabel("pok")
    a(f"v_mov_b32 v{vt+4}, s{sByteOff}")
    a(f"s_mov_b32 s{U2}, {C.spin}")
    a.label(lp)
    a(f"s_sub_u32 s{U2}, s{U2}, 1"); a(f"s_cmp_eq_u32 s{U2}, 0"); a(f"s_cbranch_scc1 {ok}")
    op = {1: "dword", 2: "dwordx2", 4: "dwordx4"}[wide]
    a(f"buffer_load_{op} {vr(vt,wide)}, v{vt+4}, s[{srd_}:{srd_+3}], 0 offen sc1")
    a("s_waitcnt vmcnt(0)")
    a(f"v_readfirstlane_b32 s{U0}, v{vt}")
    if wide >= 2: a(f"v_readfirstlane_b32 s{U1}, v{vt+1}")
    if wide >= 4: a(f"v_readfirstlane_b32 s{U3}, v{vt+2}")
    a("s_nop 3")
    check(ok)
    a(f"s_sleep {C.sleep if sleep is None else sleep}")
    a(f"s_branch {lp}")
    a.label(ok)

VINIT = 1
def init_load(a):
    sk = newlabel("il")
    a(f"s_cmp_lg_u32 s{sWave}, 0"); a(f"s_cbranch_scc1 {sk}")
    a(f"v_mov_b32 v{VINIT}, 0")
    a(f"buffer_load_dword v{VINIT}, v{VINIT}, s[{SDBG}:{SDBG+3}], 0 offen sc1")
    a.label(sk)

def init_check(a, vt):
    ok = newlabel("ic")
    a(f"v_readfirstlane_b32 s{U0}, v{VINIT}"); a("s_nop 3")
    a(f"s_cmp_ge_u32 s{U0}, 256"); a(f"s_cbranch_scc1 {ok}")
    a(f"s_mov_b32 s{T3}, 0")
    def chk(o): a(f"s_cmp_ge_u32 s{U0}, 256"); a(f"s_cbranch_scc1 {o}")
    poll(a, SDBG, T3, chk, vt, sleep=32)
    a.label(ok)

def poll_own(a, check, vt):
    a(f"s_lshl_b32 s{T3}, s2, 8"); a(f"s_add_u32 s{T3}, s{T3}, {WS_MB}")
    poll(a, SWS, T3, check, vt, wide=4)

def signal_cnt(a, dword, vt):
    NS = C.ns; XS = 8 // NS
    l, t1, t2 = vt, vt + 1, vt + 2
    t3 = vt + 3
    if NS == 2:
        a(f"v_bfe_u32 v{t1}, v0, 3, 1"); a(f"s_lshl_b32 s{T0}, s{sM}, 1"); a(f"v_add_u32 v{t1}, s{T0}, v{t1}")
        a(f"v_bfe_u32 v{t3}, v0, 4, 1")
    else:
        a(f"v_mov_b32 v{t1}, s{sM}")
        a(f"v_bfe_u32 v{t3}, v0, 3, 2")
    a(f"v_lshrrev_b32 v{t2}, 2, v{t1}"); a(f"v_mad_u32_u24 v{t2}, v{t3}, {XS}, v{t2}")
    a(f"v_and_b32 v{t1}, 3, v{t1}"); a(f"v_lshlrev_b32 v{t1}, 2, v{t1}")
    a(f"v_and_b32 v{l}, 3, v0"); a(f"v_or_b32 v{t1}, v{t1}, v{l}")
    a(f"v_bfe_u32 v{l}, v0, 2, 1"); a(f"v_and_b32 v{t3}, 1, v{t3}"); a(f"v_xor_b32 v{l}, v{l}, v{t3}"); a(f"v_xor_b32 v{l}, 1, v{l}")
    a(f"v_lshl_or_b32 v{t1}, v{l}, 4, v{t1}")
    a(f"v_lshl_or_b32 v{t1}, v{t1}, 3, v{t2}")
    a(f"v_lshlrev_b32 v{t1}, 8, v{t1}")
    a(f"v_mov_b32 v{l}, 1")
    a(f"s_mov_b32 s{T0}, {WS_MB + 4*dword}")
    a("s_mov_b32 exec_hi, 0")
    a(f"buffer_atomic_add v{l}, v{t1}, s[{SWS}:{SWS+3}], s{T0} offen sc1")
    a("s_mov_b64 exec, -1")

def bulk_prefetch(a, G, vdummy, vaddr):
    a(f"v_lshlrev_b32 v{vaddr}, 4, v0")
    n = 0
    for name, size in C.pflist:
        size = {"x": L*D*2, "w1": D*F*2, "bre": P_*D*2, "bim": P_*D*2, "cre": D*P_*2, "cim": D*P_*2, "w2": F*D*2}[name]
        share = size // 256; pw = share // 8
        a(f"s_mul_i32 s{U0}, s2, {share}"); a(f"s_mul_i32 s{U1}, s{sWave}, {pw}"); a(f"s_add_u32 s{U0}, s{U0}, s{U1}")
        a(f"s_mov_b32 s{SS}, s{PTR[name]}"); a(f"s_mov_b32 s{SS+1}, s{PTR[name]+1}")
        a(f"s_add_u32 s{SS+2}, s{U0}, {pw}"); a(f"s_mov_b32 s{SS+3}, 0x20000")
        for i in range(-(-pw // 1024)):
            a(f"buffer_load_dwordx4 {vr(vdummy,4)}, v{vaddr}, s[{SS}:{SS+3}], s{U0} offen offset:{i*1024}")
            n += 1
    G.note('pf', n)

def tlb_warm(a, vdummy, vaddr, names, tsrd):
    sizes = {"w2": F*D*2, "cre": D*P_*2, "cim": D*P_*2, "out": L*D*4, "lre": 2048, "lim": 2048, "ldt": 2048, "dsk": 2048, "b2": 2048, "gw": 2048}
    a(f"v_lshlrev_b32 v{vaddr}, {C.tlbshift}, v0")
    end = newlabel("tw")
    for w in range(8):
        nx = newlabel("tw")
        a(f"s_cmp_lg_u32 s{sWave}, {w}"); a(f"s_cbranch_scc1 {nx}")
        for name in names[w::8]:
            if name == "ws":
                a("s_mov_b32 exec_lo, 0x00ffffff"); a("s_mov_b32 exec_hi, 0")
                a(f"buffer_load_dword v{vdummy}, v{vaddr}, s[{SWS}:{SWS+3}], 0 offen")
                a("s_mov_b64 exec, -1")
            elif name == "dbg":
                a(f"buffer_load_dword v{vdummy}, v{vaddr}, s[{SDBG}:{SDBG+3}], 0 offen")
            else:
                a(f"s_mov_b32 s{tsrd}, s{PTR[name]}"); a(f"s_mov_b32 s{tsrd+1}, s{PTR[name]+1}"); a(f"s_mov_b32 s{tsrd+2}, {sizes[name]}"); a(f"s_mov_b32 s{tsrd+3}, 0x20000")
                a(f"buffer_load_dword v{vdummy}, v{vaddr}, s[{tsrd}:{tsrd+3}], 0 offen")
        a(f"s_branch {end}")
        a.label(nx)
    a.label(end)

def phase1_dense(a):
    V = Regs(10)
    TP, TQ = 224, 256
    mp, mq = 7, 4
    Pop = OpNC(a, V, TP, 0, mp, F * 2)
    NBQ = C.nbq
    Qop = OpKC(a, V, TQ, 2 * Pop.bytes, mq); Qop.groups = [[0, 1, 2, 3]]
    G = Gemm(a, V, 2, NBQ, Pop.bytes, Qop.bytes, mp, mq, (sBufD, sBufR, sTile, sTt, sCnt, sRole), False, 'Q')
    LDS1 = 2 * Pop.bytes + NBQ * Qop.bytes
    acc = V.get(4 * mp * mq, 2)
    vb = V.get(2 * mp, 2); vdum = V.get(4, 2)
    a(f"s_lshr_b32 s{sWp}, s{sWave}, 2"); a(f"s_and_b32 s{sWq}, s{sWave}, 3")
    a(f"s_mul_i32 s{T0}, s{sN}, {TP*2}")
    Pop.setup_dma(sWave, VT, T0, U0)
    Qop.lane_chunk(VT, VT + 1)
    a(f"v_lshrrev_b32 v{VT+1}, 3, v0"); a(f"v_lshl_add_u32 v{VT}, v{VT+1}, 11, v{VT}")
    for j in range(4):
        a(f"s_lshl_b32 s{T0}, s{sM}, 8"); a(f"s_lshl_b32 s{T1}, s{sWave}, 5"); a(f"s_add_u32 s{T0}, s{T0}, s{T1}")
        a(f"s_add_u32 s{T0}, s{T0}, {8*j}"); a(f"s_lshl_b32 s{T0}, s{T0}, 11"); a(f"s_sub_u32 s{T0}, s{T0}, {j*1024}")
        Qop.set_voff(j, VT, T0, bool(j & 1))
    Pop.setup_lds(sWave, sLdsP, U0)
    a(f"s_lshl_b32 s{sLdsQ}, s{sWave}, 12"); a(f"s_add_u32 s{sLdsQ}, s{sLdsQ}, {Qop.lds_off}")
    a(f"s_mul_i32 s{sKP}, s{sRot}, {64*F*2}"); a(f"s_lshl_b32 s{sKQ}, s{sRot}, 7")
    a("s_waitcnt lgkmcnt(0)")
    stamp(a, 1, st="pro")
    srd(a, SX, PTR["x"], L * D * 2); srd(a, SWS, PTR["ws"], WS_SIZE); srd(a, SDBG, PTR["dbg"], 256)
    srd(a, SA, PTR["w1"], D * F * 2)
    kadvP = [f"s_add_u32 s{sKP}, s{sKP}, {64*F*2}", f"s_cmp_eq_u32 s{sKP}, {D*F*2}", f"s_cselect_b32 s{sKP}, 0, s{sKP}"]
    kadvQ = [f"s_add_u32 s{sKQ}, s{sKQ}, 128", f"s_and_b32 s{sKQ}, s{sKQ}, 2047"]
    seg = Seg(Pop, Qop, acc, lambda b: Pop.dma(b, sKP, sTmp, sLdsP, SA, sWave), lambda b: Qop.dma(b, sKQ, sTmp, sLdsQ, [SX] * 4), kadvP, kadvQ, "d1")
    stages = [seg] * 16
    G.prologue(stages, "PQ", 0, 1)
    if C.pbar: a("s_barrier")
    if C.tlb: tlb_warm(a, 250, VT + 5, ["ws", "w2", "cre", "cim", "out", "dbg", "dsk", "b2"], SS); G.note('tlb', 1)
    stamp(a, 2, st="pro")
    a(f"s_mul_i32 s{T2}, s{sN}, {TP}"); a(f"s_mul_i32 s{T3}, s{sWp}, {mp*16}"); a(f"s_add_u32 s{T2}, s{T2}, s{T3}")
    a(f"s_lshl_b32 s{T3}, s{T2}, 1")
    a(f"v_lshrrev_b32 v{VT+2}, 4, v0"); a(f"v_lshlrev_b32 v{VT+2}, 3, v{VT+2}")
    srd(a, SS, PTR["b1"], F * 2)
    for i in range(mp):
        a(f"buffer_load_dwordx2 {vr(vb+2*i,2)}, v{VT+2}, s[{SS}:{SS+3}], s{T3} offen offset:{32*i}")
    G.note('misc', mp)
    a(f"s_mul_i32 s{T0}, s{sWp}, {mp}"); Pop.setup_read(T0, VT, U0)
    a(f"s_mul_i32 s{T0}, s{sWq}, {mq}"); Qop.setup_read(T0, VT, U0)
    stamp(a, 3, st="pro")
    G.prologue(stages, "PQ", 1)
    mb_zero_issue(a, VT + 4)
    stamp(a, 4, st="pro")
    a(f"s_waitcnt vmcnt({G.vm_allow({'misc'})})")
    for i in range(mp):
        c = acc + 4 * (i * mq)
        a(f"v_lshlrev_b32 v{c}, 16, v{vb+2*i}"); a(f"v_and_b32 v{c+1}, 0xffff0000, v{vb+2*i}")
        a(f"v_lshlrev_b32 v{c+2}, 16, v{vb+2*i+1}"); a(f"v_and_b32 v{c+3}, 0xffff0000, v{vb+2*i+1}")
        for j in range(1, mq):
            for r in range(4): a(f"v_mov_b32 v{c+4*j+r}, v{c+r}")
    stamp(a, 1)
    G.pre_first = lambda: stamp(a, 5, st="pro")
    G.run(stages, {2: (lambda: init_signal(a, VT + 4))}, None, (lambda: stamp(a, 6, st="pro")))
    stamp(a, 2)
    PITCH = 464
    stamp(a, 1, st="dense")
    init_load(a)
    vw = VT
    a(f"v_and_b32 v{vw}, 15, v0"); a(f"v_mul_u32_u24 v{vw}, {PITCH}, v{vw}")
    a(f"v_lshrrev_b32 v{VT+1}, 4, v0"); a(f"v_lshl_add_u32 v{vw}, v{VT+1}, 3, v{vw}")
    a(f"s_mul_i32 s{T0}, s{sWq}, {64*PITCH}"); a(f"s_mul_i32 s{T1}, s{sWp}, 224"); a(f"s_add_u32 s{T0}, s{T0}, s{T1}")
    a(f"v_add_u32 v{vw}, s{T0}, v{vw}")
    vr_, vg_ = VT + 1, VT + 2
    a(f"v_cmp_le_u32 vcc, 28, v0"); a("s_nop 1")
    a(f"v_cndmask_b32 v{VT+3}, 0, 1, vcc")
    a(f"v_mul_u32_u24 v{VT+4}, 28, v{VT+3}"); a(f"v_sub_u32 v{VT+4}, v0, v{VT+4}")
    a(f"v_lshlrev_b32 v{VT+4}, 4, v{VT+4}")
    a(f"v_mul_u32_u24 v{vr_}, {PITCH}, v{VT+3}"); a(f"v_add_u32 v{vr_}, v{vr_}, v{VT+4}")
    a(f"s_mul_i32 s{T0}, s{sWq}, {64*PITCH}"); a(f"s_mul_i32 s{T1}, s{sWp}, {32*PITCH}"); a(f"s_add_u32 s{T0}, s{T0}, s{T1}")
    a(f"v_add_u32 v{vr_}, s{T0}, v{vr_}")
    a(f"v_mul_u32_u24 v{vg_}, {RS_A2}, v{VT+3}"); a(f"v_add_u32 v{vg_}, v{vg_}, v{VT+4}")
    a(f"s_lshl_b32 s{T0}, s{sM}, 8"); a(f"s_lshl_b32 s{T1}, s{sWq}, 6"); a(f"s_add_u32 s{T0}, s{T0}, s{T1}")
    a(f"s_lshl_b32 s{T1}, s{sWp}, 5"); a(f"s_add_u32 s{T0}, s{T0}, s{T1}")
    a(f"s_mul_i32 s{T0}, s{T0}, {RS_A2}"); a(f"s_mul_i32 s{T1}, s{sN}, 448"); a(f"s_add_u32 s{T0}, s{T0}, s{T1}")
    a(f"s_add_u32 s{T0}, s{T0}, {WS_A2 + 4096}")
    for j in range(mq):
        for i in range(mp):
            c = acc + 4 * (i * mq + j)
            for r in range(4): a(f"v_mul_f32_e64 v{c+r}, v{c+r}, |v{c+r}|")
            a(f"v_cvt_pk_bf16_f32 v{c}, v{c}, v{c+1}"); a(f"v_cvt_pk_bf16_f32 v{c+1}, v{c+2}, v{c+3}")
            a(f"v_pk_max_i16 v{c}, v{c}, 0"); a(f"v_pk_max_i16 v{c+1}, v{c+1}, 0")
    a("s_barrier")
    stamp(a, 2, st="dense")
    for j in range(mq):
        for i in range(mp):
            c = acc + 4 * (i * mq + j)
            a(f"ds_write_b64 v{vw}, {vr(c,2)} offset:{j*16*PITCH + 32*i}")
    a("s_waitcnt lgkmcnt(0)")
    stamp(a, 3, st="dense")
    a("s_barrier")
    stamp(a, 4, st="dense")
    a("s_mov_b32 exec_hi, 0x00ffffff")
    rb = acc
    for n in range(16):
        a(f"ds_read_b128 {vr(rb+4*n,4)}, v{vr_} offset:{2*n*PITCH}")
    for n in range(16):
        a(f"s_waitcnt lgkmcnt({15-n})")
        a(f"buffer_store_dwordx4 {vr(rb+4*n,4)}, v{vg_}, s[{SWS}:{SWS+3}], s{T0} offen{C.wt}")
        a(f"s_add_u32 s{T0}, s{T0}, {2*RS_A2}")
    a("s_mov_b64 exec, -1")
    stamp(a, 5, st="dense")
    return V.hi, max(LDS1, 4 * 64 * PITCH)

def phase1_ssm(a):
    V = Regs(10)
    mp, mq = 4, 4
    Pop = OpKC(a, V, 256, 0, mp); Pop.groups = [[0, 1, 2, 3]]
    Qop = OpKC(a, V, 128, Pop.bytes, mq); Qop.groups = [[0], [1]]; Qop.ldsoffs = [0, 8192]
    Qop.frag_off = lambda j: ((j & 1) * 4 + (j >> 1)) * 2048
    SB = Pop.bytes + Qop.bytes; NB = 3
    G = Gemm(a, V, NB, NB, Pop.bytes, Qop.bytes, mp, mq, (sBufD, sBufR, None, None, sCnt, sRole), True, 'P')
    acc = V.get(64, 2); prm = V.get(12, 4); big = V.get(72, 4)
    AG = NB * SB
    a(f"s_lshr_b32 s{sWp}, s{sWave}, 1"); a(f"s_and_b32 s{sWq}, s{sWave}, 1")
    Pop.lane_chunk(VT, VT + 1)
    a(f"v_lshrrev_b32 v{VT+1}, 5, v0"); a(f"v_lshlrev_b32 v{VT+1}, 4, v{VT+1}")
    a(f"v_bfe_u32 v{VT+2}, v0, 3, 2"); a(f"v_add_u32 v{VT+1}, v{VT+1}, v{VT+2}")
    a(f"v_lshl_add_u32 v{VT+3}, v{VT+1}, 11, v{VT}")
    for j in range(4):
        a(f"s_lshl_b32 s{T0}, s{sWave}, 1");
        if j >> 1: a(f"s_add_u32 s{T0}, s{T0}, 1")
        a(f"s_and_b32 s{T0}, s{T0}, 3"); a(f"s_lshl_b32 s{T0}, s{T0}, 2")
        a(f"s_lshl_b32 s{T1}, s{sWp}, 6"); a(f"s_add_u32 s{T0}, s{T0}, s{T1}")
        a(f"s_lshl_b32 s{T1}, s{sM}, 8"); a(f"s_add_u32 s{T0}, s{T0}, s{T1}")
        if j & 1: a(f"s_add_u32 s{T0}, s{T0}, 32")
        a(f"s_lshl_b32 s{T0}, s{T0}, 11")
        if j: a(f"s_sub_u32 s{T0}, s{T0}, {j*1024}")
        Pop.set_voff(j, VT + 3, T0, bool(j & 1))
    a(f"v_lshrrev_b32 v{VT+1}, 3, v0"); a(f"v_lshl_add_u32 v{VT+3}, v{VT+1}, 12, v{VT}")
    a(f"s_lshr_b32 s{T0}, s{sWave}, 2"); a(f"s_lshl_b32 s{T0}, s{T0}, 5")
    a(f"s_and_b32 s{T1}, s{sWave}, 1"); a(f"s_lshl_b32 s{T2}, s{T1}, 6"); a(f"s_lshl_b32 s{T1}, s{T1}, 4"); a(f"s_add_u32 s{T0}, s{T0}, s{T1}")
    a(f"s_bfe_u32 s{T1}, s{sWave}, 0x10001"); a(f"s_add_u32 s{T0}, s{T0}, s{T1}")
    a(f"s_lshl_b32 s{T1}, s{sN}, 6"); a(f"s_add_u32 s{T0}, s{T0}, s{T1}"); a(f"s_lshl_b32 s{T0}, s{T0}, 11")
    Qop.set_voff(0, VT + 3, T0, T2)
    a(f"v_mov_b32 v{Qop.vd+1}, v{Qop.vd}")
    a(f"s_lshl_b32 s{sLdsP}, s{sWave}, 12")
    a(f"s_lshl_b32 s{sLdsQ}, s{sWave}, 10"); a(f"s_add_u32 s{sLdsQ}, s{sLdsQ}, {Qop.lds_off}")
    a(f"s_lshl_b32 s{sKQ}, s{sRot}, 7")
    a("s_waitcnt lgkmcnt(0)")
    srd(a, SX, PTR["x"], L * D * 2); srd(a, SWS, PTR["ws"], WS_SIZE); srd(a, SDBG, PTR["dbg"], 256)
    srd(a, SA, PTR["bre"], P_ * D * 2); srd(a, SB_, PTR["bim"], P_ * D * 2)
    pt = [big, big + 8, big + 16]
    kadv = [f"s_add_u32 s{sKQ}, s{sKQ}, 128", f"s_and_b32 s{sKQ}, s{sKQ}, 2047"]
    kadvP = [f"s_add_u32 s{sKP}, s{sKP}, 128", f"s_and_b32 s{sKP}, s{sKP}, 2047"]
    a(f"s_mov_b32 s{sKP}, s{sKQ}")
    seg = Seg(Pop, Qop, acc, lambda b: Pop.dma(b, sKP, sTmp, sLdsP, [SX] * 4), lambda b: Qop.dma(b, sKQ, sTmp, sLdsQ, [SA, SB_]), kadvP, kadv, "s1")
    if C.prefetch:
        SP1, SP2, sPF1, sPF2 = SS, 72, sLdsP2, sKP2
        a(f"s_lshl_b32 s{T0}, s{sM}, 4"); a(f"s_add_u32 s{T0}, s{T0}, s{sN}")
        a(f"s_mul_i32 s{sPF2}, s{T0}, {56*1024}"); a(f"s_mul_i32 s{T1}, s{sWave}, {7*1024}"); a(f"s_add_u32 s{sPF2}, s{sPF2}, s{T1}")
        a(f"s_mov_b32 s{SP2}, s{PTR['w2']}"); a(f"s_mov_b32 s{SP2+1}, s{PTR['w2']+1}")
        a(f"s_add_u32 s{SP2+2}, s{sPF2}, {7*1024}"); a(f"s_mov_b32 s{SP2+3}, 0x20000")
        a(f"s_lshr_b32 s{T1}, s{T0}, 6"); a(f"s_cmp_eq_u32 s{T1}, 0")
        a(f"s_cselect_b32 s{SP1}, s{PTR['cre']}, s{PTR['cim']}"); a(f"s_cselect_b32 s{SP1+1}, s{PTR['cre']+1}, s{PTR['cim']+1}")
        a(f"s_and_b32 s{sPF1}, s{T0}, 63"); a(f"s_lshl_b32 s{sPF1}, s{sPF1}, 15"); a(f"s_lshl_b32 s{T1}, s{sWave}, 12"); a(f"s_add_u32 s{sPF1}, s{sPF1}, s{T1}")
        a(f"s_add_u32 s{SP1+2}, s{sPF1}, 4096"); a(f"s_mov_b32 s{SP1+3}, 0x20000")
        vpf = V.get(1); vpd = V.get(4, 2)
        a(f"v_lshlrev_b32 v{vpf}, 4, v0")
        pf = []
        for i in range(4): pf.append([f"buffer_load_dwordx4 {vr(vpd,4)}, v{vpf}, s[{SP1}:{SP1+3}], s{sPF1} offen offset:{i*1024}"])
        for i in range(7):
            pf.append([f"buffer_load_dwordx4 {vr(vpd,4)}, v{vpf}, s[{SP2}:{SP2+3}], s{sPF2} offen offset:{(i%4)*1024}"] + ([f"s_add_u32 s{sPF2}, s{sPF2}, 4096"] if i == 3 else []))
        p1extras = {C.pfit: (pf, 11)}
    else:
        p1extras = {}
    stages = [seg] * 16
    G.prologue(stages, "PQ", 0, 1)
    a(f"s_mul_i32 s{T0}, s{sWp}, {mp}"); Pop.setup_read(T0, VT, U0)
    a(f"s_lshl_b32 s{T0}, s{sWq}, 1"); Qop.setup_read(T0, VT, U0)
    for i in range(64): a(f"v_mov_b32 v{acc+i}, 0")
    if C.pbar: a("s_barrier")
    if C.tlb: tlb_warm(a, 250, VT + 5, ["ws", "w2", "cre", "cim", "out", "dbg", "dsk", "b2", "lre", "lim", "ldt", "gw"], 60); G.note('tlb', 1)
    G.prologue(stages, "PQ", 1)
    mb_zero_issue(a, VT + 4)
    SPRM = 60
    def prm_loads():
        out = []
        class Cap:
            def __call__(self, x): out.append([x])
        c = Cap()
        c(f"s_lshl_b32 s{T2}, s{sN}, 6"); c(f"s_lshl_b32 s{T3}, s{sWq}, 5"); c(f"s_add_u32 s{T3}, s{T3}, s{T2}")
        c(f"v_and_b32 v{VT}, 15, v0"); c(f"v_lshlrev_b32 v{VT}, 1, v{VT}"); c(f"v_add_u32 v{VT}, s{T3}, v{VT}")
        c(f"v_lshlrev_b32 v{pt[0]}, 1, v{VT}"); c(f"v_add_u32 v{pt[1]}, 2, v{pt[0]}")
        c(f"v_add_u32 v{pt[2]}, s{T2}, v0"); c(f"v_lshlrev_b32 v{pt[2]}, 1, v{pt[2]}")
        c(f"s_mov_b32 s{SPRM+2}, 2048"); c(f"s_mov_b32 s{SPRM+3}, 0x20000")
        for k, name in enumerate(("lre", "lim", "ldt")):
            out.append([f"s_mov_b32 s{SPRM}, s{PTR[name]}", f"s_mov_b32 s{SPRM+1}, s{PTR[name]+1}"] +
                       [f"buffer_load_ushort v{pt[q]+1+k}, v{pt[q]}, s[{SPRM}:{SPRM+3}], 0 offen" for q in range(3)])
        return out
    def prm_math():
        out = []
        class Cap:
            def __call__(self, x): out.append(x)
        c = Cap()
        ssm_params_compute(c, prm, pt[0]); ssm_params_compute(c, prm + 4, pt[1]); ssm_params_compute(c, prm + 8, pt[2], False)
        return [out[i:i + 4] for i in range(0, len(out), 4)]
    p1extras[3] = (prm_loads(), 9)
    p1extras[7] = (prm_math(), 0)
    stamp(a, 1)
    G.run(stages, {2: (lambda: init_signal(a, VT + 4))}, p1extras)
    stamp(a, 2)
    stamp(a, 1, st="ssm")
    init_load(a)
    a("s_nop 7")
    def U(jc, ri, s): return acc + 4 * ((s >> 2) * 4 + 2 * jc + ri) + (s & 3)
    ag = big; tt = big + 4
    def scan_step(s):
        for jc in range(2):
            hr, hi_ = ag + 2 * jc, ag + 2 * jc + 1; lr = prm + 4 * jc; t0, t1 = tt + 2 * jc, tt + 2 * jc + 1
            a(f"v_fma_f32 v{t0}, v{lr}, v{hr}, v{U(jc,0,s)}"); a(f"v_fma_f32 v{t1}, v{lr}, v{hi_}, v{U(jc,1,s)}")
        for jc in range(2):
            hr, hi_ = ag + 2 * jc, ag + 2 * jc + 1; li = prm + 4 * jc + 1; t0, t1 = tt + 2 * jc, tt + 2 * jc + 1
            a(f"v_fma_f32 v{hi_}, v{li}, -v{hi_}, v{t0}")
            a(f"v_fma_f32 v{t1}, v{li}, v{hr}, v{t1}")
        for jc in range(2):
            hr, hi_ = ag + 2 * jc, ag + 2 * jc + 1; t1 = tt + 2 * jc + 1
            a(f"v_mov_b32 v{hr}, v{hi_}"); a(f"v_mov_b32 v{hi_}, v{t1}")
    for jc in range(2):
        a(f"v_mov_b32 v{ag+2*jc}, v{U(jc,0,0)}"); a(f"v_mov_b32 v{ag+2*jc+1}, v{U(jc,1,0)}")
    def scan2(s, src, dst):
        for jc in range(2):
            hr, hi_ = src + 2 * jc, src + 2 * jc + 1; lr = prm + 4 * jc; dr, di = dst + 2 * jc, dst + 2 * jc + 1
            a(f"v_fma_f32 v{dr}, v{lr}, v{hr}, v{U(jc,0,s)}"); a(f"v_fma_f32 v{di}, v{lr}, v{hi_}, v{U(jc,1,s)}")
        for jc in range(2):
            hr, hi_ = src + 2 * jc, src + 2 * jc + 1; li = prm + 4 * jc + 1; dr, di = dst + 2 * jc, dst + 2 * jc + 1
            a(f"v_fma_f32 v{dr}, -v{li}, v{hi_}, v{dr}"); a(f"v_fma_f32 v{di}, v{li}, v{hr}, v{di}")
    st = [ag, tt]
    for s in range(1, 16): scan2(s, st[(s - 1) & 1], st[s & 1])
    fin = st[15 & 1]
    vag = big + 8
    def calc_vag():
        a(f"v_lshrrev_b32 v{vag}, 4, v0"); a(f"s_lshl_b32 s{T0}, s{sWp}, 2"); a(f"v_add_u32 v{vag}, s{T0}, v{vag}")
        a(f"v_lshlrev_b32 v{vag}, 9, v{vag}")
        a(f"v_and_b32 v{big+9}, 15, v0"); a(f"v_lshlrev_b32 v{big+9}, 4, v{big+9}")
        a(f"s_lshl_b32 s{T0}, s{sWq}, 8"); a(f"s_add_u32 s{T0}, s{T0}, {AG}")
        a(f"v_add3_u32 v{vag}, v{vag}, v{big+9}, s{T0}")
    calc_vag()
    a(f"ds_write_b128 v{vag}, {vr(fin,4)}")
    a("s_waitcnt lgkmcnt(0)")
    a("s_barrier")
    stamp(a, 2, st="ssm")
    a(f"s_cmp_lg_u32 s{sWave}, 0")
    a("s_cbranch_scc1 L_s_gate")
    lr, li = prm + 8, prm + 9
    l16r, l16i, l256r, l256i = big + 10, big + 11, big + 12, big + 13
    er, ei = big + 14, big + 15
    w0 = big + 4
    A = big + 16; vl = big + 9
    a(f"v_lshlrev_b32 v{vl}, 3, v0"); a(f"v_add_u32 v{vl}, {AG}, v{vl}")
    for s in range(16): a(f"ds_read_b64 {vr(A+2*s,2)}, v{vl} offset:{s*512}")
    csq(a, l16r, l16i, lr, li, w0)
    for _ in range(3): csq(a, l16r, l16i, l16r, l16i, w0)
    csq(a, l256r, l256i, l16r, l16i, w0)
    for _ in range(3): csq(a, l256r, l256i, l256r, l256i, w0)
    a("s_waitcnt lgkmcnt(0)")
    x0, x1 = big + 6, big + 7
    for s in range(1, 16):
        pr, pi, cr_, ci_ = A + 2 * (s - 1), A + 2 * (s - 1) + 1, A + 2 * s, A + 2 * s + 1
        a(f"v_fma_f32 v{cr_}, v{l16r}, v{pr}, v{cr_}"); a(f"v_fma_f32 v{ci_}, v{l16r}, v{pi}, v{ci_}")
        a(f"v_fma_f32 v{cr_}, -v{l16i}, v{pi}, v{cr_}"); a(f"v_fma_f32 v{ci_}, v{l16i}, v{pr}, v{ci_}")
    er, ei = A + 30, A + 31
    vo = big + 8
    a(f"s_lshl_b32 s{T0}, s{sN}, 6"); a(f"v_add_u32 v{vo}, s{T0}, v0"); a(f"v_lshlrev_b32 v{vo}, 3, v{vo}")
    a(f"s_lshl_b32 s{T1}, s{sM}, 13"); a(f"s_add_u32 s{T1}, s{T1}, {WS_AGG}")
    a(f"buffer_store_dwordx2 {vr(er,2)}, v{vo}, s[{SWS}:{SWS+3}], s{T1} offen sc1")
    a("s_waitcnt vmcnt(0)")
    init_check(a, big + 52)
    a(f"v_and_b32 v{x0}, 3, v0"); a(f"v_lshlrev_b32 v{x0}, 2, v{x0}")
    a(f"s_and_b32 s{T0}, s{sN}, 3"); a(f"s_add_u32 s{T0}, s{T0}, 16"); a(f"v_add_u32 v{x0}, s{T0}, v{x0}"); a(f"v_lshlrev_b32 v{x0}, 3, v{x0}")
    a(f"v_and_b32 v{x1}, 4, v0"); a(f"s_lshr_b32 s{T0}, s{sN}, 2"); a(f"v_add3_u32 v{x0}, v{x0}, v{x1}, s{T0}")
    a(f"v_lshlrev_b32 v{x0}, 8, v{x0}"); a(f"v_mov_b32 v{x1}, 1")
    a(f"s_lshl_b32 s{T0}, 2, s{sM}"); a(f"s_sub_u32 s{T0}, s{T0}, 1"); a(f"s_andn2_b32 s{T0}, 0xff, s{T0}")
    a(f"s_cmp_eq_u32 s{T0}, 0"); a("s_cbranch_scc1 L_s_nosig")
    a(f"s_mov_b32 exec_lo, s{T0}"); a("s_mov_b32 exec_hi, 0"); a(f"s_mov_b32 s{T1}, {WS_MB}")
    a(f"buffer_atomic_add v{x1}, v{x0}, s[{SWS}:{SWS+3}], s{T1} offen sc1")
    a("s_mov_b64 exec, -1")
    a.label("L_s_nosig")
    stamp(a, 3, st="ssm")
    cr, ci = big + 48, big + 49
    a(f"v_mov_b32 v{cr}, 0"); a(f"v_mov_b32 v{ci}, 0")
    a(f"s_cmp_eq_u32 s{sM}, 0"); a("s_cbranch_scc1 L_s_nolb")
    def chk(ok):
        a(f"s_cmp_eq_u32 s{U0}, s{sM}"); a(f"s_cbranch_scc1 {ok}")
    poll_own(a, chk, big + 52)
    B = big + 50
    for j in range(7):
        a(f"s_mov_b32 s{T1}, {WS_AGG + j*8192}")
        a(f"buffer_load_dwordx2 {vr(B+2*j,2)}, v{vo}, s[{SWS}:{SWS+3}], s{T1} offen sc1")
    a("s_waitcnt vmcnt(0)")
    for j in range(7):
        a(f"s_cmp_le_u32 s{sM}, {j}"); a("s_cbranch_scc1 L_s_nolb")
        a(f"v_fma_f32 v{x0}, v{l256r}, v{cr}, v{B+2*j}"); a(f"v_fma_f32 v{x1}, v{l256r}, v{ci}, v{B+2*j+1}")
        a(f"v_fma_f32 v{x0}, -v{l256i}, v{ci}, v{x0}"); a(f"v_fma_f32 v{ci}, v{l256i}, v{cr}, v{x1}")
        a(f"v_mov_b32 v{cr}, v{x0}")
    a.label("L_s_nolb")
    stamp(a, 4, st="ssm")
    a(f"ds_write_b64 v{vl}, {vr(cr,2)}")
    for s in range(1, 16):
        a(f"v_mul_f32 v{x0}, v{l16r}, v{cr}"); a(f"v_mul_f32 v{x1}, v{l16r}, v{ci}")
        a(f"v_fma_f32 v{x0}, -v{l16i}, v{ci}, v{x0}"); a(f"v_fma_f32 v{ci}, v{l16i}, v{cr}, v{x1}")
        a(f"v_mov_b32 v{cr}, v{x0}")
        a(f"v_add_f32 v{A+2*(s-1)}, v{A+2*(s-1)}, v{cr}"); a(f"v_add_f32 v{A+2*(s-1)+1}, v{A+2*(s-1)+1}, v{ci}")
        a(f"ds_write_b64 v{vl}, {vr(A+2*(s-1),2)} offset:{s*512}")
    a("s_waitcnt lgkmcnt(0)")
    a("s_branch L_s_wait")
    a.label("L_s_gate")
    gxs = [big + 16, big + 24, big + 32]; gws = big + 40; gt = big + 48
    a(f"s_lshl_b32 s{T0}, s{sM}, 8"); a(f"s_lshl_b32 s{T1}, s{sN}, 4"); a(f"s_add_u32 s{T0}, s{T0}, s{T1}")
    a(f"s_add_u32 s{T0}, s{T0}, s{sWave}"); a(f"s_sub_u32 s{T0}, s{T0}, 1")
    a(f"s_add_u32 s{T1}, s{T0}, 7"); a(f"s_add_u32 s{T2}, s{T0}, 14")
    a(f"v_lshlrev_b32 v{gt}, 5, v0")
    srd(a, SS, PTR["gw"], 2048)
    a(f"buffer_load_dwordx4 {vr(gws,4)}, v{gt}, s[{SS}:{SS+3}], 0 offen"); a(f"buffer_load_dwordx4 {vr(gws+4,4)}, v{gt}, s[{SS}:{SS+3}], 0 offen offset:16")
    gate_row_loads(a, T0, gxs[0], gt); gate_row_loads(a, T1, gxs[1], gt)
    a(f"s_cmp_gt_u32 s{sWave}, 2"); a("s_cbranch_scc1 L_s_g2")
    gate_row_loads(a, T2, gxs[2], gt)
    a("s_waitcnt vmcnt(0)")
    gate_compute(a, T2, gxs[2], gws, gt + 1)
    a.label("L_s_g2")
    a("s_waitcnt vmcnt(0)")
    gate_compute(a, T0, gxs[0], gws, gt + 1); gate_compute(a, T1, gxs[1], gws, gt + 1)
    a.label("L_s_wait")
    a("s_barrier")
    calc_vag()
    a(f"ds_read_b128 {vr(ag,4)}, v{vag}")
    PITCH = 272
    vw = big + 9
    a(f"v_lshrrev_b32 v{vw}, 4, v0"); a(f"v_lshlrev_b32 v{vw}, 4, v{vw}"); a(f"s_lshl_b32 s{T0}, s{sWp}, 6"); a(f"v_add_u32 v{vw}, s{T0}, v{vw}")
    a(f"v_mul_u32_u24 v{vw}, {PITCH}, v{vw}")
    a(f"v_and_b32 v{big+10}, 15, v0"); a(f"v_lshl_add_u32 v{vw}, v{big+10}, 2, v{vw}")
    a(f"s_lshl_b32 s{T0}, s{sWq}, 6"); a(f"v_add_u32 v{vw}, s{T0}, v{vw}")
    a("s_waitcnt lgkmcnt(0)")
    ore, oim, od = big + 12, big + 14, big + 16
    st = [ag, tt]
    for s in range(16):
        scan2(s, st[s & 1], st[(s + 1) & 1])
        h = st[(s + 1) & 1]
        for jc in range(2):
            hr, hi_ = h + 2 * jc, h + 2 * jc + 1; kr, ki = prm + 4 * jc + 2, prm + 4 * jc + 3
            a(f"v_mul_f32 v{ore+jc}, v{kr}, v{hr}"); a(f"v_mul_f32 v{oim+jc}, -v{kr}, v{hi_}")
        for jc in range(2):
            hr, hi_ = h + 2 * jc, h + 2 * jc + 1; kr, ki = prm + 4 * jc + 2, prm + 4 * jc + 3
            a(f"v_fma_f32 v{ore+jc}, -v{ki}, v{hi_}, v{ore+jc}"); a(f"v_fma_f32 v{oim+jc}, -v{ki}, v{hr}, v{oim+jc}")
        d = od + 2 * (s % 4)
        a(f"v_cvt_pk_bf16_f32 v{d}, v{ore}, v{ore+1}"); a(f"v_cvt_pk_bf16_f32 v{d+1}, v{oim}, v{oim+1}")
        a(f"ds_write_b32 v{vw}, v{d} offset:{s*PITCH}"); a(f"ds_write_b32 v{vw}, v{d+1} offset:{s*PITCH+128}")
    stamp(a, 5, st="ssm")
    vr_, vg_ = big + 10, big + 11
    a(f"v_lshrrev_b32 v{vr_}, 4, v0"); a(f"s_lshl_b32 s{T0}, s{sWave}, 5"); a(f"v_add_u32 v{vr_}, s{T0}, v{vr_}")
    a(f"s_lshl_b32 s{T1}, s{sM}, 8"); a(f"v_add_u32 v{vg_}, s{T1}, v{vr_}"); a(f"v_mul_u32_u24 v{vg_}, {RS_A2}, v{vg_}")
    a(f"v_mul_u32_u24 v{vr_}, {PITCH}, v{vr_}")
    a(f"v_and_b32 v{big+12}, 15, v0"); a(f"v_lshl_add_u32 v{vr_}, v{big+12}, 4, v{vr_}")
    a(f"v_and_b32 v{big+13}, 7, v0"); a(f"v_lshl_add_u32 v{vg_}, v{big+13}, 4, v{vg_}")
    a(f"v_bfe_u32 v{big+13}, v0, 3, 1"); a(f"v_lshl_add_u32 v{vg_}, v{big+13}, 11, v{vg_}")
    a(f"s_lshl_b32 s{T0}, s{sN}, 7"); a(f"s_add_u32 s{T0}, s{T0}, {WS_A2}")
    a("s_waitcnt lgkmcnt(0)")
    a("s_barrier")
    rb = acc
    for n in range(8): a(f"ds_read_b128 {vr(rb+4*n,4)}, v{vr_} offset:{4*n*PITCH}")
    for n in range(8):
        a(f"s_waitcnt lgkmcnt({7-n})")
        a(f"buffer_store_dwordx4 {vr(rb+4*n,4)}, v{vg_}, s[{SWS}:{SWS+3}], s{T0} offen{C.wt}")
        a(f"s_add_u32 s{T0}, s{T0}, {4*RS_A2}")
    stamp(a, 6, st="ssm")
    return V.hi, AG + 8192

def phase2(a, role):
    R = "A" if role == 0 else "B"
    SW2, SE = 24, 72
    NS = C.ns
    TQ = 128 if NS == 2 else 256
    TP, mp, mq, NB = 128, 4, NS, (4 if NS == 2 else 3)
    LG = 1 if NS == 2 else 2
    XS = 8 // NS
    sG, sKQ2 = 0, 3
    V = Regs(10)
    P1 = OpKC(a, V, TP, 0, mp); P1.groups = [[0, 1]]
    P2 = OpNC(a, V, TP, 0, mp, D * 2)
    Qop = OpKC(a, V, TQ, TP * 128, mq, flags=C.a2ld); Qop.groups = [list(range(Qop.n))]
    SB = TP * 128 + Qop.bytes
    G = Gemm(a, V, NB, NB, TP * 128, Qop.bytes, mp, mq, (sBufD, sBufR, None, None, sCnt, sRole), True, 'P' if NS == 2 else 'Q')
    nf = mp * mq
    accD = V.get(4 * nf, 2)
    accS = V.get(4 * nf, 2)
    vg = V.get(2 * mq, 2); vep = V.get(4)
    vex = V.get(6 * mp, 2) if NS == 2 else accS
    dense = 1 if role == 1 else 0
    a(f"s_and_b32 s{T0}, s2, 7"); a(f"s_lshr_b32 s{T1}, s2, 3")
    a(f"s_lshr_b32 s{sG}, s{T0}, {3-LG}")
    a(f"s_and_b32 s{T2}, s{T0}, {XS-1}"); a(f"s_lshl_b32 s{sTt}, s{T2}, 2"); a(f"s_bfe_u32 s{T2}, s{T1}, 0x20002"); a(f"s_add_u32 s{sTt}, s{sTt}, s{T2}")
    a(f"s_and_b32 s{T2}, s{sG}, 1")
    if dense: a(f"s_xor_b32 s{T2}, s{T2}, 1")
    a(f"s_lshl_b32 s{sDt}, s{T2}, 2"); a(f"s_and_b32 s{T2}, s{T1}, 3"); a(f"s_add_u32 s{sDt}, s{sDt}, s{T2}")
    a(f"s_lshl_b32 s{sTile}, s{sTt}, 3"); a(f"s_add_u32 s{sTile}, s{sTile}, s{sDt}")
    a(f"s_lshr_b32 s{sWp}, s{sWave}, 2"); a(f"s_and_b32 s{sWq}, s{sWave}, 3")
    srd(a, SW2, PTR["w2"], F * D * 2)
    a(f"s_lshr_b32 s{T0}, s{sG}, {LG-1}"); a(f"s_cmp_eq_u32 s{T0}, 0")
    a(f"s_cselect_b32 s{SA}, s{PTR['cre']}, s{PTR['cim']}"); a(f"s_cselect_b32 s{SA+1}, s{PTR['cre']+1}, s{PTR['cim']+1}")
    a(f"s_mov_b32 s{SA+2}, {D*P_*2}"); a(f"s_mov_b32 s{SA+3}, 0x20000")
    Qop.lane_chunk(VT, VT + 1)
    a(f"v_lshrrev_b32 v{VT+1}, 3, v0"); a(f"v_lshl_add_u32 v{VT+3}, v{VT+1}, 11, v{VT}")
    for j in range(2):
        a(f"s_lshl_b32 s{T0}, s{sDt}, 7"); a(f"s_lshl_b32 s{T1}, s{sWave}, 4"); a(f"s_add_u32 s{T0}, s{T0}, s{T1}")
        if j: a(f"s_add_u32 s{T0}, s{T0}, 8")
        a(f"s_lshl_b32 s{T0}, s{T0}, 11")
        if j: a(f"s_sub_u32 s{T0}, s{T0}, 1024")
        P1.set_voff(j, VT + 3, T0, bool(j & 1))
    a(f"s_lshl_b32 s{sLdsP}, s{sWave}, 11")
    a(f"s_lshl_b32 s{T0}, s{sDt}, 8")
    P2.setup_dma(sWave, VT + 4, T0, U0)
    P2.setup_lds(sWave, sLdsP2, U0)
    a(f"v_lshrrev_b32 v{VT+1}, 3, v0"); a(f"v_mul_u32_u24 v{VT+1}, {RS_A2}, v{VT+1}"); a(f"v_add_u32 v{VT+3}, v{VT+1}, v{VT}")
    for j in range(Qop.n):
        a(f"s_mul_i32 s{T0}, s{sWave}, {TQ//8}")
        if j: a(f"s_add_u32 s{T0}, s{T0}, {8*j}")
        a(f"s_lshr_b32 s{T1}, s{T0}, 4"); a(f"s_add_u32 s{T1}, s{T1}, s{sG}"); a(f"s_and_b32 s{T1}, s{T1}, {NS-1}"); a(f"s_lshl_b32 s{T1}, s{T1}, 4")
        a(f"s_andn2_b32 s{T0}, s{T0}, {(NS-1) << 4}"); a(f"s_or_b32 s{T0}, s{T0}, s{T1}")
        a(f"s_mul_i32 s{T1}, s{sTt}, {TQ}"); a(f"s_add_u32 s{T0}, s{T0}, s{T1}"); a(f"s_mul_i32 s{T0}, s{T0}, {RS_A2}")
        if j: a(f"s_sub_u32 s{T0}, s{T0}, {1024*j}")
        Qop.set_voff(j, VT + 3, T0, bool(j & 1))
    a(f"s_mul_i32 s{sLdsQ}, s{sWave}, {Qop.n*1024}"); a(f"s_add_u32 s{sLdsQ}, s{sLdsQ}, {Qop.lds_off}")
    nS = 32 // NS; base = 56 // NS
    nD = base + (C.delta if role == 0 else -C.delta)
    colsS = 2048 // NS
    a(f"s_mul_i32 s{sKQ}, s{sG}, {colsS*2}"); a(f"s_and_b32 s{sKP}, s{sKQ}, 2047")
    if WS_A2: a(f"s_add_u32 s{sKQ}, s{sKQ}, {WS_A2}")
    a(f"s_lshr_b32 s{T0}, s{sG}, 1"); a(f"s_mul_i32 s{T0}, s{T0}, {2*base}")
    a(f"s_and_b32 s{T1}, s{sG}, 1"); a(f"s_mul_i32 s{T1}, s{T1}, {2*base - nD}"); a(f"s_add_u32 s{T0}, s{T0}, s{T1}")
    a(f"s_mul_i32 s{sKP2}, s{T0}, {64*D*2}"); a(f"s_lshl_b32 s{sKQ2}, s{T0}, 7"); a(f"s_add_u32 s{sKQ2}, s{sKQ2}, {WS_A2 + 4096}")
    a(f"s_mul_i32 s{T0}, s{sWp}, {mp}")
    P1.setup_read(T0, VT, U0); P2.setup_read(T0, VT, U0)
    a(f"s_mul_i32 s{T0}, s{sWq}, {mq}"); Qop.setup_read(T0, VT, U0)
    qd = lambda b: Qop.dma(b, sKQ, sTmp, sLdsQ, [SWS] * Qop.n)
    qd2 = lambda b: Qop.dma(b, sKQ2, sTmp, sLdsQ, [SWS] * Qop.n)
    segD = Seg(P2, Qop, accD, lambda b: P2.dma(b, sKP2, sTmp, sLdsP2, SW2), qd2, [f"s_add_u32 s{sKP2}, s{sKP2}, {64*D*2}"], [f"s_add_u32 s{sKQ2}, s{sKQ2}, 128"], "d")
    segS = Seg(P1, Qop, accS, lambda b: P1.dma(b, sKP, sTmp, sLdsP, [SA] * 2), qd, [f"s_add_u32 s{sKP}, s{sKP}, 128"], [f"s_add_u32 s{sKQ}, s{sKQ}, 128"], "s")
    stages = [segS] * nS + [segD] * nD
    N = len(stages)
    a("s_barrier")
    G.prologue(stages, "P")
    nP0 = 2 * G.leadP
    for i in range(4 * nf):
        a(f"v_mov_b32 v{accD+i}, 0"); a(f"v_mov_b32 v{accS+i}, 0")
    post_first = None
    def chkS(ok): a(f"s_cmp_eq_u32 s{U1}, 16"); a(f"s_cbranch_scc1 {ok}")
    if role == 0:
        a(f"s_waitcnt vmcnt({nP0})")
        a("s_barrier")
        stamp(a, 3)
        a(f"s_cmp_lg_u32 s{sWave}, 0"); a(f"s_cbranch_scc1 L_p2{R}_dep")
        signal_cnt(a, 1, VT)
        poll_own(a, chkS, VT)
    else:
        stamp(a, 3)
        a(f"s_cmp_lg_u32 s{sWave}, 0"); a(f"s_cbranch_scc1 L_p2{R}_dep")
        poll_own(a, chkS, VT)
        def post_first():
            sk = newlabel("pf")
            a(f"s_cmp_lg_u32 s{sWave}, 0"); a(f"s_cbranch_scc1 {sk}")
            init_check(a, VT)
            signal_cnt(a, 2, VT)
            a.label(sk)
    a.label(f"L_p2{R}_dep")
    a("s_barrier")
    G.prologue(stages, "Q")
    hooks = {}
    def hookD():
        sk = newlabel("hk")
        stamp(a, 2, st="p2")
        a(f"s_cmp_lg_u32 s{sWave}, 0"); a(f"s_cbranch_scc1 {sk}")
        def chk(ok): a(f"s_cmp_eq_u32 s{U3}, 16"); a(f"s_cbranch_scc1 {ok}")
        poll_own(a, chk, VT)
        a.label(sk)
        stamp(a, 3, st="p2")
    hooks[nS - G.leadQ - (1 if G.early == 'Q' else 0)] = hookD
    vt_own, vxo, vd2, vl16 = vep, vep + 1, vep + 2, vep + 3
    vx_, vds, vb2 = vex, vex + 2 * mp, vex + 4 * mp
    ex = []
    ex.append([f"s_mul_i32 s{T0}, s{sTt}, {TQ}", f"s_mul_i32 s{T1}, s{sWq}, {16*mq}", f"s_add_u32 s{T0}, s{T0}, s{T1}",
               f"v_and_b32 v{vt_own}, 15, v0", f"v_add_u32 v{vt_own}, s{T0}, v{vt_own}", f"v_lshlrev_b32 v{vxo}, 3, v{vt_own}"])
    for j in range(mq):
        ex.append([f"s_add_u32 s{T0}, s{sG}, {j}", f"s_and_b32 s{T0}, s{T0}, {NS-1}", f"s_lshl_b32 s{T0}, s{T0}, 7", f"s_add_u32 s{T0}, s{T0}, {WS_G}",
                   f"buffer_load_dwordx2 {vr(vg+2*j,2)}, v{vxo}, s[{SWS}:{SWS+3}], s{T0} offen sc1"])
    ex.append([f"s_lshl_b32 s{T0}, s{sG}, 4", f"v_add_u32 v{vt_own}, s{T0}, v{vt_own}",
               f"v_lshrrev_b32 v{vd2}, 4, v0", f"v_lshlrev_b32 v{vd2}, 2, v{vd2}",
               f"s_lshl_b32 s{T0}, s{sDt}, 7", f"s_lshl_b32 s{T1}, s{sWp}, 6", f"s_add_u32 s{T0}, s{T0}, s{T1}",
               f"v_add_u32 v{vd2}, s{T0}, v{vd2}", f"v_lshlrev_b32 v{vd2}, 1, v{vd2}",
               f"v_lshl_add_u32 v{vxo}, v{vt_own}, 11, v{vd2}", f"v_lshlrev_b32 v{vl16}, 4, v0"])
    ex2 = []
    for i in range(mp):
        ex2.append([f"buffer_load_dwordx2 {vr(vx_+2*i,2)}, v{vxo}, s[{SX}:{SX+3}], 0 offen offset:{32*i}"])
    ex2.append([f"s_mov_b32 s{SE}, s{PTR['dsk']}", f"s_mov_b32 s{SE+1}, s{PTR['dsk']+1}", f"s_mov_b32 s{SE+2}, 2048", f"s_mov_b32 s{SE+3}, 0x20000"])
    for i in range(mp):
        ex2.append([f"buffer_load_dwordx2 {vr(vds+2*i,2)}, v{vd2}, s[{SE}:{SE+3}], 0 offen offset:{32*i}"])
    ex2.append([f"s_mov_b32 s{SE}, s{PTR['b2']}", f"s_mov_b32 s{SE+1}, s{PTR['b2']+1}"])
    for i in range(mp):
        ex2.append([f"buffer_load_dwordx2 {vr(vb2+2*i,2)}, v{vd2}, s[{SE}:{SE+3}], 0 offen offset:{32*i}"])
    if NS == 2: extras = {N - NB: (ex + ex2, mq + 3 * mp)}
    else: extras = {N - NB: (ex, mq)}
    stamp(a, 4)
    stamp(a, 1, st="p2")
    G.run(stages, hooks, extras, post_first)
    stamp(a, 5)
    stamp(a, 4, st="p2")
    a("s_nop 7")
    a("s_waitcnt vmcnt(0)")
    def comb(i, j):
        c = 4 * (i * mq + j)
        for r in range(4):
            a(f"v_mul_f32 v{accD+c+r}, v{vg+2*j+1}, v{accD+c+r}"); a(f"v_fmac_f32 v{accD+c+r}, v{vg+2*j}, v{accS+c+r}")
    for j in range(1, mq):
        a(f"s_add_u32 s{T1}, s{sG}, {j}"); a(f"s_and_b32 s{T1}, s{T1}, {NS-1}")
        a(f"s_lshl_b32 s{T0}, s{sTile}, {LG}"); a(f"s_add_u32 s{T0}, s{T0}, s{T1}"); a(f"s_lshl_b32 s{T0}, s{T0}, {LG}"); a(f"s_add_u32 s{T0}, s{T0}, s{sG}")
        a(f"s_lshl_b32 s{T0}, s{T0}, 3"); a(f"s_add_u32 s{T0}, s{T0}, s{sWave}"); a(f"s_lshl_b32 s{T0}, s{T0}, 12"); a(f"s_add_u32 s{T0}, s{T0}, {WS_XB}")
        for i in range(mp): comb(i, j)
        a("s_nop 1")
        for i in range(mp):
            c = accD + 4 * (i * mq + j)
            a(f"buffer_store_dwordx4 {vr(c,4)}, v{vl16}, s[{SWS}:{SWS+3}], s{T0} offen offset:{i*1024} sc1")
    for i in range(mp): comb(i, 0)
    nst = mp * (mq - 1)
    if NS != 2:
        for g_ in ex2: G.emit(g_)
        a("s_waitcnt vmcnt(0)")
    x0, x1, y0, y1 = VT, VT + 1, VT + 2, VT + 3
    for i in range(mp):
        e = accD + 4 * (i * mq)
        for h in range(2):
            a(f"v_lshlrev_b32 v{x0}, 16, v{vx_+2*i+h}"); a(f"v_and_b32 v{x1}, 0xffff0000, v{vx_+2*i+h}")
            a(f"v_lshlrev_b32 v{y0}, 16, v{vds+2*i+h}"); a(f"v_and_b32 v{y1}, 0xffff0000, v{vds+2*i+h}")
            a(f"v_mul_f32 v{x0}, v{x0}, v{y0}"); a(f"v_mul_f32 v{x1}, v{x1}, v{y1}")
            a(f"v_cvt_pk_bf16_f32 v{x0}, v{x0}, v{x1}")
            a(f"v_and_b32 v{x1}, 0xffff0000, v{x0}"); a(f"v_lshlrev_b32 v{x0}, 16, v{x0}")
            a(f"v_fmac_f32 v{e+2*h}, v{vg}, v{x0}"); a(f"v_fmac_f32 v{e+2*h+1}, v{vg}, v{x1}")
            a(f"v_lshlrev_b32 v{x0}, 16, v{vb2+2*i+h}"); a(f"v_and_b32 v{x1}, 0xffff0000, v{vb2+2*i+h}")
            a(f"v_fmac_f32 v{e+2*h}, v{vg+1}, v{x0}"); a(f"v_fmac_f32 v{e+2*h+1}, v{vg+1}, v{x1}")
    a("s_waitcnt vmcnt(0)")
    a("s_barrier")
    stamp(a, 5, st="p2")
    a(f"s_cmp_lg_u32 s{sWave}, 0"); a(f"s_cbranch_scc1 L_p2{R}_x")
    t1, t2, t3 = VT + 1, VT + 2, VT + 3
    a(f"s_and_b32 s{T0}, s2, {XS-1}")
    a(f"v_mul_u32_u24 v{t1}, {XS}, v0"); a(f"v_add_u32 v{t1}, s{T0}, v{t1}")
    a(f"s_lshr_b32 s{T0}, s{sDt}, 2")
    a(f"v_and_b32 v{t2}, 1, v0"); a(f"v_xor_b32 v{t2}, s{T0}, v{t2}"); a(f"v_xor_b32 v{t2}, 1, v{t2}")
    a(f"s_lshr_b32 s{T0}, s2, 3"); a(f"s_and_b32 s{T0}, s{T0}, 15")
    a(f"v_lshlrev_b32 v{t2}, 4, v{t2}"); a(f"v_add_u32 v{t2}, s{T0}, v{t2}"); a(f"v_lshl_or_b32 v{t2}, v{t2}, 3, v{t1}")
    a(f"v_lshlrev_b32 v{t2}, 8, v{t2}"); a(f"v_mov_b32 v{t3}, 1")
    a(f"s_lshl_b32 s{T0}, 1, s{sG}"); a(f"s_andn2_b32 s{T0}, {(1 << NS) - 1}, s{T0}")
    a(f"s_mov_b32 exec_lo, s{T0}"); a("s_mov_b32 exec_hi, 0"); a(f"s_mov_b32 s{T1}, {WS_MB + 12}")
    a(f"buffer_atomic_add v{t3}, v{t2}, s[{SWS}:{SWS+3}], s{T1} offen sc1")
    a("s_mov_b64 exec, -1")
    a(f"s_lshl_b32 s{T3}, s2, 8"); a(f"s_add_u32 s{T3}, s{T3}, {WS_MB + 12}")
    def chkx(ok): a(f"s_cmp_eq_u32 s{U0}, {NS-1}"); a(f"s_cbranch_scc1 {ok}")
    poll(a, SWS, T3, chkx, VT)
    a.label(f"L_p2{R}_x")
    a("s_barrier")
    rb = G.F[0][0]
    assert 2 * (4 * mp + 4 * mq) >= 4 * mp * (NS - 1)
    for k in range(1, NS):
        a(f"s_add_u32 s{T1}, s{sG}, {k}"); a(f"s_and_b32 s{T1}, s{T1}, {NS-1}")
        a(f"s_lshl_b32 s{T0}, s{sTile}, {LG}"); a(f"s_add_u32 s{T0}, s{T0}, s{sG}"); a(f"s_lshl_b32 s{T0}, s{T0}, {LG}"); a(f"s_add_u32 s{T0}, s{T0}, s{T1}")
        a(f"s_lshl_b32 s{T0}, s{T0}, 3"); a(f"s_add_u32 s{T0}, s{T0}, s{sWave}"); a(f"s_lshl_b32 s{T0}, s{T0}, 12"); a(f"s_add_u32 s{T0}, s{T0}, {WS_XB}")
        for i in range(mp):
            a(f"buffer_load_dwordx4 {vr(rb+(k-1)*4*mp+4*i,4)}, v{vl16}, s[{SWS}:{SWS+3}], s{T0} offen offset:{i*1024} sc1")
    srd(a, SE, PTR["out"], L * D * 4)
    vo = VT
    a(f"v_lshlrev_b32 v{vo}, 12, v{vt_own}"); a(f"v_lshl_add_u32 v{vo}, v{vd2}, 1, v{vo}")
    if NS > 2: a(f"s_waitcnt vmcnt({mp})")
    for i in range(mp):
        e = accD + 4 * (i * mq)
        if NS > 2:
            for k in range(1, NS - 1):
                for r in range(4): a(f"v_add_f32 v{e+r}, v{e+r}, v{rb+(k-1)*4*mp+4*i+r}")
    for i in range(mp):
        e = accD + 4 * (i * mq)
        a(f"s_waitcnt vmcnt({mp-1})")
        for r in range(4): a(f"v_add_f32 v{e+r}, v{e+r}, v{rb+(NS-2)*4*mp+4*i+r}")
        a(f"buffer_store_dwordx4 {vr(e,4)}, v{vo}, s[{SE}:{SE+3}], 0 offen offset:{64*i}{C.wto}")
    stamp(a, 6)
    stamp(a, 6, st="p2")
    return V.hi, NB * SB

def emit_stamps(a):
    a("s_memrealtime s[88:89]"); a("s_waitcnt lgkmcnt(0)")
    a(f"s_cmp_lg_u32 s{sWave}, {C.stwave}"); a("s_cbranch_scc1 L_end")
    a("s_waitcnt vmcnt(0)")
    for i in range(1, 7): a(f"s_sub_u32 s{92+i}, s{92+i}, s92")
    a("s_mov_b32 s99, s100")
    a("s_nop 0")
    a(f"s_mov_b32 s100, s88")
    for i in range(8): a(f"v_mov_b32 v{12+i}, s{93+i}")
    a(f"s_lshl_b32 s{T0}, s2, 5"); a(f"s_add_u32 s{T0}, s{T0}, {WS_ST}")
    a("v_mov_b32 v11, 0"); a("s_mov_b64 exec, 1")
    a(f"buffer_store_dwordx4 v[12:15], v11, s[{SWS}:{SWS+3}], s{T0} offen")
    a(f"buffer_store_dwordx4 v[16:19], v11, s[{SWS}:{SWS+3}], s{T0} offen offset:16")

HEADER = open("gated_mix__ssm_conv_s5__dense_activation_squared_relu__prompt.s.ref").read().split("; Override launch")[0]

def generate(**kw):
    for k, v in kw.items():
        assert hasattr(C, k), k
        setattr(C, k, v)
    _lbl[0] = 0
    a = Asm()
    kernel_header(a, NAME)
    a("s_cmp_ge_u32 s2, 256"); a("s_cbranch_scc1 L_end")
    a("s_load_dwordx16 s[40:55], s[0:1], 0"); a("s_load_dwordx16 s[56:71], s[0:1], 64"); a("s_load_dwordx4 s[72:75], s[0:1], 128")
    if C.dbgst:
        a("s_memtime s[92:93]"); a("s_memrealtime s[100:101]")
    if C.codepf:
        a("s_getpc_b64 s[4:5]")
        a.label("L_pc")
        a("v_lshlrev_b32 v2, 7, v0")
        a("v_min_u32 v2, L_codeend-L_pc-4, v2")
        a("global_load_dword v250, v2, s[4:5]")
    a("v_lshrrev_b32 v1, 6, v0"); a("v_and_b32 v0, 63, v0"); a(f"v_readfirstlane_b32 s{sWave}, v1")
    a(f"s_and_b32 s{T0}, s2, 7"); a(f"s_lshr_b32 s{T1}, s2, 3")
    a(f"s_lshr_b32 s{sRole}, s{T1}, 4")
    a(f"s_bfe_u32 s{T2}, s{T1}, 0x20002"); a(f"s_and_b32 s{T3}, s{T1}, 3")
    a(f"s_lshr_b32 s{sM}, s{T0}, 2"); a(f"s_lshl_b32 s{sM}, s{sM}, 2"); a(f"s_add_u32 s{sM}, s{sM}, s{T2}")
    a(f"s_and_b32 s{sN}, s{T0}, 3"); a(f"s_lshl_b32 s{sN}, s{sN}, 2"); a(f"s_add_u32 s{sN}, s{sN}, s{T3}")
    mode = C.rot
    if mode is True: mode = 1
    if mode == 1:
        a(f"s_lshl_b32 s{sRot}, s{sRole}, 2"); a(f"s_add_u32 s{sRot}, s{sRot}, s{T3}"); a(f"s_lshl_b32 s{sRot}, s{sRot}, 1")
        a(f"s_lshl_b32 s{T2}, s{T2}, 2"); a(f"s_add_u32 s{sRot}, s{sRot}, s{T2}"); a(f"s_and_b32 s{T0}, s{T0}, 3")
        a(f"s_add_u32 s{sRot}, s{sRot}, s{T0}"); a(f"s_and_b32 s{sRot}, s{sRot}, 15")
    elif mode == 2:
        a(f"s_and_b32 s{sRot}, s{T0}, 3"); a(f"s_lshl_b32 s{sRot}, s{sRot}, 2"); a(f"s_lshr_b32 s{T0}, s{T0}, 2"); a(f"s_lshl_b32 s{T0}, s{T0}, 1")
        a(f"s_add_u32 s{sRot}, s{sRot}, s{T0}"); a(f"s_and_b32 s{sRot}, s{sRot}, 15")
    elif mode == 3:
        a(f"s_and_b32 s{sRot}, s{T0}, 3"); a(f"s_lshl_b32 s{sRot}, s{sRot}, 2"); a(f"s_lshr_b32 s{T0}, s{T0}, 2"); a(f"s_lshl_b32 s{T0}, s{T0}, 3")
        a(f"s_add_u32 s{sRot}, s{sRot}, s{T0}"); a(f"s_xor_b32 s{T2}, s{T2}, s{T3}"); a(f"s_and_b32 s{T2}, s{T2}, 1"); a(f"s_lshl_b32 s{T2}, s{T2}, 3")
        a(f"s_add_u32 s{sRot}, s{sRot}, s{T2}"); a(f"s_and_b32 s{sRot}, s{sRot}, 15")
    elif mode == 4:
        a(f"s_xor_b32 s{T2}, s{T2}, s{T3}"); a(f"s_and_b32 s{T2}, s{T2}, 1"); a(f"s_lshl_b32 s{sRot}, s{T2}, 3")
        a(f"s_and_b32 s{T0}, s{T0}, 3"); a(f"s_lshl_b32 s{T0}, s{T0}, 1"); a(f"s_add_u32 s{sRot}, s{sRot}, s{T0}"); a(f"s_and_b32 s{sRot}, s{sRot}, 15")
    elif mode == 5:
        a(f"s_and_b32 s{sRot}, s{T0}, 3"); a(f"s_lshl_b32 s{sRot}, s{sRot}, 2")
    elif mode == 6:
        a(f"s_lshl_b32 s{sRot}, s{T2}, 2"); a(f"s_and_b32 s{T0}, s{T0}, 3"); a(f"s_add_u32 s{sRot}, s{sRot}, s{T0}"); a(f"s_and_b32 s{sRot}, s{sRot}, 15")
    elif mode == 7:
        a(f"s_lshl_b32 s{sRot}, s{T3}, 2"); a(f"s_and_b32 s{T0}, s{T0}, 3"); a(f"s_add_u32 s{sRot}, s{sRot}, s{T0}"); a(f"s_and_b32 s{sRot}, s{sRot}, 15")
    else:
        a(f"s_mov_b32 s{sRot}, 0")
    if C.dbgst:
        pass
    a(f"s_cmp_eq_u32 s{sRole}, 1"); a("s_cbranch_scc1 L_ssm")
    v1, l1 = phase1_dense(a)
    v2, l2 = phase2(a, 1)
    a("s_branch L_fin")
    a.label("L_ssm")
    v3, l3 = phase1_ssm(a)
    v4, l4 = phase2(a, 0)
    a.label("L_fin")
    if C.dbgst: emit_stamps(a)
    a.label("L_end")
    a("s_endpgm")
    a.label("L_codeend")
    nv = max(v1, v2, v3, v4); lds = max(l1, l2, l3, l4)
    assert nv <= 250
    if C.codepf or C.tlb: nv = 251
    head = HEADER + f"; @launch grid=(256,1,1) block=(512,1,1) lds={lds}\n"
    head += '.amdgcn_target "amdgcn-amd-amdhsa--gfx950"\n.text\n'
    return head + a.text() + '.section .rodata,"a"\n' + kernel_desc(NAME, nv, 102)

if __name__ == "__main__":
    kw = json.loads(sys.argv[2]) if len(sys.argv) > 2 else {}
    open(sys.argv[1], "w").write(generate(**kw))
```

```python
import sys, math, json
from asmlib import *

NAME = "gated_mix__ssm_conv_s5__dense_activation_squared_relu__prompt_kernel"
L, D, P_, F = 2048, 1024, 1024, 3584
KC = 2048 + F
RS_A2 = KC * 2
KA = dict(x=0, lre=8, lim=16, bre=24, bim=32, cre=40, cim=48, ldt=56, dsk=64, bx=72, w1=80, b1=88, w2=96, b2=104, gw=112, out=120, dbg=128, ws=136)
WS_A2 = 0
WS_G = 24 << 20
WS_AGG = WS_G + (1 << 16)
WS_MB = WS_AGG + (1 << 17)
WS_ST = WS_AGG + (1 << 18)
WS_XB = 32 << 20
WS_SIZE = 268435456
LOG2E = 0x3fb8aa3b
INV2PI = 0x3e22f983
PTR = {k: 40 + v // 4 for k, v in KA.items()}
DBG_LB = 0
DBG_CNT = 16
DBG_XF = 32

class Cfg:
    dbgst = False; rot = 4; nodma = False; noread = False; prefetch = True
    nAd = 24
    nBs = 8
    ns = 2
    delta = 3
    wt = " sc1"
    a2ld = " sc1"
    wto = ""
    spin = 300000
    sleep = 2
    early = True
    xbf16 = False
    loop = {}
    inboxit = 18
    initit = 4
    tlb = False
    tlbshift = 21
    codepf = True
    pbar = False
    bulk = False
    pflist = [('w1',0),('x',0),('bre',0),('bim',0),('cre',0),('cim',0),('w2',0)]
    pfit = 13
    span = 1.0
    prio = True
    nbq = 3
    stampset = 'main'
    stwave = 0
C = Cfg()

class Regs:
    def __init__(self, start, limit=256):
        self.n = start; self.limit = limit; self.hi = start
    def get(self, k=1, align=1):
        self.n = (self.n + align - 1) // align * align
        r = self.n; self.n += k
        self.hi = max(self.hi, self.n)
        assert self.n <= self.limit, f"out of registers {self.n} > {self.limit}"
        return r

def srd(a, s, ptr_lo, size):
    if s != ptr_lo:
        a(f"s_mov_b32 s{s}, s{ptr_lo}"); a(f"s_mov_b32 s{s+1}, s{ptr_lo+1}")
    a(f"s_mov_b32 s{s+2}, {size}"); a(f"s_mov_b32 s{s+3}, 0x20000")

_lbl = [0]
def newlabel(p):
    _lbl[0] += 1
    return f"L_{p}{_lbl[0]}"

class OpKC:
    def __init__(self, a, V, T, lds_off, nfr, flags=""):
        self.a, self.T, self.lds_off, self.nfr, self.flags = a, T, lds_off, nfr, flags
        self.n = T // 64
        self.vd = V.get(self.n)
        self.b0 = V.get(); self.c0 = V.get(); self.c1 = V.get()
        self.bytes = T * 128
        self.ldsoffs = [j * 1024 for j in range(self.n)]
    def lane_chunk(self, vdst, t):
        a = self.a
        a(f"v_and_b32 v{vdst}, 7, v0"); a(f"v_lshrrev_b32 v{t}, 4, v0")
        a(f"v_xor_b32 v{vdst}, v{vdst}, v{t}"); a(f"v_lshlrev_b32 v{vdst}, 4, v{vdst}")
    def set_voff(self, j, vlane, sRowBytes, xor64, comp=True):
        a = self.a; d = self.vd + j
        src = vlane
        if xor64 is True:
            a(f"v_xor_b32 v{d}, 64, v{vlane}"); src = d
        elif xor64 is not False:
            a(f"v_xor_b32 v{d}, s{xor64}, v{vlane}"); src = d
        a(f"v_add_u32 v{d}, s{sRowBytes}, v{src}")
    def dma(self, sBuf, sK, stmp, sLds, srds, groups=None):
        g = []
        for grp_i in self.groups:
            for n_, j in enumerate(grp_i):
                grp = []
                if n_ == 0:
                    grp.append(f"s_add_u32 s{stmp}, s{sBuf}, s{sLds}")
                    if self.ldsoffs[j]: grp.append(f"s_add_u32 s{stmp}, s{stmp}, {self.ldsoffs[j]}")
                    grp.append(f"s_mov_b32 m0, s{stmp}")
                    grp.append("s_nop 0")
                off = f" offset:{n_*1024}" if n_ else ""
                s = srds[j]
                grp.append(f"buffer_load_dwordx4 v{self.vd+j}, s[{s}:{s+3}], s{sK} offen{off}{self.flags} lds")
                g.append(grp)
        return g
    def count(self): return (self.n, self.n)
    def setup_read(self, sFrag0, tmp, stmp):
        a = self.a; t0, t1, t2 = tmp, tmp + 1, tmp + 2
        a(f"v_and_b32 v{t0}, 15, v0"); a(f"v_lshrrev_b32 v{t1}, 4, v0"); a(f"v_lshrrev_b32 v{t2}, 1, v{t0}")
        a(f"v_xor_b32 v{t1}, v{t1}, v{t2}"); a(f"v_lshlrev_b32 v{t1}, 4, v{t1}")
        a(f"v_lshl_add_u32 v{t0}, v{t0}, 7, v{t1}")
        a(f"s_lshl_b32 s{stmp}, s{sFrag0}, 11")
        if self.lds_off: a(f"s_add_u32 s{stmp}, s{stmp}, {self.lds_off}")
        a(f"v_add_u32 v{self.b0}, s{stmp}, v{t0}")
    def init_cur(self):
        return [f"v_mov_b32 v{self.c0}, v{self.b0}", f"v_xor_b32 v{self.c1}, 64, v{self.b0}"]
    def frag_off(self, i): return i * 2048
    def reads(self, ks, dst):
        if C.noread: return []
        c = self.c1 if ks else self.c0
        return [[f"ds_read_b128 {vr(dst+4*i,4)}, v{c} offset:{self.frag_off(i)}"] for i in range(self.nfr)]
    def upd_A(self, sBuf): return [f"v_add_u32 v{self.c0}, s{sBuf}, v{self.b0}"]
    def upd_B(self, sBuf): return [f"v_xor_b32 v{self.c1}, 64, v{self.c0}"]

class OpNC:
    def __init__(self, a, V, T, lds_off, nfr, RS, NW=8):
        self.a, self.T, self.lds_off, self.nfr, self.RS = a, T, lds_off, nfr, RS
        self.RP = T * 2; self.CH = self.RP // 16
        self.total = self.CH
        self.n = -(-self.total // NW)
        self.even = (self.total % NW == 0)
        self.nbig = NW if self.even else self.total - (self.n - 1) * NW
        self.vd = V.get(self.n)
        np_ = self.RP // 32
        self.gb = 3 if np_ % 8 == 0 else (2 if np_ % 4 == 0 else 1)
        self.nres = min(1 << self.gb, nfr)
        self.base = V.get(self.nres); self.cur = V.get(self.nres)
        self.bytes = 64 * self.RP
    def g_asm(self, vk, vo, t):
        a = self.a
        if self.gb == 3:
            a(f"v_and_b32 v{vo}, 3, v{vk}"); a(f"v_bfe_u32 v{t}, v{vk}, 3, 1"); a(f"v_lshl_or_b32 v{vo}, v{t}, 2, v{vo}")
        elif self.gb == 2:
            a(f"v_bfe_u32 v{vo}, v{vk}, 1, 1"); a(f"v_bfe_u32 v{t}, v{vk}, 3, 1"); a(f"v_lshl_or_b32 v{vo}, v{t}, 1, v{vo}")
        else:
            a(f"v_bfe_u32 v{vo}, v{vk}, 3, 1")
    def idx0(self, sWave, sOut, stmp):
        a = self.a
        if self.even: a(f"s_mul_i32 s{sOut}, s{sWave}, {self.n}")
        else:
            a(f"s_mul_i32 s{sOut}, s{sWave}, {self.n-1}")
            a(f"s_min_u32 s{stmp}, s{sWave}, {self.nbig}")
            a(f"s_add_u32 s{sOut}, s{sOut}, s{stmp}")
    def setup_dma(self, sWave, tmp, sCol0Bytes, stmp):
        a = self.a; t0, t1, t2, t3 = tmp, tmp + 1, tmp + 2, tmp + 3
        self.idx0(sWave, stmp, stmp + 1)
        magic = (1 << 20) // self.CH + 1
        for L_ in range(self.total * 64 + 64):
            assert (L_ * magic) >> 20 == L_ // self.CH
        for j in range(self.n):
            a(f"s_add_u32 s{stmp+1}, s{stmp}, {j}"); a(f"s_lshl_b32 s{stmp+1}, s{stmp+1}, 6")
            a(f"v_add_u32 v{t0}, s{stmp+1}, v0")
            if self.CH & (self.CH - 1) == 0:
                a(f"v_lshrrev_b32 v{t1}, {int(math.log2(self.CH))}, v{t0}")
                a(f"v_and_b32 v{t0}, {self.CH-1}, v{t0}")
            else:
                a(f"v_mul_u32_u24 v{t1}, {magic}, v{t0}"); a(f"v_lshrrev_b32 v{t1}, 20, v{t1}")
                a(f"v_mul_u32_u24 v{t2}, {self.CH}, v{t1}"); a(f"v_sub_u32 v{t0}, v{t0}, v{t2}")
            self.g_asm(t1, t2, t3)
            a(f"v_lshlrev_b32 v{t2}, 1, v{t2}"); a(f"v_xor_b32 v{t0}, v{t0}, v{t2}")
            a(f"v_mul_u32_u24 v{t1}, {self.RS}, v{t1}")
            a(f"v_lshl_add_u32 v{t0}, v{t0}, 4, v{t1}")
            if j % 4: a(f"s_sub_u32 s{stmp+1}, s{sCol0Bytes}, {(j%4)*1024}"); a(f"v_add_u32 v{self.vd+j}, s{stmp+1}, v{t0}")
            else: a(f"v_add_u32 v{self.vd+j}, s{sCol0Bytes}, v{t0}")
    def setup_lds(self, sWave, sLds, stmp):
        self.idx0(sWave, sLds, stmp)
        self.a(f"s_lshl_b32 s{sLds}, s{sLds}, 10")
        if self.lds_off: self.a(f"s_add_u32 s{sLds}, s{sLds}, {self.lds_off}")
    def dma(self, sBuf, sK, stmp, sLds, srds, sWave=None):
        g = []
        s = srds
        for j in range(self.n):
            grp = []
            guard = (not self.even) and j == self.n - 1
            if guard:
                lbl = newlabel("ncs")
                grp += [f"s_cmp_lt_u32 s{sWave}, {self.nbig}", f"s_cbranch_scc0 {lbl}"]
            if j % 4 == 0:
                grp.append(f"s_add_u32 s{stmp}, s{sBuf}, s{sLds}")
                if j: grp.append(f"s_add_u32 s{stmp}, s{stmp}, {j*1024}")
                grp += [f"s_mov_b32 m0, s{stmp}", "s_nop 0"]
            off = f" offset:{(j%4)*1024}" if j % 4 else ""
            grp.append(f"buffer_load_dwordx4 v{self.vd+j}, s[{s}:{s+3}], s{sK} offen{off} lds")
            if guard: grp.append(f"{lbl}:")
            g.append(grp)
        return g
    def count(self): return (self.n if self.even else self.n - 1, self.n)
    def setup_read(self, sFrag0, tmp, stmp):
        a = self.a; t0, t1, t2 = tmp, tmp + 1, tmp + 2
        a(f"v_lshrrev_b32 v{t0}, 4, v0"); a(f"v_lshlrev_b32 v{t0}, 3, v{t0}")
        a(f"v_bfe_u32 v{t1}, v0, 2, 2"); a(f"v_add_u32 v{t0}, v{t0}, v{t1}")
        self.g_asm(t0, t1, t2)
        a(f"v_mul_u32_u24 v{t0}, {self.RP}, v{t0}")
        a(f"v_and_b32 v{t2}, 3, v0"); a(f"v_lshl_add_u32 v{t0}, v{t2}, 3, v{t0}")
        if self.lds_off: a(f"v_add_u32 v{t0}, {self.lds_off}, v{t0}")
        for r in range(self.nres):
            a(f"s_add_u32 s{stmp}, s{sFrag0}, {r}")
            a(f"v_xor_b32 v{t2}, s{stmp}, v{t1}")
            if r: a(f"v_subrev_u32 v{t2}, {r}, v{t2}")
            a(f"v_lshl_add_u32 v{self.base+r}, v{t2}, 5, v{t0}")
    def init_cur(self):
        return [f"v_mov_b32 v{self.cur+r}, v{self.base+r}" for r in range(self.nres)]
    def reads(self, ks, dst):
        if C.noread: return []
        g = []
        for i in range(self.nfr):
            r = i % (1 << self.gb)
            for h in range(2):
                off = 32 * i + (4 * h + 32 * ks) * self.RP
                g.append([f"ds_read_b64_tr_b16 {vr(dst+4*i+2*h,2)}, v{self.cur+r} offset:{off}"])
        return g
    def upd_A(self, sBuf): return [f"v_add_u32 v{self.cur+r}, s{sBuf}, v{self.base+r}" for r in range(self.nres)]
    def upd_B(self, sBuf): return []

class Seg:
    def __init__(self, P, Q, acc, Pdma, Qdma, kadvP, kadvQ, name):
        self.P, self.Q, self.acc, self.Pdma, self.Qdma, self.kadvP, self.kadvQ, self.name = P, Q, acc, Pdma, Qdma, kadvP, kadvQ, name
        self.xdma = []

class Gemm:
    def __init__(self, a, V, NBP, NBQ, SP, SQ, mp, mq, regs, joint, early=None, name="x"):
        self.a, self.NBP, self.NBQ, self.SP, self.SQ, self.mp, self.mq, self.joint = a, NBP, NBQ, SP, SQ, mp, mq, joint
        o = dict(span=C.span, prio=C.prio, dmapos="merge", order="i")
        o.update(C.loop.get(name, {}))
        self.opt = o
        self.sDP, self.sRP, self.sDQ, self.sRQ, self.sCnt, self.sE = regs
        if joint: self.sDQ, self.sRQ = self.sDP, self.sRP
        self.early = early if C.early else None
        self.leadP = NBP - (1 if self.early == 'P' else 0)
        self.leadQ = NBQ - (1 if self.early == 'Q' else 0)
        self.F = []
        for s in range(2):
            p = V.get(4 * mp, 2); q = V.get(4 * mq, 2)
            self.F.append((p, q))
        self.vmq = []
    def emit(self, lines):
        for x in lines:
            if x.endswith(":"): self.a.label(x[:-1])
            else: self.a(x)
    def note(self, tag, n): self.vmq.append((tag, n))
    def vm_allow(self, need):
        last = -1
        for i, (t, n) in enumerate(self.vmq):
            if t in need: last = i
        return min(63, sum(n for t, n in self.vmq[last + 1:]))
    def reads(self, seg, ks, fs):
        p, q = self.F[fs]
        return merge(seg.P.reads(ks, p), seg.Q.reads(ks, q))
    def mfmas(self, seg, fs):
        p, q = self.F[fs]
        ij = [(i, j) for i in range(self.mp) for j in range(self.mq)]
        if self.opt["order"] == "j": ij = [(i, j) for j in range(self.mq) for i in range(self.mp)]
        return [f"v_mfma_f32_16x16x32_bf16 {vr(c,4)}, {vr(p+4*i,4)}, {vr(q+4*j,4)}, {vr(c,4)}"
                for (i, j) in ij for c in [seg.acc + 4 * (i * self.mq + j)]]
    def spread(self, main, fill):
        n = len(main); k = len(fill)
        if k == 0: return list(main)
        span = max(1, min(n, int(n * self.opt['span'])))
        out = []; fi = 0
        for i, m in enumerate(main):
            out.append(m)
            while fi < k and (fi * span) // k <= i:
                out.extend(fill[fi]); fi += 1
        while fi < k: out.extend(fill[fi]); fi += 1
        return out
    def mix(self, reads, dma):
        m = self.opt["dmapos"]
        if m == "first": return dma + reads
        if m == "last": return reads + dma
        return merge(reads, dma)
    def ring_adv(self, sD, sR, stride, nb):
        return [f"s_mov_b32 s{sD}, s{sR}", f"s_add_u32 s{sR}, s{sR}, {stride}", f"s_cmp_eq_u32 s{sR}, {stride*nb}", f"s_cselect_b32 s{sR}, 0, s{sR}"]
    def advance(self):
        out = []
        if self.early: out.append(f"s_mov_b32 s{self.sE}, s{self.sDP if (self.joint or self.early == 'P') else self.sDQ}")
        if self.joint: return out + self.ring_adv(self.sDP, self.sRP, self.SP + self.SQ, self.NBP)
        return out + self.ring_adv(self.sDP, self.sRP, self.SP, self.NBP) + self.ring_adv(self.sDQ, self.sRQ, self.SQ, self.NBQ)
    def dma_list(self, which, seg, sBuf):
        if seg is None or C.nodma: return []
        if which == 'P': return seg.Pdma(sBuf) + [list(seg.kadvP)]
        return seg.Qdma(sBuf) + [list(seg.kadvQ)] + seg.xdma
    def body(self, cur, nxt, dP, dQ, vmw, pre_barrier=None, extra=None):
        a = self.a
        self.emit(self.advance())
        a("s_waitcnt lgkmcnt(0)")
        fill = self.reads(cur, 1, 1)
        if nxt is not None: fill.append(nxt.P.upd_A(self.sRP) + nxt.Q.upd_A(self.sRQ))
        if self.early == 'P': fill = self.mix(fill, self.dma_list('P', dP, self.sE))
        if self.early == 'Q': fill = self.mix(fill, self.dma_list('Q', dQ, self.sE))
        if nxt is None and extra: fill = fill + extra
        self.emit(self.spread(self.mfmas(cur, 0), fill))
        if nxt is None:
            a("s_waitcnt lgkmcnt(0)")
            self.emit(self.mfmas(cur, 1))
            return
        if pre_barrier: pre_barrier()
        a(f"s_waitcnt vmcnt({vmw}) lgkmcnt(0)")
        a("s_barrier")
        if self.opt["prio"]: a("s_setprio 1")
        fill = self.reads(nxt, 0, 0)
        d = []
        if self.early != 'P': d += self.dma_list('P', dP, self.sDP)
        if self.early != 'Q': d += self.dma_list('Q', dQ, self.sDQ)
        fill = self.mix(fill, d)
        u = nxt.P.upd_B(self.sRP) + nxt.Q.upd_B(self.sRQ)
        if u: fill.append(u)
        if extra: fill = fill + extra
        self.emit(self.spread(self.mfmas(cur, 1), fill))
        if self.opt["prio"]: a("s_setprio 0")
    def prologue(self, stages, which="PQ", first=0, last=None):
        a = self.a
        stride = self.SP + self.SQ if self.joint else None
        if first == 0:
            a(f"s_mov_b32 s{self.sDP}, 0")
            if not self.joint: a(f"s_mov_b32 s{self.sDQ}, 0")
        for s in range(first, max(self.leadP, self.leadQ) if last is None else last):
            if "P" in which and s < self.leadP:
                for g in stages[s].Pdma(self.sDP): self.emit(g)
                self.emit(stages[s].kadvP); self.note(('P', s), stages[s].P.count()[0])
                if not self.joint: a(f"s_add_u32 s{self.sDP}, s{self.sDP}, {self.SP}")
            if "Q" in which and s < self.leadQ:
                for g in stages[s].Qdma(self.sDQ): self.emit(g)
                self.emit(stages[s].kadvQ); self.note(('Q', s), stages[s].Q.count()[0])
                if not self.joint: a(f"s_add_u32 s{self.sDQ}, s{self.sDQ}, {self.SQ}")
            if self.joint: a(f"s_add_u32 s{self.sDP}, s{self.sDP}, {stride}")
    def run(self, stages, hooks=None, extras=None, post_first=None):
        a = self.a; N = len(stages)
        hooks = hooks or {}; extras = extras or {}
        a(f"s_waitcnt vmcnt({self.vm_allow({('P',0),('Q',0)})})")
        if getattr(self, "pre_first", None): self.pre_first()
        a("s_barrier")
        if post_first: post_first()
        seen = []
        for sg in stages:
            for op in (sg.P, sg.Q):
                if op not in seen: seen.append(op); self.emit(op.init_cur())
        if self.joint:
            a(f"s_mov_b32 s{self.sRP}, 0"); a(f"s_mov_b32 s{self.sDP}, {(self.SP+self.SQ)*(self.NBP-1)}")
        else:
            a(f"s_mov_b32 s{self.sRP}, 0"); a(f"s_mov_b32 s{self.sDP}, {self.SP*(self.NBP-1)}")
            a(f"s_mov_b32 s{self.sRQ}, 0"); a(f"s_mov_b32 s{self.sDQ}, {self.SQ*(self.NBQ-1)}")
        for g in self.reads(stages[0], 0, 0): self.emit(g)
        sigs = []
        for i in range(N):
            nxt = stages[i + 1] if i + 1 < N else None
            dP = stages[i + self.leadP] if i + self.leadP < N else None
            dQ = stages[i + self.leadQ] if i + self.leadQ < N else None
            def noteP():
                if dP is not None: self.note(('P', i + self.leadP), dP.P.count()[0])
            def noteQ():
                if dQ is not None:
                    self.note(('Q', i + self.leadQ), dQ.Q.count()[0])
                    if dQ.xdma: self.note(('PF', i), len(dQ.xdma))
            if self.early == 'P': noteP()
            if self.early == 'Q': noteQ()
            vmw = self.vm_allow({('P', i + 1), ('Q', i + 1)}) if nxt is not None else 0
            if self.early != 'P': noteP()
            if self.early != 'Q': noteQ()
            if i in extras: self.note(('X', i), extras[i][1])
            sigs.append((stages[i], nxt, dP, dQ, vmw, i if (i in hooks or i in extras) else -1))
        i = 0
        while i < N:
            j = i
            while j < N and sigs[j] == sigs[i]: j += 1
            cnt = j - i
            cur, nxt, dP, dQ, vmw, sp = sigs[i]
            hk = hooks.get(sp); ex = extras[sp][0] if sp in extras else None
            if cnt >= 2:
                lbl = newlabel("gl")
                a(f"s_mov_b32 s{self.sCnt}, {cnt}")
                a.label(lbl)
                self.body(cur, nxt, dP, dQ, vmw)
                a(f"s_sub_u32 s{self.sCnt}, s{self.sCnt}, 1"); a(f"s_cmp_lg_u32 s{self.sCnt}, 0"); a(f"s_cbranch_scc1 {lbl}")
            else:
                self.body(cur, nxt, dP, dQ, vmw, hk, ex)
            i = j

def merge(x, y):
    out = []; i = j = 0
    while i < len(x) or j < len(y):
        if j >= len(y) or (i < len(x) and i * len(y) <= j * len(x)): out.append(x[i]); i += 1
        else: out.append(y[j]); j += 1
    return out

def bf16_round(a, vdst, vsrc):
    a(f"v_cvt_pk_bf16_f32 v{vdst}, v{vsrc}, v{vsrc}"); a(f"v_lshlrev_b32 v{vdst}, 16, v{vdst}")

def stamp(a, idx, real=False, st="main"):
    if C.dbgst and st == C.stampset:
        a("s_memrealtime s[88:89]" if real else "s_memtime s[88:89]")
        a("s_waitcnt lgkmcnt(0)")
        a(f"s_mov_b32 s{92+idx}, s88")

sWave, sM, sN, sRole = 28, 29, 30, 31
sBufD, sBufR, sCnt, sTmp, sKP, sKQ, sLdsP, sLdsQ = 32, 33, 34, 35, 36, 37, 38, 39
sWp, sWq, sRot, sLdsP2, sKP2, sTile, sTt, sDt = 80, 81, 82, 83, 84, 85, 86, 87
SX, SA, SB_, SWS, SDBG, SS = 4, 8, 12, 16, 20, 24
T0, T1, T2, T3 = 76, 77, 78, 79
U0, U1, U2, U3 = 88, 89, 90, 91
VT = 2

def ssm_param_loads(a, vch, t):
    a(f"v_lshlrev_b32 v{t}, 1, v{vch}")
    for k, name in enumerate(("lre", "lim", "ldt")):
        srd(a, SS, PTR[name], 2048)
        a(f"buffer_load_ushort v{t+1+k}, v{t}, s[{SS}:{SS+3}], 0 offen")

def ssm_params_compute(a, out, t, want_kappa=True):
    lre, lim, ldt = t + 1, t + 2, t + 3
    x0, x1, x2, x3 = t + 4, t + 5, t + 6, t + 7
    lr, li, kr, ki = out, out + 1, out + 2, out + 3
    for r in (lre, lim, ldt): a(f"v_lshlrev_b32 v{r}, 16, v{r}")
    a(f"v_mul_f32 v{x0}, {LOG2E:#x}, v{ldt}"); a(f"v_exp_f32 v{x0}, v{x0}"); a("s_nop 0")
    bf16_round(a, x0, x0)
    a(f"v_mul_f32 v{x1}, v{x0}, v{lre}"); a(f"v_mul_f32 v{x2}, v{x0}, v{lim}")
    a(f"v_mul_f32 v{x1}, {LOG2E:#x}, v{x1}"); a(f"v_exp_f32 v{x1}, v{x1}")
    a(f"v_mul_f32 v{x2}, {INV2PI:#x}, v{x2}"); a(f"v_rndne_f32 v{x3}, v{x2}"); a(f"v_sub_f32 v{x2}, v{x2}, v{x3}")
    a(f"v_cos_f32 v{x3}, v{x2}"); a(f"v_sin_f32 v{x2}, v{x2}"); a("s_nop 0")
    a(f"v_mul_f32 v{lr}, v{x1}, v{x3}"); a(f"v_mul_f32 v{li}, v{x1}, v{x2}")
    if want_kappa:
        a(f"v_subrev_f32 v{x0}, 1.0, v{lr}")
        a(f"v_mul_f32 v{x1}, v{x0}, v{lre}"); a(f"v_fmac_f32 v{x1}, v{li}, v{lim}")
        a(f"v_mul_f32 v{x2}, v{li}, v{lre}"); a(f"v_fma_f32 v{x2}, -v{x0}, v{lim}, v{x2}")
        a(f"v_mul_f32 v{x3}, v{lre}, v{lre}"); a(f"v_fmac_f32 v{x3}, v{lim}, v{lim}")
        a(f"v_rcp_f32 v{x3}, v{x3}"); a("s_nop 0")
        a(f"v_add_f32 v{x3}, v{x3}, v{x3}")
        a(f"v_mul_f32 v{kr}, v{x1}, v{x3}"); a(f"v_mul_f32 v{ki}, v{x2}, v{x3}")

def csq(a, dr, di, sr_, si, t):
    a(f"v_mul_f32 v{t}, v{sr_}, v{si}"); a(f"v_mul_f32 v{dr}, v{sr_}, v{sr_}")
    a(f"v_fma_f32 v{dr}, -v{si}, v{si}, v{dr}"); a(f"v_add_f32 v{di}, v{t}, v{t}")

def gate_row_loads(a, sRow, vx, t):
    a(f"s_lshl_b32 s{U1}, s{sRow}, 11")
    a(f"buffer_load_dwordx4 {vr(vx,4)}, v{t}, s[{SX}:{SX+3}], s{U1} offen")
    a(f"buffer_load_dwordx4 {vr(vx+4,4)}, v{t}, s[{SX}:{SX+3}], s{U1} offen offset:16")

def gate_compute(a, sRow, vx, vw, t):
    acc = t; p0, p1, q0, q1 = t + 1, t + 2, t + 3, t + 4
    a(f"v_mov_b32 v{acc}, 0")
    for d in range(8):
        a(f"v_lshlrev_b32 v{p0}, 16, v{vx+d}"); a(f"v_and_b32 v{p1}, 0xffff0000, v{vx+d}")
        a(f"v_lshlrev_b32 v{q0}, 16, v{vw+d}"); a(f"v_and_b32 v{q1}, 0xffff0000, v{vw+d}")
        a(f"v_mul_f32 v{p0}, v{p0}, v{q0}"); a(f"v_mul_f32 v{p1}, v{p1}, v{q1}")
        a(f"v_cvt_pk_bf16_f32 v{p0}, v{p0}, v{p1}")
        a(f"v_and_b32 v{p1}, 0xffff0000, v{p0}"); a(f"v_lshlrev_b32 v{p0}, 16, v{p0}")
        a(f"v_add_f32 v{acc}, v{acc}, v{p0}"); a(f"v_add_f32 v{acc}, v{acc}, v{p1}")
    for sh in (1, 2, 4, 8):
        a("s_nop 1")
        a(f"v_add_f32_dpp v{acc}, v{acc}, v{acc} row_shr:{sh} row_mask:0xf bank_mask:0xf bound_ctrl:0")
    a("s_nop 1")
    a(f"v_add_f32_dpp v{acc}, v{acc}, v{acc} row_bcast:15 row_mask:0xa bank_mask:0xf")
    a("s_nop 1")
    a(f"v_add_f32_dpp v{acc}, v{acc}, v{acc} row_bcast:31 row_mask:0xc bank_mask:0xf")
    a("s_nop 1")
    a(f"v_readlane_b32 s{U0}, v{acc}, 63")
    a("s_nop 1")
    a(f"v_mov_b32 v{acc}, s{U0}")
    bf16_round(a, acc, acc)
    a(f"v_mul_f32 v{p0}, {LOG2E ^ 0x80000000:#x}, v{acc}"); a(f"v_exp_f32 v{p0}, v{p0}"); a("s_nop 0")
    a(f"v_add_f32 v{p0}, 1.0, v{p0}"); a(f"v_rcp_f32 v{p0}, v{p0}"); a("s_nop 0")
    bf16_round(a, p0, p0)
    a(f"v_sub_f32 v{p1}, 1.0, v{p0}")
    bf16_round(a, p1, p1)
    a(f"s_lshl_b32 s{U0}, s{sRow}, 3"); a(f"s_add_u32 s{U0}, s{U0}, {WS_G}")
    a(f"v_cmp_eq_u32 vcc, 0, v0"); a("s_nop 1")
    a(f"v_cndmask_b32 v{p0}, v{p1}, v{p0}, vcc")
    a(f"v_lshlrev_b32 v{q0}, 2, v0")
    a("s_mov_b64 exec, 3")
    a(f"buffer_store_dword v{p0}, v{q0}, s[{SWS}:{SWS+3}], s{U0} offen sc1")
    a("s_mov_b64 exec, -1")

SENT = 0xffffffff
def inbox_offset(a, sdst):
    a(f"s_lshl_b32 s{sdst}, s2, 3"); a(f"s_add_u32 s{sdst}, s{sdst}, s{sWave}"); a(f"s_mul_i32 s{sdst}, s{sdst}, {4096*(C.ns-1)}")
    a(f"s_add_u32 s{sdst}, s{sdst}, {WS_XB}")

def mb_zero_groups(vt, ssm=False):
    c = []
    q = (vt + 1) // 2 * 2
    sk = newlabel("mz")
    c += [f"s_cmp_lg_u32 s{sWave}, 0", f"s_cbranch_scc1 {sk}"]
    if ssm:
        c += [f"v_mov_b32 v{q}, -1", f"v_mov_b32 v{q+1}, -1",
              f"s_lshl_b32 s{U0}, s{sN}, 6", f"v_add_u32 v{q+4}, s{U0}, v0", f"v_lshlrev_b32 v{q+4}, 3, v{q+4}",
              f"s_lshl_b32 s{U0}, s{sM}, 13", f"s_add_u32 s{U0}, s{U0}, {WS_AGG}",
              f"buffer_store_dwordx2 {vr(q,2)}, v{q+4}, s[{SWS}:{SWS+3}], s{U0} offen sc1"]
    c += [f"v_mov_b32 v{q+2}, 0", f"v_lshlrev_b32 v{q+4}, 2, v0", f"s_lshl_b32 s{U0}, s2, 8", f"s_add_u32 s{U0}, s{U0}, {WS_MB}",
          "s_mov_b64 exec, 0xffff", f"buffer_store_dword v{q+2}, v{q+4}, s[{SWS}:{SWS+3}], s{U0} offen sc1", "s_mov_b64 exec, -1", f"{sk}:"]
    return [c], 0

def inbox_init(a, vt):
    for r in range(4): a(f"v_mov_b32 v{vt+r}, -1")
    a(f"v_lshlrev_b32 v{vt+4}, 4, v0")
    inbox_offset(a, U0)
    for i in range(4 * (C.ns - 1)):
        a(f"buffer_store_dwordx4 {vr(vt,4)}, v{vt+4}, s[{SWS}:{SWS+3}], s{U0} offen offset:{(i%4)*1024} sc1")
        if i % 4 == 3: a(f"s_add_u32 s{U0}, s{U0}, 4096")

def init_signal(a, vt, idx=0, guard=True):
    sk = newlabel("mi")
    if guard: a(f"s_cmp_lg_u32 s{sWave}, 0"); a(f"s_cbranch_scc1 {sk}")
    a(f"v_mov_b32 v{vt}, 1"); a(f"v_mov_b32 v{vt+1}, {4*idx}")
    a("s_mov_b64 exec, 1")
    a(f"buffer_atomic_add v{vt}, v{vt+1}, s[{SDBG}:{SDBG+3}], 0 offen sc1")
    a("s_mov_b64 exec, -1")
    a.label(sk)

def poll(a, srd_, sByteOff, check, vt, wide=1, sleep=None):
    lp, ok = newlabel("poll"), newlabel("pok")
    a(f"v_mov_b32 v{vt+4}, s{sByteOff}")
    a(f"s_mov_b32 s{U2}, {C.spin}")
    a.label(lp)
    a(f"s_sub_u32 s{U2}, s{U2}, 1"); a(f"s_cmp_eq_u32 s{U2}, 0"); a(f"s_cbranch_scc1 {ok}")
    op = {1: "dword", 2: "dwordx2", 4: "dwordx4"}[wide]
    a(f"buffer_load_{op} {vr(vt,wide)}, v{vt+4}, s[{srd_}:{srd_+3}], 0 offen sc1")
    a("s_waitcnt vmcnt(0)")
    a(f"v_readfirstlane_b32 s{U0}, v{vt}")
    if wide >= 2: a(f"v_readfirstlane_b32 s{U1}, v{vt+1}")
    if wide >= 4: a(f"v_readfirstlane_b32 s{U3}, v{vt+2}")
    a("s_nop 3")
    check(ok)
    a(f"s_sleep {C.sleep if sleep is None else sleep}")
    a(f"s_branch {lp}")
    a.label(ok)

VINIT = 1
def init_load(a, idx=0):
    sk = newlabel("il")
    a(f"s_cmp_lg_u32 s{sWave}, 0"); a(f"s_cbranch_scc1 {sk}")
    a(f"v_mov_b32 v{VINIT}, {4*idx}")
    a(f"buffer_load_dword v{VINIT}, v{VINIT}, s[{SDBG}:{SDBG+3}], 0 offen sc1")
    a.label(sk)

def init_check(a, vt, idx=0):
    ok = newlabel("ic")
    a(f"v_readfirstlane_b32 s{U0}, v{VINIT}"); a("s_nop 3")
    a(f"s_cmp_ge_u32 s{U0}, 256"); a(f"s_cbranch_scc1 {ok}")
    a(f"s_mov_b32 s{T3}, {4*idx}")
    def chk(o): a(f"s_cmp_ge_u32 s{U0}, 256"); a(f"s_cbranch_scc1 {o}")
    poll(a, SDBG, T3, chk, vt, sleep=32)
    a.label(ok)

def poll_own(a, check, vt):
    a(f"s_lshl_b32 s{T3}, s2, 8"); a(f"s_add_u32 s{T3}, s{T3}, {WS_MB}")
    poll(a, SWS, T3, check, vt, wide=4)

def signal_cnt(a, dword, vt):
    NS = C.ns; XS = 8 // NS
    l, t1, t2 = vt, vt + 1, vt + 2
    t3 = vt + 3
    if NS == 2:
        a(f"v_bfe_u32 v{t1}, v0, 3, 1"); a(f"s_lshl_b32 s{T0}, s{sM}, 1"); a(f"v_add_u32 v{t1}, s{T0}, v{t1}")
        a(f"v_bfe_u32 v{t3}, v0, 4, 1")
    else:
        a(f"v_mov_b32 v{t1}, s{sM}")
        a(f"v_bfe_u32 v{t3}, v0, 3, 2")
    a(f"v_lshrrev_b32 v{t2}, 2, v{t1}"); a(f"v_mad_u32_u24 v{t2}, v{t3}, {XS}, v{t2}")
    a(f"v_and_b32 v{t1}, 3, v{t1}"); a(f"v_lshlrev_b32 v{t1}, 2, v{t1}")
    a(f"v_and_b32 v{l}, 3, v0"); a(f"v_or_b32 v{t1}, v{t1}, v{l}")
    a(f"v_bfe_u32 v{l}, v0, 2, 1"); a(f"v_and_b32 v{t3}, 1, v{t3}"); a(f"v_xor_b32 v{l}, v{l}, v{t3}"); a(f"v_xor_b32 v{l}, 1, v{l}")
    a(f"v_lshl_or_b32 v{t1}, v{l}, 4, v{t1}")
    a(f"v_lshl_or_b32 v{t1}, v{t1}, 3, v{t2}")
    a(f"v_lshlrev_b32 v{t1}, 8, v{t1}")
    a(f"v_mov_b32 v{l}, 1")
    a(f"s_mov_b32 s{T0}, {WS_MB + 4*dword}")
    a("s_mov_b32 exec_hi, 0")
    a(f"buffer_atomic_add v{l}, v{t1}, s[{SWS}:{SWS+3}], s{T0} offen sc1")
    a("s_mov_b64 exec, -1")

def bulk_prefetch(a, G, vdummy, vaddr):
    a(f"v_lshlrev_b32 v{vaddr}, 4, v0")
    n = 0
    for name, size in C.pflist:
        size = {"x": L*D*2, "w1": D*F*2, "bre": P_*D*2, "bim": P_*D*2, "cre": D*P_*2, "cim": D*P_*2, "w2": F*D*2}[name]
        share = size // 256; pw = share // 8
        a(f"s_mul_i32 s{U0}, s2, {share}"); a(f"s_mul_i32 s{U1}, s{sWave}, {pw}"); a(f"s_add_u32 s{U0}, s{U0}, s{U1}")
        a(f"s_mov_b32 s{SS}, s{PTR[name]}"); a(f"s_mov_b32 s{SS+1}, s{PTR[name]+1}")
        a(f"s_add_u32 s{SS+2}, s{U0}, {pw}"); a(f"s_mov_b32 s{SS+3}, 0x20000")
        for i in range(-(-pw // 1024)):
            a(f"buffer_load_dwordx4 {vr(vdummy,4)}, v{vaddr}, s[{SS}:{SS+3}], s{U0} offen offset:{i*1024}")
            n += 1
    G.note('pf', n)

def tlb_warm(a, vdummy, vaddr, names, tsrd):
    sizes = {"w2": F*D*2, "cre": D*P_*2, "cim": D*P_*2, "out": L*D*4, "lre": 2048, "lim": 2048, "ldt": 2048, "dsk": 2048, "b2": 2048, "gw": 2048}
    a(f"v_lshlrev_b32 v{vaddr}, {C.tlbshift}, v0")
    end = newlabel("tw")
    for w in range(8):
        nx = newlabel("tw")
        a(f"s_cmp_lg_u32 s{sWave}, {w}"); a(f"s_cbranch_scc1 {nx}")
        for name in names[w::8]:
            if name == "ws":
                a("s_mov_b32 exec_lo, 0x00ffffff"); a("s_mov_b32 exec_hi, 0")
                a(f"buffer_load_dword v{vdummy}, v{vaddr}, s[{SWS}:{SWS+3}], 0 offen")
                a("s_mov_b64 exec, -1")
            elif name == "dbg":
                a(f"buffer_load_dword v{vdummy}, v{vaddr}, s[{SDBG}:{SDBG+3}], 0 offen")
            else:
                a(f"s_mov_b32 s{tsrd}, s{PTR[name]}"); a(f"s_mov_b32 s{tsrd+1}, s{PTR[name]+1}"); a(f"s_mov_b32 s{tsrd+2}, {sizes[name]}"); a(f"s_mov_b32 s{tsrd+3}, 0x20000")
                a(f"buffer_load_dword v{vdummy}, v{vaddr}, s[{tsrd}:{tsrd+3}], 0 offen")
        a(f"s_branch {end}")
        a.label(nx)
    a.label(end)

def phase1_dense(a):
    V = Regs(10)
    TP, TQ = 224, 256
    mp, mq = 7, 4
    Pop = OpNC(a, V, TP, 0, mp, F * 2)
    NBQ = C.nbq
    Qop = OpKC(a, V, TQ, 2 * Pop.bytes, mq); Qop.groups = [[0, 1, 2, 3]]
    G = Gemm(a, V, 2, NBQ, Pop.bytes, Qop.bytes, mp, mq, (sBufD, sBufR, sTile, sTt, sCnt, sRole), False, 'Q', 'd1')
    LDS1 = 2 * Pop.bytes + NBQ * Qop.bytes
    acc = V.get(4 * mp * mq, 2)
    vb = V.get(2 * mp, 2); vdum = V.get(4, 2)
    a(f"s_lshr_b32 s{sWp}, s{sWave}, 2"); a(f"s_and_b32 s{sWq}, s{sWave}, 3")
    a(f"s_mul_i32 s{T0}, s{sN}, {TP*2}")
    Pop.setup_dma(sWave, VT, T0, U0)
    Qop.lane_chunk(VT, VT + 1)
    a(f"v_lshrrev_b32 v{VT+1}, 3, v0"); a(f"v_lshl_add_u32 v{VT}, v{VT+1}, 11, v{VT}")
    for j in range(4):
        a(f"s_lshl_b32 s{T0}, s{sM}, 8"); a(f"s_lshl_b32 s{T1}, s{sWave}, 5"); a(f"s_add_u32 s{T0}, s{T0}, s{T1}")
        a(f"s_add_u32 s{T0}, s{T0}, {8*j}"); a(f"s_lshl_b32 s{T0}, s{T0}, 11"); a(f"s_sub_u32 s{T0}, s{T0}, {j*1024}")
        Qop.set_voff(j, VT, T0, bool(j & 1))
    Pop.setup_lds(sWave, sLdsP, U0)
    a(f"s_lshl_b32 s{sLdsQ}, s{sWave}, 12"); a(f"s_add_u32 s{sLdsQ}, s{sLdsQ}, {Qop.lds_off}")
    a(f"s_mul_i32 s{sKP}, s{sRot}, {64*F*2}"); a(f"s_lshl_b32 s{sKQ}, s{sRot}, 7")
    a("s_waitcnt lgkmcnt(0)")
    stamp(a, 1, st="pro")
    srd(a, SX, PTR["x"], L * D * 2); srd(a, SWS, PTR["ws"], WS_SIZE); srd(a, SDBG, PTR["dbg"], 256)
    srd(a, SA, PTR["w1"], D * F * 2)
    kadvP = [f"s_add_u32 s{sKP}, s{sKP}, {64*F*2}", f"s_cmp_eq_u32 s{sKP}, {D*F*2}", f"s_cselect_b32 s{sKP}, 0, s{sKP}"]
    kadvQ = [f"s_add_u32 s{sKQ}, s{sKQ}, 128", f"s_and_b32 s{sKQ}, s{sKQ}, 2047"]
    seg = Seg(Pop, Qop, acc, lambda b: Pop.dma(b, sKP, sTmp, sLdsP, SA, sWave), lambda b: Qop.dma(b, sKQ, sTmp, sLdsQ, [SX] * 4), kadvP, kadvQ, "d1")
    stages = [seg] * 16
    G.prologue(stages, "PQ", 0, 1)
    if C.pbar: a("s_barrier")
    if C.tlb: tlb_warm(a, 250, VT + 5, ["ws", "w2", "cre", "cim", "out", "dbg", "dsk", "b2"], SS); G.note('tlb', 1)
    stamp(a, 2, st="pro")
    a(f"s_mul_i32 s{T2}, s{sN}, {TP}"); a(f"s_mul_i32 s{T3}, s{sWp}, {mp*16}"); a(f"s_add_u32 s{T2}, s{T2}, s{T3}")
    a(f"s_lshl_b32 s{T3}, s{T2}, 1")
    a(f"v_lshrrev_b32 v{VT+2}, 4, v0"); a(f"v_lshlrev_b32 v{VT+2}, 3, v{VT+2}")
    srd(a, SS, PTR["b1"], F * 2)
    for i in range(mp):
        a(f"buffer_load_dwordx2 {vr(vb+2*i,2)}, v{VT+2}, s[{SS}:{SS+3}], s{T3} offen offset:{32*i}")
    G.note('misc', mp)
    a(f"s_mul_i32 s{T0}, s{sWp}, {mp}"); Pop.setup_read(T0, VT, U0)
    a(f"s_mul_i32 s{T0}, s{sWq}, {mq}"); Qop.setup_read(T0, VT, U0)
    stamp(a, 3, st="pro")
    G.prologue(stages, "PQ", 1)
    stamp(a, 4, st="pro")
    a(f"s_waitcnt vmcnt({G.vm_allow({'misc'})})")
    for i in range(mp):
        c = acc + 4 * (i * mq)
        a(f"v_lshlrev_b32 v{c}, 16, v{vb+2*i}"); a(f"v_and_b32 v{c+1}, 0xffff0000, v{vb+2*i}")
        a(f"v_lshlrev_b32 v{c+2}, 16, v{vb+2*i+1}"); a(f"v_and_b32 v{c+3}, 0xffff0000, v{vb+2*i+1}")
        for j in range(1, mq):
            for r in range(4): a(f"v_mov_b32 v{c+4*j+r}, v{c+r}")
    stamp(a, 1)
    G.pre_first = lambda: stamp(a, 5, st="pro")
    G.run(stages, {C.initit + 3: (lambda: init_signal(a, VT + 4))}, {C.initit: mb_zero_groups(VT + 2)}, (lambda: stamp(a, 6, st="pro")))
    stamp(a, 2)
    stamp(a, 1, st="clk"); stamp(a, 2, real=True, st="clk")
    PITCH = 464
    stamp(a, 1, st="dense")
    init_load(a)
    vw = VT
    a(f"v_and_b32 v{vw}, 15, v0"); a(f"v_mul_u32_u24 v{vw}, {PITCH}, v{vw}")
    a(f"v_lshrrev_b32 v{VT+1}, 4, v0"); a(f"v_lshl_add_u32 v{vw}, v{VT+1}, 3, v{vw}")
    a(f"s_mul_i32 s{T0}, s{sWq}, {64*PITCH}"); a(f"s_mul_i32 s{T1}, s{sWp}, 224"); a(f"s_add_u32 s{T0}, s{T0}, s{T1}")
    a(f"v_add_u32 v{vw}, s{T0}, v{vw}")
    vr_, vg_ = VT + 1, VT + 2
    a(f"v_cmp_le_u32 vcc, 28, v0"); a("s_nop 1")
    a(f"v_cndmask_b32 v{VT+3}, 0, 1, vcc")
    a(f"v_mul_u32_u24 v{VT+4}, 28, v{VT+3}"); a(f"v_sub_u32 v{VT+4}, v0, v{VT+4}")
    a(f"v_lshlrev_b32 v{VT+4}, 4, v{VT+4}")
    a(f"v_mul_u32_u24 v{vr_}, {PITCH}, v{VT+3}"); a(f"v_add_u32 v{vr_}, v{vr_}, v{VT+4}")
    a(f"s_mul_i32 s{T0}, s{sWq}, {64*PITCH}"); a(f"s_mul_i32 s{T1}, s{sWp}, {32*PITCH}"); a(f"s_add_u32 s{T0}, s{T0}, s{T1}")
    a(f"v_add_u32 v{vr_}, s{T0}, v{vr_}")
    a(f"v_mul_u32_u24 v{vg_}, {RS_A2}, v{VT+3}"); a(f"v_add_u32 v{vg_}, v{vg_}, v{VT+4}")
    a(f"s_lshl_b32 s{T0}, s{sM}, 8"); a(f"s_lshl_b32 s{T1}, s{sWq}, 6"); a(f"s_add_u32 s{T0}, s{T0}, s{T1}")
    a(f"s_lshl_b32 s{T1}, s{sWp}, 5"); a(f"s_add_u32 s{T0}, s{T0}, s{T1}")
    a(f"s_mul_i32 s{T0}, s{T0}, {RS_A2}"); a(f"s_mul_i32 s{T1}, s{sN}, 448"); a(f"s_add_u32 s{T0}, s{T0}, s{T1}")
    a(f"s_add_u32 s{T0}, s{T0}, {WS_A2 + 4096}")
    for j in range(mq):
        for i in range(mp):
            c = acc + 4 * (i * mq + j)
            for r in range(4): a(f"v_mul_f32_e64 v{c+r}, v{c+r}, |v{c+r}|")
            a(f"v_cvt_pk_bf16_f32 v{c}, v{c}, v{c+1}"); a(f"v_cvt_pk_bf16_f32 v{c+1}, v{c+2}, v{c+3}")
            a(f"v_pk_max_i16 v{c}, v{c}, 0"); a(f"v_pk_max_i16 v{c+1}, v{c+1}, 0")
    a("s_barrier")
    stamp(a, 2, st="dense")
    for j in range(mq):
        for i in range(mp):
            c = acc + 4 * (i * mq + j)
            a(f"ds_write_b64 v{vw}, {vr(c,2)} offset:{j*16*PITCH + 32*i}")
    a("s_waitcnt lgkmcnt(0)")
    stamp(a, 3, st="dense")
    a("s_barrier")
    stamp(a, 4, st="dense")
    a("s_mov_b32 exec_hi, 0x00ffffff")
    rb = acc
    for n in range(16):
        a(f"ds_read_b128 {vr(rb+4*n,4)}, v{vr_} offset:{2*n*PITCH}")
    for n in range(16):
        a(f"s_waitcnt lgkmcnt({15-n})")
        a(f"buffer_store_dwordx4 {vr(rb+4*n,4)}, v{vg_}, s[{SWS}:{SWS+3}], s{T0} offen{C.wt}")
        a(f"s_add_u32 s{T0}, s{T0}, {2*RS_A2}")
    a("s_mov_b64 exec, -1")
    stamp(a, 5, st="dense")
    return V.hi, max(LDS1, 4 * 64 * PITCH)

def phase1_ssm(a):
    V = Regs(10)
    mp, mq = 4, 4
    Pop = OpKC(a, V, 256, 0, mp); Pop.groups = [[0, 1, 2, 3]]
    Qop = OpKC(a, V, 128, Pop.bytes, mq); Qop.groups = [[0], [1]]; Qop.ldsoffs = [0, 8192]
    Qop.frag_off = lambda j: ((j & 1) * 4 + (j >> 1)) * 2048
    SB = Pop.bytes + Qop.bytes; NB = 3
    G = Gemm(a, V, NB, NB, Pop.bytes, Qop.bytes, mp, mq, (sBufD, sBufR, None, None, sCnt, sRole), True, 'P', 's1')
    acc = V.get(64, 2); prm = V.get(12, 4); big = V.get(72, 4)
    AG = NB * SB
    a(f"s_lshr_b32 s{sWp}, s{sWave}, 1"); a(f"s_and_b32 s{sWq}, s{sWave}, 1")
    Pop.lane_chunk(VT, VT + 1)
    a(f"v_lshrrev_b32 v{VT+1}, 5, v0"); a(f"v_lshlrev_b32 v{VT+1}, 4, v{VT+1}")
    a(f"v_bfe_u32 v{VT+2}, v0, 3, 2"); a(f"v_add_u32 v{VT+1}, v{VT+1}, v{VT+2}")
    a(f"v_lshl_add_u32 v{VT+3}, v{VT+1}, 11, v{VT}")
    for j in range(4):
        a(f"s_lshl_b32 s{T0}, s{sWave}, 1");
        if j >> 1: a(f"s_add_u32 s{T0}, s{T0}, 1")
        a(f"s_and_b32 s{T0}, s{T0}, 3"); a(f"s_lshl_b32 s{T0}, s{T0}, 2")
        a(f"s_lshl_b32 s{T1}, s{sWp}, 6"); a(f"s_add_u32 s{T0}, s{T0}, s{T1}")
        a(f"s_lshl_b32 s{T1}, s{sM}, 8"); a(f"s_add_u32 s{T0}, s{T0}, s{T1}")
        if j & 1: a(f"s_add_u32 s{T0}, s{T0}, 32")
        a(f"s_lshl_b32 s{T0}, s{T0}, 11")
        if j: a(f"s_sub_u32 s{T0}, s{T0}, {j*1024}")
        Pop.set_voff(j, VT + 3, T0, bool(j & 1))
    a(f"v_lshrrev_b32 v{VT+1}, 3, v0"); a(f"v_lshl_add_u32 v{VT+3}, v{VT+1}, 12, v{VT}")
    a(f"s_lshr_b32 s{T0}, s{sWave}, 2"); a(f"s_lshl_b32 s{T0}, s{T0}, 5")
    a(f"s_and_b32 s{T1}, s{sWave}, 1"); a(f"s_lshl_b32 s{T2}, s{T1}, 6"); a(f"s_lshl_b32 s{T1}, s{T1}, 4"); a(f"s_add_u32 s{T0}, s{T0}, s{T1}")
    a(f"s_bfe_u32 s{T1}, s{sWave}, 0x10001"); a(f"s_add_u32 s{T0}, s{T0}, s{T1}")
    a(f"s_lshl_b32 s{T1}, s{sN}, 6"); a(f"s_add_u32 s{T0}, s{T0}, s{T1}"); a(f"s_lshl_b32 s{T0}, s{T0}, 11")
    Qop.set_voff(0, VT + 3, T0, T2)
    a(f"v_mov_b32 v{Qop.vd+1}, v{Qop.vd}")
    a(f"s_lshl_b32 s{sLdsP}, s{sWave}, 12")
    a(f"s_lshl_b32 s{sLdsQ}, s{sWave}, 10"); a(f"s_add_u32 s{sLdsQ}, s{sLdsQ}, {Qop.lds_off}")
    a(f"s_lshl_b32 s{sKQ}, s{sRot}, 7")
    a("s_waitcnt lgkmcnt(0)")
    srd(a, SX, PTR["x"], L * D * 2); srd(a, SWS, PTR["ws"], WS_SIZE); srd(a, SDBG, PTR["dbg"], 256)
    srd(a, SA, PTR["bre"], P_ * D * 2); srd(a, SB_, PTR["bim"], P_ * D * 2)
    pt = [big, big + 8, big + 16]
    kadv = [f"s_add_u32 s{sKQ}, s{sKQ}, 128", f"s_and_b32 s{sKQ}, s{sKQ}, 2047"]
    kadvP = [f"s_add_u32 s{sKP}, s{sKP}, 128", f"s_and_b32 s{sKP}, s{sKP}, 2047"]
    a(f"s_mov_b32 s{sKP}, s{sKQ}")
    seg = Seg(Pop, Qop, acc, lambda b: Pop.dma(b, sKP, sTmp, sLdsP, [SX] * 4), lambda b: Qop.dma(b, sKQ, sTmp, sLdsQ, [SA, SB_]), kadvP, kadv, "s1")
    if C.prefetch:
        SP1, SP2, sPF1, sPF2 = SS, 72, sLdsP2, sKP2
        a(f"s_lshl_b32 s{T0}, s{sM}, 4"); a(f"s_add_u32 s{T0}, s{T0}, s{sN}")
        a(f"s_mul_i32 s{sPF2}, s{T0}, {56*1024}"); a(f"s_mul_i32 s{T1}, s{sWave}, {7*1024}"); a(f"s_add_u32 s{sPF2}, s{sPF2}, s{T1}")
        a(f"s_mov_b32 s{SP2}, s{PTR['w2']}"); a(f"s_mov_b32 s{SP2+1}, s{PTR['w2']+1}")
        a(f"s_add_u32 s{SP2+2}, s{sPF2}, {7*1024}"); a(f"s_mov_b32 s{SP2+3}, 0x20000")
        a(f"s_lshr_b32 s{T1}, s{T0}, 6"); a(f"s_cmp_eq_u32 s{T1}, 0")
        a(f"s_cselect_b32 s{SP1}, s{PTR['cre']}, s{PTR['cim']}"); a(f"s_cselect_b32 s{SP1+1}, s{PTR['cre']+1}, s{PTR['cim']+1}")
        a(f"s_and_b32 s{sPF1}, s{T0}, 63"); a(f"s_lshl_b32 s{sPF1}, s{sPF1}, 15"); a(f"s_lshl_b32 s{T1}, s{sWave}, 12"); a(f"s_add_u32 s{sPF1}, s{sPF1}, s{T1}")
        a(f"s_add_u32 s{SP1+2}, s{sPF1}, 4096"); a(f"s_mov_b32 s{SP1+3}, 0x20000")
        vpf = V.get(1); vpd = V.get(4, 2)
        a(f"v_lshlrev_b32 v{vpf}, 4, v0")
        pf = []
        for i in range(4): pf.append([f"buffer_load_dwordx4 {vr(vpd,4)}, v{vpf}, s[{SP1}:{SP1+3}], s{sPF1} offen offset:{i*1024}"])
        for i in range(7):
            pf.append([f"buffer_load_dwordx4 {vr(vpd,4)}, v{vpf}, s[{SP2}:{SP2+3}], s{sPF2} offen offset:{(i%4)*1024}"] + ([f"s_add_u32 s{sPF2}, s{sPF2}, 4096"] if i == 3 else []))
        p1extras = {C.pfit: (pf, 11)}
    else:
        p1extras = {}
    stages = [seg] * 16
    G.prologue(stages, "PQ", 0, 1)
    a(f"s_mul_i32 s{T0}, s{sWp}, {mp}"); Pop.setup_read(T0, VT, U0)
    a(f"s_lshl_b32 s{T0}, s{sWq}, 1"); Qop.setup_read(T0, VT, U0)
    for i in range(64): a(f"v_mov_b32 v{acc+i}, 0")
    if C.pbar: a("s_barrier")
    if C.tlb: tlb_warm(a, 250, VT + 5, ["ws", "w2", "cre", "cim", "out", "dbg", "dsk", "b2", "lre", "lim", "ldt", "gw"], 60); G.note('tlb', 1)
    G.prologue(stages, "PQ", 1)
    SPRM = 60
    def prm_loads():
        out = []
        class Cap:
            def __call__(self, x): out.append([x])
        c = Cap()
        c(f"s_lshl_b32 s{T2}, s{sN}, 6"); c(f"s_lshl_b32 s{T3}, s{sWq}, 5"); c(f"s_add_u32 s{T3}, s{T3}, s{T2}")
        c(f"v_and_b32 v{VT}, 15, v0"); c(f"v_lshlrev_b32 v{VT}, 1, v{VT}"); c(f"v_add_u32 v{VT}, s{T3}, v{VT}")
        c(f"v_lshlrev_b32 v{pt[0]}, 1, v{VT}"); c(f"v_add_u32 v{pt[1]}, 2, v{pt[0]}")
        c(f"v_add_u32 v{pt[2]}, s{T2}, v0"); c(f"v_lshlrev_b32 v{pt[2]}, 1, v{pt[2]}")
        c(f"s_mov_b32 s{SPRM+2}, 2048"); c(f"s_mov_b32 s{SPRM+3}, 0x20000")
        for k, name in enumerate(("lre", "lim", "ldt")):
            out.append([f"s_mov_b32 s{SPRM}, s{PTR[name]}", f"s_mov_b32 s{SPRM+1}, s{PTR[name]+1}"] +
                       [f"buffer_load_ushort v{pt[q]+1+k}, v{pt[q]}, s[{SPRM}:{SPRM+3}], 0 offen" for q in range(3)])
        return out
    def prm_math():
        out = []
        class Cap:
            def __call__(self, x): out.append(x)
        c = Cap()
        ssm_params_compute(c, prm, pt[0]); ssm_params_compute(c, prm + 4, pt[1]); ssm_params_compute(c, prm + 8, pt[2], False)
        return [out[i:i + 4] for i in range(0, len(out), 4)]
    p1extras[3] = (prm_loads(), 9)
    p1extras[7] = (prm_math(), 0)
    stamp(a, 1)
    p1extras[C.initit] = mb_zero_groups(VT + 2, True)
    G.run(stages, {C.initit + 3: (lambda: init_signal(a, VT + 4))}, p1extras)
    stamp(a, 2)
    stamp(a, 1, st="clk"); stamp(a, 2, real=True, st="clk")
    stamp(a, 1, st="ssm")
    init_load(a)
    a("s_nop 7")
    def U(jc, ri, s): return acc + 4 * ((s >> 2) * 4 + 2 * jc + ri) + (s & 3)
    ag = big; tt = big + 4
    def scan_step(s):
        for jc in range(2):
            hr, hi_ = ag + 2 * jc, ag + 2 * jc + 1; lr = prm + 4 * jc; t0, t1 = tt + 2 * jc, tt + 2 * jc + 1
            a(f"v_fma_f32 v{t0}, v{lr}, v{hr}, v{U(jc,0,s)}"); a(f"v_fma_f32 v{t1}, v{lr}, v{hi_}, v{U(jc,1,s)}")
        for jc in range(2):
            hr, hi_ = ag + 2 * jc, ag + 2 * jc + 1; li = prm + 4 * jc + 1; t0, t1 = tt + 2 * jc, tt + 2 * jc + 1
            a(f"v_fma_f32 v{hi_}, v{li}, -v{hi_}, v{t0}")
            a(f"v_fma_f32 v{t1}, v{li}, v{hr}, v{t1}")
        for jc in range(2):
            hr, hi_ = ag + 2 * jc, ag + 2 * jc + 1; t1 = tt + 2 * jc + 1
            a(f"v_mov_b32 v{hr}, v{hi_}"); a(f"v_mov_b32 v{hi_}, v{t1}")
    for jc in range(2):
        a(f"v_mov_b32 v{ag+2*jc}, v{U(jc,0,0)}"); a(f"v_mov_b32 v{ag+2*jc+1}, v{U(jc,1,0)}")
    def scan2(s, src, dst):
        for jc in range(2):
            hr, hi_ = src + 2 * jc, src + 2 * jc + 1; lr = prm + 4 * jc; dr, di = dst + 2 * jc, dst + 2 * jc + 1
            a(f"v_fma_f32 v{dr}, v{lr}, v{hr}, v{U(jc,0,s)}"); a(f"v_fma_f32 v{di}, v{lr}, v{hi_}, v{U(jc,1,s)}")
        for jc in range(2):
            hr, hi_ = src + 2 * jc, src + 2 * jc + 1; li = prm + 4 * jc + 1; dr, di = dst + 2 * jc, dst + 2 * jc + 1
            a(f"v_fma_f32 v{dr}, -v{li}, v{hi_}, v{dr}"); a(f"v_fma_f32 v{di}, v{li}, v{hr}, v{di}")
    st = [ag, tt]
    for s in range(1, 16): scan2(s, st[(s - 1) & 1], st[s & 1])
    fin = st[15 & 1]
    vag = big + 8
    def calc_vag():
        a(f"v_lshrrev_b32 v{vag}, 4, v0"); a(f"s_lshl_b32 s{T0}, s{sWp}, 2"); a(f"v_add_u32 v{vag}, s{T0}, v{vag}")
        a(f"v_lshlrev_b32 v{vag}, 9, v{vag}")
        a(f"v_and_b32 v{big+9}, 15, v0"); a(f"v_lshlrev_b32 v{big+9}, 4, v{big+9}")
        a(f"s_lshl_b32 s{T0}, s{sWq}, 8"); a(f"s_add_u32 s{T0}, s{T0}, {AG}")
        a(f"v_add3_u32 v{vag}, v{vag}, v{big+9}, s{T0}")
    calc_vag()
    a(f"ds_write_b128 v{vag}, {vr(fin,4)}")
    a("s_waitcnt lgkmcnt(0)")
    a("s_barrier")
    stamp(a, 2, st="ssm")
    a(f"s_cmp_lg_u32 s{sWave}, 0")
    a("s_cbranch_scc1 L_s_gate")
    lr, li = prm + 8, prm + 9
    l16r, l16i, l256r, l256i = big + 10, big + 11, big + 12, big + 13
    er, ei = big + 14, big + 15
    w0 = big + 4
    A = big + 16; vl = big + 9
    a(f"v_lshlrev_b32 v{vl}, 3, v0"); a(f"v_add_u32 v{vl}, {AG}, v{vl}")
    for s in range(16): a(f"ds_read_b64 {vr(A+2*s,2)}, v{vl} offset:{s*512}")
    csq(a, l16r, l16i, lr, li, w0)
    for _ in range(3): csq(a, l16r, l16i, l16r, l16i, w0)
    csq(a, l256r, l256i, l16r, l16i, w0)
    for _ in range(3): csq(a, l256r, l256i, l256r, l256i, w0)
    a("s_waitcnt lgkmcnt(0)")
    x0, x1 = big + 6, big + 7
    for s in range(1, 16):
        pr, pi, cr_, ci_ = A + 2 * (s - 1), A + 2 * (s - 1) + 1, A + 2 * s, A + 2 * s + 1
        a(f"v_fma_f32 v{cr_}, v{l16r}, v{pr}, v{cr_}"); a(f"v_fma_f32 v{ci_}, v{l16r}, v{pi}, v{ci_}")
        a(f"v_fma_f32 v{cr_}, -v{l16i}, v{pi}, v{cr_}"); a(f"v_fma_f32 v{ci_}, v{l16i}, v{pr}, v{ci_}")
    er, ei = A + 30, A + 31
    vo = big + 8
    a(f"s_lshl_b32 s{T0}, s{sN}, 6"); a(f"v_add_u32 v{vo}, s{T0}, v0"); a(f"v_lshlrev_b32 v{vo}, 3, v{vo}")
    a(f"s_lshl_b32 s{T1}, s{sM}, 13"); a(f"s_add_u32 s{T1}, s{T1}, {WS_AGG}")
    a("s_waitcnt vmcnt(0)")
    init_check(a, big + 52)
    a(f"s_lshl_b32 s{T1}, s{sM}, 13"); a(f"s_add_u32 s{T1}, s{T1}, {WS_AGG}")
    a(f"buffer_store_dwordx2 {vr(er,2)}, v{vo}, s[{SWS}:{SWS+3}], s{T1} offen sc1")
    stamp(a, 3, st="ssm")
    cr, ci = big + 48, big + 49
    a(f"v_mov_b32 v{cr}, 0"); a(f"v_mov_b32 v{ci}, 0")
    a(f"s_cmp_eq_u32 s{sM}, 0"); a("s_cbranch_scc1 L_s_nolb")
    B = big + 50
    a(f"s_mov_b32 s{U2}, {C.spin}")
    a.label("L_s_lb")
    for j in range(7):
        if j: a(f"s_cmp_le_u32 s{sM}, {j}"); a("s_cbranch_scc1 L_s_lbw")
        a(f"s_mov_b32 s{T1}, {WS_AGG + j*8192}")
        a(f"buffer_load_dwordx2 {vr(B+2*j,2)}, v{vo}, s[{SWS}:{SWS+3}], s{T1} offen sc1")
    a.label("L_s_lbw")
    a("s_waitcnt vmcnt(0)")
    a(f"s_mov_b64 s[{U0}:{U1}], 0")
    for j in range(7):
        if j: a(f"s_cmp_le_u32 s{sM}, {j}"); a("s_cbranch_scc1 L_s_lbc")
        a(f"v_cmp_eq_u32 vcc, -1, v{B+2*j}"); a("s_nop 0"); a(f"s_or_b64 s[{U0}:{U1}], s[{U0}:{U1}], vcc")
        a(f"v_cmp_eq_u32 vcc, -1, v{B+2*j+1}"); a("s_nop 0"); a(f"s_or_b64 s[{U0}:{U1}], s[{U0}:{U1}], vcc")
    a.label("L_s_lbc")
    a(f"s_cmp_eq_u64 s[{U0}:{U1}], 0"); a("s_cbranch_scc1 L_s_lbok")
    a(f"s_sub_u32 s{U2}, s{U2}, 1"); a(f"s_cmp_eq_u32 s{U2}, 0"); a("s_cbranch_scc1 L_s_lbok")
    a(f"s_sleep {C.sleep}"); a("s_branch L_s_lb")
    a.label("L_s_lbok")
    for j in range(7):
        a(f"s_cmp_le_u32 s{sM}, {j}"); a("s_cbranch_scc1 L_s_nolb")
        a(f"v_fma_f32 v{x0}, v{l256r}, v{cr}, v{B+2*j}"); a(f"v_fma_f32 v{x1}, v{l256r}, v{ci}, v{B+2*j+1}")
        a(f"v_fma_f32 v{x0}, -v{l256i}, v{ci}, v{x0}"); a(f"v_fma_f32 v{ci}, v{l256i}, v{cr}, v{x1}")
        a(f"v_mov_b32 v{cr}, v{x0}")
    a.label("L_s_nolb")
    stamp(a, 4, st="ssm")
    a(f"ds_write_b64 v{vl}, {vr(cr,2)}")
    for s in range(1, 16):
        a(f"v_mul_f32 v{x0}, v{l16r}, v{cr}"); a(f"v_mul_f32 v{x1}, v{l16r}, v{ci}")
        a(f"v_fma_f32 v{x0}, -v{l16i}, v{ci}, v{x0}"); a(f"v_fma_f32 v{ci}, v{l16i}, v{cr}, v{x1}")
        a(f"v_mov_b32 v{cr}, v{x0}")
        a(f"v_add_f32 v{A+2*(s-1)}, v{A+2*(s-1)}, v{cr}"); a(f"v_add_f32 v{A+2*(s-1)+1}, v{A+2*(s-1)+1}, v{ci}")
        a(f"ds_write_b64 v{vl}, {vr(A+2*(s-1),2)} offset:{s*512}")
    a("s_waitcnt lgkmcnt(0)")
    a("s_branch L_s_wait")
    a.label("L_s_gate")
    gxs = [big + 16, big + 24, big + 32]; gws = big + 40; gt = big + 48
    a(f"s_lshl_b32 s{T0}, s{sM}, 8"); a(f"s_lshl_b32 s{T1}, s{sN}, 4"); a(f"s_add_u32 s{T0}, s{T0}, s{T1}")
    a(f"s_add_u32 s{T0}, s{T0}, s{sWave}"); a(f"s_sub_u32 s{T0}, s{T0}, 1")
    a(f"s_add_u32 s{T1}, s{T0}, 7"); a(f"s_add_u32 s{T2}, s{T0}, 14")
    a(f"v_lshlrev_b32 v{gt}, 5, v0")
    srd(a, SS, PTR["gw"], 2048)
    a(f"buffer_load_dwordx4 {vr(gws,4)}, v{gt}, s[{SS}:{SS+3}], 0 offen"); a(f"buffer_load_dwordx4 {vr(gws+4,4)}, v{gt}, s[{SS}:{SS+3}], 0 offen offset:16")
    gate_row_loads(a, T0, gxs[0], gt); gate_row_loads(a, T1, gxs[1], gt)
    a(f"s_cmp_gt_u32 s{sWave}, 2"); a("s_cbranch_scc1 L_s_g2")
    gate_row_loads(a, T2, gxs[2], gt)
    a("s_waitcnt vmcnt(0)")
    gate_compute(a, T2, gxs[2], gws, gt + 1)
    a.label("L_s_g2")
    a("s_waitcnt vmcnt(0)")
    gate_compute(a, T0, gxs[0], gws, gt + 1); gate_compute(a, T1, gxs[1], gws, gt + 1)
    a.label("L_s_wait")
    a("s_barrier")
    calc_vag()
    a(f"ds_read_b128 {vr(ag,4)}, v{vag}")
    PITCH = 272
    vw = big + 9
    a(f"v_lshrrev_b32 v{vw}, 4, v0"); a(f"v_lshlrev_b32 v{vw}, 4, v{vw}"); a(f"s_lshl_b32 s{T0}, s{sWp}, 6"); a(f"v_add_u32 v{vw}, s{T0}, v{vw}")
    a(f"v_mul_u32_u24 v{vw}, {PITCH}, v{vw}")
    a(f"v_and_b32 v{big+10}, 15, v0"); a(f"v_lshl_add_u32 v{vw}, v{big+10}, 2, v{vw}")
    a(f"s_lshl_b32 s{T0}, s{sWq}, 6"); a(f"v_add_u32 v{vw}, s{T0}, v{vw}")
    a("s_waitcnt lgkmcnt(0)")
    ore, oim, od = big + 12, big + 14, big + 16
    st = [ag, tt]
    for s in range(16):
        scan2(s, st[s & 1], st[(s + 1) & 1])
        h = st[(s + 1) & 1]
        for jc in range(2):
            hr, hi_ = h + 2 * jc, h + 2 * jc + 1; kr, ki = prm + 4 * jc + 2, prm + 4 * jc + 3
            a(f"v_mul_f32 v{ore+jc}, v{kr}, v{hr}"); a(f"v_mul_f32 v{oim+jc}, -v{kr}, v{hi_}")
        for jc in range(2):
            hr, hi_ = h + 2 * jc, h + 2 * jc + 1; kr, ki = prm + 4 * jc + 2, prm + 4 * jc + 3
            a(f"v_fma_f32 v{ore+jc}, -v{ki}, v{hi_}, v{ore+jc}"); a(f"v_fma_f32 v{oim+jc}, -v{ki}, v{hr}, v{oim+jc}")
        d = od + 2 * (s % 4)
        a(f"v_cvt_pk_bf16_f32 v{d}, v{ore}, v{ore+1}"); a(f"v_cvt_pk_bf16_f32 v{d+1}, v{oim}, v{oim+1}")
        a(f"ds_write_b32 v{vw}, v{d} offset:{s*PITCH}"); a(f"ds_write_b32 v{vw}, v{d+1} offset:{s*PITCH+128}")
    stamp(a, 5, st="ssm")
    vr_, vg_ = big + 10, big + 11
    a(f"v_lshrrev_b32 v{vr_}, 4, v0"); a(f"s_lshl_b32 s{T0}, s{sWave}, 5"); a(f"v_add_u32 v{vr_}, s{T0}, v{vr_}")
    a(f"s_lshl_b32 s{T1}, s{sM}, 8"); a(f"v_add_u32 v{vg_}, s{T1}, v{vr_}"); a(f"v_mul_u32_u24 v{vg_}, {RS_A2}, v{vg_}")
    a(f"v_mul_u32_u24 v{vr_}, {PITCH}, v{vr_}")
    a(f"v_and_b32 v{big+12}, 15, v0"); a(f"v_lshl_add_u32 v{vr_}, v{big+12}, 4, v{vr_}")
    a(f"v_and_b32 v{big+13}, 7, v0"); a(f"v_lshl_add_u32 v{vg_}, v{big+13}, 4, v{vg_}")
    a(f"v_bfe_u32 v{big+13}, v0, 3, 1"); a(f"v_lshl_add_u32 v{vg_}, v{big+13}, 11, v{vg_}")
    a(f"s_lshl_b32 s{T0}, s{sN}, 7"); a(f"s_add_u32 s{T0}, s{T0}, {WS_A2}")
    a("s_waitcnt lgkmcnt(0)")
    a("s_barrier")
    rb = acc
    for n in range(8): a(f"ds_read_b128 {vr(rb+4*n,4)}, v{vr_} offset:{4*n*PITCH}")
    for n in range(8):
        a(f"s_waitcnt lgkmcnt({7-n})")
        a(f"buffer_store_dwordx4 {vr(rb+4*n,4)}, v{vg_}, s[{SWS}:{SWS+3}], s{T0} offen{C.wt}")
        a(f"s_add_u32 s{T0}, s{T0}, {4*RS_A2}")
    stamp(a, 6, st="ssm")
    return V.hi, AG + 8192

def phase2(a, role):
    R = "A" if role == 0 else "B"
    SW2, SE = 24, 72
    NS = C.ns
    TQ = 128 if NS == 2 else 256
    TP, mp, mq, NB = 128, 4, NS, (4 if NS == 2 else 3)
    LG = 1 if NS == 2 else 2
    XS = 8 // NS
    sG, sKQ2 = 0, 3
    V = Regs(10)
    P1 = OpKC(a, V, TP, 0, mp); P1.groups = [[0, 1]]
    P2 = OpNC(a, V, TP, 0, mp, D * 2)
    Qop = OpKC(a, V, TQ, TP * 128, mq, flags=C.a2ld); Qop.groups = [list(range(Qop.n))]
    SB = TP * 128 + Qop.bytes
    G = Gemm(a, V, NB, NB, TP * 128, Qop.bytes, mp, mq, (sBufD, sBufR, None, None, sCnt, sRole), True, 'P' if NS == 2 else 'Q', 'p2')
    nf = mp * mq
    accD = V.get(4 * nf, 2)
    accS = V.get(4 * nf, 2)
    vg = V.get(2 * mq, 2); vep = V.get(4)
    vex = V.get(6 * mp, 2) if NS == 2 else G.F[0][0] + (32 if C.xbf16 else 0)
    if NS != 2 and not C.xbf16: vex = accS
    dense = 1 if role == 1 else 0
    a(f"s_and_b32 s{T0}, s2, 7"); a(f"s_lshr_b32 s{T1}, s2, 3")
    a(f"s_lshr_b32 s{sG}, s{T0}, {3-LG}")
    a(f"s_and_b32 s{T2}, s{T0}, {XS-1}"); a(f"s_lshl_b32 s{sTt}, s{T2}, 2"); a(f"s_bfe_u32 s{T2}, s{T1}, 0x20002"); a(f"s_add_u32 s{sTt}, s{sTt}, s{T2}")
    a(f"s_and_b32 s{T2}, s{sG}, 1")
    if dense: a(f"s_xor_b32 s{T2}, s{T2}, 1")
    a(f"s_lshl_b32 s{sDt}, s{T2}, 2"); a(f"s_and_b32 s{T2}, s{T1}, 3"); a(f"s_add_u32 s{sDt}, s{sDt}, s{T2}")
    a(f"s_lshl_b32 s{sTile}, s{sTt}, 3"); a(f"s_add_u32 s{sTile}, s{sTile}, s{sDt}")
    a(f"s_lshr_b32 s{sWp}, s{sWave}, 2"); a(f"s_and_b32 s{sWq}, s{sWave}, 3")
    srd(a, SW2, PTR["w2"], F * D * 2)
    a(f"s_lshr_b32 s{T0}, s{sG}, {LG-1}"); a(f"s_cmp_eq_u32 s{T0}, 0")
    a(f"s_cselect_b32 s{SA}, s{PTR['cre']}, s{PTR['cim']}"); a(f"s_cselect_b32 s{SA+1}, s{PTR['cre']+1}, s{PTR['cim']+1}")
    a(f"s_mov_b32 s{SA+2}, {D*P_*2}"); a(f"s_mov_b32 s{SA+3}, 0x20000")
    Qop.lane_chunk(VT, VT + 1)
    a(f"v_lshrrev_b32 v{VT+1}, 3, v0"); a(f"v_lshl_add_u32 v{VT+3}, v{VT+1}, 11, v{VT}")
    for j in range(2):
        a(f"s_lshl_b32 s{T0}, s{sDt}, 7"); a(f"s_lshl_b32 s{T1}, s{sWave}, 4"); a(f"s_add_u32 s{T0}, s{T0}, s{T1}")
        if j: a(f"s_add_u32 s{T0}, s{T0}, 8")
        a(f"s_lshl_b32 s{T0}, s{T0}, 11")
        if j: a(f"s_sub_u32 s{T0}, s{T0}, 1024")
        P1.set_voff(j, VT + 3, T0, bool(j & 1))
    a(f"s_lshl_b32 s{sLdsP}, s{sWave}, 11")
    a(f"s_lshl_b32 s{T0}, s{sDt}, 8")
    P2.setup_dma(sWave, VT + 4, T0, U0)
    P2.setup_lds(sWave, sLdsP2, U0)
    a(f"v_lshrrev_b32 v{VT+1}, 3, v0"); a(f"v_mul_u32_u24 v{VT+1}, {RS_A2}, v{VT+1}"); a(f"v_add_u32 v{VT+3}, v{VT+1}, v{VT}")
    for j in range(Qop.n):
        a(f"s_mul_i32 s{T0}, s{sWave}, {TQ//8}")
        if j: a(f"s_add_u32 s{T0}, s{T0}, {8*j}")
        a(f"s_lshr_b32 s{T1}, s{T0}, 4"); a(f"s_add_u32 s{T1}, s{T1}, s{sG}"); a(f"s_and_b32 s{T1}, s{T1}, {NS-1}"); a(f"s_lshl_b32 s{T1}, s{T1}, 4")
        a(f"s_andn2_b32 s{T0}, s{T0}, {(NS-1) << 4}"); a(f"s_or_b32 s{T0}, s{T0}, s{T1}")
        a(f"s_mul_i32 s{T1}, s{sTt}, {TQ}"); a(f"s_add_u32 s{T0}, s{T0}, s{T1}"); a(f"s_mul_i32 s{T0}, s{T0}, {RS_A2}")
        if j: a(f"s_sub_u32 s{T0}, s{T0}, {1024*j}")
        Qop.set_voff(j, VT + 3, T0, bool(j & 1))
    a(f"s_mul_i32 s{sLdsQ}, s{sWave}, {Qop.n*1024}"); a(f"s_add_u32 s{sLdsQ}, s{sLdsQ}, {Qop.lds_off}")
    nS = 32 // NS; base = 56 // NS
    nD = base + (C.delta if role == 0 else -C.delta)
    colsS = 2048 // NS
    a(f"s_mul_i32 s{sKQ}, s{sG}, {colsS*2}"); a(f"s_and_b32 s{sKP}, s{sKQ}, 2047")
    if WS_A2: a(f"s_add_u32 s{sKQ}, s{sKQ}, {WS_A2}")
    a(f"s_lshr_b32 s{T0}, s{sG}, 1"); a(f"s_mul_i32 s{T0}, s{T0}, {2*base}")
    a(f"s_and_b32 s{T1}, s{sG}, 1"); a(f"s_mul_i32 s{T1}, s{T1}, {2*base - nD}"); a(f"s_add_u32 s{T0}, s{T0}, s{T1}")
    a(f"s_mul_i32 s{sKP2}, s{T0}, {64*D*2}"); a(f"s_lshl_b32 s{sKQ2}, s{T0}, 7"); a(f"s_add_u32 s{sKQ2}, s{sKQ2}, {WS_A2 + 4096}")
    a(f"s_mul_i32 s{T0}, s{sWp}, {mp}")
    P1.setup_read(T0, VT, U0); P2.setup_read(T0, VT, U0)
    a(f"s_mul_i32 s{T0}, s{sWq}, {mq}"); Qop.setup_read(T0, VT, U0)
    qd = lambda b: Qop.dma(b, sKQ, sTmp, sLdsQ, [SWS] * Qop.n)
    qd2 = lambda b: Qop.dma(b, sKQ2, sTmp, sLdsQ, [SWS] * Qop.n)
    segD = Seg(P2, Qop, accD, lambda b: P2.dma(b, sKP2, sTmp, sLdsP2, SW2), qd2, [f"s_add_u32 s{sKP2}, s{sKP2}, {64*D*2}"], [f"s_add_u32 s{sKQ2}, s{sKQ2}, 128"], "d")
    segS = Seg(P1, Qop, accS, lambda b: P1.dma(b, sKP, sTmp, sLdsP, [SA] * 2), qd, [f"s_add_u32 s{sKP}, s{sKP}, 128"], [f"s_add_u32 s{sKQ}, s{sKQ}, 128"], "s")
    stages = [segS] * nS + [segD] * nD
    N = len(stages)
    a("s_barrier")
    G.prologue(stages, "P")
    nP0 = 2 * G.leadP
    for i in range(4 * nf):
        a(f"v_mov_b32 v{accD+i}, 0"); a(f"v_mov_b32 v{accS+i}, 0")
    post_first = None
    def chkS(ok): a(f"s_cmp_eq_u32 s{U1}, 16"); a(f"s_cbranch_scc1 {ok}")
    if role == 0:
        a(f"s_waitcnt vmcnt({nP0})")
        a("s_barrier")
        stamp(a, 3)
        a(f"s_cmp_eq_u32 s{sWave}, 1"); a(f"s_cbranch_scc1 L_p2{R}_pl")
        a(f"s_cmp_lg_u32 s{sWave}, 0"); a(f"s_cbranch_scc1 L_p2{R}_dep")
        signal_cnt(a, 1, VT)
        a(f"s_branch L_p2{R}_dep")
        a.label(f"L_p2{R}_pl")
        poll_own(a, chkS, VT)
    else:
        stamp(a, 3)
        a(f"s_cmp_lg_u32 s{sWave}, 0"); a(f"s_cbranch_scc1 L_p2{R}_dep")
        poll_own(a, chkS, VT)
        def post_first():
            sk = newlabel("pf")
            a(f"s_cmp_lg_u32 s{sWave}, 0"); a(f"s_cbranch_scc1 {sk}")
            init_check(a, VT)
            signal_cnt(a, 2, VT)
            a.label(sk)
    a.label(f"L_p2{R}_dep")
    a("s_barrier")
    G.prologue(stages, "Q")
    hooks = {}
    def hookD():
        sk = newlabel("hk")
        stamp(a, 2, st="p2")
        a(f"s_cmp_lg_u32 s{sWave}, 0"); a(f"s_cbranch_scc1 {sk}")
        def chk(ok): a(f"s_cmp_eq_u32 s{U3}, 16"); a(f"s_cbranch_scc1 {ok}")
        poll_own(a, chk, VT)
        a.label(sk)
        stamp(a, 3, st="p2")
    hooks[nS - G.leadQ - (1 if G.early == 'Q' else 0)] = hookD
    vt_own, vxo, vd2, vl16 = vep, vep + 1, vep + 2, vep + 3
    vx_, vds, vb2 = vex, vex + 2 * mp, vex + 4 * mp
    ex = []
    ex.append([f"s_mul_i32 s{T0}, s{sTt}, {TQ}", f"s_mul_i32 s{T1}, s{sWq}, {16*mq}", f"s_add_u32 s{T0}, s{T0}, s{T1}",
               f"v_and_b32 v{vt_own}, 15, v0", f"v_add_u32 v{vt_own}, s{T0}, v{vt_own}", f"v_lshlrev_b32 v{vxo}, 3, v{vt_own}"])
    for j in range(mq):
        ex.append([f"s_add_u32 s{T0}, s{sG}, {j}", f"s_and_b32 s{T0}, s{T0}, {NS-1}", f"s_lshl_b32 s{T0}, s{T0}, 7", f"s_add_u32 s{T0}, s{T0}, {WS_G}",
                   f"buffer_load_dwordx2 {vr(vg+2*j,2)}, v{vxo}, s[{SWS}:{SWS+3}], s{T0} offen sc1"])
    ex.append([f"s_lshl_b32 s{T0}, s{sG}, 4", f"v_add_u32 v{vt_own}, s{T0}, v{vt_own}",
               f"v_lshrrev_b32 v{vd2}, 4, v0", f"v_lshlrev_b32 v{vd2}, 2, v{vd2}",
               f"s_lshl_b32 s{T0}, s{sDt}, 7", f"s_lshl_b32 s{T1}, s{sWp}, 6", f"s_add_u32 s{T0}, s{T0}, s{T1}",
               f"v_add_u32 v{vd2}, s{T0}, v{vd2}", f"v_lshlrev_b32 v{vd2}, 1, v{vd2}",
               f"v_lshl_add_u32 v{vxo}, v{vt_own}, 11, v{vd2}", f"v_lshlrev_b32 v{vl16}, 4, v0"])
    ex2 = []
    for i in range(mp):
        ex2.append([f"buffer_load_dwordx2 {vr(vx_+2*i,2)}, v{vxo}, s[{SX}:{SX+3}], 0 offen offset:{32*i}"])
    ex2.append([f"s_mov_b32 s{SE}, s{PTR['dsk']}", f"s_mov_b32 s{SE+1}, s{PTR['dsk']+1}", f"s_mov_b32 s{SE+2}, 2048", f"s_mov_b32 s{SE+3}, 0x20000"])
    for i in range(mp):
        ex2.append([f"buffer_load_dwordx2 {vr(vds+2*i,2)}, v{vd2}, s[{SE}:{SE+3}], 0 offen offset:{32*i}"])
    ex2.append([f"s_mov_b32 s{SE}, s{PTR['b2']}", f"s_mov_b32 s{SE+1}, s{PTR['b2']+1}"])
    for i in range(mp):
        ex2.append([f"buffer_load_dwordx2 {vr(vb2+2*i,2)}, v{vd2}, s[{SE}:{SE+3}], 0 offen offset:{32*i}"])
    if NS == 2: extras = {N - NB: (ex + ex2, mq + 3 * mp)}
    else: extras = {N - NB: (ex, mq)}
    stamp(a, 4)
    stamp(a, 1, st="p2")
    stamp(a, 3, st="clk"); stamp(a, 4, real=True, st="clk")
    G.run(stages, hooks, extras, post_first)
    stamp(a, 5)
    stamp(a, 4, st="p2")
    stamp(a, 5, st="clk"); stamp(a, 6, real=True, st="clk")
    a("s_nop 7")
    a("s_waitcnt vmcnt(0)")
    def comb(i, j):
        c = 4 * (i * mq + j)
        for r in range(4):
            a(f"v_mul_f32 v{accD+c+r}, v{vg+2*j+1}, v{accD+c+r}"); a(f"v_fmac_f32 v{accD+c+r}, v{vg+2*j}, v{accS+c+r}")
    late_ex2 = (NS != 2 and not C.xbf16)
    if NS != 2 and C.xbf16:
        for g_ in ex2: G.emit(g_)
    if late_ex2:
        for j in list(range(1, mq)) + [0]:
            for i in range(mp): comb(i, j)
        for g_ in ex2: G.emit(g_)
    for j in range(1, mq):
        a(f"s_add_u32 s{T1}, s{sG}, {j}"); a(f"s_and_b32 s{T1}, s{T1}, {NS-1}")
        a(f"s_mul_i32 s{T0}, s{T1}, {XS}"); a(f"s_and_b32 s{T2}, s2, {XS-1}"); a(f"s_add_u32 s{T0}, s{T0}, s{T2}")
        a(f"s_lshr_b32 s{T2}, s{sDt}, 2"); a(f"s_xor_b32 s{T2}, s{T2}, s{T1}"); a(f"s_and_b32 s{T2}, s{T2}, 1"); a(f"s_xor_b32 s{T2}, s{T2}, 1")
        a(f"s_lshl_b32 s{T2}, s{T2}, 7"); a(f"s_or_b32 s{T0}, s{T0}, s{T2}")
        a(f"s_and_b32 s{T2}, s2, 0x78"); a(f"s_or_b32 s{T0}, s{T0}, s{T2}")
        a(f"s_lshl_b32 s{T0}, s{T0}, 3"); a(f"s_add_u32 s{T0}, s{T0}, s{sWave}"); a(f"s_mul_i32 s{T0}, s{T0}, {4096*(NS-1)}")
        a(f"s_add_u32 s{T0}, s{T0}, {WS_XB + (NS - j - 1) * 4096}")
        if not late_ex2:
            for i in range(mp): comb(i, j)
        if C.xbf16:
            for i2 in range(0, mp, 2):
                c0, c1 = accD + 4 * (i2 * mq + j), accD + 4 * ((i2 + 1) * mq + j)
                a(f"v_cvt_pk_bf16_f32 v{c0}, v{c0}, v{c0+1}"); a(f"v_cvt_pk_bf16_f32 v{c0+1}, v{c0+2}, v{c0+3}")
                a(f"v_cvt_pk_bf16_f32 v{c0+2}, v{c1}, v{c1+1}"); a(f"v_cvt_pk_bf16_f32 v{c0+3}, v{c1+2}, v{c1+3}")
                a(f"buffer_store_dwordx4 {vr(c0,4)}, v{vl16}, s[{SWS}:{SWS+3}], s{T0} offen offset:{(i2//2)*1024} sc1")
        else:
            a("s_nop 1")
            for i in range(mp):
                c = accD + 4 * (i * mq + j)
                a(f"buffer_store_dwordx4 {vr(c,4)}, v{vl16}, s[{SWS}:{SWS+3}], s{T0} offen offset:{i*1024} sc1")
    if not late_ex2:
        for i in range(mp): comb(i, 0)
    if NS != 2:
        a(f"s_waitcnt vmcnt({(2 if C.xbf16 else 4) * (mq - 1)})")
    x0, x1, y0, y1 = VT, VT + 1, VT + 2, VT + 3
    for i in range(mp):
        e = accD + 4 * (i * mq)
        for h in range(2):
            a(f"v_lshlrev_b32 v{x0}, 16, v{vx_+2*i+h}"); a(f"v_and_b32 v{x1}, 0xffff0000, v{vx_+2*i+h}")
            a(f"v_lshlrev_b32 v{y0}, 16, v{vds+2*i+h}"); a(f"v_and_b32 v{y1}, 0xffff0000, v{vds+2*i+h}")
            a(f"v_mul_f32 v{x0}, v{x0}, v{y0}"); a(f"v_mul_f32 v{x1}, v{x1}, v{y1}")
            a(f"v_cvt_pk_bf16_f32 v{x0}, v{x0}, v{x1}")
            a(f"v_and_b32 v{x1}, 0xffff0000, v{x0}"); a(f"v_lshlrev_b32 v{x0}, 16, v{x0}")
            a(f"v_fmac_f32 v{e+2*h}, v{vg}, v{x0}"); a(f"v_fmac_f32 v{e+2*h+1}, v{vg}, v{x1}")
            a(f"v_lshlrev_b32 v{x0}, 16, v{vb2+2*i+h}"); a(f"v_and_b32 v{x1}, 0xffff0000, v{vb2+2*i+h}")
            a(f"v_fmac_f32 v{e+2*h}, v{vg+1}, v{x0}"); a(f"v_fmac_f32 v{e+2*h+1}, v{vg+1}, v{x1}")
    a("s_waitcnt vmcnt(0)")
    stamp(a, 5, st="p2")
    t1, t2, t3 = VT + 1, VT + 2, VT + 3
    a(f"s_and_b32 s{T0}, s2, {XS-1}")
    a(f"v_mul_u32_u24 v{t1}, {XS}, v0"); a(f"v_add_u32 v{t1}, s{T0}, v{t1}")
    a(f"s_lshr_b32 s{T0}, s{sDt}, 2")
    a(f"v_and_b32 v{t2}, 1, v0"); a(f"v_xor_b32 v{t2}, s{T0}, v{t2}"); a(f"v_xor_b32 v{t2}, 1, v{t2}")
    a(f"s_lshr_b32 s{T0}, s2, 3"); a(f"s_and_b32 s{T0}, s{T0}, 15")
    a(f"v_lshlrev_b32 v{t2}, 4, v{t2}"); a(f"v_add_u32 v{t2}, s{T0}, v{t2}"); a(f"v_lshl_or_b32 v{t2}, v{t2}, 3, v{t1}")
    a(f"v_lshlrev_b32 v{t2}, 8, v{t2}"); a(f"v_mov_b32 v{t3}, 1")
    a(f"s_lshl_b32 s{T0}, 1, s{sG}"); a(f"s_andn2_b32 s{T0}, {(1 << NS) - 1}, s{T0}")
    a(f"s_lshl_b32 s{T1}, s{sWave}, 2"); a(f"s_add_u32 s{T1}, s{T1}, {WS_MB + 32}")
    a(f"s_mov_b32 exec_lo, s{T0}"); a("s_mov_b32 exec_hi, 0")
    if NS == 2: a(f"buffer_store_dword v{t3}, v{t2}, s[{SWS}:{SWS+3}], s{T1} offen sc1")
    else: a(f"buffer_atomic_add v{t3}, v{t2}, s[{SWS}:{SWS+3}], s{T1} offen sc1")
    a("s_mov_b64 exec, -1")
    a(f"s_lshl_b32 s{T3}, s2, 8"); a(f"s_add_u32 s{T3}, s{T3}, s{T1}")
    def chkx(ok): a(f"s_cmp_eq_u32 s{U0}, {NS-1}"); a(f"s_cbranch_scc1 {ok}")
    poll(a, SWS, T3, chkx, VT, sleep=1)
    rb = G.F[0][0]
    nrx = mp * (NS - 1)
    assert 2 * (4 * mp + 4 * mq) >= 4 * nrx
    inbox_offset(a, T0)
    per = 2 if C.xbf16 else 4
    for k in range(per * (NS - 1)):
        if k and k % per == 0: a(f"s_add_u32 s{T0}, s{T0}, 4096")
        a(f"buffer_load_dwordx4 {vr(rb+4*k,4)}, v{vl16}, s[{SWS}:{SWS+3}], s{T0} offen offset:{(k%per)*1024} sc1")
    srd(a, SE, PTR["out"], L * D * 4)
    vo = VT
    a(f"v_lshlrev_b32 v{vo}, 12, v{vt_own}"); a(f"v_lshl_add_u32 v{vo}, v{vd2}, 1, v{vo}")
    a("s_waitcnt vmcnt(0)")
    for i in range(mp):
        e = accD + 4 * (i * mq)
        for k in range(NS - 1):
            if C.xbf16:
                src = rb + 8 * k + 4 * (i // 2) + 2 * (i % 2)
                x0, x1 = VT + 2, VT + 3
                for h in range(2):
                    a(f"v_lshlrev_b32 v{x0}, 16, v{src+h}"); a(f"v_and_b32 v{x1}, 0xffff0000, v{src+h}")
                    a(f"v_add_f32 v{e+2*h}, v{e+2*h}, v{x0}"); a(f"v_add_f32 v{e+2*h+1}, v{e+2*h+1}, v{x1}")
            else:
                for r in range(4): a(f"v_add_f32 v{e+r}, v{e+r}, v{rb+k*4*mp+4*i+r}")
        a(f"buffer_store_dwordx4 {vr(e,4)}, v{vo}, s[{SE}:{SE+3}], 0 offen offset:{64*i}{C.wto}")
    stamp(a, 6)
    stamp(a, 6, st="p2")
    return V.hi, NB * SB

def emit_stamps(a):
    a("s_memrealtime s[88:89]"); a("s_waitcnt lgkmcnt(0)")
    a(f"s_cmp_lg_u32 s{sWave}, {C.stwave}"); a("s_cbranch_scc1 L_end")
    a("s_waitcnt vmcnt(0)")
    for i in range(1, 7): a(f"s_sub_u32 s{92+i}, s{92+i}, s92")
    a("s_mov_b32 s99, s100")
    a("s_nop 0")
    a(f"s_mov_b32 s100, s88")
    for i in range(8): a(f"v_mov_b32 v{12+i}, s{93+i}")
    a(f"s_lshl_b32 s{T0}, s2, 5"); a(f"s_add_u32 s{T0}, s{T0}, {WS_ST}")
    a("v_mov_b32 v11, 0"); a("s_mov_b64 exec, 1")
    a(f"buffer_store_dwordx4 v[12:15], v11, s[{SWS}:{SWS+3}], s{T0} offen")
    a(f"buffer_store_dwordx4 v[16:19], v11, s[{SWS}:{SWS+3}], s{T0} offen offset:16")

HEADER = open("gated_mix__ssm_conv_s5__dense_activation_squared_relu__prompt.s.ref").read().split("; Override launch")[0]

def generate(**kw):
    for k, v in kw.items():
        assert hasattr(C, k), k
        setattr(C, k, v)
    _lbl[0] = 0
    a = Asm()
    kernel_header(a, NAME)
    a("s_cmp_ge_u32 s2, 256"); a("s_cbranch_scc1 L_end")
    a("s_load_dwordx16 s[40:55], s[0:1], 0"); a("s_load_dwordx16 s[56:71], s[0:1], 64"); a("s_load_dwordx4 s[72:75], s[0:1], 128")
    if C.dbgst:
        a("s_memtime s[92:93]"); a("s_memrealtime s[100:101]")
    if C.codepf:
        a("s_getpc_b64 s[4:5]")
        a.label("L_pc")
        a("v_lshlrev_b32 v2, 7, v0")
        a("v_min_u32 v2, L_codeend-L_pc-4, v2")
        a("global_load_dword v250, v2, s[4:5]")
    a("v_lshrrev_b32 v1, 6, v0"); a("v_and_b32 v0, 63, v0"); a(f"v_readfirstlane_b32 s{sWave}, v1")
    a(f"s_and_b32 s{T0}, s2, 7"); a(f"s_lshr_b32 s{T1}, s2, 3")
    a(f"s_lshr_b32 s{sRole}, s{T1}, 4")
    a(f"s_bfe_u32 s{T2}, s{T1}, 0x20002"); a(f"s_and_b32 s{T3}, s{T1}, 3")
    a(f"s_lshr_b32 s{sM}, s{T0}, 2"); a(f"s_lshl_b32 s{sM}, s{sM}, 2"); a(f"s_add_u32 s{sM}, s{sM}, s{T2}")
    a(f"s_and_b32 s{sN}, s{T0}, 3"); a(f"s_lshl_b32 s{sN}, s{sN}, 2"); a(f"s_add_u32 s{sN}, s{sN}, s{T3}")
    mode = C.rot
    if mode is True: mode = 1
    if mode == 1:
        a(f"s_lshl_b32 s{sRot}, s{sRole}, 2"); a(f"s_add_u32 s{sRot}, s{sRot}, s{T3}"); a(f"s_lshl_b32 s{sRot}, s{sRot}, 1")
        a(f"s_lshl_b32 s{T2}, s{T2}, 2"); a(f"s_add_u32 s{sRot}, s{sRot}, s{T2}"); a(f"s_and_b32 s{T0}, s{T0}, 3")
        a(f"s_add_u32 s{sRot}, s{sRot}, s{T0}"); a(f"s_and_b32 s{sRot}, s{sRot}, 15")
    elif mode == 2:
        a(f"s_and_b32 s{sRot}, s{T0}, 3"); a(f"s_lshl_b32 s{sRot}, s{sRot}, 2"); a(f"s_lshr_b32 s{T0}, s{T0}, 2"); a(f"s_lshl_b32 s{T0}, s{T0}, 1")
        a(f"s_add_u32 s{sRot}, s{sRot}, s{T0}"); a(f"s_and_b32 s{sRot}, s{sRot}, 15")
    elif mode == 3:
        a(f"s_and_b32 s{sRot}, s{T0}, 3"); a(f"s_lshl_b32 s{sRot}, s{sRot}, 2"); a(f"s_lshr_b32 s{T0}, s{T0}, 2"); a(f"s_lshl_b32 s{T0}, s{T0}, 3")
        a(f"s_add_u32 s{sRot}, s{sRot}, s{T0}"); a(f"s_xor_b32 s{T2}, s{T2}, s{T3}"); a(f"s_and_b32 s{T2}, s{T2}, 1"); a(f"s_lshl_b32 s{T2}, s{T2}, 3")
        a(f"s_add_u32 s{sRot}, s{sRot}, s{T2}"); a(f"s_and_b32 s{sRot}, s{sRot}, 15")
    elif mode == 4:
        a(f"s_xor_b32 s{T2}, s{T2}, s{T3}"); a(f"s_and_b32 s{T2}, s{T2}, 1"); a(f"s_lshl_b32 s{sRot}, s{T2}, 3")
        a(f"s_and_b32 s{T0}, s{T0}, 3"); a(f"s_lshl_b32 s{T0}, s{T0}, 1"); a(f"s_add_u32 s{sRot}, s{sRot}, s{T0}"); a(f"s_and_b32 s{sRot}, s{sRot}, 15")
    elif mode == 5:
        a(f"s_and_b32 s{sRot}, s{T0}, 3"); a(f"s_lshl_b32 s{sRot}, s{sRot}, 2")
    elif mode == 6:
        a(f"s_lshl_b32 s{sRot}, s{T2}, 2"); a(f"s_and_b32 s{T0}, s{T0}, 3"); a(f"s_add_u32 s{sRot}, s{sRot}, s{T0}"); a(f"s_and_b32 s{sRot}, s{sRot}, 15")
    elif mode == 7:
        a(f"s_lshl_b32 s{sRot}, s{T3}, 2"); a(f"s_and_b32 s{T0}, s{T0}, 3"); a(f"s_add_u32 s{sRot}, s{sRot}, s{T0}"); a(f"s_and_b32 s{sRot}, s{sRot}, 15")
    else:
        a(f"s_mov_b32 s{sRot}, 0")
    if C.dbgst:
        pass
    a(f"s_cmp_eq_u32 s{sRole}, 1"); a("s_cbranch_scc1 L_ssm")
    v1, l1 = phase1_dense(a)
    v2, l2 = phase2(a, 1)
    a("s_branch L_fin")
    a.label("L_ssm")
    v3, l3 = phase1_ssm(a)
    v4, l4 = phase2(a, 0)
    a.label("L_fin")
    if C.dbgst: emit_stamps(a)
    a.label("L_end")
    a("s_endpgm")
    a.label("L_codeend")
    nv = max(v1, v2, v3, v4); lds = max(l1, l2, l3, l4)
    assert nv <= 250
    if C.codepf or C.tlb: nv = 251
    head = HEADER + f"; @launch grid=(256,1,1) block=(512,1,1) lds={lds}\n"
    head += '.amdgcn_target "amdgcn-amd-amdhsa--gfx950"\n.text\n'
    return head + a.text() + '.section .rodata,"a"\n' + kernel_desc(NAME, nv, 102)

if __name__ == "__main__":
    kw = json.loads(sys.argv[2]) if len(sys.argv) > 2 else {}
    open(sys.argv[1], "w").write(generate(**kw))
```

```python
import sys, math, json
from asmlib import *

NAME = "gated_mix__ssm_conv_s5__dense_activation_squared_relu__prompt_kernel"
L, D, P_, F = 2048, 1024, 1024, 3584
KC = 2048 + F
RS_A2 = KC * 2
KA = dict(x=0, lre=8, lim=16, bre=24, bim=32, cre=40, cim=48, ldt=56, dsk=64, bx=72, w1=80, b1=88, w2=96, b2=104, gw=112, out=120, dbg=128, ws=136)
WS_A2 = 0
WS_G = 24 << 20
WS_AGG = WS_G + (1 << 16)
WS_MB = WS_AGG + (1 << 17)
WS_ST = WS_AGG + (1 << 18)
WS_XB = 32 << 20
WS_SIZE = 268435456
LOG2E = 0x3fb8aa3b
INV2PI = 0x3e22f983
PTR = {k: 40 + v // 4 for k, v in KA.items()}
DBG_LB = 0
DBG_CNT = 16
DBG_XF = 32

class Cfg:
    dbgst = False; rot = 4; nodma = False; noread = False; prefetch = True
    nAd = 24
    nBs = 8
    ns = 4
    delta = 2
    wt = " sc1"
    a2ld = " sc1"
    wto = ""
    spin = 300000
    sleep = 2
    early = True
    xbf16 = True
    loop = {}
    inboxit = 18
    initit = 4
    tlb = False
    tlbshift = 21
    codepf = True
    pbar = False
    bulk = False
    pflist = [('w1',0),('x',0),('bre',0),('bim',0),('cre',0),('cim',0),('w2',0)]
    pfit = 13
    span = 1.0
    prio = True
    nbq = 3
    stampset = 'main'
    stwave = 0
C = Cfg()

class Regs:
    def __init__(self, start, limit=256):
        self.n = start; self.limit = limit; self.hi = start
    def get(self, k=1, align=1):
        self.n = (self.n + align - 1) // align * align
        r = self.n; self.n += k
        self.hi = max(self.hi, self.n)
        assert self.n <= self.limit, f"out of registers {self.n} > {self.limit}"
        return r

def srd(a, s, ptr_lo, size):
    if s != ptr_lo:
        a(f"s_mov_b32 s{s}, s{ptr_lo}"); a(f"s_mov_b32 s{s+1}, s{ptr_lo+1}")
    a(f"s_mov_b32 s{s+2}, {size}"); a(f"s_mov_b32 s{s+3}, 0x20000")

_lbl = [0]
def newlabel(p):
    _lbl[0] += 1
    return f"L_{p}{_lbl[0]}"

class OpKC:
    def __init__(self, a, V, T, lds_off, nfr, flags=""):
        self.a, self.T, self.lds_off, self.nfr, self.flags = a, T, lds_off, nfr, flags
        self.n = T // 64
        self.vd = V.get(self.n)
        self.b0 = V.get(); self.c0 = V.get(); self.c1 = V.get()
        self.bytes = T * 128
        self.ldsoffs = [j * 1024 for j in range(self.n)]
    def lane_chunk(self, vdst, t):
        a = self.a
        a(f"v_and_b32 v{vdst}, 7, v0"); a(f"v_lshrrev_b32 v{t}, 4, v0")
        a(f"v_xor_b32 v{vdst}, v{vdst}, v{t}"); a(f"v_lshlrev_b32 v{vdst}, 4, v{vdst}")
    def set_voff(self, j, vlane, sRowBytes, xor64, comp=True):
        a = self.a; d = self.vd + j
        src = vlane
        if xor64 is True:
            a(f"v_xor_b32 v{d}, 64, v{vlane}"); src = d
        elif xor64 is not False:
            a(f"v_xor_b32 v{d}, s{xor64}, v{vlane}"); src = d
        a(f"v_add_u32 v{d}, s{sRowBytes}, v{src}")
    def dma(self, sBuf, sK, stmp, sLds, srds, groups=None):
        g = []
        for grp_i in self.groups:
            for n_, j in enumerate(grp_i):
                grp = []
                if n_ == 0:
                    grp.append(f"s_add_u32 s{stmp}, s{sBuf}, s{sLds}")
                    if self.ldsoffs[j]: grp.append(f"s_add_u32 s{stmp}, s{stmp}, {self.ldsoffs[j]}")
                    grp.append(f"s_mov_b32 m0, s{stmp}")
                    grp.append("s_nop 0")
                off = f" offset:{n_*1024}" if n_ else ""
                s = srds[j]
                grp.append(f"buffer_load_dwordx4 v{self.vd+j}, s[{s}:{s+3}], s{sK} offen{off}{self.flags} lds")
                g.append(grp)
        return g
    def count(self): return (self.n, self.n)
    def setup_read(self, sFrag0, tmp, stmp):
        a = self.a; t0, t1, t2 = tmp, tmp + 1, tmp + 2
        a(f"v_and_b32 v{t0}, 15, v0"); a(f"v_lshrrev_b32 v{t1}, 4, v0"); a(f"v_lshrrev_b32 v{t2}, 1, v{t0}")
        a(f"v_xor_b32 v{t1}, v{t1}, v{t2}"); a(f"v_lshlrev_b32 v{t1}, 4, v{t1}")
        a(f"v_lshl_add_u32 v{t0}, v{t0}, 7, v{t1}")
        a(f"s_lshl_b32 s{stmp}, s{sFrag0}, 11")
        if self.lds_off: a(f"s_add_u32 s{stmp}, s{stmp}, {self.lds_off}")
        a(f"v_add_u32 v{self.b0}, s{stmp}, v{t0}")
    def init_cur(self):
        return [f"v_mov_b32 v{self.c0}, v{self.b0}", f"v_xor_b32 v{self.c1}, 64, v{self.b0}"]
    def frag_off(self, i): return i * 2048
    def reads(self, ks, dst):
        if C.noread: return []
        c = self.c1 if ks else self.c0
        return [[f"ds_read_b128 {vr(dst+4*i,4)}, v{c} offset:{self.frag_off(i)}"] for i in range(self.nfr)]
    def upd_A(self, sBuf): return [f"v_add_u32 v{self.c0}, s{sBuf}, v{self.b0}"]
    def upd_B(self, sBuf): return [f"v_xor_b32 v{self.c1}, 64, v{self.c0}"]

class OpNC:
    def __init__(self, a, V, T, lds_off, nfr, RS, NW=8):
        self.a, self.T, self.lds_off, self.nfr, self.RS = a, T, lds_off, nfr, RS
        self.RP = T * 2; self.CH = self.RP // 16
        self.total = self.CH
        self.n = -(-self.total // NW)
        self.even = (self.total % NW == 0)
        self.nbig = NW if self.even else self.total - (self.n - 1) * NW
        self.vd = V.get(self.n)
        np_ = self.RP // 32
        self.gb = 3 if np_ % 8 == 0 else (2 if np_ % 4 == 0 else 1)
        self.nres = min(1 << self.gb, nfr)
        self.base = V.get(self.nres); self.cur = V.get(self.nres)
        self.bytes = 64 * self.RP
    def g_asm(self, vk, vo, t):
        a = self.a
        if self.gb == 3:
            a(f"v_and_b32 v{vo}, 3, v{vk}"); a(f"v_bfe_u32 v{t}, v{vk}, 3, 1"); a(f"v_lshl_or_b32 v{vo}, v{t}, 2, v{vo}")
        elif self.gb == 2:
            a(f"v_bfe_u32 v{vo}, v{vk}, 1, 1"); a(f"v_bfe_u32 v{t}, v{vk}, 3, 1"); a(f"v_lshl_or_b32 v{vo}, v{t}, 1, v{vo}")
        else:
            a(f"v_bfe_u32 v{vo}, v{vk}, 3, 1")
    def idx0(self, sWave, sOut, stmp):
        a = self.a
        if self.even: a(f"s_mul_i32 s{sOut}, s{sWave}, {self.n}")
        else:
            a(f"s_mul_i32 s{sOut}, s{sWave}, {self.n-1}")
            a(f"s_min_u32 s{stmp}, s{sWave}, {self.nbig}")
            a(f"s_add_u32 s{sOut}, s{sOut}, s{stmp}")
    def setup_dma(self, sWave, tmp, sCol0Bytes, stmp):
        a = self.a; t0, t1, t2, t3 = tmp, tmp + 1, tmp + 2, tmp + 3
        self.idx0(sWave, stmp, stmp + 1)
        magic = (1 << 20) // self.CH + 1
        for L_ in range(self.total * 64 + 64):
            assert (L_ * magic) >> 20 == L_ // self.CH
        for j in range(self.n):
            a(f"s_add_u32 s{stmp+1}, s{stmp}, {j}"); a(f"s_lshl_b32 s{stmp+1}, s{stmp+1}, 6")
            a(f"v_add_u32 v{t0}, s{stmp+1}, v0")
            if self.CH & (self.CH - 1) == 0:
                a(f"v_lshrrev_b32 v{t1}, {int(math.log2(self.CH))}, v{t0}")
                a(f"v_and_b32 v{t0}, {self.CH-1}, v{t0}")
            else:
                a(f"v_mul_u32_u24 v{t1}, {magic}, v{t0}"); a(f"v_lshrrev_b32 v{t1}, 20, v{t1}")
                a(f"v_mul_u32_u24 v{t2}, {self.CH}, v{t1}"); a(f"v_sub_u32 v{t0}, v{t0}, v{t2}")
            self.g_asm(t1, t2, t3)
            a(f"v_lshlrev_b32 v{t2}, 1, v{t2}"); a(f"v_xor_b32 v{t0}, v{t0}, v{t2}")
            a(f"v_mul_u32_u24 v{t1}, {self.RS}, v{t1}")
            a(f"v_lshl_add_u32 v{t0}, v{t0}, 4, v{t1}")
            if j % 4: a(f"s_sub_u32 s{stmp+1}, s{sCol0Bytes}, {(j%4)*1024}"); a(f"v_add_u32 v{self.vd+j}, s{stmp+1}, v{t0}")
            else: a(f"v_add_u32 v{self.vd+j}, s{sCol0Bytes}, v{t0}")
    def setup_lds(self, sWave, sLds, stmp):
        self.idx0(sWave, sLds, stmp)
        self.a(f"s_lshl_b32 s{sLds}, s{sLds}, 10")
        if self.lds_off: self.a(f"s_add_u32 s{sLds}, s{sLds}, {self.lds_off}")
    def dma(self, sBuf, sK, stmp, sLds, srds, sWave=None):
        g = []
        s = srds
        for j in range(self.n):
            grp = []
            guard = (not self.even) and j == self.n - 1
            if guard:
                lbl = newlabel("ncs")
                grp += [f"s_cmp_lt_u32 s{sWave}, {self.nbig}", f"s_cbranch_scc0 {lbl}"]
            if j % 4 == 0:
                grp.append(f"s_add_u32 s{stmp}, s{sBuf}, s{sLds}")
                if j: grp.append(f"s_add_u32 s{stmp}, s{stmp}, {j*1024}")
                grp += [f"s_mov_b32 m0, s{stmp}", "s_nop 0"]
            off = f" offset:{(j%4)*1024}" if j % 4 else ""
            grp.append(f"buffer_load_dwordx4 v{self.vd+j}, s[{s}:{s+3}], s{sK} offen{off} lds")
            if guard: grp.append(f"{lbl}:")
            g.append(grp)
        return g
    def count(self): return (self.n if self.even else self.n - 1, self.n)
    def setup_read(self, sFrag0, tmp, stmp):
        a = self.a; t0, t1, t2 = tmp, tmp + 1, tmp + 2
        a(f"v_lshrrev_b32 v{t0}, 4, v0"); a(f"v_lshlrev_b32 v{t0}, 3, v{t0}")
        a(f"v_bfe_u32 v{t1}, v0, 2, 2"); a(f"v_add_u32 v{t0}, v{t0}, v{t1}")
        self.g_asm(t0, t1, t2)
        a(f"v_mul_u32_u24 v{t0}, {self.RP}, v{t0}")
        a(f"v_and_b32 v{t2}, 3, v0"); a(f"v_lshl_add_u32 v{t0}, v{t2}, 3, v{t0}")
        if self.lds_off: a(f"v_add_u32 v{t0}, {self.lds_off}, v{t0}")
        for r in range(self.nres):
            a(f"s_add_u32 s{stmp}, s{sFrag0}, {r}")
            a(f"v_xor_b32 v{t2}, s{stmp}, v{t1}")
            if r: a(f"v_subrev_u32 v{t2}, {r}, v{t2}")
            a(f"v_lshl_add_u32 v{self.base+r}, v{t2}, 5, v{t0}")
    def init_cur(self):
        return [f"v_mov_b32 v{self.cur+r}, v{self.base+r}" for r in range(self.nres)]
    def reads(self, ks, dst):
        if C.noread: return []
        g = []
        for i in range(self.nfr):
            r = i % (1 << self.gb)
            for h in range(2):
                off = 32 * i + (4 * h + 32 * ks) * self.RP
                g.append([f"ds_read_b64_tr_b16 {vr(dst+4*i+2*h,2)}, v{self.cur+r} offset:{off}"])
        return g
    def upd_A(self, sBuf): return [f"v_add_u32 v{self.cur+r}, s{sBuf}, v{self.base+r}" for r in range(self.nres)]
    def upd_B(self, sBuf): return []

class Seg:
    def __init__(self, P, Q, acc, Pdma, Qdma, kadvP, kadvQ, name):
        self.P, self.Q, self.acc, self.Pdma, self.Qdma, self.kadvP, self.kadvQ, self.name = P, Q, acc, Pdma, Qdma, kadvP, kadvQ, name
        self.xdma = []

class Gemm:
    def __init__(self, a, V, NBP, NBQ, SP, SQ, mp, mq, regs, joint, early=None, name="x"):
        self.a, self.NBP, self.NBQ, self.SP, self.SQ, self.mp, self.mq, self.joint = a, NBP, NBQ, SP, SQ, mp, mq, joint
        o = dict(span=C.span, prio=C.prio, dmapos="merge", order="i")
        o.update(C.loop.get(name, {}))
        self.opt = o
        self.sDP, self.sRP, self.sDQ, self.sRQ, self.sCnt, self.sE = regs
        if joint: self.sDQ, self.sRQ = self.sDP, self.sRP
        self.early = early if C.early else None
        self.leadP = NBP - (1 if self.early == 'P' else 0)
        self.leadQ = NBQ - (1 if self.early == 'Q' else 0)
        self.F = []
        for s in range(2):
            p = V.get(4 * mp, 2); q = V.get(4 * mq, 2)
            self.F.append((p, q))
        self.vmq = []
        self.zero_first = False
    def emit(self, lines):
        for x in lines:
            if x.endswith(":"): self.a.label(x[:-1])
            else: self.a(x)
    def note(self, tag, n): self.vmq.append((tag, n))
    def vm_allow(self, need):
        last = -1
        for i, (t, n) in enumerate(self.vmq):
            if t in need: last = i
        return min(63, sum(n for t, n in self.vmq[last + 1:]))
    def reads(self, seg, ks, fs):
        p, q = self.F[fs]
        return merge(seg.P.reads(ks, p), seg.Q.reads(ks, q))
    def mfmas(self, seg, fs, zero=False):
        p, q = self.F[fs]
        ij = [(i, j) for i in range(self.mp) for j in range(self.mq)]
        if self.opt["order"] == "j": ij = [(i, j) for j in range(self.mq) for i in range(self.mp)]
        return [f"v_mfma_f32_16x16x32_bf16 {vr(c,4)}, {vr(p+4*i,4)}, {vr(q+4*j,4)}, {'0' if zero else vr(c,4)}"
                for (i, j) in ij for c in [seg.acc + 4 * (i * self.mq + j)]]
    def spread(self, main, fill):
        n = len(main); k = len(fill)
        if k == 0: return list(main)
        span = max(1, min(n, int(n * self.opt['span'])))
        out = []; fi = 0
        for i, m in enumerate(main):
            out.append(m)
            while fi < k and (fi * span) // k <= i:
                out.extend(fill[fi]); fi += 1
        while fi < k: out.extend(fill[fi]); fi += 1
        return out
    def mix(self, reads, dma):
        m = self.opt["dmapos"]
        if m == "first": return dma + reads
        if m == "last": return reads + dma
        return merge(reads, dma)
    def ring_adv(self, sD, sR, stride, nb):
        return [f"s_mov_b32 s{sD}, s{sR}", f"s_add_u32 s{sR}, s{sR}, {stride}", f"s_cmp_eq_u32 s{sR}, {stride*nb}", f"s_cselect_b32 s{sR}, 0, s{sR}"]
    def advance(self):
        out = []
        if self.early: out.append(f"s_mov_b32 s{self.sE}, s{self.sDP if (self.joint or self.early == 'P') else self.sDQ}")
        if self.joint: return out + self.ring_adv(self.sDP, self.sRP, self.SP + self.SQ, self.NBP)
        return out + self.ring_adv(self.sDP, self.sRP, self.SP, self.NBP) + self.ring_adv(self.sDQ, self.sRQ, self.SQ, self.NBQ)
    def dma_list(self, which, seg, sBuf):
        if seg is None or C.nodma: return []
        if which == 'P': return seg.Pdma(sBuf) + [list(seg.kadvP)]
        return seg.Qdma(sBuf) + [list(seg.kadvQ)] + seg.xdma
    def body(self, cur, nxt, dP, dQ, vmw, pre_barrier=None, extra=None, zero=False):
        a = self.a
        self.emit(self.advance())
        a("s_waitcnt lgkmcnt(0)")
        fill = self.reads(cur, 1, 1)
        if nxt is not None: fill.append(nxt.P.upd_A(self.sRP) + nxt.Q.upd_A(self.sRQ))
        if self.early == 'P': fill = self.mix(fill, self.dma_list('P', dP, self.sE))
        if self.early == 'Q': fill = self.mix(fill, self.dma_list('Q', dQ, self.sE))
        if nxt is None and extra: fill = fill + extra
        self.emit(self.spread(self.mfmas(cur, 0, zero), fill))
        if nxt is None:
            a("s_waitcnt lgkmcnt(0)")
            self.emit(self.mfmas(cur, 1))
            return
        if pre_barrier: pre_barrier()
        a(f"s_waitcnt vmcnt({vmw}) lgkmcnt(0)")
        a("s_barrier")
        if self.opt["prio"]: a("s_setprio 1")
        fill = self.reads(nxt, 0, 0)
        d = []
        if self.early != 'P': d += self.dma_list('P', dP, self.sDP)
        if self.early != 'Q': d += self.dma_list('Q', dQ, self.sDQ)
        fill = self.mix(fill, d)
        u = nxt.P.upd_B(self.sRP) + nxt.Q.upd_B(self.sRQ)
        if u: fill.append(u)
        if extra: fill = fill + extra
        self.emit(self.spread(self.mfmas(cur, 1), fill))
        if self.opt["prio"]: a("s_setprio 0")
    def prologue(self, stages, which="PQ", first=0, last=None):
        a = self.a
        stride = self.SP + self.SQ if self.joint else None
        if first == 0:
            a(f"s_mov_b32 s{self.sDP}, 0")
            if not self.joint: a(f"s_mov_b32 s{self.sDQ}, 0")
        for s in range(first, max(self.leadP, self.leadQ) if last is None else last):
            if "P" in which and s < self.leadP:
                for g in stages[s].Pdma(self.sDP): self.emit(g)
                self.emit(stages[s].kadvP); self.note(('P', s), stages[s].P.count()[0])
                if not self.joint: a(f"s_add_u32 s{self.sDP}, s{self.sDP}, {self.SP}")
            if "Q" in which and s < self.leadQ:
                for g in stages[s].Qdma(self.sDQ): self.emit(g)
                self.emit(stages[s].kadvQ); self.note(('Q', s), stages[s].Q.count()[0])
                if not self.joint: a(f"s_add_u32 s{self.sDQ}, s{self.sDQ}, {self.SQ}")
            if self.joint: a(f"s_add_u32 s{self.sDP}, s{self.sDP}, {stride}")
    def run(self, stages, hooks=None, extras=None, post_first=None):
        a = self.a; N = len(stages)
        hooks = hooks or {}; extras = extras or {}
        a(f"s_waitcnt vmcnt({self.vm_allow({('P',0),('Q',0)})})")
        if getattr(self, "pre_first", None): self.pre_first()
        a("s_barrier")
        if post_first: post_first()
        seen = []
        for sg in stages:
            for op in (sg.P, sg.Q):
                if op not in seen: seen.append(op); self.emit(op.init_cur())
        if self.joint:
            a(f"s_mov_b32 s{self.sRP}, 0"); a(f"s_mov_b32 s{self.sDP}, {(self.SP+self.SQ)*(self.NBP-1)}")
        else:
            a(f"s_mov_b32 s{self.sRP}, 0"); a(f"s_mov_b32 s{self.sDP}, {self.SP*(self.NBP-1)}")
            a(f"s_mov_b32 s{self.sRQ}, 0"); a(f"s_mov_b32 s{self.sDQ}, {self.SQ*(self.NBQ-1)}")
        for g in self.reads(stages[0], 0, 0): self.emit(g)
        sigs = []; seen_acc = set()
        for i in range(N):
            nxt = stages[i + 1] if i + 1 < N else None
            dP = stages[i + self.leadP] if i + self.leadP < N else None
            dQ = stages[i + self.leadQ] if i + self.leadQ < N else None
            def noteP():
                if dP is not None: self.note(('P', i + self.leadP), dP.P.count()[0])
            def noteQ():
                if dQ is not None:
                    self.note(('Q', i + self.leadQ), dQ.Q.count()[0])
                    if dQ.xdma: self.note(('PF', i), len(dQ.xdma))
            if self.early == 'P': noteP()
            if self.early == 'Q': noteQ()
            vmw = self.vm_allow({('P', i + 1), ('Q', i + 1)}) if nxt is not None else 0
            if self.early != 'P': noteP()
            if self.early != 'Q': noteQ()
            if i in extras: self.note(('X', i), extras[i][1])
            zero = self.zero_first and stages[i].acc not in seen_acc
            seen_acc.add(stages[i].acc)
            sigs.append((stages[i], nxt, dP, dQ, vmw, i if (i in hooks or i in extras or zero) else -1, zero))
        i = 0
        while i < N:
            j = i
            while j < N and sigs[j] == sigs[i]: j += 1
            cnt = j - i
            cur, nxt, dP, dQ, vmw, sp, zero = sigs[i]
            hk = hooks.get(sp); ex = extras[sp][0] if sp in extras else None
            if cnt >= 2:
                lbl = newlabel("gl")
                a(f"s_mov_b32 s{self.sCnt}, {cnt}")
                a.label(lbl)
                self.body(cur, nxt, dP, dQ, vmw)
                a(f"s_sub_u32 s{self.sCnt}, s{self.sCnt}, 1"); a(f"s_cmp_lg_u32 s{self.sCnt}, 0"); a(f"s_cbranch_scc1 {lbl}")
            else:
                self.body(cur, nxt, dP, dQ, vmw, hk, ex, zero)
            i = j

def merge(x, y):
    out = []; i = j = 0
    while i < len(x) or j < len(y):
        if j >= len(y) or (i < len(x) and i * len(y) <= j * len(x)): out.append(x[i]); i += 1
        else: out.append(y[j]); j += 1
    return out

def bf16_round(a, vdst, vsrc):
    a(f"v_cvt_pk_bf16_f32 v{vdst}, v{vsrc}, v{vsrc}"); a(f"v_lshlrev_b32 v{vdst}, 16, v{vdst}")

def stamp(a, idx, real=False, st="main"):
    if C.dbgst and st == C.stampset:
        a("s_memrealtime s[88:89]" if real else "s_memtime s[88:89]")
        a("s_waitcnt lgkmcnt(0)")
        a(f"s_mov_b32 s{92+idx}, s88")

sWave, sM, sN, sRole = 28, 29, 30, 31
sBufD, sBufR, sCnt, sTmp, sKP, sKQ, sLdsP, sLdsQ = 32, 33, 34, 35, 36, 37, 38, 39
sWp, sWq, sRot, sLdsP2, sKP2, sTile, sTt, sDt = 80, 81, 82, 83, 84, 85, 86, 87
SX, SA, SB_, SWS, SDBG, SS = 4, 8, 12, 16, 20, 24
T0, T1, T2, T3 = 76, 77, 78, 79
U0, U1, U2, U3 = 88, 89, 90, 91
VT = 2

def ssm_param_loads(a, vch, t):
    a(f"v_lshlrev_b32 v{t}, 1, v{vch}")
    for k, name in enumerate(("lre", "lim", "ldt")):
        srd(a, SS, PTR[name], 2048)
        a(f"buffer_load_ushort v{t+1+k}, v{t}, s[{SS}:{SS+3}], 0 offen")

def ssm_params_compute(a, out, t, want_kappa=True):
    lre, lim, ldt = t + 1, t + 2, t + 3
    x0, x1, x2, x3 = t + 4, t + 5, t + 6, t + 7
    lr, li, kr, ki = out, out + 1, out + 2, out + 3
    for r in (lre, lim, ldt): a(f"v_lshlrev_b32 v{r}, 16, v{r}")
    a(f"v_mul_f32 v{x0}, {LOG2E:#x}, v{ldt}"); a(f"v_exp_f32 v{x0}, v{x0}"); a("s_nop 0")
    bf16_round(a, x0, x0)
    a(f"v_mul_f32 v{x1}, v{x0}, v{lre}"); a(f"v_mul_f32 v{x2}, v{x0}, v{lim}")
    a(f"v_mul_f32 v{x1}, {LOG2E:#x}, v{x1}"); a(f"v_exp_f32 v{x1}, v{x1}")
    a(f"v_mul_f32 v{x2}, {INV2PI:#x}, v{x2}"); a(f"v_rndne_f32 v{x3}, v{x2}"); a(f"v_sub_f32 v{x2}, v{x2}, v{x3}")
    a(f"v_cos_f32 v{x3}, v{x2}"); a(f"v_sin_f32 v{x2}, v{x2}"); a("s_nop 0")
    a(f"v_mul_f32 v{lr}, v{x1}, v{x3}"); a(f"v_mul_f32 v{li}, v{x1}, v{x2}")
    if want_kappa:
        a(f"v_subrev_f32 v{x0}, 1.0, v{lr}")
        a(f"v_mul_f32 v{x1}, v{x0}, v{lre}"); a(f"v_fmac_f32 v{x1}, v{li}, v{lim}")
        a(f"v_mul_f32 v{x2}, v{li}, v{lre}"); a(f"v_fma_f32 v{x2}, -v{x0}, v{lim}, v{x2}")
        a(f"v_mul_f32 v{x3}, v{lre}, v{lre}"); a(f"v_fmac_f32 v{x3}, v{lim}, v{lim}")
        a(f"v_rcp_f32 v{x3}, v{x3}"); a("s_nop 0")
        a(f"v_add_f32 v{x3}, v{x3}, v{x3}")
        a(f"v_mul_f32 v{kr}, v{x1}, v{x3}"); a(f"v_mul_f32 v{ki}, v{x2}, v{x3}")

def csq(a, dr, di, sr_, si, t):
    a(f"v_mul_f32 v{t}, v{sr_}, v{si}"); a(f"v_mul_f32 v{dr}, v{sr_}, v{sr_}")
    a(f"v_fma_f32 v{dr}, -v{si}, v{si}, v{dr}"); a(f"v_add_f32 v{di}, v{t}, v{t}")

def gate_row_loads(a, sRow, vx, t):
    a(f"s_lshl_b32 s{U1}, s{sRow}, 11")
    a(f"buffer_load_dwordx4 {vr(vx,4)}, v{t}, s[{SX}:{SX+3}], s{U1} offen")
    a(f"buffer_load_dwordx4 {vr(vx+4,4)}, v{t}, s[{SX}:{SX+3}], s{U1} offen offset:16")

def gate_compute(a, sRow, vx, vw, t):
    acc = t; p0, p1, q0, q1 = t + 1, t + 2, t + 3, t + 4
    a(f"v_mov_b32 v{acc}, 0")
    for d in range(8):
        a(f"v_lshlrev_b32 v{p0}, 16, v{vx+d}"); a(f"v_and_b32 v{p1}, 0xffff0000, v{vx+d}")
        a(f"v_lshlrev_b32 v{q0}, 16, v{vw+d}"); a(f"v_and_b32 v{q1}, 0xffff0000, v{vw+d}")
        a(f"v_mul_f32 v{p0}, v{p0}, v{q0}"); a(f"v_mul_f32 v{p1}, v{p1}, v{q1}")
        a(f"v_cvt_pk_bf16_f32 v{p0}, v{p0}, v{p1}")
        a(f"v_and_b32 v{p1}, 0xffff0000, v{p0}"); a(f"v_lshlrev_b32 v{p0}, 16, v{p0}")
        a(f"v_add_f32 v{acc}, v{acc}, v{p0}"); a(f"v_add_f32 v{acc}, v{acc}, v{p1}")
    for sh in (1, 2, 4, 8):
        a("s_nop 1")
        a(f"v_add_f32_dpp v{acc}, v{acc}, v{acc} row_shr:{sh} row_mask:0xf bank_mask:0xf bound_ctrl:0")
    a("s_nop 1")
    a(f"v_add_f32_dpp v{acc}, v{acc}, v{acc} row_bcast:15 row_mask:0xa bank_mask:0xf")
    a("s_nop 1")
    a(f"v_add_f32_dpp v{acc}, v{acc}, v{acc} row_bcast:31 row_mask:0xc bank_mask:0xf")
    a("s_nop 1")
    a(f"v_readlane_b32 s{U0}, v{acc}, 63")
    a("s_nop 1")
    a(f"v_mov_b32 v{acc}, s{U0}")
    bf16_round(a, acc, acc)
    a(f"v_mul_f32 v{p0}, {LOG2E ^ 0x80000000:#x}, v{acc}"); a(f"v_exp_f32 v{p0}, v{p0}"); a("s_nop 0")
    a(f"v_add_f32 v{p0}, 1.0, v{p0}"); a(f"v_rcp_f32 v{p0}, v{p0}"); a("s_nop 0")
    bf16_round(a, p0, p0)
    a(f"v_sub_f32 v{p1}, 1.0, v{p0}")
    bf16_round(a, p1, p1)
    a(f"s_lshl_b32 s{U0}, s{sRow}, 3"); a(f"s_add_u32 s{U0}, s{U0}, {WS_G}")
    a(f"v_cmp_eq_u32 vcc, 0, v0"); a("s_nop 1")
    a(f"v_cndmask_b32 v{p0}, v{p1}, v{p0}, vcc")
    a(f"v_lshlrev_b32 v{q0}, 2, v0")
    a("s_mov_b64 exec, 3")
    a(f"buffer_store_dword v{p0}, v{q0}, s[{SWS}:{SWS+3}], s{U0} offen sc1")
    a("s_mov_b64 exec, -1")

SENT = 0xffffffff
def inbox_offset(a, sdst):
    a(f"s_lshl_b32 s{sdst}, s2, 3"); a(f"s_add_u32 s{sdst}, s{sdst}, s{sWave}"); a(f"s_mul_i32 s{sdst}, s{sdst}, {4096*(C.ns-1)}")
    a(f"s_add_u32 s{sdst}, s{sdst}, {WS_XB}")

def mb_zero_groups(vt, ssm=False):
    c = []
    q = (vt + 1) // 2 * 2
    sk = newlabel("mz")
    c += [f"s_cmp_lg_u32 s{sWave}, 0", f"s_cbranch_scc1 {sk}"]
    if ssm:
        c += [f"v_mov_b32 v{q}, -1", f"v_mov_b32 v{q+1}, -1",
              f"s_lshl_b32 s{U0}, s{sN}, 6", f"v_add_u32 v{q+4}, s{U0}, v0", f"v_lshlrev_b32 v{q+4}, 3, v{q+4}",
              f"s_lshl_b32 s{U0}, s{sM}, 13", f"s_add_u32 s{U0}, s{U0}, {WS_AGG}",
              f"buffer_store_dwordx2 {vr(q,2)}, v{q+4}, s[{SWS}:{SWS+3}], s{U0} offen sc1"]
    c += [f"v_mov_b32 v{q+2}, 0", f"v_lshlrev_b32 v{q+4}, 2, v0", f"s_lshl_b32 s{U0}, s2, 8", f"s_add_u32 s{U0}, s{U0}, {WS_MB}",
          f"buffer_store_dword v{q+2}, v{q+4}, s[{SWS}:{SWS+3}], s{U0} offen sc1", f"{sk}:"]
    return [c], 0

def inbox_init(a, vt):
    for r in range(4): a(f"v_mov_b32 v{vt+r}, -1")
    a(f"v_lshlrev_b32 v{vt+4}, 4, v0")
    inbox_offset(a, U0)
    for i in range(4 * (C.ns - 1)):
        a(f"buffer_store_dwordx4 {vr(vt,4)}, v{vt+4}, s[{SWS}:{SWS+3}], s{U0} offen offset:{(i%4)*1024} sc1")
        if i % 4 == 3: a(f"s_add_u32 s{U0}, s{U0}, 4096")

def init_signal(a, vt, idx=0, guard=True):
    sk = newlabel("mi")
    if guard: a(f"s_cmp_lg_u32 s{sWave}, 0"); a(f"s_cbranch_scc1 {sk}")
    a(f"v_mov_b32 v{vt}, 1"); a(f"v_mov_b32 v{vt+1}, {4*idx}")
    a("s_mov_b64 exec, 1")
    a(f"buffer_atomic_add v{vt}, v{vt+1}, s[{SDBG}:{SDBG+3}], 0 offen sc1")
    a("s_mov_b64 exec, -1")
    a.label(sk)

def poll(a, srd_, sByteOff, check, vt, wide=1, sleep=None):
    lp, ok = newlabel("poll"), newlabel("pok")
    a(f"v_mov_b32 v{vt+4}, s{sByteOff}")
    a(f"s_mov_b32 s{U2}, {C.spin}")
    a.label(lp)
    a(f"s_sub_u32 s{U2}, s{U2}, 1"); a(f"s_cmp_eq_u32 s{U2}, 0"); a(f"s_cbranch_scc1 {ok}")
    op = {1: "dword", 2: "dwordx2", 4: "dwordx4"}[wide]
    a(f"buffer_load_{op} {vr(vt,wide)}, v{vt+4}, s[{srd_}:{srd_+3}], 0 offen sc1")
    a("s_waitcnt vmcnt(0)")
    a(f"v_readfirstlane_b32 s{U0}, v{vt}")
    if wide >= 2: a(f"v_readfirstlane_b32 s{U1}, v{vt+1}")
    if wide >= 4: a(f"v_readfirstlane_b32 s{U3}, v{vt+2}")
    a("s_nop 3")
    check(ok)
    a(f"s_sleep {C.sleep if sleep is None else sleep}")
    a(f"s_branch {lp}")
    a.label(ok)

VINIT = 1
def init_load(a, idx=0):
    sk = newlabel("il")
    a(f"s_cmp_lg_u32 s{sWave}, 0"); a(f"s_cbranch_scc1 {sk}")
    a(f"v_mov_b32 v{VINIT}, {4*idx}")
    a(f"buffer_load_dword v{VINIT}, v{VINIT}, s[{SDBG}:{SDBG+3}], 0 offen sc1")
    a.label(sk)

def init_check(a, vt, idx=0):
    ok = newlabel("ic")
    a(f"v_readfirstlane_b32 s{U0}, v{VINIT}"); a("s_nop 3")
    a(f"s_cmp_ge_u32 s{U0}, 256"); a(f"s_cbranch_scc1 {ok}")
    a(f"s_mov_b32 s{T3}, {4*idx}")
    def chk(o): a(f"s_cmp_ge_u32 s{U0}, 256"); a(f"s_cbranch_scc1 {o}")
    poll(a, SDBG, T3, chk, vt, sleep=32)
    a.label(ok)

def poll_own(a, check, vt):
    a(f"s_lshl_b32 s{T3}, s2, 8"); a(f"s_add_u32 s{T3}, s{T3}, {WS_MB}")
    poll(a, SWS, T3, check, vt, wide=4)

def signal_cnt(a, dword, vt):
    NS = C.ns; XS = 8 // NS
    l, t1, t2 = vt, vt + 1, vt + 2
    t3 = vt + 3
    if NS == 2:
        a(f"v_bfe_u32 v{t1}, v0, 3, 1"); a(f"s_lshl_b32 s{T0}, s{sM}, 1"); a(f"v_add_u32 v{t1}, s{T0}, v{t1}")
        a(f"v_bfe_u32 v{t3}, v0, 4, 1")
    else:
        a(f"v_mov_b32 v{t1}, s{sM}")
        a(f"v_bfe_u32 v{t3}, v0, 3, 2")
    a(f"v_lshrrev_b32 v{t2}, 2, v{t1}"); a(f"v_mad_u32_u24 v{t2}, v{t3}, {XS}, v{t2}")
    a(f"v_and_b32 v{t1}, 3, v{t1}"); a(f"v_lshlrev_b32 v{t1}, 2, v{t1}")
    a(f"v_and_b32 v{l}, 3, v0"); a(f"v_or_b32 v{t1}, v{t1}, v{l}")
    a(f"v_bfe_u32 v{l}, v0, 2, 1"); a(f"v_and_b32 v{t3}, 1, v{t3}"); a(f"v_xor_b32 v{l}, v{l}, v{t3}"); a(f"v_xor_b32 v{l}, 1, v{l}")
    a(f"v_lshl_or_b32 v{t1}, v{l}, 4, v{t1}")
    a(f"v_lshl_or_b32 v{t1}, v{t1}, 3, v{t2}")
    a(f"v_lshlrev_b32 v{t1}, 8, v{t1}")
    a(f"v_mov_b32 v{l}, 1")
    if dword == "S":
        a(f"s_lshr_b32 s{T0}, s{sN}, 3"); a(f"s_lshl_b32 s{T0}, s{T0}, 2"); a(f"s_add_u32 s{T0}, s{T0}, {WS_MB}")
    else:
        a(f"s_mov_b32 s{T0}, {WS_MB + 4*dword}")
    a("s_mov_b32 exec_hi, 0")
    a(f"buffer_atomic_add v{l}, v{t1}, s[{SWS}:{SWS+3}], s{T0} offen sc1")
    a("s_mov_b64 exec, -1")

def bulk_prefetch(a, G, vdummy, vaddr):
    a(f"v_lshlrev_b32 v{vaddr}, 4, v0")
    n = 0
    for name, size in C.pflist:
        size = {"x": L*D*2, "w1": D*F*2, "bre": P_*D*2, "bim": P_*D*2, "cre": D*P_*2, "cim": D*P_*2, "w2": F*D*2}[name]
        share = size // 256; pw = share // 8
        a(f"s_mul_i32 s{U0}, s2, {share}"); a(f"s_mul_i32 s{U1}, s{sWave}, {pw}"); a(f"s_add_u32 s{U0}, s{U0}, s{U1}")
        a(f"s_mov_b32 s{SS}, s{PTR[name]}"); a(f"s_mov_b32 s{SS+1}, s{PTR[name]+1}")
        a(f"s_add_u32 s{SS+2}, s{U0}, {pw}"); a(f"s_mov_b32 s{SS+3}, 0x20000")
        for i in range(-(-pw // 1024)):
            a(f"buffer_load_dwordx4 {vr(vdummy,4)}, v{vaddr}, s[{SS}:{SS+3}], s{U0} offen offset:{i*1024}")
            n += 1
    G.note('pf', n)

def tlb_warm(a, vdummy, vaddr, names, tsrd):
    sizes = {"w2": F*D*2, "cre": D*P_*2, "cim": D*P_*2, "out": L*D*4, "lre": 2048, "lim": 2048, "ldt": 2048, "dsk": 2048, "b2": 2048, "gw": 2048}
    a(f"v_lshlrev_b32 v{vaddr}, {C.tlbshift}, v0")
    end = newlabel("tw")
    for w in range(8):
        nx = newlabel("tw")
        a(f"s_cmp_lg_u32 s{sWave}, {w}"); a(f"s_cbranch_scc1 {nx}")
        for name in names[w::8]:
            if name == "ws":
                a("s_mov_b32 exec_lo, 0x00ffffff"); a("s_mov_b32 exec_hi, 0")
                a(f"buffer_load_dword v{vdummy}, v{vaddr}, s[{SWS}:{SWS+3}], 0 offen")
                a("s_mov_b64 exec, -1")
            elif name == "dbg":
                a(f"buffer_load_dword v{vdummy}, v{vaddr}, s[{SDBG}:{SDBG+3}], 0 offen")
            else:
                a(f"s_mov_b32 s{tsrd}, s{PTR[name]}"); a(f"s_mov_b32 s{tsrd+1}, s{PTR[name]+1}"); a(f"s_mov_b32 s{tsrd+2}, {sizes[name]}"); a(f"s_mov_b32 s{tsrd+3}, 0x20000")
                a(f"buffer_load_dword v{vdummy}, v{vaddr}, s[{tsrd}:{tsrd+3}], 0 offen")
        a(f"s_branch {end}")
        a.label(nx)
    a.label(end)

def phase1_dense(a):
    V = Regs(10)
    TP, TQ = 224, 256
    mp, mq = 7, 4
    Pop = OpNC(a, V, TP, 0, mp, F * 2)
    NBQ = C.nbq
    Qop = OpKC(a, V, TQ, 2 * Pop.bytes, mq); Qop.groups = [[0, 1, 2, 3]]
    G = Gemm(a, V, 2, NBQ, Pop.bytes, Qop.bytes, mp, mq, (sBufD, sBufR, sTile, sTt, sCnt, sRole), False, 'Q', 'd1')
    LDS1 = 2 * Pop.bytes + NBQ * Qop.bytes
    acc = V.get(4 * mp * mq, 2)
    vb = V.get(2 * mp, 2); vdum = V.get(4, 2)
    a(f"s_lshr_b32 s{sWp}, s{sWave}, 2"); a(f"s_and_b32 s{sWq}, s{sWave}, 3")
    a(f"s_mul_i32 s{T0}, s{sN}, {TP*2}")
    Pop.setup_dma(sWave, VT, T0, U0)
    Qop.lane_chunk(VT, VT + 1)
    a(f"v_lshrrev_b32 v{VT+1}, 3, v0"); a(f"v_lshl_add_u32 v{VT}, v{VT+1}, 11, v{VT}")
    for j in range(4):
        a(f"s_lshl_b32 s{T0}, s{sM}, 8"); a(f"s_lshl_b32 s{T1}, s{sWave}, 5"); a(f"s_add_u32 s{T0}, s{T0}, s{T1}")
        a(f"s_add_u32 s{T0}, s{T0}, {8*j}"); a(f"s_lshl_b32 s{T0}, s{T0}, 11"); a(f"s_sub_u32 s{T0}, s{T0}, {j*1024}")
        Qop.set_voff(j, VT, T0, bool(j & 1))
    Pop.setup_lds(sWave, sLdsP, U0)
    a(f"s_lshl_b32 s{sLdsQ}, s{sWave}, 12"); a(f"s_add_u32 s{sLdsQ}, s{sLdsQ}, {Qop.lds_off}")
    a(f"s_mul_i32 s{sKP}, s{sRot}, {64*F*2}"); a(f"s_lshl_b32 s{sKQ}, s{sRot}, 7")
    a("s_waitcnt lgkmcnt(0)")
    stamp(a, 1, st="pro")
    srd(a, SX, PTR["x"], L * D * 2); srd(a, SWS, PTR["ws"], WS_SIZE); srd(a, SDBG, PTR["dbg"], 256)
    srd(a, SA, PTR["w1"], D * F * 2)
    kadvP = [f"s_add_u32 s{sKP}, s{sKP}, {64*F*2}", f"s_cmp_eq_u32 s{sKP}, {D*F*2}", f"s_cselect_b32 s{sKP}, 0, s{sKP}"]
    kadvQ = [f"s_add_u32 s{sKQ}, s{sKQ}, 128", f"s_and_b32 s{sKQ}, s{sKQ}, 2047"]
    seg = Seg(Pop, Qop, acc, lambda b: Pop.dma(b, sKP, sTmp, sLdsP, SA, sWave), lambda b: Qop.dma(b, sKQ, sTmp, sLdsQ, [SX] * 4), kadvP, kadvQ, "d1")
    stages = [seg] * 16
    G.prologue(stages, "PQ", 0, 1)
    if C.pbar: a("s_barrier")
    if C.tlb: tlb_warm(a, 250, VT + 5, ["ws", "w2", "cre", "cim", "out", "dbg", "dsk", "b2"], SS); G.note('tlb', 1)
    stamp(a, 2, st="pro")
    a(f"s_mul_i32 s{T2}, s{sN}, {TP}"); a(f"s_mul_i32 s{T3}, s{sWp}, {mp*16}"); a(f"s_add_u32 s{T2}, s{T2}, s{T3}")
    a(f"s_lshl_b32 s{T3}, s{T2}, 1")
    a(f"v_lshrrev_b32 v{VT+2}, 4, v0"); a(f"v_lshlrev_b32 v{VT+2}, 3, v{VT+2}")
    srd(a, SS, PTR["b1"], F * 2)
    for i in range(mp):
        a(f"buffer_load_dwordx2 {vr(vb+2*i,2)}, v{VT+2}, s[{SS}:{SS+3}], s{T3} offen offset:{32*i}")
    G.note('misc', mp)
    a(f"s_mul_i32 s{T0}, s{sWp}, {mp}"); Pop.setup_read(T0, VT, U0)
    a(f"s_mul_i32 s{T0}, s{sWq}, {mq}"); Qop.setup_read(T0, VT, U0)
    stamp(a, 3, st="pro")
    G.prologue(stages, "PQ", 1)
    stamp(a, 4, st="pro")
    a(f"s_waitcnt vmcnt({G.vm_allow({'misc'})})")
    for i in range(mp):
        c = acc + 4 * (i * mq)
        a(f"v_lshlrev_b32 v{c}, 16, v{vb+2*i}"); a(f"v_and_b32 v{c+1}, 0xffff0000, v{vb+2*i}")
        a(f"v_lshlrev_b32 v{c+2}, 16, v{vb+2*i+1}"); a(f"v_and_b32 v{c+3}, 0xffff0000, v{vb+2*i+1}")
        for j in range(1, mq):
            for r in range(4): a(f"v_mov_b32 v{c+4*j+r}, v{c+r}")
    stamp(a, 1)
    G.pre_first = lambda: stamp(a, 5, st="pro")
    G.run(stages, {C.initit + 3: (lambda: init_signal(a, VT + 4))}, {C.initit: mb_zero_groups(VT + 2)}, (lambda: stamp(a, 6, st="pro")))
    stamp(a, 2)
    stamp(a, 1, st="clk"); stamp(a, 2, real=True, st="clk")
    PITCH = 464
    stamp(a, 1, st="dense")
    init_load(a)
    vw = VT
    a(f"v_and_b32 v{vw}, 15, v0"); a(f"v_mul_u32_u24 v{vw}, {PITCH}, v{vw}")
    a(f"v_lshrrev_b32 v{VT+1}, 4, v0"); a(f"v_lshl_add_u32 v{vw}, v{VT+1}, 3, v{vw}")
    a(f"s_mul_i32 s{T0}, s{sWq}, {64*PITCH}"); a(f"s_mul_i32 s{T1}, s{sWp}, 224"); a(f"s_add_u32 s{T0}, s{T0}, s{T1}")
    a(f"v_add_u32 v{vw}, s{T0}, v{vw}")
    vr_, vg_ = VT + 1, VT + 2
    a(f"v_cmp_le_u32 vcc, 28, v0"); a("s_nop 1")
    a(f"v_cndmask_b32 v{VT+3}, 0, 1, vcc")
    a(f"v_mul_u32_u24 v{VT+4}, 28, v{VT+3}"); a(f"v_sub_u32 v{VT+4}, v0, v{VT+4}")
    a(f"v_lshlrev_b32 v{VT+4}, 4, v{VT+4}")
    a(f"v_mul_u32_u24 v{vr_}, {PITCH}, v{VT+3}"); a(f"v_add_u32 v{vr_}, v{vr_}, v{VT+4}")
    a(f"s_mul_i32 s{T0}, s{sWq}, {64*PITCH}"); a(f"s_mul_i32 s{T1}, s{sWp}, {32*PITCH}"); a(f"s_add_u32 s{T0}, s{T0}, s{T1}")
    a(f"v_add_u32 v{vr_}, s{T0}, v{vr_}")
    a(f"v_mul_u32_u24 v{vg_}, {RS_A2}, v{VT+3}"); a(f"v_add_u32 v{vg_}, v{vg_}, v{VT+4}")
    a(f"s_lshl_b32 s{T0}, s{sM}, 8"); a(f"s_lshl_b32 s{T1}, s{sWq}, 6"); a(f"s_add_u32 s{T0}, s{T0}, s{T1}")
    a(f"s_lshl_b32 s{T1}, s{sWp}, 5"); a(f"s_add_u32 s{T0}, s{T0}, s{T1}")
    a(f"s_mul_i32 s{T0}, s{T0}, {RS_A2}"); a(f"s_mul_i32 s{T1}, s{sN}, 448"); a(f"s_add_u32 s{T0}, s{T0}, s{T1}")
    a(f"s_add_u32 s{T0}, s{T0}, {WS_A2 + 4096}")
    for j in range(mq):
        for i in range(mp):
            c = acc + 4 * (i * mq + j)
            for r in range(4): a(f"v_mul_f32_e64 v{c+r}, v{c+r}, |v{c+r}|")
            a(f"v_cvt_pk_bf16_f32 v{c}, v{c}, v{c+1}"); a(f"v_cvt_pk_bf16_f32 v{c+1}, v{c+2}, v{c+3}")
            a(f"v_pk_max_i16 v{c}, v{c}, 0"); a(f"v_pk_max_i16 v{c+1}, v{c+1}, 0")
    a("s_barrier")
    stamp(a, 2, st="dense")
    for j in range(mq):
        for i in range(mp):
            c = acc + 4 * (i * mq + j)
            a(f"ds_write_b64 v{vw}, {vr(c,2)} offset:{j*16*PITCH + 32*i}")
    a("s_waitcnt lgkmcnt(0)")
    stamp(a, 3, st="dense")
    a("s_barrier")
    stamp(a, 4, st="dense")
    a("s_mov_b32 exec_hi, 0x00ffffff")
    rb = acc
    for n in range(16):
        a(f"ds_read_b128 {vr(rb+4*n,4)}, v{vr_} offset:{2*n*PITCH}")
    for n in range(16):
        a(f"s_waitcnt lgkmcnt({15-n})")
        a(f"buffer_store_dwordx4 {vr(rb+4*n,4)}, v{vg_}, s[{SWS}:{SWS+3}], s{T0} offen{C.wt}")
        a(f"s_add_u32 s{T0}, s{T0}, {2*RS_A2}")
    a("s_mov_b64 exec, -1")
    stamp(a, 5, st="dense")
    return V.hi, max(LDS1, 4 * 64 * PITCH)

def phase1_ssm(a):
    V = Regs(10)
    mp, mq = 4, 4
    Pop = OpKC(a, V, 256, 0, mp); Pop.groups = [[0, 1, 2, 3]]
    Qop = OpKC(a, V, 128, Pop.bytes, mq); Qop.groups = [[0], [1]]; Qop.ldsoffs = [0, 8192]
    Qop.frag_off = lambda j: ((j & 1) * 4 + (j >> 1)) * 2048
    SB = Pop.bytes + Qop.bytes; NB = 3
    G = Gemm(a, V, NB, NB, Pop.bytes, Qop.bytes, mp, mq, (sBufD, sBufR, None, None, sCnt, sRole), True, 'P', 's1')
    acc = V.get(64, 2); prm = V.get(12, 4); big = V.get(72, 4)
    AG = NB * SB
    a(f"s_lshr_b32 s{sWp}, s{sWave}, 1"); a(f"s_and_b32 s{sWq}, s{sWave}, 1")
    Pop.lane_chunk(VT, VT + 1)
    a(f"v_lshrrev_b32 v{VT+1}, 5, v0"); a(f"v_lshlrev_b32 v{VT+1}, 4, v{VT+1}")
    a(f"v_bfe_u32 v{VT+2}, v0, 3, 2"); a(f"v_add_u32 v{VT+1}, v{VT+1}, v{VT+2}")
    a(f"v_lshl_add_u32 v{VT+3}, v{VT+1}, 11, v{VT}")
    for j in range(4):
        a(f"s_lshl_b32 s{T0}, s{sWave}, 1");
        if j >> 1: a(f"s_add_u32 s{T0}, s{T0}, 1")
        a(f"s_and_b32 s{T0}, s{T0}, 3"); a(f"s_lshl_b32 s{T0}, s{T0}, 2")
        a(f"s_lshl_b32 s{T1}, s{sWp}, 6"); a(f"s_add_u32 s{T0}, s{T0}, s{T1}")
        a(f"s_lshl_b32 s{T1}, s{sM}, 8"); a(f"s_add_u32 s{T0}, s{T0}, s{T1}")
        if j & 1: a(f"s_add_u32 s{T0}, s{T0}, 32")
        a(f"s_lshl_b32 s{T0}, s{T0}, 11")
        if j: a(f"s_sub_u32 s{T0}, s{T0}, {j*1024}")
        Pop.set_voff(j, VT + 3, T0, bool(j & 1))
    a(f"v_lshrrev_b32 v{VT+1}, 3, v0"); a(f"v_lshl_add_u32 v{VT+3}, v{VT+1}, 12, v{VT}")
    a(f"s_lshr_b32 s{T0}, s{sWave}, 2"); a(f"s_lshl_b32 s{T0}, s{T0}, 5")
    a(f"s_and_b32 s{T1}, s{sWave}, 1"); a(f"s_lshl_b32 s{T2}, s{T1}, 6"); a(f"s_lshl_b32 s{T1}, s{T1}, 4"); a(f"s_add_u32 s{T0}, s{T0}, s{T1}")
    a(f"s_bfe_u32 s{T1}, s{sWave}, 0x10001"); a(f"s_add_u32 s{T0}, s{T0}, s{T1}")
    a(f"s_lshl_b32 s{T1}, s{sN}, 6"); a(f"s_add_u32 s{T0}, s{T0}, s{T1}"); a(f"s_lshl_b32 s{T0}, s{T0}, 11")
    Qop.set_voff(0, VT + 3, T0, T2)
    a(f"v_mov_b32 v{Qop.vd+1}, v{Qop.vd}")
    a(f"s_lshl_b32 s{sLdsP}, s{sWave}, 12")
    a(f"s_lshl_b32 s{sLdsQ}, s{sWave}, 10"); a(f"s_add_u32 s{sLdsQ}, s{sLdsQ}, {Qop.lds_off}")
    a(f"s_lshl_b32 s{sKQ}, s{sRot}, 7")
    a("s_waitcnt lgkmcnt(0)")
    srd(a, SX, PTR["x"], L * D * 2); srd(a, SWS, PTR["ws"], WS_SIZE); srd(a, SDBG, PTR["dbg"], 256)
    srd(a, SA, PTR["bre"], P_ * D * 2); srd(a, SB_, PTR["bim"], P_ * D * 2)
    pt = [big, big + 8, big + 16]
    kadv = [f"s_add_u32 s{sKQ}, s{sKQ}, 128", f"s_and_b32 s{sKQ}, s{sKQ}, 2047"]
    kadvP = [f"s_add_u32 s{sKP}, s{sKP}, 128", f"s_and_b32 s{sKP}, s{sKP}, 2047"]
    a(f"s_mov_b32 s{sKP}, s{sKQ}")
    seg = Seg(Pop, Qop, acc, lambda b: Pop.dma(b, sKP, sTmp, sLdsP, [SX] * 4), lambda b: Qop.dma(b, sKQ, sTmp, sLdsQ, [SA, SB_]), kadvP, kadv, "s1")
    if C.prefetch:
        SP1, SP2, sPF1, sPF2 = SS, 72, sLdsP2, sKP2
        a(f"s_lshl_b32 s{T0}, s{sM}, 4"); a(f"s_add_u32 s{T0}, s{T0}, s{sN}")
        a(f"s_mul_i32 s{sPF2}, s{T0}, {56*1024}"); a(f"s_mul_i32 s{T1}, s{sWave}, {7*1024}"); a(f"s_add_u32 s{sPF2}, s{sPF2}, s{T1}")
        a(f"s_mov_b32 s{SP2}, s{PTR['w2']}"); a(f"s_mov_b32 s{SP2+1}, s{PTR['w2']+1}")
        a(f"s_add_u32 s{SP2+2}, s{sPF2}, {7*1024}"); a(f"s_mov_b32 s{SP2+3}, 0x20000")
        a(f"s_lshr_b32 s{T1}, s{T0}, 6"); a(f"s_cmp_eq_u32 s{T1}, 0")
        a(f"s_cselect_b32 s{SP1}, s{PTR['cre']}, s{PTR['cim']}"); a(f"s_cselect_b32 s{SP1+1}, s{PTR['cre']+1}, s{PTR['cim']+1}")
        a(f"s_and_b32 s{sPF1}, s{T0}, 63"); a(f"s_lshl_b32 s{sPF1}, s{sPF1}, 15"); a(f"s_lshl_b32 s{T1}, s{sWave}, 12"); a(f"s_add_u32 s{sPF1}, s{sPF1}, s{T1}")
        a(f"s_add_u32 s{SP1+2}, s{sPF1}, 4096"); a(f"s_mov_b32 s{SP1+3}, 0x20000")
        vpf = V.get(1); vpd = V.get(4, 2)
        a(f"v_lshlrev_b32 v{vpf}, 4, v0")
        pf = []
        for i in range(4): pf.append([f"buffer_load_dwordx4 {vr(vpd,4)}, v{vpf}, s[{SP1}:{SP1+3}], s{sPF1} offen offset:{i*1024}"])
        for i in range(7):
            pf.append([f"buffer_load_dwordx4 {vr(vpd,4)}, v{vpf}, s[{SP2}:{SP2+3}], s{sPF2} offen offset:{(i%4)*1024}"] + ([f"s_add_u32 s{sPF2}, s{sPF2}, 4096"] if i == 3 else []))
        p1extras = {C.pfit: (pf, 11)}
    else:
        p1extras = {}
    stages = [seg] * 16
    G.prologue(stages, "PQ", 0, 1)
    a(f"s_mul_i32 s{T0}, s{sWp}, {mp}"); Pop.setup_read(T0, VT, U0)
    a(f"s_lshl_b32 s{T0}, s{sWq}, 1"); Qop.setup_read(T0, VT, U0)
    G.zero_first = True
    if C.pbar: a("s_barrier")
    if C.tlb: tlb_warm(a, 250, VT + 5, ["ws", "w2", "cre", "cim", "out", "dbg", "dsk", "b2", "lre", "lim", "ldt", "gw"], 60); G.note('tlb', 1)
    G.prologue(stages, "PQ", 1)
    SPRM = 60
    def prm_loads():
        out = []
        class Cap:
            def __call__(self, x): out.append([x])
        c = Cap()
        c(f"s_lshl_b32 s{T2}, s{sN}, 6"); c(f"s_lshl_b32 s{T3}, s{sWq}, 5"); c(f"s_add_u32 s{T3}, s{T3}, s{T2}")
        c(f"v_and_b32 v{VT}, 15, v0"); c(f"v_lshlrev_b32 v{VT}, 1, v{VT}"); c(f"v_add_u32 v{VT}, s{T3}, v{VT}")
        c(f"v_lshlrev_b32 v{pt[0]}, 1, v{VT}"); c(f"v_add_u32 v{pt[1]}, 2, v{pt[0]}")
        c(f"v_add_u32 v{pt[2]}, s{T2}, v0"); c(f"v_lshlrev_b32 v{pt[2]}, 1, v{pt[2]}")
        c(f"s_mov_b32 s{SPRM+2}, 2048"); c(f"s_mov_b32 s{SPRM+3}, 0x20000")
        for k, name in enumerate(("lre", "lim", "ldt")):
            out.append([f"s_mov_b32 s{SPRM}, s{PTR[name]}", f"s_mov_b32 s{SPRM+1}, s{PTR[name]+1}"] +
                       [f"buffer_load_ushort v{pt[q]+1+k}, v{pt[q]}, s[{SPRM}:{SPRM+3}], 0 offen" for q in range(3)])
        return out
    def prm_math():
        out = []
        class Cap:
            def __call__(self, x): out.append(x)
        c = Cap()
        ssm_params_compute(c, prm, pt[0]); ssm_params_compute(c, prm + 4, pt[1]); ssm_params_compute(c, prm + 8, pt[2], False)
        return [out[i:i + 4] for i in range(0, len(out), 4)]
    p1extras[3] = (prm_loads(), 9)
    p1extras[7] = (prm_math(), 0)
    stamp(a, 1)
    p1extras[C.initit] = mb_zero_groups(VT + 2, True)
    G.run(stages, {C.initit + 3: (lambda: init_signal(a, VT + 4))}, p1extras)
    stamp(a, 2)
    stamp(a, 1, st="clk"); stamp(a, 2, real=True, st="clk")
    stamp(a, 1, st="ssm")
    init_load(a)
    a("s_nop 7")
    def U(jc, ri, s): return acc + 4 * ((s >> 2) * 4 + 2 * jc + ri) + (s & 3)
    ag = big; tt = big + 4
    def scan_step(s):
        for jc in range(2):
            hr, hi_ = ag + 2 * jc, ag + 2 * jc + 1; lr = prm + 4 * jc; t0, t1 = tt + 2 * jc, tt + 2 * jc + 1
            a(f"v_fma_f32 v{t0}, v{lr}, v{hr}, v{U(jc,0,s)}"); a(f"v_fma_f32 v{t1}, v{lr}, v{hi_}, v{U(jc,1,s)}")
        for jc in range(2):
            hr, hi_ = ag + 2 * jc, ag + 2 * jc + 1; li = prm + 4 * jc + 1; t0, t1 = tt + 2 * jc, tt + 2 * jc + 1
            a(f"v_fma_f32 v{hi_}, v{li}, -v{hi_}, v{t0}")
            a(f"v_fma_f32 v{t1}, v{li}, v{hr}, v{t1}")
        for jc in range(2):
            hr, hi_ = ag + 2 * jc, ag + 2 * jc + 1; t1 = tt + 2 * jc + 1
            a(f"v_mov_b32 v{hr}, v{hi_}"); a(f"v_mov_b32 v{hi_}, v{t1}")
    for jc in range(2):
        a(f"v_mov_b32 v{ag+2*jc}, v{U(jc,0,0)}"); a(f"v_mov_b32 v{ag+2*jc+1}, v{U(jc,1,0)}")
    def scan2(s, src, dst):
        for jc in range(2):
            hr, hi_ = src + 2 * jc, src + 2 * jc + 1; lr = prm + 4 * jc; dr, di = dst + 2 * jc, dst + 2 * jc + 1
            a(f"v_fma_f32 v{dr}, v{lr}, v{hr}, v{U(jc,0,s)}"); a(f"v_fma_f32 v{di}, v{lr}, v{hi_}, v{U(jc,1,s)}")
        for jc in range(2):
            hr, hi_ = src + 2 * jc, src + 2 * jc + 1; li = prm + 4 * jc + 1; dr, di = dst + 2 * jc, dst + 2 * jc + 1
            a(f"v_fma_f32 v{dr}, -v{li}, v{hi_}, v{dr}"); a(f"v_fma_f32 v{di}, v{li}, v{hr}, v{di}")
    st = [ag, tt]
    for s in range(1, 16): scan2(s, st[(s - 1) & 1], st[s & 1])
    fin = st[15 & 1]
    vag = big + 8
    def calc_vag():
        a(f"v_lshrrev_b32 v{vag}, 4, v0"); a(f"s_lshl_b32 s{T0}, s{sWp}, 2"); a(f"v_add_u32 v{vag}, s{T0}, v{vag}")
        a(f"v_lshlrev_b32 v{vag}, 9, v{vag}")
        a(f"v_and_b32 v{big+9}, 15, v0"); a(f"v_lshlrev_b32 v{big+9}, 4, v{big+9}")
        a(f"s_lshl_b32 s{T0}, s{sWq}, 8"); a(f"s_add_u32 s{T0}, s{T0}, {AG}")
        a(f"v_add3_u32 v{vag}, v{vag}, v{big+9}, s{T0}")
    calc_vag()
    a(f"ds_write_b128 v{vag}, {vr(fin,4)}")
    a("s_waitcnt lgkmcnt(0)")
    a("s_barrier")
    stamp(a, 2, st="ssm")
    a(f"s_cmp_lg_u32 s{sWave}, 0")
    a("s_cbranch_scc1 L_s_gate")
    lr, li = prm + 8, prm + 9
    l16r, l16i, l256r, l256i = big + 10, big + 11, big + 12, big + 13
    er, ei = big + 14, big + 15
    w0 = big + 4
    A = big + 16; vl = big + 9
    a(f"v_lshlrev_b32 v{vl}, 3, v0"); a(f"v_add_u32 v{vl}, {AG}, v{vl}")
    for s in range(16): a(f"ds_read_b64 {vr(A+2*s,2)}, v{vl} offset:{s*512}")
    csq(a, l16r, l16i, lr, li, w0)
    for _ in range(3): csq(a, l16r, l16i, l16r, l16i, w0)
    csq(a, l256r, l256i, l16r, l16i, w0)
    for _ in range(3): csq(a, l256r, l256i, l256r, l256i, w0)
    a("s_waitcnt lgkmcnt(0)")
    x0, x1 = big + 6, big + 7
    for s in range(1, 16):
        pr, pi, cr_, ci_ = A + 2 * (s - 1), A + 2 * (s - 1) + 1, A + 2 * s, A + 2 * s + 1
        a(f"v_fma_f32 v{cr_}, v{l16r}, v{pr}, v{cr_}"); a(f"v_fma_f32 v{ci_}, v{l16r}, v{pi}, v{ci_}")
        a(f"v_fma_f32 v{cr_}, -v{l16i}, v{pi}, v{cr_}"); a(f"v_fma_f32 v{ci_}, v{l16i}, v{pr}, v{ci_}")
    er, ei = A + 30, A + 31
    vo = big + 8
    a(f"s_lshl_b32 s{T0}, s{sN}, 6"); a(f"v_add_u32 v{vo}, s{T0}, v0"); a(f"v_lshlrev_b32 v{vo}, 3, v{vo}")
    a(f"s_lshl_b32 s{T1}, s{sM}, 13"); a(f"s_add_u32 s{T1}, s{T1}, {WS_AGG}")
    a("s_waitcnt vmcnt(0)")
    init_check(a, big + 52)
    a(f"s_lshl_b32 s{T1}, s{sM}, 13"); a(f"s_add_u32 s{T1}, s{T1}, {WS_AGG}")
    a(f"buffer_store_dwordx2 {vr(er,2)}, v{vo}, s[{SWS}:{SWS+3}], s{T1} offen sc1")
    stamp(a, 3, st="ssm")
    cr, ci = big + 48, big + 49
    a(f"v_mov_b32 v{cr}, 0"); a(f"v_mov_b32 v{ci}, 0")
    a(f"s_cmp_eq_u32 s{sM}, 0"); a("s_cbranch_scc1 L_s_nolb")
    B = big + 50
    a(f"s_mov_b32 s{U2}, {C.spin}")
    a.label("L_s_lb")
    for j in range(7):
        if j: a(f"s_cmp_le_u32 s{sM}, {j}"); a("s_cbranch_scc1 L_s_lbw")
        a(f"s_mov_b32 s{T1}, {WS_AGG + j*8192}")
        a(f"buffer_load_dwordx2 {vr(B+2*j,2)}, v{vo}, s[{SWS}:{SWS+3}], s{T1} offen sc1")
    a.label("L_s_lbw")
    a("s_waitcnt vmcnt(0)")
    a(f"s_mov_b64 s[{U0}:{U1}], 0")
    for j in range(7):
        if j: a(f"s_cmp_le_u32 s{sM}, {j}"); a("s_cbranch_scc1 L_s_lbc")
        a(f"v_cmp_eq_u32 vcc, -1, v{B+2*j}"); a("s_nop 0"); a(f"s_or_b64 s[{U0}:{U1}], s[{U0}:{U1}], vcc")
        a(f"v_cmp_eq_u32 vcc, -1, v{B+2*j+1}"); a("s_nop 0"); a(f"s_or_b64 s[{U0}:{U1}], s[{U0}:{U1}], vcc")
    a.label("L_s_lbc")
    a(f"s_cmp_eq_u64 s[{U0}:{U1}], 0"); a("s_cbranch_scc1 L_s_lbok")
    a(f"s_sub_u32 s{U2}, s{U2}, 1"); a(f"s_cmp_eq_u32 s{U2}, 0"); a("s_cbranch_scc1 L_s_lbok")
    a(f"s_sleep {C.sleep}"); a("s_branch L_s_lb")
    a.label("L_s_lbok")
    for j in range(7):
        a(f"s_cmp_le_u32 s{sM}, {j}"); a("s_cbranch_scc1 L_s_nolb")
        a(f"v_fma_f32 v{x0}, v{l256r}, v{cr}, v{B+2*j}"); a(f"v_fma_f32 v{x1}, v{l256r}, v{ci}, v{B+2*j+1}")
        a(f"v_fma_f32 v{x0}, -v{l256i}, v{ci}, v{x0}"); a(f"v_fma_f32 v{ci}, v{l256i}, v{cr}, v{x1}")
        a(f"v_mov_b32 v{cr}, v{x0}")
    a.label("L_s_nolb")
    stamp(a, 4, st="ssm")
    a(f"ds_write_b64 v{vl}, {vr(cr,2)}")
    for s in range(1, 16):
        a(f"v_mul_f32 v{x0}, v{l16r}, v{cr}"); a(f"v_mul_f32 v{x1}, v{l16r}, v{ci}")
        a(f"v_fma_f32 v{x0}, -v{l16i}, v{ci}, v{x0}"); a(f"v_fma_f32 v{ci}, v{l16i}, v{cr}, v{x1}")
        a(f"v_mov_b32 v{cr}, v{x0}")
        a(f"v_add_f32 v{A+2*(s-1)}, v{A+2*(s-1)}, v{cr}"); a(f"v_add_f32 v{A+2*(s-1)+1}, v{A+2*(s-1)+1}, v{ci}")
        a(f"ds_write_b64 v{vl}, {vr(A+2*(s-1),2)} offset:{s*512}")
    a("s_waitcnt lgkmcnt(0)")
    a("s_branch L_s_wait")
    a.label("L_s_gate")
    gxs = [big + 16, big + 24, big + 32]; gws = big + 40; gt = big + 48
    a(f"s_lshl_b32 s{T0}, s{sM}, 8"); a(f"s_lshl_b32 s{T1}, s{sN}, 4"); a(f"s_add_u32 s{T0}, s{T0}, s{T1}")
    a(f"s_add_u32 s{T0}, s{T0}, s{sWave}"); a(f"s_sub_u32 s{T0}, s{T0}, 1")
    a(f"s_add_u32 s{T1}, s{T0}, 7"); a(f"s_add_u32 s{T2}, s{T0}, 14")
    a(f"v_lshlrev_b32 v{gt}, 5, v0")
    srd(a, SS, PTR["gw"], 2048)
    a(f"buffer_load_dwordx4 {vr(gws,4)}, v{gt}, s[{SS}:{SS+3}], 0 offen"); a(f"buffer_load_dwordx4 {vr(gws+4,4)}, v{gt}, s[{SS}:{SS+3}], 0 offen offset:16")
    gate_row_loads(a, T0, gxs[0], gt); gate_row_loads(a, T1, gxs[1], gt)
    a(f"s_cmp_gt_u32 s{sWave}, 2"); a("s_cbranch_scc1 L_s_g2")
    gate_row_loads(a, T2, gxs[2], gt)
    a("s_waitcnt vmcnt(0)")
    gate_compute(a, T2, gxs[2], gws, gt + 1)
    a.label("L_s_g2")
    a("s_waitcnt vmcnt(0)")
    gate_compute(a, T0, gxs[0], gws, gt + 1); gate_compute(a, T1, gxs[1], gws, gt + 1)
    a.label("L_s_wait")
    a("s_barrier")
    calc_vag()
    a(f"ds_read_b128 {vr(ag,4)}, v{vag}")
    PITCH = 272
    vw = big + 9
    a(f"v_lshrrev_b32 v{vw}, 4, v0"); a(f"v_lshlrev_b32 v{vw}, 4, v{vw}"); a(f"s_lshl_b32 s{T0}, s{sWp}, 6"); a(f"v_add_u32 v{vw}, s{T0}, v{vw}")
    a(f"v_mul_u32_u24 v{vw}, {PITCH}, v{vw}")
    a(f"v_and_b32 v{big+10}, 15, v0"); a(f"v_lshl_add_u32 v{vw}, v{big+10}, 2, v{vw}")
    a(f"s_lshl_b32 s{T0}, s{sWq}, 6"); a(f"v_add_u32 v{vw}, s{T0}, v{vw}")
    a("s_waitcnt lgkmcnt(0)")
    ore, oim, od = big + 12, big + 14, big + 16
    st = [ag, tt]
    for s in range(16):
        scan2(s, st[s & 1], st[(s + 1) & 1])
        h = st[(s + 1) & 1]
        for jc in range(2):
            hr, hi_ = h + 2 * jc, h + 2 * jc + 1; kr, ki = prm + 4 * jc + 2, prm + 4 * jc + 3
            a(f"v_mul_f32 v{ore+jc}, v{kr}, v{hr}"); a(f"v_mul_f32 v{oim+jc}, -v{kr}, v{hi_}")
        for jc in range(2):
            hr, hi_ = h + 2 * jc, h + 2 * jc + 1; kr, ki = prm + 4 * jc + 2, prm + 4 * jc + 3
            a(f"v_fma_f32 v{ore+jc}, -v{ki}, v{hi_}, v{ore+jc}"); a(f"v_fma_f32 v{oim+jc}, -v{ki}, v{hr}, v{oim+jc}")
        d = od + 2 * (s % 4)
        a(f"v_cvt_pk_bf16_f32 v{d}, v{ore}, v{ore+1}"); a(f"v_cvt_pk_bf16_f32 v{d+1}, v{oim}, v{oim+1}")
        a(f"ds_write_b32 v{vw}, v{d} offset:{s*PITCH}"); a(f"ds_write_b32 v{vw}, v{d+1} offset:{s*PITCH+128}")
    stamp(a, 5, st="ssm")
    vr_, vg_ = big + 10, big + 11
    a(f"v_lshrrev_b32 v{vr_}, 4, v0"); a(f"s_lshl_b32 s{T0}, s{sWave}, 5"); a(f"v_add_u32 v{vr_}, s{T0}, v{vr_}")
    a(f"s_lshl_b32 s{T1}, s{sM}, 8"); a(f"v_add_u32 v{vg_}, s{T1}, v{vr_}"); a(f"v_mul_u32_u24 v{vg_}, {RS_A2}, v{vg_}")
    a(f"v_mul_u32_u24 v{vr_}, {PITCH}, v{vr_}")
    a(f"v_and_b32 v{big+12}, 15, v0"); a(f"v_lshl_add_u32 v{vr_}, v{big+12}, 4, v{vr_}")
    a(f"v_and_b32 v{big+13}, 7, v0"); a(f"v_lshl_add_u32 v{vg_}, v{big+13}, 4, v{vg_}")
    a(f"v_bfe_u32 v{big+13}, v0, 3, 1"); a(f"v_lshl_add_u32 v{vg_}, v{big+13}, 11, v{vg_}")
    a(f"s_lshl_b32 s{T0}, s{sN}, 7"); a(f"s_add_u32 s{T0}, s{T0}, {WS_A2}")
    a("s_waitcnt lgkmcnt(0)")
    a("s_barrier")
    rb = acc
    for n in range(8): a(f"ds_read_b128 {vr(rb+4*n,4)}, v{vr_} offset:{4*n*PITCH}")
    for n in range(8):
        a(f"s_waitcnt lgkmcnt({7-n})")
        a(f"buffer_store_dwordx4 {vr(rb+4*n,4)}, v{vg_}, s[{SWS}:{SWS+3}], s{T0} offen{C.wt}")
        a(f"s_add_u32 s{T0}, s{T0}, {4*RS_A2}")
    stamp(a, 6, st="ssm")
    return V.hi, AG + 8192

def phase2(a, role):
    R = "A" if role == 0 else "B"
    SW2, SE = 24, 72
    NS = C.ns
    TQ = 128 if NS == 2 else 256
    TP, mp, mq, NB = 128, 4, NS, (4 if NS == 2 else 3)
    LG = 1 if NS == 2 else 2
    XS = 8 // NS
    sG, sKQ2 = 0, 3
    V = Regs(10)
    P1 = OpKC(a, V, TP, 0, mp); P1.groups = [[0, 1]]
    P2 = OpNC(a, V, TP, 0, mp, D * 2)
    Qop = OpKC(a, V, TQ, TP * 128, mq, flags=C.a2ld); Qop.groups = [list(range(Qop.n))]
    SB = TP * 128 + Qop.bytes
    G = Gemm(a, V, NB, NB, TP * 128, Qop.bytes, mp, mq, (sBufD, sBufR, None, None, sCnt, sRole), True, 'P' if NS == 2 else 'Q', 'p2')
    nf = mp * mq
    accD = V.get(4 * nf, 2)
    accS = V.get(4 * nf, 2)
    vg = V.get(2 * mq, 2); vep = V.get(4)
    vex = V.get(6 * mp, 2) if NS == 2 else G.F[0][0] + (32 if C.xbf16 else 0)
    if NS != 2 and not C.xbf16: vex = accS
    dense = 1 if role == 1 else 0
    a(f"s_and_b32 s{T0}, s2, 7"); a(f"s_lshr_b32 s{T1}, s2, 3")
    a(f"s_lshr_b32 s{sG}, s{T0}, {3-LG}")
    a(f"s_and_b32 s{T2}, s{T0}, {XS-1}"); a(f"s_lshl_b32 s{sTt}, s{T2}, 2"); a(f"s_bfe_u32 s{T2}, s{T1}, 0x20002"); a(f"s_add_u32 s{sTt}, s{sTt}, s{T2}")
    a(f"s_and_b32 s{T2}, s{sG}, 1")
    if dense: a(f"s_xor_b32 s{T2}, s{T2}, 1")
    a(f"s_lshl_b32 s{sDt}, s{T2}, 2"); a(f"s_and_b32 s{T2}, s{T1}, 3"); a(f"s_add_u32 s{sDt}, s{sDt}, s{T2}")
    a(f"s_lshl_b32 s{sTile}, s{sTt}, 3"); a(f"s_add_u32 s{sTile}, s{sTile}, s{sDt}")
    a(f"s_lshr_b32 s{sWp}, s{sWave}, 2"); a(f"s_and_b32 s{sWq}, s{sWave}, 3")
    srd(a, SW2, PTR["w2"], F * D * 2)
    a(f"s_lshr_b32 s{T0}, s{sG}, {LG-1}"); a(f"s_cmp_eq_u32 s{T0}, 0")
    a(f"s_cselect_b32 s{SA}, s{PTR['cre']}, s{PTR['cim']}"); a(f"s_cselect_b32 s{SA+1}, s{PTR['cre']+1}, s{PTR['cim']+1}")
    a(f"s_mov_b32 s{SA+2}, {D*P_*2}"); a(f"s_mov_b32 s{SA+3}, 0x20000")
    Qop.lane_chunk(VT, VT + 1)
    a(f"v_lshrrev_b32 v{VT+1}, 3, v0"); a(f"v_lshl_add_u32 v{VT+3}, v{VT+1}, 11, v{VT}")
    for j in range(2):
        a(f"s_lshl_b32 s{T0}, s{sDt}, 7"); a(f"s_lshl_b32 s{T1}, s{sWave}, 4"); a(f"s_add_u32 s{T0}, s{T0}, s{T1}")
        if j: a(f"s_add_u32 s{T0}, s{T0}, 8")
        a(f"s_lshl_b32 s{T0}, s{T0}, 11")
        if j: a(f"s_sub_u32 s{T0}, s{T0}, 1024")
        P1.set_voff(j, VT + 3, T0, bool(j & 1))
    a(f"s_lshl_b32 s{sLdsP}, s{sWave}, 11")
    a(f"s_lshl_b32 s{T0}, s{sDt}, 8")
    P2.setup_dma(sWave, VT + 4, T0, U0)
    P2.setup_lds(sWave, sLdsP2, U0)
    a(f"v_lshrrev_b32 v{VT+1}, 3, v0"); a(f"v_mul_u32_u24 v{VT+1}, {RS_A2}, v{VT+1}"); a(f"v_add_u32 v{VT+3}, v{VT+1}, v{VT}")
    for j in range(Qop.n):
        a(f"s_mul_i32 s{T0}, s{sWave}, {TQ//8}")
        if j: a(f"s_add_u32 s{T0}, s{T0}, {8*j}")
        a(f"s_lshr_b32 s{T1}, s{T0}, 4"); a(f"s_add_u32 s{T1}, s{T1}, s{sG}"); a(f"s_and_b32 s{T1}, s{T1}, {NS-1}"); a(f"s_lshl_b32 s{T1}, s{T1}, 4")
        a(f"s_andn2_b32 s{T0}, s{T0}, {(NS-1) << 4}"); a(f"s_or_b32 s{T0}, s{T0}, s{T1}")
        a(f"s_mul_i32 s{T1}, s{sTt}, {TQ}"); a(f"s_add_u32 s{T0}, s{T0}, s{T1}"); a(f"s_mul_i32 s{T0}, s{T0}, {RS_A2}")
        if j: a(f"s_sub_u32 s{T0}, s{T0}, {1024*j}")
        Qop.set_voff(j, VT + 3, T0, bool(j & 1))
    a(f"s_mul_i32 s{sLdsQ}, s{sWave}, {Qop.n*1024}"); a(f"s_add_u32 s{sLdsQ}, s{sLdsQ}, {Qop.lds_off}")
    nS = 32 // NS; base = 56 // NS
    nD = base + (C.delta if role == 0 else -C.delta)
    colsS = 2048 // NS
    a(f"s_mul_i32 s{sKQ}, s{sG}, {colsS*2}"); a(f"s_and_b32 s{sKP}, s{sKQ}, 2047")
    if WS_A2: a(f"s_add_u32 s{sKQ}, s{sKQ}, {WS_A2}")
    a(f"s_lshr_b32 s{T0}, s{sG}, 1"); a(f"s_mul_i32 s{T0}, s{T0}, {2*base}")
    a(f"s_and_b32 s{T1}, s{sG}, 1"); a(f"s_mul_i32 s{T1}, s{T1}, {2*base - nD}"); a(f"s_add_u32 s{T0}, s{T0}, s{T1}")
    a(f"s_mul_i32 s{sKP2}, s{T0}, {64*D*2}"); a(f"s_lshl_b32 s{sKQ2}, s{T0}, 7"); a(f"s_add_u32 s{sKQ2}, s{sKQ2}, {WS_A2 + 4096}")
    a(f"s_mul_i32 s{T0}, s{sWp}, {mp}")
    P1.setup_read(T0, VT, U0); P2.setup_read(T0, VT, U0)
    a(f"s_mul_i32 s{T0}, s{sWq}, {mq}"); Qop.setup_read(T0, VT, U0)
    qd = lambda b: Qop.dma(b, sKQ, sTmp, sLdsQ, [SWS] * Qop.n)
    qd2 = lambda b: Qop.dma(b, sKQ2, sTmp, sLdsQ, [SWS] * Qop.n)
    segD = Seg(P2, Qop, accD, lambda b: P2.dma(b, sKP2, sTmp, sLdsP2, SW2), qd2, [f"s_add_u32 s{sKP2}, s{sKP2}, {64*D*2}"], [f"s_add_u32 s{sKQ2}, s{sKQ2}, 128"], "d")
    segS = Seg(P1, Qop, accS, lambda b: P1.dma(b, sKP, sTmp, sLdsP, [SA] * 2), qd, [f"s_add_u32 s{sKP}, s{sKP}, 128"], [f"s_add_u32 s{sKQ}, s{sKQ}, 128"], "s")
    stages = [segS] * nS + [segD] * nD
    N = len(stages)
    a("s_barrier")
    G.prologue(stages, "P")
    nP0 = 2 * G.leadP
    G.zero_first = True
    post_first = None
    def chkS(ok):
        if NS == 2:
            a(f"s_add_u32 s{U0}, s{U0}, s{U1}"); a(f"s_cmp_eq_u32 s{U0}, 16"); a(f"s_cbranch_scc1 {ok}")
        else:
            a(f"s_bitcmp1_b32 s{sG}, 0"); a(f"s_cselect_b32 s{U0}, s{U1}, s{U0}"); a(f"s_cmp_eq_u32 s{U0}, 8"); a(f"s_cbranch_scc1 {ok}")
    if role == 0:
        a(f"s_waitcnt vmcnt({nP0})")
        a("s_barrier")
        stamp(a, 3)
        a(f"s_cmp_eq_u32 s{sWave}, 1"); a(f"s_cbranch_scc1 L_p2{R}_pl")
        a(f"s_cmp_lg_u32 s{sWave}, 0"); a(f"s_cbranch_scc1 L_p2{R}_dep")
        signal_cnt(a, "S", VT)
        a(f"s_branch L_p2{R}_dep")
        a.label(f"L_p2{R}_pl")
        poll_own(a, chkS, VT)
    else:
        stamp(a, 3)
        stamp(a, 6, st="dense")
        a(f"s_cmp_lg_u32 s{sWave}, 0"); a(f"s_cbranch_scc1 L_p2{R}_dep")
        poll_own(a, chkS, VT)
        def post_first():
            sk = newlabel("pf")
            a(f"s_cmp_lg_u32 s{sWave}, 0"); a(f"s_cbranch_scc1 {sk}")
            init_check(a, VT)
            signal_cnt(a, 2, VT)
            a.label(sk)
    a.label(f"L_p2{R}_dep")
    a("s_barrier")
    G.prologue(stages, "Q")
    hooks = {}
    def hookD():
        sk = newlabel("hk")
        stamp(a, 2, st="p2")
        a(f"s_cmp_lg_u32 s{sWave}, 0"); a(f"s_cbranch_scc1 {sk}")
        def chk(ok):
            a(f"s_add_u32 s{U0}, s{U0}, s{U1}"); a(f"s_add_u32 s{U0}, s{U0}, s{U3}"); a(f"s_cmp_eq_u32 s{U0}, 32"); a(f"s_cbranch_scc1 {ok}")
        poll_own(a, chk, VT)
        a.label(sk)
        stamp(a, 3, st="p2")
    hooks[nS - G.leadQ - (1 if G.early == 'Q' else 0)] = hookD
    sXD = 44
    vt_own, vxo, vd2, vl16 = vep, vep + 1, vep + 2, vep + 3
    vx_, vds, vb2 = vex, vex + 2 * mp, vex + 4 * mp
    ex = []
    ex.append([f"s_mul_i32 s{T0}, s{sTt}, {TQ}", f"s_mul_i32 s{T1}, s{sWq}, {16*mq}", f"s_add_u32 s{T0}, s{T0}, s{T1}",
               f"v_and_b32 v{vt_own}, 15, v0", f"v_add_u32 v{vt_own}, s{T0}, v{vt_own}", f"v_lshlrev_b32 v{vxo}, 3, v{vt_own}"])
    for j in range(mq):
        ex.append([f"s_add_u32 s{T0}, s{sG}, {j}", f"s_and_b32 s{T0}, s{T0}, {NS-1}", f"s_lshl_b32 s{T0}, s{T0}, 7", f"s_add_u32 s{T0}, s{T0}, {WS_G}",
                   f"buffer_load_dwordx2 {vr(vg+2*j,2)}, v{vxo}, s[{SWS}:{SWS+3}], s{T0} offen sc1"])
    ex.append([f"s_lshl_b32 s{T0}, s{sG}, 4", f"v_add_u32 v{vt_own}, s{T0}, v{vt_own}",
               f"v_lshrrev_b32 v{vd2}, 4, v0", f"v_lshlrev_b32 v{vd2}, 2, v{vd2}",
               f"s_lshl_b32 s{T0}, s{sDt}, 7", f"s_lshl_b32 s{T1}, s{sWp}, 6", f"s_add_u32 s{T0}, s{T0}, s{T1}",
               f"v_add_u32 v{vd2}, s{T0}, v{vd2}", f"v_lshlrev_b32 v{vd2}, 1, v{vd2}",
               f"v_lshl_add_u32 v{vxo}, v{vt_own}, 11, v{vd2}", f"v_lshlrev_b32 v{vl16}, 4, v0"])
    for j in range(1, mq):
        ex.append([f"s_add_u32 s{T1}, s{sG}, {j}", f"s_and_b32 s{T1}, s{T1}, {NS-1}",
                   f"s_mul_i32 s{T0}, s{T1}, {XS}", f"s_and_b32 s{T2}, s2, {XS-1}", f"s_add_u32 s{T0}, s{T0}, s{T2}",
                   f"s_lshr_b32 s{T2}, s{sDt}, 2", f"s_xor_b32 s{T2}, s{T2}, s{T1}", f"s_and_b32 s{T2}, s{T2}, 1", f"s_xor_b32 s{T2}, s{T2}, 1",
                   f"s_lshl_b32 s{T2}, s{T2}, 7", f"s_or_b32 s{T0}, s{T0}, s{T2}", f"s_and_b32 s{T2}, s2, 0x78", f"s_or_b32 s{T0}, s{T0}, s{T2}",
                   f"s_lshl_b32 s{T0}, s{T0}, 3", f"s_add_u32 s{T0}, s{T0}, s{sWave}", f"s_mul_i32 s{T0}, s{T0}, {4096*(NS-1)}",
                   f"s_add_u32 s{sXD+j-1}, s{T0}, {WS_XB + (NS - j - 1) * 4096}"])
    ex2 = []
    for i in range(mp):
        ex2.append([f"buffer_load_dwordx2 {vr(vx_+2*i,2)}, v{vxo}, s[{SX}:{SX+3}], 0 offen offset:{32*i}"])
    ex2.append([f"s_mov_b32 s{SE}, s{PTR['dsk']}", f"s_mov_b32 s{SE+1}, s{PTR['dsk']+1}", f"s_mov_b32 s{SE+2}, 2048", f"s_mov_b32 s{SE+3}, 0x20000"])
    for i in range(mp):
        ex2.append([f"buffer_load_dwordx2 {vr(vds+2*i,2)}, v{vd2}, s[{SE}:{SE+3}], 0 offen offset:{32*i}"])
    ex2.append([f"s_mov_b32 s{SE}, s{PTR['b2']}", f"s_mov_b32 s{SE+1}, s{PTR['b2']+1}"])
    for i in range(mp):
        ex2.append([f"buffer_load_dwordx2 {vr(vb2+2*i,2)}, v{vd2}, s[{SE}:{SE+3}], 0 offen offset:{32*i}"])
    if NS == 2: extras = {N - NB: (ex + ex2, mq + 3 * mp)}
    else: extras = {N - NB: (ex, mq)}
    stamp(a, 4)
    stamp(a, 1, st="p2")
    stamp(a, 3, st="clk"); stamp(a, 4, real=True, st="clk")
    G.run(stages, hooks, extras, post_first)
    stamp(a, 5)
    stamp(a, 4, st="p2")
    stamp(a, 5, st="clk"); stamp(a, 6, real=True, st="clk")
    stamp(a, 1, st="end")
    a("s_nop 7")
    a("s_waitcnt vmcnt(0)")
    def comb(i, j):
        c = 4 * (i * mq + j)
        for r in range(4):
            a(f"v_mul_f32 v{accD+c+r}, v{vg+2*j+1}, v{accD+c+r}"); a(f"v_fmac_f32 v{accD+c+r}, v{vg+2*j}, v{accS+c+r}")
    late_ex2 = (NS != 2 and not C.xbf16)
    if late_ex2:
        for j in list(range(1, mq)) + [0]:
            for i in range(mp): comb(i, j)
    nst = (2 if C.xbf16 else 4) * (mq - 1)
    for j in range(1, mq):
        if not late_ex2:
            for i in range(mp): comb(i, j)
        if C.xbf16:
            for i2 in range(0, mp, 2):
                c0, c1 = accD + 4 * (i2 * mq + j), accD + 4 * ((i2 + 1) * mq + j)
                a(f"v_cvt_pk_bf16_f32 v{c0}, v{c0}, v{c0+1}"); a(f"v_cvt_pk_bf16_f32 v{c0+1}, v{c0+2}, v{c0+3}")
                a(f"v_cvt_pk_bf16_f32 v{c0+2}, v{c1}, v{c1+1}"); a(f"v_cvt_pk_bf16_f32 v{c0+3}, v{c1+2}, v{c1+3}")
                a(f"buffer_store_dwordx4 {vr(c0,4)}, v{vl16}, s[{SWS}:{SWS+3}], s{sXD+j-1} offen offset:{(i2//2)*1024} sc1")
        else:
            a("s_nop 1")
            for i in range(mp):
                c = accD + 4 * (i * mq + j)
                a(f"buffer_store_dwordx4 {vr(c,4)}, v{vl16}, s[{SWS}:{SWS+3}], s{sXD+j-1} offen offset:{i*1024} sc1")
    stamp(a, 2, st="end")
    n_ex2 = 0
    if NS != 2:
        for g_ in ex2: G.emit(g_)
        n_ex2 = 3 * mp
    if not late_ex2:
        for i in range(mp): comb(i, 0)
    t1, t2, t3 = VT + 5, VT + 6, VT + 7
    a(f"s_and_b32 s{T0}, s2, {XS-1}")
    a(f"v_mul_u32_u24 v{t1}, {XS}, v0"); a(f"v_add_u32 v{t1}, s{T0}, v{t1}")
    a(f"s_lshr_b32 s{T0}, s{sDt}, 2")
    a(f"v_and_b32 v{t2}, 1, v0"); a(f"v_xor_b32 v{t2}, s{T0}, v{t2}"); a(f"v_xor_b32 v{t2}, 1, v{t2}")
    a(f"s_lshr_b32 s{T0}, s2, 3"); a(f"s_and_b32 s{T0}, s{T0}, 15")
    a(f"v_lshlrev_b32 v{t2}, 4, v{t2}"); a(f"v_add_u32 v{t2}, s{T0}, v{t2}"); a(f"v_lshl_or_b32 v{t2}, v{t2}, 3, v{t1}")
    a(f"v_lshlrev_b32 v{t2}, 8, v{t2}")
    a(f"v_subrev_u32 v{t1}, s{sG}, v0"); a(f"v_and_b32 v{t1}, {NS-1}, v{t1}")
    a(f"v_sub_u32 v{t1}, {NS-1}, v{t1}"); a(f"v_lshl_add_u32 v{t2}, v{t1}, 2, v{t2}")
    a(f"v_mov_b32 v{t3}, 1")
    a(f"s_lshl_b32 s{T0}, 1, s{sG}"); a(f"s_andn2_b32 s{T0}, {(1 << NS) - 1}, s{T0}")
    a(f"s_lshl_b32 s{T1}, s{sWave}, 4"); a(f"s_add_u32 s{T1}, s{T1}, {WS_MB + 32}")
    a(f"s_waitcnt vmcnt({n_ex2})")
    stamp(a, 5, st="p2")
    stamp(a, 3, st="end")
    a(f"s_mov_b32 exec_lo, s{T0}"); a("s_mov_b32 exec_hi, 0")
    a(f"buffer_store_dword v{t3}, v{t2}, s[{SWS}:{SWS+3}], s{T1} offen sc1")
    a("s_mov_b64 exec, -1")
    if n_ex2: a("s_waitcnt vmcnt(1)")
    x0, x1, y0, y1 = VT, VT + 1, VT + 2, VT + 3
    for i in range(mp):
        e = accD + 4 * (i * mq)
        for h in range(2):
            a(f"v_lshlrev_b32 v{x0}, 16, v{vx_+2*i+h}"); a(f"v_and_b32 v{x1}, 0xffff0000, v{vx_+2*i+h}")
            a(f"v_lshlrev_b32 v{y0}, 16, v{vds+2*i+h}"); a(f"v_and_b32 v{y1}, 0xffff0000, v{vds+2*i+h}")
            a(f"v_mul_f32 v{x0}, v{x0}, v{y0}"); a(f"v_mul_f32 v{x1}, v{x1}, v{y1}")
            a(f"v_cvt_pk_bf16_f32 v{x0}, v{x0}, v{x1}")
            a(f"v_and_b32 v{x1}, 0xffff0000, v{x0}"); a(f"v_lshlrev_b32 v{x0}, 16, v{x0}")
            a(f"v_fmac_f32 v{e+2*h}, v{vg}, v{x0}"); a(f"v_fmac_f32 v{e+2*h+1}, v{vg}, v{x1}")
            a(f"v_lshlrev_b32 v{x0}, 16, v{vb2+2*i+h}"); a(f"v_and_b32 v{x1}, 0xffff0000, v{vb2+2*i+h}")
            a(f"v_fmac_f32 v{e+2*h}, v{vg+1}, v{x0}"); a(f"v_fmac_f32 v{e+2*h+1}, v{vg+1}, v{x1}")
    stamp(a, 4, st="end")
    a(f"s_lshl_b32 s{T3}, s2, 8"); a(f"s_add_u32 s{T3}, s{T3}, s{T1}")
    def chkx(ok):
        if NS == 4: a(f"s_and_b32 s{U0}, s{U0}, s{U1}"); a(f"s_and_b32 s{U0}, s{U0}, s{U3}")
        a(f"s_cmp_lg_u32 s{U0}, 0"); a(f"s_cbranch_scc1 {ok}")
    poll(a, SWS, T3, chkx, VT, wide=(4 if NS == 4 else 1), sleep=1)
    stamp(a, 5, st="end")
    rb = G.F[0][0]
    nrx = mp * (NS - 1)
    assert 2 * (4 * mp + 4 * mq) >= 4 * nrx
    inbox_offset(a, T0)
    per = 2 if C.xbf16 else 4
    for k in range(per * (NS - 1)):
        if k and k % per == 0: a(f"s_add_u32 s{T0}, s{T0}, 4096")
        a(f"buffer_load_dwordx4 {vr(rb+4*k,4)}, v{vl16}, s[{SWS}:{SWS+3}], s{T0} offen offset:{(k%per)*1024} sc1")
    srd(a, SE, PTR["out"], L * D * 4)
    vo = VT
    a(f"v_lshlrev_b32 v{vo}, 12, v{vt_own}"); a(f"v_lshl_add_u32 v{vo}, v{vd2}, 1, v{vo}")
    a("s_waitcnt vmcnt(0)")
    stamp(a, 6, st="end")
    for i in range(mp):
        e = accD + 4 * (i * mq)
        for k in range(NS - 1):
            if C.xbf16:
                src = rb + 8 * k + 4 * (i // 2) + 2 * (i % 2)
                x0, x1 = VT + 2, VT + 3
                for h in range(2):
                    a(f"v_lshlrev_b32 v{x0}, 16, v{src+h}"); a(f"v_and_b32 v{x1}, 0xffff0000, v{src+h}")
                    a(f"v_add_f32 v{e+2*h}, v{e+2*h}, v{x0}"); a(f"v_add_f32 v{e+2*h+1}, v{e+2*h+1}, v{x1}")
            else:
                for r in range(4): a(f"v_add_f32 v{e+r}, v{e+r}, v{rb+k*4*mp+4*i+r}")
        a(f"buffer_store_dwordx4 {vr(e,4)}, v{vo}, s[{SE}:{SE+3}], 0 offen offset:{64*i}{C.wto}")
    stamp(a, 6)
    stamp(a, 6, st="p2")
    return V.hi, NB * SB

def emit_stamps(a):
    a("s_memrealtime s[88:89]"); a("s_waitcnt lgkmcnt(0)")
    a(f"s_cmp_lg_u32 s{sWave}, {C.stwave}"); a("s_cbranch_scc1 L_end")
    a("s_waitcnt vmcnt(0)")
    for i in range(1, 7): a(f"s_sub_u32 s{92+i}, s{92+i}, s92")
    a("s_mov_b32 s99, s100")
    a("s_nop 0")
    a(f"s_mov_b32 s100, s88")
    for i in range(8): a(f"v_mov_b32 v{12+i}, s{93+i}")
    a(f"s_lshl_b32 s{T0}, s2, 5"); a(f"s_add_u32 s{T0}, s{T0}, {WS_ST}")
    a("v_mov_b32 v11, 0"); a("s_mov_b64 exec, 1")
    a(f"buffer_store_dwordx4 v[12:15], v11, s[{SWS}:{SWS+3}], s{T0} offen")
    a(f"buffer_store_dwordx4 v[16:19], v11, s[{SWS}:{SWS+3}], s{T0} offen offset:16")

HEADER = open("gated_mix__ssm_conv_s5__dense_activation_squared_relu__prompt.s.ref").read().split("; Override launch")[0]

def generate(**kw):
    for k, v in kw.items():
        assert hasattr(C, k), k
        setattr(C, k, v)
    _lbl[0] = 0
    a = Asm()
    kernel_header(a, NAME)
    a("s_cmp_ge_u32 s2, 256"); a("s_cbranch_scc1 L_end")
    a("s_load_dwordx16 s[40:55], s[0:1], 0"); a("s_load_dwordx16 s[56:71], s[0:1], 64"); a("s_load_dwordx4 s[72:75], s[0:1], 128")
    if C.dbgst:
        a("s_memtime s[92:93]"); a("s_memrealtime s[100:101]")
    if C.codepf:
        a("s_getpc_b64 s[4:5]")
        a.label("L_pc")
        a("v_lshlrev_b32 v2, 7, v0")
        a("v_min_u32 v2, L_codeend-L_pc-4, v2")
        a("global_load_dword v250, v2, s[4:5]")
    a("v_lshrrev_b32 v1, 6, v0"); a("v_and_b32 v0, 63, v0"); a(f"v_readfirstlane_b32 s{sWave}, v1")
    a(f"s_and_b32 s{T0}, s2, 7"); a(f"s_lshr_b32 s{T1}, s2, 3")
    a(f"s_lshr_b32 s{sRole}, s{T1}, 4")
    a(f"s_bfe_u32 s{T2}, s{T1}, 0x20002"); a(f"s_and_b32 s{T3}, s{T1}, 3")
    a(f"s_lshr_b32 s{sM}, s{T0}, 2"); a(f"s_lshl_b32 s{sM}, s{sM}, 2"); a(f"s_add_u32 s{sM}, s{sM}, s{T2}")
    a(f"s_and_b32 s{sN}, s{T0}, 3"); a(f"s_lshl_b32 s{sN}, s{sN}, 2"); a(f"s_add_u32 s{sN}, s{sN}, s{T3}")
    mode = C.rot
    if mode is True: mode = 1
    if mode == 1:
        a(f"s_lshl_b32 s{sRot}, s{sRole}, 2"); a(f"s_add_u32 s{sRot}, s{sRot}, s{T3}"); a(f"s_lshl_b32 s{sRot}, s{sRot}, 1")
        a(f"s_lshl_b32 s{T2}, s{T2}, 2"); a(f"s_add_u32 s{sRot}, s{sRot}, s{T2}"); a(f"s_and_b32 s{T0}, s{T0}, 3")
        a(f"s_add_u32 s{sRot}, s{sRot}, s{T0}"); a(f"s_and_b32 s{sRot}, s{sRot}, 15")
    elif mode == 2:
        a(f"s_and_b32 s{sRot}, s{T0}, 3"); a(f"s_lshl_b32 s{sRot}, s{sRot}, 2"); a(f"s_lshr_b32 s{T0}, s{T0}, 2"); a(f"s_lshl_b32 s{T0}, s{T0}, 1")
        a(f"s_add_u32 s{sRot}, s{sRot}, s{T0}"); a(f"s_and_b32 s{sRot}, s{sRot}, 15")
    elif mode == 3:
        a(f"s_and_b32 s{sRot}, s{T0}, 3"); a(f"s_lshl_b32 s{sRot}, s{sRot}, 2"); a(f"s_lshr_b32 s{T0}, s{T0}, 2"); a(f"s_lshl_b32 s{T0}, s{T0}, 3")
        a(f"s_add_u32 s{sRot}, s{sRot}, s{T0}"); a(f"s_xor_b32 s{T2}, s{T2}, s{T3}"); a(f"s_and_b32 s{T2}, s{T2}, 1"); a(f"s_lshl_b32 s{T2}, s{T2}, 3")
        a(f"s_add_u32 s{sRot}, s{sRot}, s{T2}"); a(f"s_and_b32 s{sRot}, s{sRot}, 15")
    elif mode == 4:
        a(f"s_xor_b32 s{T2}, s{T2}, s{T3}"); a(f"s_and_b32 s{T2}, s{T2}, 1"); a(f"s_lshl_b32 s{sRot}, s{T2}, 3")
        a(f"s_and_b32 s{T0}, s{T0}, 3"); a(f"s_lshl_b32 s{T0}, s{T0}, 1"); a(f"s_add_u32 s{sRot}, s{sRot}, s{T0}"); a(f"s_and_b32 s{sRot}, s{sRot}, 15")
    elif mode == 5:
        a(f"s_and_b32 s{sRot}, s{T0}, 3"); a(f"s_lshl_b32 s{sRot}, s{sRot}, 2")
    elif mode == 6:
        a(f"s_lshl_b32 s{sRot}, s{T2}, 2"); a(f"s_and_b32 s{T0}, s{T0}, 3"); a(f"s_add_u32 s{sRot}, s{sRot}, s{T0}"); a(f"s_and_b32 s{sRot}, s{sRot}, 15")
    elif mode == 7:
        a(f"s_lshl_b32 s{sRot}, s{T3}, 2"); a(f"s_and_b32 s{T0}, s{T0}, 3"); a(f"s_add_u32 s{sRot}, s{sRot}, s{T0}"); a(f"s_and_b32 s{sRot}, s{sRot}, 15")
    else:
        a(f"s_mov_b32 s{sRot}, 0")
    if C.dbgst:
        pass
    a(f"s_cmp_eq_u32 s{sRole}, 1"); a("s_cbranch_scc1 L_ssm")
    v1, l1 = phase1_dense(a)
    v2, l2 = phase2(a, 1)
    a("s_branch L_fin")
    a.label("L_ssm")
    v3, l3 = phase1_ssm(a)
    v4, l4 = phase2(a, 0)
    a.label("L_fin")
    if C.dbgst: emit_stamps(a)
    a.label("L_end")
    a("s_endpgm")
    a.label("L_codeend")
    nv = max(v1, v2, v3, v4); lds = max(l1, l2, l3, l4)
    assert nv <= 250
    if C.codepf or C.tlb: nv = 251
    head = HEADER + f"; @launch grid=(256,1,1) block=(512,1,1) lds={lds}\n"
    head += '.amdgcn_target "amdgcn-amd-amdhsa--gfx950"\n.text\n'
    return head + a.text() + '.section .rodata,"a"\n' + kernel_desc(NAME, nv, 102)

if __name__ == "__main__":
    kw = json.loads(sys.argv[2]) if len(sys.argv) > 2 else {}
    open(sys.argv[1], "w").write(generate(**kw))
```

```python
import sys, math, json
from asmlib import *

NAME = "gated_mix__ssm_conv_s5__dense_activation_squared_relu__prompt_kernel"
L, D, P_, F = 2048, 1024, 1024, 3584
KC = 2048 + F
RS_A2 = KC * 2
KA = dict(x=0, lre=8, lim=16, bre=24, bim=32, cre=40, cim=48, ldt=56, dsk=64, bx=72, w1=80, b1=88, w2=96, b2=104, gw=112, out=120, dbg=128, ws=136)
WS_A2 = 0
WS_G = 24 << 20
WS_AGG = WS_G + (1 << 16)
WS_MB = WS_AGG + (1 << 17)
WS_ST = WS_AGG + (1 << 18)
WS_XB = 32 << 20
WS_SIZE = 268435456
LOG2E = 0x3fb8aa3b
INV2PI = 0x3e22f983
PTR = {k: 40 + v // 4 for k, v in KA.items()}
DBG_LB = 0
DBG_CNT = 16
DBG_XF = 32

class Cfg:
    dbgst = False; rot = 4; nodma = False; noread = False; prefetch = True
    nAd = 24
    nBs = 8
    ns = 4
    delta = 2
    wt = " sc1"
    a2ld = " sc1"
    wto = ""
    spin = 300000
    sleep = 2
    early = True
    dbgout = False
    xbf16 = True
    loop = {}
    inboxit = 18
    initit = 4
    tlb = False
    tlbshift = 21
    codepf = True
    pbar = False
    bulk = False
    pflist = [('w1',0),('x',0),('bre',0),('bim',0),('cre',0),('cim',0),('w2',0)]
    pfit = 13
    span = 1.0
    prio = True
    nbq = 3
    stampset = 'main'
    stwave = 0
C = Cfg()

class Regs:
    def __init__(self, start, limit=256):
        self.n = start; self.limit = limit; self.hi = start
    def get(self, k=1, align=1):
        self.n = (self.n + align - 1) // align * align
        r = self.n; self.n += k
        self.hi = max(self.hi, self.n)
        assert self.n <= self.limit, f"out of registers {self.n} > {self.limit}"
        return r

def srd(a, s, ptr_lo, size):
    if s != ptr_lo:
        a(f"s_mov_b32 s{s}, s{ptr_lo}"); a(f"s_mov_b32 s{s+1}, s{ptr_lo+1}")
    a(f"s_mov_b32 s{s+2}, {size}"); a(f"s_mov_b32 s{s+3}, 0x20000")

_lbl = [0]
def newlabel(p):
    _lbl[0] += 1
    return f"L_{p}{_lbl[0]}"

class OpKC:
    def __init__(self, a, V, T, lds_off, nfr, flags=""):
        self.a, self.T, self.lds_off, self.nfr, self.flags = a, T, lds_off, nfr, flags
        self.n = T // 64
        self.vd = V.get(self.n)
        self.b0 = V.get(); self.c0 = V.get(); self.c1 = V.get()
        self.bytes = T * 128
        self.ldsoffs = [j * 1024 for j in range(self.n)]
    def lane_chunk(self, vdst, t):
        a = self.a
        a(f"v_and_b32 v{vdst}, 7, v0"); a(f"v_lshrrev_b32 v{t}, 4, v0")
        a(f"v_xor_b32 v{vdst}, v{vdst}, v{t}"); a(f"v_lshlrev_b32 v{vdst}, 4, v{vdst}")
    def set_voff(self, j, vlane, sRowBytes, xor64, comp=True):
        a = self.a; d = self.vd + j
        src = vlane
        if xor64 is True:
            a(f"v_xor_b32 v{d}, 64, v{vlane}"); src = d
        elif xor64 is not False:
            a(f"v_xor_b32 v{d}, s{xor64}, v{vlane}"); src = d
        a(f"v_add_u32 v{d}, s{sRowBytes}, v{src}")
    def dma(self, sBuf, sK, stmp, sLds, srds, groups=None):
        g = []
        for grp_i in self.groups:
            for n_, j in enumerate(grp_i):
                grp = []
                if n_ == 0:
                    grp.append(f"s_add_u32 s{stmp}, s{sBuf}, s{sLds}")
                    if self.ldsoffs[j]: grp.append(f"s_add_u32 s{stmp}, s{stmp}, {self.ldsoffs[j]}")
                    grp.append(f"s_mov_b32 m0, s{stmp}")
                    grp.append("s_nop 0")
                off = f" offset:{n_*1024}" if n_ else ""
                s = srds[j]
                grp.append(f"buffer_load_dwordx4 v{self.vd+j}, s[{s}:{s+3}], s{sK} offen{off}{self.flags} lds")
                g.append(grp)
        return g
    def count(self): return (self.n, self.n)
    def setup_read(self, sFrag0, tmp, stmp):
        a = self.a; t0, t1, t2 = tmp, tmp + 1, tmp + 2
        a(f"v_and_b32 v{t0}, 15, v0"); a(f"v_lshrrev_b32 v{t1}, 4, v0"); a(f"v_lshrrev_b32 v{t2}, 1, v{t0}")
        a(f"v_xor_b32 v{t1}, v{t1}, v{t2}"); a(f"v_lshlrev_b32 v{t1}, 4, v{t1}")
        a(f"v_lshl_add_u32 v{t0}, v{t0}, 7, v{t1}")
        a(f"s_lshl_b32 s{stmp}, s{sFrag0}, 11")
        if self.lds_off: a(f"s_add_u32 s{stmp}, s{stmp}, {self.lds_off}")
        a(f"v_add_u32 v{self.b0}, s{stmp}, v{t0}")
    def init_cur(self):
        return [f"v_mov_b32 v{self.c0}, v{self.b0}", f"v_xor_b32 v{self.c1}, 64, v{self.b0}"]
    def frag_off(self, i): return i * 2048
    def reads(self, ks, dst):
        if C.noread: return []
        c = self.c1 if ks else self.c0
        return [[f"ds_read_b128 {vr(dst+4*i,4)}, v{c} offset:{self.frag_off(i)}"] for i in range(self.nfr)]
    def upd_A(self, sBuf): return [f"v_add_u32 v{self.c0}, s{sBuf}, v{self.b0}"]
    def upd_B(self, sBuf): return [f"v_xor_b32 v{self.c1}, 64, v{self.c0}"]

class OpNC:
    def __init__(self, a, V, T, lds_off, nfr, RS, NW=8):
        self.a, self.T, self.lds_off, self.nfr, self.RS = a, T, lds_off, nfr, RS
        self.RP = T * 2; self.CH = self.RP // 16
        self.total = self.CH
        self.n = -(-self.total // NW)
        self.even = (self.total % NW == 0)
        self.nbig = NW if self.even else self.total - (self.n - 1) * NW
        self.vd = V.get(self.n)
        np_ = self.RP // 32
        self.gb = 3 if np_ % 8 == 0 else (2 if np_ % 4 == 0 else 1)
        self.nres = min(1 << self.gb, nfr)
        self.base = V.get(self.nres); self.cur = V.get(self.nres)
        self.bytes = 64 * self.RP
    def g_asm(self, vk, vo, t):
        a = self.a
        if self.gb == 3:
            a(f"v_and_b32 v{vo}, 3, v{vk}"); a(f"v_bfe_u32 v{t}, v{vk}, 3, 1"); a(f"v_lshl_or_b32 v{vo}, v{t}, 2, v{vo}")
        elif self.gb == 2:
            a(f"v_bfe_u32 v{vo}, v{vk}, 1, 1"); a(f"v_bfe_u32 v{t}, v{vk}, 3, 1"); a(f"v_lshl_or_b32 v{vo}, v{t}, 1, v{vo}")
        else:
            a(f"v_bfe_u32 v{vo}, v{vk}, 3, 1")
    def idx0(self, sWave, sOut, stmp):
        a = self.a
        if self.even: a(f"s_mul_i32 s{sOut}, s{sWave}, {self.n}")
        else:
            a(f"s_mul_i32 s{sOut}, s{sWave}, {self.n-1}")
            a(f"s_min_u32 s{stmp}, s{sWave}, {self.nbig}")
            a(f"s_add_u32 s{sOut}, s{sOut}, s{stmp}")
    def setup_dma(self, sWave, tmp, sCol0Bytes, stmp):
        a = self.a; t0, t1, t2, t3 = tmp, tmp + 1, tmp + 2, tmp + 3
        self.idx0(sWave, stmp, stmp + 1)
        magic = (1 << 20) // self.CH + 1
        for L_ in range(self.total * 64 + 64):
            assert (L_ * magic) >> 20 == L_ // self.CH
        for j in range(self.n):
            a(f"s_add_u32 s{stmp+1}, s{stmp}, {j}"); a(f"s_lshl_b32 s{stmp+1}, s{stmp+1}, 6")
            a(f"v_add_u32 v{t0}, s{stmp+1}, v0")
            if self.CH & (self.CH - 1) == 0:
                a(f"v_lshrrev_b32 v{t1}, {int(math.log2(self.CH))}, v{t0}")
                a(f"v_and_b32 v{t0}, {self.CH-1}, v{t0}")
            else:
                a(f"v_mul_u32_u24 v{t1}, {magic}, v{t0}"); a(f"v_lshrrev_b32 v{t1}, 20, v{t1}")
                a(f"v_mul_u32_u24 v{t2}, {self.CH}, v{t1}"); a(f"v_sub_u32 v{t0}, v{t0}, v{t2}")
            self.g_asm(t1, t2, t3)
            a(f"v_lshlrev_b32 v{t2}, 1, v{t2}"); a(f"v_xor_b32 v{t0}, v{t0}, v{t2}")
            a(f"v_mul_u32_u24 v{t1}, {self.RS}, v{t1}")
            a(f"v_lshl_add_u32 v{t0}, v{t0}, 4, v{t1}")
            if j % 4: a(f"s_sub_u32 s{stmp+1}, s{sCol0Bytes}, {(j%4)*1024}"); a(f"v_add_u32 v{self.vd+j}, s{stmp+1}, v{t0}")
            else: a(f"v_add_u32 v{self.vd+j}, s{sCol0Bytes}, v{t0}")
    def setup_lds(self, sWave, sLds, stmp):
        self.idx0(sWave, sLds, stmp)
        self.a(f"s_lshl_b32 s{sLds}, s{sLds}, 10")
        if self.lds_off: self.a(f"s_add_u32 s{sLds}, s{sLds}, {self.lds_off}")
    def dma(self, sBuf, sK, stmp, sLds, srds, sWave=None):
        g = []
        s = srds
        for j in range(self.n):
            grp = []
            guard = (not self.even) and j == self.n - 1
            if guard:
                lbl = newlabel("ncs")
                grp += [f"s_cmp_lt_u32 s{sWave}, {self.nbig}", f"s_cbranch_scc0 {lbl}"]
            if j % 4 == 0:
                grp.append(f"s_add_u32 s{stmp}, s{sBuf}, s{sLds}")
                if j: grp.append(f"s_add_u32 s{stmp}, s{stmp}, {j*1024}")
                grp += [f"s_mov_b32 m0, s{stmp}", "s_nop 0"]
            off = f" offset:{(j%4)*1024}" if j % 4 else ""
            grp.append(f"buffer_load_dwordx4 v{self.vd+j}, s[{s}:{s+3}], s{sK} offen{off} lds")
            if guard: grp.append(f"{lbl}:")
            g.append(grp)
        return g
    def count(self): return (self.n if self.even else self.n - 1, self.n)
    def setup_read(self, sFrag0, tmp, stmp):
        a = self.a; t0, t1, t2 = tmp, tmp + 1, tmp + 2
        a(f"v_lshrrev_b32 v{t0}, 4, v0"); a(f"v_lshlrev_b32 v{t0}, 3, v{t0}")
        a(f"v_bfe_u32 v{t1}, v0, 2, 2"); a(f"v_add_u32 v{t0}, v{t0}, v{t1}")
        self.g_asm(t0, t1, t2)
        a(f"v_mul_u32_u24 v{t0}, {self.RP}, v{t0}")
        a(f"v_and_b32 v{t2}, 3, v0"); a(f"v_lshl_add_u32 v{t0}, v{t2}, 3, v{t0}")
        if self.lds_off: a(f"v_add_u32 v{t0}, {self.lds_off}, v{t0}")
        for r in range(self.nres):
            a(f"s_add_u32 s{stmp}, s{sFrag0}, {r}")
            a(f"v_xor_b32 v{t2}, s{stmp}, v{t1}")
            if r: a(f"v_subrev_u32 v{t2}, {r}, v{t2}")
            a(f"v_lshl_add_u32 v{self.base+r}, v{t2}, 5, v{t0}")
    def init_cur(self):
        return [f"v_mov_b32 v{self.cur+r}, v{self.base+r}" for r in range(self.nres)]
    def reads(self, ks, dst):
        if C.noread: return []
        g = []
        for i in range(self.nfr):
            r = i % (1 << self.gb)
            for h in range(2):
                off = 32 * i + (4 * h + 32 * ks) * self.RP
                g.append([f"ds_read_b64_tr_b16 {vr(dst+4*i+2*h,2)}, v{self.cur+r} offset:{off}"])
        return g
    def upd_A(self, sBuf): return [f"v_add_u32 v{self.cur+r}, s{sBuf}, v{self.base+r}" for r in range(self.nres)]
    def upd_B(self, sBuf): return []

class Seg:
    def __init__(self, P, Q, acc, Pdma, Qdma, kadvP, kadvQ, name):
        self.P, self.Q, self.acc, self.Pdma, self.Qdma, self.kadvP, self.kadvQ, self.name = P, Q, acc, Pdma, Qdma, kadvP, kadvQ, name
        self.xdma = []

class Gemm:
    def __init__(self, a, V, NBP, NBQ, SP, SQ, mp, mq, regs, joint, early=None, name="x"):
        self.a, self.NBP, self.NBQ, self.SP, self.SQ, self.mp, self.mq, self.joint = a, NBP, NBQ, SP, SQ, mp, mq, joint
        o = dict(span=C.span, prio=C.prio, dmapos="merge", order="i")
        o.update(C.loop.get(name, {}))
        self.opt = o
        self.sDP, self.sRP, self.sDQ, self.sRQ, self.sCnt, self.sE = regs
        if joint: self.sDQ, self.sRQ = self.sDP, self.sRP
        self.early = early if C.early else None
        self.leadP = NBP - (1 if self.early == 'P' else 0)
        self.leadQ = NBQ - (1 if self.early == 'Q' else 0)
        self.F = []
        for s in range(2):
            p = V.get(4 * mp, 2); q = V.get(4 * mq, 2)
            self.F.append((p, q))
        self.vmq = []
        self.zero_first = False
    def emit(self, lines):
        for x in lines:
            if x.endswith(":"): self.a.label(x[:-1])
            else: self.a(x)
    def note(self, tag, n): self.vmq.append((tag, n))
    def vm_allow(self, need):
        last = -1
        for i, (t, n) in enumerate(self.vmq):
            if t in need: last = i
        return min(63, sum(n for t, n in self.vmq[last + 1:]))
    def reads(self, seg, ks, fs):
        p, q = self.F[fs]
        return merge(seg.P.reads(ks, p), seg.Q.reads(ks, q))
    def mfmas(self, seg, fs, zero=False):
        p, q = self.F[fs]
        ij = [(i, j) for i in range(self.mp) for j in range(self.mq)]
        if self.opt["order"] == "j": ij = [(i, j) for j in range(self.mq) for i in range(self.mp)]
        return [f"v_mfma_f32_16x16x32_bf16 {vr(c,4)}, {vr(p+4*i,4)}, {vr(q+4*j,4)}, {'0' if zero else vr(c,4)}"
                for (i, j) in ij for c in [seg.acc + 4 * (i * self.mq + j)]]
    def spread(self, main, fill):
        n = len(main); k = len(fill)
        if k == 0: return list(main)
        span = max(1, min(n, int(n * self.opt['span'])))
        out = []; fi = 0
        for i, m in enumerate(main):
            out.append(m)
            while fi < k and (fi * span) // k <= i:
                out.extend(fill[fi]); fi += 1
        while fi < k: out.extend(fill[fi]); fi += 1
        return out
    def mix(self, reads, dma):
        m = self.opt["dmapos"]
        if m == "first": return dma + reads
        if m == "last": return reads + dma
        return merge(reads, dma)
    def ring_adv(self, sD, sR, stride, nb):
        return [f"s_mov_b32 s{sD}, s{sR}", f"s_add_u32 s{sR}, s{sR}, {stride}", f"s_cmp_eq_u32 s{sR}, {stride*nb}", f"s_cselect_b32 s{sR}, 0, s{sR}"]
    def advance(self):
        out = []
        if self.early: out.append(f"s_mov_b32 s{self.sE}, s{self.sDP if (self.joint or self.early == 'P') else self.sDQ}")
        if self.joint: return out + self.ring_adv(self.sDP, self.sRP, self.SP + self.SQ, self.NBP)
        return out + self.ring_adv(self.sDP, self.sRP, self.SP, self.NBP) + self.ring_adv(self.sDQ, self.sRQ, self.SQ, self.NBQ)
    def dma_list(self, which, seg, sBuf):
        if seg is None or C.nodma: return []
        if which == 'P': return seg.Pdma(sBuf) + [list(seg.kadvP)]
        return seg.Qdma(sBuf) + [list(seg.kadvQ)] + seg.xdma
    def body(self, cur, nxt, dP, dQ, vmw, pre_barrier=None, extra=None, zero=False):
        a = self.a
        self.emit(self.advance())
        a("s_waitcnt lgkmcnt(0)")
        fill = self.reads(cur, 1, 1)
        if nxt is not None: fill.append(nxt.P.upd_A(self.sRP) + nxt.Q.upd_A(self.sRQ))
        if self.early == 'P': fill = self.mix(fill, self.dma_list('P', dP, self.sE))
        if self.early == 'Q': fill = self.mix(fill, self.dma_list('Q', dQ, self.sE))
        if nxt is None and extra: fill = fill + extra
        self.emit(self.spread(self.mfmas(cur, 0, zero), fill))
        if nxt is None:
            a("s_waitcnt lgkmcnt(0)")
            self.emit(self.mfmas(cur, 1))
            return
        if pre_barrier: pre_barrier()
        a(f"s_waitcnt vmcnt({vmw}) lgkmcnt(0)")
        a("s_barrier")
        if self.opt["prio"]: a("s_setprio 1")
        fill = self.reads(nxt, 0, 0)
        d = []
        if self.early != 'P': d += self.dma_list('P', dP, self.sDP)
        if self.early != 'Q': d += self.dma_list('Q', dQ, self.sDQ)
        fill = self.mix(fill, d)
        u = nxt.P.upd_B(self.sRP) + nxt.Q.upd_B(self.sRQ)
        if u: fill.append(u)
        if extra: fill = fill + extra
        self.emit(self.spread(self.mfmas(cur, 1), fill))
        if self.opt["prio"]: a("s_setprio 0")
    def prologue(self, stages, which="PQ", first=0, last=None):
        a = self.a
        stride = self.SP + self.SQ if self.joint else None
        if first == 0:
            a(f"s_mov_b32 s{self.sDP}, 0")
            if not self.joint: a(f"s_mov_b32 s{self.sDQ}, 0")
        for s in range(first, max(self.leadP, self.leadQ) if last is None else last):
            if "P" in which and s < self.leadP:
                for g in stages[s].Pdma(self.sDP): self.emit(g)
                self.emit(stages[s].kadvP); self.note(('P', s), stages[s].P.count()[0])
                if not self.joint: a(f"s_add_u32 s{self.sDP}, s{self.sDP}, {self.SP}")
            if "Q" in which and s < self.leadQ:
                for g in stages[s].Qdma(self.sDQ): self.emit(g)
                self.emit(stages[s].kadvQ); self.note(('Q', s), stages[s].Q.count()[0])
                if not self.joint: a(f"s_add_u32 s{self.sDQ}, s{self.sDQ}, {self.SQ}")
            if self.joint: a(f"s_add_u32 s{self.sDP}, s{self.sDP}, {stride}")
    def run(self, stages, hooks=None, extras=None, post_first=None):
        a = self.a; N = len(stages)
        hooks = hooks or {}; extras = extras or {}
        a(f"s_waitcnt vmcnt({self.vm_allow({('P',0),('Q',0)})})")
        if getattr(self, "pre_first", None): self.pre_first()
        a("s_barrier")
        if post_first: post_first()
        seen = []
        for sg in stages:
            for op in (sg.P, sg.Q):
                if op not in seen: seen.append(op); self.emit(op.init_cur())
        if self.joint:
            a(f"s_mov_b32 s{self.sRP}, 0"); a(f"s_mov_b32 s{self.sDP}, {(self.SP+self.SQ)*(self.NBP-1)}")
        else:
            a(f"s_mov_b32 s{self.sRP}, 0"); a(f"s_mov_b32 s{self.sDP}, {self.SP*(self.NBP-1)}")
            a(f"s_mov_b32 s{self.sRQ}, 0"); a(f"s_mov_b32 s{self.sDQ}, {self.SQ*(self.NBQ-1)}")
        for g in self.reads(stages[0], 0, 0): self.emit(g)
        sigs = []; seen_acc = set()
        for i in range(N):
            nxt = stages[i + 1] if i + 1 < N else None
            dP = stages[i + self.leadP] if i + self.leadP < N else None
            dQ = stages[i + self.leadQ] if i + self.leadQ < N else None
            def noteP():
                if dP is not None: self.note(('P', i + self.leadP), dP.P.count()[0])
            def noteQ():
                if dQ is not None:
                    self.note(('Q', i + self.leadQ), dQ.Q.count()[0])
                    if dQ.xdma: self.note(('PF', i), len(dQ.xdma))
            if self.early == 'P': noteP()
            if self.early == 'Q': noteQ()
            vmw = self.vm_allow({('P', i + 1), ('Q', i + 1)}) if nxt is not None else 0
            if self.early != 'P': noteP()
            if self.early != 'Q': noteQ()
            if i in extras: self.note(('X', i), extras[i][1])
            zero = self.zero_first and stages[i].acc not in seen_acc
            seen_acc.add(stages[i].acc)
            sigs.append((stages[i], nxt, dP, dQ, vmw, i if (i in hooks or i in extras or zero) else -1, zero))
        i = 0
        while i < N:
            j = i
            while j < N and sigs[j] == sigs[i]: j += 1
            cnt = j - i
            cur, nxt, dP, dQ, vmw, sp, zero = sigs[i]
            hk = hooks.get(sp); ex = extras[sp][0] if sp in extras else None
            if cnt >= 2:
                lbl = newlabel("gl")
                a(f"s_mov_b32 s{self.sCnt}, {cnt}")
                a.label(lbl)
                self.body(cur, nxt, dP, dQ, vmw)
                a(f"s_sub_u32 s{self.sCnt}, s{self.sCnt}, 1"); a(f"s_cmp_lg_u32 s{self.sCnt}, 0"); a(f"s_cbranch_scc1 {lbl}")
            else:
                self.body(cur, nxt, dP, dQ, vmw, hk, ex, zero)
            i = j

def merge(x, y):
    out = []; i = j = 0
    while i < len(x) or j < len(y):
        if j >= len(y) or (i < len(x) and i * len(y) <= j * len(x)): out.append(x[i]); i += 1
        else: out.append(y[j]); j += 1
    return out

def bf16_round(a, vdst, vsrc):
    a(f"v_cvt_pk_bf16_f32 v{vdst}, v{vsrc}, v{vsrc}"); a(f"v_lshlrev_b32 v{vdst}, 16, v{vdst}")

def stamp(a, idx, real=False, st="main"):
    if C.dbgst and st == C.stampset:
        a("s_memrealtime s[88:89]" if real else "s_memtime s[88:89]")
        a("s_waitcnt lgkmcnt(0)")
        a(f"s_mov_b32 s{92+idx}, s88")

sWave, sM, sN, sRole = 28, 29, 30, 31
sBufD, sBufR, sCnt, sTmp, sKP, sKQ, sLdsP, sLdsQ = 32, 33, 34, 35, 36, 37, 38, 39
sWp, sWq, sRot, sLdsP2, sKP2, sTile, sTt, sDt = 80, 81, 82, 83, 84, 85, 86, 87
SX, SA, SB_, SWS, SDBG, SS = 4, 8, 12, 16, 20, 24
T0, T1, T2, T3 = 76, 77, 78, 79
U0, U1, U2, U3 = 88, 89, 90, 91
VT = 2

def ssm_param_loads(a, vch, t):
    a(f"v_lshlrev_b32 v{t}, 1, v{vch}")
    for k, name in enumerate(("lre", "lim", "ldt")):
        srd(a, SS, PTR[name], 2048)
        a(f"buffer_load_ushort v{t+1+k}, v{t}, s[{SS}:{SS+3}], 0 offen")

def ssm_params_compute(a, out, t, want_kappa=True):
    lre, lim, ldt = t + 1, t + 2, t + 3
    x0, x1, x2, x3 = t + 4, t + 5, t + 6, t + 7
    lr, li, kr, ki = out, out + 1, out + 2, out + 3
    for r in (lre, lim, ldt): a(f"v_lshlrev_b32 v{r}, 16, v{r}")
    a(f"v_mul_f32 v{x0}, {LOG2E:#x}, v{ldt}"); a(f"v_exp_f32 v{x0}, v{x0}"); a("s_nop 0")
    bf16_round(a, x0, x0)
    a(f"v_mul_f32 v{x1}, v{x0}, v{lre}"); a(f"v_mul_f32 v{x2}, v{x0}, v{lim}")
    a(f"v_mul_f32 v{x1}, {LOG2E:#x}, v{x1}"); a(f"v_exp_f32 v{x1}, v{x1}")
    a(f"v_mul_f32 v{x2}, {INV2PI:#x}, v{x2}"); a(f"v_rndne_f32 v{x3}, v{x2}"); a(f"v_sub_f32 v{x2}, v{x2}, v{x3}")
    a(f"v_cos_f32 v{x3}, v{x2}"); a(f"v_sin_f32 v{x2}, v{x2}"); a("s_nop 0")
    a(f"v_mul_f32 v{lr}, v{x1}, v{x3}"); a(f"v_mul_f32 v{li}, v{x1}, v{x2}")
    if want_kappa:
        a(f"v_subrev_f32 v{x0}, 1.0, v{lr}")
        a(f"v_mul_f32 v{x1}, v{x0}, v{lre}"); a(f"v_fmac_f32 v{x1}, v{li}, v{lim}")
        a(f"v_mul_f32 v{x2}, v{li}, v{lre}"); a(f"v_fma_f32 v{x2}, -v{x0}, v{lim}, v{x2}")
        a(f"v_mul_f32 v{x3}, v{lre}, v{lre}"); a(f"v_fmac_f32 v{x3}, v{lim}, v{lim}")
        a(f"v_rcp_f32 v{x3}, v{x3}"); a("s_nop 0")
        a(f"v_add_f32 v{x3}, v{x3}, v{x3}")
        a(f"v_mul_f32 v{kr}, v{x1}, v{x3}"); a(f"v_mul_f32 v{ki}, v{x2}, v{x3}")

def csq(a, dr, di, sr_, si, t):
    a(f"v_mul_f32 v{t}, v{sr_}, v{si}"); a(f"v_mul_f32 v{dr}, v{sr_}, v{sr_}")
    a(f"v_fma_f32 v{dr}, -v{si}, v{si}, v{dr}"); a(f"v_add_f32 v{di}, v{t}, v{t}")

def gate_row_loads(a, sRow, vx, t):
    a(f"s_lshl_b32 s{U1}, s{sRow}, 11")
    a(f"buffer_load_dwordx4 {vr(vx,4)}, v{t}, s[{SX}:{SX+3}], s{U1} offen")
    a(f"buffer_load_dwordx4 {vr(vx+4,4)}, v{t}, s[{SX}:{SX+3}], s{U1} offen offset:16")

def gate_compute(a, sRow, vx, vw, t):
    acc = t; p0, p1, q0, q1 = t + 1, t + 2, t + 3, t + 4
    a(f"v_mov_b32 v{acc}, 0")
    for d in range(8):
        a(f"v_lshlrev_b32 v{p0}, 16, v{vx+d}"); a(f"v_and_b32 v{p1}, 0xffff0000, v{vx+d}")
        a(f"v_lshlrev_b32 v{q0}, 16, v{vw+d}"); a(f"v_and_b32 v{q1}, 0xffff0000, v{vw+d}")
        a(f"v_mul_f32 v{p0}, v{p0}, v{q0}"); a(f"v_mul_f32 v{p1}, v{p1}, v{q1}")
        a(f"v_cvt_pk_bf16_f32 v{p0}, v{p0}, v{p1}")
        a(f"v_and_b32 v{p1}, 0xffff0000, v{p0}"); a(f"v_lshlrev_b32 v{p0}, 16, v{p0}")
        a(f"v_add_f32 v{acc}, v{acc}, v{p0}"); a(f"v_add_f32 v{acc}, v{acc}, v{p1}")
    for sh in (1, 2, 4, 8):
        a("s_nop 1")
        a(f"v_add_f32_dpp v{acc}, v{acc}, v{acc} row_shr:{sh} row_mask:0xf bank_mask:0xf bound_ctrl:0")
    a("s_nop 1")
    a(f"v_add_f32_dpp v{acc}, v{acc}, v{acc} row_bcast:15 row_mask:0xa bank_mask:0xf")
    a("s_nop 1")
    a(f"v_add_f32_dpp v{acc}, v{acc}, v{acc} row_bcast:31 row_mask:0xc bank_mask:0xf")
    a("s_nop 1")
    a(f"v_readlane_b32 s{U0}, v{acc}, 63")
    a("s_nop 1")
    a(f"v_mov_b32 v{acc}, s{U0}")
    bf16_round(a, acc, acc)
    a(f"v_mul_f32 v{p0}, {LOG2E ^ 0x80000000:#x}, v{acc}"); a(f"v_exp_f32 v{p0}, v{p0}"); a("s_nop 0")
    a(f"v_add_f32 v{p0}, 1.0, v{p0}"); a(f"v_rcp_f32 v{p0}, v{p0}"); a("s_nop 0")
    bf16_round(a, p0, p0)
    a(f"v_sub_f32 v{p1}, 1.0, v{p0}")
    bf16_round(a, p1, p1)
    a(f"s_lshl_b32 s{U0}, s{sRow}, 3"); a(f"s_add_u32 s{U0}, s{U0}, {WS_G}")
    a(f"v_cmp_eq_u32 vcc, 0, v0"); a("s_nop 1")
    a(f"v_cndmask_b32 v{p0}, v{p1}, v{p0}, vcc")
    a(f"v_lshlrev_b32 v{q0}, 2, v0")
    a("s_mov_b64 exec, 3")
    a(f"buffer_store_dword v{p0}, v{q0}, s[{SWS}:{SWS+3}], s{U0} offen sc1")
    a("s_mov_b64 exec, -1")

SENT = 0xffffffff
def inbox_offset(a, sdst):
    a(f"s_lshl_b32 s{sdst}, s2, 3"); a(f"s_add_u32 s{sdst}, s{sdst}, s{sWave}"); a(f"s_mul_i32 s{sdst}, s{sdst}, {4096*(C.ns-1)}")
    a(f"s_add_u32 s{sdst}, s{sdst}, {WS_XB}")

def mb_zero_groups(vt, ssm=False):
    c = []
    q = (vt + 1) // 2 * 2
    sk = newlabel("mz")
    c += [f"s_cmp_lg_u32 s{sWave}, 0", f"s_cbranch_scc1 {sk}"]
    if ssm:
        c += [f"v_mov_b32 v{q}, -1", f"v_mov_b32 v{q+1}, -1",
              f"s_lshl_b32 s{U0}, s{sN}, 6", f"v_add_u32 v{q+4}, s{U0}, v0", f"v_lshlrev_b32 v{q+4}, 3, v{q+4}",
              f"s_lshl_b32 s{U0}, s{sM}, 13", f"s_add_u32 s{U0}, s{U0}, {WS_AGG}",
              f"buffer_store_dwordx2 {vr(q,2)}, v{q+4}, s[{SWS}:{SWS+3}], s{U0} offen sc1"]
    c += [f"v_mov_b32 v{q+2}, 0", f"v_lshlrev_b32 v{q+4}, 2, v0", f"s_lshl_b32 s{U0}, s2, 8", f"s_add_u32 s{U0}, s{U0}, {WS_MB}",
          f"buffer_store_dword v{q+2}, v{q+4}, s[{SWS}:{SWS+3}], s{U0} offen sc1", f"{sk}:"]
    return [c], 0

def inbox_init(a, vt):
    for r in range(4): a(f"v_mov_b32 v{vt+r}, -1")
    a(f"v_lshlrev_b32 v{vt+4}, 4, v0")
    inbox_offset(a, U0)
    for i in range(4 * (C.ns - 1)):
        a(f"buffer_store_dwordx4 {vr(vt,4)}, v{vt+4}, s[{SWS}:{SWS+3}], s{U0} offen offset:{(i%4)*1024} sc1")
        if i % 4 == 3: a(f"s_add_u32 s{U0}, s{U0}, 4096")

def init_signal(a, vt, idx=0, guard=True):
    sk = newlabel("mi")
    if guard: a(f"s_cmp_lg_u32 s{sWave}, 0"); a(f"s_cbranch_scc1 {sk}")
    a(f"v_mov_b32 v{vt}, 1"); a(f"v_mov_b32 v{vt+1}, {4*idx}")
    a("s_mov_b64 exec, 1")
    a(f"buffer_atomic_add v{vt}, v{vt+1}, s[{SDBG}:{SDBG+3}], 0 offen sc1")
    a("s_mov_b64 exec, -1")
    a.label(sk)

def poll(a, srd_, sByteOff, check, vt, wide=1, sleep=None):
    lp, ok = newlabel("poll"), newlabel("pok")
    a(f"v_mov_b32 v{vt+4}, s{sByteOff}")
    a(f"s_mov_b32 s{U2}, {C.spin}")
    a.label(lp)
    a(f"s_sub_u32 s{U2}, s{U2}, 1"); a(f"s_cmp_eq_u32 s{U2}, 0"); a(f"s_cbranch_scc1 {ok}")
    op = {1: "dword", 2: "dwordx2", 4: "dwordx4"}[wide]
    a(f"buffer_load_{op} {vr(vt,wide)}, v{vt+4}, s[{srd_}:{srd_+3}], 0 offen sc1")
    a("s_waitcnt vmcnt(0)")
    a(f"v_readfirstlane_b32 s{U0}, v{vt}")
    if wide >= 2: a(f"v_readfirstlane_b32 s{U1}, v{vt+1}")
    if wide >= 4: a(f"v_readfirstlane_b32 s{U3}, v{vt+2}")
    a("s_nop 3")
    check(ok)
    a(f"s_sleep {C.sleep if sleep is None else sleep}")
    a(f"s_branch {lp}")
    a.label(ok)

VINIT = 1
def init_load(a, idx=0):
    sk = newlabel("il")
    a(f"s_cmp_lg_u32 s{sWave}, 0"); a(f"s_cbranch_scc1 {sk}")
    a(f"v_mov_b32 v{VINIT}, {4*idx}")
    a(f"buffer_load_dword v{VINIT}, v{VINIT}, s[{SDBG}:{SDBG+3}], 0 offen sc1")
    a.label(sk)

def init_check(a, vt, idx=0):
    ok = newlabel("ic")
    a(f"v_readfirstlane_b32 s{U0}, v{VINIT}"); a("s_nop 3")
    a(f"s_cmp_ge_u32 s{U0}, 256"); a(f"s_cbranch_scc1 {ok}")
    a(f"s_mov_b32 s{T3}, {4*idx}")
    def chk(o): a(f"s_cmp_ge_u32 s{U0}, 256"); a(f"s_cbranch_scc1 {o}")
    poll(a, SDBG, T3, chk, vt, sleep=32)
    a.label(ok)

def poll_own(a, check, vt):
    a(f"s_lshl_b32 s{T3}, s2, 8"); a(f"s_add_u32 s{T3}, s{T3}, {WS_MB}")
    poll(a, SWS, T3, check, vt, wide=4)

def signal_cnt(a, dword, vt):
    NS = C.ns; XS = 8 // NS
    l, t1, t2 = vt, vt + 1, vt + 2
    t3 = vt + 3
    if NS == 2:
        a(f"v_bfe_u32 v{t1}, v0, 3, 1"); a(f"s_lshl_b32 s{T0}, s{sM}, 1"); a(f"v_add_u32 v{t1}, s{T0}, v{t1}")
        a(f"v_bfe_u32 v{t3}, v0, 4, 1")
    else:
        a(f"v_mov_b32 v{t1}, s{sM}")
        a(f"v_bfe_u32 v{t3}, v0, 3, 2")
    a(f"v_lshrrev_b32 v{t2}, 2, v{t1}"); a(f"v_mad_u32_u24 v{t2}, v{t3}, {XS}, v{t2}")
    a(f"v_and_b32 v{t1}, 3, v{t1}"); a(f"v_lshlrev_b32 v{t1}, 2, v{t1}")
    a(f"v_and_b32 v{l}, 3, v0"); a(f"v_or_b32 v{t1}, v{t1}, v{l}")
    a(f"v_bfe_u32 v{l}, v0, 2, 1"); a(f"v_and_b32 v{t3}, 1, v{t3}"); a(f"v_xor_b32 v{l}, v{l}, v{t3}"); a(f"v_xor_b32 v{l}, 1, v{l}")
    a(f"v_lshl_or_b32 v{t1}, v{l}, 4, v{t1}")
    a(f"v_lshl_or_b32 v{t1}, v{t1}, 3, v{t2}")
    a(f"v_lshlrev_b32 v{t1}, 8, v{t1}")
    a(f"v_mov_b32 v{l}, 1")
    if dword == "S":
        a(f"s_lshr_b32 s{T0}, s{sN}, 3"); a(f"s_lshl_b32 s{T0}, s{T0}, 2"); a(f"s_add_u32 s{T0}, s{T0}, {WS_MB}")
    else:
        a(f"s_mov_b32 s{T0}, {WS_MB + 4*dword}")
    a("s_mov_b32 exec_hi, 0")
    a(f"buffer_atomic_add v{l}, v{t1}, s[{SWS}:{SWS+3}], s{T0} offen sc1")
    a("s_mov_b64 exec, -1")

def bulk_prefetch(a, G, vdummy, vaddr):
    a(f"v_lshlrev_b32 v{vaddr}, 4, v0")
    n = 0
    for name, size in C.pflist:
        size = {"x": L*D*2, "w1": D*F*2, "bre": P_*D*2, "bim": P_*D*2, "cre": D*P_*2, "cim": D*P_*2, "w2": F*D*2}[name]
        share = size // 256; pw = share // 8
        a(f"s_mul_i32 s{U0}, s2, {share}"); a(f"s_mul_i32 s{U1}, s{sWave}, {pw}"); a(f"s_add_u32 s{U0}, s{U0}, s{U1}")
        a(f"s_mov_b32 s{SS}, s{PTR[name]}"); a(f"s_mov_b32 s{SS+1}, s{PTR[name]+1}")
        a(f"s_add_u32 s{SS+2}, s{U0}, {pw}"); a(f"s_mov_b32 s{SS+3}, 0x20000")
        for i in range(-(-pw // 1024)):
            a(f"buffer_load_dwordx4 {vr(vdummy,4)}, v{vaddr}, s[{SS}:{SS+3}], s{U0} offen offset:{i*1024}")
            n += 1
    G.note('pf', n)

def tlb_warm(a, vdummy, vaddr, names, tsrd):
    sizes = {"w2": F*D*2, "cre": D*P_*2, "cim": D*P_*2, "out": L*D*4, "lre": 2048, "lim": 2048, "ldt": 2048, "dsk": 2048, "b2": 2048, "gw": 2048}
    a(f"v_lshlrev_b32 v{vaddr}, {C.tlbshift}, v0")
    end = newlabel("tw")
    for w in range(8):
        nx = newlabel("tw")
        a(f"s_cmp_lg_u32 s{sWave}, {w}"); a(f"s_cbranch_scc1 {nx}")
        for name in names[w::8]:
            if name == "ws":
                a("s_mov_b32 exec_lo, 0x00ffffff"); a("s_mov_b32 exec_hi, 0")
                a(f"buffer_load_dword v{vdummy}, v{vaddr}, s[{SWS}:{SWS+3}], 0 offen")
                a("s_mov_b64 exec, -1")
            elif name == "dbg":
                a(f"buffer_load_dword v{vdummy}, v{vaddr}, s[{SDBG}:{SDBG+3}], 0 offen")
            else:
                a(f"s_mov_b32 s{tsrd}, s{PTR[name]}"); a(f"s_mov_b32 s{tsrd+1}, s{PTR[name]+1}"); a(f"s_mov_b32 s{tsrd+2}, {sizes[name]}"); a(f"s_mov_b32 s{tsrd+3}, 0x20000")
                a(f"buffer_load_dword v{vdummy}, v{vaddr}, s[{tsrd}:{tsrd+3}], 0 offen")
        a(f"s_branch {end}")
        a.label(nx)
    a.label(end)

def phase1_dense(a):
    V = Regs(10)
    TP, TQ = 224, 256
    mp, mq = 7, 4
    Pop = OpNC(a, V, TP, 0, mp, F * 2)
    NBQ = C.nbq
    Qop = OpKC(a, V, TQ, 2 * Pop.bytes, mq); Qop.groups = [[0, 1, 2, 3]]
    G = Gemm(a, V, 2, NBQ, Pop.bytes, Qop.bytes, mp, mq, (sBufD, sBufR, sTile, sTt, sCnt, sRole), False, 'Q', 'd1')
    LDS1 = 2 * Pop.bytes + NBQ * Qop.bytes
    acc = V.get(4 * mp * mq, 2)
    vb = V.get(2 * mp, 2); vdum = V.get(4, 2)
    a(f"s_lshr_b32 s{sWp}, s{sWave}, 2"); a(f"s_and_b32 s{sWq}, s{sWave}, 3")
    a(f"s_mul_i32 s{T0}, s{sN}, {TP*2}")
    Pop.setup_dma(sWave, VT, T0, U0)
    Qop.lane_chunk(VT, VT + 1)
    a(f"v_lshrrev_b32 v{VT+1}, 3, v0"); a(f"v_lshl_add_u32 v{VT}, v{VT+1}, 11, v{VT}")
    for j in range(4):
        a(f"s_lshl_b32 s{T0}, s{sM}, 8"); a(f"s_lshl_b32 s{T1}, s{sWave}, 5"); a(f"s_add_u32 s{T0}, s{T0}, s{T1}")
        a(f"s_add_u32 s{T0}, s{T0}, {8*j}"); a(f"s_lshl_b32 s{T0}, s{T0}, 11"); a(f"s_sub_u32 s{T0}, s{T0}, {j*1024}")
        Qop.set_voff(j, VT, T0, bool(j & 1))
    Pop.setup_lds(sWave, sLdsP, U0)
    a(f"s_lshl_b32 s{sLdsQ}, s{sWave}, 12"); a(f"s_add_u32 s{sLdsQ}, s{sLdsQ}, {Qop.lds_off}")
    a(f"s_mul_i32 s{sKP}, s{sRot}, {64*F*2}"); a(f"s_lshl_b32 s{sKQ}, s{sRot}, 7")
    a("s_waitcnt lgkmcnt(0)")
    stamp(a, 1, st="pro")
    srd(a, SX, PTR["x"], L * D * 2); srd(a, SWS, PTR["ws"], WS_SIZE); srd(a, SDBG, PTR["dbg"], 256)
    srd(a, SA, PTR["w1"], D * F * 2)
    kadvP = [f"s_add_u32 s{sKP}, s{sKP}, {64*F*2}", f"s_cmp_eq_u32 s{sKP}, {D*F*2}", f"s_cselect_b32 s{sKP}, 0, s{sKP}"]
    kadvQ = [f"s_add_u32 s{sKQ}, s{sKQ}, 128", f"s_and_b32 s{sKQ}, s{sKQ}, 2047"]
    seg = Seg(Pop, Qop, acc, lambda b: Pop.dma(b, sKP, sTmp, sLdsP, SA, sWave), lambda b: Qop.dma(b, sKQ, sTmp, sLdsQ, [SX] * 4), kadvP, kadvQ, "d1")
    stages = [seg] * 16
    G.prologue(stages, "PQ", 0, 1)
    if C.pbar: a("s_barrier")
    if C.tlb: tlb_warm(a, 250, VT + 5, ["ws", "w2", "cre", "cim", "out", "dbg", "dsk", "b2"], SS); G.note('tlb', 1)
    stamp(a, 2, st="pro")
    a(f"s_mul_i32 s{T2}, s{sN}, {TP}"); a(f"s_mul_i32 s{T3}, s{sWp}, {mp*16}"); a(f"s_add_u32 s{T2}, s{T2}, s{T3}")
    a(f"s_lshl_b32 s{T3}, s{T2}, 1")
    a(f"v_lshrrev_b32 v{VT+2}, 4, v0"); a(f"v_lshlrev_b32 v{VT+2}, 3, v{VT+2}")
    srd(a, SS, PTR["b1"], F * 2)
    for i in range(mp):
        a(f"buffer_load_dwordx2 {vr(vb+2*i,2)}, v{VT+2}, s[{SS}:{SS+3}], s{T3} offen offset:{32*i}")
    G.note('misc', mp)
    a(f"s_mul_i32 s{T0}, s{sWp}, {mp}"); Pop.setup_read(T0, VT, U0)
    a(f"s_mul_i32 s{T0}, s{sWq}, {mq}"); Qop.setup_read(T0, VT, U0)
    stamp(a, 3, st="pro")
    G.prologue(stages, "PQ", 1)
    stamp(a, 4, st="pro")
    a(f"s_waitcnt vmcnt({G.vm_allow({'misc'})})")
    for i in range(mp):
        c = acc + 4 * (i * mq)
        a(f"v_lshlrev_b32 v{c}, 16, v{vb+2*i}"); a(f"v_and_b32 v{c+1}, 0xffff0000, v{vb+2*i}")
        a(f"v_lshlrev_b32 v{c+2}, 16, v{vb+2*i+1}"); a(f"v_and_b32 v{c+3}, 0xffff0000, v{vb+2*i+1}")
        for j in range(1, mq):
            for r in range(4): a(f"v_mov_b32 v{c+4*j+r}, v{c+r}")
    stamp(a, 1)
    G.pre_first = lambda: stamp(a, 5, st="pro")
    G.run(stages, {C.initit + 3: (lambda: init_signal(a, VT + 4))}, {C.initit: mb_zero_groups(VT + 2)}, (lambda: stamp(a, 6, st="pro")))
    stamp(a, 2)
    stamp(a, 1, st="clk"); stamp(a, 2, real=True, st="clk")
    PITCH = 464
    stamp(a, 1, st="dense")
    init_load(a)
    vw = VT
    a(f"v_and_b32 v{vw}, 15, v0"); a(f"v_mul_u32_u24 v{vw}, {PITCH}, v{vw}")
    a(f"v_lshrrev_b32 v{VT+1}, 4, v0"); a(f"v_lshl_add_u32 v{vw}, v{VT+1}, 3, v{vw}")
    a(f"s_mul_i32 s{T0}, s{sWq}, {64*PITCH}"); a(f"s_mul_i32 s{T1}, s{sWp}, 224"); a(f"s_add_u32 s{T0}, s{T0}, s{T1}")
    a(f"v_add_u32 v{vw}, s{T0}, v{vw}")
    vr_, vg_ = VT + 1, VT + 2
    a(f"v_cmp_le_u32 vcc, 28, v0"); a("s_nop 1")
    a(f"v_cndmask_b32 v{VT+3}, 0, 1, vcc")
    a(f"v_mul_u32_u24 v{VT+4}, 28, v{VT+3}"); a(f"v_sub_u32 v{VT+4}, v0, v{VT+4}")
    a(f"v_lshlrev_b32 v{VT+4}, 4, v{VT+4}")
    a(f"v_mul_u32_u24 v{vr_}, {PITCH}, v{VT+3}"); a(f"v_add_u32 v{vr_}, v{vr_}, v{VT+4}")
    a(f"s_mul_i32 s{T0}, s{sWq}, {64*PITCH}"); a(f"s_mul_i32 s{T1}, s{sWp}, {32*PITCH}"); a(f"s_add_u32 s{T0}, s{T0}, s{T1}")
    a(f"v_add_u32 v{vr_}, s{T0}, v{vr_}")
    a(f"v_mul_u32_u24 v{vg_}, {RS_A2}, v{VT+3}"); a(f"v_add_u32 v{vg_}, v{vg_}, v{VT+4}")
    a(f"s_lshl_b32 s{T0}, s{sM}, 8"); a(f"s_lshl_b32 s{T1}, s{sWq}, 6"); a(f"s_add_u32 s{T0}, s{T0}, s{T1}")
    a(f"s_lshl_b32 s{T1}, s{sWp}, 5"); a(f"s_add_u32 s{T0}, s{T0}, s{T1}")
    a(f"s_mul_i32 s{T0}, s{T0}, {RS_A2}"); a(f"s_mul_i32 s{T1}, s{sN}, 448"); a(f"s_add_u32 s{T0}, s{T0}, s{T1}")
    a(f"s_add_u32 s{T0}, s{T0}, {WS_A2 + 4096}")
    for j in range(mq):
        for i in range(mp):
            c = acc + 4 * (i * mq + j)
            for r in range(4): a(f"v_mul_f32_e64 v{c+r}, v{c+r}, |v{c+r}|")
            a(f"v_cvt_pk_bf16_f32 v{c}, v{c}, v{c+1}"); a(f"v_cvt_pk_bf16_f32 v{c+1}, v{c+2}, v{c+3}")
            a(f"v_pk_max_i16 v{c}, v{c}, 0"); a(f"v_pk_max_i16 v{c+1}, v{c+1}, 0")
    a("s_barrier")
    stamp(a, 2, st="dense")
    for j in range(mq):
        for i in range(mp):
            c = acc + 4 * (i * mq + j)
            a(f"ds_write_b64 v{vw}, {vr(c,2)} offset:{j*16*PITCH + 32*i}")
    a("s_waitcnt lgkmcnt(0)")
    stamp(a, 3, st="dense")
    a("s_barrier")
    stamp(a, 4, st="dense")
    a("s_mov_b32 exec_hi, 0x00ffffff")
    rb = acc
    for n in range(16):
        a(f"ds_read_b128 {vr(rb+4*n,4)}, v{vr_} offset:{2*n*PITCH}")
    for n in range(16):
        a(f"s_waitcnt lgkmcnt({15-n})")
        a(f"buffer_store_dwordx4 {vr(rb+4*n,4)}, v{vg_}, s[{SWS}:{SWS+3}], s{T0} offen{C.wt}")
        a(f"s_add_u32 s{T0}, s{T0}, {2*RS_A2}")
    a("s_mov_b64 exec, -1")
    stamp(a, 5, st="dense")
    return V.hi, max(LDS1, 4 * 64 * PITCH)

def phase1_ssm(a):
    V = Regs(10)
    mp, mq = 4, 4
    Pop = OpKC(a, V, 256, 0, mp); Pop.groups = [[0, 1, 2, 3]]
    Qop = OpKC(a, V, 128, Pop.bytes, mq); Qop.groups = [[0], [1]]; Qop.ldsoffs = [0, 8192]
    Qop.frag_off = lambda j: ((j & 1) * 4 + (j >> 1)) * 2048
    SB = Pop.bytes + Qop.bytes; NB = 3
    G = Gemm(a, V, NB, NB, Pop.bytes, Qop.bytes, mp, mq, (sBufD, sBufR, None, None, sCnt, sRole), True, 'P', 's1')
    acc = V.get(64, 2); prm = V.get(12, 4); big = V.get(72, 4)
    AG = NB * SB
    a(f"s_lshr_b32 s{sWp}, s{sWave}, 1"); a(f"s_and_b32 s{sWq}, s{sWave}, 1")
    Pop.lane_chunk(VT, VT + 1)
    a(f"v_lshrrev_b32 v{VT+1}, 5, v0"); a(f"v_lshlrev_b32 v{VT+1}, 4, v{VT+1}")
    a(f"v_bfe_u32 v{VT+2}, v0, 3, 2"); a(f"v_add_u32 v{VT+1}, v{VT+1}, v{VT+2}")
    a(f"v_lshl_add_u32 v{VT+3}, v{VT+1}, 11, v{VT}")
    for j in range(4):
        a(f"s_lshl_b32 s{T0}, s{sWave}, 1");
        if j >> 1: a(f"s_add_u32 s{T0}, s{T0}, 1")
        a(f"s_and_b32 s{T0}, s{T0}, 3"); a(f"s_lshl_b32 s{T0}, s{T0}, 2")
        a(f"s_lshl_b32 s{T1}, s{sWp}, 6"); a(f"s_add_u32 s{T0}, s{T0}, s{T1}")
        a(f"s_lshl_b32 s{T1}, s{sM}, 8"); a(f"s_add_u32 s{T0}, s{T0}, s{T1}")
        if j & 1: a(f"s_add_u32 s{T0}, s{T0}, 32")
        a(f"s_lshl_b32 s{T0}, s{T0}, 11")
        if j: a(f"s_sub_u32 s{T0}, s{T0}, {j*1024}")
        Pop.set_voff(j, VT + 3, T0, bool(j & 1))
    a(f"v_lshrrev_b32 v{VT+1}, 3, v0"); a(f"v_lshl_add_u32 v{VT+3}, v{VT+1}, 12, v{VT}")
    a(f"s_lshr_b32 s{T0}, s{sWave}, 2"); a(f"s_lshl_b32 s{T0}, s{T0}, 5")
    a(f"s_and_b32 s{T1}, s{sWave}, 1"); a(f"s_lshl_b32 s{T2}, s{T1}, 6"); a(f"s_lshl_b32 s{T1}, s{T1}, 4"); a(f"s_add_u32 s{T0}, s{T0}, s{T1}")
    a(f"s_bfe_u32 s{T1}, s{sWave}, 0x10001"); a(f"s_add_u32 s{T0}, s{T0}, s{T1}")
    a(f"s_lshl_b32 s{T1}, s{sN}, 6"); a(f"s_add_u32 s{T0}, s{T0}, s{T1}"); a(f"s_lshl_b32 s{T0}, s{T0}, 11")
    Qop.set_voff(0, VT + 3, T0, T2)
    a(f"v_mov_b32 v{Qop.vd+1}, v{Qop.vd}")
    a(f"s_lshl_b32 s{sLdsP}, s{sWave}, 12")
    a(f"s_lshl_b32 s{sLdsQ}, s{sWave}, 10"); a(f"s_add_u32 s{sLdsQ}, s{sLdsQ}, {Qop.lds_off}")
    a(f"s_lshl_b32 s{sKQ}, s{sRot}, 7")
    a("s_waitcnt lgkmcnt(0)")
    srd(a, SX, PTR["x"], L * D * 2); srd(a, SWS, PTR["ws"], WS_SIZE); srd(a, SDBG, PTR["dbg"], 256)
    srd(a, SA, PTR["bre"], P_ * D * 2); srd(a, SB_, PTR["bim"], P_ * D * 2)
    pt = [big, big + 8, big + 16]
    kadv = [f"s_add_u32 s{sKQ}, s{sKQ}, 128", f"s_and_b32 s{sKQ}, s{sKQ}, 2047"]
    kadvP = [f"s_add_u32 s{sKP}, s{sKP}, 128", f"s_and_b32 s{sKP}, s{sKP}, 2047"]
    a(f"s_mov_b32 s{sKP}, s{sKQ}")
    seg = Seg(Pop, Qop, acc, lambda b: Pop.dma(b, sKP, sTmp, sLdsP, [SX] * 4), lambda b: Qop.dma(b, sKQ, sTmp, sLdsQ, [SA, SB_]), kadvP, kadv, "s1")
    if C.prefetch:
        SP1, SP2, sPF1, sPF2 = SS, 72, sLdsP2, sKP2
        a(f"s_lshl_b32 s{T0}, s{sM}, 4"); a(f"s_add_u32 s{T0}, s{T0}, s{sN}")
        a(f"s_mul_i32 s{sPF2}, s{T0}, {56*1024}"); a(f"s_mul_i32 s{T1}, s{sWave}, {7*1024}"); a(f"s_add_u32 s{sPF2}, s{sPF2}, s{T1}")
        a(f"s_mov_b32 s{SP2}, s{PTR['w2']}"); a(f"s_mov_b32 s{SP2+1}, s{PTR['w2']+1}")
        a(f"s_add_u32 s{SP2+2}, s{sPF2}, {7*1024}"); a(f"s_mov_b32 s{SP2+3}, 0x20000")
        a(f"s_lshr_b32 s{T1}, s{T0}, 6"); a(f"s_cmp_eq_u32 s{T1}, 0")
        a(f"s_cselect_b32 s{SP1}, s{PTR['cre']}, s{PTR['cim']}"); a(f"s_cselect_b32 s{SP1+1}, s{PTR['cre']+1}, s{PTR['cim']+1}")
        a(f"s_and_b32 s{sPF1}, s{T0}, 63"); a(f"s_lshl_b32 s{sPF1}, s{sPF1}, 15"); a(f"s_lshl_b32 s{T1}, s{sWave}, 12"); a(f"s_add_u32 s{sPF1}, s{sPF1}, s{T1}")
        a(f"s_add_u32 s{SP1+2}, s{sPF1}, 4096"); a(f"s_mov_b32 s{SP1+3}, 0x20000")
        vpf = V.get(1); vpd = V.get(4, 2)
        a(f"v_lshlrev_b32 v{vpf}, 4, v0")
        pf = []
        for i in range(4): pf.append([f"buffer_load_dwordx4 {vr(vpd,4)}, v{vpf}, s[{SP1}:{SP1+3}], s{sPF1} offen offset:{i*1024}"])
        for i in range(7):
            pf.append([f"buffer_load_dwordx4 {vr(vpd,4)}, v{vpf}, s[{SP2}:{SP2+3}], s{sPF2} offen offset:{(i%4)*1024}"] + ([f"s_add_u32 s{sPF2}, s{sPF2}, 4096"] if i == 3 else []))
        p1extras = {C.pfit: (pf, 11)}
    else:
        p1extras = {}
    stages = [seg] * 16
    G.prologue(stages, "PQ", 0, 1)
    a(f"s_mul_i32 s{T0}, s{sWp}, {mp}"); Pop.setup_read(T0, VT, U0)
    a(f"s_lshl_b32 s{T0}, s{sWq}, 1"); Qop.setup_read(T0, VT, U0)
    G.zero_first = True
    if C.pbar: a("s_barrier")
    if C.tlb: tlb_warm(a, 250, VT + 5, ["ws", "w2", "cre", "cim", "out", "dbg", "dsk", "b2", "lre", "lim", "ldt", "gw"], 60); G.note('tlb', 1)
    G.prologue(stages, "PQ", 1)
    SPRM = 60
    def prm_loads():
        out = []
        class Cap:
            def __call__(self, x): out.append([x])
        c = Cap()
        c(f"s_lshl_b32 s{T2}, s{sN}, 6"); c(f"s_lshl_b32 s{T3}, s{sWq}, 5"); c(f"s_add_u32 s{T3}, s{T3}, s{T2}")
        c(f"v_and_b32 v{VT}, 15, v0"); c(f"v_lshlrev_b32 v{VT}, 1, v{VT}"); c(f"v_add_u32 v{VT}, s{T3}, v{VT}")
        c(f"v_lshlrev_b32 v{pt[0]}, 1, v{VT}"); c(f"v_add_u32 v{pt[1]}, 2, v{pt[0]}")
        c(f"v_add_u32 v{pt[2]}, s{T2}, v0"); c(f"v_lshlrev_b32 v{pt[2]}, 1, v{pt[2]}")
        c(f"s_mov_b32 s{SPRM+2}, 2048"); c(f"s_mov_b32 s{SPRM+3}, 0x20000")
        for k, name in enumerate(("lre", "lim", "ldt")):
            out.append([f"s_mov_b32 s{SPRM}, s{PTR[name]}", f"s_mov_b32 s{SPRM+1}, s{PTR[name]+1}"] +
                       [f"buffer_load_ushort v{pt[q]+1+k}, v{pt[q]}, s[{SPRM}:{SPRM+3}], 0 offen" for q in range(3)])
        return out
    def prm_math():
        out = []
        class Cap:
            def __call__(self, x): out.append(x)
        c = Cap()
        ssm_params_compute(c, prm, pt[0]); ssm_params_compute(c, prm + 4, pt[1]); ssm_params_compute(c, prm + 8, pt[2], False)
        return [out[i:i + 4] for i in range(0, len(out), 4)]
    p1extras[3] = (prm_loads(), 9)
    p1extras[7] = (prm_math(), 0)
    stamp(a, 1)
    p1extras[C.initit] = mb_zero_groups(VT + 2, True)
    G.run(stages, {C.initit + 3: (lambda: init_signal(a, VT + 4))}, p1extras)
    stamp(a, 2)
    stamp(a, 1, st="clk"); stamp(a, 2, real=True, st="clk")
    stamp(a, 1, st="ssm")
    init_load(a)
    a("s_nop 7")
    def U(jc, ri, s): return acc + 4 * ((s >> 2) * 4 + 2 * jc + ri) + (s & 3)
    ag = big; tt = big + 4
    def scan_step(s):
        for jc in range(2):
            hr, hi_ = ag + 2 * jc, ag + 2 * jc + 1; lr = prm + 4 * jc; t0, t1 = tt + 2 * jc, tt + 2 * jc + 1
            a(f"v_fma_f32 v{t0}, v{lr}, v{hr}, v{U(jc,0,s)}"); a(f"v_fma_f32 v{t1}, v{lr}, v{hi_}, v{U(jc,1,s)}")
        for jc in range(2):
            hr, hi_ = ag + 2 * jc, ag + 2 * jc + 1; li = prm + 4 * jc + 1; t0, t1 = tt + 2 * jc, tt + 2 * jc + 1
            a(f"v_fma_f32 v{hi_}, v{li}, -v{hi_}, v{t0}")
            a(f"v_fma_f32 v{t1}, v{li}, v{hr}, v{t1}")
        for jc in range(2):
            hr, hi_ = ag + 2 * jc, ag + 2 * jc + 1; t1 = tt + 2 * jc + 1
            a(f"v_mov_b32 v{hr}, v{hi_}"); a(f"v_mov_b32 v{hi_}, v{t1}")
    for jc in range(2):
        a(f"v_mov_b32 v{ag+2*jc}, v{U(jc,0,0)}"); a(f"v_mov_b32 v{ag+2*jc+1}, v{U(jc,1,0)}")
    def scan2(s, src, dst):
        for jc in range(2):
            hr, hi_ = src + 2 * jc, src + 2 * jc + 1; lr = prm + 4 * jc; dr, di = dst + 2 * jc, dst + 2 * jc + 1
            a(f"v_fma_f32 v{dr}, v{lr}, v{hr}, v{U(jc,0,s)}"); a(f"v_fma_f32 v{di}, v{lr}, v{hi_}, v{U(jc,1,s)}")
        for jc in range(2):
            hr, hi_ = src + 2 * jc, src + 2 * jc + 1; li = prm + 4 * jc + 1; dr, di = dst + 2 * jc, dst + 2 * jc + 1
            a(f"v_fma_f32 v{dr}, -v{li}, v{hi_}, v{dr}"); a(f"v_fma_f32 v{di}, v{li}, v{hr}, v{di}")
    st = [ag, tt]
    for s in range(1, 16): scan2(s, st[(s - 1) & 1], st[s & 1])
    fin = st[15 & 1]
    vag = big + 8
    def calc_vag():
        a(f"v_lshrrev_b32 v{vag}, 4, v0"); a(f"s_lshl_b32 s{T0}, s{sWp}, 2"); a(f"v_add_u32 v{vag}, s{T0}, v{vag}")
        a(f"v_lshlrev_b32 v{vag}, 9, v{vag}")
        a(f"v_and_b32 v{big+9}, 15, v0"); a(f"v_lshlrev_b32 v{big+9}, 4, v{big+9}")
        a(f"s_lshl_b32 s{T0}, s{sWq}, 8"); a(f"s_add_u32 s{T0}, s{T0}, {AG}")
        a(f"v_add3_u32 v{vag}, v{vag}, v{big+9}, s{T0}")
    calc_vag()
    a(f"ds_write_b128 v{vag}, {vr(fin,4)}")
    a("s_waitcnt lgkmcnt(0)")
    a("s_barrier")
    stamp(a, 2, st="ssm")
    a(f"s_cmp_lg_u32 s{sWave}, 0")
    a("s_cbranch_scc1 L_s_gate")
    lr, li = prm + 8, prm + 9
    l16r, l16i, l256r, l256i = big + 10, big + 11, big + 12, big + 13
    er, ei = big + 14, big + 15
    w0 = big + 4
    A = big + 16; vl = big + 9
    a(f"v_lshlrev_b32 v{vl}, 3, v0"); a(f"v_add_u32 v{vl}, {AG}, v{vl}")
    for s in range(16): a(f"ds_read_b64 {vr(A+2*s,2)}, v{vl} offset:{s*512}")
    csq(a, l16r, l16i, lr, li, w0)
    for _ in range(3): csq(a, l16r, l16i, l16r, l16i, w0)
    csq(a, l256r, l256i, l16r, l16i, w0)
    for _ in range(3): csq(a, l256r, l256i, l256r, l256i, w0)
    a("s_waitcnt lgkmcnt(0)")
    x0, x1 = big + 6, big + 7
    for s in range(1, 16):
        pr, pi, cr_, ci_ = A + 2 * (s - 1), A + 2 * (s - 1) + 1, A + 2 * s, A + 2 * s + 1
        a(f"v_fma_f32 v{cr_}, v{l16r}, v{pr}, v{cr_}"); a(f"v_fma_f32 v{ci_}, v{l16r}, v{pi}, v{ci_}")
        a(f"v_fma_f32 v{cr_}, -v{l16i}, v{pi}, v{cr_}"); a(f"v_fma_f32 v{ci_}, v{l16i}, v{pr}, v{ci_}")
    er, ei = A + 30, A + 31
    vo = big + 8
    a(f"s_lshl_b32 s{T0}, s{sN}, 6"); a(f"v_add_u32 v{vo}, s{T0}, v0"); a(f"v_lshlrev_b32 v{vo}, 3, v{vo}")
    a(f"s_lshl_b32 s{T1}, s{sM}, 13"); a(f"s_add_u32 s{T1}, s{T1}, {WS_AGG}")
    a("s_waitcnt vmcnt(0)")
    init_check(a, big + 52)
    a(f"s_lshl_b32 s{T1}, s{sM}, 13"); a(f"s_add_u32 s{T1}, s{T1}, {WS_AGG}")
    a(f"buffer_store_dwordx2 {vr(er,2)}, v{vo}, s[{SWS}:{SWS+3}], s{T1} offen sc1")
    stamp(a, 3, st="ssm")
    cr, ci = big + 48, big + 49
    a(f"v_mov_b32 v{cr}, 0"); a(f"v_mov_b32 v{ci}, 0")
    a(f"s_cmp_eq_u32 s{sM}, 0"); a("s_cbranch_scc1 L_s_nolb")
    B = big + 50
    a(f"s_mov_b32 s{U2}, {C.spin}")
    a.label("L_s_lb")
    for j in range(7):
        if j: a(f"s_cmp_le_u32 s{sM}, {j}"); a("s_cbranch_scc1 L_s_lbw")
        a(f"s_mov_b32 s{T1}, {WS_AGG + j*8192}")
        a(f"buffer_load_dwordx2 {vr(B+2*j,2)}, v{vo}, s[{SWS}:{SWS+3}], s{T1} offen sc1")
    a.label("L_s_lbw")
    a("s_waitcnt vmcnt(0)")
    a(f"s_mov_b64 s[{U0}:{U1}], 0")
    for j in range(7):
        if j: a(f"s_cmp_le_u32 s{sM}, {j}"); a("s_cbranch_scc1 L_s_lbc")
        a(f"v_cmp_eq_u32 vcc, -1, v{B+2*j}"); a("s_nop 0"); a(f"s_or_b64 s[{U0}:{U1}], s[{U0}:{U1}], vcc")
        a(f"v_cmp_eq_u32 vcc, -1, v{B+2*j+1}"); a("s_nop 0"); a(f"s_or_b64 s[{U0}:{U1}], s[{U0}:{U1}], vcc")
    a.label("L_s_lbc")
    a(f"s_cmp_eq_u64 s[{U0}:{U1}], 0"); a("s_cbranch_scc1 L_s_lbok")
    a(f"s_sub_u32 s{U2}, s{U2}, 1"); a(f"s_cmp_eq_u32 s{U2}, 0"); a("s_cbranch_scc1 L_s_lbok")
    a(f"s_sleep {C.sleep}"); a("s_branch L_s_lb")
    a.label("L_s_lbok")
    for j in range(7):
        a(f"s_cmp_le_u32 s{sM}, {j}"); a("s_cbranch_scc1 L_s_nolb")
        a(f"v_fma_f32 v{x0}, v{l256r}, v{cr}, v{B+2*j}"); a(f"v_fma_f32 v{x1}, v{l256r}, v{ci}, v{B+2*j+1}")
        a(f"v_fma_f32 v{x0}, -v{l256i}, v{ci}, v{x0}"); a(f"v_fma_f32 v{ci}, v{l256i}, v{cr}, v{x1}")
        a(f"v_mov_b32 v{cr}, v{x0}")
    a.label("L_s_nolb")
    stamp(a, 4, st="ssm")
    a(f"ds_write_b64 v{vl}, {vr(cr,2)}")
    for s in range(1, 16):
        a(f"v_mul_f32 v{x0}, v{l16r}, v{cr}"); a(f"v_mul_f32 v{x1}, v{l16r}, v{ci}")
        a(f"v_fma_f32 v{x0}, -v{l16i}, v{ci}, v{x0}"); a(f"v_fma_f32 v{ci}, v{l16i}, v{cr}, v{x1}")
        a(f"v_mov_b32 v{cr}, v{x0}")
        a(f"v_add_f32 v{A+2*(s-1)}, v{A+2*(s-1)}, v{cr}"); a(f"v_add_f32 v{A+2*(s-1)+1}, v{A+2*(s-1)+1}, v{ci}")
        a(f"ds_write_b64 v{vl}, {vr(A+2*(s-1),2)} offset:{s*512}")
    a("s_waitcnt lgkmcnt(0)")
    a("s_branch L_s_wait")
    a.label("L_s_gate")
    gxs = [big + 16, big + 24, big + 32]; gws = big + 40; gt = big + 48
    a(f"s_lshl_b32 s{T0}, s{sM}, 8"); a(f"s_lshl_b32 s{T1}, s{sN}, 4"); a(f"s_add_u32 s{T0}, s{T0}, s{T1}")
    a(f"s_add_u32 s{T0}, s{T0}, s{sWave}"); a(f"s_sub_u32 s{T0}, s{T0}, 1")
    a(f"s_add_u32 s{T1}, s{T0}, 7"); a(f"s_add_u32 s{T2}, s{T0}, 14")
    a(f"v_lshlrev_b32 v{gt}, 5, v0")
    srd(a, SS, PTR["gw"], 2048)
    a(f"buffer_load_dwordx4 {vr(gws,4)}, v{gt}, s[{SS}:{SS+3}], 0 offen"); a(f"buffer_load_dwordx4 {vr(gws+4,4)}, v{gt}, s[{SS}:{SS+3}], 0 offen offset:16")
    gate_row_loads(a, T0, gxs[0], gt); gate_row_loads(a, T1, gxs[1], gt)
    a(f"s_cmp_gt_u32 s{sWave}, 2"); a("s_cbranch_scc1 L_s_g2")
    gate_row_loads(a, T2, gxs[2], gt)
    a("s_waitcnt vmcnt(0)")
    gate_compute(a, T2, gxs[2], gws, gt + 1)
    a.label("L_s_g2")
    a("s_waitcnt vmcnt(0)")
    gate_compute(a, T0, gxs[0], gws, gt + 1); gate_compute(a, T1, gxs[1], gws, gt + 1)
    a.label("L_s_wait")
    a("s_barrier")
    calc_vag()
    a(f"ds_read_b128 {vr(ag,4)}, v{vag}")
    PITCH = 272
    vw = big + 9
    a(f"v_lshrrev_b32 v{vw}, 4, v0"); a(f"v_lshlrev_b32 v{vw}, 4, v{vw}"); a(f"s_lshl_b32 s{T0}, s{sWp}, 6"); a(f"v_add_u32 v{vw}, s{T0}, v{vw}")
    a(f"v_mul_u32_u24 v{vw}, {PITCH}, v{vw}")
    a(f"v_and_b32 v{big+10}, 15, v0"); a(f"v_lshl_add_u32 v{vw}, v{big+10}, 2, v{vw}")
    a(f"s_lshl_b32 s{T0}, s{sWq}, 6"); a(f"v_add_u32 v{vw}, s{T0}, v{vw}")
    a("s_waitcnt lgkmcnt(0)")
    ore, oim, od = big + 12, big + 14, big + 16
    st = [ag, tt]
    for s in range(16):
        scan2(s, st[s & 1], st[(s + 1) & 1])
        h = st[(s + 1) & 1]
        for jc in range(2):
            hr, hi_ = h + 2 * jc, h + 2 * jc + 1; kr, ki = prm + 4 * jc + 2, prm + 4 * jc + 3
            a(f"v_mul_f32 v{ore+jc}, v{kr}, v{hr}"); a(f"v_mul_f32 v{oim+jc}, -v{kr}, v{hi_}")
        for jc in range(2):
            hr, hi_ = h + 2 * jc, h + 2 * jc + 1; kr, ki = prm + 4 * jc + 2, prm + 4 * jc + 3
            a(f"v_fma_f32 v{ore+jc}, -v{ki}, v{hi_}, v{ore+jc}"); a(f"v_fma_f32 v{oim+jc}, -v{ki}, v{hr}, v{oim+jc}")
        d = od + 2 * (s % 4)
        a(f"v_cvt_pk_bf16_f32 v{d}, v{ore}, v{ore+1}"); a(f"v_cvt_pk_bf16_f32 v{d+1}, v{oim}, v{oim+1}")
        a(f"ds_write_b32 v{vw}, v{d} offset:{s*PITCH}"); a(f"ds_write_b32 v{vw}, v{d+1} offset:{s*PITCH+128}")
    stamp(a, 5, st="ssm")
    vr_, vg_ = big + 10, big + 11
    a(f"v_lshrrev_b32 v{vr_}, 4, v0"); a(f"s_lshl_b32 s{T0}, s{sWave}, 5"); a(f"v_add_u32 v{vr_}, s{T0}, v{vr_}")
    a(f"s_lshl_b32 s{T1}, s{sM}, 8"); a(f"v_add_u32 v{vg_}, s{T1}, v{vr_}"); a(f"v_mul_u32_u24 v{vg_}, {RS_A2}, v{vg_}")
    a(f"v_mul_u32_u24 v{vr_}, {PITCH}, v{vr_}")
    a(f"v_and_b32 v{big+12}, 15, v0"); a(f"v_lshl_add_u32 v{vr_}, v{big+12}, 4, v{vr_}")
    a(f"v_and_b32 v{big+13}, 7, v0"); a(f"v_lshl_add_u32 v{vg_}, v{big+13}, 4, v{vg_}")
    a(f"v_bfe_u32 v{big+13}, v0, 3, 1"); a(f"v_lshl_add_u32 v{vg_}, v{big+13}, 11, v{vg_}")
    a(f"s_lshl_b32 s{T0}, s{sN}, 7"); a(f"s_add_u32 s{T0}, s{T0}, {WS_A2}")
    a("s_waitcnt lgkmcnt(0)")
    a("s_barrier")
    rb = acc
    for n in range(8): a(f"ds_read_b128 {vr(rb+4*n,4)}, v{vr_} offset:{4*n*PITCH}")
    for n in range(8):
        a(f"s_waitcnt lgkmcnt({7-n})")
        a(f"buffer_store_dwordx4 {vr(rb+4*n,4)}, v{vg_}, s[{SWS}:{SWS+3}], s{T0} offen{C.wt}")
        a(f"s_add_u32 s{T0}, s{T0}, {4*RS_A2}")
    stamp(a, 6, st="ssm")
    return V.hi, AG + 8192

def phase2(a, role):
    R = "A" if role == 0 else "B"
    SW2, SE = 24, 72
    NS = C.ns
    TQ = 128 if NS == 2 else 256
    TP, mp, mq, NB = 128, 4, NS, (4 if NS == 2 else 3)
    LG = 1 if NS == 2 else 2
    XS = 8 // NS
    sG, sKQ2 = 0, 3
    V = Regs(10)
    P1 = OpKC(a, V, TP, 0, mp); P1.groups = [[0, 1]]
    P2 = OpNC(a, V, TP, 0, mp, D * 2)
    Qop = OpKC(a, V, TQ, TP * 128, mq, flags=C.a2ld); Qop.groups = [list(range(Qop.n))]
    SB = TP * 128 + Qop.bytes
    G = Gemm(a, V, NB, NB, TP * 128, Qop.bytes, mp, mq, (sBufD, sBufR, None, None, sCnt, sRole), True, 'P' if NS == 2 else 'Q', 'p2')
    nf = mp * mq
    accD = V.get(4 * nf, 2)
    accS = V.get(4 * nf, 2)
    vg = V.get(2 * mq, 2); vep = V.get(4)
    vex = V.get(6 * mp, 2) if NS == 2 else G.F[0][0] + (32 if C.xbf16 else 0)
    if NS != 2 and not C.xbf16: vex = accS
    dense = 1 if role == 1 else 0
    a(f"s_and_b32 s{T0}, s2, 7"); a(f"s_lshr_b32 s{T1}, s2, 3")
    a(f"s_lshr_b32 s{sG}, s{T0}, {3-LG}")
    a(f"s_and_b32 s{T2}, s{T0}, {XS-1}"); a(f"s_lshl_b32 s{sTt}, s{T2}, 2"); a(f"s_bfe_u32 s{T2}, s{T1}, 0x20002"); a(f"s_add_u32 s{sTt}, s{sTt}, s{T2}")
    a(f"s_and_b32 s{T2}, s{sG}, 1")
    if dense: a(f"s_xor_b32 s{T2}, s{T2}, 1")
    a(f"s_lshl_b32 s{sDt}, s{T2}, 2"); a(f"s_and_b32 s{T2}, s{T1}, 3"); a(f"s_add_u32 s{sDt}, s{sDt}, s{T2}")
    a(f"s_lshl_b32 s{sTile}, s{sTt}, 3"); a(f"s_add_u32 s{sTile}, s{sTile}, s{sDt}")
    a(f"s_lshr_b32 s{sWp}, s{sWave}, 2"); a(f"s_and_b32 s{sWq}, s{sWave}, 3")
    srd(a, SW2, PTR["w2"], F * D * 2)
    a(f"s_lshr_b32 s{T0}, s{sG}, {LG-1}"); a(f"s_cmp_eq_u32 s{T0}, 0")
    a(f"s_cselect_b32 s{SA}, s{PTR['cre']}, s{PTR['cim']}"); a(f"s_cselect_b32 s{SA+1}, s{PTR['cre']+1}, s{PTR['cim']+1}")
    a(f"s_mov_b32 s{SA+2}, {D*P_*2}"); a(f"s_mov_b32 s{SA+3}, 0x20000")
    Qop.lane_chunk(VT, VT + 1)
    a(f"v_lshrrev_b32 v{VT+1}, 3, v0"); a(f"v_lshl_add_u32 v{VT+3}, v{VT+1}, 11, v{VT}")
    for j in range(2):
        a(f"s_lshl_b32 s{T0}, s{sDt}, 7"); a(f"s_lshl_b32 s{T1}, s{sWave}, 4"); a(f"s_add_u32 s{T0}, s{T0}, s{T1}")
        if j: a(f"s_add_u32 s{T0}, s{T0}, 8")
        a(f"s_lshl_b32 s{T0}, s{T0}, 11")
        if j: a(f"s_sub_u32 s{T0}, s{T0}, 1024")
        P1.set_voff(j, VT + 3, T0, bool(j & 1))
    a(f"s_lshl_b32 s{sLdsP}, s{sWave}, 11")
    a(f"s_lshl_b32 s{T0}, s{sDt}, 8")
    P2.setup_dma(sWave, VT + 4, T0, U0)
    P2.setup_lds(sWave, sLdsP2, U0)
    a(f"v_lshrrev_b32 v{VT+1}, 3, v0"); a(f"v_mul_u32_u24 v{VT+1}, {RS_A2}, v{VT+1}"); a(f"v_add_u32 v{VT+3}, v{VT+1}, v{VT}")
    for j in range(Qop.n):
        a(f"s_mul_i32 s{T0}, s{sWave}, {TQ//8}")
        if j: a(f"s_add_u32 s{T0}, s{T0}, {8*j}")
        a(f"s_lshr_b32 s{T1}, s{T0}, 4"); a(f"s_add_u32 s{T1}, s{T1}, s{sG}"); a(f"s_and_b32 s{T1}, s{T1}, {NS-1}"); a(f"s_lshl_b32 s{T1}, s{T1}, 4")
        a(f"s_andn2_b32 s{T0}, s{T0}, {(NS-1) << 4}"); a(f"s_or_b32 s{T0}, s{T0}, s{T1}")
        a(f"s_mul_i32 s{T1}, s{sTt}, {TQ}"); a(f"s_add_u32 s{T0}, s{T0}, s{T1}"); a(f"s_mul_i32 s{T0}, s{T0}, {RS_A2}")
        if j: a(f"s_sub_u32 s{T0}, s{T0}, {1024*j}")
        Qop.set_voff(j, VT + 3, T0, bool(j & 1))
    a(f"s_mul_i32 s{sLdsQ}, s{sWave}, {Qop.n*1024}"); a(f"s_add_u32 s{sLdsQ}, s{sLdsQ}, {Qop.lds_off}")
    nS = 32 // NS; base = 56 // NS
    nD = base + (C.delta if role == 0 else -C.delta)
    colsS = 2048 // NS
    a(f"s_mul_i32 s{sKQ}, s{sG}, {colsS*2}"); a(f"s_and_b32 s{sKP}, s{sKQ}, 2047")
    if WS_A2: a(f"s_add_u32 s{sKQ}, s{sKQ}, {WS_A2}")
    a(f"s_lshr_b32 s{T0}, s{sG}, 1"); a(f"s_mul_i32 s{T0}, s{T0}, {2*base}")
    a(f"s_and_b32 s{T1}, s{sG}, 1"); a(f"s_mul_i32 s{T1}, s{T1}, {2*base - nD}"); a(f"s_add_u32 s{T0}, s{T0}, s{T1}")
    a(f"s_mul_i32 s{sKP2}, s{T0}, {64*D*2}"); a(f"s_lshl_b32 s{sKQ2}, s{T0}, 7"); a(f"s_add_u32 s{sKQ2}, s{sKQ2}, {WS_A2 + 4096}")
    a(f"s_mul_i32 s{T0}, s{sWp}, {mp}")
    P1.setup_read(T0, VT, U0); P2.setup_read(T0, VT, U0)
    a(f"s_mul_i32 s{T0}, s{sWq}, {mq}"); Qop.setup_read(T0, VT, U0)
    qd = lambda b: Qop.dma(b, sKQ, sTmp, sLdsQ, [SWS] * Qop.n)
    qd2 = lambda b: Qop.dma(b, sKQ2, sTmp, sLdsQ, [SWS] * Qop.n)
    segD = Seg(P2, Qop, accD, lambda b: P2.dma(b, sKP2, sTmp, sLdsP2, SW2), qd2, [f"s_add_u32 s{sKP2}, s{sKP2}, {64*D*2}"], [f"s_add_u32 s{sKQ2}, s{sKQ2}, 128"], "d")
    segS = Seg(P1, Qop, accS, lambda b: P1.dma(b, sKP, sTmp, sLdsP, [SA] * 2), qd, [f"s_add_u32 s{sKP}, s{sKP}, 128"], [f"s_add_u32 s{sKQ}, s{sKQ}, 128"], "s")
    stages = [segS] * nS + [segD] * nD
    N = len(stages)
    a("s_barrier")
    G.prologue(stages, "P")
    nP0 = 2 * G.leadP
    G.zero_first = True
    post_first = None
    def chkS(ok):
        if NS == 2:
            a(f"s_add_u32 s{U0}, s{U0}, s{U1}"); a(f"s_cmp_eq_u32 s{U0}, 16"); a(f"s_cbranch_scc1 {ok}")
        else:
            a(f"s_bitcmp1_b32 s{sG}, 0"); a(f"s_cselect_b32 s{U0}, s{U1}, s{U0}"); a(f"s_cmp_eq_u32 s{U0}, 8"); a(f"s_cbranch_scc1 {ok}")
    if role == 0:
        a(f"s_waitcnt vmcnt({nP0})")
        a("s_barrier")
        stamp(a, 3)
        a(f"s_cmp_eq_u32 s{sWave}, 1"); a(f"s_cbranch_scc1 L_p2{R}_pl")
        a(f"s_cmp_lg_u32 s{sWave}, 0"); a(f"s_cbranch_scc1 L_p2{R}_dep")
        signal_cnt(a, "S", VT)
        a(f"s_branch L_p2{R}_dep")
        a.label(f"L_p2{R}_pl")
        poll_own(a, chkS, VT)
    else:
        stamp(a, 3)
        stamp(a, 6, st="dense")
        a(f"s_cmp_lg_u32 s{sWave}, 0"); a(f"s_cbranch_scc1 L_p2{R}_dep")
        poll_own(a, chkS, VT)
        def post_first():
            sk = newlabel("pf")
            a(f"s_cmp_lg_u32 s{sWave}, 0"); a(f"s_cbranch_scc1 {sk}")
            init_check(a, VT)
            signal_cnt(a, 2, VT)
            a.label(sk)
    a.label(f"L_p2{R}_dep")
    a("s_barrier")
    G.prologue(stages, "Q")
    hooks = {}
    def hookD():
        sk = newlabel("hk")
        stamp(a, 2, st="p2")
        a(f"s_cmp_lg_u32 s{sWave}, 0"); a(f"s_cbranch_scc1 {sk}")
        def chk(ok):
            a(f"s_add_u32 s{U0}, s{U0}, s{U1}"); a(f"s_add_u32 s{U0}, s{U0}, s{U3}"); a(f"s_cmp_eq_u32 s{U0}, 32"); a(f"s_cbranch_scc1 {ok}")
        poll_own(a, chk, VT)
        a.label(sk)
        stamp(a, 3, st="p2")
    hooks[nS - G.leadQ - (1 if G.early == 'Q' else 0)] = hookD
    sXD = 44
    vt_own, vxo, vd2, vl16 = vep, vep + 1, vep + 2, vep + 3
    vx_, vds, vb2 = vex, vex + 2 * mp, vex + 4 * mp
    ex = []
    ex.append([f"s_mul_i32 s{T0}, s{sTt}, {TQ}", f"s_mul_i32 s{T1}, s{sWq}, {16*mq}", f"s_add_u32 s{T0}, s{T0}, s{T1}",
               f"v_and_b32 v{vt_own}, 15, v0", f"v_add_u32 v{vt_own}, s{T0}, v{vt_own}", f"v_lshlrev_b32 v{vxo}, 3, v{vt_own}"])
    for j in range(mq):
        ex.append([f"s_add_u32 s{T0}, s{sG}, {j}", f"s_and_b32 s{T0}, s{T0}, {NS-1}", f"s_lshl_b32 s{T0}, s{T0}, 7", f"s_add_u32 s{T0}, s{T0}, {WS_G}",
                   f"buffer_load_dwordx2 {vr(vg+2*j,2)}, v{vxo}, s[{SWS}:{SWS+3}], s{T0} offen sc1"])
    ex.append([f"s_lshl_b32 s{T0}, s{sG}, 4", f"v_add_u32 v{vt_own}, s{T0}, v{vt_own}",
               f"v_lshrrev_b32 v{vd2}, 4, v0", f"v_lshlrev_b32 v{vd2}, 2, v{vd2}",
               f"s_lshl_b32 s{T0}, s{sDt}, 7", f"s_lshl_b32 s{T1}, s{sWp}, 6", f"s_add_u32 s{T0}, s{T0}, s{T1}",
               f"v_add_u32 v{vd2}, s{T0}, v{vd2}", f"v_lshlrev_b32 v{vd2}, 1, v{vd2}",
               f"v_lshl_add_u32 v{vxo}, v{vt_own}, 11, v{vd2}", f"v_lshlrev_b32 v{vl16}, 4, v0"])
    for j in range(1, mq):
        ex.append([f"s_add_u32 s{T1}, s{sG}, {j}", f"s_and_b32 s{T1}, s{T1}, {NS-1}",
                   f"s_mul_i32 s{T0}, s{T1}, {XS}", f"s_and_b32 s{T2}, s2, {XS-1}", f"s_add_u32 s{T0}, s{T0}, s{T2}",
                   f"s_lshr_b32 s{T2}, s{sDt}, 2", f"s_xor_b32 s{T2}, s{T2}, s{T1}", f"s_and_b32 s{T2}, s{T2}, 1", f"s_xor_b32 s{T2}, s{T2}, 1",
                   f"s_lshl_b32 s{T2}, s{T2}, 7", f"s_or_b32 s{T0}, s{T0}, s{T2}", f"s_and_b32 s{T2}, s2, 0x78", f"s_or_b32 s{T0}, s{T0}, s{T2}",
                   f"s_lshl_b32 s{T0}, s{T0}, 3", f"s_add_u32 s{T0}, s{T0}, s{sWave}", f"s_mul_i32 s{T0}, s{T0}, {4096*(NS-1)}",
                   f"s_add_u32 s{sXD+j-1}, s{T0}, {WS_XB + (NS - j - 1) * 4096}"])
    ex2 = []
    for i in range(mp):
        ex2.append([f"buffer_load_dwordx2 {vr(vx_+2*i,2)}, v{vxo}, s[{SX}:{SX+3}], 0 offen offset:{32*i}"])
    ex2.append([f"s_mov_b32 s{SE}, s{PTR['dsk']}", f"s_mov_b32 s{SE+1}, s{PTR['dsk']+1}", f"s_mov_b32 s{SE+2}, 2048", f"s_mov_b32 s{SE+3}, 0x20000"])
    for i in range(mp):
        ex2.append([f"buffer_load_dwordx2 {vr(vds+2*i,2)}, v{vd2}, s[{SE}:{SE+3}], 0 offen offset:{32*i}"])
    ex2.append([f"s_mov_b32 s{SE}, s{PTR['b2']}", f"s_mov_b32 s{SE+1}, s{PTR['b2']+1}"])
    for i in range(mp):
        ex2.append([f"buffer_load_dwordx2 {vr(vb2+2*i,2)}, v{vd2}, s[{SE}:{SE+3}], 0 offen offset:{32*i}"])
    if NS == 2: extras = {N - NB: (ex + ex2, mq + 3 * mp)}
    else: extras = {N - NB: (ex, mq)}
    stamp(a, 4)
    stamp(a, 1, st="p2")
    stamp(a, 3, st="clk"); stamp(a, 4, real=True, st="clk")
    G.run(stages, hooks, extras, post_first)
    stamp(a, 5)
    stamp(a, 4, st="p2")
    stamp(a, 5, st="clk"); stamp(a, 6, real=True, st="clk")
    stamp(a, 1, st="end")
    a("s_nop 7")
    a("s_waitcnt vmcnt(0)")
    def comb(i, j):
        c = 4 * (i * mq + j)
        for r in range(4):
            a(f"v_mul_f32 v{accD+c+r}, v{vg+2*j+1}, v{accD+c+r}"); a(f"v_fmac_f32 v{accD+c+r}, v{vg+2*j}, v{accS+c+r}")
    late_ex2 = (NS != 2 and not C.xbf16)
    if late_ex2:
        for j in list(range(1, mq)) + [0]:
            for i in range(mp): comb(i, j)
    nst = (2 if C.xbf16 else 4) * (mq - 1)
    for j in range(1, mq):
        if not late_ex2:
            for i in range(mp): comb(i, j)
        if C.xbf16:
            for i2 in range(0, mp, 2):
                c0, c1 = accD + 4 * (i2 * mq + j), accD + 4 * ((i2 + 1) * mq + j)
                a(f"v_cvt_pk_bf16_f32 v{c0}, v{c0}, v{c0+1}"); a(f"v_cvt_pk_bf16_f32 v{c0+1}, v{c0+2}, v{c0+3}")
                a(f"v_cvt_pk_bf16_f32 v{c0+2}, v{c1}, v{c1+1}"); a(f"v_cvt_pk_bf16_f32 v{c0+3}, v{c1+2}, v{c1+3}")
                a(f"buffer_store_dwordx4 {vr(c0,4)}, v{vl16}, s[{SWS}:{SWS+3}], s{sXD+j-1} offen offset:{(i2//2)*1024} sc1")
        else:
            a("s_nop 1")
            for i in range(mp):
                c = accD + 4 * (i * mq + j)
                a(f"buffer_store_dwordx4 {vr(c,4)}, v{vl16}, s[{SWS}:{SWS+3}], s{sXD+j-1} offen offset:{i*1024} sc1")
    stamp(a, 2, st="end")
    n_ex2 = 0
    if NS != 2:
        for g_ in ex2: G.emit(g_)
        n_ex2 = 3 * mp
    if not late_ex2:
        for i in range(mp): comb(i, 0)
    t1, t2, t3 = VT + 5, VT + 6, VT + 7
    a(f"s_and_b32 s{T0}, s2, {XS-1}")
    a(f"v_mul_u32_u24 v{t1}, {XS}, v0"); a(f"v_add_u32 v{t1}, s{T0}, v{t1}")
    a(f"s_lshr_b32 s{T0}, s{sDt}, 2")
    a(f"v_and_b32 v{t2}, 1, v0"); a(f"v_xor_b32 v{t2}, s{T0}, v{t2}"); a(f"v_xor_b32 v{t2}, 1, v{t2}")
    a(f"s_lshr_b32 s{T0}, s2, 3"); a(f"s_and_b32 s{T0}, s{T0}, 15")
    a(f"v_lshlrev_b32 v{t2}, 4, v{t2}"); a(f"v_add_u32 v{t2}, s{T0}, v{t2}"); a(f"v_lshl_or_b32 v{t2}, v{t2}, 3, v{t1}")
    a(f"v_lshlrev_b32 v{t2}, 8, v{t2}")
    a(f"v_subrev_u32 v{t1}, s{sG}, v0"); a(f"v_and_b32 v{t1}, {NS-1}, v{t1}")
    a(f"v_sub_u32 v{t1}, {NS-1}, v{t1}"); a(f"v_lshl_add_u32 v{t2}, v{t1}, 2, v{t2}")
    a(f"v_mov_b32 v{t3}, 1")
    a(f"s_lshl_b32 s{T0}, 1, s{sG}"); a(f"s_andn2_b32 s{T0}, {(1 << NS) - 1}, s{T0}")
    a(f"s_lshl_b32 s{T1}, s{sWave}, 4"); a(f"s_add_u32 s{T1}, s{T1}, {WS_MB + 32}")
    a(f"s_waitcnt vmcnt({n_ex2})")
    stamp(a, 5, st="p2")
    stamp(a, 3, st="end")
    a(f"s_mov_b32 exec_lo, s{T0}"); a("s_mov_b32 exec_hi, 0")
    a(f"buffer_store_dword v{t3}, v{t2}, s[{SWS}:{SWS+3}], s{T1} offen sc1")
    a("s_mov_b64 exec, -1")
    if n_ex2: a("s_waitcnt vmcnt(1)")
    x0, x1, y0, y1 = VT, VT + 1, VT + 2, VT + 3
    for i in range(mp):
        e = accD + 4 * (i * mq)
        for h in range(2):
            a(f"v_lshlrev_b32 v{x0}, 16, v{vx_+2*i+h}"); a(f"v_and_b32 v{x1}, 0xffff0000, v{vx_+2*i+h}")
            a(f"v_lshlrev_b32 v{y0}, 16, v{vds+2*i+h}"); a(f"v_and_b32 v{y1}, 0xffff0000, v{vds+2*i+h}")
            a(f"v_mul_f32 v{x0}, v{x0}, v{y0}"); a(f"v_mul_f32 v{x1}, v{x1}, v{y1}")
            a(f"v_cvt_pk_bf16_f32 v{x0}, v{x0}, v{x1}")
            a(f"v_and_b32 v{x1}, 0xffff0000, v{x0}"); a(f"v_lshlrev_b32 v{x0}, 16, v{x0}")
            a(f"v_fmac_f32 v{e+2*h}, v{vg}, v{x0}"); a(f"v_fmac_f32 v{e+2*h+1}, v{vg}, v{x1}")
            a(f"v_lshlrev_b32 v{x0}, 16, v{vb2+2*i+h}"); a(f"v_and_b32 v{x1}, 0xffff0000, v{vb2+2*i+h}")
            a(f"v_fmac_f32 v{e+2*h}, v{vg+1}, v{x0}"); a(f"v_fmac_f32 v{e+2*h+1}, v{vg+1}, v{x1}")
    stamp(a, 4, st="end")
    a(f"s_lshl_b32 s{T3}, s2, 8"); a(f"s_add_u32 s{T3}, s{T3}, s{T1}")
    def chkx(ok):
        if NS == 4: a(f"s_and_b32 s{U0}, s{U0}, s{U1}"); a(f"s_and_b32 s{U0}, s{U0}, s{U3}")
        a(f"s_cmp_lg_u32 s{U0}, 0"); a(f"s_cbranch_scc1 {ok}")
    poll(a, SWS, T3, chkx, VT, wide=(4 if NS == 4 else 1), sleep=1)
    stamp(a, 5, st="end")
    rb = G.F[0][0]
    nrx = mp * (NS - 1)
    assert 2 * (4 * mp + 4 * mq) >= 4 * nrx
    inbox_offset(a, T0)
    per = 2 if C.xbf16 else 4
    for k in range(per * (NS - 1)):
        if k and k % per == 0: a(f"s_add_u32 s{T0}, s{T0}, 4096")
        a(f"buffer_load_dwordx4 {vr(rb+4*k,4)}, v{vl16}, s[{SWS}:{SWS+3}], s{T0} offen offset:{(k%per)*1024} sc1")
    srd(a, SE, PTR["out"], L * D * 4)
    vo = VT
    a(f"v_lshlrev_b32 v{vo}, 12, v{vt_own}"); a(f"v_lshl_add_u32 v{vo}, v{vd2}, 1, v{vo}")
    a("s_waitcnt vmcnt(0)")
    stamp(a, 6, st="end")
    for i in range(mp):
        e = accD + 4 * (i * mq)
        for k in range(NS - 1):
            if C.xbf16:
                src = rb + 8 * k + 4 * (i // 2) + 2 * (i % 2)
                x0, x1 = VT + 2, VT + 3
                for h in range(2):
                    a(f"v_lshlrev_b32 v{x0}, 16, v{src+h}"); a(f"v_and_b32 v{x1}, 0xffff0000, v{src+h}")
                    a(f"v_add_f32 v{e+2*h}, v{e+2*h}, v{x0}"); a(f"v_add_f32 v{e+2*h+1}, v{e+2*h+1}, v{x1}")
            else:
                for r in range(4): a(f"v_add_f32 v{e+r}, v{e+r}, v{rb+k*4*mp+4*i+r}")
        a(f"buffer_store_dwordx4 {vr(e,4)}, v{vo}, s[{SE}:{SE+3}], 0 offen offset:{64*i}{C.wto}")
    stamp(a, 6)
    stamp(a, 6, st="p2")
    return V.hi, NB * SB

def emit_stamps(a):
    a("s_memrealtime s[88:89]"); a("s_waitcnt lgkmcnt(0)")
    a(f"s_cmp_lg_u32 s{sWave}, {C.stwave}"); a("s_cbranch_scc1 L_end")
    a("s_waitcnt vmcnt(0)")
    for i in range(1, 7): a(f"s_sub_u32 s{92+i}, s{92+i}, s92")
    a("s_mov_b32 s99, s100")
    a("s_nop 0")
    a(f"s_mov_b32 s100, s88")
    for i in range(8): a(f"v_mov_b32 v{12+i}, s{93+i}")
    a("v_mov_b32 v11, 0")
    if C.dbgout:
        a("s_and_b32 s76, s2, 127"); a("s_cmp_lg_u32 s76, 0"); a("s_cbranch_scc1 L_end")
        a("s_sub_u32 s77, s100, s99"); a("v_mov_b32 v18, s77")
        a("s_lshr_b32 s76, s2, 7"); a("s_mul_i32 s76, s76, 28"); a("s_add_u32 s76, s76, 8")
        a("s_mov_b64 exec, 1")
        for i in range(7): a(f"buffer_store_dword v{12+i}, v11, s[{SDBG}:{SDBG+3}], s76 offen offset:{4*i}")
        return
    a(f"s_lshl_b32 s{T0}, s2, 5"); a(f"s_add_u32 s{T0}, s{T0}, {WS_ST}")
    a("s_mov_b64 exec, 1")
    a(f"buffer_store_dwordx4 v[12:15], v11, s[{SWS}:{SWS+3}], s{T0} offen")
    a(f"buffer_store_dwordx4 v[16:19], v11, s[{SWS}:{SWS+3}], s{T0} offen offset:16")

HEADER = open("gated_mix__ssm_conv_s5__dense_activation_squared_relu__prompt.s.ref").read().split("; Override launch")[0]

def generate(**kw):
    for k, v in kw.items():
        assert hasattr(C, k), k
        setattr(C, k, v)
    _lbl[0] = 0
    a = Asm()
    kernel_header(a, NAME)
    a("s_cmp_ge_u32 s2, 256"); a("s_cbranch_scc1 L_end")
    a("s_load_dwordx16 s[40:55], s[0:1], 0"); a("s_load_dwordx16 s[56:71], s[0:1], 64"); a("s_load_dwordx4 s[72:75], s[0:1], 128")
    if C.dbgst:
        a("s_memtime s[92:93]"); a("s_memrealtime s[100:101]")
    if C.codepf:
        a("s_getpc_b64 s[4:5]")
        a.label("L_pc")
        a("v_lshlrev_b32 v2, 7, v0")
        a("v_min_u32 v2, L_codeend-L_pc-4, v2")
        a("global_load_dword v250, v2, s[4:5]")
    a("v_lshrrev_b32 v1, 6, v0"); a("v_and_b32 v0, 63, v0"); a(f"v_readfirstlane_b32 s{sWave}, v1")
    a(f"s_and_b32 s{T0}, s2, 7"); a(f"s_lshr_b32 s{T1}, s2, 3")
    a(f"s_lshr_b32 s{sRole}, s{T1}, 4")
    a(f"s_bfe_u32 s{T2}, s{T1}, 0x20002"); a(f"s_and_b32 s{T3}, s{T1}, 3")
    a(f"s_lshr_b32 s{sM}, s{T0}, 2"); a(f"s_lshl_b32 s{sM}, s{sM}, 2"); a(f"s_add_u32 s{sM}, s{sM}, s{T2}")
    a(f"s_and_b32 s{sN}, s{T0}, 3"); a(f"s_lshl_b32 s{sN}, s{sN}, 2"); a(f"s_add_u32 s{sN}, s{sN}, s{T3}")
    mode = C.rot
    if mode is True: mode = 1
    if mode == 1:
        a(f"s_lshl_b32 s{sRot}, s{sRole}, 2"); a(f"s_add_u32 s{sRot}, s{sRot}, s{T3}"); a(f"s_lshl_b32 s{sRot}, s{sRot}, 1")
        a(f"s_lshl_b32 s{T2}, s{T2}, 2"); a(f"s_add_u32 s{sRot}, s{sRot}, s{T2}"); a(f"s_and_b32 s{T0}, s{T0}, 3")
        a(f"s_add_u32 s{sRot}, s{sRot}, s{T0}"); a(f"s_and_b32 s{sRot}, s{sRot}, 15")
    elif mode == 2:
        a(f"s_and_b32 s{sRot}, s{T0}, 3"); a(f"s_lshl_b32 s{sRot}, s{sRot}, 2"); a(f"s_lshr_b32 s{T0}, s{T0}, 2"); a(f"s_lshl_b32 s{T0}, s{T0}, 1")
        a(f"s_add_u32 s{sRot}, s{sRot}, s{T0}"); a(f"s_and_b32 s{sRot}, s{sRot}, 15")
    elif mode == 3:
        a(f"s_and_b32 s{sRot}, s{T0}, 3"); a(f"s_lshl_b32 s{sRot}, s{sRot}, 2"); a(f"s_lshr_b32 s{T0}, s{T0}, 2"); a(f"s_lshl_b32 s{T0}, s{T0}, 3")
        a(f"s_add_u32 s{sRot}, s{sRot}, s{T0}"); a(f"s_xor_b32 s{T2}, s{T2}, s{T3}"); a(f"s_and_b32 s{T2}, s{T2}, 1"); a(f"s_lshl_b32 s{T2}, s{T2}, 3")
        a(f"s_add_u32 s{sRot}, s{sRot}, s{T2}"); a(f"s_and_b32 s{sRot}, s{sRot}, 15")
    elif mode == 4:
        a(f"s_xor_b32 s{T2}, s{T2}, s{T3}"); a(f"s_and_b32 s{T2}, s{T2}, 1"); a(f"s_lshl_b32 s{sRot}, s{T2}, 3")
        a(f"s_and_b32 s{T0}, s{T0}, 3"); a(f"s_lshl_b32 s{T0}, s{T0}, 1"); a(f"s_add_u32 s{sRot}, s{sRot}, s{T0}"); a(f"s_and_b32 s{sRot}, s{sRot}, 15")
    elif mode == 5:
        a(f"s_and_b32 s{sRot}, s{T0}, 3"); a(f"s_lshl_b32 s{sRot}, s{sRot}, 2")
    elif mode == 6:
        a(f"s_lshl_b32 s{sRot}, s{T2}, 2"); a(f"s_and_b32 s{T0}, s{T0}, 3"); a(f"s_add_u32 s{sRot}, s{sRot}, s{T0}"); a(f"s_and_b32 s{sRot}, s{sRot}, 15")
    elif mode == 7:
        a(f"s_lshl_b32 s{sRot}, s{T3}, 2"); a(f"s_and_b32 s{T0}, s{T0}, 3"); a(f"s_add_u32 s{sRot}, s{sRot}, s{T0}"); a(f"s_and_b32 s{sRot}, s{sRot}, 15")
    else:
        a(f"s_mov_b32 s{sRot}, 0")
    if C.dbgst:
        pass
    a(f"s_cmp_eq_u32 s{sRole}, 1"); a("s_cbranch_scc1 L_ssm")
    v1, l1 = phase1_dense(a)
    v2, l2 = phase2(a, 1)
    a("s_branch L_fin")
    a.label("L_ssm")
    v3, l3 = phase1_ssm(a)
    v4, l4 = phase2(a, 0)
    a.label("L_fin")
    if C.dbgst: emit_stamps(a)
    a.label("L_end")
    a("s_endpgm")
    a.label("L_codeend")
    nv = max(v1, v2, v3, v4); lds = max(l1, l2, l3, l4)
    assert nv <= 250
    if C.codepf or C.tlb: nv = 251
    head = HEADER + f"; @launch grid=(256,1,1) block=(512,1,1) lds={lds}\n"
    head += '.amdgcn_target "amdgcn-amd-amdhsa--gfx950"\n.text\n'
    return head + a.text() + '.section .rodata,"a"\n' + kernel_desc(NAME, nv, 102)

if __name__ == "__main__":
    kw = json.loads(sys.argv[2]) if len(sys.argv) > 2 else {}
    open(sys.argv[1], "w").write(generate(**kw))
```

```python
import sys, math, json
from asmlib import *

NAME = "gated_mix__ssm_conv_s5__dense_activation_squared_relu__prompt_kernel"
L, D, P_, F = 2048, 1024, 1024, 3584
KC = 2048 + F
RS_A2 = KC * 2
KA = dict(x=0, lre=8, lim=16, bre=24, bim=32, cre=40, cim=48, ldt=56, dsk=64, bx=72, w1=80, b1=88, w2=96, b2=104, gw=112, out=120, dbg=128, ws=136)
WS_A2 = 0
WS_G = 24 << 20
WS_AGG = WS_G + (1 << 16)
WS_MB = WS_AGG + (1 << 17)
WS_ST = WS_AGG + (1 << 18)
WS_XB = 32 << 20
WS_SIZE = 268435456
LOG2E = 0x3fb8aa3b
INV2PI = 0x3e22f983
PTR = {k: 40 + v // 4 for k, v in KA.items()}
DBG_LB = 0
DBG_CNT = 16
DBG_XF = 32

class Cfg:
    dbgst = False; rot = 4; nodma = False; noread = False; prefetch = True
    nAd = 24
    nBs = 8
    ns = 4
    delta = 2
    wt = " sc1"
    a2ld = " sc1"
    wto = ""
    spin = 300000
    sleep = 2
    early = True
    dparts = 2
    d1p = False
    k2 = 0
    flagit = 3
    dbgout = False
    xbf16 = True
    loop = {}
    inboxit = 18
    initit = 4
    tlb = False
    tlbshift = 21
    codepf = True
    pbar = False
    bulk = False
    pflist = [('w1',0),('x',0),('bre',0),('bim',0),('cre',0),('cim',0),('w2',0)]
    pfit = 13
    span = 1.0
    prio = True
    nbq = 3
    stampset = 'main'
    stwave = 0
C = Cfg()

class Regs:
    def __init__(self, start, limit=256):
        self.n = start; self.limit = limit; self.hi = start
    def get(self, k=1, align=1):
        self.n = (self.n + align - 1) // align * align
        r = self.n; self.n += k
        self.hi = max(self.hi, self.n)
        assert self.n <= self.limit, f"out of registers {self.n} > {self.limit}"
        return r

def srd(a, s, ptr_lo, size):
    if s != ptr_lo:
        a(f"s_mov_b32 s{s}, s{ptr_lo}"); a(f"s_mov_b32 s{s+1}, s{ptr_lo+1}")
    a(f"s_mov_b32 s{s+2}, {size}"); a(f"s_mov_b32 s{s+3}, 0x20000")

_lbl = [0]
def newlabel(p):
    _lbl[0] += 1
    return f"L_{p}{_lbl[0]}"

class OpKC:
    def __init__(self, a, V, T, lds_off, nfr, flags=""):
        self.a, self.T, self.lds_off, self.nfr, self.flags = a, T, lds_off, nfr, flags
        self.n = T // 64
        self.vd = V.get(self.n)
        self.b0 = V.get(); self.c0 = V.get(); self.c1 = V.get()
        self.bytes = T * 128
        self.ldsoffs = [j * 1024 for j in range(self.n)]
    def lane_chunk(self, vdst, t):
        a = self.a
        a(f"v_and_b32 v{vdst}, 7, v0"); a(f"v_lshrrev_b32 v{t}, 4, v0")
        a(f"v_xor_b32 v{vdst}, v{vdst}, v{t}"); a(f"v_lshlrev_b32 v{vdst}, 4, v{vdst}")
    def set_voff(self, j, vlane, sRowBytes, xor64, comp=True):
        a = self.a; d = self.vd + j
        src = vlane
        if xor64 is True:
            a(f"v_xor_b32 v{d}, 64, v{vlane}"); src = d
        elif xor64 is not False:
            a(f"v_xor_b32 v{d}, s{xor64}, v{vlane}"); src = d
        a(f"v_add_u32 v{d}, s{sRowBytes}, v{src}")
    def dma(self, sBuf, sK, stmp, sLds, srds, groups=None):
        g = []
        for grp_i in self.groups:
            for n_, j in enumerate(grp_i):
                grp = []
                if n_ == 0:
                    grp.append(f"s_add_u32 s{stmp}, s{sBuf}, s{sLds}")
                    if self.ldsoffs[j]: grp.append(f"s_add_u32 s{stmp}, s{stmp}, {self.ldsoffs[j]}")
                    grp.append(f"s_mov_b32 m0, s{stmp}")
                    grp.append("s_nop 0")
                off = f" offset:{n_*1024}" if n_ else ""
                s = srds[j]
                grp.append(f"buffer_load_dwordx4 v{self.vd+j}, s[{s}:{s+3}], s{sK} offen{off}{self.flags} lds")
                g.append(grp)
        return g
    def count(self): return (self.n, self.n)
    def setup_read(self, sFrag0, tmp, stmp):
        a = self.a; t0, t1, t2 = tmp, tmp + 1, tmp + 2
        a(f"v_and_b32 v{t0}, 15, v0"); a(f"v_lshrrev_b32 v{t1}, 4, v0"); a(f"v_lshrrev_b32 v{t2}, 1, v{t0}")
        a(f"v_xor_b32 v{t1}, v{t1}, v{t2}"); a(f"v_lshlrev_b32 v{t1}, 4, v{t1}")
        a(f"v_lshl_add_u32 v{t0}, v{t0}, 7, v{t1}")
        a(f"s_lshl_b32 s{stmp}, s{sFrag0}, 11")
        if self.lds_off: a(f"s_add_u32 s{stmp}, s{stmp}, {self.lds_off}")
        a(f"v_add_u32 v{self.b0}, s{stmp}, v{t0}")
    def init_cur(self):
        return [f"v_mov_b32 v{self.c0}, v{self.b0}", f"v_xor_b32 v{self.c1}, 64, v{self.b0}"]
    def frag_off(self, i): return i * 2048
    def reads(self, ks, dst):
        if C.noread: return []
        c = self.c1 if ks else self.c0
        return [[f"ds_read_b128 {vr(dst+4*i,4)}, v{c} offset:{self.frag_off(i)}"] for i in range(self.nfr)]
    def upd_A(self, sBuf): return [f"v_add_u32 v{self.c0}, s{sBuf}, v{self.b0}"]
    def upd_B(self, sBuf): return [f"v_xor_b32 v{self.c1}, 64, v{self.c0}"]

class OpNC:
    def __init__(self, a, V, T, lds_off, nfr, RS, NW=8):
        self.a, self.T, self.lds_off, self.nfr, self.RS = a, T, lds_off, nfr, RS
        self.RP = T * 2; self.CH = self.RP // 16
        self.total = self.CH
        self.n = -(-self.total // NW)
        self.even = (self.total % NW == 0)
        self.nbig = NW if self.even else self.total - (self.n - 1) * NW
        self.vd = V.get(self.n)
        np_ = self.RP // 32
        self.gb = 3 if np_ % 8 == 0 else (2 if np_ % 4 == 0 else 1)
        self.nres = min(1 << self.gb, nfr)
        self.base = V.get(self.nres); self.cur = V.get(self.nres)
        self.bytes = 64 * self.RP
    def g_asm(self, vk, vo, t):
        a = self.a
        if self.gb == 3:
            a(f"v_and_b32 v{vo}, 3, v{vk}"); a(f"v_bfe_u32 v{t}, v{vk}, 3, 1"); a(f"v_lshl_or_b32 v{vo}, v{t}, 2, v{vo}")
        elif self.gb == 2:
            a(f"v_bfe_u32 v{vo}, v{vk}, 1, 1"); a(f"v_bfe_u32 v{t}, v{vk}, 3, 1"); a(f"v_lshl_or_b32 v{vo}, v{t}, 1, v{vo}")
        else:
            a(f"v_bfe_u32 v{vo}, v{vk}, 3, 1")
    def idx0(self, sWave, sOut, stmp):
        a = self.a
        if self.even: a(f"s_mul_i32 s{sOut}, s{sWave}, {self.n}")
        else:
            a(f"s_mul_i32 s{sOut}, s{sWave}, {self.n-1}")
            a(f"s_min_u32 s{stmp}, s{sWave}, {self.nbig}")
            a(f"s_add_u32 s{sOut}, s{sOut}, s{stmp}")
    def setup_dma(self, sWave, tmp, sCol0Bytes, stmp):
        a = self.a; t0, t1, t2, t3 = tmp, tmp + 1, tmp + 2, tmp + 3
        self.idx0(sWave, stmp, stmp + 1)
        magic = (1 << 20) // self.CH + 1
        for L_ in range(self.total * 64 + 64):
            assert (L_ * magic) >> 20 == L_ // self.CH
        for j in range(self.n):
            a(f"s_add_u32 s{stmp+1}, s{stmp}, {j}"); a(f"s_lshl_b32 s{stmp+1}, s{stmp+1}, 6")
            a(f"v_add_u32 v{t0}, s{stmp+1}, v0")
            if self.CH & (self.CH - 1) == 0:
                a(f"v_lshrrev_b32 v{t1}, {int(math.log2(self.CH))}, v{t0}")
                a(f"v_and_b32 v{t0}, {self.CH-1}, v{t0}")
            else:
                a(f"v_mul_u32_u24 v{t1}, {magic}, v{t0}"); a(f"v_lshrrev_b32 v{t1}, 20, v{t1}")
                a(f"v_mul_u32_u24 v{t2}, {self.CH}, v{t1}"); a(f"v_sub_u32 v{t0}, v{t0}, v{t2}")
            self.g_asm(t1, t2, t3)
            a(f"v_lshlrev_b32 v{t2}, 1, v{t2}"); a(f"v_xor_b32 v{t0}, v{t0}, v{t2}")
            a(f"v_mul_u32_u24 v{t1}, {self.RS}, v{t1}")
            a(f"v_lshl_add_u32 v{t0}, v{t0}, 4, v{t1}")
            if j % 4: a(f"s_sub_u32 s{stmp+1}, s{sCol0Bytes}, {(j%4)*1024}"); a(f"v_add_u32 v{self.vd+j}, s{stmp+1}, v{t0}")
            else: a(f"v_add_u32 v{self.vd+j}, s{sCol0Bytes}, v{t0}")
    def setup_lds(self, sWave, sLds, stmp):
        self.idx0(sWave, sLds, stmp)
        self.a(f"s_lshl_b32 s{sLds}, s{sLds}, 10")
        if self.lds_off: self.a(f"s_add_u32 s{sLds}, s{sLds}, {self.lds_off}")
    def dma(self, sBuf, sK, stmp, sLds, srds, sWave=None):
        g = []
        s = srds
        for j in range(self.n):
            grp = []
            guard = (not self.even) and j == self.n - 1
            if guard:
                lbl = newlabel("ncs")
                grp += [f"s_cmp_lt_u32 s{sWave}, {self.nbig}", f"s_cbranch_scc0 {lbl}"]
            if j % 4 == 0:
                grp.append(f"s_add_u32 s{stmp}, s{sBuf}, s{sLds}")
                if j: grp.append(f"s_add_u32 s{stmp}, s{stmp}, {j*1024}")
                grp += [f"s_mov_b32 m0, s{stmp}", "s_nop 0"]
            off = f" offset:{(j%4)*1024}" if j % 4 else ""
            grp.append(f"buffer_load_dwordx4 v{self.vd+j}, s[{s}:{s+3}], s{sK} offen{off} lds")
            if guard: grp.append(f"{lbl}:")
            g.append(grp)
        return g
    def count(self): return (self.n if self.even else self.n - 1, self.n)
    def setup_read(self, sFrag0, tmp, stmp):
        a = self.a; t0, t1, t2 = tmp, tmp + 1, tmp + 2
        a(f"v_lshrrev_b32 v{t0}, 4, v0"); a(f"v_lshlrev_b32 v{t0}, 3, v{t0}")
        a(f"v_bfe_u32 v{t1}, v0, 2, 2"); a(f"v_add_u32 v{t0}, v{t0}, v{t1}")
        self.g_asm(t0, t1, t2)
        a(f"v_mul_u32_u24 v{t0}, {self.RP}, v{t0}")
        a(f"v_and_b32 v{t2}, 3, v0"); a(f"v_lshl_add_u32 v{t0}, v{t2}, 3, v{t0}")
        if self.lds_off: a(f"v_add_u32 v{t0}, {self.lds_off}, v{t0}")
        for r in range(self.nres):
            a(f"s_add_u32 s{stmp}, s{sFrag0}, {r}")
            a(f"v_xor_b32 v{t2}, s{stmp}, v{t1}")
            if r: a(f"v_subrev_u32 v{t2}, {r}, v{t2}")
            a(f"v_lshl_add_u32 v{self.base+r}, v{t2}, 5, v{t0}")
    def init_cur(self):
        return [f"v_mov_b32 v{self.cur+r}, v{self.base+r}" for r in range(self.nres)]
    def reads(self, ks, dst):
        if C.noread: return []
        g = []
        for i in range(self.nfr):
            r = i % (1 << self.gb)
            for h in range(2):
                off = 32 * i + (4 * h + 32 * ks) * self.RP
                g.append([f"ds_read_b64_tr_b16 {vr(dst+4*i+2*h,2)}, v{self.cur+r} offset:{off}"])
        return g
    def upd_A(self, sBuf): return [f"v_add_u32 v{self.cur+r}, s{sBuf}, v{self.base+r}" for r in range(self.nres)]
    def upd_B(self, sBuf): return []

class Seg:
    def __init__(self, P, Q, acc, Pdma, Qdma, kadvP, kadvQ, name):
        self.P, self.Q, self.acc, self.Pdma, self.Qdma, self.kadvP, self.kadvQ, self.name = P, Q, acc, Pdma, Qdma, kadvP, kadvQ, name
        self.xdma = []

class Gemm:
    def __init__(self, a, V, NBP, NBQ, SP, SQ, mp, mq, regs, joint, early=None, name="x"):
        self.a, self.NBP, self.NBQ, self.SP, self.SQ, self.mp, self.mq, self.joint = a, NBP, NBQ, SP, SQ, mp, mq, joint
        o = dict(span=C.span, prio=C.prio, dmapos="merge", order="i")
        o.update(C.loop.get(name, {}))
        self.opt = o
        self.sDP, self.sRP, self.sDQ, self.sRQ, self.sCnt, self.sE = regs
        if joint: self.sDQ, self.sRQ = self.sDP, self.sRP
        self.early = early if C.early else None
        self.leadP = NBP - (1 if self.early == 'P' else 0)
        self.leadQ = NBQ - (1 if self.early == 'Q' else 0)
        self.F = []
        for s in range(2):
            p = V.get(4 * mp, 2); q = V.get(4 * mq, 2)
            self.F.append((p, q))
        self.vmq = []
        self.zero_first = False
    def emit(self, lines):
        for x in lines:
            if x.endswith(":"): self.a.label(x[:-1])
            else: self.a(x)
    def note(self, tag, n): self.vmq.append((tag, n))
    def vm_allow(self, need):
        last = -1
        for i, (t, n) in enumerate(self.vmq):
            if t in need: last = i
        return min(63, sum(n for t, n in self.vmq[last + 1:]))
    def reads(self, seg, ks, fs):
        p, q = self.F[fs]
        return merge(seg.P.reads(ks, p), seg.Q.reads(ks, q))
    def mfmas(self, seg, fs, zero=False):
        p, q = self.F[fs]
        ij = [(i, j) for i in range(self.mp) for j in range(self.mq)]
        if self.opt["order"] == "j": ij = [(i, j) for j in range(self.mq) for i in range(self.mp)]
        st = getattr(self, "acc_stride", 4 * self.mq)
        return [f"v_mfma_f32_16x16x32_bf16 {vr(c,4)}, {vr(p+4*i,4)}, {vr(q+4*j,4)}, {'0' if zero else vr(c,4)}"
                for (i, j) in ij for c in [seg.acc + st * i + 4 * j]]
    def spread(self, main, fill):
        n = len(main); k = len(fill)
        if k == 0: return list(main)
        span = max(1, min(n, int(n * self.opt['span'])))
        out = []; fi = 0
        for i, m in enumerate(main):
            out.append(m)
            while fi < k and (fi * span) // k <= i:
                out.extend(fill[fi]); fi += 1
        while fi < k: out.extend(fill[fi]); fi += 1
        return out
    def mix(self, reads, dma):
        m = self.opt["dmapos"]
        if m == "first": return dma + reads
        if m == "last": return reads + dma
        return merge(reads, dma)
    def ring_adv(self, sD, sR, stride, nb):
        return [f"s_mov_b32 s{sD}, s{sR}", f"s_add_u32 s{sR}, s{sR}, {stride}", f"s_cmp_eq_u32 s{sR}, {stride*nb}", f"s_cselect_b32 s{sR}, 0, s{sR}"]
    def advance(self):
        out = []
        if self.early: out.append(f"s_mov_b32 s{self.sE}, s{self.sDP if (self.joint or self.early == 'P') else self.sDQ}")
        if self.joint: return out + self.ring_adv(self.sDP, self.sRP, self.SP + self.SQ, self.NBP)
        return out + self.ring_adv(self.sDP, self.sRP, self.SP, self.NBP) + self.ring_adv(self.sDQ, self.sRQ, self.SQ, self.NBQ)
    def dma_list(self, which, seg, sBuf):
        if seg is None or C.nodma: return []
        if which == 'P': return seg.Pdma(sBuf) + [list(seg.kadvP)]
        return seg.Qdma(sBuf) + [list(seg.kadvQ)] + seg.xdma
    def body(self, cur, nxt, dP, dQ, vmw, pre_barrier=None, extra=None, zero=False):
        a = self.a
        self.emit(self.advance())
        a("s_waitcnt lgkmcnt(0)")
        fill = self.reads(cur, 1, 1)
        if nxt is not None: fill.append(nxt.P.upd_A(self.sRP) + nxt.Q.upd_A(self.sRQ))
        if self.early == 'P': fill = self.mix(fill, self.dma_list('P', dP, self.sE))
        if self.early == 'Q': fill = self.mix(fill, self.dma_list('Q', dQ, self.sE))
        if nxt is None and extra: fill = fill + extra
        self.emit(self.spread(self.mfmas(cur, 0, zero), fill))
        if nxt is None:
            a("s_waitcnt lgkmcnt(0)")
            self.emit(self.mfmas(cur, 1))
            return
        if pre_barrier: pre_barrier()
        a(f"s_waitcnt vmcnt({vmw}) lgkmcnt(0)")
        a("s_barrier")
        if self.opt["prio"]: a("s_setprio 1")
        fill = self.reads(nxt, 0, 0)
        d = []
        if self.early != 'P': d += self.dma_list('P', dP, self.sDP)
        if self.early != 'Q': d += self.dma_list('Q', dQ, self.sDQ)
        fill = self.mix(fill, d)
        u = nxt.P.upd_B(self.sRP) + nxt.Q.upd_B(self.sRQ)
        if u: fill.append(u)
        if extra: fill = fill + extra
        self.emit(self.spread(self.mfmas(cur, 1), fill))
        if self.opt["prio"]: a("s_setprio 0")
    def prologue(self, stages, which="PQ", first=0, last=None):
        a = self.a
        stride = self.SP + self.SQ if self.joint else None
        if first == 0:
            a(f"s_mov_b32 s{self.sDP}, 0")
            if not self.joint: a(f"s_mov_b32 s{self.sDQ}, 0")
        for s in range(first, max(self.leadP, self.leadQ) if last is None else last):
            if "P" in which and s < self.leadP:
                for g in stages[s].Pdma(self.sDP): self.emit(g)
                self.emit(stages[s].kadvP); self.note(('P', s), stages[s].P.count()[0])
                if not self.joint: a(f"s_add_u32 s{self.sDP}, s{self.sDP}, {self.SP}")
            if "Q" in which and s < self.leadQ:
                for g in stages[s].Qdma(self.sDQ): self.emit(g)
                self.emit(stages[s].kadvQ); self.note(('Q', s), stages[s].Q.count()[0])
                if not self.joint: a(f"s_add_u32 s{self.sDQ}, s{self.sDQ}, {self.SQ}")
            if self.joint: a(f"s_add_u32 s{self.sDP}, s{self.sDP}, {stride}")
    def run(self, stages, hooks=None, extras=None, post_first=None):
        a = self.a; N = len(stages)
        hooks = hooks or {}; extras = extras or {}
        a(f"s_waitcnt vmcnt({self.vm_allow({('P',0),('Q',0)})})")
        if getattr(self, "pre_first", None): self.pre_first()
        a("s_barrier")
        if post_first: post_first()
        seen = []
        for sg in stages:
            for op in (sg.P, sg.Q):
                if op not in seen: seen.append(op); self.emit(op.init_cur())
        if self.joint:
            a(f"s_mov_b32 s{self.sRP}, 0"); a(f"s_mov_b32 s{self.sDP}, {(self.SP+self.SQ)*(self.NBP-1)}")
        else:
            a(f"s_mov_b32 s{self.sRP}, 0"); a(f"s_mov_b32 s{self.sDP}, {self.SP*(self.NBP-1)}")
            a(f"s_mov_b32 s{self.sRQ}, 0"); a(f"s_mov_b32 s{self.sDQ}, {self.SQ*(self.NBQ-1)}")
        for g in self.reads(stages[0], 0, 0): self.emit(g)
        sigs = []; seen_acc = set()
        for i in range(N):
            nxt = stages[i + 1] if i + 1 < N else None
            dP = stages[i + self.leadP] if i + self.leadP < N else None
            dQ = stages[i + self.leadQ] if i + self.leadQ < N else None
            def noteP():
                if dP is not None: self.note(('P', i + self.leadP), dP.P.count()[0])
            def noteQ():
                if dQ is not None:
                    self.note(('Q', i + self.leadQ), dQ.Q.count()[0])
                    if dQ.xdma: self.note(('PF', i), len(dQ.xdma))
            if self.early == 'P': noteP()
            if self.early == 'Q': noteQ()
            vmw = self.vm_allow({('P', i + 1), ('Q', i + 1)}) if nxt is not None else 0
            if i in getattr(self, "want_allow", {}):
                if not hasattr(self, "allow_at"): self.allow_at = {}
                self.allow_at[i] = self.vm_allow({self.want_allow[i]})
            if self.early != 'P': noteP()
            if self.early != 'Q': noteQ()
            if i in extras: self.note(('X', i), extras[i][1])
            zero = self.zero_first and stages[i].acc not in seen_acc
            seen_acc.add(stages[i].acc)
            sigs.append((stages[i], nxt, dP, dQ, vmw, i if (i in hooks or i in extras or zero) else -1, zero))
        i = 0
        while i < N:
            j = i
            while j < N and sigs[j] == sigs[i]: j += 1
            cnt = j - i
            cur, nxt, dP, dQ, vmw, sp, zero = sigs[i]
            hk = hooks.get(sp); ex = extras[sp][0] if sp in extras else None
            if cnt >= 2:
                lbl = newlabel("gl")
                a(f"s_mov_b32 s{self.sCnt}, {cnt}")
                a.label(lbl)
                self.body(cur, nxt, dP, dQ, vmw)
                a(f"s_sub_u32 s{self.sCnt}, s{self.sCnt}, 1"); a(f"s_cmp_lg_u32 s{self.sCnt}, 0"); a(f"s_cbranch_scc1 {lbl}")
            else:
                self.body(cur, nxt, dP, dQ, vmw, hk, ex, zero)
            i = j

def merge(x, y):
    out = []; i = j = 0
    while i < len(x) or j < len(y):
        if j >= len(y) or (i < len(x) and i * len(y) <= j * len(x)): out.append(x[i]); i += 1
        else: out.append(y[j]); j += 1
    return out

def bf16_round(a, vdst, vsrc):
    a(f"v_cvt_pk_bf16_f32 v{vdst}, v{vsrc}, v{vsrc}"); a(f"v_lshlrev_b32 v{vdst}, 16, v{vdst}")

def stamp(a, idx, real=False, st="main"):
    if C.dbgst and st == C.stampset:
        a("s_memrealtime s[88:89]" if real else "s_memtime s[88:89]")
        a("s_waitcnt lgkmcnt(0)")
        a(f"s_mov_b32 s{92+idx}, s88")

sWave, sM, sN, sRole = 28, 29, 30, 31
sBufD, sBufR, sCnt, sTmp, sKP, sKQ, sLdsP, sLdsQ = 32, 33, 34, 35, 36, 37, 38, 39
sWp, sWq, sRot, sLdsP2, sKP2, sTile, sTt, sDt = 80, 81, 82, 83, 84, 85, 86, 87
SX, SA, SB_, SWS, SDBG, SS = 4, 8, 12, 16, 20, 24
T0, T1, T2, T3 = 76, 77, 78, 79
U0, U1, U2, U3 = 88, 89, 90, 91
VT = 2

def ssm_param_loads(a, vch, t):
    a(f"v_lshlrev_b32 v{t}, 1, v{vch}")
    for k, name in enumerate(("lre", "lim", "ldt")):
        srd(a, SS, PTR[name], 2048)
        a(f"buffer_load_ushort v{t+1+k}, v{t}, s[{SS}:{SS+3}], 0 offen")

def ssm_params_compute(a, out, t, want_kappa=True):
    lre, lim, ldt = t + 1, t + 2, t + 3
    x0, x1, x2, x3 = t + 4, t + 5, t + 6, t + 7
    lr, li, kr, ki = out, out + 1, out + 2, out + 3
    for r in (lre, lim, ldt): a(f"v_lshlrev_b32 v{r}, 16, v{r}")
    a(f"v_mul_f32 v{x0}, {LOG2E:#x}, v{ldt}"); a(f"v_exp_f32 v{x0}, v{x0}"); a("s_nop 0")
    bf16_round(a, x0, x0)
    a(f"v_mul_f32 v{x1}, v{x0}, v{lre}"); a(f"v_mul_f32 v{x2}, v{x0}, v{lim}")
    a(f"v_mul_f32 v{x1}, {LOG2E:#x}, v{x1}"); a(f"v_exp_f32 v{x1}, v{x1}")
    a(f"v_mul_f32 v{x2}, {INV2PI:#x}, v{x2}"); a(f"v_rndne_f32 v{x3}, v{x2}"); a(f"v_sub_f32 v{x2}, v{x2}, v{x3}")
    a(f"v_cos_f32 v{x3}, v{x2}"); a(f"v_sin_f32 v{x2}, v{x2}"); a("s_nop 0")
    a(f"v_mul_f32 v{lr}, v{x1}, v{x3}"); a(f"v_mul_f32 v{li}, v{x1}, v{x2}")
    if want_kappa:
        a(f"v_subrev_f32 v{x0}, 1.0, v{lr}")
        a(f"v_mul_f32 v{x1}, v{x0}, v{lre}"); a(f"v_fmac_f32 v{x1}, v{li}, v{lim}")
        a(f"v_mul_f32 v{x2}, v{li}, v{lre}"); a(f"v_fma_f32 v{x2}, -v{x0}, v{lim}, v{x2}")
        a(f"v_mul_f32 v{x3}, v{lre}, v{lre}"); a(f"v_fmac_f32 v{x3}, v{lim}, v{lim}")
        a(f"v_rcp_f32 v{x3}, v{x3}"); a("s_nop 0")
        a(f"v_add_f32 v{x3}, v{x3}, v{x3}")
        a(f"v_mul_f32 v{kr}, v{x1}, v{x3}"); a(f"v_mul_f32 v{ki}, v{x2}, v{x3}")

def csq(a, dr, di, sr_, si, t):
    a(f"v_mul_f32 v{t}, v{sr_}, v{si}"); a(f"v_mul_f32 v{dr}, v{sr_}, v{sr_}")
    a(f"v_fma_f32 v{dr}, -v{si}, v{si}, v{dr}"); a(f"v_add_f32 v{di}, v{t}, v{t}")

def gate_row_loads(a, sRow, vx, t):
    a(f"s_lshl_b32 s{U1}, s{sRow}, 11")
    a(f"buffer_load_dwordx4 {vr(vx,4)}, v{t}, s[{SX}:{SX+3}], s{U1} offen")
    a(f"buffer_load_dwordx4 {vr(vx+4,4)}, v{t}, s[{SX}:{SX+3}], s{U1} offen offset:16")

def gate_compute(a, sRow, vx, vw, t):
    acc = t; p0, p1, q0, q1 = t + 1, t + 2, t + 3, t + 4
    a(f"v_mov_b32 v{acc}, 0")
    for d in range(8):
        a(f"v_lshlrev_b32 v{p0}, 16, v{vx+d}"); a(f"v_and_b32 v{p1}, 0xffff0000, v{vx+d}")
        a(f"v_lshlrev_b32 v{q0}, 16, v{vw+d}"); a(f"v_and_b32 v{q1}, 0xffff0000, v{vw+d}")
        a(f"v_mul_f32 v{p0}, v{p0}, v{q0}"); a(f"v_mul_f32 v{p1}, v{p1}, v{q1}")
        a(f"v_cvt_pk_bf16_f32 v{p0}, v{p0}, v{p1}")
        a(f"v_and_b32 v{p1}, 0xffff0000, v{p0}"); a(f"v_lshlrev_b32 v{p0}, 16, v{p0}")
        a(f"v_add_f32 v{acc}, v{acc}, v{p0}"); a(f"v_add_f32 v{acc}, v{acc}, v{p1}")
    for sh in (1, 2, 4, 8):
        a("s_nop 1")
        a(f"v_add_f32_dpp v{acc}, v{acc}, v{acc} row_shr:{sh} row_mask:0xf bank_mask:0xf bound_ctrl:0")
    a("s_nop 1")
    a(f"v_add_f32_dpp v{acc}, v{acc}, v{acc} row_bcast:15 row_mask:0xa bank_mask:0xf")
    a("s_nop 1")
    a(f"v_add_f32_dpp v{acc}, v{acc}, v{acc} row_bcast:31 row_mask:0xc bank_mask:0xf")
    a("s_nop 1")
    a(f"v_readlane_b32 s{U0}, v{acc}, 63")
    a("s_nop 1")
    a(f"v_mov_b32 v{acc}, s{U0}")
    bf16_round(a, acc, acc)
    a(f"v_mul_f32 v{p0}, {LOG2E ^ 0x80000000:#x}, v{acc}"); a(f"v_exp_f32 v{p0}, v{p0}"); a("s_nop 0")
    a(f"v_add_f32 v{p0}, 1.0, v{p0}"); a(f"v_rcp_f32 v{p0}, v{p0}"); a("s_nop 0")
    bf16_round(a, p0, p0)
    a(f"v_sub_f32 v{p1}, 1.0, v{p0}")
    bf16_round(a, p1, p1)
    a(f"s_lshl_b32 s{U0}, s{sRow}, 3"); a(f"s_add_u32 s{U0}, s{U0}, {WS_G}")
    a(f"v_cmp_eq_u32 vcc, 0, v0"); a("s_nop 1")
    a(f"v_cndmask_b32 v{p0}, v{p1}, v{p0}, vcc")
    a(f"v_lshlrev_b32 v{q0}, 2, v0")
    a("s_mov_b64 exec, 3")
    a(f"buffer_store_dword v{p0}, v{q0}, s[{SWS}:{SWS+3}], s{U0} offen sc1")
    a("s_mov_b64 exec, -1")

SENT = 0xffffffff
def inbox_offset(a, sdst):
    a(f"s_lshl_b32 s{sdst}, s2, 3"); a(f"s_add_u32 s{sdst}, s{sdst}, s{sWave}"); a(f"s_mul_i32 s{sdst}, s{sdst}, {4096*(C.ns-1)}")
    a(f"s_add_u32 s{sdst}, s{sdst}, {WS_XB}")

def mb_zero_groups(vt, ssm=False):
    c = []
    q = (vt + 1) // 2 * 2
    sk = newlabel("mz")
    c += [f"s_cmp_lg_u32 s{sWave}, 0", f"s_cbranch_scc1 {sk}"]
    if ssm:
        c += [f"v_mov_b32 v{q}, -1", f"v_mov_b32 v{q+1}, -1",
              f"s_lshl_b32 s{U0}, s{sN}, 6", f"v_add_u32 v{q+4}, s{U0}, v0", f"v_lshlrev_b32 v{q+4}, 3, v{q+4}",
              f"s_lshl_b32 s{U0}, s{sM}, 13", f"s_add_u32 s{U0}, s{U0}, {WS_AGG}",
              f"buffer_store_dwordx2 {vr(q,2)}, v{q+4}, s[{SWS}:{SWS+3}], s{U0} offen sc1"]
    c += [f"v_mov_b32 v{q+2}, 0", f"v_lshlrev_b32 v{q+4}, 2, v0", f"s_lshl_b32 s{U0}, s2, 8", f"s_add_u32 s{U0}, s{U0}, {WS_MB}",
          f"buffer_store_dword v{q+2}, v{q+4}, s[{SWS}:{SWS+3}], s{U0} offen sc1", f"{sk}:"]
    return [c], 0

def inbox_init(a, vt):
    for r in range(4): a(f"v_mov_b32 v{vt+r}, -1")
    a(f"v_lshlrev_b32 v{vt+4}, 4, v0")
    inbox_offset(a, U0)
    for i in range(4 * (C.ns - 1)):
        a(f"buffer_store_dwordx4 {vr(vt,4)}, v{vt+4}, s[{SWS}:{SWS+3}], s{U0} offen offset:{(i%4)*1024} sc1")
        if i % 4 == 3: a(f"s_add_u32 s{U0}, s{U0}, 4096")

def init_signal(a, vt, idx=0, guard=True):
    sk = newlabel("mi")
    if guard: a(f"s_cmp_lg_u32 s{sWave}, 0"); a(f"s_cbranch_scc1 {sk}")
    a(f"v_mov_b32 v{vt}, 1"); a(f"v_mov_b32 v{vt+1}, {4*idx}")
    a("s_mov_b64 exec, 1")
    a(f"buffer_atomic_add v{vt}, v{vt+1}, s[{SDBG}:{SDBG+3}], 0 offen sc1")
    a("s_mov_b64 exec, -1")
    a.label(sk)

def poll(a, srd_, sByteOff, check, vt, wide=1, sleep=None):
    lp, ok = newlabel("poll"), newlabel("pok")
    a(f"v_mov_b32 v{vt+4}, s{sByteOff}")
    a(f"s_mov_b32 s{U2}, {C.spin}")
    a.label(lp)
    a(f"s_sub_u32 s{U2}, s{U2}, 1"); a(f"s_cmp_eq_u32 s{U2}, 0"); a(f"s_cbranch_scc1 {ok}")
    op = {1: "dword", 2: "dwordx2", 4: "dwordx4"}[wide]
    a(f"buffer_load_{op} {vr(vt,wide)}, v{vt+4}, s[{srd_}:{srd_+3}], 0 offen sc1")
    a("s_waitcnt vmcnt(0)")
    a(f"v_readfirstlane_b32 s{U0}, v{vt}")
    if wide >= 2: a(f"v_readfirstlane_b32 s{U1}, v{vt+1}")
    if wide >= 4: a(f"v_readfirstlane_b32 s{U3}, v{vt+2}")
    a("s_nop 3")
    check(ok)
    a(f"s_sleep {C.sleep if sleep is None else sleep}")
    a(f"s_branch {lp}")
    a.label(ok)

VINIT = 1
def init_load(a, idx=0):
    sk = newlabel("il")
    a(f"s_cmp_lg_u32 s{sWave}, 0"); a(f"s_cbranch_scc1 {sk}")
    a(f"v_mov_b32 v{VINIT}, {4*idx}")
    a(f"buffer_load_dword v{VINIT}, v{VINIT}, s[{SDBG}:{SDBG+3}], 0 offen sc1")
    a.label(sk)

def init_check(a, vt, idx=0):
    ok = newlabel("ic")
    a(f"v_readfirstlane_b32 s{U0}, v{VINIT}"); a("s_nop 3")
    a(f"s_cmp_ge_u32 s{U0}, 256"); a(f"s_cbranch_scc1 {ok}")
    a(f"s_mov_b32 s{T3}, {4*idx}")
    def chk(o): a(f"s_cmp_ge_u32 s{U0}, 256"); a(f"s_cbranch_scc1 {o}")
    poll(a, SDBG, T3, chk, vt, sleep=32)
    a.label(ok)

def poll_own(a, check, vt):
    a(f"s_lshl_b32 s{T3}, s2, 8"); a(f"s_add_u32 s{T3}, s{T3}, {WS_MB}")
    poll(a, SWS, T3, check, vt, wide=4)

def signal_cnt(a, dword, vt):
    NS = C.ns; XS = 8 // NS
    l, t1, t2 = vt, vt + 1, vt + 2
    t3 = vt + 3
    if NS == 2:
        a(f"v_bfe_u32 v{t1}, v0, 3, 1"); a(f"s_lshl_b32 s{T0}, s{sM}, 1"); a(f"v_add_u32 v{t1}, s{T0}, v{t1}")
        a(f"v_bfe_u32 v{t3}, v0, 4, 1")
    else:
        a(f"v_mov_b32 v{t1}, s{sM}")
        a(f"v_bfe_u32 v{t3}, v0, 3, 2")
    a(f"v_lshrrev_b32 v{t2}, 2, v{t1}"); a(f"v_mad_u32_u24 v{t2}, v{t3}, {XS}, v{t2}")
    a(f"v_and_b32 v{t1}, 3, v{t1}"); a(f"v_lshlrev_b32 v{t1}, 2, v{t1}")
    a(f"v_and_b32 v{l}, 3, v0"); a(f"v_or_b32 v{t1}, v{t1}, v{l}")
    a(f"v_bfe_u32 v{l}, v0, 2, 1"); a(f"v_and_b32 v{t3}, 1, v{t3}"); a(f"v_xor_b32 v{l}, v{l}, v{t3}"); a(f"v_xor_b32 v{l}, 1, v{l}")
    a(f"v_lshl_or_b32 v{t1}, v{l}, 4, v{t1}")
    a(f"v_lshl_or_b32 v{t1}, v{t1}, 3, v{t2}")
    a(f"v_lshlrev_b32 v{t1}, 8, v{t1}")
    a(f"v_mov_b32 v{l}, 1")
    if dword == "S":
        a(f"s_lshr_b32 s{T0}, s{sN}, 3"); a(f"s_lshl_b32 s{T0}, s{T0}, 2"); a(f"s_add_u32 s{T0}, s{T0}, {WS_MB}")
    else:
        a(f"s_mov_b32 s{T0}, {WS_MB + 4*dword}")
    a("s_mov_b32 exec_hi, 0")
    a(f"buffer_atomic_add v{l}, v{t1}, s[{SWS}:{SWS+3}], s{T0} offen sc1")
    a("s_mov_b64 exec, -1")

def bulk_prefetch(a, G, vdummy, vaddr):
    a(f"v_lshlrev_b32 v{vaddr}, 4, v0")
    n = 0
    for name, size in C.pflist:
        size = {"x": L*D*2, "w1": D*F*2, "bre": P_*D*2, "bim": P_*D*2, "cre": D*P_*2, "cim": D*P_*2, "w2": F*D*2}[name]
        share = size // 256; pw = share // 8
        a(f"s_mul_i32 s{U0}, s2, {share}"); a(f"s_mul_i32 s{U1}, s{sWave}, {pw}"); a(f"s_add_u32 s{U0}, s{U0}, s{U1}")
        a(f"s_mov_b32 s{SS}, s{PTR[name]}"); a(f"s_mov_b32 s{SS+1}, s{PTR[name]+1}")
        a(f"s_add_u32 s{SS+2}, s{U0}, {pw}"); a(f"s_mov_b32 s{SS+3}, 0x20000")
        for i in range(-(-pw // 1024)):
            a(f"buffer_load_dwordx4 {vr(vdummy,4)}, v{vaddr}, s[{SS}:{SS+3}], s{U0} offen offset:{i*1024}")
            n += 1
    G.note('pf', n)

def tlb_warm(a, vdummy, vaddr, names, tsrd):
    sizes = {"w2": F*D*2, "cre": D*P_*2, "cim": D*P_*2, "out": L*D*4, "lre": 2048, "lim": 2048, "ldt": 2048, "dsk": 2048, "b2": 2048, "gw": 2048}
    a(f"v_lshlrev_b32 v{vaddr}, {C.tlbshift}, v0")
    end = newlabel("tw")
    for w in range(8):
        nx = newlabel("tw")
        a(f"s_cmp_lg_u32 s{sWave}, {w}"); a(f"s_cbranch_scc1 {nx}")
        for name in names[w::8]:
            if name == "ws":
                a("s_mov_b32 exec_lo, 0x00ffffff"); a("s_mov_b32 exec_hi, 0")
                a(f"buffer_load_dword v{vdummy}, v{vaddr}, s[{SWS}:{SWS+3}], 0 offen")
                a("s_mov_b64 exec, -1")
            elif name == "dbg":
                a(f"buffer_load_dword v{vdummy}, v{vaddr}, s[{SDBG}:{SDBG+3}], 0 offen")
            else:
                a(f"s_mov_b32 s{tsrd}, s{PTR[name]}"); a(f"s_mov_b32 s{tsrd+1}, s{PTR[name]+1}"); a(f"s_mov_b32 s{tsrd+2}, {sizes[name]}"); a(f"s_mov_b32 s{tsrd+3}, 0x20000")
                a(f"buffer_load_dword v{vdummy}, v{vaddr}, s[{tsrd}:{tsrd+3}], 0 offen")
        a(f"s_branch {end}")
        a.label(nx)
    a.label(end)

def phase1_dense(a):
    V = Regs(10)
    TP, TQ = 224, 256
    mp, mq = 7, 4
    Pop = OpNC(a, V, TP, 0, mp, F * 2)
    NBP, NBQ = (3, 2) if C.d1p else (2, 3)
    Qop = OpKC(a, V, TQ, NBP * Pop.bytes, mq); Qop.groups = [[0, 1, 2, 3]]
    G = Gemm(a, V, NBP, NBQ, Pop.bytes, Qop.bytes, mp, mq, (sBufD, sBufR, sTile, sTt, sCnt, sRole), False, 'P' if C.d1p else 'Q', 'd1')
    LDS1 = NBP * Pop.bytes + NBQ * Qop.bytes
    acc = V.get(4 * mp * mq, 2)
    vb = V.get(2 * mp, 2); vdum = V.get(4, 2)
    a(f"s_lshr_b32 s{sWp}, s{sWave}, 2"); a(f"s_and_b32 s{sWq}, s{sWave}, 3")
    a(f"s_mul_i32 s{T0}, s{sN}, {TP*2}")
    Pop.setup_dma(sWave, VT, T0, U0)
    Qop.lane_chunk(VT, VT + 1)
    a(f"v_lshrrev_b32 v{VT+1}, 3, v0"); a(f"v_lshl_add_u32 v{VT}, v{VT+1}, 11, v{VT}")
    for j in range(4):
        a(f"s_lshl_b32 s{T0}, s{sM}, 8"); a(f"s_lshl_b32 s{T1}, s{sWave}, 5"); a(f"s_add_u32 s{T0}, s{T0}, s{T1}")
        a(f"s_add_u32 s{T0}, s{T0}, {8*j}"); a(f"s_lshl_b32 s{T0}, s{T0}, 11"); a(f"s_sub_u32 s{T0}, s{T0}, {j*1024}")
        Qop.set_voff(j, VT, T0, bool(j & 1))
    Pop.setup_lds(sWave, sLdsP, U0)
    a(f"s_lshl_b32 s{sLdsQ}, s{sWave}, 12"); a(f"s_add_u32 s{sLdsQ}, s{sLdsQ}, {Qop.lds_off}")
    a(f"s_mul_i32 s{sKP}, s{sRot}, {64*F*2}"); a(f"s_lshl_b32 s{sKQ}, s{sRot}, 7")
    a("s_waitcnt lgkmcnt(0)")
    stamp(a, 1, st="pro")
    srd(a, SX, PTR["x"], L * D * 2); srd(a, SWS, PTR["ws"], WS_SIZE); srd(a, SDBG, PTR["dbg"], 256)
    srd(a, SA, PTR["w1"], D * F * 2)
    kadvP = [f"s_add_u32 s{sKP}, s{sKP}, {64*F*2}", f"s_cmp_eq_u32 s{sKP}, {D*F*2}", f"s_cselect_b32 s{sKP}, 0, s{sKP}"]
    kadvQ = [f"s_add_u32 s{sKQ}, s{sKQ}, 128", f"s_and_b32 s{sKQ}, s{sKQ}, 2047"]
    seg = Seg(Pop, Qop, acc, lambda b: Pop.dma(b, sKP, sTmp, sLdsP, SA, sWave), lambda b: Qop.dma(b, sKQ, sTmp, sLdsQ, [SX] * 4), kadvP, kadvQ, "d1")
    stages = [seg] * 16
    G.prologue(stages, "PQ", 0, 1)
    if C.pbar: a("s_barrier")
    if C.tlb: tlb_warm(a, 250, VT + 5, ["ws", "w2", "cre", "cim", "out", "dbg", "dsk", "b2"], SS); G.note('tlb', 1)
    stamp(a, 2, st="pro")
    a(f"s_mul_i32 s{T2}, s{sN}, {TP}"); a(f"s_mul_i32 s{T3}, s{sWp}, {mp*16}"); a(f"s_add_u32 s{T2}, s{T2}, s{T3}")
    a(f"s_lshl_b32 s{T3}, s{T2}, 1")
    a(f"v_lshrrev_b32 v{VT+2}, 4, v0"); a(f"v_lshlrev_b32 v{VT+2}, 3, v{VT+2}")
    srd(a, SS, PTR["b1"], F * 2)
    for i in range(mp):
        a(f"buffer_load_dwordx2 {vr(vb+2*i,2)}, v{VT+2}, s[{SS}:{SS+3}], s{T3} offen offset:{32*i}")
    G.note('misc', mp)
    a(f"s_mul_i32 s{T0}, s{sWp}, {mp}"); Pop.setup_read(T0, VT, U0)
    a(f"s_mul_i32 s{T0}, s{sWq}, {mq}"); Qop.setup_read(T0, VT, U0)
    stamp(a, 3, st="pro")
    G.prologue(stages, "PQ", 1)
    stamp(a, 4, st="pro")
    a(f"s_waitcnt vmcnt({G.vm_allow({'misc'})})")
    for i in range(mp):
        c = acc + 4 * (i * mq)
        a(f"v_lshlrev_b32 v{c}, 16, v{vb+2*i}"); a(f"v_and_b32 v{c+1}, 0xffff0000, v{vb+2*i}")
        a(f"v_lshlrev_b32 v{c+2}, 16, v{vb+2*i+1}"); a(f"v_and_b32 v{c+3}, 0xffff0000, v{vb+2*i+1}")
        for j in range(1, mq):
            for r in range(4): a(f"v_mov_b32 v{c+4*j+r}, v{c+r}")
    stamp(a, 1)
    G.pre_first = lambda: stamp(a, 5, st="pro")
    G.run(stages, {C.initit + 3: (lambda: init_signal(a, VT + 4))}, {C.initit: mb_zero_groups(VT + 2)}, (lambda: stamp(a, 6, st="pro")))
    stamp(a, 2)
    stamp(a, 1, st="clk"); stamp(a, 2, real=True, st="clk")
    PITCH = 464
    stamp(a, 1, st="dense")
    init_load(a)
    vw = VT
    a(f"v_and_b32 v{vw}, 15, v0"); a(f"v_mul_u32_u24 v{vw}, {PITCH}, v{vw}")
    a(f"v_lshrrev_b32 v{VT+1}, 4, v0"); a(f"v_lshl_add_u32 v{vw}, v{VT+1}, 3, v{vw}")
    a(f"s_mul_i32 s{T0}, s{sWq}, {64*PITCH}"); a(f"s_mul_i32 s{T1}, s{sWp}, 224"); a(f"s_add_u32 s{T0}, s{T0}, s{T1}")
    a(f"v_add_u32 v{vw}, s{T0}, v{vw}")
    vr_, vg_ = VT + 1, VT + 2
    a(f"v_cmp_le_u32 vcc, 28, v0"); a("s_nop 1")
    a(f"v_cndmask_b32 v{VT+3}, 0, 1, vcc")
    a(f"v_mul_u32_u24 v{VT+4}, 28, v{VT+3}"); a(f"v_sub_u32 v{VT+4}, v0, v{VT+4}")
    a(f"v_lshlrev_b32 v{VT+4}, 4, v{VT+4}")
    a(f"v_mul_u32_u24 v{vr_}, {PITCH}, v{VT+3}"); a(f"v_add_u32 v{vr_}, v{vr_}, v{VT+4}")
    NH = C.dparts; JP = mq // NH; RW = 8 * JP
    a(f"s_mul_i32 s{T0}, s{sWq}, {64*PITCH}"); a(f"s_mul_i32 s{T1}, s{sWp}, {RW*PITCH}"); a(f"s_add_u32 s{T0}, s{T0}, s{T1}")
    a(f"v_add_u32 v{vr_}, s{T0}, v{vr_}")
    a(f"v_mul_u32_u24 v{vg_}, {RS_A2}, v{VT+3}"); a(f"v_add_u32 v{vg_}, v{vg_}, v{VT+4}")
    a(f"s_lshl_b32 s{T0}, s{sM}, 8"); a(f"s_lshl_b32 s{T1}, s{sWq}, 6"); a(f"s_add_u32 s{T0}, s{T0}, s{T1}")
    a(f"s_mul_i32 s{T1}, s{sWp}, {RW}"); a(f"s_add_u32 s{T0}, s{T0}, s{T1}")
    a(f"s_mul_i32 s{T0}, s{T0}, {RS_A2}"); a(f"s_mul_i32 s{T1}, s{sN}, 448"); a(f"s_add_u32 s{T0}, s{T0}, s{T1}")
    a(f"s_add_u32 s{T0}, s{T0}, {WS_A2 + 4096}")
    rb = G.F[0][0]
    for p in range(NH):
        js = range(p * JP, (p + 1) * JP)
        for j in js:
            for i in range(mp):
                c = acc + 4 * (i * mq + j)
                for r in range(4): a(f"v_mul_f32_e64 v{c+r}, v{c+r}, |v{c+r}|")
                a(f"v_cvt_pk_bf16_f32 v{c}, v{c}, v{c+1}"); a(f"v_cvt_pk_bf16_f32 v{c+1}, v{c+2}, v{c+3}")
                a(f"v_pk_max_i16 v{c}, v{c}, 0"); a(f"v_pk_max_i16 v{c+1}, v{c+1}, 0")
        if p == 0:
            a("s_barrier")
            stamp(a, 2, st="dense")
        for j in js:
            for i in range(mp):
                c = acc + 4 * (i * mq + j)
                a(f"ds_write_b64 v{vw}, {vr(c,2)} offset:{j*16*PITCH + 32*i}")
        a("s_waitcnt lgkmcnt(0)")
        if p == 0: stamp(a, 3, st="dense")
        a("s_barrier")
        if p == 0: stamp(a, 4, st="dense")
        a("s_mov_b32 exec_hi, 0x00ffffff")
        nst = RW // 2
        for n in range(nst):
            a(f"ds_read_b128 {vr(rb+4*n,4)}, v{vr_} offset:{(16*JP*p + 2*n)*PITCH}")
        if p: a(f"s_add_u32 s{T0}, s{T0}, {(16*JP - RW)*RS_A2}")
        for n in range(nst):
            a(f"s_waitcnt lgkmcnt({nst-1-n})")
            a(f"buffer_store_dwordx4 {vr(rb+4*n,4)}, v{vg_}, s[{SWS}:{SWS+3}], s{T0} offen{C.wt}")
            a(f"s_add_u32 s{T0}, s{T0}, {2*RS_A2}")
        a("s_mov_b64 exec, -1")
        if p < NH - 1: a("s_nop 1")
    stamp(a, 5, st="dense")
    return V.hi, max(LDS1, 4 * 64 * PITCH)

def phase1_ssm(a):
    V = Regs(10)
    mp, mq = 4, 4
    Pop = OpKC(a, V, 256, 0, mp); Pop.groups = [[0, 1, 2, 3]]
    Qop = OpKC(a, V, 128, Pop.bytes, mq); Qop.groups = [[0], [1]]; Qop.ldsoffs = [0, 8192]
    Qop.frag_off = lambda j: ((j & 1) * 4 + (j >> 1)) * 2048
    SB = Pop.bytes + Qop.bytes; NB = 3
    G = Gemm(a, V, NB, NB, Pop.bytes, Qop.bytes, mp, mq, (sBufD, sBufR, None, None, sCnt, sRole), True, 'P', 's1')
    acc = V.get(64, 2); prm = V.get(12, 4); big = V.get(72, 4)
    AG = NB * SB
    a(f"s_lshr_b32 s{sWp}, s{sWave}, 1"); a(f"s_and_b32 s{sWq}, s{sWave}, 1")
    Pop.lane_chunk(VT, VT + 1)
    a(f"v_lshrrev_b32 v{VT+1}, 5, v0"); a(f"v_lshlrev_b32 v{VT+1}, 4, v{VT+1}")
    a(f"v_bfe_u32 v{VT+2}, v0, 3, 2"); a(f"v_add_u32 v{VT+1}, v{VT+1}, v{VT+2}")
    a(f"v_lshl_add_u32 v{VT+3}, v{VT+1}, 11, v{VT}")
    for j in range(4):
        a(f"s_lshl_b32 s{T0}, s{sWave}, 1");
        if j >> 1: a(f"s_add_u32 s{T0}, s{T0}, 1")
        a(f"s_and_b32 s{T0}, s{T0}, 3"); a(f"s_lshl_b32 s{T0}, s{T0}, 2")
        a(f"s_lshl_b32 s{T1}, s{sWp}, 6"); a(f"s_add_u32 s{T0}, s{T0}, s{T1}")
        a(f"s_lshl_b32 s{T1}, s{sM}, 8"); a(f"s_add_u32 s{T0}, s{T0}, s{T1}")
        if j & 1: a(f"s_add_u32 s{T0}, s{T0}, 32")
        a(f"s_lshl_b32 s{T0}, s{T0}, 11")
        if j: a(f"s_sub_u32 s{T0}, s{T0}, {j*1024}")
        Pop.set_voff(j, VT + 3, T0, bool(j & 1))
    a(f"v_lshrrev_b32 v{VT+1}, 3, v0"); a(f"v_lshl_add_u32 v{VT+3}, v{VT+1}, 12, v{VT}")
    a(f"s_lshr_b32 s{T0}, s{sWave}, 2"); a(f"s_lshl_b32 s{T0}, s{T0}, 5")
    a(f"s_and_b32 s{T1}, s{sWave}, 1"); a(f"s_lshl_b32 s{T2}, s{T1}, 6"); a(f"s_lshl_b32 s{T1}, s{T1}, 4"); a(f"s_add_u32 s{T0}, s{T0}, s{T1}")
    a(f"s_bfe_u32 s{T1}, s{sWave}, 0x10001"); a(f"s_add_u32 s{T0}, s{T0}, s{T1}")
    a(f"s_lshl_b32 s{T1}, s{sN}, 6"); a(f"s_add_u32 s{T0}, s{T0}, s{T1}"); a(f"s_lshl_b32 s{T0}, s{T0}, 11")
    Qop.set_voff(0, VT + 3, T0, T2)
    a(f"v_mov_b32 v{Qop.vd+1}, v{Qop.vd}")
    a(f"s_lshl_b32 s{sLdsP}, s{sWave}, 12")
    a(f"s_lshl_b32 s{sLdsQ}, s{sWave}, 10"); a(f"s_add_u32 s{sLdsQ}, s{sLdsQ}, {Qop.lds_off}")
    a(f"s_lshl_b32 s{sKQ}, s{sRot}, 7")
    a("s_waitcnt lgkmcnt(0)")
    srd(a, SX, PTR["x"], L * D * 2); srd(a, SWS, PTR["ws"], WS_SIZE); srd(a, SDBG, PTR["dbg"], 256)
    srd(a, SA, PTR["bre"], P_ * D * 2); srd(a, SB_, PTR["bim"], P_ * D * 2)
    pt = [big, big + 8, big + 16]
    kadv = [f"s_add_u32 s{sKQ}, s{sKQ}, 128", f"s_and_b32 s{sKQ}, s{sKQ}, 2047"]
    kadvP = [f"s_add_u32 s{sKP}, s{sKP}, 128", f"s_and_b32 s{sKP}, s{sKP}, 2047"]
    a(f"s_mov_b32 s{sKP}, s{sKQ}")
    seg = Seg(Pop, Qop, acc, lambda b: Pop.dma(b, sKP, sTmp, sLdsP, [SX] * 4), lambda b: Qop.dma(b, sKQ, sTmp, sLdsQ, [SA, SB_]), kadvP, kadv, "s1")
    if C.prefetch:
        SP1, SP2, sPF1, sPF2 = SS, 72, sLdsP2, sKP2
        a(f"s_lshl_b32 s{T0}, s{sM}, 4"); a(f"s_add_u32 s{T0}, s{T0}, s{sN}")
        a(f"s_mul_i32 s{sPF2}, s{T0}, {56*1024}"); a(f"s_mul_i32 s{T1}, s{sWave}, {7*1024}"); a(f"s_add_u32 s{sPF2}, s{sPF2}, s{T1}")
        a(f"s_mov_b32 s{SP2}, s{PTR['w2']}"); a(f"s_mov_b32 s{SP2+1}, s{PTR['w2']+1}")
        a(f"s_add_u32 s{SP2+2}, s{sPF2}, {7*1024}"); a(f"s_mov_b32 s{SP2+3}, 0x20000")
        a(f"s_lshr_b32 s{T1}, s{T0}, 6"); a(f"s_cmp_eq_u32 s{T1}, 0")
        a(f"s_cselect_b32 s{SP1}, s{PTR['cre']}, s{PTR['cim']}"); a(f"s_cselect_b32 s{SP1+1}, s{PTR['cre']+1}, s{PTR['cim']+1}")
        a(f"s_and_b32 s{sPF1}, s{T0}, 63"); a(f"s_lshl_b32 s{sPF1}, s{sPF1}, 15"); a(f"s_lshl_b32 s{T1}, s{sWave}, 12"); a(f"s_add_u32 s{sPF1}, s{sPF1}, s{T1}")
        a(f"s_add_u32 s{SP1+2}, s{sPF1}, 4096"); a(f"s_mov_b32 s{SP1+3}, 0x20000")
        vpf = V.get(1); vpd = V.get(4, 2)
        a(f"v_lshlrev_b32 v{vpf}, 4, v0")
        pf = []
        for i in range(4): pf.append([f"buffer_load_dwordx4 {vr(vpd,4)}, v{vpf}, s[{SP1}:{SP1+3}], s{sPF1} offen offset:{i*1024}"])
        for i in range(7):
            pf.append([f"buffer_load_dwordx4 {vr(vpd,4)}, v{vpf}, s[{SP2}:{SP2+3}], s{sPF2} offen offset:{(i%4)*1024}"] + ([f"s_add_u32 s{sPF2}, s{sPF2}, 4096"] if i == 3 else []))
        p1extras = {C.pfit: (pf, 11)}
    else:
        p1extras = {}
    stages = [seg] * 16
    G.prologue(stages, "PQ", 0, 1)
    a(f"s_mul_i32 s{T0}, s{sWp}, {mp}"); Pop.setup_read(T0, VT, U0)
    a(f"s_lshl_b32 s{T0}, s{sWq}, 1"); Qop.setup_read(T0, VT, U0)
    G.zero_first = True
    if C.pbar: a("s_barrier")
    if C.tlb: tlb_warm(a, 250, VT + 5, ["ws", "w2", "cre", "cim", "out", "dbg", "dsk", "b2", "lre", "lim", "ldt", "gw"], 60); G.note('tlb', 1)
    G.prologue(stages, "PQ", 1)
    SPRM = 60
    def prm_loads():
        out = []
        class Cap:
            def __call__(self, x): out.append([x])
        c = Cap()
        c(f"s_lshl_b32 s{T2}, s{sN}, 6"); c(f"s_lshl_b32 s{T3}, s{sWq}, 5"); c(f"s_add_u32 s{T3}, s{T3}, s{T2}")
        c(f"v_and_b32 v{VT}, 15, v0"); c(f"v_lshlrev_b32 v{VT}, 1, v{VT}"); c(f"v_add_u32 v{VT}, s{T3}, v{VT}")
        c(f"v_lshlrev_b32 v{pt[0]}, 1, v{VT}"); c(f"v_add_u32 v{pt[1]}, 2, v{pt[0]}")
        c(f"v_add_u32 v{pt[2]}, s{T2}, v0"); c(f"v_lshlrev_b32 v{pt[2]}, 1, v{pt[2]}")
        c(f"s_mov_b32 s{SPRM+2}, 2048"); c(f"s_mov_b32 s{SPRM+3}, 0x20000")
        for k, name in enumerate(("lre", "lim", "ldt")):
            out.append([f"s_mov_b32 s{SPRM}, s{PTR[name]}", f"s_mov_b32 s{SPRM+1}, s{PTR[name]+1}"] +
                       [f"buffer_load_ushort v{pt[q]+1+k}, v{pt[q]}, s[{SPRM}:{SPRM+3}], 0 offen" for q in range(3)])
        return out
    def prm_math():
        out = []
        class Cap:
            def __call__(self, x): out.append(x)
        c = Cap()
        ssm_params_compute(c, prm, pt[0]); ssm_params_compute(c, prm + 4, pt[1]); ssm_params_compute(c, prm + 8, pt[2], False)
        return [out[i:i + 4] for i in range(0, len(out), 4)]
    p1extras[3] = (prm_loads(), 9)
    p1extras[7] = (prm_math(), 0)
    stamp(a, 1)
    p1extras[C.initit] = mb_zero_groups(VT + 2, True)
    G.run(stages, {C.initit + 3: (lambda: init_signal(a, VT + 4))}, p1extras)
    stamp(a, 2)
    stamp(a, 1, st="clk"); stamp(a, 2, real=True, st="clk")
    stamp(a, 1, st="ssm")
    init_load(a)
    a("s_nop 7")
    def U(jc, ri, s): return acc + 4 * ((s >> 2) * 4 + 2 * jc + ri) + (s & 3)
    ag = big; tt = big + 4
    def scan_step(s):
        for jc in range(2):
            hr, hi_ = ag + 2 * jc, ag + 2 * jc + 1; lr = prm + 4 * jc; t0, t1 = tt + 2 * jc, tt + 2 * jc + 1
            a(f"v_fma_f32 v{t0}, v{lr}, v{hr}, v{U(jc,0,s)}"); a(f"v_fma_f32 v{t1}, v{lr}, v{hi_}, v{U(jc,1,s)}")
        for jc in range(2):
            hr, hi_ = ag + 2 * jc, ag + 2 * jc + 1; li = prm + 4 * jc + 1; t0, t1 = tt + 2 * jc, tt + 2 * jc + 1
            a(f"v_fma_f32 v{hi_}, v{li}, -v{hi_}, v{t0}")
            a(f"v_fma_f32 v{t1}, v{li}, v{hr}, v{t1}")
        for jc in range(2):
            hr, hi_ = ag + 2 * jc, ag + 2 * jc + 1; t1 = tt + 2 * jc + 1
            a(f"v_mov_b32 v{hr}, v{hi_}"); a(f"v_mov_b32 v{hi_}, v{t1}")
    for jc in range(2):
        a(f"v_mov_b32 v{ag+2*jc}, v{U(jc,0,0)}"); a(f"v_mov_b32 v{ag+2*jc+1}, v{U(jc,1,0)}")
    def scan2(s, src, dst):
        for jc in range(2):
            hr, hi_ = src + 2 * jc, src + 2 * jc + 1; lr = prm + 4 * jc; dr, di = dst + 2 * jc, dst + 2 * jc + 1
            a(f"v_fma_f32 v{dr}, v{lr}, v{hr}, v{U(jc,0,s)}"); a(f"v_fma_f32 v{di}, v{lr}, v{hi_}, v{U(jc,1,s)}")
        for jc in range(2):
            hr, hi_ = src + 2 * jc, src + 2 * jc + 1; li = prm + 4 * jc + 1; dr, di = dst + 2 * jc, dst + 2 * jc + 1
            a(f"v_fma_f32 v{dr}, -v{li}, v{hi_}, v{dr}"); a(f"v_fma_f32 v{di}, v{li}, v{hr}, v{di}")
    st = [ag, tt]
    for s in range(1, 16): scan2(s, st[(s - 1) & 1], st[s & 1])
    fin = st[15 & 1]
    vag = big + 8
    def calc_vag():
        a(f"v_lshrrev_b32 v{vag}, 4, v0"); a(f"s_lshl_b32 s{T0}, s{sWp}, 2"); a(f"v_add_u32 v{vag}, s{T0}, v{vag}")
        a(f"v_lshlrev_b32 v{vag}, 9, v{vag}")
        a(f"v_and_b32 v{big+9}, 15, v0"); a(f"v_lshlrev_b32 v{big+9}, 4, v{big+9}")
        a(f"s_lshl_b32 s{T0}, s{sWq}, 8"); a(f"s_add_u32 s{T0}, s{T0}, {AG}")
        a(f"v_add3_u32 v{vag}, v{vag}, v{big+9}, s{T0}")
    calc_vag()
    a(f"ds_write_b128 v{vag}, {vr(fin,4)}")
    a("s_waitcnt lgkmcnt(0)")
    a("s_barrier")
    stamp(a, 2, st="ssm")
    a(f"s_cmp_lg_u32 s{sWave}, 0")
    a("s_cbranch_scc1 L_s_gate")
    lr, li = prm + 8, prm + 9
    l16r, l16i, l256r, l256i = big + 10, big + 11, big + 12, big + 13
    er, ei = big + 14, big + 15
    w0 = big + 4
    A = big + 16; vl = big + 9
    a(f"v_lshlrev_b32 v{vl}, 3, v0"); a(f"v_add_u32 v{vl}, {AG}, v{vl}")
    for s in range(16): a(f"ds_read_b64 {vr(A+2*s,2)}, v{vl} offset:{s*512}")
    csq(a, l16r, l16i, lr, li, w0)
    for _ in range(3): csq(a, l16r, l16i, l16r, l16i, w0)
    csq(a, l256r, l256i, l16r, l16i, w0)
    for _ in range(3): csq(a, l256r, l256i, l256r, l256i, w0)
    a("s_waitcnt lgkmcnt(0)")
    x0, x1 = big + 6, big + 7
    for s in range(1, 16):
        pr, pi, cr_, ci_ = A + 2 * (s - 1), A + 2 * (s - 1) + 1, A + 2 * s, A + 2 * s + 1
        a(f"v_fma_f32 v{cr_}, v{l16r}, v{pr}, v{cr_}"); a(f"v_fma_f32 v{ci_}, v{l16r}, v{pi}, v{ci_}")
        a(f"v_fma_f32 v{cr_}, -v{l16i}, v{pi}, v{cr_}"); a(f"v_fma_f32 v{ci_}, v{l16i}, v{pr}, v{ci_}")
    er, ei = A + 30, A + 31
    vo = big + 8
    a(f"s_lshl_b32 s{T0}, s{sN}, 6"); a(f"v_add_u32 v{vo}, s{T0}, v0"); a(f"v_lshlrev_b32 v{vo}, 3, v{vo}")
    a(f"s_lshl_b32 s{T1}, s{sM}, 13"); a(f"s_add_u32 s{T1}, s{T1}, {WS_AGG}")
    a("s_waitcnt vmcnt(0)")
    init_check(a, big + 52)
    a(f"s_lshl_b32 s{T1}, s{sM}, 13"); a(f"s_add_u32 s{T1}, s{T1}, {WS_AGG}")
    a(f"buffer_store_dwordx2 {vr(er,2)}, v{vo}, s[{SWS}:{SWS+3}], s{T1} offen sc1")
    stamp(a, 3, st="ssm")
    cr, ci = big + 48, big + 49
    a(f"v_mov_b32 v{cr}, 0"); a(f"v_mov_b32 v{ci}, 0")
    a(f"s_cmp_eq_u32 s{sM}, 0"); a("s_cbranch_scc1 L_s_nolb")
    B = big + 50
    a(f"s_mov_b32 s{U2}, {C.spin}")
    a.label("L_s_lb")
    for j in range(7):
        if j: a(f"s_cmp_le_u32 s{sM}, {j}"); a("s_cbranch_scc1 L_s_lbw")
        a(f"s_mov_b32 s{T1}, {WS_AGG + j*8192}")
        a(f"buffer_load_dwordx2 {vr(B+2*j,2)}, v{vo}, s[{SWS}:{SWS+3}], s{T1} offen sc1")
    a.label("L_s_lbw")
    a("s_waitcnt vmcnt(0)")
    a(f"s_mov_b64 s[{U0}:{U1}], 0")
    for j in range(7):
        if j: a(f"s_cmp_le_u32 s{sM}, {j}"); a("s_cbranch_scc1 L_s_lbc")
        a(f"v_cmp_eq_u32 vcc, -1, v{B+2*j}"); a("s_nop 0"); a(f"s_or_b64 s[{U0}:{U1}], s[{U0}:{U1}], vcc")
        a(f"v_cmp_eq_u32 vcc, -1, v{B+2*j+1}"); a("s_nop 0"); a(f"s_or_b64 s[{U0}:{U1}], s[{U0}:{U1}], vcc")
    a.label("L_s_lbc")
    a(f"s_cmp_eq_u64 s[{U0}:{U1}], 0"); a("s_cbranch_scc1 L_s_lbok")
    a(f"s_sub_u32 s{U2}, s{U2}, 1"); a(f"s_cmp_eq_u32 s{U2}, 0"); a("s_cbranch_scc1 L_s_lbok")
    a(f"s_sleep {C.sleep}"); a("s_branch L_s_lb")
    a.label("L_s_lbok")
    for j in range(7):
        a(f"s_cmp_le_u32 s{sM}, {j}"); a("s_cbranch_scc1 L_s_nolb")
        a(f"v_fma_f32 v{x0}, v{l256r}, v{cr}, v{B+2*j}"); a(f"v_fma_f32 v{x1}, v{l256r}, v{ci}, v{B+2*j+1}")
        a(f"v_fma_f32 v{x0}, -v{l256i}, v{ci}, v{x0}"); a(f"v_fma_f32 v{ci}, v{l256i}, v{cr}, v{x1}")
        a(f"v_mov_b32 v{cr}, v{x0}")
    a.label("L_s_nolb")
    stamp(a, 4, st="ssm")
    a(f"ds_write_b64 v{vl}, {vr(cr,2)}")
    for s in range(1, 16):
        a(f"v_mul_f32 v{x0}, v{l16r}, v{cr}"); a(f"v_mul_f32 v{x1}, v{l16r}, v{ci}")
        a(f"v_fma_f32 v{x0}, -v{l16i}, v{ci}, v{x0}"); a(f"v_fma_f32 v{ci}, v{l16i}, v{cr}, v{x1}")
        a(f"v_mov_b32 v{cr}, v{x0}")
        a(f"v_add_f32 v{A+2*(s-1)}, v{A+2*(s-1)}, v{cr}"); a(f"v_add_f32 v{A+2*(s-1)+1}, v{A+2*(s-1)+1}, v{ci}")
        a(f"ds_write_b64 v{vl}, {vr(A+2*(s-1),2)} offset:{s*512}")
    a("s_waitcnt lgkmcnt(0)")
    a("s_branch L_s_wait")
    a.label("L_s_gate")
    gxs = [big + 16, big + 24, big + 32]; gws = big + 40; gt = big + 48
    a(f"s_lshl_b32 s{T0}, s{sM}, 8"); a(f"s_lshl_b32 s{T1}, s{sN}, 4"); a(f"s_add_u32 s{T0}, s{T0}, s{T1}")
    a(f"s_add_u32 s{T0}, s{T0}, s{sWave}"); a(f"s_sub_u32 s{T0}, s{T0}, 1")
    a(f"s_add_u32 s{T1}, s{T0}, 7"); a(f"s_add_u32 s{T2}, s{T0}, 14")
    a(f"v_lshlrev_b32 v{gt}, 5, v0")
    srd(a, SS, PTR["gw"], 2048)
    a(f"buffer_load_dwordx4 {vr(gws,4)}, v{gt}, s[{SS}:{SS+3}], 0 offen"); a(f"buffer_load_dwordx4 {vr(gws+4,4)}, v{gt}, s[{SS}:{SS+3}], 0 offen offset:16")
    gate_row_loads(a, T0, gxs[0], gt); gate_row_loads(a, T1, gxs[1], gt)
    a(f"s_cmp_gt_u32 s{sWave}, 2"); a("s_cbranch_scc1 L_s_g2")
    gate_row_loads(a, T2, gxs[2], gt)
    a("s_waitcnt vmcnt(0)")
    gate_compute(a, T2, gxs[2], gws, gt + 1)
    a.label("L_s_g2")
    a("s_waitcnt vmcnt(0)")
    gate_compute(a, T0, gxs[0], gws, gt + 1); gate_compute(a, T1, gxs[1], gws, gt + 1)
    a.label("L_s_wait")
    a("s_barrier")
    calc_vag()
    a(f"ds_read_b128 {vr(ag,4)}, v{vag}")
    PITCH = 272
    vw = big + 9
    a(f"v_lshrrev_b32 v{vw}, 4, v0"); a(f"v_lshlrev_b32 v{vw}, 4, v{vw}"); a(f"s_lshl_b32 s{T0}, s{sWp}, 6"); a(f"v_add_u32 v{vw}, s{T0}, v{vw}")
    a(f"v_mul_u32_u24 v{vw}, {PITCH}, v{vw}")
    a(f"v_and_b32 v{big+10}, 15, v0"); a(f"v_lshl_add_u32 v{vw}, v{big+10}, 2, v{vw}")
    a(f"s_lshl_b32 s{T0}, s{sWq}, 6"); a(f"v_add_u32 v{vw}, s{T0}, v{vw}")
    a("s_waitcnt lgkmcnt(0)")
    ore, oim, od = big + 12, big + 14, big + 16
    st = [ag, tt]
    for s in range(16):
        scan2(s, st[s & 1], st[(s + 1) & 1])
        h = st[(s + 1) & 1]
        for jc in range(2):
            hr, hi_ = h + 2 * jc, h + 2 * jc + 1; kr, ki = prm + 4 * jc + 2, prm + 4 * jc + 3
            a(f"v_mul_f32 v{ore+jc}, v{kr}, v{hr}"); a(f"v_mul_f32 v{oim+jc}, -v{kr}, v{hi_}")
        for jc in range(2):
            hr, hi_ = h + 2 * jc, h + 2 * jc + 1; kr, ki = prm + 4 * jc + 2, prm + 4 * jc + 3
            a(f"v_fma_f32 v{ore+jc}, -v{ki}, v{hi_}, v{ore+jc}"); a(f"v_fma_f32 v{oim+jc}, -v{ki}, v{hr}, v{oim+jc}")
        d = od + 2 * (s % 4)
        a(f"v_cvt_pk_bf16_f32 v{d}, v{ore}, v{ore+1}"); a(f"v_cvt_pk_bf16_f32 v{d+1}, v{oim}, v{oim+1}")
        a(f"ds_write_b32 v{vw}, v{d} offset:{s*PITCH}"); a(f"ds_write_b32 v{vw}, v{d+1} offset:{s*PITCH+128}")
    stamp(a, 5, st="ssm")
    vr_, vg_ = big + 10, big + 11
    a(f"v_lshrrev_b32 v{vr_}, 4, v0"); a(f"s_lshl_b32 s{T0}, s{sWave}, 5"); a(f"v_add_u32 v{vr_}, s{T0}, v{vr_}")
    a(f"s_lshl_b32 s{T1}, s{sM}, 8"); a(f"v_add_u32 v{vg_}, s{T1}, v{vr_}"); a(f"v_mul_u32_u24 v{vg_}, {RS_A2}, v{vg_}")
    a(f"v_mul_u32_u24 v{vr_}, {PITCH}, v{vr_}")
    a(f"v_and_b32 v{big+12}, 15, v0"); a(f"v_lshl_add_u32 v{vr_}, v{big+12}, 4, v{vr_}")
    a(f"v_and_b32 v{big+13}, 7, v0"); a(f"v_lshl_add_u32 v{vg_}, v{big+13}, 4, v{vg_}")
    a(f"v_bfe_u32 v{big+13}, v0, 3, 1"); a(f"v_lshl_add_u32 v{vg_}, v{big+13}, 11, v{vg_}")
    a(f"s_lshl_b32 s{T0}, s{sN}, 7"); a(f"s_add_u32 s{T0}, s{T0}, {WS_A2}")
    a("s_waitcnt lgkmcnt(0)")
    a("s_barrier")
    rb = acc
    for n in range(8): a(f"ds_read_b128 {vr(rb+4*n,4)}, v{vr_} offset:{4*n*PITCH}")
    for n in range(8):
        a(f"s_waitcnt lgkmcnt({7-n})")
        a(f"buffer_store_dwordx4 {vr(rb+4*n,4)}, v{vg_}, s[{SWS}:{SWS+3}], s{T0} offen{C.wt}")
        a(f"s_add_u32 s{T0}, s{T0}, {4*RS_A2}")
    stamp(a, 6, st="ssm")
    return V.hi, AG + 8192

def phase2(a, role):
    R = "A" if role == 0 else "B"
    SW2, SE = 24, 72
    NS = C.ns
    TQ = 128 if NS == 2 else 256
    TP, mp, mq, NB = 128, 4, NS, (4 if NS == 2 else 3)
    LG = 1 if NS == 2 else 2
    XS = 8 // NS
    sG, sKQ2 = 0, 3
    V = Regs(10)
    P1 = OpKC(a, V, TP, 0, mp); P1.groups = [[0, 1]]
    P2 = OpNC(a, V, TP, 0, mp, D * 2)
    Qop = OpKC(a, V, TQ, TP * 128, mq, flags=C.a2ld); Qop.groups = [list(range(Qop.n))]
    SB = TP * 128 + Qop.bytes
    G = Gemm(a, V, NB, NB, TP * 128, Qop.bytes, mp, mq, (sBufD, sBufR, None, None, sCnt, sRole), True, 'P' if NS == 2 else 'Q', 'p2')
    nf = mp * mq
    accD = V.get(4 * nf, 2)
    accS = V.get(4 * nf, 2)
    vg = V.get(2 * mq, 2); vep = V.get(4)
    vex = V.get(6 * mp, 2) if NS == 2 else G.F[0][0] + (32 if C.xbf16 else 0)
    if NS != 2 and not C.xbf16: vex = accS
    dense = 1 if role == 1 else 0
    a(f"s_and_b32 s{T0}, s2, 7"); a(f"s_lshr_b32 s{T1}, s2, 3")
    a(f"s_lshr_b32 s{sG}, s{T0}, {3-LG}")
    a(f"s_and_b32 s{T2}, s{T0}, {XS-1}"); a(f"s_lshl_b32 s{sTt}, s{T2}, 2"); a(f"s_bfe_u32 s{T2}, s{T1}, 0x20002"); a(f"s_add_u32 s{sTt}, s{sTt}, s{T2}")
    a(f"s_and_b32 s{T2}, s{sG}, 1")
    if dense: a(f"s_xor_b32 s{T2}, s{T2}, 1")
    a(f"s_lshl_b32 s{sDt}, s{T2}, 2"); a(f"s_and_b32 s{T2}, s{T1}, 3"); a(f"s_add_u32 s{sDt}, s{sDt}, s{T2}")
    a(f"s_lshl_b32 s{sTile}, s{sTt}, 3"); a(f"s_add_u32 s{sTile}, s{sTile}, s{sDt}")
    a(f"s_lshr_b32 s{sWp}, s{sWave}, 2"); a(f"s_and_b32 s{sWq}, s{sWave}, 3")
    srd(a, SW2, PTR["w2"], F * D * 2)
    a(f"s_lshr_b32 s{T0}, s{sG}, {LG-1}"); a(f"s_cmp_eq_u32 s{T0}, 0")
    a(f"s_cselect_b32 s{SA}, s{PTR['cre']}, s{PTR['cim']}"); a(f"s_cselect_b32 s{SA+1}, s{PTR['cre']+1}, s{PTR['cim']+1}")
    a(f"s_mov_b32 s{SA+2}, {D*P_*2}"); a(f"s_mov_b32 s{SA+3}, 0x20000")
    Qop.lane_chunk(VT, VT + 1)
    a(f"v_lshrrev_b32 v{VT+1}, 3, v0"); a(f"v_lshl_add_u32 v{VT+3}, v{VT+1}, 11, v{VT}")
    for j in range(2):
        a(f"s_lshl_b32 s{T0}, s{sDt}, 7"); a(f"s_lshl_b32 s{T1}, s{sWave}, 4"); a(f"s_add_u32 s{T0}, s{T0}, s{T1}")
        if j: a(f"s_add_u32 s{T0}, s{T0}, 8")
        a(f"s_lshl_b32 s{T0}, s{T0}, 11")
        if j: a(f"s_sub_u32 s{T0}, s{T0}, 1024")
        P1.set_voff(j, VT + 3, T0, bool(j & 1))
    a(f"s_lshl_b32 s{sLdsP}, s{sWave}, 11")
    a(f"s_lshl_b32 s{T0}, s{sDt}, 8")
    P2.setup_dma(sWave, VT + 4, T0, U0)
    P2.setup_lds(sWave, sLdsP2, U0)
    a(f"v_lshrrev_b32 v{VT+1}, 3, v0"); a(f"v_mul_u32_u24 v{VT+1}, {RS_A2}, v{VT+1}"); a(f"v_add_u32 v{VT+3}, v{VT+1}, v{VT}")
    for j in range(Qop.n):
        a(f"s_mul_i32 s{T0}, s{sWave}, {TQ//8}")
        if j: a(f"s_add_u32 s{T0}, s{T0}, {8*j}")
        a(f"s_lshr_b32 s{T1}, s{T0}, 4"); a(f"s_add_u32 s{T1}, s{T1}, s{sG}"); a(f"s_and_b32 s{T1}, s{T1}, {NS-1}"); a(f"s_lshl_b32 s{T1}, s{T1}, 4")
        a(f"s_andn2_b32 s{T0}, s{T0}, {(NS-1) << 4}"); a(f"s_or_b32 s{T0}, s{T0}, s{T1}")
        a(f"s_mul_i32 s{T1}, s{sTt}, {TQ}"); a(f"s_add_u32 s{T0}, s{T0}, s{T1}"); a(f"s_mul_i32 s{T0}, s{T0}, {RS_A2}")
        if j: a(f"s_sub_u32 s{T0}, s{T0}, {1024*j}")
        Qop.set_voff(j, VT + 3, T0, bool(j & 1))
    a(f"s_mul_i32 s{sLdsQ}, s{sWave}, {Qop.n*1024}"); a(f"s_add_u32 s{sLdsQ}, s{sLdsQ}, {Qop.lds_off}")
    K2 = C.k2 if NS == 4 else 0
    nS = 32 // NS; base = (56 - K2) // NS
    assert base * NS == 56 - K2
    nD = base + (C.delta if role == 0 else -C.delta)
    colsS = 2048 // NS
    a(f"s_mul_i32 s{sKQ}, s{sG}, {colsS*2}"); a(f"s_and_b32 s{sKP}, s{sKQ}, 2047")
    if WS_A2: a(f"s_add_u32 s{sKQ}, s{sKQ}, {WS_A2}")
    a(f"s_lshr_b32 s{T0}, s{sG}, 1"); a(f"s_mul_i32 s{T0}, s{T0}, {2*base}")
    a(f"s_and_b32 s{T1}, s{sG}, 1"); a(f"s_mul_i32 s{T1}, s{T1}, {2*base - nD}"); a(f"s_add_u32 s{T0}, s{T0}, s{T1}")
    a(f"s_mul_i32 s{sKP2}, s{T0}, {64*D*2}"); a(f"s_lshl_b32 s{sKQ2}, s{T0}, 7"); a(f"s_add_u32 s{sKQ2}, s{sKQ2}, {WS_A2 + 4096}")
    a(f"s_mul_i32 s{T0}, s{sWp}, {mp}")
    P1.setup_read(T0, VT, U0); P2.setup_read(T0, VT, U0)
    a(f"s_mul_i32 s{T0}, s{sWq}, {mq}"); Qop.setup_read(T0, VT, U0)
    qd = lambda b: Qop.dma(b, sKQ, sTmp, sLdsQ, [SWS] * Qop.n)
    qd2 = lambda b: Qop.dma(b, sKQ2, sTmp, sLdsQ, [SWS] * Qop.n)
    segD = Seg(P2, Qop, accD, lambda b: P2.dma(b, sKP2, sTmp, sLdsP2, SW2), qd2, [f"s_add_u32 s{sKP2}, s{sKP2}, {64*D*2}"], [f"s_add_u32 s{sKQ2}, s{sKQ2}, 128"], "d")
    segS = Seg(P1, Qop, accS, lambda b: P1.dma(b, sKP, sTmp, sLdsP, [SA] * 2), qd, [f"s_add_u32 s{sKP}, s{sKP}, 128"], [f"s_add_u32 s{sKQ}, s{sKQ}, 128"], "s")
    stages = [segS] * nS + [segD] * nD
    N = len(stages)
    a("s_barrier")
    G.prologue(stages, "P")
    nP0 = 2 * G.leadP
    G.zero_first = True
    post_first = None
    def chkS(ok):
        if NS == 2:
            a(f"s_add_u32 s{U0}, s{U0}, s{U1}"); a(f"s_cmp_eq_u32 s{U0}, 16"); a(f"s_cbranch_scc1 {ok}")
        else:
            a(f"s_bitcmp1_b32 s{sG}, 0"); a(f"s_cselect_b32 s{U0}, s{U1}, s{U0}"); a(f"s_cmp_eq_u32 s{U0}, 8"); a(f"s_cbranch_scc1 {ok}")
    if role == 0:
        a(f"s_waitcnt vmcnt({nP0})")
        a("s_barrier")
        stamp(a, 3)
        a(f"s_cmp_eq_u32 s{sWave}, 1"); a(f"s_cbranch_scc1 L_p2{R}_pl")
        a(f"s_cmp_lg_u32 s{sWave}, 0"); a(f"s_cbranch_scc1 L_p2{R}_dep")
        signal_cnt(a, "S", VT)
        a(f"s_branch L_p2{R}_dep")
        a.label(f"L_p2{R}_pl")
        poll_own(a, chkS, VT)
    else:
        stamp(a, 3)
        stamp(a, 6, st="dense")
        a(f"s_cmp_lg_u32 s{sWave}, 0"); a(f"s_cbranch_scc1 L_p2{R}_dep")
        poll_own(a, chkS, VT)
        def post_first():
            sk = newlabel("pf")
            a(f"s_cmp_lg_u32 s{sWave}, 0"); a(f"s_cbranch_scc1 {sk}")
            init_check(a, VT)
            signal_cnt(a, 2, VT)
            a.label(sk)
    a.label(f"L_p2{R}_dep")
    a("s_barrier")
    G.prologue(stages, "Q")
    hooks = {}
    def hookD():
        sk = newlabel("hk")
        stamp(a, 2, st="p2")
        a(f"s_cmp_lg_u32 s{sWave}, 0"); a(f"s_cbranch_scc1 {sk}")
        def chk(ok):
            a(f"s_add_u32 s{U0}, s{U0}, s{U1}"); a(f"s_add_u32 s{U0}, s{U0}, s{U3}"); a(f"s_cmp_eq_u32 s{U0}, 32"); a(f"s_cbranch_scc1 {ok}")
        poll_own(a, chk, VT)
        a.label(sk)
        stamp(a, 3, st="p2")
    hooks[nS - G.leadQ - (1 if G.early == 'Q' else 0)] = hookD
    sXD = 44
    vt_own, vxo, vd2, vl16 = vep, vep + 1, vep + 2, vep + 3
    vx_, vds, vb2 = vex, vex + 2 * mp, vex + 4 * mp
    ex = []
    ex.append([f"s_mul_i32 s{T0}, s{sTt}, {TQ}", f"s_mul_i32 s{T1}, s{sWq}, {16*mq}", f"s_add_u32 s{T0}, s{T0}, s{T1}",
               f"v_and_b32 v{vt_own}, 15, v0", f"v_add_u32 v{vt_own}, s{T0}, v{vt_own}", f"v_lshlrev_b32 v{vxo}, 3, v{vt_own}"])
    for j in range(mq):
        ex.append([f"s_add_u32 s{T0}, s{sG}, {j}", f"s_and_b32 s{T0}, s{T0}, {NS-1}", f"s_lshl_b32 s{T0}, s{T0}, 7", f"s_add_u32 s{T0}, s{T0}, {WS_G}",
                   f"buffer_load_dwordx2 {vr(vg+2*j,2)}, v{vxo}, s[{SWS}:{SWS+3}], s{T0} offen sc1"])
    ex.append([f"s_lshl_b32 s{T0}, s{sG}, 4", f"v_add_u32 v{vt_own}, s{T0}, v{vt_own}",
               f"v_lshrrev_b32 v{vd2}, 4, v0", f"v_lshlrev_b32 v{vd2}, 2, v{vd2}",
               f"s_lshl_b32 s{T0}, s{sDt}, 7", f"s_lshl_b32 s{T1}, s{sWp}, 6", f"s_add_u32 s{T0}, s{T0}, s{T1}",
               f"v_add_u32 v{vd2}, s{T0}, v{vd2}", f"v_lshlrev_b32 v{vd2}, 1, v{vd2}",
               f"v_lshl_add_u32 v{vxo}, v{vt_own}, 11, v{vd2}", f"v_lshlrev_b32 v{vl16}, 4, v0"])
    for j in range(1, mq):
        ex.append([f"s_add_u32 s{T1}, s{sG}, {j}", f"s_and_b32 s{T1}, s{T1}, {NS-1}",
                   f"s_mul_i32 s{T0}, s{T1}, {XS}", f"s_and_b32 s{T2}, s2, {XS-1}", f"s_add_u32 s{T0}, s{T0}, s{T2}",
                   f"s_lshr_b32 s{T2}, s{sDt}, 2", f"s_xor_b32 s{T2}, s{T2}, s{T1}", f"s_and_b32 s{T2}, s{T2}, 1", f"s_xor_b32 s{T2}, s{T2}, 1",
                   f"s_lshl_b32 s{T2}, s{T2}, 7", f"s_or_b32 s{T0}, s{T0}, s{T2}", f"s_and_b32 s{T2}, s2, 0x78", f"s_or_b32 s{T0}, s{T0}, s{T2}",
                   f"s_lshl_b32 s{T0}, s{T0}, 3", f"s_add_u32 s{T0}, s{T0}, s{sWave}", f"s_mul_i32 s{T0}, s{T0}, {4096*(NS-1)}",
                   f"s_add_u32 s{sXD+j-1}, s{T0}, {WS_XB + (NS - j - 1) * 4096}"])
    ex2 = []
    for i in range(mp):
        ex2.append([f"buffer_load_dwordx2 {vr(vx_+2*i,2)}, v{vxo}, s[{SX}:{SX+3}], 0 offen offset:{32*i}"])
    ex2.append([f"s_mov_b32 s{SE}, s{PTR['dsk']}", f"s_mov_b32 s{SE+1}, s{PTR['dsk']+1}", f"s_mov_b32 s{SE+2}, 2048", f"s_mov_b32 s{SE+3}, 0x20000"])
    for i in range(mp):
        ex2.append([f"buffer_load_dwordx2 {vr(vds+2*i,2)}, v{vd2}, s[{SE}:{SE+3}], 0 offen offset:{32*i}"])
    ex2.append([f"s_mov_b32 s{SE}, s{PTR['b2']}", f"s_mov_b32 s{SE+1}, s{PTR['b2']+1}"])
    for i in range(mp):
        ex2.append([f"buffer_load_dwordx2 {vr(vb2+2*i,2)}, v{vd2}, s[{SE}:{SE+3}], 0 offen offset:{32*i}"])
    if NS == 2: extras = {N - NB: (ex + ex2, mq + 3 * mp)}
    else: extras = {N - NB: (ex, mq)}
    stamp(a, 4)
    stamp(a, 1, st="p2")
    stamp(a, 3, st="clk"); stamp(a, 4, real=True, st="clk")
    G.run(stages, hooks, extras, post_first)
    stamp(a, 5)
    stamp(a, 4, st="p2")
    stamp(a, 5, st="clk"); stamp(a, 6, real=True, st="clk")
    stamp(a, 1, st="end")
    a("s_nop 7")
    a("s_waitcnt vmcnt(0)")
    def comb(i, j):
        c = 4 * (i * mq + j)
        for r in range(4):
            a(f"v_mul_f32 v{accD+c+r}, v{vg+2*j+1}, v{accD+c+r}"); a(f"v_fmac_f32 v{accD+c+r}, v{vg+2*j}, v{accS+c+r}")
    if K2:
        return phase2b(a, role, locals())
    late_ex2 = (NS != 2 and not C.xbf16)
    if late_ex2:
        for j in list(range(1, mq)) + [0]:
            for i in range(mp): comb(i, j)
    nst = (2 if C.xbf16 else 4) * (mq - 1)
    for j in range(1, mq):
        if not late_ex2:
            for i in range(mp): comb(i, j)
        if C.xbf16:
            for i2 in range(0, mp, 2):
                c0, c1 = accD + 4 * (i2 * mq + j), accD + 4 * ((i2 + 1) * mq + j)
                a(f"v_cvt_pk_bf16_f32 v{c0}, v{c0}, v{c0+1}"); a(f"v_cvt_pk_bf16_f32 v{c0+1}, v{c0+2}, v{c0+3}")
                a(f"v_cvt_pk_bf16_f32 v{c0+2}, v{c1}, v{c1+1}"); a(f"v_cvt_pk_bf16_f32 v{c0+3}, v{c1+2}, v{c1+3}")
                a(f"buffer_store_dwordx4 {vr(c0,4)}, v{vl16}, s[{SWS}:{SWS+3}], s{sXD+j-1} offen offset:{(i2//2)*1024} sc1")
        else:
            a("s_nop 1")
            for i in range(mp):
                c = accD + 4 * (i * mq + j)
                a(f"buffer_store_dwordx4 {vr(c,4)}, v{vl16}, s[{SWS}:{SWS+3}], s{sXD+j-1} offen offset:{i*1024} sc1")
    stamp(a, 2, st="end")
    n_ex2 = 0
    if NS != 2:
        for g_ in ex2: G.emit(g_)
        n_ex2 = 3 * mp
    if not late_ex2:
        for i in range(mp): comb(i, 0)
    t1, t2, t3 = VT + 5, VT + 6, VT + 7
    a(f"s_and_b32 s{T0}, s2, {XS-1}")
    a(f"v_mul_u32_u24 v{t1}, {XS}, v0"); a(f"v_add_u32 v{t1}, s{T0}, v{t1}")
    a(f"s_lshr_b32 s{T0}, s{sDt}, 2")
    a(f"v_and_b32 v{t2}, 1, v0"); a(f"v_xor_b32 v{t2}, s{T0}, v{t2}"); a(f"v_xor_b32 v{t2}, 1, v{t2}")
    a(f"s_lshr_b32 s{T0}, s2, 3"); a(f"s_and_b32 s{T0}, s{T0}, 15")
    a(f"v_lshlrev_b32 v{t2}, 4, v{t2}"); a(f"v_add_u32 v{t2}, s{T0}, v{t2}"); a(f"v_lshl_or_b32 v{t2}, v{t2}, 3, v{t1}")
    a(f"v_lshlrev_b32 v{t2}, 8, v{t2}")
    a(f"v_subrev_u32 v{t1}, s{sG}, v0"); a(f"v_and_b32 v{t1}, {NS-1}, v{t1}")
    a(f"v_sub_u32 v{t1}, {NS-1}, v{t1}"); a(f"v_lshl_add_u32 v{t2}, v{t1}, 2, v{t2}")
    a(f"v_mov_b32 v{t3}, 1")
    a(f"s_lshl_b32 s{T0}, 1, s{sG}"); a(f"s_andn2_b32 s{T0}, {(1 << NS) - 1}, s{T0}")
    a(f"s_lshl_b32 s{T1}, s{sWave}, 4"); a(f"s_add_u32 s{T1}, s{T1}, {WS_MB + 32}")
    a(f"s_waitcnt vmcnt({n_ex2})")
    stamp(a, 5, st="p2")
    stamp(a, 3, st="end")
    a(f"s_mov_b32 exec_lo, s{T0}"); a("s_mov_b32 exec_hi, 0")
    a(f"buffer_store_dword v{t3}, v{t2}, s[{SWS}:{SWS+3}], s{T1} offen sc1")
    a("s_mov_b64 exec, -1")
    if n_ex2: a("s_waitcnt vmcnt(1)")
    x0, x1, y0, y1 = VT, VT + 1, VT + 2, VT + 3
    for i in range(mp):
        e = accD + 4 * (i * mq)
        for h in range(2):
            a(f"v_lshlrev_b32 v{x0}, 16, v{vx_+2*i+h}"); a(f"v_and_b32 v{x1}, 0xffff0000, v{vx_+2*i+h}")
            a(f"v_lshlrev_b32 v{y0}, 16, v{vds+2*i+h}"); a(f"v_and_b32 v{y1}, 0xffff0000, v{vds+2*i+h}")
            a(f"v_mul_f32 v{x0}, v{x0}, v{y0}"); a(f"v_mul_f32 v{x1}, v{x1}, v{y1}")
            a(f"v_cvt_pk_bf16_f32 v{x0}, v{x0}, v{x1}")
            a(f"v_and_b32 v{x1}, 0xffff0000, v{x0}"); a(f"v_lshlrev_b32 v{x0}, 16, v{x0}")
            a(f"v_fmac_f32 v{e+2*h}, v{vg}, v{x0}"); a(f"v_fmac_f32 v{e+2*h+1}, v{vg}, v{x1}")
            a(f"v_lshlrev_b32 v{x0}, 16, v{vb2+2*i+h}"); a(f"v_and_b32 v{x1}, 0xffff0000, v{vb2+2*i+h}")
            a(f"v_fmac_f32 v{e+2*h}, v{vg+1}, v{x0}"); a(f"v_fmac_f32 v{e+2*h+1}, v{vg+1}, v{x1}")
    stamp(a, 4, st="end")
    a(f"s_lshl_b32 s{T3}, s2, 8"); a(f"s_add_u32 s{T3}, s{T3}, s{T1}")
    def chkx(ok):
        if NS == 4: a(f"s_and_b32 s{U0}, s{U0}, s{U1}"); a(f"s_and_b32 s{U0}, s{U0}, s{U3}")
        a(f"s_cmp_lg_u32 s{U0}, 0"); a(f"s_cbranch_scc1 {ok}")
    poll(a, SWS, T3, chkx, VT, wide=(4 if NS == 4 else 1), sleep=1)
    stamp(a, 5, st="end")
    rb = G.F[0][0]
    nrx = mp * (NS - 1)
    assert 2 * (4 * mp + 4 * mq) >= 4 * nrx
    inbox_offset(a, T0)
    per = 2 if C.xbf16 else 4
    for k in range(per * (NS - 1)):
        if k and k % per == 0: a(f"s_add_u32 s{T0}, s{T0}, 4096")
        a(f"buffer_load_dwordx4 {vr(rb+4*k,4)}, v{vl16}, s[{SWS}:{SWS+3}], s{T0} offen offset:{(k%per)*1024} sc1")
    srd(a, SE, PTR["out"], L * D * 4)
    vo = VT
    a(f"v_lshlrev_b32 v{vo}, 12, v{vt_own}"); a(f"v_lshl_add_u32 v{vo}, v{vd2}, 1, v{vo}")
    a("s_waitcnt vmcnt(0)")
    stamp(a, 6, st="end")
    for i in range(mp):
        e = accD + 4 * (i * mq)
        for k in range(NS - 1):
            if C.xbf16:
                src = rb + 8 * k + 4 * (i // 2) + 2 * (i % 2)
                x0, x1 = VT + 2, VT + 3
                for h in range(2):
                    a(f"v_lshlrev_b32 v{x0}, 16, v{src+h}"); a(f"v_and_b32 v{x1}, 0xffff0000, v{src+h}")
                    a(f"v_add_f32 v{e+2*h}, v{e+2*h}, v{x0}"); a(f"v_add_f32 v{e+2*h+1}, v{e+2*h+1}, v{x1}")
            else:
                for r in range(4): a(f"v_add_f32 v{e+r}, v{e+r}, v{rb+k*4*mp+4*i+r}")
        a(f"buffer_store_dwordx4 {vr(e,4)}, v{vo}, s[{SE}:{SE+3}], 0 offen offset:{64*i}{C.wto}")
    stamp(a, 6)
    stamp(a, 6, st="p2")
    return V.hi, NB * SB

def phase2b(a, role, L_):
    g = L_
    R, NS, XS, mp, mq, K2 = g["R"], g["NS"], g["XS"], g["mp"], g["mq"], g["K2"]
    accD, accS, vg, G, P2, Qop, SW2, SE = g["accD"], g["accS"], g["vg"], g["G"], g["P2"], g["Qop"], g["SW2"], g["SE"]
    sG, sKQ2, sXD, comb, V = g["sG"], g["sKQ2"], g["sXD"], g["comb"], g["V"]
    vt_own, vxo, vd2, vl16 = g["vt_own"], g["vxo"], g["vd2"], g["vl16"]
    assert C.xbf16 and NS == 4
    NB2 = 6
    Vq = Regs(Qop.vd)
    Q2 = OpKC(a, Vq, 64, 128 * 128, 1, flags=C.a2ld); Q2.groups = [[0]]
    assert Vq.hi <= Qop.c1 + 1
    Vf = Regs(G.F[0][0])
    G2 = Gemm(a, Vf, NB2, NB2, 128 * 128, Q2.bytes, mp, 1, (sBufD, sBufR, None, None, sCnt, sRole), True, 'P', 'p2b')
    G2.acc_stride = 4 * mq
    assert Vf.hi <= G.F[1][1] + 4 * mq
    Q2.lane_chunk(VT, VT + 1)
    a(f"v_lshrrev_b32 v{VT+1}, 3, v0"); a(f"v_mul_u32_u24 v{VT+1}, {RS_A2}, v{VT+1}"); a(f"v_add_u32 v{VT+3}, v{VT+1}, v{VT}")
    a(f"s_lshr_b32 s{T0}, s{sWave}, 1"); a(f"s_lshl_b32 s{T0}, s{T0}, 6"); a(f"s_and_b32 s{T1}, s{sWave}, 1"); a(f"s_lshl_b32 s{T2}, s{T1}, 6")
    a(f"s_lshl_b32 s{T1}, s{T1}, 3"); a(f"s_add_u32 s{T0}, s{T0}, s{T1}"); a(f"s_lshl_b32 s{T1}, s{sG}, 4"); a(f"s_add_u32 s{T0}, s{T0}, s{T1}")
    a(f"s_lshl_b32 s{T1}, s{sTt}, 8"); a(f"s_add_u32 s{T0}, s{T0}, s{T1}"); a(f"s_mul_i32 s{T0}, s{T0}, {RS_A2}")
    Q2.set_voff(0, VT + 3, T0, T2)
    a(f"s_lshl_b32 s{sLdsQ}, s{sWave}, 10"); a(f"s_add_u32 s{sLdsQ}, s{sLdsQ}, {Q2.lds_off}")
    Q2.setup_read(sWq, VT, U0)
    a(f"s_mov_b32 s{sKP2}, {(56-K2)*64*D*2}"); a(f"s_mov_b32 s{sKQ2}, {WS_A2 + 4096 + (56-K2)*128}")
    seg2 = Seg(P2, Q2, accD, lambda b: P2.dma(b, sKP2, sTmp, sLdsP2, SW2), lambda b: Q2.dma(b, sKQ2, sTmp, sLdsQ, [SWS]),
               [f"s_add_u32 s{sKP2}, s{sKP2}, {64*D*2}"], [f"s_add_u32 s{sKQ2}, s{sKQ2}, 128"], "b")
    st2 = [seg2] * K2
    a("s_barrier")
    G2.prologue(st2)
    for j in range(1, mq):
        for i in range(mp): comb(i, j)
        for i2 in range(0, mp, 2):
            c0, c1 = accD + 4 * (i2 * mq + j), accD + 4 * ((i2 + 1) * mq + j)
            a(f"v_cvt_pk_bf16_f32 v{c0}, v{c0}, v{c0+1}"); a(f"v_cvt_pk_bf16_f32 v{c0+1}, v{c0+2}, v{c0+3}")
            a(f"v_cvt_pk_bf16_f32 v{c0+2}, v{c1}, v{c1+1}"); a(f"v_cvt_pk_bf16_f32 v{c0+3}, v{c1+2}, v{c1+3}")
            a(f"buffer_store_dwordx4 {vr(c0,4)}, v{vl16}, s[{SWS}:{SWS+3}], s{sXD+j-1} offen offset:{(i2//2)*1024} sc1")
    G2.note('xs', 6)
    stamp(a, 2, st="end")
    vx_, vds, vb2 = accS + 4, accS + 20, accS + 36
    for i in range(mp): a(f"buffer_load_dwordx2 {vr(vx_+2*i,2)}, v{vxo}, s[{SX}:{SX+3}], 0 offen offset:{32*i}")
    srd(a, SE, PTR["dsk"], 2048)
    for i in range(mp): a(f"buffer_load_dwordx2 {vr(vds+2*i,2)}, v{vd2}, s[{SE}:{SE+3}], 0 offen offset:{32*i}")
    a(f"s_mov_b32 s{SE}, s{PTR['b2']}"); a(f"s_mov_b32 s{SE+1}, s{PTR['b2']+1}")
    for i in range(mp): a(f"buffer_load_dwordx2 {vr(vb2+2*i,2)}, v{vd2}, s[{SE}:{SE+3}], 0 offen offset:{32*i}")
    G2.note('ex2', 12)
    t1, t2, t3 = VT + 5, VT + 6, VT + 7
    sMask, sFl = sXD + 3, sXD + 4
    a(f"s_and_b32 s{T0}, s2, {XS-1}")
    a(f"v_mul_u32_u24 v{t1}, {XS}, v0"); a(f"v_add_u32 v{t1}, s{T0}, v{t1}")
    a(f"s_lshr_b32 s{T0}, s{sDt}, 2")
    a(f"v_and_b32 v{t2}, 1, v0"); a(f"v_xor_b32 v{t2}, s{T0}, v{t2}"); a(f"v_xor_b32 v{t2}, 1, v{t2}")
    a(f"s_lshr_b32 s{T0}, s2, 3"); a(f"s_and_b32 s{T0}, s{T0}, 15")
    a(f"v_lshlrev_b32 v{t2}, 4, v{t2}"); a(f"v_add_u32 v{t2}, s{T0}, v{t2}"); a(f"v_lshl_or_b32 v{t2}, v{t2}, 3, v{t1}")
    a(f"v_lshlrev_b32 v{t2}, 8, v{t2}")
    a(f"v_subrev_u32 v{t1}, s{sG}, v0"); a(f"v_and_b32 v{t1}, {NS-1}, v{t1}")
    a(f"v_sub_u32 v{t1}, {NS-1}, v{t1}"); a(f"v_lshl_add_u32 v{t2}, v{t1}, 2, v{t2}")
    a(f"v_mov_b32 v{t3}, 1")
    a(f"s_lshl_b32 s{sMask}, 1, s{sG}"); a(f"s_andn2_b32 s{sMask}, {(1 << NS) - 1}, s{sMask}")
    a(f"s_lshl_b32 s{sFl}, s{sWave}, 4"); a(f"s_add_u32 s{sFl}, s{sFl}, {WS_MB + 32}")
    def flag():
        a(f"s_mov_b32 exec_lo, s{sMask}"); a("s_mov_b32 exec_hi, 0")
        a(f"buffer_store_dword v{t3}, v{t2}, s[{SWS}:{SWS+3}], s{sFl} offen sc1")
        a("s_mov_b64 exec, -1")
    fit = C.flagit
    def hookF():
        a(f"s_waitcnt vmcnt({G2.allow_at[fit]})")
        flag()
    G2.want_allow = {fit: 'xs'}
    G2.run(st2, {fit: hookF})
    stamp(a, 3, st="end")
    a("s_nop 7")
    a("s_waitcnt vmcnt(0)")
    a(f"s_lshl_b32 s{T3}, s2, 8"); a(f"s_add_u32 s{T3}, s{T3}, s{sFl}")
    def chkx(ok):
        a(f"s_and_b32 s{U0}, s{U0}, s{U1}"); a(f"s_and_b32 s{U0}, s{U0}, s{U3}")
        a(f"s_cmp_lg_u32 s{U0}, 0"); a(f"s_cbranch_scc1 {ok}")
    poll(a, SWS, T3, chkx, VT, wide=4, sleep=1)
    stamp(a, 4, st="end")
    rbq = [accD + 4, accD + 8, accD + 12, accD + 20, accD + 24, accD + 28]
    inbox_offset(a, T0)
    for k in range(6):
        if k and k % 2 == 0: a(f"s_add_u32 s{T0}, s{T0}, 4096")
        a(f"buffer_load_dwordx4 {vr(rbq[k],4)}, v{vl16}, s[{SWS}:{SWS+3}], s{T0} offen offset:{(k%2)*1024} sc1")
    for i in range(mp): comb(i, 0)
    x0, x1, y0, y1 = VT, VT + 1, VT + 2, VT + 3
    for i in range(mp):
        e = accD + 4 * (i * mq)
        for h in range(2):
            a(f"v_lshlrev_b32 v{x0}, 16, v{vx_+2*i+h}"); a(f"v_and_b32 v{x1}, 0xffff0000, v{vx_+2*i+h}")
            a(f"v_lshlrev_b32 v{y0}, 16, v{vds+2*i+h}"); a(f"v_and_b32 v{y1}, 0xffff0000, v{vds+2*i+h}")
            a(f"v_mul_f32 v{x0}, v{x0}, v{y0}"); a(f"v_mul_f32 v{x1}, v{x1}, v{y1}")
            a(f"v_cvt_pk_bf16_f32 v{x0}, v{x0}, v{x1}")
            a(f"v_and_b32 v{x1}, 0xffff0000, v{x0}"); a(f"v_lshlrev_b32 v{x0}, 16, v{x0}")
            a(f"v_fmac_f32 v{e+2*h}, v{vg}, v{x0}"); a(f"v_fmac_f32 v{e+2*h+1}, v{vg}, v{x1}")
            a(f"v_lshlrev_b32 v{x0}, 16, v{vb2+2*i+h}"); a(f"v_and_b32 v{x1}, 0xffff0000, v{vb2+2*i+h}")
            a(f"v_fmac_f32 v{e+2*h}, v{vg+1}, v{x0}"); a(f"v_fmac_f32 v{e+2*h+1}, v{vg+1}, v{x1}")
    srd(a, SE, PTR["out"], L * D * 4)
    vo = VT
    a(f"v_lshlrev_b32 v{vo}, 12, v{vt_own}"); a(f"v_lshl_add_u32 v{vo}, v{vd2}, 1, v{vo}")
    a("s_waitcnt vmcnt(0)")
    stamp(a, 5, st="end")
    for i in range(mp):
        e = accD + 4 * (i * mq)
        for k in range(NS - 1):
            src = rbq[2 * k + i // 2] + 2 * (i % 2)
            x0, x1 = VT + 2, VT + 3
            for h in range(2):
                a(f"v_lshlrev_b32 v{x0}, 16, v{src+h}"); a(f"v_and_b32 v{x1}, 0xffff0000, v{src+h}")
                a(f"v_add_f32 v{e+2*h}, v{e+2*h}, v{x0}"); a(f"v_add_f32 v{e+2*h+1}, v{e+2*h+1}, v{x1}")
        a(f"buffer_store_dwordx4 {vr(e,4)}, v{vo}, s[{SE}:{SE+3}], 0 offen offset:{64*i}{C.wto}")
    stamp(a, 6)
    stamp(a, 6, st="p2"); stamp(a, 6, st="end")
    return V.hi, max(g["NB"] * g["SB"], NB2 * (128 * 128 + Q2.bytes))

def emit_stamps(a):
    a("s_memrealtime s[88:89]"); a("s_waitcnt lgkmcnt(0)")
    a(f"s_cmp_lg_u32 s{sWave}, {C.stwave}"); a("s_cbranch_scc1 L_end")
    a("s_waitcnt vmcnt(0)")
    for i in range(1, 7): a(f"s_sub_u32 s{92+i}, s{92+i}, s92")
    a("s_mov_b32 s99, s100")
    a("s_nop 0")
    a(f"s_mov_b32 s100, s88")
    for i in range(8): a(f"v_mov_b32 v{12+i}, s{93+i}")
    a("v_mov_b32 v11, 0")
    if C.dbgout:
        a("s_and_b32 s76, s2, 127"); a("s_cmp_lg_u32 s76, 0"); a("s_cbranch_scc1 L_end")
        a("s_sub_u32 s77, s100, s99"); a("v_mov_b32 v18, s77")
        a("s_lshr_b32 s76, s2, 7"); a("s_mul_i32 s76, s76, 28"); a("s_add_u32 s76, s76, 8")
        a("s_mov_b64 exec, 1")
        for i in range(7): a(f"buffer_store_dword v{12+i}, v11, s[{SDBG}:{SDBG+3}], s76 offen offset:{4*i}")
        return
    a(f"s_lshl_b32 s{T0}, s2, 5"); a(f"s_add_u32 s{T0}, s{T0}, {WS_ST}")
    a("s_mov_b64 exec, 1")
    a(f"buffer_store_dwordx4 v[12:15], v11, s[{SWS}:{SWS+3}], s{T0} offen")
    a(f"buffer_store_dwordx4 v[16:19], v11, s[{SWS}:{SWS+3}], s{T0} offen offset:16")

HEADER = open("gated_mix__ssm_conv_s5__dense_activation_squared_relu__prompt.s.ref").read().split("; Override launch")[0]

def generate(**kw):
    for k, v in kw.items():
        assert hasattr(C, k), k
        setattr(C, k, v)
    _lbl[0] = 0
    a = Asm()
    kernel_header(a, NAME)
    a("s_cmp_ge_u32 s2, 256"); a("s_cbranch_scc1 L_end")
    a("s_load_dwordx16 s[40:55], s[0:1], 0"); a("s_load_dwordx16 s[56:71], s[0:1], 64"); a("s_load_dwordx4 s[72:75], s[0:1], 128")
    if C.dbgst:
        a("s_memtime s[92:93]"); a("s_memrealtime s[100:101]")
    if C.codepf:
        a("s_getpc_b64 s[4:5]")
        a.label("L_pc")
        a("v_lshlrev_b32 v2, 7, v0")
        a("v_min_u32 v2, L_codeend-L_pc-4, v2")
        a("global_load_dword v250, v2, s[4:5]")
    a("v_lshrrev_b32 v1, 6, v0"); a("v_and_b32 v0, 63, v0"); a(f"v_readfirstlane_b32 s{sWave}, v1")
    a(f"s_and_b32 s{T0}, s2, 7"); a(f"s_lshr_b32 s{T1}, s2, 3")
    a(f"s_lshr_b32 s{sRole}, s{T1}, 4")
    a(f"s_bfe_u32 s{T2}, s{T1}, 0x20002"); a(f"s_and_b32 s{T3}, s{T1}, 3")
    a(f"s_lshr_b32 s{sM}, s{T0}, 2"); a(f"s_lshl_b32 s{sM}, s{sM}, 2"); a(f"s_add_u32 s{sM}, s{sM}, s{T2}")
    a(f"s_and_b32 s{sN}, s{T0}, 3"); a(f"s_lshl_b32 s{sN}, s{sN}, 2"); a(f"s_add_u32 s{sN}, s{sN}, s{T3}")
    mode = C.rot
    if mode is True: mode = 1
    if mode == 1:
        a(f"s_lshl_b32 s{sRot}, s{sRole}, 2"); a(f"s_add_u32 s{sRot}, s{sRot}, s{T3}"); a(f"s_lshl_b32 s{sRot}, s{sRot}, 1")
        a(f"s_lshl_b32 s{T2}, s{T2}, 2"); a(f"s_add_u32 s{sRot}, s{sRot}, s{T2}"); a(f"s_and_b32 s{T0}, s{T0}, 3")
        a(f"s_add_u32 s{sRot}, s{sRot}, s{T0}"); a(f"s_and_b32 s{sRot}, s{sRot}, 15")
    elif mode == 2:
        a(f"s_and_b32 s{sRot}, s{T0}, 3"); a(f"s_lshl_b32 s{sRot}, s{sRot}, 2"); a(f"s_lshr_b32 s{T0}, s{T0}, 2"); a(f"s_lshl_b32 s{T0}, s{T0}, 1")
        a(f"s_add_u32 s{sRot}, s{sRot}, s{T0}"); a(f"s_and_b32 s{sRot}, s{sRot}, 15")
    elif mode == 3:
        a(f"s_and_b32 s{sRot}, s{T0}, 3"); a(f"s_lshl_b32 s{sRot}, s{sRot}, 2"); a(f"s_lshr_b32 s{T0}, s{T0}, 2"); a(f"s_lshl_b32 s{T0}, s{T0}, 3")
        a(f"s_add_u32 s{sRot}, s{sRot}, s{T0}"); a(f"s_xor_b32 s{T2}, s{T2}, s{T3}"); a(f"s_and_b32 s{T2}, s{T2}, 1"); a(f"s_lshl_b32 s{T2}, s{T2}, 3")
        a(f"s_add_u32 s{sRot}, s{sRot}, s{T2}"); a(f"s_and_b32 s{sRot}, s{sRot}, 15")
    elif mode == 4:
        a(f"s_xor_b32 s{T2}, s{T2}, s{T3}"); a(f"s_and_b32 s{T2}, s{T2}, 1"); a(f"s_lshl_b32 s{sRot}, s{T2}, 3")
        a(f"s_and_b32 s{T0}, s{T0}, 3"); a(f"s_lshl_b32 s{T0}, s{T0}, 1"); a(f"s_add_u32 s{sRot}, s{sRot}, s{T0}"); a(f"s_and_b32 s{sRot}, s{sRot}, 15")
    elif mode == 5:
        a(f"s_and_b32 s{sRot}, s{T0}, 3"); a(f"s_lshl_b32 s{sRot}, s{sRot}, 2")
    elif mode == 6:
        a(f"s_lshl_b32 s{sRot}, s{T2}, 2"); a(f"s_and_b32 s{T0}, s{T0}, 3"); a(f"s_add_u32 s{sRot}, s{sRot}, s{T0}"); a(f"s_and_b32 s{sRot}, s{sRot}, 15")
    elif mode == 7:
        a(f"s_lshl_b32 s{sRot}, s{T3}, 2"); a(f"s_and_b32 s{T0}, s{T0}, 3"); a(f"s_add_u32 s{sRot}, s{sRot}, s{T0}"); a(f"s_and_b32 s{sRot}, s{sRot}, 15")
    else:
        a(f"s_mov_b32 s{sRot}, 0")
    if C.dbgst:
        pass
    a(f"s_cmp_eq_u32 s{sRole}, 1"); a("s_cbranch_scc1 L_ssm")
    v1, l1 = phase1_dense(a)
    v2, l2 = phase2(a, 1)
    a("s_branch L_fin")
    a.label("L_ssm")
    v3, l3 = phase1_ssm(a)
    v4, l4 = phase2(a, 0)
    a.label("L_fin")
    if C.dbgst: emit_stamps(a)
    a.label("L_end")
    a("s_endpgm")
    a.label("L_codeend")
    nv = max(v1, v2, v3, v4); lds = max(l1, l2, l3, l4)
    assert nv <= 250
    if C.codepf or C.tlb: nv = 251
    head = HEADER + f"; @launch grid=(256,1,1) block=(512,1,1) lds={lds}\n"
    head += '.amdgcn_target "amdgcn-amd-amdhsa--gfx950"\n.text\n'
    return head + a.text() + '.section .rodata,"a"\n' + kernel_desc(NAME, nv, 102)

if __name__ == "__main__":
    kw = json.loads(sys.argv[2]) if len(sys.argv) > 2 else {}
    open(sys.argv[1], "w").write(generate(**kw))
```

```python
import sys, math, json
from asmlib import *

NAME = "gated_mix__ssm_conv_s5__dense_activation_squared_relu__prompt_kernel"
L, D, P_, F = 2048, 1024, 1024, 3584
KC = 2048 + F
RS_A2 = KC * 2
KA = dict(x=0, lre=8, lim=16, bre=24, bim=32, cre=40, cim=48, ldt=56, dsk=64, bx=72, w1=80, b1=88, w2=96, b2=104, gw=112, out=120, dbg=128, ws=136)
WS_A2 = 0
WS_G = 24 << 20
WS_AGG = WS_G + (1 << 16)
WS_MB = WS_AGG + (1 << 17)
WS_ST = WS_AGG + (1 << 18)
WS_XB = 32 << 20
WS_SIZE = 268435456
LOG2E = 0x3fb8aa3b
INV2PI = 0x3e22f983
PTR = {k: 40 + v // 4 for k, v in KA.items()}
DBG_LB = 0
DBG_CNT = 16
DBG_XF = 32

class Cfg:
    dbgst = False; rot = 4; nodma = False; noread = False; prefetch = True
    nAd = 24
    nBs = 8
    ns = 4
    delta = 2
    wt = " sc1"
    a2ld = " sc1"
    wto = ""
    spin = 300000
    sleep = 2
    early = True
    dearly = True
    fine = True
    dparts = 4
    sparts = 2
    d1p = False
    k2 = 0
    flagit = 3
    dbgout = False
    xbf16 = True
    loop = {}
    inboxit = 18
    initit = 4
    tlb = False
    tlbshift = 21
    codepf = True
    pbar = False
    bulk = False
    pflist = [('w1',0),('x',0),('bre',0),('bim',0),('cre',0),('cim',0),('w2',0)]
    pfit = 13
    span = 1.0
    prio = True
    nbq = 3
    stampset = 'main'
    stwave = 0
C = Cfg()

class Regs:
    def __init__(self, start, limit=256):
        self.n = start; self.limit = limit; self.hi = start
    def get(self, k=1, align=1):
        self.n = (self.n + align - 1) // align * align
        r = self.n; self.n += k
        self.hi = max(self.hi, self.n)
        assert self.n <= self.limit, f"out of registers {self.n} > {self.limit}"
        return r

def srd(a, s, ptr_lo, size):
    if s != ptr_lo:
        a(f"s_mov_b32 s{s}, s{ptr_lo}"); a(f"s_mov_b32 s{s+1}, s{ptr_lo+1}")
    a(f"s_mov_b32 s{s+2}, {size}"); a(f"s_mov_b32 s{s+3}, 0x20000")

_lbl = [0]
def newlabel(p):
    _lbl[0] += 1
    return f"L_{p}{_lbl[0]}"

class OpKC:
    def __init__(self, a, V, T, lds_off, nfr, flags=""):
        self.a, self.T, self.lds_off, self.nfr, self.flags = a, T, lds_off, nfr, flags
        self.n = T // 64
        self.vd = V.get(self.n)
        self.b0 = V.get(); self.c0 = V.get(); self.c1 = V.get()
        self.bytes = T * 128
        self.ldsoffs = [j * 1024 for j in range(self.n)]
    def lane_chunk(self, vdst, t):
        a = self.a
        a(f"v_and_b32 v{vdst}, 7, v0"); a(f"v_lshrrev_b32 v{t}, 4, v0")
        a(f"v_xor_b32 v{vdst}, v{vdst}, v{t}"); a(f"v_lshlrev_b32 v{vdst}, 4, v{vdst}")
    def set_voff(self, j, vlane, sRowBytes, xor64, comp=True):
        a = self.a; d = self.vd + j
        src = vlane
        if xor64 is True:
            a(f"v_xor_b32 v{d}, 64, v{vlane}"); src = d
        elif xor64 is not False:
            a(f"v_xor_b32 v{d}, s{xor64}, v{vlane}"); src = d
        a(f"v_add_u32 v{d}, s{sRowBytes}, v{src}")
    def dma(self, sBuf, sK, stmp, sLds, srds, groups=None):
        g = []
        for grp_i in self.groups:
            for n_, j in enumerate(grp_i):
                grp = []
                if n_ == 0:
                    grp.append(f"s_add_u32 s{stmp}, s{sBuf}, s{sLds}")
                    if self.ldsoffs[j]: grp.append(f"s_add_u32 s{stmp}, s{stmp}, {self.ldsoffs[j]}")
                    grp.append(f"s_mov_b32 m0, s{stmp}")
                    grp.append("s_nop 0")
                off = f" offset:{n_*1024}" if n_ else ""
                s = srds[j]
                grp.append(f"buffer_load_dwordx4 v{self.vd+j}, s[{s}:{s+3}], s{sK} offen{off}{self.flags} lds")
                g.append(grp)
        return g
    def count(self): return (self.n, self.n)
    def setup_read(self, sFrag0, tmp, stmp):
        a = self.a; t0, t1, t2 = tmp, tmp + 1, tmp + 2
        a(f"v_and_b32 v{t0}, 15, v0"); a(f"v_lshrrev_b32 v{t1}, 4, v0"); a(f"v_lshrrev_b32 v{t2}, 1, v{t0}")
        a(f"v_xor_b32 v{t1}, v{t1}, v{t2}"); a(f"v_lshlrev_b32 v{t1}, 4, v{t1}")
        a(f"v_lshl_add_u32 v{t0}, v{t0}, 7, v{t1}")
        a(f"s_lshl_b32 s{stmp}, s{sFrag0}, 11")
        if self.lds_off: a(f"s_add_u32 s{stmp}, s{stmp}, {self.lds_off}")
        a(f"v_add_u32 v{self.b0}, s{stmp}, v{t0}")
    def init_cur(self):
        return [f"v_mov_b32 v{self.c0}, v{self.b0}", f"v_xor_b32 v{self.c1}, 64, v{self.b0}"]
    def frag_off(self, i): return i * 2048
    def reads(self, ks, dst):
        if C.noread: return []
        c = self.c1 if ks else self.c0
        return [[f"ds_read_b128 {vr(dst+4*i,4)}, v{c} offset:{self.frag_off(i)}"] for i in range(self.nfr)]
    def upd_A(self, sBuf): return [f"v_add_u32 v{self.c0}, s{sBuf}, v{self.b0}"]
    def upd_B(self, sBuf): return [f"v_xor_b32 v{self.c1}, 64, v{self.c0}"]

class OpNC:
    def __init__(self, a, V, T, lds_off, nfr, RS, NW=8):
        self.a, self.T, self.lds_off, self.nfr, self.RS = a, T, lds_off, nfr, RS
        self.RP = T * 2; self.CH = self.RP // 16
        self.total = self.CH
        self.n = -(-self.total // NW)
        self.even = (self.total % NW == 0)
        self.nbig = NW if self.even else self.total - (self.n - 1) * NW
        self.vd = V.get(self.n)
        np_ = self.RP // 32
        self.gb = 3 if np_ % 8 == 0 else (2 if np_ % 4 == 0 else 1)
        self.nres = min(1 << self.gb, nfr)
        self.base = V.get(self.nres); self.cur = V.get(self.nres)
        self.bytes = 64 * self.RP
    def g_asm(self, vk, vo, t):
        a = self.a
        if self.gb == 3:
            a(f"v_and_b32 v{vo}, 3, v{vk}"); a(f"v_bfe_u32 v{t}, v{vk}, 3, 1"); a(f"v_lshl_or_b32 v{vo}, v{t}, 2, v{vo}")
        elif self.gb == 2:
            a(f"v_bfe_u32 v{vo}, v{vk}, 1, 1"); a(f"v_bfe_u32 v{t}, v{vk}, 3, 1"); a(f"v_lshl_or_b32 v{vo}, v{t}, 1, v{vo}")
        else:
            a(f"v_bfe_u32 v{vo}, v{vk}, 3, 1")
    def idx0(self, sWave, sOut, stmp):
        a = self.a
        if self.even: a(f"s_mul_i32 s{sOut}, s{sWave}, {self.n}")
        else:
            a(f"s_mul_i32 s{sOut}, s{sWave}, {self.n-1}")
            a(f"s_min_u32 s{stmp}, s{sWave}, {self.nbig}")
            a(f"s_add_u32 s{sOut}, s{sOut}, s{stmp}")
    def setup_dma(self, sWave, tmp, sCol0Bytes, stmp):
        a = self.a; t0, t1, t2, t3 = tmp, tmp + 1, tmp + 2, tmp + 3
        self.idx0(sWave, stmp, stmp + 1)
        magic = (1 << 20) // self.CH + 1
        for L_ in range(self.total * 64 + 64):
            assert (L_ * magic) >> 20 == L_ // self.CH
        for j in range(self.n):
            a(f"s_add_u32 s{stmp+1}, s{stmp}, {j}"); a(f"s_lshl_b32 s{stmp+1}, s{stmp+1}, 6")
            a(f"v_add_u32 v{t0}, s{stmp+1}, v0")
            if self.CH & (self.CH - 1) == 0:
                a(f"v_lshrrev_b32 v{t1}, {int(math.log2(self.CH))}, v{t0}")
                a(f"v_and_b32 v{t0}, {self.CH-1}, v{t0}")
            else:
                a(f"v_mul_u32_u24 v{t1}, {magic}, v{t0}"); a(f"v_lshrrev_b32 v{t1}, 20, v{t1}")
                a(f"v_mul_u32_u24 v{t2}, {self.CH}, v{t1}"); a(f"v_sub_u32 v{t0}, v{t0}, v{t2}")
            self.g_asm(t1, t2, t3)
            a(f"v_lshlrev_b32 v{t2}, 1, v{t2}"); a(f"v_xor_b32 v{t0}, v{t0}, v{t2}")
            a(f"v_mul_u32_u24 v{t1}, {self.RS}, v{t1}")
            a(f"v_lshl_add_u32 v{t0}, v{t0}, 4, v{t1}")
            if j % 4: a(f"s_sub_u32 s{stmp+1}, s{sCol0Bytes}, {(j%4)*1024}"); a(f"v_add_u32 v{self.vd+j}, s{stmp+1}, v{t0}")
            else: a(f"v_add_u32 v{self.vd+j}, s{sCol0Bytes}, v{t0}")
    def setup_lds(self, sWave, sLds, stmp):
        self.idx0(sWave, sLds, stmp)
        self.a(f"s_lshl_b32 s{sLds}, s{sLds}, 10")
        if self.lds_off: self.a(f"s_add_u32 s{sLds}, s{sLds}, {self.lds_off}")
    def dma(self, sBuf, sK, stmp, sLds, srds, sWave=None):
        g = []
        s = srds
        for j in range(self.n):
            grp = []
            guard = (not self.even) and j == self.n - 1
            if guard:
                lbl = newlabel("ncs")
                grp += [f"s_cmp_lt_u32 s{sWave}, {self.nbig}", f"s_cbranch_scc0 {lbl}"]
            if j % 4 == 0:
                grp.append(f"s_add_u32 s{stmp}, s{sBuf}, s{sLds}")
                if j: grp.append(f"s_add_u32 s{stmp}, s{stmp}, {j*1024}")
                grp += [f"s_mov_b32 m0, s{stmp}", "s_nop 0"]
            off = f" offset:{(j%4)*1024}" if j % 4 else ""
            grp.append(f"buffer_load_dwordx4 v{self.vd+j}, s[{s}:{s+3}], s{sK} offen{off} lds")
            if guard: grp.append(f"{lbl}:")
            g.append(grp)
        return g
    def count(self): return (self.n if self.even else self.n - 1, self.n)
    def setup_read(self, sFrag0, tmp, stmp):
        a = self.a; t0, t1, t2 = tmp, tmp + 1, tmp + 2
        a(f"v_lshrrev_b32 v{t0}, 4, v0"); a(f"v_lshlrev_b32 v{t0}, 3, v{t0}")
        a(f"v_bfe_u32 v{t1}, v0, 2, 2"); a(f"v_add_u32 v{t0}, v{t0}, v{t1}")
        self.g_asm(t0, t1, t2)
        a(f"v_mul_u32_u24 v{t0}, {self.RP}, v{t0}")
        a(f"v_and_b32 v{t2}, 3, v0"); a(f"v_lshl_add_u32 v{t0}, v{t2}, 3, v{t0}")
        if self.lds_off: a(f"v_add_u32 v{t0}, {self.lds_off}, v{t0}")
        for r in range(self.nres):
            a(f"s_add_u32 s{stmp}, s{sFrag0}, {r}")
            a(f"v_xor_b32 v{t2}, s{stmp}, v{t1}")
            if r: a(f"v_subrev_u32 v{t2}, {r}, v{t2}")
            a(f"v_lshl_add_u32 v{self.base+r}, v{t2}, 5, v{t0}")
    def init_cur(self):
        return [f"v_mov_b32 v{self.cur+r}, v{self.base+r}" for r in range(self.nres)]
    def reads(self, ks, dst):
        if C.noread: return []
        g = []
        for i in range(self.nfr):
            r = i % (1 << self.gb)
            for h in range(2):
                off = 32 * i + (4 * h + 32 * ks) * self.RP
                g.append([f"ds_read_b64_tr_b16 {vr(dst+4*i+2*h,2)}, v{self.cur+r} offset:{off}"])
        return g
    def upd_A(self, sBuf): return [f"v_add_u32 v{self.cur+r}, s{sBuf}, v{self.base+r}" for r in range(self.nres)]
    def upd_B(self, sBuf): return []

class Seg:
    def __init__(self, P, Q, acc, Pdma, Qdma, kadvP, kadvQ, name):
        self.P, self.Q, self.acc, self.Pdma, self.Qdma, self.kadvP, self.kadvQ, self.name = P, Q, acc, Pdma, Qdma, kadvP, kadvQ, name
        self.xdma = []

class Gemm:
    def __init__(self, a, V, NBP, NBQ, SP, SQ, mp, mq, regs, joint, early=None, name="x"):
        self.a, self.NBP, self.NBQ, self.SP, self.SQ, self.mp, self.mq, self.joint = a, NBP, NBQ, SP, SQ, mp, mq, joint
        o = dict(span=C.span, prio=C.prio, dmapos="merge", order="i")
        o.update(C.loop.get(name, {}))
        self.opt = o
        self.sDP, self.sRP, self.sDQ, self.sRQ, self.sCnt, self.sE = regs
        if joint: self.sDQ, self.sRQ = self.sDP, self.sRP
        self.early = early if C.early else None
        self.leadP = NBP - (1 if self.early == 'P' else 0)
        self.leadQ = NBQ - (1 if self.early == 'Q' else 0)
        self.F = []
        for s in range(2):
            p = V.get(4 * mp, 2); q = V.get(4 * mq, 2)
            self.F.append((p, q))
        self.vmq = []
        self.zero_first = False
    def emit(self, lines):
        for x in lines:
            if x.endswith(":"): self.a.label(x[:-1])
            else: self.a(x)
    def note(self, tag, n): self.vmq.append((tag, n))
    def vm_allow(self, need):
        last = -1
        for i, (t, n) in enumerate(self.vmq):
            if t in need: last = i
        return min(63, sum(n for t, n in self.vmq[last + 1:]))
    def reads(self, seg, ks, fs):
        p, q = self.F[fs]
        return merge(seg.P.reads(ks, p), seg.Q.reads(ks, q))
    def mfmas(self, seg, fs, zero=False):
        p, q = self.F[fs]
        ij = [(i, j) for i in range(self.mp) for j in range(self.mq)]
        if self.opt["order"] == "j": ij = [(i, j) for j in range(self.mq) for i in range(self.mp)]
        st = getattr(self, "acc_stride", 4 * self.mq)
        return [f"v_mfma_f32_16x16x32_bf16 {vr(c,4)}, {vr(p+4*i,4)}, {vr(q+4*j,4)}, {'0' if zero else vr(c,4)}"
                for (i, j) in ij for c in [seg.acc + st * i + 4 * j]]
    def spread(self, main, fill):
        n = len(main); k = len(fill)
        if k == 0: return list(main)
        span = max(1, min(n, int(n * self.opt['span'])))
        out = []; fi = 0
        for i, m in enumerate(main):
            out.append(m)
            while fi < k and (fi * span) // k <= i:
                out.extend(fill[fi]); fi += 1
        while fi < k: out.extend(fill[fi]); fi += 1
        return out
    def mix(self, reads, dma):
        m = self.opt["dmapos"]
        if m == "first": return dma + reads
        if m == "last": return reads + dma
        return merge(reads, dma)
    def ring_adv(self, sD, sR, stride, nb):
        return [f"s_mov_b32 s{sD}, s{sR}", f"s_add_u32 s{sR}, s{sR}, {stride}", f"s_cmp_eq_u32 s{sR}, {stride*nb}", f"s_cselect_b32 s{sR}, 0, s{sR}"]
    def advance(self):
        out = []
        if self.early: out.append(f"s_mov_b32 s{self.sE}, s{self.sDP if (self.joint or self.early == 'P') else self.sDQ}")
        if self.joint: return out + self.ring_adv(self.sDP, self.sRP, self.SP + self.SQ, self.NBP)
        return out + self.ring_adv(self.sDP, self.sRP, self.SP, self.NBP) + self.ring_adv(self.sDQ, self.sRQ, self.SQ, self.NBQ)
    def dma_list(self, which, seg, sBuf):
        if seg is None or C.nodma: return []
        if which == 'P': return seg.Pdma(sBuf) + [list(seg.kadvP)]
        return seg.Qdma(sBuf) + [list(seg.kadvQ)] + seg.xdma
    def body(self, cur, nxt, dP, dQ, vmw, pre_barrier=None, extra=None, zero=False):
        a = self.a
        self.emit(self.advance())
        a("s_waitcnt lgkmcnt(0)")
        fill = self.reads(cur, 1, 1)
        if nxt is not None: fill.append(nxt.P.upd_A(self.sRP) + nxt.Q.upd_A(self.sRQ))
        if self.early == 'P': fill = self.mix(fill, self.dma_list('P', dP, self.sE))
        if self.early == 'Q': fill = self.mix(fill, self.dma_list('Q', dQ, self.sE))
        if nxt is None and extra: fill = fill + extra
        self.emit(self.spread(self.mfmas(cur, 0, zero), fill))
        if nxt is None:
            a("s_waitcnt lgkmcnt(0)")
            self.emit(self.mfmas(cur, 1))
            return
        if pre_barrier: pre_barrier()
        a(f"s_waitcnt vmcnt({vmw}) lgkmcnt(0)")
        a("s_barrier")
        if self.opt["prio"]: a("s_setprio 1")
        fill = self.reads(nxt, 0, 0)
        d = []
        if self.early != 'P': d += self.dma_list('P', dP, self.sDP)
        if self.early != 'Q': d += self.dma_list('Q', dQ, self.sDQ)
        fill = self.mix(fill, d)
        u = nxt.P.upd_B(self.sRP) + nxt.Q.upd_B(self.sRQ)
        if u: fill.append(u)
        if extra: fill = fill + extra
        self.emit(self.spread(self.mfmas(cur, 1), fill))
        if self.opt["prio"]: a("s_setprio 0")
    def prologue(self, stages, which="PQ", first=0, last=None):
        a = self.a
        stride = self.SP + self.SQ if self.joint else None
        if first == 0:
            a(f"s_mov_b32 s{self.sDP}, 0")
            if not self.joint: a(f"s_mov_b32 s{self.sDQ}, 0")
        for s in range(first, max(self.leadP, self.leadQ) if last is None else last):
            if "P" in which and s < self.leadP:
                for g in stages[s].Pdma(self.sDP): self.emit(g)
                self.emit(stages[s].kadvP); self.note(('P', s), stages[s].P.count()[0])
                if not self.joint: a(f"s_add_u32 s{self.sDP}, s{self.sDP}, {self.SP}")
            if "Q" in which and s < self.leadQ:
                for g in stages[s].Qdma(self.sDQ): self.emit(g)
                self.emit(stages[s].kadvQ); self.note(('Q', s), stages[s].Q.count()[0])
                if not self.joint: a(f"s_add_u32 s{self.sDQ}, s{self.sDQ}, {self.SQ}")
            if self.joint: a(f"s_add_u32 s{self.sDP}, s{self.sDP}, {stride}")
    def run(self, stages, hooks=None, extras=None, post_first=None):
        a = self.a; N = len(stages)
        hooks = hooks or {}; extras = extras or {}
        a(f"s_waitcnt vmcnt({self.vm_allow({('P',0),('Q',0)})})")
        if getattr(self, "pre_first", None): self.pre_first()
        a("s_barrier")
        if post_first: post_first()
        seen = []
        for sg in stages:
            for op in (sg.P, sg.Q):
                if op not in seen: seen.append(op); self.emit(op.init_cur())
        if self.joint:
            a(f"s_mov_b32 s{self.sRP}, 0"); a(f"s_mov_b32 s{self.sDP}, {(self.SP+self.SQ)*(self.NBP-1)}")
        else:
            a(f"s_mov_b32 s{self.sRP}, 0"); a(f"s_mov_b32 s{self.sDP}, {self.SP*(self.NBP-1)}")
            a(f"s_mov_b32 s{self.sRQ}, 0"); a(f"s_mov_b32 s{self.sDQ}, {self.SQ*(self.NBQ-1)}")
        for g in self.reads(stages[0], 0, 0): self.emit(g)
        sigs = []; seen_acc = set()
        for i in range(N):
            nxt = stages[i + 1] if i + 1 < N else None
            dP = stages[i + self.leadP] if i + self.leadP < N else None
            dQ = stages[i + self.leadQ] if i + self.leadQ < N else None
            def noteP():
                if dP is not None: self.note(('P', i + self.leadP), dP.P.count()[0])
            def noteQ():
                if dQ is not None:
                    self.note(('Q', i + self.leadQ), dQ.Q.count()[0])
                    if dQ.xdma: self.note(('PF', i), len(dQ.xdma))
            if self.early == 'P': noteP()
            if self.early == 'Q': noteQ()
            vmw = self.vm_allow({('P', i + 1), ('Q', i + 1)}) if nxt is not None else 0
            if i in getattr(self, "want_allow", {}):
                if not hasattr(self, "allow_at"): self.allow_at = {}
                self.allow_at[i] = self.vm_allow({self.want_allow[i]})
            if self.early != 'P': noteP()
            if self.early != 'Q': noteQ()
            if i in extras: self.note(('X', i), extras[i][1])
            zero = self.zero_first and stages[i].acc not in seen_acc
            seen_acc.add(stages[i].acc)
            sigs.append((stages[i], nxt, dP, dQ, vmw, i if (i in hooks or i in extras or zero) else -1, zero))
        i = 0
        while i < N:
            j = i
            while j < N and sigs[j] == sigs[i]: j += 1
            cnt = j - i
            cur, nxt, dP, dQ, vmw, sp, zero = sigs[i]
            hk = hooks.get(sp); ex = extras[sp][0] if sp in extras else None
            if cnt >= 2:
                lbl = newlabel("gl")
                a(f"s_mov_b32 s{self.sCnt}, {cnt}")
                a.label(lbl)
                self.body(cur, nxt, dP, dQ, vmw)
                a(f"s_sub_u32 s{self.sCnt}, s{self.sCnt}, 1"); a(f"s_cmp_lg_u32 s{self.sCnt}, 0"); a(f"s_cbranch_scc1 {lbl}")
            else:
                self.body(cur, nxt, dP, dQ, vmw, hk, ex, zero)
            i = j

def merge(x, y):
    out = []; i = j = 0
    while i < len(x) or j < len(y):
        if j >= len(y) or (i < len(x) and i * len(y) <= j * len(x)): out.append(x[i]); i += 1
        else: out.append(y[j]); j += 1
    return out

def bf16_round(a, vdst, vsrc):
    a(f"v_cvt_pk_bf16_f32 v{vdst}, v{vsrc}, v{vsrc}"); a(f"v_lshlrev_b32 v{vdst}, 16, v{vdst}")

def stamp(a, idx, real=False, st="main"):
    if C.dbgst and st == C.stampset:
        a("s_memrealtime s[88:89]" if real else "s_memtime s[88:89]")
        a("s_waitcnt lgkmcnt(0)")
        a(f"s_mov_b32 s{92+idx}, s88")

sWave, sM, sN, sRole = 28, 29, 30, 31
sBufD, sBufR, sCnt, sTmp, sKP, sKQ, sLdsP, sLdsQ = 32, 33, 34, 35, 36, 37, 38, 39
sWp, sWq, sRot, sLdsP2, sKP2, sTile, sTt, sDt = 80, 81, 82, 83, 84, 85, 86, 87
SX, SA, SB_, SWS, SDBG, SS = 4, 8, 12, 16, 20, 24
T0, T1, T2, T3 = 76, 77, 78, 79
U0, U1, U2, U3 = 88, 89, 90, 91
VT = 2

def ssm_param_loads(a, vch, t):
    a(f"v_lshlrev_b32 v{t}, 1, v{vch}")
    for k, name in enumerate(("lre", "lim", "ldt")):
        srd(a, SS, PTR[name], 2048)
        a(f"buffer_load_ushort v{t+1+k}, v{t}, s[{SS}:{SS+3}], 0 offen")

def ssm_params_compute(a, out, t, want_kappa=True):
    lre, lim, ldt = t + 1, t + 2, t + 3
    x0, x1, x2, x3 = t + 4, t + 5, t + 6, t + 7
    lr, li, kr, ki = out, out + 1, out + 2, out + 3
    for r in (lre, lim, ldt): a(f"v_lshlrev_b32 v{r}, 16, v{r}")
    a(f"v_mul_f32 v{x0}, {LOG2E:#x}, v{ldt}"); a(f"v_exp_f32 v{x0}, v{x0}"); a("s_nop 0")
    bf16_round(a, x0, x0)
    a(f"v_mul_f32 v{x1}, v{x0}, v{lre}"); a(f"v_mul_f32 v{x2}, v{x0}, v{lim}")
    a(f"v_mul_f32 v{x1}, {LOG2E:#x}, v{x1}"); a(f"v_exp_f32 v{x1}, v{x1}")
    a(f"v_mul_f32 v{x2}, {INV2PI:#x}, v{x2}"); a(f"v_rndne_f32 v{x3}, v{x2}"); a(f"v_sub_f32 v{x2}, v{x2}, v{x3}")
    a(f"v_cos_f32 v{x3}, v{x2}"); a(f"v_sin_f32 v{x2}, v{x2}"); a("s_nop 0")
    a(f"v_mul_f32 v{lr}, v{x1}, v{x3}"); a(f"v_mul_f32 v{li}, v{x1}, v{x2}")
    if want_kappa:
        a(f"v_subrev_f32 v{x0}, 1.0, v{lr}")
        a(f"v_mul_f32 v{x1}, v{x0}, v{lre}"); a(f"v_fmac_f32 v{x1}, v{li}, v{lim}")
        a(f"v_mul_f32 v{x2}, v{li}, v{lre}"); a(f"v_fma_f32 v{x2}, -v{x0}, v{lim}, v{x2}")
        a(f"v_mul_f32 v{x3}, v{lre}, v{lre}"); a(f"v_fmac_f32 v{x3}, v{lim}, v{lim}")
        a(f"v_rcp_f32 v{x3}, v{x3}"); a("s_nop 0")
        a(f"v_add_f32 v{x3}, v{x3}, v{x3}")
        a(f"v_mul_f32 v{kr}, v{x1}, v{x3}"); a(f"v_mul_f32 v{ki}, v{x2}, v{x3}")

def csq(a, dr, di, sr_, si, t):
    a(f"v_mul_f32 v{t}, v{sr_}, v{si}"); a(f"v_mul_f32 v{dr}, v{sr_}, v{sr_}")
    a(f"v_fma_f32 v{dr}, -v{si}, v{si}, v{dr}"); a(f"v_add_f32 v{di}, v{t}, v{t}")

def gate_row_loads(a, sRow, vx, t):
    a(f"s_lshl_b32 s{U1}, s{sRow}, 11")
    a(f"buffer_load_dwordx4 {vr(vx,4)}, v{t}, s[{SX}:{SX+3}], s{U1} offen")
    a(f"buffer_load_dwordx4 {vr(vx+4,4)}, v{t}, s[{SX}:{SX+3}], s{U1} offen offset:16")

def gate_compute(a, sRow, vx, vw, t):
    acc = t; p0, p1, q0, q1 = t + 1, t + 2, t + 3, t + 4
    a(f"v_mov_b32 v{acc}, 0")
    for d in range(8):
        a(f"v_lshlrev_b32 v{p0}, 16, v{vx+d}"); a(f"v_and_b32 v{p1}, 0xffff0000, v{vx+d}")
        a(f"v_lshlrev_b32 v{q0}, 16, v{vw+d}"); a(f"v_and_b32 v{q1}, 0xffff0000, v{vw+d}")
        a(f"v_mul_f32 v{p0}, v{p0}, v{q0}"); a(f"v_mul_f32 v{p1}, v{p1}, v{q1}")
        a(f"v_cvt_pk_bf16_f32 v{p0}, v{p0}, v{p1}")
        a(f"v_and_b32 v{p1}, 0xffff0000, v{p0}"); a(f"v_lshlrev_b32 v{p0}, 16, v{p0}")
        a(f"v_add_f32 v{acc}, v{acc}, v{p0}"); a(f"v_add_f32 v{acc}, v{acc}, v{p1}")
    for sh in (1, 2, 4, 8):
        a("s_nop 1")
        a(f"v_add_f32_dpp v{acc}, v{acc}, v{acc} row_shr:{sh} row_mask:0xf bank_mask:0xf bound_ctrl:0")
    a("s_nop 1")
    a(f"v_add_f32_dpp v{acc}, v{acc}, v{acc} row_bcast:15 row_mask:0xa bank_mask:0xf")
    a("s_nop 1")
    a(f"v_add_f32_dpp v{acc}, v{acc}, v{acc} row_bcast:31 row_mask:0xc bank_mask:0xf")
    a("s_nop 1")
    a(f"v_readlane_b32 s{U0}, v{acc}, 63")
    a("s_nop 1")
    a(f"v_mov_b32 v{acc}, s{U0}")
    bf16_round(a, acc, acc)
    a(f"v_mul_f32 v{p0}, {LOG2E ^ 0x80000000:#x}, v{acc}"); a(f"v_exp_f32 v{p0}, v{p0}"); a("s_nop 0")
    a(f"v_add_f32 v{p0}, 1.0, v{p0}"); a(f"v_rcp_f32 v{p0}, v{p0}"); a("s_nop 0")
    bf16_round(a, p0, p0)
    a(f"v_sub_f32 v{p1}, 1.0, v{p0}")
    bf16_round(a, p1, p1)
    a(f"s_lshl_b32 s{U0}, s{sRow}, 3"); a(f"s_add_u32 s{U0}, s{U0}, {WS_G}")
    a(f"v_cmp_eq_u32 vcc, 0, v0"); a("s_nop 1")
    a(f"v_cndmask_b32 v{p0}, v{p1}, v{p0}, vcc")
    a(f"v_lshlrev_b32 v{q0}, 2, v0")
    a("s_mov_b64 exec, 3")
    a(f"buffer_store_dword v{p0}, v{q0}, s[{SWS}:{SWS+3}], s{U0} offen sc1")
    a("s_mov_b64 exec, -1")

SENT = 0xffffffff
def inbox_offset(a, sdst):
    a(f"s_lshl_b32 s{sdst}, s2, 3"); a(f"s_add_u32 s{sdst}, s{sdst}, s{sWave}"); a(f"s_mul_i32 s{sdst}, s{sdst}, {4096*(C.ns-1)}")
    a(f"s_add_u32 s{sdst}, s{sdst}, {WS_XB}")

def mb_zero_groups(vt, ssm=False):
    c = []
    q = (vt + 1) // 2 * 2
    sk = newlabel("mz")
    c += [f"s_cmp_lg_u32 s{sWave}, 0", f"s_cbranch_scc1 {sk}"]
    if ssm:
        c += [f"v_mov_b32 v{q}, -1", f"v_mov_b32 v{q+1}, -1",
              f"s_lshl_b32 s{U0}, s{sN}, 6", f"v_add_u32 v{q+4}, s{U0}, v0", f"v_lshlrev_b32 v{q+4}, 3, v{q+4}",
              f"s_lshl_b32 s{U0}, s{sM}, 13", f"s_add_u32 s{U0}, s{U0}, {WS_AGG}",
              f"buffer_store_dwordx2 {vr(q,2)}, v{q+4}, s[{SWS}:{SWS+3}], s{U0} offen sc1"]
    c += [f"v_mov_b32 v{q+2}, 0", f"v_lshlrev_b32 v{q+4}, 2, v0", f"s_lshl_b32 s{U0}, s2, 8", f"s_add_u32 s{U0}, s{U0}, {WS_MB}",
          f"buffer_store_dword v{q+2}, v{q+4}, s[{SWS}:{SWS+3}], s{U0} offen sc1", f"{sk}:"]
    return [c], 0

def inbox_init(a, vt):
    for r in range(4): a(f"v_mov_b32 v{vt+r}, -1")
    a(f"v_lshlrev_b32 v{vt+4}, 4, v0")
    inbox_offset(a, U0)
    for i in range(4 * (C.ns - 1)):
        a(f"buffer_store_dwordx4 {vr(vt,4)}, v{vt+4}, s[{SWS}:{SWS+3}], s{U0} offen offset:{(i%4)*1024} sc1")
        if i % 4 == 3: a(f"s_add_u32 s{U0}, s{U0}, 4096")

def init_signal(a, vt, idx=0, guard=True):
    sk = newlabel("mi")
    if guard: a(f"s_cmp_lg_u32 s{sWave}, 0"); a(f"s_cbranch_scc1 {sk}")
    a(f"v_mov_b32 v{vt}, 1"); a(f"v_mov_b32 v{vt+1}, {4*idx}")
    a("s_mov_b64 exec, 1")
    a(f"buffer_atomic_add v{vt}, v{vt+1}, s[{SDBG}:{SDBG+3}], 0 offen sc1")
    a("s_mov_b64 exec, -1")
    a.label(sk)

def poll(a, srd_, sByteOff, check, vt, wide=1, sleep=None):
    lp, ok = newlabel("poll"), newlabel("pok")
    a(f"v_mov_b32 v{vt+4}, s{sByteOff}")
    a(f"s_mov_b32 s{U2}, {C.spin}")
    a.label(lp)
    a(f"s_sub_u32 s{U2}, s{U2}, 1"); a(f"s_cmp_eq_u32 s{U2}, 0"); a(f"s_cbranch_scc1 {ok}")
    op = {1: "dword", 2: "dwordx2", 4: "dwordx4"}[wide]
    a(f"buffer_load_{op} {vr(vt,wide)}, v{vt+4}, s[{srd_}:{srd_+3}], 0 offen sc1")
    a("s_waitcnt vmcnt(0)")
    a(f"v_readfirstlane_b32 s{U0}, v{vt}")
    if wide >= 2: a(f"v_readfirstlane_b32 s{U1}, v{vt+1}")
    if wide >= 4: a(f"v_readfirstlane_b32 s{U3}, v{vt+2}")
    a("s_nop 3")
    check(ok)
    a(f"s_sleep {C.sleep if sleep is None else sleep}")
    a(f"s_branch {lp}")
    a.label(ok)

VINIT = 1
def init_load(a, idx=0):
    sk = newlabel("il")
    a(f"s_cmp_lg_u32 s{sWave}, 0"); a(f"s_cbranch_scc1 {sk}")
    a(f"v_mov_b32 v{VINIT}, {4*idx}")
    a(f"buffer_load_dword v{VINIT}, v{VINIT}, s[{SDBG}:{SDBG+3}], 0 offen sc1")
    a.label(sk)

def init_check(a, vt, idx=0):
    ok = newlabel("ic")
    a(f"v_readfirstlane_b32 s{U0}, v{VINIT}"); a("s_nop 3")
    a(f"s_cmp_ge_u32 s{U0}, 256"); a(f"s_cbranch_scc1 {ok}")
    a(f"s_mov_b32 s{T3}, {4*idx}")
    def chk(o): a(f"s_cmp_ge_u32 s{U0}, 256"); a(f"s_cbranch_scc1 {o}")
    poll(a, SDBG, T3, chk, vt, sleep=32)
    a.label(ok)

def poll_own(a, check, vt):
    a(f"s_lshl_b32 s{T3}, s2, 8"); a(f"s_add_u32 s{T3}, s{T3}, {WS_MB}")
    poll(a, SWS, T3, check, vt, wide=4)

def signal_cnt(a, dword, vt):
    NS = C.ns; XS = 8 // NS
    l, t1, t2 = vt, vt + 1, vt + 2
    t3 = vt + 3
    if NS == 2:
        a(f"v_bfe_u32 v{t1}, v0, 3, 1"); a(f"s_lshl_b32 s{T0}, s{sM}, 1"); a(f"v_add_u32 v{t1}, s{T0}, v{t1}")
        a(f"v_bfe_u32 v{t3}, v0, 4, 1")
    else:
        a(f"v_mov_b32 v{t1}, s{sM}")
        a(f"v_bfe_u32 v{t3}, v0, 3, 2")
    a(f"v_lshrrev_b32 v{t2}, 2, v{t1}"); a(f"v_mad_u32_u24 v{t2}, v{t3}, {XS}, v{t2}")
    a(f"v_and_b32 v{t1}, 3, v{t1}"); a(f"v_lshlrev_b32 v{t1}, 2, v{t1}")
    a(f"v_and_b32 v{l}, 3, v0"); a(f"v_or_b32 v{t1}, v{t1}, v{l}")
    a(f"v_bfe_u32 v{l}, v0, 2, 1"); a(f"v_and_b32 v{t3}, 1, v{t3}"); a(f"v_xor_b32 v{l}, v{l}, v{t3}"); a(f"v_xor_b32 v{l}, 1, v{l}")
    a(f"v_lshl_or_b32 v{t1}, v{l}, 4, v{t1}")
    a(f"v_lshl_or_b32 v{t1}, v{t1}, 3, v{t2}")
    a(f"v_lshlrev_b32 v{t1}, 8, v{t1}")
    if dword == "S" and C.fine and NS == 4:
        a(f"s_and_b32 s{T0}, s{sN}, 7"); a(f"s_lshl_b32 s{T0}, 1, s{T0}"); a(f"v_mov_b32 v{l}, s{T0}")
    else:
        a(f"v_mov_b32 v{l}, 1")
    if dword == "S":
        a(f"s_lshr_b32 s{T0}, s{sN}, 3"); a(f"s_lshl_b32 s{T0}, s{T0}, 2"); a(f"s_add_u32 s{T0}, s{T0}, {WS_MB}")
    else:
        a(f"s_mov_b32 s{T0}, {WS_MB + 4*dword}")
    a("s_mov_b32 exec_hi, 0")
    a(f"buffer_atomic_add v{l}, v{t1}, s[{SWS}:{SWS+3}], s{T0} offen sc1")
    a("s_mov_b64 exec, -1")

def bulk_prefetch(a, G, vdummy, vaddr):
    a(f"v_lshlrev_b32 v{vaddr}, 4, v0")
    n = 0
    for name, size in C.pflist:
        size = {"x": L*D*2, "w1": D*F*2, "bre": P_*D*2, "bim": P_*D*2, "cre": D*P_*2, "cim": D*P_*2, "w2": F*D*2}[name]
        share = size // 256; pw = share // 8
        a(f"s_mul_i32 s{U0}, s2, {share}"); a(f"s_mul_i32 s{U1}, s{sWave}, {pw}"); a(f"s_add_u32 s{U0}, s{U0}, s{U1}")
        a(f"s_mov_b32 s{SS}, s{PTR[name]}"); a(f"s_mov_b32 s{SS+1}, s{PTR[name]+1}")
        a(f"s_add_u32 s{SS+2}, s{U0}, {pw}"); a(f"s_mov_b32 s{SS+3}, 0x20000")
        for i in range(-(-pw // 1024)):
            a(f"buffer_load_dwordx4 {vr(vdummy,4)}, v{vaddr}, s[{SS}:{SS+3}], s{U0} offen offset:{i*1024}")
            n += 1
    G.note('pf', n)

def tlb_warm(a, vdummy, vaddr, names, tsrd):
    sizes = {"w2": F*D*2, "cre": D*P_*2, "cim": D*P_*2, "out": L*D*4, "lre": 2048, "lim": 2048, "ldt": 2048, "dsk": 2048, "b2": 2048, "gw": 2048}
    a(f"v_lshlrev_b32 v{vaddr}, {C.tlbshift}, v0")
    end = newlabel("tw")
    for w in range(8):
        nx = newlabel("tw")
        a(f"s_cmp_lg_u32 s{sWave}, {w}"); a(f"s_cbranch_scc1 {nx}")
        for name in names[w::8]:
            if name == "ws":
                a("s_mov_b32 exec_lo, 0x00ffffff"); a("s_mov_b32 exec_hi, 0")
                a(f"buffer_load_dword v{vdummy}, v{vaddr}, s[{SWS}:{SWS+3}], 0 offen")
                a("s_mov_b64 exec, -1")
            elif name == "dbg":
                a(f"buffer_load_dword v{vdummy}, v{vaddr}, s[{SDBG}:{SDBG+3}], 0 offen")
            else:
                a(f"s_mov_b32 s{tsrd}, s{PTR[name]}"); a(f"s_mov_b32 s{tsrd+1}, s{PTR[name]+1}"); a(f"s_mov_b32 s{tsrd+2}, {sizes[name]}"); a(f"s_mov_b32 s{tsrd+3}, 0x20000")
                a(f"buffer_load_dword v{vdummy}, v{vaddr}, s[{tsrd}:{tsrd+3}], 0 offen")
        a(f"s_branch {end}")
        a.label(nx)
    a.label(end)

def phase1_dense(a):
    V = Regs(10)
    TP, TQ = 224, 256
    mp, mq = 7, 4
    Pop = OpNC(a, V, TP, 0, mp, F * 2)
    NBP, NBQ = (3, 2) if C.d1p else (2, 3)
    Qop = OpKC(a, V, TQ, NBP * Pop.bytes, mq); Qop.groups = [[0, 1, 2, 3]]
    G = Gemm(a, V, NBP, NBQ, Pop.bytes, Qop.bytes, mp, mq, (sBufD, sBufR, sTile, sTt, sCnt, sRole), False, 'P' if C.d1p else 'Q', 'd1')
    LDS1 = NBP * Pop.bytes + NBQ * Qop.bytes
    acc = V.get(4 * mp * mq, 2)
    vb = V.get(2 * mp, 2); vdum = V.get(4, 2)
    a(f"s_lshr_b32 s{sWp}, s{sWave}, 2"); a(f"s_and_b32 s{sWq}, s{sWave}, 3")
    a(f"s_mul_i32 s{T0}, s{sN}, {TP*2}")
    Pop.setup_dma(sWave, VT, T0, U0)
    Qop.lane_chunk(VT, VT + 1)
    a(f"v_lshrrev_b32 v{VT+1}, 3, v0"); a(f"v_lshl_add_u32 v{VT}, v{VT+1}, 11, v{VT}")
    for j in range(4):
        a(f"s_lshl_b32 s{T0}, s{sM}, 8"); a(f"s_lshl_b32 s{T1}, s{sWave}, 5"); a(f"s_add_u32 s{T0}, s{T0}, s{T1}")
        a(f"s_add_u32 s{T0}, s{T0}, {8*j}"); a(f"s_lshl_b32 s{T0}, s{T0}, 11"); a(f"s_sub_u32 s{T0}, s{T0}, {j*1024}")
        Qop.set_voff(j, VT, T0, bool(j & 1))
    Pop.setup_lds(sWave, sLdsP, U0)
    a(f"s_lshl_b32 s{sLdsQ}, s{sWave}, 12"); a(f"s_add_u32 s{sLdsQ}, s{sLdsQ}, {Qop.lds_off}")
    a(f"s_mul_i32 s{sKP}, s{sRot}, {64*F*2}"); a(f"s_lshl_b32 s{sKQ}, s{sRot}, 7")
    a("s_waitcnt lgkmcnt(0)")
    stamp(a, 1, st="pro")
    srd(a, SX, PTR["x"], L * D * 2); srd(a, SWS, PTR["ws"], WS_SIZE); srd(a, SDBG, PTR["dbg"], 256)
    srd(a, SA, PTR["w1"], D * F * 2)
    kadvP = [f"s_add_u32 s{sKP}, s{sKP}, {64*F*2}", f"s_cmp_eq_u32 s{sKP}, {D*F*2}", f"s_cselect_b32 s{sKP}, 0, s{sKP}"]
    kadvQ = [f"s_add_u32 s{sKQ}, s{sKQ}, 128", f"s_and_b32 s{sKQ}, s{sKQ}, 2047"]
    seg = Seg(Pop, Qop, acc, lambda b: Pop.dma(b, sKP, sTmp, sLdsP, SA, sWave), lambda b: Qop.dma(b, sKQ, sTmp, sLdsQ, [SX] * 4), kadvP, kadvQ, "d1")
    stages = [seg] * 16
    G.prologue(stages, "PQ", 0, 1)
    if C.pbar: a("s_barrier")
    if C.tlb: tlb_warm(a, 250, VT + 5, ["ws", "w2", "cre", "cim", "out", "dbg", "dsk", "b2"], SS); G.note('tlb', 1)
    stamp(a, 2, st="pro")
    a(f"s_mul_i32 s{T2}, s{sN}, {TP}"); a(f"s_mul_i32 s{T3}, s{sWp}, {mp*16}"); a(f"s_add_u32 s{T2}, s{T2}, s{T3}")
    a(f"s_lshl_b32 s{T3}, s{T2}, 1")
    a(f"v_lshrrev_b32 v{VT+2}, 4, v0"); a(f"v_lshlrev_b32 v{VT+2}, 3, v{VT+2}")
    srd(a, SS, PTR["b1"], F * 2)
    for i in range(mp):
        a(f"buffer_load_dwordx2 {vr(vb+2*i,2)}, v{VT+2}, s[{SS}:{SS+3}], s{T3} offen offset:{32*i}")
    G.note('misc', mp)
    a(f"s_mul_i32 s{T0}, s{sWp}, {mp}"); Pop.setup_read(T0, VT, U0)
    a(f"s_mul_i32 s{T0}, s{sWq}, {mq}"); Qop.setup_read(T0, VT, U0)
    stamp(a, 3, st="pro")
    G.prologue(stages, "PQ", 1)
    stamp(a, 4, st="pro")
    a(f"s_waitcnt vmcnt({G.vm_allow({'misc'})})")
    for i in range(mp):
        c = acc + 4 * (i * mq)
        a(f"v_lshlrev_b32 v{c}, 16, v{vb+2*i}"); a(f"v_and_b32 v{c+1}, 0xffff0000, v{vb+2*i}")
        a(f"v_lshlrev_b32 v{c+2}, 16, v{vb+2*i+1}"); a(f"v_and_b32 v{c+3}, 0xffff0000, v{vb+2*i+1}")
        for j in range(1, mq):
            for r in range(4): a(f"v_mov_b32 v{c+4*j+r}, v{c+r}")
    stamp(a, 1)
    G.pre_first = lambda: stamp(a, 5, st="pro")
    G.run(stages, {C.initit + 3: (lambda: init_signal(a, VT + 4))}, {C.initit: mb_zero_groups(VT + 2)}, (lambda: stamp(a, 6, st="pro")))
    stamp(a, 2)
    stamp(a, 1, st="clk"); stamp(a, 2, real=True, st="clk")
    PITCH = 464
    stamp(a, 1, st="dense")
    init_load(a)
    vw = VT
    a(f"v_and_b32 v{vw}, 15, v0"); a(f"v_mul_u32_u24 v{vw}, {PITCH}, v{vw}")
    a(f"v_lshrrev_b32 v{VT+1}, 4, v0"); a(f"v_lshl_add_u32 v{vw}, v{VT+1}, 3, v{vw}")
    a(f"s_mul_i32 s{T0}, s{sWq}, {64*PITCH}"); a(f"s_mul_i32 s{T1}, s{sWp}, 224"); a(f"s_add_u32 s{T0}, s{T0}, s{T1}")
    a(f"v_add_u32 v{vw}, s{T0}, v{vw}")
    vr_, vg_ = VT + 1, VT + 2
    a(f"v_cmp_le_u32 vcc, 28, v0"); a("s_nop 1")
    a(f"v_cndmask_b32 v{VT+3}, 0, 1, vcc")
    a(f"v_mul_u32_u24 v{VT+4}, 28, v{VT+3}"); a(f"v_sub_u32 v{VT+4}, v0, v{VT+4}")
    a(f"v_lshlrev_b32 v{VT+4}, 4, v{VT+4}")
    a(f"v_mul_u32_u24 v{vr_}, {PITCH}, v{VT+3}"); a(f"v_add_u32 v{vr_}, v{vr_}, v{VT+4}")
    NH = C.dparts; JP = mq // NH; RW = 8 * JP
    a(f"s_mul_i32 s{T0}, s{sWq}, {64*PITCH}"); a(f"s_mul_i32 s{T1}, s{sWp}, {RW*PITCH}"); a(f"s_add_u32 s{T0}, s{T0}, s{T1}")
    a(f"v_add_u32 v{vr_}, s{T0}, v{vr_}")
    a(f"v_mul_u32_u24 v{vg_}, {RS_A2}, v{VT+3}"); a(f"v_add_u32 v{vg_}, v{vg_}, v{VT+4}")
    a(f"s_lshl_b32 s{T0}, s{sM}, 8"); a(f"s_lshl_b32 s{T1}, s{sWq}, 6"); a(f"s_add_u32 s{T0}, s{T0}, s{T1}")
    a(f"s_mul_i32 s{T1}, s{sWp}, {RW}"); a(f"s_add_u32 s{T0}, s{T0}, s{T1}")
    a(f"s_mul_i32 s{T0}, s{T0}, {RS_A2}"); a(f"s_mul_i32 s{T1}, s{sN}, 448"); a(f"s_add_u32 s{T0}, s{T0}, s{T1}")
    a(f"s_add_u32 s{T0}, s{T0}, {WS_A2 + 4096}")
    rb = G.F[0][0]
    for p in range(NH):
        js = range(p * JP, (p + 1) * JP)
        for j in js:
            for i in range(mp):
                c = acc + 4 * (i * mq + j)
                for r in range(4): a(f"v_mul_f32_e64 v{c+r}, v{c+r}, |v{c+r}|")
                a(f"v_cvt_pk_bf16_f32 v{c}, v{c}, v{c+1}"); a(f"v_cvt_pk_bf16_f32 v{c+1}, v{c+2}, v{c+3}")
                a(f"v_pk_max_i16 v{c}, v{c}, 0"); a(f"v_pk_max_i16 v{c+1}, v{c+1}, 0")
        if p == 0:
            a("s_barrier")
            stamp(a, 2, st="dense")
        for j in js:
            for i in range(mp):
                c = acc + 4 * (i * mq + j)
                a(f"ds_write_b64 v{vw}, {vr(c,2)} offset:{j*16*PITCH + 32*i}")
        a("s_waitcnt lgkmcnt(0)")
        if p == 0: stamp(a, 3, st="dense")
        a("s_barrier")
        if p == 0: stamp(a, 4, st="dense")
        a("s_mov_b32 exec_hi, 0x00ffffff")
        nst = RW // 2
        for n in range(nst):
            a(f"ds_read_b128 {vr(rb+4*n,4)}, v{vr_} offset:{(16*JP*p + 2*n)*PITCH}")
        if p: a(f"s_add_u32 s{T0}, s{T0}, {(16*JP - RW)*RS_A2}")
        for n in range(nst):
            a(f"s_waitcnt lgkmcnt({nst-1-n})")
            a(f"buffer_store_dwordx4 {vr(rb+4*n,4)}, v{vg_}, s[{SWS}:{SWS+3}], s{T0} offen{C.wt}")
            a(f"s_add_u32 s{T0}, s{T0}, {2*RS_A2}")
        a("s_mov_b64 exec, -1")
        if p < NH - 1: a("s_nop 1")
    stamp(a, 5, st="dense")
    return V.hi, max(LDS1, 4 * 64 * PITCH)

def phase1_ssm(a):
    V = Regs(10)
    mp, mq = 4, 4
    Pop = OpKC(a, V, 256, 0, mp); Pop.groups = [[0, 1, 2, 3]]
    Qop = OpKC(a, V, 128, Pop.bytes, mq); Qop.groups = [[0], [1]]; Qop.ldsoffs = [0, 8192]
    Qop.frag_off = lambda j: ((j & 1) * 4 + (j >> 1)) * 2048
    SB = Pop.bytes + Qop.bytes; NB = 3
    G = Gemm(a, V, NB, NB, Pop.bytes, Qop.bytes, mp, mq, (sBufD, sBufR, None, None, sCnt, sRole), True, 'P', 's1')
    acc = V.get(64, 2); prm = V.get(12, 4); big = V.get(72, 4)
    AG = NB * SB
    a(f"s_lshr_b32 s{sWp}, s{sWave}, 1"); a(f"s_and_b32 s{sWq}, s{sWave}, 1")
    Pop.lane_chunk(VT, VT + 1)
    a(f"v_lshrrev_b32 v{VT+1}, 5, v0"); a(f"v_lshlrev_b32 v{VT+1}, 4, v{VT+1}")
    a(f"v_bfe_u32 v{VT+2}, v0, 3, 2"); a(f"v_add_u32 v{VT+1}, v{VT+1}, v{VT+2}")
    a(f"v_lshl_add_u32 v{VT+3}, v{VT+1}, 11, v{VT}")
    for j in range(4):
        a(f"s_lshl_b32 s{T0}, s{sWave}, 1");
        if j >> 1: a(f"s_add_u32 s{T0}, s{T0}, 1")
        a(f"s_and_b32 s{T0}, s{T0}, 3"); a(f"s_lshl_b32 s{T0}, s{T0}, 2")
        a(f"s_lshl_b32 s{T1}, s{sWp}, 6"); a(f"s_add_u32 s{T0}, s{T0}, s{T1}")
        a(f"s_lshl_b32 s{T1}, s{sM}, 8"); a(f"s_add_u32 s{T0}, s{T0}, s{T1}")
        if j & 1: a(f"s_add_u32 s{T0}, s{T0}, 32")
        a(f"s_lshl_b32 s{T0}, s{T0}, 11")
        if j: a(f"s_sub_u32 s{T0}, s{T0}, {j*1024}")
        Pop.set_voff(j, VT + 3, T0, bool(j & 1))
    a(f"v_lshrrev_b32 v{VT+1}, 3, v0"); a(f"v_lshl_add_u32 v{VT+3}, v{VT+1}, 12, v{VT}")
    a(f"s_lshr_b32 s{T0}, s{sWave}, 2"); a(f"s_lshl_b32 s{T0}, s{T0}, 5")
    a(f"s_and_b32 s{T1}, s{sWave}, 1"); a(f"s_lshl_b32 s{T2}, s{T1}, 6"); a(f"s_lshl_b32 s{T1}, s{T1}, 4"); a(f"s_add_u32 s{T0}, s{T0}, s{T1}")
    a(f"s_bfe_u32 s{T1}, s{sWave}, 0x10001"); a(f"s_add_u32 s{T0}, s{T0}, s{T1}")
    a(f"s_lshl_b32 s{T1}, s{sN}, 6"); a(f"s_add_u32 s{T0}, s{T0}, s{T1}"); a(f"s_lshl_b32 s{T0}, s{T0}, 11")
    Qop.set_voff(0, VT + 3, T0, T2)
    a(f"v_mov_b32 v{Qop.vd+1}, v{Qop.vd}")
    a(f"s_lshl_b32 s{sLdsP}, s{sWave}, 12")
    a(f"s_lshl_b32 s{sLdsQ}, s{sWave}, 10"); a(f"s_add_u32 s{sLdsQ}, s{sLdsQ}, {Qop.lds_off}")
    a(f"s_lshl_b32 s{sKQ}, s{sRot}, 7")
    a("s_waitcnt lgkmcnt(0)")
    srd(a, SX, PTR["x"], L * D * 2); srd(a, SWS, PTR["ws"], WS_SIZE); srd(a, SDBG, PTR["dbg"], 256)
    srd(a, SA, PTR["bre"], P_ * D * 2); srd(a, SB_, PTR["bim"], P_ * D * 2)
    pt = [big, big + 8, big + 16]
    kadv = [f"s_add_u32 s{sKQ}, s{sKQ}, 128", f"s_and_b32 s{sKQ}, s{sKQ}, 2047"]
    kadvP = [f"s_add_u32 s{sKP}, s{sKP}, 128", f"s_and_b32 s{sKP}, s{sKP}, 2047"]
    a(f"s_mov_b32 s{sKP}, s{sKQ}")
    seg = Seg(Pop, Qop, acc, lambda b: Pop.dma(b, sKP, sTmp, sLdsP, [SX] * 4), lambda b: Qop.dma(b, sKQ, sTmp, sLdsQ, [SA, SB_]), kadvP, kadv, "s1")
    if C.prefetch:
        SP1, SP2, sPF1, sPF2 = SS, 72, sLdsP2, sKP2
        a(f"s_lshl_b32 s{T0}, s{sM}, 4"); a(f"s_add_u32 s{T0}, s{T0}, s{sN}")
        a(f"s_mul_i32 s{sPF2}, s{T0}, {56*1024}"); a(f"s_mul_i32 s{T1}, s{sWave}, {7*1024}"); a(f"s_add_u32 s{sPF2}, s{sPF2}, s{T1}")
        a(f"s_mov_b32 s{SP2}, s{PTR['w2']}"); a(f"s_mov_b32 s{SP2+1}, s{PTR['w2']+1}")
        a(f"s_add_u32 s{SP2+2}, s{sPF2}, {7*1024}"); a(f"s_mov_b32 s{SP2+3}, 0x20000")
        a(f"s_lshr_b32 s{T1}, s{T0}, 6"); a(f"s_cmp_eq_u32 s{T1}, 0")
        a(f"s_cselect_b32 s{SP1}, s{PTR['cre']}, s{PTR['cim']}"); a(f"s_cselect_b32 s{SP1+1}, s{PTR['cre']+1}, s{PTR['cim']+1}")
        a(f"s_and_b32 s{sPF1}, s{T0}, 63"); a(f"s_lshl_b32 s{sPF1}, s{sPF1}, 15"); a(f"s_lshl_b32 s{T1}, s{sWave}, 12"); a(f"s_add_u32 s{sPF1}, s{sPF1}, s{T1}")
        a(f"s_add_u32 s{SP1+2}, s{sPF1}, 4096"); a(f"s_mov_b32 s{SP1+3}, 0x20000")
        vpf = V.get(1); vpd = V.get(4, 2)
        a(f"v_lshlrev_b32 v{vpf}, 4, v0")
        pf = []
        for i in range(4): pf.append([f"buffer_load_dwordx4 {vr(vpd,4)}, v{vpf}, s[{SP1}:{SP1+3}], s{sPF1} offen offset:{i*1024}"])
        for i in range(7):
            pf.append([f"buffer_load_dwordx4 {vr(vpd,4)}, v{vpf}, s[{SP2}:{SP2+3}], s{sPF2} offen offset:{(i%4)*1024}"] + ([f"s_add_u32 s{sPF2}, s{sPF2}, 4096"] if i == 3 else []))
        p1extras = {C.pfit: (pf, 11)}
    else:
        p1extras = {}
    stages = [seg] * 16
    G.prologue(stages, "PQ", 0, 1)
    a(f"s_mul_i32 s{T0}, s{sWp}, {mp}"); Pop.setup_read(T0, VT, U0)
    a(f"s_lshl_b32 s{T0}, s{sWq}, 1"); Qop.setup_read(T0, VT, U0)
    G.zero_first = True
    if C.pbar: a("s_barrier")
    if C.tlb: tlb_warm(a, 250, VT + 5, ["ws", "w2", "cre", "cim", "out", "dbg", "dsk", "b2", "lre", "lim", "ldt", "gw"], 60); G.note('tlb', 1)
    G.prologue(stages, "PQ", 1)
    SPRM = 60
    def prm_loads():
        out = []
        class Cap:
            def __call__(self, x): out.append([x])
        c = Cap()
        c(f"s_lshl_b32 s{T2}, s{sN}, 6"); c(f"s_lshl_b32 s{T3}, s{sWq}, 5"); c(f"s_add_u32 s{T3}, s{T3}, s{T2}")
        c(f"v_and_b32 v{VT}, 15, v0"); c(f"v_lshlrev_b32 v{VT}, 1, v{VT}"); c(f"v_add_u32 v{VT}, s{T3}, v{VT}")
        c(f"v_lshlrev_b32 v{pt[0]}, 1, v{VT}"); c(f"v_add_u32 v{pt[1]}, 2, v{pt[0]}")
        c(f"v_add_u32 v{pt[2]}, s{T2}, v0"); c(f"v_lshlrev_b32 v{pt[2]}, 1, v{pt[2]}")
        c(f"s_mov_b32 s{SPRM+2}, 2048"); c(f"s_mov_b32 s{SPRM+3}, 0x20000")
        for k, name in enumerate(("lre", "lim", "ldt")):
            out.append([f"s_mov_b32 s{SPRM}, s{PTR[name]}", f"s_mov_b32 s{SPRM+1}, s{PTR[name]+1}"] +
                       [f"buffer_load_ushort v{pt[q]+1+k}, v{pt[q]}, s[{SPRM}:{SPRM+3}], 0 offen" for q in range(3)])
        return out
    def prm_math():
        out = []
        class Cap:
            def __call__(self, x): out.append(x)
        c = Cap()
        ssm_params_compute(c, prm, pt[0]); ssm_params_compute(c, prm + 4, pt[1]); ssm_params_compute(c, prm + 8, pt[2], False)
        return [out[i:i + 4] for i in range(0, len(out), 4)]
    p1extras[3] = (prm_loads(), 9)
    p1extras[7] = (prm_math(), 0)
    stamp(a, 1)
    p1extras[C.initit] = mb_zero_groups(VT + 2, True)
    G.run(stages, {C.initit + 3: (lambda: init_signal(a, VT + 4))}, p1extras)
    stamp(a, 2)
    stamp(a, 1, st="clk"); stamp(a, 2, real=True, st="clk")
    stamp(a, 1, st="ssm")
    init_load(a)
    a("s_nop 7")
    def U(jc, ri, s): return acc + 4 * ((s >> 2) * 4 + 2 * jc + ri) + (s & 3)
    ag = big; tt = big + 4
    def scan_step(s):
        for jc in range(2):
            hr, hi_ = ag + 2 * jc, ag + 2 * jc + 1; lr = prm + 4 * jc; t0, t1 = tt + 2 * jc, tt + 2 * jc + 1
            a(f"v_fma_f32 v{t0}, v{lr}, v{hr}, v{U(jc,0,s)}"); a(f"v_fma_f32 v{t1}, v{lr}, v{hi_}, v{U(jc,1,s)}")
        for jc in range(2):
            hr, hi_ = ag + 2 * jc, ag + 2 * jc + 1; li = prm + 4 * jc + 1; t0, t1 = tt + 2 * jc, tt + 2 * jc + 1
            a(f"v_fma_f32 v{hi_}, v{li}, -v{hi_}, v{t0}")
            a(f"v_fma_f32 v{t1}, v{li}, v{hr}, v{t1}")
        for jc in range(2):
            hr, hi_ = ag + 2 * jc, ag + 2 * jc + 1; t1 = tt + 2 * jc + 1
            a(f"v_mov_b32 v{hr}, v{hi_}"); a(f"v_mov_b32 v{hi_}, v{t1}")
    for jc in range(2):
        a(f"v_mov_b32 v{ag+2*jc}, v{U(jc,0,0)}"); a(f"v_mov_b32 v{ag+2*jc+1}, v{U(jc,1,0)}")
    def scan2(s, src, dst):
        for jc in range(2):
            hr, hi_ = src + 2 * jc, src + 2 * jc + 1; lr = prm + 4 * jc; dr, di = dst + 2 * jc, dst + 2 * jc + 1
            a(f"v_fma_f32 v{dr}, v{lr}, v{hr}, v{U(jc,0,s)}"); a(f"v_fma_f32 v{di}, v{lr}, v{hi_}, v{U(jc,1,s)}")
        for jc in range(2):
            hr, hi_ = src + 2 * jc, src + 2 * jc + 1; li = prm + 4 * jc + 1; dr, di = dst + 2 * jc, dst + 2 * jc + 1
            a(f"v_fma_f32 v{dr}, -v{li}, v{hi_}, v{dr}"); a(f"v_fma_f32 v{di}, v{li}, v{hr}, v{di}")
    st = [ag, tt]
    for s in range(1, 16): scan2(s, st[(s - 1) & 1], st[s & 1])
    fin = st[15 & 1]
    vag = big + 8
    def calc_vag():
        a(f"v_lshrrev_b32 v{vag}, 4, v0"); a(f"s_lshl_b32 s{T0}, s{sWp}, 2"); a(f"v_add_u32 v{vag}, s{T0}, v{vag}")
        a(f"v_lshlrev_b32 v{vag}, 9, v{vag}")
        a(f"v_and_b32 v{big+9}, 15, v0"); a(f"v_lshlrev_b32 v{big+9}, 4, v{big+9}")
        a(f"s_lshl_b32 s{T0}, s{sWq}, 8"); a(f"s_add_u32 s{T0}, s{T0}, {AG}")
        a(f"v_add3_u32 v{vag}, v{vag}, v{big+9}, s{T0}")
    calc_vag()
    a(f"ds_write_b128 v{vag}, {vr(fin,4)}")
    a("s_waitcnt lgkmcnt(0)")
    a("s_barrier")
    stamp(a, 2, st="ssm")
    a(f"s_cmp_lg_u32 s{sWave}, 0")
    a("s_cbranch_scc1 L_s_gate")
    lr, li = prm + 8, prm + 9
    l16r, l16i, l256r, l256i = big + 10, big + 11, big + 12, big + 13
    er, ei = big + 14, big + 15
    w0 = big + 4
    A = big + 16; vl = big + 9
    a(f"v_lshlrev_b32 v{vl}, 3, v0"); a(f"v_add_u32 v{vl}, {AG}, v{vl}")
    for s in range(16): a(f"ds_read_b64 {vr(A+2*s,2)}, v{vl} offset:{s*512}")
    csq(a, l16r, l16i, lr, li, w0)
    for _ in range(3): csq(a, l16r, l16i, l16r, l16i, w0)
    csq(a, l256r, l256i, l16r, l16i, w0)
    for _ in range(3): csq(a, l256r, l256i, l256r, l256i, w0)
    a("s_waitcnt lgkmcnt(0)")
    x0, x1 = big + 6, big + 7
    for s in range(1, 16):
        pr, pi, cr_, ci_ = A + 2 * (s - 1), A + 2 * (s - 1) + 1, A + 2 * s, A + 2 * s + 1
        a(f"v_fma_f32 v{cr_}, v{l16r}, v{pr}, v{cr_}"); a(f"v_fma_f32 v{ci_}, v{l16r}, v{pi}, v{ci_}")
        a(f"v_fma_f32 v{cr_}, -v{l16i}, v{pi}, v{cr_}"); a(f"v_fma_f32 v{ci_}, v{l16i}, v{pr}, v{ci_}")
    er, ei = A + 30, A + 31
    vo = big + 8
    a(f"s_lshl_b32 s{T0}, s{sN}, 6"); a(f"v_add_u32 v{vo}, s{T0}, v0"); a(f"v_lshlrev_b32 v{vo}, 3, v{vo}")
    a(f"s_lshl_b32 s{T1}, s{sM}, 13"); a(f"s_add_u32 s{T1}, s{T1}, {WS_AGG}")
    a("s_waitcnt vmcnt(0)")
    init_check(a, big + 52)
    a(f"s_lshl_b32 s{T1}, s{sM}, 13"); a(f"s_add_u32 s{T1}, s{T1}, {WS_AGG}")
    a(f"buffer_store_dwordx2 {vr(er,2)}, v{vo}, s[{SWS}:{SWS+3}], s{T1} offen sc1")
    stamp(a, 3, st="ssm")
    cr, ci = big + 48, big + 49
    a(f"v_mov_b32 v{cr}, 0"); a(f"v_mov_b32 v{ci}, 0")
    a(f"s_cmp_eq_u32 s{sM}, 0"); a("s_cbranch_scc1 L_s_nolb")
    B = big + 50
    a(f"s_mov_b32 s{U2}, {C.spin}")
    a.label("L_s_lb")
    for j in range(7):
        if j: a(f"s_cmp_le_u32 s{sM}, {j}"); a("s_cbranch_scc1 L_s_lbw")
        a(f"s_mov_b32 s{T1}, {WS_AGG + j*8192}")
        a(f"buffer_load_dwordx2 {vr(B+2*j,2)}, v{vo}, s[{SWS}:{SWS+3}], s{T1} offen sc1")
    a.label("L_s_lbw")
    a("s_waitcnt vmcnt(0)")
    a(f"s_mov_b64 s[{U0}:{U1}], 0")
    for j in range(7):
        if j: a(f"s_cmp_le_u32 s{sM}, {j}"); a("s_cbranch_scc1 L_s_lbc")
        a(f"v_cmp_eq_u32 vcc, -1, v{B+2*j}"); a("s_nop 0"); a(f"s_or_b64 s[{U0}:{U1}], s[{U0}:{U1}], vcc")
        a(f"v_cmp_eq_u32 vcc, -1, v{B+2*j+1}"); a("s_nop 0"); a(f"s_or_b64 s[{U0}:{U1}], s[{U0}:{U1}], vcc")
    a.label("L_s_lbc")
    a(f"s_cmp_eq_u64 s[{U0}:{U1}], 0"); a("s_cbranch_scc1 L_s_lbok")
    a(f"s_sub_u32 s{U2}, s{U2}, 1"); a(f"s_cmp_eq_u32 s{U2}, 0"); a("s_cbranch_scc1 L_s_lbok")
    a(f"s_sleep {C.sleep}"); a("s_branch L_s_lb")
    a.label("L_s_lbok")
    for j in range(7):
        a(f"s_cmp_le_u32 s{sM}, {j}"); a("s_cbranch_scc1 L_s_nolb")
        a(f"v_fma_f32 v{x0}, v{l256r}, v{cr}, v{B+2*j}"); a(f"v_fma_f32 v{x1}, v{l256r}, v{ci}, v{B+2*j+1}")
        a(f"v_fma_f32 v{x0}, -v{l256i}, v{ci}, v{x0}"); a(f"v_fma_f32 v{ci}, v{l256i}, v{cr}, v{x1}")
        a(f"v_mov_b32 v{cr}, v{x0}")
    a.label("L_s_nolb")
    stamp(a, 4, st="ssm")
    a(f"ds_write_b64 v{vl}, {vr(cr,2)}")
    for s in range(1, 16):
        a(f"v_mul_f32 v{x0}, v{l16r}, v{cr}"); a(f"v_mul_f32 v{x1}, v{l16r}, v{ci}")
        a(f"v_fma_f32 v{x0}, -v{l16i}, v{ci}, v{x0}"); a(f"v_fma_f32 v{ci}, v{l16i}, v{cr}, v{x1}")
        a(f"v_mov_b32 v{cr}, v{x0}")
        a(f"v_add_f32 v{A+2*(s-1)}, v{A+2*(s-1)}, v{cr}"); a(f"v_add_f32 v{A+2*(s-1)+1}, v{A+2*(s-1)+1}, v{ci}")
        a(f"ds_write_b64 v{vl}, {vr(A+2*(s-1),2)} offset:{s*512}")
    a("s_waitcnt lgkmcnt(0)")
    a("s_branch L_s_wait")
    a.label("L_s_gate")
    gxs = [big + 16, big + 24, big + 32]; gws = big + 40; gt = big + 48
    a(f"s_lshl_b32 s{T0}, s{sM}, 8"); a(f"s_lshl_b32 s{T1}, s{sN}, 4"); a(f"s_add_u32 s{T0}, s{T0}, s{T1}")
    a(f"s_add_u32 s{T0}, s{T0}, s{sWave}"); a(f"s_sub_u32 s{T0}, s{T0}, 1")
    a(f"s_add_u32 s{T1}, s{T0}, 7"); a(f"s_add_u32 s{T2}, s{T0}, 14")
    a(f"v_lshlrev_b32 v{gt}, 5, v0")
    srd(a, SS, PTR["gw"], 2048)
    a(f"buffer_load_dwordx4 {vr(gws,4)}, v{gt}, s[{SS}:{SS+3}], 0 offen"); a(f"buffer_load_dwordx4 {vr(gws+4,4)}, v{gt}, s[{SS}:{SS+3}], 0 offen offset:16")
    gate_row_loads(a, T0, gxs[0], gt); gate_row_loads(a, T1, gxs[1], gt)
    a(f"s_cmp_gt_u32 s{sWave}, 2"); a("s_cbranch_scc1 L_s_g2")
    gate_row_loads(a, T2, gxs[2], gt)
    a("s_waitcnt vmcnt(0)")
    gate_compute(a, T2, gxs[2], gws, gt + 1)
    a.label("L_s_g2")
    a("s_waitcnt vmcnt(0)")
    gate_compute(a, T0, gxs[0], gws, gt + 1); gate_compute(a, T1, gxs[1], gws, gt + 1)
    a.label("L_s_wait")
    a("s_barrier")
    calc_vag()
    a(f"ds_read_b128 {vr(ag,4)}, v{vag}")
    PITCH = 272
    vw = big + 9
    a(f"v_lshrrev_b32 v{vw}, 4, v0"); a(f"v_lshlrev_b32 v{vw}, 4, v{vw}"); a(f"s_lshl_b32 s{T0}, s{sWp}, 6"); a(f"v_add_u32 v{vw}, s{T0}, v{vw}")
    a(f"v_mul_u32_u24 v{vw}, {PITCH}, v{vw}")
    a(f"v_and_b32 v{big+10}, 15, v0"); a(f"v_lshl_add_u32 v{vw}, v{big+10}, 2, v{vw}")
    a(f"s_lshl_b32 s{T0}, s{sWq}, 6"); a(f"v_add_u32 v{vw}, s{T0}, v{vw}")
    vr_, vg_ = big + 10, big + 11
    a(f"v_lshrrev_b32 v{vr_}, 4, v0"); a(f"s_lshl_b32 s{T0}, s{sWave}, 5"); a(f"v_add_u32 v{vr_}, s{T0}, v{vr_}")
    a(f"s_lshl_b32 s{T1}, s{sM}, 8"); a(f"v_add_u32 v{vg_}, s{T1}, v{vr_}"); a(f"v_mul_u32_u24 v{vg_}, {RS_A2}, v{vg_}")
    a(f"v_mul_u32_u24 v{vr_}, {PITCH}, v{vr_}")
    a(f"v_and_b32 v{big+24}, 15, v0"); a(f"v_lshl_add_u32 v{vr_}, v{big+24}, 4, v{vr_}")
    a(f"v_and_b32 v{big+24}, 7, v0"); a(f"v_lshl_add_u32 v{vg_}, v{big+24}, 4, v{vg_}")
    a(f"v_bfe_u32 v{big+24}, v0, 3, 1"); a(f"v_lshl_add_u32 v{vg_}, v{big+24}, 11, v{vg_}")
    a(f"s_lshl_b32 s{T0}, s{sN}, 7"); a(f"s_add_u32 s{T0}, s{T0}, {WS_A2}")
    a("s_waitcnt lgkmcnt(0)")
    ore, oim, od = big + 12, big + 14, big + 16
    rb = big + 28
    st = [ag, tt]
    NPT = C.sparts; SP_ = 16 // NPT
    for s in range(16):
        scan2(s, st[s & 1], st[(s + 1) & 1])
        h = st[(s + 1) & 1]
        for jc in range(2):
            hr, hi_ = h + 2 * jc, h + 2 * jc + 1; kr, ki = prm + 4 * jc + 2, prm + 4 * jc + 3
            a(f"v_mul_f32 v{ore+jc}, v{kr}, v{hr}"); a(f"v_mul_f32 v{oim+jc}, -v{kr}, v{hi_}")
        for jc in range(2):
            hr, hi_ = h + 2 * jc, h + 2 * jc + 1; kr, ki = prm + 4 * jc + 2, prm + 4 * jc + 3
            a(f"v_fma_f32 v{ore+jc}, -v{ki}, v{hi_}, v{ore+jc}"); a(f"v_fma_f32 v{oim+jc}, -v{ki}, v{hr}, v{oim+jc}")
        d = od + 2 * (s % 4)
        a(f"v_cvt_pk_bf16_f32 v{d}, v{ore}, v{ore+1}"); a(f"v_cvt_pk_bf16_f32 v{d+1}, v{oim}, v{oim+1}")
        a(f"ds_write_b32 v{vw}, v{d} offset:{s*PITCH}"); a(f"ds_write_b32 v{vw}, v{d+1} offset:{s*PITCH+128}")
        if (s + 1) % SP_ == 0:
            p = s // SP_
            if p == NPT - 1: stamp(a, 5, st="ssm")
            ns_ = [n for n in range(8) if SP_ * p <= (4 * n) % 16 < SP_ * (p + 1)]
            a("s_waitcnt lgkmcnt(0)")
            a("s_barrier")
            for k, n in enumerate(ns_): a(f"ds_read_b128 {vr(rb+4*k,4)}, v{vr_} offset:{4*n*PITCH}")
            for k, n in enumerate(ns_):
                a(f"s_waitcnt lgkmcnt({len(ns_)-1-k})")
                a(f"s_add_u32 s{T1}, s{T0}, {4*n*RS_A2}")
                a(f"buffer_store_dwordx4 {vr(rb+4*k,4)}, v{vg_}, s[{SWS}:{SWS+3}], s{T1} offen{C.wt}")
    stamp(a, 6, st="ssm")
    return V.hi, AG + 8192

def phase2(a, role):
    R = "A" if role == 0 else "B"
    SW2, SE = 24, 72
    NS = C.ns
    TQ = 128 if NS == 2 else 256
    TP, mp, mq, NB = 128, 4, NS, (4 if NS == 2 else 3)
    LG = 1 if NS == 2 else 2
    XS = 8 // NS
    sG, sKQ2 = 0, 3
    V = Regs(10)
    P1 = OpKC(a, V, TP, 0, mp); P1.groups = [[0, 1]]
    P2 = OpNC(a, V, TP, 0, mp, D * 2)
    Qop = OpKC(a, V, TQ, TP * 128, mq, flags=C.a2ld); Qop.groups = [list(range(Qop.n))]
    SB = TP * 128 + Qop.bytes
    G = Gemm(a, V, NB, NB, TP * 128, Qop.bytes, mp, mq, (sBufD, sBufR, None, None, sCnt, sRole), True, 'P' if NS == 2 else 'Q', 'p2')
    nf = mp * mq
    accD = V.get(4 * nf, 2)
    accS = V.get(4 * nf, 2)
    vg = V.get(2 * mq, 2); vep = V.get(4)
    vex = V.get(6 * mp, 2) if NS == 2 else G.F[0][0] + (32 if C.xbf16 else 0)
    if NS != 2 and not C.xbf16: vex = accS
    dense = 1 if role == 1 else 0
    a(f"s_and_b32 s{T0}, s2, 7"); a(f"s_lshr_b32 s{T1}, s2, 3")
    a(f"s_lshr_b32 s{sG}, s{T0}, {3-LG}")
    a(f"s_and_b32 s{T2}, s{T0}, {XS-1}"); a(f"s_lshl_b32 s{sTt}, s{T2}, 2"); a(f"s_bfe_u32 s{T2}, s{T1}, 0x20002"); a(f"s_add_u32 s{sTt}, s{sTt}, s{T2}")
    a(f"s_and_b32 s{T2}, s{sG}, 1")
    if dense: a(f"s_xor_b32 s{T2}, s{T2}, 1")
    a(f"s_lshl_b32 s{sDt}, s{T2}, 2"); a(f"s_and_b32 s{T2}, s{T1}, 3"); a(f"s_add_u32 s{sDt}, s{sDt}, s{T2}")
    a(f"s_lshl_b32 s{sTile}, s{sTt}, 3"); a(f"s_add_u32 s{sTile}, s{sTile}, s{sDt}")
    a(f"s_lshr_b32 s{sWp}, s{sWave}, 2"); a(f"s_and_b32 s{sWq}, s{sWave}, 3")
    srd(a, SW2, PTR["w2"], F * D * 2)
    a(f"s_lshr_b32 s{T0}, s{sG}, {LG-1}"); a(f"s_cmp_eq_u32 s{T0}, 0")
    a(f"s_cselect_b32 s{SA}, s{PTR['cre']}, s{PTR['cim']}"); a(f"s_cselect_b32 s{SA+1}, s{PTR['cre']+1}, s{PTR['cim']+1}")
    a(f"s_mov_b32 s{SA+2}, {D*P_*2}"); a(f"s_mov_b32 s{SA+3}, 0x20000")
    Qop.lane_chunk(VT, VT + 1)
    a(f"v_lshrrev_b32 v{VT+1}, 3, v0"); a(f"v_lshl_add_u32 v{VT+3}, v{VT+1}, 11, v{VT}")
    for j in range(2):
        a(f"s_lshl_b32 s{T0}, s{sDt}, 7"); a(f"s_lshl_b32 s{T1}, s{sWave}, 4"); a(f"s_add_u32 s{T0}, s{T0}, s{T1}")
        if j: a(f"s_add_u32 s{T0}, s{T0}, 8")
        a(f"s_lshl_b32 s{T0}, s{T0}, 11")
        if j: a(f"s_sub_u32 s{T0}, s{T0}, 1024")
        P1.set_voff(j, VT + 3, T0, bool(j & 1))
    a(f"s_lshl_b32 s{sLdsP}, s{sWave}, 11")
    a(f"s_lshl_b32 s{T0}, s{sDt}, 8")
    P2.setup_dma(sWave, VT + 4, T0, U0)
    P2.setup_lds(sWave, sLdsP2, U0)
    a(f"v_lshrrev_b32 v{VT+1}, 3, v0"); a(f"v_mul_u32_u24 v{VT+1}, {RS_A2}, v{VT+1}"); a(f"v_add_u32 v{VT+3}, v{VT+1}, v{VT}")
    for j in range(Qop.n):
        a(f"s_mul_i32 s{T0}, s{sWave}, {TQ//8}")
        if j: a(f"s_add_u32 s{T0}, s{T0}, {8*j}")
        a(f"s_lshr_b32 s{T1}, s{T0}, 4"); a(f"s_add_u32 s{T1}, s{T1}, s{sG}"); a(f"s_and_b32 s{T1}, s{T1}, {NS-1}"); a(f"s_lshl_b32 s{T1}, s{T1}, 4")
        a(f"s_andn2_b32 s{T0}, s{T0}, {(NS-1) << 4}"); a(f"s_or_b32 s{T0}, s{T0}, s{T1}")
        a(f"s_mul_i32 s{T1}, s{sTt}, {TQ}"); a(f"s_add_u32 s{T0}, s{T0}, s{T1}"); a(f"s_mul_i32 s{T0}, s{T0}, {RS_A2}")
        if j: a(f"s_sub_u32 s{T0}, s{T0}, {1024*j}")
        Qop.set_voff(j, VT + 3, T0, bool(j & 1))
    a(f"s_mul_i32 s{sLdsQ}, s{sWave}, {Qop.n*1024}"); a(f"s_add_u32 s{sLdsQ}, s{sLdsQ}, {Qop.lds_off}")
    K2 = C.k2 if NS == 4 else 0
    nS = 32 // NS; base = (56 - K2) // NS
    assert base * NS == 56 - K2
    nD = base + (C.delta if role == 0 else -C.delta)
    colsS = 2048 // NS
    a(f"s_mul_i32 s{sKQ}, s{sG}, {colsS*2}"); a(f"s_and_b32 s{sKP}, s{sKQ}, 2047")
    if WS_A2: a(f"s_add_u32 s{sKQ}, s{sKQ}, {WS_A2}")
    a(f"s_lshr_b32 s{T0}, s{sG}, 1"); a(f"s_mul_i32 s{T0}, s{T0}, {2*base}")
    a(f"s_and_b32 s{T1}, s{sG}, 1"); a(f"s_mul_i32 s{T1}, s{T1}, {2*base - nD}"); a(f"s_add_u32 s{T0}, s{T0}, s{T1}")
    a(f"s_mul_i32 s{sKP2}, s{T0}, {64*D*2}"); a(f"s_lshl_b32 s{sKQ2}, s{T0}, 7"); a(f"s_add_u32 s{sKQ2}, s{sKQ2}, {WS_A2 + 4096}")
    a(f"s_mul_i32 s{T0}, s{sWp}, {mp}")
    P1.setup_read(T0, VT, U0); P2.setup_read(T0, VT, U0)
    a(f"s_mul_i32 s{T0}, s{sWq}, {mq}"); Qop.setup_read(T0, VT, U0)
    qd = lambda b: Qop.dma(b, sKQ, sTmp, sLdsQ, [SWS] * Qop.n)
    qd2 = lambda b: Qop.dma(b, sKQ2, sTmp, sLdsQ, [SWS] * Qop.n)
    segD = Seg(P2, Qop, accD, lambda b: P2.dma(b, sKP2, sTmp, sLdsP2, SW2), qd2, [f"s_add_u32 s{sKP2}, s{sKP2}, {64*D*2}"], [f"s_add_u32 s{sKQ2}, s{sKQ2}, 128"], "d")
    segS = Seg(P1, Qop, accS, lambda b: P1.dma(b, sKP, sTmp, sLdsP, [SA] * 2), qd, [f"s_add_u32 s{sKP}, s{sKP}, 128"], [f"s_add_u32 s{sKQ}, s{sKQ}, 128"], "s")
    stages = [segS] * nS + [segD] * nD
    N = len(stages)
    a("s_barrier")
    G.prologue(stages, "P")
    nP0 = 2 * G.leadP
    G.zero_first = True
    post_first = None
    fine = C.fine and NS == 4
    sMS = 49
    def chk_need(need):
        def chk(ok):
            if NS == 2:
                a(f"s_add_u32 s{U0}, s{U0}, s{U1}"); a(f"s_cmp_eq_u32 s{U0}, 16"); a(f"s_cbranch_scc1 {ok}")
            else:
                a(f"s_bitcmp1_b32 s{sG}, 0"); a(f"s_cselect_b32 s{sMS}, s{U1}, s{U0}")
                if fine:
                    a(f"s_and_b32 s{U0}, s{sMS}, {need}"); a(f"s_cmp_eq_u32 s{U0}, {need}"); a(f"s_cbranch_scc1 {ok}")
                else:
                    a(f"s_cmp_eq_u32 s{sMS}, 8"); a(f"s_cbranch_scc1 {ok}")
        return chk
    nfirst = G.leadQ + (1 if G.early == 'Q' else 0)
    chkS = chk_need((1 << nfirst) - 1)
    PW = 1
    if role == 0:
        a(f"s_waitcnt vmcnt({nP0})")
        a("s_barrier")
        stamp(a, 3)
        a(f"s_cmp_eq_u32 s{sWave}, {PW}"); a(f"s_cbranch_scc1 L_p2{R}_pl")
        a(f"s_cmp_lg_u32 s{sWave}, 0"); a(f"s_cbranch_scc1 L_p2{R}_dep")
        signal_cnt(a, "S", VT)
        a(f"s_branch L_p2{R}_dep")
        a.label(f"L_p2{R}_pl")
        poll_own(a, chkS, VT)
    elif C.dearly:
        a(f"s_waitcnt vmcnt({nP0})")
        a("s_barrier")
        stamp(a, 3)
        stamp(a, 6, st="dense")
        a(f"s_cmp_eq_u32 s{sWave}, {PW}"); a(f"s_cbranch_scc1 L_p2{R}_pl")
        a(f"s_cmp_lg_u32 s{sWave}, 0"); a(f"s_cbranch_scc1 L_p2{R}_dep")
        init_check(a, VT)
        signal_cnt(a, 2, VT)
        a(f"s_branch L_p2{R}_dep")
        a.label(f"L_p2{R}_pl")
        poll_own(a, chkS, VT)
    else:
        stamp(a, 3)
        stamp(a, 6, st="dense")
        a(f"s_cmp_lg_u32 s{sWave}, {PW}"); a(f"s_cbranch_scc1 L_p2{R}_dep")
        poll_own(a, chkS, VT)
        def post_first():
            sk = newlabel("pf")
            a(f"s_cmp_lg_u32 s{sWave}, 0"); a(f"s_cbranch_scc1 {sk}")
            init_check(a, VT)
            signal_cnt(a, 2, VT)
            a.label(sk)
    a.label(f"L_p2{R}_dep")
    a("s_barrier")
    G.prologue(stages, "Q")
    hooks = {}
    if fine:
        def mk(bit):
            def h():
                sk = newlabel("hs")
                a(f"s_cmp_lg_u32 s{sWave}, {PW}"); a(f"s_cbranch_scc1 {sk}")
                a(f"s_bitcmp1_b32 s{sMS}, {bit}"); a(f"s_cbranch_scc1 {sk}")
                poll_own(a, chk_need(1 << bit), VT)
                a.label(sk)
            return h
        for bit in range(nfirst, nS): hooks[bit - nfirst] = mk(bit)
    full = (0xff + 0xff + 16) if fine else 32
    def hookD():
        sk = newlabel("hk")
        stamp(a, 2, st="p2")
        a(f"s_cmp_lg_u32 s{sWave}, {PW}"); a(f"s_cbranch_scc1 {sk}")
        def chk(ok):
            a(f"s_add_u32 s{U0}, s{U0}, s{U1}"); a(f"s_add_u32 s{U0}, s{U0}, s{U3}"); a(f"s_cmp_eq_u32 s{U0}, {full}"); a(f"s_cbranch_scc1 {ok}")
        poll_own(a, chk, VT)
        a.label(sk)
        stamp(a, 3, st="p2")
    hd = nS - G.leadQ - (1 if G.early == 'Q' else 0)
    assert hd not in hooks
    hooks[hd] = hookD
    sXD = 44
    vt_own, vxo, vd2, vl16 = vep, vep + 1, vep + 2, vep + 3
    vx_, vds, vb2 = vex, vex + 2 * mp, vex + 4 * mp
    ex = []
    ex.append([f"s_mul_i32 s{T0}, s{sTt}, {TQ}", f"s_mul_i32 s{T1}, s{sWq}, {16*mq}", f"s_add_u32 s{T0}, s{T0}, s{T1}",
               f"v_and_b32 v{vt_own}, 15, v0", f"v_add_u32 v{vt_own}, s{T0}, v{vt_own}", f"v_lshlrev_b32 v{vxo}, 3, v{vt_own}"])
    for j in range(mq):
        ex.append([f"s_add_u32 s{T0}, s{sG}, {j}", f"s_and_b32 s{T0}, s{T0}, {NS-1}", f"s_lshl_b32 s{T0}, s{T0}, 7", f"s_add_u32 s{T0}, s{T0}, {WS_G}",
                   f"buffer_load_dwordx2 {vr(vg+2*j,2)}, v{vxo}, s[{SWS}:{SWS+3}], s{T0} offen sc1"])
    ex.append([f"s_lshl_b32 s{T0}, s{sG}, 4", f"v_add_u32 v{vt_own}, s{T0}, v{vt_own}",
               f"v_lshrrev_b32 v{vd2}, 4, v0", f"v_lshlrev_b32 v{vd2}, 2, v{vd2}",
               f"s_lshl_b32 s{T0}, s{sDt}, 7", f"s_lshl_b32 s{T1}, s{sWp}, 6", f"s_add_u32 s{T0}, s{T0}, s{T1}",
               f"v_add_u32 v{vd2}, s{T0}, v{vd2}", f"v_lshlrev_b32 v{vd2}, 1, v{vd2}",
               f"v_lshl_add_u32 v{vxo}, v{vt_own}, 11, v{vd2}", f"v_lshlrev_b32 v{vl16}, 4, v0"])
    for j in range(1, mq):
        ex.append([f"s_add_u32 s{T1}, s{sG}, {j}", f"s_and_b32 s{T1}, s{T1}, {NS-1}",
                   f"s_mul_i32 s{T0}, s{T1}, {XS}", f"s_and_b32 s{T2}, s2, {XS-1}", f"s_add_u32 s{T0}, s{T0}, s{T2}",
                   f"s_lshr_b32 s{T2}, s{sDt}, 2", f"s_xor_b32 s{T2}, s{T2}, s{T1}", f"s_and_b32 s{T2}, s{T2}, 1", f"s_xor_b32 s{T2}, s{T2}, 1",
                   f"s_lshl_b32 s{T2}, s{T2}, 7", f"s_or_b32 s{T0}, s{T0}, s{T2}", f"s_and_b32 s{T2}, s2, 0x78", f"s_or_b32 s{T0}, s{T0}, s{T2}",
                   f"s_lshl_b32 s{T0}, s{T0}, 3", f"s_add_u32 s{T0}, s{T0}, s{sWave}", f"s_mul_i32 s{T0}, s{T0}, {4096*(NS-1)}",
                   f"s_add_u32 s{sXD+j-1}, s{T0}, {WS_XB + (NS - j - 1) * 4096}"])
    ex2 = []
    for i in range(mp):
        ex2.append([f"buffer_load_dwordx2 {vr(vx_+2*i,2)}, v{vxo}, s[{SX}:{SX+3}], 0 offen offset:{32*i}"])
    ex2.append([f"s_mov_b32 s{SE}, s{PTR['dsk']}", f"s_mov_b32 s{SE+1}, s{PTR['dsk']+1}", f"s_mov_b32 s{SE+2}, 2048", f"s_mov_b32 s{SE+3}, 0x20000"])
    for i in range(mp):
        ex2.append([f"buffer_load_dwordx2 {vr(vds+2*i,2)}, v{vd2}, s[{SE}:{SE+3}], 0 offen offset:{32*i}"])
    ex2.append([f"s_mov_b32 s{SE}, s{PTR['b2']}", f"s_mov_b32 s{SE+1}, s{PTR['b2']+1}"])
    for i in range(mp):
        ex2.append([f"buffer_load_dwordx2 {vr(vb2+2*i,2)}, v{vd2}, s[{SE}:{SE+3}], 0 offen offset:{32*i}"])
    if NS == 2: extras = {N - NB: (ex + ex2, mq + 3 * mp)}
    else: extras = {N - NB: (ex, mq)}
    stamp(a, 4)
    stamp(a, 1, st="p2")
    stamp(a, 3, st="clk"); stamp(a, 4, real=True, st="clk")
    G.run(stages, hooks, extras, post_first)
    stamp(a, 5)
    stamp(a, 4, st="p2")
    stamp(a, 5, st="clk"); stamp(a, 6, real=True, st="clk")
    stamp(a, 1, st="end")
    a("s_nop 7")
    a("s_waitcnt vmcnt(0)")
    def comb(i, j):
        c = 4 * (i * mq + j)
        for r in range(4):
            a(f"v_mul_f32 v{accD+c+r}, v{vg+2*j+1}, v{accD+c+r}"); a(f"v_fmac_f32 v{accD+c+r}, v{vg+2*j}, v{accS+c+r}")
    if K2:
        return phase2b(a, role, locals())
    late_ex2 = (NS != 2 and not C.xbf16)
    if late_ex2:
        for j in list(range(1, mq)) + [0]:
            for i in range(mp): comb(i, j)
    nst = (2 if C.xbf16 else 4) * (mq - 1)
    for j in range(1, mq):
        if not late_ex2:
            for i in range(mp): comb(i, j)
        if C.xbf16:
            for i2 in range(0, mp, 2):
                c0, c1 = accD + 4 * (i2 * mq + j), accD + 4 * ((i2 + 1) * mq + j)
                a(f"v_cvt_pk_bf16_f32 v{c0}, v{c0}, v{c0+1}"); a(f"v_cvt_pk_bf16_f32 v{c0+1}, v{c0+2}, v{c0+3}")
                a(f"v_cvt_pk_bf16_f32 v{c0+2}, v{c1}, v{c1+1}"); a(f"v_cvt_pk_bf16_f32 v{c0+3}, v{c1+2}, v{c1+3}")
                a(f"buffer_store_dwordx4 {vr(c0,4)}, v{vl16}, s[{SWS}:{SWS+3}], s{sXD+j-1} offen offset:{(i2//2)*1024} sc1")
        else:
            a("s_nop 1")
            for i in range(mp):
                c = accD + 4 * (i * mq + j)
                a(f"buffer_store_dwordx4 {vr(c,4)}, v{vl16}, s[{SWS}:{SWS+3}], s{sXD+j-1} offen offset:{i*1024} sc1")
    stamp(a, 2, st="end")
    n_ex2 = 0
    if NS != 2:
        for g_ in ex2: G.emit(g_)
        n_ex2 = 3 * mp
    if not late_ex2:
        for i in range(mp): comb(i, 0)
    t1, t2, t3 = VT + 5, VT + 6, VT + 7
    a(f"s_and_b32 s{T0}, s2, {XS-1}")
    a(f"v_mul_u32_u24 v{t1}, {XS}, v0"); a(f"v_add_u32 v{t1}, s{T0}, v{t1}")
    a(f"s_lshr_b32 s{T0}, s{sDt}, 2")
    a(f"v_and_b32 v{t2}, 1, v0"); a(f"v_xor_b32 v{t2}, s{T0}, v{t2}"); a(f"v_xor_b32 v{t2}, 1, v{t2}")
    a(f"s_lshr_b32 s{T0}, s2, 3"); a(f"s_and_b32 s{T0}, s{T0}, 15")
    a(f"v_lshlrev_b32 v{t2}, 4, v{t2}"); a(f"v_add_u32 v{t2}, s{T0}, v{t2}"); a(f"v_lshl_or_b32 v{t2}, v{t2}, 3, v{t1}")
    a(f"v_lshlrev_b32 v{t2}, 8, v{t2}")
    a(f"v_subrev_u32 v{t1}, s{sG}, v0"); a(f"v_and_b32 v{t1}, {NS-1}, v{t1}")
    a(f"v_sub_u32 v{t1}, {NS-1}, v{t1}"); a(f"v_lshl_add_u32 v{t2}, v{t1}, 2, v{t2}")
    a(f"v_mov_b32 v{t3}, 1")
    a(f"s_lshl_b32 s{T0}, 1, s{sG}"); a(f"s_andn2_b32 s{T0}, {(1 << NS) - 1}, s{T0}")
    a(f"s_lshl_b32 s{T1}, s{sWave}, 4"); a(f"s_add_u32 s{T1}, s{T1}, {WS_MB + 32}")
    a(f"s_waitcnt vmcnt({n_ex2})")
    stamp(a, 5, st="p2")
    stamp(a, 3, st="end")
    a(f"s_mov_b32 exec_lo, s{T0}"); a("s_mov_b32 exec_hi, 0")
    a(f"buffer_store_dword v{t3}, v{t2}, s[{SWS}:{SWS+3}], s{T1} offen sc1")
    a("s_mov_b64 exec, -1")
    if n_ex2: a("s_waitcnt vmcnt(1)")
    x0, x1, y0, y1 = VT, VT + 1, VT + 2, VT + 3
    for i in range(mp):
        e = accD + 4 * (i * mq)
        for h in range(2):
            a(f"v_lshlrev_b32 v{x0}, 16, v{vx_+2*i+h}"); a(f"v_and_b32 v{x1}, 0xffff0000, v{vx_+2*i+h}")
            a(f"v_lshlrev_b32 v{y0}, 16, v{vds+2*i+h}"); a(f"v_and_b32 v{y1}, 0xffff0000, v{vds+2*i+h}")
            a(f"v_mul_f32 v{x0}, v{x0}, v{y0}"); a(f"v_mul_f32 v{x1}, v{x1}, v{y1}")
            a(f"v_cvt_pk_bf16_f32 v{x0}, v{x0}, v{x1}")
            a(f"v_and_b32 v{x1}, 0xffff0000, v{x0}"); a(f"v_lshlrev_b32 v{x0}, 16, v{x0}")
            a(f"v_fmac_f32 v{e+2*h}, v{vg}, v{x0}"); a(f"v_fmac_f32 v{e+2*h+1}, v{vg}, v{x1}")
            a(f"v_lshlrev_b32 v{x0}, 16, v{vb2+2*i+h}"); a(f"v_and_b32 v{x1}, 0xffff0000, v{vb2+2*i+h}")
            a(f"v_fmac_f32 v{e+2*h}, v{vg+1}, v{x0}"); a(f"v_fmac_f32 v{e+2*h+1}, v{vg+1}, v{x1}")
    stamp(a, 4, st="end")
    a(f"s_lshl_b32 s{T3}, s2, 8"); a(f"s_add_u32 s{T3}, s{T3}, s{T1}")
    def chkx(ok):
        if NS == 4: a(f"s_and_b32 s{U0}, s{U0}, s{U1}"); a(f"s_and_b32 s{U0}, s{U0}, s{U3}")
        a(f"s_cmp_lg_u32 s{U0}, 0"); a(f"s_cbranch_scc1 {ok}")
    poll(a, SWS, T3, chkx, VT, wide=(4 if NS == 4 else 1), sleep=1)
    stamp(a, 5, st="end")
    rb = G.F[0][0]
    nrx = mp * (NS - 1)
    assert 2 * (4 * mp + 4 * mq) >= 4 * nrx
    inbox_offset(a, T0)
    per = 2 if C.xbf16 else 4
    for k in range(per * (NS - 1)):
        if k and k % per == 0: a(f"s_add_u32 s{T0}, s{T0}, 4096")
        a(f"buffer_load_dwordx4 {vr(rb+4*k,4)}, v{vl16}, s[{SWS}:{SWS+3}], s{T0} offen offset:{(k%per)*1024} sc1")
    srd(a, SE, PTR["out"], L * D * 4)
    vo = VT
    a(f"v_lshlrev_b32 v{vo}, 12, v{vt_own}"); a(f"v_lshl_add_u32 v{vo}, v{vd2}, 1, v{vo}")
    a("s_waitcnt vmcnt(0)")
    stamp(a, 6, st="end")
    for i in range(mp):
        e = accD + 4 * (i * mq)
        for k in range(NS - 1):
            if C.xbf16:
                src = rb + 8 * k + 4 * (i // 2) + 2 * (i % 2)
                x0, x1 = VT + 2, VT + 3
                for h in range(2):
                    a(f"v_lshlrev_b32 v{x0}, 16, v{src+h}"); a(f"v_and_b32 v{x1}, 0xffff0000, v{src+h}")
                    a(f"v_add_f32 v{e+2*h}, v{e+2*h}, v{x0}"); a(f"v_add_f32 v{e+2*h+1}, v{e+2*h+1}, v{x1}")
            else:
                for r in range(4): a(f"v_add_f32 v{e+r}, v{e+r}, v{rb+k*4*mp+4*i+r}")
        a(f"buffer_store_dwordx4 {vr(e,4)}, v{vo}, s[{SE}:{SE+3}], 0 offen offset:{64*i}{C.wto}")
    stamp(a, 6)
    stamp(a, 6, st="p2")
    return V.hi, NB * SB

def phase2b(a, role, L_):
    g = L_
    R, NS, XS, mp, mq, K2 = g["R"], g["NS"], g["XS"], g["mp"], g["mq"], g["K2"]
    accD, accS, vg, G, P2, Qop, SW2, SE = g["accD"], g["accS"], g["vg"], g["G"], g["P2"], g["Qop"], g["SW2"], g["SE"]
    sG, sKQ2, sXD, comb, V = g["sG"], g["sKQ2"], g["sXD"], g["comb"], g["V"]
    vt_own, vxo, vd2, vl16 = g["vt_own"], g["vxo"], g["vd2"], g["vl16"]
    assert C.xbf16 and NS == 4
    NB2 = 6
    Vq = Regs(Qop.vd)
    Q2 = OpKC(a, Vq, 64, 128 * 128, 1, flags=C.a2ld); Q2.groups = [[0]]
    assert Vq.hi <= Qop.c1 + 1
    Vf = Regs(G.F[0][0])
    G2 = Gemm(a, Vf, NB2, NB2, 128 * 128, Q2.bytes, mp, 1, (sBufD, sBufR, None, None, sCnt, sRole), True, 'P', 'p2b')
    G2.acc_stride = 4 * mq
    assert Vf.hi <= G.F[1][1] + 4 * mq
    Q2.lane_chunk(VT, VT + 1)
    a(f"v_lshrrev_b32 v{VT+1}, 3, v0"); a(f"v_mul_u32_u24 v{VT+1}, {RS_A2}, v{VT+1}"); a(f"v_add_u32 v{VT+3}, v{VT+1}, v{VT}")
    a(f"s_lshr_b32 s{T0}, s{sWave}, 1"); a(f"s_lshl_b32 s{T0}, s{T0}, 6"); a(f"s_and_b32 s{T1}, s{sWave}, 1"); a(f"s_lshl_b32 s{T2}, s{T1}, 6")
    a(f"s_lshl_b32 s{T1}, s{T1}, 3"); a(f"s_add_u32 s{T0}, s{T0}, s{T1}"); a(f"s_lshl_b32 s{T1}, s{sG}, 4"); a(f"s_add_u32 s{T0}, s{T0}, s{T1}")
    a(f"s_lshl_b32 s{T1}, s{sTt}, 8"); a(f"s_add_u32 s{T0}, s{T0}, s{T1}"); a(f"s_mul_i32 s{T0}, s{T0}, {RS_A2}")
    Q2.set_voff(0, VT + 3, T0, T2)
    a(f"s_lshl_b32 s{sLdsQ}, s{sWave}, 10"); a(f"s_add_u32 s{sLdsQ}, s{sLdsQ}, {Q2.lds_off}")
    Q2.setup_read(sWq, VT, U0)
    a(f"s_mov_b32 s{sKP2}, {(56-K2)*64*D*2}"); a(f"s_mov_b32 s{sKQ2}, {WS_A2 + 4096 + (56-K2)*128}")
    seg2 = Seg(P2, Q2, accD, lambda b: P2.dma(b, sKP2, sTmp, sLdsP2, SW2), lambda b: Q2.dma(b, sKQ2, sTmp, sLdsQ, [SWS]),
               [f"s_add_u32 s{sKP2}, s{sKP2}, {64*D*2}"], [f"s_add_u32 s{sKQ2}, s{sKQ2}, 128"], "b")
    st2 = [seg2] * K2
    a("s_barrier")
    G2.prologue(st2)
    for j in range(1, mq):
        for i in range(mp): comb(i, j)
        for i2 in range(0, mp, 2):
            c0, c1 = accD + 4 * (i2 * mq + j), accD + 4 * ((i2 + 1) * mq + j)
            a(f"v_cvt_pk_bf16_f32 v{c0}, v{c0}, v{c0+1}"); a(f"v_cvt_pk_bf16_f32 v{c0+1}, v{c0+2}, v{c0+3}")
            a(f"v_cvt_pk_bf16_f32 v{c0+2}, v{c1}, v{c1+1}"); a(f"v_cvt_pk_bf16_f32 v{c0+3}, v{c1+2}, v{c1+3}")
            a(f"buffer_store_dwordx4 {vr(c0,4)}, v{vl16}, s[{SWS}:{SWS+3}], s{sXD+j-1} offen offset:{(i2//2)*1024} sc1")
    G2.note('xs', 6)
    stamp(a, 2, st="end")
    vx_, vds, vb2 = accS + 4, accS + 20, accS + 36
    for i in range(mp): a(f"buffer_load_dwordx2 {vr(vx_+2*i,2)}, v{vxo}, s[{SX}:{SX+3}], 0 offen offset:{32*i}")
    srd(a, SE, PTR["dsk"], 2048)
    for i in range(mp): a(f"buffer_load_dwordx2 {vr(vds+2*i,2)}, v{vd2}, s[{SE}:{SE+3}], 0 offen offset:{32*i}")
    a(f"s_mov_b32 s{SE}, s{PTR['b2']}"); a(f"s_mov_b32 s{SE+1}, s{PTR['b2']+1}")
    for i in range(mp): a(f"buffer_load_dwordx2 {vr(vb2+2*i,2)}, v{vd2}, s[{SE}:{SE+3}], 0 offen offset:{32*i}")
    G2.note('ex2', 12)
    t1, t2, t3 = VT + 5, VT + 6, VT + 7
    sMask, sFl = sXD + 3, sXD + 4
    a(f"s_and_b32 s{T0}, s2, {XS-1}")
    a(f"v_mul_u32_u24 v{t1}, {XS}, v0"); a(f"v_add_u32 v{t1}, s{T0}, v{t1}")
    a(f"s_lshr_b32 s{T0}, s{sDt}, 2")
    a(f"v_and_b32 v{t2}, 1, v0"); a(f"v_xor_b32 v{t2}, s{T0}, v{t2}"); a(f"v_xor_b32 v{t2}, 1, v{t2}")
    a(f"s_lshr_b32 s{T0}, s2, 3"); a(f"s_and_b32 s{T0}, s{T0}, 15")
    a(f"v_lshlrev_b32 v{t2}, 4, v{t2}"); a(f"v_add_u32 v{t2}, s{T0}, v{t2}"); a(f"v_lshl_or_b32 v{t2}, v{t2}, 3, v{t1}")
    a(f"v_lshlrev_b32 v{t2}, 8, v{t2}")
    a(f"v_subrev_u32 v{t1}, s{sG}, v0"); a(f"v_and_b32 v{t1}, {NS-1}, v{t1}")
    a(f"v_sub_u32 v{t1}, {NS-1}, v{t1}"); a(f"v_lshl_add_u32 v{t2}, v{t1}, 2, v{t2}")
    a(f"v_mov_b32 v{t3}, 1")
    a(f"s_lshl_b32 s{sMask}, 1, s{sG}"); a(f"s_andn2_b32 s{sMask}, {(1 << NS) - 1}, s{sMask}")
    a(f"s_lshl_b32 s{sFl}, s{sWave}, 4"); a(f"s_add_u32 s{sFl}, s{sFl}, {WS_MB + 32}")
    def flag():
        a(f"s_mov_b32 exec_lo, s{sMask}"); a("s_mov_b32 exec_hi, 0")
        a(f"buffer_store_dword v{t3}, v{t2}, s[{SWS}:{SWS+3}], s{sFl} offen sc1")
        a("s_mov_b64 exec, -1")
    fit = C.flagit
    def hookF():
        a(f"s_waitcnt vmcnt({G2.allow_at[fit]})")
        flag()
    G2.want_allow = {fit: 'xs'}
    G2.run(st2, {fit: hookF})
    stamp(a, 3, st="end")
    a("s_nop 7")
    a("s_waitcnt vmcnt(0)")
    a(f"s_lshl_b32 s{T3}, s2, 8"); a(f"s_add_u32 s{T3}, s{T3}, s{sFl}")
    def chkx(ok):
        a(f"s_and_b32 s{U0}, s{U0}, s{U1}"); a(f"s_and_b32 s{U0}, s{U0}, s{U3}")
        a(f"s_cmp_lg_u32 s{U0}, 0"); a(f"s_cbranch_scc1 {ok}")
    poll(a, SWS, T3, chkx, VT, wide=4, sleep=1)
    stamp(a, 4, st="end")
    rbq = [accD + 4, accD + 8, accD + 12, accD + 20, accD + 24, accD + 28]
    inbox_offset(a, T0)
    for k in range(6):
        if k and k % 2 == 0: a(f"s_add_u32 s{T0}, s{T0}, 4096")
        a(f"buffer_load_dwordx4 {vr(rbq[k],4)}, v{vl16}, s[{SWS}:{SWS+3}], s{T0} offen offset:{(k%2)*1024} sc1")
    for i in range(mp): comb(i, 0)
    x0, x1, y0, y1 = VT, VT + 1, VT + 2, VT + 3
    for i in range(mp):
        e = accD + 4 * (i * mq)
        for h in range(2):
            a(f"v_lshlrev_b32 v{x0}, 16, v{vx_+2*i+h}"); a(f"v_and_b32 v{x1}, 0xffff0000, v{vx_+2*i+h}")
            a(f"v_lshlrev_b32 v{y0}, 16, v{vds+2*i+h}"); a(f"v_and_b32 v{y1}, 0xffff0000, v{vds+2*i+h}")
            a(f"v_mul_f32 v{x0}, v{x0}, v{y0}"); a(f"v_mul_f32 v{x1}, v{x1}, v{y1}")
            a(f"v_cvt_pk_bf16_f32 v{x0}, v{x0}, v{x1}")
            a(f"v_and_b32 v{x1}, 0xffff0000, v{x0}"); a(f"v_lshlrev_b32 v{x0}, 16, v{x0}")
            a(f"v_fmac_f32 v{e+2*h}, v{vg}, v{x0}"); a(f"v_fmac_f32 v{e+2*h+1}, v{vg}, v{x1}")
            a(f"v_lshlrev_b32 v{x0}, 16, v{vb2+2*i+h}"); a(f"v_and_b32 v{x1}, 0xffff0000, v{vb2+2*i+h}")
            a(f"v_fmac_f32 v{e+2*h}, v{vg+1}, v{x0}"); a(f"v_fmac_f32 v{e+2*h+1}, v{vg+1}, v{x1}")
    srd(a, SE, PTR["out"], L * D * 4)
    vo = VT
    a(f"v_lshlrev_b32 v{vo}, 12, v{vt_own}"); a(f"v_lshl_add_u32 v{vo}, v{vd2}, 1, v{vo}")
    a("s_waitcnt vmcnt(0)")
    stamp(a, 5, st="end")
    for i in range(mp):
        e = accD + 4 * (i * mq)
        for k in range(NS - 1):
            src = rbq[2 * k + i // 2] + 2 * (i % 2)
            x0, x1 = VT + 2, VT + 3
            for h in range(2):
                a(f"v_lshlrev_b32 v{x0}, 16, v{src+h}"); a(f"v_and_b32 v{x1}, 0xffff0000, v{src+h}")
                a(f"v_add_f32 v{e+2*h}, v{e+2*h}, v{x0}"); a(f"v_add_f32 v{e+2*h+1}, v{e+2*h+1}, v{x1}")
        a(f"buffer_store_dwordx4 {vr(e,4)}, v{vo}, s[{SE}:{SE+3}], 0 offen offset:{64*i}{C.wto}")
    stamp(a, 6)
    stamp(a, 6, st="p2"); stamp(a, 6, st="end")
    return V.hi, max(g["NB"] * g["SB"], NB2 * (128 * 128 + Q2.bytes))

def emit_stamps(a):
    a("s_memrealtime s[88:89]"); a("s_waitcnt lgkmcnt(0)")
    a(f"s_cmp_lg_u32 s{sWave}, {C.stwave}"); a("s_cbranch_scc1 L_end")
    a("s_waitcnt vmcnt(0)")
    for i in range(1, 7): a(f"s_sub_u32 s{92+i}, s{92+i}, s92")
    a("s_mov_b32 s99, s100")
    a("s_nop 0")
    a(f"s_mov_b32 s100, s88")
    for i in range(8): a(f"v_mov_b32 v{12+i}, s{93+i}")
    a("v_mov_b32 v11, 0")
    if C.dbgout:
        a("s_and_b32 s76, s2, 127"); a("s_cmp_lg_u32 s76, 0"); a("s_cbranch_scc1 L_end")
        a("s_sub_u32 s77, s100, s99"); a("v_mov_b32 v18, s77")
        a("s_lshr_b32 s76, s2, 7"); a("s_mul_i32 s76, s76, 28"); a("s_add_u32 s76, s76, 8")
        a("s_mov_b64 exec, 1")
        for i in range(7): a(f"buffer_store_dword v{12+i}, v11, s[{SDBG}:{SDBG+3}], s76 offen offset:{4*i}")
        return
    a(f"s_lshl_b32 s{T0}, s2, 5"); a(f"s_add_u32 s{T0}, s{T0}, {WS_ST}")
    a("s_mov_b64 exec, 1")
    a(f"buffer_store_dwordx4 v[12:15], v11, s[{SWS}:{SWS+3}], s{T0} offen")
    a(f"buffer_store_dwordx4 v[16:19], v11, s[{SWS}:{SWS+3}], s{T0} offen offset:16")

HEADER = open("gated_mix__ssm_conv_s5__dense_activation_squared_relu__prompt.s.ref").read().split("; Override launch")[0]

def generate(**kw):
    for k, v in kw.items():
        assert hasattr(C, k), k
        setattr(C, k, v)
    _lbl[0] = 0
    a = Asm()
    kernel_header(a, NAME)
    a("s_cmp_ge_u32 s2, 256"); a("s_cbranch_scc1 L_end")
    a("s_load_dwordx16 s[40:55], s[0:1], 0"); a("s_load_dwordx16 s[56:71], s[0:1], 64"); a("s_load_dwordx4 s[72:75], s[0:1], 128")
    if C.dbgst:
        a("s_memtime s[92:93]"); a("s_memrealtime s[100:101]")
    if C.codepf:
        a("s_getpc_b64 s[4:5]")
        a.label("L_pc")
        a("v_lshlrev_b32 v2, 7, v0")
        a("v_min_u32 v2, L_codeend-L_pc-4, v2")
        a("global_load_dword v250, v2, s[4:5]")
    a("v_lshrrev_b32 v1, 6, v0"); a("v_and_b32 v0, 63, v0"); a(f"v_readfirstlane_b32 s{sWave}, v1")
    a(f"s_and_b32 s{T0}, s2, 7"); a(f"s_lshr_b32 s{T1}, s2, 3")
    a(f"s_lshr_b32 s{sRole}, s{T1}, 4")
    a(f"s_bfe_u32 s{T2}, s{T1}, 0x20002"); a(f"s_and_b32 s{T3}, s{T1}, 3")
    a(f"s_lshr_b32 s{sM}, s{T0}, 2"); a(f"s_lshl_b32 s{sM}, s{sM}, 2"); a(f"s_add_u32 s{sM}, s{sM}, s{T2}")
    a(f"s_and_b32 s{sN}, s{T0}, 3"); a(f"s_lshl_b32 s{sN}, s{sN}, 2"); a(f"s_add_u32 s{sN}, s{sN}, s{T3}")
    mode = C.rot
    if mode is True: mode = 1
    if mode == 1:
        a(f"s_lshl_b32 s{sRot}, s{sRole}, 2"); a(f"s_add_u32 s{sRot}, s{sRot}, s{T3}"); a(f"s_lshl_b32 s{sRot}, s{sRot}, 1")
        a(f"s_lshl_b32 s{T2}, s{T2}, 2"); a(f"s_add_u32 s{sRot}, s{sRot}, s{T2}"); a(f"s_and_b32 s{T0}, s{T0}, 3")
        a(f"s_add_u32 s{sRot}, s{sRot}, s{T0}"); a(f"s_and_b32 s{sRot}, s{sRot}, 15")
    elif mode == 2:
        a(f"s_and_b32 s{sRot}, s{T0}, 3"); a(f"s_lshl_b32 s{sRot}, s{sRot}, 2"); a(f"s_lshr_b32 s{T0}, s{T0}, 2"); a(f"s_lshl_b32 s{T0}, s{T0}, 1")
        a(f"s_add_u32 s{sRot}, s{sRot}, s{T0}"); a(f"s_and_b32 s{sRot}, s{sRot}, 15")
    elif mode == 3:
        a(f"s_and_b32 s{sRot}, s{T0}, 3"); a(f"s_lshl_b32 s{sRot}, s{sRot}, 2"); a(f"s_lshr_b32 s{T0}, s{T0}, 2"); a(f"s_lshl_b32 s{T0}, s{T0}, 3")
        a(f"s_add_u32 s{sRot}, s{sRot}, s{T0}"); a(f"s_xor_b32 s{T2}, s{T2}, s{T3}"); a(f"s_and_b32 s{T2}, s{T2}, 1"); a(f"s_lshl_b32 s{T2}, s{T2}, 3")
        a(f"s_add_u32 s{sRot}, s{sRot}, s{T2}"); a(f"s_and_b32 s{sRot}, s{sRot}, 15")
    elif mode == 4:
        a(f"s_xor_b32 s{T2}, s{T2}, s{T3}"); a(f"s_and_b32 s{T2}, s{T2}, 1"); a(f"s_lshl_b32 s{sRot}, s{T2}, 3")
        a(f"s_and_b32 s{T0}, s{T0}, 3"); a(f"s_lshl_b32 s{T0}, s{T0}, 1"); a(f"s_add_u32 s{sRot}, s{sRot}, s{T0}"); a(f"s_and_b32 s{sRot}, s{sRot}, 15")
    elif mode == 5:
        a(f"s_and_b32 s{sRot}, s{T0}, 3"); a(f"s_lshl_b32 s{sRot}, s{sRot}, 2")
    elif mode == 6:
        a(f"s_lshl_b32 s{sRot}, s{T2}, 2"); a(f"s_and_b32 s{T0}, s{T0}, 3"); a(f"s_add_u32 s{sRot}, s{sRot}, s{T0}"); a(f"s_and_b32 s{sRot}, s{sRot}, 15")
    elif mode == 7:
        a(f"s_lshl_b32 s{sRot}, s{T3}, 2"); a(f"s_and_b32 s{T0}, s{T0}, 3"); a(f"s_add_u32 s{sRot}, s{sRot}, s{T0}"); a(f"s_and_b32 s{sRot}, s{sRot}, 15")
    else:
        a(f"s_mov_b32 s{sRot}, 0")
    if C.dbgst:
        pass
    a(f"s_cmp_eq_u32 s{sRole}, 1"); a("s_cbranch_scc1 L_ssm")
    v1, l1 = phase1_dense(a)
    v2, l2 = phase2(a, 1)
    a("s_branch L_fin")
    a.label("L_ssm")
    v3, l3 = phase1_ssm(a)
    v4, l4 = phase2(a, 0)
    a.label("L_fin")
    if C.dbgst: emit_stamps(a)
    a.label("L_end")
    a("s_endpgm")
    a.label("L_codeend")
    nv = max(v1, v2, v3, v4); lds = max(l1, l2, l3, l4)
    assert nv <= 250
    if C.codepf or C.tlb: nv = 251
    head = HEADER + f"; @launch grid=(256,1,1) block=(512,1,1) lds={lds}\n"
    head += '.amdgcn_target "amdgcn-amd-amdhsa--gfx950"\n.text\n'
    return head + a.text() + '.section .rodata,"a"\n' + kernel_desc(NAME, nv, 102)

if __name__ == "__main__":
    kw = json.loads(sys.argv[2]) if len(sys.argv) > 2 else {}
    open(sys.argv[1], "w").write(generate(**kw))
```

```python
import sys, math, json
from asmlib import *

NAME = "gated_mix__ssm_conv_s5__dense_activation_squared_relu__prompt_kernel"
L, D, P_, F = 2048, 1024, 1024, 3584
KC = 2048 + F
RS_A2 = KC * 2
KA = dict(x=0, lre=8, lim=16, bre=24, bim=32, cre=40, cim=48, ldt=56, dsk=64, bx=72, w1=80, b1=88, w2=96, b2=104, gw=112, out=120, dbg=128, ws=136)
WS_A2 = 0
WS_G = 24 << 20
WS_AGG = WS_G + (1 << 16)
WS_MB = WS_AGG + (1 << 17)
WS_ST = WS_AGG + (1 << 18)
WS_XB = 32 << 20
WS_SIZE = 268435456
LOG2E = 0x3fb8aa3b
INV2PI = 0x3e22f983
PTR = {k: 40 + v // 4 for k, v in KA.items()}
DBG_LB = 0
DBG_CNT = 16
DBG_XF = 32

class Cfg:
    dbgst = False; rot = 4; nodma = False; noread = False; prefetch = True
    nAd = 24
    nBs = 8
    ns = 4
    delta = 2
    wt = " sc1"
    a2ld = " sc1"
    wto = ""
    spin = 300000
    sleep = 2
    early = True
    dearly = True
    fine = True
    dparts = 4
    sparts = 2
    d1p = False
    k2 = 0
    flagit = 3
    dbgout = False
    xbf16 = True
    loop = {}
    inboxit = 18
    initit = 4
    tlb = False
    tlbshift = 21
    codepf = True
    pbar = False
    bulk = False
    pflist = [('w1',0),('x',0),('bre',0),('bim',0),('cre',0),('cim',0),('w2',0)]
    pfit = 13
    span = 1.0
    prio = True
    nbq = 3
    stampset = 'main'
    stwave = 0
C = Cfg()

class Regs:
    def __init__(self, start, limit=256):
        self.n = start; self.limit = limit; self.hi = start
    def get(self, k=1, align=1):
        self.n = (self.n + align - 1) // align * align
        r = self.n; self.n += k
        self.hi = max(self.hi, self.n)
        assert self.n <= self.limit, f"out of registers {self.n} > {self.limit}"
        return r

def srd(a, s, ptr_lo, size):
    if s != ptr_lo:
        a(f"s_mov_b32 s{s}, s{ptr_lo}"); a(f"s_mov_b32 s{s+1}, s{ptr_lo+1}")
    a(f"s_mov_b32 s{s+2}, {size}"); a(f"s_mov_b32 s{s+3}, 0x20000")

_lbl = [0]
def newlabel(p):
    _lbl[0] += 1
    return f"L_{p}{_lbl[0]}"

class OpKC:
    def __init__(self, a, V, T, lds_off, nfr, flags=""):
        self.a, self.T, self.lds_off, self.nfr, self.flags = a, T, lds_off, nfr, flags
        self.n = T // 64
        self.vd = V.get(self.n)
        self.b0 = V.get(); self.c0 = V.get(); self.c1 = V.get()
        self.bytes = T * 128
        self.ldsoffs = [j * 1024 for j in range(self.n)]
    def lane_chunk(self, vdst, t):
        a = self.a
        a(f"v_and_b32 v{vdst}, 7, v0"); a(f"v_lshrrev_b32 v{t}, 4, v0")
        a(f"v_xor_b32 v{vdst}, v{vdst}, v{t}"); a(f"v_lshlrev_b32 v{vdst}, 4, v{vdst}")
    def set_voff(self, j, vlane, sRowBytes, xor64, comp=True):
        a = self.a; d = self.vd + j
        src = vlane
        if xor64 is True:
            a(f"v_xor_b32 v{d}, 64, v{vlane}"); src = d
        elif xor64 is not False:
            a(f"v_xor_b32 v{d}, s{xor64}, v{vlane}"); src = d
        a(f"v_add_u32 v{d}, s{sRowBytes}, v{src}")
    def dma(self, sBuf, sK, stmp, sLds, srds, groups=None):
        g = []
        for grp_i in self.groups:
            for n_, j in enumerate(grp_i):
                grp = []
                if n_ == 0:
                    grp.append(f"s_add_u32 s{stmp}, s{sBuf}, s{sLds}")
                    if self.ldsoffs[j]: grp.append(f"s_add_u32 s{stmp}, s{stmp}, {self.ldsoffs[j]}")
                    grp.append(f"s_mov_b32 m0, s{stmp}")
                    grp.append("s_nop 0")
                off = f" offset:{n_*1024}" if n_ else ""
                s = srds[j]
                grp.append(f"buffer_load_dwordx4 v{self.vd+j}, s[{s}:{s+3}], s{sK} offen{off}{self.flags} lds")
                g.append(grp)
        return g
    def count(self): return (self.n, self.n)
    def setup_read(self, sFrag0, tmp, stmp):
        a = self.a; t0, t1, t2 = tmp, tmp + 1, tmp + 2
        a(f"v_and_b32 v{t0}, 15, v0"); a(f"v_lshrrev_b32 v{t1}, 4, v0"); a(f"v_lshrrev_b32 v{t2}, 1, v{t0}")
        a(f"v_xor_b32 v{t1}, v{t1}, v{t2}"); a(f"v_lshlrev_b32 v{t1}, 4, v{t1}")
        a(f"v_lshl_add_u32 v{t0}, v{t0}, 7, v{t1}")
        a(f"s_lshl_b32 s{stmp}, s{sFrag0}, 11")
        if self.lds_off: a(f"s_add_u32 s{stmp}, s{stmp}, {self.lds_off}")
        a(f"v_add_u32 v{self.b0}, s{stmp}, v{t0}")
    def init_cur(self):
        return [f"v_mov_b32 v{self.c0}, v{self.b0}", f"v_xor_b32 v{self.c1}, 64, v{self.b0}"]
    def frag_off(self, i): return i * 2048
    def reads(self, ks, dst):
        if C.noread: return []
        c = self.c1 if ks else self.c0
        return [[f"ds_read_b128 {vr(dst+4*i,4)}, v{c} offset:{self.frag_off(i)}"] for i in range(self.nfr)]
    def upd_A(self, sBuf): return [f"v_add_u32 v{self.c0}, s{sBuf}, v{self.b0}"]
    def upd_B(self, sBuf): return [f"v_xor_b32 v{self.c1}, 64, v{self.c0}"]

class OpNC:
    def __init__(self, a, V, T, lds_off, nfr, RS, NW=8):
        self.a, self.T, self.lds_off, self.nfr, self.RS = a, T, lds_off, nfr, RS
        self.RP = T * 2; self.CH = self.RP // 16
        self.total = self.CH
        self.n = -(-self.total // NW)
        self.even = (self.total % NW == 0)
        self.nbig = NW if self.even else self.total - (self.n - 1) * NW
        self.vd = V.get(self.n)
        np_ = self.RP // 32
        self.gb = 3 if np_ % 8 == 0 else (2 if np_ % 4 == 0 else 1)
        self.nres = min(1 << self.gb, nfr)
        self.base = V.get(self.nres); self.cur = V.get(self.nres)
        self.bytes = 64 * self.RP
    def g_asm(self, vk, vo, t):
        a = self.a
        if self.gb == 3:
            a(f"v_and_b32 v{vo}, 3, v{vk}"); a(f"v_bfe_u32 v{t}, v{vk}, 3, 1"); a(f"v_lshl_or_b32 v{vo}, v{t}, 2, v{vo}")
        elif self.gb == 2:
            a(f"v_bfe_u32 v{vo}, v{vk}, 1, 1"); a(f"v_bfe_u32 v{t}, v{vk}, 3, 1"); a(f"v_lshl_or_b32 v{vo}, v{t}, 1, v{vo}")
        else:
            a(f"v_bfe_u32 v{vo}, v{vk}, 3, 1")
    def idx0(self, sWave, sOut, stmp):
        a = self.a
        if self.even: a(f"s_mul_i32 s{sOut}, s{sWave}, {self.n}")
        else:
            a(f"s_mul_i32 s{sOut}, s{sWave}, {self.n-1}")
            a(f"s_min_u32 s{stmp}, s{sWave}, {self.nbig}")
            a(f"s_add_u32 s{sOut}, s{sOut}, s{stmp}")
    def setup_dma(self, sWave, tmp, sCol0Bytes, stmp):
        a = self.a; t0, t1, t2, t3 = tmp, tmp + 1, tmp + 2, tmp + 3
        self.idx0(sWave, stmp, stmp + 1)
        magic = (1 << 20) // self.CH + 1
        for L_ in range(self.total * 64 + 64):
            assert (L_ * magic) >> 20 == L_ // self.CH
        for j in range(self.n):
            a(f"s_add_u32 s{stmp+1}, s{stmp}, {j}"); a(f"s_lshl_b32 s{stmp+1}, s{stmp+1}, 6")
            a(f"v_add_u32 v{t0}, s{stmp+1}, v0")
            if self.CH & (self.CH - 1) == 0:
                a(f"v_lshrrev_b32 v{t1}, {int(math.log2(self.CH))}, v{t0}")
                a(f"v_and_b32 v{t0}, {self.CH-1}, v{t0}")
            else:
                a(f"v_mul_u32_u24 v{t1}, {magic}, v{t0}"); a(f"v_lshrrev_b32 v{t1}, 20, v{t1}")
                a(f"v_mul_u32_u24 v{t2}, {self.CH}, v{t1}"); a(f"v_sub_u32 v{t0}, v{t0}, v{t2}")
            self.g_asm(t1, t2, t3)
            a(f"v_lshlrev_b32 v{t2}, 1, v{t2}"); a(f"v_xor_b32 v{t0}, v{t0}, v{t2}")
            a(f"v_mul_u32_u24 v{t1}, {self.RS}, v{t1}")
            a(f"v_lshl_add_u32 v{t0}, v{t0}, 4, v{t1}")
            if j % 4: a(f"s_sub_u32 s{stmp+1}, s{sCol0Bytes}, {(j%4)*1024}"); a(f"v_add_u32 v{self.vd+j}, s{stmp+1}, v{t0}")
            else: a(f"v_add_u32 v{self.vd+j}, s{sCol0Bytes}, v{t0}")
    def setup_lds(self, sWave, sLds, stmp):
        self.idx0(sWave, sLds, stmp)
        self.a(f"s_lshl_b32 s{sLds}, s{sLds}, 10")
        if self.lds_off: self.a(f"s_add_u32 s{sLds}, s{sLds}, {self.lds_off}")
    def dma(self, sBuf, sK, stmp, sLds, srds, sWave=None):
        g = []
        s = srds
        for j in range(self.n):
            grp = []
            guard = (not self.even) and j == self.n - 1
            if guard:
                lbl = newlabel("ncs")
                grp += [f"s_cmp_lt_u32 s{sWave}, {self.nbig}", f"s_cbranch_scc0 {lbl}"]
            if j % 4 == 0:
                grp.append(f"s_add_u32 s{stmp}, s{sBuf}, s{sLds}")
                if j: grp.append(f"s_add_u32 s{stmp}, s{stmp}, {j*1024}")
                grp += [f"s_mov_b32 m0, s{stmp}", "s_nop 0"]
            off = f" offset:{(j%4)*1024}" if j % 4 else ""
            grp.append(f"buffer_load_dwordx4 v{self.vd+j}, s[{s}:{s+3}], s{sK} offen{off} lds")
            if guard: grp.append(f"{lbl}:")
            g.append(grp)
        return g
    def count(self): return (self.n if self.even else self.n - 1, self.n)
    def setup_read(self, sFrag0, tmp, stmp):
        a = self.a; t0, t1, t2 = tmp, tmp + 1, tmp + 2
        a(f"v_lshrrev_b32 v{t0}, 4, v0"); a(f"v_lshlrev_b32 v{t0}, 3, v{t0}")
        a(f"v_bfe_u32 v{t1}, v0, 2, 2"); a(f"v_add_u32 v{t0}, v{t0}, v{t1}")
        self.g_asm(t0, t1, t2)
        a(f"v_mul_u32_u24 v{t0}, {self.RP}, v{t0}")
        a(f"v_and_b32 v{t2}, 3, v0"); a(f"v_lshl_add_u32 v{t0}, v{t2}, 3, v{t0}")
        if self.lds_off: a(f"v_add_u32 v{t0}, {self.lds_off}, v{t0}")
        for r in range(self.nres):
            a(f"s_add_u32 s{stmp}, s{sFrag0}, {r}")
            a(f"v_xor_b32 v{t2}, s{stmp}, v{t1}")
            if r: a(f"v_subrev_u32 v{t2}, {r}, v{t2}")
            a(f"v_lshl_add_u32 v{self.base+r}, v{t2}, 5, v{t0}")
    def init_cur(self):
        return [f"v_mov_b32 v{self.cur+r}, v{self.base+r}" for r in range(self.nres)]
    def reads(self, ks, dst):
        if C.noread: return []
        g = []
        for i in range(self.nfr):
            r = i % (1 << self.gb)
            for h in range(2):
                off = 32 * i + (4 * h + 32 * ks) * self.RP
                g.append([f"ds_read_b64_tr_b16 {vr(dst+4*i+2*h,2)}, v{self.cur+r} offset:{off}"])
        return g
    def upd_A(self, sBuf): return [f"v_add_u32 v{self.cur+r}, s{sBuf}, v{self.base+r}" for r in range(self.nres)]
    def upd_B(self, sBuf): return []

class Seg:
    def __init__(self, P, Q, acc, Pdma, Qdma, kadvP, kadvQ, name):
        self.P, self.Q, self.acc, self.Pdma, self.Qdma, self.kadvP, self.kadvQ, self.name = P, Q, acc, Pdma, Qdma, kadvP, kadvQ, name
        self.xdma = []

class Gemm:
    def __init__(self, a, V, NBP, NBQ, SP, SQ, mp, mq, regs, joint, early=None, name="x"):
        self.a, self.NBP, self.NBQ, self.SP, self.SQ, self.mp, self.mq, self.joint = a, NBP, NBQ, SP, SQ, mp, mq, joint
        o = dict(span=C.span, prio=C.prio, dmapos="merge", order="i")
        o.update(C.loop.get(name, {}))
        self.opt = o
        self.sDP, self.sRP, self.sDQ, self.sRQ, self.sCnt, self.sE = regs
        if joint: self.sDQ, self.sRQ = self.sDP, self.sRP
        self.early = early if C.early else None
        self.leadP = NBP - (1 if self.early == 'P' else 0)
        self.leadQ = NBQ - (1 if self.early == 'Q' else 0)
        self.F = []
        for s in range(2):
            p = V.get(4 * mp, 2); q = V.get(4 * mq, 2)
            self.F.append((p, q))
        self.vmq = []
        self.zero_first = False
    def emit(self, lines):
        for x in lines:
            if x.endswith(":"): self.a.label(x[:-1])
            else: self.a(x)
    def note(self, tag, n): self.vmq.append((tag, n))
    def vm_allow(self, need):
        last = -1
        for i, (t, n) in enumerate(self.vmq):
            if t in need: last = i
        return min(63, sum(n for t, n in self.vmq[last + 1:]))
    def reads(self, seg, ks, fs):
        p, q = self.F[fs]
        return merge(seg.P.reads(ks, p), seg.Q.reads(ks, q))
    def mfmas(self, seg, fs, zero=False):
        p, q = self.F[fs]
        ij = [(i, j) for i in range(self.mp) for j in range(self.mq)]
        if self.opt["order"] == "j": ij = [(i, j) for j in range(self.mq) for i in range(self.mp)]
        st = getattr(self, "acc_stride", 4 * self.mq)
        return [f"v_mfma_f32_16x16x32_bf16 {vr(c,4)}, {vr(p+4*i,4)}, {vr(q+4*j,4)}, {'0' if zero else vr(c,4)}"
                for (i, j) in ij for c in [seg.acc + st * i + 4 * j]]
    def spread(self, main, fill):
        n = len(main); k = len(fill)
        if k == 0: return list(main)
        span = max(1, min(n, int(n * self.opt['span'])))
        out = []; fi = 0
        for i, m in enumerate(main):
            out.append(m)
            while fi < k and (fi * span) // k <= i:
                out.extend(fill[fi]); fi += 1
        while fi < k: out.extend(fill[fi]); fi += 1
        return out
    def mix(self, reads, dma):
        m = self.opt["dmapos"]
        if m == "first": return dma + reads
        if m == "last": return reads + dma
        return merge(reads, dma)
    def ring_adv(self, sD, sR, stride, nb):
        return [f"s_mov_b32 s{sD}, s{sR}", f"s_add_u32 s{sR}, s{sR}, {stride}", f"s_cmp_eq_u32 s{sR}, {stride*nb}", f"s_cselect_b32 s{sR}, 0, s{sR}"]
    def advance(self):
        out = []
        if self.early: out.append(f"s_mov_b32 s{self.sE}, s{self.sDP if (self.joint or self.early == 'P') else self.sDQ}")
        if self.joint: return out + self.ring_adv(self.sDP, self.sRP, self.SP + self.SQ, self.NBP)
        return out + self.ring_adv(self.sDP, self.sRP, self.SP, self.NBP) + self.ring_adv(self.sDQ, self.sRQ, self.SQ, self.NBQ)
    def dma_list(self, which, seg, sBuf):
        if seg is None or C.nodma: return []
        if which == 'P': return seg.Pdma(sBuf) + [list(seg.kadvP)]
        return seg.Qdma(sBuf) + [list(seg.kadvQ)] + seg.xdma
    def body(self, cur, nxt, dP, dQ, vmw, pre_barrier=None, extra=None, zero=False):
        a = self.a
        self.emit(self.advance())
        a("s_waitcnt lgkmcnt(0)")
        fill = self.reads(cur, 1, 1)
        if nxt is not None: fill.append(nxt.P.upd_A(self.sRP) + nxt.Q.upd_A(self.sRQ))
        if self.early == 'P': fill = self.mix(fill, self.dma_list('P', dP, self.sE))
        if self.early == 'Q': fill = self.mix(fill, self.dma_list('Q', dQ, self.sE))
        if nxt is None and extra: fill = fill + extra
        self.emit(self.spread(self.mfmas(cur, 0, zero), fill))
        if nxt is None:
            a("s_waitcnt lgkmcnt(0)")
            self.emit(self.mfmas(cur, 1))
            return
        if pre_barrier: pre_barrier()
        a(f"s_waitcnt vmcnt({vmw}) lgkmcnt(0)")
        a("s_barrier")
        if self.opt["prio"]: a("s_setprio 1")
        fill = self.reads(nxt, 0, 0)
        d = []
        if self.early != 'P': d += self.dma_list('P', dP, self.sDP)
        if self.early != 'Q': d += self.dma_list('Q', dQ, self.sDQ)
        fill = self.mix(fill, d)
        u = nxt.P.upd_B(self.sRP) + nxt.Q.upd_B(self.sRQ)
        if u: fill.append(u)
        if extra: fill = fill + extra
        self.emit(self.spread(self.mfmas(cur, 1), fill))
        if self.opt["prio"]: a("s_setprio 0")
    def prologue(self, stages, which="PQ", first=0, last=None):
        a = self.a
        stride = self.SP + self.SQ if self.joint else None
        if first == 0:
            a(f"s_mov_b32 s{self.sDP}, 0")
            if not self.joint: a(f"s_mov_b32 s{self.sDQ}, 0")
        for s in range(first, max(self.leadP, self.leadQ) if last is None else last):
            if "P" in which and s < self.leadP:
                for g in stages[s].Pdma(self.sDP): self.emit(g)
                self.emit(stages[s].kadvP); self.note(('P', s), stages[s].P.count()[0])
                if not self.joint: a(f"s_add_u32 s{self.sDP}, s{self.sDP}, {self.SP}")
            if "Q" in which and s < self.leadQ:
                for g in stages[s].Qdma(self.sDQ): self.emit(g)
                self.emit(stages[s].kadvQ); self.note(('Q', s), stages[s].Q.count()[0])
                if not self.joint: a(f"s_add_u32 s{self.sDQ}, s{self.sDQ}, {self.SQ}")
            if self.joint: a(f"s_add_u32 s{self.sDP}, s{self.sDP}, {stride}")
    def run(self, stages, hooks=None, extras=None, post_first=None):
        a = self.a; N = len(stages)
        hooks = hooks or {}; extras = extras or {}
        a(f"s_waitcnt vmcnt({self.vm_allow({('P',0),('Q',0)})})")
        if getattr(self, "pre_first", None): self.pre_first()
        a("s_barrier")
        if post_first: post_first()
        seen = []
        for sg in stages:
            for op in (sg.P, sg.Q):
                if op not in seen: seen.append(op); self.emit(op.init_cur())
        if self.joint:
            a(f"s_mov_b32 s{self.sRP}, 0"); a(f"s_mov_b32 s{self.sDP}, {(self.SP+self.SQ)*(self.NBP-1)}")
        else:
            a(f"s_mov_b32 s{self.sRP}, 0"); a(f"s_mov_b32 s{self.sDP}, {self.SP*(self.NBP-1)}")
            a(f"s_mov_b32 s{self.sRQ}, 0"); a(f"s_mov_b32 s{self.sDQ}, {self.SQ*(self.NBQ-1)}")
        for g in self.reads(stages[0], 0, 0): self.emit(g)
        sigs = []; seen_acc = set()
        for i in range(N):
            nxt = stages[i + 1] if i + 1 < N else None
            dP = stages[i + self.leadP] if i + self.leadP < N else None
            dQ = stages[i + self.leadQ] if i + self.leadQ < N else None
            def noteP():
                if dP is not None: self.note(('P', i + self.leadP), dP.P.count()[0])
            def noteQ():
                if dQ is not None:
                    self.note(('Q', i + self.leadQ), dQ.Q.count()[0])
                    if dQ.xdma: self.note(('PF', i), len(dQ.xdma))
            if self.early == 'P': noteP()
            if self.early == 'Q': noteQ()
            vmw = self.vm_allow({('P', i + 1), ('Q', i + 1)}) if nxt is not None else 0
            if i in getattr(self, "want_allow", {}):
                if not hasattr(self, "allow_at"): self.allow_at = {}
                self.allow_at[i] = self.vm_allow({self.want_allow[i]})
            if self.early != 'P': noteP()
            if self.early != 'Q': noteQ()
            if i in extras: self.note(('X', i), extras[i][1])
            zero = self.zero_first and stages[i].acc not in seen_acc
            seen_acc.add(stages[i].acc)
            sigs.append((stages[i], nxt, dP, dQ, vmw, i if (i in hooks or i in extras or zero) else -1, zero))
        i = 0
        while i < N:
            j = i
            while j < N and sigs[j] == sigs[i]: j += 1
            cnt = j - i
            cur, nxt, dP, dQ, vmw, sp, zero = sigs[i]
            hk = hooks.get(sp); ex = extras[sp][0] if sp in extras else None
            if cnt >= 2:
                lbl = newlabel("gl")
                a(f"s_mov_b32 s{self.sCnt}, {cnt}")
                a.label(lbl)
                self.body(cur, nxt, dP, dQ, vmw)
                a(f"s_sub_u32 s{self.sCnt}, s{self.sCnt}, 1"); a(f"s_cmp_lg_u32 s{self.sCnt}, 0"); a(f"s_cbranch_scc1 {lbl}")
            else:
                self.body(cur, nxt, dP, dQ, vmw, hk, ex, zero)
            i = j

def merge(x, y):
    out = []; i = j = 0
    while i < len(x) or j < len(y):
        if j >= len(y) or (i < len(x) and i * len(y) <= j * len(x)): out.append(x[i]); i += 1
        else: out.append(y[j]); j += 1
    return out

def bf16_round(a, vdst, vsrc):
    a(f"v_cvt_pk_bf16_f32 v{vdst}, v{vsrc}, v{vsrc}"); a(f"v_lshlrev_b32 v{vdst}, 16, v{vdst}")

def stamp(a, idx, real=False, st="main"):
    if C.dbgst and st == C.stampset:
        a("s_memrealtime s[88:89]" if real else "s_memtime s[88:89]")
        a("s_waitcnt lgkmcnt(0)")
        a(f"s_mov_b32 s{92+idx}, s88")

sWave, sM, sN, sRole = 28, 29, 30, 31
sBufD, sBufR, sCnt, sTmp, sKP, sKQ, sLdsP, sLdsQ = 32, 33, 34, 35, 36, 37, 38, 39
sWp, sWq, sRot, sLdsP2, sKP2, sTile, sTt, sDt = 80, 81, 82, 83, 84, 85, 86, 87
SX, SA, SB_, SWS, SDBG, SS = 4, 8, 12, 16, 20, 24
T0, T1, T2, T3 = 76, 77, 78, 79
U0, U1, U2, U3 = 88, 89, 90, 91
VT = 2

def ssm_param_loads(a, vch, t):
    a(f"v_lshlrev_b32 v{t}, 1, v{vch}")
    for k, name in enumerate(("lre", "lim", "ldt")):
        srd(a, SS, PTR[name], 2048)
        a(f"buffer_load_ushort v{t+1+k}, v{t}, s[{SS}:{SS+3}], 0 offen")

def ssm_params_compute(a, out, t, want_kappa=True):
    lre, lim, ldt = t + 1, t + 2, t + 3
    x0, x1, x2, x3 = t + 4, t + 5, t + 6, t + 7
    lr, li, kr, ki = out, out + 1, out + 2, out + 3
    for r in (lre, lim, ldt): a(f"v_lshlrev_b32 v{r}, 16, v{r}")
    a(f"v_mul_f32 v{x0}, {LOG2E:#x}, v{ldt}"); a(f"v_exp_f32 v{x0}, v{x0}"); a("s_nop 0")
    bf16_round(a, x0, x0)
    a(f"v_mul_f32 v{x1}, v{x0}, v{lre}"); a(f"v_mul_f32 v{x2}, v{x0}, v{lim}")
    a(f"v_mul_f32 v{x1}, {LOG2E:#x}, v{x1}"); a(f"v_exp_f32 v{x1}, v{x1}")
    a(f"v_mul_f32 v{x2}, {INV2PI:#x}, v{x2}"); a(f"v_rndne_f32 v{x3}, v{x2}"); a(f"v_sub_f32 v{x2}, v{x2}, v{x3}")
    a(f"v_cos_f32 v{x3}, v{x2}"); a(f"v_sin_f32 v{x2}, v{x2}"); a("s_nop 0")
    a(f"v_mul_f32 v{lr}, v{x1}, v{x3}"); a(f"v_mul_f32 v{li}, v{x1}, v{x2}")
    if want_kappa:
        a(f"v_subrev_f32 v{x0}, 1.0, v{lr}")
        a(f"v_mul_f32 v{x1}, v{x0}, v{lre}"); a(f"v_fmac_f32 v{x1}, v{li}, v{lim}")
        a(f"v_mul_f32 v{x2}, v{li}, v{lre}"); a(f"v_fma_f32 v{x2}, -v{x0}, v{lim}, v{x2}")
        a(f"v_mul_f32 v{x3}, v{lre}, v{lre}"); a(f"v_fmac_f32 v{x3}, v{lim}, v{lim}")
        a(f"v_rcp_f32 v{x3}, v{x3}"); a("s_nop 0")
        a(f"v_add_f32 v{x3}, v{x3}, v{x3}")
        a(f"v_mul_f32 v{kr}, v{x1}, v{x3}"); a(f"v_mul_f32 v{ki}, v{x2}, v{x3}")

def csq(a, dr, di, sr_, si, t):
    a(f"v_mul_f32 v{t}, v{sr_}, v{si}"); a(f"v_mul_f32 v{dr}, v{sr_}, v{sr_}")
    a(f"v_fma_f32 v{dr}, -v{si}, v{si}, v{dr}"); a(f"v_add_f32 v{di}, v{t}, v{t}")

def gate_row_loads(a, sRow, vx, t):
    a(f"s_lshl_b32 s{U1}, s{sRow}, 11")
    a(f"buffer_load_dwordx4 {vr(vx,4)}, v{t}, s[{SX}:{SX+3}], s{U1} offen")
    a(f"buffer_load_dwordx4 {vr(vx+4,4)}, v{t}, s[{SX}:{SX+3}], s{U1} offen offset:16")

def gate_compute(a, sRow, vx, vw, t):
    acc = t; p0, p1, q0, q1 = t + 1, t + 2, t + 3, t + 4
    a(f"v_mov_b32 v{acc}, 0")
    for d in range(8):
        a(f"v_lshlrev_b32 v{p0}, 16, v{vx+d}"); a(f"v_and_b32 v{p1}, 0xffff0000, v{vx+d}")
        a(f"v_lshlrev_b32 v{q0}, 16, v{vw+d}"); a(f"v_and_b32 v{q1}, 0xffff0000, v{vw+d}")
        a(f"v_mul_f32 v{p0}, v{p0}, v{q0}"); a(f"v_mul_f32 v{p1}, v{p1}, v{q1}")
        a(f"v_cvt_pk_bf16_f32 v{p0}, v{p0}, v{p1}")
        a(f"v_and_b32 v{p1}, 0xffff0000, v{p0}"); a(f"v_lshlrev_b32 v{p0}, 16, v{p0}")
        a(f"v_add_f32 v{acc}, v{acc}, v{p0}"); a(f"v_add_f32 v{acc}, v{acc}, v{p1}")
    for sh in (1, 2, 4, 8):
        a("s_nop 1")
        a(f"v_add_f32_dpp v{acc}, v{acc}, v{acc} row_shr:{sh} row_mask:0xf bank_mask:0xf bound_ctrl:0")
    a("s_nop 1")
    a(f"v_add_f32_dpp v{acc}, v{acc}, v{acc} row_bcast:15 row_mask:0xa bank_mask:0xf")
    a("s_nop 1")
    a(f"v_add_f32_dpp v{acc}, v{acc}, v{acc} row_bcast:31 row_mask:0xc bank_mask:0xf")
    a("s_nop 1")
    a(f"v_readlane_b32 s{U0}, v{acc}, 63")
    a("s_nop 1")
    a(f"v_mov_b32 v{acc}, s{U0}")
    bf16_round(a, acc, acc)
    a(f"v_mul_f32 v{p0}, {LOG2E ^ 0x80000000:#x}, v{acc}"); a(f"v_exp_f32 v{p0}, v{p0}"); a("s_nop 0")
    a(f"v_add_f32 v{p0}, 1.0, v{p0}"); a(f"v_rcp_f32 v{p0}, v{p0}"); a("s_nop 0")
    bf16_round(a, p0, p0)
    a(f"v_sub_f32 v{p1}, 1.0, v{p0}")
    bf16_round(a, p1, p1)
    a(f"s_lshl_b32 s{U0}, s{sRow}, 3"); a(f"s_add_u32 s{U0}, s{U0}, {WS_G}")
    a(f"v_cmp_eq_u32 vcc, 0, v0"); a("s_nop 1")
    a(f"v_cndmask_b32 v{p0}, v{p1}, v{p0}, vcc")
    a(f"v_lshlrev_b32 v{q0}, 2, v0")
    a("s_mov_b64 exec, 3")
    a(f"buffer_store_dword v{p0}, v{q0}, s[{SWS}:{SWS+3}], s{U0} offen sc1")
    a("s_mov_b64 exec, -1")

SENT = 0xffffffff
def inbox_offset(a, sdst):
    a(f"s_lshl_b32 s{sdst}, s2, 3"); a(f"s_add_u32 s{sdst}, s{sdst}, s{sWave}"); a(f"s_mul_i32 s{sdst}, s{sdst}, {4096*(C.ns-1)}")
    a(f"s_add_u32 s{sdst}, s{sdst}, {WS_XB}")

def mb_zero_groups(vt, ssm=False):
    c = []
    q = (vt + 1) // 2 * 2
    sk = newlabel("mz")
    c += [f"s_cmp_lg_u32 s{sWave}, 0", f"s_cbranch_scc1 {sk}"]
    if ssm:
        c += [f"v_mov_b32 v{q}, -1", f"v_mov_b32 v{q+1}, -1",
              f"s_lshl_b32 s{U0}, s{sN}, 6", f"v_add_u32 v{q+4}, s{U0}, v0", f"v_lshlrev_b32 v{q+4}, 3, v{q+4}",
              f"s_lshl_b32 s{U0}, s{sM}, 13", f"s_add_u32 s{U0}, s{U0}, {WS_AGG}",
              f"buffer_store_dwordx2 {vr(q,2)}, v{q+4}, s[{SWS}:{SWS+3}], s{U0} offen sc1"]
    c += [f"v_mov_b32 v{q+2}, 0", f"v_lshlrev_b32 v{q+4}, 2, v0", f"s_lshl_b32 s{U0}, s2, 8", f"s_add_u32 s{U0}, s{U0}, {WS_MB}",
          f"buffer_store_dword v{q+2}, v{q+4}, s[{SWS}:{SWS+3}], s{U0} offen sc1", f"{sk}:"]
    return [c], 0

def inbox_init(a, vt):
    for r in range(4): a(f"v_mov_b32 v{vt+r}, -1")
    a(f"v_lshlrev_b32 v{vt+4}, 4, v0")
    inbox_offset(a, U0)
    for i in range(4 * (C.ns - 1)):
        a(f"buffer_store_dwordx4 {vr(vt,4)}, v{vt+4}, s[{SWS}:{SWS+3}], s{U0} offen offset:{(i%4)*1024} sc1")
        if i % 4 == 3: a(f"s_add_u32 s{U0}, s{U0}, 4096")

def init_signal(a, vt, idx=0, guard=True):
    sk = newlabel("mi")
    if guard: a(f"s_cmp_lg_u32 s{sWave}, 0"); a(f"s_cbranch_scc1 {sk}")
    a(f"v_mov_b32 v{vt}, 1"); a(f"v_mov_b32 v{vt+1}, {4*idx}")
    a("s_mov_b64 exec, 1")
    a(f"buffer_atomic_add v{vt}, v{vt+1}, s[{SDBG}:{SDBG+3}], 0 offen sc1")
    a("s_mov_b64 exec, -1")
    a.label(sk)

def poll(a, srd_, sByteOff, check, vt, wide=1, sleep=None):
    lp, ok = newlabel("poll"), newlabel("pok")
    a(f"v_mov_b32 v{vt+4}, s{sByteOff}")
    a(f"s_mov_b32 s{U2}, {C.spin}")
    a.label(lp)
    a(f"s_sub_u32 s{U2}, s{U2}, 1"); a(f"s_cmp_eq_u32 s{U2}, 0"); a(f"s_cbranch_scc1 {ok}")
    op = {1: "dword", 2: "dwordx2", 4: "dwordx4"}[wide]
    a(f"buffer_load_{op} {vr(vt,wide)}, v{vt+4}, s[{srd_}:{srd_+3}], 0 offen sc1")
    a("s_waitcnt vmcnt(0)")
    a(f"v_readfirstlane_b32 s{U0}, v{vt}")
    if wide >= 2: a(f"v_readfirstlane_b32 s{U1}, v{vt+1}")
    if wide >= 4: a(f"v_readfirstlane_b32 s{U3}, v{vt+2}")
    a("s_nop 3")
    check(ok)
    a(f"s_sleep {C.sleep if sleep is None else sleep}")
    a(f"s_branch {lp}")
    a.label(ok)

VINIT = 1
def init_load(a, idx=0):
    sk = newlabel("il")
    a(f"s_cmp_lg_u32 s{sWave}, 0"); a(f"s_cbranch_scc1 {sk}")
    a(f"v_mov_b32 v{VINIT}, {4*idx}")
    a(f"buffer_load_dword v{VINIT}, v{VINIT}, s[{SDBG}:{SDBG+3}], 0 offen sc1")
    a.label(sk)

def init_check(a, vt, idx=0):
    ok = newlabel("ic")
    a(f"v_readfirstlane_b32 s{U0}, v{VINIT}"); a("s_nop 3")
    a(f"s_cmp_ge_u32 s{U0}, 256"); a(f"s_cbranch_scc1 {ok}")
    a(f"s_mov_b32 s{T3}, {4*idx}")
    def chk(o): a(f"s_cmp_ge_u32 s{U0}, 256"); a(f"s_cbranch_scc1 {o}")
    poll(a, SDBG, T3, chk, vt, sleep=32)
    a.label(ok)

def poll_own(a, check, vt):
    a(f"s_lshl_b32 s{T3}, s2, 8"); a(f"s_add_u32 s{T3}, s{T3}, {WS_MB}")
    poll(a, SWS, T3, check, vt, wide=4)

def signal_cnt(a, dword, vt):
    NS = C.ns; XS = 8 // NS
    l, t1, t2 = vt, vt + 1, vt + 2
    t3 = vt + 3
    if NS == 2:
        a(f"v_bfe_u32 v{t1}, v0, 3, 1"); a(f"s_lshl_b32 s{T0}, s{sM}, 1"); a(f"v_add_u32 v{t1}, s{T0}, v{t1}")
        a(f"v_bfe_u32 v{t3}, v0, 4, 1")
    else:
        a(f"v_mov_b32 v{t1}, s{sM}")
        a(f"v_bfe_u32 v{t3}, v0, 3, 2")
    a(f"v_lshrrev_b32 v{t2}, 2, v{t1}"); a(f"v_mad_u32_u24 v{t2}, v{t3}, {XS}, v{t2}")
    a(f"v_and_b32 v{t1}, 3, v{t1}"); a(f"v_lshlrev_b32 v{t1}, 2, v{t1}")
    a(f"v_and_b32 v{l}, 3, v0"); a(f"v_or_b32 v{t1}, v{t1}, v{l}")
    a(f"v_bfe_u32 v{l}, v0, 2, 1"); a(f"v_and_b32 v{t3}, 1, v{t3}"); a(f"v_xor_b32 v{l}, v{l}, v{t3}"); a(f"v_xor_b32 v{l}, 1, v{l}")
    a(f"v_lshl_or_b32 v{t1}, v{l}, 4, v{t1}")
    a(f"v_lshl_or_b32 v{t1}, v{t1}, 3, v{t2}")
    a(f"v_lshlrev_b32 v{t1}, 8, v{t1}")
    if dword == "S" and C.fine and NS == 4:
        a(f"s_and_b32 s{T0}, s{sN}, 7"); a(f"s_lshl_b32 s{T0}, 1, s{T0}"); a(f"v_mov_b32 v{l}, s{T0}")
    else:
        a(f"v_mov_b32 v{l}, 1")
    if dword == "S":
        a(f"s_lshr_b32 s{T0}, s{sN}, 3"); a(f"s_lshl_b32 s{T0}, s{T0}, 2"); a(f"s_add_u32 s{T0}, s{T0}, {WS_MB}")
    else:
        a(f"s_mov_b32 s{T0}, {WS_MB + 4*dword}")
    a("s_mov_b32 exec_hi, 0")
    a(f"buffer_atomic_add v{l}, v{t1}, s[{SWS}:{SWS+3}], s{T0} offen sc1")
    a("s_mov_b64 exec, -1")

def bulk_prefetch(a, G, vdummy, vaddr):
    a(f"v_lshlrev_b32 v{vaddr}, 4, v0")
    n = 0
    for name, size in C.pflist:
        size = {"x": L*D*2, "w1": D*F*2, "bre": P_*D*2, "bim": P_*D*2, "cre": D*P_*2, "cim": D*P_*2, "w2": F*D*2}[name]
        share = size // 256; pw = share // 8
        a(f"s_mul_i32 s{U0}, s2, {share}"); a(f"s_mul_i32 s{U1}, s{sWave}, {pw}"); a(f"s_add_u32 s{U0}, s{U0}, s{U1}")
        a(f"s_mov_b32 s{SS}, s{PTR[name]}"); a(f"s_mov_b32 s{SS+1}, s{PTR[name]+1}")
        a(f"s_add_u32 s{SS+2}, s{U0}, {pw}"); a(f"s_mov_b32 s{SS+3}, 0x20000")
        for i in range(-(-pw // 1024)):
            a(f"buffer_load_dwordx4 {vr(vdummy,4)}, v{vaddr}, s[{SS}:{SS+3}], s{U0} offen offset:{i*1024}")
            n += 1
    G.note('pf', n)

def tlb_warm(a, vdummy, vaddr, names, tsrd):
    sizes = {"w2": F*D*2, "cre": D*P_*2, "cim": D*P_*2, "out": L*D*4, "lre": 2048, "lim": 2048, "ldt": 2048, "dsk": 2048, "b2": 2048, "gw": 2048}
    a(f"v_lshlrev_b32 v{vaddr}, {C.tlbshift}, v0")
    end = newlabel("tw")
    for w in range(8):
        nx = newlabel("tw")
        a(f"s_cmp_lg_u32 s{sWave}, {w}"); a(f"s_cbranch_scc1 {nx}")
        for name in names[w::8]:
            if name == "ws":
                a("s_mov_b32 exec_lo, 0x00ffffff"); a("s_mov_b32 exec_hi, 0")
                a(f"buffer_load_dword v{vdummy}, v{vaddr}, s[{SWS}:{SWS+3}], 0 offen")
                a("s_mov_b64 exec, -1")
            elif name == "dbg":
                a(f"buffer_load_dword v{vdummy}, v{vaddr}, s[{SDBG}:{SDBG+3}], 0 offen")
            else:
                a(f"s_mov_b32 s{tsrd}, s{PTR[name]}"); a(f"s_mov_b32 s{tsrd+1}, s{PTR[name]+1}"); a(f"s_mov_b32 s{tsrd+2}, {sizes[name]}"); a(f"s_mov_b32 s{tsrd+3}, 0x20000")
                a(f"buffer_load_dword v{vdummy}, v{vaddr}, s[{tsrd}:{tsrd+3}], 0 offen")
        a(f"s_branch {end}")
        a.label(nx)
    a.label(end)

def phase1_dense(a):
    V = Regs(10)
    TP, TQ = 224, 256
    mp, mq = 7, 4
    Pop = OpNC(a, V, TP, 0, mp, F * 2)
    NBP, NBQ = (3, 2) if C.d1p else (2, 3)
    Qop = OpKC(a, V, TQ, NBP * Pop.bytes, mq); Qop.groups = [[0, 1, 2, 3]]
    G = Gemm(a, V, NBP, NBQ, Pop.bytes, Qop.bytes, mp, mq, (sBufD, sBufR, sTile, sTt, sCnt, sRole), False, 'P' if C.d1p else 'Q', 'd1')
    LDS1 = NBP * Pop.bytes + NBQ * Qop.bytes
    acc = V.get(4 * mp * mq, 2)
    vb = V.get(2 * mp, 2); vdum = V.get(4, 2)
    a(f"s_lshr_b32 s{sWp}, s{sWave}, 2"); a(f"s_and_b32 s{sWq}, s{sWave}, 3")
    a(f"s_mul_i32 s{T0}, s{sN}, {TP*2}")
    Pop.setup_dma(sWave, VT, T0, U0)
    Qop.lane_chunk(VT, VT + 1)
    a(f"v_lshrrev_b32 v{VT+1}, 3, v0"); a(f"v_lshl_add_u32 v{VT}, v{VT+1}, 11, v{VT}")
    for j in range(4):
        a(f"s_lshl_b32 s{T0}, s{sM}, 8"); a(f"s_lshl_b32 s{T1}, s{sWave}, 5"); a(f"s_add_u32 s{T0}, s{T0}, s{T1}")
        a(f"s_add_u32 s{T0}, s{T0}, {8*j}"); a(f"s_lshl_b32 s{T0}, s{T0}, 11"); a(f"s_sub_u32 s{T0}, s{T0}, {j*1024}")
        Qop.set_voff(j, VT, T0, bool(j & 1))
    Pop.setup_lds(sWave, sLdsP, U0)
    a(f"s_lshl_b32 s{sLdsQ}, s{sWave}, 12"); a(f"s_add_u32 s{sLdsQ}, s{sLdsQ}, {Qop.lds_off}")
    a(f"s_mul_i32 s{sKP}, s{sRot}, {64*F*2}"); a(f"s_lshl_b32 s{sKQ}, s{sRot}, 7")
    a("s_waitcnt lgkmcnt(0)")
    stamp(a, 1, st="pro")
    srd(a, SX, PTR["x"], L * D * 2); srd(a, SWS, PTR["ws"], WS_SIZE); srd(a, SDBG, PTR["dbg"], 256)
    srd(a, SA, PTR["w1"], D * F * 2)
    kadvP = [f"s_add_u32 s{sKP}, s{sKP}, {64*F*2}", f"s_cmp_eq_u32 s{sKP}, {D*F*2}", f"s_cselect_b32 s{sKP}, 0, s{sKP}"]
    kadvQ = [f"s_add_u32 s{sKQ}, s{sKQ}, 128", f"s_and_b32 s{sKQ}, s{sKQ}, 2047"]
    seg = Seg(Pop, Qop, acc, lambda b: Pop.dma(b, sKP, sTmp, sLdsP, SA, sWave), lambda b: Qop.dma(b, sKQ, sTmp, sLdsQ, [SX] * 4), kadvP, kadvQ, "d1")
    stages = [seg] * 16
    G.prologue(stages, "PQ", 0, 1)
    if C.pbar: a("s_barrier")
    if C.tlb: tlb_warm(a, 250, VT + 5, ["ws", "w2", "cre", "cim", "out", "dbg", "dsk", "b2"], SS); G.note('tlb', 1)
    stamp(a, 2, st="pro")
    a(f"s_mul_i32 s{T2}, s{sN}, {TP}"); a(f"s_mul_i32 s{T3}, s{sWp}, {mp*16}"); a(f"s_add_u32 s{T2}, s{T2}, s{T3}")
    a(f"s_lshl_b32 s{T3}, s{T2}, 1")
    a(f"v_lshrrev_b32 v{VT+2}, 4, v0"); a(f"v_lshlrev_b32 v{VT+2}, 3, v{VT+2}")
    srd(a, SS, PTR["b1"], F * 2)
    for i in range(mp):
        a(f"buffer_load_dwordx2 {vr(vb+2*i,2)}, v{VT+2}, s[{SS}:{SS+3}], s{T3} offen offset:{32*i}")
    G.note('misc', mp)
    a(f"s_mul_i32 s{T0}, s{sWp}, {mp}"); Pop.setup_read(T0, VT, U0)
    a(f"s_mul_i32 s{T0}, s{sWq}, {mq}"); Qop.setup_read(T0, VT, U0)
    stamp(a, 3, st="pro")
    G.prologue(stages, "PQ", 1)
    stamp(a, 4, st="pro")
    a(f"s_waitcnt vmcnt({G.vm_allow({'misc'})})")
    for i in range(mp):
        c = acc + 4 * (i * mq)
        a(f"v_lshlrev_b32 v{c}, 16, v{vb+2*i}"); a(f"v_and_b32 v{c+1}, 0xffff0000, v{vb+2*i}")
        a(f"v_lshlrev_b32 v{c+2}, 16, v{vb+2*i+1}"); a(f"v_and_b32 v{c+3}, 0xffff0000, v{vb+2*i+1}")
        for j in range(1, mq):
            for r in range(4): a(f"v_mov_b32 v{c+4*j+r}, v{c+r}")
    stamp(a, 1)
    G.pre_first = lambda: stamp(a, 5, st="pro")
    G.run(stages, {C.initit + 3: (lambda: init_signal(a, VT + 4))}, {C.initit: mb_zero_groups(VT + 2)}, (lambda: stamp(a, 6, st="pro")))
    stamp(a, 2)
    stamp(a, 1, st="clk"); stamp(a, 2, real=True, st="clk")
    PITCH = 464
    stamp(a, 1, st="dense")
    init_load(a)
    vw = VT
    a(f"v_and_b32 v{vw}, 15, v0"); a(f"v_mul_u32_u24 v{vw}, {PITCH}, v{vw}")
    a(f"v_lshrrev_b32 v{VT+1}, 4, v0"); a(f"v_lshl_add_u32 v{vw}, v{VT+1}, 3, v{vw}")
    a(f"s_mul_i32 s{T0}, s{sWq}, {64*PITCH}"); a(f"s_mul_i32 s{T1}, s{sWp}, 224"); a(f"s_add_u32 s{T0}, s{T0}, s{T1}")
    a(f"v_add_u32 v{vw}, s{T0}, v{vw}")
    vr_, vg_ = VT + 1, VT + 2
    a(f"v_cmp_le_u32 vcc, 28, v0"); a("s_nop 1")
    a(f"v_cndmask_b32 v{VT+3}, 0, 1, vcc")
    a(f"v_mul_u32_u24 v{VT+4}, 28, v{VT+3}"); a(f"v_sub_u32 v{VT+4}, v0, v{VT+4}")
    a(f"v_lshlrev_b32 v{VT+4}, 4, v{VT+4}")
    a(f"v_mul_u32_u24 v{vr_}, {PITCH}, v{VT+3}"); a(f"v_add_u32 v{vr_}, v{vr_}, v{VT+4}")
    NH = C.dparts; JP = mq // NH; RW = 8 * JP
    a(f"s_mul_i32 s{T0}, s{sWq}, {64*PITCH}"); a(f"s_mul_i32 s{T1}, s{sWp}, {RW*PITCH}"); a(f"s_add_u32 s{T0}, s{T0}, s{T1}")
    a(f"v_add_u32 v{vr_}, s{T0}, v{vr_}")
    a(f"v_mul_u32_u24 v{vg_}, {RS_A2}, v{VT+3}"); a(f"v_add_u32 v{vg_}, v{vg_}, v{VT+4}")
    a(f"s_lshl_b32 s{T0}, s{sM}, 8"); a(f"s_lshl_b32 s{T1}, s{sWq}, 6"); a(f"s_add_u32 s{T0}, s{T0}, s{T1}")
    a(f"s_mul_i32 s{T1}, s{sWp}, {RW}"); a(f"s_add_u32 s{T0}, s{T0}, s{T1}")
    a(f"s_mul_i32 s{T0}, s{T0}, {RS_A2}"); a(f"s_mul_i32 s{T1}, s{sN}, 448"); a(f"s_add_u32 s{T0}, s{T0}, s{T1}")
    a(f"s_add_u32 s{T0}, s{T0}, {WS_A2 + 4096}")
    rb = G.F[0][0]
    for p in range(NH):
        js = range(p * JP, (p + 1) * JP)
        for j in js:
            for i in range(mp):
                c = acc + 4 * (i * mq + j)
                for r in range(4): a(f"v_mul_f32_e64 v{c+r}, v{c+r}, |v{c+r}|")
                a(f"v_cvt_pk_bf16_f32 v{c}, v{c}, v{c+1}"); a(f"v_cvt_pk_bf16_f32 v{c+1}, v{c+2}, v{c+3}")
                a(f"v_pk_max_i16 v{c}, v{c}, 0"); a(f"v_pk_max_i16 v{c+1}, v{c+1}, 0")
        if p == 0:
            a("s_barrier")
            stamp(a, 2, st="dense")
        for j in js:
            for i in range(mp):
                c = acc + 4 * (i * mq + j)
                a(f"ds_write_b64 v{vw}, {vr(c,2)} offset:{j*16*PITCH + 32*i}")
        a("s_waitcnt lgkmcnt(0)")
        if p == 0: stamp(a, 3, st="dense")
        a("s_barrier")
        if p == 0: stamp(a, 4, st="dense")
        a("s_mov_b32 exec_hi, 0x00ffffff")
        nst = RW // 2
        for n in range(nst):
            a(f"ds_read_b128 {vr(rb+4*n,4)}, v{vr_} offset:{(16*JP*p + 2*n)*PITCH}")
        if p: a(f"s_add_u32 s{T0}, s{T0}, {(16*JP - RW)*RS_A2}")
        for n in range(nst):
            a(f"s_waitcnt lgkmcnt({nst-1-n})")
            a(f"buffer_store_dwordx4 {vr(rb+4*n,4)}, v{vg_}, s[{SWS}:{SWS+3}], s{T0} offen{C.wt}")
            a(f"s_add_u32 s{T0}, s{T0}, {2*RS_A2}")
        a("s_mov_b64 exec, -1")
        if p < NH - 1: a("s_nop 1")
    stamp(a, 5, st="dense")
    return V.hi, max(LDS1, 4 * 64 * PITCH)

def phase1_ssm(a):
    V = Regs(10)
    mp, mq = 4, 4
    Pop = OpKC(a, V, 256, 0, mp); Pop.groups = [[0, 1, 2, 3]]
    Qop = OpKC(a, V, 128, Pop.bytes, mq); Qop.groups = [[0], [1]]; Qop.ldsoffs = [0, 8192]
    Qop.frag_off = lambda j: ((j & 1) * 4 + (j >> 1)) * 2048
    SB = Pop.bytes + Qop.bytes; NB = 3
    G = Gemm(a, V, NB, NB, Pop.bytes, Qop.bytes, mp, mq, (sBufD, sBufR, None, None, sCnt, sRole), True, 'P', 's1')
    acc = V.get(64, 2); prm = V.get(12, 4); big = V.get(72, 4)
    AG = NB * SB
    a(f"s_lshr_b32 s{sWp}, s{sWave}, 1"); a(f"s_and_b32 s{sWq}, s{sWave}, 1")
    Pop.lane_chunk(VT, VT + 1)
    a(f"v_lshrrev_b32 v{VT+1}, 5, v0"); a(f"v_lshlrev_b32 v{VT+1}, 4, v{VT+1}")
    a(f"v_bfe_u32 v{VT+2}, v0, 3, 2"); a(f"v_add_u32 v{VT+1}, v{VT+1}, v{VT+2}")
    a(f"v_lshl_add_u32 v{VT+3}, v{VT+1}, 11, v{VT}")
    for j in range(4):
        a(f"s_lshl_b32 s{T0}, s{sWave}, 1");
        if j >> 1: a(f"s_add_u32 s{T0}, s{T0}, 1")
        a(f"s_and_b32 s{T0}, s{T0}, 3"); a(f"s_lshl_b32 s{T0}, s{T0}, 2")
        a(f"s_lshl_b32 s{T1}, s{sWp}, 6"); a(f"s_add_u32 s{T0}, s{T0}, s{T1}")
        a(f"s_lshl_b32 s{T1}, s{sM}, 8"); a(f"s_add_u32 s{T0}, s{T0}, s{T1}")
        if j & 1: a(f"s_add_u32 s{T0}, s{T0}, 32")
        a(f"s_lshl_b32 s{T0}, s{T0}, 11")
        if j: a(f"s_sub_u32 s{T0}, s{T0}, {j*1024}")
        Pop.set_voff(j, VT + 3, T0, bool(j & 1))
    a(f"v_lshrrev_b32 v{VT+1}, 3, v0"); a(f"v_lshl_add_u32 v{VT+3}, v{VT+1}, 12, v{VT}")
    a(f"s_lshr_b32 s{T0}, s{sWave}, 2"); a(f"s_lshl_b32 s{T0}, s{T0}, 5")
    a(f"s_and_b32 s{T1}, s{sWave}, 1"); a(f"s_lshl_b32 s{T2}, s{T1}, 6"); a(f"s_lshl_b32 s{T1}, s{T1}, 4"); a(f"s_add_u32 s{T0}, s{T0}, s{T1}")
    a(f"s_bfe_u32 s{T1}, s{sWave}, 0x10001"); a(f"s_add_u32 s{T0}, s{T0}, s{T1}")
    a(f"s_lshl_b32 s{T1}, s{sN}, 6"); a(f"s_add_u32 s{T0}, s{T0}, s{T1}"); a(f"s_lshl_b32 s{T0}, s{T0}, 11")
    Qop.set_voff(0, VT + 3, T0, T2)
    a(f"v_mov_b32 v{Qop.vd+1}, v{Qop.vd}")
    a(f"s_lshl_b32 s{sLdsP}, s{sWave}, 12")
    a(f"s_lshl_b32 s{sLdsQ}, s{sWave}, 10"); a(f"s_add_u32 s{sLdsQ}, s{sLdsQ}, {Qop.lds_off}")
    a(f"s_lshl_b32 s{sKQ}, s{sRot}, 7")
    a("s_waitcnt lgkmcnt(0)")
    srd(a, SX, PTR["x"], L * D * 2); srd(a, SWS, PTR["ws"], WS_SIZE); srd(a, SDBG, PTR["dbg"], 256)
    srd(a, SA, PTR["bre"], P_ * D * 2); srd(a, SB_, PTR["bim"], P_ * D * 2)
    pt = [big, big + 8, big + 16]
    kadv = [f"s_add_u32 s{sKQ}, s{sKQ}, 128", f"s_and_b32 s{sKQ}, s{sKQ}, 2047"]
    kadvP = [f"s_add_u32 s{sKP}, s{sKP}, 128", f"s_and_b32 s{sKP}, s{sKP}, 2047"]
    a(f"s_mov_b32 s{sKP}, s{sKQ}")
    seg = Seg(Pop, Qop, acc, lambda b: Pop.dma(b, sKP, sTmp, sLdsP, [SX] * 4), lambda b: Qop.dma(b, sKQ, sTmp, sLdsQ, [SA, SB_]), kadvP, kadv, "s1")
    if C.prefetch:
        SP1, SP2, sPF1, sPF2 = SS, 72, sLdsP2, sKP2
        a(f"s_lshl_b32 s{T0}, s{sM}, 4"); a(f"s_add_u32 s{T0}, s{T0}, s{sN}")
        a(f"s_mul_i32 s{sPF2}, s{T0}, {56*1024}"); a(f"s_mul_i32 s{T1}, s{sWave}, {7*1024}"); a(f"s_add_u32 s{sPF2}, s{sPF2}, s{T1}")
        a(f"s_mov_b32 s{SP2}, s{PTR['w2']}"); a(f"s_mov_b32 s{SP2+1}, s{PTR['w2']+1}")
        a(f"s_add_u32 s{SP2+2}, s{sPF2}, {7*1024}"); a(f"s_mov_b32 s{SP2+3}, 0x20000")
        a(f"s_lshr_b32 s{T1}, s{T0}, 6"); a(f"s_cmp_eq_u32 s{T1}, 0")
        a(f"s_cselect_b32 s{SP1}, s{PTR['cre']}, s{PTR['cim']}"); a(f"s_cselect_b32 s{SP1+1}, s{PTR['cre']+1}, s{PTR['cim']+1}")
        a(f"s_and_b32 s{sPF1}, s{T0}, 63"); a(f"s_lshl_b32 s{sPF1}, s{sPF1}, 15"); a(f"s_lshl_b32 s{T1}, s{sWave}, 12"); a(f"s_add_u32 s{sPF1}, s{sPF1}, s{T1}")
        a(f"s_add_u32 s{SP1+2}, s{sPF1}, 4096"); a(f"s_mov_b32 s{SP1+3}, 0x20000")
        vpf = V.get(1); vpd = V.get(4, 2)
        a(f"v_lshlrev_b32 v{vpf}, 4, v0")
        pf = []
        for i in range(4): pf.append([f"buffer_load_dwordx4 {vr(vpd,4)}, v{vpf}, s[{SP1}:{SP1+3}], s{sPF1} offen offset:{i*1024}"])
        for i in range(7):
            pf.append([f"buffer_load_dwordx4 {vr(vpd,4)}, v{vpf}, s[{SP2}:{SP2+3}], s{sPF2} offen offset:{(i%4)*1024}"] + ([f"s_add_u32 s{sPF2}, s{sPF2}, 4096"] if i == 3 else []))
        p1extras = {C.pfit: (pf, 11)}
    else:
        p1extras = {}
    stages = [seg] * 16
    G.prologue(stages, "PQ", 0, 1)
    a(f"s_mul_i32 s{T0}, s{sWp}, {mp}"); Pop.setup_read(T0, VT, U0)
    a(f"s_lshl_b32 s{T0}, s{sWq}, 1"); Qop.setup_read(T0, VT, U0)
    G.zero_first = True
    if C.pbar: a("s_barrier")
    if C.tlb: tlb_warm(a, 250, VT + 5, ["ws", "w2", "cre", "cim", "out", "dbg", "dsk", "b2", "lre", "lim", "ldt", "gw"], 60); G.note('tlb', 1)
    G.prologue(stages, "PQ", 1)
    SPRM = 60
    def prm_loads():
        out = []
        class Cap:
            def __call__(self, x): out.append([x])
        c = Cap()
        c(f"s_lshl_b32 s{T2}, s{sN}, 6"); c(f"s_lshl_b32 s{T3}, s{sWq}, 5"); c(f"s_add_u32 s{T3}, s{T3}, s{T2}")
        c(f"v_and_b32 v{VT}, 15, v0"); c(f"v_lshlrev_b32 v{VT}, 1, v{VT}"); c(f"v_add_u32 v{VT}, s{T3}, v{VT}")
        c(f"v_lshlrev_b32 v{pt[0]}, 1, v{VT}"); c(f"v_add_u32 v{pt[1]}, 2, v{pt[0]}")
        c(f"v_add_u32 v{pt[2]}, s{T2}, v0"); c(f"v_lshlrev_b32 v{pt[2]}, 1, v{pt[2]}")
        c(f"s_mov_b32 s{SPRM+2}, 2048"); c(f"s_mov_b32 s{SPRM+3}, 0x20000")
        for k, name in enumerate(("lre", "lim", "ldt")):
            out.append([f"s_mov_b32 s{SPRM}, s{PTR[name]}", f"s_mov_b32 s{SPRM+1}, s{PTR[name]+1}"] +
                       [f"buffer_load_ushort v{pt[q]+1+k}, v{pt[q]}, s[{SPRM}:{SPRM+3}], 0 offen" for q in range(3)])
        return out
    def prm_math():
        out = []
        class Cap:
            def __call__(self, x): out.append(x)
        c = Cap()
        ssm_params_compute(c, prm, pt[0]); ssm_params_compute(c, prm + 4, pt[1]); ssm_params_compute(c, prm + 8, pt[2], False)
        return [out[i:i + 4] for i in range(0, len(out), 4)]
    p1extras[3] = (prm_loads(), 9)
    p1extras[7] = (prm_math(), 0)
    stamp(a, 1)
    p1extras[C.initit] = mb_zero_groups(VT + 2, True)
    G.run(stages, {C.initit + 3: (lambda: init_signal(a, VT + 4))}, p1extras)
    stamp(a, 2)
    stamp(a, 1, st="clk"); stamp(a, 2, real=True, st="clk")
    stamp(a, 1, st="ssm")
    init_load(a)
    a("s_nop 7")
    def U(jc, ri, s): return acc + 4 * ((s >> 2) * 4 + 2 * jc + ri) + (s & 3)
    ag = big; tt = big + 4
    def scan_step(s):
        for jc in range(2):
            hr, hi_ = ag + 2 * jc, ag + 2 * jc + 1; lr = prm + 4 * jc; t0, t1 = tt + 2 * jc, tt + 2 * jc + 1
            a(f"v_fma_f32 v{t0}, v{lr}, v{hr}, v{U(jc,0,s)}"); a(f"v_fma_f32 v{t1}, v{lr}, v{hi_}, v{U(jc,1,s)}")
        for jc in range(2):
            hr, hi_ = ag + 2 * jc, ag + 2 * jc + 1; li = prm + 4 * jc + 1; t0, t1 = tt + 2 * jc, tt + 2 * jc + 1
            a(f"v_fma_f32 v{hi_}, v{li}, -v{hi_}, v{t0}")
            a(f"v_fma_f32 v{t1}, v{li}, v{hr}, v{t1}")
        for jc in range(2):
            hr, hi_ = ag + 2 * jc, ag + 2 * jc + 1; t1 = tt + 2 * jc + 1
            a(f"v_mov_b32 v{hr}, v{hi_}"); a(f"v_mov_b32 v{hi_}, v{t1}")
    for jc in range(2):
        a(f"v_mov_b32 v{ag+2*jc}, v{U(jc,0,0)}"); a(f"v_mov_b32 v{ag+2*jc+1}, v{U(jc,1,0)}")
    def scan2(s, src, dst):
        for jc in range(2):
            hr, hi_ = src + 2 * jc, src + 2 * jc + 1; lr = prm + 4 * jc; dr, di = dst + 2 * jc, dst + 2 * jc + 1
            a(f"v_fma_f32 v{dr}, v{lr}, v{hr}, v{U(jc,0,s)}"); a(f"v_fma_f32 v{di}, v{lr}, v{hi_}, v{U(jc,1,s)}")
        for jc in range(2):
            hr, hi_ = src + 2 * jc, src + 2 * jc + 1; li = prm + 4 * jc + 1; dr, di = dst + 2 * jc, dst + 2 * jc + 1
            a(f"v_fma_f32 v{dr}, -v{li}, v{hi_}, v{dr}"); a(f"v_fma_f32 v{di}, v{li}, v{hr}, v{di}")
    st = [ag, tt]
    for s in range(1, 16): scan2(s, st[(s - 1) & 1], st[s & 1])
    fin = st[15 & 1]
    vag = big + 8
    def calc_vag():
        a(f"v_lshrrev_b32 v{vag}, 4, v0"); a(f"s_lshl_b32 s{T0}, s{sWp}, 2"); a(f"v_add_u32 v{vag}, s{T0}, v{vag}")
        a(f"v_lshlrev_b32 v{vag}, 9, v{vag}")
        a(f"v_and_b32 v{big+9}, 15, v0"); a(f"v_lshlrev_b32 v{big+9}, 4, v{big+9}")
        a(f"s_lshl_b32 s{T0}, s{sWq}, 8"); a(f"s_add_u32 s{T0}, s{T0}, {AG}")
        a(f"v_add3_u32 v{vag}, v{vag}, v{big+9}, s{T0}")
    calc_vag()
    a(f"ds_write_b128 v{vag}, {vr(fin,4)}")
    a("s_waitcnt lgkmcnt(0)")
    a("s_barrier")
    stamp(a, 2, st="ssm")
    a(f"s_cmp_lg_u32 s{sWave}, 0")
    a("s_cbranch_scc1 L_s_gate")
    lr, li = prm + 8, prm + 9
    l16r, l16i, l256r, l256i = big + 10, big + 11, big + 12, big + 13
    er, ei = big + 14, big + 15
    w0 = big + 4
    A = big + 16; vl = big + 9
    a(f"v_lshlrev_b32 v{vl}, 3, v0"); a(f"v_add_u32 v{vl}, {AG}, v{vl}")
    for s in range(16): a(f"ds_read_b64 {vr(A+2*s,2)}, v{vl} offset:{s*512}")
    csq(a, l16r, l16i, lr, li, w0)
    for _ in range(3): csq(a, l16r, l16i, l16r, l16i, w0)
    csq(a, l256r, l256i, l16r, l16i, w0)
    for _ in range(3): csq(a, l256r, l256i, l256r, l256i, w0)
    a("s_waitcnt lgkmcnt(0)")
    x0, x1 = big + 6, big + 7
    for s in range(1, 16):
        pr, pi, cr_, ci_ = A + 2 * (s - 1), A + 2 * (s - 1) + 1, A + 2 * s, A + 2 * s + 1
        a(f"v_fma_f32 v{cr_}, v{l16r}, v{pr}, v{cr_}"); a(f"v_fma_f32 v{ci_}, v{l16r}, v{pi}, v{ci_}")
        a(f"v_fma_f32 v{cr_}, -v{l16i}, v{pi}, v{cr_}"); a(f"v_fma_f32 v{ci_}, v{l16i}, v{pr}, v{ci_}")
    er, ei = A + 30, A + 31
    vo = big + 8
    a(f"s_lshl_b32 s{T0}, s{sN}, 6"); a(f"v_add_u32 v{vo}, s{T0}, v0"); a(f"v_lshlrev_b32 v{vo}, 3, v{vo}")
    a(f"s_lshl_b32 s{T1}, s{sM}, 13"); a(f"s_add_u32 s{T1}, s{T1}, {WS_AGG}")
    a("s_waitcnt vmcnt(0)")
    init_check(a, big + 52)
    a(f"s_lshl_b32 s{T1}, s{sM}, 13"); a(f"s_add_u32 s{T1}, s{T1}, {WS_AGG}")
    a(f"buffer_store_dwordx2 {vr(er,2)}, v{vo}, s[{SWS}:{SWS+3}], s{T1} offen sc1")
    stamp(a, 3, st="ssm")
    cr, ci = big + 48, big + 49
    a(f"v_mov_b32 v{cr}, 0"); a(f"v_mov_b32 v{ci}, 0")
    a(f"s_cmp_eq_u32 s{sM}, 0"); a("s_cbranch_scc1 L_s_nolb")
    B = big + 50
    a(f"s_mov_b32 s{U2}, {C.spin}")
    a.label("L_s_lb")
    for j in range(7):
        if j: a(f"s_cmp_le_u32 s{sM}, {j}"); a("s_cbranch_scc1 L_s_lbw")
        a(f"s_mov_b32 s{T1}, {WS_AGG + j*8192}")
        a(f"buffer_load_dwordx2 {vr(B+2*j,2)}, v{vo}, s[{SWS}:{SWS+3}], s{T1} offen sc1")
    a.label("L_s_lbw")
    a("s_waitcnt vmcnt(0)")
    a(f"s_mov_b64 s[{U0}:{U1}], 0")
    for j in range(7):
        if j: a(f"s_cmp_le_u32 s{sM}, {j}"); a("s_cbranch_scc1 L_s_lbc")
        a(f"v_cmp_eq_u32 vcc, -1, v{B+2*j}"); a("s_nop 0"); a(f"s_or_b64 s[{U0}:{U1}], s[{U0}:{U1}], vcc")
        a(f"v_cmp_eq_u32 vcc, -1, v{B+2*j+1}"); a("s_nop 0"); a(f"s_or_b64 s[{U0}:{U1}], s[{U0}:{U1}], vcc")
    a.label("L_s_lbc")
    a(f"s_cmp_eq_u64 s[{U0}:{U1}], 0"); a("s_cbranch_scc1 L_s_lbok")
    a(f"s_sub_u32 s{U2}, s{U2}, 1"); a(f"s_cmp_eq_u32 s{U2}, 0"); a("s_cbranch_scc1 L_s_lbok")
    a(f"s_sleep {C.sleep}"); a("s_branch L_s_lb")
    a.label("L_s_lbok")
    for j in range(7):
        a(f"s_cmp_le_u32 s{sM}, {j}"); a("s_cbranch_scc1 L_s_nolb")
        a(f"v_fma_f32 v{x0}, v{l256r}, v{cr}, v{B+2*j}"); a(f"v_fma_f32 v{x1}, v{l256r}, v{ci}, v{B+2*j+1}")
        a(f"v_fma_f32 v{x0}, -v{l256i}, v{ci}, v{x0}"); a(f"v_fma_f32 v{ci}, v{l256i}, v{cr}, v{x1}")
        a(f"v_mov_b32 v{cr}, v{x0}")
    a.label("L_s_nolb")
    stamp(a, 4, st="ssm")
    a(f"ds_write_b64 v{vl}, {vr(cr,2)}")
    for s in range(1, 16):
        a(f"v_mul_f32 v{x0}, v{l16r}, v{cr}"); a(f"v_mul_f32 v{x1}, v{l16r}, v{ci}")
        a(f"v_fma_f32 v{x0}, -v{l16i}, v{ci}, v{x0}"); a(f"v_fma_f32 v{ci}, v{l16i}, v{cr}, v{x1}")
        a(f"v_mov_b32 v{cr}, v{x0}")
        a(f"v_add_f32 v{A+2*(s-1)}, v{A+2*(s-1)}, v{cr}"); a(f"v_add_f32 v{A+2*(s-1)+1}, v{A+2*(s-1)+1}, v{ci}")
        a(f"ds_write_b64 v{vl}, {vr(A+2*(s-1),2)} offset:{s*512}")
    a("s_waitcnt lgkmcnt(0)")
    a("s_branch L_s_wait")
    a.label("L_s_gate")
    gxs = [big + 16, big + 24, big + 32]; gws = big + 40; gt = big + 48
    a(f"s_lshl_b32 s{T0}, s{sM}, 8"); a(f"s_lshl_b32 s{T1}, s{sN}, 4"); a(f"s_add_u32 s{T0}, s{T0}, s{T1}")
    a(f"s_add_u32 s{T0}, s{T0}, s{sWave}"); a(f"s_sub_u32 s{T0}, s{T0}, 1")
    a(f"s_add_u32 s{T1}, s{T0}, 7"); a(f"s_add_u32 s{T2}, s{T0}, 14")
    a(f"v_lshlrev_b32 v{gt}, 5, v0")
    srd(a, SS, PTR["gw"], 2048)
    a(f"buffer_load_dwordx4 {vr(gws,4)}, v{gt}, s[{SS}:{SS+3}], 0 offen"); a(f"buffer_load_dwordx4 {vr(gws+4,4)}, v{gt}, s[{SS}:{SS+3}], 0 offen offset:16")
    gate_row_loads(a, T0, gxs[0], gt); gate_row_loads(a, T1, gxs[1], gt)
    a(f"s_cmp_gt_u32 s{sWave}, 2"); a("s_cbranch_scc1 L_s_g2")
    gate_row_loads(a, T2, gxs[2], gt)
    a("s_waitcnt vmcnt(0)")
    gate_compute(a, T2, gxs[2], gws, gt + 1)
    a.label("L_s_g2")
    a("s_waitcnt vmcnt(0)")
    gate_compute(a, T0, gxs[0], gws, gt + 1); gate_compute(a, T1, gxs[1], gws, gt + 1)
    a.label("L_s_wait")
    a("s_barrier")
    calc_vag()
    a(f"ds_read_b128 {vr(ag,4)}, v{vag}")
    PITCH = 272
    vw = big + 9
    a(f"v_lshrrev_b32 v{vw}, 4, v0"); a(f"v_lshlrev_b32 v{vw}, 4, v{vw}"); a(f"s_lshl_b32 s{T0}, s{sWp}, 6"); a(f"v_add_u32 v{vw}, s{T0}, v{vw}")
    a(f"v_mul_u32_u24 v{vw}, {PITCH}, v{vw}")
    a(f"v_and_b32 v{big+10}, 15, v0"); a(f"v_lshl_add_u32 v{vw}, v{big+10}, 2, v{vw}")
    a(f"s_lshl_b32 s{T0}, s{sWq}, 6"); a(f"v_add_u32 v{vw}, s{T0}, v{vw}")
    vr_, vg_ = big + 10, big + 11
    a(f"v_lshrrev_b32 v{vr_}, 4, v0"); a(f"s_lshl_b32 s{T0}, s{sWave}, 5"); a(f"v_add_u32 v{vr_}, s{T0}, v{vr_}")
    a(f"s_lshl_b32 s{T1}, s{sM}, 8"); a(f"v_add_u32 v{vg_}, s{T1}, v{vr_}"); a(f"v_mul_u32_u24 v{vg_}, {RS_A2}, v{vg_}")
    a(f"v_mul_u32_u24 v{vr_}, {PITCH}, v{vr_}")
    a(f"v_and_b32 v{big+24}, 15, v0"); a(f"v_lshl_add_u32 v{vr_}, v{big+24}, 4, v{vr_}")
    a(f"v_and_b32 v{big+24}, 7, v0"); a(f"v_lshl_add_u32 v{vg_}, v{big+24}, 4, v{vg_}")
    a(f"v_bfe_u32 v{big+24}, v0, 3, 1"); a(f"v_lshl_add_u32 v{vg_}, v{big+24}, 11, v{vg_}")
    a(f"s_lshl_b32 s{T0}, s{sN}, 7"); a(f"s_add_u32 s{T0}, s{T0}, {WS_A2}")
    a("s_waitcnt lgkmcnt(0)")
    ore, oim, od = big + 12, big + 14, big + 16
    rb = big + 28
    st = [ag, tt]
    NPT = C.sparts; SP_ = 16 // NPT
    for s in range(16):
        scan2(s, st[s & 1], st[(s + 1) & 1])
        h = st[(s + 1) & 1]
        for jc in range(2):
            hr, hi_ = h + 2 * jc, h + 2 * jc + 1; kr, ki = prm + 4 * jc + 2, prm + 4 * jc + 3
            a(f"v_mul_f32 v{ore+jc}, v{kr}, v{hr}"); a(f"v_mul_f32 v{oim+jc}, -v{kr}, v{hi_}")
        for jc in range(2):
            hr, hi_ = h + 2 * jc, h + 2 * jc + 1; kr, ki = prm + 4 * jc + 2, prm + 4 * jc + 3
            a(f"v_fma_f32 v{ore+jc}, -v{ki}, v{hi_}, v{ore+jc}"); a(f"v_fma_f32 v{oim+jc}, -v{ki}, v{hr}, v{oim+jc}")
        d = od + 2 * (s % 4)
        a(f"v_cvt_pk_bf16_f32 v{d}, v{ore}, v{ore+1}"); a(f"v_cvt_pk_bf16_f32 v{d+1}, v{oim}, v{oim+1}")
        a(f"ds_write_b32 v{vw}, v{d} offset:{s*PITCH}"); a(f"ds_write_b32 v{vw}, v{d+1} offset:{s*PITCH+128}")
        if (s + 1) % SP_ == 0:
            p = s // SP_
            if p == NPT - 1: stamp(a, 5, st="ssm")
            ns_ = [n for n in range(8) if SP_ * p <= (4 * n) % 16 < SP_ * (p + 1)]
            a("s_waitcnt lgkmcnt(0)")
            a("s_barrier")
            for k, n in enumerate(ns_): a(f"ds_read_b128 {vr(rb+4*k,4)}, v{vr_} offset:{4*n*PITCH}")
            for k, n in enumerate(ns_):
                a(f"s_waitcnt lgkmcnt({len(ns_)-1-k})")
                a(f"s_add_u32 s{T1}, s{T0}, {4*n*RS_A2}")
                a(f"buffer_store_dwordx4 {vr(rb+4*k,4)}, v{vg_}, s[{SWS}:{SWS+3}], s{T1} offen{C.wt}")
    stamp(a, 6, st="ssm")
    return V.hi, AG + 8192

def phase2(a, role):
    R = "A" if role == 0 else "B"
    SW2, SE = 24, 72
    NS = C.ns
    TQ = 128 if NS == 2 else 256
    TP, mp, mq, NB = 128, 4, NS, (4 if NS == 2 else 3)
    LG = 1 if NS == 2 else 2
    XS = 8 // NS
    sG, sKQ2 = 0, 3
    V = Regs(10)
    P1 = OpKC(a, V, TP, 0, mp); P1.groups = [[0, 1]]
    P2 = OpNC(a, V, TP, 0, mp, D * 2)
    Qop = OpKC(a, V, TQ, TP * 128, mq, flags=C.a2ld); Qop.groups = [list(range(Qop.n))]
    SB = TP * 128 + Qop.bytes
    G = Gemm(a, V, NB, NB, TP * 128, Qop.bytes, mp, mq, (sBufD, sBufR, None, None, sCnt, sRole), True, 'P' if NS == 2 else 'Q', 'p2')
    nf = mp * mq
    accD = V.get(4 * nf, 2)
    accS = V.get(4 * nf, 2)
    vg = V.get(2 * mq, 2); vep = V.get(4)
    vex = V.get(6 * mp, 2) if NS == 2 else G.F[0][0] + (32 if C.xbf16 else 0)
    if NS != 2 and not C.xbf16: vex = accS
    dense = 1 if role == 1 else 0
    a(f"s_and_b32 s{T0}, s2, 7"); a(f"s_lshr_b32 s{T1}, s2, 3")
    a(f"s_lshr_b32 s{sG}, s{T0}, {3-LG}")
    a(f"s_and_b32 s{T2}, s{T0}, {XS-1}"); a(f"s_lshl_b32 s{sTt}, s{T2}, 2"); a(f"s_bfe_u32 s{T2}, s{T1}, 0x20002"); a(f"s_add_u32 s{sTt}, s{sTt}, s{T2}")
    a(f"s_and_b32 s{T2}, s{sG}, 1")
    if dense: a(f"s_xor_b32 s{T2}, s{T2}, 1")
    a(f"s_lshl_b32 s{sDt}, s{T2}, 2"); a(f"s_and_b32 s{T2}, s{T1}, 3"); a(f"s_add_u32 s{sDt}, s{sDt}, s{T2}")
    a(f"s_lshl_b32 s{sTile}, s{sTt}, 3"); a(f"s_add_u32 s{sTile}, s{sTile}, s{sDt}")
    a(f"s_lshr_b32 s{sWp}, s{sWave}, 2"); a(f"s_and_b32 s{sWq}, s{sWave}, 3")
    srd(a, SW2, PTR["w2"], F * D * 2)
    a(f"s_lshr_b32 s{T0}, s{sG}, {LG-1}"); a(f"s_cmp_eq_u32 s{T0}, 0")
    a(f"s_cselect_b32 s{SA}, s{PTR['cre']}, s{PTR['cim']}"); a(f"s_cselect_b32 s{SA+1}, s{PTR['cre']+1}, s{PTR['cim']+1}")
    a(f"s_mov_b32 s{SA+2}, {D*P_*2}"); a(f"s_mov_b32 s{SA+3}, 0x20000")
    Qop.lane_chunk(VT, VT + 1)
    a(f"v_lshrrev_b32 v{VT+1}, 3, v0"); a(f"v_lshl_add_u32 v{VT+3}, v{VT+1}, 11, v{VT}")
    for j in range(2):
        a(f"s_lshl_b32 s{T0}, s{sDt}, 7"); a(f"s_lshl_b32 s{T1}, s{sWave}, 4"); a(f"s_add_u32 s{T0}, s{T0}, s{T1}")
        if j: a(f"s_add_u32 s{T0}, s{T0}, 8")
        a(f"s_lshl_b32 s{T0}, s{T0}, 11")
        if j: a(f"s_sub_u32 s{T0}, s{T0}, 1024")
        P1.set_voff(j, VT + 3, T0, bool(j & 1))
    a(f"s_lshl_b32 s{sLdsP}, s{sWave}, 11")
    a(f"s_lshl_b32 s{T0}, s{sDt}, 8")
    P2.setup_dma(sWave, VT + 4, T0, U0)
    P2.setup_lds(sWave, sLdsP2, U0)
    a(f"v_lshrrev_b32 v{VT+1}, 3, v0"); a(f"v_mul_u32_u24 v{VT+1}, {RS_A2}, v{VT+1}"); a(f"v_add_u32 v{VT+3}, v{VT+1}, v{VT}")
    for j in range(Qop.n):
        a(f"s_mul_i32 s{T0}, s{sWave}, {TQ//8}")
        if j: a(f"s_add_u32 s{T0}, s{T0}, {8*j}")
        a(f"s_lshr_b32 s{T1}, s{T0}, 4"); a(f"s_add_u32 s{T1}, s{T1}, s{sG}"); a(f"s_and_b32 s{T1}, s{T1}, {NS-1}"); a(f"s_lshl_b32 s{T1}, s{T1}, 4")
        a(f"s_andn2_b32 s{T0}, s{T0}, {(NS-1) << 4}"); a(f"s_or_b32 s{T0}, s{T0}, s{T1}")
        a(f"s_mul_i32 s{T1}, s{sTt}, {TQ}"); a(f"s_add_u32 s{T0}, s{T0}, s{T1}"); a(f"s_mul_i32 s{T0}, s{T0}, {RS_A2}")
        if j: a(f"s_sub_u32 s{T0}, s{T0}, {1024*j}")
        Qop.set_voff(j, VT + 3, T0, bool(j & 1))
    a(f"s_mul_i32 s{sLdsQ}, s{sWave}, {Qop.n*1024}"); a(f"s_add_u32 s{sLdsQ}, s{sLdsQ}, {Qop.lds_off}")
    K2 = C.k2 if NS == 4 else 0
    nS = 32 // NS; base = (56 - K2) // NS
    assert base * NS == 56 - K2
    nD = base + (C.delta if role == 0 else -C.delta)
    colsS = 2048 // NS
    a(f"s_mul_i32 s{sKQ}, s{sG}, {colsS*2}"); a(f"s_and_b32 s{sKP}, s{sKQ}, 2047")
    if WS_A2: a(f"s_add_u32 s{sKQ}, s{sKQ}, {WS_A2}")
    a(f"s_lshr_b32 s{T0}, s{sG}, 1"); a(f"s_mul_i32 s{T0}, s{T0}, {2*base}")
    a(f"s_and_b32 s{T1}, s{sG}, 1"); a(f"s_mul_i32 s{T1}, s{T1}, {2*base - nD}"); a(f"s_add_u32 s{T0}, s{T0}, s{T1}")
    a(f"s_mul_i32 s{sKP2}, s{T0}, {64*D*2}"); a(f"s_lshl_b32 s{sKQ2}, s{T0}, 7"); a(f"s_add_u32 s{sKQ2}, s{sKQ2}, {WS_A2 + 4096}")
    a(f"s_mul_i32 s{T0}, s{sWp}, {mp}")
    P1.setup_read(T0, VT, U0); P2.setup_read(T0, VT, U0)
    a(f"s_mul_i32 s{T0}, s{sWq}, {mq}"); Qop.setup_read(T0, VT, U0)
    qd = lambda b: Qop.dma(b, sKQ, sTmp, sLdsQ, [SWS] * Qop.n)
    qd2 = lambda b: Qop.dma(b, sKQ2, sTmp, sLdsQ, [SWS] * Qop.n)
    segD = Seg(P2, Qop, accD, lambda b: P2.dma(b, sKP2, sTmp, sLdsP2, SW2), qd2, [f"s_add_u32 s{sKP2}, s{sKP2}, {64*D*2}"], [f"s_add_u32 s{sKQ2}, s{sKQ2}, 128"], "d")
    segS = Seg(P1, Qop, accS, lambda b: P1.dma(b, sKP, sTmp, sLdsP, [SA] * 2), qd, [f"s_add_u32 s{sKP}, s{sKP}, 128"], [f"s_add_u32 s{sKQ}, s{sKQ}, 128"], "s")
    stages = [segS] * nS + [segD] * nD
    N = len(stages)
    a("s_barrier")
    G.prologue(stages, "P")
    nP0 = 2 * G.leadP
    G.zero_first = True
    post_first = None
    fine = C.fine and NS == 4
    sMS = 49
    def chk_need(need):
        def chk(ok):
            if NS == 2:
                a(f"s_add_u32 s{U0}, s{U0}, s{U1}"); a(f"s_cmp_eq_u32 s{U0}, 16"); a(f"s_cbranch_scc1 {ok}")
            else:
                a(f"s_bitcmp1_b32 s{sG}, 0"); a(f"s_cselect_b32 s{sMS}, s{U1}, s{U0}")
                if fine:
                    a(f"s_and_b32 s{U0}, s{sMS}, {need}"); a(f"s_cmp_eq_u32 s{U0}, {need}"); a(f"s_cbranch_scc1 {ok}")
                else:
                    a(f"s_cmp_eq_u32 s{sMS}, 8"); a(f"s_cbranch_scc1 {ok}")
        return chk
    nfirst = G.leadQ + (1 if G.early == 'Q' else 0)
    chkS = chk_need((1 << nfirst) - 1)
    PW = 1
    if role == 0:
        a(f"s_waitcnt vmcnt({nP0})")
        a("s_barrier")
        stamp(a, 3)
        a(f"s_cmp_eq_u32 s{sWave}, {PW}"); a(f"s_cbranch_scc1 L_p2{R}_pl")
        a(f"s_cmp_lg_u32 s{sWave}, 0"); a(f"s_cbranch_scc1 L_p2{R}_dep")
        signal_cnt(a, "S", VT)
        a(f"s_branch L_p2{R}_dep")
        a.label(f"L_p2{R}_pl")
        poll_own(a, chkS, VT)
    elif C.dearly:
        a(f"s_waitcnt vmcnt({nP0})")
        a("s_barrier")
        stamp(a, 3)
        stamp(a, 6, st="dense")
        a(f"s_cmp_eq_u32 s{sWave}, {PW}"); a(f"s_cbranch_scc1 L_p2{R}_pl")
        a(f"s_cmp_lg_u32 s{sWave}, 0"); a(f"s_cbranch_scc1 L_p2{R}_dep")
        init_check(a, VT)
        signal_cnt(a, 2, VT)
        a(f"s_branch L_p2{R}_dep")
        a.label(f"L_p2{R}_pl")
        poll_own(a, chkS, VT)
    else:
        stamp(a, 3)
        stamp(a, 6, st="dense")
        a(f"s_cmp_lg_u32 s{sWave}, {PW}"); a(f"s_cbranch_scc1 L_p2{R}_dep")
        poll_own(a, chkS, VT)
        def post_first():
            sk = newlabel("pf")
            a(f"s_cmp_lg_u32 s{sWave}, 0"); a(f"s_cbranch_scc1 {sk}")
            init_check(a, VT)
            signal_cnt(a, 2, VT)
            a.label(sk)
    a.label(f"L_p2{R}_dep")
    a("s_barrier")
    G.prologue(stages, "Q")
    hooks = {}
    if fine:
        def mk(bit):
            def h():
                sk = newlabel("hs")
                a(f"s_cmp_lg_u32 s{sWave}, {PW}"); a(f"s_cbranch_scc1 {sk}")
                a(f"s_bitcmp1_b32 s{sMS}, {bit}"); a(f"s_cbranch_scc1 {sk}")
                poll_own(a, chk_need(1 << bit), VT)
                a.label(sk)
            return h
        for bit in range(nfirst, nS): hooks[bit - nfirst] = mk(bit)
    full = (0xff + 0xff + 16) if fine else 32
    def hookD():
        sk = newlabel("hk")
        stamp(a, 2, st="p2")
        a(f"s_cmp_lg_u32 s{sWave}, {PW}"); a(f"s_cbranch_scc1 {sk}")
        def chk(ok):
            a(f"s_add_u32 s{U0}, s{U0}, s{U1}"); a(f"s_add_u32 s{U0}, s{U0}, s{U3}"); a(f"s_cmp_eq_u32 s{U0}, {full}"); a(f"s_cbranch_scc1 {ok}")
        poll_own(a, chk, VT)
        a.label(sk)
        stamp(a, 3, st="p2")
    hd = nS - G.leadQ - (1 if G.early == 'Q' else 0)
    assert hd not in hooks
    hooks[hd] = hookD
    sXD = 44
    vt_own, vxo, vd2, vl16 = vep, vep + 1, vep + 2, vep + 3
    vx_, vds, vb2 = vex, vex + 2 * mp, vex + 4 * mp
    ex = []
    ex.append([f"s_mul_i32 s{T0}, s{sTt}, {TQ}", f"s_mul_i32 s{T1}, s{sWq}, {16*mq}", f"s_add_u32 s{T0}, s{T0}, s{T1}",
               f"v_and_b32 v{vt_own}, 15, v0", f"v_add_u32 v{vt_own}, s{T0}, v{vt_own}", f"v_lshlrev_b32 v{vxo}, 3, v{vt_own}"])
    for j in range(mq):
        ex.append([f"s_add_u32 s{T0}, s{sG}, {j}", f"s_and_b32 s{T0}, s{T0}, {NS-1}", f"s_lshl_b32 s{T0}, s{T0}, 7", f"s_add_u32 s{T0}, s{T0}, {WS_G}",
                   f"buffer_load_dwordx2 {vr(vg+2*j,2)}, v{vxo}, s[{SWS}:{SWS+3}], s{T0} offen sc1"])
    ex.append([f"s_lshl_b32 s{T0}, s{sG}, 4", f"v_add_u32 v{vt_own}, s{T0}, v{vt_own}",
               f"v_lshrrev_b32 v{vd2}, 4, v0", f"v_lshlrev_b32 v{vd2}, 2, v{vd2}",
               f"s_lshl_b32 s{T0}, s{sDt}, 7", f"s_lshl_b32 s{T1}, s{sWp}, 6", f"s_add_u32 s{T0}, s{T0}, s{T1}",
               f"v_add_u32 v{vd2}, s{T0}, v{vd2}", f"v_lshlrev_b32 v{vd2}, 1, v{vd2}",
               f"v_lshl_add_u32 v{vxo}, v{vt_own}, 11, v{vd2}", f"v_lshlrev_b32 v{vl16}, 4, v0"])
    for j in range(1, mq):
        ex.append([f"s_add_u32 s{T1}, s{sG}, {j}", f"s_and_b32 s{T1}, s{T1}, {NS-1}",
                   f"s_mul_i32 s{T0}, s{T1}, {XS}", f"s_and_b32 s{T2}, s2, {XS-1}", f"s_add_u32 s{T0}, s{T0}, s{T2}",
                   f"s_lshr_b32 s{T2}, s{sDt}, 2", f"s_xor_b32 s{T2}, s{T2}, s{T1}", f"s_and_b32 s{T2}, s{T2}, 1", f"s_xor_b32 s{T2}, s{T2}, 1",
                   f"s_lshl_b32 s{T2}, s{T2}, 7", f"s_or_b32 s{T0}, s{T0}, s{T2}", f"s_and_b32 s{T2}, s2, 0x78", f"s_or_b32 s{T0}, s{T0}, s{T2}",
                   f"s_lshl_b32 s{T0}, s{T0}, 3", f"s_add_u32 s{T0}, s{T0}, s{sWave}", f"s_mul_i32 s{T0}, s{T0}, {4096*(NS-1)}",
                   f"s_add_u32 s{sXD+j-1}, s{T0}, {WS_XB + (NS - j - 1) * 4096}"])
    ex2 = []
    for i in range(mp):
        ex2.append([f"buffer_load_dwordx2 {vr(vx_+2*i,2)}, v{vxo}, s[{SX}:{SX+3}], 0 offen offset:{32*i}"])
    ex2.append([f"s_mov_b32 s{SE}, s{PTR['dsk']}", f"s_mov_b32 s{SE+1}, s{PTR['dsk']+1}", f"s_mov_b32 s{SE+2}, 2048", f"s_mov_b32 s{SE+3}, 0x20000"])
    for i in range(mp):
        ex2.append([f"buffer_load_dwordx2 {vr(vds+2*i,2)}, v{vd2}, s[{SE}:{SE+3}], 0 offen offset:{32*i}"])
    ex2.append([f"s_mov_b32 s{SE}, s{PTR['b2']}", f"s_mov_b32 s{SE+1}, s{PTR['b2']+1}"])
    for i in range(mp):
        ex2.append([f"buffer_load_dwordx2 {vr(vb2+2*i,2)}, v{vd2}, s[{SE}:{SE+3}], 0 offen offset:{32*i}"])
    if NS == 2: extras = {N - NB: (ex + ex2, mq + 3 * mp)}
    else: extras = {N - NB: (ex, mq)}
    stamp(a, 4)
    stamp(a, 1, st="p2")
    stamp(a, 3, st="clk"); stamp(a, 4, real=True, st="clk")
    G.run(stages, hooks, extras, post_first)
    stamp(a, 5)
    stamp(a, 4, st="p2")
    stamp(a, 5, st="clk"); stamp(a, 6, real=True, st="clk")
    stamp(a, 1, st="end")
    a("s_nop 7")
    a("s_waitcnt vmcnt(0)")
    def comb(i, j):
        c = 4 * (i * mq + j)
        for r in range(4):
            a(f"v_mul_f32 v{accD+c+r}, v{vg+2*j+1}, v{accD+c+r}"); a(f"v_fmac_f32 v{accD+c+r}, v{vg+2*j}, v{accS+c+r}")
    if K2:
        return phase2b(a, role, locals())
    late_ex2 = (NS != 2 and not C.xbf16)
    if late_ex2:
        for j in list(range(1, mq)) + [0]:
            for i in range(mp): comb(i, j)
    nst = (2 if C.xbf16 else 4) * (mq - 1)
    for j in range(1, mq):
        if not late_ex2:
            for i in range(mp): comb(i, j)
        if C.xbf16:
            for i2 in range(0, mp, 2):
                c0, c1 = accD + 4 * (i2 * mq + j), accD + 4 * ((i2 + 1) * mq + j)
                a(f"v_cvt_pk_bf16_f32 v{c0}, v{c0}, v{c0+1}"); a(f"v_cvt_pk_bf16_f32 v{c0+1}, v{c0+2}, v{c0+3}")
                a(f"v_cvt_pk_bf16_f32 v{c0+2}, v{c1}, v{c1+1}"); a(f"v_cvt_pk_bf16_f32 v{c0+3}, v{c1+2}, v{c1+3}")
                a(f"buffer_store_dwordx4 {vr(c0,4)}, v{vl16}, s[{SWS}:{SWS+3}], s{sXD+j-1} offen offset:{(i2//2)*1024} sc1")
        else:
            a("s_nop 1")
            for i in range(mp):
                c = accD + 4 * (i * mq + j)
                a(f"buffer_store_dwordx4 {vr(c,4)}, v{vl16}, s[{SWS}:{SWS+3}], s{sXD+j-1} offen offset:{i*1024} sc1")
    stamp(a, 2, st="end")
    n_ex2 = 0
    if NS != 2:
        for g_ in ex2: G.emit(g_)
        n_ex2 = 3 * mp
    if not late_ex2:
        for i in range(mp): comb(i, 0)
    t1, t2, t3 = VT + 5, VT + 6, VT + 7
    a(f"s_and_b32 s{T0}, s2, {XS-1}")
    a(f"v_mul_u32_u24 v{t1}, {XS}, v0"); a(f"v_add_u32 v{t1}, s{T0}, v{t1}")
    a(f"s_lshr_b32 s{T0}, s{sDt}, 2")
    a(f"v_and_b32 v{t2}, 1, v0"); a(f"v_xor_b32 v{t2}, s{T0}, v{t2}"); a(f"v_xor_b32 v{t2}, 1, v{t2}")
    a(f"s_lshr_b32 s{T0}, s2, 3"); a(f"s_and_b32 s{T0}, s{T0}, 15")
    a(f"v_lshlrev_b32 v{t2}, 4, v{t2}"); a(f"v_add_u32 v{t2}, s{T0}, v{t2}"); a(f"v_lshl_or_b32 v{t2}, v{t2}, 3, v{t1}")
    a(f"v_lshlrev_b32 v{t2}, 8, v{t2}")
    a(f"v_subrev_u32 v{t1}, s{sG}, v0"); a(f"v_and_b32 v{t1}, {NS-1}, v{t1}")
    a(f"v_sub_u32 v{t1}, {NS-1}, v{t1}"); a(f"v_lshl_add_u32 v{t2}, v{t1}, 2, v{t2}")
    a(f"v_mov_b32 v{t3}, 1")
    a(f"s_lshl_b32 s{T0}, 1, s{sG}"); a(f"s_andn2_b32 s{T0}, {(1 << NS) - 1}, s{T0}")
    a(f"s_lshl_b32 s{T1}, s{sWave}, 4"); a(f"s_add_u32 s{T1}, s{T1}, {WS_MB + 32}")
    a(f"s_waitcnt vmcnt({n_ex2})")
    stamp(a, 5, st="p2")
    stamp(a, 3, st="end")
    a(f"s_mov_b32 exec_lo, s{T0}"); a("s_mov_b32 exec_hi, 0")
    a(f"buffer_store_dword v{t3}, v{t2}, s[{SWS}:{SWS+3}], s{T1} offen sc1")
    a("s_mov_b64 exec, -1")
    if n_ex2: a("s_waitcnt vmcnt(1)")
    x0, x1, y0, y1 = VT, VT + 1, VT + 2, VT + 3
    for i in range(mp):
        e = accD + 4 * (i * mq)
        for h in range(2):
            a(f"v_lshlrev_b32 v{x0}, 16, v{vx_+2*i+h}"); a(f"v_and_b32 v{x1}, 0xffff0000, v{vx_+2*i+h}")
            a(f"v_lshlrev_b32 v{y0}, 16, v{vds+2*i+h}"); a(f"v_and_b32 v{y1}, 0xffff0000, v{vds+2*i+h}")
            a(f"v_mul_f32 v{x0}, v{x0}, v{y0}"); a(f"v_mul_f32 v{x1}, v{x1}, v{y1}")
            a(f"v_cvt_pk_bf16_f32 v{x0}, v{x0}, v{x1}")
            a(f"v_and_b32 v{x1}, 0xffff0000, v{x0}"); a(f"v_lshlrev_b32 v{x0}, 16, v{x0}")
            a(f"v_fmac_f32 v{e+2*h}, v{vg}, v{x0}"); a(f"v_fmac_f32 v{e+2*h+1}, v{vg}, v{x1}")
            a(f"v_lshlrev_b32 v{x0}, 16, v{vb2+2*i+h}"); a(f"v_and_b32 v{x1}, 0xffff0000, v{vb2+2*i+h}")
            a(f"v_fmac_f32 v{e+2*h}, v{vg+1}, v{x0}"); a(f"v_fmac_f32 v{e+2*h+1}, v{vg+1}, v{x1}")
    stamp(a, 4, st="end")
    a(f"s_lshl_b32 s{T3}, s2, 8"); a(f"s_add_u32 s{T3}, s{T3}, s{T1}")
    def chkx(ok):
        if NS == 4: a(f"s_and_b32 s{U0}, s{U0}, s{U1}"); a(f"s_and_b32 s{U0}, s{U0}, s{U3}")
        a(f"s_cmp_lg_u32 s{U0}, 0"); a(f"s_cbranch_scc1 {ok}")
    poll(a, SWS, T3, chkx, VT, wide=(4 if NS == 4 else 1), sleep=1)
    stamp(a, 5, st="end")
    rb = G.F[0][0]
    nrx = mp * (NS - 1)
    assert 2 * (4 * mp + 4 * mq) >= 4 * nrx
    inbox_offset(a, T0)
    per = 2 if C.xbf16 else 4
    for k in range(per * (NS - 1)):
        if k and k % per == 0: a(f"s_add_u32 s{T0}, s{T0}, 4096")
        a(f"buffer_load_dwordx4 {vr(rb+4*k,4)}, v{vl16}, s[{SWS}:{SWS+3}], s{T0} offen offset:{(k%per)*1024} sc1")
    srd(a, SE, PTR["out"], L * D * 4)
    vo = VT
    a(f"v_lshlrev_b32 v{vo}, 12, v{vt_own}"); a(f"v_lshl_add_u32 v{vo}, v{vd2}, 1, v{vo}")
    a("s_waitcnt vmcnt(0)")
    stamp(a, 6, st="end")
    for i in range(mp):
        e = accD + 4 * (i * mq)
        for k in range(NS - 1):
            if C.xbf16:
                src = rb + 8 * k + 4 * (i // 2) + 2 * (i % 2)
                x0, x1 = VT + 2, VT + 3
                for h in range(2):
                    a(f"v_lshlrev_b32 v{x0}, 16, v{src+h}"); a(f"v_and_b32 v{x1}, 0xffff0000, v{src+h}")
                    a(f"v_add_f32 v{e+2*h}, v{e+2*h}, v{x0}"); a(f"v_add_f32 v{e+2*h+1}, v{e+2*h+1}, v{x1}")
            else:
                for r in range(4): a(f"v_add_f32 v{e+r}, v{e+r}, v{rb+k*4*mp+4*i+r}")
        a(f"buffer_store_dwordx4 {vr(e,4)}, v{vo}, s[{SE}:{SE+3}], 0 offen offset:{64*i}{C.wto}")
    stamp(a, 6)
    stamp(a, 6, st="p2")
    return V.hi, NB * SB

def phase2b(a, role, L_):
    g = L_
    R, NS, XS, mp, mq, K2 = g["R"], g["NS"], g["XS"], g["mp"], g["mq"], g["K2"]
    accD, accS, vg, G, P2, Qop, SW2, SE = g["accD"], g["accS"], g["vg"], g["G"], g["P2"], g["Qop"], g["SW2"], g["SE"]
    sG, sKQ2, sXD, comb, V = g["sG"], g["sKQ2"], g["sXD"], g["comb"], g["V"]
    vt_own, vxo, vd2, vl16 = g["vt_own"], g["vxo"], g["vd2"], g["vl16"]
    assert C.xbf16 and NS == 4
    NB2 = 6
    Vq = Regs(Qop.vd)
    Q2 = OpKC(a, Vq, 64, 128 * 128, 1, flags=C.a2ld); Q2.groups = [[0]]
    assert Vq.hi <= Qop.c1 + 1
    Vf = Regs(G.F[0][0])
    G2 = Gemm(a, Vf, NB2, NB2, 128 * 128, Q2.bytes, mp, 1, (sBufD, sBufR, None, None, sCnt, sRole), True, 'P', 'p2b')
    G2.acc_stride = 4 * mq
    assert Vf.hi <= G.F[1][1] + 4 * mq
    Q2.lane_chunk(VT, VT + 1)
    a(f"v_lshrrev_b32 v{VT+1}, 3, v0"); a(f"v_mul_u32_u24 v{VT+1}, {RS_A2}, v{VT+1}"); a(f"v_add_u32 v{VT+3}, v{VT+1}, v{VT}")
    a(f"s_lshr_b32 s{T0}, s{sWave}, 1"); a(f"s_lshl_b32 s{T0}, s{T0}, 6"); a(f"s_and_b32 s{T1}, s{sWave}, 1"); a(f"s_lshl_b32 s{T2}, s{T1}, 6")
    a(f"s_lshl_b32 s{T1}, s{T1}, 3"); a(f"s_add_u32 s{T0}, s{T0}, s{T1}"); a(f"s_lshl_b32 s{T1}, s{sG}, 4"); a(f"s_add_u32 s{T0}, s{T0}, s{T1}")
    a(f"s_lshl_b32 s{T1}, s{sTt}, 8"); a(f"s_add_u32 s{T0}, s{T0}, s{T1}"); a(f"s_mul_i32 s{T0}, s{T0}, {RS_A2}")
    Q2.set_voff(0, VT + 3, T0, T2)
    a(f"s_lshl_b32 s{sLdsQ}, s{sWave}, 10"); a(f"s_add_u32 s{sLdsQ}, s{sLdsQ}, {Q2.lds_off}")
    Q2.setup_read(sWq, VT, U0)
    a(f"s_mov_b32 s{sKP2}, {(56-K2)*64*D*2}"); a(f"s_mov_b32 s{sKQ2}, {WS_A2 + 4096 + (56-K2)*128}")
    seg2 = Seg(P2, Q2, accD, lambda b: P2.dma(b, sKP2, sTmp, sLdsP2, SW2), lambda b: Q2.dma(b, sKQ2, sTmp, sLdsQ, [SWS]),
               [f"s_add_u32 s{sKP2}, s{sKP2}, {64*D*2}"], [f"s_add_u32 s{sKQ2}, s{sKQ2}, 128"], "b")
    st2 = [seg2] * K2
    a("s_barrier")
    G2.prologue(st2)
    for j in range(1, mq):
        for i in range(mp): comb(i, j)
        for i2 in range(0, mp, 2):
            c0, c1 = accD + 4 * (i2 * mq + j), accD + 4 * ((i2 + 1) * mq + j)
            a(f"v_cvt_pk_bf16_f32 v{c0}, v{c0}, v{c0+1}"); a(f"v_cvt_pk_bf16_f32 v{c0+1}, v{c0+2}, v{c0+3}")
            a(f"v_cvt_pk_bf16_f32 v{c0+2}, v{c1}, v{c1+1}"); a(f"v_cvt_pk_bf16_f32 v{c0+3}, v{c1+2}, v{c1+3}")
            a(f"buffer_store_dwordx4 {vr(c0,4)}, v{vl16}, s[{SWS}:{SWS+3}], s{sXD+j-1} offen offset:{(i2//2)*1024} sc1")
    G2.note('xs', 6)
    stamp(a, 2, st="end")
    vx_, vds, vb2 = accS + 4, accS + 20, accS + 36
    for i in range(mp): a(f"buffer_load_dwordx2 {vr(vx_+2*i,2)}, v{vxo}, s[{SX}:{SX+3}], 0 offen offset:{32*i}")
    srd(a, SE, PTR["dsk"], 2048)
    for i in range(mp): a(f"buffer_load_dwordx2 {vr(vds+2*i,2)}, v{vd2}, s[{SE}:{SE+3}], 0 offen offset:{32*i}")
    a(f"s_mov_b32 s{SE}, s{PTR['b2']}"); a(f"s_mov_b32 s{SE+1}, s{PTR['b2']+1}")
    for i in range(mp): a(f"buffer_load_dwordx2 {vr(vb2+2*i,2)}, v{vd2}, s[{SE}:{SE+3}], 0 offen offset:{32*i}")
    G2.note('ex2', 12)
    t1, t2, t3 = VT + 5, VT + 6, VT + 7
    sMask, sFl = sXD + 3, sXD + 4
    a(f"s_and_b32 s{T0}, s2, {XS-1}")
    a(f"v_mul_u32_u24 v{t1}, {XS}, v0"); a(f"v_add_u32 v{t1}, s{T0}, v{t1}")
    a(f"s_lshr_b32 s{T0}, s{sDt}, 2")
    a(f"v_and_b32 v{t2}, 1, v0"); a(f"v_xor_b32 v{t2}, s{T0}, v{t2}"); a(f"v_xor_b32 v{t2}, 1, v{t2}")
    a(f"s_lshr_b32 s{T0}, s2, 3"); a(f"s_and_b32 s{T0}, s{T0}, 15")
    a(f"v_lshlrev_b32 v{t2}, 4, v{t2}"); a(f"v_add_u32 v{t2}, s{T0}, v{t2}"); a(f"v_lshl_or_b32 v{t2}, v{t2}, 3, v{t1}")
    a(f"v_lshlrev_b32 v{t2}, 8, v{t2}")
    a(f"v_subrev_u32 v{t1}, s{sG}, v0"); a(f"v_and_b32 v{t1}, {NS-1}, v{t1}")
    a(f"v_sub_u32 v{t1}, {NS-1}, v{t1}"); a(f"v_lshl_add_u32 v{t2}, v{t1}, 2, v{t2}")
    a(f"v_mov_b32 v{t3}, 1")
    a(f"s_lshl_b32 s{sMask}, 1, s{sG}"); a(f"s_andn2_b32 s{sMask}, {(1 << NS) - 1}, s{sMask}")
    a(f"s_lshl_b32 s{sFl}, s{sWave}, 4"); a(f"s_add_u32 s{sFl}, s{sFl}, {WS_MB + 32}")
    def flag():
        a(f"s_mov_b32 exec_lo, s{sMask}"); a("s_mov_b32 exec_hi, 0")
        a(f"buffer_store_dword v{t3}, v{t2}, s[{SWS}:{SWS+3}], s{sFl} offen sc1")
        a("s_mov_b64 exec, -1")
    fit = C.flagit
    def hookF():
        a(f"s_waitcnt vmcnt({G2.allow_at[fit]})")
        flag()
    G2.want_allow = {fit: 'xs'}
    G2.run(st2, {fit: hookF})
    stamp(a, 3, st="end")
    a("s_nop 7")
    a("s_waitcnt vmcnt(0)")
    a(f"s_lshl_b32 s{T3}, s2, 8"); a(f"s_add_u32 s{T3}, s{T3}, s{sFl}")
    def chkx(ok):
        a(f"s_and_b32 s{U0}, s{U0}, s{U1}"); a(f"s_and_b32 s{U0}, s{U0}, s{U3}")
        a(f"s_cmp_lg_u32 s{U0}, 0"); a(f"s_cbranch_scc1 {ok}")
    poll(a, SWS, T3, chkx, VT, wide=4, sleep=1)
    stamp(a, 4, st="end")
    rbq = [accD + 4, accD + 8, accD + 12, accD + 20, accD + 24, accD + 28]
    inbox_offset(a, T0)
    for k in range(6):
        if k and k % 2 == 0: a(f"s_add_u32 s{T0}, s{T0}, 4096")
        a(f"buffer_load_dwordx4 {vr(rbq[k],4)}, v{vl16}, s[{SWS}:{SWS+3}], s{T0} offen offset:{(k%2)*1024} sc1")
    for i in range(mp): comb(i, 0)
    x0, x1, y0, y1 = VT, VT + 1, VT + 2, VT + 3
    for i in range(mp):
        e = accD + 4 * (i * mq)
        for h in range(2):
            a(f"v_lshlrev_b32 v{x0}, 16, v{vx_+2*i+h}"); a(f"v_and_b32 v{x1}, 0xffff0000, v{vx_+2*i+h}")
            a(f"v_lshlrev_b32 v{y0}, 16, v{vds+2*i+h}"); a(f"v_and_b32 v{y1}, 0xffff0000, v{vds+2*i+h}")
            a(f"v_mul_f32 v{x0}, v{x0}, v{y0}"); a(f"v_mul_f32 v{x1}, v{x1}, v{y1}")
            a(f"v_cvt_pk_bf16_f32 v{x0}, v{x0}, v{x1}")
            a(f"v_and_b32 v{x1}, 0xffff0000, v{x0}"); a(f"v_lshlrev_b32 v{x0}, 16, v{x0}")
            a(f"v_fmac_f32 v{e+2*h}, v{vg}, v{x0}"); a(f"v_fmac_f32 v{e+2*h+1}, v{vg}, v{x1}")
            a(f"v_lshlrev_b32 v{x0}, 16, v{vb2+2*i+h}"); a(f"v_and_b32 v{x1}, 0xffff0000, v{vb2+2*i+h}")
            a(f"v_fmac_f32 v{e+2*h}, v{vg+1}, v{x0}"); a(f"v_fmac_f32 v{e+2*h+1}, v{vg+1}, v{x1}")
    srd(a, SE, PTR["out"], L * D * 4)
    vo = VT
    a(f"v_lshlrev_b32 v{vo}, 12, v{vt_own}"); a(f"v_lshl_add_u32 v{vo}, v{vd2}, 1, v{vo}")
    a("s_waitcnt vmcnt(0)")
    stamp(a, 5, st="end")
    for i in range(mp):
        e = accD + 4 * (i * mq)
        for k in range(NS - 1):
            src = rbq[2 * k + i // 2] + 2 * (i % 2)
            x0, x1 = VT + 2, VT + 3
            for h in range(2):
                a(f"v_lshlrev_b32 v{x0}, 16, v{src+h}"); a(f"v_and_b32 v{x1}, 0xffff0000, v{src+h}")
                a(f"v_add_f32 v{e+2*h}, v{e+2*h}, v{x0}"); a(f"v_add_f32 v{e+2*h+1}, v{e+2*h+1}, v{x1}")
        a(f"buffer_store_dwordx4 {vr(e,4)}, v{vo}, s[{SE}:{SE+3}], 0 offen offset:{64*i}{C.wto}")
    stamp(a, 6)
    stamp(a, 6, st="p2"); stamp(a, 6, st="end")
    return V.hi, max(g["NB"] * g["SB"], NB2 * (128 * 128 + Q2.bytes))

def emit_stamps(a):
    a("s_memrealtime s[88:89]"); a("s_waitcnt lgkmcnt(0)")
    a(f"s_cmp_lg_u32 s{sWave}, {C.stwave}"); a("s_cbranch_scc1 L_end")
    a("s_waitcnt vmcnt(0)")
    for i in range(1, 7): a(f"s_sub_u32 s{92+i}, s{92+i}, s92")
    a("s_mov_b32 s99, s100")
    a("s_nop 0")
    a(f"s_mov_b32 s100, s88")
    for i in range(8): a(f"v_mov_b32 v{12+i}, s{93+i}")
    a("v_mov_b32 v11, 0")
    if C.dbgout:
        a("s_and_b32 s76, s2, 127"); a("s_cmp_lg_u32 s76, 0"); a("s_cbranch_scc1 L_end")
        a("s_sub_u32 s77, s100, s99"); a("v_mov_b32 v18, s77")
        a("s_lshr_b32 s76, s2, 7"); a("s_mul_i32 s76, s76, 28"); a("s_add_u32 s76, s76, 8")
        a("s_mov_b64 exec, 1")
        for i in range(7): a(f"buffer_store_dword v{12+i}, v11, s[{SDBG}:{SDBG+3}], s76 offen offset:{4*i}")
        return
    a(f"s_lshl_b32 s{T0}, s2, 5"); a(f"s_add_u32 s{T0}, s{T0}, {WS_ST}")
    a("s_mov_b64 exec, 1")
    a(f"buffer_store_dwordx4 v[12:15], v11, s[{SWS}:{SWS+3}], s{T0} offen")
    a(f"buffer_store_dwordx4 v[16:19], v11, s[{SWS}:{SWS+3}], s{T0} offen offset:16")

HEADER = open("gated_mix__ssm_conv_s5__dense_activation_squared_relu__prompt.s.ref").read().split("; Override launch")[0]

def generate(**kw):
    for k, v in kw.items():
        assert hasattr(C, k), k
        setattr(C, k, v)
    _lbl[0] = 0
    a = Asm()
    kernel_header(a, NAME)
    a("s_cmp_ge_u32 s2, 256"); a("s_cbranch_scc1 L_end")
    a("s_load_dwordx16 s[40:55], s[0:1], 0"); a("s_load_dwordx16 s[56:71], s[0:1], 64"); a("s_load_dwordx4 s[72:75], s[0:1], 128")
    if C.dbgst:
        a("s_memtime s[92:93]"); a("s_memrealtime s[100:101]")
    if C.codepf == 1 or C.codepf is True:
        a("s_getpc_b64 s[4:5]")
        a.label("L_pc")
        a("v_lshlrev_b32 v2, 7, v0")
        a("v_min_u32 v2, L_codeend-L_pc-4, v2")
        a("global_load_dword v250, v2, s[4:5]")
    elif C.codepf == 2:
        a("s_getpc_b64 s[4:5]")
        a.label("L_pc")
        a("s_lshr_b32 s6, s2, 3"); a("s_lshl_b32 s6, s6, 11")
        a("v_lshlrev_b32 v2, 7, v0"); a("v_add_u32 v2, s6, v2")
        a("v_min_u32 v2, L_codeend-L_pc-4, v2")
        a("v_cmp_gt_u32 vcc, 16, v0"); a("s_and_saveexec_b64 s[6:7], vcc"); a("s_cbranch_execz L_cpf")
        a("global_load_dword v250, v2, s[4:5]")
        a.label("L_cpf")
        a("s_mov_b64 exec, s[6:7]")
    a("v_lshrrev_b32 v1, 6, v0"); a("v_and_b32 v0, 63, v0"); a(f"v_readfirstlane_b32 s{sWave}, v1")
    a(f"s_and_b32 s{T0}, s2, 7"); a(f"s_lshr_b32 s{T1}, s2, 3")
    a(f"s_lshr_b32 s{sRole}, s{T1}, 4")
    a(f"s_bfe_u32 s{T2}, s{T1}, 0x20002"); a(f"s_and_b32 s{T3}, s{T1}, 3")
    a(f"s_lshr_b32 s{sM}, s{T0}, 2"); a(f"s_lshl_b32 s{sM}, s{sM}, 2"); a(f"s_add_u32 s{sM}, s{sM}, s{T2}")
    a(f"s_and_b32 s{sN}, s{T0}, 3"); a(f"s_lshl_b32 s{sN}, s{sN}, 2"); a(f"s_add_u32 s{sN}, s{sN}, s{T3}")
    mode = C.rot
    if mode is True: mode = 1
    if mode == 1:
        a(f"s_lshl_b32 s{sRot}, s{sRole}, 2"); a(f"s_add_u32 s{sRot}, s{sRot}, s{T3}"); a(f"s_lshl_b32 s{sRot}, s{sRot}, 1")
        a(f"s_lshl_b32 s{T2}, s{T2}, 2"); a(f"s_add_u32 s{sRot}, s{sRot}, s{T2}"); a(f"s_and_b32 s{T0}, s{T0}, 3")
        a(f"s_add_u32 s{sRot}, s{sRot}, s{T0}"); a(f"s_and_b32 s{sRot}, s{sRot}, 15")
    elif mode == 2:
        a(f"s_and_b32 s{sRot}, s{T0}, 3"); a(f"s_lshl_b32 s{sRot}, s{sRot}, 2"); a(f"s_lshr_b32 s{T0}, s{T0}, 2"); a(f"s_lshl_b32 s{T0}, s{T0}, 1")
        a(f"s_add_u32 s{sRot}, s{sRot}, s{T0}"); a(f"s_and_b32 s{sRot}, s{sRot}, 15")
    elif mode == 3:
        a(f"s_and_b32 s{sRot}, s{T0}, 3"); a(f"s_lshl_b32 s{sRot}, s{sRot}, 2"); a(f"s_lshr_b32 s{T0}, s{T0}, 2"); a(f"s_lshl_b32 s{T0}, s{T0}, 3")
        a(f"s_add_u32 s{sRot}, s{sRot}, s{T0}"); a(f"s_xor_b32 s{T2}, s{T2}, s{T3}"); a(f"s_and_b32 s{T2}, s{T2}, 1"); a(f"s_lshl_b32 s{T2}, s{T2}, 3")
        a(f"s_add_u32 s{sRot}, s{sRot}, s{T2}"); a(f"s_and_b32 s{sRot}, s{sRot}, 15")
    elif mode == 4:
        a(f"s_xor_b32 s{T2}, s{T2}, s{T3}"); a(f"s_and_b32 s{T2}, s{T2}, 1"); a(f"s_lshl_b32 s{sRot}, s{T2}, 3")
        a(f"s_and_b32 s{T0}, s{T0}, 3"); a(f"s_lshl_b32 s{T0}, s{T0}, 1"); a(f"s_add_u32 s{sRot}, s{sRot}, s{T0}"); a(f"s_and_b32 s{sRot}, s{sRot}, 15")
    elif mode == 8:
        a(f"s_add_u32 s{sRot}, s{T0}, s{T2}"); a(f"s_and_b32 s{sRot}, s{sRot}, 3"); a(f"s_lshl_b32 s{sRot}, s{sRot}, 2")
    elif mode == 9:
        a(f"s_add_u32 s{sRot}, s{T0}, s{T2}"); a(f"s_and_b32 s{sRot}, s{sRot}, 1"); a(f"s_lshl_b32 s{sRot}, s{sRot}, 3")
    elif mode == 10:
        a(f"s_add_u32 s{sRot}, s{T0}, s{T2}"); a(f"s_and_b32 s{sRot}, s{sRot}, 7"); a(f"s_lshl_b32 s{sRot}, s{sRot}, 1")
    elif mode == 5:
        a(f"s_and_b32 s{sRot}, s{T0}, 3"); a(f"s_lshl_b32 s{sRot}, s{sRot}, 2")
    elif mode == 6:
        a(f"s_lshl_b32 s{sRot}, s{T2}, 2"); a(f"s_and_b32 s{T0}, s{T0}, 3"); a(f"s_add_u32 s{sRot}, s{sRot}, s{T0}"); a(f"s_and_b32 s{sRot}, s{sRot}, 15")
    elif mode == 7:
        a(f"s_lshl_b32 s{sRot}, s{T3}, 2"); a(f"s_and_b32 s{T0}, s{T0}, 3"); a(f"s_add_u32 s{sRot}, s{sRot}, s{T0}"); a(f"s_and_b32 s{sRot}, s{sRot}, 15")
    else:
        a(f"s_mov_b32 s{sRot}, 0")
    if C.dbgst:
        pass
    a(f"s_cmp_eq_u32 s{sRole}, 1"); a("s_cbranch_scc1 L_ssm")
    v1, l1 = phase1_dense(a)
    v2, l2 = phase2(a, 1)
    a("s_branch L_fin")
    a.label("L_ssm")
    v3, l3 = phase1_ssm(a)
    v4, l4 = phase2(a, 0)
    a.label("L_fin")
    if C.dbgst: emit_stamps(a)
    a.label("L_end")
    a("s_endpgm")
    a.label("L_codeend")
    nv = max(v1, v2, v3, v4); lds = max(l1, l2, l3, l4)
    assert nv <= 250
    if C.codepf or C.tlb: nv = 251
    head = HEADER + f"; @launch grid=(256,1,1) block=(512,1,1) lds={lds}\n"
    head += '.amdgcn_target "amdgcn-amd-amdhsa--gfx950"\n.text\n'
    return head + a.text() + '.section .rodata,"a"\n' + kernel_desc(NAME, nv, 102)

if __name__ == "__main__":
    kw = json.loads(sys.argv[2]) if len(sys.argv) > 2 else {}
    open(sys.argv[1], "w").write(generate(**kw))
```

```python
import sys, math, json
from asmlib import *

NAME = "gated_mix__ssm_conv_s5__dense_activation_squared_relu__prompt_kernel"
L, D, P_, F = 2048, 1024, 1024, 3584
KC = 2048 + F
RS_A2 = KC * 2
KA = dict(x=0, lre=8, lim=16, bre=24, bim=32, cre=40, cim=48, ldt=56, dsk=64, bx=72, w1=80, b1=88, w2=96, b2=104, gw=112, out=120, dbg=128, ws=136)
WS_A2 = 0
WS_G = 24 << 20
WS_AGG = WS_G + (1 << 16)
WS_MB = WS_AGG + (1 << 17)
WS_ST = WS_AGG + (1 << 18)
WS_XB = 32 << 20
WS_SIZE = 268435456
LOG2E = 0x3fb8aa3b
INV2PI = 0x3e22f983
PTR = {k: 40 + v // 4 for k, v in KA.items()}
DBG_LB = 0
DBG_CNT = 16
DBG_XF = 32

class Cfg:
    dbgst = False; rot = 4; nodma = False; noread = False; prefetch = True
    nAd = 24
    nBs = 8
    ns = 4
    delta = 2
    wt = " sc1"
    a2ld = " sc1"
    wto = ""
    spin = 300000
    sleep = 2
    early = True
    endwarm = True
    dearly = True
    fine = True
    dparts = 4
    sparts = 2
    d1p = False
    k2 = 0
    flagit = 3
    dbgout = False
    xbf16 = True
    loop = {}
    inboxit = 18
    initit = 4
    tlb = False
    tlbshift = 21
    codepf = True
    pbar = False
    bulk = False
    pflist = [('w1',0),('x',0),('bre',0),('bim',0),('cre',0),('cim',0),('w2',0)]
    pfit = 13
    span = 1.0
    prio = True
    nbq = 3
    stampset = 'main'
    stwave = 0
C = Cfg()

class Regs:
    def __init__(self, start, limit=256):
        self.n = start; self.limit = limit; self.hi = start
    def get(self, k=1, align=1):
        self.n = (self.n + align - 1) // align * align
        r = self.n; self.n += k
        self.hi = max(self.hi, self.n)
        assert self.n <= self.limit, f"out of registers {self.n} > {self.limit}"
        return r

def srd(a, s, ptr_lo, size):
    if s != ptr_lo:
        a(f"s_mov_b32 s{s}, s{ptr_lo}"); a(f"s_mov_b32 s{s+1}, s{ptr_lo+1}")
    a(f"s_mov_b32 s{s+2}, {size}"); a(f"s_mov_b32 s{s+3}, 0x20000")

_lbl = [0]
def newlabel(p):
    _lbl[0] += 1
    return f"L_{p}{_lbl[0]}"

class OpKC:
    def __init__(self, a, V, T, lds_off, nfr, flags=""):
        self.a, self.T, self.lds_off, self.nfr, self.flags = a, T, lds_off, nfr, flags
        self.n = T // 64
        self.vd = V.get(self.n)
        self.b0 = V.get(); self.c0 = V.get(); self.c1 = V.get()
        self.bytes = T * 128
        self.ldsoffs = [j * 1024 for j in range(self.n)]
    def lane_chunk(self, vdst, t):
        a = self.a
        a(f"v_and_b32 v{vdst}, 7, v0"); a(f"v_lshrrev_b32 v{t}, 4, v0")
        a(f"v_xor_b32 v{vdst}, v{vdst}, v{t}"); a(f"v_lshlrev_b32 v{vdst}, 4, v{vdst}")
    def set_voff(self, j, vlane, sRowBytes, xor64, comp=True):
        a = self.a; d = self.vd + j
        src = vlane
        if xor64 is True:
            a(f"v_xor_b32 v{d}, 64, v{vlane}"); src = d
        elif xor64 is not False:
            a(f"v_xor_b32 v{d}, s{xor64}, v{vlane}"); src = d
        a(f"v_add_u32 v{d}, s{sRowBytes}, v{src}")
    def dma(self, sBuf, sK, stmp, sLds, srds, groups=None):
        g = []
        for grp_i in self.groups:
            for n_, j in enumerate(grp_i):
                grp = []
                if n_ == 0:
                    grp.append(f"s_add_u32 s{stmp}, s{sBuf}, s{sLds}")
                    if self.ldsoffs[j]: grp.append(f"s_add_u32 s{stmp}, s{stmp}, {self.ldsoffs[j]}")
                    grp.append(f"s_mov_b32 m0, s{stmp}")
                    grp.append("s_nop 0")
                off = f" offset:{n_*1024}" if n_ else ""
                s = srds[j]
                grp.append(f"buffer_load_dwordx4 v{self.vd+j}, s[{s}:{s+3}], s{sK} offen{off}{self.flags} lds")
                g.append(grp)
        return g
    def count(self): return (self.n, self.n)
    def setup_read(self, sFrag0, tmp, stmp):
        a = self.a; t0, t1, t2 = tmp, tmp + 1, tmp + 2
        a(f"v_and_b32 v{t0}, 15, v0"); a(f"v_lshrrev_b32 v{t1}, 4, v0"); a(f"v_lshrrev_b32 v{t2}, 1, v{t0}")
        a(f"v_xor_b32 v{t1}, v{t1}, v{t2}"); a(f"v_lshlrev_b32 v{t1}, 4, v{t1}")
        a(f"v_lshl_add_u32 v{t0}, v{t0}, 7, v{t1}")
        a(f"s_lshl_b32 s{stmp}, s{sFrag0}, 11")
        if self.lds_off: a(f"s_add_u32 s{stmp}, s{stmp}, {self.lds_off}")
        a(f"v_add_u32 v{self.b0}, s{stmp}, v{t0}")
    def init_cur(self):
        return [f"v_mov_b32 v{self.c0}, v{self.b0}", f"v_xor_b32 v{self.c1}, 64, v{self.b0}"]
    def frag_off(self, i): return i * 2048
    def reads(self, ks, dst):
        if C.noread: return []
        c = self.c1 if ks else self.c0
        return [[f"ds_read_b128 {vr(dst+4*i,4)}, v{c} offset:{self.frag_off(i)}"] for i in range(self.nfr)]
    def upd_A(self, sBuf): return [f"v_add_u32 v{self.c0}, s{sBuf}, v{self.b0}"]
    def upd_B(self, sBuf): return [f"v_xor_b32 v{self.c1}, 64, v{self.c0}"]

class OpNC:
    def __init__(self, a, V, T, lds_off, nfr, RS, NW=8):
        self.a, self.T, self.lds_off, self.nfr, self.RS = a, T, lds_off, nfr, RS
        self.RP = T * 2; self.CH = self.RP // 16
        self.total = self.CH
        self.n = -(-self.total // NW)
        self.even = (self.total % NW == 0)
        self.nbig = NW if self.even else self.total - (self.n - 1) * NW
        self.vd = V.get(self.n)
        np_ = self.RP // 32
        self.gb = 3 if np_ % 8 == 0 else (2 if np_ % 4 == 0 else 1)
        self.nres = min(1 << self.gb, nfr)
        self.base = V.get(self.nres); self.cur = V.get(self.nres)
        self.bytes = 64 * self.RP
    def g_asm(self, vk, vo, t):
        a = self.a
        if self.gb == 3:
            a(f"v_and_b32 v{vo}, 3, v{vk}"); a(f"v_bfe_u32 v{t}, v{vk}, 3, 1"); a(f"v_lshl_or_b32 v{vo}, v{t}, 2, v{vo}")
        elif self.gb == 2:
            a(f"v_bfe_u32 v{vo}, v{vk}, 1, 1"); a(f"v_bfe_u32 v{t}, v{vk}, 3, 1"); a(f"v_lshl_or_b32 v{vo}, v{t}, 1, v{vo}")
        else:
            a(f"v_bfe_u32 v{vo}, v{vk}, 3, 1")
    def idx0(self, sWave, sOut, stmp):
        a = self.a
        if self.even: a(f"s_mul_i32 s{sOut}, s{sWave}, {self.n}")
        else:
            a(f"s_mul_i32 s{sOut}, s{sWave}, {self.n-1}")
            a(f"s_min_u32 s{stmp}, s{sWave}, {self.nbig}")
            a(f"s_add_u32 s{sOut}, s{sOut}, s{stmp}")
    def setup_dma(self, sWave, tmp, sCol0Bytes, stmp):
        a = self.a; t0, t1, t2, t3 = tmp, tmp + 1, tmp + 2, tmp + 3
        self.idx0(sWave, stmp, stmp + 1)
        magic = (1 << 20) // self.CH + 1
        for L_ in range(self.total * 64 + 64):
            assert (L_ * magic) >> 20 == L_ // self.CH
        for j in range(self.n):
            a(f"s_add_u32 s{stmp+1}, s{stmp}, {j}"); a(f"s_lshl_b32 s{stmp+1}, s{stmp+1}, 6")
            a(f"v_add_u32 v{t0}, s{stmp+1}, v0")
            if self.CH & (self.CH - 1) == 0:
                a(f"v_lshrrev_b32 v{t1}, {int(math.log2(self.CH))}, v{t0}")
                a(f"v_and_b32 v{t0}, {self.CH-1}, v{t0}")
            else:
                a(f"v_mul_u32_u24 v{t1}, {magic}, v{t0}"); a(f"v_lshrrev_b32 v{t1}, 20, v{t1}")
                a(f"v_mul_u32_u24 v{t2}, {self.CH}, v{t1}"); a(f"v_sub_u32 v{t0}, v{t0}, v{t2}")
            self.g_asm(t1, t2, t3)
            a(f"v_lshlrev_b32 v{t2}, 1, v{t2}"); a(f"v_xor_b32 v{t0}, v{t0}, v{t2}")
            a(f"v_mul_u32_u24 v{t1}, {self.RS}, v{t1}")
            a(f"v_lshl_add_u32 v{t0}, v{t0}, 4, v{t1}")
            if j % 4: a(f"s_sub_u32 s{stmp+1}, s{sCol0Bytes}, {(j%4)*1024}"); a(f"v_add_u32 v{self.vd+j}, s{stmp+1}, v{t0}")
            else: a(f"v_add_u32 v{self.vd+j}, s{sCol0Bytes}, v{t0}")
    def setup_lds(self, sWave, sLds, stmp):
        self.idx0(sWave, sLds, stmp)
        self.a(f"s_lshl_b32 s{sLds}, s{sLds}, 10")
        if self.lds_off: self.a(f"s_add_u32 s{sLds}, s{sLds}, {self.lds_off}")
    def dma(self, sBuf, sK, stmp, sLds, srds, sWave=None):
        g = []
        s = srds
        for j in range(self.n):
            grp = []
            guard = (not self.even) and j == self.n - 1
            if guard:
                lbl = newlabel("ncs")
                grp += [f"s_cmp_lt_u32 s{sWave}, {self.nbig}", f"s_cbranch_scc0 {lbl}"]
            if j % 4 == 0:
                grp.append(f"s_add_u32 s{stmp}, s{sBuf}, s{sLds}")
                if j: grp.append(f"s_add_u32 s{stmp}, s{stmp}, {j*1024}")
                grp += [f"s_mov_b32 m0, s{stmp}", "s_nop 0"]
            off = f" offset:{(j%4)*1024}" if j % 4 else ""
            grp.append(f"buffer_load_dwordx4 v{self.vd+j}, s[{s}:{s+3}], s{sK} offen{off} lds")
            if guard: grp.append(f"{lbl}:")
            g.append(grp)
        return g
    def count(self): return (self.n if self.even else self.n - 1, self.n)
    def setup_read(self, sFrag0, tmp, stmp):
        a = self.a; t0, t1, t2 = tmp, tmp + 1, tmp + 2
        a(f"v_lshrrev_b32 v{t0}, 4, v0"); a(f"v_lshlrev_b32 v{t0}, 3, v{t0}")
        a(f"v_bfe_u32 v{t1}, v0, 2, 2"); a(f"v_add_u32 v{t0}, v{t0}, v{t1}")
        self.g_asm(t0, t1, t2)
        a(f"v_mul_u32_u24 v{t0}, {self.RP}, v{t0}")
        a(f"v_and_b32 v{t2}, 3, v0"); a(f"v_lshl_add_u32 v{t0}, v{t2}, 3, v{t0}")
        if self.lds_off: a(f"v_add_u32 v{t0}, {self.lds_off}, v{t0}")
        for r in range(self.nres):
            a(f"s_add_u32 s{stmp}, s{sFrag0}, {r}")
            a(f"v_xor_b32 v{t2}, s{stmp}, v{t1}")
            if r: a(f"v_subrev_u32 v{t2}, {r}, v{t2}")
            a(f"v_lshl_add_u32 v{self.base+r}, v{t2}, 5, v{t0}")
    def init_cur(self):
        return [f"v_mov_b32 v{self.cur+r}, v{self.base+r}" for r in range(self.nres)]
    def reads(self, ks, dst):
        if C.noread: return []
        g = []
        for i in range(self.nfr):
            r = i % (1 << self.gb)
            for h in range(2):
                off = 32 * i + (4 * h + 32 * ks) * self.RP
                g.append([f"ds_read_b64_tr_b16 {vr(dst+4*i+2*h,2)}, v{self.cur+r} offset:{off}"])
        return g
    def upd_A(self, sBuf): return [f"v_add_u32 v{self.cur+r}, s{sBuf}, v{self.base+r}" for r in range(self.nres)]
    def upd_B(self, sBuf): return []

class Seg:
    def __init__(self, P, Q, acc, Pdma, Qdma, kadvP, kadvQ, name):
        self.P, self.Q, self.acc, self.Pdma, self.Qdma, self.kadvP, self.kadvQ, self.name = P, Q, acc, Pdma, Qdma, kadvP, kadvQ, name
        self.xdma = []

class Gemm:
    def __init__(self, a, V, NBP, NBQ, SP, SQ, mp, mq, regs, joint, early=None, name="x"):
        self.a, self.NBP, self.NBQ, self.SP, self.SQ, self.mp, self.mq, self.joint = a, NBP, NBQ, SP, SQ, mp, mq, joint
        o = dict(span=C.span, prio=C.prio, dmapos="merge", order="i")
        o.update(C.loop.get(name, {}))
        self.opt = o
        self.sDP, self.sRP, self.sDQ, self.sRQ, self.sCnt, self.sE = regs
        if joint: self.sDQ, self.sRQ = self.sDP, self.sRP
        self.early = early if C.early else None
        self.leadP = NBP - (1 if self.early == 'P' else 0)
        self.leadQ = NBQ - (1 if self.early == 'Q' else 0)
        self.F = []
        for s in range(2):
            p = V.get(4 * mp, 2); q = V.get(4 * mq, 2)
            self.F.append((p, q))
        self.vmq = []
        self.zero_first = False
    def emit(self, lines):
        for x in lines:
            if x.endswith(":"): self.a.label(x[:-1])
            else: self.a(x)
    def note(self, tag, n): self.vmq.append((tag, n))
    def vm_allow(self, need):
        last = -1
        for i, (t, n) in enumerate(self.vmq):
            if t in need: last = i
        return min(63, sum(n for t, n in self.vmq[last + 1:]))
    def reads(self, seg, ks, fs):
        p, q = self.F[fs]
        return merge(seg.P.reads(ks, p), seg.Q.reads(ks, q))
    def mfmas(self, seg, fs, zero=False):
        p, q = self.F[fs]
        ij = [(i, j) for i in range(self.mp) for j in range(self.mq)]
        if self.opt["order"] == "j": ij = [(i, j) for j in range(self.mq) for i in range(self.mp)]
        st = getattr(self, "acc_stride", 4 * self.mq)
        return [f"v_mfma_f32_16x16x32_bf16 {vr(c,4)}, {vr(p+4*i,4)}, {vr(q+4*j,4)}, {'0' if zero else vr(c,4)}"
                for (i, j) in ij for c in [seg.acc + st * i + 4 * j]]
    def spread(self, main, fill):
        n = len(main); k = len(fill)
        if k == 0: return list(main)
        span = max(1, min(n, int(n * self.opt['span'])))
        out = []; fi = 0
        for i, m in enumerate(main):
            out.append(m)
            while fi < k and (fi * span) // k <= i:
                out.extend(fill[fi]); fi += 1
        while fi < k: out.extend(fill[fi]); fi += 1
        return out
    def mix(self, reads, dma):
        m = self.opt["dmapos"]
        if m == "first": return dma + reads
        if m == "last": return reads + dma
        return merge(reads, dma)
    def ring_adv(self, sD, sR, stride, nb):
        return [f"s_mov_b32 s{sD}, s{sR}", f"s_add_u32 s{sR}, s{sR}, {stride}", f"s_cmp_eq_u32 s{sR}, {stride*nb}", f"s_cselect_b32 s{sR}, 0, s{sR}"]
    def advance(self):
        out = []
        if self.early: out.append(f"s_mov_b32 s{self.sE}, s{self.sDP if (self.joint or self.early == 'P') else self.sDQ}")
        if self.joint: return out + self.ring_adv(self.sDP, self.sRP, self.SP + self.SQ, self.NBP)
        return out + self.ring_adv(self.sDP, self.sRP, self.SP, self.NBP) + self.ring_adv(self.sDQ, self.sRQ, self.SQ, self.NBQ)
    def dma_list(self, which, seg, sBuf):
        if seg is None or C.nodma: return []
        if which == 'P': return seg.Pdma(sBuf) + [list(seg.kadvP)]
        return seg.Qdma(sBuf) + [list(seg.kadvQ)] + seg.xdma
    def body(self, cur, nxt, dP, dQ, vmw, pre_barrier=None, extra=None, zero=False):
        a = self.a
        self.emit(self.advance())
        a("s_waitcnt lgkmcnt(0)")
        fill = self.reads(cur, 1, 1)
        if nxt is not None: fill.append(nxt.P.upd_A(self.sRP) + nxt.Q.upd_A(self.sRQ))
        if self.early == 'P': fill = self.mix(fill, self.dma_list('P', dP, self.sE))
        if self.early == 'Q': fill = self.mix(fill, self.dma_list('Q', dQ, self.sE))
        if nxt is None and extra: fill = fill + extra
        self.emit(self.spread(self.mfmas(cur, 0, zero), fill))
        if nxt is None:
            a("s_waitcnt lgkmcnt(0)")
            self.emit(self.mfmas(cur, 1))
            return
        if pre_barrier: pre_barrier()
        a(f"s_waitcnt vmcnt({vmw}) lgkmcnt(0)")
        a("s_barrier")
        if self.opt["prio"]: a("s_setprio 1")
        fill = self.reads(nxt, 0, 0)
        d = []
        if self.early != 'P': d += self.dma_list('P', dP, self.sDP)
        if self.early != 'Q': d += self.dma_list('Q', dQ, self.sDQ)
        fill = self.mix(fill, d)
        u = nxt.P.upd_B(self.sRP) + nxt.Q.upd_B(self.sRQ)
        if u: fill.append(u)
        if extra: fill = fill + extra
        self.emit(self.spread(self.mfmas(cur, 1), fill))
        if self.opt["prio"]: a("s_setprio 0")
    def prologue(self, stages, which="PQ", first=0, last=None):
        a = self.a
        stride = self.SP + self.SQ if self.joint else None
        if first == 0:
            a(f"s_mov_b32 s{self.sDP}, 0")
            if not self.joint: a(f"s_mov_b32 s{self.sDQ}, 0")
        for s in range(first, max(self.leadP, self.leadQ) if last is None else last):
            if "P" in which and s < self.leadP:
                for g in stages[s].Pdma(self.sDP): self.emit(g)
                self.emit(stages[s].kadvP); self.note(('P', s), stages[s].P.count()[0])
                if not self.joint: a(f"s_add_u32 s{self.sDP}, s{self.sDP}, {self.SP}")
            if "Q" in which and s < self.leadQ:
                for g in stages[s].Qdma(self.sDQ): self.emit(g)
                self.emit(stages[s].kadvQ); self.note(('Q', s), stages[s].Q.count()[0])
                if not self.joint: a(f"s_add_u32 s{self.sDQ}, s{self.sDQ}, {self.SQ}")
            if self.joint: a(f"s_add_u32 s{self.sDP}, s{self.sDP}, {stride}")
    def run(self, stages, hooks=None, extras=None, post_first=None):
        a = self.a; N = len(stages)
        hooks = hooks or {}; extras = extras or {}
        a(f"s_waitcnt vmcnt({self.vm_allow({('P',0),('Q',0)})})")
        if getattr(self, "pre_first", None): self.pre_first()
        a("s_barrier")
        if post_first: post_first()
        seen = []
        for sg in stages:
            for op in (sg.P, sg.Q):
                if op not in seen: seen.append(op); self.emit(op.init_cur())
        if self.joint:
            a(f"s_mov_b32 s{self.sRP}, 0"); a(f"s_mov_b32 s{self.sDP}, {(self.SP+self.SQ)*(self.NBP-1)}")
        else:
            a(f"s_mov_b32 s{self.sRP}, 0"); a(f"s_mov_b32 s{self.sDP}, {self.SP*(self.NBP-1)}")
            a(f"s_mov_b32 s{self.sRQ}, 0"); a(f"s_mov_b32 s{self.sDQ}, {self.SQ*(self.NBQ-1)}")
        for g in self.reads(stages[0], 0, 0): self.emit(g)
        sigs = []; seen_acc = set()
        for i in range(N):
            nxt = stages[i + 1] if i + 1 < N else None
            dP = stages[i + self.leadP] if i + self.leadP < N else None
            dQ = stages[i + self.leadQ] if i + self.leadQ < N else None
            def noteP():
                if dP is not None: self.note(('P', i + self.leadP), dP.P.count()[0])
            def noteQ():
                if dQ is not None:
                    self.note(('Q', i + self.leadQ), dQ.Q.count()[0])
                    if dQ.xdma: self.note(('PF', i), len(dQ.xdma))
            if self.early == 'P': noteP()
            if self.early == 'Q': noteQ()
            vmw = self.vm_allow({('P', i + 1), ('Q', i + 1)}) if nxt is not None else 0
            if i in getattr(self, "want_allow", {}):
                if not hasattr(self, "allow_at"): self.allow_at = {}
                self.allow_at[i] = self.vm_allow({self.want_allow[i]})
            if self.early != 'P': noteP()
            if self.early != 'Q': noteQ()
            if i in extras: self.note(('X', i), extras[i][1])
            zero = self.zero_first and stages[i].acc not in seen_acc
            seen_acc.add(stages[i].acc)
            sigs.append((stages[i], nxt, dP, dQ, vmw, i if (i in hooks or i in extras or zero) else -1, zero))
        i = 0
        while i < N:
            j = i
            while j < N and sigs[j] == sigs[i]: j += 1
            cnt = j - i
            cur, nxt, dP, dQ, vmw, sp, zero = sigs[i]
            hk = hooks.get(sp); ex = extras[sp][0] if sp in extras else None
            if cnt >= 2:
                lbl = newlabel("gl")
                a(f"s_mov_b32 s{self.sCnt}, {cnt}")
                a.label(lbl)
                self.body(cur, nxt, dP, dQ, vmw)
                a(f"s_sub_u32 s{self.sCnt}, s{self.sCnt}, 1"); a(f"s_cmp_lg_u32 s{self.sCnt}, 0"); a(f"s_cbranch_scc1 {lbl}")
            else:
                self.body(cur, nxt, dP, dQ, vmw, hk, ex, zero)
            i = j

def merge(x, y):
    out = []; i = j = 0
    while i < len(x) or j < len(y):
        if j >= len(y) or (i < len(x) and i * len(y) <= j * len(x)): out.append(x[i]); i += 1
        else: out.append(y[j]); j += 1
    return out

def bf16_round(a, vdst, vsrc):
    a(f"v_cvt_pk_bf16_f32 v{vdst}, v{vsrc}, v{vsrc}"); a(f"v_lshlrev_b32 v{vdst}, 16, v{vdst}")

def stamp(a, idx, real=False, st="main"):
    if C.dbgst and st == C.stampset:
        a("s_memrealtime s[88:89]" if real else "s_memtime s[88:89]")
        a("s_waitcnt lgkmcnt(0)")
        a(f"s_mov_b32 s{92+idx}, s88")

sWave, sM, sN, sRole = 28, 29, 30, 31
sBufD, sBufR, sCnt, sTmp, sKP, sKQ, sLdsP, sLdsQ = 32, 33, 34, 35, 36, 37, 38, 39
sWp, sWq, sRot, sLdsP2, sKP2, sTile, sTt, sDt = 80, 81, 82, 83, 84, 85, 86, 87
SX, SA, SB_, SWS, SDBG, SS = 4, 8, 12, 16, 20, 24
T0, T1, T2, T3 = 76, 77, 78, 79
U0, U1, U2, U3 = 88, 89, 90, 91
VT = 2

def ssm_param_loads(a, vch, t):
    a(f"v_lshlrev_b32 v{t}, 1, v{vch}")
    for k, name in enumerate(("lre", "lim", "ldt")):
        srd(a, SS, PTR[name], 2048)
        a(f"buffer_load_ushort v{t+1+k}, v{t}, s[{SS}:{SS+3}], 0 offen")

def ssm_params_compute(a, out, t, want_kappa=True):
    lre, lim, ldt = t + 1, t + 2, t + 3
    x0, x1, x2, x3 = t + 4, t + 5, t + 6, t + 7
    lr, li, kr, ki = out, out + 1, out + 2, out + 3
    for r in (lre, lim, ldt): a(f"v_lshlrev_b32 v{r}, 16, v{r}")
    a(f"v_mul_f32 v{x0}, {LOG2E:#x}, v{ldt}"); a(f"v_exp_f32 v{x0}, v{x0}"); a("s_nop 0")
    bf16_round(a, x0, x0)
    a(f"v_mul_f32 v{x1}, v{x0}, v{lre}"); a(f"v_mul_f32 v{x2}, v{x0}, v{lim}")
    a(f"v_mul_f32 v{x1}, {LOG2E:#x}, v{x1}"); a(f"v_exp_f32 v{x1}, v{x1}")
    a(f"v_mul_f32 v{x2}, {INV2PI:#x}, v{x2}"); a(f"v_rndne_f32 v{x3}, v{x2}"); a(f"v_sub_f32 v{x2}, v{x2}, v{x3}")
    a(f"v_cos_f32 v{x3}, v{x2}"); a(f"v_sin_f32 v{x2}, v{x2}"); a("s_nop 0")
    a(f"v_mul_f32 v{lr}, v{x1}, v{x3}"); a(f"v_mul_f32 v{li}, v{x1}, v{x2}")
    if want_kappa:
        a(f"v_subrev_f32 v{x0}, 1.0, v{lr}")
        a(f"v_mul_f32 v{x1}, v{x0}, v{lre}"); a(f"v_fmac_f32 v{x1}, v{li}, v{lim}")
        a(f"v_mul_f32 v{x2}, v{li}, v{lre}"); a(f"v_fma_f32 v{x2}, -v{x0}, v{lim}, v{x2}")
        a(f"v_mul_f32 v{x3}, v{lre}, v{lre}"); a(f"v_fmac_f32 v{x3}, v{lim}, v{lim}")
        a(f"v_rcp_f32 v{x3}, v{x3}"); a("s_nop 0")
        a(f"v_add_f32 v{x3}, v{x3}, v{x3}")
        a(f"v_mul_f32 v{kr}, v{x1}, v{x3}"); a(f"v_mul_f32 v{ki}, v{x2}, v{x3}")

def csq(a, dr, di, sr_, si, t):
    a(f"v_mul_f32 v{t}, v{sr_}, v{si}"); a(f"v_mul_f32 v{dr}, v{sr_}, v{sr_}")
    a(f"v_fma_f32 v{dr}, -v{si}, v{si}, v{dr}"); a(f"v_add_f32 v{di}, v{t}, v{t}")

def gate_row_loads(a, sRow, vx, t):
    a(f"s_lshl_b32 s{U1}, s{sRow}, 11")
    a(f"buffer_load_dwordx4 {vr(vx,4)}, v{t}, s[{SX}:{SX+3}], s{U1} offen")
    a(f"buffer_load_dwordx4 {vr(vx+4,4)}, v{t}, s[{SX}:{SX+3}], s{U1} offen offset:16")

def gate_compute(a, sRow, vx, vw, t):
    acc = t; p0, p1, q0, q1 = t + 1, t + 2, t + 3, t + 4
    a(f"v_mov_b32 v{acc}, 0")
    for d in range(8):
        a(f"v_lshlrev_b32 v{p0}, 16, v{vx+d}"); a(f"v_and_b32 v{p1}, 0xffff0000, v{vx+d}")
        a(f"v_lshlrev_b32 v{q0}, 16, v{vw+d}"); a(f"v_and_b32 v{q1}, 0xffff0000, v{vw+d}")
        a(f"v_mul_f32 v{p0}, v{p0}, v{q0}"); a(f"v_mul_f32 v{p1}, v{p1}, v{q1}")
        a(f"v_cvt_pk_bf16_f32 v{p0}, v{p0}, v{p1}")
        a(f"v_and_b32 v{p1}, 0xffff0000, v{p0}"); a(f"v_lshlrev_b32 v{p0}, 16, v{p0}")
        a(f"v_add_f32 v{acc}, v{acc}, v{p0}"); a(f"v_add_f32 v{acc}, v{acc}, v{p1}")
    for sh in (1, 2, 4, 8):
        a("s_nop 1")
        a(f"v_add_f32_dpp v{acc}, v{acc}, v{acc} row_shr:{sh} row_mask:0xf bank_mask:0xf bound_ctrl:0")
    a("s_nop 1")
    a(f"v_add_f32_dpp v{acc}, v{acc}, v{acc} row_bcast:15 row_mask:0xa bank_mask:0xf")
    a("s_nop 1")
    a(f"v_add_f32_dpp v{acc}, v{acc}, v{acc} row_bcast:31 row_mask:0xc bank_mask:0xf")
    a("s_nop 1")
    a(f"v_readlane_b32 s{U0}, v{acc}, 63")
    a("s_nop 1")
    a(f"v_mov_b32 v{acc}, s{U0}")
    bf16_round(a, acc, acc)
    a(f"v_mul_f32 v{p0}, {LOG2E ^ 0x80000000:#x}, v{acc}"); a(f"v_exp_f32 v{p0}, v{p0}"); a("s_nop 0")
    a(f"v_add_f32 v{p0}, 1.0, v{p0}"); a(f"v_rcp_f32 v{p0}, v{p0}"); a("s_nop 0")
    bf16_round(a, p0, p0)
    a(f"v_sub_f32 v{p1}, 1.0, v{p0}")
    bf16_round(a, p1, p1)
    a(f"s_lshl_b32 s{U0}, s{sRow}, 3"); a(f"s_add_u32 s{U0}, s{U0}, {WS_G}")
    a(f"v_cmp_eq_u32 vcc, 0, v0"); a("s_nop 1")
    a(f"v_cndmask_b32 v{p0}, v{p1}, v{p0}, vcc")
    a(f"v_lshlrev_b32 v{q0}, 2, v0")
    a("s_mov_b64 exec, 3")
    a(f"buffer_store_dword v{p0}, v{q0}, s[{SWS}:{SWS+3}], s{U0} offen sc1")
    a("s_mov_b64 exec, -1")

SENT = 0xffffffff
def inbox_offset(a, sdst):
    a(f"s_lshl_b32 s{sdst}, s2, 3"); a(f"s_add_u32 s{sdst}, s{sdst}, s{sWave}"); a(f"s_mul_i32 s{sdst}, s{sdst}, {4096*(C.ns-1)}")
    a(f"s_add_u32 s{sdst}, s{sdst}, {WS_XB}")

def mb_zero_groups(vt, ssm=False):
    c = []
    q = (vt + 1) // 2 * 2
    sk = newlabel("mz")
    c += [f"s_cmp_lg_u32 s{sWave}, 0", f"s_cbranch_scc1 {sk}"]
    if ssm:
        c += [f"v_mov_b32 v{q}, -1", f"v_mov_b32 v{q+1}, -1",
              f"s_lshl_b32 s{U0}, s{sN}, 6", f"v_add_u32 v{q+4}, s{U0}, v0", f"v_lshlrev_b32 v{q+4}, 3, v{q+4}",
              f"s_lshl_b32 s{U0}, s{sM}, 13", f"s_add_u32 s{U0}, s{U0}, {WS_AGG}",
              f"buffer_store_dwordx2 {vr(q,2)}, v{q+4}, s[{SWS}:{SWS+3}], s{U0} offen sc1"]
    c += [f"v_mov_b32 v{q+2}, 0", f"v_lshlrev_b32 v{q+4}, 2, v0", f"s_lshl_b32 s{U0}, s2, 8", f"s_add_u32 s{U0}, s{U0}, {WS_MB}",
          f"buffer_store_dword v{q+2}, v{q+4}, s[{SWS}:{SWS+3}], s{U0} offen sc1", f"{sk}:"]
    return [c], 0

def inbox_init(a, vt):
    for r in range(4): a(f"v_mov_b32 v{vt+r}, -1")
    a(f"v_lshlrev_b32 v{vt+4}, 4, v0")
    inbox_offset(a, U0)
    for i in range(4 * (C.ns - 1)):
        a(f"buffer_store_dwordx4 {vr(vt,4)}, v{vt+4}, s[{SWS}:{SWS+3}], s{U0} offen offset:{(i%4)*1024} sc1")
        if i % 4 == 3: a(f"s_add_u32 s{U0}, s{U0}, 4096")

def init_signal(a, vt, idx=0, guard=True):
    sk = newlabel("mi")
    if guard: a(f"s_cmp_lg_u32 s{sWave}, 0"); a(f"s_cbranch_scc1 {sk}")
    a(f"v_mov_b32 v{vt}, 1"); a(f"v_mov_b32 v{vt+1}, {4*idx}")
    a("s_mov_b64 exec, 1")
    a(f"buffer_atomic_add v{vt}, v{vt+1}, s[{SDBG}:{SDBG+3}], 0 offen sc1")
    a("s_mov_b64 exec, -1")
    a.label(sk)

def poll(a, srd_, sByteOff, check, vt, wide=1, sleep=None):
    lp, ok = newlabel("poll"), newlabel("pok")
    a(f"v_mov_b32 v{vt+4}, s{sByteOff}")
    a(f"s_mov_b32 s{U2}, {C.spin}")
    a.label(lp)
    a(f"s_sub_u32 s{U2}, s{U2}, 1"); a(f"s_cmp_eq_u32 s{U2}, 0"); a(f"s_cbranch_scc1 {ok}")
    op = {1: "dword", 2: "dwordx2", 4: "dwordx4"}[wide]
    a(f"buffer_load_{op} {vr(vt,wide)}, v{vt+4}, s[{srd_}:{srd_+3}], 0 offen sc1")
    a("s_waitcnt vmcnt(0)")
    a(f"v_readfirstlane_b32 s{U0}, v{vt}")
    if wide >= 2: a(f"v_readfirstlane_b32 s{U1}, v{vt+1}")
    if wide >= 4: a(f"v_readfirstlane_b32 s{U3}, v{vt+2}")
    a("s_nop 3")
    check(ok)
    a(f"s_sleep {C.sleep if sleep is None else sleep}")
    a(f"s_branch {lp}")
    a.label(ok)

VINIT = 1
def init_load(a, idx=0):
    sk = newlabel("il")
    a(f"s_cmp_lg_u32 s{sWave}, 0"); a(f"s_cbranch_scc1 {sk}")
    a(f"v_mov_b32 v{VINIT}, {4*idx}")
    a(f"buffer_load_dword v{VINIT}, v{VINIT}, s[{SDBG}:{SDBG+3}], 0 offen sc1")
    a.label(sk)

def init_check(a, vt, idx=0):
    ok = newlabel("ic")
    a(f"v_readfirstlane_b32 s{U0}, v{VINIT}"); a("s_nop 3")
    a(f"s_cmp_ge_u32 s{U0}, 256"); a(f"s_cbranch_scc1 {ok}")
    a(f"s_mov_b32 s{T3}, {4*idx}")
    def chk(o): a(f"s_cmp_ge_u32 s{U0}, 256"); a(f"s_cbranch_scc1 {o}")
    poll(a, SDBG, T3, chk, vt, sleep=32)
    a.label(ok)

def poll_own(a, check, vt):
    a(f"s_lshl_b32 s{T3}, s2, 8"); a(f"s_add_u32 s{T3}, s{T3}, {WS_MB}")
    poll(a, SWS, T3, check, vt, wide=4)

def signal_cnt(a, dword, vt):
    NS = C.ns; XS = 8 // NS
    l, t1, t2 = vt, vt + 1, vt + 2
    t3 = vt + 3
    if NS == 2:
        a(f"v_bfe_u32 v{t1}, v0, 3, 1"); a(f"s_lshl_b32 s{T0}, s{sM}, 1"); a(f"v_add_u32 v{t1}, s{T0}, v{t1}")
        a(f"v_bfe_u32 v{t3}, v0, 4, 1")
    else:
        a(f"v_mov_b32 v{t1}, s{sM}")
        a(f"v_bfe_u32 v{t3}, v0, 3, 2")
    a(f"v_lshrrev_b32 v{t2}, 2, v{t1}"); a(f"v_mad_u32_u24 v{t2}, v{t3}, {XS}, v{t2}")
    a(f"v_and_b32 v{t1}, 3, v{t1}"); a(f"v_lshlrev_b32 v{t1}, 2, v{t1}")
    a(f"v_and_b32 v{l}, 3, v0"); a(f"v_or_b32 v{t1}, v{t1}, v{l}")
    a(f"v_bfe_u32 v{l}, v0, 2, 1"); a(f"v_and_b32 v{t3}, 1, v{t3}"); a(f"v_xor_b32 v{l}, v{l}, v{t3}"); a(f"v_xor_b32 v{l}, 1, v{l}")
    a(f"v_lshl_or_b32 v{t1}, v{l}, 4, v{t1}")
    a(f"v_lshl_or_b32 v{t1}, v{t1}, 3, v{t2}")
    a(f"v_lshlrev_b32 v{t1}, 8, v{t1}")
    if dword == "S" and C.fine and NS == 4:
        a(f"s_and_b32 s{T0}, s{sN}, 7"); a(f"s_lshl_b32 s{T0}, 1, s{T0}"); a(f"v_mov_b32 v{l}, s{T0}")
    else:
        a(f"v_mov_b32 v{l}, 1")
    if dword == "S":
        a(f"s_lshr_b32 s{T0}, s{sN}, 3"); a(f"s_lshl_b32 s{T0}, s{T0}, 2"); a(f"s_add_u32 s{T0}, s{T0}, {WS_MB}")
    else:
        a(f"s_mov_b32 s{T0}, {WS_MB + 4*dword}")
    a("s_mov_b32 exec_hi, 0")
    a(f"buffer_atomic_add v{l}, v{t1}, s[{SWS}:{SWS+3}], s{T0} offen sc1")
    a("s_mov_b64 exec, -1")

def bulk_prefetch(a, G, vdummy, vaddr):
    a(f"v_lshlrev_b32 v{vaddr}, 4, v0")
    n = 0
    for name, size in C.pflist:
        size = {"x": L*D*2, "w1": D*F*2, "bre": P_*D*2, "bim": P_*D*2, "cre": D*P_*2, "cim": D*P_*2, "w2": F*D*2}[name]
        share = size // 256; pw = share // 8
        a(f"s_mul_i32 s{U0}, s2, {share}"); a(f"s_mul_i32 s{U1}, s{sWave}, {pw}"); a(f"s_add_u32 s{U0}, s{U0}, s{U1}")
        a(f"s_mov_b32 s{SS}, s{PTR[name]}"); a(f"s_mov_b32 s{SS+1}, s{PTR[name]+1}")
        a(f"s_add_u32 s{SS+2}, s{U0}, {pw}"); a(f"s_mov_b32 s{SS+3}, 0x20000")
        for i in range(-(-pw // 1024)):
            a(f"buffer_load_dwordx4 {vr(vdummy,4)}, v{vaddr}, s[{SS}:{SS+3}], s{U0} offen offset:{i*1024}")
            n += 1
    G.note('pf', n)

def tlb_warm(a, vdummy, vaddr, names, tsrd):
    sizes = {"w2": F*D*2, "cre": D*P_*2, "cim": D*P_*2, "out": L*D*4, "lre": 2048, "lim": 2048, "ldt": 2048, "dsk": 2048, "b2": 2048, "gw": 2048}
    a(f"v_lshlrev_b32 v{vaddr}, {C.tlbshift}, v0")
    end = newlabel("tw")
    for w in range(8):
        nx = newlabel("tw")
        a(f"s_cmp_lg_u32 s{sWave}, {w}"); a(f"s_cbranch_scc1 {nx}")
        for name in names[w::8]:
            if name == "ws":
                a("s_mov_b32 exec_lo, 0x00ffffff"); a("s_mov_b32 exec_hi, 0")
                a(f"buffer_load_dword v{vdummy}, v{vaddr}, s[{SWS}:{SWS+3}], 0 offen")
                a("s_mov_b64 exec, -1")
            elif name == "dbg":
                a(f"buffer_load_dword v{vdummy}, v{vaddr}, s[{SDBG}:{SDBG+3}], 0 offen")
            else:
                a(f"s_mov_b32 s{tsrd}, s{PTR[name]}"); a(f"s_mov_b32 s{tsrd+1}, s{PTR[name]+1}"); a(f"s_mov_b32 s{tsrd+2}, {sizes[name]}"); a(f"s_mov_b32 s{tsrd+3}, 0x20000")
                a(f"buffer_load_dword v{vdummy}, v{vaddr}, s[{tsrd}:{tsrd+3}], 0 offen")
        a(f"s_branch {end}")
        a.label(nx)
    a.label(end)

def phase1_dense(a):
    V = Regs(10)
    TP, TQ = 224, 256
    mp, mq = 7, 4
    Pop = OpNC(a, V, TP, 0, mp, F * 2)
    NBP, NBQ = (3, 2) if C.d1p else (2, 3)
    Qop = OpKC(a, V, TQ, NBP * Pop.bytes, mq); Qop.groups = [[0, 1, 2, 3]]
    G = Gemm(a, V, NBP, NBQ, Pop.bytes, Qop.bytes, mp, mq, (sBufD, sBufR, sTile, sTt, sCnt, sRole), False, 'P' if C.d1p else 'Q', 'd1')
    LDS1 = NBP * Pop.bytes + NBQ * Qop.bytes
    acc = V.get(4 * mp * mq, 2)
    vb = V.get(2 * mp, 2); vdum = V.get(4, 2)
    a(f"s_lshr_b32 s{sWp}, s{sWave}, 2"); a(f"s_and_b32 s{sWq}, s{sWave}, 3")
    a(f"s_mul_i32 s{T0}, s{sN}, {TP*2}")
    Pop.setup_dma(sWave, VT, T0, U0)
    Qop.lane_chunk(VT, VT + 1)
    a(f"v_lshrrev_b32 v{VT+1}, 3, v0"); a(f"v_lshl_add_u32 v{VT}, v{VT+1}, 11, v{VT}")
    for j in range(4):
        a(f"s_lshl_b32 s{T0}, s{sM}, 8"); a(f"s_lshl_b32 s{T1}, s{sWave}, 5"); a(f"s_add_u32 s{T0}, s{T0}, s{T1}")
        a(f"s_add_u32 s{T0}, s{T0}, {8*j}"); a(f"s_lshl_b32 s{T0}, s{T0}, 11"); a(f"s_sub_u32 s{T0}, s{T0}, {j*1024}")
        Qop.set_voff(j, VT, T0, bool(j & 1))
    Pop.setup_lds(sWave, sLdsP, U0)
    a(f"s_lshl_b32 s{sLdsQ}, s{sWave}, 12"); a(f"s_add_u32 s{sLdsQ}, s{sLdsQ}, {Qop.lds_off}")
    a(f"s_mul_i32 s{sKP}, s{sRot}, {64*F*2}"); a(f"s_lshl_b32 s{sKQ}, s{sRot}, 7")
    a("s_waitcnt lgkmcnt(0)")
    stamp(a, 1, st="pro")
    srd(a, SX, PTR["x"], L * D * 2); srd(a, SWS, PTR["ws"], WS_SIZE); srd(a, SDBG, PTR["dbg"], 256)
    srd(a, SA, PTR["w1"], D * F * 2)
    kadvP = [f"s_add_u32 s{sKP}, s{sKP}, {64*F*2}", f"s_cmp_eq_u32 s{sKP}, {D*F*2}", f"s_cselect_b32 s{sKP}, 0, s{sKP}"]
    kadvQ = [f"s_add_u32 s{sKQ}, s{sKQ}, 128", f"s_and_b32 s{sKQ}, s{sKQ}, 2047"]
    seg = Seg(Pop, Qop, acc, lambda b: Pop.dma(b, sKP, sTmp, sLdsP, SA, sWave), lambda b: Qop.dma(b, sKQ, sTmp, sLdsQ, [SX] * 4), kadvP, kadvQ, "d1")
    stages = [seg] * 16
    G.prologue(stages, "PQ", 0, 1)
    if C.pbar: a("s_barrier")
    if C.tlb: tlb_warm(a, 250, VT + 5, ["ws", "w2", "cre", "cim", "out", "dbg", "dsk", "b2"], SS); G.note('tlb', 1)
    stamp(a, 2, st="pro")
    a(f"s_mul_i32 s{T2}, s{sN}, {TP}"); a(f"s_mul_i32 s{T3}, s{sWp}, {mp*16}"); a(f"s_add_u32 s{T2}, s{T2}, s{T3}")
    a(f"s_lshl_b32 s{T3}, s{T2}, 1")
    a(f"v_lshrrev_b32 v{VT+2}, 4, v0"); a(f"v_lshlrev_b32 v{VT+2}, 3, v{VT+2}")
    srd(a, SS, PTR["b1"], F * 2)
    for i in range(mp):
        a(f"buffer_load_dwordx2 {vr(vb+2*i,2)}, v{VT+2}, s[{SS}:{SS+3}], s{T3} offen offset:{32*i}")
    G.note('misc', mp)
    a(f"s_mul_i32 s{T0}, s{sWp}, {mp}"); Pop.setup_read(T0, VT, U0)
    a(f"s_mul_i32 s{T0}, s{sWq}, {mq}"); Qop.setup_read(T0, VT, U0)
    stamp(a, 3, st="pro")
    G.prologue(stages, "PQ", 1)
    stamp(a, 4, st="pro")
    a(f"s_waitcnt vmcnt({G.vm_allow({'misc'})})")
    for i in range(mp):
        c = acc + 4 * (i * mq)
        a(f"v_lshlrev_b32 v{c}, 16, v{vb+2*i}"); a(f"v_and_b32 v{c+1}, 0xffff0000, v{vb+2*i}")
        a(f"v_lshlrev_b32 v{c+2}, 16, v{vb+2*i+1}"); a(f"v_and_b32 v{c+3}, 0xffff0000, v{vb+2*i+1}")
        for j in range(1, mq):
            for r in range(4): a(f"v_mov_b32 v{c+4*j+r}, v{c+r}")
    stamp(a, 1)
    G.pre_first = lambda: stamp(a, 5, st="pro")
    G.run(stages, {C.initit + 3: (lambda: init_signal(a, VT + 4))}, {C.initit: mb_zero_groups(VT + 2)}, (lambda: stamp(a, 6, st="pro")))
    stamp(a, 2)
    stamp(a, 1, st="clk"); stamp(a, 2, real=True, st="clk")
    PITCH = 464
    stamp(a, 1, st="dense")
    init_load(a)
    vw = VT
    a(f"v_and_b32 v{vw}, 15, v0"); a(f"v_mul_u32_u24 v{vw}, {PITCH}, v{vw}")
    a(f"v_lshrrev_b32 v{VT+1}, 4, v0"); a(f"v_lshl_add_u32 v{vw}, v{VT+1}, 3, v{vw}")
    a(f"s_mul_i32 s{T0}, s{sWq}, {64*PITCH}"); a(f"s_mul_i32 s{T1}, s{sWp}, 224"); a(f"s_add_u32 s{T0}, s{T0}, s{T1}")
    a(f"v_add_u32 v{vw}, s{T0}, v{vw}")
    vr_, vg_ = VT + 1, VT + 2
    a(f"v_cmp_le_u32 vcc, 28, v0"); a("s_nop 1")
    a(f"v_cndmask_b32 v{VT+3}, 0, 1, vcc")
    a(f"v_mul_u32_u24 v{VT+4}, 28, v{VT+3}"); a(f"v_sub_u32 v{VT+4}, v0, v{VT+4}")
    a(f"v_lshlrev_b32 v{VT+4}, 4, v{VT+4}")
    a(f"v_mul_u32_u24 v{vr_}, {PITCH}, v{VT+3}"); a(f"v_add_u32 v{vr_}, v{vr_}, v{VT+4}")
    NH = C.dparts; JP = mq // NH; RW = 8 * JP
    a(f"s_mul_i32 s{T0}, s{sWq}, {64*PITCH}"); a(f"s_mul_i32 s{T1}, s{sWp}, {RW*PITCH}"); a(f"s_add_u32 s{T0}, s{T0}, s{T1}")
    a(f"v_add_u32 v{vr_}, s{T0}, v{vr_}")
    a(f"v_mul_u32_u24 v{vg_}, {RS_A2}, v{VT+3}"); a(f"v_add_u32 v{vg_}, v{vg_}, v{VT+4}")
    a(f"s_lshl_b32 s{T0}, s{sM}, 8"); a(f"s_lshl_b32 s{T1}, s{sWq}, 6"); a(f"s_add_u32 s{T0}, s{T0}, s{T1}")
    a(f"s_mul_i32 s{T1}, s{sWp}, {RW}"); a(f"s_add_u32 s{T0}, s{T0}, s{T1}")
    a(f"s_mul_i32 s{T0}, s{T0}, {RS_A2}"); a(f"s_mul_i32 s{T1}, s{sN}, 448"); a(f"s_add_u32 s{T0}, s{T0}, s{T1}")
    a(f"s_add_u32 s{T0}, s{T0}, {WS_A2 + 4096}")
    rb = G.F[0][0]
    for p in range(NH):
        js = range(p * JP, (p + 1) * JP)
        for j in js:
            for i in range(mp):
                c = acc + 4 * (i * mq + j)
                for r in range(4): a(f"v_mul_f32_e64 v{c+r}, v{c+r}, |v{c+r}|")
                a(f"v_cvt_pk_bf16_f32 v{c}, v{c}, v{c+1}"); a(f"v_cvt_pk_bf16_f32 v{c+1}, v{c+2}, v{c+3}")
                a(f"v_pk_max_i16 v{c}, v{c}, 0"); a(f"v_pk_max_i16 v{c+1}, v{c+1}, 0")
        if p == 0:
            a("s_barrier")
            stamp(a, 2, st="dense")
        for j in js:
            for i in range(mp):
                c = acc + 4 * (i * mq + j)
                a(f"ds_write_b64 v{vw}, {vr(c,2)} offset:{j*16*PITCH + 32*i}")
        a("s_waitcnt lgkmcnt(0)")
        if p == 0: stamp(a, 3, st="dense")
        a("s_barrier")
        if p == 0: stamp(a, 4, st="dense")
        a("s_mov_b32 exec_hi, 0x00ffffff")
        nst = RW // 2
        for n in range(nst):
            a(f"ds_read_b128 {vr(rb+4*n,4)}, v{vr_} offset:{(16*JP*p + 2*n)*PITCH}")
        if p: a(f"s_add_u32 s{T0}, s{T0}, {(16*JP - RW)*RS_A2}")
        for n in range(nst):
            a(f"s_waitcnt lgkmcnt({nst-1-n})")
            a(f"buffer_store_dwordx4 {vr(rb+4*n,4)}, v{vg_}, s[{SWS}:{SWS+3}], s{T0} offen{C.wt}")
            a(f"s_add_u32 s{T0}, s{T0}, {2*RS_A2}")
        a("s_mov_b64 exec, -1")
        if p < NH - 1: a("s_nop 1")
    stamp(a, 5, st="dense")
    return V.hi, max(LDS1, 4 * 64 * PITCH)

def phase1_ssm(a):
    V = Regs(10)
    mp, mq = 4, 4
    Pop = OpKC(a, V, 256, 0, mp); Pop.groups = [[0, 1, 2, 3]]
    Qop = OpKC(a, V, 128, Pop.bytes, mq); Qop.groups = [[0], [1]]; Qop.ldsoffs = [0, 8192]
    Qop.frag_off = lambda j: ((j & 1) * 4 + (j >> 1)) * 2048
    SB = Pop.bytes + Qop.bytes; NB = 3
    G = Gemm(a, V, NB, NB, Pop.bytes, Qop.bytes, mp, mq, (sBufD, sBufR, None, None, sCnt, sRole), True, 'P', 's1')
    acc = V.get(64, 2); prm = V.get(12, 4); big = V.get(72, 4)
    AG = NB * SB
    a(f"s_lshr_b32 s{sWp}, s{sWave}, 1"); a(f"s_and_b32 s{sWq}, s{sWave}, 1")
    Pop.lane_chunk(VT, VT + 1)
    a(f"v_lshrrev_b32 v{VT+1}, 5, v0"); a(f"v_lshlrev_b32 v{VT+1}, 4, v{VT+1}")
    a(f"v_bfe_u32 v{VT+2}, v0, 3, 2"); a(f"v_add_u32 v{VT+1}, v{VT+1}, v{VT+2}")
    a(f"v_lshl_add_u32 v{VT+3}, v{VT+1}, 11, v{VT}")
    for j in range(4):
        a(f"s_lshl_b32 s{T0}, s{sWave}, 1");
        if j >> 1: a(f"s_add_u32 s{T0}, s{T0}, 1")
        a(f"s_and_b32 s{T0}, s{T0}, 3"); a(f"s_lshl_b32 s{T0}, s{T0}, 2")
        a(f"s_lshl_b32 s{T1}, s{sWp}, 6"); a(f"s_add_u32 s{T0}, s{T0}, s{T1}")
        a(f"s_lshl_b32 s{T1}, s{sM}, 8"); a(f"s_add_u32 s{T0}, s{T0}, s{T1}")
        if j & 1: a(f"s_add_u32 s{T0}, s{T0}, 32")
        a(f"s_lshl_b32 s{T0}, s{T0}, 11")
        if j: a(f"s_sub_u32 s{T0}, s{T0}, {j*1024}")
        Pop.set_voff(j, VT + 3, T0, bool(j & 1))
    a(f"v_lshrrev_b32 v{VT+1}, 3, v0"); a(f"v_lshl_add_u32 v{VT+3}, v{VT+1}, 12, v{VT}")
    a(f"s_lshr_b32 s{T0}, s{sWave}, 2"); a(f"s_lshl_b32 s{T0}, s{T0}, 5")
    a(f"s_and_b32 s{T1}, s{sWave}, 1"); a(f"s_lshl_b32 s{T2}, s{T1}, 6"); a(f"s_lshl_b32 s{T1}, s{T1}, 4"); a(f"s_add_u32 s{T0}, s{T0}, s{T1}")
    a(f"s_bfe_u32 s{T1}, s{sWave}, 0x10001"); a(f"s_add_u32 s{T0}, s{T0}, s{T1}")
    a(f"s_lshl_b32 s{T1}, s{sN}, 6"); a(f"s_add_u32 s{T0}, s{T0}, s{T1}"); a(f"s_lshl_b32 s{T0}, s{T0}, 11")
    Qop.set_voff(0, VT + 3, T0, T2)
    a(f"v_mov_b32 v{Qop.vd+1}, v{Qop.vd}")
    a(f"s_lshl_b32 s{sLdsP}, s{sWave}, 12")
    a(f"s_lshl_b32 s{sLdsQ}, s{sWave}, 10"); a(f"s_add_u32 s{sLdsQ}, s{sLdsQ}, {Qop.lds_off}")
    a(f"s_lshl_b32 s{sKQ}, s{sRot}, 7")
    a("s_waitcnt lgkmcnt(0)")
    srd(a, SX, PTR["x"], L * D * 2); srd(a, SWS, PTR["ws"], WS_SIZE); srd(a, SDBG, PTR["dbg"], 256)
    srd(a, SA, PTR["bre"], P_ * D * 2); srd(a, SB_, PTR["bim"], P_ * D * 2)
    pt = [big, big + 8, big + 16]
    kadv = [f"s_add_u32 s{sKQ}, s{sKQ}, 128", f"s_and_b32 s{sKQ}, s{sKQ}, 2047"]
    kadvP = [f"s_add_u32 s{sKP}, s{sKP}, 128", f"s_and_b32 s{sKP}, s{sKP}, 2047"]
    a(f"s_mov_b32 s{sKP}, s{sKQ}")
    seg = Seg(Pop, Qop, acc, lambda b: Pop.dma(b, sKP, sTmp, sLdsP, [SX] * 4), lambda b: Qop.dma(b, sKQ, sTmp, sLdsQ, [SA, SB_]), kadvP, kadv, "s1")
    if C.prefetch:
        SP1, SP2, sPF1, sPF2 = SS, 72, sLdsP2, sKP2
        a(f"s_lshl_b32 s{T0}, s{sM}, 4"); a(f"s_add_u32 s{T0}, s{T0}, s{sN}")
        a(f"s_mul_i32 s{sPF2}, s{T0}, {56*1024}"); a(f"s_mul_i32 s{T1}, s{sWave}, {7*1024}"); a(f"s_add_u32 s{sPF2}, s{sPF2}, s{T1}")
        a(f"s_mov_b32 s{SP2}, s{PTR['w2']}"); a(f"s_mov_b32 s{SP2+1}, s{PTR['w2']+1}")
        a(f"s_add_u32 s{SP2+2}, s{sPF2}, {7*1024}"); a(f"s_mov_b32 s{SP2+3}, 0x20000")
        a(f"s_lshr_b32 s{T1}, s{T0}, 6"); a(f"s_cmp_eq_u32 s{T1}, 0")
        a(f"s_cselect_b32 s{SP1}, s{PTR['cre']}, s{PTR['cim']}"); a(f"s_cselect_b32 s{SP1+1}, s{PTR['cre']+1}, s{PTR['cim']+1}")
        a(f"s_and_b32 s{sPF1}, s{T0}, 63"); a(f"s_lshl_b32 s{sPF1}, s{sPF1}, 15"); a(f"s_lshl_b32 s{T1}, s{sWave}, 12"); a(f"s_add_u32 s{sPF1}, s{sPF1}, s{T1}")
        a(f"s_add_u32 s{SP1+2}, s{sPF1}, 4096"); a(f"s_mov_b32 s{SP1+3}, 0x20000")
        vpf = V.get(1); vpd = V.get(4, 2)
        a(f"v_lshlrev_b32 v{vpf}, 4, v0")
        pf = []
        for i in range(4): pf.append([f"buffer_load_dwordx4 {vr(vpd,4)}, v{vpf}, s[{SP1}:{SP1+3}], s{sPF1} offen offset:{i*1024}"])
        for i in range(7):
            pf.append([f"buffer_load_dwordx4 {vr(vpd,4)}, v{vpf}, s[{SP2}:{SP2+3}], s{sPF2} offen offset:{(i%4)*1024}"] + ([f"s_add_u32 s{sPF2}, s{sPF2}, 4096"] if i == 3 else []))
        p1extras = {C.pfit: (pf, 11)}
    else:
        p1extras = {}
    stages = [seg] * 16
    G.prologue(stages, "PQ", 0, 1)
    a(f"s_mul_i32 s{T0}, s{sWp}, {mp}"); Pop.setup_read(T0, VT, U0)
    a(f"s_lshl_b32 s{T0}, s{sWq}, 1"); Qop.setup_read(T0, VT, U0)
    G.zero_first = True
    if C.pbar: a("s_barrier")
    if C.tlb: tlb_warm(a, 250, VT + 5, ["ws", "w2", "cre", "cim", "out", "dbg", "dsk", "b2", "lre", "lim", "ldt", "gw"], 60); G.note('tlb', 1)
    G.prologue(stages, "PQ", 1)
    SPRM = 60
    def prm_loads():
        out = []
        class Cap:
            def __call__(self, x): out.append([x])
        c = Cap()
        c(f"s_lshl_b32 s{T2}, s{sN}, 6"); c(f"s_lshl_b32 s{T3}, s{sWq}, 5"); c(f"s_add_u32 s{T3}, s{T3}, s{T2}")
        c(f"v_and_b32 v{VT}, 15, v0"); c(f"v_lshlrev_b32 v{VT}, 1, v{VT}"); c(f"v_add_u32 v{VT}, s{T3}, v{VT}")
        c(f"v_lshlrev_b32 v{pt[0]}, 1, v{VT}"); c(f"v_add_u32 v{pt[1]}, 2, v{pt[0]}")
        c(f"v_add_u32 v{pt[2]}, s{T2}, v0"); c(f"v_lshlrev_b32 v{pt[2]}, 1, v{pt[2]}")
        c(f"s_mov_b32 s{SPRM+2}, 2048"); c(f"s_mov_b32 s{SPRM+3}, 0x20000")
        for k, name in enumerate(("lre", "lim", "ldt")):
            out.append([f"s_mov_b32 s{SPRM}, s{PTR[name]}", f"s_mov_b32 s{SPRM+1}, s{PTR[name]+1}"] +
                       [f"buffer_load_ushort v{pt[q]+1+k}, v{pt[q]}, s[{SPRM}:{SPRM+3}], 0 offen" for q in range(3)])
        return out
    def prm_math():
        out = []
        class Cap:
            def __call__(self, x): out.append(x)
        c = Cap()
        ssm_params_compute(c, prm, pt[0]); ssm_params_compute(c, prm + 4, pt[1]); ssm_params_compute(c, prm + 8, pt[2], False)
        return [out[i:i + 4] for i in range(0, len(out), 4)]
    p1extras[3] = (prm_loads(), 9)
    p1extras[7] = (prm_math(), 0)
    stamp(a, 1)
    p1extras[C.initit] = mb_zero_groups(VT + 2, True)
    G.run(stages, {C.initit + 3: (lambda: init_signal(a, VT + 4))}, p1extras)
    stamp(a, 2)
    stamp(a, 1, st="clk"); stamp(a, 2, real=True, st="clk")
    stamp(a, 1, st="ssm")
    init_load(a)
    a("s_nop 7")
    def U(jc, ri, s): return acc + 4 * ((s >> 2) * 4 + 2 * jc + ri) + (s & 3)
    ag = big; tt = big + 4
    def scan_step(s):
        for jc in range(2):
            hr, hi_ = ag + 2 * jc, ag + 2 * jc + 1; lr = prm + 4 * jc; t0, t1 = tt + 2 * jc, tt + 2 * jc + 1
            a(f"v_fma_f32 v{t0}, v{lr}, v{hr}, v{U(jc,0,s)}"); a(f"v_fma_f32 v{t1}, v{lr}, v{hi_}, v{U(jc,1,s)}")
        for jc in range(2):
            hr, hi_ = ag + 2 * jc, ag + 2 * jc + 1; li = prm + 4 * jc + 1; t0, t1 = tt + 2 * jc, tt + 2 * jc + 1
            a(f"v_fma_f32 v{hi_}, v{li}, -v{hi_}, v{t0}")
            a(f"v_fma_f32 v{t1}, v{li}, v{hr}, v{t1}")
        for jc in range(2):
            hr, hi_ = ag + 2 * jc, ag + 2 * jc + 1; t1 = tt + 2 * jc + 1
            a(f"v_mov_b32 v{hr}, v{hi_}"); a(f"v_mov_b32 v{hi_}, v{t1}")
    for jc in range(2):
        a(f"v_mov_b32 v{ag+2*jc}, v{U(jc,0,0)}"); a(f"v_mov_b32 v{ag+2*jc+1}, v{U(jc,1,0)}")
    def scan2(s, src, dst):
        for jc in range(2):
            hr, hi_ = src + 2 * jc, src + 2 * jc + 1; lr = prm + 4 * jc; dr, di = dst + 2 * jc, dst + 2 * jc + 1
            a(f"v_fma_f32 v{dr}, v{lr}, v{hr}, v{U(jc,0,s)}"); a(f"v_fma_f32 v{di}, v{lr}, v{hi_}, v{U(jc,1,s)}")
        for jc in range(2):
            hr, hi_ = src + 2 * jc, src + 2 * jc + 1; li = prm + 4 * jc + 1; dr, di = dst + 2 * jc, dst + 2 * jc + 1
            a(f"v_fma_f32 v{dr}, -v{li}, v{hi_}, v{dr}"); a(f"v_fma_f32 v{di}, v{li}, v{hr}, v{di}")
    st = [ag, tt]
    for s in range(1, 16): scan2(s, st[(s - 1) & 1], st[s & 1])
    fin = st[15 & 1]
    vag = big + 8
    def calc_vag():
        a(f"v_lshrrev_b32 v{vag}, 4, v0"); a(f"s_lshl_b32 s{T0}, s{sWp}, 2"); a(f"v_add_u32 v{vag}, s{T0}, v{vag}")
        a(f"v_lshlrev_b32 v{vag}, 9, v{vag}")
        a(f"v_and_b32 v{big+9}, 15, v0"); a(f"v_lshlrev_b32 v{big+9}, 4, v{big+9}")
        a(f"s_lshl_b32 s{T0}, s{sWq}, 8"); a(f"s_add_u32 s{T0}, s{T0}, {AG}")
        a(f"v_add3_u32 v{vag}, v{vag}, v{big+9}, s{T0}")
    calc_vag()
    a(f"ds_write_b128 v{vag}, {vr(fin,4)}")
    a("s_waitcnt lgkmcnt(0)")
    a("s_barrier")
    stamp(a, 2, st="ssm")
    a(f"s_cmp_lg_u32 s{sWave}, 0")
    a("s_cbranch_scc1 L_s_gate")
    lr, li = prm + 8, prm + 9
    l16r, l16i, l256r, l256i = big + 10, big + 11, big + 12, big + 13
    er, ei = big + 14, big + 15
    w0 = big + 4
    A = big + 16; vl = big + 9
    a(f"v_lshlrev_b32 v{vl}, 3, v0"); a(f"v_add_u32 v{vl}, {AG}, v{vl}")
    for s in range(16): a(f"ds_read_b64 {vr(A+2*s,2)}, v{vl} offset:{s*512}")
    csq(a, l16r, l16i, lr, li, w0)
    for _ in range(3): csq(a, l16r, l16i, l16r, l16i, w0)
    csq(a, l256r, l256i, l16r, l16i, w0)
    for _ in range(3): csq(a, l256r, l256i, l256r, l256i, w0)
    a("s_waitcnt lgkmcnt(0)")
    x0, x1 = big + 6, big + 7
    for s in range(1, 16):
        pr, pi, cr_, ci_ = A + 2 * (s - 1), A + 2 * (s - 1) + 1, A + 2 * s, A + 2 * s + 1
        a(f"v_fma_f32 v{cr_}, v{l16r}, v{pr}, v{cr_}"); a(f"v_fma_f32 v{ci_}, v{l16r}, v{pi}, v{ci_}")
        a(f"v_fma_f32 v{cr_}, -v{l16i}, v{pi}, v{cr_}"); a(f"v_fma_f32 v{ci_}, v{l16i}, v{pr}, v{ci_}")
    er, ei = A + 30, A + 31
    vo = big + 8
    a(f"s_lshl_b32 s{T0}, s{sN}, 6"); a(f"v_add_u32 v{vo}, s{T0}, v0"); a(f"v_lshlrev_b32 v{vo}, 3, v{vo}")
    a(f"s_lshl_b32 s{T1}, s{sM}, 13"); a(f"s_add_u32 s{T1}, s{T1}, {WS_AGG}")
    a("s_waitcnt vmcnt(0)")
    init_check(a, big + 52)
    a(f"s_lshl_b32 s{T1}, s{sM}, 13"); a(f"s_add_u32 s{T1}, s{T1}, {WS_AGG}")
    a(f"buffer_store_dwordx2 {vr(er,2)}, v{vo}, s[{SWS}:{SWS+3}], s{T1} offen sc1")
    stamp(a, 3, st="ssm")
    cr, ci = big + 48, big + 49
    a(f"v_mov_b32 v{cr}, 0"); a(f"v_mov_b32 v{ci}, 0")
    a(f"s_cmp_eq_u32 s{sM}, 0"); a("s_cbranch_scc1 L_s_nolb")
    B = big + 50
    a(f"s_mov_b32 s{U2}, {C.spin}")
    a.label("L_s_lb")
    for j in range(7):
        if j: a(f"s_cmp_le_u32 s{sM}, {j}"); a("s_cbranch_scc1 L_s_lbw")
        a(f"s_mov_b32 s{T1}, {WS_AGG + j*8192}")
        a(f"buffer_load_dwordx2 {vr(B+2*j,2)}, v{vo}, s[{SWS}:{SWS+3}], s{T1} offen sc1")
    a.label("L_s_lbw")
    a("s_waitcnt vmcnt(0)")
    a(f"s_mov_b64 s[{U0}:{U1}], 0")
    for j in range(7):
        if j: a(f"s_cmp_le_u32 s{sM}, {j}"); a("s_cbranch_scc1 L_s_lbc")
        a(f"v_cmp_eq_u32 vcc, -1, v{B+2*j}"); a("s_nop 0"); a(f"s_or_b64 s[{U0}:{U1}], s[{U0}:{U1}], vcc")
        a(f"v_cmp_eq_u32 vcc, -1, v{B+2*j+1}"); a("s_nop 0"); a(f"s_or_b64 s[{U0}:{U1}], s[{U0}:{U1}], vcc")
    a.label("L_s_lbc")
    a(f"s_cmp_eq_u64 s[{U0}:{U1}], 0"); a("s_cbranch_scc1 L_s_lbok")
    a(f"s_sub_u32 s{U2}, s{U2}, 1"); a(f"s_cmp_eq_u32 s{U2}, 0"); a("s_cbranch_scc1 L_s_lbok")
    a(f"s_sleep {C.sleep}"); a("s_branch L_s_lb")
    a.label("L_s_lbok")
    for j in range(7):
        a(f"s_cmp_le_u32 s{sM}, {j}"); a("s_cbranch_scc1 L_s_nolb")
        a(f"v_fma_f32 v{x0}, v{l256r}, v{cr}, v{B+2*j}"); a(f"v_fma_f32 v{x1}, v{l256r}, v{ci}, v{B+2*j+1}")
        a(f"v_fma_f32 v{x0}, -v{l256i}, v{ci}, v{x0}"); a(f"v_fma_f32 v{ci}, v{l256i}, v{cr}, v{x1}")
        a(f"v_mov_b32 v{cr}, v{x0}")
    a.label("L_s_nolb")
    stamp(a, 4, st="ssm")
    a(f"ds_write_b64 v{vl}, {vr(cr,2)}")
    for s in range(1, 16):
        a(f"v_mul_f32 v{x0}, v{l16r}, v{cr}"); a(f"v_mul_f32 v{x1}, v{l16r}, v{ci}")
        a(f"v_fma_f32 v{x0}, -v{l16i}, v{ci}, v{x0}"); a(f"v_fma_f32 v{ci}, v{l16i}, v{cr}, v{x1}")
        a(f"v_mov_b32 v{cr}, v{x0}")
        a(f"v_add_f32 v{A+2*(s-1)}, v{A+2*(s-1)}, v{cr}"); a(f"v_add_f32 v{A+2*(s-1)+1}, v{A+2*(s-1)+1}, v{ci}")
        a(f"ds_write_b64 v{vl}, {vr(A+2*(s-1),2)} offset:{s*512}")
    a("s_waitcnt lgkmcnt(0)")
    a("s_branch L_s_wait")
    a.label("L_s_gate")
    gxs = [big + 16, big + 24, big + 32]; gws = big + 40; gt = big + 48
    a(f"s_lshl_b32 s{T0}, s{sM}, 8"); a(f"s_lshl_b32 s{T1}, s{sN}, 4"); a(f"s_add_u32 s{T0}, s{T0}, s{T1}")
    a(f"s_add_u32 s{T0}, s{T0}, s{sWave}"); a(f"s_sub_u32 s{T0}, s{T0}, 1")
    a(f"s_add_u32 s{T1}, s{T0}, 7"); a(f"s_add_u32 s{T2}, s{T0}, 14")
    a(f"v_lshlrev_b32 v{gt}, 5, v0")
    srd(a, SS, PTR["gw"], 2048)
    a(f"buffer_load_dwordx4 {vr(gws,4)}, v{gt}, s[{SS}:{SS+3}], 0 offen"); a(f"buffer_load_dwordx4 {vr(gws+4,4)}, v{gt}, s[{SS}:{SS+3}], 0 offen offset:16")
    gate_row_loads(a, T0, gxs[0], gt); gate_row_loads(a, T1, gxs[1], gt)
    a(f"s_cmp_gt_u32 s{sWave}, 2"); a("s_cbranch_scc1 L_s_g2")
    gate_row_loads(a, T2, gxs[2], gt)
    a("s_waitcnt vmcnt(0)")
    gate_compute(a, T2, gxs[2], gws, gt + 1)
    a.label("L_s_g2")
    a("s_waitcnt vmcnt(0)")
    gate_compute(a, T0, gxs[0], gws, gt + 1); gate_compute(a, T1, gxs[1], gws, gt + 1)
    a.label("L_s_wait")
    a("s_barrier")
    calc_vag()
    a(f"ds_read_b128 {vr(ag,4)}, v{vag}")
    PITCH = 272
    vw = big + 9
    a(f"v_lshrrev_b32 v{vw}, 4, v0"); a(f"v_lshlrev_b32 v{vw}, 4, v{vw}"); a(f"s_lshl_b32 s{T0}, s{sWp}, 6"); a(f"v_add_u32 v{vw}, s{T0}, v{vw}")
    a(f"v_mul_u32_u24 v{vw}, {PITCH}, v{vw}")
    a(f"v_and_b32 v{big+10}, 15, v0"); a(f"v_lshl_add_u32 v{vw}, v{big+10}, 2, v{vw}")
    a(f"s_lshl_b32 s{T0}, s{sWq}, 6"); a(f"v_add_u32 v{vw}, s{T0}, v{vw}")
    vr_, vg_ = big + 10, big + 11
    a(f"v_lshrrev_b32 v{vr_}, 4, v0"); a(f"s_lshl_b32 s{T0}, s{sWave}, 5"); a(f"v_add_u32 v{vr_}, s{T0}, v{vr_}")
    a(f"s_lshl_b32 s{T1}, s{sM}, 8"); a(f"v_add_u32 v{vg_}, s{T1}, v{vr_}"); a(f"v_mul_u32_u24 v{vg_}, {RS_A2}, v{vg_}")
    a(f"v_mul_u32_u24 v{vr_}, {PITCH}, v{vr_}")
    a(f"v_and_b32 v{big+24}, 15, v0"); a(f"v_lshl_add_u32 v{vr_}, v{big+24}, 4, v{vr_}")
    a(f"v_and_b32 v{big+24}, 7, v0"); a(f"v_lshl_add_u32 v{vg_}, v{big+24}, 4, v{vg_}")
    a(f"v_bfe_u32 v{big+24}, v0, 3, 1"); a(f"v_lshl_add_u32 v{vg_}, v{big+24}, 11, v{vg_}")
    a(f"s_lshl_b32 s{T0}, s{sN}, 7"); a(f"s_add_u32 s{T0}, s{T0}, {WS_A2}")
    a("s_waitcnt lgkmcnt(0)")
    ore, oim, od = big + 12, big + 14, big + 16
    rb = big + 28
    st = [ag, tt]
    NPT = C.sparts; SP_ = 16 // NPT
    for s in range(16):
        scan2(s, st[s & 1], st[(s + 1) & 1])
        h = st[(s + 1) & 1]
        for jc in range(2):
            hr, hi_ = h + 2 * jc, h + 2 * jc + 1; kr, ki = prm + 4 * jc + 2, prm + 4 * jc + 3
            a(f"v_mul_f32 v{ore+jc}, v{kr}, v{hr}"); a(f"v_mul_f32 v{oim+jc}, -v{kr}, v{hi_}")
        for jc in range(2):
            hr, hi_ = h + 2 * jc, h + 2 * jc + 1; kr, ki = prm + 4 * jc + 2, prm + 4 * jc + 3
            a(f"v_fma_f32 v{ore+jc}, -v{ki}, v{hi_}, v{ore+jc}"); a(f"v_fma_f32 v{oim+jc}, -v{ki}, v{hr}, v{oim+jc}")
        d = od + 2 * (s % 4)
        a(f"v_cvt_pk_bf16_f32 v{d}, v{ore}, v{ore+1}"); a(f"v_cvt_pk_bf16_f32 v{d+1}, v{oim}, v{oim+1}")
        a(f"ds_write_b32 v{vw}, v{d} offset:{s*PITCH}"); a(f"ds_write_b32 v{vw}, v{d+1} offset:{s*PITCH+128}")
        if (s + 1) % SP_ == 0:
            p = s // SP_
            if p == NPT - 1: stamp(a, 5, st="ssm")
            ns_ = [n for n in range(8) if SP_ * p <= (4 * n) % 16 < SP_ * (p + 1)]
            a("s_waitcnt lgkmcnt(0)")
            a("s_barrier")
            for k, n in enumerate(ns_): a(f"ds_read_b128 {vr(rb+4*k,4)}, v{vr_} offset:{4*n*PITCH}")
            for k, n in enumerate(ns_):
                a(f"s_waitcnt lgkmcnt({len(ns_)-1-k})")
                a(f"s_add_u32 s{T1}, s{T0}, {4*n*RS_A2}")
                a(f"buffer_store_dwordx4 {vr(rb+4*k,4)}, v{vg_}, s[{SWS}:{SWS+3}], s{T1} offen{C.wt}")
    stamp(a, 6, st="ssm")
    return V.hi, AG + 8192

def phase2(a, role):
    R = "A" if role == 0 else "B"
    SW2, SE = 24, 72
    NS = C.ns
    TQ = 128 if NS == 2 else 256
    TP, mp, mq, NB = 128, 4, NS, (4 if NS == 2 else 3)
    LG = 1 if NS == 2 else 2
    XS = 8 // NS
    sG, sKQ2 = 0, 3
    V = Regs(10)
    P1 = OpKC(a, V, TP, 0, mp); P1.groups = [[0, 1]]
    P2 = OpNC(a, V, TP, 0, mp, D * 2)
    Qop = OpKC(a, V, TQ, TP * 128, mq, flags=C.a2ld); Qop.groups = [list(range(Qop.n))]
    SB = TP * 128 + Qop.bytes
    G = Gemm(a, V, NB, NB, TP * 128, Qop.bytes, mp, mq, (sBufD, sBufR, None, None, sCnt, sRole), True, 'P' if NS == 2 else 'Q', 'p2')
    nf = mp * mq
    accD = V.get(4 * nf, 2)
    accS = V.get(4 * nf, 2)
    vg = V.get(2 * mq, 2); vep = V.get(4)
    vex = V.get(6 * mp, 2) if NS == 2 else G.F[0][0] + (32 if C.xbf16 else 0)
    if NS != 2 and not C.xbf16: vex = accS
    dense = 1 if role == 1 else 0
    a(f"s_and_b32 s{T0}, s2, 7"); a(f"s_lshr_b32 s{T1}, s2, 3")
    a(f"s_lshr_b32 s{sG}, s{T0}, {3-LG}")
    a(f"s_and_b32 s{T2}, s{T0}, {XS-1}"); a(f"s_lshl_b32 s{sTt}, s{T2}, 2"); a(f"s_bfe_u32 s{T2}, s{T1}, 0x20002"); a(f"s_add_u32 s{sTt}, s{sTt}, s{T2}")
    a(f"s_and_b32 s{T2}, s{sG}, 1")
    if dense: a(f"s_xor_b32 s{T2}, s{T2}, 1")
    a(f"s_lshl_b32 s{sDt}, s{T2}, 2"); a(f"s_and_b32 s{T2}, s{T1}, 3"); a(f"s_add_u32 s{sDt}, s{sDt}, s{T2}")
    a(f"s_lshl_b32 s{sTile}, s{sTt}, 3"); a(f"s_add_u32 s{sTile}, s{sTile}, s{sDt}")
    a(f"s_lshr_b32 s{sWp}, s{sWave}, 2"); a(f"s_and_b32 s{sWq}, s{sWave}, 3")
    srd(a, SW2, PTR["w2"], F * D * 2)
    a(f"s_lshr_b32 s{T0}, s{sG}, {LG-1}"); a(f"s_cmp_eq_u32 s{T0}, 0")
    a(f"s_cselect_b32 s{SA}, s{PTR['cre']}, s{PTR['cim']}"); a(f"s_cselect_b32 s{SA+1}, s{PTR['cre']+1}, s{PTR['cim']+1}")
    a(f"s_mov_b32 s{SA+2}, {D*P_*2}"); a(f"s_mov_b32 s{SA+3}, 0x20000")
    Qop.lane_chunk(VT, VT + 1)
    a(f"v_lshrrev_b32 v{VT+1}, 3, v0"); a(f"v_lshl_add_u32 v{VT+3}, v{VT+1}, 11, v{VT}")
    for j in range(2):
        a(f"s_lshl_b32 s{T0}, s{sDt}, 7"); a(f"s_lshl_b32 s{T1}, s{sWave}, 4"); a(f"s_add_u32 s{T0}, s{T0}, s{T1}")
        if j: a(f"s_add_u32 s{T0}, s{T0}, 8")
        a(f"s_lshl_b32 s{T0}, s{T0}, 11")
        if j: a(f"s_sub_u32 s{T0}, s{T0}, 1024")
        P1.set_voff(j, VT + 3, T0, bool(j & 1))
    a(f"s_lshl_b32 s{sLdsP}, s{sWave}, 11")
    a(f"s_lshl_b32 s{T0}, s{sDt}, 8")
    P2.setup_dma(sWave, VT + 4, T0, U0)
    P2.setup_lds(sWave, sLdsP2, U0)
    a(f"v_lshrrev_b32 v{VT+1}, 3, v0"); a(f"v_mul_u32_u24 v{VT+1}, {RS_A2}, v{VT+1}"); a(f"v_add_u32 v{VT+3}, v{VT+1}, v{VT}")
    for j in range(Qop.n):
        a(f"s_mul_i32 s{T0}, s{sWave}, {TQ//8}")
        if j: a(f"s_add_u32 s{T0}, s{T0}, {8*j}")
        a(f"s_lshr_b32 s{T1}, s{T0}, 4"); a(f"s_add_u32 s{T1}, s{T1}, s{sG}"); a(f"s_and_b32 s{T1}, s{T1}, {NS-1}"); a(f"s_lshl_b32 s{T1}, s{T1}, 4")
        a(f"s_andn2_b32 s{T0}, s{T0}, {(NS-1) << 4}"); a(f"s_or_b32 s{T0}, s{T0}, s{T1}")
        a(f"s_mul_i32 s{T1}, s{sTt}, {TQ}"); a(f"s_add_u32 s{T0}, s{T0}, s{T1}"); a(f"s_mul_i32 s{T0}, s{T0}, {RS_A2}")
        if j: a(f"s_sub_u32 s{T0}, s{T0}, {1024*j}")
        Qop.set_voff(j, VT + 3, T0, bool(j & 1))
    a(f"s_mul_i32 s{sLdsQ}, s{sWave}, {Qop.n*1024}"); a(f"s_add_u32 s{sLdsQ}, s{sLdsQ}, {Qop.lds_off}")
    K2 = C.k2 if NS == 4 else 0
    nS = 32 // NS; base = (56 - K2) // NS
    assert base * NS == 56 - K2
    nD = base + (C.delta if role == 0 else -C.delta)
    colsS = 2048 // NS
    a(f"s_mul_i32 s{sKQ}, s{sG}, {colsS*2}"); a(f"s_and_b32 s{sKP}, s{sKQ}, 2047")
    if WS_A2: a(f"s_add_u32 s{sKQ}, s{sKQ}, {WS_A2}")
    a(f"s_lshr_b32 s{T0}, s{sG}, 1"); a(f"s_mul_i32 s{T0}, s{T0}, {2*base}")
    a(f"s_and_b32 s{T1}, s{sG}, 1"); a(f"s_mul_i32 s{T1}, s{T1}, {2*base - nD}"); a(f"s_add_u32 s{T0}, s{T0}, s{T1}")
    a(f"s_mul_i32 s{sKP2}, s{T0}, {64*D*2}"); a(f"s_lshl_b32 s{sKQ2}, s{T0}, 7"); a(f"s_add_u32 s{sKQ2}, s{sKQ2}, {WS_A2 + 4096}")
    a(f"s_mul_i32 s{T0}, s{sWp}, {mp}")
    P1.setup_read(T0, VT, U0); P2.setup_read(T0, VT, U0)
    a(f"s_mul_i32 s{T0}, s{sWq}, {mq}"); Qop.setup_read(T0, VT, U0)
    qd = lambda b: Qop.dma(b, sKQ, sTmp, sLdsQ, [SWS] * Qop.n)
    qd2 = lambda b: Qop.dma(b, sKQ2, sTmp, sLdsQ, [SWS] * Qop.n)
    segD = Seg(P2, Qop, accD, lambda b: P2.dma(b, sKP2, sTmp, sLdsP2, SW2), qd2, [f"s_add_u32 s{sKP2}, s{sKP2}, {64*D*2}"], [f"s_add_u32 s{sKQ2}, s{sKQ2}, 128"], "d")
    segS = Seg(P1, Qop, accS, lambda b: P1.dma(b, sKP, sTmp, sLdsP, [SA] * 2), qd, [f"s_add_u32 s{sKP}, s{sKP}, 128"], [f"s_add_u32 s{sKQ}, s{sKQ}, 128"], "s")
    stages = [segS] * nS + [segD] * nD
    N = len(stages)
    a("s_barrier")
    G.prologue(stages, "P")
    nP0 = 2 * G.leadP
    G.zero_first = True
    post_first = None
    fine = C.fine and NS == 4
    sMS = 49
    def chk_need(need):
        def chk(ok):
            if NS == 2:
                a(f"s_add_u32 s{U0}, s{U0}, s{U1}"); a(f"s_cmp_eq_u32 s{U0}, 16"); a(f"s_cbranch_scc1 {ok}")
            else:
                a(f"s_bitcmp1_b32 s{sG}, 0"); a(f"s_cselect_b32 s{sMS}, s{U1}, s{U0}")
                if fine:
                    a(f"s_and_b32 s{U0}, s{sMS}, {need}"); a(f"s_cmp_eq_u32 s{U0}, {need}"); a(f"s_cbranch_scc1 {ok}")
                else:
                    a(f"s_cmp_eq_u32 s{sMS}, 8"); a(f"s_cbranch_scc1 {ok}")
        return chk
    nfirst = G.leadQ + (1 if G.early == 'Q' else 0)
    chkS = chk_need((1 << nfirst) - 1)
    PW = 1
    if role == 0:
        a(f"s_waitcnt vmcnt({nP0})")
        a("s_barrier")
        stamp(a, 3)
        a(f"s_cmp_eq_u32 s{sWave}, {PW}"); a(f"s_cbranch_scc1 L_p2{R}_pl")
        a(f"s_cmp_lg_u32 s{sWave}, 0"); a(f"s_cbranch_scc1 L_p2{R}_dep")
        signal_cnt(a, "S", VT)
        a(f"s_branch L_p2{R}_dep")
        a.label(f"L_p2{R}_pl")
        poll_own(a, chkS, VT)
    elif C.dearly:
        a(f"s_waitcnt vmcnt({nP0})")
        a("s_barrier")
        stamp(a, 3)
        stamp(a, 6, st="dense")
        a(f"s_cmp_eq_u32 s{sWave}, {PW}"); a(f"s_cbranch_scc1 L_p2{R}_pl")
        a(f"s_cmp_lg_u32 s{sWave}, 0"); a(f"s_cbranch_scc1 L_p2{R}_dep")
        init_check(a, VT)
        signal_cnt(a, 2, VT)
        a(f"s_branch L_p2{R}_dep")
        a.label(f"L_p2{R}_pl")
        poll_own(a, chkS, VT)
    else:
        stamp(a, 3)
        stamp(a, 6, st="dense")
        a(f"s_cmp_lg_u32 s{sWave}, {PW}"); a(f"s_cbranch_scc1 L_p2{R}_dep")
        poll_own(a, chkS, VT)
        def post_first():
            sk = newlabel("pf")
            a(f"s_cmp_lg_u32 s{sWave}, 0"); a(f"s_cbranch_scc1 {sk}")
            init_check(a, VT)
            signal_cnt(a, 2, VT)
            a.label(sk)
    a.label(f"L_p2{R}_dep")
    a("s_barrier")
    G.prologue(stages, "Q")
    hooks = {}
    if fine:
        def mk(bit):
            def h():
                sk = newlabel("hs")
                a(f"s_cmp_lg_u32 s{sWave}, {PW}"); a(f"s_cbranch_scc1 {sk}")
                a(f"s_bitcmp1_b32 s{sMS}, {bit}"); a(f"s_cbranch_scc1 {sk}")
                poll_own(a, chk_need(1 << bit), VT)
                a.label(sk)
            return h
        for bit in range(nfirst, nS): hooks[bit - nfirst] = mk(bit)
    full = (0xff + 0xff + 16) if fine else 32
    def hookD():
        sk = newlabel("hk")
        stamp(a, 2, st="p2")
        a(f"s_cmp_lg_u32 s{sWave}, {PW}"); a(f"s_cbranch_scc1 {sk}")
        def chk(ok):
            a(f"s_add_u32 s{U0}, s{U0}, s{U1}"); a(f"s_add_u32 s{U0}, s{U0}, s{U3}"); a(f"s_cmp_eq_u32 s{U0}, {full}"); a(f"s_cbranch_scc1 {ok}")
        poll_own(a, chk, VT)
        a.label(sk)
        stamp(a, 3, st="p2")
    hd = nS - G.leadQ - (1 if G.early == 'Q' else 0)
    assert hd not in hooks
    hooks[hd] = hookD
    sXD = 44
    vt_own, vxo, vd2, vl16 = vep, vep + 1, vep + 2, vep + 3
    vx_, vds, vb2 = vex, vex + 2 * mp, vex + 4 * mp
    ex = []
    ex.append([f"s_mul_i32 s{T0}, s{sTt}, {TQ}", f"s_mul_i32 s{T1}, s{sWq}, {16*mq}", f"s_add_u32 s{T0}, s{T0}, s{T1}",
               f"v_and_b32 v{vt_own}, 15, v0", f"v_add_u32 v{vt_own}, s{T0}, v{vt_own}", f"v_lshlrev_b32 v{vxo}, 3, v{vt_own}"])
    for j in range(mq):
        ex.append([f"s_add_u32 s{T0}, s{sG}, {j}", f"s_and_b32 s{T0}, s{T0}, {NS-1}", f"s_lshl_b32 s{T0}, s{T0}, 7", f"s_add_u32 s{T0}, s{T0}, {WS_G}",
                   f"buffer_load_dwordx2 {vr(vg+2*j,2)}, v{vxo}, s[{SWS}:{SWS+3}], s{T0} offen sc1"])
    ex.append([f"s_lshl_b32 s{T0}, s{sG}, 4", f"v_add_u32 v{vt_own}, s{T0}, v{vt_own}",
               f"v_lshrrev_b32 v{vd2}, 4, v0", f"v_lshlrev_b32 v{vd2}, 2, v{vd2}",
               f"s_lshl_b32 s{T0}, s{sDt}, 7", f"s_lshl_b32 s{T1}, s{sWp}, 6", f"s_add_u32 s{T0}, s{T0}, s{T1}",
               f"v_add_u32 v{vd2}, s{T0}, v{vd2}", f"v_lshlrev_b32 v{vd2}, 1, v{vd2}",
               f"v_lshl_add_u32 v{vxo}, v{vt_own}, 11, v{vd2}", f"v_lshlrev_b32 v{vl16}, 4, v0"])
    for j in range(1, mq):
        ex.append([f"s_add_u32 s{T1}, s{sG}, {j}", f"s_and_b32 s{T1}, s{T1}, {NS-1}",
                   f"s_mul_i32 s{T0}, s{T1}, {XS}", f"s_and_b32 s{T2}, s2, {XS-1}", f"s_add_u32 s{T0}, s{T0}, s{T2}",
                   f"s_lshr_b32 s{T2}, s{sDt}, 2", f"s_xor_b32 s{T2}, s{T2}, s{T1}", f"s_and_b32 s{T2}, s{T2}, 1", f"s_xor_b32 s{T2}, s{T2}, 1",
                   f"s_lshl_b32 s{T2}, s{T2}, 7", f"s_or_b32 s{T0}, s{T0}, s{T2}", f"s_and_b32 s{T2}, s2, 0x78", f"s_or_b32 s{T0}, s{T0}, s{T2}",
                   f"s_lshl_b32 s{T0}, s{T0}, 3", f"s_add_u32 s{T0}, s{T0}, s{sWave}", f"s_mul_i32 s{T0}, s{T0}, {4096*(NS-1)}",
                   f"s_add_u32 s{sXD+j-1}, s{T0}, {WS_XB + (NS - j - 1) * 4096}"])
    ex2 = []
    for i in range(mp):
        ex2.append([f"buffer_load_dwordx2 {vr(vx_+2*i,2)}, v{vxo}, s[{SX}:{SX+3}], 0 offen offset:{32*i}"])
    ex2.append([f"s_mov_b32 s{SE}, s{PTR['dsk']}", f"s_mov_b32 s{SE+1}, s{PTR['dsk']+1}", f"s_mov_b32 s{SE+2}, 2048", f"s_mov_b32 s{SE+3}, 0x20000"])
    for i in range(mp):
        ex2.append([f"buffer_load_dwordx2 {vr(vds+2*i,2)}, v{vd2}, s[{SE}:{SE+3}], 0 offen offset:{32*i}"])
    ex2.append([f"s_mov_b32 s{SE}, s{PTR['b2']}", f"s_mov_b32 s{SE+1}, s{PTR['b2']+1}"])
    for i in range(mp):
        ex2.append([f"buffer_load_dwordx2 {vr(vb2+2*i,2)}, v{vd2}, s[{SE}:{SE+3}], 0 offen offset:{32*i}"])
    if NS == 2: extras = {N - NB: (ex + ex2, mq + 3 * mp)}
    else:
        nw = 0
        if C.endwarm:
            ex.append([f"buffer_load_dword v250, v{vxo}, s[{SX}:{SX+3}], 0 offen"])
            ex.append([f"s_mov_b32 s{SE}, s{PTR['dsk']}", f"s_mov_b32 s{SE+1}, s{PTR['dsk']+1}", f"s_mov_b32 s{SE+2}, 2048", f"s_mov_b32 s{SE+3}, 0x20000",
                       f"buffer_load_dword v250, v{vd2}, s[{SE}:{SE+3}], 0 offen"])
            ex.append([f"s_mov_b32 s{SE}, s{PTR['b2']}", f"s_mov_b32 s{SE+1}, s{PTR['b2']+1}", f"buffer_load_dword v250, v{vd2}, s[{SE}:{SE+3}], 0 offen"])
            nw = 3
        extras = {N - NB: (ex, mq + nw)}
    stamp(a, 4)
    stamp(a, 1, st="p2")
    stamp(a, 3, st="clk"); stamp(a, 4, real=True, st="clk")
    G.run(stages, hooks, extras, post_first)
    stamp(a, 5)
    stamp(a, 4, st="p2")
    stamp(a, 5, st="clk"); stamp(a, 6, real=True, st="clk")
    stamp(a, 1, st="end")
    a("s_nop 7")
    a("s_waitcnt vmcnt(0)")
    def comb(i, j):
        c = 4 * (i * mq + j)
        for r in range(4):
            a(f"v_mul_f32 v{accD+c+r}, v{vg+2*j+1}, v{accD+c+r}"); a(f"v_fmac_f32 v{accD+c+r}, v{vg+2*j}, v{accS+c+r}")
    if K2:
        return phase2b(a, role, locals())
    assert NS == 2 or C.xbf16
    nst = (2 if C.xbf16 else 4) * (mq - 1)
    if NS != 2:
        for g_ in ex2: G.emit(g_)
    for j in range(1, mq):
        for i in range(mp): comb(i, j)
        if C.xbf16:
            for i2 in range(0, mp, 2):
                c0, c1 = accD + 4 * (i2 * mq + j), accD + 4 * ((i2 + 1) * mq + j)
                a(f"v_cvt_pk_bf16_f32 v{c0}, v{c0}, v{c0+1}"); a(f"v_cvt_pk_bf16_f32 v{c0+1}, v{c0+2}, v{c0+3}")
                a(f"v_cvt_pk_bf16_f32 v{c0+2}, v{c1}, v{c1+1}"); a(f"v_cvt_pk_bf16_f32 v{c0+3}, v{c1+2}, v{c1+3}")
                a(f"buffer_store_dwordx4 {vr(c0,4)}, v{vl16}, s[{SWS}:{SWS+3}], s{sXD+j-1} offen offset:{(i2//2)*1024} sc1")
        else:
            a("s_nop 1")
            for i in range(mp):
                c = accD + 4 * (i * mq + j)
                a(f"buffer_store_dwordx4 {vr(c,4)}, v{vl16}, s[{SWS}:{SWS+3}], s{sXD+j-1} offen offset:{i*1024} sc1")
    stamp(a, 2, st="end")
    for i in range(mp): comb(i, 0)
    t1, t2, t3 = VT + 5, VT + 6, VT + 7
    a(f"s_and_b32 s{T0}, s2, {XS-1}")
    a(f"v_mul_u32_u24 v{t1}, {XS}, v0"); a(f"v_add_u32 v{t1}, s{T0}, v{t1}")
    a(f"s_lshr_b32 s{T0}, s{sDt}, 2")
    a(f"v_and_b32 v{t2}, 1, v0"); a(f"v_xor_b32 v{t2}, s{T0}, v{t2}"); a(f"v_xor_b32 v{t2}, 1, v{t2}")
    a(f"s_lshr_b32 s{T0}, s2, 3"); a(f"s_and_b32 s{T0}, s{T0}, 15")
    a(f"v_lshlrev_b32 v{t2}, 4, v{t2}"); a(f"v_add_u32 v{t2}, s{T0}, v{t2}"); a(f"v_lshl_or_b32 v{t2}, v{t2}, 3, v{t1}")
    a(f"v_lshlrev_b32 v{t2}, 8, v{t2}")
    a(f"v_subrev_u32 v{t1}, s{sG}, v0"); a(f"v_and_b32 v{t1}, {NS-1}, v{t1}")
    a(f"v_sub_u32 v{t1}, {NS-1}, v{t1}"); a(f"v_lshl_add_u32 v{t2}, v{t1}, 2, v{t2}")
    a(f"v_mov_b32 v{t3}, 1")
    a(f"s_lshl_b32 s{T0}, 1, s{sG}"); a(f"s_andn2_b32 s{T0}, {(1 << NS) - 1}, s{T0}")
    a(f"s_lshl_b32 s{T1}, s{sWave}, 4"); a(f"s_add_u32 s{T1}, s{T1}, {WS_MB + 32}")
    a(f"s_lshl_b32 s{T3}, s2, 8"); a(f"s_add_u32 s{T3}, s{T3}, s{T1}")
    a(f"s_waitcnt vmcnt({nst})")
    x0, x1, y0, y1 = VT, VT + 1, VT + 2, VT + 3
    for i in range(mp):
        e = accD + 4 * (i * mq)
        for h in range(2):
            a(f"v_lshlrev_b32 v{x0}, 16, v{vx_+2*i+h}"); a(f"v_and_b32 v{x1}, 0xffff0000, v{vx_+2*i+h}")
            a(f"v_lshlrev_b32 v{y0}, 16, v{vds+2*i+h}"); a(f"v_and_b32 v{y1}, 0xffff0000, v{vds+2*i+h}")
            a(f"v_mul_f32 v{x0}, v{x0}, v{y0}"); a(f"v_mul_f32 v{x1}, v{x1}, v{y1}")
            a(f"v_cvt_pk_bf16_f32 v{x0}, v{x0}, v{x1}")
            a(f"v_and_b32 v{x1}, 0xffff0000, v{x0}"); a(f"v_lshlrev_b32 v{x0}, 16, v{x0}")
            a(f"v_fmac_f32 v{e+2*h}, v{vg}, v{x0}"); a(f"v_fmac_f32 v{e+2*h+1}, v{vg}, v{x1}")
            a(f"v_lshlrev_b32 v{x0}, 16, v{vb2+2*i+h}"); a(f"v_and_b32 v{x1}, 0xffff0000, v{vb2+2*i+h}")
            a(f"v_fmac_f32 v{e+2*h}, v{vg+1}, v{x0}"); a(f"v_fmac_f32 v{e+2*h+1}, v{vg+1}, v{x1}")
    a("s_waitcnt vmcnt(0)")
    stamp(a, 5, st="p2")
    stamp(a, 3, st="end")
    a(f"s_mov_b32 exec_lo, s{T0}"); a("s_mov_b32 exec_hi, 0")
    a(f"buffer_store_dword v{t3}, v{t2}, s[{SWS}:{SWS+3}], s{T1} offen sc1")
    a("s_mov_b64 exec, -1")
    stamp(a, 4, st="end")
    def chkx(ok):
        if NS == 4: a(f"s_and_b32 s{U0}, s{U0}, s{U1}"); a(f"s_and_b32 s{U0}, s{U0}, s{U3}")
        a(f"s_cmp_lg_u32 s{U0}, 0"); a(f"s_cbranch_scc1 {ok}")
    poll(a, SWS, T3, chkx, VT, wide=(4 if NS == 4 else 1), sleep=1)
    stamp(a, 5, st="end")
    rb = G.F[0][0]
    nrx = mp * (NS - 1)
    assert 2 * (4 * mp + 4 * mq) >= 4 * nrx
    inbox_offset(a, T0)
    per = 2 if C.xbf16 else 4
    for k in range(per * (NS - 1)):
        if k and k % per == 0: a(f"s_add_u32 s{T0}, s{T0}, 4096")
        a(f"buffer_load_dwordx4 {vr(rb+4*k,4)}, v{vl16}, s[{SWS}:{SWS+3}], s{T0} offen offset:{(k%per)*1024} sc1")
    srd(a, SE, PTR["out"], L * D * 4)
    vo = VT
    a(f"v_lshlrev_b32 v{vo}, 12, v{vt_own}"); a(f"v_lshl_add_u32 v{vo}, v{vd2}, 1, v{vo}")
    a("s_waitcnt vmcnt(0)")
    stamp(a, 6, st="end")
    for i in range(mp):
        e = accD + 4 * (i * mq)
        for k in range(NS - 1):
            if C.xbf16:
                src = rb + 8 * k + 4 * (i // 2) + 2 * (i % 2)
                x0, x1 = VT + 2, VT + 3
                for h in range(2):
                    a(f"v_lshlrev_b32 v{x0}, 16, v{src+h}"); a(f"v_and_b32 v{x1}, 0xffff0000, v{src+h}")
                    a(f"v_add_f32 v{e+2*h}, v{e+2*h}, v{x0}"); a(f"v_add_f32 v{e+2*h+1}, v{e+2*h+1}, v{x1}")
            else:
                for r in range(4): a(f"v_add_f32 v{e+r}, v{e+r}, v{rb+k*4*mp+4*i+r}")
        a(f"buffer_store_dwordx4 {vr(e,4)}, v{vo}, s[{SE}:{SE+3}], 0 offen offset:{64*i}{C.wto}")
    stamp(a, 6)
    stamp(a, 6, st="p2")
    return V.hi, NB * SB

def phase2b(a, role, L_):
    g = L_
    R, NS, XS, mp, mq, K2 = g["R"], g["NS"], g["XS"], g["mp"], g["mq"], g["K2"]
    accD, accS, vg, G, P2, Qop, SW2, SE = g["accD"], g["accS"], g["vg"], g["G"], g["P2"], g["Qop"], g["SW2"], g["SE"]
    sG, sKQ2, sXD, comb, V = g["sG"], g["sKQ2"], g["sXD"], g["comb"], g["V"]
    vt_own, vxo, vd2, vl16 = g["vt_own"], g["vxo"], g["vd2"], g["vl16"]
    assert C.xbf16 and NS == 4
    NB2 = 6
    Vq = Regs(Qop.vd)
    Q2 = OpKC(a, Vq, 64, 128 * 128, 1, flags=C.a2ld); Q2.groups = [[0]]
    assert Vq.hi <= Qop.c1 + 1
    Vf = Regs(G.F[0][0])
    G2 = Gemm(a, Vf, NB2, NB2, 128 * 128, Q2.bytes, mp, 1, (sBufD, sBufR, None, None, sCnt, sRole), True, 'P', 'p2b')
    G2.acc_stride = 4 * mq
    assert Vf.hi <= G.F[1][1] + 4 * mq
    Q2.lane_chunk(VT, VT + 1)
    a(f"v_lshrrev_b32 v{VT+1}, 3, v0"); a(f"v_mul_u32_u24 v{VT+1}, {RS_A2}, v{VT+1}"); a(f"v_add_u32 v{VT+3}, v{VT+1}, v{VT}")
    a(f"s_lshr_b32 s{T0}, s{sWave}, 1"); a(f"s_lshl_b32 s{T0}, s{T0}, 6"); a(f"s_and_b32 s{T1}, s{sWave}, 1"); a(f"s_lshl_b32 s{T2}, s{T1}, 6")
    a(f"s_lshl_b32 s{T1}, s{T1}, 3"); a(f"s_add_u32 s{T0}, s{T0}, s{T1}"); a(f"s_lshl_b32 s{T1}, s{sG}, 4"); a(f"s_add_u32 s{T0}, s{T0}, s{T1}")
    a(f"s_lshl_b32 s{T1}, s{sTt}, 8"); a(f"s_add_u32 s{T0}, s{T0}, s{T1}"); a(f"s_mul_i32 s{T0}, s{T0}, {RS_A2}")
    Q2.set_voff(0, VT + 3, T0, T2)
    a(f"s_lshl_b32 s{sLdsQ}, s{sWave}, 10"); a(f"s_add_u32 s{sLdsQ}, s{sLdsQ}, {Q2.lds_off}")
    Q2.setup_read(sWq, VT, U0)
    a(f"s_mov_b32 s{sKP2}, {(56-K2)*64*D*2}"); a(f"s_mov_b32 s{sKQ2}, {WS_A2 + 4096 + (56-K2)*128}")
    seg2 = Seg(P2, Q2, accD, lambda b: P2.dma(b, sKP2, sTmp, sLdsP2, SW2), lambda b: Q2.dma(b, sKQ2, sTmp, sLdsQ, [SWS]),
               [f"s_add_u32 s{sKP2}, s{sKP2}, {64*D*2}"], [f"s_add_u32 s{sKQ2}, s{sKQ2}, 128"], "b")
    st2 = [seg2] * K2
    a("s_barrier")
    G2.prologue(st2)
    for j in range(1, mq):
        for i in range(mp): comb(i, j)
        for i2 in range(0, mp, 2):
            c0, c1 = accD + 4 * (i2 * mq + j), accD + 4 * ((i2 + 1) * mq + j)
            a(f"v_cvt_pk_bf16_f32 v{c0}, v{c0}, v{c0+1}"); a(f"v_cvt_pk_bf16_f32 v{c0+1}, v{c0+2}, v{c0+3}")
            a(f"v_cvt_pk_bf16_f32 v{c0+2}, v{c1}, v{c1+1}"); a(f"v_cvt_pk_bf16_f32 v{c0+3}, v{c1+2}, v{c1+3}")
            a(f"buffer_store_dwordx4 {vr(c0,4)}, v{vl16}, s[{SWS}:{SWS+3}], s{sXD+j-1} offen offset:{(i2//2)*1024} sc1")
    G2.note('xs', 6)
    stamp(a, 2, st="end")
    vx_, vds, vb2 = accS + 4, accS + 20, accS + 36
    for i in range(mp): a(f"buffer_load_dwordx2 {vr(vx_+2*i,2)}, v{vxo}, s[{SX}:{SX+3}], 0 offen offset:{32*i}")
    srd(a, SE, PTR["dsk"], 2048)
    for i in range(mp): a(f"buffer_load_dwordx2 {vr(vds+2*i,2)}, v{vd2}, s[{SE}:{SE+3}], 0 offen offset:{32*i}")
    a(f"s_mov_b32 s{SE}, s{PTR['b2']}"); a(f"s_mov_b32 s{SE+1}, s{PTR['b2']+1}")
    for i in range(mp): a(f"buffer_load_dwordx2 {vr(vb2+2*i,2)}, v{vd2}, s[{SE}:{SE+3}], 0 offen offset:{32*i}")
    G2.note('ex2', 12)
    t1, t2, t3 = VT + 5, VT + 6, VT + 7
    sMask, sFl = sXD + 3, sXD + 4
    a(f"s_and_b32 s{T0}, s2, {XS-1}")
    a(f"v_mul_u32_u24 v{t1}, {XS}, v0"); a(f"v_add_u32 v{t1}, s{T0}, v{t1}")
    a(f"s_lshr_b32 s{T0}, s{sDt}, 2")
    a(f"v_and_b32 v{t2}, 1, v0"); a(f"v_xor_b32 v{t2}, s{T0}, v{t2}"); a(f"v_xor_b32 v{t2}, 1, v{t2}")
    a(f"s_lshr_b32 s{T0}, s2, 3"); a(f"s_and_b32 s{T0}, s{T0}, 15")
    a(f"v_lshlrev_b32 v{t2}, 4, v{t2}"); a(f"v_add_u32 v{t2}, s{T0}, v{t2}"); a(f"v_lshl_or_b32 v{t2}, v{t2}, 3, v{t1}")
    a(f"v_lshlrev_b32 v{t2}, 8, v{t2}")
    a(f"v_subrev_u32 v{t1}, s{sG}, v0"); a(f"v_and_b32 v{t1}, {NS-1}, v{t1}")
    a(f"v_sub_u32 v{t1}, {NS-1}, v{t1}"); a(f"v_lshl_add_u32 v{t2}, v{t1}, 2, v{t2}")
    a(f"v_mov_b32 v{t3}, 1")
    a(f"s_lshl_b32 s{sMask}, 1, s{sG}"); a(f"s_andn2_b32 s{sMask}, {(1 << NS) - 1}, s{sMask}")
    a(f"s_lshl_b32 s{sFl}, s{sWave}, 4"); a(f"s_add_u32 s{sFl}, s{sFl}, {WS_MB + 32}")
    def flag():
        a(f"s_mov_b32 exec_lo, s{sMask}"); a("s_mov_b32 exec_hi, 0")
        a(f"buffer_store_dword v{t3}, v{t2}, s[{SWS}:{SWS+3}], s{sFl} offen sc1")
        a("s_mov_b64 exec, -1")
    fit = C.flagit
    def hookF():
        a(f"s_waitcnt vmcnt({G2.allow_at[fit]})")
        flag()
    G2.want_allow = {fit: 'xs'}
    G2.run(st2, {fit: hookF})
    stamp(a, 3, st="end")
    a("s_nop 7")
    a("s_waitcnt vmcnt(0)")
    a(f"s_lshl_b32 s{T3}, s2, 8"); a(f"s_add_u32 s{T3}, s{T3}, s{sFl}")
    def chkx(ok):
        a(f"s_and_b32 s{U0}, s{U0}, s{U1}"); a(f"s_and_b32 s{U0}, s{U0}, s{U3}")
        a(f"s_cmp_lg_u32 s{U0}, 0"); a(f"s_cbranch_scc1 {ok}")
    poll(a, SWS, T3, chkx, VT, wide=4, sleep=1)
    stamp(a, 4, st="end")
    rbq = [accD + 4, accD + 8, accD + 12, accD + 20, accD + 24, accD + 28]
    inbox_offset(a, T0)
    for k in range(6):
        if k and k % 2 == 0: a(f"s_add_u32 s{T0}, s{T0}, 4096")
        a(f"buffer_load_dwordx4 {vr(rbq[k],4)}, v{vl16}, s[{SWS}:{SWS+3}], s{T0} offen offset:{(k%2)*1024} sc1")
    for i in range(mp): comb(i, 0)
    x0, x1, y0, y1 = VT, VT + 1, VT + 2, VT + 3
    for i in range(mp):
        e = accD + 4 * (i * mq)
        for h in range(2):
            a(f"v_lshlrev_b32 v{x0}, 16, v{vx_+2*i+h}"); a(f"v_and_b32 v{x1}, 0xffff0000, v{vx_+2*i+h}")
            a(f"v_lshlrev_b32 v{y0}, 16, v{vds+2*i+h}"); a(f"v_and_b32 v{y1}, 0xffff0000, v{vds+2*i+h}")
            a(f"v_mul_f32 v{x0}, v{x0}, v{y0}"); a(f"v_mul_f32 v{x1}, v{x1}, v{y1}")
            a(f"v_cvt_pk_bf16_f32 v{x0}, v{x0}, v{x1}")
            a(f"v_and_b32 v{x1}, 0xffff0000, v{x0}"); a(f"v_lshlrev_b32 v{x0}, 16, v{x0}")
            a(f"v_fmac_f32 v{e+2*h}, v{vg}, v{x0}"); a(f"v_fmac_f32 v{e+2*h+1}, v{vg}, v{x1}")
            a(f"v_lshlrev_b32 v{x0}, 16, v{vb2+2*i+h}"); a(f"v_and_b32 v{x1}, 0xffff0000, v{vb2+2*i+h}")
            a(f"v_fmac_f32 v{e+2*h}, v{vg+1}, v{x0}"); a(f"v_fmac_f32 v{e+2*h+1}, v{vg+1}, v{x1}")
    srd(a, SE, PTR["out"], L * D * 4)
    vo = VT
    a(f"v_lshlrev_b32 v{vo}, 12, v{vt_own}"); a(f"v_lshl_add_u32 v{vo}, v{vd2}, 1, v{vo}")
    a("s_waitcnt vmcnt(0)")
    stamp(a, 5, st="end")
    for i in range(mp):
        e = accD + 4 * (i * mq)
        for k in range(NS - 1):
            src = rbq[2 * k + i // 2] + 2 * (i % 2)
            x0, x1 = VT + 2, VT + 3
            for h in range(2):
                a(f"v_lshlrev_b32 v{x0}, 16, v{src+h}"); a(f"v_and_b32 v{x1}, 0xffff0000, v{src+h}")
                a(f"v_add_f32 v{e+2*h}, v{e+2*h}, v{x0}"); a(f"v_add_f32 v{e+2*h+1}, v{e+2*h+1}, v{x1}")
        a(f"buffer_store_dwordx4 {vr(e,4)}, v{vo}, s[{SE}:{SE+3}], 0 offen offset:{64*i}{C.wto}")
    stamp(a, 6)
    stamp(a, 6, st="p2"); stamp(a, 6, st="end")
    return V.hi, max(g["NB"] * g["SB"], NB2 * (128 * 128 + Q2.bytes))

def emit_stamps(a):
    a("s_memrealtime s[88:89]"); a("s_waitcnt lgkmcnt(0)")
    a(f"s_cmp_lg_u32 s{sWave}, {C.stwave}"); a("s_cbranch_scc1 L_end")
    a("s_waitcnt vmcnt(0)")
    for i in range(1, 7): a(f"s_sub_u32 s{92+i}, s{92+i}, s92")
    a("s_mov_b32 s99, s100")
    a("s_nop 0")
    a(f"s_mov_b32 s100, s88")
    for i in range(8): a(f"v_mov_b32 v{12+i}, s{93+i}")
    a("v_mov_b32 v11, 0")
    if C.dbgout:
        a("s_and_b32 s76, s2, 127"); a("s_cmp_lg_u32 s76, 0"); a("s_cbranch_scc1 L_end")
        a("s_sub_u32 s77, s100, s99"); a("v_mov_b32 v18, s77")
        a("s_lshr_b32 s76, s2, 7"); a("s_mul_i32 s76, s76, 28"); a("s_add_u32 s76, s76, 8")
        a("s_mov_b64 exec, 1")
        for i in range(7): a(f"buffer_store_dword v{12+i}, v11, s[{SDBG}:{SDBG+3}], s76 offen offset:{4*i}")
        return
    a(f"s_lshl_b32 s{T0}, s2, 5"); a(f"s_add_u32 s{T0}, s{T0}, {WS_ST}")
    a("s_mov_b64 exec, 1")
    a(f"buffer_store_dwordx4 v[12:15], v11, s[{SWS}:{SWS+3}], s{T0} offen")
    a(f"buffer_store_dwordx4 v[16:19], v11, s[{SWS}:{SWS+3}], s{T0} offen offset:16")

HEADER = open("gated_mix__ssm_conv_s5__dense_activation_squared_relu__prompt.s.ref").read().split("; Override launch")[0]

def generate(**kw):
    for k, v in kw.items():
        assert hasattr(C, k), k
        setattr(C, k, v)
    _lbl[0] = 0
    a = Asm()
    kernel_header(a, NAME)
    a("s_cmp_ge_u32 s2, 256"); a("s_cbranch_scc1 L_end")
    a("s_load_dwordx16 s[40:55], s[0:1], 0"); a("s_load_dwordx16 s[56:71], s[0:1], 64"); a("s_load_dwordx4 s[72:75], s[0:1], 128")
    if C.dbgst:
        a("s_memtime s[92:93]"); a("s_memrealtime s[100:101]")
    if C.codepf == 1 or C.codepf is True:
        a("s_getpc_b64 s[4:5]")
        a.label("L_pc")
        a("v_lshlrev_b32 v2, 7, v0")
        a("v_min_u32 v2, L_codeend-L_pc-4, v2")
        a("global_load_dword v250, v2, s[4:5]")
    elif C.codepf == 2:
        a("s_getpc_b64 s[4:5]")
        a.label("L_pc")
        a("s_lshr_b32 s6, s2, 3"); a("s_lshl_b32 s6, s6, 11")
        a("v_lshlrev_b32 v2, 7, v0"); a("v_add_u32 v2, s6, v2")
        a("v_min_u32 v2, L_codeend-L_pc-4, v2")
        a("v_cmp_gt_u32 vcc, 16, v0"); a("s_and_saveexec_b64 s[6:7], vcc"); a("s_cbranch_execz L_cpf")
        a("global_load_dword v250, v2, s[4:5]")
        a.label("L_cpf")
        a("s_mov_b64 exec, s[6:7]")
    a("v_lshrrev_b32 v1, 6, v0"); a("v_and_b32 v0, 63, v0"); a(f"v_readfirstlane_b32 s{sWave}, v1")
    a(f"s_and_b32 s{T0}, s2, 7"); a(f"s_lshr_b32 s{T1}, s2, 3")
    a(f"s_lshr_b32 s{sRole}, s{T1}, 4")
    a(f"s_bfe_u32 s{T2}, s{T1}, 0x20002"); a(f"s_and_b32 s{T3}, s{T1}, 3")
    a(f"s_lshr_b32 s{sM}, s{T0}, 2"); a(f"s_lshl_b32 s{sM}, s{sM}, 2"); a(f"s_add_u32 s{sM}, s{sM}, s{T2}")
    a(f"s_and_b32 s{sN}, s{T0}, 3"); a(f"s_lshl_b32 s{sN}, s{sN}, 2"); a(f"s_add_u32 s{sN}, s{sN}, s{T3}")
    mode = C.rot
    if mode is True: mode = 1
    if mode == 1:
        a(f"s_lshl_b32 s{sRot}, s{sRole}, 2"); a(f"s_add_u32 s{sRot}, s{sRot}, s{T3}"); a(f"s_lshl_b32 s{sRot}, s{sRot}, 1")
        a(f"s_lshl_b32 s{T2}, s{T2}, 2"); a(f"s_add_u32 s{sRot}, s{sRot}, s{T2}"); a(f"s_and_b32 s{T0}, s{T0}, 3")
        a(f"s_add_u32 s{sRot}, s{sRot}, s{T0}"); a(f"s_and_b32 s{sRot}, s{sRot}, 15")
    elif mode == 2:
        a(f"s_and_b32 s{sRot}, s{T0}, 3"); a(f"s_lshl_b32 s{sRot}, s{sRot}, 2"); a(f"s_lshr_b32 s{T0}, s{T0}, 2"); a(f"s_lshl_b32 s{T0}, s{T0}, 1")
        a(f"s_add_u32 s{sRot}, s{sRot}, s{T0}"); a(f"s_and_b32 s{sRot}, s{sRot}, 15")
    elif mode == 3:
        a(f"s_and_b32 s{sRot}, s{T0}, 3"); a(f"s_lshl_b32 s{sRot}, s{sRot}, 2"); a(f"s_lshr_b32 s{T0}, s{T0}, 2"); a(f"s_lshl_b32 s{T0}, s{T0}, 3")
        a(f"s_add_u32 s{sRot}, s{sRot}, s{T0}"); a(f"s_xor_b32 s{T2}, s{T2}, s{T3}"); a(f"s_and_b32 s{T2}, s{T2}, 1"); a(f"s_lshl_b32 s{T2}, s{T2}, 3")
        a(f"s_add_u32 s{sRot}, s{sRot}, s{T2}"); a(f"s_and_b32 s{sRot}, s{sRot}, 15")
    elif mode == 4:
        a(f"s_xor_b32 s{T2}, s{T2}, s{T3}"); a(f"s_and_b32 s{T2}, s{T2}, 1"); a(f"s_lshl_b32 s{sRot}, s{T2}, 3")
        a(f"s_and_b32 s{T0}, s{T0}, 3"); a(f"s_lshl_b32 s{T0}, s{T0}, 1"); a(f"s_add_u32 s{sRot}, s{sRot}, s{T0}"); a(f"s_and_b32 s{sRot}, s{sRot}, 15")
    elif mode == 8:
        a(f"s_add_u32 s{sRot}, s{T0}, s{T2}"); a(f"s_and_b32 s{sRot}, s{sRot}, 3"); a(f"s_lshl_b32 s{sRot}, s{sRot}, 2")
    elif mode == 9:
        a(f"s_add_u32 s{sRot}, s{T0}, s{T2}"); a(f"s_and_b32 s{sRot}, s{sRot}, 1"); a(f"s_lshl_b32 s{sRot}, s{sRot}, 3")
    elif mode == 10:
        a(f"s_add_u32 s{sRot}, s{T0}, s{T2}"); a(f"s_and_b32 s{sRot}, s{sRot}, 7"); a(f"s_lshl_b32 s{sRot}, s{sRot}, 1")
    elif mode == 5:
        a(f"s_and_b32 s{sRot}, s{T0}, 3"); a(f"s_lshl_b32 s{sRot}, s{sRot}, 2")
    elif mode == 6:
        a(f"s_lshl_b32 s{sRot}, s{T2}, 2"); a(f"s_and_b32 s{T0}, s{T0}, 3"); a(f"s_add_u32 s{sRot}, s{sRot}, s{T0}"); a(f"s_and_b32 s{sRot}, s{sRot}, 15")
    elif mode == 7:
        a(f"s_lshl_b32 s{sRot}, s{T3}, 2"); a(f"s_and_b32 s{T0}, s{T0}, 3"); a(f"s_add_u32 s{sRot}, s{sRot}, s{T0}"); a(f"s_and_b32 s{sRot}, s{sRot}, 15")
    else:
        a(f"s_mov_b32 s{sRot}, 0")
    if C.dbgst:
        pass
    a(f"s_cmp_eq_u32 s{sRole}, 1"); a("s_cbranch_scc1 L_ssm")
    v1, l1 = phase1_dense(a)
    v2, l2 = phase2(a, 1)
    a("s_branch L_fin")
    a.label("L_ssm")
    v3, l3 = phase1_ssm(a)
    v4, l4 = phase2(a, 0)
    a.label("L_fin")
    if C.dbgst: emit_stamps(a)
    a.label("L_end")
    a("s_endpgm")
    a.label("L_codeend")
    nv = max(v1, v2, v3, v4); lds = max(l1, l2, l3, l4)
    assert nv <= 250
    if C.codepf or C.tlb: nv = 251
    head = HEADER + f"; @launch grid=(256,1,1) block=(512,1,1) lds={lds}\n"
    head += '.amdgcn_target "amdgcn-amd-amdhsa--gfx950"\n.text\n'
    return head + a.text() + '.section .rodata,"a"\n' + kernel_desc(NAME, nv, 102)

if __name__ == "__main__":
    kw = json.loads(sys.argv[2]) if len(sys.argv) > 2 else {}
    open(sys.argv[1], "w").write(generate(**kw))
```

```python
import sys, math, json
from asmlib import *

NAME = "gated_mix__ssm_conv_s5__dense_activation_squared_relu__prompt_kernel"
L, D, P_, F = 2048, 1024, 1024, 3584
KC = 2048 + F
RS_A2 = KC * 2
KA = dict(x=0, lre=8, lim=16, bre=24, bim=32, cre=40, cim=48, ldt=56, dsk=64, bx=72, w1=80, b1=88, w2=96, b2=104, gw=112, out=120, dbg=128, ws=136)
WS_A2 = 0
WS_G = 24 << 20
WS_AGG = WS_G + (1 << 16)
WS_MB = WS_AGG + (1 << 17)
WS_ST = WS_AGG + (1 << 18)
WS_XB = 32 << 20
WS_SIZE = 268435456
LOG2E = 0x3fb8aa3b
INV2PI = 0x3e22f983
PTR = {k: 40 + v // 4 for k, v in KA.items()}
DBG_LB = 0
DBG_CNT = 16
DBG_XF = 32

class Cfg:
    dbgst = False; rot = 4; nodma = False; noread = False; prefetch = True
    nAd = 24
    nBs = 8
    ns = 4
    delta = 2
    wt = " sc1"
    a2ld = " sc1"
    wto = ""
    spin = 300000
    sleep = 2
    early = True
    endwarm = 2
    midwarm = 11
    dearly = True
    fine = True
    dparts = 4
    sparts = 2
    d1p = False
    k2 = 0
    flagit = 3
    dbgout = False
    xbf16 = True
    loop = {}
    inboxit = 18
    initit = 4
    tlb = False
    tlbshift = 21
    codepf = True
    pbar = False
    bulk = False
    pflist = [('w1',0),('x',0),('bre',0),('bim',0),('cre',0),('cim',0),('w2',0)]
    pfit = 13
    span = 1.0
    prio = True
    nbq = 3
    stampset = 'main'
    stwave = 0
C = Cfg()

class Regs:
    def __init__(self, start, limit=256):
        self.n = start; self.limit = limit; self.hi = start
    def get(self, k=1, align=1):
        self.n = (self.n + align - 1) // align * align
        r = self.n; self.n += k
        self.hi = max(self.hi, self.n)
        assert self.n <= self.limit, f"out of registers {self.n} > {self.limit}"
        return r

def srd(a, s, ptr_lo, size):
    if s != ptr_lo:
        a(f"s_mov_b32 s{s}, s{ptr_lo}"); a(f"s_mov_b32 s{s+1}, s{ptr_lo+1}")
    a(f"s_mov_b32 s{s+2}, {size}"); a(f"s_mov_b32 s{s+3}, 0x20000")

_lbl = [0]
def newlabel(p):
    _lbl[0] += 1
    return f"L_{p}{_lbl[0]}"

class OpKC:
    def __init__(self, a, V, T, lds_off, nfr, flags=""):
        self.a, self.T, self.lds_off, self.nfr, self.flags = a, T, lds_off, nfr, flags
        self.n = T // 64
        self.vd = V.get(self.n)
        self.b0 = V.get(); self.c0 = V.get(); self.c1 = V.get()
        self.bytes = T * 128
        self.ldsoffs = [j * 1024 for j in range(self.n)]
    def lane_chunk(self, vdst, t):
        a = self.a
        a(f"v_and_b32 v{vdst}, 7, v0"); a(f"v_lshrrev_b32 v{t}, 4, v0")
        a(f"v_xor_b32 v{vdst}, v{vdst}, v{t}"); a(f"v_lshlrev_b32 v{vdst}, 4, v{vdst}")
    def set_voff(self, j, vlane, sRowBytes, xor64, comp=True):
        a = self.a; d = self.vd + j
        src = vlane
        if xor64 is True:
            a(f"v_xor_b32 v{d}, 64, v{vlane}"); src = d
        elif xor64 is not False:
            a(f"v_xor_b32 v{d}, s{xor64}, v{vlane}"); src = d
        a(f"v_add_u32 v{d}, s{sRowBytes}, v{src}")
    def dma(self, sBuf, sK, stmp, sLds, srds, groups=None):
        g = []
        for grp_i in self.groups:
            for n_, j in enumerate(grp_i):
                grp = []
                if n_ == 0:
                    grp.append(f"s_add_u32 s{stmp}, s{sBuf}, s{sLds}")
                    if self.ldsoffs[j]: grp.append(f"s_add_u32 s{stmp}, s{stmp}, {self.ldsoffs[j]}")
                    grp.append(f"s_mov_b32 m0, s{stmp}")
                    grp.append("s_nop 0")
                off = f" offset:{n_*1024}" if n_ else ""
                s = srds[j]
                grp.append(f"buffer_load_dwordx4 v{self.vd+j}, s[{s}:{s+3}], s{sK} offen{off}{self.flags} lds")
                g.append(grp)
        return g
    def count(self): return (self.n, self.n)
    def setup_read(self, sFrag0, tmp, stmp):
        a = self.a; t0, t1, t2 = tmp, tmp + 1, tmp + 2
        a(f"v_and_b32 v{t0}, 15, v0"); a(f"v_lshrrev_b32 v{t1}, 4, v0"); a(f"v_lshrrev_b32 v{t2}, 1, v{t0}")
        a(f"v_xor_b32 v{t1}, v{t1}, v{t2}"); a(f"v_lshlrev_b32 v{t1}, 4, v{t1}")
        a(f"v_lshl_add_u32 v{t0}, v{t0}, 7, v{t1}")
        a(f"s_lshl_b32 s{stmp}, s{sFrag0}, 11")
        if self.lds_off: a(f"s_add_u32 s{stmp}, s{stmp}, {self.lds_off}")
        a(f"v_add_u32 v{self.b0}, s{stmp}, v{t0}")
    def init_cur(self):
        return [f"v_mov_b32 v{self.c0}, v{self.b0}", f"v_xor_b32 v{self.c1}, 64, v{self.b0}"]
    def frag_off(self, i): return i * 2048
    def reads(self, ks, dst):
        if C.noread: return []
        c = self.c1 if ks else self.c0
        return [[f"ds_read_b128 {vr(dst+4*i,4)}, v{c} offset:{self.frag_off(i)}"] for i in range(self.nfr)]
    def upd_A(self, sBuf): return [f"v_add_u32 v{self.c0}, s{sBuf}, v{self.b0}"]
    def upd_B(self, sBuf): return [f"v_xor_b32 v{self.c1}, 64, v{self.c0}"]

class OpNC:
    def __init__(self, a, V, T, lds_off, nfr, RS, NW=8):
        self.a, self.T, self.lds_off, self.nfr, self.RS = a, T, lds_off, nfr, RS
        self.RP = T * 2; self.CH = self.RP // 16
        self.total = self.CH
        self.n = -(-self.total // NW)
        self.even = (self.total % NW == 0)
        self.nbig = NW if self.even else self.total - (self.n - 1) * NW
        self.vd = V.get(self.n)
        np_ = self.RP // 32
        self.gb = 3 if np_ % 8 == 0 else (2 if np_ % 4 == 0 else 1)
        self.nres = min(1 << self.gb, nfr)
        self.base = V.get(self.nres); self.cur = V.get(self.nres)
        self.bytes = 64 * self.RP
    def g_asm(self, vk, vo, t):
        a = self.a
        if self.gb == 3:
            a(f"v_and_b32 v{vo}, 3, v{vk}"); a(f"v_bfe_u32 v{t}, v{vk}, 3, 1"); a(f"v_lshl_or_b32 v{vo}, v{t}, 2, v{vo}")
        elif self.gb == 2:
            a(f"v_bfe_u32 v{vo}, v{vk}, 1, 1"); a(f"v_bfe_u32 v{t}, v{vk}, 3, 1"); a(f"v_lshl_or_b32 v{vo}, v{t}, 1, v{vo}")
        else:
            a(f"v_bfe_u32 v{vo}, v{vk}, 3, 1")
    def idx0(self, sWave, sOut, stmp):
        a = self.a
        if self.even: a(f"s_mul_i32 s{sOut}, s{sWave}, {self.n}")
        else:
            a(f"s_mul_i32 s{sOut}, s{sWave}, {self.n-1}")
            a(f"s_min_u32 s{stmp}, s{sWave}, {self.nbig}")
            a(f"s_add_u32 s{sOut}, s{sOut}, s{stmp}")
    def setup_dma(self, sWave, tmp, sCol0Bytes, stmp):
        a = self.a; t0, t1, t2, t3 = tmp, tmp + 1, tmp + 2, tmp + 3
        self.idx0(sWave, stmp, stmp + 1)
        magic = (1 << 20) // self.CH + 1
        for L_ in range(self.total * 64 + 64):
            assert (L_ * magic) >> 20 == L_ // self.CH
        for j in range(self.n):
            a(f"s_add_u32 s{stmp+1}, s{stmp}, {j}"); a(f"s_lshl_b32 s{stmp+1}, s{stmp+1}, 6")
            a(f"v_add_u32 v{t0}, s{stmp+1}, v0")
            if self.CH & (self.CH - 1) == 0:
                a(f"v_lshrrev_b32 v{t1}, {int(math.log2(self.CH))}, v{t0}")
                a(f"v_and_b32 v{t0}, {self.CH-1}, v{t0}")
            else:
                a(f"v_mul_u32_u24 v{t1}, {magic}, v{t0}"); a(f"v_lshrrev_b32 v{t1}, 20, v{t1}")
                a(f"v_mul_u32_u24 v{t2}, {self.CH}, v{t1}"); a(f"v_sub_u32 v{t0}, v{t0}, v{t2}")
            self.g_asm(t1, t2, t3)
            a(f"v_lshlrev_b32 v{t2}, 1, v{t2}"); a(f"v_xor_b32 v{t0}, v{t0}, v{t2}")
            a(f"v_mul_u32_u24 v{t1}, {self.RS}, v{t1}")
            a(f"v_lshl_add_u32 v{t0}, v{t0}, 4, v{t1}")
            if j % 4: a(f"s_sub_u32 s{stmp+1}, s{sCol0Bytes}, {(j%4)*1024}"); a(f"v_add_u32 v{self.vd+j}, s{stmp+1}, v{t0}")
            else: a(f"v_add_u32 v{self.vd+j}, s{sCol0Bytes}, v{t0}")
    def setup_lds(self, sWave, sLds, stmp):
        self.idx0(sWave, sLds, stmp)
        self.a(f"s_lshl_b32 s{sLds}, s{sLds}, 10")
        if self.lds_off: self.a(f"s_add_u32 s{sLds}, s{sLds}, {self.lds_off}")
    def dma(self, sBuf, sK, stmp, sLds, srds, sWave=None):
        g = []
        s = srds
        for j in range(self.n):
            grp = []
            guard = (not self.even) and j == self.n - 1
            if guard:
                lbl = newlabel("ncs")
                grp += [f"s_cmp_lt_u32 s{sWave}, {self.nbig}", f"s_cbranch_scc0 {lbl}"]
            if j % 4 == 0:
                grp.append(f"s_add_u32 s{stmp}, s{sBuf}, s{sLds}")
                if j: grp.append(f"s_add_u32 s{stmp}, s{stmp}, {j*1024}")
                grp += [f"s_mov_b32 m0, s{stmp}", "s_nop 0"]
            off = f" offset:{(j%4)*1024}" if j % 4 else ""
            grp.append(f"buffer_load_dwordx4 v{self.vd+j}, s[{s}:{s+3}], s{sK} offen{off} lds")
            if guard: grp.append(f"{lbl}:")
            g.append(grp)
        return g
    def count(self): return (self.n if self.even else self.n - 1, self.n)
    def setup_read(self, sFrag0, tmp, stmp):
        a = self.a; t0, t1, t2 = tmp, tmp + 1, tmp + 2
        a(f"v_lshrrev_b32 v{t0}, 4, v0"); a(f"v_lshlrev_b32 v{t0}, 3, v{t0}")
        a(f"v_bfe_u32 v{t1}, v0, 2, 2"); a(f"v_add_u32 v{t0}, v{t0}, v{t1}")
        self.g_asm(t0, t1, t2)
        a(f"v_mul_u32_u24 v{t0}, {self.RP}, v{t0}")
        a(f"v_and_b32 v{t2}, 3, v0"); a(f"v_lshl_add_u32 v{t0}, v{t2}, 3, v{t0}")
        if self.lds_off: a(f"v_add_u32 v{t0}, {self.lds_off}, v{t0}")
        for r in range(self.nres):
            a(f"s_add_u32 s{stmp}, s{sFrag0}, {r}")
            a(f"v_xor_b32 v{t2}, s{stmp}, v{t1}")
            if r: a(f"v_subrev_u32 v{t2}, {r}, v{t2}")
            a(f"v_lshl_add_u32 v{self.base+r}, v{t2}, 5, v{t0}")
    def init_cur(self):
        return [f"v_mov_b32 v{self.cur+r}, v{self.base+r}" for r in range(self.nres)]
    def reads(self, ks, dst):
        if C.noread: return []
        g = []
        for i in range(self.nfr):
            r = i % (1 << self.gb)
            for h in range(2):
                off = 32 * i + (4 * h + 32 * ks) * self.RP
                g.append([f"ds_read_b64_tr_b16 {vr(dst+4*i+2*h,2)}, v{self.cur+r} offset:{off}"])
        return g
    def upd_A(self, sBuf): return [f"v_add_u32 v{self.cur+r}, s{sBuf}, v{self.base+r}" for r in range(self.nres)]
    def upd_B(self, sBuf): return []

class Seg:
    def __init__(self, P, Q, acc, Pdma, Qdma, kadvP, kadvQ, name):
        self.P, self.Q, self.acc, self.Pdma, self.Qdma, self.kadvP, self.kadvQ, self.name = P, Q, acc, Pdma, Qdma, kadvP, kadvQ, name
        self.xdma = []

class Gemm:
    def __init__(self, a, V, NBP, NBQ, SP, SQ, mp, mq, regs, joint, early=None, name="x"):
        self.a, self.NBP, self.NBQ, self.SP, self.SQ, self.mp, self.mq, self.joint = a, NBP, NBQ, SP, SQ, mp, mq, joint
        o = dict(span=C.span, prio=C.prio, dmapos="merge", order="i")
        o.update(C.loop.get(name, {}))
        self.opt = o
        self.sDP, self.sRP, self.sDQ, self.sRQ, self.sCnt, self.sE = regs
        if joint: self.sDQ, self.sRQ = self.sDP, self.sRP
        self.early = early if C.early else None
        self.leadP = NBP - (1 if self.early == 'P' else 0)
        self.leadQ = NBQ - (1 if self.early == 'Q' else 0)
        self.F = []
        for s in range(2):
            p = V.get(4 * mp, 2); q = V.get(4 * mq, 2)
            self.F.append((p, q))
        self.vmq = []
        self.zero_first = False
    def emit(self, lines):
        for x in lines:
            if x.endswith(":"): self.a.label(x[:-1])
            else: self.a(x)
    def note(self, tag, n): self.vmq.append((tag, n))
    def vm_allow(self, need):
        last = -1
        for i, (t, n) in enumerate(self.vmq):
            if t in need: last = i
        return min(63, sum(n for t, n in self.vmq[last + 1:]))
    def reads(self, seg, ks, fs):
        p, q = self.F[fs]
        return merge(seg.P.reads(ks, p), seg.Q.reads(ks, q))
    def mfmas(self, seg, fs, zero=False):
        p, q = self.F[fs]
        ij = [(i, j) for i in range(self.mp) for j in range(self.mq)]
        if self.opt["order"] == "j": ij = [(i, j) for j in range(self.mq) for i in range(self.mp)]
        st = getattr(self, "acc_stride", 4 * self.mq)
        return [f"v_mfma_f32_16x16x32_bf16 {vr(c,4)}, {vr(p+4*i,4)}, {vr(q+4*j,4)}, {'0' if zero else vr(c,4)}"
                for (i, j) in ij for c in [seg.acc + st * i + 4 * j]]
    def spread(self, main, fill):
        n = len(main); k = len(fill)
        if k == 0: return list(main)
        span = max(1, min(n, int(n * self.opt['span'])))
        out = []; fi = 0
        for i, m in enumerate(main):
            out.append(m)
            while fi < k and (fi * span) // k <= i:
                out.extend(fill[fi]); fi += 1
        while fi < k: out.extend(fill[fi]); fi += 1
        return out
    def mix(self, reads, dma):
        m = self.opt["dmapos"]
        if m == "first": return dma + reads
        if m == "last": return reads + dma
        return merge(reads, dma)
    def ring_adv(self, sD, sR, stride, nb):
        return [f"s_mov_b32 s{sD}, s{sR}", f"s_add_u32 s{sR}, s{sR}, {stride}", f"s_cmp_eq_u32 s{sR}, {stride*nb}", f"s_cselect_b32 s{sR}, 0, s{sR}"]
    def advance(self):
        out = []
        if self.early: out.append(f"s_mov_b32 s{self.sE}, s{self.sDP if (self.joint or self.early == 'P') else self.sDQ}")
        if self.joint: return out + self.ring_adv(self.sDP, self.sRP, self.SP + self.SQ, self.NBP)
        return out + self.ring_adv(self.sDP, self.sRP, self.SP, self.NBP) + self.ring_adv(self.sDQ, self.sRQ, self.SQ, self.NBQ)
    def dma_list(self, which, seg, sBuf):
        if seg is None or C.nodma: return []
        if which == 'P': return seg.Pdma(sBuf) + [list(seg.kadvP)]
        return seg.Qdma(sBuf) + [list(seg.kadvQ)] + seg.xdma
    def body(self, cur, nxt, dP, dQ, vmw, pre_barrier=None, extra=None, zero=False):
        a = self.a
        self.emit(self.advance())
        a("s_waitcnt lgkmcnt(0)")
        fill = self.reads(cur, 1, 1)
        if nxt is not None: fill.append(nxt.P.upd_A(self.sRP) + nxt.Q.upd_A(self.sRQ))
        if self.early == 'P': fill = self.mix(fill, self.dma_list('P', dP, self.sE))
        if self.early == 'Q': fill = self.mix(fill, self.dma_list('Q', dQ, self.sE))
        if nxt is None and extra: fill = fill + extra
        self.emit(self.spread(self.mfmas(cur, 0, zero), fill))
        if nxt is None:
            a("s_waitcnt lgkmcnt(0)")
            self.emit(self.mfmas(cur, 1))
            return
        if pre_barrier: pre_barrier()
        a(f"s_waitcnt vmcnt({vmw}) lgkmcnt(0)")
        a("s_barrier")
        if self.opt["prio"]: a("s_setprio 1")
        fill = self.reads(nxt, 0, 0)
        d = []
        if self.early != 'P': d += self.dma_list('P', dP, self.sDP)
        if self.early != 'Q': d += self.dma_list('Q', dQ, self.sDQ)
        fill = self.mix(fill, d)
        u = nxt.P.upd_B(self.sRP) + nxt.Q.upd_B(self.sRQ)
        if u: fill.append(u)
        if extra: fill = fill + extra
        self.emit(self.spread(self.mfmas(cur, 1), fill))
        if self.opt["prio"]: a("s_setprio 0")
    def prologue(self, stages, which="PQ", first=0, last=None):
        a = self.a
        stride = self.SP + self.SQ if self.joint else None
        if first == 0:
            a(f"s_mov_b32 s{self.sDP}, 0")
            if not self.joint: a(f"s_mov_b32 s{self.sDQ}, 0")
        for s in range(first, max(self.leadP, self.leadQ) if last is None else last):
            if "P" in which and s < self.leadP:
                for g in stages[s].Pdma(self.sDP): self.emit(g)
                self.emit(stages[s].kadvP); self.note(('P', s), stages[s].P.count()[0])
                if not self.joint: a(f"s_add_u32 s{self.sDP}, s{self.sDP}, {self.SP}")
            if "Q" in which and s < self.leadQ:
                for g in stages[s].Qdma(self.sDQ): self.emit(g)
                self.emit(stages[s].kadvQ); self.note(('Q', s), stages[s].Q.count()[0])
                if not self.joint: a(f"s_add_u32 s{self.sDQ}, s{self.sDQ}, {self.SQ}")
            if self.joint: a(f"s_add_u32 s{self.sDP}, s{self.sDP}, {stride}")
    def run(self, stages, hooks=None, extras=None, post_first=None):
        a = self.a; N = len(stages)
        hooks = hooks or {}; extras = extras or {}
        a(f"s_waitcnt vmcnt({self.vm_allow({('P',0),('Q',0)})})")
        if getattr(self, "pre_first", None): self.pre_first()
        a("s_barrier")
        if post_first: post_first()
        seen = []
        for sg in stages:
            for op in (sg.P, sg.Q):
                if op not in seen: seen.append(op); self.emit(op.init_cur())
        if self.joint:
            a(f"s_mov_b32 s{self.sRP}, 0"); a(f"s_mov_b32 s{self.sDP}, {(self.SP+self.SQ)*(self.NBP-1)}")
        else:
            a(f"s_mov_b32 s{self.sRP}, 0"); a(f"s_mov_b32 s{self.sDP}, {self.SP*(self.NBP-1)}")
            a(f"s_mov_b32 s{self.sRQ}, 0"); a(f"s_mov_b32 s{self.sDQ}, {self.SQ*(self.NBQ-1)}")
        for g in self.reads(stages[0], 0, 0): self.emit(g)
        sigs = []; seen_acc = set()
        for i in range(N):
            nxt = stages[i + 1] if i + 1 < N else None
            dP = stages[i + self.leadP] if i + self.leadP < N else None
            dQ = stages[i + self.leadQ] if i + self.leadQ < N else None
            def noteP():
                if dP is not None: self.note(('P', i + self.leadP), dP.P.count()[0])
            def noteQ():
                if dQ is not None:
                    self.note(('Q', i + self.leadQ), dQ.Q.count()[0])
                    if dQ.xdma: self.note(('PF', i), len(dQ.xdma))
            if self.early == 'P': noteP()
            if self.early == 'Q': noteQ()
            vmw = self.vm_allow({('P', i + 1), ('Q', i + 1)}) if nxt is not None else 0
            if i in getattr(self, "want_allow", {}):
                if not hasattr(self, "allow_at"): self.allow_at = {}
                self.allow_at[i] = self.vm_allow({self.want_allow[i]})
            if self.early != 'P': noteP()
            if self.early != 'Q': noteQ()
            if i in extras: self.note(('X', i), extras[i][1])
            zero = self.zero_first and stages[i].acc not in seen_acc
            seen_acc.add(stages[i].acc)
            sigs.append((stages[i], nxt, dP, dQ, vmw, i if (i in hooks or i in extras or zero) else -1, zero))
        i = 0
        while i < N:
            j = i
            while j < N and sigs[j] == sigs[i]: j += 1
            cnt = j - i
            cur, nxt, dP, dQ, vmw, sp, zero = sigs[i]
            hk = hooks.get(sp); ex = extras[sp][0] if sp in extras else None
            if cnt >= 2:
                lbl = newlabel("gl")
                a(f"s_mov_b32 s{self.sCnt}, {cnt}")
                a.label(lbl)
                self.body(cur, nxt, dP, dQ, vmw)
                a(f"s_sub_u32 s{self.sCnt}, s{self.sCnt}, 1"); a(f"s_cmp_lg_u32 s{self.sCnt}, 0"); a(f"s_cbranch_scc1 {lbl}")
            else:
                self.body(cur, nxt, dP, dQ, vmw, hk, ex, zero)
            i = j

def merge(x, y):
    out = []; i = j = 0
    while i < len(x) or j < len(y):
        if j >= len(y) or (i < len(x) and i * len(y) <= j * len(x)): out.append(x[i]); i += 1
        else: out.append(y[j]); j += 1
    return out

def bf16_round(a, vdst, vsrc):
    a(f"v_cvt_pk_bf16_f32 v{vdst}, v{vsrc}, v{vsrc}"); a(f"v_lshlrev_b32 v{vdst}, 16, v{vdst}")

def stamp(a, idx, real=False, st="main"):
    if C.dbgst and st == C.stampset:
        a("s_memrealtime s[88:89]" if real else "s_memtime s[88:89]")
        a("s_waitcnt lgkmcnt(0)")
        a(f"s_mov_b32 s{92+idx}, s88")

sWave, sM, sN, sRole = 28, 29, 30, 31
sBufD, sBufR, sCnt, sTmp, sKP, sKQ, sLdsP, sLdsQ = 32, 33, 34, 35, 36, 37, 38, 39
sWp, sWq, sRot, sLdsP2, sKP2, sTile, sTt, sDt = 80, 81, 82, 83, 84, 85, 86, 87
SX, SA, SB_, SWS, SDBG, SS = 4, 8, 12, 16, 20, 24
T0, T1, T2, T3 = 76, 77, 78, 79
U0, U1, U2, U3 = 88, 89, 90, 91
VT = 2

def ssm_param_loads(a, vch, t):
    a(f"v_lshlrev_b32 v{t}, 1, v{vch}")
    for k, name in enumerate(("lre", "lim", "ldt")):
        srd(a, SS, PTR[name], 2048)
        a(f"buffer_load_ushort v{t+1+k}, v{t}, s[{SS}:{SS+3}], 0 offen")

def ssm_params_compute(a, out, t, want_kappa=True):
    lre, lim, ldt = t + 1, t + 2, t + 3
    x0, x1, x2, x3 = t + 4, t + 5, t + 6, t + 7
    lr, li, kr, ki = out, out + 1, out + 2, out + 3
    for r in (lre, lim, ldt): a(f"v_lshlrev_b32 v{r}, 16, v{r}")
    a(f"v_mul_f32 v{x0}, {LOG2E:#x}, v{ldt}"); a(f"v_exp_f32 v{x0}, v{x0}"); a("s_nop 0")
    bf16_round(a, x0, x0)
    a(f"v_mul_f32 v{x1}, v{x0}, v{lre}"); a(f"v_mul_f32 v{x2}, v{x0}, v{lim}")
    a(f"v_mul_f32 v{x1}, {LOG2E:#x}, v{x1}"); a(f"v_exp_f32 v{x1}, v{x1}")
    a(f"v_mul_f32 v{x2}, {INV2PI:#x}, v{x2}"); a(f"v_rndne_f32 v{x3}, v{x2}"); a(f"v_sub_f32 v{x2}, v{x2}, v{x3}")
    a(f"v_cos_f32 v{x3}, v{x2}"); a(f"v_sin_f32 v{x2}, v{x2}"); a("s_nop 0")
    a(f"v_mul_f32 v{lr}, v{x1}, v{x3}"); a(f"v_mul_f32 v{li}, v{x1}, v{x2}")
    if want_kappa:
        a(f"v_subrev_f32 v{x0}, 1.0, v{lr}")
        a(f"v_mul_f32 v{x1}, v{x0}, v{lre}"); a(f"v_fmac_f32 v{x1}, v{li}, v{lim}")
        a(f"v_mul_f32 v{x2}, v{li}, v{lre}"); a(f"v_fma_f32 v{x2}, -v{x0}, v{lim}, v{x2}")
        a(f"v_mul_f32 v{x3}, v{lre}, v{lre}"); a(f"v_fmac_f32 v{x3}, v{lim}, v{lim}")
        a(f"v_rcp_f32 v{x3}, v{x3}"); a("s_nop 0")
        a(f"v_add_f32 v{x3}, v{x3}, v{x3}")
        a(f"v_mul_f32 v{kr}, v{x1}, v{x3}"); a(f"v_mul_f32 v{ki}, v{x2}, v{x3}")

def csq(a, dr, di, sr_, si, t):
    a(f"v_mul_f32 v{t}, v{sr_}, v{si}"); a(f"v_mul_f32 v{dr}, v{sr_}, v{sr_}")
    a(f"v_fma_f32 v{dr}, -v{si}, v{si}, v{dr}"); a(f"v_add_f32 v{di}, v{t}, v{t}")

def gate_row_loads(a, sRow, vx, t):
    a(f"s_lshl_b32 s{U1}, s{sRow}, 11")
    a(f"buffer_load_dwordx4 {vr(vx,4)}, v{t}, s[{SX}:{SX+3}], s{U1} offen")
    a(f"buffer_load_dwordx4 {vr(vx+4,4)}, v{t}, s[{SX}:{SX+3}], s{U1} offen offset:16")

def gate_compute(a, sRow, vx, vw, t):
    acc = t; p0, p1, q0, q1 = t + 1, t + 2, t + 3, t + 4
    a(f"v_mov_b32 v{acc}, 0")
    for d in range(8):
        a(f"v_lshlrev_b32 v{p0}, 16, v{vx+d}"); a(f"v_and_b32 v{p1}, 0xffff0000, v{vx+d}")
        a(f"v_lshlrev_b32 v{q0}, 16, v{vw+d}"); a(f"v_and_b32 v{q1}, 0xffff0000, v{vw+d}")
        a(f"v_mul_f32 v{p0}, v{p0}, v{q0}"); a(f"v_mul_f32 v{p1}, v{p1}, v{q1}")
        a(f"v_cvt_pk_bf16_f32 v{p0}, v{p0}, v{p1}")
        a(f"v_and_b32 v{p1}, 0xffff0000, v{p0}"); a(f"v_lshlrev_b32 v{p0}, 16, v{p0}")
        a(f"v_add_f32 v{acc}, v{acc}, v{p0}"); a(f"v_add_f32 v{acc}, v{acc}, v{p1}")
    for sh in (1, 2, 4, 8):
        a("s_nop 1")
        a(f"v_add_f32_dpp v{acc}, v{acc}, v{acc} row_shr:{sh} row_mask:0xf bank_mask:0xf bound_ctrl:0")
    a("s_nop 1")
    a(f"v_add_f32_dpp v{acc}, v{acc}, v{acc} row_bcast:15 row_mask:0xa bank_mask:0xf")
    a("s_nop 1")
    a(f"v_add_f32_dpp v{acc}, v{acc}, v{acc} row_bcast:31 row_mask:0xc bank_mask:0xf")
    a("s_nop 1")
    a(f"v_readlane_b32 s{U0}, v{acc}, 63")
    a("s_nop 1")
    a(f"v_mov_b32 v{acc}, s{U0}")
    bf16_round(a, acc, acc)
    a(f"v_mul_f32 v{p0}, {LOG2E ^ 0x80000000:#x}, v{acc}"); a(f"v_exp_f32 v{p0}, v{p0}"); a("s_nop 0")
    a(f"v_add_f32 v{p0}, 1.0, v{p0}"); a(f"v_rcp_f32 v{p0}, v{p0}"); a("s_nop 0")
    bf16_round(a, p0, p0)
    a(f"v_sub_f32 v{p1}, 1.0, v{p0}")
    bf16_round(a, p1, p1)
    a(f"s_lshl_b32 s{U0}, s{sRow}, 3"); a(f"s_add_u32 s{U0}, s{U0}, {WS_G}")
    a(f"v_cmp_eq_u32 vcc, 0, v0"); a("s_nop 1")
    a(f"v_cndmask_b32 v{p0}, v{p1}, v{p0}, vcc")
    a(f"v_lshlrev_b32 v{q0}, 2, v0")
    a("s_mov_b64 exec, 3")
    a(f"buffer_store_dword v{p0}, v{q0}, s[{SWS}:{SWS+3}], s{U0} offen sc1")
    a("s_mov_b64 exec, -1")

SENT = 0xffffffff
def inbox_offset(a, sdst):
    a(f"s_lshl_b32 s{sdst}, s2, 3"); a(f"s_add_u32 s{sdst}, s{sdst}, s{sWave}"); a(f"s_mul_i32 s{sdst}, s{sdst}, {4096*(C.ns-1)}")
    a(f"s_add_u32 s{sdst}, s{sdst}, {WS_XB}")

def mb_zero_groups(vt, ssm=False):
    c = []
    q = (vt + 1) // 2 * 2
    sk = newlabel("mz")
    c += [f"s_cmp_lg_u32 s{sWave}, 0", f"s_cbranch_scc1 {sk}"]
    if ssm:
        c += [f"v_mov_b32 v{q}, -1", f"v_mov_b32 v{q+1}, -1",
              f"s_lshl_b32 s{U0}, s{sN}, 6", f"v_add_u32 v{q+4}, s{U0}, v0", f"v_lshlrev_b32 v{q+4}, 3, v{q+4}",
              f"s_lshl_b32 s{U0}, s{sM}, 13", f"s_add_u32 s{U0}, s{U0}, {WS_AGG}",
              f"buffer_store_dwordx2 {vr(q,2)}, v{q+4}, s[{SWS}:{SWS+3}], s{U0} offen sc1"]
    c += [f"v_mov_b32 v{q+2}, 0", f"v_lshlrev_b32 v{q+4}, 2, v0", f"s_lshl_b32 s{U0}, s2, 8", f"s_add_u32 s{U0}, s{U0}, {WS_MB}",
          f"buffer_store_dword v{q+2}, v{q+4}, s[{SWS}:{SWS+3}], s{U0} offen sc1", f"{sk}:"]
    return [c], 0

def inbox_init(a, vt):
    for r in range(4): a(f"v_mov_b32 v{vt+r}, -1")
    a(f"v_lshlrev_b32 v{vt+4}, 4, v0")
    inbox_offset(a, U0)
    for i in range(4 * (C.ns - 1)):
        a(f"buffer_store_dwordx4 {vr(vt,4)}, v{vt+4}, s[{SWS}:{SWS+3}], s{U0} offen offset:{(i%4)*1024} sc1")
        if i % 4 == 3: a(f"s_add_u32 s{U0}, s{U0}, 4096")

def init_signal(a, vt, idx=0, guard=True):
    sk = newlabel("mi")
    if guard: a(f"s_cmp_lg_u32 s{sWave}, 0"); a(f"s_cbranch_scc1 {sk}")
    a(f"v_mov_b32 v{vt}, 1"); a(f"v_mov_b32 v{vt+1}, {4*idx}")
    a("s_mov_b64 exec, 1")
    a(f"buffer_atomic_add v{vt}, v{vt+1}, s[{SDBG}:{SDBG+3}], 0 offen sc1")
    a("s_mov_b64 exec, -1")
    a.label(sk)

def poll(a, srd_, sByteOff, check, vt, wide=1, sleep=None):
    lp, ok = newlabel("poll"), newlabel("pok")
    a(f"v_mov_b32 v{vt+4}, s{sByteOff}")
    a(f"s_mov_b32 s{U2}, {C.spin}")
    a.label(lp)
    a(f"s_sub_u32 s{U2}, s{U2}, 1"); a(f"s_cmp_eq_u32 s{U2}, 0"); a(f"s_cbranch_scc1 {ok}")
    op = {1: "dword", 2: "dwordx2", 4: "dwordx4"}[wide]
    a(f"buffer_load_{op} {vr(vt,wide)}, v{vt+4}, s[{srd_}:{srd_+3}], 0 offen sc1")
    a("s_waitcnt vmcnt(0)")
    a(f"v_readfirstlane_b32 s{U0}, v{vt}")
    if wide >= 2: a(f"v_readfirstlane_b32 s{U1}, v{vt+1}")
    if wide >= 4: a(f"v_readfirstlane_b32 s{U3}, v{vt+2}")
    a("s_nop 3")
    check(ok)
    a(f"s_sleep {C.sleep if sleep is None else sleep}")
    a(f"s_branch {lp}")
    a.label(ok)

VINIT = 1
def init_load(a, idx=0):
    sk = newlabel("il")
    a(f"s_cmp_lg_u32 s{sWave}, 0"); a(f"s_cbranch_scc1 {sk}")
    a(f"v_mov_b32 v{VINIT}, {4*idx}")
    a(f"buffer_load_dword v{VINIT}, v{VINIT}, s[{SDBG}:{SDBG+3}], 0 offen sc1")
    a.label(sk)

def init_check(a, vt, idx=0):
    ok = newlabel("ic")
    a(f"v_readfirstlane_b32 s{U0}, v{VINIT}"); a("s_nop 3")
    a(f"s_cmp_ge_u32 s{U0}, 256"); a(f"s_cbranch_scc1 {ok}")
    a(f"s_mov_b32 s{T3}, {4*idx}")
    def chk(o): a(f"s_cmp_ge_u32 s{U0}, 256"); a(f"s_cbranch_scc1 {o}")
    poll(a, SDBG, T3, chk, vt, sleep=32)
    a.label(ok)

def poll_own(a, check, vt):
    a(f"s_lshl_b32 s{T3}, s2, 8"); a(f"s_add_u32 s{T3}, s{T3}, {WS_MB}")
    poll(a, SWS, T3, check, vt, wide=4)

def signal_cnt(a, dword, vt):
    NS = C.ns; XS = 8 // NS
    l, t1, t2 = vt, vt + 1, vt + 2
    t3 = vt + 3
    if NS == 2:
        a(f"v_bfe_u32 v{t1}, v0, 3, 1"); a(f"s_lshl_b32 s{T0}, s{sM}, 1"); a(f"v_add_u32 v{t1}, s{T0}, v{t1}")
        a(f"v_bfe_u32 v{t3}, v0, 4, 1")
    else:
        a(f"v_mov_b32 v{t1}, s{sM}")
        a(f"v_bfe_u32 v{t3}, v0, 3, 2")
    a(f"v_lshrrev_b32 v{t2}, 2, v{t1}"); a(f"v_mad_u32_u24 v{t2}, v{t3}, {XS}, v{t2}")
    a(f"v_and_b32 v{t1}, 3, v{t1}"); a(f"v_lshlrev_b32 v{t1}, 2, v{t1}")
    a(f"v_and_b32 v{l}, 3, v0"); a(f"v_or_b32 v{t1}, v{t1}, v{l}")
    a(f"v_bfe_u32 v{l}, v0, 2, 1"); a(f"v_and_b32 v{t3}, 1, v{t3}"); a(f"v_xor_b32 v{l}, v{l}, v{t3}"); a(f"v_xor_b32 v{l}, 1, v{l}")
    a(f"v_lshl_or_b32 v{t1}, v{l}, 4, v{t1}")
    a(f"v_lshl_or_b32 v{t1}, v{t1}, 3, v{t2}")
    a(f"v_lshlrev_b32 v{t1}, 8, v{t1}")
    if dword == "S" and C.fine and NS == 4:
        a(f"s_and_b32 s{T0}, s{sN}, 7"); a(f"s_lshl_b32 s{T0}, 1, s{T0}"); a(f"v_mov_b32 v{l}, s{T0}")
    else:
        a(f"v_mov_b32 v{l}, 1")
    if dword == "S":
        a(f"s_lshr_b32 s{T0}, s{sN}, 3"); a(f"s_lshl_b32 s{T0}, s{T0}, 2"); a(f"s_add_u32 s{T0}, s{T0}, {WS_MB}")
    else:
        a(f"s_mov_b32 s{T0}, {WS_MB + 4*dword}")
    a("s_mov_b32 exec_hi, 0")
    a(f"buffer_atomic_add v{l}, v{t1}, s[{SWS}:{SWS+3}], s{T0} offen sc1")
    a("s_mov_b64 exec, -1")

def bulk_prefetch(a, G, vdummy, vaddr):
    a(f"v_lshlrev_b32 v{vaddr}, 4, v0")
    n = 0
    for name, size in C.pflist:
        size = {"x": L*D*2, "w1": D*F*2, "bre": P_*D*2, "bim": P_*D*2, "cre": D*P_*2, "cim": D*P_*2, "w2": F*D*2}[name]
        share = size // 256; pw = share // 8
        a(f"s_mul_i32 s{U0}, s2, {share}"); a(f"s_mul_i32 s{U1}, s{sWave}, {pw}"); a(f"s_add_u32 s{U0}, s{U0}, s{U1}")
        a(f"s_mov_b32 s{SS}, s{PTR[name]}"); a(f"s_mov_b32 s{SS+1}, s{PTR[name]+1}")
        a(f"s_add_u32 s{SS+2}, s{U0}, {pw}"); a(f"s_mov_b32 s{SS+3}, 0x20000")
        for i in range(-(-pw // 1024)):
            a(f"buffer_load_dwordx4 {vr(vdummy,4)}, v{vaddr}, s[{SS}:{SS+3}], s{U0} offen offset:{i*1024}")
            n += 1
    G.note('pf', n)

def tlb_warm(a, vdummy, vaddr, names, tsrd):
    sizes = {"w2": F*D*2, "cre": D*P_*2, "cim": D*P_*2, "out": L*D*4, "lre": 2048, "lim": 2048, "ldt": 2048, "dsk": 2048, "b2": 2048, "gw": 2048}
    a(f"v_lshlrev_b32 v{vaddr}, {C.tlbshift}, v0")
    end = newlabel("tw")
    for w in range(8):
        nx = newlabel("tw")
        a(f"s_cmp_lg_u32 s{sWave}, {w}"); a(f"s_cbranch_scc1 {nx}")
        for name in names[w::8]:
            if name == "ws":
                a("s_mov_b32 exec_lo, 0x00ffffff"); a("s_mov_b32 exec_hi, 0")
                a(f"buffer_load_dword v{vdummy}, v{vaddr}, s[{SWS}:{SWS+3}], 0 offen")
                a("s_mov_b64 exec, -1")
            elif name == "dbg":
                a(f"buffer_load_dword v{vdummy}, v{vaddr}, s[{SDBG}:{SDBG+3}], 0 offen")
            else:
                a(f"s_mov_b32 s{tsrd}, s{PTR[name]}"); a(f"s_mov_b32 s{tsrd+1}, s{PTR[name]+1}"); a(f"s_mov_b32 s{tsrd+2}, {sizes[name]}"); a(f"s_mov_b32 s{tsrd+3}, 0x20000")
                a(f"buffer_load_dword v{vdummy}, v{vaddr}, s[{tsrd}:{tsrd+3}], 0 offen")
        a(f"s_branch {end}")
        a.label(nx)
    a.label(end)

def warm_groups(tsrd, vaddr):
    c = []
    end = newlabel("wg")
    c.append(f"v_lshlrev_b32 v{vaddr}, 20, v0")
    for w, name in enumerate(("a2", "cre", "cim", "w2")):
        nx = newlabel("wg")
        c += [f"s_cmp_lg_u32 s{sWave}, {w}", f"s_cbranch_scc1 {nx}"]
        if name == "a2":
            c += [f"s_mul_i32 s{U0}, s{sM}, {256*RS_A2}", "s_mov_b64 exec, 15",
                  f"buffer_load_dword v250, v{vaddr}, s[{SWS}:{SWS+3}], s{U0} offen", "s_mov_b64 exec, -1"]
        else:
            size = {"cre": D*P_*2, "cim": D*P_*2, "w2": F*D*2}[name]
            c += [f"s_mov_b32 s{tsrd}, s{PTR[name]}", f"s_mov_b32 s{tsrd+1}, s{PTR[name]+1}", f"s_mov_b32 s{tsrd+2}, {size}", f"s_mov_b32 s{tsrd+3}, 0x20000",
                  f"buffer_load_dword v250, v{vaddr}, s[{tsrd}:{tsrd+3}], 0 offen"]
        c += [f"s_branch {end}", f"{nx}:"]
    c.append(f"{end}:")
    return [c], 0

def phase1_dense(a):
    V = Regs(10)
    TP, TQ = 224, 256
    mp, mq = 7, 4
    Pop = OpNC(a, V, TP, 0, mp, F * 2)
    NBP, NBQ = (3, 2) if C.d1p else (2, 3)
    Qop = OpKC(a, V, TQ, NBP * Pop.bytes, mq); Qop.groups = [[0, 1, 2, 3]]
    G = Gemm(a, V, NBP, NBQ, Pop.bytes, Qop.bytes, mp, mq, (sBufD, sBufR, sTile, sTt, sCnt, sRole), False, 'P' if C.d1p else 'Q', 'd1')
    LDS1 = NBP * Pop.bytes + NBQ * Qop.bytes
    acc = V.get(4 * mp * mq, 2)
    vb = V.get(2 * mp, 2); vdum = V.get(4, 2)
    a(f"s_lshr_b32 s{sWp}, s{sWave}, 2"); a(f"s_and_b32 s{sWq}, s{sWave}, 3")
    a(f"s_mul_i32 s{T0}, s{sN}, {TP*2}")
    Pop.setup_dma(sWave, VT, T0, U0)
    Qop.lane_chunk(VT, VT + 1)
    a(f"v_lshrrev_b32 v{VT+1}, 3, v0"); a(f"v_lshl_add_u32 v{VT}, v{VT+1}, 11, v{VT}")
    for j in range(4):
        a(f"s_lshl_b32 s{T0}, s{sM}, 8"); a(f"s_lshl_b32 s{T1}, s{sWave}, 5"); a(f"s_add_u32 s{T0}, s{T0}, s{T1}")
        a(f"s_add_u32 s{T0}, s{T0}, {8*j}"); a(f"s_lshl_b32 s{T0}, s{T0}, 11"); a(f"s_sub_u32 s{T0}, s{T0}, {j*1024}")
        Qop.set_voff(j, VT, T0, bool(j & 1))
    Pop.setup_lds(sWave, sLdsP, U0)
    a(f"s_lshl_b32 s{sLdsQ}, s{sWave}, 12"); a(f"s_add_u32 s{sLdsQ}, s{sLdsQ}, {Qop.lds_off}")
    a(f"s_mul_i32 s{sKP}, s{sRot}, {64*F*2}"); a(f"s_lshl_b32 s{sKQ}, s{sRot}, 7")
    a("s_waitcnt lgkmcnt(0)")
    stamp(a, 1, st="pro")
    srd(a, SX, PTR["x"], L * D * 2); srd(a, SWS, PTR["ws"], WS_SIZE); srd(a, SDBG, PTR["dbg"], 256)
    srd(a, SA, PTR["w1"], D * F * 2)
    kadvP = [f"s_add_u32 s{sKP}, s{sKP}, {64*F*2}", f"s_cmp_eq_u32 s{sKP}, {D*F*2}", f"s_cselect_b32 s{sKP}, 0, s{sKP}"]
    kadvQ = [f"s_add_u32 s{sKQ}, s{sKQ}, 128", f"s_and_b32 s{sKQ}, s{sKQ}, 2047"]
    seg = Seg(Pop, Qop, acc, lambda b: Pop.dma(b, sKP, sTmp, sLdsP, SA, sWave), lambda b: Qop.dma(b, sKQ, sTmp, sLdsQ, [SX] * 4), kadvP, kadvQ, "d1")
    stages = [seg] * 16
    G.prologue(stages, "PQ", 0, 1)
    if C.pbar: a("s_barrier")
    if C.tlb: tlb_warm(a, 250, VT + 5, ["ws", "w2", "cre", "cim", "out", "dbg", "dsk", "b2"], SS); G.note('tlb', 1)
    stamp(a, 2, st="pro")
    a(f"s_mul_i32 s{T2}, s{sN}, {TP}"); a(f"s_mul_i32 s{T3}, s{sWp}, {mp*16}"); a(f"s_add_u32 s{T2}, s{T2}, s{T3}")
    a(f"s_lshl_b32 s{T3}, s{T2}, 1")
    a(f"v_lshrrev_b32 v{VT+2}, 4, v0"); a(f"v_lshlrev_b32 v{VT+2}, 3, v{VT+2}")
    srd(a, SS, PTR["b1"], F * 2)
    for i in range(mp):
        a(f"buffer_load_dwordx2 {vr(vb+2*i,2)}, v{VT+2}, s[{SS}:{SS+3}], s{T3} offen offset:{32*i}")
    G.note('misc', mp)
    a(f"s_mul_i32 s{T0}, s{sWp}, {mp}"); Pop.setup_read(T0, VT, U0)
    a(f"s_mul_i32 s{T0}, s{sWq}, {mq}"); Qop.setup_read(T0, VT, U0)
    stamp(a, 3, st="pro")
    G.prologue(stages, "PQ", 1)
    stamp(a, 4, st="pro")
    a(f"s_waitcnt vmcnt({G.vm_allow({'misc'})})")
    for i in range(mp):
        c = acc + 4 * (i * mq)
        a(f"v_lshlrev_b32 v{c}, 16, v{vb+2*i}"); a(f"v_and_b32 v{c+1}, 0xffff0000, v{vb+2*i}")
        a(f"v_lshlrev_b32 v{c+2}, 16, v{vb+2*i+1}"); a(f"v_and_b32 v{c+3}, 0xffff0000, v{vb+2*i+1}")
        for j in range(1, mq):
            for r in range(4): a(f"v_mov_b32 v{c+4*j+r}, v{c+r}")
    stamp(a, 1)
    G.pre_first = lambda: stamp(a, 5, st="pro")
    dex = {C.initit: mb_zero_groups(VT + 2)}
    if C.midwarm: dex[C.midwarm] = warm_groups(SS, VT + 3)
    G.run(stages, {C.initit + 3: (lambda: init_signal(a, VT + 4))}, dex, (lambda: stamp(a, 6, st="pro")))
    stamp(a, 2)
    stamp(a, 1, st="clk"); stamp(a, 2, real=True, st="clk")
    PITCH = 464
    stamp(a, 1, st="dense")
    init_load(a)
    vw = VT
    a(f"v_and_b32 v{vw}, 15, v0"); a(f"v_mul_u32_u24 v{vw}, {PITCH}, v{vw}")
    a(f"v_lshrrev_b32 v{VT+1}, 4, v0"); a(f"v_lshl_add_u32 v{vw}, v{VT+1}, 3, v{vw}")
    a(f"s_mul_i32 s{T0}, s{sWq}, {64*PITCH}"); a(f"s_mul_i32 s{T1}, s{sWp}, 224"); a(f"s_add_u32 s{T0}, s{T0}, s{T1}")
    a(f"v_add_u32 v{vw}, s{T0}, v{vw}")
    vr_, vg_ = VT + 1, VT + 2
    a(f"v_cmp_le_u32 vcc, 28, v0"); a("s_nop 1")
    a(f"v_cndmask_b32 v{VT+3}, 0, 1, vcc")
    a(f"v_mul_u32_u24 v{VT+4}, 28, v{VT+3}"); a(f"v_sub_u32 v{VT+4}, v0, v{VT+4}")
    a(f"v_lshlrev_b32 v{VT+4}, 4, v{VT+4}")
    a(f"v_mul_u32_u24 v{vr_}, {PITCH}, v{VT+3}"); a(f"v_add_u32 v{vr_}, v{vr_}, v{VT+4}")
    NH = C.dparts; JP = mq // NH; RW = 8 * JP
    a(f"s_mul_i32 s{T0}, s{sWq}, {64*PITCH}"); a(f"s_mul_i32 s{T1}, s{sWp}, {RW*PITCH}"); a(f"s_add_u32 s{T0}, s{T0}, s{T1}")
    a(f"v_add_u32 v{vr_}, s{T0}, v{vr_}")
    a(f"v_mul_u32_u24 v{vg_}, {RS_A2}, v{VT+3}"); a(f"v_add_u32 v{vg_}, v{vg_}, v{VT+4}")
    a(f"s_lshl_b32 s{T0}, s{sM}, 8"); a(f"s_lshl_b32 s{T1}, s{sWq}, 6"); a(f"s_add_u32 s{T0}, s{T0}, s{T1}")
    a(f"s_mul_i32 s{T1}, s{sWp}, {RW}"); a(f"s_add_u32 s{T0}, s{T0}, s{T1}")
    a(f"s_mul_i32 s{T0}, s{T0}, {RS_A2}"); a(f"s_mul_i32 s{T1}, s{sN}, 448"); a(f"s_add_u32 s{T0}, s{T0}, s{T1}")
    a(f"s_add_u32 s{T0}, s{T0}, {WS_A2 + 4096}")
    rb = G.F[0][0]
    for p in range(NH):
        js = range(p * JP, (p + 1) * JP)
        for j in js:
            for i in range(mp):
                c = acc + 4 * (i * mq + j)
                for r in range(4): a(f"v_mul_f32_e64 v{c+r}, v{c+r}, |v{c+r}|")
                a(f"v_cvt_pk_bf16_f32 v{c}, v{c}, v{c+1}"); a(f"v_cvt_pk_bf16_f32 v{c+1}, v{c+2}, v{c+3}")
                a(f"v_pk_max_i16 v{c}, v{c}, 0"); a(f"v_pk_max_i16 v{c+1}, v{c+1}, 0")
        if p == 0:
            a("s_barrier")
            stamp(a, 2, st="dense")
        for j in js:
            for i in range(mp):
                c = acc + 4 * (i * mq + j)
                a(f"ds_write_b64 v{vw}, {vr(c,2)} offset:{j*16*PITCH + 32*i}")
        a("s_waitcnt lgkmcnt(0)")
        if p == 0: stamp(a, 3, st="dense")
        a("s_barrier")
        if p == 0: stamp(a, 4, st="dense")
        a("s_mov_b32 exec_hi, 0x00ffffff")
        nst = RW // 2
        for n in range(nst):
            a(f"ds_read_b128 {vr(rb+4*n,4)}, v{vr_} offset:{(16*JP*p + 2*n)*PITCH}")
        if p: a(f"s_add_u32 s{T0}, s{T0}, {(16*JP - RW)*RS_A2}")
        for n in range(nst):
            a(f"s_waitcnt lgkmcnt({nst-1-n})")
            a(f"buffer_store_dwordx4 {vr(rb+4*n,4)}, v{vg_}, s[{SWS}:{SWS+3}], s{T0} offen{C.wt}")
            a(f"s_add_u32 s{T0}, s{T0}, {2*RS_A2}")
        a("s_mov_b64 exec, -1")
        if p < NH - 1: a("s_nop 1")
    stamp(a, 5, st="dense")
    return V.hi, max(LDS1, 4 * 64 * PITCH)

def phase1_ssm(a):
    V = Regs(10)
    mp, mq = 4, 4
    Pop = OpKC(a, V, 256, 0, mp); Pop.groups = [[0, 1, 2, 3]]
    Qop = OpKC(a, V, 128, Pop.bytes, mq); Qop.groups = [[0], [1]]; Qop.ldsoffs = [0, 8192]
    Qop.frag_off = lambda j: ((j & 1) * 4 + (j >> 1)) * 2048
    SB = Pop.bytes + Qop.bytes; NB = 3
    G = Gemm(a, V, NB, NB, Pop.bytes, Qop.bytes, mp, mq, (sBufD, sBufR, None, None, sCnt, sRole), True, 'P', 's1')
    acc = V.get(64, 2); prm = V.get(12, 4); big = V.get(72, 4)
    AG = NB * SB
    a(f"s_lshr_b32 s{sWp}, s{sWave}, 1"); a(f"s_and_b32 s{sWq}, s{sWave}, 1")
    Pop.lane_chunk(VT, VT + 1)
    a(f"v_lshrrev_b32 v{VT+1}, 5, v0"); a(f"v_lshlrev_b32 v{VT+1}, 4, v{VT+1}")
    a(f"v_bfe_u32 v{VT+2}, v0, 3, 2"); a(f"v_add_u32 v{VT+1}, v{VT+1}, v{VT+2}")
    a(f"v_lshl_add_u32 v{VT+3}, v{VT+1}, 11, v{VT}")
    for j in range(4):
        a(f"s_lshl_b32 s{T0}, s{sWave}, 1");
        if j >> 1: a(f"s_add_u32 s{T0}, s{T0}, 1")
        a(f"s_and_b32 s{T0}, s{T0}, 3"); a(f"s_lshl_b32 s{T0}, s{T0}, 2")
        a(f"s_lshl_b32 s{T1}, s{sWp}, 6"); a(f"s_add_u32 s{T0}, s{T0}, s{T1}")
        a(f"s_lshl_b32 s{T1}, s{sM}, 8"); a(f"s_add_u32 s{T0}, s{T0}, s{T1}")
        if j & 1: a(f"s_add_u32 s{T0}, s{T0}, 32")
        a(f"s_lshl_b32 s{T0}, s{T0}, 11")
        if j: a(f"s_sub_u32 s{T0}, s{T0}, {j*1024}")
        Pop.set_voff(j, VT + 3, T0, bool(j & 1))
    a(f"v_lshrrev_b32 v{VT+1}, 3, v0"); a(f"v_lshl_add_u32 v{VT+3}, v{VT+1}, 12, v{VT}")
    a(f"s_lshr_b32 s{T0}, s{sWave}, 2"); a(f"s_lshl_b32 s{T0}, s{T0}, 5")
    a(f"s_and_b32 s{T1}, s{sWave}, 1"); a(f"s_lshl_b32 s{T2}, s{T1}, 6"); a(f"s_lshl_b32 s{T1}, s{T1}, 4"); a(f"s_add_u32 s{T0}, s{T0}, s{T1}")
    a(f"s_bfe_u32 s{T1}, s{sWave}, 0x10001"); a(f"s_add_u32 s{T0}, s{T0}, s{T1}")
    a(f"s_lshl_b32 s{T1}, s{sN}, 6"); a(f"s_add_u32 s{T0}, s{T0}, s{T1}"); a(f"s_lshl_b32 s{T0}, s{T0}, 11")
    Qop.set_voff(0, VT + 3, T0, T2)
    a(f"v_mov_b32 v{Qop.vd+1}, v{Qop.vd}")
    a(f"s_lshl_b32 s{sLdsP}, s{sWave}, 12")
    a(f"s_lshl_b32 s{sLdsQ}, s{sWave}, 10"); a(f"s_add_u32 s{sLdsQ}, s{sLdsQ}, {Qop.lds_off}")
    a(f"s_lshl_b32 s{sKQ}, s{sRot}, 7")
    a("s_waitcnt lgkmcnt(0)")
    srd(a, SX, PTR["x"], L * D * 2); srd(a, SWS, PTR["ws"], WS_SIZE); srd(a, SDBG, PTR["dbg"], 256)
    srd(a, SA, PTR["bre"], P_ * D * 2); srd(a, SB_, PTR["bim"], P_ * D * 2)
    pt = [big, big + 8, big + 16]
    kadv = [f"s_add_u32 s{sKQ}, s{sKQ}, 128", f"s_and_b32 s{sKQ}, s{sKQ}, 2047"]
    kadvP = [f"s_add_u32 s{sKP}, s{sKP}, 128", f"s_and_b32 s{sKP}, s{sKP}, 2047"]
    a(f"s_mov_b32 s{sKP}, s{sKQ}")
    seg = Seg(Pop, Qop, acc, lambda b: Pop.dma(b, sKP, sTmp, sLdsP, [SX] * 4), lambda b: Qop.dma(b, sKQ, sTmp, sLdsQ, [SA, SB_]), kadvP, kadv, "s1")
    if C.prefetch:
        SP1, SP2, sPF1, sPF2 = SS, 72, sLdsP2, sKP2
        a(f"s_lshl_b32 s{T0}, s{sM}, 4"); a(f"s_add_u32 s{T0}, s{T0}, s{sN}")
        a(f"s_mul_i32 s{sPF2}, s{T0}, {56*1024}"); a(f"s_mul_i32 s{T1}, s{sWave}, {7*1024}"); a(f"s_add_u32 s{sPF2}, s{sPF2}, s{T1}")
        a(f"s_mov_b32 s{SP2}, s{PTR['w2']}"); a(f"s_mov_b32 s{SP2+1}, s{PTR['w2']+1}")
        a(f"s_add_u32 s{SP2+2}, s{sPF2}, {7*1024}"); a(f"s_mov_b32 s{SP2+3}, 0x20000")
        a(f"s_lshr_b32 s{T1}, s{T0}, 6"); a(f"s_cmp_eq_u32 s{T1}, 0")
        a(f"s_cselect_b32 s{SP1}, s{PTR['cre']}, s{PTR['cim']}"); a(f"s_cselect_b32 s{SP1+1}, s{PTR['cre']+1}, s{PTR['cim']+1}")
        a(f"s_and_b32 s{sPF1}, s{T0}, 63"); a(f"s_lshl_b32 s{sPF1}, s{sPF1}, 15"); a(f"s_lshl_b32 s{T1}, s{sWave}, 12"); a(f"s_add_u32 s{sPF1}, s{sPF1}, s{T1}")
        a(f"s_add_u32 s{SP1+2}, s{sPF1}, 4096"); a(f"s_mov_b32 s{SP1+3}, 0x20000")
        vpf = V.get(1); vpd = V.get(4, 2)
        a(f"v_lshlrev_b32 v{vpf}, 4, v0")
        pf = []
        for i in range(4): pf.append([f"buffer_load_dwordx4 {vr(vpd,4)}, v{vpf}, s[{SP1}:{SP1+3}], s{sPF1} offen offset:{i*1024}"])
        for i in range(7):
            pf.append([f"buffer_load_dwordx4 {vr(vpd,4)}, v{vpf}, s[{SP2}:{SP2+3}], s{sPF2} offen offset:{(i%4)*1024}"] + ([f"s_add_u32 s{sPF2}, s{sPF2}, 4096"] if i == 3 else []))
        p1extras = {C.pfit: (pf, 11)}
    else:
        p1extras = {}
    stages = [seg] * 16
    G.prologue(stages, "PQ", 0, 1)
    a(f"s_mul_i32 s{T0}, s{sWp}, {mp}"); Pop.setup_read(T0, VT, U0)
    a(f"s_lshl_b32 s{T0}, s{sWq}, 1"); Qop.setup_read(T0, VT, U0)
    G.zero_first = True
    if C.pbar: a("s_barrier")
    if C.tlb: tlb_warm(a, 250, VT + 5, ["ws", "w2", "cre", "cim", "out", "dbg", "dsk", "b2", "lre", "lim", "ldt", "gw"], 60); G.note('tlb', 1)
    G.prologue(stages, "PQ", 1)
    SPRM = 60
    def prm_loads():
        out = []
        class Cap:
            def __call__(self, x): out.append([x])
        c = Cap()
        c(f"s_lshl_b32 s{T2}, s{sN}, 6"); c(f"s_lshl_b32 s{T3}, s{sWq}, 5"); c(f"s_add_u32 s{T3}, s{T3}, s{T2}")
        c(f"v_and_b32 v{VT}, 15, v0"); c(f"v_lshlrev_b32 v{VT}, 1, v{VT}"); c(f"v_add_u32 v{VT}, s{T3}, v{VT}")
        c(f"v_lshlrev_b32 v{pt[0]}, 1, v{VT}"); c(f"v_add_u32 v{pt[1]}, 2, v{pt[0]}")
        c(f"v_add_u32 v{pt[2]}, s{T2}, v0"); c(f"v_lshlrev_b32 v{pt[2]}, 1, v{pt[2]}")
        c(f"s_mov_b32 s{SPRM+2}, 2048"); c(f"s_mov_b32 s{SPRM+3}, 0x20000")
        for k, name in enumerate(("lre", "lim", "ldt")):
            out.append([f"s_mov_b32 s{SPRM}, s{PTR[name]}", f"s_mov_b32 s{SPRM+1}, s{PTR[name]+1}"] +
                       [f"buffer_load_ushort v{pt[q]+1+k}, v{pt[q]}, s[{SPRM}:{SPRM+3}], 0 offen" for q in range(3)])
        return out
    def prm_math():
        out = []
        class Cap:
            def __call__(self, x): out.append(x)
        c = Cap()
        ssm_params_compute(c, prm, pt[0]); ssm_params_compute(c, prm + 4, pt[1]); ssm_params_compute(c, prm + 8, pt[2], False)
        return [out[i:i + 4] for i in range(0, len(out), 4)]
    p1extras[3] = (prm_loads(), 9)
    p1extras[7] = (prm_math(), 0)
    stamp(a, 1)
    p1extras[C.initit] = mb_zero_groups(VT + 2, True)
    if C.midwarm: p1extras[C.midwarm] = warm_groups(60, VT + 3)
    G.run(stages, {C.initit + 3: (lambda: init_signal(a, VT + 4))}, p1extras)
    stamp(a, 2)
    stamp(a, 1, st="clk"); stamp(a, 2, real=True, st="clk")
    stamp(a, 1, st="ssm")
    init_load(a)
    a("s_nop 7")
    def U(jc, ri, s): return acc + 4 * ((s >> 2) * 4 + 2 * jc + ri) + (s & 3)
    ag = big; tt = big + 4
    def scan_step(s):
        for jc in range(2):
            hr, hi_ = ag + 2 * jc, ag + 2 * jc + 1; lr = prm + 4 * jc; t0, t1 = tt + 2 * jc, tt + 2 * jc + 1
            a(f"v_fma_f32 v{t0}, v{lr}, v{hr}, v{U(jc,0,s)}"); a(f"v_fma_f32 v{t1}, v{lr}, v{hi_}, v{U(jc,1,s)}")
        for jc in range(2):
            hr, hi_ = ag + 2 * jc, ag + 2 * jc + 1; li = prm + 4 * jc + 1; t0, t1 = tt + 2 * jc, tt + 2 * jc + 1
            a(f"v_fma_f32 v{hi_}, v{li}, -v{hi_}, v{t0}")
            a(f"v_fma_f32 v{t1}, v{li}, v{hr}, v{t1}")
        for jc in range(2):
            hr, hi_ = ag + 2 * jc, ag + 2 * jc + 1; t1 = tt + 2 * jc + 1
            a(f"v_mov_b32 v{hr}, v{hi_}"); a(f"v_mov_b32 v{hi_}, v{t1}")
    for jc in range(2):
        a(f"v_mov_b32 v{ag+2*jc}, v{U(jc,0,0)}"); a(f"v_mov_b32 v{ag+2*jc+1}, v{U(jc,1,0)}")
    def scan2(s, src, dst):
        for jc in range(2):
            hr, hi_ = src + 2 * jc, src + 2 * jc + 1; lr = prm + 4 * jc; dr, di = dst + 2 * jc, dst + 2 * jc + 1
            a(f"v_fma_f32 v{dr}, v{lr}, v{hr}, v{U(jc,0,s)}"); a(f"v_fma_f32 v{di}, v{lr}, v{hi_}, v{U(jc,1,s)}")
        for jc in range(2):
            hr, hi_ = src + 2 * jc, src + 2 * jc + 1; li = prm + 4 * jc + 1; dr, di = dst + 2 * jc, dst + 2 * jc + 1
            a(f"v_fma_f32 v{dr}, -v{li}, v{hi_}, v{dr}"); a(f"v_fma_f32 v{di}, v{li}, v{hr}, v{di}")
    st = [ag, tt]
    for s in range(1, 16): scan2(s, st[(s - 1) & 1], st[s & 1])
    fin = st[15 & 1]
    vag = big + 8
    def calc_vag():
        a(f"v_lshrrev_b32 v{vag}, 4, v0"); a(f"s_lshl_b32 s{T0}, s{sWp}, 2"); a(f"v_add_u32 v{vag}, s{T0}, v{vag}")
        a(f"v_lshlrev_b32 v{vag}, 9, v{vag}")
        a(f"v_and_b32 v{big+9}, 15, v0"); a(f"v_lshlrev_b32 v{big+9}, 4, v{big+9}")
        a(f"s_lshl_b32 s{T0}, s{sWq}, 8"); a(f"s_add_u32 s{T0}, s{T0}, {AG}")
        a(f"v_add3_u32 v{vag}, v{vag}, v{big+9}, s{T0}")
    calc_vag()
    a(f"ds_write_b128 v{vag}, {vr(fin,4)}")
    a("s_waitcnt lgkmcnt(0)")
    a("s_barrier")
    stamp(a, 2, st="ssm")
    a(f"s_cmp_lg_u32 s{sWave}, 0")
    a("s_cbranch_scc1 L_s_gate")
    lr, li = prm + 8, prm + 9
    l16r, l16i, l256r, l256i = big + 10, big + 11, big + 12, big + 13
    er, ei = big + 14, big + 15
    w0 = big + 4
    A = big + 16; vl = big + 9
    a(f"v_lshlrev_b32 v{vl}, 3, v0"); a(f"v_add_u32 v{vl}, {AG}, v{vl}")
    for s in range(16): a(f"ds_read_b64 {vr(A+2*s,2)}, v{vl} offset:{s*512}")
    csq(a, l16r, l16i, lr, li, w0)
    for _ in range(3): csq(a, l16r, l16i, l16r, l16i, w0)
    csq(a, l256r, l256i, l16r, l16i, w0)
    for _ in range(3): csq(a, l256r, l256i, l256r, l256i, w0)
    a("s_waitcnt lgkmcnt(0)")
    x0, x1 = big + 6, big + 7
    for s in range(1, 16):
        pr, pi, cr_, ci_ = A + 2 * (s - 1), A + 2 * (s - 1) + 1, A + 2 * s, A + 2 * s + 1
        a(f"v_fma_f32 v{cr_}, v{l16r}, v{pr}, v{cr_}"); a(f"v_fma_f32 v{ci_}, v{l16r}, v{pi}, v{ci_}")
        a(f"v_fma_f32 v{cr_}, -v{l16i}, v{pi}, v{cr_}"); a(f"v_fma_f32 v{ci_}, v{l16i}, v{pr}, v{ci_}")
    er, ei = A + 30, A + 31
    vo = big + 8
    a(f"s_lshl_b32 s{T0}, s{sN}, 6"); a(f"v_add_u32 v{vo}, s{T0}, v0"); a(f"v_lshlrev_b32 v{vo}, 3, v{vo}")
    a(f"s_lshl_b32 s{T1}, s{sM}, 13"); a(f"s_add_u32 s{T1}, s{T1}, {WS_AGG}")
    a("s_waitcnt vmcnt(0)")
    init_check(a, big + 52)
    a(f"s_lshl_b32 s{T1}, s{sM}, 13"); a(f"s_add_u32 s{T1}, s{T1}, {WS_AGG}")
    a(f"buffer_store_dwordx2 {vr(er,2)}, v{vo}, s[{SWS}:{SWS+3}], s{T1} offen sc1")
    stamp(a, 3, st="ssm")
    cr, ci = big + 48, big + 49
    a(f"v_mov_b32 v{cr}, 0"); a(f"v_mov_b32 v{ci}, 0")
    a(f"s_cmp_eq_u32 s{sM}, 0"); a("s_cbranch_scc1 L_s_nolb")
    B = big + 50
    a(f"s_mov_b32 s{U2}, {C.spin}")
    a.label("L_s_lb")
    for j in range(7):
        if j: a(f"s_cmp_le_u32 s{sM}, {j}"); a("s_cbranch_scc1 L_s_lbw")
        a(f"s_mov_b32 s{T1}, {WS_AGG + j*8192}")
        a(f"buffer_load_dwordx2 {vr(B+2*j,2)}, v{vo}, s[{SWS}:{SWS+3}], s{T1} offen sc1")
    a.label("L_s_lbw")
    a("s_waitcnt vmcnt(0)")
    a(f"s_mov_b64 s[{U0}:{U1}], 0")
    for j in range(7):
        if j: a(f"s_cmp_le_u32 s{sM}, {j}"); a("s_cbranch_scc1 L_s_lbc")
        a(f"v_cmp_eq_u32 vcc, -1, v{B+2*j}"); a("s_nop 0"); a(f"s_or_b64 s[{U0}:{U1}], s[{U0}:{U1}], vcc")
        a(f"v_cmp_eq_u32 vcc, -1, v{B+2*j+1}"); a("s_nop 0"); a(f"s_or_b64 s[{U0}:{U1}], s[{U0}:{U1}], vcc")
    a.label("L_s_lbc")
    a(f"s_cmp_eq_u64 s[{U0}:{U1}], 0"); a("s_cbranch_scc1 L_s_lbok")
    a(f"s_sub_u32 s{U2}, s{U2}, 1"); a(f"s_cmp_eq_u32 s{U2}, 0"); a("s_cbranch_scc1 L_s_lbok")
    a(f"s_sleep {C.sleep}"); a("s_branch L_s_lb")
    a.label("L_s_lbok")
    for j in range(7):
        a(f"s_cmp_le_u32 s{sM}, {j}"); a("s_cbranch_scc1 L_s_nolb")
        a(f"v_fma_f32 v{x0}, v{l256r}, v{cr}, v{B+2*j}"); a(f"v_fma_f32 v{x1}, v{l256r}, v{ci}, v{B+2*j+1}")
        a(f"v_fma_f32 v{x0}, -v{l256i}, v{ci}, v{x0}"); a(f"v_fma_f32 v{ci}, v{l256i}, v{cr}, v{x1}")
        a(f"v_mov_b32 v{cr}, v{x0}")
    a.label("L_s_nolb")
    stamp(a, 4, st="ssm")
    a(f"ds_write_b64 v{vl}, {vr(cr,2)}")
    for s in range(1, 16):
        a(f"v_mul_f32 v{x0}, v{l16r}, v{cr}"); a(f"v_mul_f32 v{x1}, v{l16r}, v{ci}")
        a(f"v_fma_f32 v{x0}, -v{l16i}, v{ci}, v{x0}"); a(f"v_fma_f32 v{ci}, v{l16i}, v{cr}, v{x1}")
        a(f"v_mov_b32 v{cr}, v{x0}")
        a(f"v_add_f32 v{A+2*(s-1)}, v{A+2*(s-1)}, v{cr}"); a(f"v_add_f32 v{A+2*(s-1)+1}, v{A+2*(s-1)+1}, v{ci}")
        a(f"ds_write_b64 v{vl}, {vr(A+2*(s-1),2)} offset:{s*512}")
    a("s_waitcnt lgkmcnt(0)")
    a("s_branch L_s_wait")
    a.label("L_s_gate")
    gxs = [big + 16, big + 24, big + 32]; gws = big + 40; gt = big + 48
    a(f"s_lshl_b32 s{T0}, s{sM}, 8"); a(f"s_lshl_b32 s{T1}, s{sN}, 4"); a(f"s_add_u32 s{T0}, s{T0}, s{T1}")
    a(f"s_add_u32 s{T0}, s{T0}, s{sWave}"); a(f"s_sub_u32 s{T0}, s{T0}, 1")
    a(f"s_add_u32 s{T1}, s{T0}, 7"); a(f"s_add_u32 s{T2}, s{T0}, 14")
    a(f"v_lshlrev_b32 v{gt}, 5, v0")
    srd(a, SS, PTR["gw"], 2048)
    a(f"buffer_load_dwordx4 {vr(gws,4)}, v{gt}, s[{SS}:{SS+3}], 0 offen"); a(f"buffer_load_dwordx4 {vr(gws+4,4)}, v{gt}, s[{SS}:{SS+3}], 0 offen offset:16")
    gate_row_loads(a, T0, gxs[0], gt); gate_row_loads(a, T1, gxs[1], gt)
    a(f"s_cmp_gt_u32 s{sWave}, 2"); a("s_cbranch_scc1 L_s_g2")
    gate_row_loads(a, T2, gxs[2], gt)
    a("s_waitcnt vmcnt(0)")
    gate_compute(a, T2, gxs[2], gws, gt + 1)
    a.label("L_s_g2")
    a("s_waitcnt vmcnt(0)")
    gate_compute(a, T0, gxs[0], gws, gt + 1); gate_compute(a, T1, gxs[1], gws, gt + 1)
    a.label("L_s_wait")
    a("s_barrier")
    calc_vag()
    a(f"ds_read_b128 {vr(ag,4)}, v{vag}")
    PITCH = 272
    vw = big + 9
    a(f"v_lshrrev_b32 v{vw}, 4, v0"); a(f"v_lshlrev_b32 v{vw}, 4, v{vw}"); a(f"s_lshl_b32 s{T0}, s{sWp}, 6"); a(f"v_add_u32 v{vw}, s{T0}, v{vw}")
    a(f"v_mul_u32_u24 v{vw}, {PITCH}, v{vw}")
    a(f"v_and_b32 v{big+10}, 15, v0"); a(f"v_lshl_add_u32 v{vw}, v{big+10}, 2, v{vw}")
    a(f"s_lshl_b32 s{T0}, s{sWq}, 6"); a(f"v_add_u32 v{vw}, s{T0}, v{vw}")
    vr_, vg_ = big + 10, big + 11
    a(f"v_lshrrev_b32 v{vr_}, 4, v0"); a(f"s_lshl_b32 s{T0}, s{sWave}, 5"); a(f"v_add_u32 v{vr_}, s{T0}, v{vr_}")
    a(f"s_lshl_b32 s{T1}, s{sM}, 8"); a(f"v_add_u32 v{vg_}, s{T1}, v{vr_}"); a(f"v_mul_u32_u24 v{vg_}, {RS_A2}, v{vg_}")
    a(f"v_mul_u32_u24 v{vr_}, {PITCH}, v{vr_}")
    a(f"v_and_b32 v{big+24}, 15, v0"); a(f"v_lshl_add_u32 v{vr_}, v{big+24}, 4, v{vr_}")
    a(f"v_and_b32 v{big+24}, 7, v0"); a(f"v_lshl_add_u32 v{vg_}, v{big+24}, 4, v{vg_}")
    a(f"v_bfe_u32 v{big+24}, v0, 3, 1"); a(f"v_lshl_add_u32 v{vg_}, v{big+24}, 11, v{vg_}")
    a(f"s_lshl_b32 s{T0}, s{sN}, 7"); a(f"s_add_u32 s{T0}, s{T0}, {WS_A2}")
    a("s_waitcnt lgkmcnt(0)")
    ore, oim, od = big + 12, big + 14, big + 16
    rb = big + 28
    st = [ag, tt]
    NPT = C.sparts; SP_ = 16 // NPT
    for s in range(16):
        scan2(s, st[s & 1], st[(s + 1) & 1])
        h = st[(s + 1) & 1]
        for jc in range(2):
            hr, hi_ = h + 2 * jc, h + 2 * jc + 1; kr, ki = prm + 4 * jc + 2, prm + 4 * jc + 3
            a(f"v_mul_f32 v{ore+jc}, v{kr}, v{hr}"); a(f"v_mul_f32 v{oim+jc}, -v{kr}, v{hi_}")
        for jc in range(2):
            hr, hi_ = h + 2 * jc, h + 2 * jc + 1; kr, ki = prm + 4 * jc + 2, prm + 4 * jc + 3
            a(f"v_fma_f32 v{ore+jc}, -v{ki}, v{hi_}, v{ore+jc}"); a(f"v_fma_f32 v{oim+jc}, -v{ki}, v{hr}, v{oim+jc}")
        d = od + 2 * (s % 4)
        a(f"v_cvt_pk_bf16_f32 v{d}, v{ore}, v{ore+1}"); a(f"v_cvt_pk_bf16_f32 v{d+1}, v{oim}, v{oim+1}")
        a(f"ds_write_b32 v{vw}, v{d} offset:{s*PITCH}"); a(f"ds_write_b32 v{vw}, v{d+1} offset:{s*PITCH+128}")
        if (s + 1) % SP_ == 0:
            p = s // SP_
            if p == NPT - 1: stamp(a, 5, st="ssm")
            ns_ = [n for n in range(8) if SP_ * p <= (4 * n) % 16 < SP_ * (p + 1)]
            a("s_waitcnt lgkmcnt(0)")
            a("s_barrier")
            for k, n in enumerate(ns_): a(f"ds_read_b128 {vr(rb+4*k,4)}, v{vr_} offset:{4*n*PITCH}")
            for k, n in enumerate(ns_):
                a(f"s_waitcnt lgkmcnt({len(ns_)-1-k})")
                a(f"s_add_u32 s{T1}, s{T0}, {4*n*RS_A2}")
                a(f"buffer_store_dwordx4 {vr(rb+4*k,4)}, v{vg_}, s[{SWS}:{SWS+3}], s{T1} offen{C.wt}")
    stamp(a, 6, st="ssm")
    return V.hi, AG + 8192

def phase2(a, role):
    R = "A" if role == 0 else "B"
    SW2, SE = 24, 72
    NS = C.ns
    TQ = 128 if NS == 2 else 256
    TP, mp, mq, NB = 128, 4, NS, (4 if NS == 2 else 3)
    LG = 1 if NS == 2 else 2
    XS = 8 // NS
    sG, sKQ2 = 0, 3
    V = Regs(10)
    P1 = OpKC(a, V, TP, 0, mp); P1.groups = [[0, 1]]
    P2 = OpNC(a, V, TP, 0, mp, D * 2)
    Qop = OpKC(a, V, TQ, TP * 128, mq, flags=C.a2ld); Qop.groups = [list(range(Qop.n))]
    SB = TP * 128 + Qop.bytes
    G = Gemm(a, V, NB, NB, TP * 128, Qop.bytes, mp, mq, (sBufD, sBufR, None, None, sCnt, sRole), True, 'P' if NS == 2 else 'Q', 'p2')
    nf = mp * mq
    accD = V.get(4 * nf, 2)
    accS = V.get(4 * nf, 2)
    vg = V.get(2 * mq, 2); vep = V.get(4)
    vex = V.get(6 * mp, 2) if NS == 2 else G.F[0][0] + (32 if C.xbf16 else 0)
    if NS != 2 and not C.xbf16: vex = accS
    dense = 1 if role == 1 else 0
    a(f"s_and_b32 s{T0}, s2, 7"); a(f"s_lshr_b32 s{T1}, s2, 3")
    a(f"s_lshr_b32 s{sG}, s{T0}, {3-LG}")
    a(f"s_and_b32 s{T2}, s{T0}, {XS-1}"); a(f"s_lshl_b32 s{sTt}, s{T2}, 2"); a(f"s_bfe_u32 s{T2}, s{T1}, 0x20002"); a(f"s_add_u32 s{sTt}, s{sTt}, s{T2}")
    a(f"s_and_b32 s{T2}, s{sG}, 1")
    if dense: a(f"s_xor_b32 s{T2}, s{T2}, 1")
    a(f"s_lshl_b32 s{sDt}, s{T2}, 2"); a(f"s_and_b32 s{T2}, s{T1}, 3"); a(f"s_add_u32 s{sDt}, s{sDt}, s{T2}")
    a(f"s_lshl_b32 s{sTile}, s{sTt}, 3"); a(f"s_add_u32 s{sTile}, s{sTile}, s{sDt}")
    a(f"s_lshr_b32 s{sWp}, s{sWave}, 2"); a(f"s_and_b32 s{sWq}, s{sWave}, 3")
    srd(a, SW2, PTR["w2"], F * D * 2)
    a(f"s_lshr_b32 s{T0}, s{sG}, {LG-1}"); a(f"s_cmp_eq_u32 s{T0}, 0")
    a(f"s_cselect_b32 s{SA}, s{PTR['cre']}, s{PTR['cim']}"); a(f"s_cselect_b32 s{SA+1}, s{PTR['cre']+1}, s{PTR['cim']+1}")
    a(f"s_mov_b32 s{SA+2}, {D*P_*2}"); a(f"s_mov_b32 s{SA+3}, 0x20000")
    Qop.lane_chunk(VT, VT + 1)
    a(f"v_lshrrev_b32 v{VT+1}, 3, v0"); a(f"v_lshl_add_u32 v{VT+3}, v{VT+1}, 11, v{VT}")
    for j in range(2):
        a(f"s_lshl_b32 s{T0}, s{sDt}, 7"); a(f"s_lshl_b32 s{T1}, s{sWave}, 4"); a(f"s_add_u32 s{T0}, s{T0}, s{T1}")
        if j: a(f"s_add_u32 s{T0}, s{T0}, 8")
        a(f"s_lshl_b32 s{T0}, s{T0}, 11")
        if j: a(f"s_sub_u32 s{T0}, s{T0}, 1024")
        P1.set_voff(j, VT + 3, T0, bool(j & 1))
    a(f"s_lshl_b32 s{sLdsP}, s{sWave}, 11")
    a(f"s_lshl_b32 s{T0}, s{sDt}, 8")
    P2.setup_dma(sWave, VT + 4, T0, U0)
    P2.setup_lds(sWave, sLdsP2, U0)
    a(f"v_lshrrev_b32 v{VT+1}, 3, v0"); a(f"v_mul_u32_u24 v{VT+1}, {RS_A2}, v{VT+1}"); a(f"v_add_u32 v{VT+3}, v{VT+1}, v{VT}")
    for j in range(Qop.n):
        a(f"s_mul_i32 s{T0}, s{sWave}, {TQ//8}")
        if j: a(f"s_add_u32 s{T0}, s{T0}, {8*j}")
        a(f"s_lshr_b32 s{T1}, s{T0}, 4"); a(f"s_add_u32 s{T1}, s{T1}, s{sG}"); a(f"s_and_b32 s{T1}, s{T1}, {NS-1}"); a(f"s_lshl_b32 s{T1}, s{T1}, 4")
        a(f"s_andn2_b32 s{T0}, s{T0}, {(NS-1) << 4}"); a(f"s_or_b32 s{T0}, s{T0}, s{T1}")
        a(f"s_mul_i32 s{T1}, s{sTt}, {TQ}"); a(f"s_add_u32 s{T0}, s{T0}, s{T1}"); a(f"s_mul_i32 s{T0}, s{T0}, {RS_A2}")
        if j: a(f"s_sub_u32 s{T0}, s{T0}, {1024*j}")
        Qop.set_voff(j, VT + 3, T0, bool(j & 1))
    a(f"s_mul_i32 s{sLdsQ}, s{sWave}, {Qop.n*1024}"); a(f"s_add_u32 s{sLdsQ}, s{sLdsQ}, {Qop.lds_off}")
    K2 = C.k2 if NS == 4 else 0
    nS = 32 // NS; base = (56 - K2) // NS
    assert base * NS == 56 - K2
    nD = base + (C.delta if role == 0 else -C.delta)
    colsS = 2048 // NS
    a(f"s_mul_i32 s{sKQ}, s{sG}, {colsS*2}"); a(f"s_and_b32 s{sKP}, s{sKQ}, 2047")
    if WS_A2: a(f"s_add_u32 s{sKQ}, s{sKQ}, {WS_A2}")
    a(f"s_lshr_b32 s{T0}, s{sG}, 1"); a(f"s_mul_i32 s{T0}, s{T0}, {2*base}")
    a(f"s_and_b32 s{T1}, s{sG}, 1"); a(f"s_mul_i32 s{T1}, s{T1}, {2*base - nD}"); a(f"s_add_u32 s{T0}, s{T0}, s{T1}")
    a(f"s_mul_i32 s{sKP2}, s{T0}, {64*D*2}"); a(f"s_lshl_b32 s{sKQ2}, s{T0}, 7"); a(f"s_add_u32 s{sKQ2}, s{sKQ2}, {WS_A2 + 4096}")
    a(f"s_mul_i32 s{T0}, s{sWp}, {mp}")
    P1.setup_read(T0, VT, U0); P2.setup_read(T0, VT, U0)
    a(f"s_mul_i32 s{T0}, s{sWq}, {mq}"); Qop.setup_read(T0, VT, U0)
    qd = lambda b: Qop.dma(b, sKQ, sTmp, sLdsQ, [SWS] * Qop.n)
    qd2 = lambda b: Qop.dma(b, sKQ2, sTmp, sLdsQ, [SWS] * Qop.n)
    segD = Seg(P2, Qop, accD, lambda b: P2.dma(b, sKP2, sTmp, sLdsP2, SW2), qd2, [f"s_add_u32 s{sKP2}, s{sKP2}, {64*D*2}"], [f"s_add_u32 s{sKQ2}, s{sKQ2}, 128"], "d")
    segS = Seg(P1, Qop, accS, lambda b: P1.dma(b, sKP, sTmp, sLdsP, [SA] * 2), qd, [f"s_add_u32 s{sKP}, s{sKP}, 128"], [f"s_add_u32 s{sKQ}, s{sKQ}, 128"], "s")
    stages = [segS] * nS + [segD] * nD
    N = len(stages)
    a("s_barrier")
    G.prologue(stages, "P")
    nP0 = 2 * G.leadP
    G.zero_first = True
    post_first = None
    fine = C.fine and NS == 4
    sMS = 49
    def chk_need(need):
        def chk(ok):
            if NS == 2:
                a(f"s_add_u32 s{U0}, s{U0}, s{U1}"); a(f"s_cmp_eq_u32 s{U0}, 16"); a(f"s_cbranch_scc1 {ok}")
            else:
                a(f"s_bitcmp1_b32 s{sG}, 0"); a(f"s_cselect_b32 s{sMS}, s{U1}, s{U0}")
                if fine:
                    a(f"s_and_b32 s{U0}, s{sMS}, {need}"); a(f"s_cmp_eq_u32 s{U0}, {need}"); a(f"s_cbranch_scc1 {ok}")
                else:
                    a(f"s_cmp_eq_u32 s{sMS}, 8"); a(f"s_cbranch_scc1 {ok}")
        return chk
    nfirst = G.leadQ + (1 if G.early == 'Q' else 0)
    chkS = chk_need((1 << nfirst) - 1)
    PW = 1
    if role == 0:
        a(f"s_waitcnt vmcnt({nP0})")
        a("s_barrier")
        stamp(a, 3)
        a(f"s_cmp_eq_u32 s{sWave}, {PW}"); a(f"s_cbranch_scc1 L_p2{R}_pl")
        a(f"s_cmp_lg_u32 s{sWave}, 0"); a(f"s_cbranch_scc1 L_p2{R}_dep")
        signal_cnt(a, "S", VT)
        a(f"s_branch L_p2{R}_dep")
        a.label(f"L_p2{R}_pl")
        poll_own(a, chkS, VT)
    elif C.dearly:
        a(f"s_waitcnt vmcnt({nP0})")
        a("s_barrier")
        stamp(a, 3)
        stamp(a, 6, st="dense")
        a(f"s_cmp_eq_u32 s{sWave}, {PW}"); a(f"s_cbranch_scc1 L_p2{R}_pl")
        a(f"s_cmp_lg_u32 s{sWave}, 0"); a(f"s_cbranch_scc1 L_p2{R}_dep")
        init_check(a, VT)
        signal_cnt(a, 2, VT)
        a(f"s_branch L_p2{R}_dep")
        a.label(f"L_p2{R}_pl")
        poll_own(a, chkS, VT)
    else:
        stamp(a, 3)
        stamp(a, 6, st="dense")
        a(f"s_cmp_lg_u32 s{sWave}, {PW}"); a(f"s_cbranch_scc1 L_p2{R}_dep")
        poll_own(a, chkS, VT)
        def post_first():
            sk = newlabel("pf")
            a(f"s_cmp_lg_u32 s{sWave}, 0"); a(f"s_cbranch_scc1 {sk}")
            init_check(a, VT)
            signal_cnt(a, 2, VT)
            a.label(sk)
    a.label(f"L_p2{R}_dep")
    a("s_barrier")
    G.prologue(stages, "Q")
    hooks = {}
    if fine:
        def mk(bit):
            def h():
                sk = newlabel("hs")
                a(f"s_cmp_lg_u32 s{sWave}, {PW}"); a(f"s_cbranch_scc1 {sk}")
                a(f"s_bitcmp1_b32 s{sMS}, {bit}"); a(f"s_cbranch_scc1 {sk}")
                poll_own(a, chk_need(1 << bit), VT)
                a.label(sk)
            return h
        for bit in range(nfirst, nS): hooks[bit - nfirst] = mk(bit)
    full = (0xff + 0xff + 16) if fine else 32
    def hookD():
        sk = newlabel("hk")
        stamp(a, 2, st="p2")
        a(f"s_cmp_lg_u32 s{sWave}, {PW}"); a(f"s_cbranch_scc1 {sk}")
        def chk(ok):
            a(f"s_add_u32 s{U0}, s{U0}, s{U1}"); a(f"s_add_u32 s{U0}, s{U0}, s{U3}"); a(f"s_cmp_eq_u32 s{U0}, {full}"); a(f"s_cbranch_scc1 {ok}")
        poll_own(a, chk, VT)
        a.label(sk)
        stamp(a, 3, st="p2")
    hd = nS - G.leadQ - (1 if G.early == 'Q' else 0)
    assert hd not in hooks
    hooks[hd] = hookD
    sXD = 44
    vt_own, vxo, vd2, vl16 = vep, vep + 1, vep + 2, vep + 3
    vx_, vds, vb2 = vex, vex + 2 * mp, vex + 4 * mp
    ex = []
    ex.append([f"s_mul_i32 s{T0}, s{sTt}, {TQ}", f"s_mul_i32 s{T1}, s{sWq}, {16*mq}", f"s_add_u32 s{T0}, s{T0}, s{T1}",
               f"v_and_b32 v{vt_own}, 15, v0", f"v_add_u32 v{vt_own}, s{T0}, v{vt_own}", f"v_lshlrev_b32 v{vxo}, 3, v{vt_own}"])
    for j in range(mq):
        ex.append([f"s_add_u32 s{T0}, s{sG}, {j}", f"s_and_b32 s{T0}, s{T0}, {NS-1}", f"s_lshl_b32 s{T0}, s{T0}, 7", f"s_add_u32 s{T0}, s{T0}, {WS_G}",
                   f"buffer_load_dwordx2 {vr(vg+2*j,2)}, v{vxo}, s[{SWS}:{SWS+3}], s{T0} offen sc1"])
    ex.append([f"s_lshl_b32 s{T0}, s{sG}, 4", f"v_add_u32 v{vt_own}, s{T0}, v{vt_own}",
               f"v_lshrrev_b32 v{vd2}, 4, v0", f"v_lshlrev_b32 v{vd2}, 2, v{vd2}",
               f"s_lshl_b32 s{T0}, s{sDt}, 7", f"s_lshl_b32 s{T1}, s{sWp}, 6", f"s_add_u32 s{T0}, s{T0}, s{T1}",
               f"v_add_u32 v{vd2}, s{T0}, v{vd2}", f"v_lshlrev_b32 v{vd2}, 1, v{vd2}",
               f"v_lshl_add_u32 v{vxo}, v{vt_own}, 11, v{vd2}", f"v_lshlrev_b32 v{vl16}, 4, v0"])
    for j in range(1, mq):
        ex.append([f"s_add_u32 s{T1}, s{sG}, {j}", f"s_and_b32 s{T1}, s{T1}, {NS-1}",
                   f"s_mul_i32 s{T0}, s{T1}, {XS}", f"s_and_b32 s{T2}, s2, {XS-1}", f"s_add_u32 s{T0}, s{T0}, s{T2}",
                   f"s_lshr_b32 s{T2}, s{sDt}, 2", f"s_xor_b32 s{T2}, s{T2}, s{T1}", f"s_and_b32 s{T2}, s{T2}, 1", f"s_xor_b32 s{T2}, s{T2}, 1",
                   f"s_lshl_b32 s{T2}, s{T2}, 7", f"s_or_b32 s{T0}, s{T0}, s{T2}", f"s_and_b32 s{T2}, s2, 0x78", f"s_or_b32 s{T0}, s{T0}, s{T2}",
                   f"s_lshl_b32 s{T0}, s{T0}, 3", f"s_add_u32 s{T0}, s{T0}, s{sWave}", f"s_mul_i32 s{T0}, s{T0}, {4096*(NS-1)}",
                   f"s_add_u32 s{sXD+j-1}, s{T0}, {WS_XB + (NS - j - 1) * 4096}"])
    ex2 = []
    for i in range(mp):
        ex2.append([f"buffer_load_dwordx2 {vr(vx_+2*i,2)}, v{vxo}, s[{SX}:{SX+3}], 0 offen offset:{32*i}"])
    ex2.append([f"s_mov_b32 s{SE}, s{PTR['dsk']}", f"s_mov_b32 s{SE+1}, s{PTR['dsk']+1}", f"s_mov_b32 s{SE+2}, 2048", f"s_mov_b32 s{SE+3}, 0x20000"])
    for i in range(mp):
        ex2.append([f"buffer_load_dwordx2 {vr(vds+2*i,2)}, v{vd2}, s[{SE}:{SE+3}], 0 offen offset:{32*i}"])
    ex2.append([f"s_mov_b32 s{SE}, s{PTR['b2']}", f"s_mov_b32 s{SE+1}, s{PTR['b2']+1}"])
    for i in range(mp):
        ex2.append([f"buffer_load_dwordx2 {vr(vb2+2*i,2)}, v{vd2}, s[{SE}:{SE+3}], 0 offen offset:{32*i}"])
    if NS == 2: extras = {N - NB: (ex + ex2, mq + 3 * mp)}
    else:
        nw = 0
        if C.endwarm:
            ex.append([f"buffer_load_dword v250, v{vxo}, s[{SX}:{SX+3}], 0 offen"])
            ex.append([f"s_mov_b32 s{SE}, s{PTR['dsk']}", f"s_mov_b32 s{SE+1}, s{PTR['dsk']+1}", f"s_mov_b32 s{SE+2}, 2048", f"s_mov_b32 s{SE+3}, 0x20000",
                       f"buffer_load_dword v250, v{vd2}, s[{SE}:{SE+3}], 0 offen"])
            ex.append([f"s_mov_b32 s{SE}, s{PTR['b2']}", f"s_mov_b32 s{SE+1}, s{PTR['b2']+1}", f"buffer_load_dword v250, v{vd2}, s[{SE}:{SE+3}], 0 offen"])
            nw = 3
            if C.endwarm >= 2:
                for j in range(1, mq):
                    ex.append([f"buffer_load_dword v250, v{vl16}, s[{SWS}:{SWS+3}], s{sXD+j-1} offen"])
                ex.append([f"s_mov_b32 s{SE}, s{PTR['out']}", f"s_mov_b32 s{SE+1}, s{PTR['out']+1}", f"s_mov_b32 s{SE+2}, {L*D*4}",
                           f"v_lshlrev_b32 v{VT}, 12, v{vt_own}", f"buffer_load_dword v250, v{VT}, s[{SE}:{SE+3}], 0 offen"])
                nw += mq
        extras = {N - NB: (ex, mq + nw)}
    stamp(a, 4)
    stamp(a, 1, st="p2")
    stamp(a, 3, st="clk"); stamp(a, 4, real=True, st="clk")
    G.run(stages, hooks, extras, post_first)
    stamp(a, 5)
    stamp(a, 4, st="p2")
    stamp(a, 5, st="clk"); stamp(a, 6, real=True, st="clk")
    stamp(a, 1, st="end")
    a("s_nop 7")
    a("s_waitcnt vmcnt(0)")
    def comb(i, j):
        c = 4 * (i * mq + j)
        for r in range(4):
            a(f"v_mul_f32 v{accD+c+r}, v{vg+2*j+1}, v{accD+c+r}"); a(f"v_fmac_f32 v{accD+c+r}, v{vg+2*j}, v{accS+c+r}")
    if K2:
        return phase2b(a, role, locals())
    assert NS == 2 or C.xbf16
    nst = (2 if C.xbf16 else 4) * (mq - 1)
    if NS != 2:
        for g_ in ex2: G.emit(g_)
    for j in range(1, mq):
        for i in range(mp): comb(i, j)
        if C.xbf16:
            for i2 in range(0, mp, 2):
                c0, c1 = accD + 4 * (i2 * mq + j), accD + 4 * ((i2 + 1) * mq + j)
                a(f"v_cvt_pk_bf16_f32 v{c0}, v{c0}, v{c0+1}"); a(f"v_cvt_pk_bf16_f32 v{c0+1}, v{c0+2}, v{c0+3}")
                a(f"v_cvt_pk_bf16_f32 v{c0+2}, v{c1}, v{c1+1}"); a(f"v_cvt_pk_bf16_f32 v{c0+3}, v{c1+2}, v{c1+3}")
                a(f"buffer_store_dwordx4 {vr(c0,4)}, v{vl16}, s[{SWS}:{SWS+3}], s{sXD+j-1} offen offset:{(i2//2)*1024} sc1")
        else:
            a("s_nop 1")
            for i in range(mp):
                c = accD + 4 * (i * mq + j)
                a(f"buffer_store_dwordx4 {vr(c,4)}, v{vl16}, s[{SWS}:{SWS+3}], s{sXD+j-1} offen offset:{i*1024} sc1")
    stamp(a, 2, st="end")
    for i in range(mp): comb(i, 0)
    t1, t2, t3 = VT + 5, VT + 6, VT + 7
    a(f"s_and_b32 s{T0}, s2, {XS-1}")
    a(f"v_mul_u32_u24 v{t1}, {XS}, v0"); a(f"v_add_u32 v{t1}, s{T0}, v{t1}")
    a(f"s_lshr_b32 s{T0}, s{sDt}, 2")
    a(f"v_and_b32 v{t2}, 1, v0"); a(f"v_xor_b32 v{t2}, s{T0}, v{t2}"); a(f"v_xor_b32 v{t2}, 1, v{t2}")
    a(f"s_lshr_b32 s{T0}, s2, 3"); a(f"s_and_b32 s{T0}, s{T0}, 15")
    a(f"v_lshlrev_b32 v{t2}, 4, v{t2}"); a(f"v_add_u32 v{t2}, s{T0}, v{t2}"); a(f"v_lshl_or_b32 v{t2}, v{t2}, 3, v{t1}")
    a(f"v_lshlrev_b32 v{t2}, 8, v{t2}")
    a(f"v_subrev_u32 v{t1}, s{sG}, v0"); a(f"v_and_b32 v{t1}, {NS-1}, v{t1}")
    a(f"v_sub_u32 v{t1}, {NS-1}, v{t1}"); a(f"v_lshl_add_u32 v{t2}, v{t1}, 2, v{t2}")
    a(f"v_mov_b32 v{t3}, 1")
    a(f"s_lshl_b32 s{T0}, 1, s{sG}"); a(f"s_andn2_b32 s{T0}, {(1 << NS) - 1}, s{T0}")
    a(f"s_lshl_b32 s{T1}, s{sWave}, 4"); a(f"s_add_u32 s{T1}, s{T1}, {WS_MB + 32}")
    a(f"s_lshl_b32 s{T3}, s2, 8"); a(f"s_add_u32 s{T3}, s{T3}, s{T1}")
    a(f"s_waitcnt vmcnt({nst})")
    x0, x1, y0, y1 = VT, VT + 1, VT + 2, VT + 3
    for i in range(mp):
        e = accD + 4 * (i * mq)
        for h in range(2):
            a(f"v_lshlrev_b32 v{x0}, 16, v{vx_+2*i+h}"); a(f"v_and_b32 v{x1}, 0xffff0000, v{vx_+2*i+h}")
            a(f"v_lshlrev_b32 v{y0}, 16, v{vds+2*i+h}"); a(f"v_and_b32 v{y1}, 0xffff0000, v{vds+2*i+h}")
            a(f"v_mul_f32 v{x0}, v{x0}, v{y0}"); a(f"v_mul_f32 v{x1}, v{x1}, v{y1}")
            a(f"v_cvt_pk_bf16_f32 v{x0}, v{x0}, v{x1}")
            a(f"v_and_b32 v{x1}, 0xffff0000, v{x0}"); a(f"v_lshlrev_b32 v{x0}, 16, v{x0}")
            a(f"v_fmac_f32 v{e+2*h}, v{vg}, v{x0}"); a(f"v_fmac_f32 v{e+2*h+1}, v{vg}, v{x1}")
            a(f"v_lshlrev_b32 v{x0}, 16, v{vb2+2*i+h}"); a(f"v_and_b32 v{x1}, 0xffff0000, v{vb2+2*i+h}")
            a(f"v_fmac_f32 v{e+2*h}, v{vg+1}, v{x0}"); a(f"v_fmac_f32 v{e+2*h+1}, v{vg+1}, v{x1}")
    a("s_waitcnt vmcnt(0)")
    stamp(a, 5, st="p2")
    stamp(a, 3, st="end")
    a(f"s_mov_b32 exec_lo, s{T0}"); a("s_mov_b32 exec_hi, 0")
    a(f"buffer_store_dword v{t3}, v{t2}, s[{SWS}:{SWS+3}], s{T1} offen sc1")
    a("s_mov_b64 exec, -1")
    stamp(a, 4, st="end")
    def chkx(ok):
        if NS == 4: a(f"s_and_b32 s{U0}, s{U0}, s{U1}"); a(f"s_and_b32 s{U0}, s{U0}, s{U3}")
        a(f"s_cmp_lg_u32 s{U0}, 0"); a(f"s_cbranch_scc1 {ok}")
    poll(a, SWS, T3, chkx, VT, wide=(4 if NS == 4 else 1), sleep=1)
    stamp(a, 5, st="end")
    rb = G.F[0][0]
    nrx = mp * (NS - 1)
    assert 2 * (4 * mp + 4 * mq) >= 4 * nrx
    inbox_offset(a, T0)
    per = 2 if C.xbf16 else 4
    for k in range(per * (NS - 1)):
        if k and k % per == 0: a(f"s_add_u32 s{T0}, s{T0}, 4096")
        a(f"buffer_load_dwordx4 {vr(rb+4*k,4)}, v{vl16}, s[{SWS}:{SWS+3}], s{T0} offen offset:{(k%per)*1024} sc1")
    srd(a, SE, PTR["out"], L * D * 4)
    vo = VT
    a(f"v_lshlrev_b32 v{vo}, 12, v{vt_own}"); a(f"v_lshl_add_u32 v{vo}, v{vd2}, 1, v{vo}")
    a("s_waitcnt vmcnt(0)")
    stamp(a, 6, st="end")
    for i in range(mp):
        e = accD + 4 * (i * mq)
        for k in range(NS - 1):
            if C.xbf16:
                src = rb + 8 * k + 4 * (i // 2) + 2 * (i % 2)
                x0, x1 = VT + 2, VT + 3
                for h in range(2):
                    a(f"v_lshlrev_b32 v{x0}, 16, v{src+h}"); a(f"v_and_b32 v{x1}, 0xffff0000, v{src+h}")
                    a(f"v_add_f32 v{e+2*h}, v{e+2*h}, v{x0}"); a(f"v_add_f32 v{e+2*h+1}, v{e+2*h+1}, v{x1}")
            else:
                for r in range(4): a(f"v_add_f32 v{e+r}, v{e+r}, v{rb+k*4*mp+4*i+r}")
        a(f"buffer_store_dwordx4 {vr(e,4)}, v{vo}, s[{SE}:{SE+3}], 0 offen offset:{64*i}{C.wto}")
    stamp(a, 6)
    stamp(a, 6, st="p2")
    return V.hi, NB * SB

def phase2b(a, role, L_):
    g = L_
    R, NS, XS, mp, mq, K2 = g["R"], g["NS"], g["XS"], g["mp"], g["mq"], g["K2"]
    accD, accS, vg, G, P2, Qop, SW2, SE = g["accD"], g["accS"], g["vg"], g["G"], g["P2"], g["Qop"], g["SW2"], g["SE"]
    sG, sKQ2, sXD, comb, V = g["sG"], g["sKQ2"], g["sXD"], g["comb"], g["V"]
    vt_own, vxo, vd2, vl16 = g["vt_own"], g["vxo"], g["vd2"], g["vl16"]
    assert C.xbf16 and NS == 4
    NB2 = 6
    Vq = Regs(Qop.vd)
    Q2 = OpKC(a, Vq, 64, 128 * 128, 1, flags=C.a2ld); Q2.groups = [[0]]
    assert Vq.hi <= Qop.c1 + 1
    Vf = Regs(G.F[0][0])
    G2 = Gemm(a, Vf, NB2, NB2, 128 * 128, Q2.bytes, mp, 1, (sBufD, sBufR, None, None, sCnt, sRole), True, 'P', 'p2b')
    G2.acc_stride = 4 * mq
    assert Vf.hi <= G.F[1][1] + 4 * mq
    Q2.lane_chunk(VT, VT + 1)
    a(f"v_lshrrev_b32 v{VT+1}, 3, v0"); a(f"v_mul_u32_u24 v{VT+1}, {RS_A2}, v{VT+1}"); a(f"v_add_u32 v{VT+3}, v{VT+1}, v{VT}")
    a(f"s_lshr_b32 s{T0}, s{sWave}, 1"); a(f"s_lshl_b32 s{T0}, s{T0}, 6"); a(f"s_and_b32 s{T1}, s{sWave}, 1"); a(f"s_lshl_b32 s{T2}, s{T1}, 6")
    a(f"s_lshl_b32 s{T1}, s{T1}, 3"); a(f"s_add_u32 s{T0}, s{T0}, s{T1}"); a(f"s_lshl_b32 s{T1}, s{sG}, 4"); a(f"s_add_u32 s{T0}, s{T0}, s{T1}")
    a(f"s_lshl_b32 s{T1}, s{sTt}, 8"); a(f"s_add_u32 s{T0}, s{T0}, s{T1}"); a(f"s_mul_i32 s{T0}, s{T0}, {RS_A2}")
    Q2.set_voff(0, VT + 3, T0, T2)
    a(f"s_lshl_b32 s{sLdsQ}, s{sWave}, 10"); a(f"s_add_u32 s{sLdsQ}, s{sLdsQ}, {Q2.lds_off}")
    Q2.setup_read(sWq, VT, U0)
    a(f"s_mov_b32 s{sKP2}, {(56-K2)*64*D*2}"); a(f"s_mov_b32 s{sKQ2}, {WS_A2 + 4096 + (56-K2)*128}")
    seg2 = Seg(P2, Q2, accD, lambda b: P2.dma(b, sKP2, sTmp, sLdsP2, SW2), lambda b: Q2.dma(b, sKQ2, sTmp, sLdsQ, [SWS]),
               [f"s_add_u32 s{sKP2}, s{sKP2}, {64*D*2}"], [f"s_add_u32 s{sKQ2}, s{sKQ2}, 128"], "b")
    st2 = [seg2] * K2
    a("s_barrier")
    G2.prologue(st2)
    for j in range(1, mq):
        for i in range(mp): comb(i, j)
        for i2 in range(0, mp, 2):
            c0, c1 = accD + 4 * (i2 * mq + j), accD + 4 * ((i2 + 1) * mq + j)
            a(f"v_cvt_pk_bf16_f32 v{c0}, v{c0}, v{c0+1}"); a(f"v_cvt_pk_bf16_f32 v{c0+1}, v{c0+2}, v{c0+3}")
            a(f"v_cvt_pk_bf16_f32 v{c0+2}, v{c1}, v{c1+1}"); a(f"v_cvt_pk_bf16_f32 v{c0+3}, v{c1+2}, v{c1+3}")
            a(f"buffer_store_dwordx4 {vr(c0,4)}, v{vl16}, s[{SWS}:{SWS+3}], s{sXD+j-1} offen offset:{(i2//2)*1024} sc1")
    G2.note('xs', 6)
    stamp(a, 2, st="end")
    vx_, vds, vb2 = accS + 4, accS + 20, accS + 36
    for i in range(mp): a(f"buffer_load_dwordx2 {vr(vx_+2*i,2)}, v{vxo}, s[{SX}:{SX+3}], 0 offen offset:{32*i}")
    srd(a, SE, PTR["dsk"], 2048)
    for i in range(mp): a(f"buffer_load_dwordx2 {vr(vds+2*i,2)}, v{vd2}, s[{SE}:{SE+3}], 0 offen offset:{32*i}")
    a(f"s_mov_b32 s{SE}, s{PTR['b2']}"); a(f"s_mov_b32 s{SE+1}, s{PTR['b2']+1}")
    for i in range(mp): a(f"buffer_load_dwordx2 {vr(vb2+2*i,2)}, v{vd2}, s[{SE}:{SE+3}], 0 offen offset:{32*i}")
    G2.note('ex2', 12)
    t1, t2, t3 = VT + 5, VT + 6, VT + 7
    sMask, sFl = sXD + 3, sXD + 4
    a(f"s_and_b32 s{T0}, s2, {XS-1}")
    a(f"v_mul_u32_u24 v{t1}, {XS}, v0"); a(f"v_add_u32 v{t1}, s{T0}, v{t1}")
    a(f"s_lshr_b32 s{T0}, s{sDt}, 2")
    a(f"v_and_b32 v{t2}, 1, v0"); a(f"v_xor_b32 v{t2}, s{T0}, v{t2}"); a(f"v_xor_b32 v{t2}, 1, v{t2}")
    a(f"s_lshr_b32 s{T0}, s2, 3"); a(f"s_and_b32 s{T0}, s{T0}, 15")
    a(f"v_lshlrev_b32 v{t2}, 4, v{t2}"); a(f"v_add_u32 v{t2}, s{T0}, v{t2}"); a(f"v_lshl_or_b32 v{t2}, v{t2}, 3, v{t1}")
    a(f"v_lshlrev_b32 v{t2}, 8, v{t2}")
    a(f"v_subrev_u32 v{t1}, s{sG}, v0"); a(f"v_and_b32 v{t1}, {NS-1}, v{t1}")
    a(f"v_sub_u32 v{t1}, {NS-1}, v{t1}"); a(f"v_lshl_add_u32 v{t2}, v{t1}, 2, v{t2}")
    a(f"v_mov_b32 v{t3}, 1")
    a(f"s_lshl_b32 s{sMask}, 1, s{sG}"); a(f"s_andn2_b32 s{sMask}, {(1 << NS) - 1}, s{sMask}")
    a(f"s_lshl_b32 s{sFl}, s{sWave}, 4"); a(f"s_add_u32 s{sFl}, s{sFl}, {WS_MB + 32}")
    def flag():
        a(f"s_mov_b32 exec_lo, s{sMask}"); a("s_mov_b32 exec_hi, 0")
        a(f"buffer_store_dword v{t3}, v{t2}, s[{SWS}:{SWS+3}], s{sFl} offen sc1")
        a("s_mov_b64 exec, -1")
    fit = C.flagit
    def hookF():
        a(f"s_waitcnt vmcnt({G2.allow_at[fit]})")
        flag()
    G2.want_allow = {fit: 'xs'}
    G2.run(st2, {fit: hookF})
    stamp(a, 3, st="end")
    a("s_nop 7")
    a("s_waitcnt vmcnt(0)")
    a(f"s_lshl_b32 s{T3}, s2, 8"); a(f"s_add_u32 s{T3}, s{T3}, s{sFl}")
    def chkx(ok):
        a(f"s_and_b32 s{U0}, s{U0}, s{U1}"); a(f"s_and_b32 s{U0}, s{U0}, s{U3}")
        a(f"s_cmp_lg_u32 s{U0}, 0"); a(f"s_cbranch_scc1 {ok}")
    poll(a, SWS, T3, chkx, VT, wide=4, sleep=1)
    stamp(a, 4, st="end")
    rbq = [accD + 4, accD + 8, accD + 12, accD + 20, accD + 24, accD + 28]
    inbox_offset(a, T0)
    for k in range(6):
        if k and k % 2 == 0: a(f"s_add_u32 s{T0}, s{T0}, 4096")
        a(f"buffer_load_dwordx4 {vr(rbq[k],4)}, v{vl16}, s[{SWS}:{SWS+3}], s{T0} offen offset:{(k%2)*1024} sc1")
    for i in range(mp): comb(i, 0)
    x0, x1, y0, y1 = VT, VT + 1, VT + 2, VT + 3
    for i in range(mp):
        e = accD + 4 * (i * mq)
        for h in range(2):
            a(f"v_lshlrev_b32 v{x0}, 16, v{vx_+2*i+h}"); a(f"v_and_b32 v{x1}, 0xffff0000, v{vx_+2*i+h}")
            a(f"v_lshlrev_b32 v{y0}, 16, v{vds+2*i+h}"); a(f"v_and_b32 v{y1}, 0xffff0000, v{vds+2*i+h}")
            a(f"v_mul_f32 v{x0}, v{x0}, v{y0}"); a(f"v_mul_f32 v{x1}, v{x1}, v{y1}")
            a(f"v_cvt_pk_bf16_f32 v{x0}, v{x0}, v{x1}")
            a(f"v_and_b32 v{x1}, 0xffff0000, v{x0}"); a(f"v_lshlrev_b32 v{x0}, 16, v{x0}")
            a(f"v_fmac_f32 v{e+2*h}, v{vg}, v{x0}"); a(f"v_fmac_f32 v{e+2*h+1}, v{vg}, v{x1}")
            a(f"v_lshlrev_b32 v{x0}, 16, v{vb2+2*i+h}"); a(f"v_and_b32 v{x1}, 0xffff0000, v{vb2+2*i+h}")
            a(f"v_fmac_f32 v{e+2*h}, v{vg+1}, v{x0}"); a(f"v_fmac_f32 v{e+2*h+1}, v{vg+1}, v{x1}")
    srd(a, SE, PTR["out"], L * D * 4)
    vo = VT
    a(f"v_lshlrev_b32 v{vo}, 12, v{vt_own}"); a(f"v_lshl_add_u32 v{vo}, v{vd2}, 1, v{vo}")
    a("s_waitcnt vmcnt(0)")
    stamp(a, 5, st="end")
    for i in range(mp):
        e = accD + 4 * (i * mq)
        for k in range(NS - 1):
            src = rbq[2 * k + i // 2] + 2 * (i % 2)
            x0, x1 = VT + 2, VT + 3
            for h in range(2):
                a(f"v_lshlrev_b32 v{x0}, 16, v{src+h}"); a(f"v_and_b32 v{x1}, 0xffff0000, v{src+h}")
                a(f"v_add_f32 v{e+2*h}, v{e+2*h}, v{x0}"); a(f"v_add_f32 v{e+2*h+1}, v{e+2*h+1}, v{x1}")
        a(f"buffer_store_dwordx4 {vr(e,4)}, v{vo}, s[{SE}:{SE+3}], 0 offen offset:{64*i}{C.wto}")
    stamp(a, 6)
    stamp(a, 6, st="p2"); stamp(a, 6, st="end")
    return V.hi, max(g["NB"] * g["SB"], NB2 * (128 * 128 + Q2.bytes))

def emit_stamps(a):
    a("s_memrealtime s[88:89]"); a("s_waitcnt lgkmcnt(0)")
    a(f"s_cmp_lg_u32 s{sWave}, {C.stwave}"); a("s_cbranch_scc1 L_end")
    a("s_waitcnt vmcnt(0)")
    for i in range(1, 7): a(f"s_sub_u32 s{92+i}, s{92+i}, s92")
    a("s_mov_b32 s99, s100")
    a("s_nop 0")
    a(f"s_mov_b32 s100, s88")
    for i in range(8): a(f"v_mov_b32 v{12+i}, s{93+i}")
    a("v_mov_b32 v11, 0")
    if C.dbgout:
        a("s_and_b32 s76, s2, 127"); a("s_cmp_lg_u32 s76, 0"); a("s_cbranch_scc1 L_end")
        a("s_sub_u32 s77, s100, s99"); a("v_mov_b32 v18, s77")
        a("s_lshr_b32 s76, s2, 7"); a("s_mul_i32 s76, s76, 28"); a("s_add_u32 s76, s76, 8")
        a("s_mov_b64 exec, 1")
        for i in range(7): a(f"buffer_store_dword v{12+i}, v11, s[{SDBG}:{SDBG+3}], s76 offen offset:{4*i}")
        return
    a(f"s_lshl_b32 s{T0}, s2, 5"); a(f"s_add_u32 s{T0}, s{T0}, {WS_ST}")
    a("s_mov_b64 exec, 1")
    a(f"buffer_store_dwordx4 v[12:15], v11, s[{SWS}:{SWS+3}], s{T0} offen")
    a(f"buffer_store_dwordx4 v[16:19], v11, s[{SWS}:{SWS+3}], s{T0} offen offset:16")

HEADER = open("gated_mix__ssm_conv_s5__dense_activation_squared_relu__prompt.s.ref").read().split("; Override launch")[0]

def generate(**kw):
    for k, v in kw.items():
        assert hasattr(C, k), k
        setattr(C, k, v)
    _lbl[0] = 0
    a = Asm()
    kernel_header(a, NAME)
    a("s_cmp_ge_u32 s2, 256"); a("s_cbranch_scc1 L_end")
    a("s_load_dwordx16 s[40:55], s[0:1], 0"); a("s_load_dwordx16 s[56:71], s[0:1], 64"); a("s_load_dwordx4 s[72:75], s[0:1], 128")
    if C.dbgst:
        a("s_memtime s[92:93]"); a("s_memrealtime s[100:101]")
    if C.codepf == 1 or C.codepf is True:
        a("s_getpc_b64 s[4:5]")
        a.label("L_pc")
        a("v_lshlrev_b32 v2, 7, v0")
        a("v_min_u32 v2, L_codeend-L_pc-4, v2")
        a("global_load_dword v250, v2, s[4:5]")
    elif C.codepf == 2:
        a("s_getpc_b64 s[4:5]")
        a.label("L_pc")
        a("s_lshr_b32 s6, s2, 3"); a("s_lshl_b32 s6, s6, 11")
        a("v_lshlrev_b32 v2, 7, v0"); a("v_add_u32 v2, s6, v2")
        a("v_min_u32 v2, L_codeend-L_pc-4, v2")
        a("v_cmp_gt_u32 vcc, 16, v0"); a("s_and_saveexec_b64 s[6:7], vcc"); a("s_cbranch_execz L_cpf")
        a("global_load_dword v250, v2, s[4:5]")
        a.label("L_cpf")
        a("s_mov_b64 exec, s[6:7]")
    a("v_lshrrev_b32 v1, 6, v0"); a("v_and_b32 v0, 63, v0"); a(f"v_readfirstlane_b32 s{sWave}, v1")
    a(f"s_and_b32 s{T0}, s2, 7"); a(f"s_lshr_b32 s{T1}, s2, 3")
    a(f"s_lshr_b32 s{sRole}, s{T1}, 4")
    a(f"s_bfe_u32 s{T2}, s{T1}, 0x20002"); a(f"s_and_b32 s{T3}, s{T1}, 3")
    a(f"s_lshr_b32 s{sM}, s{T0}, 2"); a(f"s_lshl_b32 s{sM}, s{sM}, 2"); a(f"s_add_u32 s{sM}, s{sM}, s{T2}")
    a(f"s_and_b32 s{sN}, s{T0}, 3"); a(f"s_lshl_b32 s{sN}, s{sN}, 2"); a(f"s_add_u32 s{sN}, s{sN}, s{T3}")
    mode = C.rot
    if mode is True: mode = 1
    if mode == 1:
        a(f"s_lshl_b32 s{sRot}, s{sRole}, 2"); a(f"s_add_u32 s{sRot}, s{sRot}, s{T3}"); a(f"s_lshl_b32 s{sRot}, s{sRot}, 1")
        a(f"s_lshl_b32 s{T2}, s{T2}, 2"); a(f"s_add_u32 s{sRot}, s{sRot}, s{T2}"); a(f"s_and_b32 s{T0}, s{T0}, 3")
        a(f"s_add_u32 s{sRot}, s{sRot}, s{T0}"); a(f"s_and_b32 s{sRot}, s{sRot}, 15")
    elif mode == 2:
        a(f"s_and_b32 s{sRot}, s{T0}, 3"); a(f"s_lshl_b32 s{sRot}, s{sRot}, 2"); a(f"s_lshr_b32 s{T0}, s{T0}, 2"); a(f"s_lshl_b32 s{T0}, s{T0}, 1")
        a(f"s_add_u32 s{sRot}, s{sRot}, s{T0}"); a(f"s_and_b32 s{sRot}, s{sRot}, 15")
    elif mode == 3:
        a(f"s_and_b32 s{sRot}, s{T0}, 3"); a(f"s_lshl_b32 s{sRot}, s{sRot}, 2"); a(f"s_lshr_b32 s{T0}, s{T0}, 2"); a(f"s_lshl_b32 s{T0}, s{T0}, 3")
        a(f"s_add_u32 s{sRot}, s{sRot}, s{T0}"); a(f"s_xor_b32 s{T2}, s{T2}, s{T3}"); a(f"s_and_b32 s{T2}, s{T2}, 1"); a(f"s_lshl_b32 s{T2}, s{T2}, 3")
        a(f"s_add_u32 s{sRot}, s{sRot}, s{T2}"); a(f"s_and_b32 s{sRot}, s{sRot}, 15")
    elif mode == 4:
        a(f"s_xor_b32 s{T2}, s{T2}, s{T3}"); a(f"s_and_b32 s{T2}, s{T2}, 1"); a(f"s_lshl_b32 s{sRot}, s{T2}, 3")
        a(f"s_and_b32 s{T0}, s{T0}, 3"); a(f"s_lshl_b32 s{T0}, s{T0}, 1"); a(f"s_add_u32 s{sRot}, s{sRot}, s{T0}"); a(f"s_and_b32 s{sRot}, s{sRot}, 15")
    elif mode == 8:
        a(f"s_add_u32 s{sRot}, s{T0}, s{T2}"); a(f"s_and_b32 s{sRot}, s{sRot}, 3"); a(f"s_lshl_b32 s{sRot}, s{sRot}, 2")
    elif mode == 9:
        a(f"s_add_u32 s{sRot}, s{T0}, s{T2}"); a(f"s_and_b32 s{sRot}, s{sRot}, 1"); a(f"s_lshl_b32 s{sRot}, s{sRot}, 3")
    elif mode == 10:
        a(f"s_add_u32 s{sRot}, s{T0}, s{T2}"); a(f"s_and_b32 s{sRot}, s{sRot}, 7"); a(f"s_lshl_b32 s{sRot}, s{sRot}, 1")
    elif mode == 5:
        a(f"s_and_b32 s{sRot}, s{T0}, 3"); a(f"s_lshl_b32 s{sRot}, s{sRot}, 2")
    elif mode == 6:
        a(f"s_lshl_b32 s{sRot}, s{T2}, 2"); a(f"s_and_b32 s{T0}, s{T0}, 3"); a(f"s_add_u32 s{sRot}, s{sRot}, s{T0}"); a(f"s_and_b32 s{sRot}, s{sRot}, 15")
    elif mode == 7:
        a(f"s_lshl_b32 s{sRot}, s{T3}, 2"); a(f"s_and_b32 s{T0}, s{T0}, 3"); a(f"s_add_u32 s{sRot}, s{sRot}, s{T0}"); a(f"s_and_b32 s{sRot}, s{sRot}, 15")
    else:
        a(f"s_mov_b32 s{sRot}, 0")
    if C.dbgst:
        pass
    a(f"s_cmp_eq_u32 s{sRole}, 1"); a("s_cbranch_scc1 L_ssm")
    v1, l1 = phase1_dense(a)
    v2, l2 = phase2(a, 1)
    a("s_branch L_fin")
    a.label("L_ssm")
    v3, l3 = phase1_ssm(a)
    v4, l4 = phase2(a, 0)
    a.label("L_fin")
    if C.dbgst: emit_stamps(a)
    a.label("L_end")
    a("s_endpgm")
    a.label("L_codeend")
    nv = max(v1, v2, v3, v4); lds = max(l1, l2, l3, l4)
    assert nv <= 250
    if C.codepf or C.tlb: nv = 251
    head = HEADER + f"; @launch grid=(256,1,1) block=(512,1,1) lds={lds}\n"
    head += '.amdgcn_target "amdgcn-amd-amdhsa--gfx950"\n.text\n'
    return head + a.text() + '.section .rodata,"a"\n' + kernel_desc(NAME, nv, 102)

if __name__ == "__main__":
    kw = json.loads(sys.argv[2]) if len(sys.argv) > 2 else {}
    open(sys.argv[1], "w").write(generate(**kw))
```

```python
import sys, math, json
from asmlib import *

NAME = "gated_mix__ssm_conv_s5__dense_activation_squared_relu__prompt_kernel"
L, D, P_, F = 2048, 1024, 1024, 3584
KC = 2048 + F
RS_A2 = KC * 2
KA = dict(x=0, lre=8, lim=16, bre=24, bim=32, cre=40, cim=48, ldt=56, dsk=64, bx=72, w1=80, b1=88, w2=96, b2=104, gw=112, out=120, dbg=128, ws=136)
WS_A2 = 0
WS_G = 24 << 20
WS_AGG = WS_G + (1 << 16)
WS_MB = WS_AGG + (1 << 17)
WS_ST = WS_AGG + (1 << 18)
WS_XB = 32 << 20
WS_SIZE = 268435456
LOG2E = 0x3fb8aa3b
INV2PI = 0x3e22f983
PTR = {k: 40 + v // 4 for k, v in KA.items()}
DBG_LB = 0
DBG_CNT = 16
DBG_XF = 32

class Cfg:
    dbgst = False; rot = 4; nodma = False; noread = False; prefetch = True
    nAd = 24
    nBs = 8
    ns = 4
    delta = 2
    wt = " sc1"
    a2ld = " sc1"
    wto = ""
    spin = 300000
    sleep = 2
    early = True
    endwarm = 1
    midwarm = 0
    codepf2 = 0
    codepf3 = 0
    dearly = True
    fine = True
    dparts = 4
    sparts = 2
    d1p = False
    k2 = 0
    flagit = 3
    dbgout = False
    xbf16 = True
    loop = {}
    inboxit = 18
    initit = 4
    tlb = False
    tlbshift = 21
    codepf = True
    pbar = False
    bulk = False
    pflist = [('w1',0),('x',0),('bre',0),('bim',0),('cre',0),('cim',0),('w2',0)]
    pfit = 13
    span = 1.0
    prio = True
    nbq = 3
    stampset = 'main'
    stwave = 0
C = Cfg()

class Regs:
    def __init__(self, start, limit=256):
        self.n = start; self.limit = limit; self.hi = start
    def get(self, k=1, align=1):
        self.n = (self.n + align - 1) // align * align
        r = self.n; self.n += k
        self.hi = max(self.hi, self.n)
        assert self.n <= self.limit, f"out of registers {self.n} > {self.limit}"
        return r

def srd(a, s, ptr_lo, size):
    if s != ptr_lo:
        a(f"s_mov_b32 s{s}, s{ptr_lo}"); a(f"s_mov_b32 s{s+1}, s{ptr_lo+1}")
    a(f"s_mov_b32 s{s+2}, {size}"); a(f"s_mov_b32 s{s+3}, 0x20000")

_lbl = [0]
def newlabel(p):
    _lbl[0] += 1
    return f"L_{p}{_lbl[0]}"

class OpKC:
    def __init__(self, a, V, T, lds_off, nfr, flags=""):
        self.a, self.T, self.lds_off, self.nfr, self.flags = a, T, lds_off, nfr, flags
        self.n = T // 64
        self.vd = V.get(self.n)
        self.b0 = V.get(); self.c0 = V.get(); self.c1 = V.get()
        self.bytes = T * 128
        self.ldsoffs = [j * 1024 for j in range(self.n)]
    def lane_chunk(self, vdst, t):
        a = self.a
        a(f"v_and_b32 v{vdst}, 7, v0"); a(f"v_lshrrev_b32 v{t}, 4, v0")
        a(f"v_xor_b32 v{vdst}, v{vdst}, v{t}"); a(f"v_lshlrev_b32 v{vdst}, 4, v{vdst}")
    def set_voff(self, j, vlane, sRowBytes, xor64, comp=True):
        a = self.a; d = self.vd + j
        src = vlane
        if xor64 is True:
            a(f"v_xor_b32 v{d}, 64, v{vlane}"); src = d
        elif xor64 is not False:
            a(f"v_xor_b32 v{d}, s{xor64}, v{vlane}"); src = d
        a(f"v_add_u32 v{d}, s{sRowBytes}, v{src}")
    def dma(self, sBuf, sK, stmp, sLds, srds, groups=None):
        g = []
        for grp_i in self.groups:
            for n_, j in enumerate(grp_i):
                grp = []
                if n_ == 0:
                    grp.append(f"s_add_u32 s{stmp}, s{sBuf}, s{sLds}")
                    if self.ldsoffs[j]: grp.append(f"s_add_u32 s{stmp}, s{stmp}, {self.ldsoffs[j]}")
                    grp.append(f"s_mov_b32 m0, s{stmp}")
                    grp.append("s_nop 0")
                off = f" offset:{n_*1024}" if n_ else ""
                s = srds[j]
                grp.append(f"buffer_load_dwordx4 v{self.vd+j}, s[{s}:{s+3}], s{sK} offen{off}{self.flags} lds")
                g.append(grp)
        return g
    def count(self): return (self.n, self.n)
    def setup_read(self, sFrag0, tmp, stmp):
        a = self.a; t0, t1, t2 = tmp, tmp + 1, tmp + 2
        a(f"v_and_b32 v{t0}, 15, v0"); a(f"v_lshrrev_b32 v{t1}, 4, v0"); a(f"v_lshrrev_b32 v{t2}, 1, v{t0}")
        a(f"v_xor_b32 v{t1}, v{t1}, v{t2}"); a(f"v_lshlrev_b32 v{t1}, 4, v{t1}")
        a(f"v_lshl_add_u32 v{t0}, v{t0}, 7, v{t1}")
        a(f"s_lshl_b32 s{stmp}, s{sFrag0}, 11")
        if self.lds_off: a(f"s_add_u32 s{stmp}, s{stmp}, {self.lds_off}")
        a(f"v_add_u32 v{self.b0}, s{stmp}, v{t0}")
    def init_cur(self):
        return [f"v_mov_b32 v{self.c0}, v{self.b0}", f"v_xor_b32 v{self.c1}, 64, v{self.b0}"]
    def frag_off(self, i): return i * 2048
    def reads(self, ks, dst):
        if C.noread: return []
        c = self.c1 if ks else self.c0
        return [[f"ds_read_b128 {vr(dst+4*i,4)}, v{c} offset:{self.frag_off(i)}"] for i in range(self.nfr)]
    def upd_A(self, sBuf): return [f"v_add_u32 v{self.c0}, s{sBuf}, v{self.b0}"]
    def upd_B(self, sBuf): return [f"v_xor_b32 v{self.c1}, 64, v{self.c0}"]

class OpNC:
    def __init__(self, a, V, T, lds_off, nfr, RS, NW=8):
        self.a, self.T, self.lds_off, self.nfr, self.RS = a, T, lds_off, nfr, RS
        self.RP = T * 2; self.CH = self.RP // 16
        self.total = self.CH
        self.n = -(-self.total // NW)
        self.even = (self.total % NW == 0)
        self.nbig = NW if self.even else self.total - (self.n - 1) * NW
        self.vd = V.get(self.n)
        np_ = self.RP // 32
        self.gb = 3 if np_ % 8 == 0 else (2 if np_ % 4 == 0 else 1)
        self.nres = min(1 << self.gb, nfr)
        self.base = V.get(self.nres); self.cur = V.get(self.nres)
        self.bytes = 64 * self.RP
    def g_asm(self, vk, vo, t):
        a = self.a
        if self.gb == 3:
            a(f"v_and_b32 v{vo}, 3, v{vk}"); a(f"v_bfe_u32 v{t}, v{vk}, 3, 1"); a(f"v_lshl_or_b32 v{vo}, v{t}, 2, v{vo}")
        elif self.gb == 2:
            a(f"v_bfe_u32 v{vo}, v{vk}, 1, 1"); a(f"v_bfe_u32 v{t}, v{vk}, 3, 1"); a(f"v_lshl_or_b32 v{vo}, v{t}, 1, v{vo}")
        else:
            a(f"v_bfe_u32 v{vo}, v{vk}, 3, 1")
    def idx0(self, sWave, sOut, stmp):
        a = self.a
        if self.even: a(f"s_mul_i32 s{sOut}, s{sWave}, {self.n}")
        else:
            a(f"s_mul_i32 s{sOut}, s{sWave}, {self.n-1}")
            a(f"s_min_u32 s{stmp}, s{sWave}, {self.nbig}")
            a(f"s_add_u32 s{sOut}, s{sOut}, s{stmp}")
    def setup_dma(self, sWave, tmp, sCol0Bytes, stmp):
        a = self.a; t0, t1, t2, t3 = tmp, tmp + 1, tmp + 2, tmp + 3
        self.idx0(sWave, stmp, stmp + 1)
        magic = (1 << 20) // self.CH + 1
        for L_ in range(self.total * 64 + 64):
            assert (L_ * magic) >> 20 == L_ // self.CH
        for j in range(self.n):
            a(f"s_add_u32 s{stmp+1}, s{stmp}, {j}"); a(f"s_lshl_b32 s{stmp+1}, s{stmp+1}, 6")
            a(f"v_add_u32 v{t0}, s{stmp+1}, v0")
            if self.CH & (self.CH - 1) == 0:
                a(f"v_lshrrev_b32 v{t1}, {int(math.log2(self.CH))}, v{t0}")
                a(f"v_and_b32 v{t0}, {self.CH-1}, v{t0}")
            else:
                a(f"v_mul_u32_u24 v{t1}, {magic}, v{t0}"); a(f"v_lshrrev_b32 v{t1}, 20, v{t1}")
                a(f"v_mul_u32_u24 v{t2}, {self.CH}, v{t1}"); a(f"v_sub_u32 v{t0}, v{t0}, v{t2}")
            self.g_asm(t1, t2, t3)
            a(f"v_lshlrev_b32 v{t2}, 1, v{t2}"); a(f"v_xor_b32 v{t0}, v{t0}, v{t2}")
            a(f"v_mul_u32_u24 v{t1}, {self.RS}, v{t1}")
            a(f"v_lshl_add_u32 v{t0}, v{t0}, 4, v{t1}")
            if j % 4: a(f"s_sub_u32 s{stmp+1}, s{sCol0Bytes}, {(j%4)*1024}"); a(f"v_add_u32 v{self.vd+j}, s{stmp+1}, v{t0}")
            else: a(f"v_add_u32 v{self.vd+j}, s{sCol0Bytes}, v{t0}")
    def setup_lds(self, sWave, sLds, stmp):
        self.idx0(sWave, sLds, stmp)
        self.a(f"s_lshl_b32 s{sLds}, s{sLds}, 10")
        if self.lds_off: self.a(f"s_add_u32 s{sLds}, s{sLds}, {self.lds_off}")
    def dma(self, sBuf, sK, stmp, sLds, srds, sWave=None):
        g = []
        s = srds
        for j in range(self.n):
            grp = []
            guard = (not self.even) and j == self.n - 1
            if guard:
                lbl = newlabel("ncs")
                grp += [f"s_cmp_lt_u32 s{sWave}, {self.nbig}", f"s_cbranch_scc0 {lbl}"]
            if j % 4 == 0:
                grp.append(f"s_add_u32 s{stmp}, s{sBuf}, s{sLds}")
                if j: grp.append(f"s_add_u32 s{stmp}, s{stmp}, {j*1024}")
                grp += [f"s_mov_b32 m0, s{stmp}", "s_nop 0"]
            off = f" offset:{(j%4)*1024}" if j % 4 else ""
            grp.append(f"buffer_load_dwordx4 v{self.vd+j}, s[{s}:{s+3}], s{sK} offen{off} lds")
            if guard: grp.append(f"{lbl}:")
            g.append(grp)
        return g
    def count(self): return (self.n if self.even else self.n - 1, self.n)
    def setup_read(self, sFrag0, tmp, stmp):
        a = self.a; t0, t1, t2 = tmp, tmp + 1, tmp + 2
        a(f"v_lshrrev_b32 v{t0}, 4, v0"); a(f"v_lshlrev_b32 v{t0}, 3, v{t0}")
        a(f"v_bfe_u32 v{t1}, v0, 2, 2"); a(f"v_add_u32 v{t0}, v{t0}, v{t1}")
        self.g_asm(t0, t1, t2)
        a(f"v_mul_u32_u24 v{t0}, {self.RP}, v{t0}")
        a(f"v_and_b32 v{t2}, 3, v0"); a(f"v_lshl_add_u32 v{t0}, v{t2}, 3, v{t0}")
        if self.lds_off: a(f"v_add_u32 v{t0}, {self.lds_off}, v{t0}")
        for r in range(self.nres):
            a(f"s_add_u32 s{stmp}, s{sFrag0}, {r}")
            a(f"v_xor_b32 v{t2}, s{stmp}, v{t1}")
            if r: a(f"v_subrev_u32 v{t2}, {r}, v{t2}")
            a(f"v_lshl_add_u32 v{self.base+r}, v{t2}, 5, v{t0}")
    def init_cur(self):
        return [f"v_mov_b32 v{self.cur+r}, v{self.base+r}" for r in range(self.nres)]
    def reads(self, ks, dst):
        if C.noread: return []
        g = []
        for i in range(self.nfr):
            r = i % (1 << self.gb)
            for h in range(2):
                off = 32 * i + (4 * h + 32 * ks) * self.RP
                g.append([f"ds_read_b64_tr_b16 {vr(dst+4*i+2*h,2)}, v{self.cur+r} offset:{off}"])
        return g
    def upd_A(self, sBuf): return [f"v_add_u32 v{self.cur+r}, s{sBuf}, v{self.base+r}" for r in range(self.nres)]
    def upd_B(self, sBuf): return []

class Seg:
    def __init__(self, P, Q, acc, Pdma, Qdma, kadvP, kadvQ, name):
        self.P, self.Q, self.acc, self.Pdma, self.Qdma, self.kadvP, self.kadvQ, self.name = P, Q, acc, Pdma, Qdma, kadvP, kadvQ, name
        self.xdma = []

class Gemm:
    def __init__(self, a, V, NBP, NBQ, SP, SQ, mp, mq, regs, joint, early=None, name="x"):
        self.a, self.NBP, self.NBQ, self.SP, self.SQ, self.mp, self.mq, self.joint = a, NBP, NBQ, SP, SQ, mp, mq, joint
        o = dict(span=C.span, prio=C.prio, dmapos="merge", order="i")
        o.update(C.loop.get(name, {}))
        self.opt = o
        self.sDP, self.sRP, self.sDQ, self.sRQ, self.sCnt, self.sE = regs
        if joint: self.sDQ, self.sRQ = self.sDP, self.sRP
        self.early = early if C.early else None
        self.leadP = NBP - (1 if self.early == 'P' else 0)
        self.leadQ = NBQ - (1 if self.early == 'Q' else 0)
        self.F = []
        for s in range(2):
            p = V.get(4 * mp, 2); q = V.get(4 * mq, 2)
            self.F.append((p, q))
        self.vmq = []
        self.zero_first = False
    def emit(self, lines):
        for x in lines:
            if x.endswith(":"): self.a.label(x[:-1])
            else: self.a(x)
    def note(self, tag, n): self.vmq.append((tag, n))
    def vm_allow(self, need):
        last = -1
        for i, (t, n) in enumerate(self.vmq):
            if t in need: last = i
        return min(63, sum(n for t, n in self.vmq[last + 1:]))
    def reads(self, seg, ks, fs):
        p, q = self.F[fs]
        return merge(seg.P.reads(ks, p), seg.Q.reads(ks, q))
    def mfmas(self, seg, fs, zero=False):
        p, q = self.F[fs]
        ij = [(i, j) for i in range(self.mp) for j in range(self.mq)]
        if self.opt["order"] == "j": ij = [(i, j) for j in range(self.mq) for i in range(self.mp)]
        st = getattr(self, "acc_stride", 4 * self.mq)
        return [f"v_mfma_f32_16x16x32_bf16 {vr(c,4)}, {vr(p+4*i,4)}, {vr(q+4*j,4)}, {'0' if zero else vr(c,4)}"
                for (i, j) in ij for c in [seg.acc + st * i + 4 * j]]
    def spread(self, main, fill):
        n = len(main); k = len(fill)
        if k == 0: return list(main)
        span = max(1, min(n, int(n * self.opt['span'])))
        out = []; fi = 0
        for i, m in enumerate(main):
            out.append(m)
            while fi < k and (fi * span) // k <= i:
                out.extend(fill[fi]); fi += 1
        while fi < k: out.extend(fill[fi]); fi += 1
        return out
    def mix(self, reads, dma):
        m = self.opt["dmapos"]
        if m == "first": return dma + reads
        if m == "last": return reads + dma
        return merge(reads, dma)
    def ring_adv(self, sD, sR, stride, nb):
        return [f"s_mov_b32 s{sD}, s{sR}", f"s_add_u32 s{sR}, s{sR}, {stride}", f"s_cmp_eq_u32 s{sR}, {stride*nb}", f"s_cselect_b32 s{sR}, 0, s{sR}"]
    def advance(self):
        out = []
        if self.early: out.append(f"s_mov_b32 s{self.sE}, s{self.sDP if (self.joint or self.early == 'P') else self.sDQ}")
        if self.joint: return out + self.ring_adv(self.sDP, self.sRP, self.SP + self.SQ, self.NBP)
        return out + self.ring_adv(self.sDP, self.sRP, self.SP, self.NBP) + self.ring_adv(self.sDQ, self.sRQ, self.SQ, self.NBQ)
    def dma_list(self, which, seg, sBuf):
        if seg is None or C.nodma: return []
        if which == 'P': return seg.Pdma(sBuf) + [list(seg.kadvP)]
        return seg.Qdma(sBuf) + [list(seg.kadvQ)] + seg.xdma
    def body(self, cur, nxt, dP, dQ, vmw, pre_barrier=None, extra=None, zero=False):
        a = self.a
        self.emit(self.advance())
        a("s_waitcnt lgkmcnt(0)")
        fill = self.reads(cur, 1, 1)
        if nxt is not None: fill.append(nxt.P.upd_A(self.sRP) + nxt.Q.upd_A(self.sRQ))
        if self.early == 'P': fill = self.mix(fill, self.dma_list('P', dP, self.sE))
        if self.early == 'Q': fill = self.mix(fill, self.dma_list('Q', dQ, self.sE))
        if nxt is None and extra: fill = fill + extra
        self.emit(self.spread(self.mfmas(cur, 0, zero), fill))
        if nxt is None:
            a("s_waitcnt lgkmcnt(0)")
            self.emit(self.mfmas(cur, 1))
            return
        if pre_barrier: pre_barrier()
        a(f"s_waitcnt vmcnt({vmw}) lgkmcnt(0)")
        a("s_barrier")
        if self.opt["prio"]: a("s_setprio 1")
        fill = self.reads(nxt, 0, 0)
        d = []
        if self.early != 'P': d += self.dma_list('P', dP, self.sDP)
        if self.early != 'Q': d += self.dma_list('Q', dQ, self.sDQ)
        fill = self.mix(fill, d)
        u = nxt.P.upd_B(self.sRP) + nxt.Q.upd_B(self.sRQ)
        if u: fill.append(u)
        if extra: fill = fill + extra
        self.emit(self.spread(self.mfmas(cur, 1), fill))
        if self.opt["prio"]: a("s_setprio 0")
    def prologue(self, stages, which="PQ", first=0, last=None):
        a = self.a
        stride = self.SP + self.SQ if self.joint else None
        if first == 0:
            a(f"s_mov_b32 s{self.sDP}, 0")
            if not self.joint: a(f"s_mov_b32 s{self.sDQ}, 0")
        for s in range(first, max(self.leadP, self.leadQ) if last is None else last):
            if "P" in which and s < self.leadP:
                for g in stages[s].Pdma(self.sDP): self.emit(g)
                self.emit(stages[s].kadvP); self.note(('P', s), stages[s].P.count()[0])
                if not self.joint: a(f"s_add_u32 s{self.sDP}, s{self.sDP}, {self.SP}")
            if "Q" in which and s < self.leadQ:
                for g in stages[s].Qdma(self.sDQ): self.emit(g)
                self.emit(stages[s].kadvQ); self.note(('Q', s), stages[s].Q.count()[0])
                if not self.joint: a(f"s_add_u32 s{self.sDQ}, s{self.sDQ}, {self.SQ}")
            if self.joint: a(f"s_add_u32 s{self.sDP}, s{self.sDP}, {stride}")
    def run(self, stages, hooks=None, extras=None, post_first=None):
        a = self.a; N = len(stages)
        hooks = hooks or {}; extras = extras or {}
        a(f"s_waitcnt vmcnt({self.vm_allow({('P',0),('Q',0)})})")
        if getattr(self, "pre_first", None): self.pre_first()
        a("s_barrier")
        if post_first: post_first()
        seen = []
        for sg in stages:
            for op in (sg.P, sg.Q):
                if op not in seen: seen.append(op); self.emit(op.init_cur())
        if self.joint:
            a(f"s_mov_b32 s{self.sRP}, 0"); a(f"s_mov_b32 s{self.sDP}, {(self.SP+self.SQ)*(self.NBP-1)}")
        else:
            a(f"s_mov_b32 s{self.sRP}, 0"); a(f"s_mov_b32 s{self.sDP}, {self.SP*(self.NBP-1)}")
            a(f"s_mov_b32 s{self.sRQ}, 0"); a(f"s_mov_b32 s{self.sDQ}, {self.SQ*(self.NBQ-1)}")
        for g in self.reads(stages[0], 0, 0): self.emit(g)
        sigs = []; seen_acc = set()
        for i in range(N):
            nxt = stages[i + 1] if i + 1 < N else None
            dP = stages[i + self.leadP] if i + self.leadP < N else None
            dQ = stages[i + self.leadQ] if i + self.leadQ < N else None
            def noteP():
                if dP is not None: self.note(('P', i + self.leadP), dP.P.count()[0])
            def noteQ():
                if dQ is not None:
                    self.note(('Q', i + self.leadQ), dQ.Q.count()[0])
                    if dQ.xdma: self.note(('PF', i), len(dQ.xdma))
            if self.early == 'P': noteP()
            if self.early == 'Q': noteQ()
            vmw = self.vm_allow({('P', i + 1), ('Q', i + 1)}) if nxt is not None else 0
            if i in getattr(self, "want_allow", {}):
                if not hasattr(self, "allow_at"): self.allow_at = {}
                self.allow_at[i] = self.vm_allow({self.want_allow[i]})
            if self.early != 'P': noteP()
            if self.early != 'Q': noteQ()
            if i in extras: self.note(('X', i), extras[i][1])
            zero = self.zero_first and stages[i].acc not in seen_acc
            seen_acc.add(stages[i].acc)
            sigs.append((stages[i], nxt, dP, dQ, vmw, i if (i in hooks or i in extras or zero) else -1, zero))
        i = 0
        while i < N:
            j = i
            while j < N and sigs[j] == sigs[i]: j += 1
            cnt = j - i
            cur, nxt, dP, dQ, vmw, sp, zero = sigs[i]
            hk = hooks.get(sp); ex = extras[sp][0] if sp in extras else None
            if cnt >= 2:
                lbl = newlabel("gl")
                a(f"s_mov_b32 s{self.sCnt}, {cnt}")
                a.label(lbl)
                self.body(cur, nxt, dP, dQ, vmw)
                a(f"s_sub_u32 s{self.sCnt}, s{self.sCnt}, 1"); a(f"s_cmp_lg_u32 s{self.sCnt}, 0"); a(f"s_cbranch_scc1 {lbl}")
            else:
                self.body(cur, nxt, dP, dQ, vmw, hk, ex, zero)
            i = j

def merge(x, y):
    out = []; i = j = 0
    while i < len(x) or j < len(y):
        if j >= len(y) or (i < len(x) and i * len(y) <= j * len(x)): out.append(x[i]); i += 1
        else: out.append(y[j]); j += 1
    return out

def bf16_round(a, vdst, vsrc):
    a(f"v_cvt_pk_bf16_f32 v{vdst}, v{vsrc}, v{vsrc}"); a(f"v_lshlrev_b32 v{vdst}, 16, v{vdst}")

def stamp(a, idx, real=False, st="main"):
    if C.dbgst and st == C.stampset:
        a("s_memrealtime s[88:89]" if real else "s_memtime s[88:89]")
        a("s_waitcnt lgkmcnt(0)")
        a(f"s_mov_b32 s{92+idx}, s88")

sWave, sM, sN, sRole = 28, 29, 30, 31
sBufD, sBufR, sCnt, sTmp, sKP, sKQ, sLdsP, sLdsQ = 32, 33, 34, 35, 36, 37, 38, 39
sWp, sWq, sRot, sLdsP2, sKP2, sTile, sTt, sDt = 80, 81, 82, 83, 84, 85, 86, 87
SX, SA, SB_, SWS, SDBG, SS = 4, 8, 12, 16, 20, 24
T0, T1, T2, T3 = 76, 77, 78, 79
U0, U1, U2, U3 = 88, 89, 90, 91
VT = 2

def ssm_param_loads(a, vch, t):
    a(f"v_lshlrev_b32 v{t}, 1, v{vch}")
    for k, name in enumerate(("lre", "lim", "ldt")):
        srd(a, SS, PTR[name], 2048)
        a(f"buffer_load_ushort v{t+1+k}, v{t}, s[{SS}:{SS+3}], 0 offen")

def ssm_params_compute(a, out, t, want_kappa=True):
    lre, lim, ldt = t + 1, t + 2, t + 3
    x0, x1, x2, x3 = t + 4, t + 5, t + 6, t + 7
    lr, li, kr, ki = out, out + 1, out + 2, out + 3
    for r in (lre, lim, ldt): a(f"v_lshlrev_b32 v{r}, 16, v{r}")
    a(f"v_mul_f32 v{x0}, {LOG2E:#x}, v{ldt}"); a(f"v_exp_f32 v{x0}, v{x0}"); a("s_nop 0")
    bf16_round(a, x0, x0)
    a(f"v_mul_f32 v{x1}, v{x0}, v{lre}"); a(f"v_mul_f32 v{x2}, v{x0}, v{lim}")
    a(f"v_mul_f32 v{x1}, {LOG2E:#x}, v{x1}"); a(f"v_exp_f32 v{x1}, v{x1}")
    a(f"v_mul_f32 v{x2}, {INV2PI:#x}, v{x2}"); a(f"v_rndne_f32 v{x3}, v{x2}"); a(f"v_sub_f32 v{x2}, v{x2}, v{x3}")
    a(f"v_cos_f32 v{x3}, v{x2}"); a(f"v_sin_f32 v{x2}, v{x2}"); a("s_nop 0")
    a(f"v_mul_f32 v{lr}, v{x1}, v{x3}"); a(f"v_mul_f32 v{li}, v{x1}, v{x2}")
    if want_kappa:
        a(f"v_subrev_f32 v{x0}, 1.0, v{lr}")
        a(f"v_mul_f32 v{x1}, v{x0}, v{lre}"); a(f"v_fmac_f32 v{x1}, v{li}, v{lim}")
        a(f"v_mul_f32 v{x2}, v{li}, v{lre}"); a(f"v_fma_f32 v{x2}, -v{x0}, v{lim}, v{x2}")
        a(f"v_mul_f32 v{x3}, v{lre}, v{lre}"); a(f"v_fmac_f32 v{x3}, v{lim}, v{lim}")
        a(f"v_rcp_f32 v{x3}, v{x3}"); a("s_nop 0")
        a(f"v_add_f32 v{x3}, v{x3}, v{x3}")
        a(f"v_mul_f32 v{kr}, v{x1}, v{x3}"); a(f"v_mul_f32 v{ki}, v{x2}, v{x3}")

def csq(a, dr, di, sr_, si, t):
    a(f"v_mul_f32 v{t}, v{sr_}, v{si}"); a(f"v_mul_f32 v{dr}, v{sr_}, v{sr_}")
    a(f"v_fma_f32 v{dr}, -v{si}, v{si}, v{dr}"); a(f"v_add_f32 v{di}, v{t}, v{t}")

def gate_row_loads(a, sRow, vx, t):
    a(f"s_lshl_b32 s{U1}, s{sRow}, 11")
    a(f"buffer_load_dwordx4 {vr(vx,4)}, v{t}, s[{SX}:{SX+3}], s{U1} offen")
    a(f"buffer_load_dwordx4 {vr(vx+4,4)}, v{t}, s[{SX}:{SX+3}], s{U1} offen offset:16")

def gate_compute(a, sRow, vx, vw, t):
    acc = t; p0, p1, q0, q1 = t + 1, t + 2, t + 3, t + 4
    a(f"v_mov_b32 v{acc}, 0")
    for d in range(8):
        a(f"v_lshlrev_b32 v{p0}, 16, v{vx+d}"); a(f"v_and_b32 v{p1}, 0xffff0000, v{vx+d}")
        a(f"v_lshlrev_b32 v{q0}, 16, v{vw+d}"); a(f"v_and_b32 v{q1}, 0xffff0000, v{vw+d}")
        a(f"v_mul_f32 v{p0}, v{p0}, v{q0}"); a(f"v_mul_f32 v{p1}, v{p1}, v{q1}")
        a(f"v_cvt_pk_bf16_f32 v{p0}, v{p0}, v{p1}")
        a(f"v_and_b32 v{p1}, 0xffff0000, v{p0}"); a(f"v_lshlrev_b32 v{p0}, 16, v{p0}")
        a(f"v_add_f32 v{acc}, v{acc}, v{p0}"); a(f"v_add_f32 v{acc}, v{acc}, v{p1}")
    for sh in (1, 2, 4, 8):
        a("s_nop 1")
        a(f"v_add_f32_dpp v{acc}, v{acc}, v{acc} row_shr:{sh} row_mask:0xf bank_mask:0xf bound_ctrl:0")
    a("s_nop 1")
    a(f"v_add_f32_dpp v{acc}, v{acc}, v{acc} row_bcast:15 row_mask:0xa bank_mask:0xf")
    a("s_nop 1")
    a(f"v_add_f32_dpp v{acc}, v{acc}, v{acc} row_bcast:31 row_mask:0xc bank_mask:0xf")
    a("s_nop 1")
    a(f"v_readlane_b32 s{U0}, v{acc}, 63")
    a("s_nop 1")
    a(f"v_mov_b32 v{acc}, s{U0}")
    bf16_round(a, acc, acc)
    a(f"v_mul_f32 v{p0}, {LOG2E ^ 0x80000000:#x}, v{acc}"); a(f"v_exp_f32 v{p0}, v{p0}"); a("s_nop 0")
    a(f"v_add_f32 v{p0}, 1.0, v{p0}"); a(f"v_rcp_f32 v{p0}, v{p0}"); a("s_nop 0")
    bf16_round(a, p0, p0)
    a(f"v_sub_f32 v{p1}, 1.0, v{p0}")
    bf16_round(a, p1, p1)
    a(f"s_lshl_b32 s{U0}, s{sRow}, 3"); a(f"s_add_u32 s{U0}, s{U0}, {WS_G}")
    a(f"v_cmp_eq_u32 vcc, 0, v0"); a("s_nop 1")
    a(f"v_cndmask_b32 v{p0}, v{p1}, v{p0}, vcc")
    a(f"v_lshlrev_b32 v{q0}, 2, v0")
    a("s_mov_b64 exec, 3")
    a(f"buffer_store_dword v{p0}, v{q0}, s[{SWS}:{SWS+3}], s{U0} offen sc1")
    a("s_mov_b64 exec, -1")

SENT = 0xffffffff
def inbox_offset(a, sdst):
    a(f"s_lshl_b32 s{sdst}, s2, 3"); a(f"s_add_u32 s{sdst}, s{sdst}, s{sWave}"); a(f"s_mul_i32 s{sdst}, s{sdst}, {4096*(C.ns-1)}")
    a(f"s_add_u32 s{sdst}, s{sdst}, {WS_XB}")

def mb_zero_groups(vt, ssm=False):
    c = []
    q = (vt + 1) // 2 * 2
    sk = newlabel("mz")
    c += [f"s_cmp_lg_u32 s{sWave}, 0", f"s_cbranch_scc1 {sk}"]
    if ssm:
        c += [f"v_mov_b32 v{q}, -1", f"v_mov_b32 v{q+1}, -1",
              f"s_lshl_b32 s{U0}, s{sN}, 6", f"v_add_u32 v{q+4}, s{U0}, v0", f"v_lshlrev_b32 v{q+4}, 3, v{q+4}",
              f"s_lshl_b32 s{U0}, s{sM}, 13", f"s_add_u32 s{U0}, s{U0}, {WS_AGG}",
              f"buffer_store_dwordx2 {vr(q,2)}, v{q+4}, s[{SWS}:{SWS+3}], s{U0} offen sc1"]
    c += [f"v_mov_b32 v{q+2}, 0", f"v_lshlrev_b32 v{q+4}, 2, v0", f"s_lshl_b32 s{U0}, s2, 8", f"s_add_u32 s{U0}, s{U0}, {WS_MB}",
          f"buffer_store_dword v{q+2}, v{q+4}, s[{SWS}:{SWS+3}], s{U0} offen sc1", f"{sk}:"]
    return [c], 0

def inbox_init(a, vt):
    for r in range(4): a(f"v_mov_b32 v{vt+r}, -1")
    a(f"v_lshlrev_b32 v{vt+4}, 4, v0")
    inbox_offset(a, U0)
    for i in range(4 * (C.ns - 1)):
        a(f"buffer_store_dwordx4 {vr(vt,4)}, v{vt+4}, s[{SWS}:{SWS+3}], s{U0} offen offset:{(i%4)*1024} sc1")
        if i % 4 == 3: a(f"s_add_u32 s{U0}, s{U0}, 4096")

def init_signal(a, vt, idx=0, guard=True):
    sk = newlabel("mi")
    if guard: a(f"s_cmp_lg_u32 s{sWave}, 0"); a(f"s_cbranch_scc1 {sk}")
    a(f"v_mov_b32 v{vt}, 1"); a(f"v_mov_b32 v{vt+1}, {4*idx}")
    a("s_mov_b64 exec, 1")
    a(f"buffer_atomic_add v{vt}, v{vt+1}, s[{SDBG}:{SDBG+3}], 0 offen sc1")
    a("s_mov_b64 exec, -1")
    a.label(sk)

def poll(a, srd_, sByteOff, check, vt, wide=1, sleep=None):
    lp, ok = newlabel("poll"), newlabel("pok")
    a(f"v_mov_b32 v{vt+4}, s{sByteOff}")
    a(f"s_mov_b32 s{U2}, {C.spin}")
    a.label(lp)
    a(f"s_sub_u32 s{U2}, s{U2}, 1"); a(f"s_cmp_eq_u32 s{U2}, 0"); a(f"s_cbranch_scc1 {ok}")
    op = {1: "dword", 2: "dwordx2", 4: "dwordx4"}[wide]
    a(f"buffer_load_{op} {vr(vt,wide)}, v{vt+4}, s[{srd_}:{srd_+3}], 0 offen sc1")
    a("s_waitcnt vmcnt(0)")
    a(f"v_readfirstlane_b32 s{U0}, v{vt}")
    if wide >= 2: a(f"v_readfirstlane_b32 s{U1}, v{vt+1}")
    if wide >= 4: a(f"v_readfirstlane_b32 s{U3}, v{vt+2}")
    a("s_nop 3")
    check(ok)
    a(f"s_sleep {C.sleep if sleep is None else sleep}")
    a(f"s_branch {lp}")
    a.label(ok)

VINIT = 1
def init_load(a, idx=0):
    sk = newlabel("il")
    a(f"s_cmp_lg_u32 s{sWave}, 0"); a(f"s_cbranch_scc1 {sk}")
    a(f"v_mov_b32 v{VINIT}, {4*idx}")
    a(f"buffer_load_dword v{VINIT}, v{VINIT}, s[{SDBG}:{SDBG+3}], 0 offen sc1")
    a.label(sk)

def init_check(a, vt, idx=0):
    ok = newlabel("ic")
    a(f"v_readfirstlane_b32 s{U0}, v{VINIT}"); a("s_nop 3")
    a(f"s_cmp_ge_u32 s{U0}, 256"); a(f"s_cbranch_scc1 {ok}")
    a(f"s_mov_b32 s{T3}, {4*idx}")
    def chk(o): a(f"s_cmp_ge_u32 s{U0}, 256"); a(f"s_cbranch_scc1 {o}")
    poll(a, SDBG, T3, chk, vt, sleep=32)
    a.label(ok)

def poll_own(a, check, vt):
    a(f"s_lshl_b32 s{T3}, s2, 8"); a(f"s_add_u32 s{T3}, s{T3}, {WS_MB}")
    poll(a, SWS, T3, check, vt, wide=4)

def signal_cnt(a, dword, vt):
    NS = C.ns; XS = 8 // NS
    l, t1, t2 = vt, vt + 1, vt + 2
    t3 = vt + 3
    if NS == 2:
        a(f"v_bfe_u32 v{t1}, v0, 3, 1"); a(f"s_lshl_b32 s{T0}, s{sM}, 1"); a(f"v_add_u32 v{t1}, s{T0}, v{t1}")
        a(f"v_bfe_u32 v{t3}, v0, 4, 1")
    else:
        a(f"v_mov_b32 v{t1}, s{sM}")
        a(f"v_bfe_u32 v{t3}, v0, 3, 2")
    a(f"v_lshrrev_b32 v{t2}, 2, v{t1}"); a(f"v_mad_u32_u24 v{t2}, v{t3}, {XS}, v{t2}")
    a(f"v_and_b32 v{t1}, 3, v{t1}"); a(f"v_lshlrev_b32 v{t1}, 2, v{t1}")
    a(f"v_and_b32 v{l}, 3, v0"); a(f"v_or_b32 v{t1}, v{t1}, v{l}")
    a(f"v_bfe_u32 v{l}, v0, 2, 1"); a(f"v_and_b32 v{t3}, 1, v{t3}"); a(f"v_xor_b32 v{l}, v{l}, v{t3}"); a(f"v_xor_b32 v{l}, 1, v{l}")
    a(f"v_lshl_or_b32 v{t1}, v{l}, 4, v{t1}")
    a(f"v_lshl_or_b32 v{t1}, v{t1}, 3, v{t2}")
    a(f"v_lshlrev_b32 v{t1}, 8, v{t1}")
    if dword == "S" and C.fine and NS == 4:
        a(f"s_and_b32 s{T0}, s{sN}, 7"); a(f"s_lshl_b32 s{T0}, 1, s{T0}"); a(f"v_mov_b32 v{l}, s{T0}")
    else:
        a(f"v_mov_b32 v{l}, 1")
    if dword == "S":
        a(f"s_lshr_b32 s{T0}, s{sN}, 3"); a(f"s_lshl_b32 s{T0}, s{T0}, 2"); a(f"s_add_u32 s{T0}, s{T0}, {WS_MB}")
    else:
        a(f"s_mov_b32 s{T0}, {WS_MB + 4*dword}")
    a("s_mov_b32 exec_hi, 0")
    a(f"buffer_atomic_add v{l}, v{t1}, s[{SWS}:{SWS+3}], s{T0} offen sc1")
    a("s_mov_b64 exec, -1")

def bulk_prefetch(a, G, vdummy, vaddr):
    a(f"v_lshlrev_b32 v{vaddr}, 4, v0")
    n = 0
    for name, size in C.pflist:
        size = {"x": L*D*2, "w1": D*F*2, "bre": P_*D*2, "bim": P_*D*2, "cre": D*P_*2, "cim": D*P_*2, "w2": F*D*2}[name]
        share = size // 256; pw = share // 8
        a(f"s_mul_i32 s{U0}, s2, {share}"); a(f"s_mul_i32 s{U1}, s{sWave}, {pw}"); a(f"s_add_u32 s{U0}, s{U0}, s{U1}")
        a(f"s_mov_b32 s{SS}, s{PTR[name]}"); a(f"s_mov_b32 s{SS+1}, s{PTR[name]+1}")
        a(f"s_add_u32 s{SS+2}, s{U0}, {pw}"); a(f"s_mov_b32 s{SS+3}, 0x20000")
        for i in range(-(-pw // 1024)):
            a(f"buffer_load_dwordx4 {vr(vdummy,4)}, v{vaddr}, s[{SS}:{SS+3}], s{U0} offen offset:{i*1024}")
            n += 1
    G.note('pf', n)

def tlb_warm(a, vdummy, vaddr, names, tsrd):
    sizes = {"w2": F*D*2, "cre": D*P_*2, "cim": D*P_*2, "out": L*D*4, "lre": 2048, "lim": 2048, "ldt": 2048, "dsk": 2048, "b2": 2048, "gw": 2048}
    a(f"v_lshlrev_b32 v{vaddr}, {C.tlbshift}, v0")
    end = newlabel("tw")
    for w in range(8):
        nx = newlabel("tw")
        a(f"s_cmp_lg_u32 s{sWave}, {w}"); a(f"s_cbranch_scc1 {nx}")
        for name in names[w::8]:
            if name == "ws":
                a("s_mov_b32 exec_lo, 0x00ffffff"); a("s_mov_b32 exec_hi, 0")
                a(f"buffer_load_dword v{vdummy}, v{vaddr}, s[{SWS}:{SWS+3}], 0 offen")
                a("s_mov_b64 exec, -1")
            elif name == "dbg":
                a(f"buffer_load_dword v{vdummy}, v{vaddr}, s[{SDBG}:{SDBG+3}], 0 offen")
            else:
                a(f"s_mov_b32 s{tsrd}, s{PTR[name]}"); a(f"s_mov_b32 s{tsrd+1}, s{PTR[name]+1}"); a(f"s_mov_b32 s{tsrd+2}, {sizes[name]}"); a(f"s_mov_b32 s{tsrd+3}, 0x20000")
                a(f"buffer_load_dword v{vdummy}, v{vaddr}, s[{tsrd}:{tsrd+3}], 0 offen")
        a(f"s_branch {end}")
        a.label(nx)
    a.label(end)

def warm_groups(tsrd, vaddr):
    c = []
    end = newlabel("wg")
    c.append(f"v_lshlrev_b32 v{vaddr}, 20, v0")
    for w, name in enumerate(("a2", "cre", "cim", "w2")):
        nx = newlabel("wg")
        c += [f"s_cmp_lg_u32 s{sWave}, {w}", f"s_cbranch_scc1 {nx}"]
        if name == "a2":
            c += [f"s_mul_i32 s{U0}, s{sM}, {256*RS_A2}", "s_mov_b64 exec, 15",
                  f"buffer_load_dword v250, v{vaddr}, s[{SWS}:{SWS+3}], s{U0} offen", "s_mov_b64 exec, -1"]
        else:
            size = {"cre": D*P_*2, "cim": D*P_*2, "w2": F*D*2}[name]
            c += [f"s_mov_b32 s{tsrd}, s{PTR[name]}", f"s_mov_b32 s{tsrd+1}, s{PTR[name]+1}", f"s_mov_b32 s{tsrd+2}, {size}", f"s_mov_b32 s{tsrd+3}, 0x20000",
                  f"buffer_load_dword v250, v{vaddr}, s[{tsrd}:{tsrd+3}], 0 offen"]
        c += [f"s_branch {end}", f"{nx}:"]
    c.append(f"{end}:")
    return [c], 0

def code_pf_groups(vt):
    l, sk = newlabel("cp"), newlabel("cps")
    c = [f"s_cmp_lg_u32 s{sWave}, 7", f"s_cbranch_scc1 {sk}",
         f"s_getpc_b64 s[{U0}:{U1}]", f"{l}:",
         f"s_sub_u32 s{U0}, s{U0}, {l}-{NAME}", f"s_subb_u32 s{U1}, s{U1}, 0",
         f"s_lshr_b32 s{U2}, s2, 3", f"s_lshl_b32 s{U2}, s{U2}, 11",
         f"v_lshlrev_b32 v{vt}, 7, v0", f"v_add_u32 v{vt}, s{U2}, v{vt}", f"v_min_u32 v{vt}, L_codeend-{NAME}-4, v{vt}",
         "s_mov_b64 exec, 0xffff", f"global_load_dword v250, v{vt}, s[{U0}:{U1}]", "s_mov_b64 exec, -1", f"{sk}:"]
    return [c], 0

def phase1_dense(a):
    V = Regs(10)
    TP, TQ = 224, 256
    mp, mq = 7, 4
    Pop = OpNC(a, V, TP, 0, mp, F * 2)
    NBP, NBQ = (3, 2) if C.d1p else (2, 3)
    Qop = OpKC(a, V, TQ, NBP * Pop.bytes, mq); Qop.groups = [[0, 1, 2, 3]]
    G = Gemm(a, V, NBP, NBQ, Pop.bytes, Qop.bytes, mp, mq, (sBufD, sBufR, sTile, sTt, sCnt, sRole), False, 'P' if C.d1p else 'Q', 'd1')
    LDS1 = NBP * Pop.bytes + NBQ * Qop.bytes
    acc = V.get(4 * mp * mq, 2)
    vb = V.get(2 * mp, 2); vdum = V.get(4, 2)
    a(f"s_lshr_b32 s{sWp}, s{sWave}, 2"); a(f"s_and_b32 s{sWq}, s{sWave}, 3")
    a(f"s_mul_i32 s{T0}, s{sN}, {TP*2}")
    Pop.setup_dma(sWave, VT, T0, U0)
    Qop.lane_chunk(VT, VT + 1)
    a(f"v_lshrrev_b32 v{VT+1}, 3, v0"); a(f"v_lshl_add_u32 v{VT}, v{VT+1}, 11, v{VT}")
    for j in range(4):
        a(f"s_lshl_b32 s{T0}, s{sM}, 8"); a(f"s_lshl_b32 s{T1}, s{sWave}, 5"); a(f"s_add_u32 s{T0}, s{T0}, s{T1}")
        a(f"s_add_u32 s{T0}, s{T0}, {8*j}"); a(f"s_lshl_b32 s{T0}, s{T0}, 11"); a(f"s_sub_u32 s{T0}, s{T0}, {j*1024}")
        Qop.set_voff(j, VT, T0, bool(j & 1))
    Pop.setup_lds(sWave, sLdsP, U0)
    a(f"s_lshl_b32 s{sLdsQ}, s{sWave}, 12"); a(f"s_add_u32 s{sLdsQ}, s{sLdsQ}, {Qop.lds_off}")
    a(f"s_mul_i32 s{sKP}, s{sRot}, {64*F*2}"); a(f"s_lshl_b32 s{sKQ}, s{sRot}, 7")
    a("s_waitcnt lgkmcnt(0)")
    stamp(a, 1, st="pro")
    srd(a, SX, PTR["x"], L * D * 2); srd(a, SWS, PTR["ws"], WS_SIZE); srd(a, SDBG, PTR["dbg"], 256)
    srd(a, SA, PTR["w1"], D * F * 2)
    kadvP = [f"s_add_u32 s{sKP}, s{sKP}, {64*F*2}", f"s_cmp_eq_u32 s{sKP}, {D*F*2}", f"s_cselect_b32 s{sKP}, 0, s{sKP}"]
    kadvQ = [f"s_add_u32 s{sKQ}, s{sKQ}, 128", f"s_and_b32 s{sKQ}, s{sKQ}, 2047"]
    seg = Seg(Pop, Qop, acc, lambda b: Pop.dma(b, sKP, sTmp, sLdsP, SA, sWave), lambda b: Qop.dma(b, sKQ, sTmp, sLdsQ, [SX] * 4), kadvP, kadvQ, "d1")
    stages = [seg] * 16
    G.prologue(stages, "PQ", 0, 1)
    if C.pbar: a("s_barrier")
    if C.tlb: tlb_warm(a, 250, VT + 5, ["ws", "w2", "cre", "cim", "out", "dbg", "dsk", "b2"], SS); G.note('tlb', 1)
    stamp(a, 2, st="pro")
    a(f"s_mul_i32 s{T2}, s{sN}, {TP}"); a(f"s_mul_i32 s{T3}, s{sWp}, {mp*16}"); a(f"s_add_u32 s{T2}, s{T2}, s{T3}")
    a(f"s_lshl_b32 s{T3}, s{T2}, 1")
    a(f"v_lshrrev_b32 v{VT+2}, 4, v0"); a(f"v_lshlrev_b32 v{VT+2}, 3, v{VT+2}")
    srd(a, SS, PTR["b1"], F * 2)
    for i in range(mp):
        a(f"buffer_load_dwordx2 {vr(vb+2*i,2)}, v{VT+2}, s[{SS}:{SS+3}], s{T3} offen offset:{32*i}")
    G.note('misc', mp)
    a(f"s_mul_i32 s{T0}, s{sWp}, {mp}"); Pop.setup_read(T0, VT, U0)
    a(f"s_mul_i32 s{T0}, s{sWq}, {mq}"); Qop.setup_read(T0, VT, U0)
    stamp(a, 3, st="pro")
    G.prologue(stages, "PQ", 1)
    stamp(a, 4, st="pro")
    a(f"s_waitcnt vmcnt({G.vm_allow({'misc'})})")
    for i in range(mp):
        c = acc + 4 * (i * mq)
        a(f"v_lshlrev_b32 v{c}, 16, v{vb+2*i}"); a(f"v_and_b32 v{c+1}, 0xffff0000, v{vb+2*i}")
        a(f"v_lshlrev_b32 v{c+2}, 16, v{vb+2*i+1}"); a(f"v_and_b32 v{c+3}, 0xffff0000, v{vb+2*i+1}")
        for j in range(1, mq):
            for r in range(4): a(f"v_mov_b32 v{c+4*j+r}, v{c+r}")
    stamp(a, 1)
    G.pre_first = lambda: stamp(a, 5, st="pro")
    dex = {C.initit: mb_zero_groups(VT + 2)}
    if C.midwarm: dex[C.midwarm] = warm_groups(SS, VT + 3)
    if C.codepf2: dex[C.codepf2] = code_pf_groups(VT + 3)
    G.run(stages, {C.initit + 3: (lambda: init_signal(a, VT + 4))}, dex, (lambda: stamp(a, 6, st="pro")))
    stamp(a, 2)
    stamp(a, 1, st="clk"); stamp(a, 2, real=True, st="clk")
    PITCH = 464
    stamp(a, 1, st="dense")
    init_load(a)
    vw = VT
    a(f"v_and_b32 v{vw}, 15, v0"); a(f"v_mul_u32_u24 v{vw}, {PITCH}, v{vw}")
    a(f"v_lshrrev_b32 v{VT+1}, 4, v0"); a(f"v_lshl_add_u32 v{vw}, v{VT+1}, 3, v{vw}")
    a(f"s_mul_i32 s{T0}, s{sWq}, {64*PITCH}"); a(f"s_mul_i32 s{T1}, s{sWp}, 224"); a(f"s_add_u32 s{T0}, s{T0}, s{T1}")
    a(f"v_add_u32 v{vw}, s{T0}, v{vw}")
    vr_, vg_ = VT + 1, VT + 2
    a(f"v_cmp_le_u32 vcc, 28, v0"); a("s_nop 1")
    a(f"v_cndmask_b32 v{VT+3}, 0, 1, vcc")
    a(f"v_mul_u32_u24 v{VT+4}, 28, v{VT+3}"); a(f"v_sub_u32 v{VT+4}, v0, v{VT+4}")
    a(f"v_lshlrev_b32 v{VT+4}, 4, v{VT+4}")
    a(f"v_mul_u32_u24 v{vr_}, {PITCH}, v{VT+3}"); a(f"v_add_u32 v{vr_}, v{vr_}, v{VT+4}")
    NH = C.dparts; JP = mq // NH; RW = 8 * JP
    a(f"s_mul_i32 s{T0}, s{sWq}, {64*PITCH}"); a(f"s_mul_i32 s{T1}, s{sWp}, {RW*PITCH}"); a(f"s_add_u32 s{T0}, s{T0}, s{T1}")
    a(f"v_add_u32 v{vr_}, s{T0}, v{vr_}")
    a(f"v_mul_u32_u24 v{vg_}, {RS_A2}, v{VT+3}"); a(f"v_add_u32 v{vg_}, v{vg_}, v{VT+4}")
    a(f"s_lshl_b32 s{T0}, s{sM}, 8"); a(f"s_lshl_b32 s{T1}, s{sWq}, 6"); a(f"s_add_u32 s{T0}, s{T0}, s{T1}")
    a(f"s_mul_i32 s{T1}, s{sWp}, {RW}"); a(f"s_add_u32 s{T0}, s{T0}, s{T1}")
    a(f"s_mul_i32 s{T0}, s{T0}, {RS_A2}"); a(f"s_mul_i32 s{T1}, s{sN}, 448"); a(f"s_add_u32 s{T0}, s{T0}, s{T1}")
    a(f"s_add_u32 s{T0}, s{T0}, {WS_A2 + 4096}")
    rb = G.F[0][0]
    for p in range(NH):
        js = range(p * JP, (p + 1) * JP)
        for j in js:
            for i in range(mp):
                c = acc + 4 * (i * mq + j)
                for r in range(4): a(f"v_mul_f32_e64 v{c+r}, v{c+r}, |v{c+r}|")
                a(f"v_cvt_pk_bf16_f32 v{c}, v{c}, v{c+1}"); a(f"v_cvt_pk_bf16_f32 v{c+1}, v{c+2}, v{c+3}")
                a(f"v_pk_max_i16 v{c}, v{c}, 0"); a(f"v_pk_max_i16 v{c+1}, v{c+1}, 0")
        if p == 0:
            a("s_barrier")
            stamp(a, 2, st="dense")
        for j in js:
            for i in range(mp):
                c = acc + 4 * (i * mq + j)
                a(f"ds_write_b64 v{vw}, {vr(c,2)} offset:{j*16*PITCH + 32*i}")
        a("s_waitcnt lgkmcnt(0)")
        if p == 0: stamp(a, 3, st="dense")
        a("s_barrier")
        if p == 0: stamp(a, 4, st="dense")
        a("s_mov_b32 exec_hi, 0x00ffffff")
        nst = RW // 2
        for n in range(nst):
            a(f"ds_read_b128 {vr(rb+4*n,4)}, v{vr_} offset:{(16*JP*p + 2*n)*PITCH}")
        if p: a(f"s_add_u32 s{T0}, s{T0}, {(16*JP - RW)*RS_A2}")
        for n in range(nst):
            a(f"s_waitcnt lgkmcnt({nst-1-n})")
            a(f"buffer_store_dwordx4 {vr(rb+4*n,4)}, v{vg_}, s[{SWS}:{SWS+3}], s{T0} offen{C.wt}")
            a(f"s_add_u32 s{T0}, s{T0}, {2*RS_A2}")
        a("s_mov_b64 exec, -1")
        if p < NH - 1: a("s_nop 1")
    stamp(a, 5, st="dense")
    return V.hi, max(LDS1, 4 * 64 * PITCH)

def phase1_ssm(a):
    V = Regs(10)
    mp, mq = 4, 4
    Pop = OpKC(a, V, 256, 0, mp); Pop.groups = [[0, 1, 2, 3]]
    Qop = OpKC(a, V, 128, Pop.bytes, mq); Qop.groups = [[0], [1]]; Qop.ldsoffs = [0, 8192]
    Qop.frag_off = lambda j: ((j & 1) * 4 + (j >> 1)) * 2048
    SB = Pop.bytes + Qop.bytes; NB = 3
    G = Gemm(a, V, NB, NB, Pop.bytes, Qop.bytes, mp, mq, (sBufD, sBufR, None, None, sCnt, sRole), True, 'P', 's1')
    acc = V.get(64, 2); prm = V.get(12, 4); big = V.get(72, 4)
    AG = NB * SB
    a(f"s_lshr_b32 s{sWp}, s{sWave}, 1"); a(f"s_and_b32 s{sWq}, s{sWave}, 1")
    Pop.lane_chunk(VT, VT + 1)
    a(f"v_lshrrev_b32 v{VT+1}, 5, v0"); a(f"v_lshlrev_b32 v{VT+1}, 4, v{VT+1}")
    a(f"v_bfe_u32 v{VT+2}, v0, 3, 2"); a(f"v_add_u32 v{VT+1}, v{VT+1}, v{VT+2}")
    a(f"v_lshl_add_u32 v{VT+3}, v{VT+1}, 11, v{VT}")
    for j in range(4):
        a(f"s_lshl_b32 s{T0}, s{sWave}, 1");
        if j >> 1: a(f"s_add_u32 s{T0}, s{T0}, 1")
        a(f"s_and_b32 s{T0}, s{T0}, 3"); a(f"s_lshl_b32 s{T0}, s{T0}, 2")
        a(f"s_lshl_b32 s{T1}, s{sWp}, 6"); a(f"s_add_u32 s{T0}, s{T0}, s{T1}")
        a(f"s_lshl_b32 s{T1}, s{sM}, 8"); a(f"s_add_u32 s{T0}, s{T0}, s{T1}")
        if j & 1: a(f"s_add_u32 s{T0}, s{T0}, 32")
        a(f"s_lshl_b32 s{T0}, s{T0}, 11")
        if j: a(f"s_sub_u32 s{T0}, s{T0}, {j*1024}")
        Pop.set_voff(j, VT + 3, T0, bool(j & 1))
    a(f"v_lshrrev_b32 v{VT+1}, 3, v0"); a(f"v_lshl_add_u32 v{VT+3}, v{VT+1}, 12, v{VT}")
    a(f"s_lshr_b32 s{T0}, s{sWave}, 2"); a(f"s_lshl_b32 s{T0}, s{T0}, 5")
    a(f"s_and_b32 s{T1}, s{sWave}, 1"); a(f"s_lshl_b32 s{T2}, s{T1}, 6"); a(f"s_lshl_b32 s{T1}, s{T1}, 4"); a(f"s_add_u32 s{T0}, s{T0}, s{T1}")
    a(f"s_bfe_u32 s{T1}, s{sWave}, 0x10001"); a(f"s_add_u32 s{T0}, s{T0}, s{T1}")
    a(f"s_lshl_b32 s{T1}, s{sN}, 6"); a(f"s_add_u32 s{T0}, s{T0}, s{T1}"); a(f"s_lshl_b32 s{T0}, s{T0}, 11")
    Qop.set_voff(0, VT + 3, T0, T2)
    a(f"v_mov_b32 v{Qop.vd+1}, v{Qop.vd}")
    a(f"s_lshl_b32 s{sLdsP}, s{sWave}, 12")
    a(f"s_lshl_b32 s{sLdsQ}, s{sWave}, 10"); a(f"s_add_u32 s{sLdsQ}, s{sLdsQ}, {Qop.lds_off}")
    a(f"s_lshl_b32 s{sKQ}, s{sRot}, 7")
    a("s_waitcnt lgkmcnt(0)")
    srd(a, SX, PTR["x"], L * D * 2); srd(a, SWS, PTR["ws"], WS_SIZE); srd(a, SDBG, PTR["dbg"], 256)
    srd(a, SA, PTR["bre"], P_ * D * 2); srd(a, SB_, PTR["bim"], P_ * D * 2)
    pt = [big, big + 8, big + 16]
    kadv = [f"s_add_u32 s{sKQ}, s{sKQ}, 128", f"s_and_b32 s{sKQ}, s{sKQ}, 2047"]
    kadvP = [f"s_add_u32 s{sKP}, s{sKP}, 128", f"s_and_b32 s{sKP}, s{sKP}, 2047"]
    a(f"s_mov_b32 s{sKP}, s{sKQ}")
    seg = Seg(Pop, Qop, acc, lambda b: Pop.dma(b, sKP, sTmp, sLdsP, [SX] * 4), lambda b: Qop.dma(b, sKQ, sTmp, sLdsQ, [SA, SB_]), kadvP, kadv, "s1")
    if C.prefetch:
        SP1, SP2, sPF1, sPF2 = SS, 72, sLdsP2, sKP2
        a(f"s_lshl_b32 s{T0}, s{sM}, 4"); a(f"s_add_u32 s{T0}, s{T0}, s{sN}")
        a(f"s_mul_i32 s{sPF2}, s{T0}, {56*1024}"); a(f"s_mul_i32 s{T1}, s{sWave}, {7*1024}"); a(f"s_add_u32 s{sPF2}, s{sPF2}, s{T1}")
        a(f"s_mov_b32 s{SP2}, s{PTR['w2']}"); a(f"s_mov_b32 s{SP2+1}, s{PTR['w2']+1}")
        a(f"s_add_u32 s{SP2+2}, s{sPF2}, {7*1024}"); a(f"s_mov_b32 s{SP2+3}, 0x20000")
        a(f"s_lshr_b32 s{T1}, s{T0}, 6"); a(f"s_cmp_eq_u32 s{T1}, 0")
        a(f"s_cselect_b32 s{SP1}, s{PTR['cre']}, s{PTR['cim']}"); a(f"s_cselect_b32 s{SP1+1}, s{PTR['cre']+1}, s{PTR['cim']+1}")
        a(f"s_and_b32 s{sPF1}, s{T0}, 63"); a(f"s_lshl_b32 s{sPF1}, s{sPF1}, 15"); a(f"s_lshl_b32 s{T1}, s{sWave}, 12"); a(f"s_add_u32 s{sPF1}, s{sPF1}, s{T1}")
        a(f"s_add_u32 s{SP1+2}, s{sPF1}, 4096"); a(f"s_mov_b32 s{SP1+3}, 0x20000")
        vpf = V.get(1); vpd = V.get(4, 2)
        a(f"v_lshlrev_b32 v{vpf}, 4, v0")
        pf = []
        for i in range(4): pf.append([f"buffer_load_dwordx4 {vr(vpd,4)}, v{vpf}, s[{SP1}:{SP1+3}], s{sPF1} offen offset:{i*1024}"])
        for i in range(7):
            pf.append([f"buffer_load_dwordx4 {vr(vpd,4)}, v{vpf}, s[{SP2}:{SP2+3}], s{sPF2} offen offset:{(i%4)*1024}"] + ([f"s_add_u32 s{sPF2}, s{sPF2}, 4096"] if i == 3 else []))
        p1extras = {C.pfit: (pf, 11)}
    else:
        p1extras = {}
    stages = [seg] * 16
    G.prologue(stages, "PQ", 0, 1)
    a(f"s_mul_i32 s{T0}, s{sWp}, {mp}"); Pop.setup_read(T0, VT, U0)
    a(f"s_lshl_b32 s{T0}, s{sWq}, 1"); Qop.setup_read(T0, VT, U0)
    G.zero_first = True
    if C.pbar: a("s_barrier")
    if C.tlb: tlb_warm(a, 250, VT + 5, ["ws", "w2", "cre", "cim", "out", "dbg", "dsk", "b2", "lre", "lim", "ldt", "gw"], 60); G.note('tlb', 1)
    G.prologue(stages, "PQ", 1)
    SPRM = 60
    def prm_loads():
        out = []
        class Cap:
            def __call__(self, x): out.append([x])
        c = Cap()
        c(f"s_lshl_b32 s{T2}, s{sN}, 6"); c(f"s_lshl_b32 s{T3}, s{sWq}, 5"); c(f"s_add_u32 s{T3}, s{T3}, s{T2}")
        c(f"v_and_b32 v{VT}, 15, v0"); c(f"v_lshlrev_b32 v{VT}, 1, v{VT}"); c(f"v_add_u32 v{VT}, s{T3}, v{VT}")
        c(f"v_lshlrev_b32 v{pt[0]}, 1, v{VT}"); c(f"v_add_u32 v{pt[1]}, 2, v{pt[0]}")
        c(f"v_add_u32 v{pt[2]}, s{T2}, v0"); c(f"v_lshlrev_b32 v{pt[2]}, 1, v{pt[2]}")
        c(f"s_mov_b32 s{SPRM+2}, 2048"); c(f"s_mov_b32 s{SPRM+3}, 0x20000")
        for k, name in enumerate(("lre", "lim", "ldt")):
            out.append([f"s_mov_b32 s{SPRM}, s{PTR[name]}", f"s_mov_b32 s{SPRM+1}, s{PTR[name]+1}"] +
                       [f"buffer_load_ushort v{pt[q]+1+k}, v{pt[q]}, s[{SPRM}:{SPRM+3}], 0 offen" for q in range(3)])
        return out
    def prm_math():
        out = []
        class Cap:
            def __call__(self, x): out.append(x)
        c = Cap()
        ssm_params_compute(c, prm, pt[0]); ssm_params_compute(c, prm + 4, pt[1]); ssm_params_compute(c, prm + 8, pt[2], False)
        return [out[i:i + 4] for i in range(0, len(out), 4)]
    p1extras[3] = (prm_loads(), 9)
    p1extras[7] = (prm_math(), 0)
    stamp(a, 1)
    p1extras[C.initit] = mb_zero_groups(VT + 2, True)
    if C.midwarm: p1extras[C.midwarm] = warm_groups(60, VT + 3)
    if C.codepf2: p1extras[C.codepf2] = code_pf_groups(VT + 3)
    G.run(stages, {C.initit + 3: (lambda: init_signal(a, VT + 4))}, p1extras)
    stamp(a, 2)
    stamp(a, 1, st="clk"); stamp(a, 2, real=True, st="clk")
    stamp(a, 1, st="ssm")
    init_load(a)
    a("s_nop 7")
    def U(jc, ri, s): return acc + 4 * ((s >> 2) * 4 + 2 * jc + ri) + (s & 3)
    ag = big; tt = big + 4
    def scan_step(s):
        for jc in range(2):
            hr, hi_ = ag + 2 * jc, ag + 2 * jc + 1; lr = prm + 4 * jc; t0, t1 = tt + 2 * jc, tt + 2 * jc + 1
            a(f"v_fma_f32 v{t0}, v{lr}, v{hr}, v{U(jc,0,s)}"); a(f"v_fma_f32 v{t1}, v{lr}, v{hi_}, v{U(jc,1,s)}")
        for jc in range(2):
            hr, hi_ = ag + 2 * jc, ag + 2 * jc + 1; li = prm + 4 * jc + 1; t0, t1 = tt + 2 * jc, tt + 2 * jc + 1
            a(f"v_fma_f32 v{hi_}, v{li}, -v{hi_}, v{t0}")
            a(f"v_fma_f32 v{t1}, v{li}, v{hr}, v{t1}")
        for jc in range(2):
            hr, hi_ = ag + 2 * jc, ag + 2 * jc + 1; t1 = tt + 2 * jc + 1
            a(f"v_mov_b32 v{hr}, v{hi_}"); a(f"v_mov_b32 v{hi_}, v{t1}")
    for jc in range(2):
        a(f"v_mov_b32 v{ag+2*jc}, v{U(jc,0,0)}"); a(f"v_mov_b32 v{ag+2*jc+1}, v{U(jc,1,0)}")
    def scan2(s, src, dst):
        for jc in range(2):
            hr, hi_ = src + 2 * jc, src + 2 * jc + 1; lr = prm + 4 * jc; dr, di = dst + 2 * jc, dst + 2 * jc + 1
            a(f"v_fma_f32 v{dr}, v{lr}, v{hr}, v{U(jc,0,s)}"); a(f"v_fma_f32 v{di}, v{lr}, v{hi_}, v{U(jc,1,s)}")
        for jc in range(2):
            hr, hi_ = src + 2 * jc, src + 2 * jc + 1; li = prm + 4 * jc + 1; dr, di = dst + 2 * jc, dst + 2 * jc + 1
            a(f"v_fma_f32 v{dr}, -v{li}, v{hi_}, v{dr}"); a(f"v_fma_f32 v{di}, v{li}, v{hr}, v{di}")
    st = [ag, tt]
    for s in range(1, 16): scan2(s, st[(s - 1) & 1], st[s & 1])
    fin = st[15 & 1]
    vag = big + 8
    def calc_vag():
        a(f"v_lshrrev_b32 v{vag}, 4, v0"); a(f"s_lshl_b32 s{T0}, s{sWp}, 2"); a(f"v_add_u32 v{vag}, s{T0}, v{vag}")
        a(f"v_lshlrev_b32 v{vag}, 9, v{vag}")
        a(f"v_and_b32 v{big+9}, 15, v0"); a(f"v_lshlrev_b32 v{big+9}, 4, v{big+9}")
        a(f"s_lshl_b32 s{T0}, s{sWq}, 8"); a(f"s_add_u32 s{T0}, s{T0}, {AG}")
        a(f"v_add3_u32 v{vag}, v{vag}, v{big+9}, s{T0}")
    calc_vag()
    a(f"ds_write_b128 v{vag}, {vr(fin,4)}")
    a("s_waitcnt lgkmcnt(0)")
    a("s_barrier")
    stamp(a, 2, st="ssm")
    a(f"s_cmp_lg_u32 s{sWave}, 0")
    a("s_cbranch_scc1 L_s_gate")
    lr, li = prm + 8, prm + 9
    l16r, l16i, l256r, l256i = big + 10, big + 11, big + 12, big + 13
    er, ei = big + 14, big + 15
    w0 = big + 4
    A = big + 16; vl = big + 9
    a(f"v_lshlrev_b32 v{vl}, 3, v0"); a(f"v_add_u32 v{vl}, {AG}, v{vl}")
    for s in range(16): a(f"ds_read_b64 {vr(A+2*s,2)}, v{vl} offset:{s*512}")
    csq(a, l16r, l16i, lr, li, w0)
    for _ in range(3): csq(a, l16r, l16i, l16r, l16i, w0)
    csq(a, l256r, l256i, l16r, l16i, w0)
    for _ in range(3): csq(a, l256r, l256i, l256r, l256i, w0)
    a("s_waitcnt lgkmcnt(0)")
    x0, x1 = big + 6, big + 7
    for s in range(1, 16):
        pr, pi, cr_, ci_ = A + 2 * (s - 1), A + 2 * (s - 1) + 1, A + 2 * s, A + 2 * s + 1
        a(f"v_fma_f32 v{cr_}, v{l16r}, v{pr}, v{cr_}"); a(f"v_fma_f32 v{ci_}, v{l16r}, v{pi}, v{ci_}")
        a(f"v_fma_f32 v{cr_}, -v{l16i}, v{pi}, v{cr_}"); a(f"v_fma_f32 v{ci_}, v{l16i}, v{pr}, v{ci_}")
    er, ei = A + 30, A + 31
    vo = big + 8
    a(f"s_lshl_b32 s{T0}, s{sN}, 6"); a(f"v_add_u32 v{vo}, s{T0}, v0"); a(f"v_lshlrev_b32 v{vo}, 3, v{vo}")
    a(f"s_lshl_b32 s{T1}, s{sM}, 13"); a(f"s_add_u32 s{T1}, s{T1}, {WS_AGG}")
    a("s_waitcnt vmcnt(0)")
    init_check(a, big + 52)
    a(f"s_lshl_b32 s{T1}, s{sM}, 13"); a(f"s_add_u32 s{T1}, s{T1}, {WS_AGG}")
    a(f"buffer_store_dwordx2 {vr(er,2)}, v{vo}, s[{SWS}:{SWS+3}], s{T1} offen sc1")
    stamp(a, 3, st="ssm")
    cr, ci = big + 48, big + 49
    a(f"v_mov_b32 v{cr}, 0"); a(f"v_mov_b32 v{ci}, 0")
    a(f"s_cmp_eq_u32 s{sM}, 0"); a("s_cbranch_scc1 L_s_nolb")
    B = big + 50
    a(f"s_mov_b32 s{U2}, {C.spin}")
    a.label("L_s_lb")
    for j in range(7):
        if j: a(f"s_cmp_le_u32 s{sM}, {j}"); a("s_cbranch_scc1 L_s_lbw")
        a(f"s_mov_b32 s{T1}, {WS_AGG + j*8192}")
        a(f"buffer_load_dwordx2 {vr(B+2*j,2)}, v{vo}, s[{SWS}:{SWS+3}], s{T1} offen sc1")
    a.label("L_s_lbw")
    a("s_waitcnt vmcnt(0)")
    a(f"s_mov_b64 s[{U0}:{U1}], 0")
    for j in range(7):
        if j: a(f"s_cmp_le_u32 s{sM}, {j}"); a("s_cbranch_scc1 L_s_lbc")
        a(f"v_cmp_eq_u32 vcc, -1, v{B+2*j}"); a("s_nop 0"); a(f"s_or_b64 s[{U0}:{U1}], s[{U0}:{U1}], vcc")
        a(f"v_cmp_eq_u32 vcc, -1, v{B+2*j+1}"); a("s_nop 0"); a(f"s_or_b64 s[{U0}:{U1}], s[{U0}:{U1}], vcc")
    a.label("L_s_lbc")
    a(f"s_cmp_eq_u64 s[{U0}:{U1}], 0"); a("s_cbranch_scc1 L_s_lbok")
    a(f"s_sub_u32 s{U2}, s{U2}, 1"); a(f"s_cmp_eq_u32 s{U2}, 0"); a("s_cbranch_scc1 L_s_lbok")
    a(f"s_sleep {C.sleep}"); a("s_branch L_s_lb")
    a.label("L_s_lbok")
    for j in range(7):
        a(f"s_cmp_le_u32 s{sM}, {j}"); a("s_cbranch_scc1 L_s_nolb")
        a(f"v_fma_f32 v{x0}, v{l256r}, v{cr}, v{B+2*j}"); a(f"v_fma_f32 v{x1}, v{l256r}, v{ci}, v{B+2*j+1}")
        a(f"v_fma_f32 v{x0}, -v{l256i}, v{ci}, v{x0}"); a(f"v_fma_f32 v{ci}, v{l256i}, v{cr}, v{x1}")
        a(f"v_mov_b32 v{cr}, v{x0}")
    a.label("L_s_nolb")
    stamp(a, 4, st="ssm")
    a(f"ds_write_b64 v{vl}, {vr(cr,2)}")
    for s in range(1, 16):
        a(f"v_mul_f32 v{x0}, v{l16r}, v{cr}"); a(f"v_mul_f32 v{x1}, v{l16r}, v{ci}")
        a(f"v_fma_f32 v{x0}, -v{l16i}, v{ci}, v{x0}"); a(f"v_fma_f32 v{ci}, v{l16i}, v{cr}, v{x1}")
        a(f"v_mov_b32 v{cr}, v{x0}")
        a(f"v_add_f32 v{A+2*(s-1)}, v{A+2*(s-1)}, v{cr}"); a(f"v_add_f32 v{A+2*(s-1)+1}, v{A+2*(s-1)+1}, v{ci}")
        a(f"ds_write_b64 v{vl}, {vr(A+2*(s-1),2)} offset:{s*512}")
    a("s_waitcnt lgkmcnt(0)")
    a("s_branch L_s_wait")
    a.label("L_s_gate")
    gxs = [big + 16, big + 24, big + 32]; gws = big + 40; gt = big + 48
    a(f"s_lshl_b32 s{T0}, s{sM}, 8"); a(f"s_lshl_b32 s{T1}, s{sN}, 4"); a(f"s_add_u32 s{T0}, s{T0}, s{T1}")
    a(f"s_add_u32 s{T0}, s{T0}, s{sWave}"); a(f"s_sub_u32 s{T0}, s{T0}, 1")
    a(f"s_add_u32 s{T1}, s{T0}, 7"); a(f"s_add_u32 s{T2}, s{T0}, 14")
    a(f"v_lshlrev_b32 v{gt}, 5, v0")
    srd(a, SS, PTR["gw"], 2048)
    a(f"buffer_load_dwordx4 {vr(gws,4)}, v{gt}, s[{SS}:{SS+3}], 0 offen"); a(f"buffer_load_dwordx4 {vr(gws+4,4)}, v{gt}, s[{SS}:{SS+3}], 0 offen offset:16")
    gate_row_loads(a, T0, gxs[0], gt); gate_row_loads(a, T1, gxs[1], gt)
    a(f"s_cmp_gt_u32 s{sWave}, 2"); a("s_cbranch_scc1 L_s_g2")
    gate_row_loads(a, T2, gxs[2], gt)
    a("s_waitcnt vmcnt(0)")
    gate_compute(a, T2, gxs[2], gws, gt + 1)
    a.label("L_s_g2")
    a("s_waitcnt vmcnt(0)")
    gate_compute(a, T0, gxs[0], gws, gt + 1); gate_compute(a, T1, gxs[1], gws, gt + 1)
    a.label("L_s_wait")
    a("s_barrier")
    calc_vag()
    a(f"ds_read_b128 {vr(ag,4)}, v{vag}")
    PITCH = 272
    vw = big + 9
    a(f"v_lshrrev_b32 v{vw}, 4, v0"); a(f"v_lshlrev_b32 v{vw}, 4, v{vw}"); a(f"s_lshl_b32 s{T0}, s{sWp}, 6"); a(f"v_add_u32 v{vw}, s{T0}, v{vw}")
    a(f"v_mul_u32_u24 v{vw}, {PITCH}, v{vw}")
    a(f"v_and_b32 v{big+10}, 15, v0"); a(f"v_lshl_add_u32 v{vw}, v{big+10}, 2, v{vw}")
    a(f"s_lshl_b32 s{T0}, s{sWq}, 6"); a(f"v_add_u32 v{vw}, s{T0}, v{vw}")
    vr_, vg_ = big + 10, big + 11
    a(f"v_lshrrev_b32 v{vr_}, 4, v0"); a(f"s_lshl_b32 s{T0}, s{sWave}, 5"); a(f"v_add_u32 v{vr_}, s{T0}, v{vr_}")
    a(f"s_lshl_b32 s{T1}, s{sM}, 8"); a(f"v_add_u32 v{vg_}, s{T1}, v{vr_}"); a(f"v_mul_u32_u24 v{vg_}, {RS_A2}, v{vg_}")
    a(f"v_mul_u32_u24 v{vr_}, {PITCH}, v{vr_}")
    a(f"v_and_b32 v{big+24}, 15, v0"); a(f"v_lshl_add_u32 v{vr_}, v{big+24}, 4, v{vr_}")
    a(f"v_and_b32 v{big+24}, 7, v0"); a(f"v_lshl_add_u32 v{vg_}, v{big+24}, 4, v{vg_}")
    a(f"v_bfe_u32 v{big+24}, v0, 3, 1"); a(f"v_lshl_add_u32 v{vg_}, v{big+24}, 11, v{vg_}")
    a(f"s_lshl_b32 s{T0}, s{sN}, 7"); a(f"s_add_u32 s{T0}, s{T0}, {WS_A2}")
    a("s_waitcnt lgkmcnt(0)")
    ore, oim, od = big + 12, big + 14, big + 16
    rb = big + 28
    st = [ag, tt]
    NPT = C.sparts; SP_ = 16 // NPT
    for s in range(16):
        scan2(s, st[s & 1], st[(s + 1) & 1])
        h = st[(s + 1) & 1]
        for jc in range(2):
            hr, hi_ = h + 2 * jc, h + 2 * jc + 1; kr, ki = prm + 4 * jc + 2, prm + 4 * jc + 3
            a(f"v_mul_f32 v{ore+jc}, v{kr}, v{hr}"); a(f"v_mul_f32 v{oim+jc}, -v{kr}, v{hi_}")
        for jc in range(2):
            hr, hi_ = h + 2 * jc, h + 2 * jc + 1; kr, ki = prm + 4 * jc + 2, prm + 4 * jc + 3
            a(f"v_fma_f32 v{ore+jc}, -v{ki}, v{hi_}, v{ore+jc}"); a(f"v_fma_f32 v{oim+jc}, -v{ki}, v{hr}, v{oim+jc}")
        d = od + 2 * (s % 4)
        a(f"v_cvt_pk_bf16_f32 v{d}, v{ore}, v{ore+1}"); a(f"v_cvt_pk_bf16_f32 v{d+1}, v{oim}, v{oim+1}")
        a(f"ds_write_b32 v{vw}, v{d} offset:{s*PITCH}"); a(f"ds_write_b32 v{vw}, v{d+1} offset:{s*PITCH+128}")
        if (s + 1) % SP_ == 0:
            p = s // SP_
            if p == NPT - 1: stamp(a, 5, st="ssm")
            ns_ = [n for n in range(8) if SP_ * p <= (4 * n) % 16 < SP_ * (p + 1)]
            a("s_waitcnt lgkmcnt(0)")
            a("s_barrier")
            for k, n in enumerate(ns_): a(f"ds_read_b128 {vr(rb+4*k,4)}, v{vr_} offset:{4*n*PITCH}")
            for k, n in enumerate(ns_):
                a(f"s_waitcnt lgkmcnt({len(ns_)-1-k})")
                a(f"s_add_u32 s{T1}, s{T0}, {4*n*RS_A2}")
                a(f"buffer_store_dwordx4 {vr(rb+4*k,4)}, v{vg_}, s[{SWS}:{SWS+3}], s{T1} offen{C.wt}")
    stamp(a, 6, st="ssm")
    return V.hi, AG + 8192

def phase2(a, role):
    R = "A" if role == 0 else "B"
    SW2, SE = 24, 72
    NS = C.ns
    TQ = 128 if NS == 2 else 256
    TP, mp, mq, NB = 128, 4, NS, (4 if NS == 2 else 3)
    LG = 1 if NS == 2 else 2
    XS = 8 // NS
    sG, sKQ2 = 0, 3
    V = Regs(10)
    P1 = OpKC(a, V, TP, 0, mp); P1.groups = [[0, 1]]
    P2 = OpNC(a, V, TP, 0, mp, D * 2)
    Qop = OpKC(a, V, TQ, TP * 128, mq, flags=C.a2ld); Qop.groups = [list(range(Qop.n))]
    SB = TP * 128 + Qop.bytes
    G = Gemm(a, V, NB, NB, TP * 128, Qop.bytes, mp, mq, (sBufD, sBufR, None, None, sCnt, sRole), True, 'P' if NS == 2 else 'Q', 'p2')
    nf = mp * mq
    accD = V.get(4 * nf, 2)
    accS = V.get(4 * nf, 2)
    vg = V.get(2 * mq, 2); vep = V.get(4)
    vex = V.get(6 * mp, 2) if NS == 2 else G.F[0][0] + (32 if C.xbf16 else 0)
    if NS != 2 and not C.xbf16: vex = accS
    dense = 1 if role == 1 else 0
    a(f"s_and_b32 s{T0}, s2, 7"); a(f"s_lshr_b32 s{T1}, s2, 3")
    a(f"s_lshr_b32 s{sG}, s{T0}, {3-LG}")
    a(f"s_and_b32 s{T2}, s{T0}, {XS-1}"); a(f"s_lshl_b32 s{sTt}, s{T2}, 2"); a(f"s_bfe_u32 s{T2}, s{T1}, 0x20002"); a(f"s_add_u32 s{sTt}, s{sTt}, s{T2}")
    a(f"s_and_b32 s{T2}, s{sG}, 1")
    if dense: a(f"s_xor_b32 s{T2}, s{T2}, 1")
    a(f"s_lshl_b32 s{sDt}, s{T2}, 2"); a(f"s_and_b32 s{T2}, s{T1}, 3"); a(f"s_add_u32 s{sDt}, s{sDt}, s{T2}")
    a(f"s_lshl_b32 s{sTile}, s{sTt}, 3"); a(f"s_add_u32 s{sTile}, s{sTile}, s{sDt}")
    a(f"s_lshr_b32 s{sWp}, s{sWave}, 2"); a(f"s_and_b32 s{sWq}, s{sWave}, 3")
    srd(a, SW2, PTR["w2"], F * D * 2)
    a(f"s_lshr_b32 s{T0}, s{sG}, {LG-1}"); a(f"s_cmp_eq_u32 s{T0}, 0")
    a(f"s_cselect_b32 s{SA}, s{PTR['cre']}, s{PTR['cim']}"); a(f"s_cselect_b32 s{SA+1}, s{PTR['cre']+1}, s{PTR['cim']+1}")
    a(f"s_mov_b32 s{SA+2}, {D*P_*2}"); a(f"s_mov_b32 s{SA+3}, 0x20000")
    Qop.lane_chunk(VT, VT + 1)
    a(f"v_lshrrev_b32 v{VT+1}, 3, v0"); a(f"v_lshl_add_u32 v{VT+3}, v{VT+1}, 11, v{VT}")
    for j in range(2):
        a(f"s_lshl_b32 s{T0}, s{sDt}, 7"); a(f"s_lshl_b32 s{T1}, s{sWave}, 4"); a(f"s_add_u32 s{T0}, s{T0}, s{T1}")
        if j: a(f"s_add_u32 s{T0}, s{T0}, 8")
        a(f"s_lshl_b32 s{T0}, s{T0}, 11")
        if j: a(f"s_sub_u32 s{T0}, s{T0}, 1024")
        P1.set_voff(j, VT + 3, T0, bool(j & 1))
    a(f"s_lshl_b32 s{sLdsP}, s{sWave}, 11")
    a(f"s_lshl_b32 s{T0}, s{sDt}, 8")
    P2.setup_dma(sWave, VT + 4, T0, U0)
    P2.setup_lds(sWave, sLdsP2, U0)
    a(f"v_lshrrev_b32 v{VT+1}, 3, v0"); a(f"v_mul_u32_u24 v{VT+1}, {RS_A2}, v{VT+1}"); a(f"v_add_u32 v{VT+3}, v{VT+1}, v{VT}")
    for j in range(Qop.n):
        a(f"s_mul_i32 s{T0}, s{sWave}, {TQ//8}")
        if j: a(f"s_add_u32 s{T0}, s{T0}, {8*j}")
        a(f"s_lshr_b32 s{T1}, s{T0}, 4"); a(f"s_add_u32 s{T1}, s{T1}, s{sG}"); a(f"s_and_b32 s{T1}, s{T1}, {NS-1}"); a(f"s_lshl_b32 s{T1}, s{T1}, 4")
        a(f"s_andn2_b32 s{T0}, s{T0}, {(NS-1) << 4}"); a(f"s_or_b32 s{T0}, s{T0}, s{T1}")
        a(f"s_mul_i32 s{T1}, s{sTt}, {TQ}"); a(f"s_add_u32 s{T0}, s{T0}, s{T1}"); a(f"s_mul_i32 s{T0}, s{T0}, {RS_A2}")
        if j: a(f"s_sub_u32 s{T0}, s{T0}, {1024*j}")
        Qop.set_voff(j, VT + 3, T0, bool(j & 1))
    a(f"s_mul_i32 s{sLdsQ}, s{sWave}, {Qop.n*1024}"); a(f"s_add_u32 s{sLdsQ}, s{sLdsQ}, {Qop.lds_off}")
    K2 = C.k2 if NS == 4 else 0
    nS = 32 // NS; base = (56 - K2) // NS
    assert base * NS == 56 - K2
    nD = base + (C.delta if role == 0 else -C.delta)
    colsS = 2048 // NS
    a(f"s_mul_i32 s{sKQ}, s{sG}, {colsS*2}"); a(f"s_and_b32 s{sKP}, s{sKQ}, 2047")
    if WS_A2: a(f"s_add_u32 s{sKQ}, s{sKQ}, {WS_A2}")
    a(f"s_lshr_b32 s{T0}, s{sG}, 1"); a(f"s_mul_i32 s{T0}, s{T0}, {2*base}")
    a(f"s_and_b32 s{T1}, s{sG}, 1"); a(f"s_mul_i32 s{T1}, s{T1}, {2*base - nD}"); a(f"s_add_u32 s{T0}, s{T0}, s{T1}")
    a(f"s_mul_i32 s{sKP2}, s{T0}, {64*D*2}"); a(f"s_lshl_b32 s{sKQ2}, s{T0}, 7"); a(f"s_add_u32 s{sKQ2}, s{sKQ2}, {WS_A2 + 4096}")
    a(f"s_mul_i32 s{T0}, s{sWp}, {mp}")
    P1.setup_read(T0, VT, U0); P2.setup_read(T0, VT, U0)
    a(f"s_mul_i32 s{T0}, s{sWq}, {mq}"); Qop.setup_read(T0, VT, U0)
    qd = lambda b: Qop.dma(b, sKQ, sTmp, sLdsQ, [SWS] * Qop.n)
    qd2 = lambda b: Qop.dma(b, sKQ2, sTmp, sLdsQ, [SWS] * Qop.n)
    segD = Seg(P2, Qop, accD, lambda b: P2.dma(b, sKP2, sTmp, sLdsP2, SW2), qd2, [f"s_add_u32 s{sKP2}, s{sKP2}, {64*D*2}"], [f"s_add_u32 s{sKQ2}, s{sKQ2}, 128"], "d")
    segS = Seg(P1, Qop, accS, lambda b: P1.dma(b, sKP, sTmp, sLdsP, [SA] * 2), qd, [f"s_add_u32 s{sKP}, s{sKP}, 128"], [f"s_add_u32 s{sKQ}, s{sKQ}, 128"], "s")
    stages = [segS] * nS + [segD] * nD
    N = len(stages)
    a("s_barrier")
    G.prologue(stages, "P")
    nP0 = 2 * G.leadP
    G.zero_first = True
    post_first = None
    fine = C.fine and NS == 4
    sMS = 49
    def chk_need(need):
        def chk(ok):
            if NS == 2:
                a(f"s_add_u32 s{U0}, s{U0}, s{U1}"); a(f"s_cmp_eq_u32 s{U0}, 16"); a(f"s_cbranch_scc1 {ok}")
            else:
                a(f"s_bitcmp1_b32 s{sG}, 0"); a(f"s_cselect_b32 s{sMS}, s{U1}, s{U0}")
                if fine:
                    a(f"s_and_b32 s{U0}, s{sMS}, {need}"); a(f"s_cmp_eq_u32 s{U0}, {need}"); a(f"s_cbranch_scc1 {ok}")
                else:
                    a(f"s_cmp_eq_u32 s{sMS}, 8"); a(f"s_cbranch_scc1 {ok}")
        return chk
    nfirst = G.leadQ + (1 if G.early == 'Q' else 0)
    chkS = chk_need((1 << nfirst) - 1)
    PW = 1
    if role == 0:
        a(f"s_waitcnt vmcnt({nP0})")
        a("s_barrier")
        stamp(a, 3)
        a(f"s_cmp_eq_u32 s{sWave}, {PW}"); a(f"s_cbranch_scc1 L_p2{R}_pl")
        a(f"s_cmp_lg_u32 s{sWave}, 0"); a(f"s_cbranch_scc1 L_p2{R}_dep")
        signal_cnt(a, "S", VT)
        a(f"s_branch L_p2{R}_dep")
        a.label(f"L_p2{R}_pl")
        poll_own(a, chkS, VT)
    elif C.dearly:
        a(f"s_waitcnt vmcnt({nP0})")
        a("s_barrier")
        stamp(a, 3)
        stamp(a, 6, st="dense")
        a(f"s_cmp_eq_u32 s{sWave}, {PW}"); a(f"s_cbranch_scc1 L_p2{R}_pl")
        a(f"s_cmp_lg_u32 s{sWave}, 0"); a(f"s_cbranch_scc1 L_p2{R}_dep")
        init_check(a, VT)
        signal_cnt(a, 2, VT)
        a(f"s_branch L_p2{R}_dep")
        a.label(f"L_p2{R}_pl")
        poll_own(a, chkS, VT)
    else:
        stamp(a, 3)
        stamp(a, 6, st="dense")
        a(f"s_cmp_lg_u32 s{sWave}, {PW}"); a(f"s_cbranch_scc1 L_p2{R}_dep")
        poll_own(a, chkS, VT)
        def post_first():
            sk = newlabel("pf")
            a(f"s_cmp_lg_u32 s{sWave}, 0"); a(f"s_cbranch_scc1 {sk}")
            init_check(a, VT)
            signal_cnt(a, 2, VT)
            a.label(sk)
    a.label(f"L_p2{R}_dep")
    a("s_barrier")
    G.prologue(stages, "Q")
    hooks = {}
    if fine:
        def mk(bit):
            def h():
                sk = newlabel("hs")
                a(f"s_cmp_lg_u32 s{sWave}, {PW}"); a(f"s_cbranch_scc1 {sk}")
                a(f"s_bitcmp1_b32 s{sMS}, {bit}"); a(f"s_cbranch_scc1 {sk}")
                poll_own(a, chk_need(1 << bit), VT)
                a.label(sk)
            return h
        for bit in range(nfirst, nS): hooks[bit - nfirst] = mk(bit)
    full = (0xff + 0xff + 16) if fine else 32
    def hookD():
        sk = newlabel("hk")
        stamp(a, 2, st="p2")
        a(f"s_cmp_lg_u32 s{sWave}, {PW}"); a(f"s_cbranch_scc1 {sk}")
        def chk(ok):
            a(f"s_add_u32 s{U0}, s{U0}, s{U1}"); a(f"s_add_u32 s{U0}, s{U0}, s{U3}"); a(f"s_cmp_eq_u32 s{U0}, {full}"); a(f"s_cbranch_scc1 {ok}")
        poll_own(a, chk, VT)
        a.label(sk)
        stamp(a, 3, st="p2")
    hd = nS - G.leadQ - (1 if G.early == 'Q' else 0)
    assert hd not in hooks
    hooks[hd] = hookD
    sXD = 44
    vt_own, vxo, vd2, vl16 = vep, vep + 1, vep + 2, vep + 3
    vx_, vds, vb2 = vex, vex + 2 * mp, vex + 4 * mp
    ex = []
    ex.append([f"s_mul_i32 s{T0}, s{sTt}, {TQ}", f"s_mul_i32 s{T1}, s{sWq}, {16*mq}", f"s_add_u32 s{T0}, s{T0}, s{T1}",
               f"v_and_b32 v{vt_own}, 15, v0", f"v_add_u32 v{vt_own}, s{T0}, v{vt_own}", f"v_lshlrev_b32 v{vxo}, 3, v{vt_own}"])
    for j in range(mq):
        ex.append([f"s_add_u32 s{T0}, s{sG}, {j}", f"s_and_b32 s{T0}, s{T0}, {NS-1}", f"s_lshl_b32 s{T0}, s{T0}, 7", f"s_add_u32 s{T0}, s{T0}, {WS_G}",
                   f"buffer_load_dwordx2 {vr(vg+2*j,2)}, v{vxo}, s[{SWS}:{SWS+3}], s{T0} offen sc1"])
    ex.append([f"s_lshl_b32 s{T0}, s{sG}, 4", f"v_add_u32 v{vt_own}, s{T0}, v{vt_own}",
               f"v_lshrrev_b32 v{vd2}, 4, v0", f"v_lshlrev_b32 v{vd2}, 2, v{vd2}",
               f"s_lshl_b32 s{T0}, s{sDt}, 7", f"s_lshl_b32 s{T1}, s{sWp}, 6", f"s_add_u32 s{T0}, s{T0}, s{T1}",
               f"v_add_u32 v{vd2}, s{T0}, v{vd2}", f"v_lshlrev_b32 v{vd2}, 1, v{vd2}",
               f"v_lshl_add_u32 v{vxo}, v{vt_own}, 11, v{vd2}", f"v_lshlrev_b32 v{vl16}, 4, v0"])
    for j in range(1, mq):
        ex.append([f"s_add_u32 s{T1}, s{sG}, {j}", f"s_and_b32 s{T1}, s{T1}, {NS-1}",
                   f"s_mul_i32 s{T0}, s{T1}, {XS}", f"s_and_b32 s{T2}, s2, {XS-1}", f"s_add_u32 s{T0}, s{T0}, s{T2}",
                   f"s_lshr_b32 s{T2}, s{sDt}, 2", f"s_xor_b32 s{T2}, s{T2}, s{T1}", f"s_and_b32 s{T2}, s{T2}, 1", f"s_xor_b32 s{T2}, s{T2}, 1",
                   f"s_lshl_b32 s{T2}, s{T2}, 7", f"s_or_b32 s{T0}, s{T0}, s{T2}", f"s_and_b32 s{T2}, s2, 0x78", f"s_or_b32 s{T0}, s{T0}, s{T2}",
                   f"s_lshl_b32 s{T0}, s{T0}, 3", f"s_add_u32 s{T0}, s{T0}, s{sWave}", f"s_mul_i32 s{T0}, s{T0}, {4096*(NS-1)}",
                   f"s_add_u32 s{sXD+j-1}, s{T0}, {WS_XB + (NS - j - 1) * 4096}"])
    ex2 = []
    for i in range(mp):
        ex2.append([f"buffer_load_dwordx2 {vr(vx_+2*i,2)}, v{vxo}, s[{SX}:{SX+3}], 0 offen offset:{32*i}"])
    ex2.append([f"s_mov_b32 s{SE}, s{PTR['dsk']}", f"s_mov_b32 s{SE+1}, s{PTR['dsk']+1}", f"s_mov_b32 s{SE+2}, 2048", f"s_mov_b32 s{SE+3}, 0x20000"])
    for i in range(mp):
        ex2.append([f"buffer_load_dwordx2 {vr(vds+2*i,2)}, v{vd2}, s[{SE}:{SE+3}], 0 offen offset:{32*i}"])
    ex2.append([f"s_mov_b32 s{SE}, s{PTR['b2']}", f"s_mov_b32 s{SE+1}, s{PTR['b2']+1}"])
    for i in range(mp):
        ex2.append([f"buffer_load_dwordx2 {vr(vb2+2*i,2)}, v{vd2}, s[{SE}:{SE+3}], 0 offen offset:{32*i}"])
    if NS == 2: extras = {N - NB: (ex + ex2, mq + 3 * mp)}
    else:
        nw = 0
        if C.endwarm:
            ex.append([f"buffer_load_dword v250, v{vxo}, s[{SX}:{SX+3}], 0 offen"])
            ex.append([f"s_mov_b32 s{SE}, s{PTR['dsk']}", f"s_mov_b32 s{SE+1}, s{PTR['dsk']+1}", f"s_mov_b32 s{SE+2}, 2048", f"s_mov_b32 s{SE+3}, 0x20000",
                       f"buffer_load_dword v250, v{vd2}, s[{SE}:{SE+3}], 0 offen"])
            ex.append([f"s_mov_b32 s{SE}, s{PTR['b2']}", f"s_mov_b32 s{SE+1}, s{PTR['b2']+1}", f"buffer_load_dword v250, v{vd2}, s[{SE}:{SE+3}], 0 offen"])
            nw = 3
            if C.endwarm >= 2:
                for j in range(1, mq):
                    ex.append([f"buffer_load_dword v250, v{vl16}, s[{SWS}:{SWS+3}], s{sXD+j-1} offen"])
                ex.append([f"s_mov_b32 s{SE}, s{PTR['out']}", f"s_mov_b32 s{SE+1}, s{PTR['out']+1}", f"s_mov_b32 s{SE+2}, {L*D*4}",
                           f"v_lshlrev_b32 v{VT}, 12, v{vt_own}", f"buffer_load_dword v250, v{VT}, s[{SE}:{SE+3}], 0 offen"])
                nw += mq
        extras = {N - NB: (ex, mq + nw)}
    if C.codepf3: extras[N - C.codepf3] = code_pf_groups(VT + 3)
    stamp(a, 4)
    stamp(a, 1, st="p2")
    stamp(a, 3, st="clk"); stamp(a, 4, real=True, st="clk")
    G.run(stages, hooks, extras, post_first)
    stamp(a, 5)
    stamp(a, 4, st="p2")
    stamp(a, 5, st="clk"); stamp(a, 6, real=True, st="clk")
    stamp(a, 1, st="end")
    a("s_nop 7")
    a("s_waitcnt vmcnt(0)")
    def comb(i, j):
        c = 4 * (i * mq + j)
        for r in range(4):
            a(f"v_mul_f32 v{accD+c+r}, v{vg+2*j+1}, v{accD+c+r}"); a(f"v_fmac_f32 v{accD+c+r}, v{vg+2*j}, v{accS+c+r}")
    if K2:
        return phase2b(a, role, locals())
    assert NS == 2 or C.xbf16
    nst = (2 if C.xbf16 else 4) * (mq - 1)
    if NS != 2:
        for g_ in ex2: G.emit(g_)
    for j in range(1, mq):
        for i in range(mp): comb(i, j)
        if C.xbf16:
            for i2 in range(0, mp, 2):
                c0, c1 = accD + 4 * (i2 * mq + j), accD + 4 * ((i2 + 1) * mq + j)
                a(f"v_cvt_pk_bf16_f32 v{c0}, v{c0}, v{c0+1}"); a(f"v_cvt_pk_bf16_f32 v{c0+1}, v{c0+2}, v{c0+3}")
                a(f"v_cvt_pk_bf16_f32 v{c0+2}, v{c1}, v{c1+1}"); a(f"v_cvt_pk_bf16_f32 v{c0+3}, v{c1+2}, v{c1+3}")
                a(f"buffer_store_dwordx4 {vr(c0,4)}, v{vl16}, s[{SWS}:{SWS+3}], s{sXD+j-1} offen offset:{(i2//2)*1024} sc1")
        else:
            a("s_nop 1")
            for i in range(mp):
                c = accD + 4 * (i * mq + j)
                a(f"buffer_store_dwordx4 {vr(c,4)}, v{vl16}, s[{SWS}:{SWS+3}], s{sXD+j-1} offen offset:{i*1024} sc1")
    stamp(a, 2, st="end")
    for i in range(mp): comb(i, 0)
    t1, t2, t3 = VT + 5, VT + 6, VT + 7
    a(f"s_and_b32 s{T0}, s2, {XS-1}")
    a(f"v_mul_u32_u24 v{t1}, {XS}, v0"); a(f"v_add_u32 v{t1}, s{T0}, v{t1}")
    a(f"s_lshr_b32 s{T0}, s{sDt}, 2")
    a(f"v_and_b32 v{t2}, 1, v0"); a(f"v_xor_b32 v{t2}, s{T0}, v{t2}"); a(f"v_xor_b32 v{t2}, 1, v{t2}")
    a(f"s_lshr_b32 s{T0}, s2, 3"); a(f"s_and_b32 s{T0}, s{T0}, 15")
    a(f"v_lshlrev_b32 v{t2}, 4, v{t2}"); a(f"v_add_u32 v{t2}, s{T0}, v{t2}"); a(f"v_lshl_or_b32 v{t2}, v{t2}, 3, v{t1}")
    a(f"v_lshlrev_b32 v{t2}, 8, v{t2}")
    a(f"v_subrev_u32 v{t1}, s{sG}, v0"); a(f"v_and_b32 v{t1}, {NS-1}, v{t1}")
    a(f"v_sub_u32 v{t1}, {NS-1}, v{t1}"); a(f"v_lshl_add_u32 v{t2}, v{t1}, 2, v{t2}")
    a(f"v_mov_b32 v{t3}, 1")
    a(f"s_lshl_b32 s{T0}, 1, s{sG}"); a(f"s_andn2_b32 s{T0}, {(1 << NS) - 1}, s{T0}")
    a(f"s_lshl_b32 s{T1}, s{sWave}, 4"); a(f"s_add_u32 s{T1}, s{T1}, {WS_MB + 32}")
    a(f"s_lshl_b32 s{T3}, s2, 8"); a(f"s_add_u32 s{T3}, s{T3}, s{T1}")
    a(f"s_waitcnt vmcnt({nst})")
    x0, x1, y0, y1 = VT, VT + 1, VT + 2, VT + 3
    for i in range(mp):
        e = accD + 4 * (i * mq)
        for h in range(2):
            a(f"v_lshlrev_b32 v{x0}, 16, v{vx_+2*i+h}"); a(f"v_and_b32 v{x1}, 0xffff0000, v{vx_+2*i+h}")
            a(f"v_lshlrev_b32 v{y0}, 16, v{vds+2*i+h}"); a(f"v_and_b32 v{y1}, 0xffff0000, v{vds+2*i+h}")
            a(f"v_mul_f32 v{x0}, v{x0}, v{y0}"); a(f"v_mul_f32 v{x1}, v{x1}, v{y1}")
            a(f"v_cvt_pk_bf16_f32 v{x0}, v{x0}, v{x1}")
            a(f"v_and_b32 v{x1}, 0xffff0000, v{x0}"); a(f"v_lshlrev_b32 v{x0}, 16, v{x0}")
            a(f"v_fmac_f32 v{e+2*h}, v{vg}, v{x0}"); a(f"v_fmac_f32 v{e+2*h+1}, v{vg}, v{x1}")
            a(f"v_lshlrev_b32 v{x0}, 16, v{vb2+2*i+h}"); a(f"v_and_b32 v{x1}, 0xffff0000, v{vb2+2*i+h}")
            a(f"v_fmac_f32 v{e+2*h}, v{vg+1}, v{x0}"); a(f"v_fmac_f32 v{e+2*h+1}, v{vg+1}, v{x1}")
    a("s_waitcnt vmcnt(0)")
    stamp(a, 5, st="p2")
    stamp(a, 3, st="end")
    a(f"s_mov_b32 exec_lo, s{T0}"); a("s_mov_b32 exec_hi, 0")
    a(f"buffer_store_dword v{t3}, v{t2}, s[{SWS}:{SWS+3}], s{T1} offen sc1")
    a("s_mov_b64 exec, -1")
    stamp(a, 4, st="end")
    def chkx(ok):
        if NS == 4: a(f"s_and_b32 s{U0}, s{U0}, s{U1}"); a(f"s_and_b32 s{U0}, s{U0}, s{U3}")
        a(f"s_cmp_lg_u32 s{U0}, 0"); a(f"s_cbranch_scc1 {ok}")
    poll(a, SWS, T3, chkx, VT, wide=(4 if NS == 4 else 1), sleep=1)
    stamp(a, 5, st="end")
    rb = G.F[0][0]
    nrx = mp * (NS - 1)
    assert 2 * (4 * mp + 4 * mq) >= 4 * nrx
    inbox_offset(a, T0)
    per = 2 if C.xbf16 else 4
    for k in range(per * (NS - 1)):
        if k and k % per == 0: a(f"s_add_u32 s{T0}, s{T0}, 4096")
        a(f"buffer_load_dwordx4 {vr(rb+4*k,4)}, v{vl16}, s[{SWS}:{SWS+3}], s{T0} offen offset:{(k%per)*1024} sc1")
    srd(a, SE, PTR["out"], L * D * 4)
    vo = VT
    a(f"v_lshlrev_b32 v{vo}, 12, v{vt_own}"); a(f"v_lshl_add_u32 v{vo}, v{vd2}, 1, v{vo}")
    a("s_waitcnt vmcnt(0)")
    stamp(a, 6, st="end")
    for i in range(mp):
        e = accD + 4 * (i * mq)
        for k in range(NS - 1):
            if C.xbf16:
                src = rb + 8 * k + 4 * (i // 2) + 2 * (i % 2)
                x0, x1 = VT + 2, VT + 3
                for h in range(2):
                    a(f"v_lshlrev_b32 v{x0}, 16, v{src+h}"); a(f"v_and_b32 v{x1}, 0xffff0000, v{src+h}")
                    a(f"v_add_f32 v{e+2*h}, v{e+2*h}, v{x0}"); a(f"v_add_f32 v{e+2*h+1}, v{e+2*h+1}, v{x1}")
            else:
                for r in range(4): a(f"v_add_f32 v{e+r}, v{e+r}, v{rb+k*4*mp+4*i+r}")
        a(f"buffer_store_dwordx4 {vr(e,4)}, v{vo}, s[{SE}:{SE+3}], 0 offen offset:{64*i}{C.wto}")
    stamp(a, 6)
    stamp(a, 6, st="p2")
    return V.hi, NB * SB

def phase2b(a, role, L_):
    g = L_
    R, NS, XS, mp, mq, K2 = g["R"], g["NS"], g["XS"], g["mp"], g["mq"], g["K2"]
    accD, accS, vg, G, P2, Qop, SW2, SE = g["accD"], g["accS"], g["vg"], g["G"], g["P2"], g["Qop"], g["SW2"], g["SE"]
    sG, sKQ2, sXD, comb, V = g["sG"], g["sKQ2"], g["sXD"], g["comb"], g["V"]
    vt_own, vxo, vd2, vl16 = g["vt_own"], g["vxo"], g["vd2"], g["vl16"]
    assert C.xbf16 and NS == 4
    NB2 = 6
    Vq = Regs(Qop.vd)
    Q2 = OpKC(a, Vq, 64, 128 * 128, 1, flags=C.a2ld); Q2.groups = [[0]]
    assert Vq.hi <= Qop.c1 + 1
    Vf = Regs(G.F[0][0])
    G2 = Gemm(a, Vf, NB2, NB2, 128 * 128, Q2.bytes, mp, 1, (sBufD, sBufR, None, None, sCnt, sRole), True, 'P', 'p2b')
    G2.acc_stride = 4 * mq
    assert Vf.hi <= G.F[1][1] + 4 * mq
    Q2.lane_chunk(VT, VT + 1)
    a(f"v_lshrrev_b32 v{VT+1}, 3, v0"); a(f"v_mul_u32_u24 v{VT+1}, {RS_A2}, v{VT+1}"); a(f"v_add_u32 v{VT+3}, v{VT+1}, v{VT}")
    a(f"s_lshr_b32 s{T0}, s{sWave}, 1"); a(f"s_lshl_b32 s{T0}, s{T0}, 6"); a(f"s_and_b32 s{T1}, s{sWave}, 1"); a(f"s_lshl_b32 s{T2}, s{T1}, 6")
    a(f"s_lshl_b32 s{T1}, s{T1}, 3"); a(f"s_add_u32 s{T0}, s{T0}, s{T1}"); a(f"s_lshl_b32 s{T1}, s{sG}, 4"); a(f"s_add_u32 s{T0}, s{T0}, s{T1}")
    a(f"s_lshl_b32 s{T1}, s{sTt}, 8"); a(f"s_add_u32 s{T0}, s{T0}, s{T1}"); a(f"s_mul_i32 s{T0}, s{T0}, {RS_A2}")
    Q2.set_voff(0, VT + 3, T0, T2)
    a(f"s_lshl_b32 s{sLdsQ}, s{sWave}, 10"); a(f"s_add_u32 s{sLdsQ}, s{sLdsQ}, {Q2.lds_off}")
    Q2.setup_read(sWq, VT, U0)
    a(f"s_mov_b32 s{sKP2}, {(56-K2)*64*D*2}"); a(f"s_mov_b32 s{sKQ2}, {WS_A2 + 4096 + (56-K2)*128}")
    seg2 = Seg(P2, Q2, accD, lambda b: P2.dma(b, sKP2, sTmp, sLdsP2, SW2), lambda b: Q2.dma(b, sKQ2, sTmp, sLdsQ, [SWS]),
               [f"s_add_u32 s{sKP2}, s{sKP2}, {64*D*2}"], [f"s_add_u32 s{sKQ2}, s{sKQ2}, 128"], "b")
    st2 = [seg2] * K2
    a("s_barrier")
    G2.prologue(st2)
    for j in range(1, mq):
        for i in range(mp): comb(i, j)
        for i2 in range(0, mp, 2):
            c0, c1 = accD + 4 * (i2 * mq + j), accD + 4 * ((i2 + 1) * mq + j)
            a(f"v_cvt_pk_bf16_f32 v{c0}, v{c0}, v{c0+1}"); a(f"v_cvt_pk_bf16_f32 v{c0+1}, v{c0+2}, v{c0+3}")
            a(f"v_cvt_pk_bf16_f32 v{c0+2}, v{c1}, v{c1+1}"); a(f"v_cvt_pk_bf16_f32 v{c0+3}, v{c1+2}, v{c1+3}")
            a(f"buffer_store_dwordx4 {vr(c0,4)}, v{vl16}, s[{SWS}:{SWS+3}], s{sXD+j-1} offen offset:{(i2//2)*1024} sc1")
    G2.note('xs', 6)
    stamp(a, 2, st="end")
    vx_, vds, vb2 = accS + 4, accS + 20, accS + 36
    for i in range(mp): a(f"buffer_load_dwordx2 {vr(vx_+2*i,2)}, v{vxo}, s[{SX}:{SX+3}], 0 offen offset:{32*i}")
    srd(a, SE, PTR["dsk"], 2048)
    for i in range(mp): a(f"buffer_load_dwordx2 {vr(vds+2*i,2)}, v{vd2}, s[{SE}:{SE+3}], 0 offen offset:{32*i}")
    a(f"s_mov_b32 s{SE}, s{PTR['b2']}"); a(f"s_mov_b32 s{SE+1}, s{PTR['b2']+1}")
    for i in range(mp): a(f"buffer_load_dwordx2 {vr(vb2+2*i,2)}, v{vd2}, s[{SE}:{SE+3}], 0 offen offset:{32*i}")
    G2.note('ex2', 12)
    t1, t2, t3 = VT + 5, VT + 6, VT + 7
    sMask, sFl = sXD + 3, sXD + 4
    a(f"s_and_b32 s{T0}, s2, {XS-1}")
    a(f"v_mul_u32_u24 v{t1}, {XS}, v0"); a(f"v_add_u32 v{t1}, s{T0}, v{t1}")
    a(f"s_lshr_b32 s{T0}, s{sDt}, 2")
    a(f"v_and_b32 v{t2}, 1, v0"); a(f"v_xor_b32 v{t2}, s{T0}, v{t2}"); a(f"v_xor_b32 v{t2}, 1, v{t2}")
    a(f"s_lshr_b32 s{T0}, s2, 3"); a(f"s_and_b32 s{T0}, s{T0}, 15")
    a(f"v_lshlrev_b32 v{t2}, 4, v{t2}"); a(f"v_add_u32 v{t2}, s{T0}, v{t2}"); a(f"v_lshl_or_b32 v{t2}, v{t2}, 3, v{t1}")
    a(f"v_lshlrev_b32 v{t2}, 8, v{t2}")
    a(f"v_subrev_u32 v{t1}, s{sG}, v0"); a(f"v_and_b32 v{t1}, {NS-1}, v{t1}")
    a(f"v_sub_u32 v{t1}, {NS-1}, v{t1}"); a(f"v_lshl_add_u32 v{t2}, v{t1}, 2, v{t2}")
    a(f"v_mov_b32 v{t3}, 1")
    a(f"s_lshl_b32 s{sMask}, 1, s{sG}"); a(f"s_andn2_b32 s{sMask}, {(1 << NS) - 1}, s{sMask}")
    a(f"s_lshl_b32 s{sFl}, s{sWave}, 4"); a(f"s_add_u32 s{sFl}, s{sFl}, {WS_MB + 32}")
    def flag():
        a(f"s_mov_b32 exec_lo, s{sMask}"); a("s_mov_b32 exec_hi, 0")
        a(f"buffer_store_dword v{t3}, v{t2}, s[{SWS}:{SWS+3}], s{sFl} offen sc1")
        a("s_mov_b64 exec, -1")
    fit = C.flagit
    def hookF():
        a(f"s_waitcnt vmcnt({G2.allow_at[fit]})")
        flag()
    G2.want_allow = {fit: 'xs'}
    G2.run(st2, {fit: hookF})
    stamp(a, 3, st="end")
    a("s_nop 7")
    a("s_waitcnt vmcnt(0)")
    a(f"s_lshl_b32 s{T3}, s2, 8"); a(f"s_add_u32 s{T3}, s{T3}, s{sFl}")
    def chkx(ok):
        a(f"s_and_b32 s{U0}, s{U0}, s{U1}"); a(f"s_and_b32 s{U0}, s{U0}, s{U3}")
        a(f"s_cmp_lg_u32 s{U0}, 0"); a(f"s_cbranch_scc1 {ok}")
    poll(a, SWS, T3, chkx, VT, wide=4, sleep=1)
    stamp(a, 4, st="end")
    rbq = [accD + 4, accD + 8, accD + 12, accD + 20, accD + 24, accD + 28]
    inbox_offset(a, T0)
    for k in range(6):
        if k and k % 2 == 0: a(f"s_add_u32 s{T0}, s{T0}, 4096")
        a(f"buffer_load_dwordx4 {vr(rbq[k],4)}, v{vl16}, s[{SWS}:{SWS+3}], s{T0} offen offset:{(k%2)*1024} sc1")
    for i in range(mp): comb(i, 0)
    x0, x1, y0, y1 = VT, VT + 1, VT + 2, VT + 3
    for i in range(mp):
        e = accD + 4 * (i * mq)
        for h in range(2):
            a(f"v_lshlrev_b32 v{x0}, 16, v{vx_+2*i+h}"); a(f"v_and_b32 v{x1}, 0xffff0000, v{vx_+2*i+h}")
            a(f"v_lshlrev_b32 v{y0}, 16, v{vds+2*i+h}"); a(f"v_and_b32 v{y1}, 0xffff0000, v{vds+2*i+h}")
            a(f"v_mul_f32 v{x0}, v{x0}, v{y0}"); a(f"v_mul_f32 v{x1}, v{x1}, v{y1}")
            a(f"v_cvt_pk_bf16_f32 v{x0}, v{x0}, v{x1}")
            a(f"v_and_b32 v{x1}, 0xffff0000, v{x0}"); a(f"v_lshlrev_b32 v{x0}, 16, v{x0}")
            a(f"v_fmac_f32 v{e+2*h}, v{vg}, v{x0}"); a(f"v_fmac_f32 v{e+2*h+1}, v{vg}, v{x1}")
            a(f"v_lshlrev_b32 v{x0}, 16, v{vb2+2*i+h}"); a(f"v_and_b32 v{x1}, 0xffff0000, v{vb2+2*i+h}")
            a(f"v_fmac_f32 v{e+2*h}, v{vg+1}, v{x0}"); a(f"v_fmac_f32 v{e+2*h+1}, v{vg+1}, v{x1}")
    srd(a, SE, PTR["out"], L * D * 4)
    vo = VT
    a(f"v_lshlrev_b32 v{vo}, 12, v{vt_own}"); a(f"v_lshl_add_u32 v{vo}, v{vd2}, 1, v{vo}")
    a("s_waitcnt vmcnt(0)")
    stamp(a, 5, st="end")
    for i in range(mp):
        e = accD + 4 * (i * mq)
        for k in range(NS - 1):
            src = rbq[2 * k + i // 2] + 2 * (i % 2)
            x0, x1 = VT + 2, VT + 3
            for h in range(2):
                a(f"v_lshlrev_b32 v{x0}, 16, v{src+h}"); a(f"v_and_b32 v{x1}, 0xffff0000, v{src+h}")
                a(f"v_add_f32 v{e+2*h}, v{e+2*h}, v{x0}"); a(f"v_add_f32 v{e+2*h+1}, v{e+2*h+1}, v{x1}")
        a(f"buffer_store_dwordx4 {vr(e,4)}, v{vo}, s[{SE}:{SE+3}], 0 offen offset:{64*i}{C.wto}")
    stamp(a, 6)
    stamp(a, 6, st="p2"); stamp(a, 6, st="end")
    return V.hi, max(g["NB"] * g["SB"], NB2 * (128 * 128 + Q2.bytes))

def emit_stamps(a):
    a("s_memrealtime s[88:89]"); a("s_waitcnt lgkmcnt(0)")
    a(f"s_cmp_lg_u32 s{sWave}, {C.stwave}"); a("s_cbranch_scc1 L_end")
    a("s_waitcnt vmcnt(0)")
    for i in range(1, 7): a(f"s_sub_u32 s{92+i}, s{92+i}, s92")
    a("s_mov_b32 s99, s100")
    a("s_nop 0")
    a(f"s_mov_b32 s100, s88")
    for i in range(8): a(f"v_mov_b32 v{12+i}, s{93+i}")
    a("v_mov_b32 v11, 0")
    if C.dbgout:
        a("s_and_b32 s76, s2, 127"); a("s_cmp_lg_u32 s76, 0"); a("s_cbranch_scc1 L_end")
        a("s_sub_u32 s77, s100, s99"); a("v_mov_b32 v18, s77")
        a("s_lshr_b32 s76, s2, 7"); a("s_mul_i32 s76, s76, 28"); a("s_add_u32 s76, s76, 8")
        a("s_mov_b64 exec, 1")
        for i in range(7): a(f"buffer_store_dword v{12+i}, v11, s[{SDBG}:{SDBG+3}], s76 offen offset:{4*i}")
        return
    a(f"s_lshl_b32 s{T0}, s2, 5"); a(f"s_add_u32 s{T0}, s{T0}, {WS_ST}")
    a("s_mov_b64 exec, 1")
    a(f"buffer_store_dwordx4 v[12:15], v11, s[{SWS}:{SWS+3}], s{T0} offen")
    a(f"buffer_store_dwordx4 v[16:19], v11, s[{SWS}:{SWS+3}], s{T0} offen offset:16")

HEADER = open("gated_mix__ssm_conv_s5__dense_activation_squared_relu__prompt.s.ref").read().split("; Override launch")[0]

def generate(**kw):
    for k, v in kw.items():
        assert hasattr(C, k), k
        setattr(C, k, v)
    _lbl[0] = 0
    a = Asm()
    kernel_header(a, NAME)
    a("s_cmp_ge_u32 s2, 256"); a("s_cbranch_scc1 L_end")
    a("s_load_dwordx16 s[40:55], s[0:1], 0"); a("s_load_dwordx16 s[56:71], s[0:1], 64"); a("s_load_dwordx4 s[72:75], s[0:1], 128")
    if C.dbgst:
        a("s_memtime s[92:93]"); a("s_memrealtime s[100:101]")
    if C.codepf == 1 or C.codepf is True:
        a("s_getpc_b64 s[4:5]")
        a.label("L_pc")
        a("v_lshlrev_b32 v2, 7, v0")
        a("v_min_u32 v2, L_codeend-L_pc-4, v2")
        a("global_load_dword v250, v2, s[4:5]")
    elif C.codepf == 2:
        a("s_getpc_b64 s[4:5]")
        a.label("L_pc")
        a("s_lshr_b32 s6, s2, 3"); a("s_lshl_b32 s6, s6, 11")
        a("v_lshlrev_b32 v2, 7, v0"); a("v_add_u32 v2, s6, v2")
        a("v_min_u32 v2, L_codeend-L_pc-4, v2")
        a("v_cmp_gt_u32 vcc, 16, v0"); a("s_and_saveexec_b64 s[6:7], vcc"); a("s_cbranch_execz L_cpf")
        a("global_load_dword v250, v2, s[4:5]")
        a.label("L_cpf")
        a("s_mov_b64 exec, s[6:7]")
    a("v_lshrrev_b32 v1, 6, v0"); a("v_and_b32 v0, 63, v0"); a(f"v_readfirstlane_b32 s{sWave}, v1")
    a(f"s_and_b32 s{T0}, s2, 7"); a(f"s_lshr_b32 s{T1}, s2, 3")
    a(f"s_lshr_b32 s{sRole}, s{T1}, 4")
    a(f"s_bfe_u32 s{T2}, s{T1}, 0x20002"); a(f"s_and_b32 s{T3}, s{T1}, 3")
    a(f"s_lshr_b32 s{sM}, s{T0}, 2"); a(f"s_lshl_b32 s{sM}, s{sM}, 2"); a(f"s_add_u32 s{sM}, s{sM}, s{T2}")
    a(f"s_and_b32 s{sN}, s{T0}, 3"); a(f"s_lshl_b32 s{sN}, s{sN}, 2"); a(f"s_add_u32 s{sN}, s{sN}, s{T3}")
    mode = C.rot
    if mode is True: mode = 1
    if mode == 1:
        a(f"s_lshl_b32 s{sRot}, s{sRole}, 2"); a(f"s_add_u32 s{sRot}, s{sRot}, s{T3}"); a(f"s_lshl_b32 s{sRot}, s{sRot}, 1")
        a(f"s_lshl_b32 s{T2}, s{T2}, 2"); a(f"s_add_u32 s{sRot}, s{sRot}, s{T2}"); a(f"s_and_b32 s{T0}, s{T0}, 3")
        a(f"s_add_u32 s{sRot}, s{sRot}, s{T0}"); a(f"s_and_b32 s{sRot}, s{sRot}, 15")
    elif mode == 2:
        a(f"s_and_b32 s{sRot}, s{T0}, 3"); a(f"s_lshl_b32 s{sRot}, s{sRot}, 2"); a(f"s_lshr_b32 s{T0}, s{T0}, 2"); a(f"s_lshl_b32 s{T0}, s{T0}, 1")
        a(f"s_add_u32 s{sRot}, s{sRot}, s{T0}"); a(f"s_and_b32 s{sRot}, s{sRot}, 15")
    elif mode == 3:
        a(f"s_and_b32 s{sRot}, s{T0}, 3"); a(f"s_lshl_b32 s{sRot}, s{sRot}, 2"); a(f"s_lshr_b32 s{T0}, s{T0}, 2"); a(f"s_lshl_b32 s{T0}, s{T0}, 3")
        a(f"s_add_u32 s{sRot}, s{sRot}, s{T0}"); a(f"s_xor_b32 s{T2}, s{T2}, s{T3}"); a(f"s_and_b32 s{T2}, s{T2}, 1"); a(f"s_lshl_b32 s{T2}, s{T2}, 3")
        a(f"s_add_u32 s{sRot}, s{sRot}, s{T2}"); a(f"s_and_b32 s{sRot}, s{sRot}, 15")
    elif mode == 4:
        a(f"s_xor_b32 s{T2}, s{T2}, s{T3}"); a(f"s_and_b32 s{T2}, s{T2}, 1"); a(f"s_lshl_b32 s{sRot}, s{T2}, 3")
        a(f"s_and_b32 s{T0}, s{T0}, 3"); a(f"s_lshl_b32 s{T0}, s{T0}, 1"); a(f"s_add_u32 s{sRot}, s{sRot}, s{T0}"); a(f"s_and_b32 s{sRot}, s{sRot}, 15")
    elif mode == 8:
        a(f"s_add_u32 s{sRot}, s{T0}, s{T2}"); a(f"s_and_b32 s{sRot}, s{sRot}, 3"); a(f"s_lshl_b32 s{sRot}, s{sRot}, 2")
    elif mode == 9:
        a(f"s_add_u32 s{sRot}, s{T0}, s{T2}"); a(f"s_and_b32 s{sRot}, s{sRot}, 1"); a(f"s_lshl_b32 s{sRot}, s{sRot}, 3")
    elif mode == 10:
        a(f"s_add_u32 s{sRot}, s{T0}, s{T2}"); a(f"s_and_b32 s{sRot}, s{sRot}, 7"); a(f"s_lshl_b32 s{sRot}, s{sRot}, 1")
    elif mode == 5:
        a(f"s_and_b32 s{sRot}, s{T0}, 3"); a(f"s_lshl_b32 s{sRot}, s{sRot}, 2")
    elif mode == 6:
        a(f"s_lshl_b32 s{sRot}, s{T2}, 2"); a(f"s_and_b32 s{T0}, s{T0}, 3"); a(f"s_add_u32 s{sRot}, s{sRot}, s{T0}"); a(f"s_and_b32 s{sRot}, s{sRot}, 15")
    elif mode == 7:
        a(f"s_lshl_b32 s{sRot}, s{T3}, 2"); a(f"s_and_b32 s{T0}, s{T0}, 3"); a(f"s_add_u32 s{sRot}, s{sRot}, s{T0}"); a(f"s_and_b32 s{sRot}, s{sRot}, 15")
    else:
        a(f"s_mov_b32 s{sRot}, 0")
    if C.dbgst:
        pass
    a(f"s_cmp_eq_u32 s{sRole}, 1"); a("s_cbranch_scc1 L_ssm")
    v1, l1 = phase1_dense(a)
    v2, l2 = phase2(a, 1)
    a("s_branch L_fin")
    a.label("L_ssm")
    v3, l3 = phase1_ssm(a)
    v4, l4 = phase2(a, 0)
    a.label("L_fin")
    if C.dbgst: emit_stamps(a)
    a.label("L_end")
    a("s_endpgm")
    a.label("L_codeend")
    nv = max(v1, v2, v3, v4); lds = max(l1, l2, l3, l4)
    assert nv <= 250
    if C.codepf or C.tlb: nv = 251
    head = HEADER + f"; @launch grid=(256,1,1) block=(512,1,1) lds={lds}\n"
    head += '.amdgcn_target "amdgcn-amd-amdhsa--gfx950"\n.text\n'
    return head + a.text() + '.section .rodata,"a"\n' + kernel_desc(NAME, nv, 102)

if __name__ == "__main__":
    kw = json.loads(sys.argv[2]) if len(sys.argv) > 2 else {}
    open(sys.argv[1], "w").write(generate(**kw))
```

```python
import sys, math, json
from asmlib import *

NAME = "gated_mix__ssm_conv_s5__dense_activation_squared_relu__prompt_kernel"
L, D, P_, F = 2048, 1024, 1024, 3584
KC = 2048 + F
RS_A2 = KC * 2
KA = dict(x=0, lre=8, lim=16, bre=24, bim=32, cre=40, cim=48, ldt=56, dsk=64, bx=72, w1=80, b1=88, w2=96, b2=104, gw=112, out=120, dbg=128, ws=136)
WS_A2 = 0
WS_G = 24 << 20
WS_AGG = WS_G + (1 << 16)
WS_MB = WS_AGG + (1 << 17)
WS_ST = WS_AGG + (1 << 18)
WS_XB = 32 << 20
WS_SIZE = 268435456
LOG2E = 0x3fb8aa3b
INV2PI = 0x3e22f983
PTR = {k: 40 + v // 4 for k, v in KA.items()}
DBG_LB = 0
DBG_CNT = 16
DBG_XF = 32

class Cfg:
    dbgst = False; rot = 4; nodma = False; noread = False; prefetch = True
    nAd = 24
    nBs = 8
    ns = 4
    delta = 2
    wt = " sc1"
    a2ld = " sc1"
    wto = ""
    spin = 300000
    sleep = 2
    early = True
    endwarm = 1
    midwarm = 0
    w2it = 0
    codepf2 = 0
    codepf3 = 0
    dearly = True
    fine = True
    dparts = 4
    sparts = 2
    d1p = False
    k2 = 0
    flagit = 3
    dbgout = False
    xbf16 = True
    loop = {}
    inboxit = 18
    initit = 4
    tlb = False
    tlbshift = 21
    codepf = True
    pbar = False
    bulk = False
    pflist = [('w1',0),('x',0),('bre',0),('bim',0),('cre',0),('cim',0),('w2',0)]
    pfit = 13
    span = 1.0
    prio = True
    nbq = 3
    stampset = 'main'
    stwave = 0
C = Cfg()

class Regs:
    def __init__(self, start, limit=256):
        self.n = start; self.limit = limit; self.hi = start
    def get(self, k=1, align=1):
        self.n = (self.n + align - 1) // align * align
        r = self.n; self.n += k
        self.hi = max(self.hi, self.n)
        assert self.n <= self.limit, f"out of registers {self.n} > {self.limit}"
        return r

def srd(a, s, ptr_lo, size):
    if s != ptr_lo:
        a(f"s_mov_b32 s{s}, s{ptr_lo}"); a(f"s_mov_b32 s{s+1}, s{ptr_lo+1}")
    a(f"s_mov_b32 s{s+2}, {size}"); a(f"s_mov_b32 s{s+3}, 0x20000")

_lbl = [0]
def newlabel(p):
    _lbl[0] += 1
    return f"L_{p}{_lbl[0]}"

class OpKC:
    def __init__(self, a, V, T, lds_off, nfr, flags=""):
        self.a, self.T, self.lds_off, self.nfr, self.flags = a, T, lds_off, nfr, flags
        self.n = T // 64
        self.vd = V.get(self.n)
        self.b0 = V.get(); self.c0 = V.get(); self.c1 = V.get()
        self.bytes = T * 128
        self.ldsoffs = [j * 1024 for j in range(self.n)]
    def lane_chunk(self, vdst, t):
        a = self.a
        a(f"v_and_b32 v{vdst}, 7, v0"); a(f"v_lshrrev_b32 v{t}, 4, v0")
        a(f"v_xor_b32 v{vdst}, v{vdst}, v{t}"); a(f"v_lshlrev_b32 v{vdst}, 4, v{vdst}")
    def set_voff(self, j, vlane, sRowBytes, xor64, comp=True):
        a = self.a; d = self.vd + j
        src = vlane
        if xor64 is True:
            a(f"v_xor_b32 v{d}, 64, v{vlane}"); src = d
        elif xor64 is not False:
            a(f"v_xor_b32 v{d}, s{xor64}, v{vlane}"); src = d
        a(f"v_add_u32 v{d}, s{sRowBytes}, v{src}")
    def dma(self, sBuf, sK, stmp, sLds, srds, groups=None):
        g = []
        for grp_i in self.groups:
            for n_, j in enumerate(grp_i):
                grp = []
                if n_ == 0:
                    grp.append(f"s_add_u32 s{stmp}, s{sBuf}, s{sLds}")
                    if self.ldsoffs[j]: grp.append(f"s_add_u32 s{stmp}, s{stmp}, {self.ldsoffs[j]}")
                    grp.append(f"s_mov_b32 m0, s{stmp}")
                    grp.append("s_nop 0")
                off = f" offset:{n_*1024}" if n_ else ""
                s = srds[j]
                grp.append(f"buffer_load_dwordx4 v{self.vd+j}, s[{s}:{s+3}], s{sK} offen{off}{self.flags} lds")
                g.append(grp)
        return g
    def count(self): return (self.n, self.n)
    def setup_read(self, sFrag0, tmp, stmp):
        a = self.a; t0, t1, t2 = tmp, tmp + 1, tmp + 2
        a(f"v_and_b32 v{t0}, 15, v0"); a(f"v_lshrrev_b32 v{t1}, 4, v0"); a(f"v_lshrrev_b32 v{t2}, 1, v{t0}")
        a(f"v_xor_b32 v{t1}, v{t1}, v{t2}"); a(f"v_lshlrev_b32 v{t1}, 4, v{t1}")
        a(f"v_lshl_add_u32 v{t0}, v{t0}, 7, v{t1}")
        a(f"s_lshl_b32 s{stmp}, s{sFrag0}, 11")
        if self.lds_off: a(f"s_add_u32 s{stmp}, s{stmp}, {self.lds_off}")
        a(f"v_add_u32 v{self.b0}, s{stmp}, v{t0}")
    def init_cur(self):
        return [f"v_mov_b32 v{self.c0}, v{self.b0}", f"v_xor_b32 v{self.c1}, 64, v{self.b0}"]
    def frag_off(self, i): return i * 2048
    def reads(self, ks, dst):
        if C.noread: return []
        c = self.c1 if ks else self.c0
        return [[f"ds_read_b128 {vr(dst+4*i,4)}, v{c} offset:{self.frag_off(i)}"] for i in range(self.nfr)]
    def upd_A(self, sBuf): return [f"v_add_u32 v{self.c0}, s{sBuf}, v{self.b0}"]
    def upd_B(self, sBuf): return [f"v_xor_b32 v{self.c1}, 64, v{self.c0}"]

class OpNC:
    def __init__(self, a, V, T, lds_off, nfr, RS, NW=8):
        self.a, self.T, self.lds_off, self.nfr, self.RS = a, T, lds_off, nfr, RS
        self.RP = T * 2; self.CH = self.RP // 16
        self.total = self.CH
        self.n = -(-self.total // NW)
        self.even = (self.total % NW == 0)
        self.nbig = NW if self.even else self.total - (self.n - 1) * NW
        self.vd = V.get(self.n)
        np_ = self.RP // 32
        self.gb = 3 if np_ % 8 == 0 else (2 if np_ % 4 == 0 else 1)
        self.nres = min(1 << self.gb, nfr)
        self.base = V.get(self.nres); self.cur = V.get(self.nres)
        self.bytes = 64 * self.RP
    def g_asm(self, vk, vo, t):
        a = self.a
        if self.gb == 3:
            a(f"v_and_b32 v{vo}, 3, v{vk}"); a(f"v_bfe_u32 v{t}, v{vk}, 3, 1"); a(f"v_lshl_or_b32 v{vo}, v{t}, 2, v{vo}")
        elif self.gb == 2:
            a(f"v_bfe_u32 v{vo}, v{vk}, 1, 1"); a(f"v_bfe_u32 v{t}, v{vk}, 3, 1"); a(f"v_lshl_or_b32 v{vo}, v{t}, 1, v{vo}")
        else:
            a(f"v_bfe_u32 v{vo}, v{vk}, 3, 1")
    def idx0(self, sWave, sOut, stmp):
        a = self.a
        if self.even: a(f"s_mul_i32 s{sOut}, s{sWave}, {self.n}")
        else:
            a(f"s_mul_i32 s{sOut}, s{sWave}, {self.n-1}")
            a(f"s_min_u32 s{stmp}, s{sWave}, {self.nbig}")
            a(f"s_add_u32 s{sOut}, s{sOut}, s{stmp}")
    def setup_dma(self, sWave, tmp, sCol0Bytes, stmp):
        a = self.a; t0, t1, t2, t3 = tmp, tmp + 1, tmp + 2, tmp + 3
        self.idx0(sWave, stmp, stmp + 1)
        magic = (1 << 20) // self.CH + 1
        for L_ in range(self.total * 64 + 64):
            assert (L_ * magic) >> 20 == L_ // self.CH
        for j in range(self.n):
            a(f"s_add_u32 s{stmp+1}, s{stmp}, {j}"); a(f"s_lshl_b32 s{stmp+1}, s{stmp+1}, 6")
            a(f"v_add_u32 v{t0}, s{stmp+1}, v0")
            if self.CH & (self.CH - 1) == 0:
                a(f"v_lshrrev_b32 v{t1}, {int(math.log2(self.CH))}, v{t0}")
                a(f"v_and_b32 v{t0}, {self.CH-1}, v{t0}")
            else:
                a(f"v_mul_u32_u24 v{t1}, {magic}, v{t0}"); a(f"v_lshrrev_b32 v{t1}, 20, v{t1}")
                a(f"v_mul_u32_u24 v{t2}, {self.CH}, v{t1}"); a(f"v_sub_u32 v{t0}, v{t0}, v{t2}")
            self.g_asm(t1, t2, t3)
            a(f"v_lshlrev_b32 v{t2}, 1, v{t2}"); a(f"v_xor_b32 v{t0}, v{t0}, v{t2}")
            a(f"v_mul_u32_u24 v{t1}, {self.RS}, v{t1}")
            a(f"v_lshl_add_u32 v{t0}, v{t0}, 4, v{t1}")
            if j % 4: a(f"s_sub_u32 s{stmp+1}, s{sCol0Bytes}, {(j%4)*1024}"); a(f"v_add_u32 v{self.vd+j}, s{stmp+1}, v{t0}")
            else: a(f"v_add_u32 v{self.vd+j}, s{sCol0Bytes}, v{t0}")
    def setup_lds(self, sWave, sLds, stmp):
        self.idx0(sWave, sLds, stmp)
        self.a(f"s_lshl_b32 s{sLds}, s{sLds}, 10")
        if self.lds_off: self.a(f"s_add_u32 s{sLds}, s{sLds}, {self.lds_off}")
    def dma(self, sBuf, sK, stmp, sLds, srds, sWave=None):
        g = []
        s = srds
        for j in range(self.n):
            grp = []
            guard = (not self.even) and j == self.n - 1
            if guard:
                lbl = newlabel("ncs")
                grp += [f"s_cmp_lt_u32 s{sWave}, {self.nbig}", f"s_cbranch_scc0 {lbl}"]
            if j % 4 == 0:
                grp.append(f"s_add_u32 s{stmp}, s{sBuf}, s{sLds}")
                if j: grp.append(f"s_add_u32 s{stmp}, s{stmp}, {j*1024}")
                grp += [f"s_mov_b32 m0, s{stmp}", "s_nop 0"]
            off = f" offset:{(j%4)*1024}" if j % 4 else ""
            grp.append(f"buffer_load_dwordx4 v{self.vd+j}, s[{s}:{s+3}], s{sK} offen{off} lds")
            if guard: grp.append(f"{lbl}:")
            g.append(grp)
        return g
    def count(self): return (self.n if self.even else self.n - 1, self.n)
    def setup_read(self, sFrag0, tmp, stmp):
        a = self.a; t0, t1, t2 = tmp, tmp + 1, tmp + 2
        a(f"v_lshrrev_b32 v{t0}, 4, v0"); a(f"v_lshlrev_b32 v{t0}, 3, v{t0}")
        a(f"v_bfe_u32 v{t1}, v0, 2, 2"); a(f"v_add_u32 v{t0}, v{t0}, v{t1}")
        self.g_asm(t0, t1, t2)
        a(f"v_mul_u32_u24 v{t0}, {self.RP}, v{t0}")
        a(f"v_and_b32 v{t2}, 3, v0"); a(f"v_lshl_add_u32 v{t0}, v{t2}, 3, v{t0}")
        if self.lds_off: a(f"v_add_u32 v{t0}, {self.lds_off}, v{t0}")
        for r in range(self.nres):
            a(f"s_add_u32 s{stmp}, s{sFrag0}, {r}")
            a(f"v_xor_b32 v{t2}, s{stmp}, v{t1}")
            if r: a(f"v_subrev_u32 v{t2}, {r}, v{t2}")
            a(f"v_lshl_add_u32 v{self.base+r}, v{t2}, 5, v{t0}")
    def init_cur(self):
        return [f"v_mov_b32 v{self.cur+r}, v{self.base+r}" for r in range(self.nres)]
    def reads(self, ks, dst):
        if C.noread: return []
        g = []
        for i in range(self.nfr):
            r = i % (1 << self.gb)
            for h in range(2):
                off = 32 * i + (4 * h + 32 * ks) * self.RP
                g.append([f"ds_read_b64_tr_b16 {vr(dst+4*i+2*h,2)}, v{self.cur+r} offset:{off}"])
        return g
    def upd_A(self, sBuf): return [f"v_add_u32 v{self.cur+r}, s{sBuf}, v{self.base+r}" for r in range(self.nres)]
    def upd_B(self, sBuf): return []

class Seg:
    def __init__(self, P, Q, acc, Pdma, Qdma, kadvP, kadvQ, name):
        self.P, self.Q, self.acc, self.Pdma, self.Qdma, self.kadvP, self.kadvQ, self.name = P, Q, acc, Pdma, Qdma, kadvP, kadvQ, name
        self.xdma = []

class Gemm:
    def __init__(self, a, V, NBP, NBQ, SP, SQ, mp, mq, regs, joint, early=None, name="x"):
        self.a, self.NBP, self.NBQ, self.SP, self.SQ, self.mp, self.mq, self.joint = a, NBP, NBQ, SP, SQ, mp, mq, joint
        o = dict(span=C.span, prio=C.prio, dmapos="merge", order="i")
        o.update(C.loop.get(name, {}))
        self.opt = o
        self.sDP, self.sRP, self.sDQ, self.sRQ, self.sCnt, self.sE = regs
        if joint: self.sDQ, self.sRQ = self.sDP, self.sRP
        self.early = early if C.early else None
        self.leadP = NBP - (1 if self.early == 'P' else 0)
        self.leadQ = NBQ - (1 if self.early == 'Q' else 0)
        self.F = []
        for s in range(2):
            p = V.get(4 * mp, 2); q = V.get(4 * mq, 2)
            self.F.append((p, q))
        self.vmq = []
        self.zero_first = False
    def emit(self, lines):
        for x in lines:
            if x.endswith(":"): self.a.label(x[:-1])
            else: self.a(x)
    def note(self, tag, n): self.vmq.append((tag, n))
    def vm_allow(self, need):
        last = -1
        for i, (t, n) in enumerate(self.vmq):
            if t in need: last = i
        return min(63, sum(n for t, n in self.vmq[last + 1:]))
    def reads(self, seg, ks, fs):
        p, q = self.F[fs]
        return merge(seg.P.reads(ks, p), seg.Q.reads(ks, q))
    def mfmas(self, seg, fs, zero=False):
        p, q = self.F[fs]
        ij = [(i, j) for i in range(self.mp) for j in range(self.mq)]
        if self.opt["order"] == "j": ij = [(i, j) for j in range(self.mq) for i in range(self.mp)]
        st = getattr(self, "acc_stride", 4 * self.mq)
        return [f"v_mfma_f32_16x16x32_bf16 {vr(c,4)}, {vr(p+4*i,4)}, {vr(q+4*j,4)}, {'0' if zero else vr(c,4)}"
                for (i, j) in ij for c in [seg.acc + st * i + 4 * j]]
    def spread(self, main, fill):
        n = len(main); k = len(fill)
        if k == 0: return list(main)
        span = max(1, min(n, int(n * self.opt['span'])))
        out = []; fi = 0
        for i, m in enumerate(main):
            out.append(m)
            while fi < k and (fi * span) // k <= i:
                out.extend(fill[fi]); fi += 1
        while fi < k: out.extend(fill[fi]); fi += 1
        return out
    def mix(self, reads, dma):
        m = self.opt["dmapos"]
        if m == "first": return dma + reads
        if m == "last": return reads + dma
        return merge(reads, dma)
    def ring_adv(self, sD, sR, stride, nb):
        return [f"s_mov_b32 s{sD}, s{sR}", f"s_add_u32 s{sR}, s{sR}, {stride}", f"s_cmp_eq_u32 s{sR}, {stride*nb}", f"s_cselect_b32 s{sR}, 0, s{sR}"]
    def advance(self):
        out = []
        if self.early: out.append(f"s_mov_b32 s{self.sE}, s{self.sDP if (self.joint or self.early == 'P') else self.sDQ}")
        if self.joint: return out + self.ring_adv(self.sDP, self.sRP, self.SP + self.SQ, self.NBP)
        return out + self.ring_adv(self.sDP, self.sRP, self.SP, self.NBP) + self.ring_adv(self.sDQ, self.sRQ, self.SQ, self.NBQ)
    def dma_list(self, which, seg, sBuf):
        if seg is None or C.nodma: return []
        if which == 'P': return seg.Pdma(sBuf) + [list(seg.kadvP)]
        return seg.Qdma(sBuf) + [list(seg.kadvQ)] + seg.xdma
    def body(self, cur, nxt, dP, dQ, vmw, pre_barrier=None, extra=None, zero=False):
        a = self.a
        self.emit(self.advance())
        a("s_waitcnt lgkmcnt(0)")
        fill = self.reads(cur, 1, 1)
        if nxt is not None: fill.append(nxt.P.upd_A(self.sRP) + nxt.Q.upd_A(self.sRQ))
        if self.early == 'P': fill = self.mix(fill, self.dma_list('P', dP, self.sE))
        if self.early == 'Q': fill = self.mix(fill, self.dma_list('Q', dQ, self.sE))
        if nxt is None and extra: fill = fill + extra
        self.emit(self.spread(self.mfmas(cur, 0, zero), fill))
        if nxt is None:
            a("s_waitcnt lgkmcnt(0)")
            self.emit(self.mfmas(cur, 1))
            return
        if pre_barrier: pre_barrier()
        a(f"s_waitcnt vmcnt({vmw}) lgkmcnt(0)")
        a("s_barrier")
        if self.opt["prio"]: a("s_setprio 1")
        fill = self.reads(nxt, 0, 0)
        d = []
        if self.early != 'P': d += self.dma_list('P', dP, self.sDP)
        if self.early != 'Q': d += self.dma_list('Q', dQ, self.sDQ)
        fill = self.mix(fill, d)
        u = nxt.P.upd_B(self.sRP) + nxt.Q.upd_B(self.sRQ)
        if u: fill.append(u)
        if extra: fill = fill + extra
        self.emit(self.spread(self.mfmas(cur, 1), fill))
        if self.opt["prio"]: a("s_setprio 0")
    def prologue(self, stages, which="PQ", first=0, last=None):
        a = self.a
        stride = self.SP + self.SQ if self.joint else None
        if first == 0:
            a(f"s_mov_b32 s{self.sDP}, 0")
            if not self.joint: a(f"s_mov_b32 s{self.sDQ}, 0")
        for s in range(first, max(self.leadP, self.leadQ) if last is None else last):
            if "P" in which and s < self.leadP:
                for g in stages[s].Pdma(self.sDP): self.emit(g)
                self.emit(stages[s].kadvP); self.note(('P', s), stages[s].P.count()[0])
                if not self.joint: a(f"s_add_u32 s{self.sDP}, s{self.sDP}, {self.SP}")
            if "Q" in which and s < self.leadQ:
                for g in stages[s].Qdma(self.sDQ): self.emit(g)
                self.emit(stages[s].kadvQ); self.note(('Q', s), stages[s].Q.count()[0])
                if not self.joint: a(f"s_add_u32 s{self.sDQ}, s{self.sDQ}, {self.SQ}")
            if self.joint: a(f"s_add_u32 s{self.sDP}, s{self.sDP}, {stride}")
    def run(self, stages, hooks=None, extras=None, post_first=None):
        a = self.a; N = len(stages)
        hooks = hooks or {}; extras = extras or {}
        a(f"s_waitcnt vmcnt({self.vm_allow({('P',0),('Q',0)})})")
        if getattr(self, "pre_first", None): self.pre_first()
        a("s_barrier")
        if post_first: post_first()
        seen = []
        for sg in stages:
            for op in (sg.P, sg.Q):
                if op not in seen: seen.append(op); self.emit(op.init_cur())
        if self.joint:
            a(f"s_mov_b32 s{self.sRP}, 0"); a(f"s_mov_b32 s{self.sDP}, {(self.SP+self.SQ)*(self.NBP-1)}")
        else:
            a(f"s_mov_b32 s{self.sRP}, 0"); a(f"s_mov_b32 s{self.sDP}, {self.SP*(self.NBP-1)}")
            a(f"s_mov_b32 s{self.sRQ}, 0"); a(f"s_mov_b32 s{self.sDQ}, {self.SQ*(self.NBQ-1)}")
        for g in self.reads(stages[0], 0, 0): self.emit(g)
        sigs = []; seen_acc = set()
        for i in range(N):
            nxt = stages[i + 1] if i + 1 < N else None
            dP = stages[i + self.leadP] if i + self.leadP < N else None
            dQ = stages[i + self.leadQ] if i + self.leadQ < N else None
            def noteP():
                if dP is not None: self.note(('P', i + self.leadP), dP.P.count()[0])
            def noteQ():
                if dQ is not None:
                    self.note(('Q', i + self.leadQ), dQ.Q.count()[0])
                    if dQ.xdma: self.note(('PF', i), len(dQ.xdma))
            if self.early == 'P': noteP()
            if self.early == 'Q': noteQ()
            vmw = self.vm_allow({('P', i + 1), ('Q', i + 1)}) if nxt is not None else 0
            if i in getattr(self, "want_allow", {}):
                if not hasattr(self, "allow_at"): self.allow_at = {}
                self.allow_at[i] = self.vm_allow({self.want_allow[i]})
            if self.early != 'P': noteP()
            if self.early != 'Q': noteQ()
            if i in extras: self.note(('X', i), extras[i][1])
            zero = self.zero_first and stages[i].acc not in seen_acc
            seen_acc.add(stages[i].acc)
            sigs.append((stages[i], nxt, dP, dQ, vmw, i if (i in hooks or i in extras or zero) else -1, zero))
        i = 0
        while i < N:
            j = i
            while j < N and sigs[j] == sigs[i]: j += 1
            cnt = j - i
            cur, nxt, dP, dQ, vmw, sp, zero = sigs[i]
            hk = hooks.get(sp); ex = extras[sp][0] if sp in extras else None
            if cnt >= 2:
                lbl = newlabel("gl")
                a(f"s_mov_b32 s{self.sCnt}, {cnt}")
                a.label(lbl)
                self.body(cur, nxt, dP, dQ, vmw)
                a(f"s_sub_u32 s{self.sCnt}, s{self.sCnt}, 1"); a(f"s_cmp_lg_u32 s{self.sCnt}, 0"); a(f"s_cbranch_scc1 {lbl}")
            else:
                self.body(cur, nxt, dP, dQ, vmw, hk, ex, zero)
            i = j

def merge(x, y):
    out = []; i = j = 0
    while i < len(x) or j < len(y):
        if j >= len(y) or (i < len(x) and i * len(y) <= j * len(x)): out.append(x[i]); i += 1
        else: out.append(y[j]); j += 1
    return out

def bf16_round(a, vdst, vsrc):
    a(f"v_cvt_pk_bf16_f32 v{vdst}, v{vsrc}, v{vsrc}"); a(f"v_lshlrev_b32 v{vdst}, 16, v{vdst}")

def stamp(a, idx, real=False, st="main"):
    if C.dbgst and st == C.stampset:
        a("s_memrealtime s[88:89]" if real else "s_memtime s[88:89]")
        a("s_waitcnt lgkmcnt(0)")
        a(f"s_mov_b32 s{92+idx}, s88")

sWave, sM, sN, sRole = 28, 29, 30, 31
sBufD, sBufR, sCnt, sTmp, sKP, sKQ, sLdsP, sLdsQ = 32, 33, 34, 35, 36, 37, 38, 39
sWp, sWq, sRot, sLdsP2, sKP2, sTile, sTt, sDt = 80, 81, 82, 83, 84, 85, 86, 87
SX, SA, SB_, SWS, SDBG, SS = 4, 8, 12, 16, 20, 24
T0, T1, T2, T3 = 76, 77, 78, 79
U0, U1, U2, U3 = 88, 89, 90, 91
VT = 2

def ssm_param_loads(a, vch, t):
    a(f"v_lshlrev_b32 v{t}, 1, v{vch}")
    for k, name in enumerate(("lre", "lim", "ldt")):
        srd(a, SS, PTR[name], 2048)
        a(f"buffer_load_ushort v{t+1+k}, v{t}, s[{SS}:{SS+3}], 0 offen")

def ssm_params_compute(a, out, t, want_kappa=True):
    lre, lim, ldt = t + 1, t + 2, t + 3
    x0, x1, x2, x3 = t + 4, t + 5, t + 6, t + 7
    lr, li, kr, ki = out, out + 1, out + 2, out + 3
    for r in (lre, lim, ldt): a(f"v_lshlrev_b32 v{r}, 16, v{r}")
    a(f"v_mul_f32 v{x0}, {LOG2E:#x}, v{ldt}"); a(f"v_exp_f32 v{x0}, v{x0}"); a("s_nop 0")
    bf16_round(a, x0, x0)
    a(f"v_mul_f32 v{x1}, v{x0}, v{lre}"); a(f"v_mul_f32 v{x2}, v{x0}, v{lim}")
    a(f"v_mul_f32 v{x1}, {LOG2E:#x}, v{x1}"); a(f"v_exp_f32 v{x1}, v{x1}")
    a(f"v_mul_f32 v{x2}, {INV2PI:#x}, v{x2}"); a(f"v_rndne_f32 v{x3}, v{x2}"); a(f"v_sub_f32 v{x2}, v{x2}, v{x3}")
    a(f"v_cos_f32 v{x3}, v{x2}"); a(f"v_sin_f32 v{x2}, v{x2}"); a("s_nop 0")
    a(f"v_mul_f32 v{lr}, v{x1}, v{x3}"); a(f"v_mul_f32 v{li}, v{x1}, v{x2}")
    if want_kappa:
        a(f"v_subrev_f32 v{x0}, 1.0, v{lr}")
        a(f"v_mul_f32 v{x1}, v{x0}, v{lre}"); a(f"v_fmac_f32 v{x1}, v{li}, v{lim}")
        a(f"v_mul_f32 v{x2}, v{li}, v{lre}"); a(f"v_fma_f32 v{x2}, -v{x0}, v{lim}, v{x2}")
        a(f"v_mul_f32 v{x3}, v{lre}, v{lre}"); a(f"v_fmac_f32 v{x3}, v{lim}, v{lim}")
        a(f"v_rcp_f32 v{x3}, v{x3}"); a("s_nop 0")
        a(f"v_add_f32 v{x3}, v{x3}, v{x3}")
        a(f"v_mul_f32 v{kr}, v{x1}, v{x3}"); a(f"v_mul_f32 v{ki}, v{x2}, v{x3}")

def csq(a, dr, di, sr_, si, t):
    a(f"v_mul_f32 v{t}, v{sr_}, v{si}"); a(f"v_mul_f32 v{dr}, v{sr_}, v{sr_}")
    a(f"v_fma_f32 v{dr}, -v{si}, v{si}, v{dr}"); a(f"v_add_f32 v{di}, v{t}, v{t}")

def gate_row_loads(a, sRow, vx, t):
    a(f"s_lshl_b32 s{U1}, s{sRow}, 11")
    a(f"buffer_load_dwordx4 {vr(vx,4)}, v{t}, s[{SX}:{SX+3}], s{U1} offen")
    a(f"buffer_load_dwordx4 {vr(vx+4,4)}, v{t}, s[{SX}:{SX+3}], s{U1} offen offset:16")

def gate_compute(a, sRow, vx, vw, t):
    acc = t; p0, p1, q0, q1 = t + 1, t + 2, t + 3, t + 4
    a(f"v_mov_b32 v{acc}, 0")
    for d in range(8):
        a(f"v_lshlrev_b32 v{p0}, 16, v{vx+d}"); a(f"v_and_b32 v{p1}, 0xffff0000, v{vx+d}")
        a(f"v_lshlrev_b32 v{q0}, 16, v{vw+d}"); a(f"v_and_b32 v{q1}, 0xffff0000, v{vw+d}")
        a(f"v_mul_f32 v{p0}, v{p0}, v{q0}"); a(f"v_mul_f32 v{p1}, v{p1}, v{q1}")
        a(f"v_cvt_pk_bf16_f32 v{p0}, v{p0}, v{p1}")
        a(f"v_and_b32 v{p1}, 0xffff0000, v{p0}"); a(f"v_lshlrev_b32 v{p0}, 16, v{p0}")
        a(f"v_add_f32 v{acc}, v{acc}, v{p0}"); a(f"v_add_f32 v{acc}, v{acc}, v{p1}")
    for sh in (1, 2, 4, 8):
        a("s_nop 1")
        a(f"v_add_f32_dpp v{acc}, v{acc}, v{acc} row_shr:{sh} row_mask:0xf bank_mask:0xf bound_ctrl:0")
    a("s_nop 1")
    a(f"v_add_f32_dpp v{acc}, v{acc}, v{acc} row_bcast:15 row_mask:0xa bank_mask:0xf")
    a("s_nop 1")
    a(f"v_add_f32_dpp v{acc}, v{acc}, v{acc} row_bcast:31 row_mask:0xc bank_mask:0xf")
    a("s_nop 1")
    a(f"v_readlane_b32 s{U0}, v{acc}, 63")
    a("s_nop 1")
    a(f"v_mov_b32 v{acc}, s{U0}")
    bf16_round(a, acc, acc)
    a(f"v_mul_f32 v{p0}, {LOG2E ^ 0x80000000:#x}, v{acc}"); a(f"v_exp_f32 v{p0}, v{p0}"); a("s_nop 0")
    a(f"v_add_f32 v{p0}, 1.0, v{p0}"); a(f"v_rcp_f32 v{p0}, v{p0}"); a("s_nop 0")
    bf16_round(a, p0, p0)
    a(f"v_sub_f32 v{p1}, 1.0, v{p0}")
    bf16_round(a, p1, p1)
    a(f"s_lshl_b32 s{U0}, s{sRow}, 3"); a(f"s_add_u32 s{U0}, s{U0}, {WS_G}")
    a(f"v_cmp_eq_u32 vcc, 0, v0"); a("s_nop 1")
    a(f"v_cndmask_b32 v{p0}, v{p1}, v{p0}, vcc")
    a(f"v_lshlrev_b32 v{q0}, 2, v0")
    a("s_mov_b64 exec, 3")
    a(f"buffer_store_dword v{p0}, v{q0}, s[{SWS}:{SWS+3}], s{U0} offen sc1")
    a("s_mov_b64 exec, -1")

SENT = 0xffffffff
def inbox_offset(a, sdst):
    a(f"s_lshl_b32 s{sdst}, s2, 3"); a(f"s_add_u32 s{sdst}, s{sdst}, s{sWave}"); a(f"s_mul_i32 s{sdst}, s{sdst}, {4096*(C.ns-1)}")
    a(f"s_add_u32 s{sdst}, s{sdst}, {WS_XB}")

def mb_zero_groups(vt, ssm=False):
    c = []
    q = (vt + 1) // 2 * 2
    sk = newlabel("mz")
    c += [f"s_cmp_lg_u32 s{sWave}, 0", f"s_cbranch_scc1 {sk}"]
    if ssm:
        c += [f"v_mov_b32 v{q}, -1", f"v_mov_b32 v{q+1}, -1",
              f"s_lshl_b32 s{U0}, s{sN}, 6", f"v_add_u32 v{q+4}, s{U0}, v0", f"v_lshlrev_b32 v{q+4}, 3, v{q+4}",
              f"s_lshl_b32 s{U0}, s{sM}, 13", f"s_add_u32 s{U0}, s{U0}, {WS_AGG}",
              f"buffer_store_dwordx2 {vr(q,2)}, v{q+4}, s[{SWS}:{SWS+3}], s{U0} offen sc1"]
    c += [f"v_mov_b32 v{q+2}, 0", f"v_lshlrev_b32 v{q+4}, 2, v0", f"s_lshl_b32 s{U0}, s2, 8", f"s_add_u32 s{U0}, s{U0}, {WS_MB}",
          f"buffer_store_dword v{q+2}, v{q+4}, s[{SWS}:{SWS+3}], s{U0} offen sc1", f"{sk}:"]
    return [c], 0

def inbox_init(a, vt):
    for r in range(4): a(f"v_mov_b32 v{vt+r}, -1")
    a(f"v_lshlrev_b32 v{vt+4}, 4, v0")
    inbox_offset(a, U0)
    for i in range(4 * (C.ns - 1)):
        a(f"buffer_store_dwordx4 {vr(vt,4)}, v{vt+4}, s[{SWS}:{SWS+3}], s{U0} offen offset:{(i%4)*1024} sc1")
        if i % 4 == 3: a(f"s_add_u32 s{U0}, s{U0}, 4096")

def init_signal(a, vt, idx=0, guard=True):
    sk = newlabel("mi")
    if guard: a(f"s_cmp_lg_u32 s{sWave}, 0"); a(f"s_cbranch_scc1 {sk}")
    a(f"v_mov_b32 v{vt}, 1"); a(f"v_mov_b32 v{vt+1}, {4*idx}")
    a("s_mov_b64 exec, 1")
    a(f"buffer_atomic_add v{vt}, v{vt+1}, s[{SDBG}:{SDBG+3}], 0 offen sc1")
    a("s_mov_b64 exec, -1")
    a.label(sk)

def poll(a, srd_, sByteOff, check, vt, wide=1, sleep=None):
    lp, ok = newlabel("poll"), newlabel("pok")
    a(f"v_mov_b32 v{vt+4}, s{sByteOff}")
    a(f"s_mov_b32 s{U2}, {C.spin}")
    a.label(lp)
    a(f"s_sub_u32 s{U2}, s{U2}, 1"); a(f"s_cmp_eq_u32 s{U2}, 0"); a(f"s_cbranch_scc1 {ok}")
    op = {1: "dword", 2: "dwordx2", 4: "dwordx4"}[wide]
    a(f"buffer_load_{op} {vr(vt,wide)}, v{vt+4}, s[{srd_}:{srd_+3}], 0 offen sc1")
    a("s_waitcnt vmcnt(0)")
    a(f"v_readfirstlane_b32 s{U0}, v{vt}")
    if wide >= 2: a(f"v_readfirstlane_b32 s{U1}, v{vt+1}")
    if wide >= 4: a(f"v_readfirstlane_b32 s{U3}, v{vt+2}")
    a("s_nop 3")
    check(ok)
    a(f"s_sleep {C.sleep if sleep is None else sleep}")
    a(f"s_branch {lp}")
    a.label(ok)

VINIT = 1
def init_load(a, idx=0):
    sk = newlabel("il")
    a(f"s_cmp_lg_u32 s{sWave}, 0"); a(f"s_cbranch_scc1 {sk}")
    a(f"v_mov_b32 v{VINIT}, {4*idx}")
    a(f"buffer_load_dword v{VINIT}, v{VINIT}, s[{SDBG}:{SDBG+3}], 0 offen sc1")
    a.label(sk)

def init_check(a, vt, idx=0):
    ok = newlabel("ic")
    a(f"v_readfirstlane_b32 s{U0}, v{VINIT}"); a("s_nop 3")
    a(f"s_cmp_ge_u32 s{U0}, 256"); a(f"s_cbranch_scc1 {ok}")
    a(f"s_mov_b32 s{T3}, {4*idx}")
    def chk(o): a(f"s_cmp_ge_u32 s{U0}, 256"); a(f"s_cbranch_scc1 {o}")
    poll(a, SDBG, T3, chk, vt, sleep=32)
    a.label(ok)

def poll_own(a, check, vt):
    a(f"s_lshl_b32 s{T3}, s2, 8"); a(f"s_add_u32 s{T3}, s{T3}, {WS_MB}")
    poll(a, SWS, T3, check, vt, wide=4)

def signal_cnt(a, dword, vt):
    NS = C.ns; XS = 8 // NS
    l, t1, t2 = vt, vt + 1, vt + 2
    t3 = vt + 3
    if NS == 2:
        a(f"v_bfe_u32 v{t1}, v0, 3, 1"); a(f"s_lshl_b32 s{T0}, s{sM}, 1"); a(f"v_add_u32 v{t1}, s{T0}, v{t1}")
        a(f"v_bfe_u32 v{t3}, v0, 4, 1")
    else:
        a(f"v_mov_b32 v{t1}, s{sM}")
        a(f"v_bfe_u32 v{t3}, v0, 3, 2")
    a(f"v_lshrrev_b32 v{t2}, 2, v{t1}"); a(f"v_mad_u32_u24 v{t2}, v{t3}, {XS}, v{t2}")
    a(f"v_and_b32 v{t1}, 3, v{t1}"); a(f"v_lshlrev_b32 v{t1}, 2, v{t1}")
    a(f"v_and_b32 v{l}, 3, v0"); a(f"v_or_b32 v{t1}, v{t1}, v{l}")
    a(f"v_bfe_u32 v{l}, v0, 2, 1"); a(f"v_and_b32 v{t3}, 1, v{t3}"); a(f"v_xor_b32 v{l}, v{l}, v{t3}"); a(f"v_xor_b32 v{l}, 1, v{l}")
    a(f"v_lshl_or_b32 v{t1}, v{l}, 4, v{t1}")
    a(f"v_lshl_or_b32 v{t1}, v{t1}, 3, v{t2}")
    a(f"v_lshlrev_b32 v{t1}, 8, v{t1}")
    if dword == "S" and C.fine and NS == 4:
        a(f"s_and_b32 s{T0}, s{sN}, 7"); a(f"s_lshl_b32 s{T0}, 1, s{T0}"); a(f"v_mov_b32 v{l}, s{T0}")
    else:
        a(f"v_mov_b32 v{l}, 1")
    if dword == "S":
        a(f"s_lshr_b32 s{T0}, s{sN}, 3"); a(f"s_lshl_b32 s{T0}, s{T0}, 2"); a(f"s_add_u32 s{T0}, s{T0}, {WS_MB}")
    else:
        a(f"s_mov_b32 s{T0}, {WS_MB + 4*dword}")
    a("s_mov_b32 exec_hi, 0")
    a(f"buffer_atomic_add v{l}, v{t1}, s[{SWS}:{SWS+3}], s{T0} offen sc1")
    a("s_mov_b64 exec, -1")

def bulk_prefetch(a, G, vdummy, vaddr):
    a(f"v_lshlrev_b32 v{vaddr}, 4, v0")
    n = 0
    for name, size in C.pflist:
        size = {"x": L*D*2, "w1": D*F*2, "bre": P_*D*2, "bim": P_*D*2, "cre": D*P_*2, "cim": D*P_*2, "w2": F*D*2}[name]
        share = size // 256; pw = share // 8
        a(f"s_mul_i32 s{U0}, s2, {share}"); a(f"s_mul_i32 s{U1}, s{sWave}, {pw}"); a(f"s_add_u32 s{U0}, s{U0}, s{U1}")
        a(f"s_mov_b32 s{T0}, s{PTR[name]}"); a(f"s_mov_b32 s{T0+1}, s{PTR[name]+1}")
        a(f"s_add_u32 s{T0+2}, s{U0}, {pw}"); a(f"s_mov_b32 s{T0+3}, 0x20000")
        for i in range(-(-pw // 1024)):
            a(f"buffer_load_dwordx4 {vr(vdummy,4)}, v{vaddr}, s[{T0}:{T0+3}], s{U0} offen offset:{i*1024}")
            n += 1
    G.note('pf', n)

def tlb_warm(a, vdummy, vaddr, names, tsrd):
    sizes = {"w2": F*D*2, "cre": D*P_*2, "cim": D*P_*2, "out": L*D*4, "lre": 2048, "lim": 2048, "ldt": 2048, "dsk": 2048, "b2": 2048, "gw": 2048}
    a(f"v_lshlrev_b32 v{vaddr}, {C.tlbshift}, v0")
    end = newlabel("tw")
    for w in range(8):
        nx = newlabel("tw")
        a(f"s_cmp_lg_u32 s{sWave}, {w}"); a(f"s_cbranch_scc1 {nx}")
        for name in names[w::8]:
            if name == "ws":
                a("s_mov_b32 exec_lo, 0x00ffffff"); a("s_mov_b32 exec_hi, 0")
                a(f"buffer_load_dword v{vdummy}, v{vaddr}, s[{SWS}:{SWS+3}], 0 offen")
                a("s_mov_b64 exec, -1")
            elif name == "dbg":
                a(f"buffer_load_dword v{vdummy}, v{vaddr}, s[{SDBG}:{SDBG+3}], 0 offen")
            else:
                a(f"s_mov_b32 s{tsrd}, s{PTR[name]}"); a(f"s_mov_b32 s{tsrd+1}, s{PTR[name]+1}"); a(f"s_mov_b32 s{tsrd+2}, {sizes[name]}"); a(f"s_mov_b32 s{tsrd+3}, 0x20000")
                a(f"buffer_load_dword v{vdummy}, v{vaddr}, s[{tsrd}:{tsrd+3}], 0 offen")
        a(f"s_branch {end}")
        a.label(nx)
    a.label(end)

def warm_groups(tsrd, vaddr):
    c = []
    end = newlabel("wg")
    c.append(f"v_lshlrev_b32 v{vaddr}, 20, v0")
    for w, name in enumerate(("a2", "cre", "cim", "w2")):
        nx = newlabel("wg")
        c += [f"s_cmp_lg_u32 s{sWave}, {w}", f"s_cbranch_scc1 {nx}"]
        if name == "a2":
            c += [f"s_mul_i32 s{U0}, s{sM}, {256*RS_A2}", "s_mov_b64 exec, 15",
                  f"buffer_load_dword v250, v{vaddr}, s[{SWS}:{SWS+3}], s{U0} offen", "s_mov_b64 exec, -1"]
        else:
            size = {"cre": D*P_*2, "cim": D*P_*2, "w2": F*D*2}[name]
            c += [f"s_mov_b32 s{tsrd}, s{PTR[name]}", f"s_mov_b32 s{tsrd+1}, s{PTR[name]+1}", f"s_mov_b32 s{tsrd+2}, {size}", f"s_mov_b32 s{tsrd+3}, 0x20000",
                  f"buffer_load_dword v250, v{vaddr}, s[{tsrd}:{tsrd+3}], 0 offen"]
        c += [f"s_branch {end}", f"{nx}:"]
    c.append(f"{end}:")
    return [c], 0

def code_pf_groups(vt):
    l, sk = newlabel("cp"), newlabel("cps")
    c = [f"s_cmp_lg_u32 s{sWave}, 7", f"s_cbranch_scc1 {sk}",
         f"s_getpc_b64 s[{U0}:{U1}]", f"{l}:",
         f"s_sub_u32 s{U0}, s{U0}, {l}-{NAME}", f"s_subb_u32 s{U1}, s{U1}, 0",
         f"s_lshr_b32 s{U2}, s2, 3", f"s_lshl_b32 s{U2}, s{U2}, 11",
         f"v_lshlrev_b32 v{vt}, 7, v0", f"v_add_u32 v{vt}, s{U2}, v{vt}", f"v_min_u32 v{vt}, L_codeend-{NAME}-4, v{vt}",
         "s_mov_b64 exec, 0xffff", f"global_load_dword v250, v{vt}, s[{U0}:{U1}]", "s_mov_b64 exec, -1", f"{sk}:"]
    return [c], 0

def phase1_dense(a):
    V = Regs(10)
    TP, TQ = 224, 256
    mp, mq = 7, 4
    Pop = OpNC(a, V, TP, 0, mp, F * 2)
    NBP, NBQ = (3, 2) if C.d1p else (2, 3)
    Qop = OpKC(a, V, TQ, NBP * Pop.bytes, mq); Qop.groups = [[0, 1, 2, 3]]
    G = Gemm(a, V, NBP, NBQ, Pop.bytes, Qop.bytes, mp, mq, (sBufD, sBufR, sTile, sTt, sCnt, sRole), False, 'P' if C.d1p else 'Q', 'd1')
    LDS1 = NBP * Pop.bytes + NBQ * Qop.bytes
    acc = V.get(4 * mp * mq, 2)
    vb = V.get(2 * mp, 2); vdum = V.get(4, 2)
    a(f"s_lshr_b32 s{sWp}, s{sWave}, 2"); a(f"s_and_b32 s{sWq}, s{sWave}, 3")
    a(f"s_mul_i32 s{T0}, s{sN}, {TP*2}")
    Pop.setup_dma(sWave, VT, T0, U0)
    Qop.lane_chunk(VT, VT + 1)
    a(f"v_lshrrev_b32 v{VT+1}, 3, v0"); a(f"v_lshl_add_u32 v{VT}, v{VT+1}, 11, v{VT}")
    for j in range(4):
        a(f"s_lshl_b32 s{T0}, s{sM}, 8"); a(f"s_lshl_b32 s{T1}, s{sWave}, 5"); a(f"s_add_u32 s{T0}, s{T0}, s{T1}")
        a(f"s_add_u32 s{T0}, s{T0}, {8*j}"); a(f"s_lshl_b32 s{T0}, s{T0}, 11"); a(f"s_sub_u32 s{T0}, s{T0}, {j*1024}")
        Qop.set_voff(j, VT, T0, bool(j & 1))
    Pop.setup_lds(sWave, sLdsP, U0)
    a(f"s_lshl_b32 s{sLdsQ}, s{sWave}, 12"); a(f"s_add_u32 s{sLdsQ}, s{sLdsQ}, {Qop.lds_off}")
    a(f"s_mul_i32 s{sKP}, s{sRot}, {64*F*2}"); a(f"s_lshl_b32 s{sKQ}, s{sRot}, 7")
    a("s_waitcnt lgkmcnt(0)")
    stamp(a, 1, st="pro")
    srd(a, SX, PTR["x"], L * D * 2); srd(a, SWS, PTR["ws"], WS_SIZE); srd(a, SDBG, PTR["dbg"], 256)
    srd(a, SA, PTR["w1"], D * F * 2)
    kadvP = [f"s_add_u32 s{sKP}, s{sKP}, {64*F*2}", f"s_cmp_eq_u32 s{sKP}, {D*F*2}", f"s_cselect_b32 s{sKP}, 0, s{sKP}"]
    kadvQ = [f"s_add_u32 s{sKQ}, s{sKQ}, 128", f"s_and_b32 s{sKQ}, s{sKQ}, 2047"]
    seg = Seg(Pop, Qop, acc, lambda b: Pop.dma(b, sKP, sTmp, sLdsP, SA, sWave), lambda b: Qop.dma(b, sKQ, sTmp, sLdsQ, [SX] * 4), kadvP, kadvQ, "d1")
    stages = [seg] * 16
    G.prologue(stages, "PQ", 0, 1)
    if C.pbar: a("s_barrier")
    if C.tlb: tlb_warm(a, 250, VT + 5, ["ws", "w2", "cre", "cim", "out", "dbg", "dsk", "b2"], SS); G.note('tlb', 1)
    stamp(a, 2, st="pro")
    a(f"s_mul_i32 s{T2}, s{sN}, {TP}"); a(f"s_mul_i32 s{T3}, s{sWp}, {mp*16}"); a(f"s_add_u32 s{T2}, s{T2}, s{T3}")
    a(f"s_lshl_b32 s{T3}, s{T2}, 1")
    a(f"v_lshrrev_b32 v{VT+2}, 4, v0"); a(f"v_lshlrev_b32 v{VT+2}, 3, v{VT+2}")
    srd(a, SS, PTR["b1"], F * 2)
    for i in range(mp):
        a(f"buffer_load_dwordx2 {vr(vb+2*i,2)}, v{VT+2}, s[{SS}:{SS+3}], s{T3} offen offset:{32*i}")
    G.note('misc', mp)
    a(f"s_mul_i32 s{T0}, s{sWp}, {mp}"); Pop.setup_read(T0, VT, U0)
    a(f"s_mul_i32 s{T0}, s{sWq}, {mq}"); Qop.setup_read(T0, VT, U0)
    stamp(a, 3, st="pro")
    G.prologue(stages, "PQ", 1)
    if C.bulk: bulk_prefetch(a, G, 252, VT + 5)
    stamp(a, 4, st="pro")
    a(f"s_waitcnt vmcnt({G.vm_allow({'misc'})})")
    for i in range(mp):
        c = acc + 4 * (i * mq)
        a(f"v_lshlrev_b32 v{c}, 16, v{vb+2*i}"); a(f"v_and_b32 v{c+1}, 0xffff0000, v{vb+2*i}")
        a(f"v_lshlrev_b32 v{c+2}, 16, v{vb+2*i+1}"); a(f"v_and_b32 v{c+3}, 0xffff0000, v{vb+2*i+1}")
        for j in range(1, mq):
            for r in range(4): a(f"v_mov_b32 v{c+4*j+r}, v{c+r}")
    stamp(a, 1)
    G.pre_first = lambda: stamp(a, 5, st="pro")
    dex = {C.initit: mb_zero_groups(VT + 2)}
    if C.midwarm: dex[C.midwarm] = warm_groups(SS, VT + 3)
    if C.codepf2: dex[C.codepf2] = code_pf_groups(VT + 3)
    G.run(stages, {C.initit + 3: (lambda: init_signal(a, VT + 4))}, dex, (lambda: stamp(a, 6, st="pro")))
    stamp(a, 2)
    stamp(a, 1, st="clk"); stamp(a, 2, real=True, st="clk")
    PITCH = 464
    stamp(a, 1, st="dense")
    init_load(a)
    vw = VT
    a(f"v_and_b32 v{vw}, 15, v0"); a(f"v_mul_u32_u24 v{vw}, {PITCH}, v{vw}")
    a(f"v_lshrrev_b32 v{VT+1}, 4, v0"); a(f"v_lshl_add_u32 v{vw}, v{VT+1}, 3, v{vw}")
    a(f"s_mul_i32 s{T0}, s{sWq}, {64*PITCH}"); a(f"s_mul_i32 s{T1}, s{sWp}, 224"); a(f"s_add_u32 s{T0}, s{T0}, s{T1}")
    a(f"v_add_u32 v{vw}, s{T0}, v{vw}")
    vr_, vg_ = VT + 1, VT + 2
    a(f"v_cmp_le_u32 vcc, 28, v0"); a("s_nop 1")
    a(f"v_cndmask_b32 v{VT+3}, 0, 1, vcc")
    a(f"v_mul_u32_u24 v{VT+4}, 28, v{VT+3}"); a(f"v_sub_u32 v{VT+4}, v0, v{VT+4}")
    a(f"v_lshlrev_b32 v{VT+4}, 4, v{VT+4}")
    a(f"v_mul_u32_u24 v{vr_}, {PITCH}, v{VT+3}"); a(f"v_add_u32 v{vr_}, v{vr_}, v{VT+4}")
    NH = C.dparts; JP = mq // NH; RW = 8 * JP
    a(f"s_mul_i32 s{T0}, s{sWq}, {64*PITCH}"); a(f"s_mul_i32 s{T1}, s{sWp}, {RW*PITCH}"); a(f"s_add_u32 s{T0}, s{T0}, s{T1}")
    a(f"v_add_u32 v{vr_}, s{T0}, v{vr_}")
    a(f"v_mul_u32_u24 v{vg_}, {RS_A2}, v{VT+3}"); a(f"v_add_u32 v{vg_}, v{vg_}, v{VT+4}")
    a(f"s_lshl_b32 s{T0}, s{sM}, 8"); a(f"s_lshl_b32 s{T1}, s{sWq}, 6"); a(f"s_add_u32 s{T0}, s{T0}, s{T1}")
    a(f"s_mul_i32 s{T1}, s{sWp}, {RW}"); a(f"s_add_u32 s{T0}, s{T0}, s{T1}")
    a(f"s_mul_i32 s{T0}, s{T0}, {RS_A2}"); a(f"s_mul_i32 s{T1}, s{sN}, 448"); a(f"s_add_u32 s{T0}, s{T0}, s{T1}")
    a(f"s_add_u32 s{T0}, s{T0}, {WS_A2 + 4096}")
    rb = G.F[0][0]
    for p in range(NH):
        js = range(p * JP, (p + 1) * JP)
        for j in js:
            for i in range(mp):
                c = acc + 4 * (i * mq + j)
                for r in range(4): a(f"v_mul_f32_e64 v{c+r}, v{c+r}, |v{c+r}|")
                a(f"v_cvt_pk_bf16_f32 v{c}, v{c}, v{c+1}"); a(f"v_cvt_pk_bf16_f32 v{c+1}, v{c+2}, v{c+3}")
                a(f"v_pk_max_i16 v{c}, v{c}, 0"); a(f"v_pk_max_i16 v{c+1}, v{c+1}, 0")
        if p == 0:
            a("s_barrier")
            stamp(a, 2, st="dense")
        for j in js:
            for i in range(mp):
                c = acc + 4 * (i * mq + j)
                a(f"ds_write_b64 v{vw}, {vr(c,2)} offset:{j*16*PITCH + 32*i}")
        a("s_waitcnt lgkmcnt(0)")
        if p == 0: stamp(a, 3, st="dense")
        a("s_barrier")
        if p == 0: stamp(a, 4, st="dense")
        a("s_mov_b32 exec_hi, 0x00ffffff")
        nst = RW // 2
        for n in range(nst):
            a(f"ds_read_b128 {vr(rb+4*n,4)}, v{vr_} offset:{(16*JP*p + 2*n)*PITCH}")
        if p: a(f"s_add_u32 s{T0}, s{T0}, {(16*JP - RW)*RS_A2}")
        for n in range(nst):
            a(f"s_waitcnt lgkmcnt({nst-1-n})")
            a(f"buffer_store_dwordx4 {vr(rb+4*n,4)}, v{vg_}, s[{SWS}:{SWS+3}], s{T0} offen{C.wt}")
            a(f"s_add_u32 s{T0}, s{T0}, {2*RS_A2}")
        a("s_mov_b64 exec, -1")
        if p < NH - 1: a("s_nop 1")
    stamp(a, 5, st="dense")
    return V.hi, max(LDS1, 4 * 64 * PITCH)

def phase1_ssm(a):
    V = Regs(10)
    mp, mq = 4, 4
    Pop = OpKC(a, V, 256, 0, mp); Pop.groups = [[0, 1, 2, 3]]
    Qop = OpKC(a, V, 128, Pop.bytes, mq); Qop.groups = [[0], [1]]; Qop.ldsoffs = [0, 8192]
    Qop.frag_off = lambda j: ((j & 1) * 4 + (j >> 1)) * 2048
    SB = Pop.bytes + Qop.bytes; NB = 3
    G = Gemm(a, V, NB, NB, Pop.bytes, Qop.bytes, mp, mq, (sBufD, sBufR, None, None, sCnt, sRole), True, 'P', 's1')
    acc = V.get(64, 2); prm = V.get(12, 4); big = V.get(72, 4)
    AG = NB * SB
    a(f"s_lshr_b32 s{sWp}, s{sWave}, 1"); a(f"s_and_b32 s{sWq}, s{sWave}, 1")
    Pop.lane_chunk(VT, VT + 1)
    a(f"v_lshrrev_b32 v{VT+1}, 5, v0"); a(f"v_lshlrev_b32 v{VT+1}, 4, v{VT+1}")
    a(f"v_bfe_u32 v{VT+2}, v0, 3, 2"); a(f"v_add_u32 v{VT+1}, v{VT+1}, v{VT+2}")
    a(f"v_lshl_add_u32 v{VT+3}, v{VT+1}, 11, v{VT}")
    for j in range(4):
        a(f"s_lshl_b32 s{T0}, s{sWave}, 1");
        if j >> 1: a(f"s_add_u32 s{T0}, s{T0}, 1")
        a(f"s_and_b32 s{T0}, s{T0}, 3"); a(f"s_lshl_b32 s{T0}, s{T0}, 2")
        a(f"s_lshl_b32 s{T1}, s{sWp}, 6"); a(f"s_add_u32 s{T0}, s{T0}, s{T1}")
        a(f"s_lshl_b32 s{T1}, s{sM}, 8"); a(f"s_add_u32 s{T0}, s{T0}, s{T1}")
        if j & 1: a(f"s_add_u32 s{T0}, s{T0}, 32")
        a(f"s_lshl_b32 s{T0}, s{T0}, 11")
        if j: a(f"s_sub_u32 s{T0}, s{T0}, {j*1024}")
        Pop.set_voff(j, VT + 3, T0, bool(j & 1))
    a(f"v_lshrrev_b32 v{VT+1}, 3, v0"); a(f"v_lshl_add_u32 v{VT+3}, v{VT+1}, 12, v{VT}")
    a(f"s_lshr_b32 s{T0}, s{sWave}, 2"); a(f"s_lshl_b32 s{T0}, s{T0}, 5")
    a(f"s_and_b32 s{T1}, s{sWave}, 1"); a(f"s_lshl_b32 s{T2}, s{T1}, 6"); a(f"s_lshl_b32 s{T1}, s{T1}, 4"); a(f"s_add_u32 s{T0}, s{T0}, s{T1}")
    a(f"s_bfe_u32 s{T1}, s{sWave}, 0x10001"); a(f"s_add_u32 s{T0}, s{T0}, s{T1}")
    a(f"s_lshl_b32 s{T1}, s{sN}, 6"); a(f"s_add_u32 s{T0}, s{T0}, s{T1}"); a(f"s_lshl_b32 s{T0}, s{T0}, 11")
    Qop.set_voff(0, VT + 3, T0, T2)
    a(f"v_mov_b32 v{Qop.vd+1}, v{Qop.vd}")
    a(f"s_lshl_b32 s{sLdsP}, s{sWave}, 12")
    a(f"s_lshl_b32 s{sLdsQ}, s{sWave}, 10"); a(f"s_add_u32 s{sLdsQ}, s{sLdsQ}, {Qop.lds_off}")
    a(f"s_lshl_b32 s{sKQ}, s{sRot}, 7")
    a("s_waitcnt lgkmcnt(0)")
    srd(a, SX, PTR["x"], L * D * 2); srd(a, SWS, PTR["ws"], WS_SIZE); srd(a, SDBG, PTR["dbg"], 256)
    srd(a, SA, PTR["bre"], P_ * D * 2); srd(a, SB_, PTR["bim"], P_ * D * 2)
    pt = [big, big + 8, big + 16]
    kadv = [f"s_add_u32 s{sKQ}, s{sKQ}, 128", f"s_and_b32 s{sKQ}, s{sKQ}, 2047"]
    kadvP = [f"s_add_u32 s{sKP}, s{sKP}, 128", f"s_and_b32 s{sKP}, s{sKP}, 2047"]
    a(f"s_mov_b32 s{sKP}, s{sKQ}")
    seg = Seg(Pop, Qop, acc, lambda b: Pop.dma(b, sKP, sTmp, sLdsP, [SX] * 4), lambda b: Qop.dma(b, sKQ, sTmp, sLdsQ, [SA, SB_]), kadvP, kadv, "s1")
    if C.prefetch:
        SP1, SP2, sPF1, sPF2 = SS, 72, sLdsP2, sKP2
        a(f"s_lshl_b32 s{T0}, s{sM}, 4"); a(f"s_add_u32 s{T0}, s{T0}, s{sN}")
        a(f"s_mul_i32 s{sPF2}, s{T0}, {56*1024}"); a(f"s_mul_i32 s{T1}, s{sWave}, {7*1024}"); a(f"s_add_u32 s{sPF2}, s{sPF2}, s{T1}")
        a(f"s_mov_b32 s{SP2}, s{PTR['w2']}"); a(f"s_mov_b32 s{SP2+1}, s{PTR['w2']+1}")
        a(f"s_add_u32 s{SP2+2}, s{sPF2}, {7*1024}"); a(f"s_mov_b32 s{SP2+3}, 0x20000")
        a(f"s_lshr_b32 s{T1}, s{T0}, 6"); a(f"s_cmp_eq_u32 s{T1}, 0")
        a(f"s_cselect_b32 s{SP1}, s{PTR['cre']}, s{PTR['cim']}"); a(f"s_cselect_b32 s{SP1+1}, s{PTR['cre']+1}, s{PTR['cim']+1}")
        a(f"s_and_b32 s{sPF1}, s{T0}, 63"); a(f"s_lshl_b32 s{sPF1}, s{sPF1}, 15"); a(f"s_lshl_b32 s{T1}, s{sWave}, 12"); a(f"s_add_u32 s{sPF1}, s{sPF1}, s{T1}")
        a(f"s_add_u32 s{SP1+2}, s{sPF1}, 4096"); a(f"s_mov_b32 s{SP1+3}, 0x20000")
        vpf = V.get(1); vpd = V.get(4, 2)
        a(f"v_lshlrev_b32 v{vpf}, 4, v0")
        pf = []
        for i in range(4): pf.append([f"buffer_load_dwordx4 {vr(vpd,4)}, v{vpf}, s[{SP1}:{SP1+3}], s{sPF1} offen offset:{i*1024}"])
        if not C.w2it:
            for i in range(7):
                pf.append([f"buffer_load_dwordx4 {vr(vpd,4)}, v{vpf}, s[{SP2}:{SP2+3}], s{sPF2} offen offset:{(i%4)*1024}"] + ([f"s_add_u32 s{sPF2}, s{sPF2}, 4096"] if i == 3 else []))
        p1extras = {C.pfit: (pf, len(pf))}
    else:
        p1extras = {}
    stages = [seg] * 16
    G.prologue(stages, "PQ", 0, 1)
    a(f"s_mul_i32 s{T0}, s{sWp}, {mp}"); Pop.setup_read(T0, VT, U0)
    a(f"s_lshl_b32 s{T0}, s{sWq}, 1"); Qop.setup_read(T0, VT, U0)
    G.zero_first = True
    if C.pbar: a("s_barrier")
    if C.tlb: tlb_warm(a, 250, VT + 5, ["ws", "w2", "cre", "cim", "out", "dbg", "dsk", "b2", "lre", "lim", "ldt", "gw"], 60); G.note('tlb', 1)
    G.prologue(stages, "PQ", 1)
    if C.bulk: bulk_prefetch(a, G, 252, VT + 5)
    SPRM = 60
    def prm_loads():
        out = []
        class Cap:
            def __call__(self, x): out.append([x])
        c = Cap()
        c(f"s_lshl_b32 s{T2}, s{sN}, 6"); c(f"s_lshl_b32 s{T3}, s{sWq}, 5"); c(f"s_add_u32 s{T3}, s{T3}, s{T2}")
        c(f"v_and_b32 v{VT}, 15, v0"); c(f"v_lshlrev_b32 v{VT}, 1, v{VT}"); c(f"v_add_u32 v{VT}, s{T3}, v{VT}")
        c(f"v_lshlrev_b32 v{pt[0]}, 1, v{VT}"); c(f"v_add_u32 v{pt[1]}, 2, v{pt[0]}")
        c(f"v_add_u32 v{pt[2]}, s{T2}, v0"); c(f"v_lshlrev_b32 v{pt[2]}, 1, v{pt[2]}")
        c(f"s_mov_b32 s{SPRM+2}, 2048"); c(f"s_mov_b32 s{SPRM+3}, 0x20000")
        for k, name in enumerate(("lre", "lim", "ldt")):
            out.append([f"s_mov_b32 s{SPRM}, s{PTR[name]}", f"s_mov_b32 s{SPRM+1}, s{PTR[name]+1}"] +
                       [f"buffer_load_ushort v{pt[q]+1+k}, v{pt[q]}, s[{SPRM}:{SPRM+3}], 0 offen" for q in range(3)])
        return out
    def prm_math():
        out = []
        class Cap:
            def __call__(self, x): out.append(x)
        c = Cap()
        ssm_params_compute(c, prm, pt[0]); ssm_params_compute(c, prm + 4, pt[1]); ssm_params_compute(c, prm + 8, pt[2], False)
        return [out[i:i + 4] for i in range(0, len(out), 4)]
    p1extras[3] = (prm_loads(), 9)
    p1extras[7] = (prm_math(), 0)
    stamp(a, 1)
    p1extras[C.initit] = mb_zero_groups(VT + 2, True)
    if C.midwarm: p1extras[C.midwarm] = warm_groups(60, VT + 3)
    if C.codepf2: p1extras[C.codepf2] = code_pf_groups(VT + 3)
    G.run(stages, {C.initit + 3: (lambda: init_signal(a, VT + 4))}, p1extras)
    stamp(a, 2)
    stamp(a, 1, st="clk"); stamp(a, 2, real=True, st="clk")
    stamp(a, 1, st="ssm")
    init_load(a)
    a("s_nop 7")
    def U(jc, ri, s): return acc + 4 * ((s >> 2) * 4 + 2 * jc + ri) + (s & 3)
    ag = big; tt = big + 4
    def scan_step(s):
        for jc in range(2):
            hr, hi_ = ag + 2 * jc, ag + 2 * jc + 1; lr = prm + 4 * jc; t0, t1 = tt + 2 * jc, tt + 2 * jc + 1
            a(f"v_fma_f32 v{t0}, v{lr}, v{hr}, v{U(jc,0,s)}"); a(f"v_fma_f32 v{t1}, v{lr}, v{hi_}, v{U(jc,1,s)}")
        for jc in range(2):
            hr, hi_ = ag + 2 * jc, ag + 2 * jc + 1; li = prm + 4 * jc + 1; t0, t1 = tt + 2 * jc, tt + 2 * jc + 1
            a(f"v_fma_f32 v{hi_}, v{li}, -v{hi_}, v{t0}")
            a(f"v_fma_f32 v{t1}, v{li}, v{hr}, v{t1}")
        for jc in range(2):
            hr, hi_ = ag + 2 * jc, ag + 2 * jc + 1; t1 = tt + 2 * jc + 1
            a(f"v_mov_b32 v{hr}, v{hi_}"); a(f"v_mov_b32 v{hi_}, v{t1}")
    for jc in range(2):
        a(f"v_mov_b32 v{ag+2*jc}, v{U(jc,0,0)}"); a(f"v_mov_b32 v{ag+2*jc+1}, v{U(jc,1,0)}")
    def scan2(s, src, dst):
        for jc in range(2):
            hr, hi_ = src + 2 * jc, src + 2 * jc + 1; lr = prm + 4 * jc; dr, di = dst + 2 * jc, dst + 2 * jc + 1
            a(f"v_fma_f32 v{dr}, v{lr}, v{hr}, v{U(jc,0,s)}"); a(f"v_fma_f32 v{di}, v{lr}, v{hi_}, v{U(jc,1,s)}")
        for jc in range(2):
            hr, hi_ = src + 2 * jc, src + 2 * jc + 1; li = prm + 4 * jc + 1; dr, di = dst + 2 * jc, dst + 2 * jc + 1
            a(f"v_fma_f32 v{dr}, -v{li}, v{hi_}, v{dr}"); a(f"v_fma_f32 v{di}, v{li}, v{hr}, v{di}")
    st = [ag, tt]
    for s in range(1, 16): scan2(s, st[(s - 1) & 1], st[s & 1])
    fin = st[15 & 1]
    vag = big + 8
    def calc_vag():
        a(f"v_lshrrev_b32 v{vag}, 4, v0"); a(f"s_lshl_b32 s{T0}, s{sWp}, 2"); a(f"v_add_u32 v{vag}, s{T0}, v{vag}")
        a(f"v_lshlrev_b32 v{vag}, 9, v{vag}")
        a(f"v_and_b32 v{big+9}, 15, v0"); a(f"v_lshlrev_b32 v{big+9}, 4, v{big+9}")
        a(f"s_lshl_b32 s{T0}, s{sWq}, 8"); a(f"s_add_u32 s{T0}, s{T0}, {AG}")
        a(f"v_add3_u32 v{vag}, v{vag}, v{big+9}, s{T0}")
    calc_vag()
    a(f"ds_write_b128 v{vag}, {vr(fin,4)}")
    a("s_waitcnt lgkmcnt(0)")
    a("s_barrier")
    stamp(a, 2, st="ssm")
    a(f"s_cmp_lg_u32 s{sWave}, 0")
    a("s_cbranch_scc1 L_s_gate")
    lr, li = prm + 8, prm + 9
    l16r, l16i, l256r, l256i = big + 10, big + 11, big + 12, big + 13
    er, ei = big + 14, big + 15
    w0 = big + 4
    A = big + 16; vl = big + 9
    a(f"v_lshlrev_b32 v{vl}, 3, v0"); a(f"v_add_u32 v{vl}, {AG}, v{vl}")
    for s in range(16): a(f"ds_read_b64 {vr(A+2*s,2)}, v{vl} offset:{s*512}")
    csq(a, l16r, l16i, lr, li, w0)
    for _ in range(3): csq(a, l16r, l16i, l16r, l16i, w0)
    csq(a, l256r, l256i, l16r, l16i, w0)
    for _ in range(3): csq(a, l256r, l256i, l256r, l256i, w0)
    a("s_waitcnt lgkmcnt(0)")
    x0, x1 = big + 6, big + 7
    for s in range(1, 16):
        pr, pi, cr_, ci_ = A + 2 * (s - 1), A + 2 * (s - 1) + 1, A + 2 * s, A + 2 * s + 1
        a(f"v_fma_f32 v{cr_}, v{l16r}, v{pr}, v{cr_}"); a(f"v_fma_f32 v{ci_}, v{l16r}, v{pi}, v{ci_}")
        a(f"v_fma_f32 v{cr_}, -v{l16i}, v{pi}, v{cr_}"); a(f"v_fma_f32 v{ci_}, v{l16i}, v{pr}, v{ci_}")
    er, ei = A + 30, A + 31
    vo = big + 8
    a(f"s_lshl_b32 s{T0}, s{sN}, 6"); a(f"v_add_u32 v{vo}, s{T0}, v0"); a(f"v_lshlrev_b32 v{vo}, 3, v{vo}")
    a(f"s_lshl_b32 s{T1}, s{sM}, 13"); a(f"s_add_u32 s{T1}, s{T1}, {WS_AGG}")
    a("s_waitcnt vmcnt(0)")
    init_check(a, big + 52)
    a(f"s_lshl_b32 s{T1}, s{sM}, 13"); a(f"s_add_u32 s{T1}, s{T1}, {WS_AGG}")
    a(f"buffer_store_dwordx2 {vr(er,2)}, v{vo}, s[{SWS}:{SWS+3}], s{T1} offen sc1")
    stamp(a, 3, st="ssm")
    cr, ci = big + 48, big + 49
    a(f"v_mov_b32 v{cr}, 0"); a(f"v_mov_b32 v{ci}, 0")
    a(f"s_cmp_eq_u32 s{sM}, 0"); a("s_cbranch_scc1 L_s_nolb")
    B = big + 50
    a(f"s_mov_b32 s{U2}, {C.spin}")
    a.label("L_s_lb")
    for j in range(7):
        if j: a(f"s_cmp_le_u32 s{sM}, {j}"); a("s_cbranch_scc1 L_s_lbw")
        a(f"s_mov_b32 s{T1}, {WS_AGG + j*8192}")
        a(f"buffer_load_dwordx2 {vr(B+2*j,2)}, v{vo}, s[{SWS}:{SWS+3}], s{T1} offen sc1")
    a.label("L_s_lbw")
    a("s_waitcnt vmcnt(0)")
    a(f"s_mov_b64 s[{U0}:{U1}], 0")
    for j in range(7):
        if j: a(f"s_cmp_le_u32 s{sM}, {j}"); a("s_cbranch_scc1 L_s_lbc")
        a(f"v_cmp_eq_u32 vcc, -1, v{B+2*j}"); a("s_nop 0"); a(f"s_or_b64 s[{U0}:{U1}], s[{U0}:{U1}], vcc")
        a(f"v_cmp_eq_u32 vcc, -1, v{B+2*j+1}"); a("s_nop 0"); a(f"s_or_b64 s[{U0}:{U1}], s[{U0}:{U1}], vcc")
    a.label("L_s_lbc")
    a(f"s_cmp_eq_u64 s[{U0}:{U1}], 0"); a("s_cbranch_scc1 L_s_lbok")
    a(f"s_sub_u32 s{U2}, s{U2}, 1"); a(f"s_cmp_eq_u32 s{U2}, 0"); a("s_cbranch_scc1 L_s_lbok")
    a(f"s_sleep {C.sleep}"); a("s_branch L_s_lb")
    a.label("L_s_lbok")
    for j in range(7):
        a(f"s_cmp_le_u32 s{sM}, {j}"); a("s_cbranch_scc1 L_s_nolb")
        a(f"v_fma_f32 v{x0}, v{l256r}, v{cr}, v{B+2*j}"); a(f"v_fma_f32 v{x1}, v{l256r}, v{ci}, v{B+2*j+1}")
        a(f"v_fma_f32 v{x0}, -v{l256i}, v{ci}, v{x0}"); a(f"v_fma_f32 v{ci}, v{l256i}, v{cr}, v{x1}")
        a(f"v_mov_b32 v{cr}, v{x0}")
    a.label("L_s_nolb")
    stamp(a, 4, st="ssm")
    a(f"ds_write_b64 v{vl}, {vr(cr,2)}")
    for s in range(1, 16):
        a(f"v_mul_f32 v{x0}, v{l16r}, v{cr}"); a(f"v_mul_f32 v{x1}, v{l16r}, v{ci}")
        a(f"v_fma_f32 v{x0}, -v{l16i}, v{ci}, v{x0}"); a(f"v_fma_f32 v{ci}, v{l16i}, v{cr}, v{x1}")
        a(f"v_mov_b32 v{cr}, v{x0}")
        a(f"v_add_f32 v{A+2*(s-1)}, v{A+2*(s-1)}, v{cr}"); a(f"v_add_f32 v{A+2*(s-1)+1}, v{A+2*(s-1)+1}, v{ci}")
        a(f"ds_write_b64 v{vl}, {vr(A+2*(s-1),2)} offset:{s*512}")
    a("s_waitcnt lgkmcnt(0)")
    a("s_branch L_s_wait")
    a.label("L_s_gate")
    gxs = [big + 16, big + 24, big + 32]; gws = big + 40; gt = big + 48
    a(f"s_lshl_b32 s{T0}, s{sM}, 8"); a(f"s_lshl_b32 s{T1}, s{sN}, 4"); a(f"s_add_u32 s{T0}, s{T0}, s{T1}")
    a(f"s_add_u32 s{T0}, s{T0}, s{sWave}"); a(f"s_sub_u32 s{T0}, s{T0}, 1")
    a(f"s_add_u32 s{T1}, s{T0}, 7"); a(f"s_add_u32 s{T2}, s{T0}, 14")
    a(f"v_lshlrev_b32 v{gt}, 5, v0")
    srd(a, SS, PTR["gw"], 2048)
    a(f"buffer_load_dwordx4 {vr(gws,4)}, v{gt}, s[{SS}:{SS+3}], 0 offen"); a(f"buffer_load_dwordx4 {vr(gws+4,4)}, v{gt}, s[{SS}:{SS+3}], 0 offen offset:16")
    gate_row_loads(a, T0, gxs[0], gt); gate_row_loads(a, T1, gxs[1], gt)
    a(f"s_cmp_gt_u32 s{sWave}, 2"); a("s_cbranch_scc1 L_s_g2")
    gate_row_loads(a, T2, gxs[2], gt)
    a("s_waitcnt vmcnt(0)")
    gate_compute(a, T2, gxs[2], gws, gt + 1)
    a.label("L_s_g2")
    a("s_waitcnt vmcnt(0)")
    gate_compute(a, T0, gxs[0], gws, gt + 1); gate_compute(a, T1, gxs[1], gws, gt + 1)
    a.label("L_s_wait")
    a("s_barrier")
    calc_vag()
    a(f"ds_read_b128 {vr(ag,4)}, v{vag}")
    PITCH = 272
    vw = big + 9
    a(f"v_lshrrev_b32 v{vw}, 4, v0"); a(f"v_lshlrev_b32 v{vw}, 4, v{vw}"); a(f"s_lshl_b32 s{T0}, s{sWp}, 6"); a(f"v_add_u32 v{vw}, s{T0}, v{vw}")
    a(f"v_mul_u32_u24 v{vw}, {PITCH}, v{vw}")
    a(f"v_and_b32 v{big+10}, 15, v0"); a(f"v_lshl_add_u32 v{vw}, v{big+10}, 2, v{vw}")
    a(f"s_lshl_b32 s{T0}, s{sWq}, 6"); a(f"v_add_u32 v{vw}, s{T0}, v{vw}")
    vr_, vg_ = big + 10, big + 11
    a(f"v_lshrrev_b32 v{vr_}, 4, v0"); a(f"s_lshl_b32 s{T0}, s{sWave}, 5"); a(f"v_add_u32 v{vr_}, s{T0}, v{vr_}")
    a(f"s_lshl_b32 s{T1}, s{sM}, 8"); a(f"v_add_u32 v{vg_}, s{T1}, v{vr_}"); a(f"v_mul_u32_u24 v{vg_}, {RS_A2}, v{vg_}")
    a(f"v_mul_u32_u24 v{vr_}, {PITCH}, v{vr_}")
    a(f"v_and_b32 v{big+24}, 15, v0"); a(f"v_lshl_add_u32 v{vr_}, v{big+24}, 4, v{vr_}")
    a(f"v_and_b32 v{big+24}, 7, v0"); a(f"v_lshl_add_u32 v{vg_}, v{big+24}, 4, v{vg_}")
    a(f"v_bfe_u32 v{big+24}, v0, 3, 1"); a(f"v_lshl_add_u32 v{vg_}, v{big+24}, 11, v{vg_}")
    a(f"s_lshl_b32 s{T0}, s{sN}, 7"); a(f"s_add_u32 s{T0}, s{T0}, {WS_A2}")
    a("s_waitcnt lgkmcnt(0)")
    ore, oim, od = big + 12, big + 14, big + 16
    rb = big + 28
    st = [ag, tt]
    NPT = C.sparts; SP_ = 16 // NPT
    for s in range(16):
        scan2(s, st[s & 1], st[(s + 1) & 1])
        h = st[(s + 1) & 1]
        for jc in range(2):
            hr, hi_ = h + 2 * jc, h + 2 * jc + 1; kr, ki = prm + 4 * jc + 2, prm + 4 * jc + 3
            a(f"v_mul_f32 v{ore+jc}, v{kr}, v{hr}"); a(f"v_mul_f32 v{oim+jc}, -v{kr}, v{hi_}")
        for jc in range(2):
            hr, hi_ = h + 2 * jc, h + 2 * jc + 1; kr, ki = prm + 4 * jc + 2, prm + 4 * jc + 3
            a(f"v_fma_f32 v{ore+jc}, -v{ki}, v{hi_}, v{ore+jc}"); a(f"v_fma_f32 v{oim+jc}, -v{ki}, v{hr}, v{oim+jc}")
        d = od + 2 * (s % 4)
        a(f"v_cvt_pk_bf16_f32 v{d}, v{ore}, v{ore+1}"); a(f"v_cvt_pk_bf16_f32 v{d+1}, v{oim}, v{oim+1}")
        a(f"ds_write_b32 v{vw}, v{d} offset:{s*PITCH}"); a(f"ds_write_b32 v{vw}, v{d+1} offset:{s*PITCH+128}")
        if (s + 1) % SP_ == 0:
            p = s // SP_
            if p == NPT - 1: stamp(a, 5, st="ssm")
            ns_ = [n for n in range(8) if SP_ * p <= (4 * n) % 16 < SP_ * (p + 1)]
            a("s_waitcnt lgkmcnt(0)")
            a("s_barrier")
            for k, n in enumerate(ns_): a(f"ds_read_b128 {vr(rb+4*k,4)}, v{vr_} offset:{4*n*PITCH}")
            for k, n in enumerate(ns_):
                a(f"s_waitcnt lgkmcnt({len(ns_)-1-k})")
                a(f"s_add_u32 s{T1}, s{T0}, {4*n*RS_A2}")
                a(f"buffer_store_dwordx4 {vr(rb+4*k,4)}, v{vg_}, s[{SWS}:{SWS+3}], s{T1} offen{C.wt}")
    stamp(a, 6, st="ssm")
    return V.hi, AG + 8192

def phase2(a, role):
    R = "A" if role == 0 else "B"
    SW2, SE = 24, 72
    NS = C.ns
    TQ = 128 if NS == 2 else 256
    TP, mp, mq, NB = 128, 4, NS, (4 if NS == 2 else 3)
    LG = 1 if NS == 2 else 2
    XS = 8 // NS
    sG, sKQ2 = 0, 3
    V = Regs(10)
    P1 = OpKC(a, V, TP, 0, mp); P1.groups = [[0, 1]]
    P2 = OpNC(a, V, TP, 0, mp, D * 2)
    Qop = OpKC(a, V, TQ, TP * 128, mq, flags=C.a2ld); Qop.groups = [list(range(Qop.n))]
    SB = TP * 128 + Qop.bytes
    G = Gemm(a, V, NB, NB, TP * 128, Qop.bytes, mp, mq, (sBufD, sBufR, None, None, sCnt, sRole), True, 'P' if NS == 2 else 'Q', 'p2')
    nf = mp * mq
    accD = V.get(4 * nf, 2)
    accS = V.get(4 * nf, 2)
    vg = V.get(2 * mq, 2); vep = V.get(4)
    vex = V.get(6 * mp, 2) if NS == 2 else G.F[0][0] + (32 if C.xbf16 else 0)
    if NS != 2 and not C.xbf16: vex = accS
    dense = 1 if role == 1 else 0
    a(f"s_and_b32 s{T0}, s2, 7"); a(f"s_lshr_b32 s{T1}, s2, 3")
    a(f"s_lshr_b32 s{sG}, s{T0}, {3-LG}")
    a(f"s_and_b32 s{T2}, s{T0}, {XS-1}"); a(f"s_lshl_b32 s{sTt}, s{T2}, 2"); a(f"s_bfe_u32 s{T2}, s{T1}, 0x20002"); a(f"s_add_u32 s{sTt}, s{sTt}, s{T2}")
    a(f"s_and_b32 s{T2}, s{sG}, 1")
    if dense: a(f"s_xor_b32 s{T2}, s{T2}, 1")
    a(f"s_lshl_b32 s{sDt}, s{T2}, 2"); a(f"s_and_b32 s{T2}, s{T1}, 3"); a(f"s_add_u32 s{sDt}, s{sDt}, s{T2}")
    a(f"s_lshl_b32 s{sTile}, s{sTt}, 3"); a(f"s_add_u32 s{sTile}, s{sTile}, s{sDt}")
    a(f"s_lshr_b32 s{sWp}, s{sWave}, 2"); a(f"s_and_b32 s{sWq}, s{sWave}, 3")
    srd(a, SW2, PTR["w2"], F * D * 2)
    a(f"s_lshr_b32 s{T0}, s{sG}, {LG-1}"); a(f"s_cmp_eq_u32 s{T0}, 0")
    a(f"s_cselect_b32 s{SA}, s{PTR['cre']}, s{PTR['cim']}"); a(f"s_cselect_b32 s{SA+1}, s{PTR['cre']+1}, s{PTR['cim']+1}")
    a(f"s_mov_b32 s{SA+2}, {D*P_*2}"); a(f"s_mov_b32 s{SA+3}, 0x20000")
    Qop.lane_chunk(VT, VT + 1)
    a(f"v_lshrrev_b32 v{VT+1}, 3, v0"); a(f"v_lshl_add_u32 v{VT+3}, v{VT+1}, 11, v{VT}")
    for j in range(2):
        a(f"s_lshl_b32 s{T0}, s{sDt}, 7"); a(f"s_lshl_b32 s{T1}, s{sWave}, 4"); a(f"s_add_u32 s{T0}, s{T0}, s{T1}")
        if j: a(f"s_add_u32 s{T0}, s{T0}, 8")
        a(f"s_lshl_b32 s{T0}, s{T0}, 11")
        if j: a(f"s_sub_u32 s{T0}, s{T0}, 1024")
        P1.set_voff(j, VT + 3, T0, bool(j & 1))
    a(f"s_lshl_b32 s{sLdsP}, s{sWave}, 11")
    a(f"s_lshl_b32 s{T0}, s{sDt}, 8")
    P2.setup_dma(sWave, VT + 4, T0, U0)
    P2.setup_lds(sWave, sLdsP2, U0)
    a(f"v_lshrrev_b32 v{VT+1}, 3, v0"); a(f"v_mul_u32_u24 v{VT+1}, {RS_A2}, v{VT+1}"); a(f"v_add_u32 v{VT+3}, v{VT+1}, v{VT}")
    for j in range(Qop.n):
        a(f"s_mul_i32 s{T0}, s{sWave}, {TQ//8}")
        if j: a(f"s_add_u32 s{T0}, s{T0}, {8*j}")
        a(f"s_lshr_b32 s{T1}, s{T0}, 4"); a(f"s_add_u32 s{T1}, s{T1}, s{sG}"); a(f"s_and_b32 s{T1}, s{T1}, {NS-1}"); a(f"s_lshl_b32 s{T1}, s{T1}, 4")
        a(f"s_andn2_b32 s{T0}, s{T0}, {(NS-1) << 4}"); a(f"s_or_b32 s{T0}, s{T0}, s{T1}")
        a(f"s_mul_i32 s{T1}, s{sTt}, {TQ}"); a(f"s_add_u32 s{T0}, s{T0}, s{T1}"); a(f"s_mul_i32 s{T0}, s{T0}, {RS_A2}")
        if j: a(f"s_sub_u32 s{T0}, s{T0}, {1024*j}")
        Qop.set_voff(j, VT + 3, T0, bool(j & 1))
    a(f"s_mul_i32 s{sLdsQ}, s{sWave}, {Qop.n*1024}"); a(f"s_add_u32 s{sLdsQ}, s{sLdsQ}, {Qop.lds_off}")
    K2 = C.k2 if NS == 4 else 0
    nS = 32 // NS; base = (56 - K2) // NS
    assert base * NS == 56 - K2
    nD = base + (C.delta if role == 0 else -C.delta)
    colsS = 2048 // NS
    a(f"s_mul_i32 s{sKQ}, s{sG}, {colsS*2}"); a(f"s_and_b32 s{sKP}, s{sKQ}, 2047")
    if WS_A2: a(f"s_add_u32 s{sKQ}, s{sKQ}, {WS_A2}")
    a(f"s_lshr_b32 s{T0}, s{sG}, 1"); a(f"s_mul_i32 s{T0}, s{T0}, {2*base}")
    a(f"s_and_b32 s{T1}, s{sG}, 1"); a(f"s_mul_i32 s{T1}, s{T1}, {2*base - nD}"); a(f"s_add_u32 s{T0}, s{T0}, s{T1}")
    a(f"s_mul_i32 s{sKP2}, s{T0}, {64*D*2}"); a(f"s_lshl_b32 s{sKQ2}, s{T0}, 7"); a(f"s_add_u32 s{sKQ2}, s{sKQ2}, {WS_A2 + 4096}")
    a(f"s_mul_i32 s{T0}, s{sWp}, {mp}")
    P1.setup_read(T0, VT, U0); P2.setup_read(T0, VT, U0)
    a(f"s_mul_i32 s{T0}, s{sWq}, {mq}"); Qop.setup_read(T0, VT, U0)
    qd = lambda b: Qop.dma(b, sKQ, sTmp, sLdsQ, [SWS] * Qop.n)
    qd2 = lambda b: Qop.dma(b, sKQ2, sTmp, sLdsQ, [SWS] * Qop.n)
    segD = Seg(P2, Qop, accD, lambda b: P2.dma(b, sKP2, sTmp, sLdsP2, SW2), qd2, [f"s_add_u32 s{sKP2}, s{sKP2}, {64*D*2}"], [f"s_add_u32 s{sKQ2}, s{sKQ2}, 128"], "d")
    segS = Seg(P1, Qop, accS, lambda b: P1.dma(b, sKP, sTmp, sLdsP, [SA] * 2), qd, [f"s_add_u32 s{sKP}, s{sKP}, 128"], [f"s_add_u32 s{sKQ}, s{sKQ}, 128"], "s")
    stages = [segS] * nS + [segD] * nD
    N = len(stages)
    a("s_barrier")
    G.prologue(stages, "P")
    nP0 = 2 * G.leadP
    G.zero_first = True
    post_first = None
    fine = C.fine and NS == 4
    sMS = 49
    def chk_need(need):
        def chk(ok):
            if NS == 2:
                a(f"s_add_u32 s{U0}, s{U0}, s{U1}"); a(f"s_cmp_eq_u32 s{U0}, 16"); a(f"s_cbranch_scc1 {ok}")
            else:
                a(f"s_bitcmp1_b32 s{sG}, 0"); a(f"s_cselect_b32 s{sMS}, s{U1}, s{U0}")
                if fine:
                    a(f"s_and_b32 s{U0}, s{sMS}, {need}"); a(f"s_cmp_eq_u32 s{U0}, {need}"); a(f"s_cbranch_scc1 {ok}")
                else:
                    a(f"s_cmp_eq_u32 s{sMS}, 8"); a(f"s_cbranch_scc1 {ok}")
        return chk
    nfirst = G.leadQ + (1 if G.early == 'Q' else 0)
    chkS = chk_need((1 << nfirst) - 1)
    PW = 1
    if role == 0:
        a(f"s_waitcnt vmcnt({nP0})")
        a("s_barrier")
        stamp(a, 3)
        a(f"s_cmp_eq_u32 s{sWave}, {PW}"); a(f"s_cbranch_scc1 L_p2{R}_pl")
        a(f"s_cmp_lg_u32 s{sWave}, 0"); a(f"s_cbranch_scc1 L_p2{R}_dep")
        signal_cnt(a, "S", VT)
        a(f"s_branch L_p2{R}_dep")
        a.label(f"L_p2{R}_pl")
        poll_own(a, chkS, VT)
    elif C.dearly:
        a(f"s_waitcnt vmcnt({nP0})")
        a("s_barrier")
        stamp(a, 3)
        stamp(a, 6, st="dense")
        a(f"s_cmp_eq_u32 s{sWave}, {PW}"); a(f"s_cbranch_scc1 L_p2{R}_pl")
        a(f"s_cmp_lg_u32 s{sWave}, 0"); a(f"s_cbranch_scc1 L_p2{R}_dep")
        init_check(a, VT)
        signal_cnt(a, 2, VT)
        a(f"s_branch L_p2{R}_dep")
        a.label(f"L_p2{R}_pl")
        poll_own(a, chkS, VT)
    else:
        stamp(a, 3)
        stamp(a, 6, st="dense")
        a(f"s_cmp_lg_u32 s{sWave}, {PW}"); a(f"s_cbranch_scc1 L_p2{R}_dep")
        poll_own(a, chkS, VT)
        def post_first():
            sk = newlabel("pf")
            a(f"s_cmp_lg_u32 s{sWave}, 0"); a(f"s_cbranch_scc1 {sk}")
            init_check(a, VT)
            signal_cnt(a, 2, VT)
            a.label(sk)
    a.label(f"L_p2{R}_dep")
    a("s_barrier")
    G.prologue(stages, "Q")
    hooks = {}
    if fine:
        def mk(bit):
            def h():
                sk = newlabel("hs")
                a(f"s_cmp_lg_u32 s{sWave}, {PW}"); a(f"s_cbranch_scc1 {sk}")
                a(f"s_bitcmp1_b32 s{sMS}, {bit}"); a(f"s_cbranch_scc1 {sk}")
                poll_own(a, chk_need(1 << bit), VT)
                a.label(sk)
            return h
        for bit in range(nfirst, nS): hooks[bit - nfirst] = mk(bit)
    full = (0xff + 0xff + 16) if fine else 32
    def hookD():
        sk = newlabel("hk")
        stamp(a, 2, st="p2")
        a(f"s_cmp_lg_u32 s{sWave}, {PW}"); a(f"s_cbranch_scc1 {sk}")
        def chk(ok):
            a(f"s_add_u32 s{U0}, s{U0}, s{U1}"); a(f"s_add_u32 s{U0}, s{U0}, s{U3}"); a(f"s_cmp_eq_u32 s{U0}, {full}"); a(f"s_cbranch_scc1 {ok}")
        poll_own(a, chk, VT)
        a.label(sk)
        stamp(a, 3, st="p2")
    hd = nS - G.leadQ - (1 if G.early == 'Q' else 0)
    assert hd not in hooks
    hooks[hd] = hookD
    sXD = 44
    vt_own, vxo, vd2, vl16 = vep, vep + 1, vep + 2, vep + 3
    vx_, vds, vb2 = vex, vex + 2 * mp, vex + 4 * mp
    ex = []
    ex.append([f"s_mul_i32 s{T0}, s{sTt}, {TQ}", f"s_mul_i32 s{T1}, s{sWq}, {16*mq}", f"s_add_u32 s{T0}, s{T0}, s{T1}",
               f"v_and_b32 v{vt_own}, 15, v0", f"v_add_u32 v{vt_own}, s{T0}, v{vt_own}", f"v_lshlrev_b32 v{vxo}, 3, v{vt_own}"])
    for j in range(mq):
        ex.append([f"s_add_u32 s{T0}, s{sG}, {j}", f"s_and_b32 s{T0}, s{T0}, {NS-1}", f"s_lshl_b32 s{T0}, s{T0}, 7", f"s_add_u32 s{T0}, s{T0}, {WS_G}",
                   f"buffer_load_dwordx2 {vr(vg+2*j,2)}, v{vxo}, s[{SWS}:{SWS+3}], s{T0} offen sc1"])
    ex.append([f"s_lshl_b32 s{T0}, s{sG}, 4", f"v_add_u32 v{vt_own}, s{T0}, v{vt_own}",
               f"v_lshrrev_b32 v{vd2}, 4, v0", f"v_lshlrev_b32 v{vd2}, 2, v{vd2}",
               f"s_lshl_b32 s{T0}, s{sDt}, 7", f"s_lshl_b32 s{T1}, s{sWp}, 6", f"s_add_u32 s{T0}, s{T0}, s{T1}",
               f"v_add_u32 v{vd2}, s{T0}, v{vd2}", f"v_lshlrev_b32 v{vd2}, 1, v{vd2}",
               f"v_lshl_add_u32 v{vxo}, v{vt_own}, 11, v{vd2}", f"v_lshlrev_b32 v{vl16}, 4, v0"])
    for j in range(1, mq):
        ex.append([f"s_add_u32 s{T1}, s{sG}, {j}", f"s_and_b32 s{T1}, s{T1}, {NS-1}",
                   f"s_mul_i32 s{T0}, s{T1}, {XS}", f"s_and_b32 s{T2}, s2, {XS-1}", f"s_add_u32 s{T0}, s{T0}, s{T2}",
                   f"s_lshr_b32 s{T2}, s{sDt}, 2", f"s_xor_b32 s{T2}, s{T2}, s{T1}", f"s_and_b32 s{T2}, s{T2}, 1", f"s_xor_b32 s{T2}, s{T2}, 1",
                   f"s_lshl_b32 s{T2}, s{T2}, 7", f"s_or_b32 s{T0}, s{T0}, s{T2}", f"s_and_b32 s{T2}, s2, 0x78", f"s_or_b32 s{T0}, s{T0}, s{T2}",
                   f"s_lshl_b32 s{T0}, s{T0}, 3", f"s_add_u32 s{T0}, s{T0}, s{sWave}", f"s_mul_i32 s{T0}, s{T0}, {4096*(NS-1)}",
                   f"s_add_u32 s{sXD+j-1}, s{T0}, {WS_XB + (NS - j - 1) * 4096}"])
    ex2 = []
    for i in range(mp):
        ex2.append([f"buffer_load_dwordx2 {vr(vx_+2*i,2)}, v{vxo}, s[{SX}:{SX+3}], 0 offen offset:{32*i}"])
    ex2.append([f"s_mov_b32 s{SE}, s{PTR['dsk']}", f"s_mov_b32 s{SE+1}, s{PTR['dsk']+1}", f"s_mov_b32 s{SE+2}, 2048", f"s_mov_b32 s{SE+3}, 0x20000"])
    for i in range(mp):
        ex2.append([f"buffer_load_dwordx2 {vr(vds+2*i,2)}, v{vd2}, s[{SE}:{SE+3}], 0 offen offset:{32*i}"])
    ex2.append([f"s_mov_b32 s{SE}, s{PTR['b2']}", f"s_mov_b32 s{SE+1}, s{PTR['b2']+1}"])
    for i in range(mp):
        ex2.append([f"buffer_load_dwordx2 {vr(vb2+2*i,2)}, v{vd2}, s[{SE}:{SE+3}], 0 offen offset:{32*i}"])
    if NS == 2: extras = {N - NB: (ex + ex2, mq + 3 * mp)}
    else:
        nw = 0
        if C.endwarm:
            ex.append([f"buffer_load_dword v250, v{vxo}, s[{SX}:{SX+3}], 0 offen"])
            ex.append([f"s_mov_b32 s{SE}, s{PTR['dsk']}", f"s_mov_b32 s{SE+1}, s{PTR['dsk']+1}", f"s_mov_b32 s{SE+2}, 2048", f"s_mov_b32 s{SE+3}, 0x20000",
                       f"buffer_load_dword v250, v{vd2}, s[{SE}:{SE+3}], 0 offen"])
            ex.append([f"s_mov_b32 s{SE}, s{PTR['b2']}", f"s_mov_b32 s{SE+1}, s{PTR['b2']+1}", f"buffer_load_dword v250, v{vd2}, s[{SE}:{SE+3}], 0 offen"])
            nw = 3
            if C.endwarm >= 2:
                for j in range(1, mq):
                    ex.append([f"buffer_load_dword v250, v{vl16}, s[{SWS}:{SWS+3}], s{sXD+j-1} offen"])
                ex.append([f"s_mov_b32 s{SE}, s{PTR['out']}", f"s_mov_b32 s{SE+1}, s{PTR['out']+1}", f"s_mov_b32 s{SE+2}, {L*D*4}",
                           f"v_lshlrev_b32 v{VT}, 12, v{vt_own}", f"buffer_load_dword v250, v{VT}, s[{SE}:{SE+3}], 0 offen"])
                nw += mq
        extras = {N - NB: (ex, mq + nw)}
    if role == 0 and C.prefetch and C.w2it:
        SPW, sPW = 52, 1
        pw = [[f"s_lshl_b32 s{T0}, s{sM}, 4", f"s_add_u32 s{T0}, s{T0}, s{sN}", f"s_mul_i32 s{sPW}, s{T0}, {56*1024}", f"s_mul_i32 s{T1}, s{sWave}, {7*1024}",
               f"s_add_u32 s{sPW}, s{sPW}, s{T1}", f"s_mov_b32 s{SPW}, s{PTR['w2']}", f"s_mov_b32 s{SPW+1}, s{PTR['w2']+1}",
               f"s_add_u32 s{SPW+2}, s{sPW}, {7*1024}", f"s_mov_b32 s{SPW+3}, 0x20000", f"v_lshlrev_b32 v{VT+6}, 4, v0"]]
        for i in range(7):
            pw.append([f"buffer_load_dwordx4 v[252:255], v{VT+6}, s[{SPW}:{SPW+3}], s{sPW} offen offset:{(i%4)*1024}"] + ([f"s_add_u32 s{sPW}, s{sPW}, 4096"] if i == 3 else []))
        extras[C.w2it - 1] = (pw, 7)
    if C.codepf3: extras[N - C.codepf3] = code_pf_groups(VT + 3)
    stamp(a, 4)
    stamp(a, 1, st="p2")
    stamp(a, 3, st="clk"); stamp(a, 4, real=True, st="clk")
    G.run(stages, hooks, extras, post_first)
    stamp(a, 5)
    stamp(a, 4, st="p2")
    stamp(a, 5, st="clk"); stamp(a, 6, real=True, st="clk")
    stamp(a, 1, st="end")
    a("s_nop 7")
    a("s_waitcnt vmcnt(0)")
    def comb(i, j):
        c = 4 * (i * mq + j)
        for r in range(4):
            a(f"v_mul_f32 v{accD+c+r}, v{vg+2*j+1}, v{accD+c+r}"); a(f"v_fmac_f32 v{accD+c+r}, v{vg+2*j}, v{accS+c+r}")
    if K2:
        return phase2b(a, role, locals())
    assert NS == 2 or C.xbf16
    nst = (2 if C.xbf16 else 4) * (mq - 1)
    if NS != 2:
        for g_ in ex2: G.emit(g_)
    for j in range(1, mq):
        for i in range(mp): comb(i, j)
        if C.xbf16:
            for i2 in range(0, mp, 2):
                c0, c1 = accD + 4 * (i2 * mq + j), accD + 4 * ((i2 + 1) * mq + j)
                a(f"v_cvt_pk_bf16_f32 v{c0}, v{c0}, v{c0+1}"); a(f"v_cvt_pk_bf16_f32 v{c0+1}, v{c0+2}, v{c0+3}")
                a(f"v_cvt_pk_bf16_f32 v{c0+2}, v{c1}, v{c1+1}"); a(f"v_cvt_pk_bf16_f32 v{c0+3}, v{c1+2}, v{c1+3}")
                a(f"buffer_store_dwordx4 {vr(c0,4)}, v{vl16}, s[{SWS}:{SWS+3}], s{sXD+j-1} offen offset:{(i2//2)*1024} sc1")
        else:
            a("s_nop 1")
            for i in range(mp):
                c = accD + 4 * (i * mq + j)
                a(f"buffer_store_dwordx4 {vr(c,4)}, v{vl16}, s[{SWS}:{SWS+3}], s{sXD+j-1} offen offset:{i*1024} sc1")
    stamp(a, 2, st="end")
    for i in range(mp): comb(i, 0)
    t1, t2, t3 = VT + 5, VT + 6, VT + 7
    a(f"s_and_b32 s{T0}, s2, {XS-1}")
    a(f"v_mul_u32_u24 v{t1}, {XS}, v0"); a(f"v_add_u32 v{t1}, s{T0}, v{t1}")
    a(f"s_lshr_b32 s{T0}, s{sDt}, 2")
    a(f"v_and_b32 v{t2}, 1, v0"); a(f"v_xor_b32 v{t2}, s{T0}, v{t2}"); a(f"v_xor_b32 v{t2}, 1, v{t2}")
    a(f"s_lshr_b32 s{T0}, s2, 3"); a(f"s_and_b32 s{T0}, s{T0}, 15")
    a(f"v_lshlrev_b32 v{t2}, 4, v{t2}"); a(f"v_add_u32 v{t2}, s{T0}, v{t2}"); a(f"v_lshl_or_b32 v{t2}, v{t2}, 3, v{t1}")
    a(f"v_lshlrev_b32 v{t2}, 8, v{t2}")
    a(f"v_subrev_u32 v{t1}, s{sG}, v0"); a(f"v_and_b32 v{t1}, {NS-1}, v{t1}")
    a(f"v_sub_u32 v{t1}, {NS-1}, v{t1}"); a(f"v_lshl_add_u32 v{t2}, v{t1}, 2, v{t2}")
    a(f"v_mov_b32 v{t3}, 1")
    a(f"s_lshl_b32 s{T0}, 1, s{sG}"); a(f"s_andn2_b32 s{T0}, {(1 << NS) - 1}, s{T0}")
    a(f"s_lshl_b32 s{T1}, s{sWave}, 4"); a(f"s_add_u32 s{T1}, s{T1}, {WS_MB + 32}")
    a(f"s_lshl_b32 s{T3}, s2, 8"); a(f"s_add_u32 s{T3}, s{T3}, s{T1}")
    a(f"s_waitcnt vmcnt({nst})")
    x0, x1, y0, y1 = VT, VT + 1, VT + 2, VT + 3
    for i in range(mp):
        e = accD + 4 * (i * mq)
        for h in range(2):
            a(f"v_lshlrev_b32 v{x0}, 16, v{vx_+2*i+h}"); a(f"v_and_b32 v{x1}, 0xffff0000, v{vx_+2*i+h}")
            a(f"v_lshlrev_b32 v{y0}, 16, v{vds+2*i+h}"); a(f"v_and_b32 v{y1}, 0xffff0000, v{vds+2*i+h}")
            a(f"v_mul_f32 v{x0}, v{x0}, v{y0}"); a(f"v_mul_f32 v{x1}, v{x1}, v{y1}")
            a(f"v_cvt_pk_bf16_f32 v{x0}, v{x0}, v{x1}")
            a(f"v_and_b32 v{x1}, 0xffff0000, v{x0}"); a(f"v_lshlrev_b32 v{x0}, 16, v{x0}")
            a(f"v_fmac_f32 v{e+2*h}, v{vg}, v{x0}"); a(f"v_fmac_f32 v{e+2*h+1}, v{vg}, v{x1}")
            a(f"v_lshlrev_b32 v{x0}, 16, v{vb2+2*i+h}"); a(f"v_and_b32 v{x1}, 0xffff0000, v{vb2+2*i+h}")
            a(f"v_fmac_f32 v{e+2*h}, v{vg+1}, v{x0}"); a(f"v_fmac_f32 v{e+2*h+1}, v{vg+1}, v{x1}")
    a("s_waitcnt vmcnt(0)")
    stamp(a, 5, st="p2")
    stamp(a, 3, st="end")
    a(f"s_mov_b32 exec_lo, s{T0}"); a("s_mov_b32 exec_hi, 0")
    a(f"buffer_store_dword v{t3}, v{t2}, s[{SWS}:{SWS+3}], s{T1} offen sc1")
    a("s_mov_b64 exec, -1")
    stamp(a, 4, st="end")
    def chkx(ok):
        if NS == 4: a(f"s_and_b32 s{U0}, s{U0}, s{U1}"); a(f"s_and_b32 s{U0}, s{U0}, s{U3}")
        a(f"s_cmp_lg_u32 s{U0}, 0"); a(f"s_cbranch_scc1 {ok}")
    poll(a, SWS, T3, chkx, VT, wide=(4 if NS == 4 else 1), sleep=1)
    stamp(a, 5, st="end")
    rb = G.F[0][0]
    nrx = mp * (NS - 1)
    assert 2 * (4 * mp + 4 * mq) >= 4 * nrx
    inbox_offset(a, T0)
    per = 2 if C.xbf16 else 4
    for k in range(per * (NS - 1)):
        if k and k % per == 0: a(f"s_add_u32 s{T0}, s{T0}, 4096")
        a(f"buffer_load_dwordx4 {vr(rb+4*k,4)}, v{vl16}, s[{SWS}:{SWS+3}], s{T0} offen offset:{(k%per)*1024} sc1")
    srd(a, SE, PTR["out"], L * D * 4)
    vo = VT
    a(f"v_lshlrev_b32 v{vo}, 12, v{vt_own}"); a(f"v_lshl_add_u32 v{vo}, v{vd2}, 1, v{vo}")
    a("s_waitcnt vmcnt(0)")
    stamp(a, 6, st="end")
    for i in range(mp):
        e = accD + 4 * (i * mq)
        for k in range(NS - 1):
            if C.xbf16:
                src = rb + 8 * k + 4 * (i // 2) + 2 * (i % 2)
                x0, x1 = VT + 2, VT + 3
                for h in range(2):
                    a(f"v_lshlrev_b32 v{x0}, 16, v{src+h}"); a(f"v_and_b32 v{x1}, 0xffff0000, v{src+h}")
                    a(f"v_add_f32 v{e+2*h}, v{e+2*h}, v{x0}"); a(f"v_add_f32 v{e+2*h+1}, v{e+2*h+1}, v{x1}")
            else:
                for r in range(4): a(f"v_add_f32 v{e+r}, v{e+r}, v{rb+k*4*mp+4*i+r}")
        a(f"buffer_store_dwordx4 {vr(e,4)}, v{vo}, s[{SE}:{SE+3}], 0 offen offset:{64*i}{C.wto}")
    stamp(a, 6)
    stamp(a, 6, st="p2")
    return V.hi, NB * SB

def phase2b(a, role, L_):
    g = L_
    R, NS, XS, mp, mq, K2 = g["R"], g["NS"], g["XS"], g["mp"], g["mq"], g["K2"]
    accD, accS, vg, G, P2, Qop, SW2, SE = g["accD"], g["accS"], g["vg"], g["G"], g["P2"], g["Qop"], g["SW2"], g["SE"]
    sG, sKQ2, sXD, comb, V = g["sG"], g["sKQ2"], g["sXD"], g["comb"], g["V"]
    vt_own, vxo, vd2, vl16 = g["vt_own"], g["vxo"], g["vd2"], g["vl16"]
    assert C.xbf16 and NS == 4
    NB2 = 6
    Vq = Regs(Qop.vd)
    Q2 = OpKC(a, Vq, 64, 128 * 128, 1, flags=C.a2ld); Q2.groups = [[0]]
    assert Vq.hi <= Qop.c1 + 1
    Vf = Regs(G.F[0][0])
    G2 = Gemm(a, Vf, NB2, NB2, 128 * 128, Q2.bytes, mp, 1, (sBufD, sBufR, None, None, sCnt, sRole), True, 'P', 'p2b')
    G2.acc_stride = 4 * mq
    assert Vf.hi <= G.F[1][1] + 4 * mq
    Q2.lane_chunk(VT, VT + 1)
    a(f"v_lshrrev_b32 v{VT+1}, 3, v0"); a(f"v_mul_u32_u24 v{VT+1}, {RS_A2}, v{VT+1}"); a(f"v_add_u32 v{VT+3}, v{VT+1}, v{VT}")
    a(f"s_lshr_b32 s{T0}, s{sWave}, 1"); a(f"s_lshl_b32 s{T0}, s{T0}, 6"); a(f"s_and_b32 s{T1}, s{sWave}, 1"); a(f"s_lshl_b32 s{T2}, s{T1}, 6")
    a(f"s_lshl_b32 s{T1}, s{T1}, 3"); a(f"s_add_u32 s{T0}, s{T0}, s{T1}"); a(f"s_lshl_b32 s{T1}, s{sG}, 4"); a(f"s_add_u32 s{T0}, s{T0}, s{T1}")
    a(f"s_lshl_b32 s{T1}, s{sTt}, 8"); a(f"s_add_u32 s{T0}, s{T0}, s{T1}"); a(f"s_mul_i32 s{T0}, s{T0}, {RS_A2}")
    Q2.set_voff(0, VT + 3, T0, T2)
    a(f"s_lshl_b32 s{sLdsQ}, s{sWave}, 10"); a(f"s_add_u32 s{sLdsQ}, s{sLdsQ}, {Q2.lds_off}")
    Q2.setup_read(sWq, VT, U0)
    a(f"s_mov_b32 s{sKP2}, {(56-K2)*64*D*2}"); a(f"s_mov_b32 s{sKQ2}, {WS_A2 + 4096 + (56-K2)*128}")
    seg2 = Seg(P2, Q2, accD, lambda b: P2.dma(b, sKP2, sTmp, sLdsP2, SW2), lambda b: Q2.dma(b, sKQ2, sTmp, sLdsQ, [SWS]),
               [f"s_add_u32 s{sKP2}, s{sKP2}, {64*D*2}"], [f"s_add_u32 s{sKQ2}, s{sKQ2}, 128"], "b")
    st2 = [seg2] * K2
    a("s_barrier")
    G2.prologue(st2)
    for j in range(1, mq):
        for i in range(mp): comb(i, j)
        for i2 in range(0, mp, 2):
            c0, c1 = accD + 4 * (i2 * mq + j), accD + 4 * ((i2 + 1) * mq + j)
            a(f"v_cvt_pk_bf16_f32 v{c0}, v{c0}, v{c0+1}"); a(f"v_cvt_pk_bf16_f32 v{c0+1}, v{c0+2}, v{c0+3}")
            a(f"v_cvt_pk_bf16_f32 v{c0+2}, v{c1}, v{c1+1}"); a(f"v_cvt_pk_bf16_f32 v{c0+3}, v{c1+2}, v{c1+3}")
            a(f"buffer_store_dwordx4 {vr(c0,4)}, v{vl16}, s[{SWS}:{SWS+3}], s{sXD+j-1} offen offset:{(i2//2)*1024} sc1")
    G2.note('xs', 6)
    stamp(a, 2, st="end")
    vx_, vds, vb2 = accS + 4, accS + 20, accS + 36
    for i in range(mp): a(f"buffer_load_dwordx2 {vr(vx_+2*i,2)}, v{vxo}, s[{SX}:{SX+3}], 0 offen offset:{32*i}")
    srd(a, SE, PTR["dsk"], 2048)
    for i in range(mp): a(f"buffer_load_dwordx2 {vr(vds+2*i,2)}, v{vd2}, s[{SE}:{SE+3}], 0 offen offset:{32*i}")
    a(f"s_mov_b32 s{SE}, s{PTR['b2']}"); a(f"s_mov_b32 s{SE+1}, s{PTR['b2']+1}")
    for i in range(mp): a(f"buffer_load_dwordx2 {vr(vb2+2*i,2)}, v{vd2}, s[{SE}:{SE+3}], 0 offen offset:{32*i}")
    G2.note('ex2', 12)
    t1, t2, t3 = VT + 5, VT + 6, VT + 7
    sMask, sFl = sXD + 3, sXD + 4
    a(f"s_and_b32 s{T0}, s2, {XS-1}")
    a(f"v_mul_u32_u24 v{t1}, {XS}, v0"); a(f"v_add_u32 v{t1}, s{T0}, v{t1}")
    a(f"s_lshr_b32 s{T0}, s{sDt}, 2")
    a(f"v_and_b32 v{t2}, 1, v0"); a(f"v_xor_b32 v{t2}, s{T0}, v{t2}"); a(f"v_xor_b32 v{t2}, 1, v{t2}")
    a(f"s_lshr_b32 s{T0}, s2, 3"); a(f"s_and_b32 s{T0}, s{T0}, 15")
    a(f"v_lshlrev_b32 v{t2}, 4, v{t2}"); a(f"v_add_u32 v{t2}, s{T0}, v{t2}"); a(f"v_lshl_or_b32 v{t2}, v{t2}, 3, v{t1}")
    a(f"v_lshlrev_b32 v{t2}, 8, v{t2}")
    a(f"v_subrev_u32 v{t1}, s{sG}, v0"); a(f"v_and_b32 v{t1}, {NS-1}, v{t1}")
    a(f"v_sub_u32 v{t1}, {NS-1}, v{t1}"); a(f"v_lshl_add_u32 v{t2}, v{t1}, 2, v{t2}")
    a(f"v_mov_b32 v{t3}, 1")
    a(f"s_lshl_b32 s{sMask}, 1, s{sG}"); a(f"s_andn2_b32 s{sMask}, {(1 << NS) - 1}, s{sMask}")
    a(f"s_lshl_b32 s{sFl}, s{sWave}, 4"); a(f"s_add_u32 s{sFl}, s{sFl}, {WS_MB + 32}")
    def flag():
        a(f"s_mov_b32 exec_lo, s{sMask}"); a("s_mov_b32 exec_hi, 0")
        a(f"buffer_store_dword v{t3}, v{t2}, s[{SWS}:{SWS+3}], s{sFl} offen sc1")
        a("s_mov_b64 exec, -1")
    fit = C.flagit
    def hookF():
        a(f"s_waitcnt vmcnt({G2.allow_at[fit]})")
        flag()
    G2.want_allow = {fit: 'xs'}
    G2.run(st2, {fit: hookF})
    stamp(a, 3, st="end")
    a("s_nop 7")
    a("s_waitcnt vmcnt(0)")
    a(f"s_lshl_b32 s{T3}, s2, 8"); a(f"s_add_u32 s{T3}, s{T3}, s{sFl}")
    def chkx(ok):
        a(f"s_and_b32 s{U0}, s{U0}, s{U1}"); a(f"s_and_b32 s{U0}, s{U0}, s{U3}")
        a(f"s_cmp_lg_u32 s{U0}, 0"); a(f"s_cbranch_scc1 {ok}")
    poll(a, SWS, T3, chkx, VT, wide=4, sleep=1)
    stamp(a, 4, st="end")
    rbq = [accD + 4, accD + 8, accD + 12, accD + 20, accD + 24, accD + 28]
    inbox_offset(a, T0)
    for k in range(6):
        if k and k % 2 == 0: a(f"s_add_u32 s{T0}, s{T0}, 4096")
        a(f"buffer_load_dwordx4 {vr(rbq[k],4)}, v{vl16}, s[{SWS}:{SWS+3}], s{T0} offen offset:{(k%2)*1024} sc1")
    for i in range(mp): comb(i, 0)
    x0, x1, y0, y1 = VT, VT + 1, VT + 2, VT + 3
    for i in range(mp):
        e = accD + 4 * (i * mq)
        for h in range(2):
            a(f"v_lshlrev_b32 v{x0}, 16, v{vx_+2*i+h}"); a(f"v_and_b32 v{x1}, 0xffff0000, v{vx_+2*i+h}")
            a(f"v_lshlrev_b32 v{y0}, 16, v{vds+2*i+h}"); a(f"v_and_b32 v{y1}, 0xffff0000, v{vds+2*i+h}")
            a(f"v_mul_f32 v{x0}, v{x0}, v{y0}"); a(f"v_mul_f32 v{x1}, v{x1}, v{y1}")
            a(f"v_cvt_pk_bf16_f32 v{x0}, v{x0}, v{x1}")
            a(f"v_and_b32 v{x1}, 0xffff0000, v{x0}"); a(f"v_lshlrev_b32 v{x0}, 16, v{x0}")
            a(f"v_fmac_f32 v{e+2*h}, v{vg}, v{x0}"); a(f"v_fmac_f32 v{e+2*h+1}, v{vg}, v{x1}")
            a(f"v_lshlrev_b32 v{x0}, 16, v{vb2+2*i+h}"); a(f"v_and_b32 v{x1}, 0xffff0000, v{vb2+2*i+h}")
            a(f"v_fmac_f32 v{e+2*h}, v{vg+1}, v{x0}"); a(f"v_fmac_f32 v{e+2*h+1}, v{vg+1}, v{x1}")
    srd(a, SE, PTR["out"], L * D * 4)
    vo = VT
    a(f"v_lshlrev_b32 v{vo}, 12, v{vt_own}"); a(f"v_lshl_add_u32 v{vo}, v{vd2}, 1, v{vo}")
    a("s_waitcnt vmcnt(0)")
    stamp(a, 5, st="end")
    for i in range(mp):
        e = accD + 4 * (i * mq)
        for k in range(NS - 1):
            src = rbq[2 * k + i // 2] + 2 * (i % 2)
            x0, x1 = VT + 2, VT + 3
            for h in range(2):
                a(f"v_lshlrev_b32 v{x0}, 16, v{src+h}"); a(f"v_and_b32 v{x1}, 0xffff0000, v{src+h}")
                a(f"v_add_f32 v{e+2*h}, v{e+2*h}, v{x0}"); a(f"v_add_f32 v{e+2*h+1}, v{e+2*h+1}, v{x1}")
        a(f"buffer_store_dwordx4 {vr(e,4)}, v{vo}, s[{SE}:{SE+3}], 0 offen offset:{64*i}{C.wto}")
    stamp(a, 6)
    stamp(a, 6, st="p2"); stamp(a, 6, st="end")
    return V.hi, max(g["NB"] * g["SB"], NB2 * (128 * 128 + Q2.bytes))

def emit_stamps(a):
    a("s_memrealtime s[88:89]"); a("s_waitcnt lgkmcnt(0)")
    a(f"s_cmp_lg_u32 s{sWave}, {C.stwave}"); a("s_cbranch_scc1 L_end")
    a("s_waitcnt vmcnt(0)")
    for i in range(1, 7): a(f"s_sub_u32 s{92+i}, s{92+i}, s92")
    a("s_mov_b32 s99, s100")
    a("s_nop 0")
    a(f"s_mov_b32 s100, s88")
    for i in range(8): a(f"v_mov_b32 v{12+i}, s{93+i}")
    a("v_mov_b32 v11, 0")
    if C.dbgout:
        a("s_and_b32 s76, s2, 127"); a("s_cmp_lg_u32 s76, 0"); a("s_cbranch_scc1 L_end")
        a("s_sub_u32 s77, s100, s99"); a("v_mov_b32 v18, s77")
        a("s_lshr_b32 s76, s2, 7"); a("s_mul_i32 s76, s76, 28"); a("s_add_u32 s76, s76, 8")
        a("s_mov_b64 exec, 1")
        for i in range(7): a(f"buffer_store_dword v{12+i}, v11, s[{SDBG}:{SDBG+3}], s76 offen offset:{4*i}")
        return
    a(f"s_lshl_b32 s{T0}, s2, 5"); a(f"s_add_u32 s{T0}, s{T0}, {WS_ST}")
    a("s_mov_b64 exec, 1")
    a(f"buffer_store_dwordx4 v[12:15], v11, s[{SWS}:{SWS+3}], s{T0} offen")
    a(f"buffer_store_dwordx4 v[16:19], v11, s[{SWS}:{SWS+3}], s{T0} offen offset:16")

HEADER = open("gated_mix__ssm_conv_s5__dense_activation_squared_relu__prompt.s.ref").read().split("; Override launch")[0]

def generate(**kw):
    for k, v in kw.items():
        assert hasattr(C, k), k
        setattr(C, k, v)
    _lbl[0] = 0
    a = Asm()
    kernel_header(a, NAME)
    a("s_cmp_ge_u32 s2, 256"); a("s_cbranch_scc1 L_end")
    a("s_load_dwordx16 s[40:55], s[0:1], 0"); a("s_load_dwordx16 s[56:71], s[0:1], 64"); a("s_load_dwordx4 s[72:75], s[0:1], 128")
    if C.dbgst:
        a("s_memtime s[92:93]"); a("s_memrealtime s[100:101]")
    if C.codepf == 1 or C.codepf is True:
        a("s_getpc_b64 s[4:5]")
        a.label("L_pc")
        a("v_lshlrev_b32 v2, 7, v0")
        a("v_min_u32 v2, L_codeend-L_pc-4, v2")
        a("global_load_dword v250, v2, s[4:5]")
    elif C.codepf == 2:
        a("s_getpc_b64 s[4:5]")
        a.label("L_pc")
        a("s_lshr_b32 s6, s2, 3"); a("s_lshl_b32 s6, s6, 11")
        a("v_lshlrev_b32 v2, 7, v0"); a("v_add_u32 v2, s6, v2")
        a("v_min_u32 v2, L_codeend-L_pc-4, v2")
        a("v_cmp_gt_u32 vcc, 16, v0"); a("s_and_saveexec_b64 s[6:7], vcc"); a("s_cbranch_execz L_cpf")
        a("global_load_dword v250, v2, s[4:5]")
        a.label("L_cpf")
        a("s_mov_b64 exec, s[6:7]")
    a("v_lshrrev_b32 v1, 6, v0"); a("v_and_b32 v0, 63, v0"); a(f"v_readfirstlane_b32 s{sWave}, v1")
    a(f"s_and_b32 s{T0}, s2, 7"); a(f"s_lshr_b32 s{T1}, s2, 3")
    a(f"s_lshr_b32 s{sRole}, s{T1}, 4")
    a(f"s_bfe_u32 s{T2}, s{T1}, 0x20002"); a(f"s_and_b32 s{T3}, s{T1}, 3")
    a(f"s_lshr_b32 s{sM}, s{T0}, 2"); a(f"s_lshl_b32 s{sM}, s{sM}, 2"); a(f"s_add_u32 s{sM}, s{sM}, s{T2}")
    a(f"s_and_b32 s{sN}, s{T0}, 3"); a(f"s_lshl_b32 s{sN}, s{sN}, 2"); a(f"s_add_u32 s{sN}, s{sN}, s{T3}")
    mode = C.rot
    if mode is True: mode = 1
    if mode == 1:
        a(f"s_lshl_b32 s{sRot}, s{sRole}, 2"); a(f"s_add_u32 s{sRot}, s{sRot}, s{T3}"); a(f"s_lshl_b32 s{sRot}, s{sRot}, 1")
        a(f"s_lshl_b32 s{T2}, s{T2}, 2"); a(f"s_add_u32 s{sRot}, s{sRot}, s{T2}"); a(f"s_and_b32 s{T0}, s{T0}, 3")
        a(f"s_add_u32 s{sRot}, s{sRot}, s{T0}"); a(f"s_and_b32 s{sRot}, s{sRot}, 15")
    elif mode == 2:
        a(f"s_and_b32 s{sRot}, s{T0}, 3"); a(f"s_lshl_b32 s{sRot}, s{sRot}, 2"); a(f"s_lshr_b32 s{T0}, s{T0}, 2"); a(f"s_lshl_b32 s{T0}, s{T0}, 1")
        a(f"s_add_u32 s{sRot}, s{sRot}, s{T0}"); a(f"s_and_b32 s{sRot}, s{sRot}, 15")
    elif mode == 3:
        a(f"s_and_b32 s{sRot}, s{T0}, 3"); a(f"s_lshl_b32 s{sRot}, s{sRot}, 2"); a(f"s_lshr_b32 s{T0}, s{T0}, 2"); a(f"s_lshl_b32 s{T0}, s{T0}, 3")
        a(f"s_add_u32 s{sRot}, s{sRot}, s{T0}"); a(f"s_xor_b32 s{T2}, s{T2}, s{T3}"); a(f"s_and_b32 s{T2}, s{T2}, 1"); a(f"s_lshl_b32 s{T2}, s{T2}, 3")
        a(f"s_add_u32 s{sRot}, s{sRot}, s{T2}"); a(f"s_and_b32 s{sRot}, s{sRot}, 15")
    elif mode == 4:
        a(f"s_xor_b32 s{T2}, s{T2}, s{T3}"); a(f"s_and_b32 s{T2}, s{T2}, 1"); a(f"s_lshl_b32 s{sRot}, s{T2}, 3")
        a(f"s_and_b32 s{T0}, s{T0}, 3"); a(f"s_lshl_b32 s{T0}, s{T0}, 1"); a(f"s_add_u32 s{sRot}, s{sRot}, s{T0}"); a(f"s_and_b32 s{sRot}, s{sRot}, 15")
    elif mode == 8:
        a(f"s_add_u32 s{sRot}, s{T0}, s{T2}"); a(f"s_and_b32 s{sRot}, s{sRot}, 3"); a(f"s_lshl_b32 s{sRot}, s{sRot}, 2")
    elif mode == 9:
        a(f"s_add_u32 s{sRot}, s{T0}, s{T2}"); a(f"s_and_b32 s{sRot}, s{sRot}, 1"); a(f"s_lshl_b32 s{sRot}, s{sRot}, 3")
    elif mode == 10:
        a(f"s_add_u32 s{sRot}, s{T0}, s{T2}"); a(f"s_and_b32 s{sRot}, s{sRot}, 7"); a(f"s_lshl_b32 s{sRot}, s{sRot}, 1")
    elif mode == 5:
        a(f"s_and_b32 s{sRot}, s{T0}, 3"); a(f"s_lshl_b32 s{sRot}, s{sRot}, 2")
    elif mode == 6:
        a(f"s_lshl_b32 s{sRot}, s{T2}, 2"); a(f"s_and_b32 s{T0}, s{T0}, 3"); a(f"s_add_u32 s{sRot}, s{sRot}, s{T0}"); a(f"s_and_b32 s{sRot}, s{sRot}, 15")
    elif mode == 7:
        a(f"s_lshl_b32 s{sRot}, s{T3}, 2"); a(f"s_and_b32 s{T0}, s{T0}, 3"); a(f"s_add_u32 s{sRot}, s{sRot}, s{T0}"); a(f"s_and_b32 s{sRot}, s{sRot}, 15")
    else:
        a(f"s_mov_b32 s{sRot}, 0")
    if C.dbgst:
        pass
    a(f"s_cmp_eq_u32 s{sRole}, 1"); a("s_cbranch_scc1 L_ssm")
    v1, l1 = phase1_dense(a)
    v2, l2 = phase2(a, 1)
    a("s_branch L_fin")
    a.label("L_ssm")
    v3, l3 = phase1_ssm(a)
    v4, l4 = phase2(a, 0)
    a.label("L_fin")
    if C.dbgst: emit_stamps(a)
    a.label("L_end")
    a("s_endpgm")
    a.label("L_codeend")
    nv = max(v1, v2, v3, v4); lds = max(l1, l2, l3, l4)
    assert nv <= 250
    if C.codepf or C.tlb: nv = 251
    if C.bulk or C.w2it: nv = 256
    head = HEADER + f"; @launch grid=(256,1,1) block=(512,1,1) lds={lds}\n"
    head += '.amdgcn_target "amdgcn-amd-amdhsa--gfx950"\n.text\n'
    return head + a.text() + '.section .rodata,"a"\n' + kernel_desc(NAME, nv, 102)

if __name__ == "__main__":
    kw = json.loads(sys.argv[2]) if len(sys.argv) > 2 else {}
    open(sys.argv[1], "w").write(generate(**kw))
```

```python
import sys, math, json
from asmlib import *

NAME = "gated_mix__ssm_conv_s5__dense_activation_squared_relu__prompt_kernel"
L, D, P_, F = 2048, 1024, 1024, 3584
KC = 2048 + F
RS_A2 = KC * 2
KA = dict(x=0, lre=8, lim=16, bre=24, bim=32, cre=40, cim=48, ldt=56, dsk=64, bx=72, w1=80, b1=88, w2=96, b2=104, gw=112, out=120, dbg=128, ws=136)
WS_A2 = 0
WS_G = 24 << 20
WS_AGG = WS_G + (1 << 16)
WS_MB = WS_AGG + (1 << 17)
WS_ST = WS_AGG + (1 << 18)
WS_XB = 32 << 20
WS_SIZE = 268435456
LOG2E = 0x3fb8aa3b
INV2PI = 0x3e22f983
PTR = {k: 40 + v // 4 for k, v in KA.items()}
DBG_LB = 0
DBG_CNT = 16
DBG_XF = 32

class Cfg:
    dbgst = False; rot = 4; nodma = False; noread = False; prefetch = True
    nAd = 24
    nBs = 8
    ns = 4
    delta = 2
    wt = " sc1"
    a2ld = " sc1"
    wto = ""
    spin = 300000
    sleep = 2
    early = True
    endwarm = 1
    midwarm = 0
    dummypeel = {}
    w2it = 0
    codepf2 = 0
    codepf3 = 0
    dearly = True
    fine = True
    dparts = 4
    sparts = 2
    d1p = False
    k2 = 0
    flagit = 3
    dbgout = False
    xbf16 = True
    loop = {}
    inboxit = 18
    initit = 4
    tlb = False
    tlbshift = 21
    codepf = True
    pbar = False
    bulk = False
    pflist = [('w1',0),('x',0),('bre',0),('bim',0),('cre',0),('cim',0),('w2',0)]
    pfit = 13
    span = 1.0
    prio = True
    nbq = 3
    stampset = 'main'
    stwave = 0
C = Cfg()

class Regs:
    def __init__(self, start, limit=256):
        self.n = start; self.limit = limit; self.hi = start
    def get(self, k=1, align=1):
        self.n = (self.n + align - 1) // align * align
        r = self.n; self.n += k
        self.hi = max(self.hi, self.n)
        assert self.n <= self.limit, f"out of registers {self.n} > {self.limit}"
        return r

def srd(a, s, ptr_lo, size):
    if s != ptr_lo:
        a(f"s_mov_b32 s{s}, s{ptr_lo}"); a(f"s_mov_b32 s{s+1}, s{ptr_lo+1}")
    a(f"s_mov_b32 s{s+2}, {size}"); a(f"s_mov_b32 s{s+3}, 0x20000")

_lbl = [0]
def newlabel(p):
    _lbl[0] += 1
    return f"L_{p}{_lbl[0]}"

class OpKC:
    def __init__(self, a, V, T, lds_off, nfr, flags=""):
        self.a, self.T, self.lds_off, self.nfr, self.flags = a, T, lds_off, nfr, flags
        self.n = T // 64
        self.vd = V.get(self.n)
        self.b0 = V.get(); self.c0 = V.get(); self.c1 = V.get()
        self.bytes = T * 128
        self.ldsoffs = [j * 1024 for j in range(self.n)]
    def lane_chunk(self, vdst, t):
        a = self.a
        a(f"v_and_b32 v{vdst}, 7, v0"); a(f"v_lshrrev_b32 v{t}, 4, v0")
        a(f"v_xor_b32 v{vdst}, v{vdst}, v{t}"); a(f"v_lshlrev_b32 v{vdst}, 4, v{vdst}")
    def set_voff(self, j, vlane, sRowBytes, xor64, comp=True):
        a = self.a; d = self.vd + j
        src = vlane
        if xor64 is True:
            a(f"v_xor_b32 v{d}, 64, v{vlane}"); src = d
        elif xor64 is not False:
            a(f"v_xor_b32 v{d}, s{xor64}, v{vlane}"); src = d
        a(f"v_add_u32 v{d}, s{sRowBytes}, v{src}")
    def dma(self, sBuf, sK, stmp, sLds, srds, groups=None):
        g = []
        for grp_i in self.groups:
            for n_, j in enumerate(grp_i):
                grp = []
                if n_ == 0:
                    grp.append(f"s_add_u32 s{stmp}, s{sBuf}, s{sLds}")
                    if self.ldsoffs[j]: grp.append(f"s_add_u32 s{stmp}, s{stmp}, {self.ldsoffs[j]}")
                    grp.append(f"s_mov_b32 m0, s{stmp}")
                    grp.append("s_nop 0")
                off = f" offset:{n_*1024}" if n_ else ""
                s = srds[j]
                grp.append(f"buffer_load_dwordx4 v{self.vd+j}, s[{s}:{s+3}], s{sK} offen{off}{self.flags} lds")
                g.append(grp)
        return g
    def count(self): return (self.n, self.n)
    def setup_read(self, sFrag0, tmp, stmp):
        a = self.a; t0, t1, t2 = tmp, tmp + 1, tmp + 2
        a(f"v_and_b32 v{t0}, 15, v0"); a(f"v_lshrrev_b32 v{t1}, 4, v0"); a(f"v_lshrrev_b32 v{t2}, 1, v{t0}")
        a(f"v_xor_b32 v{t1}, v{t1}, v{t2}"); a(f"v_lshlrev_b32 v{t1}, 4, v{t1}")
        a(f"v_lshl_add_u32 v{t0}, v{t0}, 7, v{t1}")
        a(f"s_lshl_b32 s{stmp}, s{sFrag0}, 11")
        if self.lds_off: a(f"s_add_u32 s{stmp}, s{stmp}, {self.lds_off}")
        a(f"v_add_u32 v{self.b0}, s{stmp}, v{t0}")
    def init_cur(self):
        return [f"v_mov_b32 v{self.c0}, v{self.b0}", f"v_xor_b32 v{self.c1}, 64, v{self.b0}"]
    def frag_off(self, i): return i * 2048
    def reads(self, ks, dst):
        if C.noread: return []
        c = self.c1 if ks else self.c0
        return [[f"ds_read_b128 {vr(dst+4*i,4)}, v{c} offset:{self.frag_off(i)}"] for i in range(self.nfr)]
    def upd_A(self, sBuf): return [f"v_add_u32 v{self.c0}, s{sBuf}, v{self.b0}"]
    def upd_B(self, sBuf): return [f"v_xor_b32 v{self.c1}, 64, v{self.c0}"]

class OpNC:
    def __init__(self, a, V, T, lds_off, nfr, RS, NW=8):
        self.a, self.T, self.lds_off, self.nfr, self.RS = a, T, lds_off, nfr, RS
        self.RP = T * 2; self.CH = self.RP // 16
        self.total = self.CH
        self.n = -(-self.total // NW)
        self.even = (self.total % NW == 0)
        self.nbig = NW if self.even else self.total - (self.n - 1) * NW
        self.vd = V.get(self.n)
        np_ = self.RP // 32
        self.gb = 3 if np_ % 8 == 0 else (2 if np_ % 4 == 0 else 1)
        self.nres = min(1 << self.gb, nfr)
        self.base = V.get(self.nres); self.cur = V.get(self.nres)
        self.bytes = 64 * self.RP
    def g_asm(self, vk, vo, t):
        a = self.a
        if self.gb == 3:
            a(f"v_and_b32 v{vo}, 3, v{vk}"); a(f"v_bfe_u32 v{t}, v{vk}, 3, 1"); a(f"v_lshl_or_b32 v{vo}, v{t}, 2, v{vo}")
        elif self.gb == 2:
            a(f"v_bfe_u32 v{vo}, v{vk}, 1, 1"); a(f"v_bfe_u32 v{t}, v{vk}, 3, 1"); a(f"v_lshl_or_b32 v{vo}, v{t}, 1, v{vo}")
        else:
            a(f"v_bfe_u32 v{vo}, v{vk}, 3, 1")
    def idx0(self, sWave, sOut, stmp):
        a = self.a
        if self.even: a(f"s_mul_i32 s{sOut}, s{sWave}, {self.n}")
        else:
            a(f"s_mul_i32 s{sOut}, s{sWave}, {self.n-1}")
            a(f"s_min_u32 s{stmp}, s{sWave}, {self.nbig}")
            a(f"s_add_u32 s{sOut}, s{sOut}, s{stmp}")
    def setup_dma(self, sWave, tmp, sCol0Bytes, stmp):
        a = self.a; t0, t1, t2, t3 = tmp, tmp + 1, tmp + 2, tmp + 3
        self.idx0(sWave, stmp, stmp + 1)
        magic = (1 << 20) // self.CH + 1
        for L_ in range(self.total * 64 + 64):
            assert (L_ * magic) >> 20 == L_ // self.CH
        for j in range(self.n):
            a(f"s_add_u32 s{stmp+1}, s{stmp}, {j}"); a(f"s_lshl_b32 s{stmp+1}, s{stmp+1}, 6")
            a(f"v_add_u32 v{t0}, s{stmp+1}, v0")
            if self.CH & (self.CH - 1) == 0:
                a(f"v_lshrrev_b32 v{t1}, {int(math.log2(self.CH))}, v{t0}")
                a(f"v_and_b32 v{t0}, {self.CH-1}, v{t0}")
            else:
                a(f"v_mul_u32_u24 v{t1}, {magic}, v{t0}"); a(f"v_lshrrev_b32 v{t1}, 20, v{t1}")
                a(f"v_mul_u32_u24 v{t2}, {self.CH}, v{t1}"); a(f"v_sub_u32 v{t0}, v{t0}, v{t2}")
            self.g_asm(t1, t2, t3)
            a(f"v_lshlrev_b32 v{t2}, 1, v{t2}"); a(f"v_xor_b32 v{t0}, v{t0}, v{t2}")
            a(f"v_mul_u32_u24 v{t1}, {self.RS}, v{t1}")
            a(f"v_lshl_add_u32 v{t0}, v{t0}, 4, v{t1}")
            if j % 4: a(f"s_sub_u32 s{stmp+1}, s{sCol0Bytes}, {(j%4)*1024}"); a(f"v_add_u32 v{self.vd+j}, s{stmp+1}, v{t0}")
            else: a(f"v_add_u32 v{self.vd+j}, s{sCol0Bytes}, v{t0}")
    def setup_lds(self, sWave, sLds, stmp):
        self.idx0(sWave, sLds, stmp)
        self.a(f"s_lshl_b32 s{sLds}, s{sLds}, 10")
        if self.lds_off: self.a(f"s_add_u32 s{sLds}, s{sLds}, {self.lds_off}")
    def dma(self, sBuf, sK, stmp, sLds, srds, sWave=None):
        g = []
        s = srds
        for j in range(self.n):
            grp = []
            guard = (not self.even) and j == self.n - 1
            if guard:
                lbl = newlabel("ncs")
                grp += [f"s_cmp_lt_u32 s{sWave}, {self.nbig}", f"s_cbranch_scc0 {lbl}"]
            if j % 4 == 0:
                grp.append(f"s_add_u32 s{stmp}, s{sBuf}, s{sLds}")
                if j: grp.append(f"s_add_u32 s{stmp}, s{stmp}, {j*1024}")
                grp += [f"s_mov_b32 m0, s{stmp}", "s_nop 0"]
            off = f" offset:{(j%4)*1024}" if j % 4 else ""
            grp.append(f"buffer_load_dwordx4 v{self.vd+j}, s[{s}:{s+3}], s{sK} offen{off} lds")
            if guard: grp.append(f"{lbl}:")
            g.append(grp)
        return g
    def count(self): return (self.n if self.even else self.n - 1, self.n)
    def setup_read(self, sFrag0, tmp, stmp):
        a = self.a; t0, t1, t2 = tmp, tmp + 1, tmp + 2
        a(f"v_lshrrev_b32 v{t0}, 4, v0"); a(f"v_lshlrev_b32 v{t0}, 3, v{t0}")
        a(f"v_bfe_u32 v{t1}, v0, 2, 2"); a(f"v_add_u32 v{t0}, v{t0}, v{t1}")
        self.g_asm(t0, t1, t2)
        a(f"v_mul_u32_u24 v{t0}, {self.RP}, v{t0}")
        a(f"v_and_b32 v{t2}, 3, v0"); a(f"v_lshl_add_u32 v{t0}, v{t2}, 3, v{t0}")
        if self.lds_off: a(f"v_add_u32 v{t0}, {self.lds_off}, v{t0}")
        for r in range(self.nres):
            a(f"s_add_u32 s{stmp}, s{sFrag0}, {r}")
            a(f"v_xor_b32 v{t2}, s{stmp}, v{t1}")
            if r: a(f"v_subrev_u32 v{t2}, {r}, v{t2}")
            a(f"v_lshl_add_u32 v{self.base+r}, v{t2}, 5, v{t0}")
    def init_cur(self):
        return [f"v_mov_b32 v{self.cur+r}, v{self.base+r}" for r in range(self.nres)]
    def reads(self, ks, dst):
        if C.noread: return []
        g = []
        for i in range(self.nfr):
            r = i % (1 << self.gb)
            for h in range(2):
                off = 32 * i + (4 * h + 32 * ks) * self.RP
                g.append([f"ds_read_b64_tr_b16 {vr(dst+4*i+2*h,2)}, v{self.cur+r} offset:{off}"])
        return g
    def upd_A(self, sBuf): return [f"v_add_u32 v{self.cur+r}, s{sBuf}, v{self.base+r}" for r in range(self.nres)]
    def upd_B(self, sBuf): return []

class Seg:
    def __init__(self, P, Q, acc, Pdma, Qdma, kadvP, kadvQ, name):
        self.P, self.Q, self.acc, self.Pdma, self.Qdma, self.kadvP, self.kadvQ, self.name = P, Q, acc, Pdma, Qdma, kadvP, kadvQ, name
        self.xdma = []

class Gemm:
    def __init__(self, a, V, NBP, NBQ, SP, SQ, mp, mq, regs, joint, early=None, name="x"):
        self.a, self.NBP, self.NBQ, self.SP, self.SQ, self.mp, self.mq, self.joint = a, NBP, NBQ, SP, SQ, mp, mq, joint
        o = dict(span=C.span, prio=C.prio, dmapos="merge", order="i")
        o.update(C.loop.get(name, {}))
        self.opt = o
        self.name = name
        self.sDP, self.sRP, self.sDQ, self.sRQ, self.sCnt, self.sE = regs
        if joint: self.sDQ, self.sRQ = self.sDP, self.sRP
        self.early = early if C.early else None
        self.leadP = NBP - (1 if self.early == 'P' else 0)
        self.leadQ = NBQ - (1 if self.early == 'Q' else 0)
        self.F = []
        for s in range(2):
            p = V.get(4 * mp, 2); q = V.get(4 * mq, 2)
            self.F.append((p, q))
        self.vmq = []
        self.zero_first = False
    def emit(self, lines):
        for x in lines:
            if x.endswith(":"): self.a.label(x[:-1])
            else: self.a(x)
    def note(self, tag, n): self.vmq.append((tag, n))
    def vm_allow(self, need):
        last = -1
        for i, (t, n) in enumerate(self.vmq):
            if t in need: last = i
        return min(63, sum(n for t, n in self.vmq[last + 1:]))
    def reads(self, seg, ks, fs):
        p, q = self.F[fs]
        return merge(seg.P.reads(ks, p), seg.Q.reads(ks, q))
    def mfmas(self, seg, fs, zero=False):
        p, q = self.F[fs]
        ij = [(i, j) for i in range(self.mp) for j in range(self.mq)]
        if self.opt["order"] == "j": ij = [(i, j) for j in range(self.mq) for i in range(self.mp)]
        st = getattr(self, "acc_stride", 4 * self.mq)
        return [f"v_mfma_f32_16x16x32_bf16 {vr(c,4)}, {vr(p+4*i,4)}, {vr(q+4*j,4)}, {'0' if zero else vr(c,4)}"
                for (i, j) in ij for c in [seg.acc + st * i + 4 * j]]
    def spread(self, main, fill):
        n = len(main); k = len(fill)
        if k == 0: return list(main)
        span = max(1, min(n, int(n * self.opt['span'])))
        out = []; fi = 0
        for i, m in enumerate(main):
            out.append(m)
            while fi < k and (fi * span) // k <= i:
                out.extend(fill[fi]); fi += 1
        while fi < k: out.extend(fill[fi]); fi += 1
        return out
    def mix(self, reads, dma):
        m = self.opt["dmapos"]
        if m == "first": return dma + reads
        if m == "last": return reads + dma
        return merge(reads, dma)
    def ring_adv(self, sD, sR, stride, nb):
        return [f"s_mov_b32 s{sD}, s{sR}", f"s_add_u32 s{sR}, s{sR}, {stride}", f"s_cmp_eq_u32 s{sR}, {stride*nb}", f"s_cselect_b32 s{sR}, 0, s{sR}"]
    def advance(self):
        out = []
        if self.early: out.append(f"s_mov_b32 s{self.sE}, s{self.sDP if (self.joint or self.early == 'P') else self.sDQ}")
        if self.joint: return out + self.ring_adv(self.sDP, self.sRP, self.SP + self.SQ, self.NBP)
        return out + self.ring_adv(self.sDP, self.sRP, self.SP, self.NBP) + self.ring_adv(self.sDQ, self.sRQ, self.SQ, self.NBQ)
    def dma_list(self, which, seg, sBuf):
        if seg is None or C.nodma: return []
        if which == 'P': return seg.Pdma(sBuf) + [list(seg.kadvP)]
        return seg.Qdma(sBuf) + [list(seg.kadvQ)] + seg.xdma
    def body(self, cur, nxt, dP, dQ, vmw, pre_barrier=None, extra=None, zero=False):
        a = self.a
        self.emit(self.advance())
        a("s_waitcnt lgkmcnt(0)")
        fill = self.reads(cur, 1, 1)
        if nxt is not None: fill.append(nxt.P.upd_A(self.sRP) + nxt.Q.upd_A(self.sRQ))
        if self.early == 'P': fill = self.mix(fill, self.dma_list('P', dP, self.sE))
        if self.early == 'Q': fill = self.mix(fill, self.dma_list('Q', dQ, self.sE))
        if nxt is None and extra: fill = fill + extra
        self.emit(self.spread(self.mfmas(cur, 0, zero), fill))
        if nxt is None:
            a("s_waitcnt lgkmcnt(0)")
            self.emit(self.mfmas(cur, 1))
            return
        if pre_barrier: pre_barrier()
        a(f"s_waitcnt vmcnt({vmw}) lgkmcnt(0)")
        a("s_barrier")
        if self.opt["prio"]: a("s_setprio 1")
        fill = self.reads(nxt, 0, 0)
        d = []
        if self.early != 'P': d += self.dma_list('P', dP, self.sDP)
        if self.early != 'Q': d += self.dma_list('Q', dQ, self.sDQ)
        fill = self.mix(fill, d)
        u = nxt.P.upd_B(self.sRP) + nxt.Q.upd_B(self.sRQ)
        if u: fill.append(u)
        if extra: fill = fill + extra
        self.emit(self.spread(self.mfmas(cur, 1), fill))
        if self.opt["prio"]: a("s_setprio 0")
    def prologue(self, stages, which="PQ", first=0, last=None):
        a = self.a
        stride = self.SP + self.SQ if self.joint else None
        if first == 0:
            a(f"s_mov_b32 s{self.sDP}, 0")
            if not self.joint: a(f"s_mov_b32 s{self.sDQ}, 0")
        for s in range(first, max(self.leadP, self.leadQ) if last is None else last):
            if "P" in which and s < self.leadP:
                for g in stages[s].Pdma(self.sDP): self.emit(g)
                self.emit(stages[s].kadvP); self.note(('P', s), stages[s].P.count()[0])
                if not self.joint: a(f"s_add_u32 s{self.sDP}, s{self.sDP}, {self.SP}")
            if "Q" in which and s < self.leadQ:
                for g in stages[s].Qdma(self.sDQ): self.emit(g)
                self.emit(stages[s].kadvQ); self.note(('Q', s), stages[s].Q.count()[0])
                if not self.joint: a(f"s_add_u32 s{self.sDQ}, s{self.sDQ}, {self.SQ}")
            if self.joint: a(f"s_add_u32 s{self.sDP}, s{self.sDP}, {stride}")
    def run(self, stages, hooks=None, extras=None, post_first=None):
        a = self.a; N = len(stages)
        hooks = dict(hooks or {}); extras = extras or {}
        for it in C.dummypeel.get(self.name, []):
            if it not in hooks: hooks[it] = (lambda: None)
        a(f"s_waitcnt vmcnt({self.vm_allow({('P',0),('Q',0)})})")
        if getattr(self, "pre_first", None): self.pre_first()
        a("s_barrier")
        if post_first: post_first()
        seen = []
        for sg in stages:
            for op in (sg.P, sg.Q):
                if op not in seen: seen.append(op); self.emit(op.init_cur())
        if self.joint:
            a(f"s_mov_b32 s{self.sRP}, 0"); a(f"s_mov_b32 s{self.sDP}, {(self.SP+self.SQ)*(self.NBP-1)}")
        else:
            a(f"s_mov_b32 s{self.sRP}, 0"); a(f"s_mov_b32 s{self.sDP}, {self.SP*(self.NBP-1)}")
            a(f"s_mov_b32 s{self.sRQ}, 0"); a(f"s_mov_b32 s{self.sDQ}, {self.SQ*(self.NBQ-1)}")
        for g in self.reads(stages[0], 0, 0): self.emit(g)
        sigs = []; seen_acc = set()
        for i in range(N):
            nxt = stages[i + 1] if i + 1 < N else None
            dP = stages[i + self.leadP] if i + self.leadP < N else None
            dQ = stages[i + self.leadQ] if i + self.leadQ < N else None
            def noteP():
                if dP is not None: self.note(('P', i + self.leadP), dP.P.count()[0])
            def noteQ():
                if dQ is not None:
                    self.note(('Q', i + self.leadQ), dQ.Q.count()[0])
                    if dQ.xdma: self.note(('PF', i), len(dQ.xdma))
            if self.early == 'P': noteP()
            if self.early == 'Q': noteQ()
            vmw = self.vm_allow({('P', i + 1), ('Q', i + 1)}) if nxt is not None else 0
            if i in getattr(self, "want_allow", {}):
                if not hasattr(self, "allow_at"): self.allow_at = {}
                self.allow_at[i] = self.vm_allow({self.want_allow[i]})
            if self.early != 'P': noteP()
            if self.early != 'Q': noteQ()
            if i in extras: self.note(('X', i), extras[i][1])
            zero = self.zero_first and stages[i].acc not in seen_acc
            seen_acc.add(stages[i].acc)
            sigs.append((stages[i], nxt, dP, dQ, vmw, i if (i in hooks or i in extras or zero) else -1, zero))
        i = 0
        while i < N:
            j = i
            while j < N and sigs[j] == sigs[i]: j += 1
            cnt = j - i
            cur, nxt, dP, dQ, vmw, sp, zero = sigs[i]
            hk = hooks.get(sp); ex = extras[sp][0] if sp in extras else None
            if cnt >= 2:
                lbl = newlabel("gl")
                a(f"s_mov_b32 s{self.sCnt}, {cnt}")
                a.label(lbl)
                self.body(cur, nxt, dP, dQ, vmw)
                a(f"s_sub_u32 s{self.sCnt}, s{self.sCnt}, 1"); a(f"s_cmp_lg_u32 s{self.sCnt}, 0"); a(f"s_cbranch_scc1 {lbl}")
            else:
                self.body(cur, nxt, dP, dQ, vmw, hk, ex, zero)
            i = j

def merge(x, y):
    out = []; i = j = 0
    while i < len(x) or j < len(y):
        if j >= len(y) or (i < len(x) and i * len(y) <= j * len(x)): out.append(x[i]); i += 1
        else: out.append(y[j]); j += 1
    return out

def bf16_round(a, vdst, vsrc):
    a(f"v_cvt_pk_bf16_f32 v{vdst}, v{vsrc}, v{vsrc}"); a(f"v_lshlrev_b32 v{vdst}, 16, v{vdst}")

def stamp(a, idx, real=False, st="main"):
    if C.dbgst and st == C.stampset:
        a("s_memrealtime s[88:89]" if real else "s_memtime s[88:89]")
        a("s_waitcnt lgkmcnt(0)")
        a(f"s_mov_b32 s{92+idx}, s88")

sWave, sM, sN, sRole = 28, 29, 30, 31
sBufD, sBufR, sCnt, sTmp, sKP, sKQ, sLdsP, sLdsQ = 32, 33, 34, 35, 36, 37, 38, 39
sWp, sWq, sRot, sLdsP2, sKP2, sTile, sTt, sDt = 80, 81, 82, 83, 84, 85, 86, 87
SX, SA, SB_, SWS, SDBG, SS = 4, 8, 12, 16, 20, 24
T0, T1, T2, T3 = 76, 77, 78, 79
U0, U1, U2, U3 = 88, 89, 90, 91
VT = 2

def ssm_param_loads(a, vch, t):
    a(f"v_lshlrev_b32 v{t}, 1, v{vch}")
    for k, name in enumerate(("lre", "lim", "ldt")):
        srd(a, SS, PTR[name], 2048)
        a(f"buffer_load_ushort v{t+1+k}, v{t}, s[{SS}:{SS+3}], 0 offen")

def ssm_params_compute(a, out, t, want_kappa=True):
    lre, lim, ldt = t + 1, t + 2, t + 3
    x0, x1, x2, x3 = t + 4, t + 5, t + 6, t + 7
    lr, li, kr, ki = out, out + 1, out + 2, out + 3
    for r in (lre, lim, ldt): a(f"v_lshlrev_b32 v{r}, 16, v{r}")
    a(f"v_mul_f32 v{x0}, {LOG2E:#x}, v{ldt}"); a(f"v_exp_f32 v{x0}, v{x0}"); a("s_nop 0")
    bf16_round(a, x0, x0)
    a(f"v_mul_f32 v{x1}, v{x0}, v{lre}"); a(f"v_mul_f32 v{x2}, v{x0}, v{lim}")
    a(f"v_mul_f32 v{x1}, {LOG2E:#x}, v{x1}"); a(f"v_exp_f32 v{x1}, v{x1}")
    a(f"v_mul_f32 v{x2}, {INV2PI:#x}, v{x2}"); a(f"v_rndne_f32 v{x3}, v{x2}"); a(f"v_sub_f32 v{x2}, v{x2}, v{x3}")
    a(f"v_cos_f32 v{x3}, v{x2}"); a(f"v_sin_f32 v{x2}, v{x2}"); a("s_nop 0")
    a(f"v_mul_f32 v{lr}, v{x1}, v{x3}"); a(f"v_mul_f32 v{li}, v{x1}, v{x2}")
    if want_kappa:
        a(f"v_subrev_f32 v{x0}, 1.0, v{lr}")
        a(f"v_mul_f32 v{x1}, v{x0}, v{lre}"); a(f"v_fmac_f32 v{x1}, v{li}, v{lim}")
        a(f"v_mul_f32 v{x2}, v{li}, v{lre}"); a(f"v_fma_f32 v{x2}, -v{x0}, v{lim}, v{x2}")
        a(f"v_mul_f32 v{x3}, v{lre}, v{lre}"); a(f"v_fmac_f32 v{x3}, v{lim}, v{lim}")
        a(f"v_rcp_f32 v{x3}, v{x3}"); a("s_nop 0")
        a(f"v_add_f32 v{x3}, v{x3}, v{x3}")
        a(f"v_mul_f32 v{kr}, v{x1}, v{x3}"); a(f"v_mul_f32 v{ki}, v{x2}, v{x3}")

def csq(a, dr, di, sr_, si, t):
    a(f"v_mul_f32 v{t}, v{sr_}, v{si}"); a(f"v_mul_f32 v{dr}, v{sr_}, v{sr_}")
    a(f"v_fma_f32 v{dr}, -v{si}, v{si}, v{dr}"); a(f"v_add_f32 v{di}, v{t}, v{t}")

def gate_row_loads(a, sRow, vx, t):
    a(f"s_lshl_b32 s{U1}, s{sRow}, 11")
    a(f"buffer_load_dwordx4 {vr(vx,4)}, v{t}, s[{SX}:{SX+3}], s{U1} offen")
    a(f"buffer_load_dwordx4 {vr(vx+4,4)}, v{t}, s[{SX}:{SX+3}], s{U1} offen offset:16")

def gate_compute(a, sRow, vx, vw, t):
    acc = t; p0, p1, q0, q1 = t + 1, t + 2, t + 3, t + 4
    a(f"v_mov_b32 v{acc}, 0")
    for d in range(8):
        a(f"v_lshlrev_b32 v{p0}, 16, v{vx+d}"); a(f"v_and_b32 v{p1}, 0xffff0000, v{vx+d}")
        a(f"v_lshlrev_b32 v{q0}, 16, v{vw+d}"); a(f"v_and_b32 v{q1}, 0xffff0000, v{vw+d}")
        a(f"v_mul_f32 v{p0}, v{p0}, v{q0}"); a(f"v_mul_f32 v{p1}, v{p1}, v{q1}")
        a(f"v_cvt_pk_bf16_f32 v{p0}, v{p0}, v{p1}")
        a(f"v_and_b32 v{p1}, 0xffff0000, v{p0}"); a(f"v_lshlrev_b32 v{p0}, 16, v{p0}")
        a(f"v_add_f32 v{acc}, v{acc}, v{p0}"); a(f"v_add_f32 v{acc}, v{acc}, v{p1}")
    for sh in (1, 2, 4, 8):
        a("s_nop 1")
        a(f"v_add_f32_dpp v{acc}, v{acc}, v{acc} row_shr:{sh} row_mask:0xf bank_mask:0xf bound_ctrl:0")
    a("s_nop 1")
    a(f"v_add_f32_dpp v{acc}, v{acc}, v{acc} row_bcast:15 row_mask:0xa bank_mask:0xf")
    a("s_nop 1")
    a(f"v_add_f32_dpp v{acc}, v{acc}, v{acc} row_bcast:31 row_mask:0xc bank_mask:0xf")
    a("s_nop 1")
    a(f"v_readlane_b32 s{U0}, v{acc}, 63")
    a("s_nop 1")
    a(f"v_mov_b32 v{acc}, s{U0}")
    bf16_round(a, acc, acc)
    a(f"v_mul_f32 v{p0}, {LOG2E ^ 0x80000000:#x}, v{acc}"); a(f"v_exp_f32 v{p0}, v{p0}"); a("s_nop 0")
    a(f"v_add_f32 v{p0}, 1.0, v{p0}"); a(f"v_rcp_f32 v{p0}, v{p0}"); a("s_nop 0")
    bf16_round(a, p0, p0)
    a(f"v_sub_f32 v{p1}, 1.0, v{p0}")
    bf16_round(a, p1, p1)
    a(f"s_lshl_b32 s{U0}, s{sRow}, 3"); a(f"s_add_u32 s{U0}, s{U0}, {WS_G}")
    a(f"v_cmp_eq_u32 vcc, 0, v0"); a("s_nop 1")
    a(f"v_cndmask_b32 v{p0}, v{p1}, v{p0}, vcc")
    a(f"v_lshlrev_b32 v{q0}, 2, v0")
    a("s_mov_b64 exec, 3")
    a(f"buffer_store_dword v{p0}, v{q0}, s[{SWS}:{SWS+3}], s{U0} offen sc1")
    a("s_mov_b64 exec, -1")

SENT = 0xffffffff
def inbox_offset(a, sdst):
    a(f"s_lshl_b32 s{sdst}, s2, 3"); a(f"s_add_u32 s{sdst}, s{sdst}, s{sWave}"); a(f"s_mul_i32 s{sdst}, s{sdst}, {4096*(C.ns-1)}")
    a(f"s_add_u32 s{sdst}, s{sdst}, {WS_XB}")

def mb_zero_groups(vt, ssm=False):
    c = []
    q = (vt + 1) // 2 * 2
    sk = newlabel("mz")
    c += [f"s_cmp_lg_u32 s{sWave}, 0", f"s_cbranch_scc1 {sk}"]
    if ssm:
        c += [f"v_mov_b32 v{q}, -1", f"v_mov_b32 v{q+1}, -1",
              f"s_lshl_b32 s{U0}, s{sN}, 6", f"v_add_u32 v{q+4}, s{U0}, v0", f"v_lshlrev_b32 v{q+4}, 3, v{q+4}",
              f"s_lshl_b32 s{U0}, s{sM}, 13", f"s_add_u32 s{U0}, s{U0}, {WS_AGG}",
              f"buffer_store_dwordx2 {vr(q,2)}, v{q+4}, s[{SWS}:{SWS+3}], s{U0} offen sc1"]
    c += [f"v_mov_b32 v{q+2}, 0", f"v_lshlrev_b32 v{q+4}, 2, v0", f"s_lshl_b32 s{U0}, s2, 8", f"s_add_u32 s{U0}, s{U0}, {WS_MB}",
          f"buffer_store_dword v{q+2}, v{q+4}, s[{SWS}:{SWS+3}], s{U0} offen sc1", f"{sk}:"]
    return [c], 0

def inbox_init(a, vt):
    for r in range(4): a(f"v_mov_b32 v{vt+r}, -1")
    a(f"v_lshlrev_b32 v{vt+4}, 4, v0")
    inbox_offset(a, U0)
    for i in range(4 * (C.ns - 1)):
        a(f"buffer_store_dwordx4 {vr(vt,4)}, v{vt+4}, s[{SWS}:{SWS+3}], s{U0} offen offset:{(i%4)*1024} sc1")
        if i % 4 == 3: a(f"s_add_u32 s{U0}, s{U0}, 4096")

def init_signal(a, vt, idx=0, guard=True):
    sk = newlabel("mi")
    if guard: a(f"s_cmp_lg_u32 s{sWave}, 0"); a(f"s_cbranch_scc1 {sk}")
    a(f"v_mov_b32 v{vt}, 1"); a(f"v_mov_b32 v{vt+1}, {4*idx}")
    a("s_mov_b64 exec, 1")
    a(f"buffer_atomic_add v{vt}, v{vt+1}, s[{SDBG}:{SDBG+3}], 0 offen sc1")
    a("s_mov_b64 exec, -1")
    a.label(sk)

def poll(a, srd_, sByteOff, check, vt, wide=1, sleep=None):
    lp, ok = newlabel("poll"), newlabel("pok")
    a(f"v_mov_b32 v{vt+4}, s{sByteOff}")
    a(f"s_mov_b32 s{U2}, {C.spin}")
    a.label(lp)
    a(f"s_sub_u32 s{U2}, s{U2}, 1"); a(f"s_cmp_eq_u32 s{U2}, 0"); a(f"s_cbranch_scc1 {ok}")
    op = {1: "dword", 2: "dwordx2", 4: "dwordx4"}[wide]
    a(f"buffer_load_{op} {vr(vt,wide)}, v{vt+4}, s[{srd_}:{srd_+3}], 0 offen sc1")
    a("s_waitcnt vmcnt(0)")
    a(f"v_readfirstlane_b32 s{U0}, v{vt}")
    if wide >= 2: a(f"v_readfirstlane_b32 s{U1}, v{vt+1}")
    if wide >= 4: a(f"v_readfirstlane_b32 s{U3}, v{vt+2}")
    a("s_nop 3")
    check(ok)
    a(f"s_sleep {C.sleep if sleep is None else sleep}")
    a(f"s_branch {lp}")
    a.label(ok)

VINIT = 1
def init_load(a, idx=0):
    sk = newlabel("il")
    a(f"s_cmp_lg_u32 s{sWave}, 0"); a(f"s_cbranch_scc1 {sk}")
    a(f"v_mov_b32 v{VINIT}, {4*idx}")
    a(f"buffer_load_dword v{VINIT}, v{VINIT}, s[{SDBG}:{SDBG+3}], 0 offen sc1")
    a.label(sk)

def init_check(a, vt, idx=0):
    ok = newlabel("ic")
    a(f"v_readfirstlane_b32 s{U0}, v{VINIT}"); a("s_nop 3")
    a(f"s_cmp_ge_u32 s{U0}, 256"); a(f"s_cbranch_scc1 {ok}")
    a(f"s_mov_b32 s{T3}, {4*idx}")
    def chk(o): a(f"s_cmp_ge_u32 s{U0}, 256"); a(f"s_cbranch_scc1 {o}")
    poll(a, SDBG, T3, chk, vt, sleep=32)
    a.label(ok)

def poll_own(a, check, vt):
    a(f"s_lshl_b32 s{T3}, s2, 8"); a(f"s_add_u32 s{T3}, s{T3}, {WS_MB}")
    poll(a, SWS, T3, check, vt, wide=4)

def signal_cnt(a, dword, vt):
    NS = C.ns; XS = 8 // NS
    l, t1, t2 = vt, vt + 1, vt + 2
    t3 = vt + 3
    if NS == 2:
        a(f"v_bfe_u32 v{t1}, v0, 3, 1"); a(f"s_lshl_b32 s{T0}, s{sM}, 1"); a(f"v_add_u32 v{t1}, s{T0}, v{t1}")
        a(f"v_bfe_u32 v{t3}, v0, 4, 1")
    else:
        a(f"v_mov_b32 v{t1}, s{sM}")
        a(f"v_bfe_u32 v{t3}, v0, 3, 2")
    a(f"v_lshrrev_b32 v{t2}, 2, v{t1}"); a(f"v_mad_u32_u24 v{t2}, v{t3}, {XS}, v{t2}")
    a(f"v_and_b32 v{t1}, 3, v{t1}"); a(f"v_lshlrev_b32 v{t1}, 2, v{t1}")
    a(f"v_and_b32 v{l}, 3, v0"); a(f"v_or_b32 v{t1}, v{t1}, v{l}")
    a(f"v_bfe_u32 v{l}, v0, 2, 1"); a(f"v_and_b32 v{t3}, 1, v{t3}"); a(f"v_xor_b32 v{l}, v{l}, v{t3}"); a(f"v_xor_b32 v{l}, 1, v{l}")
    a(f"v_lshl_or_b32 v{t1}, v{l}, 4, v{t1}")
    a(f"v_lshl_or_b32 v{t1}, v{t1}, 3, v{t2}")
    a(f"v_lshlrev_b32 v{t1}, 8, v{t1}")
    if dword == "S" and C.fine and NS == 4:
        a(f"s_and_b32 s{T0}, s{sN}, 7"); a(f"s_lshl_b32 s{T0}, 1, s{T0}"); a(f"v_mov_b32 v{l}, s{T0}")
    else:
        a(f"v_mov_b32 v{l}, 1")
    if dword == "S":
        a(f"s_lshr_b32 s{T0}, s{sN}, 3"); a(f"s_lshl_b32 s{T0}, s{T0}, 2"); a(f"s_add_u32 s{T0}, s{T0}, {WS_MB}")
    else:
        a(f"s_mov_b32 s{T0}, {WS_MB + 4*dword}")
    a("s_mov_b32 exec_hi, 0")
    a(f"buffer_atomic_add v{l}, v{t1}, s[{SWS}:{SWS+3}], s{T0} offen sc1")
    a("s_mov_b64 exec, -1")

def bulk_prefetch(a, G, vdummy, vaddr):
    a(f"v_lshlrev_b32 v{vaddr}, 4, v0")
    n = 0
    for name, size in C.pflist:
        size = {"x": L*D*2, "w1": D*F*2, "bre": P_*D*2, "bim": P_*D*2, "cre": D*P_*2, "cim": D*P_*2, "w2": F*D*2}[name]
        share = size // 256; pw = share // 8
        a(f"s_mul_i32 s{U0}, s2, {share}"); a(f"s_mul_i32 s{U1}, s{sWave}, {pw}"); a(f"s_add_u32 s{U0}, s{U0}, s{U1}")
        a(f"s_mov_b32 s{T0}, s{PTR[name]}"); a(f"s_mov_b32 s{T0+1}, s{PTR[name]+1}")
        a(f"s_add_u32 s{T0+2}, s{U0}, {pw}"); a(f"s_mov_b32 s{T0+3}, 0x20000")
        for i in range(-(-pw // 1024)):
            a(f"buffer_load_dwordx4 {vr(vdummy,4)}, v{vaddr}, s[{T0}:{T0+3}], s{U0} offen offset:{i*1024}")
            n += 1
    G.note('pf', n)

def tlb_warm(a, vdummy, vaddr, names, tsrd):
    sizes = {"w2": F*D*2, "cre": D*P_*2, "cim": D*P_*2, "out": L*D*4, "lre": 2048, "lim": 2048, "ldt": 2048, "dsk": 2048, "b2": 2048, "gw": 2048}
    a(f"v_lshlrev_b32 v{vaddr}, {C.tlbshift}, v0")
    end = newlabel("tw")
    for w in range(8):
        nx = newlabel("tw")
        a(f"s_cmp_lg_u32 s{sWave}, {w}"); a(f"s_cbranch_scc1 {nx}")
        for name in names[w::8]:
            if name == "ws":
                a("s_mov_b32 exec_lo, 0x00ffffff"); a("s_mov_b32 exec_hi, 0")
                a(f"buffer_load_dword v{vdummy}, v{vaddr}, s[{SWS}:{SWS+3}], 0 offen")
                a("s_mov_b64 exec, -1")
            elif name == "dbg":
                a(f"buffer_load_dword v{vdummy}, v{vaddr}, s[{SDBG}:{SDBG+3}], 0 offen")
            else:
                a(f"s_mov_b32 s{tsrd}, s{PTR[name]}"); a(f"s_mov_b32 s{tsrd+1}, s{PTR[name]+1}"); a(f"s_mov_b32 s{tsrd+2}, {sizes[name]}"); a(f"s_mov_b32 s{tsrd+3}, 0x20000")
                a(f"buffer_load_dword v{vdummy}, v{vaddr}, s[{tsrd}:{tsrd+3}], 0 offen")
        a(f"s_branch {end}")
        a.label(nx)
    a.label(end)

def warm_groups(tsrd, vaddr):
    c = []
    end = newlabel("wg")
    c.append(f"v_lshlrev_b32 v{vaddr}, 20, v0")
    for w, name in enumerate(("a2", "cre", "cim", "w2")):
        nx = newlabel("wg")
        c += [f"s_cmp_lg_u32 s{sWave}, {w}", f"s_cbranch_scc1 {nx}"]
        if name == "a2":
            c += [f"s_mul_i32 s{U0}, s{sM}, {256*RS_A2}", "s_mov_b64 exec, 15",
                  f"buffer_load_dword v250, v{vaddr}, s[{SWS}:{SWS+3}], s{U0} offen", "s_mov_b64 exec, -1"]
        else:
            size = {"cre": D*P_*2, "cim": D*P_*2, "w2": F*D*2}[name]
            c += [f"s_mov_b32 s{tsrd}, s{PTR[name]}", f"s_mov_b32 s{tsrd+1}, s{PTR[name]+1}", f"s_mov_b32 s{tsrd+2}, {size}", f"s_mov_b32 s{tsrd+3}, 0x20000",
                  f"buffer_load_dword v250, v{vaddr}, s[{tsrd}:{tsrd+3}], 0 offen"]
        c += [f"s_branch {end}", f"{nx}:"]
    c.append(f"{end}:")
    return [c], 0

def code_pf_groups(vt):
    l, sk = newlabel("cp"), newlabel("cps")
    c = [f"s_cmp_lg_u32 s{sWave}, 7", f"s_cbranch_scc1 {sk}",
         f"s_getpc_b64 s[{U0}:{U1}]", f"{l}:",
         f"s_sub_u32 s{U0}, s{U0}, {l}-{NAME}", f"s_subb_u32 s{U1}, s{U1}, 0",
         f"s_lshr_b32 s{U2}, s2, 3", f"s_lshl_b32 s{U2}, s{U2}, 11",
         f"v_lshlrev_b32 v{vt}, 7, v0", f"v_add_u32 v{vt}, s{U2}, v{vt}", f"v_min_u32 v{vt}, L_codeend-{NAME}-4, v{vt}",
         "s_mov_b64 exec, 0xffff", f"global_load_dword v250, v{vt}, s[{U0}:{U1}]", "s_mov_b64 exec, -1", f"{sk}:"]
    return [c], 0

def phase1_dense(a):
    V = Regs(10)
    TP, TQ = 224, 256
    mp, mq = 7, 4
    Pop = OpNC(a, V, TP, 0, mp, F * 2)
    NBP, NBQ = (3, 2) if C.d1p else (2, 3)
    Qop = OpKC(a, V, TQ, NBP * Pop.bytes, mq); Qop.groups = [[0, 1, 2, 3]]
    G = Gemm(a, V, NBP, NBQ, Pop.bytes, Qop.bytes, mp, mq, (sBufD, sBufR, sTile, sTt, sCnt, sRole), False, 'P' if C.d1p else 'Q', 'd1')
    LDS1 = NBP * Pop.bytes + NBQ * Qop.bytes
    acc = V.get(4 * mp * mq, 2)
    vb = V.get(2 * mp, 2); vdum = V.get(4, 2)
    a(f"s_lshr_b32 s{sWp}, s{sWave}, 2"); a(f"s_and_b32 s{sWq}, s{sWave}, 3")
    a(f"s_mul_i32 s{T0}, s{sN}, {TP*2}")
    Pop.setup_dma(sWave, VT, T0, U0)
    Qop.lane_chunk(VT, VT + 1)
    a(f"v_lshrrev_b32 v{VT+1}, 3, v0"); a(f"v_lshl_add_u32 v{VT}, v{VT+1}, 11, v{VT}")
    for j in range(4):
        a(f"s_lshl_b32 s{T0}, s{sM}, 8"); a(f"s_lshl_b32 s{T1}, s{sWave}, 5"); a(f"s_add_u32 s{T0}, s{T0}, s{T1}")
        a(f"s_add_u32 s{T0}, s{T0}, {8*j}"); a(f"s_lshl_b32 s{T0}, s{T0}, 11"); a(f"s_sub_u32 s{T0}, s{T0}, {j*1024}")
        Qop.set_voff(j, VT, T0, bool(j & 1))
    Pop.setup_lds(sWave, sLdsP, U0)
    a(f"s_lshl_b32 s{sLdsQ}, s{sWave}, 12"); a(f"s_add_u32 s{sLdsQ}, s{sLdsQ}, {Qop.lds_off}")
    a(f"s_mul_i32 s{sKP}, s{sRot}, {64*F*2}"); a(f"s_lshl_b32 s{sKQ}, s{sRot}, 7")
    a("s_waitcnt lgkmcnt(0)")
    stamp(a, 1, st="pro")
    srd(a, SX, PTR["x"], L * D * 2); srd(a, SWS, PTR["ws"], WS_SIZE); srd(a, SDBG, PTR["dbg"], 256)
    srd(a, SA, PTR["w1"], D * F * 2)
    kadvP = [f"s_add_u32 s{sKP}, s{sKP}, {64*F*2}", f"s_cmp_eq_u32 s{sKP}, {D*F*2}", f"s_cselect_b32 s{sKP}, 0, s{sKP}"]
    kadvQ = [f"s_add_u32 s{sKQ}, s{sKQ}, 128", f"s_and_b32 s{sKQ}, s{sKQ}, 2047"]
    seg = Seg(Pop, Qop, acc, lambda b: Pop.dma(b, sKP, sTmp, sLdsP, SA, sWave), lambda b: Qop.dma(b, sKQ, sTmp, sLdsQ, [SX] * 4), kadvP, kadvQ, "d1")
    stages = [seg] * 16
    G.prologue(stages, "PQ", 0, 1)
    if C.pbar: a("s_barrier")
    if C.tlb: tlb_warm(a, 250, VT + 5, ["ws", "w2", "cre", "cim", "out", "dbg", "dsk", "b2"], SS); G.note('tlb', 1)
    stamp(a, 2, st="pro")
    a(f"s_mul_i32 s{T2}, s{sN}, {TP}"); a(f"s_mul_i32 s{T3}, s{sWp}, {mp*16}"); a(f"s_add_u32 s{T2}, s{T2}, s{T3}")
    a(f"s_lshl_b32 s{T3}, s{T2}, 1")
    a(f"v_lshrrev_b32 v{VT+2}, 4, v0"); a(f"v_lshlrev_b32 v{VT+2}, 3, v{VT+2}")
    srd(a, SS, PTR["b1"], F * 2)
    for i in range(mp):
        a(f"buffer_load_dwordx2 {vr(vb+2*i,2)}, v{VT+2}, s[{SS}:{SS+3}], s{T3} offen offset:{32*i}")
    G.note('misc', mp)
    a(f"s_mul_i32 s{T0}, s{sWp}, {mp}"); Pop.setup_read(T0, VT, U0)
    a(f"s_mul_i32 s{T0}, s{sWq}, {mq}"); Qop.setup_read(T0, VT, U0)
    stamp(a, 3, st="pro")
    G.prologue(stages, "PQ", 1)
    if C.bulk: bulk_prefetch(a, G, 252, VT + 5)
    stamp(a, 4, st="pro")
    a(f"s_waitcnt vmcnt({G.vm_allow({'misc'})})")
    for i in range(mp):
        c = acc + 4 * (i * mq)
        a(f"v_lshlrev_b32 v{c}, 16, v{vb+2*i}"); a(f"v_and_b32 v{c+1}, 0xffff0000, v{vb+2*i}")
        a(f"v_lshlrev_b32 v{c+2}, 16, v{vb+2*i+1}"); a(f"v_and_b32 v{c+3}, 0xffff0000, v{vb+2*i+1}")
        for j in range(1, mq):
            for r in range(4): a(f"v_mov_b32 v{c+4*j+r}, v{c+r}")
    stamp(a, 1)
    G.pre_first = lambda: stamp(a, 5, st="pro")
    dex = {C.initit: mb_zero_groups(VT + 2)}
    if C.midwarm: dex[C.midwarm] = warm_groups(SS, VT + 3)
    if C.codepf2: dex[C.codepf2] = code_pf_groups(VT + 3)
    G.run(stages, {C.initit + 3: (lambda: init_signal(a, VT + 4))}, dex, (lambda: stamp(a, 6, st="pro")))
    stamp(a, 2)
    stamp(a, 1, st="clk"); stamp(a, 2, real=True, st="clk")
    PITCH = 464
    stamp(a, 1, st="dense")
    init_load(a)
    vw = VT
    a(f"v_and_b32 v{vw}, 15, v0"); a(f"v_mul_u32_u24 v{vw}, {PITCH}, v{vw}")
    a(f"v_lshrrev_b32 v{VT+1}, 4, v0"); a(f"v_lshl_add_u32 v{vw}, v{VT+1}, 3, v{vw}")
    a(f"s_mul_i32 s{T0}, s{sWq}, {64*PITCH}"); a(f"s_mul_i32 s{T1}, s{sWp}, 224"); a(f"s_add_u32 s{T0}, s{T0}, s{T1}")
    a(f"v_add_u32 v{vw}, s{T0}, v{vw}")
    vr_, vg_ = VT + 1, VT + 2
    a(f"v_cmp_le_u32 vcc, 28, v0"); a("s_nop 1")
    a(f"v_cndmask_b32 v{VT+3}, 0, 1, vcc")
    a(f"v_mul_u32_u24 v{VT+4}, 28, v{VT+3}"); a(f"v_sub_u32 v{VT+4}, v0, v{VT+4}")
    a(f"v_lshlrev_b32 v{VT+4}, 4, v{VT+4}")
    a(f"v_mul_u32_u24 v{vr_}, {PITCH}, v{VT+3}"); a(f"v_add_u32 v{vr_}, v{vr_}, v{VT+4}")
    NH = C.dparts; JP = mq // NH; RW = 8 * JP
    a(f"s_mul_i32 s{T0}, s{sWq}, {64*PITCH}"); a(f"s_mul_i32 s{T1}, s{sWp}, {RW*PITCH}"); a(f"s_add_u32 s{T0}, s{T0}, s{T1}")
    a(f"v_add_u32 v{vr_}, s{T0}, v{vr_}")
    a(f"v_mul_u32_u24 v{vg_}, {RS_A2}, v{VT+3}"); a(f"v_add_u32 v{vg_}, v{vg_}, v{VT+4}")
    a(f"s_lshl_b32 s{T0}, s{sM}, 8"); a(f"s_lshl_b32 s{T1}, s{sWq}, 6"); a(f"s_add_u32 s{T0}, s{T0}, s{T1}")
    a(f"s_mul_i32 s{T1}, s{sWp}, {RW}"); a(f"s_add_u32 s{T0}, s{T0}, s{T1}")
    a(f"s_mul_i32 s{T0}, s{T0}, {RS_A2}"); a(f"s_mul_i32 s{T1}, s{sN}, 448"); a(f"s_add_u32 s{T0}, s{T0}, s{T1}")
    a(f"s_add_u32 s{T0}, s{T0}, {WS_A2 + 4096}")
    rb = G.F[0][0]
    for p in range(NH):
        js = range(p * JP, (p + 1) * JP)
        for j in js:
            for i in range(mp):
                c = acc + 4 * (i * mq + j)
                for r in range(4): a(f"v_mul_f32_e64 v{c+r}, v{c+r}, |v{c+r}|")
                a(f"v_cvt_pk_bf16_f32 v{c}, v{c}, v{c+1}"); a(f"v_cvt_pk_bf16_f32 v{c+1}, v{c+2}, v{c+3}")
                a(f"v_pk_max_i16 v{c}, v{c}, 0"); a(f"v_pk_max_i16 v{c+1}, v{c+1}, 0")
        if p == 0:
            a("s_barrier")
            stamp(a, 2, st="dense")
        for j in js:
            for i in range(mp):
                c = acc + 4 * (i * mq + j)
                a(f"ds_write_b64 v{vw}, {vr(c,2)} offset:{j*16*PITCH + 32*i}")
        a("s_waitcnt lgkmcnt(0)")
        if p == 0: stamp(a, 3, st="dense")
        a("s_barrier")
        if p == 0: stamp(a, 4, st="dense")
        a("s_mov_b32 exec_hi, 0x00ffffff")
        nst = RW // 2
        for n in range(nst):
            a(f"ds_read_b128 {vr(rb+4*n,4)}, v{vr_} offset:{(16*JP*p + 2*n)*PITCH}")
        if p: a(f"s_add_u32 s{T0}, s{T0}, {(16*JP - RW)*RS_A2}")
        for n in range(nst):
            a(f"s_waitcnt lgkmcnt({nst-1-n})")
            a(f"buffer_store_dwordx4 {vr(rb+4*n,4)}, v{vg_}, s[{SWS}:{SWS+3}], s{T0} offen{C.wt}")
            a(f"s_add_u32 s{T0}, s{T0}, {2*RS_A2}")
        a("s_mov_b64 exec, -1")
        if p < NH - 1: a("s_nop 1")
    stamp(a, 5, st="dense")
    return V.hi, max(LDS1, 4 * 64 * PITCH)

def phase1_ssm(a):
    V = Regs(10)
    mp, mq = 4, 4
    Pop = OpKC(a, V, 256, 0, mp); Pop.groups = [[0, 1, 2, 3]]
    Qop = OpKC(a, V, 128, Pop.bytes, mq); Qop.groups = [[0], [1]]; Qop.ldsoffs = [0, 8192]
    Qop.frag_off = lambda j: ((j & 1) * 4 + (j >> 1)) * 2048
    SB = Pop.bytes + Qop.bytes; NB = 3
    G = Gemm(a, V, NB, NB, Pop.bytes, Qop.bytes, mp, mq, (sBufD, sBufR, None, None, sCnt, sRole), True, 'P', 's1')
    acc = V.get(64, 2); prm = V.get(12, 4); big = V.get(72, 4)
    AG = NB * SB
    a(f"s_lshr_b32 s{sWp}, s{sWave}, 1"); a(f"s_and_b32 s{sWq}, s{sWave}, 1")
    Pop.lane_chunk(VT, VT + 1)
    a(f"v_lshrrev_b32 v{VT+1}, 5, v0"); a(f"v_lshlrev_b32 v{VT+1}, 4, v{VT+1}")
    a(f"v_bfe_u32 v{VT+2}, v0, 3, 2"); a(f"v_add_u32 v{VT+1}, v{VT+1}, v{VT+2}")
    a(f"v_lshl_add_u32 v{VT+3}, v{VT+1}, 11, v{VT}")
    for j in range(4):
        a(f"s_lshl_b32 s{T0}, s{sWave}, 1");
        if j >> 1: a(f"s_add_u32 s{T0}, s{T0}, 1")
        a(f"s_and_b32 s{T0}, s{T0}, 3"); a(f"s_lshl_b32 s{T0}, s{T0}, 2")
        a(f"s_lshl_b32 s{T1}, s{sWp}, 6"); a(f"s_add_u32 s{T0}, s{T0}, s{T1}")
        a(f"s_lshl_b32 s{T1}, s{sM}, 8"); a(f"s_add_u32 s{T0}, s{T0}, s{T1}")
        if j & 1: a(f"s_add_u32 s{T0}, s{T0}, 32")
        a(f"s_lshl_b32 s{T0}, s{T0}, 11")
        if j: a(f"s_sub_u32 s{T0}, s{T0}, {j*1024}")
        Pop.set_voff(j, VT + 3, T0, bool(j & 1))
    a(f"v_lshrrev_b32 v{VT+1}, 3, v0"); a(f"v_lshl_add_u32 v{VT+3}, v{VT+1}, 12, v{VT}")
    a(f"s_lshr_b32 s{T0}, s{sWave}, 2"); a(f"s_lshl_b32 s{T0}, s{T0}, 5")
    a(f"s_and_b32 s{T1}, s{sWave}, 1"); a(f"s_lshl_b32 s{T2}, s{T1}, 6"); a(f"s_lshl_b32 s{T1}, s{T1}, 4"); a(f"s_add_u32 s{T0}, s{T0}, s{T1}")
    a(f"s_bfe_u32 s{T1}, s{sWave}, 0x10001"); a(f"s_add_u32 s{T0}, s{T0}, s{T1}")
    a(f"s_lshl_b32 s{T1}, s{sN}, 6"); a(f"s_add_u32 s{T0}, s{T0}, s{T1}"); a(f"s_lshl_b32 s{T0}, s{T0}, 11")
    Qop.set_voff(0, VT + 3, T0, T2)
    a(f"v_mov_b32 v{Qop.vd+1}, v{Qop.vd}")
    a(f"s_lshl_b32 s{sLdsP}, s{sWave}, 12")
    a(f"s_lshl_b32 s{sLdsQ}, s{sWave}, 10"); a(f"s_add_u32 s{sLdsQ}, s{sLdsQ}, {Qop.lds_off}")
    a(f"s_lshl_b32 s{sKQ}, s{sRot}, 7")
    a("s_waitcnt lgkmcnt(0)")
    srd(a, SX, PTR["x"], L * D * 2); srd(a, SWS, PTR["ws"], WS_SIZE); srd(a, SDBG, PTR["dbg"], 256)
    srd(a, SA, PTR["bre"], P_ * D * 2); srd(a, SB_, PTR["bim"], P_ * D * 2)
    pt = [big, big + 8, big + 16]
    kadv = [f"s_add_u32 s{sKQ}, s{sKQ}, 128", f"s_and_b32 s{sKQ}, s{sKQ}, 2047"]
    kadvP = [f"s_add_u32 s{sKP}, s{sKP}, 128", f"s_and_b32 s{sKP}, s{sKP}, 2047"]
    a(f"s_mov_b32 s{sKP}, s{sKQ}")
    seg = Seg(Pop, Qop, acc, lambda b: Pop.dma(b, sKP, sTmp, sLdsP, [SX] * 4), lambda b: Qop.dma(b, sKQ, sTmp, sLdsQ, [SA, SB_]), kadvP, kadv, "s1")
    if C.prefetch:
        SP1, SP2, sPF1, sPF2 = SS, 72, sLdsP2, sKP2
        a(f"s_lshl_b32 s{T0}, s{sM}, 4"); a(f"s_add_u32 s{T0}, s{T0}, s{sN}")
        a(f"s_mul_i32 s{sPF2}, s{T0}, {56*1024}"); a(f"s_mul_i32 s{T1}, s{sWave}, {7*1024}"); a(f"s_add_u32 s{sPF2}, s{sPF2}, s{T1}")
        a(f"s_mov_b32 s{SP2}, s{PTR['w2']}"); a(f"s_mov_b32 s{SP2+1}, s{PTR['w2']+1}")
        a(f"s_add_u32 s{SP2+2}, s{sPF2}, {7*1024}"); a(f"s_mov_b32 s{SP2+3}, 0x20000")
        a(f"s_lshr_b32 s{T1}, s{T0}, 6"); a(f"s_cmp_eq_u32 s{T1}, 0")
        a(f"s_cselect_b32 s{SP1}, s{PTR['cre']}, s{PTR['cim']}"); a(f"s_cselect_b32 s{SP1+1}, s{PTR['cre']+1}, s{PTR['cim']+1}")
        a(f"s_and_b32 s{sPF1}, s{T0}, 63"); a(f"s_lshl_b32 s{sPF1}, s{sPF1}, 15"); a(f"s_lshl_b32 s{T1}, s{sWave}, 12"); a(f"s_add_u32 s{sPF1}, s{sPF1}, s{T1}")
        a(f"s_add_u32 s{SP1+2}, s{sPF1}, 4096"); a(f"s_mov_b32 s{SP1+3}, 0x20000")
        vpf = V.get(1); vpd = V.get(4, 2)
        a(f"v_lshlrev_b32 v{vpf}, 4, v0")
        pf = []
        for i in range(4): pf.append([f"buffer_load_dwordx4 {vr(vpd,4)}, v{vpf}, s[{SP1}:{SP1+3}], s{sPF1} offen offset:{i*1024}"])
        if not C.w2it:
            for i in range(7):
                pf.append([f"buffer_load_dwordx4 {vr(vpd,4)}, v{vpf}, s[{SP2}:{SP2+3}], s{sPF2} offen offset:{(i%4)*1024}"] + ([f"s_add_u32 s{sPF2}, s{sPF2}, 4096"] if i == 3 else []))
        p1extras = {C.pfit: (pf, len(pf))}
    else:
        p1extras = {}
    stages = [seg] * 16
    G.prologue(stages, "PQ", 0, 1)
    a(f"s_mul_i32 s{T0}, s{sWp}, {mp}"); Pop.setup_read(T0, VT, U0)
    a(f"s_lshl_b32 s{T0}, s{sWq}, 1"); Qop.setup_read(T0, VT, U0)
    G.zero_first = True
    if C.pbar: a("s_barrier")
    if C.tlb: tlb_warm(a, 250, VT + 5, ["ws", "w2", "cre", "cim", "out", "dbg", "dsk", "b2", "lre", "lim", "ldt", "gw"], 60); G.note('tlb', 1)
    G.prologue(stages, "PQ", 1)
    if C.bulk: bulk_prefetch(a, G, 252, VT + 5)
    SPRM = 60
    def prm_loads():
        out = []
        class Cap:
            def __call__(self, x): out.append([x])
        c = Cap()
        c(f"s_lshl_b32 s{T2}, s{sN}, 6"); c(f"s_lshl_b32 s{T3}, s{sWq}, 5"); c(f"s_add_u32 s{T3}, s{T3}, s{T2}")
        c(f"v_and_b32 v{VT}, 15, v0"); c(f"v_lshlrev_b32 v{VT}, 1, v{VT}"); c(f"v_add_u32 v{VT}, s{T3}, v{VT}")
        c(f"v_lshlrev_b32 v{pt[0]}, 1, v{VT}"); c(f"v_add_u32 v{pt[1]}, 2, v{pt[0]}")
        c(f"v_add_u32 v{pt[2]}, s{T2}, v0"); c(f"v_lshlrev_b32 v{pt[2]}, 1, v{pt[2]}")
        c(f"s_mov_b32 s{SPRM+2}, 2048"); c(f"s_mov_b32 s{SPRM+3}, 0x20000")
        for k, name in enumerate(("lre", "lim", "ldt")):
            out.append([f"s_mov_b32 s{SPRM}, s{PTR[name]}", f"s_mov_b32 s{SPRM+1}, s{PTR[name]+1}"] +
                       [f"buffer_load_ushort v{pt[q]+1+k}, v{pt[q]}, s[{SPRM}:{SPRM+3}], 0 offen" for q in range(3)])
        return out
    def prm_math():
        out = []
        class Cap:
            def __call__(self, x): out.append(x)
        c = Cap()
        ssm_params_compute(c, prm, pt[0]); ssm_params_compute(c, prm + 4, pt[1]); ssm_params_compute(c, prm + 8, pt[2], False)
        return [out[i:i + 4] for i in range(0, len(out), 4)]
    p1extras[3] = (prm_loads(), 9)
    p1extras[7] = (prm_math(), 0)
    stamp(a, 1)
    p1extras[C.initit] = mb_zero_groups(VT + 2, True)
    if C.midwarm: p1extras[C.midwarm] = warm_groups(60, VT + 3)
    if C.codepf2: p1extras[C.codepf2] = code_pf_groups(VT + 3)
    G.run(stages, {C.initit + 3: (lambda: init_signal(a, VT + 4))}, p1extras)
    stamp(a, 2)
    stamp(a, 1, st="clk"); stamp(a, 2, real=True, st="clk")
    stamp(a, 1, st="ssm")
    init_load(a)
    a("s_nop 7")
    def U(jc, ri, s): return acc + 4 * ((s >> 2) * 4 + 2 * jc + ri) + (s & 3)
    ag = big; tt = big + 4
    def scan_step(s):
        for jc in range(2):
            hr, hi_ = ag + 2 * jc, ag + 2 * jc + 1; lr = prm + 4 * jc; t0, t1 = tt + 2 * jc, tt + 2 * jc + 1
            a(f"v_fma_f32 v{t0}, v{lr}, v{hr}, v{U(jc,0,s)}"); a(f"v_fma_f32 v{t1}, v{lr}, v{hi_}, v{U(jc,1,s)}")
        for jc in range(2):
            hr, hi_ = ag + 2 * jc, ag + 2 * jc + 1; li = prm + 4 * jc + 1; t0, t1 = tt + 2 * jc, tt + 2 * jc + 1
            a(f"v_fma_f32 v{hi_}, v{li}, -v{hi_}, v{t0}")
            a(f"v_fma_f32 v{t1}, v{li}, v{hr}, v{t1}")
        for jc in range(2):
            hr, hi_ = ag + 2 * jc, ag + 2 * jc + 1; t1 = tt + 2 * jc + 1
            a(f"v_mov_b32 v{hr}, v{hi_}"); a(f"v_mov_b32 v{hi_}, v{t1}")
    for jc in range(2):
        a(f"v_mov_b32 v{ag+2*jc}, v{U(jc,0,0)}"); a(f"v_mov_b32 v{ag+2*jc+1}, v{U(jc,1,0)}")
    def scan2(s, src, dst):
        for jc in range(2):
            hr, hi_ = src + 2 * jc, src + 2 * jc + 1; lr = prm + 4 * jc; dr, di = dst + 2 * jc, dst + 2 * jc + 1
            a(f"v_fma_f32 v{dr}, v{lr}, v{hr}, v{U(jc,0,s)}"); a(f"v_fma_f32 v{di}, v{lr}, v{hi_}, v{U(jc,1,s)}")
        for jc in range(2):
            hr, hi_ = src + 2 * jc, src + 2 * jc + 1; li = prm + 4 * jc + 1; dr, di = dst + 2 * jc, dst + 2 * jc + 1
            a(f"v_fma_f32 v{dr}, -v{li}, v{hi_}, v{dr}"); a(f"v_fma_f32 v{di}, v{li}, v{hr}, v{di}")
    st = [ag, tt]
    for s in range(1, 16): scan2(s, st[(s - 1) & 1], st[s & 1])
    fin = st[15 & 1]
    vag = big + 8
    def calc_vag():
        a(f"v_lshrrev_b32 v{vag}, 4, v0"); a(f"s_lshl_b32 s{T0}, s{sWp}, 2"); a(f"v_add_u32 v{vag}, s{T0}, v{vag}")
        a(f"v_lshlrev_b32 v{vag}, 9, v{vag}")
        a(f"v_and_b32 v{big+9}, 15, v0"); a(f"v_lshlrev_b32 v{big+9}, 4, v{big+9}")
        a(f"s_lshl_b32 s{T0}, s{sWq}, 8"); a(f"s_add_u32 s{T0}, s{T0}, {AG}")
        a(f"v_add3_u32 v{vag}, v{vag}, v{big+9}, s{T0}")
    calc_vag()
    a(f"ds_write_b128 v{vag}, {vr(fin,4)}")
    a("s_waitcnt lgkmcnt(0)")
    a("s_barrier")
    stamp(a, 2, st="ssm")
    a(f"s_cmp_lg_u32 s{sWave}, 0")
    a("s_cbranch_scc1 L_s_gate")
    lr, li = prm + 8, prm + 9
    l16r, l16i, l256r, l256i = big + 10, big + 11, big + 12, big + 13
    er, ei = big + 14, big + 15
    w0 = big + 4
    A = big + 16; vl = big + 9
    a(f"v_lshlrev_b32 v{vl}, 3, v0"); a(f"v_add_u32 v{vl}, {AG}, v{vl}")
    for s in range(16): a(f"ds_read_b64 {vr(A+2*s,2)}, v{vl} offset:{s*512}")
    csq(a, l16r, l16i, lr, li, w0)
    for _ in range(3): csq(a, l16r, l16i, l16r, l16i, w0)
    csq(a, l256r, l256i, l16r, l16i, w0)
    for _ in range(3): csq(a, l256r, l256i, l256r, l256i, w0)
    a("s_waitcnt lgkmcnt(0)")
    x0, x1 = big + 6, big + 7
    for s in range(1, 16):
        pr, pi, cr_, ci_ = A + 2 * (s - 1), A + 2 * (s - 1) + 1, A + 2 * s, A + 2 * s + 1
        a(f"v_fma_f32 v{cr_}, v{l16r}, v{pr}, v{cr_}"); a(f"v_fma_f32 v{ci_}, v{l16r}, v{pi}, v{ci_}")
        a(f"v_fma_f32 v{cr_}, -v{l16i}, v{pi}, v{cr_}"); a(f"v_fma_f32 v{ci_}, v{l16i}, v{pr}, v{ci_}")
    er, ei = A + 30, A + 31
    vo = big + 8
    a(f"s_lshl_b32 s{T0}, s{sN}, 6"); a(f"v_add_u32 v{vo}, s{T0}, v0"); a(f"v_lshlrev_b32 v{vo}, 3, v{vo}")
    a(f"s_lshl_b32 s{T1}, s{sM}, 13"); a(f"s_add_u32 s{T1}, s{T1}, {WS_AGG}")
    a("s_waitcnt vmcnt(0)")
    init_check(a, big + 52)
    a(f"s_lshl_b32 s{T1}, s{sM}, 13"); a(f"s_add_u32 s{T1}, s{T1}, {WS_AGG}")
    a(f"buffer_store_dwordx2 {vr(er,2)}, v{vo}, s[{SWS}:{SWS+3}], s{T1} offen sc1")
    stamp(a, 3, st="ssm")
    cr, ci = big + 48, big + 49
    a(f"v_mov_b32 v{cr}, 0"); a(f"v_mov_b32 v{ci}, 0")
    a(f"s_cmp_eq_u32 s{sM}, 0"); a("s_cbranch_scc1 L_s_nolb")
    B = big + 50
    a(f"s_mov_b32 s{U2}, {C.spin}")
    a.label("L_s_lb")
    for j in range(7):
        if j: a(f"s_cmp_le_u32 s{sM}, {j}"); a("s_cbranch_scc1 L_s_lbw")
        a(f"s_mov_b32 s{T1}, {WS_AGG + j*8192}")
        a(f"buffer_load_dwordx2 {vr(B+2*j,2)}, v{vo}, s[{SWS}:{SWS+3}], s{T1} offen sc1")
    a.label("L_s_lbw")
    a("s_waitcnt vmcnt(0)")
    a(f"s_mov_b64 s[{U0}:{U1}], 0")
    for j in range(7):
        if j: a(f"s_cmp_le_u32 s{sM}, {j}"); a("s_cbranch_scc1 L_s_lbc")
        a(f"v_cmp_eq_u32 vcc, -1, v{B+2*j}"); a("s_nop 0"); a(f"s_or_b64 s[{U0}:{U1}], s[{U0}:{U1}], vcc")
        a(f"v_cmp_eq_u32 vcc, -1, v{B+2*j+1}"); a("s_nop 0"); a(f"s_or_b64 s[{U0}:{U1}], s[{U0}:{U1}], vcc")
    a.label("L_s_lbc")
    a(f"s_cmp_eq_u64 s[{U0}:{U1}], 0"); a("s_cbranch_scc1 L_s_lbok")
    a(f"s_sub_u32 s{U2}, s{U2}, 1"); a(f"s_cmp_eq_u32 s{U2}, 0"); a("s_cbranch_scc1 L_s_lbok")
    a(f"s_sleep {C.sleep}"); a("s_branch L_s_lb")
    a.label("L_s_lbok")
    for j in range(7):
        a(f"s_cmp_le_u32 s{sM}, {j}"); a("s_cbranch_scc1 L_s_nolb")
        a(f"v_fma_f32 v{x0}, v{l256r}, v{cr}, v{B+2*j}"); a(f"v_fma_f32 v{x1}, v{l256r}, v{ci}, v{B+2*j+1}")
        a(f"v_fma_f32 v{x0}, -v{l256i}, v{ci}, v{x0}"); a(f"v_fma_f32 v{ci}, v{l256i}, v{cr}, v{x1}")
        a(f"v_mov_b32 v{cr}, v{x0}")
    a.label("L_s_nolb")
    stamp(a, 4, st="ssm")
    a(f"ds_write_b64 v{vl}, {vr(cr,2)}")
    for s in range(1, 16):
        a(f"v_mul_f32 v{x0}, v{l16r}, v{cr}"); a(f"v_mul_f32 v{x1}, v{l16r}, v{ci}")
        a(f"v_fma_f32 v{x0}, -v{l16i}, v{ci}, v{x0}"); a(f"v_fma_f32 v{ci}, v{l16i}, v{cr}, v{x1}")
        a(f"v_mov_b32 v{cr}, v{x0}")
        a(f"v_add_f32 v{A+2*(s-1)}, v{A+2*(s-1)}, v{cr}"); a(f"v_add_f32 v{A+2*(s-1)+1}, v{A+2*(s-1)+1}, v{ci}")
        a(f"ds_write_b64 v{vl}, {vr(A+2*(s-1),2)} offset:{s*512}")
    a("s_waitcnt lgkmcnt(0)")
    a("s_branch L_s_wait")
    a.label("L_s_gate")
    gxs = [big + 16, big + 24, big + 32]; gws = big + 40; gt = big + 48
    a(f"s_lshl_b32 s{T0}, s{sM}, 8"); a(f"s_lshl_b32 s{T1}, s{sN}, 4"); a(f"s_add_u32 s{T0}, s{T0}, s{T1}")
    a(f"s_add_u32 s{T0}, s{T0}, s{sWave}"); a(f"s_sub_u32 s{T0}, s{T0}, 1")
    a(f"s_add_u32 s{T1}, s{T0}, 7"); a(f"s_add_u32 s{T2}, s{T0}, 14")
    a(f"v_lshlrev_b32 v{gt}, 5, v0")
    srd(a, SS, PTR["gw"], 2048)
    a(f"buffer_load_dwordx4 {vr(gws,4)}, v{gt}, s[{SS}:{SS+3}], 0 offen"); a(f"buffer_load_dwordx4 {vr(gws+4,4)}, v{gt}, s[{SS}:{SS+3}], 0 offen offset:16")
    gate_row_loads(a, T0, gxs[0], gt); gate_row_loads(a, T1, gxs[1], gt)
    a(f"s_cmp_gt_u32 s{sWave}, 2"); a("s_cbranch_scc1 L_s_g2")
    gate_row_loads(a, T2, gxs[2], gt)
    a("s_waitcnt vmcnt(0)")
    gate_compute(a, T2, gxs[2], gws, gt + 1)
    a.label("L_s_g2")
    a("s_waitcnt vmcnt(0)")
    gate_compute(a, T0, gxs[0], gws, gt + 1); gate_compute(a, T1, gxs[1], gws, gt + 1)
    a.label("L_s_wait")
    a("s_barrier")
    calc_vag()
    a(f"ds_read_b128 {vr(ag,4)}, v{vag}")
    PITCH = 272
    vw = big + 9
    a(f"v_lshrrev_b32 v{vw}, 4, v0"); a(f"v_lshlrev_b32 v{vw}, 4, v{vw}"); a(f"s_lshl_b32 s{T0}, s{sWp}, 6"); a(f"v_add_u32 v{vw}, s{T0}, v{vw}")
    a(f"v_mul_u32_u24 v{vw}, {PITCH}, v{vw}")
    a(f"v_and_b32 v{big+10}, 15, v0"); a(f"v_lshl_add_u32 v{vw}, v{big+10}, 2, v{vw}")
    a(f"s_lshl_b32 s{T0}, s{sWq}, 6"); a(f"v_add_u32 v{vw}, s{T0}, v{vw}")
    vr_, vg_ = big + 10, big + 11
    a(f"v_lshrrev_b32 v{vr_}, 4, v0"); a(f"s_lshl_b32 s{T0}, s{sWave}, 5"); a(f"v_add_u32 v{vr_}, s{T0}, v{vr_}")
    a(f"s_lshl_b32 s{T1}, s{sM}, 8"); a(f"v_add_u32 v{vg_}, s{T1}, v{vr_}"); a(f"v_mul_u32_u24 v{vg_}, {RS_A2}, v{vg_}")
    a(f"v_mul_u32_u24 v{vr_}, {PITCH}, v{vr_}")
    a(f"v_and_b32 v{big+24}, 15, v0"); a(f"v_lshl_add_u32 v{vr_}, v{big+24}, 4, v{vr_}")
    a(f"v_and_b32 v{big+24}, 7, v0"); a(f"v_lshl_add_u32 v{vg_}, v{big+24}, 4, v{vg_}")
    a(f"v_bfe_u32 v{big+24}, v0, 3, 1"); a(f"v_lshl_add_u32 v{vg_}, v{big+24}, 11, v{vg_}")
    a(f"s_lshl_b32 s{T0}, s{sN}, 7"); a(f"s_add_u32 s{T0}, s{T0}, {WS_A2}")
    a("s_waitcnt lgkmcnt(0)")
    ore, oim, od = big + 12, big + 14, big + 16
    rb = big + 28
    st = [ag, tt]
    NPT = C.sparts; SP_ = 16 // NPT
    for s in range(16):
        scan2(s, st[s & 1], st[(s + 1) & 1])
        h = st[(s + 1) & 1]
        for jc in range(2):
            hr, hi_ = h + 2 * jc, h + 2 * jc + 1; kr, ki = prm + 4 * jc + 2, prm + 4 * jc + 3
            a(f"v_mul_f32 v{ore+jc}, v{kr}, v{hr}"); a(f"v_mul_f32 v{oim+jc}, -v{kr}, v{hi_}")
        for jc in range(2):
            hr, hi_ = h + 2 * jc, h + 2 * jc + 1; kr, ki = prm + 4 * jc + 2, prm + 4 * jc + 3
            a(f"v_fma_f32 v{ore+jc}, -v{ki}, v{hi_}, v{ore+jc}"); a(f"v_fma_f32 v{oim+jc}, -v{ki}, v{hr}, v{oim+jc}")
        d = od + 2 * (s % 4)
        a(f"v_cvt_pk_bf16_f32 v{d}, v{ore}, v{ore+1}"); a(f"v_cvt_pk_bf16_f32 v{d+1}, v{oim}, v{oim+1}")
        a(f"ds_write_b32 v{vw}, v{d} offset:{s*PITCH}"); a(f"ds_write_b32 v{vw}, v{d+1} offset:{s*PITCH+128}")
        if (s + 1) % SP_ == 0:
            p = s // SP_
            if p == NPT - 1: stamp(a, 5, st="ssm")
            ns_ = [n for n in range(8) if SP_ * p <= (4 * n) % 16 < SP_ * (p + 1)]
            a("s_waitcnt lgkmcnt(0)")
            a("s_barrier")
            for k, n in enumerate(ns_): a(f"ds_read_b128 {vr(rb+4*k,4)}, v{vr_} offset:{4*n*PITCH}")
            for k, n in enumerate(ns_):
                a(f"s_waitcnt lgkmcnt({len(ns_)-1-k})")
                a(f"s_add_u32 s{T1}, s{T0}, {4*n*RS_A2}")
                a(f"buffer_store_dwordx4 {vr(rb+4*k,4)}, v{vg_}, s[{SWS}:{SWS+3}], s{T1} offen{C.wt}")
    stamp(a, 6, st="ssm")
    return V.hi, AG + 8192

def phase2(a, role):
    R = "A" if role == 0 else "B"
    SW2, SE = 24, 72
    NS = C.ns
    TQ = 128 if NS == 2 else 256
    TP, mp, mq, NB = 128, 4, NS, (4 if NS == 2 else 3)
    LG = 1 if NS == 2 else 2
    XS = 8 // NS
    sG, sKQ2 = 0, 3
    V = Regs(10)
    P1 = OpKC(a, V, TP, 0, mp); P1.groups = [[0, 1]]
    P2 = OpNC(a, V, TP, 0, mp, D * 2)
    Qop = OpKC(a, V, TQ, TP * 128, mq, flags=C.a2ld); Qop.groups = [list(range(Qop.n))]
    SB = TP * 128 + Qop.bytes
    G = Gemm(a, V, NB, NB, TP * 128, Qop.bytes, mp, mq, (sBufD, sBufR, None, None, sCnt, sRole), True, 'P' if NS == 2 else 'Q', 'p2')
    nf = mp * mq
    accD = V.get(4 * nf, 2)
    accS = V.get(4 * nf, 2)
    vg = V.get(2 * mq, 2); vep = V.get(4)
    vex = V.get(6 * mp, 2) if NS == 2 else G.F[0][0] + (32 if C.xbf16 else 0)
    if NS != 2 and not C.xbf16: vex = accS
    dense = 1 if role == 1 else 0
    a(f"s_and_b32 s{T0}, s2, 7"); a(f"s_lshr_b32 s{T1}, s2, 3")
    a(f"s_lshr_b32 s{sG}, s{T0}, {3-LG}")
    a(f"s_and_b32 s{T2}, s{T0}, {XS-1}"); a(f"s_lshl_b32 s{sTt}, s{T2}, 2"); a(f"s_bfe_u32 s{T2}, s{T1}, 0x20002"); a(f"s_add_u32 s{sTt}, s{sTt}, s{T2}")
    a(f"s_and_b32 s{T2}, s{sG}, 1")
    if dense: a(f"s_xor_b32 s{T2}, s{T2}, 1")
    a(f"s_lshl_b32 s{sDt}, s{T2}, 2"); a(f"s_and_b32 s{T2}, s{T1}, 3"); a(f"s_add_u32 s{sDt}, s{sDt}, s{T2}")
    a(f"s_lshl_b32 s{sTile}, s{sTt}, 3"); a(f"s_add_u32 s{sTile}, s{sTile}, s{sDt}")
    a(f"s_lshr_b32 s{sWp}, s{sWave}, 2"); a(f"s_and_b32 s{sWq}, s{sWave}, 3")
    srd(a, SW2, PTR["w2"], F * D * 2)
    a(f"s_lshr_b32 s{T0}, s{sG}, {LG-1}"); a(f"s_cmp_eq_u32 s{T0}, 0")
    a(f"s_cselect_b32 s{SA}, s{PTR['cre']}, s{PTR['cim']}"); a(f"s_cselect_b32 s{SA+1}, s{PTR['cre']+1}, s{PTR['cim']+1}")
    a(f"s_mov_b32 s{SA+2}, {D*P_*2}"); a(f"s_mov_b32 s{SA+3}, 0x20000")
    Qop.lane_chunk(VT, VT + 1)
    a(f"v_lshrrev_b32 v{VT+1}, 3, v0"); a(f"v_lshl_add_u32 v{VT+3}, v{VT+1}, 11, v{VT}")
    for j in range(2):
        a(f"s_lshl_b32 s{T0}, s{sDt}, 7"); a(f"s_lshl_b32 s{T1}, s{sWave}, 4"); a(f"s_add_u32 s{T0}, s{T0}, s{T1}")
        if j: a(f"s_add_u32 s{T0}, s{T0}, 8")
        a(f"s_lshl_b32 s{T0}, s{T0}, 11")
        if j: a(f"s_sub_u32 s{T0}, s{T0}, 1024")
        P1.set_voff(j, VT + 3, T0, bool(j & 1))
    a(f"s_lshl_b32 s{sLdsP}, s{sWave}, 11")
    a(f"s_lshl_b32 s{T0}, s{sDt}, 8")
    P2.setup_dma(sWave, VT + 4, T0, U0)
    P2.setup_lds(sWave, sLdsP2, U0)
    a(f"v_lshrrev_b32 v{VT+1}, 3, v0"); a(f"v_mul_u32_u24 v{VT+1}, {RS_A2}, v{VT+1}"); a(f"v_add_u32 v{VT+3}, v{VT+1}, v{VT}")
    for j in range(Qop.n):
        a(f"s_mul_i32 s{T0}, s{sWave}, {TQ//8}")
        if j: a(f"s_add_u32 s{T0}, s{T0}, {8*j}")
        a(f"s_lshr_b32 s{T1}, s{T0}, 4"); a(f"s_add_u32 s{T1}, s{T1}, s{sG}"); a(f"s_and_b32 s{T1}, s{T1}, {NS-1}"); a(f"s_lshl_b32 s{T1}, s{T1}, 4")
        a(f"s_andn2_b32 s{T0}, s{T0}, {(NS-1) << 4}"); a(f"s_or_b32 s{T0}, s{T0}, s{T1}")
        a(f"s_mul_i32 s{T1}, s{sTt}, {TQ}"); a(f"s_add_u32 s{T0}, s{T0}, s{T1}"); a(f"s_mul_i32 s{T0}, s{T0}, {RS_A2}")
        if j: a(f"s_sub_u32 s{T0}, s{T0}, {1024*j}")
        Qop.set_voff(j, VT + 3, T0, bool(j & 1))
    a(f"s_mul_i32 s{sLdsQ}, s{sWave}, {Qop.n*1024}"); a(f"s_add_u32 s{sLdsQ}, s{sLdsQ}, {Qop.lds_off}")
    K2 = C.k2 if NS == 4 else 0
    nS = 32 // NS; base = (56 - K2) // NS
    assert base * NS == 56 - K2
    nD = base + (C.delta if role == 0 else -C.delta)
    colsS = 2048 // NS
    a(f"s_mul_i32 s{sKQ}, s{sG}, {colsS*2}"); a(f"s_and_b32 s{sKP}, s{sKQ}, 2047")
    if WS_A2: a(f"s_add_u32 s{sKQ}, s{sKQ}, {WS_A2}")
    a(f"s_lshr_b32 s{T0}, s{sG}, 1"); a(f"s_mul_i32 s{T0}, s{T0}, {2*base}")
    a(f"s_and_b32 s{T1}, s{sG}, 1"); a(f"s_mul_i32 s{T1}, s{T1}, {2*base - nD}"); a(f"s_add_u32 s{T0}, s{T0}, s{T1}")
    a(f"s_mul_i32 s{sKP2}, s{T0}, {64*D*2}"); a(f"s_lshl_b32 s{sKQ2}, s{T0}, 7"); a(f"s_add_u32 s{sKQ2}, s{sKQ2}, {WS_A2 + 4096}")
    a(f"s_mul_i32 s{T0}, s{sWp}, {mp}")
    P1.setup_read(T0, VT, U0); P2.setup_read(T0, VT, U0)
    a(f"s_mul_i32 s{T0}, s{sWq}, {mq}"); Qop.setup_read(T0, VT, U0)
    qd = lambda b: Qop.dma(b, sKQ, sTmp, sLdsQ, [SWS] * Qop.n)
    qd2 = lambda b: Qop.dma(b, sKQ2, sTmp, sLdsQ, [SWS] * Qop.n)
    segD = Seg(P2, Qop, accD, lambda b: P2.dma(b, sKP2, sTmp, sLdsP2, SW2), qd2, [f"s_add_u32 s{sKP2}, s{sKP2}, {64*D*2}"], [f"s_add_u32 s{sKQ2}, s{sKQ2}, 128"], "d")
    segS = Seg(P1, Qop, accS, lambda b: P1.dma(b, sKP, sTmp, sLdsP, [SA] * 2), qd, [f"s_add_u32 s{sKP}, s{sKP}, 128"], [f"s_add_u32 s{sKQ}, s{sKQ}, 128"], "s")
    stages = [segS] * nS + [segD] * nD
    N = len(stages)
    a("s_barrier")
    G.prologue(stages, "P")
    nP0 = 2 * G.leadP
    G.zero_first = True
    post_first = None
    fine = C.fine and NS == 4
    sMS = 49
    def chk_need(need):
        def chk(ok):
            if NS == 2:
                a(f"s_add_u32 s{U0}, s{U0}, s{U1}"); a(f"s_cmp_eq_u32 s{U0}, 16"); a(f"s_cbranch_scc1 {ok}")
            else:
                a(f"s_bitcmp1_b32 s{sG}, 0"); a(f"s_cselect_b32 s{sMS}, s{U1}, s{U0}")
                if fine:
                    a(f"s_and_b32 s{U0}, s{sMS}, {need}"); a(f"s_cmp_eq_u32 s{U0}, {need}"); a(f"s_cbranch_scc1 {ok}")
                else:
                    a(f"s_cmp_eq_u32 s{sMS}, 8"); a(f"s_cbranch_scc1 {ok}")
        return chk
    nfirst = G.leadQ + (1 if G.early == 'Q' else 0)
    chkS = chk_need((1 << nfirst) - 1)
    PW = 1
    if role == 0:
        a(f"s_waitcnt vmcnt({nP0})")
        a("s_barrier")
        stamp(a, 3)
        a(f"s_cmp_eq_u32 s{sWave}, {PW}"); a(f"s_cbranch_scc1 L_p2{R}_pl")
        a(f"s_cmp_lg_u32 s{sWave}, 0"); a(f"s_cbranch_scc1 L_p2{R}_dep")
        signal_cnt(a, "S", VT)
        a(f"s_branch L_p2{R}_dep")
        a.label(f"L_p2{R}_pl")
        poll_own(a, chkS, VT)
    elif C.dearly:
        a(f"s_waitcnt vmcnt({nP0})")
        a("s_barrier")
        stamp(a, 3)
        stamp(a, 6, st="dense")
        a(f"s_cmp_eq_u32 s{sWave}, {PW}"); a(f"s_cbranch_scc1 L_p2{R}_pl")
        a(f"s_cmp_lg_u32 s{sWave}, 0"); a(f"s_cbranch_scc1 L_p2{R}_dep")
        init_check(a, VT)
        signal_cnt(a, 2, VT)
        a(f"s_branch L_p2{R}_dep")
        a.label(f"L_p2{R}_pl")
        poll_own(a, chkS, VT)
    else:
        stamp(a, 3)
        stamp(a, 6, st="dense")
        a(f"s_cmp_lg_u32 s{sWave}, {PW}"); a(f"s_cbranch_scc1 L_p2{R}_dep")
        poll_own(a, chkS, VT)
        def post_first():
            sk = newlabel("pf")
            a(f"s_cmp_lg_u32 s{sWave}, 0"); a(f"s_cbranch_scc1 {sk}")
            init_check(a, VT)
            signal_cnt(a, 2, VT)
            a.label(sk)
    a.label(f"L_p2{R}_dep")
    a("s_barrier")
    G.prologue(stages, "Q")
    hooks = {}
    if fine:
        def mk(bit):
            def h():
                sk = newlabel("hs")
                a(f"s_cmp_lg_u32 s{sWave}, {PW}"); a(f"s_cbranch_scc1 {sk}")
                a(f"s_bitcmp1_b32 s{sMS}, {bit}"); a(f"s_cbranch_scc1 {sk}")
                poll_own(a, chk_need(1 << bit), VT)
                a.label(sk)
            return h
        for bit in range(nfirst, nS): hooks[bit - nfirst] = mk(bit)
    full = (0xff + 0xff + 16) if fine else 32
    def hookD():
        sk = newlabel("hk")
        stamp(a, 2, st="p2")
        a(f"s_cmp_lg_u32 s{sWave}, {PW}"); a(f"s_cbranch_scc1 {sk}")
        def chk(ok):
            a(f"s_add_u32 s{U0}, s{U0}, s{U1}"); a(f"s_add_u32 s{U0}, s{U0}, s{U3}"); a(f"s_cmp_eq_u32 s{U0}, {full}"); a(f"s_cbranch_scc1 {ok}")
        poll_own(a, chk, VT)
        a.label(sk)
        stamp(a, 3, st="p2")
    hd = nS - G.leadQ - (1 if G.early == 'Q' else 0)
    assert hd not in hooks
    hooks[hd] = hookD
    sXD = 44
    vt_own, vxo, vd2, vl16 = vep, vep + 1, vep + 2, vep + 3
    vx_, vds, vb2 = vex, vex + 2 * mp, vex + 4 * mp
    ex = []
    ex.append([f"s_mul_i32 s{T0}, s{sTt}, {TQ}", f"s_mul_i32 s{T1}, s{sWq}, {16*mq}", f"s_add_u32 s{T0}, s{T0}, s{T1}",
               f"v_and_b32 v{vt_own}, 15, v0", f"v_add_u32 v{vt_own}, s{T0}, v{vt_own}", f"v_lshlrev_b32 v{vxo}, 3, v{vt_own}"])
    for j in range(mq):
        ex.append([f"s_add_u32 s{T0}, s{sG}, {j}", f"s_and_b32 s{T0}, s{T0}, {NS-1}", f"s_lshl_b32 s{T0}, s{T0}, 7", f"s_add_u32 s{T0}, s{T0}, {WS_G}",
                   f"buffer_load_dwordx2 {vr(vg+2*j,2)}, v{vxo}, s[{SWS}:{SWS+3}], s{T0} offen sc1"])
    ex.append([f"s_lshl_b32 s{T0}, s{sG}, 4", f"v_add_u32 v{vt_own}, s{T0}, v{vt_own}",
               f"v_lshrrev_b32 v{vd2}, 4, v0", f"v_lshlrev_b32 v{vd2}, 2, v{vd2}",
               f"s_lshl_b32 s{T0}, s{sDt}, 7", f"s_lshl_b32 s{T1}, s{sWp}, 6", f"s_add_u32 s{T0}, s{T0}, s{T1}",
               f"v_add_u32 v{vd2}, s{T0}, v{vd2}", f"v_lshlrev_b32 v{vd2}, 1, v{vd2}",
               f"v_lshl_add_u32 v{vxo}, v{vt_own}, 11, v{vd2}", f"v_lshlrev_b32 v{vl16}, 4, v0"])
    for j in range(1, mq):
        ex.append([f"s_add_u32 s{T1}, s{sG}, {j}", f"s_and_b32 s{T1}, s{T1}, {NS-1}",
                   f"s_mul_i32 s{T0}, s{T1}, {XS}", f"s_and_b32 s{T2}, s2, {XS-1}", f"s_add_u32 s{T0}, s{T0}, s{T2}",
                   f"s_lshr_b32 s{T2}, s{sDt}, 2", f"s_xor_b32 s{T2}, s{T2}, s{T1}", f"s_and_b32 s{T2}, s{T2}, 1", f"s_xor_b32 s{T2}, s{T2}, 1",
                   f"s_lshl_b32 s{T2}, s{T2}, 7", f"s_or_b32 s{T0}, s{T0}, s{T2}", f"s_and_b32 s{T2}, s2, 0x78", f"s_or_b32 s{T0}, s{T0}, s{T2}",
                   f"s_lshl_b32 s{T0}, s{T0}, 3", f"s_add_u32 s{T0}, s{T0}, s{sWave}", f"s_mul_i32 s{T0}, s{T0}, {4096*(NS-1)}",
                   f"s_add_u32 s{sXD+j-1}, s{T0}, {WS_XB + (NS - j - 1) * 4096}"])
    ex2 = []
    for i in range(mp):
        ex2.append([f"buffer_load_dwordx2 {vr(vx_+2*i,2)}, v{vxo}, s[{SX}:{SX+3}], 0 offen offset:{32*i}"])
    ex2.append([f"s_mov_b32 s{SE}, s{PTR['dsk']}", f"s_mov_b32 s{SE+1}, s{PTR['dsk']+1}", f"s_mov_b32 s{SE+2}, 2048", f"s_mov_b32 s{SE+3}, 0x20000"])
    for i in range(mp):
        ex2.append([f"buffer_load_dwordx2 {vr(vds+2*i,2)}, v{vd2}, s[{SE}:{SE+3}], 0 offen offset:{32*i}"])
    ex2.append([f"s_mov_b32 s{SE}, s{PTR['b2']}", f"s_mov_b32 s{SE+1}, s{PTR['b2']+1}"])
    for i in range(mp):
        ex2.append([f"buffer_load_dwordx2 {vr(vb2+2*i,2)}, v{vd2}, s[{SE}:{SE+3}], 0 offen offset:{32*i}"])
    if NS == 2: extras = {N - NB: (ex + ex2, mq + 3 * mp)}
    else:
        nw = 0
        if C.endwarm:
            ex.append([f"buffer_load_dword v250, v{vxo}, s[{SX}:{SX+3}], 0 offen"])
            ex.append([f"s_mov_b32 s{SE}, s{PTR['dsk']}", f"s_mov_b32 s{SE+1}, s{PTR['dsk']+1}", f"s_mov_b32 s{SE+2}, 2048", f"s_mov_b32 s{SE+3}, 0x20000",
                       f"buffer_load_dword v250, v{vd2}, s[{SE}:{SE+3}], 0 offen"])
            ex.append([f"s_mov_b32 s{SE}, s{PTR['b2']}", f"s_mov_b32 s{SE+1}, s{PTR['b2']+1}", f"buffer_load_dword v250, v{vd2}, s[{SE}:{SE+3}], 0 offen"])
            nw = 3
            if C.endwarm >= 2:
                for j in range(1, mq):
                    ex.append([f"buffer_load_dword v250, v{vl16}, s[{SWS}:{SWS+3}], s{sXD+j-1} offen"])
                ex.append([f"s_mov_b32 s{SE}, s{PTR['out']}", f"s_mov_b32 s{SE+1}, s{PTR['out']+1}", f"s_mov_b32 s{SE+2}, {L*D*4}",
                           f"v_lshlrev_b32 v{VT}, 12, v{vt_own}", f"buffer_load_dword v250, v{VT}, s[{SE}:{SE+3}], 0 offen"])
                nw += mq
        extras = {N - NB: (ex, mq + nw)}
    if role == 0 and C.prefetch and C.w2it:
        SPW, sPW = 52, 1
        pw = [[f"s_lshl_b32 s{T0}, s{sM}, 4", f"s_add_u32 s{T0}, s{T0}, s{sN}", f"s_mul_i32 s{sPW}, s{T0}, {56*1024}", f"s_mul_i32 s{T1}, s{sWave}, {7*1024}",
               f"s_add_u32 s{sPW}, s{sPW}, s{T1}", f"s_mov_b32 s{SPW}, s{PTR['w2']}", f"s_mov_b32 s{SPW+1}, s{PTR['w2']+1}",
               f"s_add_u32 s{SPW+2}, s{sPW}, {7*1024}", f"s_mov_b32 s{SPW+3}, 0x20000", f"v_lshlrev_b32 v{VT+6}, 4, v0"]]
        for i in range(7):
            pw.append([f"buffer_load_dwordx4 v[252:255], v{VT+6}, s[{SPW}:{SPW+3}], s{sPW} offen offset:{(i%4)*1024}"] + ([f"s_add_u32 s{sPW}, s{sPW}, 4096"] if i == 3 else []))
        extras[C.w2it - 1] = (pw, 7)
    if C.codepf3: extras[N - C.codepf3] = code_pf_groups(VT + 3)
    stamp(a, 4)
    stamp(a, 1, st="p2")
    stamp(a, 3, st="clk"); stamp(a, 4, real=True, st="clk")
    G.run(stages, hooks, extras, post_first)
    stamp(a, 5)
    stamp(a, 4, st="p2")
    stamp(a, 5, st="clk"); stamp(a, 6, real=True, st="clk")
    stamp(a, 1, st="end")
    a("s_nop 7")
    a("s_waitcnt vmcnt(0)")
    def comb(i, j):
        c = 4 * (i * mq + j)
        for r in range(4):
            a(f"v_mul_f32 v{accD+c+r}, v{vg+2*j+1}, v{accD+c+r}"); a(f"v_fmac_f32 v{accD+c+r}, v{vg+2*j}, v{accS+c+r}")
    if K2:
        return phase2b(a, role, locals())
    assert NS == 2 or C.xbf16
    nst = (2 if C.xbf16 else 4) * (mq - 1)
    if NS != 2:
        for g_ in ex2: G.emit(g_)
    for j in range(1, mq):
        for i in range(mp): comb(i, j)
        if C.xbf16:
            for i2 in range(0, mp, 2):
                c0, c1 = accD + 4 * (i2 * mq + j), accD + 4 * ((i2 + 1) * mq + j)
                a(f"v_cvt_pk_bf16_f32 v{c0}, v{c0}, v{c0+1}"); a(f"v_cvt_pk_bf16_f32 v{c0+1}, v{c0+2}, v{c0+3}")
                a(f"v_cvt_pk_bf16_f32 v{c0+2}, v{c1}, v{c1+1}"); a(f"v_cvt_pk_bf16_f32 v{c0+3}, v{c1+2}, v{c1+3}")
                a(f"buffer_store_dwordx4 {vr(c0,4)}, v{vl16}, s[{SWS}:{SWS+3}], s{sXD+j-1} offen offset:{(i2//2)*1024} sc1")
        else:
            a("s_nop 1")
            for i in range(mp):
                c = accD + 4 * (i * mq + j)
                a(f"buffer_store_dwordx4 {vr(c,4)}, v{vl16}, s[{SWS}:{SWS+3}], s{sXD+j-1} offen offset:{i*1024} sc1")
    stamp(a, 2, st="end")
    for i in range(mp): comb(i, 0)
    t1, t2, t3 = VT + 5, VT + 6, VT + 7
    a(f"s_and_b32 s{T0}, s2, {XS-1}")
    a(f"v_mul_u32_u24 v{t1}, {XS}, v0"); a(f"v_add_u32 v{t1}, s{T0}, v{t1}")
    a(f"s_lshr_b32 s{T0}, s{sDt}, 2")
    a(f"v_and_b32 v{t2}, 1, v0"); a(f"v_xor_b32 v{t2}, s{T0}, v{t2}"); a(f"v_xor_b32 v{t2}, 1, v{t2}")
    a(f"s_lshr_b32 s{T0}, s2, 3"); a(f"s_and_b32 s{T0}, s{T0}, 15")
    a(f"v_lshlrev_b32 v{t2}, 4, v{t2}"); a(f"v_add_u32 v{t2}, s{T0}, v{t2}"); a(f"v_lshl_or_b32 v{t2}, v{t2}, 3, v{t1}")
    a(f"v_lshlrev_b32 v{t2}, 8, v{t2}")
    a(f"v_subrev_u32 v{t1}, s{sG}, v0"); a(f"v_and_b32 v{t1}, {NS-1}, v{t1}")
    a(f"v_sub_u32 v{t1}, {NS-1}, v{t1}"); a(f"v_lshl_add_u32 v{t2}, v{t1}, 2, v{t2}")
    a(f"v_mov_b32 v{t3}, 1")
    a(f"s_lshl_b32 s{T0}, 1, s{sG}"); a(f"s_andn2_b32 s{T0}, {(1 << NS) - 1}, s{T0}")
    a(f"s_lshl_b32 s{T1}, s{sWave}, 4"); a(f"s_add_u32 s{T1}, s{T1}, {WS_MB + 32}")
    a(f"s_lshl_b32 s{T3}, s2, 8"); a(f"s_add_u32 s{T3}, s{T3}, s{T1}")
    a(f"s_waitcnt vmcnt({nst})")
    x0, x1, y0, y1 = VT, VT + 1, VT + 2, VT + 3
    for i in range(mp):
        e = accD + 4 * (i * mq)
        for h in range(2):
            a(f"v_lshlrev_b32 v{x0}, 16, v{vx_+2*i+h}"); a(f"v_and_b32 v{x1}, 0xffff0000, v{vx_+2*i+h}")
            a(f"v_lshlrev_b32 v{y0}, 16, v{vds+2*i+h}"); a(f"v_and_b32 v{y1}, 0xffff0000, v{vds+2*i+h}")
            a(f"v_mul_f32 v{x0}, v{x0}, v{y0}"); a(f"v_mul_f32 v{x1}, v{x1}, v{y1}")
            a(f"v_cvt_pk_bf16_f32 v{x0}, v{x0}, v{x1}")
            a(f"v_and_b32 v{x1}, 0xffff0000, v{x0}"); a(f"v_lshlrev_b32 v{x0}, 16, v{x0}")
            a(f"v_fmac_f32 v{e+2*h}, v{vg}, v{x0}"); a(f"v_fmac_f32 v{e+2*h+1}, v{vg}, v{x1}")
            a(f"v_lshlrev_b32 v{x0}, 16, v{vb2+2*i+h}"); a(f"v_and_b32 v{x1}, 0xffff0000, v{vb2+2*i+h}")
            a(f"v_fmac_f32 v{e+2*h}, v{vg+1}, v{x0}"); a(f"v_fmac_f32 v{e+2*h+1}, v{vg+1}, v{x1}")
    a("s_waitcnt vmcnt(0)")
    stamp(a, 5, st="p2")
    stamp(a, 3, st="end")
    a(f"s_mov_b32 exec_lo, s{T0}"); a("s_mov_b32 exec_hi, 0")
    a(f"buffer_store_dword v{t3}, v{t2}, s[{SWS}:{SWS+3}], s{T1} offen sc1")
    a("s_mov_b64 exec, -1")
    stamp(a, 4, st="end")
    def chkx(ok):
        if NS == 4: a(f"s_and_b32 s{U0}, s{U0}, s{U1}"); a(f"s_and_b32 s{U0}, s{U0}, s{U3}")
        a(f"s_cmp_lg_u32 s{U0}, 0"); a(f"s_cbranch_scc1 {ok}")
    poll(a, SWS, T3, chkx, VT, wide=(4 if NS == 4 else 1), sleep=1)
    stamp(a, 5, st="end")
    rb = G.F[0][0]
    nrx = mp * (NS - 1)
    assert 2 * (4 * mp + 4 * mq) >= 4 * nrx
    inbox_offset(a, T0)
    per = 2 if C.xbf16 else 4
    for k in range(per * (NS - 1)):
        if k and k % per == 0: a(f"s_add_u32 s{T0}, s{T0}, 4096")
        a(f"buffer_load_dwordx4 {vr(rb+4*k,4)}, v{vl16}, s[{SWS}:{SWS+3}], s{T0} offen offset:{(k%per)*1024} sc1")
    srd(a, SE, PTR["out"], L * D * 4)
    vo = VT
    a(f"v_lshlrev_b32 v{vo}, 12, v{vt_own}"); a(f"v_lshl_add_u32 v{vo}, v{vd2}, 1, v{vo}")
    a("s_waitcnt vmcnt(0)")
    stamp(a, 6, st="end")
    for i in range(mp):
        e = accD + 4 * (i * mq)
        for k in range(NS - 1):
            if C.xbf16:
                src = rb + 8 * k + 4 * (i // 2) + 2 * (i % 2)
                x0, x1 = VT + 2, VT + 3
                for h in range(2):
                    a(f"v_lshlrev_b32 v{x0}, 16, v{src+h}"); a(f"v_and_b32 v{x1}, 0xffff0000, v{src+h}")
                    a(f"v_add_f32 v{e+2*h}, v{e+2*h}, v{x0}"); a(f"v_add_f32 v{e+2*h+1}, v{e+2*h+1}, v{x1}")
            else:
                for r in range(4): a(f"v_add_f32 v{e+r}, v{e+r}, v{rb+k*4*mp+4*i+r}")
        a(f"buffer_store_dwordx4 {vr(e,4)}, v{vo}, s[{SE}:{SE+3}], 0 offen offset:{64*i}{C.wto}")
    stamp(a, 6)
    stamp(a, 6, st="p2")
    return V.hi, NB * SB

def phase2b(a, role, L_):
    g = L_
    R, NS, XS, mp, mq, K2 = g["R"], g["NS"], g["XS"], g["mp"], g["mq"], g["K2"]
    accD, accS, vg, G, P2, Qop, SW2, SE = g["accD"], g["accS"], g["vg"], g["G"], g["P2"], g["Qop"], g["SW2"], g["SE"]
    sG, sKQ2, sXD, comb, V = g["sG"], g["sKQ2"], g["sXD"], g["comb"], g["V"]
    vt_own, vxo, vd2, vl16 = g["vt_own"], g["vxo"], g["vd2"], g["vl16"]
    assert C.xbf16 and NS == 4
    NB2 = 6
    Vq = Regs(Qop.vd)
    Q2 = OpKC(a, Vq, 64, 128 * 128, 1, flags=C.a2ld); Q2.groups = [[0]]
    assert Vq.hi <= Qop.c1 + 1
    Vf = Regs(G.F[0][0])
    G2 = Gemm(a, Vf, NB2, NB2, 128 * 128, Q2.bytes, mp, 1, (sBufD, sBufR, None, None, sCnt, sRole), True, 'P', 'p2b')
    G2.acc_stride = 4 * mq
    assert Vf.hi <= G.F[1][1] + 4 * mq
    Q2.lane_chunk(VT, VT + 1)
    a(f"v_lshrrev_b32 v{VT+1}, 3, v0"); a(f"v_mul_u32_u24 v{VT+1}, {RS_A2}, v{VT+1}"); a(f"v_add_u32 v{VT+3}, v{VT+1}, v{VT}")
    a(f"s_lshr_b32 s{T0}, s{sWave}, 1"); a(f"s_lshl_b32 s{T0}, s{T0}, 6"); a(f"s_and_b32 s{T1}, s{sWave}, 1"); a(f"s_lshl_b32 s{T2}, s{T1}, 6")
    a(f"s_lshl_b32 s{T1}, s{T1}, 3"); a(f"s_add_u32 s{T0}, s{T0}, s{T1}"); a(f"s_lshl_b32 s{T1}, s{sG}, 4"); a(f"s_add_u32 s{T0}, s{T0}, s{T1}")
    a(f"s_lshl_b32 s{T1}, s{sTt}, 8"); a(f"s_add_u32 s{T0}, s{T0}, s{T1}"); a(f"s_mul_i32 s{T0}, s{T0}, {RS_A2}")
    Q2.set_voff(0, VT + 3, T0, T2)
    a(f"s_lshl_b32 s{sLdsQ}, s{sWave}, 10"); a(f"s_add_u32 s{sLdsQ}, s{sLdsQ}, {Q2.lds_off}")
    Q2.setup_read(sWq, VT, U0)
    a(f"s_mov_b32 s{sKP2}, {(56-K2)*64*D*2}"); a(f"s_mov_b32 s{sKQ2}, {WS_A2 + 4096 + (56-K2)*128}")
    seg2 = Seg(P2, Q2, accD, lambda b: P2.dma(b, sKP2, sTmp, sLdsP2, SW2), lambda b: Q2.dma(b, sKQ2, sTmp, sLdsQ, [SWS]),
               [f"s_add_u32 s{sKP2}, s{sKP2}, {64*D*2}"], [f"s_add_u32 s{sKQ2}, s{sKQ2}, 128"], "b")
    st2 = [seg2] * K2
    a("s_barrier")
    G2.prologue(st2)
    for j in range(1, mq):
        for i in range(mp): comb(i, j)
        for i2 in range(0, mp, 2):
            c0, c1 = accD + 4 * (i2 * mq + j), accD + 4 * ((i2 + 1) * mq + j)
            a(f"v_cvt_pk_bf16_f32 v{c0}, v{c0}, v{c0+1}"); a(f"v_cvt_pk_bf16_f32 v{c0+1}, v{c0+2}, v{c0+3}")
            a(f"v_cvt_pk_bf16_f32 v{c0+2}, v{c1}, v{c1+1}"); a(f"v_cvt_pk_bf16_f32 v{c0+3}, v{c1+2}, v{c1+3}")
            a(f"buffer_store_dwordx4 {vr(c0,4)}, v{vl16}, s[{SWS}:{SWS+3}], s{sXD+j-1} offen offset:{(i2//2)*1024} sc1")
    G2.note('xs', 6)
    stamp(a, 2, st="end")
    vx_, vds, vb2 = accS + 4, accS + 20, accS + 36
    for i in range(mp): a(f"buffer_load_dwordx2 {vr(vx_+2*i,2)}, v{vxo}, s[{SX}:{SX+3}], 0 offen offset:{32*i}")
    srd(a, SE, PTR["dsk"], 2048)
    for i in range(mp): a(f"buffer_load_dwordx2 {vr(vds+2*i,2)}, v{vd2}, s[{SE}:{SE+3}], 0 offen offset:{32*i}")
    a(f"s_mov_b32 s{SE}, s{PTR['b2']}"); a(f"s_mov_b32 s{SE+1}, s{PTR['b2']+1}")
    for i in range(mp): a(f"buffer_load_dwordx2 {vr(vb2+2*i,2)}, v{vd2}, s[{SE}:{SE+3}], 0 offen offset:{32*i}")
    G2.note('ex2', 12)
    t1, t2, t3 = VT + 5, VT + 6, VT + 7
    sMask, sFl = sXD + 3, sXD + 4
    a(f"s_and_b32 s{T0}, s2, {XS-1}")
    a(f"v_mul_u32_u24 v{t1}, {XS}, v0"); a(f"v_add_u32 v{t1}, s{T0}, v{t1}")
    a(f"s_lshr_b32 s{T0}, s{sDt}, 2")
    a(f"v_and_b32 v{t2}, 1, v0"); a(f"v_xor_b32 v{t2}, s{T0}, v{t2}"); a(f"v_xor_b32 v{t2}, 1, v{t2}")
    a(f"s_lshr_b32 s{T0}, s2, 3"); a(f"s_and_b32 s{T0}, s{T0}, 15")
    a(f"v_lshlrev_b32 v{t2}, 4, v{t2}"); a(f"v_add_u32 v{t2}, s{T0}, v{t2}"); a(f"v_lshl_or_b32 v{t2}, v{t2}, 3, v{t1}")
    a(f"v_lshlrev_b32 v{t2}, 8, v{t2}")
    a(f"v_subrev_u32 v{t1}, s{sG}, v0"); a(f"v_and_b32 v{t1}, {NS-1}, v{t1}")
    a(f"v_sub_u32 v{t1}, {NS-1}, v{t1}"); a(f"v_lshl_add_u32 v{t2}, v{t1}, 2, v{t2}")
    a(f"v_mov_b32 v{t3}, 1")
    a(f"s_lshl_b32 s{sMask}, 1, s{sG}"); a(f"s_andn2_b32 s{sMask}, {(1 << NS) - 1}, s{sMask}")
    a(f"s_lshl_b32 s{sFl}, s{sWave}, 4"); a(f"s_add_u32 s{sFl}, s{sFl}, {WS_MB + 32}")
    def flag():
        a(f"s_mov_b32 exec_lo, s{sMask}"); a("s_mov_b32 exec_hi, 0")
        a(f"buffer_store_dword v{t3}, v{t2}, s[{SWS}:{SWS+3}], s{sFl} offen sc1")
        a("s_mov_b64 exec, -1")
    fit = C.flagit
    def hookF():
        a(f"s_waitcnt vmcnt({G2.allow_at[fit]})")
        flag()
    G2.want_allow = {fit: 'xs'}
    G2.run(st2, {fit: hookF})
    stamp(a, 3, st="end")
    a("s_nop 7")
    a("s_waitcnt vmcnt(0)")
    a(f"s_lshl_b32 s{T3}, s2, 8"); a(f"s_add_u32 s{T3}, s{T3}, s{sFl}")
    def chkx(ok):
        a(f"s_and_b32 s{U0}, s{U0}, s{U1}"); a(f"s_and_b32 s{U0}, s{U0}, s{U3}")
        a(f"s_cmp_lg_u32 s{U0}, 0"); a(f"s_cbranch_scc1 {ok}")
    poll(a, SWS, T3, chkx, VT, wide=4, sleep=1)
    stamp(a, 4, st="end")
    rbq = [accD + 4, accD + 8, accD + 12, accD + 20, accD + 24, accD + 28]
    inbox_offset(a, T0)
    for k in range(6):
        if k and k % 2 == 0: a(f"s_add_u32 s{T0}, s{T0}, 4096")
        a(f"buffer_load_dwordx4 {vr(rbq[k],4)}, v{vl16}, s[{SWS}:{SWS+3}], s{T0} offen offset:{(k%2)*1024} sc1")
    for i in range(mp): comb(i, 0)
    x0, x1, y0, y1 = VT, VT + 1, VT + 2, VT + 3
    for i in range(mp):
        e = accD + 4 * (i * mq)
        for h in range(2):
            a(f"v_lshlrev_b32 v{x0}, 16, v{vx_+2*i+h}"); a(f"v_and_b32 v{x1}, 0xffff0000, v{vx_+2*i+h}")
            a(f"v_lshlrev_b32 v{y0}, 16, v{vds+2*i+h}"); a(f"v_and_b32 v{y1}, 0xffff0000, v{vds+2*i+h}")
            a(f"v_mul_f32 v{x0}, v{x0}, v{y0}"); a(f"v_mul_f32 v{x1}, v{x1}, v{y1}")
            a(f"v_cvt_pk_bf16_f32 v{x0}, v{x0}, v{x1}")
            a(f"v_and_b32 v{x1}, 0xffff0000, v{x0}"); a(f"v_lshlrev_b32 v{x0}, 16, v{x0}")
            a(f"v_fmac_f32 v{e+2*h}, v{vg}, v{x0}"); a(f"v_fmac_f32 v{e+2*h+1}, v{vg}, v{x1}")
            a(f"v_lshlrev_b32 v{x0}, 16, v{vb2+2*i+h}"); a(f"v_and_b32 v{x1}, 0xffff0000, v{vb2+2*i+h}")
            a(f"v_fmac_f32 v{e+2*h}, v{vg+1}, v{x0}"); a(f"v_fmac_f32 v{e+2*h+1}, v{vg+1}, v{x1}")
    srd(a, SE, PTR["out"], L * D * 4)
    vo = VT
    a(f"v_lshlrev_b32 v{vo}, 12, v{vt_own}"); a(f"v_lshl_add_u32 v{vo}, v{vd2}, 1, v{vo}")
    a("s_waitcnt vmcnt(0)")
    stamp(a, 5, st="end")
    for i in range(mp):
        e = accD + 4 * (i * mq)
        for k in range(NS - 1):
            src = rbq[2 * k + i // 2] + 2 * (i % 2)
            x0, x1 = VT + 2, VT + 3
            for h in range(2):
                a(f"v_lshlrev_b32 v{x0}, 16, v{src+h}"); a(f"v_and_b32 v{x1}, 0xffff0000, v{src+h}")
                a(f"v_add_f32 v{e+2*h}, v{e+2*h}, v{x0}"); a(f"v_add_f32 v{e+2*h+1}, v{e+2*h+1}, v{x1}")
        a(f"buffer_store_dwordx4 {vr(e,4)}, v{vo}, s[{SE}:{SE+3}], 0 offen offset:{64*i}{C.wto}")
    stamp(a, 6)
    stamp(a, 6, st="p2"); stamp(a, 6, st="end")
    return V.hi, max(g["NB"] * g["SB"], NB2 * (128 * 128 + Q2.bytes))

def emit_stamps(a):
    a("s_memrealtime s[88:89]"); a("s_waitcnt lgkmcnt(0)")
    a(f"s_cmp_lg_u32 s{sWave}, {C.stwave}"); a("s_cbranch_scc1 L_end")
    a("s_waitcnt vmcnt(0)")
    for i in range(1, 7): a(f"s_sub_u32 s{92+i}, s{92+i}, s92")
    a("s_mov_b32 s99, s100")
    a("s_nop 0")
    a(f"s_mov_b32 s100, s88")
    for i in range(8): a(f"v_mov_b32 v{12+i}, s{93+i}")
    a("v_mov_b32 v11, 0")
    if C.dbgout:
        a("s_and_b32 s76, s2, 127"); a("s_cmp_lg_u32 s76, 0"); a("s_cbranch_scc1 L_end")
        a("s_sub_u32 s77, s100, s99"); a("v_mov_b32 v18, s77")
        a("s_lshr_b32 s76, s2, 7"); a("s_mul_i32 s76, s76, 28"); a("s_add_u32 s76, s76, 8")
        a("s_mov_b64 exec, 1")
        for i in range(7): a(f"buffer_store_dword v{12+i}, v11, s[{SDBG}:{SDBG+3}], s76 offen offset:{4*i}")
        return
    a(f"s_lshl_b32 s{T0}, s2, 5"); a(f"s_add_u32 s{T0}, s{T0}, {WS_ST}")
    a("s_mov_b64 exec, 1")
    a(f"buffer_store_dwordx4 v[12:15], v11, s[{SWS}:{SWS+3}], s{T0} offen")
    a(f"buffer_store_dwordx4 v[16:19], v11, s[{SWS}:{SWS+3}], s{T0} offen offset:16")

HEADER = open("gated_mix__ssm_conv_s5__dense_activation_squared_relu__prompt.s.ref").read().split("; Override launch")[0]

def generate(**kw):
    for k, v in kw.items():
        assert hasattr(C, k), k
        setattr(C, k, v)
    _lbl[0] = 0
    a = Asm()
    kernel_header(a, NAME)
    a("s_cmp_ge_u32 s2, 256"); a("s_cbranch_scc1 L_end")
    a("s_load_dwordx16 s[40:55], s[0:1], 0"); a("s_load_dwordx16 s[56:71], s[0:1], 64"); a("s_load_dwordx4 s[72:75], s[0:1], 128")
    if C.dbgst:
        a("s_memtime s[92:93]"); a("s_memrealtime s[100:101]")
    if C.codepf == 1 or C.codepf is True:
        a("s_getpc_b64 s[4:5]")
        a.label("L_pc")
        a("v_lshlrev_b32 v2, 7, v0")
        a("v_min_u32 v2, L_codeend-L_pc-4, v2")
        a("global_load_dword v250, v2, s[4:5]")
    elif C.codepf == 2:
        a("s_getpc_b64 s[4:5]")
        a.label("L_pc")
        a("s_lshr_b32 s6, s2, 3"); a("s_lshl_b32 s6, s6, 11")
        a("v_lshlrev_b32 v2, 7, v0"); a("v_add_u32 v2, s6, v2")
        a("v_min_u32 v2, L_codeend-L_pc-4, v2")
        a("v_cmp_gt_u32 vcc, 16, v0"); a("s_and_saveexec_b64 s[6:7], vcc"); a("s_cbranch_execz L_cpf")
        a("global_load_dword v250, v2, s[4:5]")
        a.label("L_cpf")
        a("s_mov_b64 exec, s[6:7]")
    a("v_lshrrev_b32 v1, 6, v0"); a("v_and_b32 v0, 63, v0"); a(f"v_readfirstlane_b32 s{sWave}, v1")
    a(f"s_and_b32 s{T0}, s2, 7"); a(f"s_lshr_b32 s{T1}, s2, 3")
    a(f"s_lshr_b32 s{sRole}, s{T1}, 4")
    a(f"s_bfe_u32 s{T2}, s{T1}, 0x20002"); a(f"s_and_b32 s{T3}, s{T1}, 3")
    a(f"s_lshr_b32 s{sM}, s{T0}, 2"); a(f"s_lshl_b32 s{sM}, s{sM}, 2"); a(f"s_add_u32 s{sM}, s{sM}, s{T2}")
    a(f"s_and_b32 s{sN}, s{T0}, 3"); a(f"s_lshl_b32 s{sN}, s{sN}, 2"); a(f"s_add_u32 s{sN}, s{sN}, s{T3}")
    mode = C.rot
    if mode is True: mode = 1
    if mode == 1:
        a(f"s_lshl_b32 s{sRot}, s{sRole}, 2"); a(f"s_add_u32 s{sRot}, s{sRot}, s{T3}"); a(f"s_lshl_b32 s{sRot}, s{sRot}, 1")
        a(f"s_lshl_b32 s{T2}, s{T2}, 2"); a(f"s_add_u32 s{sRot}, s{sRot}, s{T2}"); a(f"s_and_b32 s{T0}, s{T0}, 3")
        a(f"s_add_u32 s{sRot}, s{sRot}, s{T0}"); a(f"s_and_b32 s{sRot}, s{sRot}, 15")
    elif mode == 2:
        a(f"s_and_b32 s{sRot}, s{T0}, 3"); a(f"s_lshl_b32 s{sRot}, s{sRot}, 2"); a(f"s_lshr_b32 s{T0}, s{T0}, 2"); a(f"s_lshl_b32 s{T0}, s{T0}, 1")
        a(f"s_add_u32 s{sRot}, s{sRot}, s{T0}"); a(f"s_and_b32 s{sRot}, s{sRot}, 15")
    elif mode == 3:
        a(f"s_and_b32 s{sRot}, s{T0}, 3"); a(f"s_lshl_b32 s{sRot}, s{sRot}, 2"); a(f"s_lshr_b32 s{T0}, s{T0}, 2"); a(f"s_lshl_b32 s{T0}, s{T0}, 3")
        a(f"s_add_u32 s{sRot}, s{sRot}, s{T0}"); a(f"s_xor_b32 s{T2}, s{T2}, s{T3}"); a(f"s_and_b32 s{T2}, s{T2}, 1"); a(f"s_lshl_b32 s{T2}, s{T2}, 3")
        a(f"s_add_u32 s{sRot}, s{sRot}, s{T2}"); a(f"s_and_b32 s{sRot}, s{sRot}, 15")
    elif mode == 4:
        a(f"s_xor_b32 s{T2}, s{T2}, s{T3}"); a(f"s_and_b32 s{T2}, s{T2}, 1"); a(f"s_lshl_b32 s{sRot}, s{T2}, 3")
        a(f"s_and_b32 s{T0}, s{T0}, 3"); a(f"s_lshl_b32 s{T0}, s{T0}, 1"); a(f"s_add_u32 s{sRot}, s{sRot}, s{T0}"); a(f"s_and_b32 s{sRot}, s{sRot}, 15")
    elif mode == 8:
        a(f"s_add_u32 s{sRot}, s{T0}, s{T2}"); a(f"s_and_b32 s{sRot}, s{sRot}, 3"); a(f"s_lshl_b32 s{sRot}, s{sRot}, 2")
    elif mode == 9:
        a(f"s_add_u32 s{sRot}, s{T0}, s{T2}"); a(f"s_and_b32 s{sRot}, s{sRot}, 1"); a(f"s_lshl_b32 s{sRot}, s{sRot}, 3")
    elif mode == 10:
        a(f"s_add_u32 s{sRot}, s{T0}, s{T2}"); a(f"s_and_b32 s{sRot}, s{sRot}, 7"); a(f"s_lshl_b32 s{sRot}, s{sRot}, 1")
    elif mode == 5:
        a(f"s_and_b32 s{sRot}, s{T0}, 3"); a(f"s_lshl_b32 s{sRot}, s{sRot}, 2")
    elif mode == 6:
        a(f"s_lshl_b32 s{sRot}, s{T2}, 2"); a(f"s_and_b32 s{T0}, s{T0}, 3"); a(f"s_add_u32 s{sRot}, s{sRot}, s{T0}"); a(f"s_and_b32 s{sRot}, s{sRot}, 15")
    elif mode == 7:
        a(f"s_lshl_b32 s{sRot}, s{T3}, 2"); a(f"s_and_b32 s{T0}, s{T0}, 3"); a(f"s_add_u32 s{sRot}, s{sRot}, s{T0}"); a(f"s_and_b32 s{sRot}, s{sRot}, 15")
    else:
        a(f"s_mov_b32 s{sRot}, 0")
    if C.dbgst:
        pass
    a(f"s_cmp_eq_u32 s{sRole}, 1"); a("s_cbranch_scc1 L_ssm")
    v1, l1 = phase1_dense(a)
    v2, l2 = phase2(a, 1)
    a("s_branch L_fin")
    a.label("L_ssm")
    v3, l3 = phase1_ssm(a)
    v4, l4 = phase2(a, 0)
    a.label("L_fin")
    if C.dbgst: emit_stamps(a)
    a.label("L_end")
    a("s_endpgm")
    a.label("L_codeend")
    nv = max(v1, v2, v3, v4); lds = max(l1, l2, l3, l4)
    assert nv <= 250
    if C.codepf or C.tlb: nv = 251
    if C.bulk or C.w2it: nv = 256
    head = HEADER + f"; @launch grid=(256,1,1) block=(512,1,1) lds={lds}\n"
    head += '.amdgcn_target "amdgcn-amd-amdhsa--gfx950"\n.text\n'
    return head + a.text() + '.section .rodata,"a"\n' + kernel_desc(NAME, nv, 102)

if __name__ == "__main__":
    kw = json.loads(sys.argv[2]) if len(sys.argv) > 2 else {}
    open(sys.argv[1], "w").write(generate(**kw))
```

```python
import sys, math, json
from asmlib import *

NAME = "gated_mix__ssm_conv_s5__dense_activation_squared_relu__prompt_kernel"
L, D, P_, F = 2048, 1024, 1024, 3584
KC = 2048 + F
RS_A2 = KC * 2
KA = dict(x=0, lre=8, lim=16, bre=24, bim=32, cre=40, cim=48, ldt=56, dsk=64, bx=72, w1=80, b1=88, w2=96, b2=104, gw=112, out=120, dbg=128, ws=136)
WS_A2 = 0
WS_G = 24 << 20
WS_AGG = WS_G + (1 << 16)
WS_MB = WS_AGG + (1 << 17)
WS_ST = WS_AGG + (1 << 18)
WS_XB = 32 << 20
WS_SIZE = 268435456
LOG2E = 0x3fb8aa3b
INV2PI = 0x3e22f983
PTR = {k: 40 + v // 4 for k, v in KA.items()}
DBG_LB = 0
DBG_CNT = 16
DBG_XF = 32

class Cfg:
    dbgst = False; rot = 4; nodma = False; noread = False; prefetch = True
    nAd = 24
    nBs = 8
    ns = 4
    delta = 2
    wt = " sc1"
    a2ld = " sc1"
    wto = ""
    spin = 300000
    sleep = 2
    early = True
    endwarm = 1
    midwarm = 0
    pfwin = 1
    dummypeel = {}
    w2it = 0
    codepf2 = 0
    codepf3 = 0
    dearly = True
    fine = True
    dparts = 4
    sparts = 2
    d1p = False
    k2 = 0
    flagit = 3
    dbgout = False
    xbf16 = True
    loop = {}
    inboxit = 18
    initit = 4
    tlb = False
    tlbshift = 21
    codepf = True
    pbar = False
    bulk = False
    pflist = [('w1',0),('x',0),('bre',0),('bim',0),('cre',0),('cim',0),('w2',0)]
    pfit = 13
    span = 1.0
    prio = True
    nbq = 3
    stampset = 'main'
    stwave = 0
C = Cfg()

class Regs:
    def __init__(self, start, limit=256):
        self.n = start; self.limit = limit; self.hi = start
    def get(self, k=1, align=1):
        self.n = (self.n + align - 1) // align * align
        r = self.n; self.n += k
        self.hi = max(self.hi, self.n)
        assert self.n <= self.limit, f"out of registers {self.n} > {self.limit}"
        return r

def srd(a, s, ptr_lo, size):
    if s != ptr_lo:
        a(f"s_mov_b32 s{s}, s{ptr_lo}"); a(f"s_mov_b32 s{s+1}, s{ptr_lo+1}")
    a(f"s_mov_b32 s{s+2}, {size}"); a(f"s_mov_b32 s{s+3}, 0x20000")

_lbl = [0]
def newlabel(p):
    _lbl[0] += 1
    return f"L_{p}{_lbl[0]}"

class OpKC:
    def __init__(self, a, V, T, lds_off, nfr, flags=""):
        self.a, self.T, self.lds_off, self.nfr, self.flags = a, T, lds_off, nfr, flags
        self.n = T // 64
        self.vd = V.get(self.n)
        self.b0 = V.get(); self.c0 = V.get(); self.c1 = V.get()
        self.bytes = T * 128
        self.ldsoffs = [j * 1024 for j in range(self.n)]
    def lane_chunk(self, vdst, t):
        a = self.a
        a(f"v_and_b32 v{vdst}, 7, v0"); a(f"v_lshrrev_b32 v{t}, 4, v0")
        a(f"v_xor_b32 v{vdst}, v{vdst}, v{t}"); a(f"v_lshlrev_b32 v{vdst}, 4, v{vdst}")
    def set_voff(self, j, vlane, sRowBytes, xor64, comp=True):
        a = self.a; d = self.vd + j
        src = vlane
        if xor64 is True:
            a(f"v_xor_b32 v{d}, 64, v{vlane}"); src = d
        elif xor64 is not False:
            a(f"v_xor_b32 v{d}, s{xor64}, v{vlane}"); src = d
        a(f"v_add_u32 v{d}, s{sRowBytes}, v{src}")
    def dma(self, sBuf, sK, stmp, sLds, srds, groups=None):
        g = []
        for grp_i in self.groups:
            for n_, j in enumerate(grp_i):
                grp = []
                if n_ == 0:
                    grp.append(f"s_add_u32 s{stmp}, s{sBuf}, s{sLds}")
                    if self.ldsoffs[j]: grp.append(f"s_add_u32 s{stmp}, s{stmp}, {self.ldsoffs[j]}")
                    grp.append(f"s_mov_b32 m0, s{stmp}")
                    grp.append("s_nop 0")
                off = f" offset:{n_*1024}" if n_ else ""
                s = srds[j]
                grp.append(f"buffer_load_dwordx4 v{self.vd+j}, s[{s}:{s+3}], s{sK} offen{off}{self.flags} lds")
                g.append(grp)
        return g
    def count(self): return (self.n, self.n)
    def setup_read(self, sFrag0, tmp, stmp):
        a = self.a; t0, t1, t2 = tmp, tmp + 1, tmp + 2
        a(f"v_and_b32 v{t0}, 15, v0"); a(f"v_lshrrev_b32 v{t1}, 4, v0"); a(f"v_lshrrev_b32 v{t2}, 1, v{t0}")
        a(f"v_xor_b32 v{t1}, v{t1}, v{t2}"); a(f"v_lshlrev_b32 v{t1}, 4, v{t1}")
        a(f"v_lshl_add_u32 v{t0}, v{t0}, 7, v{t1}")
        a(f"s_lshl_b32 s{stmp}, s{sFrag0}, 11")
        if self.lds_off: a(f"s_add_u32 s{stmp}, s{stmp}, {self.lds_off}")
        a(f"v_add_u32 v{self.b0}, s{stmp}, v{t0}")
    def init_cur(self):
        return [f"v_mov_b32 v{self.c0}, v{self.b0}", f"v_xor_b32 v{self.c1}, 64, v{self.b0}"]
    def frag_off(self, i): return i * 2048
    def reads(self, ks, dst):
        if C.noread: return []
        c = self.c1 if ks else self.c0
        return [[f"ds_read_b128 {vr(dst+4*i,4)}, v{c} offset:{self.frag_off(i)}"] for i in range(self.nfr)]
    def upd_A(self, sBuf): return [f"v_add_u32 v{self.c0}, s{sBuf}, v{self.b0}"]
    def upd_B(self, sBuf): return [f"v_xor_b32 v{self.c1}, 64, v{self.c0}"]

class OpNC:
    def __init__(self, a, V, T, lds_off, nfr, RS, NW=8):
        self.a, self.T, self.lds_off, self.nfr, self.RS = a, T, lds_off, nfr, RS
        self.RP = T * 2; self.CH = self.RP // 16
        self.total = self.CH
        self.n = -(-self.total // NW)
        self.even = (self.total % NW == 0)
        self.nbig = NW if self.even else self.total - (self.n - 1) * NW
        self.vd = V.get(self.n)
        np_ = self.RP // 32
        self.gb = 3 if np_ % 8 == 0 else (2 if np_ % 4 == 0 else 1)
        self.nres = min(1 << self.gb, nfr)
        self.base = V.get(self.nres); self.cur = V.get(self.nres)
        self.bytes = 64 * self.RP
    def g_asm(self, vk, vo, t):
        a = self.a
        if self.gb == 3:
            a(f"v_and_b32 v{vo}, 3, v{vk}"); a(f"v_bfe_u32 v{t}, v{vk}, 3, 1"); a(f"v_lshl_or_b32 v{vo}, v{t}, 2, v{vo}")
        elif self.gb == 2:
            a(f"v_bfe_u32 v{vo}, v{vk}, 1, 1"); a(f"v_bfe_u32 v{t}, v{vk}, 3, 1"); a(f"v_lshl_or_b32 v{vo}, v{t}, 1, v{vo}")
        else:
            a(f"v_bfe_u32 v{vo}, v{vk}, 3, 1")
    def idx0(self, sWave, sOut, stmp):
        a = self.a
        if self.even: a(f"s_mul_i32 s{sOut}, s{sWave}, {self.n}")
        else:
            a(f"s_mul_i32 s{sOut}, s{sWave}, {self.n-1}")
            a(f"s_min_u32 s{stmp}, s{sWave}, {self.nbig}")
            a(f"s_add_u32 s{sOut}, s{sOut}, s{stmp}")
    def setup_dma(self, sWave, tmp, sCol0Bytes, stmp):
        a = self.a; t0, t1, t2, t3 = tmp, tmp + 1, tmp + 2, tmp + 3
        self.idx0(sWave, stmp, stmp + 1)
        magic = (1 << 20) // self.CH + 1
        for L_ in range(self.total * 64 + 64):
            assert (L_ * magic) >> 20 == L_ // self.CH
        for j in range(self.n):
            a(f"s_add_u32 s{stmp+1}, s{stmp}, {j}"); a(f"s_lshl_b32 s{stmp+1}, s{stmp+1}, 6")
            a(f"v_add_u32 v{t0}, s{stmp+1}, v0")
            if self.CH & (self.CH - 1) == 0:
                a(f"v_lshrrev_b32 v{t1}, {int(math.log2(self.CH))}, v{t0}")
                a(f"v_and_b32 v{t0}, {self.CH-1}, v{t0}")
            else:
                a(f"v_mul_u32_u24 v{t1}, {magic}, v{t0}"); a(f"v_lshrrev_b32 v{t1}, 20, v{t1}")
                a(f"v_mul_u32_u24 v{t2}, {self.CH}, v{t1}"); a(f"v_sub_u32 v{t0}, v{t0}, v{t2}")
            self.g_asm(t1, t2, t3)
            a(f"v_lshlrev_b32 v{t2}, 1, v{t2}"); a(f"v_xor_b32 v{t0}, v{t0}, v{t2}")
            a(f"v_mul_u32_u24 v{t1}, {self.RS}, v{t1}")
            a(f"v_lshl_add_u32 v{t0}, v{t0}, 4, v{t1}")
            if j % 4: a(f"s_sub_u32 s{stmp+1}, s{sCol0Bytes}, {(j%4)*1024}"); a(f"v_add_u32 v{self.vd+j}, s{stmp+1}, v{t0}")
            else: a(f"v_add_u32 v{self.vd+j}, s{sCol0Bytes}, v{t0}")
    def setup_lds(self, sWave, sLds, stmp):
        self.idx0(sWave, sLds, stmp)
        self.a(f"s_lshl_b32 s{sLds}, s{sLds}, 10")
        if self.lds_off: self.a(f"s_add_u32 s{sLds}, s{sLds}, {self.lds_off}")
    def dma(self, sBuf, sK, stmp, sLds, srds, sWave=None):
        g = []
        s = srds
        for j in range(self.n):
            grp = []
            guard = (not self.even) and j == self.n - 1
            if guard:
                lbl = newlabel("ncs")
                grp += [f"s_cmp_lt_u32 s{sWave}, {self.nbig}", f"s_cbranch_scc0 {lbl}"]
            if j % 4 == 0:
                grp.append(f"s_add_u32 s{stmp}, s{sBuf}, s{sLds}")
                if j: grp.append(f"s_add_u32 s{stmp}, s{stmp}, {j*1024}")
                grp += [f"s_mov_b32 m0, s{stmp}", "s_nop 0"]
            off = f" offset:{(j%4)*1024}" if j % 4 else ""
            grp.append(f"buffer_load_dwordx4 v{self.vd+j}, s[{s}:{s+3}], s{sK} offen{off} lds")
            if guard: grp.append(f"{lbl}:")
            g.append(grp)
        return g
    def count(self): return (self.n if self.even else self.n - 1, self.n)
    def setup_read(self, sFrag0, tmp, stmp):
        a = self.a; t0, t1, t2 = tmp, tmp + 1, tmp + 2
        a(f"v_lshrrev_b32 v{t0}, 4, v0"); a(f"v_lshlrev_b32 v{t0}, 3, v{t0}")
        a(f"v_bfe_u32 v{t1}, v0, 2, 2"); a(f"v_add_u32 v{t0}, v{t0}, v{t1}")
        self.g_asm(t0, t1, t2)
        a(f"v_mul_u32_u24 v{t0}, {self.RP}, v{t0}")
        a(f"v_and_b32 v{t2}, 3, v0"); a(f"v_lshl_add_u32 v{t0}, v{t2}, 3, v{t0}")
        if self.lds_off: a(f"v_add_u32 v{t0}, {self.lds_off}, v{t0}")
        for r in range(self.nres):
            a(f"s_add_u32 s{stmp}, s{sFrag0}, {r}")
            a(f"v_xor_b32 v{t2}, s{stmp}, v{t1}")
            if r: a(f"v_subrev_u32 v{t2}, {r}, v{t2}")
            a(f"v_lshl_add_u32 v{self.base+r}, v{t2}, 5, v{t0}")
    def init_cur(self):
        return [f"v_mov_b32 v{self.cur+r}, v{self.base+r}" for r in range(self.nres)]
    def reads(self, ks, dst):
        if C.noread: return []
        g = []
        for i in range(self.nfr):
            r = i % (1 << self.gb)
            for h in range(2):
                off = 32 * i + (4 * h + 32 * ks) * self.RP
                g.append([f"ds_read_b64_tr_b16 {vr(dst+4*i+2*h,2)}, v{self.cur+r} offset:{off}"])
        return g
    def upd_A(self, sBuf): return [f"v_add_u32 v{self.cur+r}, s{sBuf}, v{self.base+r}" for r in range(self.nres)]
    def upd_B(self, sBuf): return []

class Seg:
    def __init__(self, P, Q, acc, Pdma, Qdma, kadvP, kadvQ, name):
        self.P, self.Q, self.acc, self.Pdma, self.Qdma, self.kadvP, self.kadvQ, self.name = P, Q, acc, Pdma, Qdma, kadvP, kadvQ, name
        self.xdma = []

class Gemm:
    def __init__(self, a, V, NBP, NBQ, SP, SQ, mp, mq, regs, joint, early=None, name="x"):
        self.a, self.NBP, self.NBQ, self.SP, self.SQ, self.mp, self.mq, self.joint = a, NBP, NBQ, SP, SQ, mp, mq, joint
        o = dict(span=C.span, prio=C.prio, dmapos="merge", order="i")
        o.update(C.loop.get(name, {}))
        self.opt = o
        self.name = name
        self.sDP, self.sRP, self.sDQ, self.sRQ, self.sCnt, self.sE = regs
        if joint: self.sDQ, self.sRQ = self.sDP, self.sRP
        self.early = early if C.early else None
        self.leadP = NBP - (1 if self.early == 'P' else 0)
        self.leadQ = NBQ - (1 if self.early == 'Q' else 0)
        self.F = []
        for s in range(2):
            p = V.get(4 * mp, 2); q = V.get(4 * mq, 2)
            self.F.append((p, q))
        self.vmq = []
        self.zero_first = False
    def emit(self, lines):
        for x in lines:
            if x.endswith(":"): self.a.label(x[:-1])
            else: self.a(x)
    def note(self, tag, n): self.vmq.append((tag, n))
    def vm_allow(self, need):
        last = -1
        for i, (t, n) in enumerate(self.vmq):
            if t in need: last = i
        return min(63, sum(n for t, n in self.vmq[last + 1:]))
    def reads(self, seg, ks, fs):
        p, q = self.F[fs]
        return merge(seg.P.reads(ks, p), seg.Q.reads(ks, q))
    def mfmas(self, seg, fs, zero=False):
        p, q = self.F[fs]
        ij = [(i, j) for i in range(self.mp) for j in range(self.mq)]
        if self.opt["order"] == "j": ij = [(i, j) for j in range(self.mq) for i in range(self.mp)]
        st = getattr(self, "acc_stride", 4 * self.mq)
        return [f"v_mfma_f32_16x16x32_bf16 {vr(c,4)}, {vr(p+4*i,4)}, {vr(q+4*j,4)}, {'0' if zero else vr(c,4)}"
                for (i, j) in ij for c in [seg.acc + st * i + 4 * j]]
    def spread(self, main, fill):
        n = len(main); k = len(fill)
        if k == 0: return list(main)
        span = max(1, min(n, int(n * self.opt['span'])))
        out = []; fi = 0
        for i, m in enumerate(main):
            out.append(m)
            while fi < k and (fi * span) // k <= i:
                out.extend(fill[fi]); fi += 1
        while fi < k: out.extend(fill[fi]); fi += 1
        return out
    def mix(self, reads, dma):
        m = self.opt["dmapos"]
        if m == "first": return dma + reads
        if m == "last": return reads + dma
        return merge(reads, dma)
    def ring_adv(self, sD, sR, stride, nb):
        return [f"s_mov_b32 s{sD}, s{sR}", f"s_add_u32 s{sR}, s{sR}, {stride}", f"s_cmp_eq_u32 s{sR}, {stride*nb}", f"s_cselect_b32 s{sR}, 0, s{sR}"]
    def advance(self):
        out = []
        if self.early: out.append(f"s_mov_b32 s{self.sE}, s{self.sDP if (self.joint or self.early == 'P') else self.sDQ}")
        if self.joint: return out + self.ring_adv(self.sDP, self.sRP, self.SP + self.SQ, self.NBP)
        return out + self.ring_adv(self.sDP, self.sRP, self.SP, self.NBP) + self.ring_adv(self.sDQ, self.sRQ, self.SQ, self.NBQ)
    def dma_list(self, which, seg, sBuf):
        if seg is None or C.nodma: return []
        if which == 'P': return seg.Pdma(sBuf) + [list(seg.kadvP)]
        return seg.Qdma(sBuf) + [list(seg.kadvQ)] + seg.xdma
    def body(self, cur, nxt, dP, dQ, vmw, pre_barrier=None, extra=None, zero=False):
        a = self.a
        self.emit(self.advance())
        a("s_waitcnt lgkmcnt(0)")
        fill = self.reads(cur, 1, 1)
        if nxt is not None: fill.append(nxt.P.upd_A(self.sRP) + nxt.Q.upd_A(self.sRQ))
        if self.early == 'P': fill = self.mix(fill, self.dma_list('P', dP, self.sE))
        if self.early == 'Q': fill = self.mix(fill, self.dma_list('Q', dQ, self.sE))
        if nxt is None and extra: fill = fill + extra
        self.emit(self.spread(self.mfmas(cur, 0, zero), fill))
        if nxt is None:
            a("s_waitcnt lgkmcnt(0)")
            self.emit(self.mfmas(cur, 1))
            return
        if pre_barrier: pre_barrier()
        a(f"s_waitcnt vmcnt({vmw}) lgkmcnt(0)")
        a("s_barrier")
        if self.opt["prio"]: a("s_setprio 1")
        fill = self.reads(nxt, 0, 0)
        d = []
        if self.early != 'P': d += self.dma_list('P', dP, self.sDP)
        if self.early != 'Q': d += self.dma_list('Q', dQ, self.sDQ)
        fill = self.mix(fill, d)
        u = nxt.P.upd_B(self.sRP) + nxt.Q.upd_B(self.sRQ)
        if u: fill.append(u)
        if extra: fill = fill + extra
        self.emit(self.spread(self.mfmas(cur, 1), fill))
        if self.opt["prio"]: a("s_setprio 0")
    def prologue(self, stages, which="PQ", first=0, last=None):
        a = self.a
        stride = self.SP + self.SQ if self.joint else None
        if first == 0:
            a(f"s_mov_b32 s{self.sDP}, 0")
            if not self.joint: a(f"s_mov_b32 s{self.sDQ}, 0")
        for s in range(first, max(self.leadP, self.leadQ) if last is None else last):
            if "P" in which and s < self.leadP:
                for g in stages[s].Pdma(self.sDP): self.emit(g)
                self.emit(stages[s].kadvP); self.note(('P', s), stages[s].P.count()[0])
                if not self.joint: a(f"s_add_u32 s{self.sDP}, s{self.sDP}, {self.SP}")
            if "Q" in which and s < self.leadQ:
                for g in stages[s].Qdma(self.sDQ): self.emit(g)
                self.emit(stages[s].kadvQ); self.note(('Q', s), stages[s].Q.count()[0])
                if not self.joint: a(f"s_add_u32 s{self.sDQ}, s{self.sDQ}, {self.SQ}")
            if self.joint: a(f"s_add_u32 s{self.sDP}, s{self.sDP}, {stride}")
    def run(self, stages, hooks=None, extras=None, post_first=None):
        a = self.a; N = len(stages)
        hooks = dict(hooks or {}); extras = extras or {}
        for it in C.dummypeel.get(self.name, []):
            if it not in hooks: hooks[it] = (lambda: None)
        a(f"s_waitcnt vmcnt({self.vm_allow({('P',0),('Q',0)})})")
        if getattr(self, "pre_first", None): self.pre_first()
        a("s_barrier")
        if post_first: post_first()
        seen = []
        for sg in stages:
            for op in (sg.P, sg.Q):
                if op not in seen: seen.append(op); self.emit(op.init_cur())
        if self.joint:
            a(f"s_mov_b32 s{self.sRP}, 0"); a(f"s_mov_b32 s{self.sDP}, {(self.SP+self.SQ)*(self.NBP-1)}")
        else:
            a(f"s_mov_b32 s{self.sRP}, 0"); a(f"s_mov_b32 s{self.sDP}, {self.SP*(self.NBP-1)}")
            a(f"s_mov_b32 s{self.sRQ}, 0"); a(f"s_mov_b32 s{self.sDQ}, {self.SQ*(self.NBQ-1)}")
        for g in self.reads(stages[0], 0, 0): self.emit(g)
        sigs = []; seen_acc = set()
        for i in range(N):
            nxt = stages[i + 1] if i + 1 < N else None
            dP = stages[i + self.leadP] if i + self.leadP < N else None
            dQ = stages[i + self.leadQ] if i + self.leadQ < N else None
            def noteP():
                if dP is not None: self.note(('P', i + self.leadP), dP.P.count()[0])
            def noteQ():
                if dQ is not None:
                    self.note(('Q', i + self.leadQ), dQ.Q.count()[0])
                    if dQ.xdma: self.note(('PF', i), len(dQ.xdma))
            if self.early == 'P': noteP()
            if self.early == 'Q': noteQ()
            vmw = self.vm_allow({('P', i + 1), ('Q', i + 1)}) if nxt is not None else 0
            if i in getattr(self, "want_allow", {}):
                if not hasattr(self, "allow_at"): self.allow_at = {}
                self.allow_at[i] = self.vm_allow({self.want_allow[i]})
            if self.early != 'P': noteP()
            if self.early != 'Q': noteQ()
            if i in extras: self.note(('X', i), extras[i][1])
            zero = self.zero_first and stages[i].acc not in seen_acc
            seen_acc.add(stages[i].acc)
            sigs.append((stages[i], nxt, dP, dQ, vmw, i if (i in hooks or i in extras or zero) else -1, zero))
        i = 0
        while i < N:
            j = i
            while j < N and sigs[j] == sigs[i]: j += 1
            cnt = j - i
            cur, nxt, dP, dQ, vmw, sp, zero = sigs[i]
            hk = hooks.get(sp); ex = extras[sp][0] if sp in extras else None
            if cnt >= 2:
                lbl = newlabel("gl")
                a(f"s_mov_b32 s{self.sCnt}, {cnt}")
                a.label(lbl)
                self.body(cur, nxt, dP, dQ, vmw)
                a(f"s_sub_u32 s{self.sCnt}, s{self.sCnt}, 1"); a(f"s_cmp_lg_u32 s{self.sCnt}, 0"); a(f"s_cbranch_scc1 {lbl}")
            else:
                self.body(cur, nxt, dP, dQ, vmw, hk, ex, zero)
            i = j

def merge(x, y):
    out = []; i = j = 0
    while i < len(x) or j < len(y):
        if j >= len(y) or (i < len(x) and i * len(y) <= j * len(x)): out.append(x[i]); i += 1
        else: out.append(y[j]); j += 1
    return out

def bf16_round(a, vdst, vsrc):
    a(f"v_cvt_pk_bf16_f32 v{vdst}, v{vsrc}, v{vsrc}"); a(f"v_lshlrev_b32 v{vdst}, 16, v{vdst}")

def stamp(a, idx, real=False, st="main"):
    if C.dbgst and st == C.stampset:
        a("s_memrealtime s[88:89]" if real else "s_memtime s[88:89]")
        a("s_waitcnt lgkmcnt(0)")
        a(f"s_mov_b32 s{92+idx}, s88")

sWave, sM, sN, sRole = 28, 29, 30, 31
sBufD, sBufR, sCnt, sTmp, sKP, sKQ, sLdsP, sLdsQ = 32, 33, 34, 35, 36, 37, 38, 39
sWp, sWq, sRot, sLdsP2, sKP2, sTile, sTt, sDt = 80, 81, 82, 83, 84, 85, 86, 87
SX, SA, SB_, SWS, SDBG, SS = 4, 8, 12, 16, 20, 24
T0, T1, T2, T3 = 76, 77, 78, 79
U0, U1, U2, U3 = 88, 89, 90, 91
VT = 2

def ssm_param_loads(a, vch, t):
    a(f"v_lshlrev_b32 v{t}, 1, v{vch}")
    for k, name in enumerate(("lre", "lim", "ldt")):
        srd(a, SS, PTR[name], 2048)
        a(f"buffer_load_ushort v{t+1+k}, v{t}, s[{SS}:{SS+3}], 0 offen")

def ssm_params_compute(a, out, t, want_kappa=True):
    lre, lim, ldt = t + 1, t + 2, t + 3
    x0, x1, x2, x3 = t + 4, t + 5, t + 6, t + 7
    lr, li, kr, ki = out, out + 1, out + 2, out + 3
    for r in (lre, lim, ldt): a(f"v_lshlrev_b32 v{r}, 16, v{r}")
    a(f"v_mul_f32 v{x0}, {LOG2E:#x}, v{ldt}"); a(f"v_exp_f32 v{x0}, v{x0}"); a("s_nop 0")
    bf16_round(a, x0, x0)
    a(f"v_mul_f32 v{x1}, v{x0}, v{lre}"); a(f"v_mul_f32 v{x2}, v{x0}, v{lim}")
    a(f"v_mul_f32 v{x1}, {LOG2E:#x}, v{x1}"); a(f"v_exp_f32 v{x1}, v{x1}")
    a(f"v_mul_f32 v{x2}, {INV2PI:#x}, v{x2}"); a(f"v_rndne_f32 v{x3}, v{x2}"); a(f"v_sub_f32 v{x2}, v{x2}, v{x3}")
    a(f"v_cos_f32 v{x3}, v{x2}"); a(f"v_sin_f32 v{x2}, v{x2}"); a("s_nop 0")
    a(f"v_mul_f32 v{lr}, v{x1}, v{x3}"); a(f"v_mul_f32 v{li}, v{x1}, v{x2}")
    if want_kappa:
        a(f"v_subrev_f32 v{x0}, 1.0, v{lr}")
        a(f"v_mul_f32 v{x1}, v{x0}, v{lre}"); a(f"v_fmac_f32 v{x1}, v{li}, v{lim}")
        a(f"v_mul_f32 v{x2}, v{li}, v{lre}"); a(f"v_fma_f32 v{x2}, -v{x0}, v{lim}, v{x2}")
        a(f"v_mul_f32 v{x3}, v{lre}, v{lre}"); a(f"v_fmac_f32 v{x3}, v{lim}, v{lim}")
        a(f"v_rcp_f32 v{x3}, v{x3}"); a("s_nop 0")
        a(f"v_add_f32 v{x3}, v{x3}, v{x3}")
        a(f"v_mul_f32 v{kr}, v{x1}, v{x3}"); a(f"v_mul_f32 v{ki}, v{x2}, v{x3}")

def csq(a, dr, di, sr_, si, t):
    a(f"v_mul_f32 v{t}, v{sr_}, v{si}"); a(f"v_mul_f32 v{dr}, v{sr_}, v{sr_}")
    a(f"v_fma_f32 v{dr}, -v{si}, v{si}, v{dr}"); a(f"v_add_f32 v{di}, v{t}, v{t}")

def gate_row_loads(a, sRow, vx, t):
    a(f"s_lshl_b32 s{U1}, s{sRow}, 11")
    a(f"buffer_load_dwordx4 {vr(vx,4)}, v{t}, s[{SX}:{SX+3}], s{U1} offen")
    a(f"buffer_load_dwordx4 {vr(vx+4,4)}, v{t}, s[{SX}:{SX+3}], s{U1} offen offset:16")

def gate_compute(a, sRow, vx, vw, t):
    acc = t; p0, p1, q0, q1 = t + 1, t + 2, t + 3, t + 4
    a(f"v_mov_b32 v{acc}, 0")
    for d in range(8):
        a(f"v_lshlrev_b32 v{p0}, 16, v{vx+d}"); a(f"v_and_b32 v{p1}, 0xffff0000, v{vx+d}")
        a(f"v_lshlrev_b32 v{q0}, 16, v{vw+d}"); a(f"v_and_b32 v{q1}, 0xffff0000, v{vw+d}")
        a(f"v_mul_f32 v{p0}, v{p0}, v{q0}"); a(f"v_mul_f32 v{p1}, v{p1}, v{q1}")
        a(f"v_cvt_pk_bf16_f32 v{p0}, v{p0}, v{p1}")
        a(f"v_and_b32 v{p1}, 0xffff0000, v{p0}"); a(f"v_lshlrev_b32 v{p0}, 16, v{p0}")
        a(f"v_add_f32 v{acc}, v{acc}, v{p0}"); a(f"v_add_f32 v{acc}, v{acc}, v{p1}")
    for sh in (1, 2, 4, 8):
        a("s_nop 1")
        a(f"v_add_f32_dpp v{acc}, v{acc}, v{acc} row_shr:{sh} row_mask:0xf bank_mask:0xf bound_ctrl:0")
    a("s_nop 1")
    a(f"v_add_f32_dpp v{acc}, v{acc}, v{acc} row_bcast:15 row_mask:0xa bank_mask:0xf")
    a("s_nop 1")
    a(f"v_add_f32_dpp v{acc}, v{acc}, v{acc} row_bcast:31 row_mask:0xc bank_mask:0xf")
    a("s_nop 1")
    a(f"v_readlane_b32 s{U0}, v{acc}, 63")
    a("s_nop 1")
    a(f"v_mov_b32 v{acc}, s{U0}")
    bf16_round(a, acc, acc)
    a(f"v_mul_f32 v{p0}, {LOG2E ^ 0x80000000:#x}, v{acc}"); a(f"v_exp_f32 v{p0}, v{p0}"); a("s_nop 0")
    a(f"v_add_f32 v{p0}, 1.0, v{p0}"); a(f"v_rcp_f32 v{p0}, v{p0}"); a("s_nop 0")
    bf16_round(a, p0, p0)
    a(f"v_sub_f32 v{p1}, 1.0, v{p0}")
    bf16_round(a, p1, p1)
    a(f"s_lshl_b32 s{U0}, s{sRow}, 3"); a(f"s_add_u32 s{U0}, s{U0}, {WS_G}")
    a(f"v_cmp_eq_u32 vcc, 0, v0"); a("s_nop 1")
    a(f"v_cndmask_b32 v{p0}, v{p1}, v{p0}, vcc")
    a(f"v_lshlrev_b32 v{q0}, 2, v0")
    a("s_mov_b64 exec, 3")
    a(f"buffer_store_dword v{p0}, v{q0}, s[{SWS}:{SWS+3}], s{U0} offen sc1")
    a("s_mov_b64 exec, -1")

SENT = 0xffffffff
def inbox_offset(a, sdst):
    a(f"s_lshl_b32 s{sdst}, s2, 3"); a(f"s_add_u32 s{sdst}, s{sdst}, s{sWave}"); a(f"s_mul_i32 s{sdst}, s{sdst}, {4096*(C.ns-1)}")
    a(f"s_add_u32 s{sdst}, s{sdst}, {WS_XB}")

def mb_zero_groups(vt, ssm=False):
    c = []
    q = (vt + 1) // 2 * 2
    sk = newlabel("mz")
    c += [f"s_cmp_lg_u32 s{sWave}, 0", f"s_cbranch_scc1 {sk}"]
    if ssm:
        c += [f"v_mov_b32 v{q}, -1", f"v_mov_b32 v{q+1}, -1",
              f"s_lshl_b32 s{U0}, s{sN}, 6", f"v_add_u32 v{q+4}, s{U0}, v0", f"v_lshlrev_b32 v{q+4}, 3, v{q+4}",
              f"s_lshl_b32 s{U0}, s{sM}, 13", f"s_add_u32 s{U0}, s{U0}, {WS_AGG}",
              f"buffer_store_dwordx2 {vr(q,2)}, v{q+4}, s[{SWS}:{SWS+3}], s{U0} offen sc1"]
    c += [f"v_mov_b32 v{q+2}, 0", f"v_lshlrev_b32 v{q+4}, 2, v0", f"s_lshl_b32 s{U0}, s2, 8", f"s_add_u32 s{U0}, s{U0}, {WS_MB}",
          f"buffer_store_dword v{q+2}, v{q+4}, s[{SWS}:{SWS+3}], s{U0} offen sc1", f"{sk}:"]
    return [c], 0

def inbox_init(a, vt):
    for r in range(4): a(f"v_mov_b32 v{vt+r}, -1")
    a(f"v_lshlrev_b32 v{vt+4}, 4, v0")
    inbox_offset(a, U0)
    for i in range(4 * (C.ns - 1)):
        a(f"buffer_store_dwordx4 {vr(vt,4)}, v{vt+4}, s[{SWS}:{SWS+3}], s{U0} offen offset:{(i%4)*1024} sc1")
        if i % 4 == 3: a(f"s_add_u32 s{U0}, s{U0}, 4096")

def init_signal(a, vt, idx=0, guard=True):
    sk = newlabel("mi")
    if guard: a(f"s_cmp_lg_u32 s{sWave}, 0"); a(f"s_cbranch_scc1 {sk}")
    a(f"v_mov_b32 v{vt}, 1"); a(f"v_mov_b32 v{vt+1}, {4*idx}")
    a("s_mov_b64 exec, 1")
    a(f"buffer_atomic_add v{vt}, v{vt+1}, s[{SDBG}:{SDBG+3}], 0 offen sc1")
    a("s_mov_b64 exec, -1")
    a.label(sk)

def poll(a, srd_, sByteOff, check, vt, wide=1, sleep=None):
    lp, ok = newlabel("poll"), newlabel("pok")
    a(f"v_mov_b32 v{vt+4}, s{sByteOff}")
    a(f"s_mov_b32 s{U2}, {C.spin}")
    a.label(lp)
    a(f"s_sub_u32 s{U2}, s{U2}, 1"); a(f"s_cmp_eq_u32 s{U2}, 0"); a(f"s_cbranch_scc1 {ok}")
    op = {1: "dword", 2: "dwordx2", 4: "dwordx4"}[wide]
    a(f"buffer_load_{op} {vr(vt,wide)}, v{vt+4}, s[{srd_}:{srd_+3}], 0 offen sc1")
    a("s_waitcnt vmcnt(0)")
    a(f"v_readfirstlane_b32 s{U0}, v{vt}")
    if wide >= 2: a(f"v_readfirstlane_b32 s{U1}, v{vt+1}")
    if wide >= 4: a(f"v_readfirstlane_b32 s{U3}, v{vt+2}")
    a("s_nop 3")
    check(ok)
    a(f"s_sleep {C.sleep if sleep is None else sleep}")
    a(f"s_branch {lp}")
    a.label(ok)

VINIT = 1
def init_load(a, idx=0):
    sk = newlabel("il")
    a(f"s_cmp_lg_u32 s{sWave}, 0"); a(f"s_cbranch_scc1 {sk}")
    a(f"v_mov_b32 v{VINIT}, {4*idx}")
    a(f"buffer_load_dword v{VINIT}, v{VINIT}, s[{SDBG}:{SDBG+3}], 0 offen sc1")
    a.label(sk)

def init_check(a, vt, idx=0):
    ok = newlabel("ic")
    a(f"v_readfirstlane_b32 s{U0}, v{VINIT}"); a("s_nop 3")
    a(f"s_cmp_ge_u32 s{U0}, 256"); a(f"s_cbranch_scc1 {ok}")
    a(f"s_mov_b32 s{T3}, {4*idx}")
    def chk(o): a(f"s_cmp_ge_u32 s{U0}, 256"); a(f"s_cbranch_scc1 {o}")
    poll(a, SDBG, T3, chk, vt, sleep=32)
    a.label(ok)

def poll_own(a, check, vt):
    a(f"s_lshl_b32 s{T3}, s2, 8"); a(f"s_add_u32 s{T3}, s{T3}, {WS_MB}")
    poll(a, SWS, T3, check, vt, wide=4)

def signal_cnt(a, dword, vt):
    NS = C.ns; XS = 8 // NS
    l, t1, t2 = vt, vt + 1, vt + 2
    t3 = vt + 3
    if NS == 2:
        a(f"v_bfe_u32 v{t1}, v0, 3, 1"); a(f"s_lshl_b32 s{T0}, s{sM}, 1"); a(f"v_add_u32 v{t1}, s{T0}, v{t1}")
        a(f"v_bfe_u32 v{t3}, v0, 4, 1")
    else:
        a(f"v_mov_b32 v{t1}, s{sM}")
        a(f"v_bfe_u32 v{t3}, v0, 3, 2")
    a(f"v_lshrrev_b32 v{t2}, 2, v{t1}"); a(f"v_mad_u32_u24 v{t2}, v{t3}, {XS}, v{t2}")
    a(f"v_and_b32 v{t1}, 3, v{t1}"); a(f"v_lshlrev_b32 v{t1}, 2, v{t1}")
    a(f"v_and_b32 v{l}, 3, v0"); a(f"v_or_b32 v{t1}, v{t1}, v{l}")
    a(f"v_bfe_u32 v{l}, v0, 2, 1"); a(f"v_and_b32 v{t3}, 1, v{t3}"); a(f"v_xor_b32 v{l}, v{l}, v{t3}"); a(f"v_xor_b32 v{l}, 1, v{l}")
    a(f"v_lshl_or_b32 v{t1}, v{l}, 4, v{t1}")
    a(f"v_lshl_or_b32 v{t1}, v{t1}, 3, v{t2}")
    a(f"v_lshlrev_b32 v{t1}, 8, v{t1}")
    if dword == "S" and C.fine and NS == 4:
        a(f"s_and_b32 s{T0}, s{sN}, 7"); a(f"s_lshl_b32 s{T0}, 1, s{T0}"); a(f"v_mov_b32 v{l}, s{T0}")
    else:
        a(f"v_mov_b32 v{l}, 1")
    if dword == "S":
        a(f"s_lshr_b32 s{T0}, s{sN}, 3"); a(f"s_lshl_b32 s{T0}, s{T0}, 2"); a(f"s_add_u32 s{T0}, s{T0}, {WS_MB}")
    else:
        a(f"s_mov_b32 s{T0}, {WS_MB + 4*dword}")
    a("s_mov_b32 exec_hi, 0")
    a(f"buffer_atomic_add v{l}, v{t1}, s[{SWS}:{SWS+3}], s{T0} offen sc1")
    a("s_mov_b64 exec, -1")

def bulk_prefetch(a, G, vdummy, vaddr):
    a(f"v_lshlrev_b32 v{vaddr}, 4, v0")
    n = 0
    for name, size in C.pflist:
        size = {"x": L*D*2, "w1": D*F*2, "bre": P_*D*2, "bim": P_*D*2, "cre": D*P_*2, "cim": D*P_*2, "w2": F*D*2}[name]
        share = size // 256; pw = share // 8
        a(f"s_mul_i32 s{U0}, s2, {share}"); a(f"s_mul_i32 s{U1}, s{sWave}, {pw}"); a(f"s_add_u32 s{U0}, s{U0}, s{U1}")
        a(f"s_mov_b32 s{T0}, s{PTR[name]}"); a(f"s_mov_b32 s{T0+1}, s{PTR[name]+1}")
        a(f"s_add_u32 s{T0+2}, s{U0}, {pw}"); a(f"s_mov_b32 s{T0+3}, 0x20000")
        for i in range(-(-pw // 1024)):
            a(f"buffer_load_dwordx4 {vr(vdummy,4)}, v{vaddr}, s[{T0}:{T0+3}], s{U0} offen offset:{i*1024}")
            n += 1
    G.note('pf', n)

def tlb_warm(a, vdummy, vaddr, names, tsrd):
    sizes = {"w2": F*D*2, "cre": D*P_*2, "cim": D*P_*2, "out": L*D*4, "lre": 2048, "lim": 2048, "ldt": 2048, "dsk": 2048, "b2": 2048, "gw": 2048}
    a(f"v_lshlrev_b32 v{vaddr}, {C.tlbshift}, v0")
    end = newlabel("tw")
    for w in range(8):
        nx = newlabel("tw")
        a(f"s_cmp_lg_u32 s{sWave}, {w}"); a(f"s_cbranch_scc1 {nx}")
        for name in names[w::8]:
            if name == "ws":
                a("s_mov_b32 exec_lo, 0x00ffffff"); a("s_mov_b32 exec_hi, 0")
                a(f"buffer_load_dword v{vdummy}, v{vaddr}, s[{SWS}:{SWS+3}], 0 offen")
                a("s_mov_b64 exec, -1")
            elif name == "dbg":
                a(f"buffer_load_dword v{vdummy}, v{vaddr}, s[{SDBG}:{SDBG+3}], 0 offen")
            else:
                a(f"s_mov_b32 s{tsrd}, s{PTR[name]}"); a(f"s_mov_b32 s{tsrd+1}, s{PTR[name]+1}"); a(f"s_mov_b32 s{tsrd+2}, {sizes[name]}"); a(f"s_mov_b32 s{tsrd+3}, 0x20000")
                a(f"buffer_load_dword v{vdummy}, v{vaddr}, s[{tsrd}:{tsrd+3}], 0 offen")
        a(f"s_branch {end}")
        a.label(nx)
    a.label(end)

def warm_groups(tsrd, vaddr):
    c = []
    end = newlabel("wg")
    c.append(f"v_lshlrev_b32 v{vaddr}, 20, v0")
    for w, name in enumerate(("a2", "cre", "cim", "w2")):
        nx = newlabel("wg")
        c += [f"s_cmp_lg_u32 s{sWave}, {w}", f"s_cbranch_scc1 {nx}"]
        if name == "a2":
            c += [f"s_mul_i32 s{U0}, s{sM}, {256*RS_A2}", "s_mov_b64 exec, 15",
                  f"buffer_load_dword v250, v{vaddr}, s[{SWS}:{SWS+3}], s{U0} offen", "s_mov_b64 exec, -1"]
        else:
            size = {"cre": D*P_*2, "cim": D*P_*2, "w2": F*D*2}[name]
            c += [f"s_mov_b32 s{tsrd}, s{PTR[name]}", f"s_mov_b32 s{tsrd+1}, s{PTR[name]+1}", f"s_mov_b32 s{tsrd+2}, {size}", f"s_mov_b32 s{tsrd+3}, 0x20000",
                  f"buffer_load_dword v250, v{vaddr}, s[{tsrd}:{tsrd+3}], 0 offen"]
        c += [f"s_branch {end}", f"{nx}:"]
    c.append(f"{end}:")
    return [c], 0

def code_pf_groups(vt):
    l, sk = newlabel("cp"), newlabel("cps")
    c = [f"s_cmp_lg_u32 s{sWave}, 7", f"s_cbranch_scc1 {sk}",
         f"s_getpc_b64 s[{U0}:{U1}]", f"{l}:",
         f"s_sub_u32 s{U0}, s{U0}, {l}-{NAME}", f"s_subb_u32 s{U1}, s{U1}, 0",
         f"s_lshr_b32 s{U2}, s2, 3", f"s_lshl_b32 s{U2}, s{U2}, 11",
         f"v_lshlrev_b32 v{vt}, 7, v0", f"v_add_u32 v{vt}, s{U2}, v{vt}", f"v_min_u32 v{vt}, L_codeend-{NAME}-4, v{vt}",
         "s_mov_b64 exec, 0xffff", f"global_load_dword v250, v{vt}, s[{U0}:{U1}]", "s_mov_b64 exec, -1", f"{sk}:"]
    return [c], 0

def phase1_dense(a):
    V = Regs(10)
    TP, TQ = 224, 256
    mp, mq = 7, 4
    Pop = OpNC(a, V, TP, 0, mp, F * 2)
    NBP, NBQ = (3, 2) if C.d1p else (2, 3)
    Qop = OpKC(a, V, TQ, NBP * Pop.bytes, mq); Qop.groups = [[0, 1, 2, 3]]
    G = Gemm(a, V, NBP, NBQ, Pop.bytes, Qop.bytes, mp, mq, (sBufD, sBufR, sTile, sTt, sCnt, sRole), False, 'P' if C.d1p else 'Q', 'd1')
    LDS1 = NBP * Pop.bytes + NBQ * Qop.bytes
    acc = V.get(4 * mp * mq, 2)
    vb = V.get(2 * mp, 2); vdum = V.get(4, 2)
    a(f"s_lshr_b32 s{sWp}, s{sWave}, 2"); a(f"s_and_b32 s{sWq}, s{sWave}, 3")
    a(f"s_mul_i32 s{T0}, s{sN}, {TP*2}")
    Pop.setup_dma(sWave, VT, T0, U0)
    Qop.lane_chunk(VT, VT + 1)
    a(f"v_lshrrev_b32 v{VT+1}, 3, v0"); a(f"v_lshl_add_u32 v{VT}, v{VT+1}, 11, v{VT}")
    for j in range(4):
        a(f"s_lshl_b32 s{T0}, s{sM}, 8"); a(f"s_lshl_b32 s{T1}, s{sWave}, 5"); a(f"s_add_u32 s{T0}, s{T0}, s{T1}")
        a(f"s_add_u32 s{T0}, s{T0}, {8*j}"); a(f"s_lshl_b32 s{T0}, s{T0}, 11"); a(f"s_sub_u32 s{T0}, s{T0}, {j*1024}")
        Qop.set_voff(j, VT, T0, bool(j & 1))
    Pop.setup_lds(sWave, sLdsP, U0)
    a(f"s_lshl_b32 s{sLdsQ}, s{sWave}, 12"); a(f"s_add_u32 s{sLdsQ}, s{sLdsQ}, {Qop.lds_off}")
    a(f"s_mul_i32 s{sKP}, s{sRot}, {64*F*2}"); a(f"s_lshl_b32 s{sKQ}, s{sRot}, 7")
    a("s_waitcnt lgkmcnt(0)")
    stamp(a, 1, st="pro")
    srd(a, SX, PTR["x"], L * D * 2); srd(a, SWS, PTR["ws"], WS_SIZE); srd(a, SDBG, PTR["dbg"], 256)
    srd(a, SA, PTR["w1"], D * F * 2)
    kadvP = [f"s_add_u32 s{sKP}, s{sKP}, {64*F*2}", f"s_cmp_eq_u32 s{sKP}, {D*F*2}", f"s_cselect_b32 s{sKP}, 0, s{sKP}"]
    kadvQ = [f"s_add_u32 s{sKQ}, s{sKQ}, 128", f"s_and_b32 s{sKQ}, s{sKQ}, 2047"]
    seg = Seg(Pop, Qop, acc, lambda b: Pop.dma(b, sKP, sTmp, sLdsP, SA, sWave), lambda b: Qop.dma(b, sKQ, sTmp, sLdsQ, [SX] * 4), kadvP, kadvQ, "d1")
    stages = [seg] * 16
    G.prologue(stages, "PQ", 0, 1)
    if C.pbar: a("s_barrier")
    if C.tlb: tlb_warm(a, 250, VT + 5, ["ws", "w2", "cre", "cim", "out", "dbg", "dsk", "b2"], SS); G.note('tlb', 1)
    stamp(a, 2, st="pro")
    a(f"s_mul_i32 s{T2}, s{sN}, {TP}"); a(f"s_mul_i32 s{T3}, s{sWp}, {mp*16}"); a(f"s_add_u32 s{T2}, s{T2}, s{T3}")
    a(f"s_lshl_b32 s{T3}, s{T2}, 1")
    a(f"v_lshrrev_b32 v{VT+2}, 4, v0"); a(f"v_lshlrev_b32 v{VT+2}, 3, v{VT+2}")
    srd(a, SS, PTR["b1"], F * 2)
    for i in range(mp):
        a(f"buffer_load_dwordx2 {vr(vb+2*i,2)}, v{VT+2}, s[{SS}:{SS+3}], s{T3} offen offset:{32*i}")
    G.note('misc', mp)
    a(f"s_mul_i32 s{T0}, s{sWp}, {mp}"); Pop.setup_read(T0, VT, U0)
    a(f"s_mul_i32 s{T0}, s{sWq}, {mq}"); Qop.setup_read(T0, VT, U0)
    stamp(a, 3, st="pro")
    G.prologue(stages, "PQ", 1)
    if C.bulk: bulk_prefetch(a, G, 252, VT + 5)
    stamp(a, 4, st="pro")
    a(f"s_waitcnt vmcnt({G.vm_allow({'misc'})})")
    for i in range(mp):
        c = acc + 4 * (i * mq)
        a(f"v_lshlrev_b32 v{c}, 16, v{vb+2*i}"); a(f"v_and_b32 v{c+1}, 0xffff0000, v{vb+2*i}")
        a(f"v_lshlrev_b32 v{c+2}, 16, v{vb+2*i+1}"); a(f"v_and_b32 v{c+3}, 0xffff0000, v{vb+2*i+1}")
        for j in range(1, mq):
            for r in range(4): a(f"v_mov_b32 v{c+4*j+r}, v{c+r}")
    stamp(a, 1)
    G.pre_first = lambda: stamp(a, 5, st="pro")
    dex = {C.initit: mb_zero_groups(VT + 2)}
    if C.midwarm: dex[C.midwarm] = warm_groups(SS, VT + 3)
    if C.codepf2: dex[C.codepf2] = code_pf_groups(VT + 3)
    G.run(stages, {C.initit + 3: (lambda: init_signal(a, VT + 4))}, dex, (lambda: stamp(a, 6, st="pro")))
    stamp(a, 2)
    stamp(a, 1, st="clk"); stamp(a, 2, real=True, st="clk")
    PITCH = 464
    stamp(a, 1, st="dense")
    init_load(a)
    vw = VT
    a(f"v_and_b32 v{vw}, 15, v0"); a(f"v_mul_u32_u24 v{vw}, {PITCH}, v{vw}")
    a(f"v_lshrrev_b32 v{VT+1}, 4, v0"); a(f"v_lshl_add_u32 v{vw}, v{VT+1}, 3, v{vw}")
    a(f"s_mul_i32 s{T0}, s{sWq}, {64*PITCH}"); a(f"s_mul_i32 s{T1}, s{sWp}, 224"); a(f"s_add_u32 s{T0}, s{T0}, s{T1}")
    a(f"v_add_u32 v{vw}, s{T0}, v{vw}")
    vr_, vg_ = VT + 1, VT + 2
    a(f"v_cmp_le_u32 vcc, 28, v0"); a("s_nop 1")
    a(f"v_cndmask_b32 v{VT+3}, 0, 1, vcc")
    a(f"v_mul_u32_u24 v{VT+4}, 28, v{VT+3}"); a(f"v_sub_u32 v{VT+4}, v0, v{VT+4}")
    a(f"v_lshlrev_b32 v{VT+4}, 4, v{VT+4}")
    a(f"v_mul_u32_u24 v{vr_}, {PITCH}, v{VT+3}"); a(f"v_add_u32 v{vr_}, v{vr_}, v{VT+4}")
    NH = C.dparts; JP = mq // NH; RW = 8 * JP
    a(f"s_mul_i32 s{T0}, s{sWq}, {64*PITCH}"); a(f"s_mul_i32 s{T1}, s{sWp}, {RW*PITCH}"); a(f"s_add_u32 s{T0}, s{T0}, s{T1}")
    a(f"v_add_u32 v{vr_}, s{T0}, v{vr_}")
    a(f"v_mul_u32_u24 v{vg_}, {RS_A2}, v{VT+3}"); a(f"v_add_u32 v{vg_}, v{vg_}, v{VT+4}")
    a(f"s_lshl_b32 s{T0}, s{sM}, 8"); a(f"s_lshl_b32 s{T1}, s{sWq}, 6"); a(f"s_add_u32 s{T0}, s{T0}, s{T1}")
    a(f"s_mul_i32 s{T1}, s{sWp}, {RW}"); a(f"s_add_u32 s{T0}, s{T0}, s{T1}")
    a(f"s_mul_i32 s{T0}, s{T0}, {RS_A2}"); a(f"s_mul_i32 s{T1}, s{sN}, 448"); a(f"s_add_u32 s{T0}, s{T0}, s{T1}")
    a(f"s_add_u32 s{T0}, s{T0}, {WS_A2 + 4096}")
    rb = G.F[0][0]
    for p in range(NH):
        js = range(p * JP, (p + 1) * JP)
        for j in js:
            for i in range(mp):
                c = acc + 4 * (i * mq + j)
                for r in range(4): a(f"v_mul_f32_e64 v{c+r}, v{c+r}, |v{c+r}|")
                a(f"v_cvt_pk_bf16_f32 v{c}, v{c}, v{c+1}"); a(f"v_cvt_pk_bf16_f32 v{c+1}, v{c+2}, v{c+3}")
                a(f"v_pk_max_i16 v{c}, v{c}, 0"); a(f"v_pk_max_i16 v{c+1}, v{c+1}, 0")
        if p == 0:
            a("s_barrier")
            stamp(a, 2, st="dense")
        for j in js:
            for i in range(mp):
                c = acc + 4 * (i * mq + j)
                a(f"ds_write_b64 v{vw}, {vr(c,2)} offset:{j*16*PITCH + 32*i}")
        a("s_waitcnt lgkmcnt(0)")
        if p == 0: stamp(a, 3, st="dense")
        a("s_barrier")
        if p == 0: stamp(a, 4, st="dense")
        a("s_mov_b32 exec_hi, 0x00ffffff")
        nst = RW // 2
        for n in range(nst):
            a(f"ds_read_b128 {vr(rb+4*n,4)}, v{vr_} offset:{(16*JP*p + 2*n)*PITCH}")
        if p: a(f"s_add_u32 s{T0}, s{T0}, {(16*JP - RW)*RS_A2}")
        for n in range(nst):
            a(f"s_waitcnt lgkmcnt({nst-1-n})")
            a(f"buffer_store_dwordx4 {vr(rb+4*n,4)}, v{vg_}, s[{SWS}:{SWS+3}], s{T0} offen{C.wt}")
            a(f"s_add_u32 s{T0}, s{T0}, {2*RS_A2}")
        a("s_mov_b64 exec, -1")
        if p < NH - 1: a("s_nop 1")
    stamp(a, 5, st="dense")
    return V.hi, max(LDS1, 4 * 64 * PITCH)

def phase1_ssm(a):
    V = Regs(10)
    mp, mq = 4, 4
    Pop = OpKC(a, V, 256, 0, mp); Pop.groups = [[0, 1, 2, 3]]
    Qop = OpKC(a, V, 128, Pop.bytes, mq); Qop.groups = [[0], [1]]; Qop.ldsoffs = [0, 8192]
    Qop.frag_off = lambda j: ((j & 1) * 4 + (j >> 1)) * 2048
    SB = Pop.bytes + Qop.bytes; NB = 3
    G = Gemm(a, V, NB, NB, Pop.bytes, Qop.bytes, mp, mq, (sBufD, sBufR, None, None, sCnt, sRole), True, 'P', 's1')
    acc = V.get(64, 2); prm = V.get(12, 4); big = V.get(72, 4)
    AG = NB * SB
    a(f"s_lshr_b32 s{sWp}, s{sWave}, 1"); a(f"s_and_b32 s{sWq}, s{sWave}, 1")
    Pop.lane_chunk(VT, VT + 1)
    a(f"v_lshrrev_b32 v{VT+1}, 5, v0"); a(f"v_lshlrev_b32 v{VT+1}, 4, v{VT+1}")
    a(f"v_bfe_u32 v{VT+2}, v0, 3, 2"); a(f"v_add_u32 v{VT+1}, v{VT+1}, v{VT+2}")
    a(f"v_lshl_add_u32 v{VT+3}, v{VT+1}, 11, v{VT}")
    for j in range(4):
        a(f"s_lshl_b32 s{T0}, s{sWave}, 1");
        if j >> 1: a(f"s_add_u32 s{T0}, s{T0}, 1")
        a(f"s_and_b32 s{T0}, s{T0}, 3"); a(f"s_lshl_b32 s{T0}, s{T0}, 2")
        a(f"s_lshl_b32 s{T1}, s{sWp}, 6"); a(f"s_add_u32 s{T0}, s{T0}, s{T1}")
        a(f"s_lshl_b32 s{T1}, s{sM}, 8"); a(f"s_add_u32 s{T0}, s{T0}, s{T1}")
        if j & 1: a(f"s_add_u32 s{T0}, s{T0}, 32")
        a(f"s_lshl_b32 s{T0}, s{T0}, 11")
        if j: a(f"s_sub_u32 s{T0}, s{T0}, {j*1024}")
        Pop.set_voff(j, VT + 3, T0, bool(j & 1))
    a(f"v_lshrrev_b32 v{VT+1}, 3, v0"); a(f"v_lshl_add_u32 v{VT+3}, v{VT+1}, 12, v{VT}")
    a(f"s_lshr_b32 s{T0}, s{sWave}, 2"); a(f"s_lshl_b32 s{T0}, s{T0}, 5")
    a(f"s_and_b32 s{T1}, s{sWave}, 1"); a(f"s_lshl_b32 s{T2}, s{T1}, 6"); a(f"s_lshl_b32 s{T1}, s{T1}, 4"); a(f"s_add_u32 s{T0}, s{T0}, s{T1}")
    a(f"s_bfe_u32 s{T1}, s{sWave}, 0x10001"); a(f"s_add_u32 s{T0}, s{T0}, s{T1}")
    a(f"s_lshl_b32 s{T1}, s{sN}, 6"); a(f"s_add_u32 s{T0}, s{T0}, s{T1}"); a(f"s_lshl_b32 s{T0}, s{T0}, 11")
    Qop.set_voff(0, VT + 3, T0, T2)
    a(f"v_mov_b32 v{Qop.vd+1}, v{Qop.vd}")
    a(f"s_lshl_b32 s{sLdsP}, s{sWave}, 12")
    a(f"s_lshl_b32 s{sLdsQ}, s{sWave}, 10"); a(f"s_add_u32 s{sLdsQ}, s{sLdsQ}, {Qop.lds_off}")
    a(f"s_lshl_b32 s{sKQ}, s{sRot}, 7")
    a("s_waitcnt lgkmcnt(0)")
    srd(a, SX, PTR["x"], L * D * 2); srd(a, SWS, PTR["ws"], WS_SIZE); srd(a, SDBG, PTR["dbg"], 256)
    srd(a, SA, PTR["bre"], P_ * D * 2); srd(a, SB_, PTR["bim"], P_ * D * 2)
    pt = [big, big + 8, big + 16]
    kadv = [f"s_add_u32 s{sKQ}, s{sKQ}, 128", f"s_and_b32 s{sKQ}, s{sKQ}, 2047"]
    kadvP = [f"s_add_u32 s{sKP}, s{sKP}, 128", f"s_and_b32 s{sKP}, s{sKP}, 2047"]
    a(f"s_mov_b32 s{sKP}, s{sKQ}")
    seg = Seg(Pop, Qop, acc, lambda b: Pop.dma(b, sKP, sTmp, sLdsP, [SX] * 4), lambda b: Qop.dma(b, sKQ, sTmp, sLdsQ, [SA, SB_]), kadvP, kadv, "s1")
    if C.prefetch:
        SP1, SP2, sPF1, sPF2 = SS, 72, sLdsP2, sKP2
        a(f"s_lshl_b32 s{T0}, s{sM}, 4"); a(f"s_add_u32 s{T0}, s{T0}, s{sN}")
        a(f"s_mul_i32 s{sPF2}, s{T0}, {56*1024}"); a(f"s_mul_i32 s{T1}, s{sWave}, {7*1024}"); a(f"s_add_u32 s{sPF2}, s{sPF2}, s{T1}")
        a(f"s_mov_b32 s{SP2}, s{PTR['w2']}"); a(f"s_mov_b32 s{SP2+1}, s{PTR['w2']+1}")
        a(f"s_add_u32 s{SP2+2}, s{sPF2}, {7*1024}"); a(f"s_mov_b32 s{SP2+3}, 0x20000")
        a(f"s_lshr_b32 s{T1}, s{T0}, 6"); a(f"s_cmp_eq_u32 s{T1}, 0")
        a(f"s_cselect_b32 s{SP1}, s{PTR['cre']}, s{PTR['cim']}"); a(f"s_cselect_b32 s{SP1+1}, s{PTR['cre']+1}, s{PTR['cim']+1}")
        a(f"s_and_b32 s{sPF1}, s{T0}, 63"); a(f"s_lshl_b32 s{sPF1}, s{sPF1}, 15"); a(f"s_lshl_b32 s{T1}, s{sWave}, 12"); a(f"s_add_u32 s{sPF1}, s{sPF1}, s{T1}")
        a(f"s_add_u32 s{SP1+2}, s{sPF1}, 4096"); a(f"s_mov_b32 s{SP1+3}, 0x20000")
        vpf = V.get(1); vpd = V.get(4, 2)
        a(f"v_lshlrev_b32 v{vpf}, 4, v0")
        pf = []
        for i in range(4): pf.append([f"buffer_load_dwordx4 {vr(vpd,4)}, v{vpf}, s[{SP1}:{SP1+3}], s{sPF1} offen offset:{i*1024}"])
        if not C.w2it:
            for i in range(7):
                pf.append([f"buffer_load_dwordx4 {vr(vpd,4)}, v{vpf}, s[{SP2}:{SP2+3}], s{sPF2} offen offset:{(i%4)*1024}"] + ([f"s_add_u32 s{sPF2}, s{sPF2}, 4096"] if i == 3 else []))
        p1extras = {C.pfit: (pf, len(pf))}
    else:
        p1extras = {}
    stages = [seg] * 16
    G.prologue(stages, "PQ", 0, 1)
    a(f"s_mul_i32 s{T0}, s{sWp}, {mp}"); Pop.setup_read(T0, VT, U0)
    a(f"s_lshl_b32 s{T0}, s{sWq}, 1"); Qop.setup_read(T0, VT, U0)
    G.zero_first = True
    if C.pbar: a("s_barrier")
    if C.tlb: tlb_warm(a, 250, VT + 5, ["ws", "w2", "cre", "cim", "out", "dbg", "dsk", "b2", "lre", "lim", "ldt", "gw"], 60); G.note('tlb', 1)
    G.prologue(stages, "PQ", 1)
    if C.bulk: bulk_prefetch(a, G, 252, VT + 5)
    SPRM = 60
    def prm_loads():
        out = []
        class Cap:
            def __call__(self, x): out.append([x])
        c = Cap()
        c(f"s_lshl_b32 s{T2}, s{sN}, 6"); c(f"s_lshl_b32 s{T3}, s{sWq}, 5"); c(f"s_add_u32 s{T3}, s{T3}, s{T2}")
        c(f"v_and_b32 v{VT}, 15, v0"); c(f"v_lshlrev_b32 v{VT}, 1, v{VT}"); c(f"v_add_u32 v{VT}, s{T3}, v{VT}")
        c(f"v_lshlrev_b32 v{pt[0]}, 1, v{VT}"); c(f"v_add_u32 v{pt[1]}, 2, v{pt[0]}")
        c(f"v_add_u32 v{pt[2]}, s{T2}, v0"); c(f"v_lshlrev_b32 v{pt[2]}, 1, v{pt[2]}")
        c(f"s_mov_b32 s{SPRM+2}, 2048"); c(f"s_mov_b32 s{SPRM+3}, 0x20000")
        for k, name in enumerate(("lre", "lim", "ldt")):
            out.append([f"s_mov_b32 s{SPRM}, s{PTR[name]}", f"s_mov_b32 s{SPRM+1}, s{PTR[name]+1}"] +
                       [f"buffer_load_ushort v{pt[q]+1+k}, v{pt[q]}, s[{SPRM}:{SPRM+3}], 0 offen" for q in range(3)])
        return out
    def prm_math():
        out = []
        class Cap:
            def __call__(self, x): out.append(x)
        c = Cap()
        ssm_params_compute(c, prm, pt[0]); ssm_params_compute(c, prm + 4, pt[1]); ssm_params_compute(c, prm + 8, pt[2], False)
        return [out[i:i + 4] for i in range(0, len(out), 4)]
    p1extras[3] = (prm_loads(), 9)
    p1extras[7] = (prm_math(), 0)
    stamp(a, 1)
    p1extras[C.initit] = mb_zero_groups(VT + 2, True)
    if C.midwarm: p1extras[C.midwarm] = warm_groups(60, VT + 3)
    if C.codepf2: p1extras[C.codepf2] = code_pf_groups(VT + 3)
    G.run(stages, {C.initit + 3: (lambda: init_signal(a, VT + 4))}, p1extras)
    stamp(a, 2)
    stamp(a, 1, st="clk"); stamp(a, 2, real=True, st="clk")
    stamp(a, 1, st="ssm")
    init_load(a)
    a("s_nop 7")
    def U(jc, ri, s): return acc + 4 * ((s >> 2) * 4 + 2 * jc + ri) + (s & 3)
    ag = big; tt = big + 4
    def scan_step(s):
        for jc in range(2):
            hr, hi_ = ag + 2 * jc, ag + 2 * jc + 1; lr = prm + 4 * jc; t0, t1 = tt + 2 * jc, tt + 2 * jc + 1
            a(f"v_fma_f32 v{t0}, v{lr}, v{hr}, v{U(jc,0,s)}"); a(f"v_fma_f32 v{t1}, v{lr}, v{hi_}, v{U(jc,1,s)}")
        for jc in range(2):
            hr, hi_ = ag + 2 * jc, ag + 2 * jc + 1; li = prm + 4 * jc + 1; t0, t1 = tt + 2 * jc, tt + 2 * jc + 1
            a(f"v_fma_f32 v{hi_}, v{li}, -v{hi_}, v{t0}")
            a(f"v_fma_f32 v{t1}, v{li}, v{hr}, v{t1}")
        for jc in range(2):
            hr, hi_ = ag + 2 * jc, ag + 2 * jc + 1; t1 = tt + 2 * jc + 1
            a(f"v_mov_b32 v{hr}, v{hi_}"); a(f"v_mov_b32 v{hi_}, v{t1}")
    for jc in range(2):
        a(f"v_mov_b32 v{ag+2*jc}, v{U(jc,0,0)}"); a(f"v_mov_b32 v{ag+2*jc+1}, v{U(jc,1,0)}")
    def scan2(s, src, dst):
        for jc in range(2):
            hr, hi_ = src + 2 * jc, src + 2 * jc + 1; lr = prm + 4 * jc; dr, di = dst + 2 * jc, dst + 2 * jc + 1
            a(f"v_fma_f32 v{dr}, v{lr}, v{hr}, v{U(jc,0,s)}"); a(f"v_fma_f32 v{di}, v{lr}, v{hi_}, v{U(jc,1,s)}")
        for jc in range(2):
            hr, hi_ = src + 2 * jc, src + 2 * jc + 1; li = prm + 4 * jc + 1; dr, di = dst + 2 * jc, dst + 2 * jc + 1
            a(f"v_fma_f32 v{dr}, -v{li}, v{hi_}, v{dr}"); a(f"v_fma_f32 v{di}, v{li}, v{hr}, v{di}")
    st = [ag, tt]
    for s in range(1, 16): scan2(s, st[(s - 1) & 1], st[s & 1])
    fin = st[15 & 1]
    vag = big + 8
    def calc_vag():
        a(f"v_lshrrev_b32 v{vag}, 4, v0"); a(f"s_lshl_b32 s{T0}, s{sWp}, 2"); a(f"v_add_u32 v{vag}, s{T0}, v{vag}")
        a(f"v_lshlrev_b32 v{vag}, 9, v{vag}")
        a(f"v_and_b32 v{big+9}, 15, v0"); a(f"v_lshlrev_b32 v{big+9}, 4, v{big+9}")
        a(f"s_lshl_b32 s{T0}, s{sWq}, 8"); a(f"s_add_u32 s{T0}, s{T0}, {AG}")
        a(f"v_add3_u32 v{vag}, v{vag}, v{big+9}, s{T0}")
    calc_vag()
    a(f"ds_write_b128 v{vag}, {vr(fin,4)}")
    a("s_waitcnt lgkmcnt(0)")
    a("s_barrier")
    stamp(a, 2, st="ssm")
    a(f"s_cmp_lg_u32 s{sWave}, 0")
    a("s_cbranch_scc1 L_s_gate")
    lr, li = prm + 8, prm + 9
    l16r, l16i, l256r, l256i = big + 10, big + 11, big + 12, big + 13
    er, ei = big + 14, big + 15
    w0 = big + 4
    A = big + 16; vl = big + 9
    a(f"v_lshlrev_b32 v{vl}, 3, v0"); a(f"v_add_u32 v{vl}, {AG}, v{vl}")
    for s in range(16): a(f"ds_read_b64 {vr(A+2*s,2)}, v{vl} offset:{s*512}")
    csq(a, l16r, l16i, lr, li, w0)
    for _ in range(3): csq(a, l16r, l16i, l16r, l16i, w0)
    csq(a, l256r, l256i, l16r, l16i, w0)
    for _ in range(3): csq(a, l256r, l256i, l256r, l256i, w0)
    a("s_waitcnt lgkmcnt(0)")
    x0, x1 = big + 6, big + 7
    for s in range(1, 16):
        pr, pi, cr_, ci_ = A + 2 * (s - 1), A + 2 * (s - 1) + 1, A + 2 * s, A + 2 * s + 1
        a(f"v_fma_f32 v{cr_}, v{l16r}, v{pr}, v{cr_}"); a(f"v_fma_f32 v{ci_}, v{l16r}, v{pi}, v{ci_}")
        a(f"v_fma_f32 v{cr_}, -v{l16i}, v{pi}, v{cr_}"); a(f"v_fma_f32 v{ci_}, v{l16i}, v{pr}, v{ci_}")
    er, ei = A + 30, A + 31
    vo = big + 8
    a(f"s_lshl_b32 s{T0}, s{sN}, 6"); a(f"v_add_u32 v{vo}, s{T0}, v0"); a(f"v_lshlrev_b32 v{vo}, 3, v{vo}")
    a(f"s_lshl_b32 s{T1}, s{sM}, 13"); a(f"s_add_u32 s{T1}, s{T1}, {WS_AGG}")
    a("s_waitcnt vmcnt(0)")
    init_check(a, big + 52)
    a(f"s_lshl_b32 s{T1}, s{sM}, 13"); a(f"s_add_u32 s{T1}, s{T1}, {WS_AGG}")
    a(f"buffer_store_dwordx2 {vr(er,2)}, v{vo}, s[{SWS}:{SWS+3}], s{T1} offen sc1")
    stamp(a, 3, st="ssm")
    cr, ci = big + 48, big + 49
    a(f"v_mov_b32 v{cr}, 0"); a(f"v_mov_b32 v{ci}, 0")
    a(f"s_cmp_eq_u32 s{sM}, 0"); a("s_cbranch_scc1 L_s_nolb")
    B = big + 50
    a(f"s_mov_b32 s{U2}, {C.spin}")
    a.label("L_s_lb")
    for j in range(7):
        if j: a(f"s_cmp_le_u32 s{sM}, {j}"); a("s_cbranch_scc1 L_s_lbw")
        a(f"s_mov_b32 s{T1}, {WS_AGG + j*8192}")
        a(f"buffer_load_dwordx2 {vr(B+2*j,2)}, v{vo}, s[{SWS}:{SWS+3}], s{T1} offen sc1")
    a.label("L_s_lbw")
    a("s_waitcnt vmcnt(0)")
    a(f"s_mov_b64 s[{U0}:{U1}], 0")
    for j in range(7):
        if j: a(f"s_cmp_le_u32 s{sM}, {j}"); a("s_cbranch_scc1 L_s_lbc")
        a(f"v_cmp_eq_u32 vcc, -1, v{B+2*j}"); a("s_nop 0"); a(f"s_or_b64 s[{U0}:{U1}], s[{U0}:{U1}], vcc")
        a(f"v_cmp_eq_u32 vcc, -1, v{B+2*j+1}"); a("s_nop 0"); a(f"s_or_b64 s[{U0}:{U1}], s[{U0}:{U1}], vcc")
    a.label("L_s_lbc")
    a(f"s_cmp_eq_u64 s[{U0}:{U1}], 0"); a("s_cbranch_scc1 L_s_lbok")
    a(f"s_sub_u32 s{U2}, s{U2}, 1"); a(f"s_cmp_eq_u32 s{U2}, 0"); a("s_cbranch_scc1 L_s_lbok")
    a(f"s_sleep {C.sleep}"); a("s_branch L_s_lb")
    a.label("L_s_lbok")
    for j in range(7):
        a(f"s_cmp_le_u32 s{sM}, {j}"); a("s_cbranch_scc1 L_s_nolb")
        a(f"v_fma_f32 v{x0}, v{l256r}, v{cr}, v{B+2*j}"); a(f"v_fma_f32 v{x1}, v{l256r}, v{ci}, v{B+2*j+1}")
        a(f"v_fma_f32 v{x0}, -v{l256i}, v{ci}, v{x0}"); a(f"v_fma_f32 v{ci}, v{l256i}, v{cr}, v{x1}")
        a(f"v_mov_b32 v{cr}, v{x0}")
    a.label("L_s_nolb")
    stamp(a, 4, st="ssm")
    a(f"ds_write_b64 v{vl}, {vr(cr,2)}")
    for s in range(1, 16):
        a(f"v_mul_f32 v{x0}, v{l16r}, v{cr}"); a(f"v_mul_f32 v{x1}, v{l16r}, v{ci}")
        a(f"v_fma_f32 v{x0}, -v{l16i}, v{ci}, v{x0}"); a(f"v_fma_f32 v{ci}, v{l16i}, v{cr}, v{x1}")
        a(f"v_mov_b32 v{cr}, v{x0}")
        a(f"v_add_f32 v{A+2*(s-1)}, v{A+2*(s-1)}, v{cr}"); a(f"v_add_f32 v{A+2*(s-1)+1}, v{A+2*(s-1)+1}, v{ci}")
        a(f"ds_write_b64 v{vl}, {vr(A+2*(s-1),2)} offset:{s*512}")
    a("s_waitcnt lgkmcnt(0)")
    a("s_branch L_s_wait")
    a.label("L_s_gate")
    gxs = [big + 16, big + 24, big + 32]; gws = big + 40; gt = big + 48
    a(f"s_lshl_b32 s{T0}, s{sM}, 8"); a(f"s_lshl_b32 s{T1}, s{sN}, 4"); a(f"s_add_u32 s{T0}, s{T0}, s{T1}")
    a(f"s_add_u32 s{T0}, s{T0}, s{sWave}"); a(f"s_sub_u32 s{T0}, s{T0}, 1")
    a(f"s_add_u32 s{T1}, s{T0}, 7"); a(f"s_add_u32 s{T2}, s{T0}, 14")
    a(f"v_lshlrev_b32 v{gt}, 5, v0")
    srd(a, SS, PTR["gw"], 2048)
    a(f"buffer_load_dwordx4 {vr(gws,4)}, v{gt}, s[{SS}:{SS+3}], 0 offen"); a(f"buffer_load_dwordx4 {vr(gws+4,4)}, v{gt}, s[{SS}:{SS+3}], 0 offen offset:16")
    gate_row_loads(a, T0, gxs[0], gt); gate_row_loads(a, T1, gxs[1], gt)
    a(f"s_cmp_gt_u32 s{sWave}, 2"); a("s_cbranch_scc1 L_s_g2")
    gate_row_loads(a, T2, gxs[2], gt)
    a("s_waitcnt vmcnt(0)")
    gate_compute(a, T2, gxs[2], gws, gt + 1)
    a.label("L_s_g2")
    a("s_waitcnt vmcnt(0)")
    gate_compute(a, T0, gxs[0], gws, gt + 1); gate_compute(a, T1, gxs[1], gws, gt + 1)
    a.label("L_s_wait")
    a("s_barrier")
    calc_vag()
    a(f"ds_read_b128 {vr(ag,4)}, v{vag}")
    PITCH = 272
    vw = big + 9
    a(f"v_lshrrev_b32 v{vw}, 4, v0"); a(f"v_lshlrev_b32 v{vw}, 4, v{vw}"); a(f"s_lshl_b32 s{T0}, s{sWp}, 6"); a(f"v_add_u32 v{vw}, s{T0}, v{vw}")
    a(f"v_mul_u32_u24 v{vw}, {PITCH}, v{vw}")
    a(f"v_and_b32 v{big+10}, 15, v0"); a(f"v_lshl_add_u32 v{vw}, v{big+10}, 2, v{vw}")
    a(f"s_lshl_b32 s{T0}, s{sWq}, 6"); a(f"v_add_u32 v{vw}, s{T0}, v{vw}")
    vr_, vg_ = big + 10, big + 11
    a(f"v_lshrrev_b32 v{vr_}, 4, v0"); a(f"s_lshl_b32 s{T0}, s{sWave}, 5"); a(f"v_add_u32 v{vr_}, s{T0}, v{vr_}")
    a(f"s_lshl_b32 s{T1}, s{sM}, 8"); a(f"v_add_u32 v{vg_}, s{T1}, v{vr_}"); a(f"v_mul_u32_u24 v{vg_}, {RS_A2}, v{vg_}")
    a(f"v_mul_u32_u24 v{vr_}, {PITCH}, v{vr_}")
    a(f"v_and_b32 v{big+24}, 15, v0"); a(f"v_lshl_add_u32 v{vr_}, v{big+24}, 4, v{vr_}")
    a(f"v_and_b32 v{big+24}, 7, v0"); a(f"v_lshl_add_u32 v{vg_}, v{big+24}, 4, v{vg_}")
    a(f"v_bfe_u32 v{big+24}, v0, 3, 1"); a(f"v_lshl_add_u32 v{vg_}, v{big+24}, 11, v{vg_}")
    a(f"s_lshl_b32 s{T0}, s{sN}, 7"); a(f"s_add_u32 s{T0}, s{T0}, {WS_A2}")
    a("s_waitcnt lgkmcnt(0)")
    ore, oim, od = big + 12, big + 14, big + 16
    rb = big + 28
    st = [ag, tt]
    NPT = C.sparts; SP_ = 16 // NPT
    for s in range(16):
        scan2(s, st[s & 1], st[(s + 1) & 1])
        h = st[(s + 1) & 1]
        for jc in range(2):
            hr, hi_ = h + 2 * jc, h + 2 * jc + 1; kr, ki = prm + 4 * jc + 2, prm + 4 * jc + 3
            a(f"v_mul_f32 v{ore+jc}, v{kr}, v{hr}"); a(f"v_mul_f32 v{oim+jc}, -v{kr}, v{hi_}")
        for jc in range(2):
            hr, hi_ = h + 2 * jc, h + 2 * jc + 1; kr, ki = prm + 4 * jc + 2, prm + 4 * jc + 3
            a(f"v_fma_f32 v{ore+jc}, -v{ki}, v{hi_}, v{ore+jc}"); a(f"v_fma_f32 v{oim+jc}, -v{ki}, v{hr}, v{oim+jc}")
        d = od + 2 * (s % 4)
        a(f"v_cvt_pk_bf16_f32 v{d}, v{ore}, v{ore+1}"); a(f"v_cvt_pk_bf16_f32 v{d+1}, v{oim}, v{oim+1}")
        a(f"ds_write_b32 v{vw}, v{d} offset:{s*PITCH}"); a(f"ds_write_b32 v{vw}, v{d+1} offset:{s*PITCH+128}")
        if (s + 1) % SP_ == 0:
            p = s // SP_
            if p == NPT - 1: stamp(a, 5, st="ssm")
            ns_ = [n for n in range(8) if SP_ * p <= (4 * n) % 16 < SP_ * (p + 1)]
            a("s_waitcnt lgkmcnt(0)")
            a("s_barrier")
            for k, n in enumerate(ns_): a(f"ds_read_b128 {vr(rb+4*k,4)}, v{vr_} offset:{4*n*PITCH}")
            for k, n in enumerate(ns_):
                a(f"s_waitcnt lgkmcnt({len(ns_)-1-k})")
                a(f"s_add_u32 s{T1}, s{T0}, {4*n*RS_A2}")
                a(f"buffer_store_dwordx4 {vr(rb+4*k,4)}, v{vg_}, s[{SWS}:{SWS+3}], s{T1} offen{C.wt}")
    stamp(a, 6, st="ssm")
    return V.hi, AG + 8192

def phase2(a, role):
    R = "A" if role == 0 else "B"
    SW2, SE = 24, 72
    NS = C.ns
    TQ = 128 if NS == 2 else 256
    TP, mp, mq, NB = 128, 4, NS, (4 if NS == 2 else 3)
    LG = 1 if NS == 2 else 2
    XS = 8 // NS
    sG, sKQ2 = 0, 3
    V = Regs(10)
    P1 = OpKC(a, V, TP, 0, mp); P1.groups = [[0, 1]]
    P2 = OpNC(a, V, TP, 0, mp, D * 2)
    Qop = OpKC(a, V, TQ, TP * 128, mq, flags=C.a2ld); Qop.groups = [list(range(Qop.n))]
    SB = TP * 128 + Qop.bytes
    G = Gemm(a, V, NB, NB, TP * 128, Qop.bytes, mp, mq, (sBufD, sBufR, None, None, sCnt, sRole), True, 'P' if NS == 2 else 'Q', 'p2')
    nf = mp * mq
    accD = V.get(4 * nf, 2)
    accS = V.get(4 * nf, 2)
    vg = V.get(2 * mq, 2); vep = V.get(4)
    vex = V.get(6 * mp, 2) if NS == 2 else G.F[0][0] + (32 if C.xbf16 else 0)
    if NS != 2 and not C.xbf16: vex = accS
    dense = 1 if role == 1 else 0
    a(f"s_and_b32 s{T0}, s2, 7"); a(f"s_lshr_b32 s{T1}, s2, 3")
    a(f"s_lshr_b32 s{sG}, s{T0}, {3-LG}")
    a(f"s_and_b32 s{T2}, s{T0}, {XS-1}"); a(f"s_lshl_b32 s{sTt}, s{T2}, 2"); a(f"s_bfe_u32 s{T2}, s{T1}, 0x20002"); a(f"s_add_u32 s{sTt}, s{sTt}, s{T2}")
    a(f"s_and_b32 s{T2}, s{sG}, 1")
    if dense: a(f"s_xor_b32 s{T2}, s{T2}, 1")
    a(f"s_lshl_b32 s{sDt}, s{T2}, 2"); a(f"s_and_b32 s{T2}, s{T1}, 3"); a(f"s_add_u32 s{sDt}, s{sDt}, s{T2}")
    a(f"s_lshl_b32 s{sTile}, s{sTt}, 3"); a(f"s_add_u32 s{sTile}, s{sTile}, s{sDt}")
    a(f"s_lshr_b32 s{sWp}, s{sWave}, 2"); a(f"s_and_b32 s{sWq}, s{sWave}, 3")
    srd(a, SW2, PTR["w2"], F * D * 2)
    a(f"s_lshr_b32 s{T0}, s{sG}, {LG-1}"); a(f"s_cmp_eq_u32 s{T0}, 0")
    a(f"s_cselect_b32 s{SA}, s{PTR['cre']}, s{PTR['cim']}"); a(f"s_cselect_b32 s{SA+1}, s{PTR['cre']+1}, s{PTR['cim']+1}")
    a(f"s_mov_b32 s{SA+2}, {D*P_*2}"); a(f"s_mov_b32 s{SA+3}, 0x20000")
    Qop.lane_chunk(VT, VT + 1)
    a(f"v_lshrrev_b32 v{VT+1}, 3, v0"); a(f"v_lshl_add_u32 v{VT+3}, v{VT+1}, 11, v{VT}")
    for j in range(2):
        a(f"s_lshl_b32 s{T0}, s{sDt}, 7"); a(f"s_lshl_b32 s{T1}, s{sWave}, 4"); a(f"s_add_u32 s{T0}, s{T0}, s{T1}")
        if j: a(f"s_add_u32 s{T0}, s{T0}, 8")
        a(f"s_lshl_b32 s{T0}, s{T0}, 11")
        if j: a(f"s_sub_u32 s{T0}, s{T0}, 1024")
        P1.set_voff(j, VT + 3, T0, bool(j & 1))
    a(f"s_lshl_b32 s{sLdsP}, s{sWave}, 11")
    a(f"s_lshl_b32 s{T0}, s{sDt}, 8")
    P2.setup_dma(sWave, VT + 4, T0, U0)
    P2.setup_lds(sWave, sLdsP2, U0)
    a(f"v_lshrrev_b32 v{VT+1}, 3, v0"); a(f"v_mul_u32_u24 v{VT+1}, {RS_A2}, v{VT+1}"); a(f"v_add_u32 v{VT+3}, v{VT+1}, v{VT}")
    for j in range(Qop.n):
        a(f"s_mul_i32 s{T0}, s{sWave}, {TQ//8}")
        if j: a(f"s_add_u32 s{T0}, s{T0}, {8*j}")
        a(f"s_lshr_b32 s{T1}, s{T0}, 4"); a(f"s_add_u32 s{T1}, s{T1}, s{sG}"); a(f"s_and_b32 s{T1}, s{T1}, {NS-1}"); a(f"s_lshl_b32 s{T1}, s{T1}, 4")
        a(f"s_andn2_b32 s{T0}, s{T0}, {(NS-1) << 4}"); a(f"s_or_b32 s{T0}, s{T0}, s{T1}")
        a(f"s_mul_i32 s{T1}, s{sTt}, {TQ}"); a(f"s_add_u32 s{T0}, s{T0}, s{T1}"); a(f"s_mul_i32 s{T0}, s{T0}, {RS_A2}")
        if j: a(f"s_sub_u32 s{T0}, s{T0}, {1024*j}")
        Qop.set_voff(j, VT + 3, T0, bool(j & 1))
    a(f"s_mul_i32 s{sLdsQ}, s{sWave}, {Qop.n*1024}"); a(f"s_add_u32 s{sLdsQ}, s{sLdsQ}, {Qop.lds_off}")
    K2 = C.k2 if NS == 4 else 0
    nS = 32 // NS; base = (56 - K2) // NS
    assert base * NS == 56 - K2
    nD = base + (C.delta if role == 0 else -C.delta)
    colsS = 2048 // NS
    a(f"s_mul_i32 s{sKQ}, s{sG}, {colsS*2}"); a(f"s_and_b32 s{sKP}, s{sKQ}, 2047")
    if WS_A2: a(f"s_add_u32 s{sKQ}, s{sKQ}, {WS_A2}")
    a(f"s_lshr_b32 s{T0}, s{sG}, 1"); a(f"s_mul_i32 s{T0}, s{T0}, {2*base}")
    a(f"s_and_b32 s{T1}, s{sG}, 1"); a(f"s_mul_i32 s{T1}, s{T1}, {2*base - nD}"); a(f"s_add_u32 s{T0}, s{T0}, s{T1}")
    a(f"s_mul_i32 s{sKP2}, s{T0}, {64*D*2}"); a(f"s_lshl_b32 s{sKQ2}, s{T0}, 7"); a(f"s_add_u32 s{sKQ2}, s{sKQ2}, {WS_A2 + 4096}")
    a(f"s_mul_i32 s{T0}, s{sWp}, {mp}")
    P1.setup_read(T0, VT, U0); P2.setup_read(T0, VT, U0)
    a(f"s_mul_i32 s{T0}, s{sWq}, {mq}"); Qop.setup_read(T0, VT, U0)
    qd = lambda b: Qop.dma(b, sKQ, sTmp, sLdsQ, [SWS] * Qop.n)
    qd2 = lambda b: Qop.dma(b, sKQ2, sTmp, sLdsQ, [SWS] * Qop.n)
    segD = Seg(P2, Qop, accD, lambda b: P2.dma(b, sKP2, sTmp, sLdsP2, SW2), qd2, [f"s_add_u32 s{sKP2}, s{sKP2}, {64*D*2}"], [f"s_add_u32 s{sKQ2}, s{sKQ2}, 128"], "d")
    segS = Seg(P1, Qop, accS, lambda b: P1.dma(b, sKP, sTmp, sLdsP, [SA] * 2), qd, [f"s_add_u32 s{sKP}, s{sKP}, 128"], [f"s_add_u32 s{sKQ}, s{sKQ}, 128"], "s")
    stages = [segS] * nS + [segD] * nD
    N = len(stages)
    a("s_barrier")
    G.prologue(stages, "P")
    nP0 = 2 * G.leadP
    G.zero_first = True
    post_first = None
    fine = C.fine and NS == 4
    sMS = 49
    def chk_need(need):
        def chk(ok):
            if NS == 2:
                a(f"s_add_u32 s{U0}, s{U0}, s{U1}"); a(f"s_cmp_eq_u32 s{U0}, 16"); a(f"s_cbranch_scc1 {ok}")
            else:
                a(f"s_bitcmp1_b32 s{sG}, 0"); a(f"s_cselect_b32 s{sMS}, s{U1}, s{U0}")
                if fine:
                    a(f"s_and_b32 s{U0}, s{sMS}, {need}"); a(f"s_cmp_eq_u32 s{U0}, {need}"); a(f"s_cbranch_scc1 {ok}")
                else:
                    a(f"s_cmp_eq_u32 s{sMS}, 8"); a(f"s_cbranch_scc1 {ok}")
        return chk
    nfirst = G.leadQ + (1 if G.early == 'Q' else 0)
    chkS = chk_need((1 << nfirst) - 1)
    PW = 1
    if role == 0:
        a(f"s_waitcnt vmcnt({nP0})")
        a("s_barrier")
        stamp(a, 3)
        a(f"s_cmp_eq_u32 s{sWave}, {PW}"); a(f"s_cbranch_scc1 L_p2{R}_pl")
        a(f"s_cmp_lg_u32 s{sWave}, 0"); a(f"s_cbranch_scc1 L_p2{R}_dep")
        signal_cnt(a, "S", VT)
        a(f"s_branch L_p2{R}_dep")
        a.label(f"L_p2{R}_pl")
        poll_own(a, chkS, VT)
    elif C.dearly:
        a(f"s_waitcnt vmcnt({nP0})")
        a("s_barrier")
        stamp(a, 3)
        stamp(a, 6, st="dense")
        a(f"s_cmp_eq_u32 s{sWave}, {PW}"); a(f"s_cbranch_scc1 L_p2{R}_pl")
        a(f"s_cmp_lg_u32 s{sWave}, 0"); a(f"s_cbranch_scc1 L_p2{R}_dep")
        init_check(a, VT)
        signal_cnt(a, 2, VT)
        a(f"s_branch L_p2{R}_dep")
        a.label(f"L_p2{R}_pl")
        poll_own(a, chkS, VT)
    else:
        stamp(a, 3)
        stamp(a, 6, st="dense")
        a(f"s_cmp_lg_u32 s{sWave}, {PW}"); a(f"s_cbranch_scc1 L_p2{R}_dep")
        poll_own(a, chkS, VT)
        def post_first():
            sk = newlabel("pf")
            a(f"s_cmp_lg_u32 s{sWave}, 0"); a(f"s_cbranch_scc1 {sk}")
            init_check(a, VT)
            signal_cnt(a, 2, VT)
            a.label(sk)
    a.label(f"L_p2{R}_dep")
    a("s_barrier")
    G.prologue(stages, "Q")
    hooks = {}
    if fine:
        def mk(bit):
            def h():
                sk = newlabel("hs")
                a(f"s_cmp_lg_u32 s{sWave}, {PW}"); a(f"s_cbranch_scc1 {sk}")
                a(f"s_bitcmp1_b32 s{sMS}, {bit}"); a(f"s_cbranch_scc1 {sk}")
                poll_own(a, chk_need(1 << bit), VT)
                a.label(sk)
            return h
        for bit in range(nfirst, nS): hooks[bit - nfirst] = mk(bit)
    full = (0xff + 0xff + 16) if fine else 32
    def hookD():
        sk = newlabel("hk")
        stamp(a, 2, st="p2")
        a(f"s_cmp_lg_u32 s{sWave}, {PW}"); a(f"s_cbranch_scc1 {sk}")
        def chk(ok):
            a(f"s_add_u32 s{U0}, s{U0}, s{U1}"); a(f"s_add_u32 s{U0}, s{U0}, s{U3}"); a(f"s_cmp_eq_u32 s{U0}, {full}"); a(f"s_cbranch_scc1 {ok}")
        poll_own(a, chk, VT)
        a.label(sk)
        stamp(a, 3, st="p2")
    hd = nS - G.leadQ - (1 if G.early == 'Q' else 0)
    assert hd not in hooks
    hooks[hd] = hookD
    sXD = 44
    vt_own, vxo, vd2, vl16 = vep, vep + 1, vep + 2, vep + 3
    vx_, vds, vb2 = vex, vex + 2 * mp, vex + 4 * mp
    ex = []
    ex.append([f"s_mul_i32 s{T0}, s{sTt}, {TQ}", f"s_mul_i32 s{T1}, s{sWq}, {16*mq}", f"s_add_u32 s{T0}, s{T0}, s{T1}",
               f"v_and_b32 v{vt_own}, 15, v0", f"v_add_u32 v{vt_own}, s{T0}, v{vt_own}", f"v_lshlrev_b32 v{vxo}, 3, v{vt_own}"])
    for j in range(mq):
        ex.append([f"s_add_u32 s{T0}, s{sG}, {j}", f"s_and_b32 s{T0}, s{T0}, {NS-1}", f"s_lshl_b32 s{T0}, s{T0}, 7", f"s_add_u32 s{T0}, s{T0}, {WS_G}",
                   f"buffer_load_dwordx2 {vr(vg+2*j,2)}, v{vxo}, s[{SWS}:{SWS+3}], s{T0} offen sc1"])
    ex.append([f"s_lshl_b32 s{T0}, s{sG}, 4", f"v_add_u32 v{vt_own}, s{T0}, v{vt_own}",
               f"v_lshrrev_b32 v{vd2}, 4, v0", f"v_lshlrev_b32 v{vd2}, 2, v{vd2}",
               f"s_lshl_b32 s{T0}, s{sDt}, 7", f"s_lshl_b32 s{T1}, s{sWp}, 6", f"s_add_u32 s{T0}, s{T0}, s{T1}",
               f"v_add_u32 v{vd2}, s{T0}, v{vd2}", f"v_lshlrev_b32 v{vd2}, 1, v{vd2}",
               f"v_lshl_add_u32 v{vxo}, v{vt_own}, 11, v{vd2}", f"v_lshlrev_b32 v{vl16}, 4, v0"])
    for j in range(1, mq):
        ex.append([f"s_add_u32 s{T1}, s{sG}, {j}", f"s_and_b32 s{T1}, s{T1}, {NS-1}",
                   f"s_mul_i32 s{T0}, s{T1}, {XS}", f"s_and_b32 s{T2}, s2, {XS-1}", f"s_add_u32 s{T0}, s{T0}, s{T2}",
                   f"s_lshr_b32 s{T2}, s{sDt}, 2", f"s_xor_b32 s{T2}, s{T2}, s{T1}", f"s_and_b32 s{T2}, s{T2}, 1", f"s_xor_b32 s{T2}, s{T2}, 1",
                   f"s_lshl_b32 s{T2}, s{T2}, 7", f"s_or_b32 s{T0}, s{T0}, s{T2}", f"s_and_b32 s{T2}, s2, 0x78", f"s_or_b32 s{T0}, s{T0}, s{T2}",
                   f"s_lshl_b32 s{T0}, s{T0}, 3", f"s_add_u32 s{T0}, s{T0}, s{sWave}", f"s_mul_i32 s{T0}, s{T0}, {4096*(NS-1)}",
                   f"s_add_u32 s{sXD+j-1}, s{T0}, {WS_XB + (NS - j - 1) * 4096}"])
    ex2 = []
    for i in range(mp):
        ex2.append([f"buffer_load_dwordx2 {vr(vx_+2*i,2)}, v{vxo}, s[{SX}:{SX+3}], 0 offen offset:{32*i}"])
    ex2.append([f"s_mov_b32 s{SE}, s{PTR['dsk']}", f"s_mov_b32 s{SE+1}, s{PTR['dsk']+1}", f"s_mov_b32 s{SE+2}, 2048", f"s_mov_b32 s{SE+3}, 0x20000"])
    for i in range(mp):
        ex2.append([f"buffer_load_dwordx2 {vr(vds+2*i,2)}, v{vd2}, s[{SE}:{SE+3}], 0 offen offset:{32*i}"])
    ex2.append([f"s_mov_b32 s{SE}, s{PTR['b2']}", f"s_mov_b32 s{SE+1}, s{PTR['b2']+1}"])
    for i in range(mp):
        ex2.append([f"buffer_load_dwordx2 {vr(vb2+2*i,2)}, v{vd2}, s[{SE}:{SE+3}], 0 offen offset:{32*i}"])
    if NS == 2: extras = {N - NB: (ex + ex2, mq + 3 * mp)}
    else:
        nw = 0
        if C.endwarm:
            ex.append([f"buffer_load_dword v250, v{vxo}, s[{SX}:{SX+3}], 0 offen"])
            ex.append([f"s_mov_b32 s{SE}, s{PTR['dsk']}", f"s_mov_b32 s{SE+1}, s{PTR['dsk']+1}", f"s_mov_b32 s{SE+2}, 2048", f"s_mov_b32 s{SE+3}, 0x20000",
                       f"buffer_load_dword v250, v{vd2}, s[{SE}:{SE+3}], 0 offen"])
            ex.append([f"s_mov_b32 s{SE}, s{PTR['b2']}", f"s_mov_b32 s{SE+1}, s{PTR['b2']+1}", f"buffer_load_dword v250, v{vd2}, s[{SE}:{SE+3}], 0 offen"])
            nw = 3
            if C.endwarm >= 2:
                for j in range(1, mq):
                    ex.append([f"buffer_load_dword v250, v{vl16}, s[{SWS}:{SWS+3}], s{sXD+j-1} offen"])
                ex.append([f"s_mov_b32 s{SE}, s{PTR['out']}", f"s_mov_b32 s{SE+1}, s{PTR['out']+1}", f"s_mov_b32 s{SE+2}, {L*D*4}",
                           f"v_lshlrev_b32 v{VT}, 12, v{vt_own}", f"buffer_load_dword v250, v{VT}, s[{SE}:{SE+3}], 0 offen"])
                nw += mq
        extras = {N - NB: (ex, mq + nw)}
    if role == 0 and C.prefetch and C.w2it:
        SPW, sPW = 52, 1
        pw = [[f"s_lshl_b32 s{T0}, s{sM}, 4", f"s_add_u32 s{T0}, s{T0}, s{sN}", f"s_mul_i32 s{sPW}, s{T0}, {56*1024}", f"s_mul_i32 s{T1}, s{sWave}, {7*1024}",
               f"s_add_u32 s{sPW}, s{sPW}, s{T1}", f"s_mov_b32 s{SPW}, s{PTR['w2']}", f"s_mov_b32 s{SPW+1}, s{PTR['w2']+1}",
               f"s_add_u32 s{SPW+2}, s{sPW}, {7*1024}", f"s_mov_b32 s{SPW+3}, 0x20000", f"v_lshlrev_b32 v{VT+6}, 4, v0"]]
        for i in range(7):
            pw.append([f"buffer_load_dwordx4 v[252:255], v{VT+6}, s[{SPW}:{SPW+3}], s{sPW} offen offset:{(i%4)*1024}"] + ([f"s_add_u32 s{sPW}, s{sPW}, 4096"] if i == 3 else []))
        extras[C.w2it - 1] = (pw, 7)
    if C.codepf3: extras[N - C.codepf3] = code_pf_groups(VT + 3)
    stamp(a, 4)
    stamp(a, 1, st="p2")
    stamp(a, 3, st="clk"); stamp(a, 4, real=True, st="clk")
    G.run(stages, hooks, extras, post_first)
    stamp(a, 5)
    stamp(a, 4, st="p2")
    stamp(a, 5, st="clk"); stamp(a, 6, real=True, st="clk")
    stamp(a, 1, st="end")
    a("s_nop 7")
    a("s_waitcnt vmcnt(0)")
    def comb(i, j):
        c = 4 * (i * mq + j)
        for r in range(4):
            a(f"v_mul_f32 v{accD+c+r}, v{vg+2*j+1}, v{accD+c+r}"); a(f"v_fmac_f32 v{accD+c+r}, v{vg+2*j}, v{accS+c+r}")
    if K2:
        return phase2b(a, role, locals())
    assert NS == 2 or C.xbf16
    nst = (2 if C.xbf16 else 4) * (mq - 1)
    if NS != 2:
        for g_ in ex2: G.emit(g_)
    for j in range(1, mq):
        for i in range(mp): comb(i, j)
        if C.xbf16:
            for i2 in range(0, mp, 2):
                c0, c1 = accD + 4 * (i2 * mq + j), accD + 4 * ((i2 + 1) * mq + j)
                a(f"v_cvt_pk_bf16_f32 v{c0}, v{c0}, v{c0+1}"); a(f"v_cvt_pk_bf16_f32 v{c0+1}, v{c0+2}, v{c0+3}")
                a(f"v_cvt_pk_bf16_f32 v{c0+2}, v{c1}, v{c1+1}"); a(f"v_cvt_pk_bf16_f32 v{c0+3}, v{c1+2}, v{c1+3}")
                a(f"buffer_store_dwordx4 {vr(c0,4)}, v{vl16}, s[{SWS}:{SWS+3}], s{sXD+j-1} offen offset:{(i2//2)*1024} sc1")
        else:
            a("s_nop 1")
            for i in range(mp):
                c = accD + 4 * (i * mq + j)
                a(f"buffer_store_dwordx4 {vr(c,4)}, v{vl16}, s[{SWS}:{SWS+3}], s{sXD+j-1} offen offset:{i*1024} sc1")
    stamp(a, 2, st="end")
    for i in range(mp): comb(i, 0)
    t1, t2, t3 = VT + 5, VT + 6, VT + 7
    a(f"s_and_b32 s{T0}, s2, {XS-1}")
    a(f"v_mul_u32_u24 v{t1}, {XS}, v0"); a(f"v_add_u32 v{t1}, s{T0}, v{t1}")
    a(f"s_lshr_b32 s{T0}, s{sDt}, 2")
    a(f"v_and_b32 v{t2}, 1, v0"); a(f"v_xor_b32 v{t2}, s{T0}, v{t2}"); a(f"v_xor_b32 v{t2}, 1, v{t2}")
    a(f"s_lshr_b32 s{T0}, s2, 3"); a(f"s_and_b32 s{T0}, s{T0}, 15")
    a(f"v_lshlrev_b32 v{t2}, 4, v{t2}"); a(f"v_add_u32 v{t2}, s{T0}, v{t2}"); a(f"v_lshl_or_b32 v{t2}, v{t2}, 3, v{t1}")
    a(f"v_lshlrev_b32 v{t2}, 8, v{t2}")
    a(f"v_subrev_u32 v{t1}, s{sG}, v0"); a(f"v_and_b32 v{t1}, {NS-1}, v{t1}")
    a(f"v_sub_u32 v{t1}, {NS-1}, v{t1}"); a(f"v_lshl_add_u32 v{t2}, v{t1}, 2, v{t2}")
    a(f"v_mov_b32 v{t3}, 1")
    a(f"s_lshl_b32 s{T0}, 1, s{sG}"); a(f"s_andn2_b32 s{T0}, {(1 << NS) - 1}, s{T0}")
    a(f"s_lshl_b32 s{T1}, s{sWave}, 4"); a(f"s_add_u32 s{T1}, s{T1}, {WS_MB + 32}")
    a(f"s_lshl_b32 s{T3}, s2, 8"); a(f"s_add_u32 s{T3}, s{T3}, s{T1}")
    a(f"s_waitcnt vmcnt({nst})")
    x0, x1, y0, y1 = VT, VT + 1, VT + 2, VT + 3
    for i in range(mp):
        e = accD + 4 * (i * mq)
        for h in range(2):
            a(f"v_lshlrev_b32 v{x0}, 16, v{vx_+2*i+h}"); a(f"v_and_b32 v{x1}, 0xffff0000, v{vx_+2*i+h}")
            a(f"v_lshlrev_b32 v{y0}, 16, v{vds+2*i+h}"); a(f"v_and_b32 v{y1}, 0xffff0000, v{vds+2*i+h}")
            a(f"v_mul_f32 v{x0}, v{x0}, v{y0}"); a(f"v_mul_f32 v{x1}, v{x1}, v{y1}")
            a(f"v_cvt_pk_bf16_f32 v{x0}, v{x0}, v{x1}")
            a(f"v_and_b32 v{x1}, 0xffff0000, v{x0}"); a(f"v_lshlrev_b32 v{x0}, 16, v{x0}")
            a(f"v_fmac_f32 v{e+2*h}, v{vg}, v{x0}"); a(f"v_fmac_f32 v{e+2*h+1}, v{vg}, v{x1}")
            a(f"v_lshlrev_b32 v{x0}, 16, v{vb2+2*i+h}"); a(f"v_and_b32 v{x1}, 0xffff0000, v{vb2+2*i+h}")
            a(f"v_fmac_f32 v{e+2*h}, v{vg+1}, v{x0}"); a(f"v_fmac_f32 v{e+2*h+1}, v{vg+1}, v{x1}")
    a("s_waitcnt vmcnt(0)")
    stamp(a, 5, st="p2")
    stamp(a, 3, st="end")
    a(f"s_mov_b32 exec_lo, s{T0}"); a("s_mov_b32 exec_hi, 0")
    a(f"buffer_store_dword v{t3}, v{t2}, s[{SWS}:{SWS+3}], s{T1} offen sc1")
    a("s_mov_b64 exec, -1")
    stamp(a, 4, st="end")
    def chkx(ok):
        if NS == 4: a(f"s_and_b32 s{U0}, s{U0}, s{U1}"); a(f"s_and_b32 s{U0}, s{U0}, s{U3}")
        a(f"s_cmp_lg_u32 s{U0}, 0"); a(f"s_cbranch_scc1 {ok}")
    poll(a, SWS, T3, chkx, VT, wide=(4 if NS == 4 else 1), sleep=1)
    stamp(a, 5, st="end")
    rb = G.F[0][0]
    nrx = mp * (NS - 1)
    assert 2 * (4 * mp + 4 * mq) >= 4 * nrx
    inbox_offset(a, T0)
    per = 2 if C.xbf16 else 4
    for k in range(per * (NS - 1)):
        if k and k % per == 0: a(f"s_add_u32 s{T0}, s{T0}, 4096")
        a(f"buffer_load_dwordx4 {vr(rb+4*k,4)}, v{vl16}, s[{SWS}:{SWS+3}], s{T0} offen offset:{(k%per)*1024} sc1")
    srd(a, SE, PTR["out"], L * D * 4)
    vo = VT
    a(f"v_lshlrev_b32 v{vo}, 12, v{vt_own}"); a(f"v_lshl_add_u32 v{vo}, v{vd2}, 1, v{vo}")
    a("s_waitcnt vmcnt(0)")
    stamp(a, 6, st="end")
    for i in range(mp):
        e = accD + 4 * (i * mq)
        for k in range(NS - 1):
            if C.xbf16:
                src = rb + 8 * k + 4 * (i // 2) + 2 * (i % 2)
                x0, x1 = VT + 2, VT + 3
                for h in range(2):
                    a(f"v_lshlrev_b32 v{x0}, 16, v{src+h}"); a(f"v_and_b32 v{x1}, 0xffff0000, v{src+h}")
                    a(f"v_add_f32 v{e+2*h}, v{e+2*h}, v{x0}"); a(f"v_add_f32 v{e+2*h+1}, v{e+2*h+1}, v{x1}")
            else:
                for r in range(4): a(f"v_add_f32 v{e+r}, v{e+r}, v{rb+k*4*mp+4*i+r}")
        a(f"buffer_store_dwordx4 {vr(e,4)}, v{vo}, s[{SE}:{SE+3}], 0 offen offset:{64*i}{C.wto}")
    stamp(a, 6)
    stamp(a, 6, st="p2")
    return V.hi, NB * SB

def phase2b(a, role, L_):
    g = L_
    R, NS, XS, mp, mq, K2 = g["R"], g["NS"], g["XS"], g["mp"], g["mq"], g["K2"]
    accD, accS, vg, G, P2, Qop, SW2, SE = g["accD"], g["accS"], g["vg"], g["G"], g["P2"], g["Qop"], g["SW2"], g["SE"]
    sG, sKQ2, sXD, comb, V = g["sG"], g["sKQ2"], g["sXD"], g["comb"], g["V"]
    vt_own, vxo, vd2, vl16 = g["vt_own"], g["vxo"], g["vd2"], g["vl16"]
    assert C.xbf16 and NS == 4
    NB2 = 6
    Vq = Regs(Qop.vd)
    Q2 = OpKC(a, Vq, 64, 128 * 128, 1, flags=C.a2ld); Q2.groups = [[0]]
    assert Vq.hi <= Qop.c1 + 1
    Vf = Regs(G.F[0][0])
    G2 = Gemm(a, Vf, NB2, NB2, 128 * 128, Q2.bytes, mp, 1, (sBufD, sBufR, None, None, sCnt, sRole), True, 'P', 'p2b')
    G2.acc_stride = 4 * mq
    assert Vf.hi <= G.F[1][1] + 4 * mq
    Q2.lane_chunk(VT, VT + 1)
    a(f"v_lshrrev_b32 v{VT+1}, 3, v0"); a(f"v_mul_u32_u24 v{VT+1}, {RS_A2}, v{VT+1}"); a(f"v_add_u32 v{VT+3}, v{VT+1}, v{VT}")
    a(f"s_lshr_b32 s{T0}, s{sWave}, 1"); a(f"s_lshl_b32 s{T0}, s{T0}, 6"); a(f"s_and_b32 s{T1}, s{sWave}, 1"); a(f"s_lshl_b32 s{T2}, s{T1}, 6")
    a(f"s_lshl_b32 s{T1}, s{T1}, 3"); a(f"s_add_u32 s{T0}, s{T0}, s{T1}"); a(f"s_lshl_b32 s{T1}, s{sG}, 4"); a(f"s_add_u32 s{T0}, s{T0}, s{T1}")
    a(f"s_lshl_b32 s{T1}, s{sTt}, 8"); a(f"s_add_u32 s{T0}, s{T0}, s{T1}"); a(f"s_mul_i32 s{T0}, s{T0}, {RS_A2}")
    Q2.set_voff(0, VT + 3, T0, T2)
    a(f"s_lshl_b32 s{sLdsQ}, s{sWave}, 10"); a(f"s_add_u32 s{sLdsQ}, s{sLdsQ}, {Q2.lds_off}")
    Q2.setup_read(sWq, VT, U0)
    a(f"s_mov_b32 s{sKP2}, {(56-K2)*64*D*2}"); a(f"s_mov_b32 s{sKQ2}, {WS_A2 + 4096 + (56-K2)*128}")
    seg2 = Seg(P2, Q2, accD, lambda b: P2.dma(b, sKP2, sTmp, sLdsP2, SW2), lambda b: Q2.dma(b, sKQ2, sTmp, sLdsQ, [SWS]),
               [f"s_add_u32 s{sKP2}, s{sKP2}, {64*D*2}"], [f"s_add_u32 s{sKQ2}, s{sKQ2}, 128"], "b")
    st2 = [seg2] * K2
    a("s_barrier")
    G2.prologue(st2)
    for j in range(1, mq):
        for i in range(mp): comb(i, j)
        for i2 in range(0, mp, 2):
            c0, c1 = accD + 4 * (i2 * mq + j), accD + 4 * ((i2 + 1) * mq + j)
            a(f"v_cvt_pk_bf16_f32 v{c0}, v{c0}, v{c0+1}"); a(f"v_cvt_pk_bf16_f32 v{c0+1}, v{c0+2}, v{c0+3}")
            a(f"v_cvt_pk_bf16_f32 v{c0+2}, v{c1}, v{c1+1}"); a(f"v_cvt_pk_bf16_f32 v{c0+3}, v{c1+2}, v{c1+3}")
            a(f"buffer_store_dwordx4 {vr(c0,4)}, v{vl16}, s[{SWS}:{SWS+3}], s{sXD+j-1} offen offset:{(i2//2)*1024} sc1")
    G2.note('xs', 6)
    stamp(a, 2, st="end")
    vx_, vds, vb2 = accS + 4, accS + 20, accS + 36
    for i in range(mp): a(f"buffer_load_dwordx2 {vr(vx_+2*i,2)}, v{vxo}, s[{SX}:{SX+3}], 0 offen offset:{32*i}")
    srd(a, SE, PTR["dsk"], 2048)
    for i in range(mp): a(f"buffer_load_dwordx2 {vr(vds+2*i,2)}, v{vd2}, s[{SE}:{SE+3}], 0 offen offset:{32*i}")
    a(f"s_mov_b32 s{SE}, s{PTR['b2']}"); a(f"s_mov_b32 s{SE+1}, s{PTR['b2']+1}")
    for i in range(mp): a(f"buffer_load_dwordx2 {vr(vb2+2*i,2)}, v{vd2}, s[{SE}:{SE+3}], 0 offen offset:{32*i}")
    G2.note('ex2', 12)
    t1, t2, t3 = VT + 5, VT + 6, VT + 7
    sMask, sFl = sXD + 3, sXD + 4
    a(f"s_and_b32 s{T0}, s2, {XS-1}")
    a(f"v_mul_u32_u24 v{t1}, {XS}, v0"); a(f"v_add_u32 v{t1}, s{T0}, v{t1}")
    a(f"s_lshr_b32 s{T0}, s{sDt}, 2")
    a(f"v_and_b32 v{t2}, 1, v0"); a(f"v_xor_b32 v{t2}, s{T0}, v{t2}"); a(f"v_xor_b32 v{t2}, 1, v{t2}")
    a(f"s_lshr_b32 s{T0}, s2, 3"); a(f"s_and_b32 s{T0}, s{T0}, 15")
    a(f"v_lshlrev_b32 v{t2}, 4, v{t2}"); a(f"v_add_u32 v{t2}, s{T0}, v{t2}"); a(f"v_lshl_or_b32 v{t2}, v{t2}, 3, v{t1}")
    a(f"v_lshlrev_b32 v{t2}, 8, v{t2}")
    a(f"v_subrev_u32 v{t1}, s{sG}, v0"); a(f"v_and_b32 v{t1}, {NS-1}, v{t1}")
    a(f"v_sub_u32 v{t1}, {NS-1}, v{t1}"); a(f"v_lshl_add_u32 v{t2}, v{t1}, 2, v{t2}")
    a(f"v_mov_b32 v{t3}, 1")
    a(f"s_lshl_b32 s{sMask}, 1, s{sG}"); a(f"s_andn2_b32 s{sMask}, {(1 << NS) - 1}, s{sMask}")
    a(f"s_lshl_b32 s{sFl}, s{sWave}, 4"); a(f"s_add_u32 s{sFl}, s{sFl}, {WS_MB + 32}")
    def flag():
        a(f"s_mov_b32 exec_lo, s{sMask}"); a("s_mov_b32 exec_hi, 0")
        a(f"buffer_store_dword v{t3}, v{t2}, s[{SWS}:{SWS+3}], s{sFl} offen sc1")
        a("s_mov_b64 exec, -1")
    fit = C.flagit
    def hookF():
        a(f"s_waitcnt vmcnt({G2.allow_at[fit]})")
        flag()
    G2.want_allow = {fit: 'xs'}
    G2.run(st2, {fit: hookF})
    stamp(a, 3, st="end")
    a("s_nop 7")
    a("s_waitcnt vmcnt(0)")
    a(f"s_lshl_b32 s{T3}, s2, 8"); a(f"s_add_u32 s{T3}, s{T3}, s{sFl}")
    def chkx(ok):
        a(f"s_and_b32 s{U0}, s{U0}, s{U1}"); a(f"s_and_b32 s{U0}, s{U0}, s{U3}")
        a(f"s_cmp_lg_u32 s{U0}, 0"); a(f"s_cbranch_scc1 {ok}")
    poll(a, SWS, T3, chkx, VT, wide=4, sleep=1)
    stamp(a, 4, st="end")
    rbq = [accD + 4, accD + 8, accD + 12, accD + 20, accD + 24, accD + 28]
    inbox_offset(a, T0)
    for k in range(6):
        if k and k % 2 == 0: a(f"s_add_u32 s{T0}, s{T0}, 4096")
        a(f"buffer_load_dwordx4 {vr(rbq[k],4)}, v{vl16}, s[{SWS}:{SWS+3}], s{T0} offen offset:{(k%2)*1024} sc1")
    for i in range(mp): comb(i, 0)
    x0, x1, y0, y1 = VT, VT + 1, VT + 2, VT + 3
    for i in range(mp):
        e = accD + 4 * (i * mq)
        for h in range(2):
            a(f"v_lshlrev_b32 v{x0}, 16, v{vx_+2*i+h}"); a(f"v_and_b32 v{x1}, 0xffff0000, v{vx_+2*i+h}")
            a(f"v_lshlrev_b32 v{y0}, 16, v{vds+2*i+h}"); a(f"v_and_b32 v{y1}, 0xffff0000, v{vds+2*i+h}")
            a(f"v_mul_f32 v{x0}, v{x0}, v{y0}"); a(f"v_mul_f32 v{x1}, v{x1}, v{y1}")
            a(f"v_cvt_pk_bf16_f32 v{x0}, v{x0}, v{x1}")
            a(f"v_and_b32 v{x1}, 0xffff0000, v{x0}"); a(f"v_lshlrev_b32 v{x0}, 16, v{x0}")
            a(f"v_fmac_f32 v{e+2*h}, v{vg}, v{x0}"); a(f"v_fmac_f32 v{e+2*h+1}, v{vg}, v{x1}")
            a(f"v_lshlrev_b32 v{x0}, 16, v{vb2+2*i+h}"); a(f"v_and_b32 v{x1}, 0xffff0000, v{vb2+2*i+h}")
            a(f"v_fmac_f32 v{e+2*h}, v{vg+1}, v{x0}"); a(f"v_fmac_f32 v{e+2*h+1}, v{vg+1}, v{x1}")
    srd(a, SE, PTR["out"], L * D * 4)
    vo = VT
    a(f"v_lshlrev_b32 v{vo}, 12, v{vt_own}"); a(f"v_lshl_add_u32 v{vo}, v{vd2}, 1, v{vo}")
    a("s_waitcnt vmcnt(0)")
    stamp(a, 5, st="end")
    for i in range(mp):
        e = accD + 4 * (i * mq)
        for k in range(NS - 1):
            src = rbq[2 * k + i // 2] + 2 * (i % 2)
            x0, x1 = VT + 2, VT + 3
            for h in range(2):
                a(f"v_lshlrev_b32 v{x0}, 16, v{src+h}"); a(f"v_and_b32 v{x1}, 0xffff0000, v{src+h}")
                a(f"v_add_f32 v{e+2*h}, v{e+2*h}, v{x0}"); a(f"v_add_f32 v{e+2*h+1}, v{e+2*h+1}, v{x1}")
        a(f"buffer_store_dwordx4 {vr(e,4)}, v{vo}, s[{SE}:{SE+3}], 0 offen offset:{64*i}{C.wto}")
    stamp(a, 6)
    stamp(a, 6, st="p2"); stamp(a, 6, st="end")
    return V.hi, max(g["NB"] * g["SB"], NB2 * (128 * 128 + Q2.bytes))

def emit_stamps(a):
    a("s_memrealtime s[88:89]"); a("s_waitcnt lgkmcnt(0)")
    a(f"s_cmp_lg_u32 s{sWave}, {C.stwave}"); a("s_cbranch_scc1 L_end")
    a("s_waitcnt vmcnt(0)")
    for i in range(1, 7): a(f"s_sub_u32 s{92+i}, s{92+i}, s92")
    a("s_mov_b32 s99, s100")
    a("s_nop 0")
    a(f"s_mov_b32 s100, s88")
    for i in range(8): a(f"v_mov_b32 v{12+i}, s{93+i}")
    a("v_mov_b32 v11, 0")
    if C.dbgout:
        a("s_and_b32 s76, s2, 127"); a("s_cmp_lg_u32 s76, 0"); a("s_cbranch_scc1 L_end")
        a("s_sub_u32 s77, s100, s99"); a("v_mov_b32 v18, s77")
        a("s_lshr_b32 s76, s2, 7"); a("s_mul_i32 s76, s76, 28"); a("s_add_u32 s76, s76, 8")
        a("s_mov_b64 exec, 1")
        for i in range(7): a(f"buffer_store_dword v{12+i}, v11, s[{SDBG}:{SDBG+3}], s76 offen offset:{4*i}")
        return
    a(f"s_lshl_b32 s{T0}, s2, 5"); a(f"s_add_u32 s{T0}, s{T0}, {WS_ST}")
    a("s_mov_b64 exec, 1")
    a(f"buffer_store_dwordx4 v[12:15], v11, s[{SWS}:{SWS+3}], s{T0} offen")
    a(f"buffer_store_dwordx4 v[16:19], v11, s[{SWS}:{SWS+3}], s{T0} offen offset:16")

HEADER = open("gated_mix__ssm_conv_s5__dense_activation_squared_relu__prompt.s.ref").read().split("; Override launch")[0]

def generate(**kw):
    for k, v in kw.items():
        assert hasattr(C, k), k
        setattr(C, k, v)
    _lbl[0] = 0
    a = Asm()
    kernel_header(a, NAME)
    a("s_cmp_ge_u32 s2, 256"); a("s_cbranch_scc1 L_end")
    a("s_load_dwordx16 s[40:55], s[0:1], 0"); a("s_load_dwordx16 s[56:71], s[0:1], 64"); a("s_load_dwordx4 s[72:75], s[0:1], 128")
    if C.dbgst:
        a("s_memtime s[92:93]"); a("s_memrealtime s[100:101]")
    if C.codepf == 1 or C.codepf is True:
        a("s_getpc_b64 s[4:5]")
        a.label("L_pc")
        a("v_lshlrev_b32 v2, 7, v0")
        for k in range(C.pfwin):
            if k: a("v_add_u32 v2, 0x10000, v2")
            a("v_min_u32 v3, L_codeend-L_pc-4, v2")
            a("global_load_dword v250, v3, s[4:5]")
    elif C.codepf == 2:
        a("s_getpc_b64 s[4:5]")
        a.label("L_pc")
        a("s_lshr_b32 s6, s2, 3"); a("s_lshl_b32 s6, s6, 11")
        a("v_lshlrev_b32 v2, 7, v0"); a("v_add_u32 v2, s6, v2")
        a("v_min_u32 v2, L_codeend-L_pc-4, v2")
        a("v_cmp_gt_u32 vcc, 16, v0"); a("s_and_saveexec_b64 s[6:7], vcc"); a("s_cbranch_execz L_cpf")
        a("global_load_dword v250, v2, s[4:5]")
        a.label("L_cpf")
        a("s_mov_b64 exec, s[6:7]")
    a("v_lshrrev_b32 v1, 6, v0"); a("v_and_b32 v0, 63, v0"); a(f"v_readfirstlane_b32 s{sWave}, v1")
    a(f"s_and_b32 s{T0}, s2, 7"); a(f"s_lshr_b32 s{T1}, s2, 3")
    a(f"s_lshr_b32 s{sRole}, s{T1}, 4")
    a(f"s_bfe_u32 s{T2}, s{T1}, 0x20002"); a(f"s_and_b32 s{T3}, s{T1}, 3")
    a(f"s_lshr_b32 s{sM}, s{T0}, 2"); a(f"s_lshl_b32 s{sM}, s{sM}, 2"); a(f"s_add_u32 s{sM}, s{sM}, s{T2}")
    a(f"s_and_b32 s{sN}, s{T0}, 3"); a(f"s_lshl_b32 s{sN}, s{sN}, 2"); a(f"s_add_u32 s{sN}, s{sN}, s{T3}")
    mode = C.rot
    if mode is True: mode = 1
    if mode == 1:
        a(f"s_lshl_b32 s{sRot}, s{sRole}, 2"); a(f"s_add_u32 s{sRot}, s{sRot}, s{T3}"); a(f"s_lshl_b32 s{sRot}, s{sRot}, 1")
        a(f"s_lshl_b32 s{T2}, s{T2}, 2"); a(f"s_add_u32 s{sRot}, s{sRot}, s{T2}"); a(f"s_and_b32 s{T0}, s{T0}, 3")
        a(f"s_add_u32 s{sRot}, s{sRot}, s{T0}"); a(f"s_and_b32 s{sRot}, s{sRot}, 15")
    elif mode == 2:
        a(f"s_and_b32 s{sRot}, s{T0}, 3"); a(f"s_lshl_b32 s{sRot}, s{sRot}, 2"); a(f"s_lshr_b32 s{T0}, s{T0}, 2"); a(f"s_lshl_b32 s{T0}, s{T0}, 1")
        a(f"s_add_u32 s{sRot}, s{sRot}, s{T0}"); a(f"s_and_b32 s{sRot}, s{sRot}, 15")
    elif mode == 3:
        a(f"s_and_b32 s{sRot}, s{T0}, 3"); a(f"s_lshl_b32 s{sRot}, s{sRot}, 2"); a(f"s_lshr_b32 s{T0}, s{T0}, 2"); a(f"s_lshl_b32 s{T0}, s{T0}, 3")
        a(f"s_add_u32 s{sRot}, s{sRot}, s{T0}"); a(f"s_xor_b32 s{T2}, s{T2}, s{T3}"); a(f"s_and_b32 s{T2}, s{T2}, 1"); a(f"s_lshl_b32 s{T2}, s{T2}, 3")
        a(f"s_add_u32 s{sRot}, s{sRot}, s{T2}"); a(f"s_and_b32 s{sRot}, s{sRot}, 15")
    elif mode == 4:
        a(f"s_xor_b32 s{T2}, s{T2}, s{T3}"); a(f"s_and_b32 s{T2}, s{T2}, 1"); a(f"s_lshl_b32 s{sRot}, s{T2}, 3")
        a(f"s_and_b32 s{T0}, s{T0}, 3"); a(f"s_lshl_b32 s{T0}, s{T0}, 1"); a(f"s_add_u32 s{sRot}, s{sRot}, s{T0}"); a(f"s_and_b32 s{sRot}, s{sRot}, 15")
    elif mode == 8:
        a(f"s_add_u32 s{sRot}, s{T0}, s{T2}"); a(f"s_and_b32 s{sRot}, s{sRot}, 3"); a(f"s_lshl_b32 s{sRot}, s{sRot}, 2")
    elif mode == 9:
        a(f"s_add_u32 s{sRot}, s{T0}, s{T2}"); a(f"s_and_b32 s{sRot}, s{sRot}, 1"); a(f"s_lshl_b32 s{sRot}, s{sRot}, 3")
    elif mode == 10:
        a(f"s_add_u32 s{sRot}, s{T0}, s{T2}"); a(f"s_and_b32 s{sRot}, s{sRot}, 7"); a(f"s_lshl_b32 s{sRot}, s{sRot}, 1")
    elif mode == 5:
        a(f"s_and_b32 s{sRot}, s{T0}, 3"); a(f"s_lshl_b32 s{sRot}, s{sRot}, 2")
    elif mode == 6:
        a(f"s_lshl_b32 s{sRot}, s{T2}, 2"); a(f"s_and_b32 s{T0}, s{T0}, 3"); a(f"s_add_u32 s{sRot}, s{sRot}, s{T0}"); a(f"s_and_b32 s{sRot}, s{sRot}, 15")
    elif mode == 7:
        a(f"s_lshl_b32 s{sRot}, s{T3}, 2"); a(f"s_and_b32 s{T0}, s{T0}, 3"); a(f"s_add_u32 s{sRot}, s{sRot}, s{T0}"); a(f"s_and_b32 s{sRot}, s{sRot}, 15")
    else:
        a(f"s_mov_b32 s{sRot}, 0")
    if C.dbgst:
        pass
    a(f"s_cmp_eq_u32 s{sRole}, 1"); a("s_cbranch_scc1 L_ssm")
    v1, l1 = phase1_dense(a)
    v2, l2 = phase2(a, 1)
    a("s_branch L_fin")
    a.label("L_ssm")
    v3, l3 = phase1_ssm(a)
    v4, l4 = phase2(a, 0)
    a.label("L_fin")
    if C.dbgst: emit_stamps(a)
    a.label("L_end")
    a("s_endpgm")
    a.label("L_codeend")
    nv = max(v1, v2, v3, v4); lds = max(l1, l2, l3, l4)
    assert nv <= 250
    if C.codepf or C.tlb: nv = 251
    if C.bulk or C.w2it: nv = 256
    head = HEADER + f"; @launch grid=(256,1,1) block=(512,1,1) lds={lds}\n"
    head += '.amdgcn_target "amdgcn-amd-amdhsa--gfx950"\n.text\n'
    return head + a.text() + '.section .rodata,"a"\n' + kernel_desc(NAME, nv, 102)

if __name__ == "__main__":
    kw = json.loads(sys.argv[2]) if len(sys.argv) > 2 else {}
    open(sys.argv[1], "w").write(generate(**kw))
```
